```python
import torch

def _softmax(x, axis=-1):
    return torch.softmax(x, dim=axis)

def _gelu(x):
    return torch.nn.functional.gelu(x, approximate='tanh')

def _silu(x):
    return torch.nn.functional.silu(x)

def _sigmoid(x):
    return torch.sigmoid(x)

def _layernorm(x, axis=-1, eps=1e-05):
    m = x.mean(dim=axis, keepdim=True)
    v = x.var(dim=axis, keepdim=True, unbiased=False)
    return (x - m) / torch.sqrt(v + eps)

def _scatter_add(tgt, idx, src, axis=0):
    return tgt.clone().index_add_(axis, idx, src)

def _segment_sum(src, seg, n):
    out = torch.zeros((n,) + src.shape[1:], dtype=src.dtype)
    return out.index_add_(0, seg, src)

def _pad(x, pw):
    flat = tuple((v for pair in reversed(pw) for v in pair))
    return torch.nn.functional.pad(x, flat)
kernel_name = 'sequential_preLN__spectral_gfnet__mixer_gmlp__prompt'

def setup_inputs():

    _w = lambda a: (lambda t: t.to(torch.bfloat16) if t.is_floating_point() else t)(torch.as_tensor(a))

    def _A_setup():
        B, S, D = (1, 2048, 640)
        Df = D // 2 + 1
        return {'x': _w((lambda *s: torch.randn(*s, dtype=torch.bfloat16) * 0.05)(B, S, D)), 'w_r': _w((lambda *s: torch.randn(*s, dtype=torch.bfloat16) * 0.4)(S, Df) * 0.02), 'w_i': _w((lambda *s: torch.randn(*s, dtype=torch.bfloat16) * 0.4)(S, Df) * 0.02)}
    _A_in = _A_setup()

    def _B_setup():
        B, S, D, F = (1, 2048, 640, 1728)
        Fh = F // 2
        return {'x': _w((lambda *s: torch.randn(*s, dtype=torch.bfloat16) * 0.05)(B, S, D)), 'w_in': _w((lambda *s: torch.randn(*s, dtype=torch.bfloat16) * 0.4)(D, 2 * Fh)), 'w_sp': _w(0.01 * (lambda *s: torch.randn(*s, dtype=torch.bfloat16) * 0.4)(S, S)), 'b_sp': _w(1.0 + 0.01 * (lambda *s: torch.randn(*s, dtype=torch.bfloat16) * 0.05)(S)), 'w_out': _w((lambda *s: torch.randn(*s, dtype=torch.bfloat16) * 0.05)(Fh, D))}
    _B_in = _B_setup()
    return {'A_x': _A_in['x'], 'A_w_r': _A_in['w_r'], 'A_w_i': _A_in['w_i'], 'B_x': _B_in['x'], 'B_w_in': _B_in['w_in'], 'B_w_sp': _B_in['w_sp'], 'B_b_sp': _B_in['b_sp'], 'B_w_out': _B_in['w_out']}

def reference(A_x, A_w_r, A_w_i, B_x, B_w_in, B_w_sp, B_b_sp, B_w_out):

    def _A_ref(x, w_r, w_i):
        B, S, D = x.shape
        X = (lambda x, axes=(-2, -1): torch.fft.rfft2(x.float(), dim=axes))(x, axes=(-2, -1))
        W = w_r + 1j * w_i
        X = X * W
        y = (lambda x, s, axes=(-2, -1): torch.fft.irfft2(x, s=s, dim=axes).to(torch.bfloat16))(X, (S, D), axes=(-2, -1))
        return y

    def _B_ref(x, w_in, w_sp, b_sp, w_out):
        B, S, D = x.shape
        F = w_in.shape[-1]
        Fh = F // 2
        z = _gelu(torch.einsum('bsd,df->bsf', x, w_in))
        z1 = z[..., :Fh].clone()
        z2 = _layernorm(z[..., Fh:], axis=-1)
        g = torch.einsum('ts,bsf->btf', w_sp, z2) + b_sp[None, :, None]
        return torch.einsum('bsf,fd->bsd', z1 * g, w_out)
    x = A_x
    h = x + _A_ref(_layernorm(x, axis=-1), A_w_r, A_w_i)
    h2 = h + _B_ref(_layernorm(h, axis=-1), B_w_in, B_w_sp, B_b_sp, B_w_out)
    return h2
```

```python
import re
import numpy as np

REG_RE = re.compile(r'\b([vas])(\d+)\b|\b([vas])\[(\d+):(\d+)\]|\b(vcc_lo|vcc_hi|vcc|exec_lo|exec_hi|exec|m0|scc)\b')

TRANS = ('v_exp_', 'v_log_', 'v_rcp_', 'v_rsq_', 'v_sqrt_', 'v_sin_', 'v_cos_')


def regs_of(tok):
    out = set()
    for m in REG_RE.finditer(tok):
        if m.group(1):
            out.add((m.group(1), int(m.group(2))))
        elif m.group(3):
            for i in range(int(m.group(4)), int(m.group(5)) + 1):
                out.add((m.group(3), i))
        else:
            n = m.group(6)
            if n == 'vcc':
                out.add(('x', 'vcc_lo')); out.add(('x', 'vcc_hi'))
            elif n == 'exec':
                out.add(('x', 'exec_lo')); out.add(('x', 'exec_hi'))
            else:
                out.add(('x', n))
    return out


def split_ops(s):
    ops = []; depth = 0; cur = ''
    for ch in s:
        if ch == '[': depth += 1
        if ch == ']': depth -= 1
        if ch == ',' and depth == 0:
            ops.append(cur.strip()); cur = ''
        else:
            cur += ch
    if cur.strip(): ops.append(cur.strip())
    return ops


class Ins:
    __slots__ = ('text', 'mn', 'kind', 'w', 'r', 'srcc', 'srcab', 'passes', 'dpp', 'trans', 'wide', 'nop', 'label',
                 'target', 'ldsdma', 'opsel', 'dot', 'dtok', 'ctok', 'lanesel')

    def __init__(self, text):
        self.text = text
        t = text.split(';')[0].strip()
        self.label = None; self.target = None; self.nop = 0
        self.w = set(); self.r = set(); self.srcc = set(); self.srcab = set()
        self.passes = 0; self.dpp = False; self.trans = False; self.wide = False; self.ldsdma = False
        self.opsel = False; self.dot = False; self.dtok = None; self.ctok = None; self.lanesel = set()
        if t.endswith(':'):
            self.kind = 'label'; self.label = t[:-1]; self.mn = ''
            return
        if t == '' or t.startswith('.'):
            self.kind = 'dir'; self.mn = ''
            return
        parts = t.split(None, 1)
        mn = parts[0]; self.mn = mn
        rest = parts[1] if len(parts) > 1 else ''
        ops = split_ops(rest)
        mods = ''
        if ops:
            last = ops[-1].split(None, 1)
            if len(last) > 1:
                ops[-1] = last[0]; mods = last[1]
        R = [regs_of(o) for o in ops]
        allr = set().union(*R) if R else set()
        if mn == 's_nop':
            self.kind = 'nop'; self.nop = int(ops[0], 0) + 1
        elif mn.startswith('s_cbranch') or mn == 's_branch':
            self.kind = 'branch'; self.target = ops[0]
        elif mn.startswith('v_mfma'):
            self.kind = 'mfma'
            self.w = R[0]; self.srcab = R[1] | R[2]; self.srcc = R[3]; self.r = self.srcab | self.srcc
            self.dtok = ops[0]; self.ctok = ops[3]
            self.passes = 8 if '32x32' in mn else 4
        elif mn.startswith('v_'):
            self.kind = 'valu'
            nd = 1
            if '_co_' in mn or mn.startswith('v_div_scale'): nd = 2
            if mn.startswith('v_permlane') and 'swap' in mn:
                self.w = R[0] | R[1]; self.r = R[0] | R[1]
            else:
                self.w = set().union(*R[:nd]); self.r = set().union(*R[nd:]) if len(R) > nd else set()
            if mn.startswith('v_cmpx'):
                self.w |= {('x', 'exec_lo'), ('x', 'exec_hi')}
            if mn.startswith(('v_fmac', 'v_mac', 'v_dot2c', 'v_writelane', 'v_pk_fmac')) or 'dpp' in mn or any(k in mods for k in ('row_', 'quad_perm', 'wave_')):
                self.r |= R[0]
            if mn.startswith('v_cndmask') and len(ops) == 3:
                self.r |= {('x', 'vcc_lo'), ('x', 'vcc_hi')}
            if mn.startswith(('v_addc', 'v_subb')) and len(ops) <= 4:
                self.r |= {('x', 'vcc_lo'), ('x', 'vcc_hi')}
            self.dpp = any(k in mods for k in ('row_', 'quad_perm', 'wave_'))
            self.trans = mn.startswith(TRANS)
            self.dot = mn.startswith('v_dot')
            self.opsel = ('sdwa' in mn) or ('dst_sel' in mods) or (('op_sel' in mods) and not mn.startswith('v_pk_'))
            if mn.startswith(('v_readlane', 'v_writelane')):
                self.lanesel = R[2]
        elif mn.startswith(('buffer_', 'global_', 'flat_')):
            self.kind = 'vmem'
            is_lds = (' lds' in (' ' + mods)) or ('_lds_' in mn)
            self.ldsdma = is_lds
            if ('load' in mn) and not is_lds:
                self.w = R[0]; self.r = set().union(*R[1:])
            elif 'atomic' in mn and 'sc0' in mods:
                self.w = R[0]; self.r = allr
            else:
                self.r = allr
            if is_lds: self.r |= {('x', 'm0')}
            self.wide = ('store' in mn) and ('x3' in mn or 'x4' in mn)
            if self.wide:
                self.srcc = R[0] if mn.startswith('buffer_') else R[1]
        elif mn.startswith('ds_'):
            self.kind = 'ds'
            if mn.startswith(('ds_read', 'ds_bpermute', 'ds_permute', 'ds_swizzle')) or '_rtn' in mn:
                self.w = R[0]; self.r = set().union(*R[1:])
            else:
                self.r = allr
        elif mn.startswith('s_'):
            self.kind = 'salu'
            if mn.startswith(('s_cmp', 's_waitcnt', 's_barrier', 's_endpgm', 's_setprio', 's_sleep', 's_bitcmp')):
                self.r = allr
            else:
                self.w = R[0] if R else set(); self.r = set().union(*R[1:]) if len(R) > 1 else set()
                if 'saveexec' in mn:
                    self.w |= {('x', 'exec_lo'), ('x', 'exec_hi')}
        else:
            raise ValueError('unknown instr ' + text)


EXEC = {('x', 'exec_lo'), ('x', 'exec_hi')}


def is_sg(r):
    return r[0] in ('s', 'x')


def need(p, c):
    n = 0
    if p.kind == 'valu':
        vw = {r for r in p.w if r[0] in 'va'}
        sw = {r for r in p.w if is_sg(r)}
        if c.kind == 'mfma' and (vw & c.r): n = max(n, 2)
        if c.kind == 'valu':
            if c.dpp and (vw & c.r): n = max(n, 2)
            if c.mn.startswith(('v_readlane', 'v_readfirstlane')) and (vw & c.r): n = max(n, 1)
            if c.mn.startswith('v_permlane') and (vw & c.r): n = max(n, 2)
            if sw & c.r: n = max(n, 2)
            if sw & c.lanesel: n = max(n, 4)
            if p.opsel and (vw & (c.r | c.w)): n = max(n, 1)
            if (sw & EXEC):
                if c.dpp: n = max(n, 5)
                if c.mn.startswith(('v_readlane', 'v_readfirstlane', 'v_writelane', 'v_permlane')): n = max(n, 4)
        if p.trans and (vw & c.r) and not (c.kind == 'valu' and c.trans): n = max(n, 1)
        if p.dot and (vw & (c.r | c.w)):
            n = max(n, 3)
        if c.kind == 'vmem' and (sw & c.r): n = max(n, 5)
        if c.kind == 'mfma' and (sw & EXEC): n = max(n, 4)
    if p.kind == 'mfma':
        P = p.passes
        if c.kind == 'mfma':
            if p.w & c.srcab: n = max(n, 8 if P == 4 else 12)
            if p.w & c.srcc:
                if not (c.ctok == p.dtok and c.passes == P): n = max(n, 6 if P == 4 else 10)
            elif p.w & c.w:
                n = max(n, 8 if P == 4 else 12)
        elif c.kind in ('valu', 'vmem', 'ds'):
            if p.w & (c.r | c.w): n = max(n, 8 if P == 4 else 12)
            if c.kind == 'valu' and (p.srcc & c.w): n = max(n, 3 if P == 4 else 7)
    if p.kind == 'vmem' and p.wide:
        if p.srcc & c.w: n = max(n, 2)
    if p.kind == 'salu' and ('x', 'm0') in p.w and c.kind == 'vmem' and c.ldsdma: n = max(n, 1)
    return n


def slots(i):
    if i.kind in ('label', 'dir'): return 0
    if i.kind == 'nop': return i.nop
    return 1


def required(hist, c):
    if c.kind in ('label', 'dir', 'nop'): return 0
    d = 0; worst = 0
    for p in reversed(hist):
        if d >= 20: break
        if p.kind not in ('label', 'dir', 'nop'):
            worst = max(worst, need(p, c) - d)
        d += slots(p)
    return worst


def fix_hazards(lines):
    ins = [Ins(l) for l in lines]
    changed = True
    it = 0
    while changed:
        changed = False; it += 1
        assert it < 50
        out = []
        for c in ins:
            n = required(out[-40:], c)
            if n > 0:
                out.append(Ins(f's_nop {n-1}')); changed = True
            out.append(c)
        ins = out
        labels = {i.label: k for k, i in enumerate(ins) if i.kind == 'label'}
        for k, b in enumerate(ins):
            if b.kind == 'branch' and b.target in labels:
                hist = ins[max(0, k - 40):k + 1]
                j = labels[b.target] + 1
                seen = []
                cnt = 0
                while j < len(ins) and cnt < 24:
                    c = ins[j]
                    n = required(hist + seen, c)
                    if n > 0:
                        ins.insert(j, Ins(f's_nop {n-1}')); changed = True
                        break
                    seen.append(c); cnt += slots(c); j += 1
                if changed: break
    return [i.text for i in ins]


class Kern:
    def __init__(self, name, grid, block, lds, nvgpr=128, nagpr=0, nsgpr=96):
        self.name = name; self.grid = grid; self.block = block; self.lds = lds
        self.nvgpr = nvgpr; self.nagpr = nagpr; self.nsgpr = nsgpr
        self.lines = []
        self._lab = 0

    def __call__(self, text):
        for l in text.strip('\n').split('\n'):
            l = l.strip()
            if l: self.lines.append(l)

    def label(self, base='L'):
        self._lab += 1
        return f'{self.name}_{base}{self._lab}'

    def text(self):
        body = fix_hazards(self.lines)
        s = f'.globl {self.name}\n.p2align 8\n.type {self.name},@function\n{self.name}:\n'
        for l in body:
            s += (l if l.endswith(':') else '  ' + l) + '\n'
        return s

    def desc(self):
        acc = (self.nvgpr + 3) // 4 * 4
        tot = acc + self.nagpr
        return f""".p2align 6
.amdhsa_kernel {self.name}
  .amdhsa_next_free_vgpr {tot}
  .amdhsa_next_free_sgpr {self.nsgpr}
  .amdhsa_accum_offset {acc}
  .amdhsa_group_segment_fixed_size 0
  .amdhsa_kernarg_size 88
  .amdhsa_user_sgpr_count 2
  .amdhsa_user_sgpr_kernarg_segment_ptr 1
  .amdhsa_system_sgpr_workgroup_id_x 1
.end_amdhsa_kernel
"""


def table_text(name, u32):
    u32 = np.ascontiguousarray(u32).view(np.uint32).ravel()
    s = f'.p2align 8\n.type {name},@object\n{name}:\n'
    for i in range(0, len(u32), 8):
        s += '.long ' + ','.join('0x%x' % v if v else '0' for v in u32[i:i + 8]) + '\n'
    return s


def build_file(kerns, tables, header=''):
    s = header
    for k in kerns:
        s += f'; @launch kernel={k.name} grid=({k.grid},1,1) block=({k.block},1,1) lds={k.lds}\n'
    s += '.amdgcn_target "amdgcn-amd-amdhsa--gfx950"\n.text\n'
    for k in kerns:
        s += k.text()
    s += '.section .rodata,"a"\n'
    for k in kerns:
        s += k.desc()
    for n, t in tables.items():
        s += table_text(n, t)
    return s
```

```python
import numpy as np
D='data/'
def bf2f(u):
    return (u.astype(np.uint32) << 16).view(np.float32)
def f2bf_bits(f):
    f = np.ascontiguousarray(f, dtype=np.float32)
    u = f.view(np.uint32)
    r = ((u >> 16) & 1) + 0x7FFF
    return ((u + r) >> 16).astype(np.uint16)
def rbf(f):
    return bf2f(f2bf_bits(f))
def rf16(f):
    return np.asarray(f, dtype=np.float32).astype(np.float16).astype(np.float32)
def load(name, shape, seed=0):
    return bf2f(np.fromfile(f"{D}s{seed}_{name}.bf16", dtype=np.uint16)).reshape(shape)
def ln_ref(x):
    x64 = x.astype(np.float64)
    m = rbf(x64.mean(-1, keepdims=True).astype(np.float32))
    v = rbf(x64.var(-1, keepdims=True).astype(np.float32))
    d = rbf(x - m)
    s = rbf(np.sqrt(rbf(v + np.float32(1e-5))))
    return rbf(d / s)
```

```python
from asmlib import *
from tables import TAB_BYTES

WS_T = 0x000000
WS_U = 0x300000
WS_H = 0x600000
WS_HN = 0x900000
TU_BYTES = 256 * 8 * 336 * 4
X_BYTES = 2048 * 640 * 2
MFMA = 'v_mfma_f32_16x16x32_bf16'


def vr(a, n=1):
    return f'v{a}' if n == 1 else f'v[{a}:{a+n-1}]'


def sr(a, n=1):
    return f's{a}' if n == 1 else f's[{a}:{a+n-1}]'


def srd_from(k, s, lo, hi, off, size):
    if off:
        k(f's_add_u32 s{s}, s{lo}, 0x{off:x}\ns_addc_u32 s{s+1}, s{hi}, 0')
    elif s != lo:
        k(f's_mov_b32 s{s}, s{lo}\ns_mov_b32 s{s+1}, s{hi}')
    k(f's_mov_b32 s{s+2}, 0x{size:x}\ns_mov_b32 s{s+3}, 0x00020000')


def tab_srd(k, s):
    k(f'''s_getpc_b64 s[{s}:{s+1}]
s_add_u32 s{s}, s{s}, tab@rel32@lo+4
s_addc_u32 s{s+1}, s{s+1}, tab@rel32@hi+12
s_mov_b32 s{s+2}, {TAB_BYTES}
s_mov_b32 s{s+3}, 0x00020000''')


def cmul_planar(k, a, b, c, d, ore, oim, t, conj=False):
    for h in (0, 2):
        k(f'v_pk_mul_f32 {vr(t+h,2)}, {vr(b+h,2)}, {vr(d+h,2)}')
    for h in (0, 2):
        k(f'v_pk_mul_f32 {vr(oim+h,2)}, {vr(b+h,2)}, {vr(c+h,2)}')
    for h in (0, 2):
        if not conj:
            k(f'v_pk_fma_f32 {vr(ore+h,2)}, {vr(a+h,2)}, {vr(c+h,2)}, {vr(t+h,2)} neg_lo:[0,0,1] neg_hi:[0,0,1]')
        else:
            k(f'v_pk_fma_f32 {vr(ore+h,2)}, {vr(a+h,2)}, {vr(c+h,2)}, {vr(t+h,2)}')
    for h in (0, 2):
        if not conj:
            k(f'v_pk_fma_f32 {vr(oim+h,2)}, {vr(a+h,2)}, {vr(d+h,2)}, {vr(oim+h,2)}')
        else:
            k(f'v_pk_fma_f32 {vr(oim+h,2)}, {vr(a+h,2)}, {vr(d+h,2)}, {vr(oim+h,2)} neg_lo:[1,0,0] neg_hi:[1,0,0]')


def wave_reduce2(k, a, b, sa, sb):
    for m in ('quad_perm:[1,0,3,2] row_mask:0xf bank_mask:0xf', 'quad_perm:[2,3,0,1] row_mask:0xf bank_mask:0xf',
              'row_half_mirror row_mask:0xf bank_mask:0xf', 'row_mirror row_mask:0xf bank_mask:0xf',
              'row_bcast:15 row_mask:0xa bank_mask:0xf', 'row_bcast:31 row_mask:0xc bank_mask:0xf'):
        k(f'v_add_f32_dpp v{a}, v{a}, v{a} {m}')
        k(f'v_add_f32_dpp v{b}, v{b}, v{b} {m}')
    k(f'v_readlane_b32 s{sa}, v{a}, 63\nv_readlane_b32 s{sb}, v{b}, 63')


def ln_stats(k, sa, sb, n, vm, vrs, t):
    inv = np.float32(1.0 / n).view(np.uint32)
    k(f'''v_mov_b32 v{t}, 0x{inv:x}
v_mul_f32 v{vm}, s{sa}, v{t}
v_mul_f32 v{t+1}, s{sb}, v{t}
v_fma_f32 v{t+1}, -v{vm}, v{vm}, v{t+1}
v_max_f32 v{t+1}, 0, v{t+1}
v_cvt_pk_bf16_f32 v{t}, v{vm}, v{t+1}
v_lshlrev_b32 v{vm}, 16, v{t}
v_and_b32 v{t+1}, 0xffff0000, v{t}
v_add_f32 v{t+1}, 0x3727c5ac, v{t+1}
v_cvt_pk_bf16_f32 v{t}, v{t+1}, v{t+1}
v_and_b32 v{t}, 0xffff0000, v{t}
v_sqrt_f32 v{t}, v{t}
v_cvt_pk_bf16_f32 v{t}, v{t}, v{t}
v_and_b32 v{t}, 0xffff0000, v{t}
v_rcp_f32 v{vrs}, v{t}''')


def ln_apply(k, f, n, vm, vrs, out):
    for i in range(0, n, 2):
        k(f'v_pk_add_f32 {vr(f+i,2)}, {vr(f+i,2)}, {vr(vm,2)} op_sel_hi:[1,0] neg_lo:[0,1] neg_hi:[0,1]')
    for i in range(0, n, 2):
        k(f'v_cvt_pk_bf16_f32 v{out+i//2}, v{f+i}, v{f+i+1}')
    for i in range(0, n, 2):
        k(f'v_lshlrev_b32 v{f+i}, 16, v{out+i//2}\nv_and_b32 v{f+i+1}, 0xffff0000, v{out+i//2}')
    for i in range(0, n, 2):
        k(f'v_pk_mul_f32 {vr(f+i,2)}, {vr(f+i,2)}, {vr(vrs,2)} op_sel_hi:[1,0]')
    for i in range(0, n, 2):
        k(f'v_cvt_pk_bf16_f32 v{out+i//2}, v{f+i}, v{f+i+1}')


SW = 'op_sel:[0,1] op_sel_hi:[1,0]'


def fft8(k, R, A, inverse, vs):
    r = lambda i: vr(R + 2 * i, 2)
    a = lambda i: vr(A + 2 * i, 2)
    neg = 'neg_lo:[0,1] neg_hi:[0,1]'
    mi = SW + ' neg_hi:[0,1]'
    pi = SW + ' neg_lo:[0,1]'
    if inverse: mi, pi = pi, mi
    k(f'''v_pk_add_f32 {a(0)}, {r(0)}, {r(4)}
v_pk_add_f32 {a(1)}, {r(0)}, {r(4)} {neg}
v_pk_add_f32 {a(2)}, {r(2)}, {r(6)}
v_pk_add_f32 {a(3)}, {r(2)}, {r(6)} {neg}
v_pk_add_f32 {a(4)}, {r(1)}, {r(5)}
v_pk_add_f32 {a(5)}, {r(1)}, {r(5)} {neg}
v_pk_add_f32 {a(6)}, {r(3)}, {r(7)}
v_pk_add_f32 {a(7)}, {r(3)}, {r(7)} {neg}
v_pk_add_f32 {r(0)}, {a(0)}, {a(2)}
v_pk_add_f32 {r(1)}, {a(0)}, {a(2)} {neg}
v_pk_add_f32 {r(2)}, {a(4)}, {a(6)}
v_pk_add_f32 {r(3)}, {a(4)}, {a(6)} {neg}
v_pk_add_f32 {r(4)}, {a(1)}, {a(3)} {mi}
v_pk_add_f32 {r(5)}, {a(1)}, {a(3)} {pi}
v_pk_add_f32 {r(6)}, {a(5)}, {a(7)} {mi}
v_pk_add_f32 {r(7)}, {a(5)}, {a(7)} {pi}
v_pk_add_f32 {a(0)}, {r(0)}, {r(2)}
v_pk_add_f32 {a(4)}, {r(0)}, {r(2)} {neg}
v_pk_add_f32 {a(2)}, {r(1)}, {r(3)} {mi}
v_pk_add_f32 {a(6)}, {r(1)}, {r(3)} {pi}
v_pk_add_f32 {r(0)}, {r(6)}, {r(6)} {mi}
v_pk_add_f32 {r(1)}, {r(7)}, {r(7)} {pi}
v_pk_fma_f32 {a(1)}, {r(0)}, {vr(vs,2)}, {r(4)} op_sel_hi:[1,0,1]
v_pk_fma_f32 {a(5)}, {r(0)}, {vr(vs,2)}, {r(4)} op_sel_hi:[1,0,1] neg_lo:[1,0,0] neg_hi:[1,0,0]
v_pk_fma_f32 {a(3)}, {r(1)}, {vr(vs,2)}, {r(5)} op_sel_hi:[1,0,1] neg_lo:[1,0,0] neg_hi:[1,0,0]
v_pk_fma_f32 {a(7)}, {r(1)}, {vr(vs,2)}, {r(5)} op_sel_hi:[1,0,1]''')
    return [A + 2 * i for i in range(8)]


def smul(k, dst, src, s, tmp, conj=False):
    k(f'v_pk_mul_f32 {vr(tmp,2)}, {vr(src,2)}, {sr(s,2)} op_sel_hi:[1,0]')
    ng = 'neg_hi:[1,0,0]' if conj else 'neg_lo:[1,0,0]'
    k(f'v_pk_fma_f32 {vr(dst,2)}, {vr(src,2)}, {sr(s,2)}, {vr(tmp,2)} op_sel:[1,1,0] op_sel_hi:[0,1,1] {ng}')


def gen_k0():
    XP = 1280; EX0 = 10240; EXP = 2576
    k = Kern('k0_kernel', 256, 512, EX0 + 8 * EXP, nvgpr=128)
    END = k.label('end')
    k(f'''s_cmp_ge_u32 s2, 256
s_cbranch_scc1 {END}
s_load_dwordx2 s[4:5], s[0:1], 0
s_load_dwordx2 s[40:41], s[0:1], 80''')
    tab_srd(k, 12)
    k(f'''s_lshl_b32 s33, s2, 6
s_add_u32 s33, s33, 32768
s_load_dwordx16 s[16:31], s[12:13], s33
v_lshrrev_b32 v1, 6, v0
v_and_b32 v2, 63, v0
v_readfirstlane_b32 s34, v1
v_lshlrev_b32 v3, 4, v2
s_movk_i32 s38, 0x1000''')
    for i in range(8):
        so = '0' if i < 4 else 's38'
        k(f'buffer_load_dwordx4 {vr(64+4*i,4)}, v3, s[12:15], {so} offen offset:{(i%4)*1024}')
    k(f'''s_lshl_b32 s35, s34, 8
s_add_u32 s35, s35, s2
s_mul_i32 s35, s35, 1280
v_lshlrev_b32 v58, 3, v2
v_lshlrev_b32 v59, 2, v2
s_waitcnt lgkmcnt(0)''')
    srd_from(k, 4, 4, 5, 0, X_BYTES)
    srd_from(k, 8, 40, 41, WS_T, TU_BYTES)
    k(f'''s_lshl_b32 s33, s2, 6
s_add_u32 s33, s33, 0x1800000
s_add_u32 s52, s40, s33
s_addc_u32 s53, s41, 0
s_mov_b32 s54, 64
s_mov_b32 s55, 0x00020000
v_lshlrev_b32 v62, 2, v0
v_mov_b32 v63, 0
buffer_store_dword v63, v62, s[52:55], 0 offen''')
    k(f'''buffer_load_dwordx2 v[4:5], v58, s[4:7], s35 offen
buffer_load_dwordx2 v[6:7], v58, s[4:7], s35 offen offset:512
buffer_load_dword v8, v59, s[4:7], s35 offen offset:1024
s_mul_i32 s39, s34, {XP}
v_add_u32 v58, s39, v58
v_add_u32 v59, s39, v59
v_and_b32 v50, 15, v2
v_lshrrev_b32 v51, 4, v2
v_lshrrev_b32 v52, 2, v50
v_and_b32 v53, 3, v50
v_lshl_add_u32 v54, v51, 3, v52
v_add_u32 v55, 4, v54
v_subrev_u32 v56, 20, v54
v_min_u32 v54, v54, v56
v_subrev_u32 v56, 20, v55
v_min_u32 v55, v55, v56
v_lshlrev_b32 v53, 3, v53
v_lshl_add_u32 v54, v54, 6, v53
v_lshl_add_u32 v55, v55, 6, v53
v_add_u32 v54, s39, v54
v_add_u32 v55, s39, v55
s_mul_i32 s42, s34, {EXP}
s_add_u32 s42, s42, {EX0}
v_mul_u32_u24 v56, 80, v51
v_add_u32 v57, v56, v50
v_lshlrev_b32 v57, 3, v57
v_add_u32 v60, s42, v57
v_sub_u32 v61, {8*260}, v57
v_add_u32 v61, s42, v61
s_waitcnt vmcnt(0)''')
    for i in range(5):
        k(f'v_lshlrev_b32 v{10+2*i}, 16, v{4+i}\nv_and_b32 v{11+2*i}, 0xffff0000, v{4+i}')
    k('''v_pk_add_f32 v[20:21], v[10:11], v[12:13]
v_pk_mul_f32 v[22:23], v[10:11], v[10:11]
v_pk_add_f32 v[24:25], v[14:15], v[16:17]
v_pk_fma_f32 v[22:23], v[12:13], v[12:13], v[22:23]
v_pk_add_f32 v[20:21], v[20:21], v[18:19]
v_pk_fma_f32 v[22:23], v[14:15], v[14:15], v[22:23]
v_pk_add_f32 v[20:21], v[20:21], v[24:25]
v_pk_fma_f32 v[22:23], v[16:17], v[16:17], v[22:23]
v_pk_fma_f32 v[22:23], v[18:19], v[18:19], v[22:23]
v_add_f32 v20, v20, v21
v_add_f32 v22, v22, v23''')
    wave_reduce2(k, 20, 22, 36, 37)
    ln_stats(k, 36, 37, 640, 20, 22, 24)
    ln_apply(k, 10, 10, 20, 22, 4)
    k('''ds_write_b64 v58, v[4:5]
ds_write_b64 v58, v[6:7] offset:512
ds_write_b32 v59, v8 offset:1024
s_waitcnt lgkmcnt(0)
ds_read_b64_tr_b16 v[4:5], v54
ds_read_b64_tr_b16 v[6:7], v55
ds_read_b64_tr_b16 v[8:9], v54 offset:32
ds_read_b64_tr_b16 v[10:11], v55 offset:32
s_waitcnt lgkmcnt(2)''')
    k(f'''{MFMA} v[12:15], v[4:7], v[64:67], 0
{MFMA} v[16:19], v[4:7], v[68:71], 0
s_waitcnt lgkmcnt(0)
{MFMA} v[20:23], v[8:11], v[64:67], 0
{MFMA} v[24:27], v[8:11], v[68:71], 0''')
    cmul_planar(k, 12, 16, 72, 76, 28, 32, 44)
    cmul_planar(k, 20, 24, 80, 84, 36, 40, 44)
    for t in range(2):
        for h in range(2):
            re = 28 + 8 * t + 2 * h; im = 32 + 8 * t + 2 * h; o = 2 * t + h
            k(f'''v_cvt_pk_bf16_f32 v{4+o}, v{re}, v{re+1}
v_cvt_pk_bf16_f32 v{8+o}, v{im}, v{im+1}
v_cvt_pk_bf16_f32 v{12+o}, -v{im}, -v{im+1}
v_cvt_pk_bf16_f32 v{16+o}, v{re}, -v{re+1}
v_cvt_pk_bf16_f32 v{20+o}, v{im}, -v{im+1}
v_cvt_pk_bf16_f32 v{24+o}, -v{im}, v{im+1}''')
    k(f'''{MFMA} v[28:31], v[88:91], v[4:7], 0
{MFMA} v[32:35], v[92:95], v[4:7], 0
{MFMA} v[36:39], v[88:91], v[16:19], 0
{MFMA} v[40:43], v[92:95], v[16:19], 0
{MFMA} v[28:31], v[92:95], v[12:15], v[28:31]
{MFMA} v[32:35], v[88:91], v[8:11], v[32:35]
{MFMA} v[36:39], v[92:95], v[24:27], v[36:39]
{MFMA} v[40:43], v[88:91], v[20:23], v[40:43]
s_mov_b32 exec_lo, 0x07ff07ff
s_mov_b32 exec_hi, 0x07ff07ff''')
    for r in range(4):
        k(f'ds_write2_b32 v60, v{28+r}, v{32+r} offset0:{40*r} offset1:{40*r+1}')
    for r in range(4):
        k(f'v_xor_b32 v{40+r}, 0x80000000, v{40+r}')
    for r in range(4):
        k(f'ds_write2_b32 v61, v{36+r}, v{40+r} offset0:{40*(3-r)} offset1:{40*(3-r)+1}')
    k(f'''s_mov_b64 exec, -1
s_waitcnt lgkmcnt(0)
s_barrier
v_cmp_gt_u32 vcc, 321, v0
s_and_saveexec_b64 s[44:45], vcc
s_cbranch_execz {END}
v_lshlrev_b32 v1, 3, v0
v_lshlrev_b32 v2, 2, v0''')
    for n in range(8):
        k(f'ds_read_b64 {vr(4+2*n,2)}, v1 offset:{EX0+n*EXP}')
    k(f'''v_mov_b32 v40, 0x3f3504f3
s_mul_i32 s46, s2, {8*1344}
s_add_u32 s47, s46, {3*1344}
s_add_u32 s48, s46, {6*1344}
s_waitcnt lgkmcnt(0)''')
    T = fft8(k, 4, 20, False, 40)
    for k2 in range(8):
        if k2 == 0:
            k(f'v_cvt_pk_bf16_f32 v4, v{T[0]}, v{T[0]+1}')
        else:
            smul(k, T[k2], T[k2], 16 + 2 * k2, 42 + 2 * (k2 & 1))
            k(f'v_cvt_pk_bf16_f32 v{4+k2}, v{T[k2]}, v{T[k2]+1}')
        k(f'buffer_store_dword v{4+k2}, v2, s[8:11], s{46+k2//3} offen offset:{(k2%3)*1344}')
    k(f'{END}:\ns_endpgm')
    return k


def gen_k1():
    P = 1040; W0 = 16 * P
    k = Kern('k1_kernel', 168, 256, 32 * P, nvgpr=160)
    END = k.label('end')
    k(f'''s_cmp_ge_u32 s2, 168
s_cbranch_scc1 {END}
s_load_dwordx2 s[4:5], s[0:1], 8
s_load_dwordx2 s[16:17], s[0:1], 16
s_load_dwordx2 s[40:41], s[0:1], 80''')
    tab_srd(k, 12)
    k(f'''s_and_b32 s33, s2, 7
s_lshr_b32 s34, s2, 3
v_lshrrev_b32 v1, 6, v0
v_and_b32 v2, 63, v0
v_readfirstlane_b32 s35, v1
v_lshlrev_b32 v3, 4, v2
s_movk_i32 s38, 0x2000
s_movk_i32 s39, 0x3000
v_and_b32 v4, 15, v2
v_lshrrev_b32 v5, 4, v2''')
    for i in range(8):
        k(f'buffer_load_dwordx4 {vr(96+4*i,4)}, v3, s[12:15], s{38+i//4} offen offset:{(i%4)*1024}')
    k(f'''v_mul_u32_u24 v6, {16*8*1344}, v4
v_lshl_add_u32 v6, v5, 4, v6
s_lshl_b32 s36, s35, 5
s_add_u32 s36, s36, s33
s_mul_i32 s36, s36, 1344
s_lshl_b32 s37, s34, 6
s_add_u32 s36, s36, s37
s_add_u32 s42, s36, {8*1344}
s_add_u32 s43, s36, {16*1344}
s_add_u32 s44, s36, {24*1344}
v_and_b32 v7, 1, v5
v_lshrrev_b32 v8, 1, v5
v_lshl_add_u32 v9, v4, 4, v7
v_mul_u32_u24 v9, {8*642}, v9
v_lshl_add_u32 v9, v8, 4, v9
s_lshl_b32 s45, s35, 5
s_add_u32 s45, s45, s33
s_mul_i32 s45, s45, 642
s_lshl_b32 s37, s34, 5
s_add_u32 s45, s45, s37
s_add_u32 s46, s45, {16*642}
s_waitcnt lgkmcnt(0)''')
    srd_from(k, 4, 4, 5, 0, 2048 * 642)
    srd_from(k, 16, 16, 17, 0, 2048 * 642)
    srd_from(k, 8, 40, 41, WS_T, TU_BYTES)
    srd_from(k, 20, 40, 41, WS_U, TU_BYTES)
    so = ['s36', 's42', 's43', 's44']
    for i in range(4):
        k(f'buffer_load_dwordx4 {vr(16+4*i,4)}, v6, s[8:11], {so[i]} offen')
    for i in range(2):
        k(f'buffer_load_dwordx4 {vr(32+8*i,4)}, v9, s[4:7], s{45+i} offen')
        k(f'buffer_load_dwordx4 {vr(36+8*i,4)}, v9, s[16:19], s{45+i} offen')
    k(f'''v_mul_u32_u24 v10, {4*P}, v5
v_lshl_add_u32 v10, v4, 2, v10
s_lshl_b32 s37, s35, 8
v_add_u32 v10, s37, v10
v_mul_u32_u24 v11, {8*P}, v8
v_lshl_add_u32 v11, v7, 6, v11
v_lshl_add_u32 v11, v4, 2, v11
v_add_u32 v11, s37, v11
v_lshlrev_b32 v12, 6, v4
v_lshl_add_u32 v12, v5, 4, v12
s_mul_i32 s37, s35, {4*P}
v_add_u32 v12, s37, v12
s_mov_b32 s47, 0x05040100
s_mov_b32 s48, 0x07060302''')
    for i in range(4):
        k(f's_waitcnt vmcnt({7-i})')
        for j in range(4):
            k(f'ds_write_b32 v10, v{16+4*i+j} offset:{j*P+64*i}')
    for i in range(2):
        k(f's_waitcnt vmcnt({2-2*i})')
        for j in range(4):
            k(f'v_perm_b32 v{48+2*j}, v{36+8*i+j}, v{32+8*i+j}, s47')
            k(f'v_perm_b32 v{49+2*j}, v{36+8*i+j}, v{32+8*i+j}, s48')
        for j in range(8):
            k(f'ds_write_b32 v11, v{48+j} offset:{W0+j*P+128*i}')
    k('s_waitcnt lgkmcnt(0)\ns_barrier')
    for c in range(4):
        k(f'ds_read_b128 {vr(16+4*c,4)}, v12 offset:{c*P}')
    for c in range(4):
        k(f'ds_read_b128 {vr(32+4*c,4)}, v12 offset:{W0+c*P}')
    for c in range(4):
        k(f's_waitcnt lgkmcnt({7-c})')
        k(f'{MFMA} {vr(48+8*c,4)}, {vr(16+4*c,4)}, v[96:99], 0')
        k(f'{MFMA} {vr(52+8*c,4)}, {vr(16+4*c,4)}, v[100:103], 0')

    def pack(c, re, im):
        k(f'''v_cvt_pk_bf16_f32 v{16+4*c}, v{re}, v{re+1}
v_cvt_pk_bf16_f32 v{17+4*c}, v{re+2}, v{re+3}
v_cvt_pk_bf16_f32 v{18+4*c}, v{im}, v{im+1}
v_cvt_pk_bf16_f32 v{19+4*c}, v{im+2}, v{im+3}''')
    for c in range(4):
        cmul_planar(k, 48 + 8 * c, 52 + 8 * c, 104, 108, 80, 84, 88)
        pack(c, 80, 84)
        k(f'{MFMA} {vr(48+8*c,4)}, v[112:115], {vr(16+4*c,4)}, 0')
        k(f'{MFMA} {vr(52+8*c,4)}, v[116:119], {vr(16+4*c,4)}, 0')
    k('s_waitcnt lgkmcnt(0)')
    for c in range(4):
        for r in range(4):
            k(f'v_lshlrev_b32 v{128+r}, 16, v{32+4*c+r}\nv_and_b32 v{132+r}, 0xffff0000, v{32+4*c+r}')
        cmul_planar(k, 48 + 8 * c, 52 + 8 * c, 128, 132, 80, 84, 88)
        pack(c, 80, 84)
        k(f'{MFMA} {vr(48+8*c,4)}, {vr(16+4*c,4)}, v[120:123], 0')
        k(f'{MFMA} {vr(52+8*c,4)}, {vr(16+4*c,4)}, v[124:127], 0')
    for c in range(4):
        cmul_planar(k, 48 + 8 * c, 52 + 8 * c, 104, 108, 80, 84, 88, conj=True)
        pack(c, 80, 84)
        k(f'{MFMA} {vr(48+8*c,4)}, v[120:123], {vr(16+4*c,4)}, 0')
        k(f'{MFMA} {vr(52+8*c,4)}, v[124:127], {vr(16+4*c,4)}, 0')
    for c in range(4):
        for r in range(4):
            k(f'v_cvt_pk_bf16_f32 v{16+4*c+r}, v{48+8*c+r}, v{52+8*c+r}')
        k(f'ds_write_b128 v12, {vr(16+4*c,4)} offset:{c*P}')
    k('s_waitcnt lgkmcnt(0)\ns_barrier')
    for i in range(4):
        for j in range(4):
            k(f'ds_read_b32 v{16+4*i+j}, v10 offset:{j*P+64*i}')
    for i in range(4):
        k(f's_waitcnt lgkmcnt({12-4*i})')
        k(f'buffer_store_dwordx4 {vr(16+4*i,4)}, v6, s[20:23], {so[i]} offen')
    k(f'{END}:\ns_endpgm')
    return k


def gen_k2a():
    RP = 144; NP = 11 * RP + 16
    k = Kern('k2a_kernel', 256, 512, 8 * NP, nvgpr=128)
    END = k.label('end'); SKIP = k.label('skip')
    k(f'''s_cmp_ge_u32 s2, 256
s_cbranch_scc1 {END}
s_load_dwordx2 s[4:5], s[0:1], 0
s_load_dwordx2 s[40:41], s[0:1], 80''')
    tab_srd(k, 12)
    k(f'''s_lshl_b32 s33, s2, 6
s_add_u32 s33, s33, 32768
s_load_dwordx16 s[16:31], s[12:13], s33
v_lshrrev_b32 v1, 6, v0
v_and_b32 v2, 63, v0
v_readfirstlane_b32 s34, v1
v_lshlrev_b32 v3, 4, v2
s_movk_i32 s38, 0x4000
s_movk_i32 s39, 0x5000
s_movk_i32 s49, 0x6000
s_mul_i32 s46, s2, {8*1344}
s_add_u32 s47, s46, {3*1344}
s_add_u32 s48, s46, {6*1344}
v_lshlrev_b32 v60, 2, v0
s_lshl_b32 s35, s34, 8
s_add_u32 s35, s35, s2
s_mul_i32 s35, s35, 1280
v_and_b32 v50, 15, v2
v_lshrrev_b32 v51, 4, v2
v_lshlrev_b32 v52, 6, v50
v_lshl_add_u32 v52, v51, 4, v52
v_add_u32 v53, 1024, v52
v_mov_b32 v54, 0x7fffffff
v_cmp_gt_u32 vcc, 4, v50
v_cndmask_b32 v53, v54, v53, vcc
s_waitcnt lgkmcnt(0)''')
    srd_from(k, 4, 4, 5, 0, X_BYTES)
    srd_from(k, 8, 40, 41, WS_U, TU_BYTES)
    srd_from(k, 52, 40, 41, WS_H, X_BYTES)
    srd_from(k, 56, 40, 41, WS_HN, X_BYTES)
    for k2 in range(8):
        k(f'buffer_load_dword v{4+k2}, v60, s[8:11], s{46+k2//3} offen offset:{(k2%3)*1344}')
    for i in range(10):
        so = ['s38', 's39', 's49'][i // 4]
        k(f'buffer_load_dwordx4 {vr(64+4*i,4)}, v3, s[12:15], {so} offen offset:{(i%4)*1024}')
    k(f'''buffer_load_dwordx4 v[104:107], v52, s[4:7], s35 offen
buffer_load_dwordx4 v[108:111], v53, s[4:7], s35 offen''')
    k(f'''v_mul_u32_u24 v55, 3277, v0
v_lshrrev_b32 v55, 16, v55
v_mul_u32_u24 v56, 20, v55
v_sub_u32 v56, v0, v56
v_mul_u32_u24 v57, {RP}, v56
v_lshl_add_u32 v57, v55, 2, v57
v_mov_b32 v58, {11*RP}
v_cmp_ge_u32 vcc, 10, v56
v_cndmask_b32 v57, v58, v57, vcc
v_sub_u32 v59, 20, v56
v_mul_u32_u24 v59, {RP}, v59
v_sub_u32 v61, 31, v55
v_lshl_add_u32 v59, v61, 2, v59
v_cmp_le_u32 vcc, 10, v56
v_cndmask_b32 v59, v58, v59, vcc
v_sub_u32 v61, 32, v55
v_lshlrev_b32 v61, 2, v61
v_cmp_eq_u32 vcc, 0, v56
v_cndmask_b32 v59, v59, v61, vcc
v_cmp_eq_u32 vcc, 0, v0
v_cndmask_b32 v59, v59, v58, vcc
v_cmp_eq_u32 vcc, 320, v0
v_cndmask_b32 v59, v59, v58, vcc
v_mov_b32 v40, 0x3f3504f3
v_min_u32 v62, 10, v50
v_mul_u32_u24 v62, {RP}, v62
v_lshl_add_u32 v62, v51, 4, v62
s_mul_i32 s42, s34, {NP}
v_add_u32 v62, s42, v62
v_and_b32 v63, 1, v2
v_lshlrev_b32 v63, 31, v63
v_or_b32 v63, 1.0, v63
v_cmp_gt_u32 vcc, 321, v0
s_and_saveexec_b64 s[44:45], vcc
s_waitcnt vmcnt(12)
s_cbranch_execz {SKIP}''')
    for k2 in range(8):
        k(f'v_lshlrev_b32 v{20+2*k2}, 16, v{4+k2}\nv_and_b32 v{21+2*k2}, 0xffff0000, v{4+k2}')
    for k2 in range(8):
        if k2 == 0:
            k('v_mov_b32 v4, v20\nv_mov_b32 v5, v21')
        else:
            smul(k, 4 + 2 * k2, 20 + 2 * k2, 16 + 2 * k2, 42 + 2 * (k2 & 1), conj=True)
    T = fft8(k, 4, 20, True, 40)
    for n in range(8):
        k(f'''v_cvt_pk_bf16_f32 v{4+2*n}, v{T[n]}, v{T[n]+1}
v_cvt_pk_bf16_f32 v{5+2*n}, v{T[n]}, -v{T[n]+1}
ds_write_b32 v57, v{4+2*n} offset:{n*NP}
ds_write_b32 v59, v{5+2*n} offset:{n*NP}''')
    k(f'''{SKIP}:
s_mov_b64 exec, -1
s_waitcnt lgkmcnt(0)
s_barrier
ds_read_b128 v[4:7], v62
ds_read_b128 v[8:11], v62 offset:64
s_waitcnt vmcnt(2) lgkmcnt(1)''')
    for u in range(2):
        if u == 1: k('s_waitcnt lgkmcnt(0)')
        for t in range(2):
            k(f'{MFMA} {vr(12+16*u+8*t,4)}, {vr(4+4*u,4)}, {vr(64+8*t,4)}, 0')
            k(f'{MFMA} {vr(16+16*u+8*t,4)}, {vr(4+4*u,4)}, {vr(68+8*t,4)}, 0')
    for i in range(0, 16, 2):
        k(f'v_pk_fma_f32 {vr(12+i,2)}, {vr(28+i,2)}, v[62:63], {vr(12+i,2)} op_sel:[0,1,0] op_sel_hi:[1,1,1]')
    for t in range(2):
        cmul_planar(k, 12 + 8 * t, 16 + 8 * t, 80 + 8 * t, 84 + 8 * t, 28, 32, 36)
        k(f'''v_cvt_pk_bf16_f32 v{4+4*t}, v28, v29
v_cvt_pk_bf16_f32 v{5+4*t}, v30, v31
v_cvt_pk_bf16_f32 v{6+4*t}, v32, v33
v_cvt_pk_bf16_f32 v{7+4*t}, v34, v35''')
    for v in range(2):
        for t in range(2):
            k(f'{MFMA} {vr(12+8*v+4*t,4)}, {vr(4+4*t,4)}, {vr(96+4*v,4)}, 0')
    k('s_waitcnt vmcnt(0)')
    for i in range(8):
        k(f'v_lshlrev_b32 v{28+2*i}, 16, v{104+i}\nv_and_b32 v{29+2*i}, 0xffff0000, v{104+i}')
    for i in range(8):
        k(f'v_cvt_pk_bf16_f32 v{4+i}, v{12+2*i}, v{13+2*i}')
    for i in range(8):
        k(f'v_lshlrev_b32 v{12+2*i}, 16, v{4+i}\nv_and_b32 v{13+2*i}, 0xffff0000, v{4+i}')
    for i in range(8):
        k(f'v_pk_add_f32 {vr(12+2*i,2)}, {vr(12+2*i,2)}, {vr(28+2*i,2)}')
    for i in range(8):
        k(f'v_cvt_pk_bf16_f32 v{4+i}, v{12+2*i}, v{13+2*i}')
    k('''buffer_store_dwordx4 v[4:7], v52, s[52:55], s35 offen
buffer_store_dwordx4 v[8:11], v53, s[52:55], s35 offen''')
    for i in range(8):
        k(f'v_lshlrev_b32 v{12+2*i}, 16, v{4+i}\nv_and_b32 v{13+2*i}, 0xffff0000, v{4+i}')
    k('''v_pk_add_f32 v[28:29], v[12:13], v[14:15]
v_pk_mul_f32 v[30:31], v[12:13], v[12:13]
v_pk_add_f32 v[32:33], v[16:17], v[18:19]
v_pk_mul_f32 v[34:35], v[14:15], v[14:15]''')
    for i in range(2, 8):
        k(f'v_pk_fma_f32 {vr(30+4*(i&1),2)}, {vr(12+2*i,2)}, {vr(12+2*i,2)}, {vr(30+4*(i&1),2)}')
        if i >= 4:
            k(f'v_pk_add_f32 {vr(28+4*(i&1),2)}, {vr(28+4*(i&1),2)}, {vr(12+2*i,2)}')
    k('''v_pk_add_f32 v[28:29], v[28:29], v[32:33]
v_pk_add_f32 v[30:31], v[30:31], v[34:35]
v_add_f32 v28, v28, v29
v_add_f32 v30, v30, v31''')
    wave_reduce2(k, 28, 30, 36, 37)
    ln_stats(k, 36, 37, 640, 28, 30, 32)
    ln_apply(k, 12, 16, 28, 30, 40)
    k(f'''buffer_store_dwordx4 v[40:43], v52, s[56:59], s35 offen
buffer_store_dwordx4 v[44:47], v53, s[56:59], s35 offen
{END}:
s_endpgm''')
    return k
```

```python
from asmlib import *
from gen_fft import *

WS_Z1 = 0xC00000
WS_Z2 = 0x1000000
WS_A = 0x1400000
WS_ST = 0x1800000
Z_BYTES = 128 * 54 * 512
ST_BYTES = 2048 * 8


def ar(a, n=1):
    return f'a{a}' if n == 1 else f'a[{a}:{a+n-1}]'


def fbits(x):
    return '0x%08x' % np.float32(x).view(np.uint32)


C0 = -2.0 * 0.7978845608028654 * 1.4426950408889634
C1 = C0 * 0.044715


def gelu_pairs(k, src, n, out, t, vc):
    x = src; p = t
    for i in range(0, n, 2):
        k(f'v_cvt_pk_bf16_f32 v{out+i//2}, v{x+i}, v{x+i+1}')
    for i in range(0, n, 2):
        k(f'v_lshlrev_b32 v{x+i}, 16, v{out+i//2}\nv_and_b32 v{x+i+1}, 0xffff0000, v{out+i//2}')
    for i in range(0, n, 2):
        k(f'v_pk_mul_f32 {vr(p+i,2)}, {vr(x+i,2)}, {vr(x+i,2)}')
    for i in range(0, n, 2):
        k(f'v_pk_fma_f32 {vr(p+i,2)}, {vr(p+i,2)}, {vr(vc,2)}, {vr(vc,2)} op_sel:[0,0,1] op_sel_hi:[1,0,1]')
    for i in range(0, n, 2):
        k(f'v_pk_mul_f32 {vr(p+i,2)}, {vr(p+i,2)}, {vr(x+i,2)}')
    for i in range(n):
        k(f'v_exp_f32 v{p+i}, v{p+i}')
    for i in range(0, n, 2):
        k(f'v_pk_add_f32 {vr(p+i,2)}, {vr(p+i,2)}, 1.0 op_sel_hi:[1,0]')
    for i in range(n):
        k(f'v_rcp_f32 v{p+i}, v{p+i}')
    for i in range(0, n, 2):
        k(f'v_pk_mul_f32 {vr(p+i,2)}, {vr(p+i,2)}, {vr(x+i,2)}')
    for i in range(0, n, 2):
        k(f'v_cvt_pk_bf16_f32 v{out+i//2}, v{p+i}, v{p+i+1}')


def gen_k2():
    k = Kern('k2_kernel', 256, 256, 143360, nvgpr=192, nagpr=160)
    END = k.label('end'); Z2 = k.label('z2')
    k(f'''s_cmp_ge_u32 s2, 256
s_cbranch_scc1 {END}
s_load_dwordx2 s[4:5], s[0:1], 32
s_load_dwordx2 s[40:41], s[0:1], 80
s_and_b32 s33, s2, 7
s_lshr_b32 s34, s2, 3
s_lshr_b32 s35, s33, 1
s_lshl_b32 s35, s35, 2
s_and_b32 s36, s34, 3
s_add_u32 s35, s35, s36
s_and_b32 s36, s33, 1
s_lshr_b32 s37, s34, 2
v_lshrrev_b32 v1, 6, v0
v_and_b32 v2, 63, v0
v_readfirstlane_b32 s38, v1
v_and_b32 v4, 15, v2
v_lshrrev_b32 v5, 4, v2''')
    for i in range(7):
        k(f'''v_add_u32 v6, {64*i}, v2
v_mul_u32_u24 v7, 4682, v6
v_lshrrev_b32 v7, 16, v7
v_mul_u32_u24 v8, 14, v7
v_sub_u32 v8, v6, v8
v_mul_u32_u24 v7, 3456, v7
v_lshl_add_u32 v{120+i}, v8, 4, v7''')
    k(f'''v_lshrrev_b32 v6, 2, v4
v_and_b32 v7, 3, v4
v_lshl_add_u32 v8, v6, 3, v7
s_cmp_eq_u32 s36, 1
s_cselect_b32 s42, 4, 16
s_cselect_b64 vcc, -1, 0
v_cndmask_b32 v8, v4, v8, vcc
s_lshl_b32 s43, s35, 7
s_lshl_b32 s44, s38, 5
s_add_u32 s43, s43, s44
v_add_u32 v8, s43, v8
v_mul_u32_u24 v127, 1280, v8
v_lshl_add_u32 v127, v5, 4, v127
s_mul_i32 s42, s42, 1280
v_add_u32 v128, s42, v127
v_lshl_add_u32 v9, v5, 3, v6
v_mul_u32_u24 v9, 224, v9
v_lshl_add_u32 v129, v7, 3, v9
v_add_u32 v130, {8*7168}, v129
v_add_u32 v131, {16*7168}, v129
s_mul_i32 s45, s36, 1728
s_mul_i32 s46, s37, 224
s_add_u32 s45, s45, s46
s_mul_i32 s46, s38, {32*3456}
s_add_u32 s45, s45, s46
s_mul_i32 s47, s38, 7168
s_waitcnt lgkmcnt(0)''')
    srd_from(k, 4, 4, 5, 0, 640 * 3456)
    srd_from(k, 8, 40, 41, WS_HN, X_BYTES)
    srd_from(k, 12, 40, 41, WS_Z1, Z_BYTES)
    srd_from(k, 16, 40, 41, WS_Z2, Z_BYTES)
    srd_from(k, 20, 40, 41, WS_ST, ST_BYTES)

    def issue(p):
        for i in range(7):
            k(f's_add_u32 m0, s47, {p*4*7168+1024*i}')
            k(f'buffer_load_dwordx4 v{120+i}, s[4:7], s45 offen lds')
        k(f's_add_u32 s45, s45, {4*32*3456}')
        for kk in range(4 * p, 4 * p + 4):
            for u in range(2):
                k(f'buffer_load_dwordx4 {ar(8*kk+4*u,4)}, v{127+u}, s[8:11], 0 offen offset:{64*kk}')
    for p in range(4): issue(p)
    k(f'''v_mov_b32 v132, {fbits(C1)}
v_mov_b32 v133, {fbits(C0)}
s_cmp_eq_u32 s36, 1
s_cbranch_scc1 {Z2}''')

    def rdB(kk, buf, n):
        base = 129 + kk // 8; off = (kk % 8) * 7168
        k(f'ds_read_b64_tr_b16 {vr(buf+4*n,2)}, v{base} offset:{off+32*n}')
        k(f'ds_read_b64_tr_b16 {vr(buf+4*n+2,2)}, v{base} offset:{off+32*n+896}')

    def mainloop(z2):
        waits = [45, 45, 30, 15, 0]
        for p in range(5):
            k(f's_waitcnt vmcnt({waits[p]})\ns_barrier')
            if p == 0: issue(4)
            for n in range(7): rdB(4 * p, 8, n)
            for q in range(4):
                kk = 4 * p + q
                buf = 8 + 28 * (q & 1)
                for n in range(7):
                    rem = 12 if q < 3 else 2 * (6 - n)
                    k(f's_waitcnt lgkmcnt({rem})')
                    for u in range(2):
                        acc = vr(64 + (u * 7 + n) * 4, 4)
                        c = '0' if kk == 0 else acc
                        if z2:
                            k(f'{MFMA} {acc}, {ar(8*kk+4*u,4)}, {vr(buf+4*n,4)}, {c}')
                        else:
                            k(f'{MFMA} {acc}, {vr(buf+4*n,4)}, {ar(8*kk+4*u,4)}, {c}')
                    if q < 3:
                        rdB(kk + 1, 8 + 28 * ((q + 1) & 1), n)

    mainloop(False)
    L5 = k.label('l5')
    k(f'''s_lshl_b32 s42, s35, 3
s_lshl_b32 s43, s38, 1
s_add_u32 s42, s42, s43
s_mul_i32 s42, s42, 54
s_mul_i32 s43, s37, 7
s_add_u32 s42, s42, s43
s_lshl_b32 s42, s42, 9
s_add_u32 s43, s42, {54*512}
v_lshlrev_b32 v3, 3, v2''')
    for n in range(7):
        if n == 5:
            k(f's_cmp_eq_u32 s37, 7\ns_cbranch_scc1 {END}')
        for u in range(2):
            gelu_pairs(k, 64 + (u * 7 + n) * 4, 4, 8 + 2 * u + 4 * (n & 1), 16 + 8 * u, 132)
            k(f'buffer_store_dwordx2 {vr(8+2*u+4*(n&1),2)}, v3, s[12:15], s{42+u} offen offset:{512*n}')
    k(f's_branch {END}')
    k(f'{Z2}:')
    mainloop(True)
    k(f'''s_lshl_b32 s42, s35, 2
s_add_u32 s42, s42, s38
s_mul_i32 s43, s37, {7*64}
s_add_u32 s43, s43, s42
s_lshl_b32 s43, s43, 10
s_lshl_b32 s44, s42, 8
v_lshlrev_b32 v3, 4, v2''')
    S = 136; Q = 144
    for i in range(16): k(f'v_mov_b32 v{136+i}, 0')
    for n in range(7):
        if n == 5:
            k(f's_cmp_eq_u32 s37, 7\ns_cbranch_scc1 {L5}')
        o = 8 + 4 * (n & 1)
        for u in range(2):
            gelu_pairs(k, 64 + (u * 7 + n) * 4, 4, o + 2 * u, 16 + 8 * u, 132)
        k(f'buffer_store_dwordx4 {vr(o,4)}, v3, s[16:19], s43 offen')
        k(f's_add_u32 s43, s43, 65536')
        for i in range(4):
            k(f'v_lshlrev_b32 v{32+2*i}, 16, v{o+i}\nv_and_b32 v{33+2*i}, 0xffff0000, v{o+i}')
        for i in range(4):
            k(f'v_pk_add_f32 {vr(S+2*i,2)}, {vr(S+2*i,2)}, {vr(32+2*i,2)}')
            k(f'v_pk_fma_f32 {vr(Q+2*i,2)}, {vr(32+2*i,2)}, {vr(32+2*i,2)}, {vr(Q+2*i,2)}')
    k(f'{L5}:')
    V = [0] * 16
    for e in range(8):
        V[2 * e] = S + e; V[2 * e + 1] = Q + e
    for i in range(8):
        k(f'v_add_f32_dpp v{V[i]}, v{V[i]}, v{V[i]} row_ror:8 row_mask:0xf bank_mask:0x3')
    for i in range(8):
        k(f'v_add_f32_dpp v{V[i]}, v{V[i+8]}, v{V[i+8]} row_ror:8 row_mask:0xf bank_mask:0xc')
    for i in range(4):
        k(f'v_add_f32_dpp v{V[i]}, v{V[i]}, v{V[i]} row_half_mirror row_mask:0xf bank_mask:0x5')
    for i in range(4):
        k(f'v_add_f32_dpp v{V[i]}, v{V[i+4]}, v{V[i+4]} row_half_mirror row_mask:0xf bank_mask:0xa')
    for m in ('quad_perm:[1,0,3,2]', 'quad_perm:[2,3,0,1]'):
        for i in range(4):
            k(f'v_add_f32_dpp v{V[i]}, v{V[i]}, v{V[i]} {m} row_mask:0xf bank_mask:0xf')
    k(f'''s_mov_b32 vcc_lo, 0xaaaaaaaa
s_mov_b32 vcc_hi, 0xaaaaaaaa
v_cndmask_b32 v8, v{V[0]}, v{V[1]}, vcc
v_cndmask_b32 v9, v{V[2]}, v{V[3]}, vcc
s_mov_b32 vcc_lo, 0xcccccccc
s_mov_b32 vcc_hi, 0xcccccccc
v_cndmask_b32 v8, v8, v9, vcc
v_lshlrev_b32 v3, 2, v2
buffer_atomic_add_f32 v8, v3, s[20:23], s44 offen sc1
{END}:
s_endpgm''')
    return k


def gen_k3(noload=False, nocomp=False, name='k3_kernel'):
    RED0 = 12288
    k = Kern(name, 256, 256, RED0 + 98304, nvgpr=256, nagpr=112)
    END = k.label('end')
    D = 4
    k(f'''s_cmp_ge_u32 s2, 256
s_cbranch_scc1 {END}
s_load_dwordx2 s[4:5], s[0:1], 40
s_load_dwordx2 s[24:25], s[0:1], 48
s_load_dwordx2 s[40:41], s[0:1], 80
s_and_b32 s33, s2, 7
s_lshr_b32 s34, s2, 3
s_lshr_b32 s35, s33, 1
s_lshl_b32 s35, s35, 3
s_and_b32 s36, s34, 7
s_add_u32 s35, s35, s36
s_and_b32 s36, s33, 1
s_lshl_b32 s36, s36, 2
s_lshr_b32 s37, s34, 3
s_add_u32 s36, s36, s37
v_lshrrev_b32 v1, 6, v0
v_and_b32 v2, 63, v0
v_readfirstlane_b32 s38, v1
v_and_b32 v4, 15, v2
v_lshrrev_b32 v5, 4, v2
v_lshlrev_b32 v240, 4, v2
v_add_u32 v241, 4096, v240
v_add_u32 v242, 8192, v240
v_add_u32 v243, 12288, v240
v_lshlrev_b32 v244, 12, v4
v_lshl_add_u32 v244, v5, 4, v244
v_lshlrev_b32 v245, 6, v0''')
    k(f'''s_mul_i32 s48, s36, {7*64}
s_lshl_b32 s42, s38, 4
s_add_u32 s48, s48, s42
s_lshl_b32 s48, s48, 10''')
    for n in range(1, 7): k(f's_add_u32 s{48+n}, s48, {65536*n}')
    k(f'''s_lshl_b32 s56, s35, 18
s_lshl_b32 s42, s38, 10
s_add_u32 s56, s56, s42''')
    for t in range(1, 4): k(f's_add_u32 s{56+t}, s56, {65536*t}')
    k('s_waitcnt lgkmcnt(0)')
    srd_from(k, 4, 4, 5, 0, 2048 * 4096)
    srd_from(k, 8, 40, 41, WS_Z2, Z_BYTES)
    srd_from(k, 12, 40, 41, WS_Z1, Z_BYTES)
    srd_from(k, 16, 40, 41, WS_A, Z_BYTES)
    srd_from(k, 20, 40, 41, WS_ST, ST_BYTES)
    srd_from(k, 24, 24, 25, 0, 4096)
    for i in range(4):
        k(f'buffer_load_dwordx4 {vr(8+4*i,4)}, v245, s[20:23], 0 offen offset:{16*i}')
    BR = 128

    def issue(jj):
        st = jj % D
        if noload: return
        for t in range(4):
            k(f'buffer_load_dwordx4 {vr(BR+16*st+4*t,4)}, v244, s[4:7], s{56+t} offen offset:{64*jj}')
        for n in range(7):
            k(f'buffer_load_dwordx4 {ar(28*st+4*n,4)}, v{240+jj//4}, s[8:11], s{48+n} offen offset:{1024*(jj%4)}')
    for jj in range(D): issue(jj)
    inv = fbits(1.0 / 864)
    k(f's_waitcnt vmcnt({11*D})\nv_mov_b32 v24, {inv}')
    for i in range(8):
        k(f'v_pk_mul_f32 {vr(8+2*i,2)}, {vr(8+2*i,2)}, v[24:25] op_sel_hi:[1,0]')
    for i in range(8):
        k(f'v_fma_f32 v{9+2*i}, -v{8+2*i}, v{8+2*i}, v{9+2*i}')
    for i in range(8):
        k(f'v_max_f32 v{9+2*i}, 0, v{9+2*i}')
    for i in range(4):
        k(f'v_cvt_pk_bf16_f32 v{28+i}, v{8+4*i}, v{10+4*i}')
        k(f'v_cvt_pk_bf16_f32 v{32+i}, v{9+4*i}, v{11+4*i}')
    for i in range(4):
        k(f'v_lshlrev_b32 v{8+2*i}, 16, v{32+i}\nv_and_b32 v{9+2*i}, 0xffff0000, v{32+i}')
    for i in range(8):
        k(f'v_add_f32 v{8+i}, 0x3727c5ac, v{8+i}')
    for i in range(4):
        k(f'v_cvt_pk_bf16_f32 v{32+i}, v{8+2*i}, v{9+2*i}')
    for i in range(4):
        k(f'v_lshlrev_b32 v{8+2*i}, 16, v{32+i}\nv_and_b32 v{9+2*i}, 0xffff0000, v{32+i}')
    for i in range(8):
        k(f'v_sqrt_f32 v{8+i}, v{8+i}')
    for i in range(4):
        k(f'v_cvt_pk_bf16_f32 v{32+i}, v{8+2*i}, v{9+2*i}')
    for i in range(4):
        k(f'v_lshlrev_b32 v{8+2*i}, 16, v{32+i}\nv_and_b32 v{9+2*i}, 0xffff0000, v{32+i}')
    for i in range(8):
        k(f'v_rcp_f32 v{8+i}, v{8+i}')
    k(f'''v_lshlrev_b32 v6, 5, v0
v_lshlrev_b32 v7, 4, v0
ds_write_b128 v6, v[8:11]
ds_write_b128 v6, v[12:15] offset:16
ds_write_b128 v7, v[28:31] offset:8192
s_lshl_b32 s42, s38, 11
v_lshlrev_b32 v246, 5, v5
v_add_u32 v246, s42, v246
s_lshl_b32 s42, s38, 10
v_lshlrev_b32 v247, 4, v5
v_add_u32 v247, s42, v247
s_waitcnt lgkmcnt(0)''')
    ACC = lambda n, t: 0 + (t * 8 + n) * 4
    k('v_mov_b32 v248, v2\nv_mov_b32 v249, v4\nv_mov_b32 v250, v5')
    for jj in range(16):
        st = jj % D
        k(f'''ds_read_b128 v[208:211], v246 offset:{128*jj}
ds_read_b128 v[212:215], v246 offset:{128*jj+16}
ds_read_b128 v[216:219], v247 offset:{8192+64*jj}''')
        outstanding = 11 * (min(16, jj + D) - jj - 1)
        k(f's_waitcnt vmcnt({outstanding+7}) lgkmcnt(1)')
        for t in range(4):
            if nocomp: break
            for i in range(4):
                src = BR + 16 * st + 4 * t + i
                tm = 236 + 2 * (i & 1)
                k(f'''v_lshlrev_b32 v{tm}, 16, v{src}
v_and_b32 v{tm+1}, 0xffff0000, v{src}
v_pk_mul_f32 {vr(tm,2)}, {vr(tm,2)}, {vr(208+2*i,2)}
v_cvt_pk_bf16_f32 v{192+4*t+i}, v{tm}, v{tm+1}''')
        k(f's_waitcnt vmcnt({outstanding}) lgkmcnt(0)')
        for t in range(4):
            if nocomp: break
            for n in range(8):
                acc = vr(ACC(n, t), 4)
                c = '0' if jj == 0 else acc
                a = ar(28 * st + 4 * n, 4) if n < 7 else 'v[216:219]'
                k(f'{MFMA} {acc}, {a}, {vr(192+4*t,4)}, {c}')
        if jj + D < 16: issue(jj + D)
    k(f'''s_lshl_b32 s42, s35, 2
s_add_u32 s42, s42, s38
s_mul_i32 s43, s42, 54
s_mul_i32 s44, s36, 7
s_add_u32 s43, s43, s44
s_lshl_b32 s43, s43, 9
v_lshlrev_b32 v240, 3, v248
s_lshl_b32 s45, s42, 5
v_lshlrev_b32 v241, 1, v249
buffer_load_ushort v234, v241, s[24:27], s45 offen''')
    for n in range(7):
        k(f'buffer_load_dwordx2 {vr(220+2*n,2)}, v240, s[12:15], s43 offen offset:{512*n}')
    labs = [k.label('w') for _ in range(4)]; J = k.label('j')
    k(f'v_lshlrev_b32 v242, 4, v248')
    for w in range(1, 4):
        k(f's_cmp_eq_u32 s38, {w}\ns_cbranch_scc1 {labs[w]}')
    for w in range(4):
        k(f'{labs[w]}:')
        for d in range(1, 4):
            t = (w + d) & 3
            k(f'v_add_u32 v243, {RED0+(t*3+d-1)*8192}, v242')
            for n in range(8):
                k(f'ds_write_b128 v243, {vr(ACC(n,t),4)} offset:{1024*n}')
        if w != 0:
            for i in range(32):
                k(f'v_mov_b32 v{i}, v{32*w+i}')
        if w != 3: k(f's_branch {J}')
    k(f'''{J}:
s_mul_i32 s44, s38, {3*8192}
s_add_u32 s44, s44, {RED0}
v_add_u32 v243, s44, v242
s_waitcnt lgkmcnt(0)
s_barrier''')
    rd = lambda i: k(f'ds_read_b128 {vr(32+4*i,4)}, v243 offset:{1024*i}')
    for i in range(12): rd(i)
    for i in range(24):
        k(f's_waitcnt lgkmcnt({min(11, 23-i)})')
        a = 4 * (i % 8)
        k(f'v_pk_add_f32 {vr(a,2)}, {vr(a,2)}, {vr(32+4*i,2)}')
        k(f'v_pk_add_f32 {vr(a+2,2)}, {vr(a+2,2)}, {vr(34+4*i,2)}')
        if i + 12 < 24: rd(i + 12)
    return k, END


def gen_k3_full(**kw):
    k, END = gen_k3(**kw)
    k(f'''s_waitcnt vmcnt(0)
v_lshlrev_b32 v234, 16, v234
s_mul_i32 s43, s42, {27*1024}
s_mul_i32 s44, s36, 7''')
    for n in range(7):
        if n == 5:
            k(f's_cmp_eq_u32 s36, 7\ns_cbranch_scc1 {END}')
        a = 4 * n
        k(f'''s_add_u32 s45, s44, {n}
s_lshr_b32 s46, s45, 1
s_lshl_b32 s46, s46, 10
s_and_b32 s45, s45, 1
s_lshl_b32 s45, s45, 3
s_add_u32 s45, s45, s46
s_add_u32 s45, s45, s43
v_pk_add_f32 {vr(a,2)}, {vr(a,2)}, v[28:29] op_sel_hi:[1,0] neg_lo:[0,1] neg_hi:[0,1]
v_pk_add_f32 {vr(a+2,2)}, {vr(a+2,2)}, v[28:29] op_sel_hi:[1,0] neg_lo:[0,1] neg_hi:[0,1]
v_cvt_pk_bf16_f32 v40, v{a}, v{a+1}
v_cvt_pk_bf16_f32 v41, v{a+2}, v{a+3}
v_lshlrev_b32 v{a}, 16, v40
v_and_b32 v{a+1}, 0xffff0000, v40
v_lshlrev_b32 v{a+2}, 16, v41
v_and_b32 v{a+3}, 0xffff0000, v41
v_pk_add_f32 {vr(a,2)}, {vr(a,2)}, v[234:235] op_sel_hi:[1,0]
v_pk_add_f32 {vr(a+2,2)}, {vr(a+2,2)}, v[234:235] op_sel_hi:[1,0]
v_cvt_pk_bf16_f32 v40, v{a}, v{a+1}
v_cvt_pk_bf16_f32 v41, v{a+2}, v{a+3}
v_lshlrev_b32 v{a}, 16, v40
v_and_b32 v{a+1}, 0xffff0000, v40
v_lshlrev_b32 v{a+2}, 16, v41
v_and_b32 v{a+3}, 0xffff0000, v41
v_lshlrev_b32 v44, 16, v{220+2*n}
v_and_b32 v45, 0xffff0000, v{220+2*n}
v_lshlrev_b32 v46, 16, v{221+2*n}
v_and_b32 v47, 0xffff0000, v{221+2*n}
v_pk_mul_f32 {vr(a,2)}, {vr(a,2)}, v[44:45]
v_pk_mul_f32 {vr(a+2,2)}, {vr(a+2,2)}, v[46:47]
v_cvt_pk_bf16_f32 v{48+2*n}, v{a}, v{a+1}
v_cvt_pk_bf16_f32 v{49+2*n}, v{a+2}, v{a+3}
buffer_store_dwordx2 {vr(48+2*n,2)}, v242, s[16:19], s45 offen''')
    k(f'{END}:\ns_endpgm')
    return k


def gen_k4():
    WR = 35840
    k = Kern('k4_kernel', 256, 256, 4 * WR, nvgpr=192, nagpr=112)
    END = k.label('end')
    k(f'''s_cmp_ge_u32 s2, 256
s_cbranch_scc1 {END}
s_load_dwordx2 s[4:5], s[0:1], 56
s_load_dwordx2 s[16:17], s[0:1], 64
s_load_dwordx2 s[40:41], s[0:1], 80
s_and_b32 s33, s2, 7
s_lshr_b32 s34, s2, 3
s_lshr_b32 s35, s33, 1
s_lshl_b32 s35, s35, 3
s_and_b32 s36, s34, 7
s_add_u32 s35, s35, s36
s_and_b32 s36, s33, 1
s_lshl_b32 s36, s36, 2
s_lshr_b32 s37, s34, 3
s_add_u32 s36, s36, s37
v_lshrrev_b32 v1, 6, v0
v_and_b32 v182, 63, v0
v_readfirstlane_b32 s38, v1
v_and_b32 v183, 15, v182
v_lshrrev_b32 v184, 4, v182
v_lshlrev_b32 v180, 4, v182
v_add_u32 v181, 4096, v180''')
    for i in range(5):
        k(f'''v_add_u32 v6, {64*i}, v182
v_mul_u32_u24 v7, 6554, v6
v_lshrrev_b32 v7, 16, v7
v_mul_u32_u24 v8, 10, v7
v_sub_u32 v8, v6, v8
v_mul_u32_u24 v7, 1280, v7
v_lshl_add_u32 v{170+i}, v8, 4, v7''')
    k(f'''s_mul_i32 s45, s38, {7*32*1280}
s_mul_i32 s46, s36, 160
s_add_u32 s45, s45, s46
s_mul_i32 s47, s38, {WR}
s_mul_i32 s48, s35, {4*27}
s_mul_i32 s42, s38, 7
s_add_u32 s48, s48, s42
s_lshl_b32 s48, s48, 10
s_add_u32 s49, s48, {27*1024}
s_add_u32 s50, s48, {2*27*1024}
s_add_u32 s51, s48, {3*27*1024}
v_lshrrev_b32 v6, 2, v183
v_and_b32 v7, 3, v183
v_lshl_add_u32 v6, v184, 2, v6
v_mul_u32_u24 v6, 160, v6
v_lshl_add_u32 v6, v7, 3, v6
v_add_u32 v175, s47, v6
s_waitcnt lgkmcnt(0)''')
    srd_from(k, 4, 4, 5, 0, 864 * 1280)
    srd_from(k, 8, 40, 41, WS_A, Z_BYTES)
    srd_from(k, 12, 40, 41, WS_H, X_BYTES)
    srd_from(k, 16, 16, 17, 0, X_BYTES)
    for jj in range(7):
        for i in range(5):
            k(f's_add_u32 m0, s47, {jj*5120+1024*i}')
            k(f'buffer_load_dwordx4 v{170+i}, s[4:7], s45 offen lds')
        k(f's_add_u32 s45, s45, {32*1280}')
        for t in range(4):
            k(f'buffer_load_dwordx4 {ar(16*jj+4*t,4)}, v{180+jj//4}, s[8:11], s{48+t} offen offset:{1024*(jj%4)}')
    ACC = lambda n, t: (t * 5 + n) * 4
    k(f'''s_lshl_b32 s42, s35, 2
s_add_u32 s42, s42, s38
s_mul_i32 s42, s42, {16*1280}
s_add_u32 s42, s42, s46
v_mul_u32_u24 v176, 1280, v183
v_lshl_add_u32 v176, v184, 3, v176''')
    for jj in range(7):
        buf = 80 + 20 * (jj & 1)
        extra = 5 if jj >= 1 else 0
        k(f's_waitcnt vmcnt({9*(6-jj)+4+extra})')
        for n in range(5):
            k(f'ds_read_b64_tr_b16 {vr(buf+4*n,2)}, v175 offset:{jj*5120+32*n}')
            k(f'ds_read_b64_tr_b16 {vr(buf+4*n+2,2)}, v175 offset:{jj*5120+32*n+2560}')
        k(f's_waitcnt vmcnt({9*(6-jj)+extra})')
        if jj == 0:
            for n in range(5):
                k(f'buffer_load_dwordx2 {vr(160+2*n,2)}, v176, s[12:15], s42 offen offset:{32*n}')
        for n in range(5):
            k(f's_waitcnt lgkmcnt({2*(4-n)})')
            for t in range(4):
                acc = vr(ACC(n, t), 4)
                c = '0' if jj == 0 else acc
                k(f'{MFMA} {acc}, {vr(buf+4*n,4)}, {ar(16*jj+4*t,4)}, {c}')
    labs = [k.label('w') for _ in range(4)]; J = k.label('j')
    k(f'v_add_u32 v177, s47, v180')
    for w in range(1, 4):
        k(f's_cmp_eq_u32 s38, {w}\ns_cbranch_scc1 {labs[w]}')
    for w in range(4):
        k(f'{labs[w]}:')
        for d in range(1, 4):
            t = (w + d) & 3
            for n in range(5):
                k(f'ds_write_b128 v177, {vr(ACC(n,t),4)} offset:{(d-1)*5120+1024*n}')
        if w != 0:
            for i in range(20):
                k(f'v_mov_b32 v{i}, v{20*w+i}')
        for d in range(1, 4):
            k(f'v_add_u32 v{177+d}, {((w-d)&3)*WR+(d-1)*5120}, v180')
        if w != 3: k(f's_branch {J}')
    k(f'''{J}:
s_waitcnt lgkmcnt(0)
s_barrier''')
    for d in range(3):
        for n in range(5):
            k(f'ds_read_b128 {vr(20+20*d+4*n,4)}, v{178+d} offset:{1024*n}')
    for d in range(3):
        k(f's_waitcnt lgkmcnt({10-5*d})')
        for i in range(0, 20, 2):
            k(f'v_pk_add_f32 {vr(i,2)}, {vr(i,2)}, {vr(20+20*d+i,2)}')
    k('s_waitcnt vmcnt(0)')
    for n in range(5):
        a = 4 * n
        k(f'''v_cvt_pk_bf16_f32 v40, v{a}, v{a+1}
v_cvt_pk_bf16_f32 v41, v{a+2}, v{a+3}
v_lshlrev_b32 v{a}, 16, v40
v_and_b32 v{a+1}, 0xffff0000, v40
v_lshlrev_b32 v{a+2}, 16, v41
v_and_b32 v{a+3}, 0xffff0000, v41
v_lshlrev_b32 v44, 16, v{160+2*n}
v_and_b32 v45, 0xffff0000, v{160+2*n}
v_lshlrev_b32 v46, 16, v{161+2*n}
v_and_b32 v47, 0xffff0000, v{161+2*n}
v_pk_add_f32 {vr(a,2)}, {vr(a,2)}, v[44:45]
v_pk_add_f32 {vr(a+2,2)}, {vr(a+2,2)}, v[46:47]
v_cvt_pk_bf16_f32 v{48+2*n}, v{a}, v{a+1}
v_cvt_pk_bf16_f32 v{49+2*n}, v{a+2}, v{a+3}
buffer_store_dwordx2 {vr(48+2*n,2)}, v176, s[16:19], s42 offen offset:{32*n}''')
    k(f'{END}:\ns_endpgm')
    return k
```

```python
import numpy as np
from common import f2bf_bits

lane = np.arange(64)
LAM = lane & 15
G = lane >> 4


def cs(N, e):
    e = np.asarray(e) % N
    c = np.cos(2 * np.pi * e / N); s = -np.sin(2 * np.pi * e / N)
    c = np.where(np.abs(c) < 1e-12, 0.0, c); s = np.where(np.abs(s) < 1e-12, 0.0, s)
    return c, s


def operand(f):
    out = np.zeros((64, 8), dtype=np.float32)
    for l in range(64):
        for e in range(8):
            out[l, e] = f(l & 15, l >> 4, e)
    return f2bf_bits(out).reshape(64, 8).view(np.uint32).ravel()


def f32chunk(f):
    out = np.zeros((64, 4), dtype=np.float32)
    for l in range(64):
        for r in range(4):
            out[l, r] = f(l & 15, l >> 4, r)
    return out.view(np.uint32).ravel()


def wr(N, e): return float(cs(N, e)[0])
def wi(N, e): return float(cs(N, e)[1])


def build_tab():
    ch = []
    ch.append(operand(lambda lam, g, e: wr(20, (8 * g + e) * lam) if (8 * g + e < 20 and lam <= 10) else 0.0))
    ch.append(operand(lambda lam, g, e: wi(20, (8 * g + e) * lam) if (8 * g + e < 20 and lam <= 10) else 0.0))
    for t in range(2):
        ch.append(f32chunk(lambda lam, g, r: wr(640, (16 * t + 4 * g + r) * lam)))
        ch.append(f32chunk(lambda lam, g, r: wi(640, (16 * t + 4 * g + r) * lam)))
    n1p = lambda g, e: 16 * (e >> 2) + 4 * g + (e & 3)
    ch.append(operand(lambda lam, g, e: wr(32, lam * n1p(g, e))))
    ch.append(operand(lambda lam, g, e: wi(32, lam * n1p(g, e))))
    ch.append(operand(lambda lam, g, e: wr(16, (4 * g + (e >> 1)) * lam) if (e & 1) == 0 else -wi(16, (4 * g + (e >> 1)) * lam)))
    ch.append(operand(lambda lam, g, e: wi(16, (4 * g + (e >> 1)) * lam) if (e & 1) == 0 else wr(16, (4 * g + (e >> 1)) * lam)))
    ch.append(f32chunk(lambda lam, g, r: wr(256, (4 * g + r) * lam)))
    ch.append(f32chunk(lambda lam, g, r: wi(256, (4 * g + r) * lam)))
    fr = lambda lam, g, e: wr(16, lam * (4 * g + (e & 3)))
    fi = lambda lam, g, e: wi(16, lam * (4 * g + (e & 3)))
    ch.append(operand(lambda lam, g, e: fr(lam, g, e) if e < 4 else -fi(lam, g, e)))
    ch.append(operand(lambda lam, g, e: fi(lam, g, e) if e < 4 else fr(lam, g, e)))
    ch.append(operand(lambda lam, g, e: fr(lam, g, e) if e < 4 else fi(lam, g, e)))
    ch.append(operand(lambda lam, g, e: -fi(lam, g, e) if e < 4 else fr(lam, g, e)))
    n1c = lambda t, lam: 8 * (lam >> 2) + 4 * t + (lam & 3)
    for t in range(2):
        ch.append(operand(lambda lam, g, e: wr(32, n1c(t, lam) * (4 * g + (e >> 1))) if (e & 1) == 0 else wi(32, n1c(t, lam) * (4 * g + (e >> 1)))))
        ch.append(operand(lambda lam, g, e: -wi(32, n1c(t, lam) * (4 * g + (e >> 1))) if (e & 1) == 0 else wr(32, n1c(t, lam) * (4 * g + (e >> 1)))))
    sc = 1.0 / (2048 * 640)
    for t in range(2):
        ch.append(f32chunk(lambda lam, g, r: sc * wr(640, n1c(t, lam) * (4 * g + r))))
        ch.append(f32chunk(lambda lam, g, r: -sc * wi(640, n1c(t, lam) * (4 * g + r))))
    def sb(v):
        def f(lam, g, e):
            k2p = 4 * g + (e & 3); n2p = 16 * v + lam
            if k2p > 10 or n2p >= 20: return 0.0
            mult = 1.0 if k2p in (0, 10) else 2.0
            if e < 4: return mult * wr(20, n2p * k2p)
            return mult * wi(20, n2p * k2p)
        return f
    ch.append(operand(sb(0))); ch.append(operand(sb(1)))
    while len(ch) < 32:
        ch.append(np.zeros(256, dtype=np.uint32))
    n1 = np.arange(256)[:, None]; k2 = np.arange(8)[None, :]
    c, s = cs(2048, n1 * k2)
    st = np.stack([c, s], -1).astype(np.float32).view(np.uint32).ravel()
    return np.concatenate(ch + [st])


TAB_BYTES = 32768 + 16384
```

```python
import sys
from asmlib import *
from tables import build_tab
import gen_fft, gen_gemm
ks = [gen_fft.gen_k0(), gen_fft.gen_k1(), gen_fft.gen_k2a(), gen_gemm.gen_k2(), gen_gemm.gen_k3_full(), gen_gemm.gen_k4()]
s = build_file(ks, {'tab': build_tab()})
open(sys.argv[1], 'w').write(s)
print(len(s))
```

```python
import re
import numpy as np

REG_RE = re.compile(r'\b([vas])(\d+)\b|\b([vas])\[(\d+):(\d+)\]|\b(vcc_lo|vcc_hi|vcc|exec_lo|exec_hi|exec|m0|scc)\b')

TRANS = ('v_exp_', 'v_log_', 'v_rcp_', 'v_rsq_', 'v_sqrt_', 'v_sin_', 'v_cos_')


def regs_of(tok):
    out = set()
    for m in REG_RE.finditer(tok):
        if m.group(1):
            out.add((m.group(1), int(m.group(2))))
        elif m.group(3):
            for i in range(int(m.group(4)), int(m.group(5)) + 1):
                out.add((m.group(3), i))
        else:
            n = m.group(6)
            if n == 'vcc':
                out.add(('x', 'vcc_lo')); out.add(('x', 'vcc_hi'))
            elif n == 'exec':
                out.add(('x', 'exec_lo')); out.add(('x', 'exec_hi'))
            else:
                out.add(('x', n))
    return out


def split_ops(s):
    ops = []; depth = 0; cur = ''
    for ch in s:
        if ch == '[': depth += 1
        if ch == ']': depth -= 1
        if ch == ',' and depth == 0:
            ops.append(cur.strip()); cur = ''
        else:
            cur += ch
    if cur.strip(): ops.append(cur.strip())
    return ops


class Ins:
    __slots__ = ('text', 'mn', 'kind', 'w', 'r', 'srcc', 'srcab', 'passes', 'dpp', 'trans', 'wide', 'nop', 'label',
                 'target', 'ldsdma', 'opsel', 'dot', 'dtok', 'ctok', 'lanesel')

    def __init__(self, text):
        self.text = text
        t = text.split(';')[0].strip()
        self.label = None; self.target = None; self.nop = 0
        self.w = set(); self.r = set(); self.srcc = set(); self.srcab = set()
        self.passes = 0; self.dpp = False; self.trans = False; self.wide = False; self.ldsdma = False
        self.opsel = False; self.dot = False; self.dtok = None; self.ctok = None; self.lanesel = set()
        if t.endswith(':'):
            self.kind = 'label'; self.label = t[:-1]; self.mn = ''
            return
        if t == '' or t.startswith('.'):
            self.kind = 'dir'; self.mn = ''
            return
        parts = t.split(None, 1)
        mn = parts[0]; self.mn = mn
        rest = parts[1] if len(parts) > 1 else ''
        ops = split_ops(rest)
        mods = ''
        if ops:
            last = ops[-1].split(None, 1)
            if len(last) > 1:
                ops[-1] = last[0]; mods = last[1]
        R = [regs_of(o) for o in ops]
        allr = set().union(*R) if R else set()
        if mn == 's_nop':
            self.kind = 'nop'; self.nop = int(ops[0], 0) + 1
        elif mn.startswith('s_cbranch') or mn == 's_branch':
            self.kind = 'branch'; self.target = ops[0]
        elif mn.startswith('v_mfma'):
            self.kind = 'mfma'
            self.w = R[0]; self.srcab = R[1] | R[2]; self.srcc = R[3]; self.r = self.srcab | self.srcc
            self.dtok = ops[0]; self.ctok = ops[3]
            self.passes = 8 if '32x32' in mn else 4
        elif mn.startswith('v_'):
            self.kind = 'valu'
            nd = 1
            if '_co_' in mn or mn.startswith('v_div_scale'): nd = 2
            if mn.startswith('v_permlane') and 'swap' in mn:
                self.w = R[0] | R[1]; self.r = R[0] | R[1]
            else:
                self.w = set().union(*R[:nd]); self.r = set().union(*R[nd:]) if len(R) > nd else set()
            if mn.startswith('v_cmpx'):
                self.w |= {('x', 'exec_lo'), ('x', 'exec_hi')}
            if mn.startswith(('v_fmac', 'v_mac', 'v_dot2c', 'v_writelane', 'v_pk_fmac')) or 'dpp' in mn or any(k in mods for k in ('row_', 'quad_perm', 'wave_')):
                self.r |= R[0]
            if mn.startswith('v_cndmask') and len(ops) == 3:
                self.r |= {('x', 'vcc_lo'), ('x', 'vcc_hi')}
            if mn.startswith(('v_addc', 'v_subb')) and len(ops) <= 4:
                self.r |= {('x', 'vcc_lo'), ('x', 'vcc_hi')}
            self.dpp = any(k in mods for k in ('row_', 'quad_perm', 'wave_'))
            self.trans = mn.startswith(TRANS)
            self.dot = mn.startswith('v_dot')
            self.opsel = ('sdwa' in mn) or ('dst_sel' in mods) or (('op_sel' in mods) and not mn.startswith('v_pk_'))
            if mn.startswith(('v_readlane', 'v_writelane')):
                self.lanesel = R[2]
        elif mn.startswith(('buffer_', 'global_', 'flat_')):
            self.kind = 'vmem'
            is_lds = (' lds' in (' ' + mods)) or ('_lds_' in mn)
            self.ldsdma = is_lds
            if ('load' in mn) and not is_lds:
                self.w = R[0]; self.r = set().union(*R[1:])
            elif 'atomic' in mn and 'sc0' in mods:
                self.w = R[0]; self.r = allr
            else:
                self.r = allr
            if is_lds: self.r |= {('x', 'm0')}
            self.wide = ('store' in mn) and ('x3' in mn or 'x4' in mn)
            if self.wide:
                self.srcc = R[0] if mn.startswith('buffer_') else R[1]
        elif mn.startswith('ds_'):
            self.kind = 'ds'
            if mn.startswith(('ds_read', 'ds_bpermute', 'ds_permute', 'ds_swizzle')) or '_rtn' in mn:
                self.w = R[0]; self.r = set().union(*R[1:])
            else:
                self.r = allr
        elif mn.startswith('s_'):
            self.kind = 'salu'
            if mn.startswith(('s_cmp', 's_waitcnt', 's_barrier', 's_endpgm', 's_setprio', 's_sleep', 's_bitcmp')):
                self.r = allr
            else:
                self.w = R[0] if R else set(); self.r = set().union(*R[1:]) if len(R) > 1 else set()
                if 'saveexec' in mn:
                    self.w |= {('x', 'exec_lo'), ('x', 'exec_hi')}
        else:
            raise ValueError('unknown instr ' + text)


EXEC = {('x', 'exec_lo'), ('x', 'exec_hi')}


def is_sg(r):
    return r[0] in ('s', 'x')


def need(p, c):
    n = 0
    if p.kind == 'valu':
        vw = {r for r in p.w if r[0] in 'va'}
        sw = {r for r in p.w if is_sg(r)}
        if c.kind == 'mfma' and (vw & c.r): n = max(n, 2)
        if c.kind == 'valu':
            if c.dpp and (vw & c.r): n = max(n, 2)
            if c.mn.startswith(('v_readlane', 'v_readfirstlane')) and (vw & c.r): n = max(n, 1)
            if c.mn.startswith('v_permlane') and (vw & c.r): n = max(n, 2)
            if sw & c.r: n = max(n, 2)
            if sw & c.lanesel: n = max(n, 4)
            if p.opsel and (vw & (c.r | c.w)): n = max(n, 1)
            if (sw & EXEC):
                if c.dpp: n = max(n, 5)
                if c.mn.startswith(('v_readlane', 'v_readfirstlane', 'v_writelane', 'v_permlane')): n = max(n, 4)
        if p.trans and (vw & c.r) and not (c.kind == 'valu' and c.trans): n = max(n, 1)
        if p.dot and (vw & (c.r | c.w)):
            n = max(n, 3)
        if c.kind == 'vmem' and (sw & c.r): n = max(n, 5)
        if c.kind == 'mfma' and (sw & EXEC): n = max(n, 4)
    if p.kind == 'mfma':
        P = p.passes
        if c.kind == 'mfma':
            if p.w & c.srcab: n = max(n, 8 if P == 4 else 12)
            if p.w & c.srcc:
                if not (c.ctok == p.dtok and c.passes == P and c.mn == p.mn): n = max(n, 6 if P == 4 else 10)
            elif p.w & c.w:
                n = max(n, 8 if P == 4 else 12)
        elif c.kind in ('valu', 'vmem', 'ds'):
            if p.w & (c.r | c.w): n = max(n, 8 if P == 4 else 12)
            if c.kind == 'valu' and (p.srcc & c.w): n = max(n, 3 if P == 4 else 7)
    if p.kind == 'vmem' and p.wide:
        if p.srcc & c.w: n = max(n, 2)
    if p.kind == 'salu' and ('x', 'm0') in p.w and c.kind == 'vmem' and c.ldsdma: n = max(n, 1)
    return n


def slots(i):
    if i.kind in ('label', 'dir'): return 0
    if i.kind == 'nop': return i.nop
    return 1


def required(hist, c):
    if c.kind in ('label', 'dir', 'nop'): return 0
    d = 0; worst = 0
    for p in reversed(hist):
        if d >= 20: break
        if p.kind not in ('label', 'dir', 'nop'):
            worst = max(worst, need(p, c) - d)
        d += slots(p)
    return worst


def fix_hazards(lines):
    ins = [Ins(l) for l in lines]
    changed = True
    it = 0
    while changed:
        changed = False; it += 1
        assert it < 50
        out = []
        for c in ins:
            n = required(out[-40:], c)
            if n > 0:
                out.append(Ins(f's_nop {n-1}')); changed = True
            out.append(c)
        ins = out
        labels = {i.label: k for k, i in enumerate(ins) if i.kind == 'label'}
        for k, b in enumerate(ins):
            if b.kind == 'branch' and b.target in labels:
                hist = ins[max(0, k - 40):k + 1]
                j = labels[b.target] + 1
                seen = []
                cnt = 0
                while j < len(ins) and cnt < 24:
                    c = ins[j]
                    n = required(hist + seen, c)
                    if n > 0:
                        ins.insert(j, Ins(f's_nop {n-1}')); changed = True
                        break
                    seen.append(c); cnt += slots(c); j += 1
                if changed: break
    return [i.text for i in ins]


class Kern:
    def __init__(self, name, grid, block, lds, nvgpr=128, nagpr=0, nsgpr=96):
        self.name = name; self.grid = grid; self.block = block; self.lds = lds
        self.nvgpr = nvgpr; self.nagpr = nagpr; self.nsgpr = nsgpr
        self.lines = []
        self._lab = 0
        self.nst = 0
        self.kidx = Kern.count; Kern.count += 1

    prof = False
    count = 0

    def stamp(self, first=False):
        if not Kern.prof: return
        if first:
            self('v_lshrrev_b32 v1, 6, v0\nv_readfirstlane_b32 s83, v1\ns_memtime s[76:77]')
        assert self.nst < 12
        self(f's_memrealtime s[96:97]\ns_waitcnt lgkmcnt(0)\ns_mov_b32 s{84+self.nst}, s96')
        self.nst += 1

    def finish(self, END):
        if Kern.prof:
            self.nsgpr = 102
            seen = False
            for i, l in enumerate(self.lines):
                if l.startswith('s_cbranch') or l.startswith('s_branch'):
                    if l.split()[-1] == END:
                        if not self.lines[i-1].startswith('s_cmp_ge_u32 s2,'): self.lines[i] = l + '_d'
            self(f'{END}_d:')
            self.nst = 10
            self.stamp()
            self('s_waitcnt vmcnt(0)\n' + ('' if getattr(self, 'clkm', 0) else 's_memtime s[78:79]'))
            self.stamp()
            self(f'''s_load_dwordx2 s[96:97], s[0:1], 80
s_lshl_b32 s98, s2, 4
s_add_u32 s98, s98, s83
s_lshl_b32 s98, s98, 6
s_add_u32 s98, s98, {0x8000000 + self.kidx * 0x100000}
s_mov_b64 exec, 1
s_waitcnt lgkmcnt(0) vmcnt(0)
s_add_u32 s96, s96, s98
s_addc_u32 s97, s97, 0
s_mov_b32 s98, 64
s_mov_b32 s99, 0x00020000
v_mov_b32 v0, 0''')
            for i in range(12): self(f'v_mov_b32 v{4+i}, s{84+i}')
            self('v_mov_b32 v16, s76\nv_mov_b32 v17, s78\nv_mov_b32 v18, 0\nv_mov_b32 v19, 0')
            for i in range(4): self(f'buffer_store_dwordx4 v[{4+4*i}:{7+4*i}], v0, s[96:99], 0 offen offset:{16*i}')
        self(f'{END}:\ns_endpgm')

    def __call__(self, text):
        for l in text.strip('\n').split('\n'):
            l = l.strip()
            if l: self.lines.append(l)

    def label(self, base='L'):
        self._lab += 1
        return f'{self.name}_{base}{self._lab}'

    def text(self):
        body = fix_hazards(self.lines)
        s = f'.globl {self.name}\n.p2align 8\n.type {self.name},@function\n{self.name}:\n'
        for l in body:
            s += (l if l.endswith(':') else '  ' + l) + '\n'
        return s

    def desc(self):
        acc = (self.nvgpr + 3) // 4 * 4
        tot = acc + self.nagpr
        return f""".p2align 6
.amdhsa_kernel {self.name}
  .amdhsa_next_free_vgpr {tot}
  .amdhsa_next_free_sgpr {self.nsgpr}
  .amdhsa_accum_offset {acc}
  .amdhsa_group_segment_fixed_size 0
  .amdhsa_kernarg_size 88
  .amdhsa_user_sgpr_count 2
  .amdhsa_user_sgpr_kernarg_segment_ptr 1
  .amdhsa_system_sgpr_workgroup_id_x 1
.end_amdhsa_kernel
"""


def table_text(name, u32):
    u32 = np.ascontiguousarray(u32).view(np.uint32).ravel()
    s = f'.p2align 8\n.type {name},@object\n{name}:\n'
    for i in range(0, len(u32), 8):
        s += '.long ' + ','.join('0x%x' % v if v else '0' for v in u32[i:i + 8]) + '\n'
    return s


def build_file(kerns, tables, header=''):
    s = header
    for k in kerns:
        s += f'; @launch kernel={k.name} grid=({k.grid},1,1) block=({k.block},1,1) lds={k.lds}\n'
    s += '.amdgcn_target "amdgcn-amd-amdhsa--gfx950"\n.text\n'
    for k in kerns:
        s += k.text()
    s += 'code_end:\n'
    s += '.section .rodata,"a"\n'
    for k in kerns:
        s += k.desc()
    for n, t in tables.items():
        s += table_text(n, t)
    return s
```

```python
from asmlib import *
from gen_fft import vr, sr, srd_from, MFMA, WS_H, WS_HN, X_BYTES

WS_Z1 = 0xC00000
WS_Z2 = 0x1000000
WS_A = 0x1400000
WS_ST = 0x1800000
WS_WI = 0x1900000
WS_WO = 0x1C00000
Z1_BYTES = 64 * 54 * 1024
Z2_BYTES = 8 * 64 * 7168
ST_BYTES = 2048 * 8
WI_BYTES = 16 * 140 * 1024
WO_BYTES = 8 * 135 * 1024
MF32 = 'v_mfma_f32_32x32x16_bf16'


def ar(a, n=1):
    return f'a{a}' if n == 1 else f'a[{a}:{a+n-1}]'


def fbits(x):
    return '0x%08x' % np.float32(x).view(np.uint32)


class Cnt:
    def __init__(self, name, maxv):
        self.name = name; self.maxv = maxv; self.tags = []; self.done = 0

    def issue(self, tag):
        self.tags.append(tag)

    def wait(self, tag):
        idx = max([i for i, t in enumerate(self.tags) if t == tag] + [-1])
        if idx < self.done: return None
        n = len(self.tags) - 1 - idx
        self.done = idx + 1
        if n > self.maxv: return None
        return f's_waitcnt {self.name}({n})'


def interleave(k, mf, fill, per):
    fi = 0
    for i, m in enumerate(mf):
        k(m)
        n = per[i] if isinstance(per, list) else per
        for _ in range(n):
            if fi < len(fill):
                f = fill[fi]; fi += 1
                f() if callable(f) else k(f)
    while fi < len(fill):
        f = fill[fi]; fi += 1
        f() if callable(f) else k(f)


def weave(k, mf, fill, vmem):
    n = len(mf); F = len(fill); fi = 0
    for i, m in enumerate(mf):
        m() if callable(m) else k(m)
        for f in vmem.get(i, []): f() if callable(f) else k(f)
        tgt = (F * (i + 1) + n - 1) // n
        while fi < tgt:
            f = fill[fi]; fi += 1
            f() if callable(f) else k(f)


C0 = -2.0 * 0.7978845608028654 * 1.4426950408889634
C1 = C0 * 0.044715


def gelu_pairs(k, src, n, out, t, vc):
    x = src; p = t
    for i in range(0, n, 2):
        k(f'v_cvt_pk_bf16_f32 v{out+i//2}, v{x+i}, v{x+i+1}')
    for i in range(0, n, 2):
        k(f'v_lshlrev_b32 v{x+i}, 16, v{out+i//2}\nv_and_b32 v{x+i+1}, 0xffff0000, v{out+i//2}')
    for i in range(0, n, 2):
        k(f'v_pk_mul_f32 {vr(p+i,2)}, {vr(x+i,2)}, {vr(x+i,2)}')
    for i in range(0, n, 2):
        k(f'v_pk_fma_f32 {vr(p+i,2)}, {vr(p+i,2)}, {vr(vc,2)}, {vr(vc,2)} op_sel:[0,0,1] op_sel_hi:[1,0,1]')
    for i in range(0, n, 2):
        k(f'v_pk_mul_f32 {vr(p+i,2)}, {vr(p+i,2)}, {vr(x+i,2)}')
    for i in range(n):
        k(f'v_exp_f32 v{p+i}, v{p+i}')
    for i in range(0, n, 2):
        k(f'v_pk_add_f32 {vr(p+i,2)}, {vr(p+i,2)}, 1.0 op_sel_hi:[1,0]')
    for i in range(n):
        k(f'v_rcp_f32 v{p+i}, v{p+i}')
    for i in range(0, n, 2):
        k(f'v_pk_mul_f32 {vr(p+i,2)}, {vr(p+i,2)}, {vr(x+i,2)}')
    for i in range(0, n, 2):
        k(f'v_cvt_pk_bf16_f32 v{out+i//2}, v{p+i}, v{p+i+1}')


def xcd_map_8x4(k):
    k('''s_and_b32 s33, s2, 7
s_lshr_b32 s34, s2, 3
s_lshr_b32 s35, s33, 1
s_lshl_b32 s35, s35, 3
s_and_b32 s36, s34, 7
s_add_u32 s35, s35, s36
s_and_b32 s36, s33, 1
s_lshl_b32 s36, s36, 2
s_lshr_b32 s37, s34, 3
s_add_u32 s36, s36, s37''')


def gen_k2(opt={}):
    k = Kern('k2_kernel', 256, 256, 143360, nvgpr=192, nagpr=160)
    END = k.label('end'); Z2 = k.label('z2')
    k(f'''s_cmp_ge_u32 s2, 256
s_cbranch_scc1 {END}
s_load_dwordx2 s[40:41], s[0:1], 80''')
    k.stamp(True)
    k(f'''s_and_b32 s33, s2, 7
s_lshr_b32 s34, s2, 3
s_lshr_b32 s35, s33, 1
s_lshl_b32 s35, s35, 2
s_and_b32 s36, s34, 3
s_add_u32 s35, s35, s36
s_and_b32 s36, s33, 1
s_lshr_b32 s37, s34, 2
v_lshrrev_b32 v1, 6, v0
v_and_b32 v2, 63, v0
v_readfirstlane_b32 s38, v1
v_and_b32 v4, 15, v2
v_lshrrev_b32 v5, 4, v2
v_lshlrev_b32 v120, 4, v2
v_add_u32 v121, 4096, v120
v_add_u32 v129, {8*7168}, v120
v_add_u32 v130, {16*7168}, v120''')
    k(f'''s_lshl_b32 s39, s35, 2
s_add_u32 s39, s39, s38
s_mul_i32 s44, s39, 40960
s_lshl_b32 s45, s36, 3
s_add_u32 s45, s45, s37
s_mul_i32 s45, s45, {140*1024}
s_mul_i32 s47, s38, 7168
s_add_u32 s45, s45, s47
s_waitcnt lgkmcnt(0)''')
    srd_from(k, 4, 40, 41, WS_WI, WI_BYTES)
    srd_from(k, 8, 40, 41, WS_HN, X_BYTES)
    srd_from(k, 12, 40, 41, WS_Z1, Z1_BYTES)
    srd_from(k, 16, 40, 41, WS_Z2, Z2_BYTES)
    srd_from(k, 20, 40, 41, WS_ST, ST_BYTES)

    def issue_ops(p):
        ops = []
        for i in range(7):
            s = ''
            if i % 4 == 0: s = f's_add_u32 m0, s47, {p*4*7168+1024*i}\n'
            s += f'buffer_load_dwordx4 v{120+i//4}, s[4:7], s45 offen offset:{1024*(i%4)} lds'
            if i == 6: s += f'\ns_add_u32 s45, s45, {4*7168}'
            ops.append(s)
        for i in range(8):
            s = f'buffer_load_dwordx4 {ar(32*p+4*i,4)}, v{120+i//4}, s[8:11], s44 offen offset:{1024*(i%4)}'
            if i == 7: s += '\ns_add_u32 s44, s44, 8192'
            ops.append(s)
        return ops
    for p in range(2):
        for o in issue_ops(p): k(o)
    k(f'''v_mov_b32 v132, {fbits(C1)}
v_mov_b32 v133, {fbits(C0)}
s_cmp_eq_u32 s36, 1
s_cbranch_scc1 {Z2}''')

    def rdB(kk, buf, n):
        base = [120, 129, 130][kk // 8]; off = (kk % 8) * 7168
        k(f'ds_read_b128 {vr(buf+4*n,4)}, v{base} offset:{off+1024*n}')

    def mainloop(z2):
        waits = [15, 15, 15, 15, 0]
        for p in range(5):
            pend = issue_ops(p + 2) if p + 2 < 5 else []
            if p == 0: k.nst = 1; k.stamp()
            k(f's_waitcnt vmcnt({waits[p]})\ns_barrier')
            k.stamp()
            for n in range(7): rdB(4 * p, 8, n)
            for q in range(4):
                kk = 4 * p + q
                buf = 8 + 28 * (q & 1)
                for n in range(7):
                    rem = 6 if q < 3 else (6 - n)
                    k(f's_waitcnt lgkmcnt({rem})')
                    for u in range(2):
                        acc = vr(64 + (u * 7 + n) * 4, 4)
                        c = '0' if kk == 0 else acc
                        if z2:
                            k(f'{MFMA} {acc}, {ar(8*kk+4*u,4)}, {vr(buf+4*n,4)}, {c}')
                        else:
                            k(f'{MFMA} {acc}, {vr(buf+4*n,4)}, {ar(8*kk+4*u,4)}, {c}')
                    if q < 3:
                        rdB(kk + 1, 8 + 28 * ((q + 1) & 1), n)
                    if pend and ((q * 7 + n) % 2 == 0 or (q == 0 and n == 1)): k(pend.pop(0))
            assert not pend

    mainloop(False)
    k.stamp()
    L5 = k.label('l5')
    k(f'''s_mul_i32 s42, s39, 54
s_mul_i32 s43, s37, 7
s_add_u32 s42, s42, s43
s_lshl_b32 s42, s42, 10
v_lshrrev_b32 v6, 1, v5
v_and_b32 v7, 1, v5
v_lshl_add_u32 v3, v6, 4, v4
v_lshl_add_u32 v3, v7, 5, v3
v_lshlrev_b32 v3, 4, v3
v_add_u32 v6, 4096, v3''')
    for n in range(7):
        if n == 5:
            k(f's_cmp_eq_u32 s37, 7\ns_cbranch_scc1 {END}')
        o = 8 + 4 * (n & 1)
        for u in range(2):
            gelu_pairs(k, 64 + (u * 7 + n) * 4, 4, o + 2 * u, 16 + 8 * u, 132)
        k(f'v_permlane32_swap_b32 v{o}, v{o+2}\nv_permlane32_swap_b32 v{o+1}, v{o+3}')
        k(f'buffer_store_dwordx4 {vr(o,4)}, v{3 if n < 4 else 6}, s[12:15], s42 offen offset:{1024*(n%4)}')
    k(f's_branch {END}')
    k(f'{Z2}:')
    mainloop(True)
    k.stamp()
    k(f'''s_lshl_b32 s43, s37, 6
s_add_u32 s43, s43, s39
s_mul_i32 s43, s43, 7168
s_lshl_b32 s44, s39, 8
v_lshrrev_b32 v6, 1, v5
v_and_b32 v7, 1, v5
v_lshlrev_b32 v7, 9, v7
v_lshl_add_u32 v7, v4, 4, v7
v_lshl_add_u32 v3, v6, 10, v7
v_lshl_add_u32 v7, v6, 8, v7
v_add_u32 v6, 4096, v3
v_add_u32 v7, 4096, v7''')
    S = 136; Q = 144
    for i in range(16): k(f'v_mov_b32 v{136+i}, 0')
    for n in range(7):
        if n == 5:
            k(f's_cmp_eq_u32 s37, 7\ns_cbranch_scc1 {L5}')
        o = 8 + 4 * (n & 1)
        for u in range(2):
            gelu_pairs(k, 64 + (u * 7 + n) * 4, 4, o + 2 * u, 16 + 8 * u, 132)
        if n < 6:
            off = (n >> 1) * 2048 + (n & 1) * 256
            k(f'buffer_store_dwordx4 {vr(o,4)}, v{3 if off < 4096 else 6}, s[16:19], s43 offen offset:{off%4096}')
        else:
            k(f'buffer_store_dwordx4 {vr(o,4)}, v7, s[16:19], s43 offen offset:2048')
        for i in range(4):
            k(f'v_lshlrev_b32 v{32+2*i}, 16, v{o+i}\nv_and_b32 v{33+2*i}, 0xffff0000, v{o+i}')
        for i in range(4):
            k(f'v_pk_add_f32 {vr(S+2*i,2)}, {vr(S+2*i,2)}, {vr(32+2*i,2)}')
            k(f'v_pk_fma_f32 {vr(Q+2*i,2)}, {vr(32+2*i,2)}, {vr(32+2*i,2)}, {vr(Q+2*i,2)}')
    k(f'{L5}:')
    V = [0] * 16
    for e in range(8):
        V[2 * e] = S + e; V[2 * e + 1] = Q + e
    for i in range(8):
        k(f'v_add_f32_dpp v{V[i]}, v{V[i]}, v{V[i]} row_ror:8 row_mask:0xf bank_mask:0x3')
    for i in range(8):
        k(f'v_add_f32_dpp v{V[i]}, v{V[i+8]}, v{V[i+8]} row_ror:8 row_mask:0xf bank_mask:0xc')
    for i in range(4):
        k(f'v_add_f32_dpp v{V[i]}, v{V[i]}, v{V[i]} row_half_mirror row_mask:0xf bank_mask:0x5')
    for i in range(4):
        k(f'v_add_f32_dpp v{V[i]}, v{V[i+4]}, v{V[i+4]} row_half_mirror row_mask:0xf bank_mask:0xa')
    for m in ('quad_perm:[1,0,3,2]', 'quad_perm:[2,3,0,1]'):
        for i in range(4):
            k(f'v_add_f32_dpp v{V[i]}, v{V[i]}, v{V[i]} {m} row_mask:0xf bank_mask:0xf')
    k(f'''s_mov_b32 vcc_lo, 0xaaaaaaaa
s_mov_b32 vcc_hi, 0xaaaaaaaa
v_cndmask_b32 v8, v{V[0]}, v{V[1]}, vcc
v_cndmask_b32 v9, v{V[2]}, v{V[3]}, vcc
s_mov_b32 vcc_lo, 0xcccccccc
s_mov_b32 vcc_hi, 0xcccccccc
v_cndmask_b32 v8, v8, v9, vcc
v_lshlrev_b32 v3, 2, v2
buffer_atomic_add_f32 v8, v3, s[20:23], s44 offen sc1''')
    k.finish(END)
    return k


def gen_k3(opt={}):
    W0 = 12288
    k = Kern(opt.get('name3', 'k3_kernel'), 256, 256, W0 + 131072, nvgpr=128, nagpr=248)
    END = k.label('end')
    D = opt.get('D3', 3)
    k(f'''s_cmp_ge_u32 s2, 256
s_cbranch_scc1 {END}
s_load_dwordx2 s[4:5], s[0:1], 40
s_load_dwordx2 s[24:25], s[0:1], 48
s_load_dwordx2 s[40:41], s[0:1], 80''')
    k.stamp(True)
    xcd_map_8x4(k)
    k(f'''v_lshrrev_b32 v1, 6, v0
v_and_b32 v2, 63, v0
v_readfirstlane_b32 s38, v1
v_lshlrev_b32 v3, 4, v2
v_add_u32 v4, 4096, v3
v_lshrrev_b32 v8, 3, v2
v_lshrrev_b32 v9, 2, v8
v_and_b32 v10, 3, v8
v_lshl_add_u32 v9, v9, 3, v10
v_lshlrev_b32 v9, 12, v9
v_lshrrev_b32 v10, 1, v8
v_and_b32 v11, 7, v2
v_xor_b32 v10, v10, v11
v_lshl_add_u32 v5, v10, 4, v9
v_xor_b32 v6, 64, v5
v_lshlrev_b32 v7, 6, v0
s_lshl_b32 s48, s35, 18
s_lshl_b32 s42, s38, 10
s_add_u32 s48, s48, s42''')
    for i in range(1, 8):
        ip = i & 3
        k(f's_add_u32 s{48+i}, s48, {4096*(16*(ip&1)+4*(ip>>1)+32*(i>>2))}')
    k(f'''s_lshl_b32 s56, s36, 6
s_lshl_b32 s42, s38, 4
s_add_u32 s56, s56, s42
s_mul_i32 s56, s56, 7168
s_lshl_b32 s47, s38, 15
s_add_u32 s47, s47, {W0}
s_sub_u32 s46, s47, 1024
s_mov_b32 s57, 0xffff0000
s_waitcnt lgkmcnt(0)''')
    srd_from(k, 4, 4, 5, 0, 2048 * 4096)
    srd_from(k, 8, 40, 41, WS_Z2, Z2_BYTES)
    srd_from(k, 20, 40, 41, WS_ST, ST_BYTES)
    vm = Cnt('vmcnt', 63); lg = Cnt('lgkmcnt', 15)
    for i in range(4):
        k(f'buffer_load_dwordx4 {vr(44+4*i,4)}, v7, s[20:23], 0 offen offset:{16*i}'); vm.issue('st')
    XR = 16; MR = 36; RAW = 44; RR = 60; SC = 76; TM = 108

    def dma_ops(Hh):
        ops = []
        J = Hh // 2
        for i in range(4 * (Hh & 1), 4 * (Hh & 1) + 4):
            def f(i=i):
                if opt.get('nodma'): return
                k(f's_add_u32 m0, s46, {(J%4)*8192+1024*i-128*J+1024}')
                k(f'buffer_load_dwordx4 v{5+(i&1)}, s[4:7], s{48+i} offen offset:{128*J} lds'); vm.issue(f'w{J}')
            ops.append(f)
        return ops

    NS3 = D + 1
    def z_ops(j):
        st = j % NS3
        ops = []
        for n in (0, 2, 4, 6, 1, 3, 5):
            def f(n=n):
                if opt.get('noz'): return
                dst = ar(128 + 24 * st + 4 * n, 4) if n < 6 else vr(XR + 4 * st, 4)
                k(f'buffer_load_dwordx4 {dst}, v{3+n//4}, s[8:11], s56 offen offset:{1024*(n%4)}'); vm.issue(f'z{j}')
                if n == 5: k('s_add_u32 s56, s56, 7168')
            ops.append(f)
        return ops
    for o in dma_ops(0) + dma_ops(1) + z_ops(0): o()
    srd_from(k, 12, 40, 41, WS_Z1, Z1_BYTES)
    srd_from(k, 16, 40, 41, WS_A, Z1_BYTES)
    srd_from(k, 24, 24, 25, 0, 4096)
    k(f'''v_and_b32 v14, 31, v2
v_lshrrev_b32 v15, 5, v2
v_lshrrev_b32 v12, 1, v14
v_and_b32 v12, 7, v12
v_xor_b32 v12, v12, v15
v_lshlrev_b32 v12, 4, v12
v_lshl_add_u32 v12, v14, 7, v12
v_add_u32 v8, s47, v12
v_xor_b32 v9, 32, v8
v_xor_b32 v10, 64, v8
v_xor_b32 v11, 96, v8
s_lshl_b32 s42, s38, 11
v_lshlrev_b32 v12, 5, v15
v_add_u32 v12, s42, v12
v_lshrrev_b32 v13, 4, v2
v_and_b32 v13, 1, v13
v_lshl_add_u32 v13, v13, 1, v15
v_lshlrev_b32 v13, 4, v13
s_lshl_b32 s42, s38, 10
v_add_u32 v13, s42, v13''')
    inv = fbits(1.0 / 864)
    k.stamp()
    k(vm.wait('st'))
    k.stamp()
    b = 44
    k(f'v_mov_b32 v60, {inv}')
    for i in range(8):
        k(f'v_pk_mul_f32 {vr(b+2*i,2)}, {vr(b+2*i,2)}, v[60:61] op_sel_hi:[1,0]')
    for i in range(8):
        k(f'v_fma_f32 v{b+1+2*i}, -v{b+2*i}, v{b+2*i}, v{b+1+2*i}')
    for i in range(8):
        k(f'v_max_f32 v{b+1+2*i}, 0, v{b+1+2*i}')
    for i in range(4):
        k(f'v_cvt_pk_bf16_f32 v{64+i}, v{b+4*i}, v{b+2+4*i}')
        k(f'v_cvt_pk_bf16_f32 v{68+i}, v{b+1+4*i}, v{b+3+4*i}')

    def unp():
        for i in range(4):
            k(f'v_lshlrev_b32 v{b+2*i}, 16, v{68+i}\nv_and_b32 v{b+1+2*i}, s57, v{68+i}')

    def pk():
        for i in range(4):
            k(f'v_cvt_pk_bf16_f32 v{68+i}, v{b+2*i}, v{b+1+2*i}')
    unp()
    for i in range(8): k(f'v_add_f32 v{b+i}, 0x3727c5ac, v{b+i}')
    pk(); unp()
    for i in range(8): k(f'v_sqrt_f32 v{b+i}, v{b+i}')
    pk(); unp()
    for i in range(8): k(f'v_rcp_f32 v{b+i}, v{b+i}')
    k(f'''v_lshlrev_b32 v72, 5, v0
v_lshlrev_b32 v73, 4, v0
ds_write_b128 v72, {vr(b,4)}
ds_write_b128 v72, {vr(b+4,4)} offset:16
ds_write_b128 v73, v[64:67] offset:8192''')
    for jj in range(1, D):
        for o in dma_ops(jj + 1) + z_ops(jj): o()
    k('s_waitcnt lgkmcnt(0)')

    def rd_ops(j):
        J = j // 2; jp = j & 1
        ops = []

        def first():
            w = vm.wait(f'w{J}')
            if w: k(w)
        ops.append(first)
        for q in range(2):
            for hh in range(2):
                def f(q=q, hh=hh):
                    k(f'ds_read_b128 {vr(RR+8*q+4*hh,4)}, v12 offset:{128*j+64*q+16*hh}'); lg.issue(f'r{j}_{q}')
                ops.append(f)
            for tt in range(2):
                def f(q=q, tt=tt):
                    k(f'ds_read_b128 {vr(RAW+(tt*2+q)*4,4)}, v{8+2*jp+q} offset:{(J%4)*8192+4096*tt}'); lg.issue(f'w{j}_{q}_{tt}')
                ops.append(f)

        def fm():
            k(f'ds_read_b128 {vr(MR+4*(j&1),4)}, v13 offset:{8192+64*j}'); lg.issue(f'm{j}')
        ops.append(fm)
        return ops

    def sc_ops(j):
        ops = []
        for q in range(2):
            for tt in range(2):
                fr = (tt * 2 + q) * 4

                def w(q=q, tt=tt):
                    x = lg.wait(f'w{j}_{q}_{tt}')
                    if x: k(x)
                ops.append(w)
                for i2 in range(2):
                    a0 = RAW + fr + 2 * i2; a1 = a0 + 1
                    r0 = RR + 8 * q + 4 * i2
                    d0 = SC + 16 * (j & 1) + fr + 2 * i2
                    ops += [f'v_lshlrev_b32 v{TM}, 16, v{a0}', f'v_and_b32 v{TM+1}, s57, v{a0}',
                            f'v_lshlrev_b32 v{TM+2}, 16, v{a1}', f'v_and_b32 v{TM+3}, s57, v{a1}',
                            f'v_mul_f32 v{TM}, v{TM}, v{r0}', f'v_mul_f32 v{TM+1}, v{TM+1}, v{r0+1}',
                            f'v_mul_f32 v{TM+2}, v{TM+2}, v{r0+2}', f'v_mul_f32 v{TM+3}, v{TM+3}, v{r0+3}',
                            f'v_cvt_pk_bf16_f32 v{d0}, v{TM}, v{TM+1}', f'v_cvt_pk_bf16_f32 v{d0+1}, v{TM+2}, v{TM+3}']
        return ops
    ACC = lambda ft, tt: (ft * 2 + tt) * 16
    for o in rd_ops(0) + sc_ops(0):
        o() if callable(o) else k(o)

    def epi_loads():
        k(f'''s_lshl_b32 s42, s35, 1
s_mul_i32 s42, s42, 54
s_mul_i32 s43, s36, 7
s_add_u32 s42, s42, s43
s_lshl_b32 s43, s38, 1
s_add_u32 s42, s42, s43
s_lshl_b32 s42, s42, 10
s_add_u32 s43, s42, {54*1024}
v_and_b32 v112, 15, v2
v_lshrrev_b32 v113, 2, v112
v_and_b32 v112, 3, v112
v_lshl_add_u32 v112, v113, 3, v112
v_lshrrev_b32 v113, 4, v2
v_and_b32 v113, 1, v113
v_lshl_add_u32 v112, v113, 2, v112
v_lshlrev_b32 v112, 1, v112
s_lshl_b32 s44, s35, 7
buffer_load_ushort v114, v112, s[24:27], s44 offen
buffer_load_ushort v115, v112, s[24:27], s44 offen offset:64''')
        vm.issue('e'); vm.issue('e')

    def epi_loads2():
        pass

    for j in range(16):
        st = j % NS3
        if j in (1, 4, 8, 12): k.stamp()
        w = vm.wait(f'z{j}')
        if w: k(w)
        x = lg.wait(f'm{j}')
        if x: k(x)
        mf = []
        for q in range(2):
            for ft in range(4):
                for tt in range(2):
                    acc = ar(ACC(ft, tt), 16)
                    c = '0' if (j == 0 and q == 0) else acc
                    if ft < 3: a = ar(128 + 24 * st + 8 * ft + 4 * q, 4)
                    else: a = vr(XR + 4 * st, 4) if q == 0 else vr(MR + 4 * (j & 1), 4)
                    mf.append(f'{MF32} {acc}, {a}, {vr(SC+16*(j&1)+(tt*2+q)*4,4)}, {c}')
        for i in range(4): k(f'v_permlane16_swap_b32 v{XR+4*st+i}, v{MR+4*(j&1)+i}')
        fill = []
        if j + 1 < 16:
            fill += rd_ops(j + 1)
        if j + 1 < 16: fill += sc_ops(j + 1)
        vmem = {}
        if j + D + 1 < 16:
            for i, o in enumerate(dma_ops(j + D + 1)): vmem[4 * i] = [o]
        if j + D < 16:
            for i, o in enumerate(z_ops(j + D)): vmem[2 * i + 1] = [o]
        if j == 14: vmem[2] = [epi_loads]
        weave(k, mf, fill, vmem)
    k.stamp()
    for tt in range(2):
        for u2 in range(2):
            k(f'buffer_load_dwordx4 {vr(92+8*tt+4*u2,4)}, v3, s[12:15], s{42+tt} offen offset:{1024*u2}'); vm.issue('e')
    labs = [k.label('w') for _ in range(4)]; J = k.label('j')
    k(f'v_add_u32 v8, s47, v3\nv_lshlrev_b32 v9, 2, v2\nv_add_u32 v9, s47, v9')
    for w in range(1, 4):
        k(f's_cmp_eq_u32 s38, {w}\ns_cbranch_scc1 {labs[w]}')
    for w in range(4):
        k(f'{labs[w]}:')
        for tt in range(2):
            k(f'ds_write_b32 v9, a{ACC(3,tt)+8} offset:{24576+256*tt}')
        for d in range(1, 4):
            o = (w + d) & 3
            for tt in range(2):
                for qd in range(4 if o < 3 else 2):
                    k(f'ds_write_b128 v8, {ar(ACC(o,tt)+4*qd,4)} offset:{(d-1)*8192+(tt*4+qd)*1024}')
        for i in range(32):
            k(f'v_accvgpr_read_b32 v{16+i}, a{ACC(w,0)+i}')
        for d in range(1, 4):
            k(f'v_add_u32 v{9+d}, {W0+((w-d)&3)*32768+(d-1)*8192}, v3')
        if w != 3: k(f's_branch {J}')
    k(f'''{J}:
v_lshlrev_b32 v9, 2, v2
v_add_u32 v9, {W0+24576}, v9
v_add_u32 v13, 65536, v9
s_waitcnt lgkmcnt(0)''')
    k.stamp()
    k('s_barrier')
    k.stamp()
    for w in range(4):
        for tt in range(2):
            k(f'ds_read_b32 v{116+2*w+tt}, v{9 if w < 2 else 13} offset:{(w&1)*32768+256*tt}')
    NS = 11
    rd = lambda i: k(f'ds_read_b128 {vr(48+4*(i%NS),4)}, v{10+i//8} offset:{1024*(i%8)}')
    for i in range(7): rd(i)
    k('s_waitcnt lgkmcnt(7)')
    k('''v_pk_add_f32 v[116:117], v[116:117], v[118:119]
v_pk_add_f32 v[120:121], v[120:121], v[122:123]''')
    for i in range(7, NS): rd(i)
    k('v_pk_add_f32 v[116:117], v[116:117], v[120:121]')
    for i in range(24):
        k(f's_waitcnt lgkmcnt({min(NS-1, 23-i)})')
        a = 16 + 4 * (i % 8); s = 48 + 4 * (i % NS)
        k(f'v_pk_add_f32 {vr(a,2)}, {vr(a,2)}, {vr(s,2)}')
        k(f'v_pk_add_f32 {vr(a+2,2)}, {vr(a+2,2)}, {vr(s+2,2)}')
        if i + NS < 24: rd(i + NS)
    k(f'''s_cmp_eq_u32 s36, 7
s_cselect_b32 s45, 5, 7
s_lshl_b32 s46, s38, 1
s_sub_i32 s45, s45, s46
s_waitcnt vmcnt(0)
v_lshlrev_b32 v114, 16, v114
v_lshlrev_b32 v118, 16, v115
v_mov_b32 v120, v117''')
    for u2 in range(2):
        k(f's_cmp_le_i32 s45, {u2}\ns_cbranch_scc1 {END}')
        for tt in range(2):
            a = 16 + 16 * tt + 8 * u2
            cr = 116 if tt == 0 else 120
            br = 114 if tt == 0 else 118
            z = 92 + 8 * tt + 4 * u2
            o = 48 + 8 * u2 + 4 * tt
            for i in range(4):
                k(f'v_pk_add_f32 {vr(a+2*i,2)}, {vr(a+2*i,2)}, {vr(cr,2)} op_sel_hi:[1,0] neg_lo:[0,1] neg_hi:[0,1]')
            for i in range(4):
                k(f'v_cvt_pk_bf16_f32 v{64+i}, v{a+2*i}, v{a+2*i+1}')
            for i in range(4):
                k(f'v_lshlrev_b32 v{a+2*i}, 16, v{64+i}\nv_and_b32 v{a+2*i+1}, s57, v{64+i}')
            for i in range(4):
                k(f'v_pk_add_f32 {vr(a+2*i,2)}, {vr(a+2*i,2)}, {vr(br,2)} op_sel_hi:[1,0]')
            for i in range(4):
                k(f'v_cvt_pk_bf16_f32 v{64+i}, v{a+2*i}, v{a+2*i+1}')
            for i in range(4):
                k(f'v_lshlrev_b32 v{a+2*i}, 16, v{64+i}\nv_and_b32 v{a+2*i+1}, s57, v{64+i}')
            for i in range(4):
                k(f'v_lshlrev_b32 v{68+2*i}, 16, v{z+i}\nv_and_b32 v{69+2*i}, s57, v{z+i}')
            for i in range(4):
                k(f'v_pk_mul_f32 {vr(a+2*i,2)}, {vr(a+2*i,2)}, {vr(68+2*i,2)}')
            for i in range(4):
                k(f'v_cvt_pk_bf16_f32 v{o+i}, v{a+2*i}, v{a+2*i+1}')
            k(f'buffer_store_dwordx4 {vr(o,4)}, v3, s[16:19], s{42+tt} offen offset:{1024*u2}')
    k.finish(END)
    return k


def gen_k4(opt={}):
    PIT = 336; REG = 64 * PIT
    k = Kern('k4_kernel', 256, 256, 4 * REG, nvgpr=192, nagpr=252)
    END = k.label('end')
    k(f'''s_cmp_ge_u32 s2, 256
s_cbranch_scc1 {END}
s_load_dwordx2 s[16:17], s[0:1], 64
s_load_dwordx2 s[40:41], s[0:1], 80''')
    k.stamp(True)
    xcd_map_8x4(k)
    k(f'''v_lshrrev_b32 v1, 6, v0
v_and_b32 v182, 63, v0
v_readfirstlane_b32 s38, v1
v_and_b32 v183, 15, v182
v_lshrrev_b32 v184, 4, v182
v_lshlrev_b32 v180, 4, v182
v_add_u32 v181, 4096, v180
v_lshrrev_b32 v6, 1, v184
v_and_b32 v7, 1, v184
v_lshlrev_b32 v6, 10, v6
v_lshl_add_u32 v6, v7, 9, v6
v_lshl_add_u32 v178, v183, 4, v6
s_mul_i32 s42, s38, 7
s_mul_i32 s45, s36, 27
s_add_u32 s45, s45, s42
s_mul_i32 s45, s45, 5120
s_mul_i32 s48, s35, {2*54}
s_lshl_b32 s42, s42, 1
s_add_u32 s48, s48, s42
s_lshl_b32 s48, s48, 10
s_add_u32 s49, s48, {54*1024}
s_waitcnt lgkmcnt(0)''')
    srd_from(k, 4, 40, 41, WS_WO, WO_BYTES)
    srd_from(k, 8, 40, 41, WS_A, Z1_BYTES)
    srd_from(k, 12, 40, 41, WS_H, X_BYTES)
    srd_from(k, 16, 16, 17, 0, X_BYTES)
    L6 = k.label('l6'); L7 = k.label('l7')
    def ld_ops(jj):
        ops = []
        for n in range(5):
            ops.append(f'buffer_load_dwordx4 {ar(36*jj+4*n,4)}, v{180+n//4}, s[4:7], s45 offen offset:{1024*(n%4)}')
        for t in range(4):
            ops.append(f'buffer_load_dwordx4 {ar(36*jj+20+4*t,4)}, v178, s[8:11], s{48+t//2} offen offset:{256*(t&1)+2048*(jj&1)}')
        ops[-1] += f'\ns_add_u32 s45, s45, 5120'
        if jj & 1: ops[-1] += f'\ns_add_u32 s48, s48, 4096\ns_add_u32 s49, s49, 4096'
        return ops
    D4 = opt.get('D4', 2)
    for jj in range(D4):
        for o in ld_ops(jj): k(o)
    ACC = lambda n, t: (t * 5 + n) * 4
    for p in range(5):
        k(f'''v_add_u32 v90, {256*p}, v0
v_mul_u32_u24 v91, 3277, v90
v_lshrrev_b32 v91, 16, v91
v_mul_u32_u24 v92, 20, v91
v_sub_u32 v92, v90, v92
v_mul_u32_u24 v93, {PIT}, v91
v_lshl_add_u32 v{165+p}, v92, 4, v93
v_and_b32 v93, 35, v91
v_and_b32 v94, 12, v91
v_lshl_add_u32 v93, v94, 1, v93
v_and_b32 v94, 16, v91
v_lshrrev_b32 v94, 2, v94
v_add_u32 v93, v93, v94
v_mul_u32_u24 v93, 1280, v93
v_lshl_add_u32 v{170+p}, v92, 3, v93''')
    k(f'''s_mul_i32 s42, s35, {64*1280}
s_mul_i32 s43, s36, 160
s_add_u32 s42, s42, s43
v_mul_u32_u24 v176, {PIT}, v183
v_lshl_add_u32 v176, v184, 4, v176
s_mul_i32 s43, s38, {REG}
v_add_u32 v176, s43, v176''')
    k.stamp()

    def mm(jj):
        mf = []
        for n in range(5):
            for t in range(4):
                acc = vr(ACC(n, t), 4)
                c = '0' if jj == 0 else acc
                mf.append(f'{MFMA} {acc}, {ar(36*jj+4*n,4)}, {ar(36*jj+20+4*t,4)}, {c}')
        if jj + D4 < 7: fl = ld_ops(jj + D4)
        elif jj + D4 == 7: fl = [f'buffer_load_dwordx2 {vr(150+2*p,2)}, v{170+p}, s[12:15], s42 offen' for p in range(5)]
        else: fl = []
        weave(k, mf, fl, {})
    for jj in range(6):
        pend = 9 * (min(7, jj + D4) - jj - 1) + (5 if jj + D4 > 7 else 0)
        k(f's_waitcnt vmcnt({pend})')
        if jj in (0, 1, 3): k.stamp()
        mm(jj)
    k(f's_cmp_eq_u32 s38, 3\ns_cbranch_scc1 {L7}\ns_waitcnt vmcnt(5)')
    mm(6)
    k(f'{L7}:')
    k.stamp()
    for t in range(4):
        for n in range(5):
            k(f'ds_write_b128 v176, {vr(ACC(n,t),4)} offset:{t*16*PIT+64*n}')
    k(f's_waitcnt lgkmcnt(0)')
    k.stamp()
    k('s_barrier')
    k.stamp()
    for p in range(5):
        for w in range(4):
            k(f'ds_read_b128 {vr(16*p+4*w,4)}, v{165+p} offset:{w*REG}')
    k('s_waitcnt vmcnt(0)')
    for p in range(5):
        a = 16 * p
        k(f'''s_waitcnt lgkmcnt({min(15, 4*(4-p))})
v_pk_add_f32 {vr(a,2)}, {vr(a,2)}, {vr(a+4,2)}
v_pk_add_f32 {vr(a+2,2)}, {vr(a+2,2)}, {vr(a+6,2)}
v_pk_add_f32 {vr(a+8,2)}, {vr(a+8,2)}, {vr(a+12,2)}
v_pk_add_f32 {vr(a+10,2)}, {vr(a+10,2)}, {vr(a+14,2)}
v_pk_add_f32 {vr(a,2)}, {vr(a,2)}, {vr(a+8,2)}
v_pk_add_f32 {vr(a+2,2)}, {vr(a+2,2)}, {vr(a+10,2)}
v_cvt_pk_bf16_f32 v{a+4}, v{a}, v{a+1}
v_cvt_pk_bf16_f32 v{a+5}, v{a+2}, v{a+3}
v_lshlrev_b32 v{a}, 16, v{a+4}
v_and_b32 v{a+1}, 0xffff0000, v{a+4}
v_lshlrev_b32 v{a+2}, 16, v{a+5}
v_and_b32 v{a+3}, 0xffff0000, v{a+5}
v_lshlrev_b32 v{a+8}, 16, v{150+2*p}
v_and_b32 v{a+9}, 0xffff0000, v{150+2*p}
v_lshlrev_b32 v{a+10}, 16, v{151+2*p}
v_and_b32 v{a+11}, 0xffff0000, v{151+2*p}
v_pk_add_f32 {vr(a,2)}, {vr(a,2)}, {vr(a+8,2)}
v_pk_add_f32 {vr(a+2,2)}, {vr(a+2,2)}, {vr(a+10,2)}
v_cvt_pk_bf16_f32 v{a+4}, v{a}, v{a+1}
v_cvt_pk_bf16_f32 v{a+5}, v{a+2}, v{a+3}
buffer_store_dwordx2 {vr(a+4,2)}, v{170+p}, s[16:19], s42 offen''')
    k.finish(END)
    return k


def gen_prep(k, base_wg, END):
    k(f'''s_load_dwordx2 s[4:5], s[0:1], 32
s_load_dwordx2 s[8:9], s[0:1], 56
v_lshrrev_b32 v1, 6, v0
v_and_b32 v2, 63, v0
v_readfirstlane_b32 s35, v1
s_sub_u32 s33, s2, {base_wg}
s_lshl_b32 s33, s33, 2
s_add_u32 s33, s33, s35
v_and_b32 v4, 15, v2
v_lshrrev_b32 v5, 4, v2
v_lshlrev_b32 v3, 4, v2
s_lshl_b32 s47, s35, 14
s_waitcnt lgkmcnt(0)''')
    srd_from(k, 4, 4, 5, 0, 640 * 3456)
    srd_from(k, 8, 8, 9, 0, 864 * 1280)
    srd_from(k, 16, 40, 41, WS_WI, WS_WO - WS_WI + WO_BYTES)
    for un in range(2):
        WO = k.label('wo'); J = k.label('j')
        P = 50 + 12 * un
        S = 20 + 4 * un
        if un == 1:
            k(f's_add_u32 s33, s33, 208')
        k(f'''s_cmp_ge_u32 s33, 280
s_cbranch_scc1 {WO}
s_mul_i32 s{P+1}, s33, 4682
s_lshr_b32 s{P+1}, s{P+1}, 16
s_mul_i32 s{P+2}, s{P+1}, 14
s_sub_u32 s{P+2}, s33, s{P+2}
s_movk_i32 s{P}, 3456
s_mov_b32 s{P+3}, 7
s_movk_i32 s{P+4}, 140
s_movk_i32 s{P+5}, 9363
s_mov_b32 s{P+6}, 0
s_mov_b32 s{P+7}, 8
s_mov_b32 s{P+8}, 4
s_movk_i32 s{P+9}, 108
s_mov_b32 s{P+10}, 54
s_mov_b64 s[{S}:{S+1}], s[4:5]
s_mov_b64 s[{S+2}:{S+3}], s[6:7]
s_branch {J}
{WO}:
s_sub_u32 s34, s33, 280
s_mul_i32 s{P+1}, s34, 13108
s_lshr_b32 s{P+1}, s{P+1}, 16
s_mul_i32 s{P+2}, s{P+1}, 5
s_sub_u32 s{P+2}, s34, s{P+2}
s_movk_i32 s{P}, 1280
s_mov_b32 s{P+3}, 5
s_movk_i32 s{P+4}, 135
s_movk_i32 s{P+5}, 13108
s_mov_b32 s{P+6}, {(WS_WO-WS_WI)//1024}
s_mov_b32 s{P+7}, 4
s_mov_b32 s{P+8}, 8
s_cmp_lt_u32 s34, 135
s_cselect_b32 s{P+9}, 40, 0
s_movk_i32 s{P+10}, 1000
s_mov_b64 s[{S}:{S+1}], s[8:9]
s_mov_b64 s[{S+2}:{S+3}], s[10:11]
{J}:
v_mul_u32_u24 v6, s{P}, v5
v_lshl_add_u32 v6, v4, 4, v6
s_mul_i32 s42, s{P+1}, s{P}
s_lshl_b32 s42, s42, 5
s_lshl_b32 s43, s{P+2}, 8
s_add_u32 s42, s42, s43
s_lshl_b32 s43, s{P}, 2''')
        for i in range(8):
            k(f's_add_u32 m0, s47, {8192*un+1024*i}')
            k(f'buffer_load_dwordx4 v6, s[{S}:{S+3}], s42 offen lds')
            k(f's_add_u32 s42, s42, s43')
    for un in range(2):
        P = 50 + 12 * un
        k(f'''v_lshrrev_b32 v6, 1, v5
v_and_b32 v7, 1, v5
v_mul_u32_u24 v7, s{P+7}, v7
v_lshl_add_u32 v6, v6, 4, v7
v_lshrrev_b32 v7, 2, v4
v_add_u32 v6, v6, v7
v_and_b32 v7, 3, v4
v_lshlrev_b32 v7, 3, v7
v_lshl_add_u32 v6, v6, 8, v7
v_add_u32 v6, s47, v6
s_lshl_b32 s42, s{P+8}, 8
v_add_u32 v7, s42, v6
s_waitcnt vmcnt({8 if un == 0 else 8})''')
        if un == 1: k('s_waitcnt vmcnt(8)')
        for i in range(8):
            k(f'ds_read_b64_tr_b16 {vr(16+32*un+4*i,2)}, v6 offset:{8192*un+32*i}')
            k(f'ds_read_b64_tr_b16 {vr(18+32*un+4*i,2)}, v7 offset:{8192*un+32*i}')
        for i in range(8):
            k(f'''s_lshl_b32 s42, s{P+2}, 3
s_add_u32 s42, s42, {i}
s_add_u32 s43, s42, 2
s_cmp_ge_u32 s42, s{P+10}
s_cselect_b32 s43, s43, s42
s_mul_i32 s44, s43, s{P+5}
s_lshr_b32 s44, s44, 16
s_mul_i32 s45, s44, s{P+3}
s_sub_u32 s43, s43, s45
s_mul_i32 s44, s44, s{P+4}
s_add_u32 s43, s43, s44
s_mul_i32 s44, s{P+1}, s{P+3}
s_add_u32 s43, s43, s44
s_add_u32 s43, s43, s{P+6}
s_lshl_b32 s43, s43, 10
s_cmp_lt_u32 s42, s{P+9}
s_cselect_b32 s43, s43, 0x7f000000
s_waitcnt lgkmcnt({14-2*i})
buffer_store_dwordx4 {vr(16+32*un+4*i,4)}, v3, s[16:19], s43 offen''')
    k(f's_branch {END}')
```

```python
from asmlib import *
from tables import TAB_BYTES

WS_T = 0x000000
WS_U = 0x300000
WS_H = 0x600000
WS_HN = 0x900000
TU_BYTES = 256 * 8 * 336 * 4
X_BYTES = 2048 * 640 * 2
MFMA = 'v_mfma_f32_16x16x32_bf16'


def vr(a, n=1):
    return f'v{a}' if n == 1 else f'v[{a}:{a+n-1}]'


def sr(a, n=1):
    return f's{a}' if n == 1 else f's[{a}:{a+n-1}]'


def srd_from(k, s, lo, hi, off, size):
    if off:
        k(f's_add_u32 s{s}, s{lo}, 0x{off:x}\ns_addc_u32 s{s+1}, s{hi}, 0')
    elif s != lo:
        k(f's_mov_b32 s{s}, s{lo}\ns_mov_b32 s{s+1}, s{hi}')
    k(f's_mov_b32 s{s+2}, 0x{size:x}\ns_mov_b32 s{s+3}, 0x00020000')


def tab_srd(k, s):
    k(f'''s_getpc_b64 s[{s}:{s+1}]
s_add_u32 s{s}, s{s}, tab@rel32@lo+4
s_addc_u32 s{s+1}, s{s+1}, tab@rel32@hi+12
s_mov_b32 s{s+2}, {TAB_BYTES}
s_mov_b32 s{s+3}, 0x00020000''')


def cmul_planar(k, a, b, c, d, ore, oim, t, conj=False):
    for h in (0, 2):
        k(f'v_pk_mul_f32 {vr(t+h,2)}, {vr(b+h,2)}, {vr(d+h,2)}')
    for h in (0, 2):
        k(f'v_pk_mul_f32 {vr(oim+h,2)}, {vr(b+h,2)}, {vr(c+h,2)}')
    for h in (0, 2):
        if not conj:
            k(f'v_pk_fma_f32 {vr(ore+h,2)}, {vr(a+h,2)}, {vr(c+h,2)}, {vr(t+h,2)} neg_lo:[0,0,1] neg_hi:[0,0,1]')
        else:
            k(f'v_pk_fma_f32 {vr(ore+h,2)}, {vr(a+h,2)}, {vr(c+h,2)}, {vr(t+h,2)}')
    for h in (0, 2):
        if not conj:
            k(f'v_pk_fma_f32 {vr(oim+h,2)}, {vr(a+h,2)}, {vr(d+h,2)}, {vr(oim+h,2)}')
        else:
            k(f'v_pk_fma_f32 {vr(oim+h,2)}, {vr(a+h,2)}, {vr(d+h,2)}, {vr(oim+h,2)} neg_lo:[1,0,0] neg_hi:[1,0,0]')


def wave_reduce2(k, a, b, sa, sb):
    for m in ('quad_perm:[1,0,3,2] row_mask:0xf bank_mask:0xf', 'quad_perm:[2,3,0,1] row_mask:0xf bank_mask:0xf',
              'row_half_mirror row_mask:0xf bank_mask:0xf', 'row_mirror row_mask:0xf bank_mask:0xf',
              'row_bcast:15 row_mask:0xa bank_mask:0xf', 'row_bcast:31 row_mask:0xc bank_mask:0xf'):
        k(f'v_add_f32_dpp v{a}, v{a}, v{a} {m}')
        k(f'v_add_f32_dpp v{b}, v{b}, v{b} {m}')
    k(f'v_readlane_b32 s{sa}, v{a}, 63\nv_readlane_b32 s{sb}, v{b}, 63')


def ln_stats(k, sa, sb, n, vm, vrs, t):
    inv = np.float32(1.0 / n).view(np.uint32)
    k(f'''v_mov_b32 v{t}, 0x{inv:x}
v_mul_f32 v{vm}, s{sa}, v{t}
v_mul_f32 v{t+1}, s{sb}, v{t}
v_fma_f32 v{t+1}, -v{vm}, v{vm}, v{t+1}
v_max_f32 v{t+1}, 0, v{t+1}
v_cvt_pk_bf16_f32 v{t}, v{vm}, v{t+1}
v_lshlrev_b32 v{vm}, 16, v{t}
v_and_b32 v{t+1}, 0xffff0000, v{t}
v_add_f32 v{t+1}, 0x3727c5ac, v{t+1}
v_cvt_pk_bf16_f32 v{t}, v{t+1}, v{t+1}
v_and_b32 v{t}, 0xffff0000, v{t}
v_sqrt_f32 v{t}, v{t}
v_cvt_pk_bf16_f32 v{t}, v{t}, v{t}
v_and_b32 v{t}, 0xffff0000, v{t}
v_rcp_f32 v{vrs}, v{t}''')


def ln_apply(k, f, n, vm, vrs, out):
    for i in range(0, n, 2):
        k(f'v_pk_add_f32 {vr(f+i,2)}, {vr(f+i,2)}, {vr(vm,2)} op_sel_hi:[1,0] neg_lo:[0,1] neg_hi:[0,1]')
    for i in range(0, n, 2):
        k(f'v_cvt_pk_bf16_f32 v{out+i//2}, v{f+i}, v{f+i+1}')
    for i in range(0, n, 2):
        k(f'v_lshlrev_b32 v{f+i}, 16, v{out+i//2}\nv_and_b32 v{f+i+1}, 0xffff0000, v{out+i//2}')
    for i in range(0, n, 2):
        k(f'v_pk_mul_f32 {vr(f+i,2)}, {vr(f+i,2)}, {vr(vrs,2)} op_sel_hi:[1,0]')
    for i in range(0, n, 2):
        k(f'v_cvt_pk_bf16_f32 v{out+i//2}, v{f+i}, v{f+i+1}')


SW = 'op_sel:[0,1] op_sel_hi:[1,0]'


def fft8(k, R, A, inverse, vs):
    r = lambda i: vr(R + 2 * i, 2)
    a = lambda i: vr(A + 2 * i, 2)
    neg = 'neg_lo:[0,1] neg_hi:[0,1]'
    mi = SW + ' neg_hi:[0,1]'
    pi = SW + ' neg_lo:[0,1]'
    if inverse: mi, pi = pi, mi
    k(f'''v_pk_add_f32 {a(0)}, {r(0)}, {r(4)}
v_pk_add_f32 {a(1)}, {r(0)}, {r(4)} {neg}
v_pk_add_f32 {a(2)}, {r(2)}, {r(6)}
v_pk_add_f32 {a(3)}, {r(2)}, {r(6)} {neg}
v_pk_add_f32 {a(4)}, {r(1)}, {r(5)}
v_pk_add_f32 {a(5)}, {r(1)}, {r(5)} {neg}
v_pk_add_f32 {a(6)}, {r(3)}, {r(7)}
v_pk_add_f32 {a(7)}, {r(3)}, {r(7)} {neg}
v_pk_add_f32 {r(0)}, {a(0)}, {a(2)}
v_pk_add_f32 {r(1)}, {a(0)}, {a(2)} {neg}
v_pk_add_f32 {r(2)}, {a(4)}, {a(6)}
v_pk_add_f32 {r(3)}, {a(4)}, {a(6)} {neg}
v_pk_add_f32 {r(4)}, {a(1)}, {a(3)} {mi}
v_pk_add_f32 {r(5)}, {a(1)}, {a(3)} {pi}
v_pk_add_f32 {r(6)}, {a(5)}, {a(7)} {mi}
v_pk_add_f32 {r(7)}, {a(5)}, {a(7)} {pi}
v_pk_add_f32 {a(0)}, {r(0)}, {r(2)}
v_pk_add_f32 {a(4)}, {r(0)}, {r(2)} {neg}
v_pk_add_f32 {a(2)}, {r(1)}, {r(3)} {mi}
v_pk_add_f32 {a(6)}, {r(1)}, {r(3)} {pi}
v_pk_add_f32 {r(0)}, {r(6)}, {r(6)} {mi}
v_pk_add_f32 {r(1)}, {r(7)}, {r(7)} {pi}
v_pk_fma_f32 {a(1)}, {r(0)}, {vr(vs,2)}, {r(4)} op_sel_hi:[1,0,1]
v_pk_fma_f32 {a(5)}, {r(0)}, {vr(vs,2)}, {r(4)} op_sel_hi:[1,0,1] neg_lo:[1,0,0] neg_hi:[1,0,0]
v_pk_fma_f32 {a(3)}, {r(1)}, {vr(vs,2)}, {r(5)} op_sel_hi:[1,0,1] neg_lo:[1,0,0] neg_hi:[1,0,0]
v_pk_fma_f32 {a(7)}, {r(1)}, {vr(vs,2)}, {r(5)} op_sel_hi:[1,0,1]''')
    return [A + 2 * i for i in range(8)]


def smul(k, dst, src, s, tmp, conj=False):
    k(f'v_pk_mul_f32 {vr(tmp,2)}, {vr(src,2)}, {sr(s,2)} op_sel_hi:[1,0]')
    ng = 'neg_hi:[1,0,0]' if conj else 'neg_lo:[1,0,0]'
    k(f'v_pk_fma_f32 {vr(dst,2)}, {vr(src,2)}, {sr(s,2)}, {vr(tmp,2)} op_sel:[1,1,0] op_sel_hi:[0,1,1] {ng}')


def gen_k0():
    XP = 1280; EX0 = 10240; EXP = 2576
    k = Kern('k0_kernel', 256, 512, EX0 + 8 * EXP, nvgpr=128)
    END = k.label('end')
    k(f'''s_cmp_ge_u32 s2, 256
s_cbranch_scc1 {END}
s_load_dwordx2 s[4:5], s[0:1], 0
s_load_dwordx2 s[40:41], s[0:1], 80''')
    k.stamp(True)
    tab_srd(k, 12)
    k(f'''s_and_b32 s3, s2, 7
s_lshl_b32 s3, s3, 5
s_lshr_b32 s33, s2, 3
s_add_u32 s3, s3, s33
s_lshl_b32 s33, s3, 6
s_add_u32 s33, s33, 32768
s_load_dwordx16 s[16:31], s[12:13], s33
v_lshrrev_b32 v1, 6, v0
v_and_b32 v2, 63, v0
v_readfirstlane_b32 s34, v1
v_lshlrev_b32 v3, 4, v2
s_movk_i32 s38, 0x1000''')
    for i in range(8):
        so = '0' if i < 4 else 's38'
        k(f'buffer_load_dwordx4 {vr(64+4*i,4)}, v3, s[12:15], {so} offen offset:{(i%4)*1024}')
    k(f'''s_lshl_b32 s35, s34, 8
s_add_u32 s35, s35, s3
s_mul_i32 s35, s35, 1280
v_lshlrev_b32 v58, 3, v2
v_lshlrev_b32 v59, 2, v2
s_waitcnt lgkmcnt(0)''')
    srd_from(k, 4, 4, 5, 0, X_BYTES)
    srd_from(k, 8, 40, 41, WS_T, TU_BYTES)
    k(f'''s_lshl_b32 s33, s2, 6
s_add_u32 s33, s33, 0x1800000
s_add_u32 s52, s40, s33
s_addc_u32 s53, s41, 0
s_mov_b32 s54, 64
s_mov_b32 s55, 0x00020000
v_lshlrev_b32 v62, 2, v0
v_mov_b32 v63, 0
buffer_store_dword v63, v62, s[52:55], 0 offen''')
    k(f'''buffer_load_dwordx2 v[4:5], v58, s[4:7], s35 offen
buffer_load_dwordx2 v[6:7], v58, s[4:7], s35 offen offset:512
buffer_load_dword v8, v59, s[4:7], s35 offen offset:1024
s_mul_i32 s39, s34, {XP}
v_add_u32 v58, s39, v58
v_add_u32 v59, s39, v59
v_and_b32 v50, 15, v2
v_lshrrev_b32 v51, 4, v2
v_lshrrev_b32 v52, 2, v50
v_and_b32 v53, 3, v50
v_lshl_add_u32 v54, v51, 3, v52
v_add_u32 v55, 4, v54
v_subrev_u32 v56, 20, v54
v_min_u32 v54, v54, v56
v_subrev_u32 v56, 20, v55
v_min_u32 v55, v55, v56
v_lshlrev_b32 v53, 3, v53
v_lshl_add_u32 v54, v54, 6, v53
v_lshl_add_u32 v55, v55, 6, v53
v_add_u32 v54, s39, v54
v_add_u32 v55, s39, v55
s_mul_i32 s42, s34, {EXP}
s_add_u32 s42, s42, {EX0}
v_mul_u32_u24 v56, 80, v51
v_add_u32 v57, v56, v50
v_lshlrev_b32 v57, 3, v57
v_add_u32 v60, s42, v57
v_sub_u32 v61, {8*260}, v57
v_add_u32 v61, s42, v61
s_waitcnt vmcnt(0)''')
    k.stamp()
    for i in range(5):
        k(f'v_lshlrev_b32 v{10+2*i}, 16, v{4+i}\nv_and_b32 v{11+2*i}, 0xffff0000, v{4+i}')
    k('''v_pk_add_f32 v[20:21], v[10:11], v[12:13]
v_pk_mul_f32 v[22:23], v[10:11], v[10:11]
v_pk_add_f32 v[24:25], v[14:15], v[16:17]
v_pk_fma_f32 v[22:23], v[12:13], v[12:13], v[22:23]
v_pk_add_f32 v[20:21], v[20:21], v[18:19]
v_pk_fma_f32 v[22:23], v[14:15], v[14:15], v[22:23]
v_pk_add_f32 v[20:21], v[20:21], v[24:25]
v_pk_fma_f32 v[22:23], v[16:17], v[16:17], v[22:23]
v_pk_fma_f32 v[22:23], v[18:19], v[18:19], v[22:23]
v_add_f32 v20, v20, v21
v_add_f32 v22, v22, v23''')
    wave_reduce2(k, 20, 22, 36, 37)
    ln_stats(k, 36, 37, 640, 20, 22, 24)
    ln_apply(k, 10, 10, 20, 22, 4)
    k('''ds_write_b64 v58, v[4:5]
ds_write_b64 v58, v[6:7] offset:512
ds_write_b32 v59, v8 offset:1024
s_waitcnt lgkmcnt(0)
ds_read_b64_tr_b16 v[4:5], v54
ds_read_b64_tr_b16 v[6:7], v55
ds_read_b64_tr_b16 v[8:9], v54 offset:32
ds_read_b64_tr_b16 v[10:11], v55 offset:32
s_waitcnt lgkmcnt(2)''')
    k(f'''{MFMA} v[12:15], v[4:7], v[64:67], 0
{MFMA} v[16:19], v[4:7], v[68:71], 0
s_waitcnt lgkmcnt(0)
{MFMA} v[20:23], v[8:11], v[64:67], 0
{MFMA} v[24:27], v[8:11], v[68:71], 0''')
    cmul_planar(k, 12, 16, 72, 76, 28, 32, 44)
    cmul_planar(k, 20, 24, 80, 84, 36, 40, 44)
    for t in range(2):
        for h in range(2):
            re = 28 + 8 * t + 2 * h; im = 32 + 8 * t + 2 * h; o = 2 * t + h
            k(f'''v_cvt_pk_bf16_f32 v{4+o}, v{re}, v{re+1}
v_cvt_pk_bf16_f32 v{8+o}, v{im}, v{im+1}
v_cvt_pk_bf16_f32 v{12+o}, -v{im}, -v{im+1}
v_cvt_pk_bf16_f32 v{16+o}, v{re}, -v{re+1}
v_cvt_pk_bf16_f32 v{20+o}, v{im}, -v{im+1}
v_cvt_pk_bf16_f32 v{24+o}, -v{im}, v{im+1}''')
    k(f'''{MFMA} v[28:31], v[88:91], v[4:7], 0
{MFMA} v[32:35], v[92:95], v[4:7], 0
{MFMA} v[36:39], v[88:91], v[16:19], 0
{MFMA} v[40:43], v[92:95], v[16:19], 0
{MFMA} v[28:31], v[92:95], v[12:15], v[28:31]
{MFMA} v[32:35], v[88:91], v[8:11], v[32:35]
{MFMA} v[36:39], v[92:95], v[24:27], v[36:39]
{MFMA} v[40:43], v[88:91], v[20:23], v[40:43]
s_mov_b32 exec_lo, 0x07ff07ff
s_mov_b32 exec_hi, 0x07ff07ff''')
    for r in range(4):
        k(f'ds_write2_b32 v60, v{28+r}, v{32+r} offset0:{40*r} offset1:{40*r+1}')
    for r in range(4):
        k(f'v_xor_b32 v{40+r}, 0x80000000, v{40+r}')
    for r in range(4):
        k(f'ds_write2_b32 v61, v{36+r}, v{40+r} offset0:{40*(3-r)} offset1:{40*(3-r)+1}')
    k(f'''s_mov_b64 exec, -1
s_waitcnt lgkmcnt(0)''')
    k.stamp()
    k(f'''s_barrier''')
    k.stamp()
    k(f'''v_cmp_gt_u32 vcc, 321, v0
s_and_saveexec_b64 s[44:45], vcc
s_cbranch_execz {END}
v_lshlrev_b32 v1, 3, v0
v_lshlrev_b32 v2, 2, v0''')
    for n in range(8):
        k(f'ds_read_b64 {vr(4+2*n,2)}, v1 offset:{EX0+n*EXP}')
    k(f'''v_mov_b32 v40, 0x3f3504f3
s_mul_i32 s46, s3, {8*1344}
s_add_u32 s47, s46, {3*1344}
s_add_u32 s48, s46, {6*1344}
s_waitcnt lgkmcnt(0)''')
    T = fft8(k, 4, 20, False, 40)
    for k2 in range(8):
        if k2 == 0:
            k(f'v_cvt_pk_bf16_f32 v4, v{T[0]}, v{T[0]+1}')
        else:
            smul(k, T[k2], T[k2], 16 + 2 * k2, 42 + 2 * (k2 & 1))
            k(f'v_cvt_pk_bf16_f32 v{4+k2}, v{T[k2]}, v{T[k2]+1}')
        k(f'buffer_store_dword v{4+k2}, v2, s[8:11], s{46+k2//3} offen offset:{(k2%3)*1344}')
    k.finish(END)
    return k


def gen_k1():
    P = 1040; W0 = 16 * P
    import gen3
    k = Kern('k1_kernel', 220, 256, 65536, nvgpr=160)
    END = k.label('end'); MAIN = k.label('main')
    k(f'''s_cmp_ge_u32 s2, 220
s_cbranch_scc1 {END}
s_cmp_lt_u32 s2, 168
s_cbranch_scc1 {MAIN}
s_load_dwordx2 s[40:41], s[0:1], 80''')
    k.stamp(True)
    gen3.gen_prep(k, 168, END)
    k.nst = 0
    k(f'''{MAIN}:
s_load_dwordx2 s[4:5], s[0:1], 8
s_load_dwordx2 s[16:17], s[0:1], 16
s_load_dwordx2 s[40:41], s[0:1], 80''')
    k.stamp(True)
    tab_srd(k, 12)
    k(f'''s_and_b32 s33, s2, 7
s_lshr_b32 s34, s2, 3
v_lshrrev_b32 v1, 6, v0
v_and_b32 v2, 63, v0
v_readfirstlane_b32 s35, v1
v_lshlrev_b32 v3, 4, v2
s_movk_i32 s38, 0x2000
s_movk_i32 s39, 0x3000
v_and_b32 v4, 15, v2
v_lshrrev_b32 v5, 4, v2''')
    for i in range(8):
        k(f'buffer_load_dwordx4 {vr(96+4*i,4)}, v3, s[12:15], s{38+i//4} offen offset:{(i%4)*1024}')
    k(f'''v_mul_u32_u24 v6, {16*8*1344}, v4
v_lshl_add_u32 v6, v5, 4, v6
s_lshl_b32 s36, s35, 5
s_add_u32 s36, s36, s33
s_mul_i32 s36, s36, 1344
s_lshl_b32 s37, s34, 6
s_add_u32 s36, s36, s37
s_add_u32 s42, s36, {8*1344}
s_add_u32 s43, s36, {16*1344}
s_add_u32 s44, s36, {24*1344}
v_and_b32 v7, 1, v5
v_lshrrev_b32 v8, 1, v5
v_lshl_add_u32 v9, v4, 4, v7
v_mul_u32_u24 v9, {8*642}, v9
v_lshl_add_u32 v9, v8, 4, v9
s_lshl_b32 s45, s35, 5
s_add_u32 s45, s45, s33
s_mul_i32 s45, s45, 642
s_lshl_b32 s37, s34, 5
s_add_u32 s45, s45, s37
s_add_u32 s46, s45, {16*642}
s_waitcnt lgkmcnt(0)''')
    srd_from(k, 4, 4, 5, 0, 2048 * 642)
    srd_from(k, 16, 16, 17, 0, 2048 * 642)
    srd_from(k, 8, 40, 41, WS_T, TU_BYTES)
    srd_from(k, 20, 40, 41, WS_U, TU_BYTES)
    so = ['s36', 's42', 's43', 's44']
    for i in range(4):
        k(f'buffer_load_dwordx4 {vr(16+4*i,4)}, v6, s[8:11], {so[i]} offen')
    for i in range(2):
        k(f'buffer_load_dwordx4 {vr(32+8*i,4)}, v9, s[4:7], s{45+i} offen')
        k(f'buffer_load_dwordx4 {vr(36+8*i,4)}, v9, s[16:19], s{45+i} offen')
    k(f'''v_mul_u32_u24 v10, {4*P}, v5
v_lshl_add_u32 v10, v4, 2, v10
s_lshl_b32 s37, s35, 8
v_add_u32 v10, s37, v10
v_mul_u32_u24 v11, {8*P}, v8
v_lshl_add_u32 v11, v7, 6, v11
v_lshl_add_u32 v11, v4, 2, v11
v_add_u32 v11, s37, v11
v_lshlrev_b32 v12, 6, v4
v_lshl_add_u32 v12, v5, 4, v12
s_mul_i32 s37, s35, {4*P}
v_add_u32 v12, s37, v12
s_mov_b32 s47, 0x05040100
s_mov_b32 s48, 0x07060302''')
    for i in range(4):
        k(f's_waitcnt vmcnt({7-i})')
        for j in range(4):
            k(f'ds_write_b32 v10, v{16+4*i+j} offset:{j*P+64*i}')
    k.stamp()
    for i in range(2):
        k(f's_waitcnt vmcnt({2-2*i})')
        for j in range(4):
            k(f'v_perm_b32 v{48+2*j}, v{36+8*i+j}, v{32+8*i+j}, s47')
            k(f'v_perm_b32 v{49+2*j}, v{36+8*i+j}, v{32+8*i+j}, s48')
        for j in range(8):
            k(f'ds_write_b32 v11, v{48+j} offset:{W0+j*P+128*i}')
    k('s_waitcnt lgkmcnt(0)')
    k.stamp()
    k('s_barrier')
    k.stamp()
    for c in range(4):
        k(f'ds_read_b128 {vr(16+4*c,4)}, v12 offset:{c*P}')
    for c in range(4):
        k(f'ds_read_b128 {vr(32+4*c,4)}, v12 offset:{W0+c*P}')
    for c in range(4):
        k(f's_waitcnt lgkmcnt({7-c})')
        k(f'{MFMA} {vr(48+8*c,4)}, {vr(16+4*c,4)}, v[96:99], 0')
        k(f'{MFMA} {vr(52+8*c,4)}, {vr(16+4*c,4)}, v[100:103], 0')

    def pack(c, re, im):
        k(f'''v_cvt_pk_bf16_f32 v{16+4*c}, v{re}, v{re+1}
v_cvt_pk_bf16_f32 v{17+4*c}, v{re+2}, v{re+3}
v_cvt_pk_bf16_f32 v{18+4*c}, v{im}, v{im+1}
v_cvt_pk_bf16_f32 v{19+4*c}, v{im+2}, v{im+3}''')
    for c in range(4):
        cmul_planar(k, 48 + 8 * c, 52 + 8 * c, 104, 108, 80, 84, 88)
        pack(c, 80, 84)
        k(f'{MFMA} {vr(48+8*c,4)}, v[112:115], {vr(16+4*c,4)}, 0')
        k(f'{MFMA} {vr(52+8*c,4)}, v[116:119], {vr(16+4*c,4)}, 0')
    k('s_waitcnt lgkmcnt(0)')
    for c in range(4):
        for r in range(4):
            k(f'v_lshlrev_b32 v{128+r}, 16, v{32+4*c+r}\nv_and_b32 v{132+r}, 0xffff0000, v{32+4*c+r}')
        cmul_planar(k, 48 + 8 * c, 52 + 8 * c, 128, 132, 80, 84, 88)
        pack(c, 80, 84)
        k(f'{MFMA} {vr(48+8*c,4)}, {vr(16+4*c,4)}, v[120:123], 0')
        k(f'{MFMA} {vr(52+8*c,4)}, {vr(16+4*c,4)}, v[124:127], 0')
    for c in range(4):
        cmul_planar(k, 48 + 8 * c, 52 + 8 * c, 104, 108, 80, 84, 88, conj=True)
        pack(c, 80, 84)
        k(f'{MFMA} {vr(48+8*c,4)}, v[120:123], {vr(16+4*c,4)}, 0')
        k(f'{MFMA} {vr(52+8*c,4)}, v[124:127], {vr(16+4*c,4)}, 0')
    for c in range(4):
        for r in range(4):
            k(f'v_cvt_pk_bf16_f32 v{16+4*c+r}, v{48+8*c+r}, v{52+8*c+r}')
        k(f'ds_write_b128 v12, {vr(16+4*c,4)} offset:{c*P}')
    k('s_waitcnt lgkmcnt(0)')
    k.stamp()
    k('s_barrier')
    k.stamp()
    for i in range(4):
        for j in range(4):
            k(f'ds_read_b32 v{16+4*i+j}, v10 offset:{j*P+64*i}')
    for i in range(4):
        k(f's_waitcnt lgkmcnt({12-4*i})')
        k(f'buffer_store_dwordx4 {vr(16+4*i,4)}, v6, s[20:23], {so[i]} offen')
    k.finish(END)
    return k


def gen_k2a():
    RP = 144; NP = 11 * RP + 16
    k = Kern('k2a_kernel', 256, 512, 8 * NP, nvgpr=128)
    END = k.label('end'); SKIP = k.label('skip')
    k(f'''s_cmp_ge_u32 s2, 256
s_cbranch_scc1 {END}
s_load_dwordx2 s[4:5], s[0:1], 0
s_load_dwordx2 s[40:41], s[0:1], 80''')
    k.stamp(True)
    tab_srd(k, 12)
    k(f'''s_and_b32 s3, s2, 7
s_lshl_b32 s3, s3, 5
s_lshr_b32 s33, s2, 3
s_add_u32 s3, s3, s33
s_lshl_b32 s33, s3, 6
s_add_u32 s33, s33, 32768
s_load_dwordx16 s[16:31], s[12:13], s33
v_lshrrev_b32 v1, 6, v0
v_and_b32 v2, 63, v0
v_readfirstlane_b32 s34, v1
v_lshlrev_b32 v3, 4, v2
s_movk_i32 s38, 0x4000
s_movk_i32 s39, 0x5000
s_movk_i32 s49, 0x6000
s_mul_i32 s46, s3, {8*1344}
s_add_u32 s47, s46, {3*1344}
s_add_u32 s48, s46, {6*1344}
v_lshlrev_b32 v60, 2, v0
s_lshl_b32 s35, s34, 8
s_add_u32 s35, s35, s3
s_mul_i32 s35, s35, 1280
v_and_b32 v50, 15, v2
v_lshrrev_b32 v51, 4, v2
v_lshlrev_b32 v52, 6, v50
v_lshl_add_u32 v52, v51, 4, v52
v_add_u32 v53, 1024, v52
v_mov_b32 v54, 0x7fffffff
v_cmp_gt_u32 vcc, 4, v50
v_cndmask_b32 v53, v54, v53, vcc
v_lshlrev_b32 v112, 11, v50
v_lshl_add_u32 v112, v51, 8, v112
v_add_u32 v113, 32768, v112
v_cndmask_b32 v113, v54, v113, vcc
s_lshl_b32 s59, s34, 3
s_lshr_b32 s60, s3, 5
s_add_u32 s59, s59, s60
s_mul_i32 s59, s59, 40960
s_and_b32 s60, s3, 4
s_lshl_b32 s60, s60, 8
s_add_u32 s59, s59, s60
s_and_b32 s60, s3, 24
s_lshl_b32 s60, s60, 3
s_add_u32 s59, s59, s60
s_and_b32 s60, s3, 3
s_lshl_b32 s60, s60, 4
s_add_u32 s59, s59, s60
s_waitcnt lgkmcnt(0)''')
    srd_from(k, 4, 4, 5, 0, X_BYTES)
    srd_from(k, 8, 40, 41, WS_U, TU_BYTES)
    srd_from(k, 52, 40, 41, WS_H, X_BYTES)
    srd_from(k, 60, 40, 41, WS_HN, X_BYTES)
    for k2 in range(8):
        k(f'buffer_load_dword v{4+k2}, v60, s[8:11], s{46+k2//3} offen offset:{(k2%3)*1344}')
    for i in range(10):
        so = ['s38', 's39', 's49'][i // 4]
        k(f'buffer_load_dwordx4 {vr(64+4*i,4)}, v3, s[12:15], {so} offen offset:{(i%4)*1024}')
    k(f'''buffer_load_dwordx4 v[104:107], v52, s[4:7], s35 offen
buffer_load_dwordx4 v[108:111], v53, s[4:7], s35 offen''')
    k(f'''v_mul_u32_u24 v55, 3277, v0
v_lshrrev_b32 v55, 16, v55
v_mul_u32_u24 v56, 20, v55
v_sub_u32 v56, v0, v56
v_mul_u32_u24 v57, {RP}, v56
v_lshl_add_u32 v57, v55, 2, v57
v_mov_b32 v58, {11*RP}
v_cmp_ge_u32 vcc, 10, v56
v_cndmask_b32 v57, v58, v57, vcc
v_sub_u32 v59, 20, v56
v_mul_u32_u24 v59, {RP}, v59
v_sub_u32 v61, 31, v55
v_lshl_add_u32 v59, v61, 2, v59
v_cmp_le_u32 vcc, 10, v56
v_cndmask_b32 v59, v58, v59, vcc
v_sub_u32 v61, 32, v55
v_lshlrev_b32 v61, 2, v61
v_cmp_eq_u32 vcc, 0, v56
v_cndmask_b32 v59, v59, v61, vcc
v_cmp_eq_u32 vcc, 0, v0
v_cndmask_b32 v59, v59, v58, vcc
v_cmp_eq_u32 vcc, 320, v0
v_cndmask_b32 v59, v59, v58, vcc
v_mov_b32 v40, 0x3f3504f3
v_min_u32 v62, 10, v50
v_mul_u32_u24 v62, {RP}, v62
v_lshl_add_u32 v62, v51, 4, v62
s_mul_i32 s42, s34, {NP}
v_add_u32 v62, s42, v62
v_and_b32 v63, 1, v2
v_lshlrev_b32 v63, 31, v63
v_or_b32 v63, 1.0, v63
v_cmp_gt_u32 vcc, 321, v0
s_and_saveexec_b64 s[44:45], vcc
s_waitcnt vmcnt(12)''')
    k.stamp()
    k(f'''s_cbranch_execz {SKIP}''')
    for k2 in range(8):
        k(f'v_lshlrev_b32 v{20+2*k2}, 16, v{4+k2}\nv_and_b32 v{21+2*k2}, 0xffff0000, v{4+k2}')
    for k2 in range(8):
        if k2 == 0:
            k('v_mov_b32 v4, v20\nv_mov_b32 v5, v21')
        else:
            smul(k, 4 + 2 * k2, 20 + 2 * k2, 16 + 2 * k2, 42 + 2 * (k2 & 1), conj=True)
    T = fft8(k, 4, 20, True, 40)
    for n in range(8):
        k(f'''v_cvt_pk_bf16_f32 v{4+2*n}, v{T[n]}, v{T[n]+1}
v_cvt_pk_bf16_f32 v{5+2*n}, v{T[n]}, -v{T[n]+1}
ds_write_b32 v57, v{4+2*n} offset:{n*NP}
ds_write_b32 v59, v{5+2*n} offset:{n*NP}''')
    k(f'''{SKIP}:
s_mov_b64 exec, -1
s_waitcnt lgkmcnt(0)''')
    k.stamp()
    k(f'''s_barrier''')
    k.stamp()
    k(f'''ds_read_b128 v[4:7], v62
ds_read_b128 v[8:11], v62 offset:64
s_waitcnt vmcnt(2) lgkmcnt(1)''')
    for u in range(2):
        if u == 1: k('s_waitcnt lgkmcnt(0)')
        for t in range(2):
            k(f'{MFMA} {vr(12+16*u+8*t,4)}, {vr(4+4*u,4)}, {vr(64+8*t,4)}, 0')
            k(f'{MFMA} {vr(16+16*u+8*t,4)}, {vr(4+4*u,4)}, {vr(68+8*t,4)}, 0')
    for i in range(0, 16, 2):
        k(f'v_pk_fma_f32 {vr(12+i,2)}, {vr(28+i,2)}, v[62:63], {vr(12+i,2)} op_sel:[0,1,0] op_sel_hi:[1,1,1]')
    for t in range(2):
        cmul_planar(k, 12 + 8 * t, 16 + 8 * t, 80 + 8 * t, 84 + 8 * t, 28, 32, 36)
        k(f'''v_cvt_pk_bf16_f32 v{4+4*t}, v28, v29
v_cvt_pk_bf16_f32 v{5+4*t}, v30, v31
v_cvt_pk_bf16_f32 v{6+4*t}, v32, v33
v_cvt_pk_bf16_f32 v{7+4*t}, v34, v35''')
    for v in range(2):
        for t in range(2):
            k(f'{MFMA} {vr(12+8*v+4*t,4)}, {vr(4+4*t,4)}, {vr(96+4*v,4)}, 0')
    k.stamp()
    k('s_waitcnt vmcnt(0)')
    k.stamp()
    for i in range(8):
        k(f'v_lshlrev_b32 v{28+2*i}, 16, v{104+i}\nv_and_b32 v{29+2*i}, 0xffff0000, v{104+i}')
    for i in range(8):
        k(f'v_cvt_pk_bf16_f32 v{4+i}, v{12+2*i}, v{13+2*i}')
    for i in range(8):
        k(f'v_lshlrev_b32 v{12+2*i}, 16, v{4+i}\nv_and_b32 v{13+2*i}, 0xffff0000, v{4+i}')
    for i in range(8):
        k(f'v_pk_add_f32 {vr(12+2*i,2)}, {vr(12+2*i,2)}, {vr(28+2*i,2)}')
    for i in range(8):
        k(f'v_cvt_pk_bf16_f32 v{4+i}, v{12+2*i}, v{13+2*i}')
    k('''buffer_store_dwordx4 v[4:7], v52, s[52:55], s35 offen
buffer_store_dwordx4 v[8:11], v53, s[52:55], s35 offen''')
    for i in range(8):
        k(f'v_lshlrev_b32 v{12+2*i}, 16, v{4+i}\nv_and_b32 v{13+2*i}, 0xffff0000, v{4+i}')
    k('''v_pk_add_f32 v[28:29], v[12:13], v[14:15]
v_pk_mul_f32 v[30:31], v[12:13], v[12:13]
v_pk_add_f32 v[32:33], v[16:17], v[18:19]
v_pk_mul_f32 v[34:35], v[14:15], v[14:15]''')
    for i in range(2, 8):
        k(f'v_pk_fma_f32 {vr(30+4*(i&1),2)}, {vr(12+2*i,2)}, {vr(12+2*i,2)}, {vr(30+4*(i&1),2)}')
        if i >= 4:
            k(f'v_pk_add_f32 {vr(28+4*(i&1),2)}, {vr(28+4*(i&1),2)}, {vr(12+2*i,2)}')
    k('''v_pk_add_f32 v[28:29], v[28:29], v[32:33]
v_pk_add_f32 v[30:31], v[30:31], v[34:35]
v_add_f32 v28, v28, v29
v_add_f32 v30, v30, v31''')
    wave_reduce2(k, 28, 30, 36, 37)
    ln_stats(k, 36, 37, 640, 28, 30, 32)
    ln_apply(k, 12, 16, 28, 30, 40)
    k(f'''buffer_store_dwordx4 v[40:43], v112, s[60:63], s59 offen
buffer_store_dwordx4 v[44:47], v113, s[60:63], s59 offen''')
    k.finish(END)
    return k
```

```python
from asmlib import *
from tables import TAB_BYTES

WS_T = 0x000000
WS_U = 0x300000
WS_H = 0x600000
WS_HN = 0x900000
TU_BYTES = 256 * 8 * 336 * 4
X_BYTES = 2048 * 640 * 2
MFMA = 'v_mfma_f32_16x16x32_bf16'


def vr(a, n=1):
    return f'v{a}' if n == 1 else f'v[{a}:{a+n-1}]'


def sr(a, n=1):
    return f's{a}' if n == 1 else f's[{a}:{a+n-1}]'


def srd_from(k, s, lo, hi, off, size):
    if off:
        k(f's_add_u32 s{s}, s{lo}, 0x{off:x}\ns_addc_u32 s{s+1}, s{hi}, 0')
    elif s != lo:
        k(f's_mov_b32 s{s}, s{lo}\ns_mov_b32 s{s+1}, s{hi}')
    k(f's_mov_b32 s{s+2}, 0x{size:x}\ns_mov_b32 s{s+3}, 0x00020000')


def tab_srd(k, s):
    k(f'''s_getpc_b64 s[{s}:{s+1}]
s_add_u32 s{s}, s{s}, tab@rel32@lo+4
s_addc_u32 s{s+1}, s{s+1}, tab@rel32@hi+12
s_mov_b32 s{s+2}, {TAB_BYTES}
s_mov_b32 s{s+3}, 0x00020000''')


def cmul_planar(k, a, b, c, d, ore, oim, t, conj=False):
    for h in (0, 2):
        k(f'v_pk_mul_f32 {vr(t+h,2)}, {vr(b+h,2)}, {vr(d+h,2)}')
    for h in (0, 2):
        k(f'v_pk_mul_f32 {vr(oim+h,2)}, {vr(b+h,2)}, {vr(c+h,2)}')
    for h in (0, 2):
        if not conj:
            k(f'v_pk_fma_f32 {vr(ore+h,2)}, {vr(a+h,2)}, {vr(c+h,2)}, {vr(t+h,2)} neg_lo:[0,0,1] neg_hi:[0,0,1]')
        else:
            k(f'v_pk_fma_f32 {vr(ore+h,2)}, {vr(a+h,2)}, {vr(c+h,2)}, {vr(t+h,2)}')
    for h in (0, 2):
        if not conj:
            k(f'v_pk_fma_f32 {vr(oim+h,2)}, {vr(a+h,2)}, {vr(d+h,2)}, {vr(oim+h,2)}')
        else:
            k(f'v_pk_fma_f32 {vr(oim+h,2)}, {vr(a+h,2)}, {vr(d+h,2)}, {vr(oim+h,2)} neg_lo:[1,0,0] neg_hi:[1,0,0]')


def wave_reduce2(k, a, b, sa, sb):
    for m in ('quad_perm:[1,0,3,2] row_mask:0xf bank_mask:0xf', 'quad_perm:[2,3,0,1] row_mask:0xf bank_mask:0xf',
              'row_half_mirror row_mask:0xf bank_mask:0xf', 'row_mirror row_mask:0xf bank_mask:0xf',
              'row_bcast:15 row_mask:0xa bank_mask:0xf', 'row_bcast:31 row_mask:0xc bank_mask:0xf'):
        k(f'v_add_f32_dpp v{a}, v{a}, v{a} {m}')
        k(f'v_add_f32_dpp v{b}, v{b}, v{b} {m}')
    k(f'v_readlane_b32 s{sa}, v{a}, 63\nv_readlane_b32 s{sb}, v{b}, 63')


def ln_stats(k, sa, sb, n, vm, vrs, t):
    inv = np.float32(1.0 / n).view(np.uint32)
    k(f'''v_mov_b32 v{t}, 0x{inv:x}
v_mul_f32 v{vm}, s{sa}, v{t}
v_mul_f32 v{t+1}, s{sb}, v{t}
v_fma_f32 v{t+1}, -v{vm}, v{vm}, v{t+1}
v_max_f32 v{t+1}, 0, v{t+1}
v_cvt_pk_bf16_f32 v{t}, v{vm}, v{t+1}
v_lshlrev_b32 v{vm}, 16, v{t}
v_and_b32 v{t+1}, 0xffff0000, v{t}
v_add_f32 v{t+1}, 0x3727c5ac, v{t+1}
v_cvt_pk_bf16_f32 v{t}, v{t+1}, v{t+1}
v_and_b32 v{t}, 0xffff0000, v{t}
v_sqrt_f32 v{t}, v{t}
v_cvt_pk_bf16_f32 v{t}, v{t}, v{t}
v_and_b32 v{t}, 0xffff0000, v{t}
v_rcp_f32 v{vrs}, v{t}''')


def ln_apply(k, f, n, vm, vrs, out):
    for i in range(0, n, 2):
        k(f'v_pk_add_f32 {vr(f+i,2)}, {vr(f+i,2)}, {vr(vm,2)} op_sel_hi:[1,0] neg_lo:[0,1] neg_hi:[0,1]')
    for i in range(0, n, 2):
        k(f'v_cvt_pk_bf16_f32 v{out+i//2}, v{f+i}, v{f+i+1}')
    for i in range(0, n, 2):
        k(f'v_lshlrev_b32 v{f+i}, 16, v{out+i//2}\nv_and_b32 v{f+i+1}, 0xffff0000, v{out+i//2}')
    for i in range(0, n, 2):
        k(f'v_pk_mul_f32 {vr(f+i,2)}, {vr(f+i,2)}, {vr(vrs,2)} op_sel_hi:[1,0]')
    for i in range(0, n, 2):
        k(f'v_cvt_pk_bf16_f32 v{out+i//2}, v{f+i}, v{f+i+1}')


SW = 'op_sel:[0,1] op_sel_hi:[1,0]'


def fft8(k, R, A, inverse, vs):
    r = lambda i: vr(R + 2 * i, 2)
    a = lambda i: vr(A + 2 * i, 2)
    neg = 'neg_lo:[0,1] neg_hi:[0,1]'
    mi = SW + ' neg_hi:[0,1]'
    pi = SW + ' neg_lo:[0,1]'
    if inverse: mi, pi = pi, mi
    k(f'''v_pk_add_f32 {a(0)}, {r(0)}, {r(4)}
v_pk_add_f32 {a(1)}, {r(0)}, {r(4)} {neg}
v_pk_add_f32 {a(2)}, {r(2)}, {r(6)}
v_pk_add_f32 {a(3)}, {r(2)}, {r(6)} {neg}
v_pk_add_f32 {a(4)}, {r(1)}, {r(5)}
v_pk_add_f32 {a(5)}, {r(1)}, {r(5)} {neg}
v_pk_add_f32 {a(6)}, {r(3)}, {r(7)}
v_pk_add_f32 {a(7)}, {r(3)}, {r(7)} {neg}
v_pk_add_f32 {r(0)}, {a(0)}, {a(2)}
v_pk_add_f32 {r(1)}, {a(0)}, {a(2)} {neg}
v_pk_add_f32 {r(2)}, {a(4)}, {a(6)}
v_pk_add_f32 {r(3)}, {a(4)}, {a(6)} {neg}
v_pk_add_f32 {r(4)}, {a(1)}, {a(3)} {mi}
v_pk_add_f32 {r(5)}, {a(1)}, {a(3)} {pi}
v_pk_add_f32 {r(6)}, {a(5)}, {a(7)} {mi}
v_pk_add_f32 {r(7)}, {a(5)}, {a(7)} {pi}
v_pk_add_f32 {a(0)}, {r(0)}, {r(2)}
v_pk_add_f32 {a(4)}, {r(0)}, {r(2)} {neg}
v_pk_add_f32 {a(2)}, {r(1)}, {r(3)} {mi}
v_pk_add_f32 {a(6)}, {r(1)}, {r(3)} {pi}
v_pk_add_f32 {r(0)}, {r(6)}, {r(6)} {mi}
v_pk_add_f32 {r(1)}, {r(7)}, {r(7)} {pi}
v_pk_fma_f32 {a(1)}, {r(0)}, {vr(vs,2)}, {r(4)} op_sel_hi:[1,0,1]
v_pk_fma_f32 {a(5)}, {r(0)}, {vr(vs,2)}, {r(4)} op_sel_hi:[1,0,1] neg_lo:[1,0,0] neg_hi:[1,0,0]
v_pk_fma_f32 {a(3)}, {r(1)}, {vr(vs,2)}, {r(5)} op_sel_hi:[1,0,1] neg_lo:[1,0,0] neg_hi:[1,0,0]
v_pk_fma_f32 {a(7)}, {r(1)}, {vr(vs,2)}, {r(5)} op_sel_hi:[1,0,1]''')
    return [A + 2 * i for i in range(8)]


def smul(k, dst, src, s, tmp, conj=False):
    k(f'v_pk_mul_f32 {vr(tmp,2)}, {vr(src,2)}, {sr(s,2)} op_sel_hi:[1,0]')
    ng = 'neg_hi:[1,0,0]' if conj else 'neg_lo:[1,0,0]'
    k(f'v_pk_fma_f32 {vr(dst,2)}, {vr(src,2)}, {sr(s,2)}, {vr(tmp,2)} op_sel:[1,1,0] op_sel_hi:[0,1,1] {ng}')


def gen_k0():
    XP = 1280; EX0 = 10240; EXP = 2576
    k = Kern('k0_kernel', 256, 512, EX0 + 8 * EXP, nvgpr=128)
    END = k.label('end')
    k(f'''s_cmp_ge_u32 s2, 256
s_cbranch_scc1 {END}
s_load_dwordx2 s[4:5], s[0:1], 0
s_load_dwordx2 s[40:41], s[0:1], 80''')
    k.stamp(True)
    tab_srd(k, 12)
    k(f'''s_lshl_b32 s33, s2, 6
s_add_u32 s33, s33, 32768
s_load_dwordx16 s[16:31], s[12:13], s33
v_lshrrev_b32 v1, 6, v0
v_and_b32 v2, 63, v0
v_readfirstlane_b32 s34, v1
v_lshlrev_b32 v3, 4, v2
s_movk_i32 s38, 0x1000''')
    for i in range(8):
        so = '0' if i < 4 else 's38'
        k(f'buffer_load_dwordx4 {vr(64+4*i,4)}, v3, s[12:15], {so} offen offset:{(i%4)*1024}')
    k(f'''s_lshl_b32 s35, s34, 8
s_add_u32 s35, s35, s2
s_mul_i32 s35, s35, 1280
v_lshlrev_b32 v58, 3, v2
v_lshlrev_b32 v59, 2, v2
s_waitcnt lgkmcnt(0)''')
    srd_from(k, 4, 4, 5, 0, X_BYTES)
    srd_from(k, 8, 40, 41, WS_T, TU_BYTES)
    k(f'''s_lshl_b32 s33, s2, 6
s_add_u32 s33, s33, 0x1800000
s_add_u32 s52, s40, s33
s_addc_u32 s53, s41, 0
s_mov_b32 s54, 64
s_mov_b32 s55, 0x00020000
v_lshlrev_b32 v62, 2, v0
v_mov_b32 v63, 0
buffer_store_dword v63, v62, s[52:55], 0 offen''')
    k(f'''buffer_load_dwordx2 v[4:5], v58, s[4:7], s35 offen
buffer_load_dwordx2 v[6:7], v58, s[4:7], s35 offen offset:512
buffer_load_dword v8, v59, s[4:7], s35 offen offset:1024
s_mul_i32 s39, s34, {XP}
v_add_u32 v58, s39, v58
v_add_u32 v59, s39, v59
v_and_b32 v50, 15, v2
v_lshrrev_b32 v51, 4, v2
v_lshrrev_b32 v52, 2, v50
v_and_b32 v53, 3, v50
v_lshl_add_u32 v54, v51, 3, v52
v_add_u32 v55, 4, v54
v_subrev_u32 v56, 20, v54
v_min_u32 v54, v54, v56
v_subrev_u32 v56, 20, v55
v_min_u32 v55, v55, v56
v_lshlrev_b32 v53, 3, v53
v_lshl_add_u32 v54, v54, 6, v53
v_lshl_add_u32 v55, v55, 6, v53
v_add_u32 v54, s39, v54
v_add_u32 v55, s39, v55
s_mul_i32 s42, s34, {EXP}
s_add_u32 s42, s42, {EX0}
v_mul_u32_u24 v56, 80, v51
v_add_u32 v57, v56, v50
v_lshlrev_b32 v57, 3, v57
v_add_u32 v60, s42, v57
v_sub_u32 v61, {8*260}, v57
v_add_u32 v61, s42, v61
s_waitcnt vmcnt(0)''')
    k.stamp()
    for i in range(5):
        k(f'v_lshlrev_b32 v{10+2*i}, 16, v{4+i}\nv_and_b32 v{11+2*i}, 0xffff0000, v{4+i}')
    k('''v_pk_add_f32 v[20:21], v[10:11], v[12:13]
v_pk_mul_f32 v[22:23], v[10:11], v[10:11]
v_pk_add_f32 v[24:25], v[14:15], v[16:17]
v_pk_fma_f32 v[22:23], v[12:13], v[12:13], v[22:23]
v_pk_add_f32 v[20:21], v[20:21], v[18:19]
v_pk_fma_f32 v[22:23], v[14:15], v[14:15], v[22:23]
v_pk_add_f32 v[20:21], v[20:21], v[24:25]
v_pk_fma_f32 v[22:23], v[16:17], v[16:17], v[22:23]
v_pk_fma_f32 v[22:23], v[18:19], v[18:19], v[22:23]
v_add_f32 v20, v20, v21
v_add_f32 v22, v22, v23''')
    wave_reduce2(k, 20, 22, 36, 37)
    ln_stats(k, 36, 37, 640, 20, 22, 24)
    ln_apply(k, 10, 10, 20, 22, 4)
    k('''ds_write_b64 v58, v[4:5]
ds_write_b64 v58, v[6:7] offset:512
ds_write_b32 v59, v8 offset:1024
s_waitcnt lgkmcnt(0)
ds_read_b64_tr_b16 v[4:5], v54
ds_read_b64_tr_b16 v[6:7], v55
ds_read_b64_tr_b16 v[8:9], v54 offset:32
ds_read_b64_tr_b16 v[10:11], v55 offset:32
s_waitcnt lgkmcnt(2)''')
    k(f'''{MFMA} v[12:15], v[4:7], v[64:67], 0
{MFMA} v[16:19], v[4:7], v[68:71], 0
s_waitcnt lgkmcnt(0)
{MFMA} v[20:23], v[8:11], v[64:67], 0
{MFMA} v[24:27], v[8:11], v[68:71], 0''')
    cmul_planar(k, 12, 16, 72, 76, 28, 32, 44)
    cmul_planar(k, 20, 24, 80, 84, 36, 40, 44)
    for t in range(2):
        for h in range(2):
            re = 28 + 8 * t + 2 * h; im = 32 + 8 * t + 2 * h; o = 2 * t + h
            k(f'''v_cvt_pk_bf16_f32 v{4+o}, v{re}, v{re+1}
v_cvt_pk_bf16_f32 v{8+o}, v{im}, v{im+1}
v_cvt_pk_bf16_f32 v{12+o}, -v{im}, -v{im+1}
v_cvt_pk_bf16_f32 v{16+o}, v{re}, -v{re+1}
v_cvt_pk_bf16_f32 v{20+o}, v{im}, -v{im+1}
v_cvt_pk_bf16_f32 v{24+o}, -v{im}, v{im+1}''')
    k(f'''{MFMA} v[28:31], v[88:91], v[4:7], 0
{MFMA} v[32:35], v[92:95], v[4:7], 0
{MFMA} v[36:39], v[88:91], v[16:19], 0
{MFMA} v[40:43], v[92:95], v[16:19], 0
{MFMA} v[28:31], v[92:95], v[12:15], v[28:31]
{MFMA} v[32:35], v[88:91], v[8:11], v[32:35]
{MFMA} v[36:39], v[92:95], v[24:27], v[36:39]
{MFMA} v[40:43], v[88:91], v[20:23], v[40:43]
s_mov_b32 exec_lo, 0x07ff07ff
s_mov_b32 exec_hi, 0x07ff07ff''')
    for r in range(4):
        k(f'ds_write2_b32 v60, v{28+r}, v{32+r} offset0:{40*r} offset1:{40*r+1}')
    for r in range(4):
        k(f'v_xor_b32 v{40+r}, 0x80000000, v{40+r}')
    for r in range(4):
        k(f'ds_write2_b32 v61, v{36+r}, v{40+r} offset0:{40*(3-r)} offset1:{40*(3-r)+1}')
    k(f'''s_mov_b64 exec, -1
s_waitcnt lgkmcnt(0)''')
    k.stamp()
    k(f'''s_barrier''')
    k.stamp()
    k(f'''v_cmp_gt_u32 vcc, 321, v0
s_and_saveexec_b64 s[44:45], vcc
s_cbranch_execz {END}
v_lshlrev_b32 v1, 3, v0
v_lshlrev_b32 v2, 2, v0''')
    for n in range(8):
        k(f'ds_read_b64 {vr(4+2*n,2)}, v1 offset:{EX0+n*EXP}')
    k(f'''v_mov_b32 v40, 0x3f3504f3
s_mul_i32 s46, s2, {8*1344}
s_add_u32 s47, s46, {3*1344}
s_add_u32 s48, s46, {6*1344}
s_waitcnt lgkmcnt(0)''')
    T = fft8(k, 4, 20, False, 40)
    for k2 in range(8):
        if k2 == 0:
            k(f'v_cvt_pk_bf16_f32 v4, v{T[0]}, v{T[0]+1}')
        else:
            smul(k, T[k2], T[k2], 16 + 2 * k2, 42 + 2 * (k2 & 1))
            k(f'v_cvt_pk_bf16_f32 v{4+k2}, v{T[k2]}, v{T[k2]+1}')
        k(f'buffer_store_dword v{4+k2}, v2, s[8:11], s{46+k2//3} offen offset:{(k2%3)*1344}')
    k.finish(END)
    return k


def gen_k1():
    P = 1040; W0 = 16 * P
    k = Kern('k1_kernel', 168, 256, 32 * P, nvgpr=160)
    END = k.label('end')
    k(f'''s_cmp_ge_u32 s2, 168
s_cbranch_scc1 {END}
s_load_dwordx2 s[4:5], s[0:1], 8
s_load_dwordx2 s[16:17], s[0:1], 16
s_load_dwordx2 s[40:41], s[0:1], 80''')
    k.stamp(True)
    tab_srd(k, 12)
    k(f'''s_and_b32 s33, s2, 7
s_lshr_b32 s34, s2, 3
v_lshrrev_b32 v1, 6, v0
v_and_b32 v2, 63, v0
v_readfirstlane_b32 s35, v1
v_lshlrev_b32 v3, 4, v2
s_movk_i32 s38, 0x2000
s_movk_i32 s39, 0x3000
v_and_b32 v4, 15, v2
v_lshrrev_b32 v5, 4, v2''')
    for i in range(8):
        k(f'buffer_load_dwordx4 {vr(96+4*i,4)}, v3, s[12:15], s{38+i//4} offen offset:{(i%4)*1024}')
    k(f'''v_mul_u32_u24 v6, {16*8*1344}, v4
v_lshl_add_u32 v6, v5, 4, v6
s_lshl_b32 s36, s35, 5
s_add_u32 s36, s36, s33
s_mul_i32 s36, s36, 1344
s_lshl_b32 s37, s34, 6
s_add_u32 s36, s36, s37
s_add_u32 s42, s36, {8*1344}
s_add_u32 s43, s36, {16*1344}
s_add_u32 s44, s36, {24*1344}
v_and_b32 v7, 1, v5
v_lshrrev_b32 v8, 1, v5
v_lshl_add_u32 v9, v4, 4, v7
v_mul_u32_u24 v9, {8*642}, v9
v_lshl_add_u32 v9, v8, 4, v9
s_lshl_b32 s45, s35, 5
s_add_u32 s45, s45, s33
s_mul_i32 s45, s45, 642
s_lshl_b32 s37, s34, 5
s_add_u32 s45, s45, s37
s_add_u32 s46, s45, {16*642}
s_waitcnt lgkmcnt(0)''')
    srd_from(k, 4, 4, 5, 0, 2048 * 642)
    srd_from(k, 16, 16, 17, 0, 2048 * 642)
    srd_from(k, 8, 40, 41, WS_T, TU_BYTES)
    srd_from(k, 20, 40, 41, WS_U, TU_BYTES)
    so = ['s36', 's42', 's43', 's44']
    for i in range(4):
        k(f'buffer_load_dwordx4 {vr(16+4*i,4)}, v6, s[8:11], {so[i]} offen')
    for i in range(2):
        k(f'buffer_load_dwordx4 {vr(32+8*i,4)}, v9, s[4:7], s{45+i} offen')
        k(f'buffer_load_dwordx4 {vr(36+8*i,4)}, v9, s[16:19], s{45+i} offen')
    k(f'''v_mul_u32_u24 v10, {4*P}, v5
v_lshl_add_u32 v10, v4, 2, v10
s_lshl_b32 s37, s35, 8
v_add_u32 v10, s37, v10
v_mul_u32_u24 v11, {8*P}, v8
v_lshl_add_u32 v11, v7, 6, v11
v_lshl_add_u32 v11, v4, 2, v11
v_add_u32 v11, s37, v11
v_lshlrev_b32 v12, 6, v4
v_lshl_add_u32 v12, v5, 4, v12
s_mul_i32 s37, s35, {4*P}
v_add_u32 v12, s37, v12
s_mov_b32 s47, 0x05040100
s_mov_b32 s48, 0x07060302''')
    for i in range(4):
        k(f's_waitcnt vmcnt({7-i})')
        for j in range(4):
            k(f'ds_write_b32 v10, v{16+4*i+j} offset:{j*P+64*i}')
    k.stamp()
    for i in range(2):
        k(f's_waitcnt vmcnt({2-2*i})')
        for j in range(4):
            k(f'v_perm_b32 v{48+2*j}, v{36+8*i+j}, v{32+8*i+j}, s47')
            k(f'v_perm_b32 v{49+2*j}, v{36+8*i+j}, v{32+8*i+j}, s48')
        for j in range(8):
            k(f'ds_write_b32 v11, v{48+j} offset:{W0+j*P+128*i}')
    k('s_waitcnt lgkmcnt(0)')
    k.stamp()
    k('s_barrier')
    k.stamp()
    for c in range(4):
        k(f'ds_read_b128 {vr(16+4*c,4)}, v12 offset:{c*P}')
    for c in range(4):
        k(f'ds_read_b128 {vr(32+4*c,4)}, v12 offset:{W0+c*P}')
    for c in range(4):
        k(f's_waitcnt lgkmcnt({7-c})')
        k(f'{MFMA} {vr(48+8*c,4)}, {vr(16+4*c,4)}, v[96:99], 0')
        k(f'{MFMA} {vr(52+8*c,4)}, {vr(16+4*c,4)}, v[100:103], 0')

    def pack(c, re, im):
        k(f'''v_cvt_pk_bf16_f32 v{16+4*c}, v{re}, v{re+1}
v_cvt_pk_bf16_f32 v{17+4*c}, v{re+2}, v{re+3}
v_cvt_pk_bf16_f32 v{18+4*c}, v{im}, v{im+1}
v_cvt_pk_bf16_f32 v{19+4*c}, v{im+2}, v{im+3}''')
    for c in range(4):
        cmul_planar(k, 48 + 8 * c, 52 + 8 * c, 104, 108, 80, 84, 88)
        pack(c, 80, 84)
        k(f'{MFMA} {vr(48+8*c,4)}, v[112:115], {vr(16+4*c,4)}, 0')
        k(f'{MFMA} {vr(52+8*c,4)}, v[116:119], {vr(16+4*c,4)}, 0')
    k('s_waitcnt lgkmcnt(0)')
    for c in range(4):
        for r in range(4):
            k(f'v_lshlrev_b32 v{128+r}, 16, v{32+4*c+r}\nv_and_b32 v{132+r}, 0xffff0000, v{32+4*c+r}')
        cmul_planar(k, 48 + 8 * c, 52 + 8 * c, 128, 132, 80, 84, 88)
        pack(c, 80, 84)
        k(f'{MFMA} {vr(48+8*c,4)}, {vr(16+4*c,4)}, v[120:123], 0')
        k(f'{MFMA} {vr(52+8*c,4)}, {vr(16+4*c,4)}, v[124:127], 0')
    for c in range(4):
        cmul_planar(k, 48 + 8 * c, 52 + 8 * c, 104, 108, 80, 84, 88, conj=True)
        pack(c, 80, 84)
        k(f'{MFMA} {vr(48+8*c,4)}, v[120:123], {vr(16+4*c,4)}, 0')
        k(f'{MFMA} {vr(52+8*c,4)}, v[124:127], {vr(16+4*c,4)}, 0')
    for c in range(4):
        for r in range(4):
            k(f'v_cvt_pk_bf16_f32 v{16+4*c+r}, v{48+8*c+r}, v{52+8*c+r}')
        k(f'ds_write_b128 v12, {vr(16+4*c,4)} offset:{c*P}')
    k('s_waitcnt lgkmcnt(0)')
    k.stamp()
    k('s_barrier')
    k.stamp()
    for i in range(4):
        for j in range(4):
            k(f'ds_read_b32 v{16+4*i+j}, v10 offset:{j*P+64*i}')
    for i in range(4):
        k(f's_waitcnt lgkmcnt({12-4*i})')
        k(f'buffer_store_dwordx4 {vr(16+4*i,4)}, v6, s[20:23], {so[i]} offen')
    k.finish(END)
    return k


def gen_k2a():
    RP = 144; NP = 11 * RP + 16
    k = Kern('k2a_kernel', 256, 512, 8 * NP, nvgpr=128)
    END = k.label('end'); SKIP = k.label('skip')
    k(f'''s_cmp_ge_u32 s2, 256
s_cbranch_scc1 {END}
s_load_dwordx2 s[4:5], s[0:1], 0
s_load_dwordx2 s[40:41], s[0:1], 80''')
    k.stamp(True)
    tab_srd(k, 12)
    k(f'''s_lshl_b32 s33, s2, 6
s_add_u32 s33, s33, 32768
s_load_dwordx16 s[16:31], s[12:13], s33
v_lshrrev_b32 v1, 6, v0
v_and_b32 v2, 63, v0
v_readfirstlane_b32 s34, v1
v_lshlrev_b32 v3, 4, v2
s_movk_i32 s38, 0x4000
s_movk_i32 s39, 0x5000
s_movk_i32 s49, 0x6000
s_mul_i32 s46, s2, {8*1344}
s_add_u32 s47, s46, {3*1344}
s_add_u32 s48, s46, {6*1344}
v_lshlrev_b32 v60, 2, v0
s_lshl_b32 s35, s34, 8
s_add_u32 s35, s35, s2
s_mul_i32 s35, s35, 1280
v_and_b32 v50, 15, v2
v_lshrrev_b32 v51, 4, v2
v_lshlrev_b32 v52, 6, v50
v_lshl_add_u32 v52, v51, 4, v52
v_add_u32 v53, 1024, v52
v_mov_b32 v54, 0x7fffffff
v_cmp_gt_u32 vcc, 4, v50
v_cndmask_b32 v53, v54, v53, vcc
s_waitcnt lgkmcnt(0)''')
    srd_from(k, 4, 4, 5, 0, X_BYTES)
    srd_from(k, 8, 40, 41, WS_U, TU_BYTES)
    srd_from(k, 52, 40, 41, WS_H, X_BYTES)
    srd_from(k, 56, 40, 41, WS_HN, X_BYTES)
    for k2 in range(8):
        k(f'buffer_load_dword v{4+k2}, v60, s[8:11], s{46+k2//3} offen offset:{(k2%3)*1344}')
    for i in range(10):
        so = ['s38', 's39', 's49'][i // 4]
        k(f'buffer_load_dwordx4 {vr(64+4*i,4)}, v3, s[12:15], {so} offen offset:{(i%4)*1024}')
    k(f'''buffer_load_dwordx4 v[104:107], v52, s[4:7], s35 offen
buffer_load_dwordx4 v[108:111], v53, s[4:7], s35 offen''')
    k(f'''v_mul_u32_u24 v55, 3277, v0
v_lshrrev_b32 v55, 16, v55
v_mul_u32_u24 v56, 20, v55
v_sub_u32 v56, v0, v56
v_mul_u32_u24 v57, {RP}, v56
v_lshl_add_u32 v57, v55, 2, v57
v_mov_b32 v58, {11*RP}
v_cmp_ge_u32 vcc, 10, v56
v_cndmask_b32 v57, v58, v57, vcc
v_sub_u32 v59, 20, v56
v_mul_u32_u24 v59, {RP}, v59
v_sub_u32 v61, 31, v55
v_lshl_add_u32 v59, v61, 2, v59
v_cmp_le_u32 vcc, 10, v56
v_cndmask_b32 v59, v58, v59, vcc
v_sub_u32 v61, 32, v55
v_lshlrev_b32 v61, 2, v61
v_cmp_eq_u32 vcc, 0, v56
v_cndmask_b32 v59, v59, v61, vcc
v_cmp_eq_u32 vcc, 0, v0
v_cndmask_b32 v59, v59, v58, vcc
v_cmp_eq_u32 vcc, 320, v0
v_cndmask_b32 v59, v59, v58, vcc
v_mov_b32 v40, 0x3f3504f3
v_min_u32 v62, 10, v50
v_mul_u32_u24 v62, {RP}, v62
v_lshl_add_u32 v62, v51, 4, v62
s_mul_i32 s42, s34, {NP}
v_add_u32 v62, s42, v62
v_and_b32 v63, 1, v2
v_lshlrev_b32 v63, 31, v63
v_or_b32 v63, 1.0, v63
v_cmp_gt_u32 vcc, 321, v0
s_and_saveexec_b64 s[44:45], vcc
s_waitcnt vmcnt(12)''')
    k.stamp()
    k(f'''s_cbranch_execz {SKIP}''')
    for k2 in range(8):
        k(f'v_lshlrev_b32 v{20+2*k2}, 16, v{4+k2}\nv_and_b32 v{21+2*k2}, 0xffff0000, v{4+k2}')
    for k2 in range(8):
        if k2 == 0:
            k('v_mov_b32 v4, v20\nv_mov_b32 v5, v21')
        else:
            smul(k, 4 + 2 * k2, 20 + 2 * k2, 16 + 2 * k2, 42 + 2 * (k2 & 1), conj=True)
    T = fft8(k, 4, 20, True, 40)
    for n in range(8):
        k(f'''v_cvt_pk_bf16_f32 v{4+2*n}, v{T[n]}, v{T[n]+1}
v_cvt_pk_bf16_f32 v{5+2*n}, v{T[n]}, -v{T[n]+1}
ds_write_b32 v57, v{4+2*n} offset:{n*NP}
ds_write_b32 v59, v{5+2*n} offset:{n*NP}''')
    k(f'''{SKIP}:
s_mov_b64 exec, -1
s_waitcnt lgkmcnt(0)''')
    k.stamp()
    k(f'''s_barrier''')
    k.stamp()
    k(f'''ds_read_b128 v[4:7], v62
ds_read_b128 v[8:11], v62 offset:64
s_waitcnt vmcnt(2) lgkmcnt(1)''')
    for u in range(2):
        if u == 1: k('s_waitcnt lgkmcnt(0)')
        for t in range(2):
            k(f'{MFMA} {vr(12+16*u+8*t,4)}, {vr(4+4*u,4)}, {vr(64+8*t,4)}, 0')
            k(f'{MFMA} {vr(16+16*u+8*t,4)}, {vr(4+4*u,4)}, {vr(68+8*t,4)}, 0')
    for i in range(0, 16, 2):
        k(f'v_pk_fma_f32 {vr(12+i,2)}, {vr(28+i,2)}, v[62:63], {vr(12+i,2)} op_sel:[0,1,0] op_sel_hi:[1,1,1]')
    for t in range(2):
        cmul_planar(k, 12 + 8 * t, 16 + 8 * t, 80 + 8 * t, 84 + 8 * t, 28, 32, 36)
        k(f'''v_cvt_pk_bf16_f32 v{4+4*t}, v28, v29
v_cvt_pk_bf16_f32 v{5+4*t}, v30, v31
v_cvt_pk_bf16_f32 v{6+4*t}, v32, v33
v_cvt_pk_bf16_f32 v{7+4*t}, v34, v35''')
    for v in range(2):
        for t in range(2):
            k(f'{MFMA} {vr(12+8*v+4*t,4)}, {vr(4+4*t,4)}, {vr(96+4*v,4)}, 0')
    k.stamp()
    k('s_waitcnt vmcnt(0)')
    k.stamp()
    for i in range(8):
        k(f'v_lshlrev_b32 v{28+2*i}, 16, v{104+i}\nv_and_b32 v{29+2*i}, 0xffff0000, v{104+i}')
    for i in range(8):
        k(f'v_cvt_pk_bf16_f32 v{4+i}, v{12+2*i}, v{13+2*i}')
    for i in range(8):
        k(f'v_lshlrev_b32 v{12+2*i}, 16, v{4+i}\nv_and_b32 v{13+2*i}, 0xffff0000, v{4+i}')
    for i in range(8):
        k(f'v_pk_add_f32 {vr(12+2*i,2)}, {vr(12+2*i,2)}, {vr(28+2*i,2)}')
    for i in range(8):
        k(f'v_cvt_pk_bf16_f32 v{4+i}, v{12+2*i}, v{13+2*i}')
    k('''buffer_store_dwordx4 v[4:7], v52, s[52:55], s35 offen
buffer_store_dwordx4 v[8:11], v53, s[52:55], s35 offen''')
    for i in range(8):
        k(f'v_lshlrev_b32 v{12+2*i}, 16, v{4+i}\nv_and_b32 v{13+2*i}, 0xffff0000, v{4+i}')
    k('''v_pk_add_f32 v[28:29], v[12:13], v[14:15]
v_pk_mul_f32 v[30:31], v[12:13], v[12:13]
v_pk_add_f32 v[32:33], v[16:17], v[18:19]
v_pk_mul_f32 v[34:35], v[14:15], v[14:15]''')
    for i in range(2, 8):
        k(f'v_pk_fma_f32 {vr(30+4*(i&1),2)}, {vr(12+2*i,2)}, {vr(12+2*i,2)}, {vr(30+4*(i&1),2)}')
        if i >= 4:
            k(f'v_pk_add_f32 {vr(28+4*(i&1),2)}, {vr(28+4*(i&1),2)}, {vr(12+2*i,2)}')
    k('''v_pk_add_f32 v[28:29], v[28:29], v[32:33]
v_pk_add_f32 v[30:31], v[30:31], v[34:35]
v_add_f32 v28, v28, v29
v_add_f32 v30, v30, v31''')
    wave_reduce2(k, 28, 30, 36, 37)
    ln_stats(k, 36, 37, 640, 28, 30, 32)
    ln_apply(k, 12, 16, 28, 30, 40)
    k(f'''buffer_store_dwordx4 v[40:43], v52, s[56:59], s35 offen
buffer_store_dwordx4 v[44:47], v53, s[56:59], s35 offen''')
    k.finish(END)
    return k
```

```python
import sys
from asmlib import *
from tables import build_tab
import gen_fft, gen3
opt = {}
for a in sys.argv[2:]:
    if a == 'prof': Kern.prof = True
    elif '=' in a: opt[a.split('=')[0]] = int(a.split('=')[1])
    else: opt[a] = 1
ks = [gen_fft.gen_k0(), gen_fft.gen_k1(), gen_fft.gen_k2a(), gen3.gen_k2(opt), gen3.gen_k3(opt), gen3.gen_k4(opt)]
if opt.get('dup3'):
    ks = ks[:5] + [gen3.gen_k3(dict(opt, name3='k3b_kernel'))]
    ks[5].kidx = 5
s = build_file(ks, {'tab': build_tab()})
open(sys.argv[1], 'w').write(s)
print(len(s))
```

```python
from asmlib import *
from gen_fft import vr, sr, srd_from, MFMA, WS_H, WS_HN, X_BYTES, code_srd
from gen3 import *


def gen_k3(opt={}):
    NSW = 4
    R0 = 0
    M0 = R0 + 8192
    C0_ = M0 + 4096
    RB = 16384
    k = Kern(opt.get('name3', 'k3_kernel'), 256, 512, RB + NSW * 16384 + 1024, nvgpr=128, nagpr=128)
    END = k.label('end'); PROD = k.label('prod'); W3 = k.label('w3'); EPI = k.label('epi')
    ZD = opt.get('ZD', 8); DW = opt.get('DW', 2)
    k(f'''s_cmp_ge_u32 s2, 256
s_cbranch_scc1 {END}
s_load_dwordx2 s[4:5], s[0:1], 40
s_load_dwordx2 s[24:25], s[0:1], 48
s_load_dwordx2 s[40:41], s[0:1], 80''')
    k.stamp(True)
    xcd_map_8x4(k)
    G = opt.get('G', 4)
    if opt.get('rot'):
        k(f'''s_and_b32 s39, s34, 7
s_lshl_b32 s39, s39, 1
s_lshr_b32 s42, s34, 3
s_lshl_b32 s42, s42, 2
s_add_u32 s39, s39, s42
s_and_b32 s42, s33, 1
s_lshl_b32 s42, s42, 1
s_add_u32 s39, s39, s42
s_and_b32 s39, s39, 15
s_mov_b32 s37, 0''')
    else:
        k(f'''s_lshr_b32 s42, s34, 3
s_add_u32 s37, s34, s42
s_and_b32 s37, s37, {G-1}''')
        if opt.get('nophi'): k('s_mov_b32 s39, 0')
        else: k(f's_lshr_b32 s39, s33, {opt.get("phs", 1)}\ns_and_b32 s39, s39, {G-1}')

    def kap(cnt, out, first):
        if first: k(f's_mov_b32 s{cnt}, s39')
        else: k(f's_add_u32 s{cnt}, s{cnt}, 1\ns_and_b32 s{cnt}, s{cnt}, 15')
        k(f's_xor_b32 s{out}, s{cnt}, s37')
    k(f'''v_lshrrev_b32 v1, 6, v0
v_and_b32 v2, 63, v0
v_readfirstlane_b32 s38, v1
v_lshlrev_b32 v3, 4, v2
v_lshlrev_b32 v7, 5, v0
s_mov_b32 s57, 0xffff0000
s_waitcnt lgkmcnt(0)''')
    srd_from(k, 20, 40, 41, WS_ST, ST_BYTES)
    k('buffer_load_dwordx4 v[44:47], v7, s[20:23], 0 offen\nbuffer_load_dwordx4 v[48:51], v7, s[20:23], 0 offen offset:16')
    srd_from(k, 4, 4, 5, 0, 2048 * 4096)
    srd_from(k, 8, 40, 41, WS_Z2, Z2_BYTES)

    def stats(vm):
        b = 44
        k(f'v_mov_b32 v60, {fbits(1.0/864)}\nv_lshlrev_b32 v56, 4, v0\nv_lshlrev_b32 v57, 3, v0')
        k(vm.wait('st'))
        for i in range(4): k(f'v_pk_mul_f32 {vr(b+2*i,2)}, {vr(b+2*i,2)}, v[60:61] op_sel_hi:[1,0]')
        for i in range(4): k(f'v_fma_f32 v{b+1+2*i}, -v{b+2*i}, v{b+2*i}, v{b+1+2*i}')
        for i in range(4): k(f'v_max_f32 v{b+1+2*i}, 0, v{b+1+2*i}')
        for i in range(2):
            k(f'v_cvt_pk_bf16_f32 v{52+i}, v{b+4*i}, v{b+2+4*i}')
            k(f'v_cvt_pk_bf16_f32 v{54+i}, v{b+1+4*i}, v{b+3+4*i}')
        k(f'ds_write_b64 v57, v[52:53] offset:{M0}')
        unp = lambda: [k(f'v_lshlrev_b32 v{b+2*i}, 16, v{54+i}\nv_and_b32 v{b+1+2*i}, s57, v{54+i}') for i in range(2)]
        pk = lambda: [k(f'v_cvt_pk_bf16_f32 v{54+i}, v{b+2*i}, v{b+1+2*i}') for i in range(2)]
        unp()
        for i in range(4): k(f'v_add_f32 v{b+i}, 0x3727c5ac, v{b+i}')
        pk(); unp()
        for i in range(4): k(f'v_sqrt_f32 v{b+i}, v{b+i}')
        pk(); unp()
        for i in range(4): k(f'v_rcp_f32 v{b+i}, v{b+i}')
        k(f'ds_write_b128 v56, {vr(b,4)} offset:{R0}\ns_waitcnt lgkmcnt(0)\ns_barrier')

    k(f's_cmp_ge_u32 s38, 4\ns_cbranch_scc1 {PROD}')
    k(f'''v_mov_b32 v16, v3
v_add_u32 v17, 7168, v3
v_add_u32 v18, {2*7168}, v3
v_add_u32 v19, {3*7168}, v3
s_mul_i32 s56, s36, {64*7168}
s_lshl_b32 s42, s38, 11
s_add_u32 s56, s56, s42''')
    WB = 64
    stamp_at = (8, 32, 64, 96)

    def common_addr():
        srd_from(k, 12, 40, 41, WS_Z1, Z1_BYTES)
        srd_from(k, 16, 40, 41, WS_A, Z1_BYTES)
        srd_from(k, 24, 24, 25, 0, 4096)
        k('''v_and_b32 v20, 31, v2
v_lshrrev_b32 v21, 5, v2
v_and_b32 v22, 15, v2
v_xor_b32 v22, v22, v21
v_lshlrev_b32 v22, 4, v22
v_lshl_add_u32 v8, v20, 8, v22
v_add_u32 v8, 16384, v8''')
        for i in range(1, 8): k(f'v_xor_b32 v{8+i}, {32*i}, v8')
        k(f'''s_lshl_b32 s42, s35, 1
s_mul_i32 s42, s42, 54
s_mul_i32 s43, s36, 7
s_add_u32 s42, s42, s43
s_lshl_b32 s43, s38, 1
s_add_u32 s42, s42, s43
s_lshl_b32 s42, s42, 10
s_add_u32 s43, s42, {54*1024}
v_and_b32 v112, 15, v2
v_lshrrev_b32 v113, 2, v112
v_and_b32 v112, 3, v112
v_lshl_add_u32 v112, v113, 3, v112
v_lshrrev_b32 v113, 4, v2
v_and_b32 v113, 1, v113
v_lshl_add_u32 v112, v113, 2, v112
v_lshlrev_b32 v112, 1, v112
s_lshl_b32 s44, s35, 7''')

    def consumer(w3):
        vm = Cnt('vmcnt', 63); lg = Cnt('lgkmcnt', 15)
        vm.issue('st'); vm.issue('st')
        NF = ZD + 1
        NX = ZD // 2 + 1
        XR = 24; MR = 96
        assert w3 is False or XR + 4 * NX <= 64

        def zload(g):
            if g >= 128: return
            k8 = g & 7; jb = k8 >> 1; q = k8 & 1
            if k8 == 0:
                kap(58, 59, g == 0)
                k(f's_mul_i32 s59, s59, {4*7168}\ns_add_u32 s59, s59, s56')
            if opt.get('noz'): return
            if not w3:
                k(f'buffer_load_dwordx4 {ar(32+4*(g%NF),4)}, v{16+jb}, s[8:11], s59 offen offset:{1024*q}'); vm.issue(f'z{g}')
            elif q == 0:
                k(f'buffer_load_dwordx4 {vr(XR+4*((g>>1)%NX),4)}, v{16+jb}, s[8:11], s59 offen'); vm.issue(f'z{g}')

        def wread(g, tt):
            if g >= 128 or opt.get('nord'): return
            s = g >> 3; k8 = g & 7
            k(f'ds_read_b128 {vr(WB+8*(g%4)+4*tt,4)}, v{8+k8} offset:{(s%NSW)*16384+8192*tt}'); lg.issue(f'w{g}_{tt}')

        def mread(g):
            if g >= 128: return
            jb = (g & 7) >> 1
            if (g & 7) == 0:
                kap(60, 61, g == 0)
                k('s_lshl_b32 s61, s61, 8\nv_add_u32 v23, s61, v22')
            k(f'ds_read_b128 {vr(MR+4*((g>>1)%3),4)}, v23 offset:{M0+64*jb}'); lg.issue(f'm{g}')
        pre = min(ZD, 8) if w3 else ZD
        for g in range(pre): zload(g)
        common_addr()
        if w3:
            k(f'''v_lshrrev_b32 v22, 4, v2
v_and_b32 v22, 1, v22
v_lshl_add_u32 v22, v22, 1, v21
v_lshlrev_b32 v22, 4, v22''')
        k.nst = 1
        k.stamp()
        stats(vm)
        for g in range(pre, ZD): zload(g)
        k.stamp()
        k('s_barrier')
        k.stamp()
        def perm(P, lo, hi):
            if 2 * P >= 128: return
            X = XR + 4 * (P % NX); M = MR + 4 * (P % 3)
            if lo == 0:
                x = vm.wait(f'z{2*P}')
                if x: k(x)
                x = lg.wait(f'm{2*P}')
                if x: k(x)
            if not opt.get('noperm'):
                for i in range(lo, hi): k(f'v_permlane16_swap_b32 v{X+i}, v{M+i}')
        if w3: mread(0); mread(2); mread(4)
        for g in range(3):
            wread(g, 0); wread(g, 1)
        if w3: perm(0, 0, 4)
        for g in range(128):
            if g in stamp_at: k.stamp()
            P = g >> 1
            if not w3:
                x = vm.wait(f'z{g}')
                if x: k(x)
                a = ar(32 + 4 * (g % NF), 4)
            else:
                X = XR + 4 * (P % NX); M = MR + 4 * (P % 3)
                a = vr(X, 4) if (g & 1) == 0 else vr(M, 4)
            for tt in range(2):
                x = lg.wait(f'w{g}_{tt}')
                if x: k(x)
                acc = ar(16 * tt, 16)
                k(f'{MF32} {acc}, {a}, {vr(WB+8*(g%4)+4*tt,4)}, {"0" if g == 0 else acc}')
                if tt == 0:
                    if ((g + 3) & 7) == 0 and g + 3 < 128: k('s_barrier')
                    wread(g + 3, 0); wread(g + 3, 1)
                    if w3 and (g & 1): perm(P + 1, 2, 4)
                else:
                    zload(g + ZD)
                    if w3 and (g & 1) == 0: perm(P + 1, 0, 2)
                    if w3 and (g & 1): mread(g + 5)
                    if g == 128 - ZD:
                        k('buffer_load_ushort v114, v112, s[24:27], s44 offen\nbuffer_load_ushort v115, v112, s[24:27], s44 offen offset:64')
                        for t2 in range(2):
                            for u2 in range(2):
                                k(f'buffer_load_dwordx4 {ar(96+8*t2+4*u2,4)}, v3, s[12:15], s{42+t2} offen offset:{1024*u2}')
                        for _ in range(6): vm.issue('e')
        k.stamp()
        if w3:
            k(f'v_lshlrev_b32 v9, 2, v2\nds_write_b32 v9, a8 offset:{C0_}\nds_write_b32 v9, a24 offset:{C0_+256}\ns_waitcnt lgkmcnt(0)')
    assert 32 + 4 * (ZD + 1) <= 96
    k(f's_cmp_eq_u32 s38, 3\ns_cbranch_scc1 {W3}')
    consumer(False)
    k(f's_branch {EPI}\n{W3}:')
    consumer(True)
    k(f'''{EPI}:
v_lshlrev_b32 v9, 2, v2
s_barrier
ds_read_b32 v116, v9 offset:{C0_}
ds_read_b32 v120, v9 offset:{C0_+256}''')
    for i in range(32): k(f'v_accvgpr_read_b32 v{16+i}, a{i}')
    k(f'''s_cmp_eq_u32 s36, 7
s_cselect_b32 s45, 5, 7
s_lshl_b32 s46, s38, 1
s_sub_i32 s45, s45, s46
s_waitcnt vmcnt(0) lgkmcnt(0)
v_lshlrev_b32 v114, 16, v114
v_lshlrev_b32 v118, 16, v115''')
    k.stamp()
    for i in range(16): k(f'v_accvgpr_read_b32 v{92+i}, a{96+i}')
    for u2 in range(2):
        k(f's_cmp_le_i32 s45, {u2}\ns_cbranch_scc1 {END}')
        for tt in range(2):
            a = 16 + 16 * tt + 8 * u2
            cr = 116 if tt == 0 else 120
            br = 114 if tt == 0 else 118
            z = 92 + 8 * tt + 4 * u2
            o = 48 + 8 * u2 + 4 * tt
            for i in range(4):
                k(f'v_pk_add_f32 {vr(a+2*i,2)}, {vr(a+2*i,2)}, {vr(cr,2)} op_sel_hi:[1,0] neg_lo:[0,1] neg_hi:[0,1]')
            for i in range(4):
                k(f'v_cvt_pk_bf16_f32 v{64+i}, v{a+2*i}, v{a+2*i+1}')
            for i in range(4):
                k(f'v_lshlrev_b32 v{a+2*i}, 16, v{64+i}\nv_and_b32 v{a+2*i+1}, s57, v{64+i}')
            for i in range(4):
                k(f'v_pk_add_f32 {vr(a+2*i,2)}, {vr(a+2*i,2)}, {vr(br,2)} op_sel_hi:[1,0]')
            for i in range(4):
                k(f'v_cvt_pk_bf16_f32 v{64+i}, v{a+2*i}, v{a+2*i+1}')
            for i in range(4):
                k(f'v_lshlrev_b32 v{a+2*i}, 16, v{64+i}\nv_and_b32 v{a+2*i+1}, s57, v{64+i}')
            for i in range(4):
                k(f'v_lshlrev_b32 v{68+2*i}, 16, v{z+i}\nv_and_b32 v{69+2*i}, s57, v{z+i}')
            for i in range(4):
                k(f'v_pk_mul_f32 {vr(a+2*i,2)}, {vr(a+2*i,2)}, {vr(68+2*i,2)}')
            for i in range(4):
                k(f'v_cvt_pk_bf16_f32 v{o+i}, v{a+2*i}, v{a+2*i+1}')
            k(f'buffer_store_dwordx4 {vr(o,4)}, v3, s[16:19], s{42+tt} offen offset:{1024*u2}')
    k(f's_branch {END}')
    k(f'{PROD}:')
    vm = Cnt('vmcnt', 63); lg = Cnt('lgkmcnt', 15)
    vm.issue('st'); vm.issue('st')
    k(f'''s_sub_u32 s38, s38, 4
v_lshrrev_b32 v4, 4, v2
v_and_b32 v5, 15, v2
v_lshlrev_b32 v16, 12, v4
v_lshl_add_u32 v16, v5, 4, v16
v_add_u32 v17, {1*32768}, v16
v_add_u32 v18, {2*32768}, v16
v_add_u32 v19, {3*32768}, v16
s_lshl_b32 s56, s35, 6
s_lshr_b32 s42, s38, 1
s_lshl_b32 s42, s42, 5
s_add_u32 s56, s56, s42
s_and_b32 s42, s38, 1
s_lshl_b32 s42, s42, 2
s_add_u32 s56, s56, s42
s_lshl_b32 s56, s56, 12''')
    RAW = 64; NR = DW + 1
    assert RAW + 16 * NR <= 128

    def wload(s):
        if s >= 16: return
        kap(58, 59, s == 0)
        k('s_lshl_b32 s59, s59, 8\ns_add_u32 s59, s59, s56')
        if opt.get('nodma'): return
        for i in range(4):
            k(f'buffer_load_dwordx4 {vr(RAW+16*(s%NR)+4*i,4)}, v{16+i}, s[4:7], s59 offen'); vm.issue(f'w{s}_{i}')
    for s in range(DW): wload(s)
    k(f'''v_xor_b32 v6, v5, v4
v_lshlrev_b32 v6, 4, v6
v_lshl_add_u32 v6, v4, 8, v6
s_lshl_b32 s42, s38, 12
s_add_u32 s42, s42, {RB}
v_add_u32 v8, s42, v6''')
    for i in range(1, 4): k(f'v_xor_b32 v{8+i}, {64*i}, v8\nv_add_u32 v{8+i}, {1024*i}, v{8+i}')
    k('v_lshlrev_b32 v13, 5, v5')
    k.nst = 1
    k.stamp()
    stats(vm)
    k.stamp()
    RR = 24; TM = 40
    if opt.get('prio'): k(f"s_setprio {opt['prio']}")

    def rread(s):
        if s >= 16: return
        kap(60, 61, s == 0)
        k('s_lshl_b32 s61, s61, 9\nv_add_u32 v12, s61, v13')
        k(f'ds_read_b128 {vr(RR+8*(s&1),4)}, v12 offset:{R0}\nds_read_b128 {vr(RR+8*(s&1)+4,4)}, v12 offset:{R0+16}')
        lg.issue(f'r{s}'); lg.issue(f'r{s}')
    rread(0)
    H = opt.get('H', 2)
    bpos = {}
    for s in range(16): bpos.setdefault(min(4 * s + 3 + min(s, H), 63), []).append(s)
    for s in range(16):
        for i in range(4):
            x = vm.wait(f'w{s}_{i}')
            if x: k(x)
            if not opt.get('nosc'):
                a = RAW + 16 * (s % NR) + 4 * i
                t = TM + 12 * (i & 1)
                for e in range(4):
                    k(f'v_lshlrev_b32 v{t+2*e}, 16, v{a+e}\nv_and_b32 v{t+2*e+1}, s57, v{a+e}')
                x = lg.wait(f'r{s}')
                if x: k(x)
                for e in range(8):
                    k(f'v_mul_f32 v{t+e}, v{t+e}, v{RR+8*(s&1)+e}')
                for e in range(4):
                    k(f'v_cvt_pk_bf16_f32 v{t+8+e}, v{t+2*e}, v{t+2*e+1}')
                k(f'ds_write_b128 v{8+i}, {vr(t+8,4)} offset:{(s%NSW)*16384}'); lg.issue(f'c{s}')
            if i == 1: rread(s + 1)
            if i == 0: wload(s + DW)
            for b in bpos.get(4 * s + i, []):
                x = lg.wait(f'c{b}')
                if x: k(x)
                if b in (1, 4, 8, 12): k.stamp()
                k('s_barrier')
    k('s_barrier')
    k.finish(END)
    return k
```

```python
from asmlib import *
from gen_fft import vr, sr, srd_from, MFMA, WS_H, WS_HN, X_BYTES, code_srd
from gen3 import *


def gen_k3(opt={}):
    NSW = 4
    R0 = 0; M0 = 8192; C0_ = M0 + 4096; RB = 16384
    k = Kern(opt.get('name3', 'k3_kernel'), 256, 1024, RB + NSW * 16384 + 1024, nvgpr=128, nagpr=0)
    END = k.label('end'); PROD = k.label('prod'); W3 = k.label('w3'); EPI = k.label('epi')
    ZD = opt.get('ZD', 6); DW = opt.get('DW', 2); G = opt.get('G', 4); LW = 2
    k(f'''s_cmp_ge_u32 s2, 256
s_cbranch_scc1 {END}
s_load_dwordx2 s[4:5], s[0:1], 40
s_load_dwordx2 s[24:25], s[0:1], 48
s_load_dwordx2 s[40:41], s[0:1], 80''')
    k.stamp(True)
    xcd_map_8x4(k)
    k(f'''s_lshr_b32 s42, s34, 3
s_add_u32 s37, s34, s42
s_and_b32 s37, s37, {G-1}''')
    if opt.get('nophi'): k('s_mov_b32 s39, 0')
    else: k(f's_lshr_b32 s39, s33, {opt.get("phs", 1)}\ns_and_b32 s39, s39, {G-1}')

    def kap(cnt, out, first):
        if first: k(f's_mov_b32 s{cnt}, s39')
        else: k(f's_add_u32 s{cnt}, s{cnt}, 1\ns_and_b32 s{cnt}, s{cnt}, 15')
        k(f's_xor_b32 s{out}, s{cnt}, s37')
    k(f'''v_lshrrev_b32 v1, 6, v0
v_and_b32 v2, 63, v0
v_readfirstlane_b32 s38, v1
v_lshlrev_b32 v3, 4, v2
v_lshlrev_b32 v7, 4, v0
s_mov_b32 s57, 0xffff0000
s_waitcnt lgkmcnt(0)''')
    srd_from(k, 20, 40, 41, WS_ST, ST_BYTES)
    k('buffer_load_dwordx4 v[48:51], v7, s[20:23], 0 offen')
    srd_from(k, 4, 4, 5, 0, 2048 * 4096)
    srd_from(k, 8, 40, 41, WS_Z2, Z2_BYTES)

    def stats(vm):
        k(f'v_mov_b32 v56, {fbits(1.0/864)}\nv_lshlrev_b32 v54, 3, v0\nv_lshlrev_b32 v55, 2, v0')
        k(vm.wait('st'))
        k(f'''v_pk_mul_f32 v[48:49], v[48:49], v[56:57] op_sel_hi:[1,0]
v_pk_mul_f32 v[50:51], v[50:51], v[56:57] op_sel_hi:[1,0]
v_fma_f32 v49, -v48, v48, v49
v_fma_f32 v51, -v50, v50, v51
v_max_f32 v49, 0, v49
v_max_f32 v51, 0, v51
v_cvt_pk_bf16_f32 v52, v48, v50
v_cvt_pk_bf16_f32 v53, v49, v51
ds_write_b32 v55, v52 offset:{M0}
v_lshlrev_b32 v48, 16, v53
v_and_b32 v49, s57, v53
v_add_f32 v48, 0x3727c5ac, v48
v_add_f32 v49, 0x3727c5ac, v49
v_cvt_pk_bf16_f32 v53, v48, v49
v_lshlrev_b32 v48, 16, v53
v_and_b32 v49, s57, v53
v_sqrt_f32 v48, v48
v_sqrt_f32 v49, v49
v_cvt_pk_bf16_f32 v53, v48, v49
v_lshlrev_b32 v48, 16, v53
v_and_b32 v49, s57, v53
v_rcp_f32 v48, v48
v_rcp_f32 v49, v49
ds_write_b64 v54, v[48:49] offset:{R0}
s_waitcnt lgkmcnt(0)
s_barrier''')

    k(f's_cmp_ge_u32 s38, 8\ns_cbranch_scc1 {PROD}')
    k(f'''s_and_b32 s46, s38, 3
s_lshr_b32 s47, s38, 2
v_add_u32 v13, 7168, v3
s_mul_i32 s56, s36, {64*7168}
s_lshl_b32 s42, s46, 11
s_add_u32 s56, s56, s42
s_mul_i32 s42, s47, {2*7168}
s_add_u32 s56, s56, s42''')
    if opt.get('cprio'): k(f"s_setprio {opt['cprio']}")
    ACC = 16; WB = 48; ZR = 72; Z1R = 108
    NL = 64
    stamp_at = (4, 16, 32, 48)

    def common_addr():
        srd_from(k, 12, 40, 41, WS_Z1, Z1_BYTES)
        srd_from(k, 16, 40, 41, WS_A, Z1_BYTES)
        srd_from(k, 24, 24, 25, 0, 4096)
        k(f'''v_and_b32 v4, 31, v2
v_lshrrev_b32 v5, 5, v2
v_and_b32 v6, 15, v2
v_xor_b32 v6, v6, v5
v_lshlrev_b32 v6, 4, v6
v_lshl_add_u32 v8, v4, 8, v6
s_lshl_b32 s42, s47, 7
s_add_u32 s42, s42, {RB}
v_xor_b32 v8, s42, v8''')
        for i in range(1, 4): k(f'v_xor_b32 v{8+i}, {32*i}, v8')
        k(f'''s_lshl_b32 s42, s35, 1
s_add_u32 s42, s42, s47
s_lshl_b32 s44, s42, 6
s_mul_i32 s42, s42, 54
s_mul_i32 s43, s36, 7
s_add_u32 s42, s42, s43
s_lshl_b32 s43, s46, 1
s_add_u32 s42, s42, s43
s_lshl_b32 s42, s42, 10
v_and_b32 v117, 15, v2
v_lshrrev_b32 v118, 2, v117
v_and_b32 v117, 3, v117
v_lshl_add_u32 v117, v118, 3, v117
v_lshrrev_b32 v118, 4, v2
v_and_b32 v118, 1, v118
v_lshl_add_u32 v117, v118, 2, v117
v_lshlrev_b32 v117, 1, v117''')

    def consumer(w3):
        vm = Cnt('vmcnt', 63); lg = Cnt('lgkmcnt', 15)
        vm.issue('st')
        NF = ZD + 1
        NX = ZD // 2 + 1
        XR = ZR; MR = ZR + 4 * NX
        assert ZR + 4 * NF <= Z1R and MR + 12 <= Z1R

        def zload(g):
            if g >= NL: return
            u = g & 3; jb = u >> 1; q = u & 1
            if u == 0:
                kap(58, 59, g == 0)
                k(f's_mul_i32 s59, s59, {4*7168}\ns_add_u32 s59, s59, s56')
            if opt.get('noz'): return
            va = 'v3' if jb == 0 else 'v13'
            if not w3:
                k(f'buffer_load_dwordx4 {vr(ZR+4*(g%NF),4)}, {va}, s[8:11], s59 offen offset:{1024*q}'); vm.issue(f'z{g}')
            elif q == 0:
                k(f'buffer_load_dwordx4 {vr(XR+4*((g>>1)%NX),4)}, {va}, s[8:11], s59 offen'); vm.issue(f'z{g}')

        def wread(g, tt):
            if g >= NL or opt.get('nord'): return
            s = g >> 2; u = g & 3
            k(f'ds_read_b128 {vr(WB+8*(g%3)+4*tt,4)}, v{8+u} offset:{(s%NSW)*16384+8192*tt}'); lg.issue(f'w{g}_{tt}')

        def mread(g):
            if g >= NL: return
            jb = (g & 3) >> 1
            if (g & 3) == 0:
                kap(60, 61, g == 0)
                k('s_lshl_b32 s61, s61, 8\nv_add_u32 v15, s61, v14')
            k(f'ds_read_b128 {vr(MR+4*((g>>1)%3),4)}, v15 offset:{M0+64*jb}'); lg.issue(f'm{g}')

        def perm(P, lo, hi):
            if 2 * P >= NL: return
            X = XR + 4 * (P % NX); M = MR + 4 * (P % 3)
            if lo == 0:
                x = vm.wait(f'z{2*P}')
                if x: k(x)
                x = lg.wait(f'm{2*P}')
                if x: k(x)
            for i in range(lo, hi): k(f'v_permlane16_swap_b32 v{X+i}, v{M+i}')
        for g in range(ZD): zload(g)
        common_addr()
        if w3:
            k(f'''v_lshrrev_b32 v14, 4, v2
v_and_b32 v14, 1, v14
v_lshl_add_u32 v14, v14, 1, v5
v_lshlrev_b32 v14, 4, v14
s_lshl_b32 s45, s47, 7
v_add_u32 v14, s45, v14''')
        k.nst = 1
        k.stamp()
        stats(vm)
        k.stamp()
        if w3: mread(0); mread(2); mread(4)
        k('s_barrier')
        k.stamp()
        for g in range(LW):
            wread(g, 0); wread(g, 1)
        if w3: perm(0, 0, 4)
        for g in range(NL):
            if g in stamp_at: k.stamp()
            P = g >> 1
            if not w3:
                x = vm.wait(f'z{g}')
                if x: k(x)
                a = vr(ZR + 4 * (g % NF), 4)
            else:
                X = XR + 4 * (P % NX); M = MR + 4 * (P % 3)
                a = vr(X, 4) if (g & 1) == 0 else vr(M, 4)
            for tt in range(2):
                x = lg.wait(f'w{g}_{tt}')
                if x: k(x)
                acc = vr(ACC + 16 * tt, 16)
                k(f'{MF32} {acc}, {a}, {vr(WB+8*(g%3)+4*tt,4)}, {"0" if g == 0 else acc}')
                if tt == 0:
                    if ((g + LW) & 3) == 0 and g + LW < NL: k('s_barrier')
                    wread(g + LW, 0); wread(g + LW, 1)
                    if w3 and (g & 1): perm(P + 1, 2, 4)
                else:
                    zload(g + ZD)
                    if w3 and (g & 1) == 0: perm(P + 1, 0, 2)
                    if w3 and (g & 1): mread(g + 5)
                    if g == NL - ZD:
                        k('buffer_load_ushort v116, v117, s[24:27], s44 offen')
                        for u2 in range(2):
                            k(f'buffer_load_dwordx4 {vr(Z1R+4*u2,4)}, v3, s[12:15], s42 offen offset:{1024*u2}')
                        for _ in range(3): vm.issue('e')
        k.stamp()
        if w3:
            k(f'''v_lshlrev_b32 v9, 2, v2
s_lshl_b32 s45, s47, 9
v_add_u32 v9, s45, v9
ds_write_b32 v9, v{ACC+8} offset:{C0_}
ds_write_b32 v9, v{ACC+24} offset:{C0_+256}''')
    k(f's_cmp_eq_u32 s46, 3\ns_cbranch_scc1 {W3}')
    consumer(False)
    k(f's_branch {EPI}\n{W3}:')
    consumer(True)
    K1 = k.label('k1'); KJ = k.label('kj')
    k(f'''{EPI}:
s_lshl_b32 s45, s38, 12
s_add_u32 s45, s45, {RB}
v_add_u32 v8, s45, v3
s_xor_b32 s45, s38, 4
s_lshl_b32 s45, s45, 12
s_add_u32 s45, s45, {RB}
v_add_u32 v10, s45, v3
v_lshlrev_b32 v9, 2, v2
s_lshl_b32 s45, s47, 8
v_add_u32 v9, s45, v9
s_cmp_eq_u32 s47, 1
s_cbranch_scc1 {K1}''')
    for i in range(4): k(f'ds_write_b128 v8, {vr(ACC+16+4*i,4)} offset:{1024*i}')
    k(f's_branch {KJ}\n{K1}:')
    for i in range(4): k(f'ds_write_b128 v8, {vr(ACC+4*i,4)} offset:{1024*i}')
    for i in range(16): k(f'v_mov_b32 v{ACC+i}, v{ACC+16+i}')
    k(f'''{KJ}:
s_cmp_eq_u32 s36, 7
s_cselect_b32 s45, 5, 7
s_lshl_b32 s48, s46, 1
s_sub_i32 s45, s45, s48
s_waitcnt lgkmcnt(0)
s_barrier
ds_read_b32 v120, v9 offset:{C0_}
ds_read_b32 v121, v9 offset:{C0_+512}''')
    for i in range(4): k(f'ds_read_b128 {vr(ACC+16+4*i,4)}, v10 offset:{1024*i}')
    k.stamp()
    k(f'''s_waitcnt vmcnt(0) lgkmcnt(4)
v_lshlrev_b32 v116, 16, v116
v_add_f32 v120, v120, v121''')
    for u2 in range(2):
        k(f's_cmp_le_i32 s45, {u2}\ns_cbranch_scc1 {END}')
        a = ACC + 8 * u2; z = Z1R + 4 * u2; o = 48 + 4 * u2
        for i in range(4):
            k(f'v_lshlrev_b32 v{68+2*i}, 16, v{z+i}\nv_and_b32 v{69+2*i}, s57, v{z+i}')
        k(f's_waitcnt lgkmcnt({2-2*u2})')
        for i in range(4):
            k(f'v_pk_add_f32 {vr(a+2*i,2)}, {vr(a+2*i,2)}, {vr(a+16+2*i,2)}')
        for i in range(4):
            k(f'v_pk_add_f32 {vr(a+2*i,2)}, {vr(a+2*i,2)}, v[120:121] op_sel_hi:[1,0] neg_lo:[0,1] neg_hi:[0,1]')
        for i in range(4):
            k(f'v_cvt_pk_bf16_f32 v{64+i}, v{a+2*i}, v{a+2*i+1}')
        for i in range(4):
            k(f'v_lshlrev_b32 v{a+2*i}, 16, v{64+i}\nv_and_b32 v{a+2*i+1}, s57, v{64+i}')
        for i in range(4):
            k(f'v_pk_add_f32 {vr(a+2*i,2)}, {vr(a+2*i,2)}, v[116:117] op_sel_hi:[1,0]')
        for i in range(4):
            k(f'v_cvt_pk_bf16_f32 v{64+i}, v{a+2*i}, v{a+2*i+1}')
        for i in range(4):
            k(f'v_lshlrev_b32 v{a+2*i}, 16, v{64+i}\nv_and_b32 v{a+2*i+1}, s57, v{64+i}')
        for i in range(4):
            k(f'v_pk_mul_f32 {vr(a+2*i,2)}, {vr(a+2*i,2)}, {vr(68+2*i,2)}')
        for i in range(4):
            k(f'v_cvt_pk_bf16_f32 v{o+i}, v{a+2*i}, v{a+2*i+1}')
        k(f'buffer_store_dwordx4 {vr(o,4)}, v3, s[16:19], s42 offen offset:{1024*u2}')
    k(f's_branch {END}')
    k(f'{PROD}:')
    vm = Cnt('vmcnt', 63); lg = Cnt('lgkmcnt', 15)
    vm.issue('st')
    k(f'''s_sub_u32 s38, s38, 8
v_lshrrev_b32 v4, 4, v2
v_and_b32 v5, 15, v2
v_lshlrev_b32 v16, 12, v4
v_lshl_add_u32 v16, v5, 4, v16
v_add_u32 v17, 32768, v16
s_lshl_b32 s56, s35, 6
s_lshr_b32 s42, s38, 2
s_lshl_b32 s42, s42, 5
s_add_u32 s56, s56, s42
s_and_b32 s43, s38, 1
s_lshl_b32 s42, s43, 4
s_add_u32 s56, s56, s42
s_and_b32 s42, s38, 2
s_lshl_b32 s42, s42, 1
s_add_u32 s56, s56, s42
s_lshl_b32 s56, s56, 12''')
    RAW = 72; NR = DW + 1
    assert RAW + 8 * NR <= 128

    def wload(s):
        if s >= 16: return
        kap(58, 59, s == 0)
        k('s_lshl_b32 s59, s59, 8\ns_add_u32 s59, s59, s56')
        if opt.get('nodma'): return
        for i in range(2):
            k(f'buffer_load_dwordx4 {vr(RAW+8*(s%NR)+4*i,4)}, v{16+i}, s[4:7], s59 offen'); vm.issue(f'w{s}_{i}')
    for s in range(DW): wload(s)
    k(f'''v_xor_b32 v6, v5, v4
s_lshl_b32 s43, s43, 3
v_xor_b32 v6, s43, v6
v_lshlrev_b32 v6, 4, v6
v_lshl_add_u32 v6, v4, 8, v6
s_lshl_b32 s42, s38, 11
s_add_u32 s42, s42, {RB}
v_add_u32 v8, s42, v6
v_xor_b32 v9, 64, v8
v_add_u32 v9, 1024, v9
v_lshlrev_b32 v13, 5, v5''')
    k.nst = 1
    k.stamp()
    stats(vm)
    k.stamp()
    RR = 24; TM = 40
    if opt.get('prio'): k(f"s_setprio {opt['prio']}")

    def rread(s):
        if s >= 16: return
        kap(60, 61, s == 0)
        k('s_lshl_b32 s61, s61, 9\nv_add_u32 v12, s61, v13')
        k(f'ds_read_b128 {vr(RR+8*(s&1),4)}, v12 offset:{R0}\nds_read_b128 {vr(RR+8*(s&1)+4,4)}, v12 offset:{R0+16}')
        lg.issue(f'r{s}'); lg.issue(f'r{s}')
    rread(0)
    H = opt.get('H', 1)
    bpos = {}
    for s in range(16): bpos.setdefault(min(2 * s + 1 + min(s, H), 31), []).append(s)
    for s in range(16):
        for i in range(2):
            x = vm.wait(f'w{s}_{i}')
            if x: k(x)
            if not opt.get('nosc'):
                a = RAW + 8 * (s % NR) + 4 * i
                t = TM + 12 * (i & 1)
                for e in range(4):
                    k(f'v_lshlrev_b32 v{t+2*e}, 16, v{a+e}\nv_and_b32 v{t+2*e+1}, s57, v{a+e}')
                x = lg.wait(f'r{s}')
                if x: k(x)
                for e in range(8):
                    k(f'v_mul_f32 v{t+e}, v{t+e}, v{RR+8*(s&1)+e}')
                for e in range(4):
                    k(f'v_cvt_pk_bf16_f32 v{t+8+e}, v{t+2*e}, v{t+2*e+1}')
                k(f'ds_write_b128 v{8+i}, {vr(t+8,4)} offset:{(s%NSW)*16384}'); lg.issue(f'c{s}')
            if i == 0: rread(s + 1); wload(s + DW)
            for b in bpos.get(2 * s + i, []):
                x = lg.wait(f'c{b}')
                if x: k(x)
                if b in (1, 4, 8, 12): k.stamp()
                k('s_barrier')
    k('s_barrier')
    k.finish(END)
    return k
```

```python
from asmlib import *
from tables import TAB_BYTES

WS_T = 0x000000
WS_U = 0x300000
WS_H = 0x600000
WS_HN = 0x900000
TU_BYTES = 256 * 8 * 336 * 4
X_BYTES = 2048 * 640 * 2
MFMA = 'v_mfma_f32_16x16x32_bf16'


def vr(a, n=1):
    return f'v{a}' if n == 1 else f'v[{a}:{a+n-1}]'


def sr(a, n=1):
    return f's{a}' if n == 1 else f's[{a}:{a+n-1}]'


def srd_from(k, s, lo, hi, off, size):
    if off:
        k(f's_add_u32 s{s}, s{lo}, 0x{off:x}\ns_addc_u32 s{s+1}, s{hi}, 0')
    elif s != lo:
        k(f's_mov_b32 s{s}, s{lo}\ns_mov_b32 s{s+1}, s{hi}')
    k(f's_mov_b32 s{s+2}, 0x{size:x}\ns_mov_b32 s{s+3}, 0x00020000')


def tab_srd(k, s):
    k(f'''s_getpc_b64 s[{s}:{s+1}]
s_add_u32 s{s}, s{s}, tab@rel32@lo+4
s_addc_u32 s{s+1}, s{s+1}, tab@rel32@hi+12
s_mov_b32 s{s+2}, {TAB_BYTES}
s_mov_b32 s{s+3}, 0x00020000''')


def code_srd(k, s, lab, end):
    k(f'''s_getpc_b64 s[{s}:{s+1}]
s_add_u32 s{s}, s{s}, {lab}@rel32@lo+4
s_addc_u32 s{s+1}, s{s+1}, {lab}@rel32@hi+12
s_mov_b32 s{s+2}, {end}-{lab}
s_mov_b32 s{s+3}, 0x00020000''')


OPT = {}
PFF = lambda: '' if OPT.get('nont') else 'nt'


def cmul_planar(k, a, b, c, d, ore, oim, t, conj=False):
    for h in (0, 2):
        k(f'v_pk_mul_f32 {vr(t+h,2)}, {vr(b+h,2)}, {vr(d+h,2)}')
    for h in (0, 2):
        k(f'v_pk_mul_f32 {vr(oim+h,2)}, {vr(b+h,2)}, {vr(c+h,2)}')
    for h in (0, 2):
        if not conj:
            k(f'v_pk_fma_f32 {vr(ore+h,2)}, {vr(a+h,2)}, {vr(c+h,2)}, {vr(t+h,2)} neg_lo:[0,0,1] neg_hi:[0,0,1]')
        else:
            k(f'v_pk_fma_f32 {vr(ore+h,2)}, {vr(a+h,2)}, {vr(c+h,2)}, {vr(t+h,2)}')
    for h in (0, 2):
        if not conj:
            k(f'v_pk_fma_f32 {vr(oim+h,2)}, {vr(a+h,2)}, {vr(d+h,2)}, {vr(oim+h,2)}')
        else:
            k(f'v_pk_fma_f32 {vr(oim+h,2)}, {vr(a+h,2)}, {vr(d+h,2)}, {vr(oim+h,2)} neg_lo:[1,0,0] neg_hi:[1,0,0]')


def wave_reduce2(k, a, b, sa, sb):
    for m in ('quad_perm:[1,0,3,2] row_mask:0xf bank_mask:0xf', 'quad_perm:[2,3,0,1] row_mask:0xf bank_mask:0xf',
              'row_half_mirror row_mask:0xf bank_mask:0xf', 'row_mirror row_mask:0xf bank_mask:0xf',
              'row_bcast:15 row_mask:0xa bank_mask:0xf', 'row_bcast:31 row_mask:0xc bank_mask:0xf'):
        k(f'v_add_f32_dpp v{a}, v{a}, v{a} {m}')
        k(f'v_add_f32_dpp v{b}, v{b}, v{b} {m}')
    k(f'v_readlane_b32 s{sa}, v{a}, 63\nv_readlane_b32 s{sb}, v{b}, 63')


def ln_stats(k, sa, sb, n, vm, vrs, t):
    inv = np.float32(1.0 / n).view(np.uint32)
    k(f'''v_mov_b32 v{t}, 0x{inv:x}
v_mul_f32 v{vm}, s{sa}, v{t}
v_mul_f32 v{t+1}, s{sb}, v{t}
v_fma_f32 v{t+1}, -v{vm}, v{vm}, v{t+1}
v_max_f32 v{t+1}, 0, v{t+1}
v_cvt_pk_bf16_f32 v{t}, v{vm}, v{t+1}
v_lshlrev_b32 v{vm}, 16, v{t}
v_and_b32 v{t+1}, 0xffff0000, v{t}
v_add_f32 v{t+1}, 0x3727c5ac, v{t+1}
v_cvt_pk_bf16_f32 v{t}, v{t+1}, v{t+1}
v_and_b32 v{t}, 0xffff0000, v{t}
v_sqrt_f32 v{t}, v{t}
v_cvt_pk_bf16_f32 v{t}, v{t}, v{t}
v_and_b32 v{t}, 0xffff0000, v{t}
v_rcp_f32 v{vrs}, v{t}''')


def ln_apply(k, f, n, vm, vrs, out):
    for i in range(0, n, 2):
        k(f'v_pk_add_f32 {vr(f+i,2)}, {vr(f+i,2)}, {vr(vm,2)} op_sel_hi:[1,0] neg_lo:[0,1] neg_hi:[0,1]')
    for i in range(0, n, 2):
        k(f'v_cvt_pk_bf16_f32 v{out+i//2}, v{f+i}, v{f+i+1}')
    for i in range(0, n, 2):
        k(f'v_lshlrev_b32 v{f+i}, 16, v{out+i//2}\nv_and_b32 v{f+i+1}, 0xffff0000, v{out+i//2}')
    for i in range(0, n, 2):
        k(f'v_pk_mul_f32 {vr(f+i,2)}, {vr(f+i,2)}, {vr(vrs,2)} op_sel_hi:[1,0]')
    for i in range(0, n, 2):
        k(f'v_cvt_pk_bf16_f32 v{out+i//2}, v{f+i}, v{f+i+1}')


SW = 'op_sel:[0,1] op_sel_hi:[1,0]'


def fft8(k, R, A, inverse, vs):
    r = lambda i: vr(R + 2 * i, 2)
    a = lambda i: vr(A + 2 * i, 2)
    neg = 'neg_lo:[0,1] neg_hi:[0,1]'
    mi = SW + ' neg_hi:[0,1]'
    pi = SW + ' neg_lo:[0,1]'
    if inverse: mi, pi = pi, mi
    k(f'''v_pk_add_f32 {a(0)}, {r(0)}, {r(4)}
v_pk_add_f32 {a(1)}, {r(0)}, {r(4)} {neg}
v_pk_add_f32 {a(2)}, {r(2)}, {r(6)}
v_pk_add_f32 {a(3)}, {r(2)}, {r(6)} {neg}
v_pk_add_f32 {a(4)}, {r(1)}, {r(5)}
v_pk_add_f32 {a(5)}, {r(1)}, {r(5)} {neg}
v_pk_add_f32 {a(6)}, {r(3)}, {r(7)}
v_pk_add_f32 {a(7)}, {r(3)}, {r(7)} {neg}
v_pk_add_f32 {r(0)}, {a(0)}, {a(2)}
v_pk_add_f32 {r(1)}, {a(0)}, {a(2)} {neg}
v_pk_add_f32 {r(2)}, {a(4)}, {a(6)}
v_pk_add_f32 {r(3)}, {a(4)}, {a(6)} {neg}
v_pk_add_f32 {r(4)}, {a(1)}, {a(3)} {mi}
v_pk_add_f32 {r(5)}, {a(1)}, {a(3)} {pi}
v_pk_add_f32 {r(6)}, {a(5)}, {a(7)} {mi}
v_pk_add_f32 {r(7)}, {a(5)}, {a(7)} {pi}
v_pk_add_f32 {a(0)}, {r(0)}, {r(2)}
v_pk_add_f32 {a(4)}, {r(0)}, {r(2)} {neg}
v_pk_add_f32 {a(2)}, {r(1)}, {r(3)} {mi}
v_pk_add_f32 {a(6)}, {r(1)}, {r(3)} {pi}
v_pk_add_f32 {r(0)}, {r(6)}, {r(6)} {mi}
v_pk_add_f32 {r(1)}, {r(7)}, {r(7)} {pi}
v_pk_fma_f32 {a(1)}, {r(0)}, {vr(vs,2)}, {r(4)} op_sel_hi:[1,0,1]
v_pk_fma_f32 {a(5)}, {r(0)}, {vr(vs,2)}, {r(4)} op_sel_hi:[1,0,1] neg_lo:[1,0,0] neg_hi:[1,0,0]
v_pk_fma_f32 {a(3)}, {r(1)}, {vr(vs,2)}, {r(5)} op_sel_hi:[1,0,1] neg_lo:[1,0,0] neg_hi:[1,0,0]
v_pk_fma_f32 {a(7)}, {r(1)}, {vr(vs,2)}, {r(5)} op_sel_hi:[1,0,1]''')
    return [A + 2 * i for i in range(8)]


def smul(k, dst, src, s, tmp, conj=False):
    k(f'v_pk_mul_f32 {vr(tmp,2)}, {vr(src,2)}, {sr(s,2)} op_sel_hi:[1,0]')
    ng = 'neg_hi:[1,0,0]' if conj else 'neg_lo:[1,0,0]'
    k(f'v_pk_fma_f32 {vr(dst,2)}, {vr(src,2)}, {sr(s,2)}, {vr(tmp,2)} op_sel:[1,1,0] op_sel_hi:[0,1,1] {ng}')


def k0_prefetch(k):
    L = [k.label('pf') for _ in range(8)]; J = k.label('pfj'); SK = k.label('pfs')
    if not OPT.get('pfw'): k(f's_cmp_lt_u32 s34, 5\ns_cbranch_scc1 {SK}')
    k(f'''v_lshlrev_b32 v100, 7, v2
s_lshl_b32 s72, s2, 13
s_lshr_b32 s73, s2, 3
s_mov_b32 s71, 0x00020000
s_cmp_ge_u32 s34, 2
s_cbranch_scc1 {L[2]}
s_cmp_eq_u32 s34, 0
s_cselect_b32 s68, s56, s58
s_cselect_b32 s69, s57, s59
s_mov_b32 s70, {2048*642}
v_and_b32 v100, 7, v2
v_lshlrev_b32 v100, 7, v100
v_min_u32 v100, 640, v100
v_lshrrev_b32 v101, 3, v2
v_mul_u32_u24 v101, {8*642}, v101
v_add_u32 v100, v100, v101
s_and_b32 s72, s2, 7
s_lshl_b32 s74, s73, 6
s_add_u32 s72, s72, s74
s_mul_i32 s72, s72, 642
s_branch {J}
{L[2]}:
s_cmp_ge_u32 s34, 4
s_cbranch_scc1 {L[4]}
s_mov_b32 s68, s62
s_mov_b32 s69, s63
s_mov_b32 s70, {640*3456}
s_cmp_eq_u32 s34, 3
s_cselect_b32 s74, {1<<21}, 0
s_add_u32 s72, s72, s74
s_branch {J}
{L[4]}:
s_cmp_ge_u32 s34, 5
s_cbranch_scc1 {L[5]}
s_mov_b32 s68, s64
s_mov_b32 s69, s65
s_mov_b32 s70, {864*1280}
s_branch {J}
{L[5]}:
s_and_b32 s72, s73, 7
s_lshl_b32 s72, s72, 13
s_cmp_ge_u32 s34, 6
s_cbranch_scc1 {L[6]}
s_mov_b32 s68, s12
s_mov_b32 s69, s13
s_mov_b32 s70, s14
s_add_u32 s72, s72, 0x2000
s_branch {J}
{L[6]}:''')
    code_srd(k, 68, 'k1_kernel', 'code_end')
    k(f'''s_cmp_eq_u32 s34, 7
s_cselect_b32 s74, 0x10000, 0
s_add_u32 s72, s72, s74
{J}:
buffer_load_ubyte v101, v100, s[68:71], s72 offen
{SK}:''')


def gen_k0():
    XP = 1280; EX0 = 10240; EXP = 2576
    k = Kern('k0_kernel', 256, 512, EX0 + 8 * EXP, nvgpr=128)
    END = k.label('end')
    k(f'''s_cmp_ge_u32 s2, 256
s_cbranch_scc1 {END}
s_load_dwordx2 s[4:5], s[0:1], 0
s_load_dwordx2 s[40:41], s[0:1], 80
s_load_dwordx8 s[56:63], s[0:1], 8
s_load_dwordx2 s[64:65], s[0:1], 56''')
    k.stamp(True)
    tab_srd(k, 12)
    k(f'''s_and_b32 s3, s2, 7
s_lshl_b32 s3, s3, 5
s_lshr_b32 s33, s2, 3
s_add_u32 s3, s3, s33
s_lshl_b32 s33, s3, 6
s_add_u32 s33, s33, 32768
s_load_dwordx16 s[16:31], s[12:13], s33
v_lshrrev_b32 v1, 6, v0
v_and_b32 v2, 63, v0
v_readfirstlane_b32 s34, v1
v_lshlrev_b32 v3, 4, v2
s_movk_i32 s38, 0x1000''')
    for i in range(8):
        so = '0' if i < 4 else 's38'
        k(f'buffer_load_dwordx4 {vr(64+4*i,4)}, v3, s[12:15], {so} offen offset:{(i%4)*1024}')
    k(f'''s_lshl_b32 s35, s34, 8
s_add_u32 s35, s35, s3
s_mul_i32 s35, s35, 1280
v_lshlrev_b32 v58, 3, v2
v_lshlrev_b32 v59, 2, v2
s_waitcnt lgkmcnt(0)''')
    srd_from(k, 4, 4, 5, 0, X_BYTES)
    srd_from(k, 8, 40, 41, WS_T, TU_BYTES)
    k(f'''s_lshl_b32 s33, s2, 6
s_add_u32 s33, s33, 0x1800000
s_add_u32 s52, s40, s33
s_addc_u32 s53, s41, 0
s_mov_b32 s54, 64
s_mov_b32 s55, 0x00020000
v_lshlrev_b32 v62, 2, v0
v_mov_b32 v63, 0
buffer_store_dword v63, v62, s[52:55], 0 offen''')
    k(f'''buffer_load_dwordx2 v[4:5], v58, s[4:7], s35 offen
buffer_load_dwordx2 v[6:7], v58, s[4:7], s35 offen offset:512
buffer_load_dword v8, v59, s[4:7], s35 offen offset:1024''')
    k(f'''s_mul_i32 s39, s34, {XP}
v_add_u32 v58, s39, v58
v_add_u32 v59, s39, v59
v_and_b32 v50, 15, v2
v_lshrrev_b32 v51, 4, v2
v_lshrrev_b32 v52, 2, v50
v_and_b32 v53, 3, v50
v_lshl_add_u32 v54, v51, 3, v52
v_add_u32 v55, 4, v54
v_subrev_u32 v56, 20, v54
v_min_u32 v54, v54, v56
v_subrev_u32 v56, 20, v55
v_min_u32 v55, v55, v56
v_lshlrev_b32 v53, 3, v53
v_lshl_add_u32 v54, v54, 6, v53
v_lshl_add_u32 v55, v55, 6, v53
v_add_u32 v54, s39, v54
v_add_u32 v55, s39, v55
s_mul_i32 s42, s34, {EXP}
s_add_u32 s42, s42, {EX0}
v_mul_u32_u24 v56, 80, v51
v_add_u32 v57, v56, v50
v_lshlrev_b32 v57, 3, v57
v_add_u32 v60, s42, v57
v_sub_u32 v61, {8*260}, v57
v_add_u32 v61, s42, v61
s_waitcnt vmcnt(0)''')
    k.stamp()
    if not OPT.get('nopf'):
        k0_prefetch(k)
    for i in range(5):
        k(f'v_lshlrev_b32 v{10+2*i}, 16, v{4+i}\nv_and_b32 v{11+2*i}, 0xffff0000, v{4+i}')
    k('''v_pk_add_f32 v[20:21], v[10:11], v[12:13]
v_pk_mul_f32 v[22:23], v[10:11], v[10:11]
v_pk_add_f32 v[24:25], v[14:15], v[16:17]
v_pk_fma_f32 v[22:23], v[12:13], v[12:13], v[22:23]
v_pk_add_f32 v[20:21], v[20:21], v[18:19]
v_pk_fma_f32 v[22:23], v[14:15], v[14:15], v[22:23]
v_pk_add_f32 v[20:21], v[20:21], v[24:25]
v_pk_fma_f32 v[22:23], v[16:17], v[16:17], v[22:23]
v_pk_fma_f32 v[22:23], v[18:19], v[18:19], v[22:23]
v_add_f32 v20, v20, v21
v_add_f32 v22, v22, v23''')
    wave_reduce2(k, 20, 22, 36, 37)
    ln_stats(k, 36, 37, 640, 20, 22, 24)
    ln_apply(k, 10, 10, 20, 22, 4)
    k('''ds_write_b64 v58, v[4:5]
ds_write_b64 v58, v[6:7] offset:512
ds_write_b32 v59, v8 offset:1024
s_waitcnt lgkmcnt(0)
ds_read_b64_tr_b16 v[4:5], v54
ds_read_b64_tr_b16 v[6:7], v55
ds_read_b64_tr_b16 v[8:9], v54 offset:32
ds_read_b64_tr_b16 v[10:11], v55 offset:32
s_waitcnt lgkmcnt(2)''')
    k(f'''{MFMA} v[12:15], v[4:7], v[64:67], 0
{MFMA} v[16:19], v[4:7], v[68:71], 0
s_waitcnt lgkmcnt(0)
{MFMA} v[20:23], v[8:11], v[64:67], 0
{MFMA} v[24:27], v[8:11], v[68:71], 0''')
    cmul_planar(k, 12, 16, 72, 76, 28, 32, 44)
    cmul_planar(k, 20, 24, 80, 84, 36, 40, 44)
    for t in range(2):
        for h in range(2):
            re = 28 + 8 * t + 2 * h; im = 32 + 8 * t + 2 * h; o = 2 * t + h
            k(f'''v_cvt_pk_bf16_f32 v{4+o}, v{re}, v{re+1}
v_cvt_pk_bf16_f32 v{8+o}, v{im}, v{im+1}
v_cvt_pk_bf16_f32 v{12+o}, -v{im}, -v{im+1}
v_cvt_pk_bf16_f32 v{16+o}, v{re}, -v{re+1}
v_cvt_pk_bf16_f32 v{20+o}, v{im}, -v{im+1}
v_cvt_pk_bf16_f32 v{24+o}, -v{im}, v{im+1}''')
    k(f'''{MFMA} v[28:31], v[88:91], v[4:7], 0
{MFMA} v[32:35], v[92:95], v[4:7], 0
{MFMA} v[36:39], v[88:91], v[16:19], 0
{MFMA} v[40:43], v[92:95], v[16:19], 0
{MFMA} v[28:31], v[92:95], v[12:15], v[28:31]
{MFMA} v[32:35], v[88:91], v[8:11], v[32:35]
{MFMA} v[36:39], v[92:95], v[24:27], v[36:39]
{MFMA} v[40:43], v[88:91], v[20:23], v[40:43]
s_mov_b32 exec_lo, 0x07ff07ff
s_mov_b32 exec_hi, 0x07ff07ff''')
    for r in range(4):
        k(f'ds_write2_b32 v60, v{28+r}, v{32+r} offset0:{40*r} offset1:{40*r+1}')
    for r in range(4):
        k(f'v_xor_b32 v{40+r}, 0x80000000, v{40+r}')
    for r in range(4):
        k(f'ds_write2_b32 v61, v{36+r}, v{40+r} offset0:{40*(3-r)} offset1:{40*(3-r)+1}')
    k(f'''s_mov_b64 exec, -1
s_waitcnt lgkmcnt(0)''')
    k.stamp()
    k(f'''s_barrier''')
    k.stamp()
    k(f'''v_cmp_gt_u32 vcc, 321, v0
s_and_saveexec_b64 s[44:45], vcc
s_cbranch_execz {END}
v_lshlrev_b32 v1, 3, v0
v_lshlrev_b32 v2, 2, v0''')
    for n in range(8):
        k(f'ds_read_b64 {vr(4+2*n,2)}, v1 offset:{EX0+n*EXP}')
    k(f'''v_mov_b32 v40, 0x3f3504f3
s_mul_i32 s46, s3, {8*1344}
s_add_u32 s47, s46, {3*1344}
s_add_u32 s48, s46, {6*1344}
s_waitcnt lgkmcnt(0)''')
    T = fft8(k, 4, 20, False, 40)
    for k2 in range(8):
        if k2 == 0:
            k(f'v_cvt_pk_bf16_f32 v4, v{T[0]}, v{T[0]+1}')
        else:
            smul(k, T[k2], T[k2], 16 + 2 * k2, 42 + 2 * (k2 & 1))
            k(f'v_cvt_pk_bf16_f32 v{4+k2}, v{T[k2]}, v{T[k2]+1}')
        k(f'buffer_store_dword v{4+k2}, v2, s[8:11], s{46+k2//3} offen offset:{(k2%3)*1344}')
    k.finish(END)
    return k


def gen_k1():
    P = 1040; W0 = 16 * P
    import gen3
    NPF = OPT.get('npf1', 4)
    NG = 256 if NPF else 220
    k = Kern('k1_kernel', NG, 256, 83968 if NPF else 65536, nvgpr=160)
    END = k.label('end'); MAIN = k.label('main'); PREP = k.label('prep')
    k(f'''s_cmp_ge_u32 s2, {NG}
s_cbranch_scc1 {END}
s_cmp_lt_u32 s2, 168
s_cbranch_scc1 {MAIN}
s_load_dwordx2 s[40:41], s[0:1], 80''')
    k.stamp(True)
    if NPF:
        k(f'''s_cmp_lt_u32 s2, 220
s_cbranch_scc1 {PREP}
s_load_dwordx2 s[4:5], s[0:1], 40
v_lshrrev_b32 v1, 6, v0
v_and_b32 v2, 63, v0
v_readfirstlane_b32 s35, v1
s_sub_u32 s33, s2, 220
s_lshl_b32 s33, s33, 2
s_add_u32 s33, s33, s35
s_lshl_b32 s33, s33, 13
v_lshlrev_b32 v3, 7, v2
s_mov_b32 s6, {2048*4096}
s_mov_b32 s7, 0x00020000
s_waitcnt lgkmcnt(0)''')
        for i in range(NPF):
            k(f'buffer_load_ubyte v4, v3, s[4:7], s33 offen\ns_add_u32 s33, s33, {144*8192}')
        k(f's_branch {END}\n{PREP}:')
    gen3.gen_prep(k, 168, END)
    k.nst = 0
    k(f'''{MAIN}:
s_load_dwordx2 s[4:5], s[0:1], 8
s_load_dwordx2 s[16:17], s[0:1], 16
s_load_dwordx2 s[40:41], s[0:1], 80''')
    k.stamp(True)
    tab_srd(k, 12)
    k(f'''s_and_b32 s33, s2, 7
s_lshr_b32 s34, s2, 3
v_lshrrev_b32 v1, 6, v0
v_and_b32 v2, 63, v0
v_readfirstlane_b32 s35, v1
v_lshlrev_b32 v3, 4, v2
s_movk_i32 s38, 0x2000
s_movk_i32 s39, 0x3000
v_and_b32 v4, 15, v2
v_lshrrev_b32 v5, 4, v2''')
    for i in range(8):
        k(f'buffer_load_dwordx4 {vr(96+4*i,4)}, v3, s[12:15], s{38+i//4} offen offset:{(i%4)*1024}')
    k(f'''v_mul_u32_u24 v6, {16*8*1344}, v4
v_lshl_add_u32 v6, v5, 4, v6
s_lshl_b32 s36, s35, 5
s_add_u32 s36, s36, s33
s_mul_i32 s36, s36, 1344
s_lshl_b32 s37, s34, 6
s_add_u32 s36, s36, s37
s_add_u32 s42, s36, {8*1344}
s_add_u32 s43, s36, {16*1344}
s_add_u32 s44, s36, {24*1344}
v_and_b32 v7, 1, v5
v_lshrrev_b32 v8, 1, v5
v_lshl_add_u32 v9, v4, 4, v7
v_mul_u32_u24 v9, {8*642}, v9
v_lshl_add_u32 v9, v8, 4, v9
s_lshl_b32 s45, s35, 5
s_add_u32 s45, s45, s33
s_mul_i32 s45, s45, 642
s_lshl_b32 s37, s34, 5
s_add_u32 s45, s45, s37
s_add_u32 s46, s45, {16*642}
s_waitcnt lgkmcnt(0)''')
    srd_from(k, 4, 4, 5, 0, 2048 * 642)
    srd_from(k, 16, 16, 17, 0, 2048 * 642)
    srd_from(k, 8, 40, 41, WS_T, TU_BYTES)
    srd_from(k, 20, 40, 41, WS_U, TU_BYTES)
    so = ['s36', 's42', 's43', 's44']
    for i in range(4):
        k(f'buffer_load_dwordx4 {vr(16+4*i,4)}, v6, s[8:11], {so[i]} offen')
    for i in range(2):
        k(f'buffer_load_dwordx4 {vr(32+8*i,4)}, v9, s[4:7], s{45+i} offen')
        k(f'buffer_load_dwordx4 {vr(36+8*i,4)}, v9, s[16:19], s{45+i} offen')
    k(f'''v_mul_u32_u24 v10, {4*P}, v5
v_lshl_add_u32 v10, v4, 2, v10
s_lshl_b32 s37, s35, 8
v_add_u32 v10, s37, v10
v_mul_u32_u24 v11, {8*P}, v8
v_lshl_add_u32 v11, v7, 6, v11
v_lshl_add_u32 v11, v4, 2, v11
v_add_u32 v11, s37, v11
v_lshlrev_b32 v12, 6, v4
v_lshl_add_u32 v12, v5, 4, v12
s_mul_i32 s37, s35, {4*P}
v_add_u32 v12, s37, v12
s_mov_b32 s47, 0x05040100
s_mov_b32 s48, 0x07060302''')
    for i in range(4):
        k(f's_waitcnt vmcnt({7-i})')
        for j in range(4):
            k(f'ds_write_b32 v10, v{16+4*i+j} offset:{j*P+64*i}')
    k.stamp()
    for i in range(2):
        k(f's_waitcnt vmcnt({2-2*i})')
        for j in range(4):
            k(f'v_perm_b32 v{48+2*j}, v{36+8*i+j}, v{32+8*i+j}, s47')
            k(f'v_perm_b32 v{49+2*j}, v{36+8*i+j}, v{32+8*i+j}, s48')
        for j in range(8):
            k(f'ds_write_b32 v11, v{48+j} offset:{W0+j*P+128*i}')
    k('s_waitcnt lgkmcnt(0)')
    k.stamp()
    k('s_barrier')
    k.stamp()
    for c in range(4):
        k(f'ds_read_b128 {vr(16+4*c,4)}, v12 offset:{c*P}')
    for c in range(4):
        k(f'ds_read_b128 {vr(32+4*c,4)}, v12 offset:{W0+c*P}')
    for c in range(4):
        k(f's_waitcnt lgkmcnt({7-c})')
        k(f'{MFMA} {vr(48+8*c,4)}, {vr(16+4*c,4)}, v[96:99], 0')
        k(f'{MFMA} {vr(52+8*c,4)}, {vr(16+4*c,4)}, v[100:103], 0')

    def pack(c, re, im):
        k(f'''v_cvt_pk_bf16_f32 v{16+4*c}, v{re}, v{re+1}
v_cvt_pk_bf16_f32 v{17+4*c}, v{re+2}, v{re+3}
v_cvt_pk_bf16_f32 v{18+4*c}, v{im}, v{im+1}
v_cvt_pk_bf16_f32 v{19+4*c}, v{im+2}, v{im+3}''')
    for c in range(4):
        cmul_planar(k, 48 + 8 * c, 52 + 8 * c, 104, 108, 80, 84, 88)
        pack(c, 80, 84)
        k(f'{MFMA} {vr(48+8*c,4)}, v[112:115], {vr(16+4*c,4)}, 0')
        k(f'{MFMA} {vr(52+8*c,4)}, v[116:119], {vr(16+4*c,4)}, 0')
    k('s_waitcnt lgkmcnt(0)')
    for c in range(4):
        for r in range(4):
            k(f'v_lshlrev_b32 v{128+r}, 16, v{32+4*c+r}\nv_and_b32 v{132+r}, 0xffff0000, v{32+4*c+r}')
        cmul_planar(k, 48 + 8 * c, 52 + 8 * c, 128, 132, 80, 84, 88)
        pack(c, 80, 84)
        k(f'{MFMA} {vr(48+8*c,4)}, {vr(16+4*c,4)}, v[120:123], 0')
        k(f'{MFMA} {vr(52+8*c,4)}, {vr(16+4*c,4)}, v[124:127], 0')
    for c in range(4):
        cmul_planar(k, 48 + 8 * c, 52 + 8 * c, 104, 108, 80, 84, 88, conj=True)
        pack(c, 80, 84)
        k(f'{MFMA} {vr(48+8*c,4)}, v[120:123], {vr(16+4*c,4)}, 0')
        k(f'{MFMA} {vr(52+8*c,4)}, v[124:127], {vr(16+4*c,4)}, 0')
    for c in range(4):
        for r in range(4):
            k(f'v_cvt_pk_bf16_f32 v{16+4*c+r}, v{48+8*c+r}, v{52+8*c+r}')
        k(f'ds_write_b128 v12, {vr(16+4*c,4)} offset:{c*P}')
    k('s_waitcnt lgkmcnt(0)')
    k.stamp()
    k('s_barrier')
    k.stamp()
    for i in range(4):
        for j in range(4):
            k(f'ds_read_b32 v{16+4*i+j}, v10 offset:{j*P+64*i}')
    for i in range(4):
        k(f's_waitcnt lgkmcnt({12-4*i})')
        k(f'buffer_store_dwordx4 {vr(16+4*i,4)}, v6, s[20:23], {so[i]} offen')
    k.finish(END)
    return k


def gen_k2a():
    RP = 144; NP = 11 * RP + 16
    k = Kern('k2a_kernel', 256, 512, 8 * NP, nvgpr=128)
    END = k.label('end'); SKIP = k.label('skip')
    k(f'''s_cmp_ge_u32 s2, 256
s_cbranch_scc1 {END}
s_load_dwordx2 s[4:5], s[0:1], 0
s_load_dwordx2 s[40:41], s[0:1], 80
s_load_dwordx2 s[68:69], s[0:1], 40''')
    k.stamp(True)
    tab_srd(k, 12)
    k(f'''s_and_b32 s3, s2, 7
s_lshl_b32 s3, s3, 5
s_lshr_b32 s33, s2, 3
s_add_u32 s3, s3, s33
s_lshl_b32 s33, s3, 6
s_add_u32 s33, s33, 32768
s_load_dwordx16 s[16:31], s[12:13], s33
v_lshrrev_b32 v1, 6, v0
v_and_b32 v2, 63, v0
v_readfirstlane_b32 s34, v1
v_lshlrev_b32 v3, 4, v2
s_movk_i32 s38, 0x4000
s_movk_i32 s39, 0x5000
s_movk_i32 s49, 0x6000
s_mul_i32 s46, s3, {8*1344}
s_add_u32 s47, s46, {3*1344}
s_add_u32 s48, s46, {6*1344}
v_lshlrev_b32 v60, 2, v0
s_lshl_b32 s35, s34, 8
s_add_u32 s35, s35, s3
s_mul_i32 s35, s35, 1280
v_and_b32 v50, 15, v2
v_lshrrev_b32 v51, 4, v2
v_lshlrev_b32 v52, 6, v50
v_lshl_add_u32 v52, v51, 4, v52
v_add_u32 v53, 1024, v52
v_mov_b32 v54, 0x7fffffff
v_cmp_gt_u32 vcc, 4, v50
v_cndmask_b32 v53, v54, v53, vcc
v_lshlrev_b32 v112, 11, v50
v_lshl_add_u32 v112, v51, 8, v112
v_add_u32 v113, 32768, v112
v_cndmask_b32 v113, v54, v113, vcc
s_lshl_b32 s59, s34, 3
s_lshr_b32 s60, s3, 5
s_add_u32 s59, s59, s60
s_mul_i32 s59, s59, 40960
s_and_b32 s60, s3, 4
s_lshl_b32 s60, s60, 8
s_add_u32 s59, s59, s60
s_and_b32 s60, s3, 24
s_lshl_b32 s60, s60, 3
s_add_u32 s59, s59, s60
s_and_b32 s60, s3, 3
s_lshl_b32 s60, s60, 4
s_add_u32 s59, s59, s60
s_waitcnt lgkmcnt(0)''')
    srd_from(k, 4, 4, 5, 0, X_BYTES)
    srd_from(k, 8, 40, 41, WS_U, TU_BYTES)
    srd_from(k, 52, 40, 41, WS_H, X_BYTES)
    srd_from(k, 60, 40, 41, WS_HN, X_BYTES)
    for k2 in range(8):
        k(f'buffer_load_dword v{4+k2}, v60, s[8:11], s{46+k2//3} offen offset:{(k2%3)*1344}')
    for i in range(10):
        so = ['s38', 's39', 's49'][i // 4]
        k(f'buffer_load_dwordx4 {vr(64+4*i,4)}, v3, s[12:15], {so} offen offset:{(i%4)*1024}')
    k(f'''buffer_load_dwordx4 v[104:107], v52, s[4:7], s35 offen
buffer_load_dwordx4 v[108:111], v53, s[4:7], s35 offen''')
    k(f'''v_mul_u32_u24 v55, 3277, v0
v_lshrrev_b32 v55, 16, v55
v_mul_u32_u24 v56, 20, v55
v_sub_u32 v56, v0, v56
v_mul_u32_u24 v57, {RP}, v56
v_lshl_add_u32 v57, v55, 2, v57
v_mov_b32 v58, {11*RP}
v_cmp_ge_u32 vcc, 10, v56
v_cndmask_b32 v57, v58, v57, vcc
v_sub_u32 v59, 20, v56
v_mul_u32_u24 v59, {RP}, v59
v_sub_u32 v61, 31, v55
v_lshl_add_u32 v59, v61, 2, v59
v_cmp_le_u32 vcc, 10, v56
v_cndmask_b32 v59, v58, v59, vcc
v_sub_u32 v61, 32, v55
v_lshlrev_b32 v61, 2, v61
v_cmp_eq_u32 vcc, 0, v56
v_cndmask_b32 v59, v59, v61, vcc
v_cmp_eq_u32 vcc, 0, v0
v_cndmask_b32 v59, v59, v58, vcc
v_cmp_eq_u32 vcc, 320, v0
v_cndmask_b32 v59, v59, v58, vcc
v_mov_b32 v40, 0x3f3504f3
v_min_u32 v62, 10, v50
v_mul_u32_u24 v62, {RP}, v62
v_lshl_add_u32 v62, v51, 4, v62
s_mul_i32 s42, s34, {NP}
v_add_u32 v62, s42, v62
v_and_b32 v63, 1, v2
v_lshlrev_b32 v63, 31, v63
v_or_b32 v63, 1.0, v63
v_cmp_gt_u32 vcc, 321, v0
s_and_saveexec_b64 s[44:45], vcc
s_waitcnt vmcnt(12)''')
    k.stamp()
    k(f'''s_cbranch_execz {SKIP}''')
    for k2 in range(8):
        k(f'v_lshlrev_b32 v{20+2*k2}, 16, v{4+k2}\nv_and_b32 v{21+2*k2}, 0xffff0000, v{4+k2}')
    for k2 in range(8):
        if k2 == 0:
            k('v_mov_b32 v4, v20\nv_mov_b32 v5, v21')
        else:
            smul(k, 4 + 2 * k2, 20 + 2 * k2, 16 + 2 * k2, 42 + 2 * (k2 & 1), conj=True)
    T = fft8(k, 4, 20, True, 40)
    for n in range(8):
        k(f'''v_cvt_pk_bf16_f32 v{4+2*n}, v{T[n]}, v{T[n]+1}
v_cvt_pk_bf16_f32 v{5+2*n}, v{T[n]}, -v{T[n]+1}
ds_write_b32 v57, v{4+2*n} offset:{n*NP}
ds_write_b32 v59, v{5+2*n} offset:{n*NP}''')
    k(f'''{SKIP}:
s_mov_b64 exec, -1
s_waitcnt lgkmcnt(0)''')
    k.stamp()
    k(f'''s_barrier''')
    k.stamp()
    k(f'''ds_read_b128 v[4:7], v62
ds_read_b128 v[8:11], v62 offset:64''')
    npf = 0
    if OPT.get('pf2a'):
        npf = 1
        k(f'''s_and_b32 s72, s2, 6
s_lshl_b32 s72, s72, 4
s_lshr_b32 s73, s2, 3
s_add_u32 s72, s72, s73
s_lshl_b32 s72, s72, 3
s_add_u32 s72, s72, s34
s_lshl_b32 s72, s72, 13
s_mov_b32 s70, {2048*4096}
s_mov_b32 s71, 0x00020000
v_lshlrev_b32 v114, 7, v2
buffer_load_ubyte v115, v114, s[68:71], s72 offen''')
    k(f'''s_waitcnt vmcnt({2+npf}) lgkmcnt(1)''')
    for u in range(2):
        if u == 1: k('s_waitcnt lgkmcnt(0)')
        for t in range(2):
            k(f'{MFMA} {vr(12+16*u+8*t,4)}, {vr(4+4*u,4)}, {vr(64+8*t,4)}, 0')
            k(f'{MFMA} {vr(16+16*u+8*t,4)}, {vr(4+4*u,4)}, {vr(68+8*t,4)}, 0')
    for i in range(0, 16, 2):
        k(f'v_pk_fma_f32 {vr(12+i,2)}, {vr(28+i,2)}, v[62:63], {vr(12+i,2)} op_sel:[0,1,0] op_sel_hi:[1,1,1]')
    for t in range(2):
        cmul_planar(k, 12 + 8 * t, 16 + 8 * t, 80 + 8 * t, 84 + 8 * t, 28, 32, 36)
        k(f'''v_cvt_pk_bf16_f32 v{4+4*t}, v28, v29
v_cvt_pk_bf16_f32 v{5+4*t}, v30, v31
v_cvt_pk_bf16_f32 v{6+4*t}, v32, v33
v_cvt_pk_bf16_f32 v{7+4*t}, v34, v35''')
    for v in range(2):
        for t in range(2):
            k(f'{MFMA} {vr(12+8*v+4*t,4)}, {vr(4+4*t,4)}, {vr(96+4*v,4)}, 0')
    k.stamp()
    k(f's_waitcnt vmcnt({npf})')
    k.stamp()
    for i in range(8):
        k(f'v_lshlrev_b32 v{28+2*i}, 16, v{104+i}\nv_and_b32 v{29+2*i}, 0xffff0000, v{104+i}')
    for i in range(8):
        k(f'v_cvt_pk_bf16_f32 v{4+i}, v{12+2*i}, v{13+2*i}')
    for i in range(8):
        k(f'v_lshlrev_b32 v{12+2*i}, 16, v{4+i}\nv_and_b32 v{13+2*i}, 0xffff0000, v{4+i}')
    for i in range(8):
        k(f'v_pk_add_f32 {vr(12+2*i,2)}, {vr(12+2*i,2)}, {vr(28+2*i,2)}')
    for i in range(8):
        k(f'v_cvt_pk_bf16_f32 v{4+i}, v{12+2*i}, v{13+2*i}')
    k('''buffer_store_dwordx4 v[4:7], v52, s[52:55], s35 offen
buffer_store_dwordx4 v[8:11], v53, s[52:55], s35 offen''')
    for i in range(8):
        k(f'v_lshlrev_b32 v{12+2*i}, 16, v{4+i}\nv_and_b32 v{13+2*i}, 0xffff0000, v{4+i}')
    k('''v_pk_add_f32 v[28:29], v[12:13], v[14:15]
v_pk_mul_f32 v[30:31], v[12:13], v[12:13]
v_pk_add_f32 v[32:33], v[16:17], v[18:19]
v_pk_mul_f32 v[34:35], v[14:15], v[14:15]''')
    for i in range(2, 8):
        k(f'v_pk_fma_f32 {vr(30+4*(i&1),2)}, {vr(12+2*i,2)}, {vr(12+2*i,2)}, {vr(30+4*(i&1),2)}')
        if i >= 4:
            k(f'v_pk_add_f32 {vr(28+4*(i&1),2)}, {vr(28+4*(i&1),2)}, {vr(12+2*i,2)}')
    k('''v_pk_add_f32 v[28:29], v[28:29], v[32:33]
v_pk_add_f32 v[30:31], v[30:31], v[34:35]
v_add_f32 v28, v28, v29
v_add_f32 v30, v30, v31''')
    wave_reduce2(k, 28, 30, 36, 37)
    ln_stats(k, 36, 37, 640, 28, 30, 32)
    ln_apply(k, 12, 16, 28, 30, 40)
    k(f'''buffer_store_dwordx4 v[40:43], v112, s[60:63], s59 offen
buffer_store_dwordx4 v[44:47], v113, s[60:63], s59 offen''')
    k.finish(END)
    return k
```

```python
import sys
from asmlib import *
from tables import build_tab
import gen_fft, gen3, gen4, gen5
opt = {}
for a in sys.argv[2:]:
    if a == 'prof': Kern.prof = True
    elif '=' in a: opt[a.split('=')[0]] = int(a.split('=')[1])
    else: opt[a] = 1
gen_fft.OPT = opt
g3 = {3: gen3, 4: gen4, 5: gen5}[opt.get('v3', 5)]
ks = [gen_fft.gen_k0(), gen_fft.gen_k1(), gen_fft.gen_k2a(), gen3.gen_k2(opt), g3.gen_k3(opt), gen3.gen_k4(opt)]
if opt.get('dup3'):
    Kern.count = 5
    ks = ks[:5] + [g3.gen_k3(dict(opt, name3='k3b_kernel'))]
s = build_file(ks, {'tab': build_tab()})
open(sys.argv[1], 'w').write(s)
print(len(s))
```

```python
from asmlib import *
from gen_fft import vr, sr, srd_from, MFMA, WS_H, WS_HN, X_BYTES

WS_Z1 = 0xC00000
WS_Z2 = 0x1000000
WS_A = 0x1400000
WS_ST = 0x1800000
WS_WI = 0x1900000
WS_WO = 0x1C00000
Z1_BYTES = 64 * 54 * 1024
Z2_BYTES = 8 * 64 * 7168
ST_BYTES = 2048 * 8
WI_BYTES = 16 * 140 * 1024
WO_BYTES = 8 * 135 * 1024
MF32 = 'v_mfma_f32_32x32x16_bf16'


def ar(a, n=1):
    return f'a{a}' if n == 1 else f'a[{a}:{a+n-1}]'


def fbits(x):
    return '0x%08x' % np.float32(x).view(np.uint32)


class Cnt:
    def __init__(self, name, maxv):
        self.name = name; self.maxv = maxv; self.tags = []; self.done = 0

    def issue(self, tag):
        self.tags.append(tag)

    def wait(self, tag):
        idx = max([i for i, t in enumerate(self.tags) if t == tag] + [-1])
        if idx < self.done: return None
        n = len(self.tags) - 1 - idx
        self.done = idx + 1
        if n > self.maxv: return None
        return f's_waitcnt {self.name}({n})'


def interleave(k, mf, fill, per):
    fi = 0
    for i, m in enumerate(mf):
        k(m)
        n = per[i] if isinstance(per, list) else per
        for _ in range(n):
            if fi < len(fill):
                f = fill[fi]; fi += 1
                f() if callable(f) else k(f)
    while fi < len(fill):
        f = fill[fi]; fi += 1
        f() if callable(f) else k(f)


def weave(k, mf, fill, vmem):
    n = len(mf); F = len(fill); fi = 0
    for i, m in enumerate(mf):
        m() if callable(m) else k(m)
        for f in vmem.get(i, []): f() if callable(f) else k(f)
        tgt = (F * (i + 1) + n - 1) // n
        while fi < tgt:
            f = fill[fi]; fi += 1
            f() if callable(f) else k(f)


C0 = -2.0 * 0.7978845608028654 * 1.4426950408889634
C1 = C0 * 0.044715


def gelu_pairs(k, src, n, out, t, vc):
    x = src; p = t
    for i in range(0, n, 2):
        k(f'v_cvt_pk_bf16_f32 v{out+i//2}, v{x+i}, v{x+i+1}')
    for i in range(0, n, 2):
        k(f'v_lshlrev_b32 v{x+i}, 16, v{out+i//2}\nv_and_b32 v{x+i+1}, 0xffff0000, v{out+i//2}')
    for i in range(0, n, 2):
        k(f'v_pk_mul_f32 {vr(p+i,2)}, {vr(x+i,2)}, {vr(x+i,2)}')
    for i in range(0, n, 2):
        k(f'v_pk_fma_f32 {vr(p+i,2)}, {vr(p+i,2)}, {vr(vc,2)}, {vr(vc,2)} op_sel:[0,0,1] op_sel_hi:[1,0,1]')
    for i in range(0, n, 2):
        k(f'v_pk_mul_f32 {vr(p+i,2)}, {vr(p+i,2)}, {vr(x+i,2)}')
    for i in range(n):
        k(f'v_exp_f32 v{p+i}, v{p+i}')
    for i in range(0, n, 2):
        k(f'v_pk_add_f32 {vr(p+i,2)}, {vr(p+i,2)}, 1.0 op_sel_hi:[1,0]')
    for i in range(n):
        k(f'v_rcp_f32 v{p+i}, v{p+i}')
    for i in range(0, n, 2):
        k(f'v_pk_mul_f32 {vr(p+i,2)}, {vr(p+i,2)}, {vr(x+i,2)}')
    for i in range(0, n, 2):
        k(f'v_cvt_pk_bf16_f32 v{out+i//2}, v{p+i}, v{p+i+1}')


def xcd_map_8x4(k):
    k('''s_and_b32 s33, s2, 7
s_lshr_b32 s34, s2, 3
s_lshr_b32 s35, s33, 1
s_lshl_b32 s35, s35, 3
s_and_b32 s36, s34, 7
s_add_u32 s35, s35, s36
s_and_b32 s36, s33, 1
s_lshl_b32 s36, s36, 2
s_lshr_b32 s37, s34, 3
s_add_u32 s36, s36, s37''')


def gen_k2(opt={}):
    k = Kern('k2_kernel', 256, 256, 143360, nvgpr=192, nagpr=160)
    END = k.label('end'); Z2 = k.label('z2')
    k(f'''s_cmp_ge_u32 s2, 256
s_cbranch_scc1 {END}
s_load_dwordx2 s[40:41], s[0:1], 80''')
    k.stamp(True)
    k(f'''s_and_b32 s33, s2, 7
s_lshr_b32 s34, s2, 3
s_lshr_b32 s35, s33, 1
s_lshl_b32 s35, s35, 2
s_and_b32 s36, s34, 3
s_add_u32 s35, s35, s36
s_and_b32 s36, s33, 1
s_lshr_b32 s37, s34, 2
v_lshrrev_b32 v1, 6, v0
v_and_b32 v2, 63, v0
v_readfirstlane_b32 s38, v1
v_and_b32 v4, 15, v2
v_lshrrev_b32 v5, 4, v2
v_lshlrev_b32 v120, 4, v2
v_add_u32 v121, 4096, v120
v_add_u32 v129, {8*7168}, v120
v_add_u32 v130, {16*7168}, v120''')
    k(f'''s_lshl_b32 s39, s35, 2
s_add_u32 s39, s39, s38
s_mul_i32 s44, s39, 40960
s_lshl_b32 s45, s36, 3
s_add_u32 s45, s45, s37
s_mul_i32 s45, s45, {140*1024}
s_mul_i32 s47, s38, 7168
s_add_u32 s45, s45, s47
s_waitcnt lgkmcnt(0)''')
    srd_from(k, 4, 40, 41, WS_WI, WI_BYTES)
    srd_from(k, 8, 40, 41, WS_HN, X_BYTES)
    srd_from(k, 12, 40, 41, WS_Z1, Z1_BYTES)
    srd_from(k, 16, 40, 41, WS_Z2, Z2_BYTES)
    srd_from(k, 20, 40, 41, WS_ST, ST_BYTES)

    def issue_ops(p):
        ops = []
        for i in range(7):
            s = ''
            if i % 4 == 0: s = f's_add_u32 m0, s47, {p*4*7168+1024*i}\n'
            s += f'buffer_load_dwordx4 v{120+i//4}, s[4:7], s45 offen offset:{1024*(i%4)} lds'
            if i == 6: s += f'\ns_add_u32 s45, s45, {4*7168}'
            ops.append(s)
        for i in range(8):
            s = f'buffer_load_dwordx4 {ar(32*p+4*i,4)}, v{120+i//4}, s[8:11], s44 offen offset:{1024*(i%4)}'
            if i == 7: s += '\ns_add_u32 s44, s44, 8192'
            ops.append(s)
        return ops
    for p in range(2):
        for o in issue_ops(p): k(o)
    k(f'''v_mov_b32 v132, {fbits(C1)}
v_mov_b32 v133, {fbits(C0)}
s_cmp_eq_u32 s36, 1
s_cbranch_scc1 {Z2}''')

    def rdB(kk, buf, n):
        base = [120, 129, 130][kk // 8]; off = (kk % 8) * 7168
        k(f'ds_read_b128 {vr(buf+4*n,4)}, v{base} offset:{off+1024*n}')

    def mainloop(z2):
        waits = [15, 15, 15, 15, 0]
        for p in range(5):
            pend = issue_ops(p + 2) if p + 2 < 5 else []
            if p == 0: k.nst = 1; k.stamp()
            k(f's_waitcnt vmcnt({waits[p]})\ns_barrier')
            k.stamp()
            for n in range(7): rdB(4 * p, 8, n)
            for q in range(4):
                kk = 4 * p + q
                buf = 8 + 28 * (q & 1)
                for n in range(7):
                    rem = 6 if q < 3 else (6 - n)
                    k(f's_waitcnt lgkmcnt({rem})')
                    for u in range(2):
                        acc = vr(64 + (u * 7 + n) * 4, 4)
                        c = '0' if kk == 0 else acc
                        if z2:
                            k(f'{MFMA} {acc}, {ar(8*kk+4*u,4)}, {vr(buf+4*n,4)}, {c}')
                        else:
                            k(f'{MFMA} {acc}, {vr(buf+4*n,4)}, {ar(8*kk+4*u,4)}, {c}')
                    if q < 3:
                        rdB(kk + 1, 8 + 28 * ((q + 1) & 1), n)
                    if pend and ((q * 7 + n) % 2 == 0 or (q == 0 and n == 1)): k(pend.pop(0))
            assert not pend

    mainloop(False)
    k.stamp()
    L5 = k.label('l5')
    k(f'''s_mul_i32 s42, s39, 54
s_mul_i32 s43, s37, 7
s_add_u32 s42, s42, s43
s_lshl_b32 s42, s42, 10
v_lshrrev_b32 v6, 1, v5
v_and_b32 v7, 1, v5
v_lshl_add_u32 v3, v6, 4, v4
v_lshl_add_u32 v3, v7, 5, v3
v_lshlrev_b32 v3, 4, v3
v_add_u32 v6, 4096, v3''')
    for n in range(7):
        if n == 5:
            k(f's_cmp_eq_u32 s37, 7\ns_cbranch_scc1 {END}')
        o = 8 + 4 * (n & 1)
        for u in range(2):
            gelu_pairs(k, 64 + (u * 7 + n) * 4, 4, o + 2 * u, 16 + 8 * u, 132)
        k(f'v_permlane32_swap_b32 v{o}, v{o+2}\nv_permlane32_swap_b32 v{o+1}, v{o+3}')
        k(f'buffer_store_dwordx4 {vr(o,4)}, v{3 if n < 4 else 6}, s[12:15], s42 offen offset:{1024*(n%4)}')
    k(f's_branch {END}')
    k(f'{Z2}:')
    mainloop(True)
    k.stamp()
    k(f'''s_lshl_b32 s43, s37, 6
s_add_u32 s43, s43, s39
s_mul_i32 s43, s43, 7168
s_lshl_b32 s44, s39, 8
v_lshrrev_b32 v6, 1, v5
v_and_b32 v7, 1, v5
v_lshlrev_b32 v7, 9, v7
v_lshl_add_u32 v7, v4, 4, v7
v_lshl_add_u32 v3, v6, 10, v7
v_lshl_add_u32 v7, v6, 8, v7
v_add_u32 v6, 4096, v3
v_add_u32 v7, 4096, v7''')
    S = 136; Q = 144
    for i in range(16): k(f'v_mov_b32 v{136+i}, 0')
    for n in range(7):
        if n == 5:
            k(f's_cmp_eq_u32 s37, 7\ns_cbranch_scc1 {L5}')
        o = 8 + 4 * (n & 1)
        for u in range(2):
            gelu_pairs(k, 64 + (u * 7 + n) * 4, 4, o + 2 * u, 16 + 8 * u, 132)
        if n < 6:
            off = (n >> 1) * 2048 + (n & 1) * 256
            k(f'buffer_store_dwordx4 {vr(o,4)}, v{3 if off < 4096 else 6}, s[16:19], s43 offen offset:{off%4096}')
        else:
            k(f'buffer_store_dwordx4 {vr(o,4)}, v7, s[16:19], s43 offen offset:2048')
        for i in range(4):
            k(f'v_lshlrev_b32 v{32+2*i}, 16, v{o+i}\nv_and_b32 v{33+2*i}, 0xffff0000, v{o+i}')
        for i in range(4):
            k(f'v_pk_add_f32 {vr(S+2*i,2)}, {vr(S+2*i,2)}, {vr(32+2*i,2)}')
            k(f'v_pk_fma_f32 {vr(Q+2*i,2)}, {vr(32+2*i,2)}, {vr(32+2*i,2)}, {vr(Q+2*i,2)}')
    k(f'{L5}:')
    V = [0] * 16
    for e in range(8):
        V[2 * e] = S + e; V[2 * e + 1] = Q + e
    for i in range(8):
        k(f'v_add_f32_dpp v{V[i]}, v{V[i]}, v{V[i]} row_ror:8 row_mask:0xf bank_mask:0x3')
    for i in range(8):
        k(f'v_add_f32_dpp v{V[i]}, v{V[i+8]}, v{V[i+8]} row_ror:8 row_mask:0xf bank_mask:0xc')
    for i in range(4):
        k(f'v_add_f32_dpp v{V[i]}, v{V[i]}, v{V[i]} row_half_mirror row_mask:0xf bank_mask:0x5')
    for i in range(4):
        k(f'v_add_f32_dpp v{V[i]}, v{V[i+4]}, v{V[i+4]} row_half_mirror row_mask:0xf bank_mask:0xa')
    for m in ('quad_perm:[1,0,3,2]', 'quad_perm:[2,3,0,1]'):
        for i in range(4):
            k(f'v_add_f32_dpp v{V[i]}, v{V[i]}, v{V[i]} {m} row_mask:0xf bank_mask:0xf')
    k(f'''s_mov_b32 vcc_lo, 0xaaaaaaaa
s_mov_b32 vcc_hi, 0xaaaaaaaa
v_cndmask_b32 v8, v{V[0]}, v{V[1]}, vcc
v_cndmask_b32 v9, v{V[2]}, v{V[3]}, vcc
s_mov_b32 vcc_lo, 0xcccccccc
s_mov_b32 vcc_hi, 0xcccccccc
v_cndmask_b32 v8, v8, v9, vcc
v_lshlrev_b32 v3, 2, v2
buffer_atomic_add_f32 v8, v3, s[20:23], s44 offen sc1''')
    k.finish(END)
    return k


def gen_k3(opt={}):
    W0 = 12288
    k = Kern(opt.get('name3', 'k3_kernel'), 256, 256, W0 + 131072, nvgpr=128, nagpr=248)
    END = k.label('end')
    D = opt.get('D3', 3)
    k(f'''s_cmp_ge_u32 s2, 256
s_cbranch_scc1 {END}
s_load_dwordx2 s[4:5], s[0:1], 40
s_load_dwordx2 s[24:25], s[0:1], 48
s_load_dwordx2 s[40:41], s[0:1], 80''')
    k.stamp(True)
    xcd_map_8x4(k)
    k(f'''v_lshrrev_b32 v1, 6, v0
v_and_b32 v2, 63, v0
v_readfirstlane_b32 s38, v1
v_lshlrev_b32 v3, 4, v2
v_add_u32 v4, 4096, v3
v_lshrrev_b32 v8, 3, v2
v_lshrrev_b32 v9, 2, v8
v_and_b32 v10, 3, v8
v_lshl_add_u32 v9, v9, 3, v10
v_lshlrev_b32 v9, 12, v9
v_lshrrev_b32 v10, 1, v8
v_and_b32 v11, 7, v2
v_xor_b32 v10, v10, v11
v_lshl_add_u32 v5, v10, 4, v9
v_xor_b32 v6, 64, v5
v_lshlrev_b32 v7, 6, v0
s_lshl_b32 s48, s35, 18
s_lshl_b32 s42, s38, 10
s_add_u32 s48, s48, s42''')
    for i in range(1, 8):
        ip = i & 3
        k(f's_add_u32 s{48+i}, s48, {4096*(16*(ip&1)+4*(ip>>1)+32*(i>>2))}')
    k(f'''s_lshl_b32 s56, s36, 6
s_lshl_b32 s42, s38, 4
s_add_u32 s56, s56, s42
s_mul_i32 s56, s56, 7168
s_lshl_b32 s47, s38, 15
s_add_u32 s47, s47, {W0}
s_sub_u32 s46, s47, 1024
s_mov_b32 s57, 0xffff0000
s_waitcnt lgkmcnt(0)''')
    srd_from(k, 4, 4, 5, 0, 2048 * 4096)
    srd_from(k, 8, 40, 41, WS_Z2, Z2_BYTES)
    srd_from(k, 20, 40, 41, WS_ST, ST_BYTES)
    vm = Cnt('vmcnt', 63); lg = Cnt('lgkmcnt', 15)
    for i in range(4):
        k(f'buffer_load_dwordx4 {vr(44+4*i,4)}, v7, s[20:23], 0 offen offset:{16*i}'); vm.issue('st')
    XR = 16; MR = 36; RAW = 44; RR = 60; SC = 76; TM = 108

    def dma_ops(Hh):
        ops = []
        J = Hh // 2
        for i in range(4 * (Hh & 1), 4 * (Hh & 1) + 4):
            def f(i=i):
                if opt.get('nodma'): return
                k(f's_add_u32 m0, s46, {(J%4)*8192+1024*i-128*J+1024}')
                k(f'buffer_load_dwordx4 v{5+(i&1)}, s[4:7], s{48+i} offen offset:{128*J} lds'); vm.issue(f'w{J}')
            ops.append(f)
        return ops

    NS3 = D + 1
    def z_ops(j):
        st = j % NS3
        ops = []
        for n in (0, 2, 4, 6, 1, 3, 5):
            def f(n=n):
                if opt.get('noz'): return
                dst = ar(128 + 24 * st + 4 * n, 4) if n < 6 else vr(XR + 4 * st, 4)
                k(f'buffer_load_dwordx4 {dst}, v{3+n//4}, s[8:11], s56 offen offset:{1024*(n%4)}'); vm.issue(f'z{j}')
                if n == 5: k('s_add_u32 s56, s56, 7168')
            ops.append(f)
        return ops
    for o in dma_ops(0) + dma_ops(1) + z_ops(0): o()
    srd_from(k, 12, 40, 41, WS_Z1, Z1_BYTES)
    srd_from(k, 16, 40, 41, WS_A, Z1_BYTES)
    srd_from(k, 24, 24, 25, 0, 4096)
    k(f'''v_and_b32 v14, 31, v2
v_lshrrev_b32 v15, 5, v2
v_lshrrev_b32 v12, 1, v14
v_and_b32 v12, 7, v12
v_xor_b32 v12, v12, v15
v_lshlrev_b32 v12, 4, v12
v_lshl_add_u32 v12, v14, 7, v12
v_add_u32 v8, s47, v12
v_xor_b32 v9, 32, v8
v_xor_b32 v10, 64, v8
v_xor_b32 v11, 96, v8
s_lshl_b32 s42, s38, 11
v_lshlrev_b32 v12, 5, v15
v_add_u32 v12, s42, v12
v_lshrrev_b32 v13, 4, v2
v_and_b32 v13, 1, v13
v_lshl_add_u32 v13, v13, 1, v15
v_lshlrev_b32 v13, 4, v13
s_lshl_b32 s42, s38, 10
v_add_u32 v13, s42, v13''')
    inv = fbits(1.0 / 864)
    k.stamp()
    k(vm.wait('st'))
    k.stamp()
    b = 44
    k(f'v_mov_b32 v60, {inv}')
    for i in range(8):
        k(f'v_pk_mul_f32 {vr(b+2*i,2)}, {vr(b+2*i,2)}, v[60:61] op_sel_hi:[1,0]')
    for i in range(8):
        k(f'v_fma_f32 v{b+1+2*i}, -v{b+2*i}, v{b+2*i}, v{b+1+2*i}')
    for i in range(8):
        k(f'v_max_f32 v{b+1+2*i}, 0, v{b+1+2*i}')
    for i in range(4):
        k(f'v_cvt_pk_bf16_f32 v{64+i}, v{b+4*i}, v{b+2+4*i}')
        k(f'v_cvt_pk_bf16_f32 v{68+i}, v{b+1+4*i}, v{b+3+4*i}')

    def unp():
        for i in range(4):
            k(f'v_lshlrev_b32 v{b+2*i}, 16, v{68+i}\nv_and_b32 v{b+1+2*i}, s57, v{68+i}')

    def pk():
        for i in range(4):
            k(f'v_cvt_pk_bf16_f32 v{68+i}, v{b+2*i}, v{b+1+2*i}')
    unp()
    for i in range(8): k(f'v_add_f32 v{b+i}, 0x3727c5ac, v{b+i}')
    pk(); unp()
    for i in range(8): k(f'v_sqrt_f32 v{b+i}, v{b+i}')
    pk(); unp()
    for i in range(8): k(f'v_rcp_f32 v{b+i}, v{b+i}')
    k(f'''v_lshlrev_b32 v72, 5, v0
v_lshlrev_b32 v73, 4, v0
ds_write_b128 v72, {vr(b,4)}
ds_write_b128 v72, {vr(b+4,4)} offset:16
ds_write_b128 v73, v[64:67] offset:8192''')
    for jj in range(1, D):
        for o in dma_ops(jj + 1) + z_ops(jj): o()
    k('s_waitcnt lgkmcnt(0)')

    def rd_ops(j):
        J = j // 2; jp = j & 1
        ops = []

        def first():
            w = vm.wait(f'w{J}')
            if w: k(w)
        ops.append(first)
        for q in range(2):
            for hh in range(2):
                def f(q=q, hh=hh):
                    k(f'ds_read_b128 {vr(RR+8*q+4*hh,4)}, v12 offset:{128*j+64*q+16*hh}'); lg.issue(f'r{j}_{q}')
                ops.append(f)
            for tt in range(2):
                def f(q=q, tt=tt):
                    k(f'ds_read_b128 {vr(RAW+(tt*2+q)*4,4)}, v{8+2*jp+q} offset:{(J%4)*8192+4096*tt}'); lg.issue(f'w{j}_{q}_{tt}')
                ops.append(f)

        def fm():
            k(f'ds_read_b128 {vr(MR+4*(j&1),4)}, v13 offset:{8192+64*j}'); lg.issue(f'm{j}')
        ops.append(fm)
        return ops

    def sc_ops(j):
        ops = []
        for q in range(2):
            for tt in range(2):
                fr = (tt * 2 + q) * 4

                def w(q=q, tt=tt):
                    x = lg.wait(f'w{j}_{q}_{tt}')
                    if x: k(x)
                ops.append(w)
                for i2 in range(2):
                    a0 = RAW + fr + 2 * i2; a1 = a0 + 1
                    r0 = RR + 8 * q + 4 * i2
                    d0 = SC + 16 * (j & 1) + fr + 2 * i2
                    ops += [f'v_lshlrev_b32 v{TM}, 16, v{a0}', f'v_and_b32 v{TM+1}, s57, v{a0}',
                            f'v_lshlrev_b32 v{TM+2}, 16, v{a1}', f'v_and_b32 v{TM+3}, s57, v{a1}',
                            f'v_mul_f32 v{TM}, v{TM}, v{r0}', f'v_mul_f32 v{TM+1}, v{TM+1}, v{r0+1}',
                            f'v_mul_f32 v{TM+2}, v{TM+2}, v{r0+2}', f'v_mul_f32 v{TM+3}, v{TM+3}, v{r0+3}',
                            f'v_cvt_pk_bf16_f32 v{d0}, v{TM}, v{TM+1}', f'v_cvt_pk_bf16_f32 v{d0+1}, v{TM+2}, v{TM+3}']
        return ops
    ACC = lambda ft, tt: (ft * 2 + tt) * 16
    for o in rd_ops(0) + sc_ops(0):
        o() if callable(o) else k(o)

    def epi_loads():
        k(f'''s_lshl_b32 s42, s35, 1
s_mul_i32 s42, s42, 54
s_mul_i32 s43, s36, 7
s_add_u32 s42, s42, s43
s_lshl_b32 s43, s38, 1
s_add_u32 s42, s42, s43
s_lshl_b32 s42, s42, 10
s_add_u32 s43, s42, {54*1024}
v_and_b32 v112, 15, v2
v_lshrrev_b32 v113, 2, v112
v_and_b32 v112, 3, v112
v_lshl_add_u32 v112, v113, 3, v112
v_lshrrev_b32 v113, 4, v2
v_and_b32 v113, 1, v113
v_lshl_add_u32 v112, v113, 2, v112
v_lshlrev_b32 v112, 1, v112
s_lshl_b32 s44, s35, 7
buffer_load_ushort v114, v112, s[24:27], s44 offen
buffer_load_ushort v115, v112, s[24:27], s44 offen offset:64''')
        vm.issue('e'); vm.issue('e')

    def epi_loads2():
        pass

    for j in range(16):
        st = j % NS3
        if j in (1, 4, 8, 12): k.stamp()
        w = vm.wait(f'z{j}')
        if w: k(w)
        x = lg.wait(f'm{j}')
        if x: k(x)
        mf = []
        for q in range(2):
            for ft in range(4):
                for tt in range(2):
                    acc = ar(ACC(ft, tt), 16)
                    c = '0' if (j == 0 and q == 0) else acc
                    if ft < 3: a = ar(128 + 24 * st + 8 * ft + 4 * q, 4)
                    else: a = vr(XR + 4 * st, 4) if q == 0 else vr(MR + 4 * (j & 1), 4)
                    mf.append(f'{MF32} {acc}, {a}, {vr(SC+16*(j&1)+(tt*2+q)*4,4)}, {c}')
        for i in range(4): k(f'v_permlane16_swap_b32 v{XR+4*st+i}, v{MR+4*(j&1)+i}')
        fill = []
        if j + 1 < 16:
            fill += rd_ops(j + 1)
        if j + 1 < 16: fill += sc_ops(j + 1)
        vmem = {}
        if j + D + 1 < 16:
            for i, o in enumerate(dma_ops(j + D + 1)): vmem[4 * i] = [o]
        if j + D < 16:
            for i, o in enumerate(z_ops(j + D)): vmem[2 * i + 1] = [o]
        if j == 14: vmem[2] = [epi_loads]
        weave(k, mf, fill, vmem)
    k.stamp()
    for tt in range(2):
        for u2 in range(2):
            k(f'buffer_load_dwordx4 {vr(92+8*tt+4*u2,4)}, v3, s[12:15], s{42+tt} offen offset:{1024*u2}'); vm.issue('e')
    labs = [k.label('w') for _ in range(4)]; J = k.label('j')
    k(f'v_add_u32 v8, s47, v3\nv_lshlrev_b32 v9, 2, v2\nv_add_u32 v9, s47, v9')
    for w in range(1, 4):
        k(f's_cmp_eq_u32 s38, {w}\ns_cbranch_scc1 {labs[w]}')
    for w in range(4):
        k(f'{labs[w]}:')
        for tt in range(2):
            k(f'ds_write_b32 v9, a{ACC(3,tt)+8} offset:{24576+256*tt}')
        for d in range(1, 4):
            o = (w + d) & 3
            for tt in range(2):
                for qd in range(4 if o < 3 else 2):
                    k(f'ds_write_b128 v8, {ar(ACC(o,tt)+4*qd,4)} offset:{(d-1)*8192+(tt*4+qd)*1024}')
        for i in range(32):
            k(f'v_accvgpr_read_b32 v{16+i}, a{ACC(w,0)+i}')
        for d in range(1, 4):
            k(f'v_add_u32 v{9+d}, {W0+((w-d)&3)*32768+(d-1)*8192}, v3')
        if w != 3: k(f's_branch {J}')
    k(f'''{J}:
v_lshlrev_b32 v9, 2, v2
v_add_u32 v9, {W0+24576}, v9
v_add_u32 v13, 65536, v9
s_waitcnt lgkmcnt(0)''')
    k.stamp()
    k('s_barrier')
    k.stamp()
    for w in range(4):
        for tt in range(2):
            k(f'ds_read_b32 v{116+2*w+tt}, v{9 if w < 2 else 13} offset:{(w&1)*32768+256*tt}')
    NS = 11
    rd = lambda i: k(f'ds_read_b128 {vr(48+4*(i%NS),4)}, v{10+i//8} offset:{1024*(i%8)}')
    for i in range(7): rd(i)
    k('s_waitcnt lgkmcnt(7)')
    k('''v_pk_add_f32 v[116:117], v[116:117], v[118:119]
v_pk_add_f32 v[120:121], v[120:121], v[122:123]''')
    for i in range(7, NS): rd(i)
    k('v_pk_add_f32 v[116:117], v[116:117], v[120:121]')
    for i in range(24):
        k(f's_waitcnt lgkmcnt({min(NS-1, 23-i)})')
        a = 16 + 4 * (i % 8); s = 48 + 4 * (i % NS)
        k(f'v_pk_add_f32 {vr(a,2)}, {vr(a,2)}, {vr(s,2)}')
        k(f'v_pk_add_f32 {vr(a+2,2)}, {vr(a+2,2)}, {vr(s+2,2)}')
        if i + NS < 24: rd(i + NS)
    k(f'''s_cmp_eq_u32 s36, 7
s_cselect_b32 s45, 5, 7
s_lshl_b32 s46, s38, 1
s_sub_i32 s45, s45, s46
s_waitcnt vmcnt(0)
v_lshlrev_b32 v114, 16, v114
v_lshlrev_b32 v118, 16, v115
v_mov_b32 v120, v117''')
    for u2 in range(2):
        k(f's_cmp_le_i32 s45, {u2}\ns_cbranch_scc1 {END}')
        for tt in range(2):
            a = 16 + 16 * tt + 8 * u2
            cr = 116 if tt == 0 else 120
            br = 114 if tt == 0 else 118
            z = 92 + 8 * tt + 4 * u2
            o = 48 + 8 * u2 + 4 * tt
            for i in range(4):
                k(f'v_pk_add_f32 {vr(a+2*i,2)}, {vr(a+2*i,2)}, {vr(cr,2)} op_sel_hi:[1,0] neg_lo:[0,1] neg_hi:[0,1]')
            for i in range(4):
                k(f'v_cvt_pk_bf16_f32 v{64+i}, v{a+2*i}, v{a+2*i+1}')
            for i in range(4):
                k(f'v_lshlrev_b32 v{a+2*i}, 16, v{64+i}\nv_and_b32 v{a+2*i+1}, s57, v{64+i}')
            for i in range(4):
                k(f'v_pk_add_f32 {vr(a+2*i,2)}, {vr(a+2*i,2)}, {vr(br,2)} op_sel_hi:[1,0]')
            for i in range(4):
                k(f'v_cvt_pk_bf16_f32 v{64+i}, v{a+2*i}, v{a+2*i+1}')
            for i in range(4):
                k(f'v_lshlrev_b32 v{a+2*i}, 16, v{64+i}\nv_and_b32 v{a+2*i+1}, s57, v{64+i}')
            for i in range(4):
                k(f'v_lshlrev_b32 v{68+2*i}, 16, v{z+i}\nv_and_b32 v{69+2*i}, s57, v{z+i}')
            for i in range(4):
                k(f'v_pk_mul_f32 {vr(a+2*i,2)}, {vr(a+2*i,2)}, {vr(68+2*i,2)}')
            for i in range(4):
                k(f'v_cvt_pk_bf16_f32 v{o+i}, v{a+2*i}, v{a+2*i+1}')
            k(f'buffer_store_dwordx4 {vr(o,4)}, v3, s[16:19], s{42+tt} offen offset:{1024*u2}')
    k.finish(END)
    return k


def gen_k4(opt={}):
    PIT = 336; REG = 64 * PIT
    k = Kern('k4_kernel', 256, 256, 4 * REG, nvgpr=192, nagpr=252)
    END = k.label('end')
    k(f'''s_cmp_ge_u32 s2, 256
s_cbranch_scc1 {END}
s_load_dwordx2 s[16:17], s[0:1], 64
s_load_dwordx2 s[40:41], s[0:1], 80''')
    k.stamp(True)
    xcd_map_8x4(k)
    k(f'''v_lshrrev_b32 v1, 6, v0
v_and_b32 v182, 63, v0
v_readfirstlane_b32 s38, v1
v_and_b32 v183, 15, v182
v_lshrrev_b32 v184, 4, v182
v_lshlrev_b32 v180, 4, v182
v_add_u32 v181, 4096, v180
v_lshrrev_b32 v6, 1, v184
v_and_b32 v7, 1, v184
v_lshlrev_b32 v6, 10, v6
v_lshl_add_u32 v6, v7, 9, v6
v_lshl_add_u32 v178, v183, 4, v6
s_mul_i32 s42, s38, 7
s_mul_i32 s45, s36, 27
s_add_u32 s45, s45, s42
s_mul_i32 s45, s45, 5120
s_mul_i32 s48, s35, {2*54}
s_lshl_b32 s42, s42, 1
s_add_u32 s48, s48, s42
s_lshl_b32 s48, s48, 10
s_add_u32 s49, s48, {54*1024}
s_waitcnt lgkmcnt(0)''')
    srd_from(k, 4, 40, 41, WS_WO, WO_BYTES)
    srd_from(k, 8, 40, 41, WS_A, Z1_BYTES)
    srd_from(k, 12, 40, 41, WS_H, X_BYTES)
    srd_from(k, 16, 16, 17, 0, X_BYTES)
    L6 = k.label('l6'); L7 = k.label('l7')
    def ld_ops(jj):
        ops = []
        for n in range(5):
            ops.append(f'buffer_load_dwordx4 {ar(36*jj+4*n,4)}, v{180+n//4}, s[4:7], s45 offen offset:{1024*(n%4)}')
        for t in range(4):
            ops.append(f'buffer_load_dwordx4 {ar(36*jj+20+4*t,4)}, v178, s[8:11], s{48+t//2} offen offset:{256*(t&1)+2048*(jj&1)}')
        ops[-1] += f'\ns_add_u32 s45, s45, 5120'
        if jj & 1: ops[-1] += f'\ns_add_u32 s48, s48, 4096\ns_add_u32 s49, s49, 4096'
        return ops
    D4 = opt.get('D4', 2)
    for jj in range(D4):
        for o in ld_ops(jj): k(o)
    ACC = lambda n, t: (t * 5 + n) * 4
    for p in range(5):
        k(f'''v_add_u32 v90, {256*p}, v0
v_mul_u32_u24 v91, 3277, v90
v_lshrrev_b32 v91, 16, v91
v_mul_u32_u24 v92, 20, v91
v_sub_u32 v92, v90, v92
v_mul_u32_u24 v93, {PIT}, v91
v_lshl_add_u32 v{165+p}, v92, 4, v93
v_and_b32 v93, 35, v91
v_and_b32 v94, 12, v91
v_lshl_add_u32 v93, v94, 1, v93
v_and_b32 v94, 16, v91
v_lshrrev_b32 v94, 2, v94
v_add_u32 v93, v93, v94
v_mul_u32_u24 v93, 1280, v93
v_lshl_add_u32 v{170+p}, v92, 3, v93''')
    k(f'''s_mul_i32 s42, s35, {64*1280}
s_mul_i32 s43, s36, 160
s_add_u32 s42, s42, s43
v_mul_u32_u24 v176, {PIT}, v183
v_lshl_add_u32 v176, v184, 4, v176
s_mul_i32 s43, s38, {REG}
v_add_u32 v176, s43, v176''')
    k.stamp()

    def mm(jj):
        mf = []
        for n in range(5):
            for t in range(4):
                acc = vr(ACC(n, t), 4)
                c = '0' if jj == 0 else acc
                mf.append(f'{MFMA} {acc}, {ar(36*jj+4*n,4)}, {ar(36*jj+20+4*t,4)}, {c}')
        if jj + D4 < 7: fl = ld_ops(jj + D4)
        elif jj + D4 == 7: fl = [f'buffer_load_dwordx2 {vr(150+2*p,2)}, v{170+p}, s[12:15], s42 offen' for p in range(5)]
        else: fl = []
        weave(k, mf, fl, {})
    for jj in range(6):
        pend = 9 * (min(7, jj + D4) - jj - 1) + (5 if jj + D4 > 7 else 0)
        k(f's_waitcnt vmcnt({pend})')
        if jj in (0, 1, 3): k.stamp()
        mm(jj)
    k(f's_cmp_eq_u32 s38, 3\ns_cbranch_scc1 {L7}\ns_waitcnt vmcnt(5)')
    mm(6)
    k(f'{L7}:')
    k.stamp()
    for t in range(4):
        for n in range(5):
            k(f'ds_write_b128 v176, {vr(ACC(n,t),4)} offset:{t*16*PIT+64*n}')
    k(f's_waitcnt lgkmcnt(0)')
    k.stamp()
    k('s_barrier')
    k.stamp()
    for p in range(5):
        for w in range(4):
            k(f'ds_read_b128 {vr(16*p+4*w,4)}, v{165+p} offset:{w*REG}')
    k('s_waitcnt vmcnt(0)')
    for p in range(5):
        a = 16 * p
        k(f'''s_waitcnt lgkmcnt({min(15, 4*(4-p))})
v_pk_add_f32 {vr(a,2)}, {vr(a,2)}, {vr(a+4,2)}
v_pk_add_f32 {vr(a+2,2)}, {vr(a+2,2)}, {vr(a+6,2)}
v_pk_add_f32 {vr(a+8,2)}, {vr(a+8,2)}, {vr(a+12,2)}
v_pk_add_f32 {vr(a+10,2)}, {vr(a+10,2)}, {vr(a+14,2)}
v_pk_add_f32 {vr(a,2)}, {vr(a,2)}, {vr(a+8,2)}
v_pk_add_f32 {vr(a+2,2)}, {vr(a+2,2)}, {vr(a+10,2)}
v_cvt_pk_bf16_f32 v{a+4}, v{a}, v{a+1}
v_cvt_pk_bf16_f32 v{a+5}, v{a+2}, v{a+3}
v_lshlrev_b32 v{a}, 16, v{a+4}
v_and_b32 v{a+1}, 0xffff0000, v{a+4}
v_lshlrev_b32 v{a+2}, 16, v{a+5}
v_and_b32 v{a+3}, 0xffff0000, v{a+5}
v_lshlrev_b32 v{a+8}, 16, v{150+2*p}
v_and_b32 v{a+9}, 0xffff0000, v{150+2*p}
v_lshlrev_b32 v{a+10}, 16, v{151+2*p}
v_and_b32 v{a+11}, 0xffff0000, v{151+2*p}
v_pk_add_f32 {vr(a,2)}, {vr(a,2)}, {vr(a+8,2)}
v_pk_add_f32 {vr(a+2,2)}, {vr(a+2,2)}, {vr(a+10,2)}
v_cvt_pk_bf16_f32 v{a+4}, v{a}, v{a+1}
v_cvt_pk_bf16_f32 v{a+5}, v{a+2}, v{a+3}
buffer_store_dwordx2 {vr(a+4,2)}, v{170+p}, s[16:19], s42 offen''')
    k.finish(END)
    return k


def gen_prep(k, base_wg, END, nun=2, nwv=4):
    k(f'''s_load_dwordx2 s[4:5], s[0:1], 32
s_load_dwordx2 s[8:9], s[0:1], 56
v_lshrrev_b32 v1, 6, v0
v_and_b32 v2, 63, v0
v_readfirstlane_b32 s35, v1
s_sub_u32 s33, s2, {base_wg}
s_mul_i32 s33, s33, {nwv}
s_add_u32 s33, s33, s35
v_and_b32 v4, 15, v2
v_lshrrev_b32 v5, 4, v2
v_lshlrev_b32 v3, 4, v2
s_lshl_b32 s47, s35, {12+nun}
s_waitcnt lgkmcnt(0)''')
    if nun == 1:
        k(f'''s_cmp_ge_u32 s35, {nwv}
s_cbranch_scc1 {END}
s_cmp_ge_u32 s33, 415
s_cbranch_scc1 {END}''')
    srd_from(k, 4, 4, 5, 0, 640 * 3456)
    srd_from(k, 8, 8, 9, 0, 864 * 1280)
    srd_from(k, 16, 40, 41, WS_WI, WS_WO - WS_WI + WO_BYTES)
    for un in range(nun):
        WO = k.label('wo'); J = k.label('j')
        P = 50 + 12 * un
        S = 20 + 4 * un
        if un == 1:
            k(f's_add_u32 s33, s33, 208')
        k(f'''s_cmp_ge_u32 s33, 280
s_cbranch_scc1 {WO}
s_mul_i32 s{P+1}, s33, 4682
s_lshr_b32 s{P+1}, s{P+1}, 16
s_mul_i32 s{P+2}, s{P+1}, 14
s_sub_u32 s{P+2}, s33, s{P+2}
s_movk_i32 s{P}, 3456
s_mov_b32 s{P+3}, 7
s_movk_i32 s{P+4}, 140
s_movk_i32 s{P+5}, 9363
s_mov_b32 s{P+6}, 0
s_mov_b32 s{P+7}, 8
s_mov_b32 s{P+8}, 4
s_movk_i32 s{P+9}, 108
s_mov_b32 s{P+10}, 54
s_mov_b64 s[{S}:{S+1}], s[4:5]
s_mov_b64 s[{S+2}:{S+3}], s[6:7]
s_branch {J}
{WO}:
s_sub_u32 s34, s33, 280
s_mul_i32 s{P+1}, s34, 13108
s_lshr_b32 s{P+1}, s{P+1}, 16
s_mul_i32 s{P+2}, s{P+1}, 5
s_sub_u32 s{P+2}, s34, s{P+2}
s_movk_i32 s{P}, 1280
s_mov_b32 s{P+3}, 5
s_movk_i32 s{P+4}, 135
s_movk_i32 s{P+5}, 13108
s_mov_b32 s{P+6}, {(WS_WO-WS_WI)//1024}
s_mov_b32 s{P+7}, 4
s_mov_b32 s{P+8}, 8
s_cmp_lt_u32 s34, 135
s_cselect_b32 s{P+9}, 40, 0
s_movk_i32 s{P+10}, 1000
s_mov_b64 s[{S}:{S+1}], s[8:9]
s_mov_b64 s[{S+2}:{S+3}], s[10:11]
{J}:
v_mul_u32_u24 v6, s{P}, v5
v_lshl_add_u32 v6, v4, 4, v6
s_mul_i32 s42, s{P+1}, s{P}
s_lshl_b32 s42, s42, 5
s_lshl_b32 s43, s{P+2}, 8
s_add_u32 s42, s42, s43
s_lshl_b32 s43, s{P}, 2''')
        for i in range(8):
            k(f's_add_u32 m0, s47, {8192*un+1024*i}')
            k(f'buffer_load_dwordx4 v6, s[{S}:{S+3}], s42 offen lds')
            k(f's_add_u32 s42, s42, s43')
    for un in range(nun):
        P = 50 + 12 * un
        k(f'''v_lshrrev_b32 v6, 1, v5
v_and_b32 v7, 1, v5
v_mul_u32_u24 v7, s{P+7}, v7
v_lshl_add_u32 v6, v6, 4, v7
v_lshrrev_b32 v7, 2, v4
v_add_u32 v6, v6, v7
v_and_b32 v7, 3, v4
v_lshlrev_b32 v7, 3, v7
v_lshl_add_u32 v6, v6, 8, v7
v_add_u32 v6, s47, v6
s_lshl_b32 s42, s{P+8}, 8
v_add_u32 v7, s42, v6
s_waitcnt vmcnt({8 if nun == 2 else 0})''')
        if un == 1: k('s_waitcnt vmcnt(8)')
        for i in range(8):
            k(f'ds_read_b64_tr_b16 {vr(16+32*un+4*i,2)}, v6 offset:{8192*un+32*i}')
            k(f'ds_read_b64_tr_b16 {vr(18+32*un+4*i,2)}, v7 offset:{8192*un+32*i}')
        for i in range(8):
            k(f'''s_lshl_b32 s42, s{P+2}, 3
s_add_u32 s42, s42, {i}
s_add_u32 s43, s42, 2
s_cmp_ge_u32 s42, s{P+10}
s_cselect_b32 s43, s43, s42
s_mul_i32 s44, s43, s{P+5}
s_lshr_b32 s44, s44, 16
s_mul_i32 s45, s44, s{P+3}
s_sub_u32 s43, s43, s45
s_mul_i32 s44, s44, s{P+4}
s_add_u32 s43, s43, s44
s_mul_i32 s44, s{P+1}, s{P+3}
s_add_u32 s43, s43, s44
s_add_u32 s43, s43, s{P+6}
s_lshl_b32 s43, s43, 10
s_cmp_lt_u32 s42, s{P+9}
s_cselect_b32 s43, s43, 0x7f000000
s_waitcnt lgkmcnt({14-2*i})
buffer_store_dwordx4 {vr(16+32*un+4*i,4)}, v3, s[16:19], s43 offen''')
    k(f's_branch {END}')
```

```python
from asmlib import *
from tables import TAB_BYTES

WS_T = 0x000000
WS_U = 0x300000
WS_H = 0x600000
WS_HN = 0x900000
WS_WF = 0x1E00000
WF_BYTES = 8 * 336 * 1024
TU_BYTES = 256 * 8 * 336 * 4
X_BYTES = 2048 * 640 * 2
MFMA = 'v_mfma_f32_16x16x32_bf16'


def vr(a, n=1):
    return f'v{a}' if n == 1 else f'v[{a}:{a+n-1}]'


def sr(a, n=1):
    return f's{a}' if n == 1 else f's[{a}:{a+n-1}]'


def srd_from(k, s, lo, hi, off, size):
    if off:
        k(f's_add_u32 s{s}, s{lo}, 0x{off:x}\ns_addc_u32 s{s+1}, s{hi}, 0')
    elif s != lo:
        k(f's_mov_b32 s{s}, s{lo}\ns_mov_b32 s{s+1}, s{hi}')
    k(f's_mov_b32 s{s+2}, 0x{size:x}\ns_mov_b32 s{s+3}, 0x00020000')


def tab_srd(k, s):
    k(f'''s_getpc_b64 s[{s}:{s+1}]
s_add_u32 s{s}, s{s}, tab@rel32@lo+4
s_addc_u32 s{s+1}, s{s+1}, tab@rel32@hi+12
s_mov_b32 s{s+2}, {TAB_BYTES}
s_mov_b32 s{s+3}, 0x00020000''')


def code_srd(k, s, lab, end):
    k(f'''s_getpc_b64 s[{s}:{s+1}]
s_add_u32 s{s}, s{s}, {lab}@rel32@lo+4
s_addc_u32 s{s+1}, s{s+1}, {lab}@rel32@hi+12
s_mov_b32 s{s+2}, {end}-{lab}
s_mov_b32 s{s+3}, 0x00020000''')


OPT = {}
PFF = lambda: '' if OPT.get('nont') else 'nt'


def cmul_planar(k, a, b, c, d, ore, oim, t, conj=False):
    for h in (0, 2):
        k(f'v_pk_mul_f32 {vr(t+h,2)}, {vr(b+h,2)}, {vr(d+h,2)}')
    for h in (0, 2):
        k(f'v_pk_mul_f32 {vr(oim+h,2)}, {vr(b+h,2)}, {vr(c+h,2)}')
    for h in (0, 2):
        if not conj:
            k(f'v_pk_fma_f32 {vr(ore+h,2)}, {vr(a+h,2)}, {vr(c+h,2)}, {vr(t+h,2)} neg_lo:[0,0,1] neg_hi:[0,0,1]')
        else:
            k(f'v_pk_fma_f32 {vr(ore+h,2)}, {vr(a+h,2)}, {vr(c+h,2)}, {vr(t+h,2)}')
    for h in (0, 2):
        if not conj:
            k(f'v_pk_fma_f32 {vr(oim+h,2)}, {vr(a+h,2)}, {vr(d+h,2)}, {vr(oim+h,2)}')
        else:
            k(f'v_pk_fma_f32 {vr(oim+h,2)}, {vr(a+h,2)}, {vr(d+h,2)}, {vr(oim+h,2)} neg_lo:[1,0,0] neg_hi:[1,0,0]')


def wave_reduce2(k, a, b, sa, sb):
    for m in ('quad_perm:[1,0,3,2] row_mask:0xf bank_mask:0xf', 'quad_perm:[2,3,0,1] row_mask:0xf bank_mask:0xf',
              'row_half_mirror row_mask:0xf bank_mask:0xf', 'row_mirror row_mask:0xf bank_mask:0xf',
              'row_bcast:15 row_mask:0xa bank_mask:0xf', 'row_bcast:31 row_mask:0xc bank_mask:0xf'):
        k(f'v_add_f32_dpp v{a}, v{a}, v{a} {m}')
        k(f'v_add_f32_dpp v{b}, v{b}, v{b} {m}')
    k(f'v_readlane_b32 s{sa}, v{a}, 63\nv_readlane_b32 s{sb}, v{b}, 63')


def ln_stats(k, sa, sb, n, vm, vrs, t):
    inv = np.float32(1.0 / n).view(np.uint32)
    k(f'''v_mov_b32 v{t}, 0x{inv:x}
v_mul_f32 v{vm}, s{sa}, v{t}
v_mul_f32 v{t+1}, s{sb}, v{t}
v_fma_f32 v{t+1}, -v{vm}, v{vm}, v{t+1}
v_max_f32 v{t+1}, 0, v{t+1}
v_cvt_pk_bf16_f32 v{t}, v{vm}, v{t+1}
v_lshlrev_b32 v{vm}, 16, v{t}
v_and_b32 v{t+1}, 0xffff0000, v{t}
v_add_f32 v{t+1}, 0x3727c5ac, v{t+1}
v_cvt_pk_bf16_f32 v{t}, v{t+1}, v{t+1}
v_and_b32 v{t}, 0xffff0000, v{t}
v_sqrt_f32 v{t}, v{t}
v_cvt_pk_bf16_f32 v{t}, v{t}, v{t}
v_and_b32 v{t}, 0xffff0000, v{t}
v_rcp_f32 v{vrs}, v{t}''')


def ln_apply(k, f, n, vm, vrs, out):
    for i in range(0, n, 2):
        k(f'v_pk_add_f32 {vr(f+i,2)}, {vr(f+i,2)}, {vr(vm,2)} op_sel_hi:[1,0] neg_lo:[0,1] neg_hi:[0,1]')
    for i in range(0, n, 2):
        k(f'v_cvt_pk_bf16_f32 v{out+i//2}, v{f+i}, v{f+i+1}')
    for i in range(0, n, 2):
        k(f'v_lshlrev_b32 v{f+i}, 16, v{out+i//2}\nv_and_b32 v{f+i+1}, 0xffff0000, v{out+i//2}')
    for i in range(0, n, 2):
        k(f'v_pk_mul_f32 {vr(f+i,2)}, {vr(f+i,2)}, {vr(vrs,2)} op_sel_hi:[1,0]')
    for i in range(0, n, 2):
        k(f'v_cvt_pk_bf16_f32 v{out+i//2}, v{f+i}, v{f+i+1}')


SW = 'op_sel:[0,1] op_sel_hi:[1,0]'


def fft8(k, R, A, inverse, vs):
    r = lambda i: vr(R + 2 * i, 2)
    a = lambda i: vr(A + 2 * i, 2)
    neg = 'neg_lo:[0,1] neg_hi:[0,1]'
    mi = SW + ' neg_hi:[0,1]'
    pi = SW + ' neg_lo:[0,1]'
    if inverse: mi, pi = pi, mi
    k(f'''v_pk_add_f32 {a(0)}, {r(0)}, {r(4)}
v_pk_add_f32 {a(1)}, {r(0)}, {r(4)} {neg}
v_pk_add_f32 {a(2)}, {r(2)}, {r(6)}
v_pk_add_f32 {a(3)}, {r(2)}, {r(6)} {neg}
v_pk_add_f32 {a(4)}, {r(1)}, {r(5)}
v_pk_add_f32 {a(5)}, {r(1)}, {r(5)} {neg}
v_pk_add_f32 {a(6)}, {r(3)}, {r(7)}
v_pk_add_f32 {a(7)}, {r(3)}, {r(7)} {neg}
v_pk_add_f32 {r(0)}, {a(0)}, {a(2)}
v_pk_add_f32 {r(1)}, {a(0)}, {a(2)} {neg}
v_pk_add_f32 {r(2)}, {a(4)}, {a(6)}
v_pk_add_f32 {r(3)}, {a(4)}, {a(6)} {neg}
v_pk_add_f32 {r(4)}, {a(1)}, {a(3)} {mi}
v_pk_add_f32 {r(5)}, {a(1)}, {a(3)} {pi}
v_pk_add_f32 {r(6)}, {a(5)}, {a(7)} {mi}
v_pk_add_f32 {r(7)}, {a(5)}, {a(7)} {pi}
v_pk_add_f32 {a(0)}, {r(0)}, {r(2)}
v_pk_add_f32 {a(4)}, {r(0)}, {r(2)} {neg}
v_pk_add_f32 {a(2)}, {r(1)}, {r(3)} {mi}
v_pk_add_f32 {a(6)}, {r(1)}, {r(3)} {pi}
v_pk_add_f32 {r(0)}, {r(6)}, {r(6)} {mi}
v_pk_add_f32 {r(1)}, {r(7)}, {r(7)} {pi}
v_pk_fma_f32 {a(1)}, {r(0)}, {vr(vs,2)}, {r(4)} op_sel_hi:[1,0,1]
v_pk_fma_f32 {a(5)}, {r(0)}, {vr(vs,2)}, {r(4)} op_sel_hi:[1,0,1] neg_lo:[1,0,0] neg_hi:[1,0,0]
v_pk_fma_f32 {a(3)}, {r(1)}, {vr(vs,2)}, {r(5)} op_sel_hi:[1,0,1] neg_lo:[1,0,0] neg_hi:[1,0,0]
v_pk_fma_f32 {a(7)}, {r(1)}, {vr(vs,2)}, {r(5)} op_sel_hi:[1,0,1]''')
    return [A + 2 * i for i in range(8)]


def smul(k, dst, src, s, tmp, conj=False):
    k(f'v_pk_mul_f32 {vr(tmp,2)}, {vr(src,2)}, {sr(s,2)} op_sel_hi:[1,0]')
    ng = 'neg_hi:[1,0,0]' if conj else 'neg_lo:[1,0,0]'
    k(f'v_pk_fma_f32 {vr(dst,2)}, {vr(src,2)}, {sr(s,2)}, {vr(tmp,2)} op_sel:[1,1,0] op_sel_hi:[0,1,1] {ng}')


def k0_prefetch(k):
    L = [k.label('pf') for _ in range(8)]; J = k.label('pfj'); SK = k.label('pfs')
    if OPT.get('wl'):
        k(f'''s_mov_b32 s68, s12
s_mov_b32 s69, s13
s_mov_b32 s70, 0
s_mov_b32 s71, 0x00020000
s_mov_b32 s72, 0
v_mov_b32 v100, 0
s_cmp_lt_u32 s34, 5
s_cbranch_scc1 {J}''')
    elif not OPT.get('pfw'): k(f's_cmp_lt_u32 s34, 5\ns_cbranch_scc1 {SK}')
    k(f'''v_lshlrev_b32 v100, 7, v2
s_lshl_b32 s72, s2, 13
s_lshr_b32 s73, s2, 3
s_mov_b32 s71, 0x00020000
s_cmp_ge_u32 s34, 2
s_cbranch_scc1 {L[2]}
s_cmp_eq_u32 s34, 0
s_cselect_b32 s68, s56, s58
s_cselect_b32 s69, s57, s59
s_mov_b32 s70, {2048*642}
v_and_b32 v100, 7, v2
v_lshlrev_b32 v100, 7, v100
v_min_u32 v100, 640, v100
v_lshrrev_b32 v101, 3, v2
v_mul_u32_u24 v101, {8*642}, v101
v_add_u32 v100, v100, v101
s_and_b32 s72, s2, 7
s_lshl_b32 s74, s73, 6
s_add_u32 s72, s72, s74
s_mul_i32 s72, s72, 642
s_branch {J}
{L[2]}:
s_cmp_ge_u32 s34, 4
s_cbranch_scc1 {L[4]}
s_mov_b32 s68, s62
s_mov_b32 s69, s63
s_mov_b32 s70, {640*3456}
s_cmp_eq_u32 s34, 3
s_cselect_b32 s74, {1<<21}, 0
s_add_u32 s72, s72, s74
s_branch {J}
{L[4]}:
s_cmp_ge_u32 s34, 5
s_cbranch_scc1 {L[5]}
s_mov_b32 s68, s64
s_mov_b32 s69, s65
s_mov_b32 s70, {864*1280}
s_branch {J}
{L[5]}:
s_and_b32 s72, s73, 7
s_lshl_b32 s72, s72, 13
s_cmp_ge_u32 s34, 6
s_cbranch_scc1 {L[6]}
s_mov_b32 s68, s12
s_mov_b32 s69, s13
s_mov_b32 s70, s14
s_add_u32 s72, s72, 0x2000
s_branch {J}
{L[6]}:''')
    code_srd(k, 68, 'k1_kernel', 'code_end')
    k(f'''s_cmp_eq_u32 s34, 7
s_cselect_b32 s74, 0x10000, 0
s_add_u32 s72, s72, s74
{J}:
buffer_load_ubyte v101, v100, s[68:71], s72 offen
{SK}:''')


def gen_k0():
    XP = 1280; EX0 = 10240; EXP = 2576
    k = Kern('k0_kernel', 256, 512, EX0 + 8 * EXP, nvgpr=128)
    END = k.label('end')
    k(f'''s_cmp_ge_u32 s2, 256
s_cbranch_scc1 {END}
s_load_dwordx2 s[4:5], s[0:1], 0
s_load_dwordx2 s[40:41], s[0:1], 80
s_load_dwordx8 s[56:63], s[0:1], 8
s_load_dwordx2 s[64:65], s[0:1], 56''')
    k.stamp(True)
    tab_srd(k, 12)
    k(f'''s_and_b32 s3, s2, 7
s_lshl_b32 s3, s3, 5
s_lshr_b32 s33, s2, 3
s_add_u32 s3, s3, s33
s_lshl_b32 s33, s3, 6
s_add_u32 s33, s33, 32768
s_load_dwordx16 s[16:31], s[12:13], s33
v_lshrrev_b32 v1, 6, v0
v_and_b32 v2, 63, v0
v_readfirstlane_b32 s34, v1
v_lshlrev_b32 v3, 4, v2
s_movk_i32 s38, 0x1000''')
    for i in range(8):
        so = '0' if i < 4 else 's38'
        k(f'buffer_load_dwordx4 {vr(64+4*i,4)}, v3, s[12:15], {so} offen offset:{(i%4)*1024}')
    k(f'''s_lshl_b32 s35, s34, 8
s_add_u32 s35, s35, s3
s_mul_i32 s35, s35, 1280
v_lshlrev_b32 v58, 3, v2
v_lshlrev_b32 v59, 2, v2
s_waitcnt lgkmcnt(0)''')
    srd_from(k, 4, 4, 5, 0, X_BYTES)
    srd_from(k, 8, 40, 41, WS_T, TU_BYTES)
    k(f'''s_lshl_b32 s33, s2, 6
s_add_u32 s33, s33, 0x1800000
s_add_u32 s52, s40, s33
s_addc_u32 s53, s41, 0
s_mov_b32 s54, 64
s_mov_b32 s55, 0x00020000
v_lshlrev_b32 v62, 2, v0
v_mov_b32 v63, 0
buffer_store_dword v63, v62, s[52:55], 0 offen''')
    k(f'''buffer_load_dwordx2 v[4:5], v58, s[4:7], s35 offen
buffer_load_dwordx2 v[6:7], v58, s[4:7], s35 offen offset:512
buffer_load_dword v8, v59, s[4:7], s35 offen offset:1024''')
    WL = OPT.get('wl', 0)

    def w_loads():
        k(f'''s_and_b32 s76, s2, 7
s_lshr_b32 s77, s2, 3
s_and_b32 s77, s77, 7
s_lshl_b32 s77, s77, 1
s_and_b32 s78, s34, 1
s_add_u32 s77, s77, s78
s_lshr_b32 s78, s2, 6
s_lshl_b32 s79, s78, 6
s_add_u32 s79, s79, s77
s_lshl_b32 s79, s79, 3
s_add_u32 s79, s79, s76
s_mul_i32 s80, s79, 642
s_add_u32 s81, s80, {128*642}
s_add_u32 s82, s80, {256*642}
s_add_u32 s75, s80, {384*642}
s_lshl_b32 s78, s78, 4
s_add_u32 s78, s78, s77
s_lshl_b32 s78, s78, 4
s_mul_i32 s76, s76, {336*1024}
s_add_u32 s76, s76, s78
s_lshr_b32 s77, s34, 1
s_lshl_b32 s77, s77, 6
v_add_u32 v102, s77, v2
v_add_u32 v103, 256, v102
v_mov_b32 v104, 0x1fffff
v_cmp_gt_u32 vcc, 321, v103
v_cndmask_b32 v103, v104, v103, vcc
v_lshlrev_b32 v104, 1, v102
v_lshlrev_b32 v105, 1, v103
v_lshlrev_b32 v102, 10, v102
v_lshlrev_b32 v103, 10, v103
s_mov_b32 s62, s58
s_mov_b32 s63, s59
s_mov_b32 s58, {2048*642}
s_mov_b32 s59, 0x00020000
s_mov_b32 s60, s62
s_mov_b32 s61, s63
s_mov_b32 s62, {2048*642}
s_mov_b32 s63, 0x00020000''')
        srd_from(k, 64, 40, 41, WS_WF, WF_BYTES)
        so = ['s80', 's81', 's82', 's75']
        for u in range(2):
            for r in range(4):
                k(f'buffer_load_ushort v{108+4*u+r}, v{104+u}, s[56:59], {so[r]} offen')
                k(f'buffer_load_ushort v{116+4*u+r}, v{104+u}, s[60:63], {so[r]} offen')

    def w_stores(n):
        k(f's_waitcnt vmcnt({n})')
        for u in range(2):
            for r in range(4):
                k(f'v_lshl_or_b32 v{108+4*u+r}, v{116+4*u+r}, 16, v{108+4*u+r}')
            k(f'buffer_store_dwordx4 {vr(108+4*u,4)}, v{102+u}, s[64:67], s76 offen ; W')
    if WL == 1: w_loads()
    k(f'''s_mul_i32 s39, s34, {XP}
v_add_u32 v58, s39, v58
v_add_u32 v59, s39, v59
v_and_b32 v50, 15, v2
v_lshrrev_b32 v51, 4, v2
v_lshrrev_b32 v52, 2, v50
v_and_b32 v53, 3, v50
v_lshl_add_u32 v54, v51, 3, v52
v_add_u32 v55, 4, v54
v_subrev_u32 v56, 20, v54
v_min_u32 v54, v54, v56
v_subrev_u32 v56, 20, v55
v_min_u32 v55, v55, v56
v_lshlrev_b32 v53, 3, v53
v_lshl_add_u32 v54, v54, 6, v53
v_lshl_add_u32 v55, v55, 6, v53
v_add_u32 v54, s39, v54
v_add_u32 v55, s39, v55
s_mul_i32 s42, s34, {EXP}
s_add_u32 s42, s42, {EX0}
v_mul_u32_u24 v56, 80, v51
v_add_u32 v57, v56, v50
v_lshlrev_b32 v57, 3, v57
v_add_u32 v60, s42, v57
v_sub_u32 v61, {8*260}, v57
v_add_u32 v61, s42, v61
s_waitcnt vmcnt({16 if WL == 1 else 0})''')
    k.stamp()
    if WL == 2: w_loads()
    if not OPT.get('nopf'):
        k0_prefetch(k)
    for i in range(5):
        k(f'v_lshlrev_b32 v{10+2*i}, 16, v{4+i}\nv_and_b32 v{11+2*i}, 0xffff0000, v{4+i}')
    k('''v_pk_add_f32 v[20:21], v[10:11], v[12:13]
v_pk_mul_f32 v[22:23], v[10:11], v[10:11]
v_pk_add_f32 v[24:25], v[14:15], v[16:17]
v_pk_fma_f32 v[22:23], v[12:13], v[12:13], v[22:23]
v_pk_add_f32 v[20:21], v[20:21], v[18:19]
v_pk_fma_f32 v[22:23], v[14:15], v[14:15], v[22:23]
v_pk_add_f32 v[20:21], v[20:21], v[24:25]
v_pk_fma_f32 v[22:23], v[16:17], v[16:17], v[22:23]
v_pk_fma_f32 v[22:23], v[18:19], v[18:19], v[22:23]
v_add_f32 v20, v20, v21
v_add_f32 v22, v22, v23''')
    wave_reduce2(k, 20, 22, 36, 37)
    ln_stats(k, 36, 37, 640, 20, 22, 24)
    ln_apply(k, 10, 10, 20, 22, 4)
    k('''ds_write_b64 v58, v[4:5]
ds_write_b64 v58, v[6:7] offset:512
ds_write_b32 v59, v8 offset:1024
s_waitcnt lgkmcnt(0)
ds_read_b64_tr_b16 v[4:5], v54
ds_read_b64_tr_b16 v[6:7], v55
ds_read_b64_tr_b16 v[8:9], v54 offset:32
ds_read_b64_tr_b16 v[10:11], v55 offset:32
s_waitcnt lgkmcnt(2)''')
    k(f'''{MFMA} v[12:15], v[4:7], v[64:67], 0
{MFMA} v[16:19], v[4:7], v[68:71], 0
s_waitcnt lgkmcnt(0)
{MFMA} v[20:23], v[8:11], v[64:67], 0
{MFMA} v[24:27], v[8:11], v[68:71], 0''')
    cmul_planar(k, 12, 16, 72, 76, 28, 32, 44)
    cmul_planar(k, 20, 24, 80, 84, 36, 40, 44)
    for t in range(2):
        for h in range(2):
            re = 28 + 8 * t + 2 * h; im = 32 + 8 * t + 2 * h; o = 2 * t + h
            k(f'''v_cvt_pk_bf16_f32 v{4+o}, v{re}, v{re+1}
v_cvt_pk_bf16_f32 v{8+o}, v{im}, v{im+1}
v_cvt_pk_bf16_f32 v{12+o}, -v{im}, -v{im+1}
v_cvt_pk_bf16_f32 v{16+o}, v{re}, -v{re+1}
v_cvt_pk_bf16_f32 v{20+o}, v{im}, -v{im+1}
v_cvt_pk_bf16_f32 v{24+o}, -v{im}, v{im+1}''')
    k(f'''{MFMA} v[28:31], v[88:91], v[4:7], 0
{MFMA} v[32:35], v[92:95], v[4:7], 0
{MFMA} v[36:39], v[88:91], v[16:19], 0
{MFMA} v[40:43], v[92:95], v[16:19], 0
{MFMA} v[28:31], v[92:95], v[12:15], v[28:31]
{MFMA} v[32:35], v[88:91], v[8:11], v[32:35]
{MFMA} v[36:39], v[92:95], v[24:27], v[36:39]
{MFMA} v[40:43], v[88:91], v[20:23], v[40:43]
s_mov_b32 exec_lo, 0x07ff07ff
s_mov_b32 exec_hi, 0x07ff07ff''')
    for r in range(4):
        k(f'ds_write2_b32 v60, v{28+r}, v{32+r} offset0:{40*r} offset1:{40*r+1}')
    for r in range(4):
        k(f'v_xor_b32 v{40+r}, 0x80000000, v{40+r}')
    for r in range(4):
        k(f'ds_write2_b32 v61, v{36+r}, v{40+r} offset0:{40*(3-r)} offset1:{40*(3-r)+1}')
    k(f'''s_mov_b64 exec, -1''')
    if WL == 1: w_stores(1)
    k(f'''s_waitcnt lgkmcnt(0)''')
    k.stamp()
    k(f'''s_barrier''')
    k.stamp()
    TAIL = k.label('tail'); TAIL2 = k.label('tail')
    k(f'''v_cmp_gt_u32 vcc, 321, v0
s_and_saveexec_b64 s[44:45], vcc
s_cbranch_execz {TAIL if WL == 2 else END}
v_lshlrev_b32 v1, 3, v0
v_lshlrev_b32 v2, 2, v0''')
    for n in range(8):
        k(f'ds_read_b64 {vr(4+2*n,2)}, v1 offset:{EX0+n*EXP}')
    k(f'''v_mov_b32 v40, 0x3f3504f3
s_mul_i32 s46, s3, {8*1344}
s_add_u32 s47, s46, {3*1344}
s_add_u32 s48, s46, {6*1344}
s_waitcnt lgkmcnt(0)''')
    T = fft8(k, 4, 20, False, 40)
    for k2 in range(8):
        if k2 == 0:
            k(f'v_cvt_pk_bf16_f32 v4, v{T[0]}, v{T[0]+1}')
        else:
            smul(k, T[k2], T[k2], 16 + 2 * k2, 42 + 2 * (k2 & 1))
            k(f'v_cvt_pk_bf16_f32 v{4+k2}, v{T[k2]}, v{T[k2]+1}')
        k(f'buffer_store_dword v{4+k2}, v2, s[8:11], s{46+k2//3} offen offset:{(k2%3)*1344}')
    if WL == 2:
        k(f's_waitcnt vmcnt(9)\ns_branch {TAIL2}\n{TAIL}:\ns_waitcnt vmcnt(1)\n{TAIL2}:\ns_mov_b64 exec, -1')
        w_stores(63)
    k.finish(END)
    return k


def gen_k1():
    P = 1040; W0 = 16 * P
    import gen3
    NPF = OPT.get('npf1', 4)
    NG = 256 if NPF else 220
    k = Kern('k1_kernel', NG, 256, 83968 if NPF else 65536, nvgpr=160)
    END = k.label('end'); MAIN = k.label('main'); PREP = k.label('prep')
    k(f'''s_cmp_ge_u32 s2, {NG}
s_cbranch_scc1 {END}
s_cmp_lt_u32 s2, 168
s_cbranch_scc1 {MAIN}
s_load_dwordx2 s[40:41], s[0:1], 80''')
    k.stamp(True)
    if NPF:
        k(f'''s_cmp_lt_u32 s2, 220
s_cbranch_scc1 {PREP}
s_load_dwordx2 s[4:5], s[0:1], 40
v_lshrrev_b32 v1, 6, v0
v_and_b32 v2, 63, v0
v_readfirstlane_b32 s35, v1
s_sub_u32 s33, s2, 220
s_lshl_b32 s33, s33, 2
s_add_u32 s33, s33, s35
s_lshl_b32 s33, s33, 13
v_lshlrev_b32 v3, 7, v2
s_mov_b32 s6, {2048*4096}
s_mov_b32 s7, 0x00020000
s_waitcnt lgkmcnt(0)''')
        for i in range(NPF):
            k(f'buffer_load_ubyte v4, v3, s[4:7], s33 offen\ns_add_u32 s33, s33, {144*8192}')
        k(f's_branch {END}\n{PREP}:')
    if OPT.get('k1noprep'): k(f's_branch {END}')
    gen3.gen_prep(k, 168, END)
    k.nst = 0
    k(f'''{MAIN}:
s_load_dwordx2 s[4:5], s[0:1], 8
s_load_dwordx2 s[16:17], s[0:1], 16
s_load_dwordx2 s[40:41], s[0:1], 80''')
    k.stamp(True)
    tab_srd(k, 12)
    k(f'''s_and_b32 s33, s2, 7
s_lshr_b32 s34, s2, 3
v_lshrrev_b32 v1, 6, v0
v_and_b32 v2, 63, v0
v_readfirstlane_b32 s35, v1
v_lshlrev_b32 v3, 4, v2
s_movk_i32 s38, 0x2000
s_movk_i32 s39, 0x3000
v_and_b32 v4, 15, v2
v_lshrrev_b32 v5, 4, v2''')
    for i in range(8):
        k(f'buffer_load_dwordx4 {vr(96+4*i,4)}, v3, s[12:15], s{38+i//4} offen offset:{(i%4)*1024}')
    k(f'''v_mul_u32_u24 v6, {16*8*1344}, v4
v_lshl_add_u32 v6, v5, 4, v6
s_lshl_b32 s36, s35, 5
s_add_u32 s36, s36, s33
s_mul_i32 s36, s36, 1344
s_lshl_b32 s37, s34, 6
s_add_u32 s36, s36, s37
s_add_u32 s42, s36, {8*1344}
s_add_u32 s43, s36, {16*1344}
s_add_u32 s44, s36, {24*1344}
v_and_b32 v7, 1, v5
v_lshrrev_b32 v8, 1, v5
v_lshl_add_u32 v9, v4, 4, v7
v_mul_u32_u24 v9, {8*642}, v9
v_lshl_add_u32 v9, v8, 4, v9
s_lshl_b32 s45, s35, 5
s_add_u32 s45, s45, s33
s_mul_i32 s45, s45, 642
s_lshl_b32 s37, s34, 5
s_add_u32 s45, s45, s37
s_add_u32 s46, s45, {16*642}
s_waitcnt lgkmcnt(0)''')
    srd_from(k, 4, 4, 5, 0, 2048 * 642)
    srd_from(k, 16, 16, 17, 0, 2048 * 642)
    srd_from(k, 8, 40, 41, WS_T, TU_BYTES)
    srd_from(k, 20, 40, 41, WS_U, TU_BYTES)
    so = ['s36', 's42', 's43', 's44']
    for i in range(4):
        k(f'buffer_load_dwordx4 {vr(16+4*i,4)}, v6, s[8:11], {so[i]} offen')
    for i in range(2):
        if OPT.get('k1now'):
            k(f'buffer_load_dwordx4 {vr(32+8*i,4)}, v3, s[12:15], 0 offen')
            k(f'buffer_load_dwordx4 {vr(36+8*i,4)}, v3, s[12:15], 0 offen')
            continue
        k(f'buffer_load_dwordx4 {vr(32+8*i,4)}, v9, s[4:7], s{45+i} offen')
        k(f'buffer_load_dwordx4 {vr(36+8*i,4)}, v9, s[16:19], s{45+i} offen')
    k(f'''v_mul_u32_u24 v10, {4*P}, v5
v_lshl_add_u32 v10, v4, 2, v10
s_lshl_b32 s37, s35, 8
v_add_u32 v10, s37, v10
v_mul_u32_u24 v11, {8*P}, v8
v_lshl_add_u32 v11, v7, 6, v11
v_lshl_add_u32 v11, v4, 2, v11
v_add_u32 v11, s37, v11
v_lshlrev_b32 v12, 6, v4
v_lshl_add_u32 v12, v5, 4, v12
s_mul_i32 s37, s35, {4*P}
v_add_u32 v12, s37, v12
s_mov_b32 s47, 0x05040100
s_mov_b32 s48, 0x07060302''')
    for i in range(4):
        k(f's_waitcnt vmcnt({7-i})')
        for j in range(4):
            k(f'ds_write_b32 v10, v{16+4*i+j} offset:{j*P+64*i}')
    k.stamp()
    for i in range(2):
        k(f's_waitcnt vmcnt({2-2*i})')
        for j in range(4):
            k(f'v_perm_b32 v{48+2*j}, v{36+8*i+j}, v{32+8*i+j}, s47')
            k(f'v_perm_b32 v{49+2*j}, v{36+8*i+j}, v{32+8*i+j}, s48')
        for j in range(8):
            k(f'ds_write_b32 v11, v{48+j} offset:{W0+j*P+128*i}')
    k('s_waitcnt lgkmcnt(0)')
    k.stamp()
    k('s_barrier')
    k.stamp()
    for c in range(4):
        k(f'ds_read_b128 {vr(16+4*c,4)}, v12 offset:{c*P}')
    for c in range(4):
        k(f'ds_read_b128 {vr(32+4*c,4)}, v12 offset:{W0+c*P}')
    for c in range(4):
        k(f's_waitcnt lgkmcnt({7-c})')
        k(f'{MFMA} {vr(48+8*c,4)}, {vr(16+4*c,4)}, v[96:99], 0')
        k(f'{MFMA} {vr(52+8*c,4)}, {vr(16+4*c,4)}, v[100:103], 0')

    def pack(c, re, im):
        k(f'''v_cvt_pk_bf16_f32 v{16+4*c}, v{re}, v{re+1}
v_cvt_pk_bf16_f32 v{17+4*c}, v{re+2}, v{re+3}
v_cvt_pk_bf16_f32 v{18+4*c}, v{im}, v{im+1}
v_cvt_pk_bf16_f32 v{19+4*c}, v{im+2}, v{im+3}''')
    for c in range(4):
        cmul_planar(k, 48 + 8 * c, 52 + 8 * c, 104, 108, 80, 84, 88)
        pack(c, 80, 84)
        k(f'{MFMA} {vr(48+8*c,4)}, v[112:115], {vr(16+4*c,4)}, 0')
        k(f'{MFMA} {vr(52+8*c,4)}, v[116:119], {vr(16+4*c,4)}, 0')
    k('s_waitcnt lgkmcnt(0)')
    for c in range(4):
        for r in range(4):
            k(f'v_lshlrev_b32 v{128+r}, 16, v{32+4*c+r}\nv_and_b32 v{132+r}, 0xffff0000, v{32+4*c+r}')
        cmul_planar(k, 48 + 8 * c, 52 + 8 * c, 128, 132, 80, 84, 88)
        pack(c, 80, 84)
        k(f'{MFMA} {vr(48+8*c,4)}, {vr(16+4*c,4)}, v[120:123], 0')
        k(f'{MFMA} {vr(52+8*c,4)}, {vr(16+4*c,4)}, v[124:127], 0')
    for c in range(4):
        cmul_planar(k, 48 + 8 * c, 52 + 8 * c, 104, 108, 80, 84, 88, conj=True)
        pack(c, 80, 84)
        k(f'{MFMA} {vr(48+8*c,4)}, v[120:123], {vr(16+4*c,4)}, 0')
        k(f'{MFMA} {vr(52+8*c,4)}, v[124:127], {vr(16+4*c,4)}, 0')
    for c in range(4):
        for r in range(4):
            k(f'v_cvt_pk_bf16_f32 v{16+4*c+r}, v{48+8*c+r}, v{52+8*c+r}')
        k(f'ds_write_b128 v12, {vr(16+4*c,4)} offset:{c*P}')
    k('s_waitcnt lgkmcnt(0)')
    k.stamp()
    k('s_barrier')
    k.stamp()
    for i in range(4):
        for j in range(4):
            k(f'ds_read_b32 v{16+4*i+j}, v10 offset:{j*P+64*i}')
    for i in range(4):
        k(f's_waitcnt lgkmcnt({12-4*i})')
        k(f'buffer_store_dwordx4 {vr(16+4*i,4)}, v6, s[20:23], {so[i]} offen')
    k.finish(END)
    return k


def gen_k1b():
    P = 1040
    import gen3
    k = Kern('k1_kernel', 256, 512, 81920, nvgpr=128)
    END = k.label('end'); MAIN = k.label('main')
    k(f'''s_cmp_ge_u32 s2, 256
s_cbranch_scc1 {END}
s_load_dwordx2 s[40:41], s[0:1], 80
s_cmp_lt_u32 s2, 168
s_cbranch_scc1 {MAIN}''')
    k.stamp(True)
    if OPT.get('k1noprep'): k(f's_branch {END}')
    gen3.gen_prep(k, 168, END, 1, 5)
    k.nst = 0
    k(f'{MAIN}:')
    k.stamp(True)
    tab_srd(k, 12)
    k(f'''s_and_b32 s33, s2, 7
s_lshr_b32 s34, s2, 3
v_lshrrev_b32 v1, 6, v0
v_and_b32 v2, 63, v0
v_readfirstlane_b32 s35, v1
v_lshlrev_b32 v3, 4, v2
s_movk_i32 s38, 0x2000
s_movk_i32 s39, 0x3000
v_and_b32 v4, 15, v2
v_lshrrev_b32 v5, 4, v2''')
    for i in range(4):
        k(f'buffer_load_dwordx4 {vr(96+4*i,4)}, v3, s[12:15], s38 offen offset:{i*1024}')
    k('buffer_load_dwordx4 v[112:115], v3, s[12:15], s39 offen offset:3072')
    k('buffer_load_dwordx4 v[116:119], v3, s[12:15], s39 offen offset:1024')
    IIM = 'v[112:115]'; IRE = 'v[114:117]'; FIM = 'v[116:119]'; FRE = 'v[118:121]'
    k(f'''v_mul_u32_u24 v6, {16*8*1344}, v4
v_lshl_add_u32 v6, v5, 4, v6
s_lshl_b32 s36, s35, 4
s_add_u32 s36, s36, s33
s_mul_i32 s36, s36, 1344
s_lshl_b32 s37, s34, 6
s_add_u32 s36, s36, s37
s_add_u32 s42, s36, {8*1344}
s_mul_i32 s45, s33, 336
s_lshl_b32 s37, s34, 4
s_add_u32 s45, s45, s37
s_lshl_b32 s37, s35, 1
s_add_u32 s45, s45, s37
s_lshl_b32 s45, s45, 10
s_waitcnt lgkmcnt(0)''')
    srd_from(k, 8, 40, 41, WS_T, TU_BYTES)
    srd_from(k, 4, 40, 41, WS_WF, WF_BYTES)
    srd_from(k, 20, 40, 41, WS_U, TU_BYTES)
    so = ['s36', 's42']
    for i in range(2):
        k(f'buffer_load_dwordx4 {vr(16+4*i,4)}, v6, s[8:11], {so[i]} offen')
    WP = OPT.get('k1wp', 0)
    def wld():
        for i in range(2):
            if OPT.get('k1now'): k(f'buffer_load_dwordx4 {vr(32+4*i,4)}, v3, s[12:15], 0 offen offset:{1024*i}')
            else: k(f'buffer_load_dwordx4 {vr(32+4*i,4)}, v3, s[4:7], s45 offen offset:{1024*i}')
    if WP == 0: wld()
    if WP == 2: k('s_barrier'); wld()
    k(f'''v_mul_u32_u24 v10, {4*P}, v5
v_lshl_add_u32 v10, v4, 2, v10
s_lshl_b32 s37, s35, 7
v_add_u32 v10, s37, v10
v_lshlrev_b32 v12, 6, v4
v_lshl_add_u32 v12, v5, 4, v12
s_mul_i32 s37, s35, {2*P}
v_add_u32 v12, s37, v12
s_waitcnt vmcnt({2 if WP == 1 else 4})
v_mov_b32 v120, v112
v_mov_b32 v121, v113''')
    for i in range(2):
        k(f's_waitcnt vmcnt({(1 if WP == 1 else 3)-i})')
        for j in range(4):
            k(f'ds_write_b32 v10, v{16+4*i+j} offset:{j*P+64*i}')
    if WP == 1: wld()
    k.stamp()
    k('s_waitcnt lgkmcnt(0)')
    k.stamp()
    k('s_barrier')
    k.stamp()
    NC = 2
    for c in range(NC):
        k(f'ds_read_b128 {vr(16+4*c,4)}, v12 offset:{c*P}')
    for c in range(NC):
        k(f's_waitcnt lgkmcnt({NC-1-c})')
        k(f'{MFMA} {vr(48+8*c,4)}, {vr(16+4*c,4)}, v[96:99], 0')
        k(f'{MFMA} {vr(52+8*c,4)}, {vr(16+4*c,4)}, v[100:103], 0')
    def wun():
        k('s_waitcnt vmcnt(0)')
        for c in range(NC):
            for r in range(4):
                k(f'v_lshlrev_b32 v{64+8*c+r}, 16, v{32+4*c+r}\nv_and_b32 v{68+8*c+r}, 0xffff0000, v{32+4*c+r}')
    if not OPT.get('k1wl'): wun()

    def pack(c, re, im):
        k(f'''v_cvt_pk_bf16_f32 v{16+4*c}, v{re}, v{re+1}
v_cvt_pk_bf16_f32 v{17+4*c}, v{re+2}, v{re+3}
v_cvt_pk_bf16_f32 v{18+4*c}, v{im}, v{im+1}
v_cvt_pk_bf16_f32 v{19+4*c}, v{im+2}, v{im+3}''')
    for c in range(NC):
        cmul_planar(k, 48 + 8 * c, 52 + 8 * c, 104, 108, 80, 84, 88)
        pack(c, 80, 84)
        k(f'{MFMA} {vr(48+8*c,4)}, {FRE}, {vr(16+4*c,4)}, 0')
        k(f'{MFMA} {vr(52+8*c,4)}, {FIM}, {vr(16+4*c,4)}, 0')
    if OPT.get('k1wl'): wun()
    for c in range(NC):
        cmul_planar(k, 48 + 8 * c, 52 + 8 * c, 64 + 8 * c, 68 + 8 * c, 80, 84, 88)
        pack(c, 80, 84)
        k(f'{MFMA} {vr(48+8*c,4)}, {vr(16+4*c,4)}, {IRE}, 0')
        k(f'{MFMA} {vr(52+8*c,4)}, {vr(16+4*c,4)}, {IIM}, 0')
    for c in range(NC):
        cmul_planar(k, 48 + 8 * c, 52 + 8 * c, 104, 108, 80, 84, 88, conj=True)
        pack(c, 80, 84)
        k(f'{MFMA} {vr(48+8*c,4)}, {IRE}, {vr(16+4*c,4)}, 0')
        k(f'{MFMA} {vr(52+8*c,4)}, {IIM}, {vr(16+4*c,4)}, 0')
    for c in range(NC):
        for r in range(4):
            k(f'v_cvt_pk_bf16_f32 v{16+4*c+r}, v{48+8*c+r}, v{52+8*c+r}')
        k(f'ds_write_b128 v12, {vr(16+4*c,4)} offset:{c*P}')
    k('s_waitcnt lgkmcnt(0)')
    k.stamp()
    k('s_barrier')
    k.stamp()
    for i in range(2):
        for j in range(4):
            k(f'ds_read_b32 v{16+4*i+j}, v10 offset:{j*P+64*i}')
    for i in range(2):
        k(f's_waitcnt lgkmcnt({4-4*i})')
        k(f'buffer_store_dwordx4 {vr(16+4*i,4)}, v6, s[20:23], {so[i]} offen')
    k.finish(END)
    return k


def gen_k2a():
    RP = 144; NP = 11 * RP + 16
    k = Kern('k2a_kernel', 256, 512, 8 * NP, nvgpr=128)
    END = k.label('end'); SKIP = k.label('skip')
    k(f'''s_cmp_ge_u32 s2, 256
s_cbranch_scc1 {END}
s_load_dwordx2 s[4:5], s[0:1], 0
s_load_dwordx2 s[40:41], s[0:1], 80
s_load_dwordx2 s[68:69], s[0:1], 40''')
    k.stamp(True)
    tab_srd(k, 12)
    k(f'''s_and_b32 s3, s2, 7
s_lshl_b32 s3, s3, 5
s_lshr_b32 s33, s2, 3
s_add_u32 s3, s3, s33
s_lshl_b32 s33, s3, 6
s_add_u32 s33, s33, 32768
s_load_dwordx16 s[16:31], s[12:13], s33
v_lshrrev_b32 v1, 6, v0
v_and_b32 v2, 63, v0
v_readfirstlane_b32 s34, v1
v_lshlrev_b32 v3, 4, v2
s_movk_i32 s38, 0x4000
s_movk_i32 s39, 0x5000
s_movk_i32 s49, 0x6000
s_mul_i32 s46, s3, {8*1344}
s_add_u32 s47, s46, {3*1344}
s_add_u32 s48, s46, {6*1344}
v_lshlrev_b32 v60, 2, v0
s_lshl_b32 s35, s34, 8
s_add_u32 s35, s35, s3
s_mul_i32 s35, s35, 1280
v_and_b32 v50, 15, v2
v_lshrrev_b32 v51, 4, v2
v_lshlrev_b32 v52, 6, v50
v_lshl_add_u32 v52, v51, 4, v52
v_add_u32 v53, 1024, v52
v_mov_b32 v54, 0x7fffffff
v_cmp_gt_u32 vcc, 4, v50
v_cndmask_b32 v53, v54, v53, vcc
v_lshlrev_b32 v112, 11, v50
v_lshl_add_u32 v112, v51, 8, v112
v_add_u32 v113, 32768, v112
v_cndmask_b32 v113, v54, v113, vcc
s_lshl_b32 s59, s34, 3
s_lshr_b32 s60, s3, 5
s_add_u32 s59, s59, s60
s_mul_i32 s59, s59, 40960
s_and_b32 s60, s3, 4
s_lshl_b32 s60, s60, 8
s_add_u32 s59, s59, s60
s_and_b32 s60, s3, 24
s_lshl_b32 s60, s60, 3
s_add_u32 s59, s59, s60
s_and_b32 s60, s3, 3
s_lshl_b32 s60, s60, 4
s_add_u32 s59, s59, s60
s_waitcnt lgkmcnt(0)''')
    srd_from(k, 4, 4, 5, 0, X_BYTES)
    srd_from(k, 8, 40, 41, WS_U, TU_BYTES)
    srd_from(k, 52, 40, 41, WS_H, X_BYTES)
    srd_from(k, 60, 40, 41, WS_HN, X_BYTES)
    for k2 in range(8):
        k(f'buffer_load_dword v{4+k2}, v60, s[8:11], s{46+k2//3} offen offset:{(k2%3)*1344}')
    for i in range(10):
        so = ['s38', 's39', 's49'][i // 4]
        k(f'buffer_load_dwordx4 {vr(64+4*i,4)}, v3, s[12:15], {so} offen offset:{(i%4)*1024}')
    k(f'''buffer_load_dwordx4 v[104:107], v52, s[4:7], s35 offen
buffer_load_dwordx4 v[108:111], v53, s[4:7], s35 offen''')
    k(f'''v_mul_u32_u24 v55, 3277, v0
v_lshrrev_b32 v55, 16, v55
v_mul_u32_u24 v56, 20, v55
v_sub_u32 v56, v0, v56
v_mul_u32_u24 v57, {RP}, v56
v_lshl_add_u32 v57, v55, 2, v57
v_mov_b32 v58, {11*RP}
v_cmp_ge_u32 vcc, 10, v56
v_cndmask_b32 v57, v58, v57, vcc
v_sub_u32 v59, 20, v56
v_mul_u32_u24 v59, {RP}, v59
v_sub_u32 v61, 31, v55
v_lshl_add_u32 v59, v61, 2, v59
v_cmp_le_u32 vcc, 10, v56
v_cndmask_b32 v59, v58, v59, vcc
v_sub_u32 v61, 32, v55
v_lshlrev_b32 v61, 2, v61
v_cmp_eq_u32 vcc, 0, v56
v_cndmask_b32 v59, v59, v61, vcc
v_cmp_eq_u32 vcc, 0, v0
v_cndmask_b32 v59, v59, v58, vcc
v_cmp_eq_u32 vcc, 320, v0
v_cndmask_b32 v59, v59, v58, vcc
v_mov_b32 v40, 0x3f3504f3
v_min_u32 v62, 10, v50
v_mul_u32_u24 v62, {RP}, v62
v_lshl_add_u32 v62, v51, 4, v62
s_mul_i32 s42, s34, {NP}
v_add_u32 v62, s42, v62
v_and_b32 v63, 1, v2
v_lshlrev_b32 v63, 31, v63
v_or_b32 v63, 1.0, v63
v_cmp_gt_u32 vcc, 321, v0
s_and_saveexec_b64 s[44:45], vcc
s_waitcnt vmcnt(12)''')
    k.stamp()
    k(f'''s_cbranch_execz {SKIP}''')
    for k2 in range(8):
        k(f'v_lshlrev_b32 v{20+2*k2}, 16, v{4+k2}\nv_and_b32 v{21+2*k2}, 0xffff0000, v{4+k2}')
    for k2 in range(8):
        if k2 == 0:
            k('v_mov_b32 v4, v20\nv_mov_b32 v5, v21')
        else:
            smul(k, 4 + 2 * k2, 20 + 2 * k2, 16 + 2 * k2, 42 + 2 * (k2 & 1), conj=True)
    T = fft8(k, 4, 20, True, 40)
    for n in range(8):
        k(f'''v_cvt_pk_bf16_f32 v{4+2*n}, v{T[n]}, v{T[n]+1}
v_cvt_pk_bf16_f32 v{5+2*n}, v{T[n]}, -v{T[n]+1}
ds_write_b32 v57, v{4+2*n} offset:{n*NP}
ds_write_b32 v59, v{5+2*n} offset:{n*NP}''')
    k(f'''{SKIP}:
s_mov_b64 exec, -1
s_waitcnt lgkmcnt(0)''')
    k.stamp()
    k(f'''s_barrier''')
    k.stamp()
    k(f'''ds_read_b128 v[4:7], v62
ds_read_b128 v[8:11], v62 offset:64''')
    npf = 0
    if OPT.get('pf2a'):
        npf = 1
        k(f'''s_and_b32 s72, s2, 6
s_lshl_b32 s72, s72, 4
s_lshr_b32 s73, s2, 3
s_add_u32 s72, s72, s73
s_lshl_b32 s72, s72, 3
s_add_u32 s72, s72, s34
s_lshl_b32 s72, s72, 13
s_mov_b32 s70, {2048*4096}
s_mov_b32 s71, 0x00020000
v_lshlrev_b32 v114, 7, v2
buffer_load_ubyte v115, v114, s[68:71], s72 offen''')
    k(f'''s_waitcnt vmcnt({2+npf}) lgkmcnt(1)''')
    for u in range(2):
        if u == 1: k('s_waitcnt lgkmcnt(0)')
        for t in range(2):
            k(f'{MFMA} {vr(12+16*u+8*t,4)}, {vr(4+4*u,4)}, {vr(64+8*t,4)}, 0')
            k(f'{MFMA} {vr(16+16*u+8*t,4)}, {vr(4+4*u,4)}, {vr(68+8*t,4)}, 0')
    for i in range(0, 16, 2):
        k(f'v_pk_fma_f32 {vr(12+i,2)}, {vr(28+i,2)}, v[62:63], {vr(12+i,2)} op_sel:[0,1,0] op_sel_hi:[1,1,1]')
    for t in range(2):
        cmul_planar(k, 12 + 8 * t, 16 + 8 * t, 80 + 8 * t, 84 + 8 * t, 28, 32, 36)
        k(f'''v_cvt_pk_bf16_f32 v{4+4*t}, v28, v29
v_cvt_pk_bf16_f32 v{5+4*t}, v30, v31
v_cvt_pk_bf16_f32 v{6+4*t}, v32, v33
v_cvt_pk_bf16_f32 v{7+4*t}, v34, v35''')
    for v in range(2):
        for t in range(2):
            k(f'{MFMA} {vr(12+8*v+4*t,4)}, {vr(4+4*t,4)}, {vr(96+4*v,4)}, 0')
    k.stamp()
    k(f's_waitcnt vmcnt({npf})')
    k.stamp()
    for i in range(8):
        k(f'v_lshlrev_b32 v{28+2*i}, 16, v{104+i}\nv_and_b32 v{29+2*i}, 0xffff0000, v{104+i}')
    for i in range(8):
        k(f'v_cvt_pk_bf16_f32 v{4+i}, v{12+2*i}, v{13+2*i}')
    for i in range(8):
        k(f'v_lshlrev_b32 v{12+2*i}, 16, v{4+i}\nv_and_b32 v{13+2*i}, 0xffff0000, v{4+i}')
    for i in range(8):
        k(f'v_pk_add_f32 {vr(12+2*i,2)}, {vr(12+2*i,2)}, {vr(28+2*i,2)}')
    for i in range(8):
        k(f'v_cvt_pk_bf16_f32 v{4+i}, v{12+2*i}, v{13+2*i}')
    k('''buffer_store_dwordx4 v[4:7], v52, s[52:55], s35 offen
buffer_store_dwordx4 v[8:11], v53, s[52:55], s35 offen''')
    for i in range(8):
        k(f'v_lshlrev_b32 v{12+2*i}, 16, v{4+i}\nv_and_b32 v{13+2*i}, 0xffff0000, v{4+i}')
    k('''v_pk_add_f32 v[28:29], v[12:13], v[14:15]
v_pk_mul_f32 v[30:31], v[12:13], v[12:13]
v_pk_add_f32 v[32:33], v[16:17], v[18:19]
v_pk_mul_f32 v[34:35], v[14:15], v[14:15]''')
    for i in range(2, 8):
        k(f'v_pk_fma_f32 {vr(30+4*(i&1),2)}, {vr(12+2*i,2)}, {vr(12+2*i,2)}, {vr(30+4*(i&1),2)}')
        if i >= 4:
            k(f'v_pk_add_f32 {vr(28+4*(i&1),2)}, {vr(28+4*(i&1),2)}, {vr(12+2*i,2)}')
    k('''v_pk_add_f32 v[28:29], v[28:29], v[32:33]
v_pk_add_f32 v[30:31], v[30:31], v[34:35]
v_add_f32 v28, v28, v29
v_add_f32 v30, v30, v31''')
    wave_reduce2(k, 28, 30, 36, 37)
    ln_stats(k, 36, 37, 640, 28, 30, 32)
    ln_apply(k, 12, 16, 28, 30, 40)
    k(f'''buffer_store_dwordx4 v[40:43], v112, s[60:63], s59 offen
buffer_store_dwordx4 v[44:47], v113, s[60:63], s59 offen''')
    k.finish(END)
    return k
```

```python
import sys, re
from asmlib import *
from tables import build_tab
import gen_fft, gen3, gen4, gen5
opt = {}
for a in sys.argv[2:]:
    if a == 'prof': Kern.prof = True
    elif '=' in a: opt[a.split('=')[0]] = int(a.split('=')[1])
    else: opt[a] = 1
gen_fft.OPT = opt
mods = {3: gen3, 4: gen4, 5: gen5}
try:
    import gen6; mods[6] = gen6
except ImportError: pass
g3 = mods[opt.get('v3', 5)]
ks = [gen_fft.gen_k0(), (gen_fft.gen_k1b() if opt.get('wl') else gen_fft.gen_k1()), gen_fft.gen_k2a(), gen3.gen_k2(opt), g3.gen_k3(opt), gen3.gen_k4(opt)]
if opt.get('dup3'):
    Kern.count = 5
    ks = ks[:5] + [g3.gen_k3(dict(opt, name3='k3b_kernel'))]
FL = {0: '', 1: 'nt', 2: 'sc1', 3: 'sc0 sc1', 4: 'sc0', 5: 'sc1 nt'}
for i, k in enumerate(ks):
    sf = opt.get(f'sf{i}', opt.get('sf', 0))
    for j, l in enumerate(k.lines):
        if sf and l.startswith('buffer_store') and 's[96:99]' not in l and '; W' not in l: k.lines[j] = l + ' ' + FL[sf]
        if k.name.startswith('k3'):
            if opt.get('zf') and l.startswith('buffer_load_dwordx4') and 's[8:11]' in l: k.lines[j] = l + ' ' + FL[opt['zf']]
            if opt.get('wf') and l.startswith('buffer_load_dwordx4') and 's[4:7]' in l: k.lines[j] = l + ' ' + FL[opt['wf']]
s = build_file(ks, {'tab': build_tab()})
open(sys.argv[1], 'w').write(s)
print(len(s))
```

```python
from asmlib import *
from tables import TAB_BYTES

WS_T = 0x000000
WS_U = 0x300000
WS_H = 0x600000
WS_HN = 0x900000
WS_WF = 0x1E00000
WF_BYTES = 8 * 336 * 1024
import os
TP = int(os.environ.get('TP', 1344))
TU_BYTES = 256 * 8 * TP
X_BYTES = 2048 * 640 * 2
MFMA = 'v_mfma_f32_16x16x32_bf16'


def vr(a, n=1):
    return f'v{a}' if n == 1 else f'v[{a}:{a+n-1}]'


def sr(a, n=1):
    return f's{a}' if n == 1 else f's[{a}:{a+n-1}]'


def srd_from(k, s, lo, hi, off, size):
    if off:
        k(f's_add_u32 s{s}, s{lo}, 0x{off:x}\ns_addc_u32 s{s+1}, s{hi}, 0')
    elif s != lo:
        k(f's_mov_b32 s{s}, s{lo}\ns_mov_b32 s{s+1}, s{hi}')
    k(f's_mov_b32 s{s+2}, 0x{size:x}\ns_mov_b32 s{s+3}, 0x00020000')


def tab_srd(k, s):
    k(f'''s_getpc_b64 s[{s}:{s+1}]
s_add_u32 s{s}, s{s}, tab@rel32@lo+4
s_addc_u32 s{s+1}, s{s+1}, tab@rel32@hi+12
s_mov_b32 s{s+2}, {TAB_BYTES}
s_mov_b32 s{s+3}, 0x00020000''')


def code_srd(k, s, lab, end):
    k(f'''s_getpc_b64 s[{s}:{s+1}]
s_add_u32 s{s}, s{s}, {lab}@rel32@lo+4
s_addc_u32 s{s+1}, s{s+1}, {lab}@rel32@hi+12
s_mov_b32 s{s+2}, {end}-{lab}
s_mov_b32 s{s+3}, 0x00020000''')


OPT = {}
PFF = lambda: '' if OPT.get('nont') else 'nt'


def cmul_planar(k, a, b, c, d, ore, oim, t, conj=False):
    for h in (0, 2):
        k(f'v_pk_mul_f32 {vr(t+h,2)}, {vr(b+h,2)}, {vr(d+h,2)}')
    for h in (0, 2):
        k(f'v_pk_mul_f32 {vr(oim+h,2)}, {vr(b+h,2)}, {vr(c+h,2)}')
    for h in (0, 2):
        if not conj:
            k(f'v_pk_fma_f32 {vr(ore+h,2)}, {vr(a+h,2)}, {vr(c+h,2)}, {vr(t+h,2)} neg_lo:[0,0,1] neg_hi:[0,0,1]')
        else:
            k(f'v_pk_fma_f32 {vr(ore+h,2)}, {vr(a+h,2)}, {vr(c+h,2)}, {vr(t+h,2)}')
    for h in (0, 2):
        if not conj:
            k(f'v_pk_fma_f32 {vr(oim+h,2)}, {vr(a+h,2)}, {vr(d+h,2)}, {vr(oim+h,2)}')
        else:
            k(f'v_pk_fma_f32 {vr(oim+h,2)}, {vr(a+h,2)}, {vr(d+h,2)}, {vr(oim+h,2)} neg_lo:[1,0,0] neg_hi:[1,0,0]')


def wave_reduce2(k, a, b, sa, sb):
    for m in ('quad_perm:[1,0,3,2] row_mask:0xf bank_mask:0xf', 'quad_perm:[2,3,0,1] row_mask:0xf bank_mask:0xf',
              'row_half_mirror row_mask:0xf bank_mask:0xf', 'row_mirror row_mask:0xf bank_mask:0xf',
              'row_bcast:15 row_mask:0xa bank_mask:0xf', 'row_bcast:31 row_mask:0xc bank_mask:0xf'):
        k(f'v_add_f32_dpp v{a}, v{a}, v{a} {m}')
        k(f'v_add_f32_dpp v{b}, v{b}, v{b} {m}')
    k(f'v_readlane_b32 s{sa}, v{a}, 63\nv_readlane_b32 s{sb}, v{b}, 63')


def ln_stats(k, sa, sb, n, vm, vrs, t):
    inv = np.float32(1.0 / n).view(np.uint32)
    k(f'''v_mov_b32 v{t}, 0x{inv:x}
v_mul_f32 v{vm}, s{sa}, v{t}
v_mul_f32 v{t+1}, s{sb}, v{t}
v_fma_f32 v{t+1}, -v{vm}, v{vm}, v{t+1}
v_max_f32 v{t+1}, 0, v{t+1}
v_cvt_pk_bf16_f32 v{t}, v{vm}, v{t+1}
v_lshlrev_b32 v{vm}, 16, v{t}
v_and_b32 v{t+1}, 0xffff0000, v{t}
v_add_f32 v{t+1}, 0x3727c5ac, v{t+1}
v_cvt_pk_bf16_f32 v{t}, v{t+1}, v{t+1}
v_and_b32 v{t}, 0xffff0000, v{t}
v_sqrt_f32 v{t}, v{t}
v_cvt_pk_bf16_f32 v{t}, v{t}, v{t}
v_and_b32 v{t}, 0xffff0000, v{t}
v_rcp_f32 v{vrs}, v{t}''')


def ln_apply(k, f, n, vm, vrs, out):
    for i in range(0, n, 2):
        k(f'v_pk_add_f32 {vr(f+i,2)}, {vr(f+i,2)}, {vr(vm,2)} op_sel_hi:[1,0] neg_lo:[0,1] neg_hi:[0,1]')
    for i in range(0, n, 2):
        k(f'v_cvt_pk_bf16_f32 v{out+i//2}, v{f+i}, v{f+i+1}')
    for i in range(0, n, 2):
        k(f'v_lshlrev_b32 v{f+i}, 16, v{out+i//2}\nv_and_b32 v{f+i+1}, 0xffff0000, v{out+i//2}')
    for i in range(0, n, 2):
        k(f'v_pk_mul_f32 {vr(f+i,2)}, {vr(f+i,2)}, {vr(vrs,2)} op_sel_hi:[1,0]')
    for i in range(0, n, 2):
        k(f'v_cvt_pk_bf16_f32 v{out+i//2}, v{f+i}, v{f+i+1}')


SW = 'op_sel:[0,1] op_sel_hi:[1,0]'


def fft8(k, R, A, inverse, vs):
    r = lambda i: vr(R + 2 * i, 2)
    a = lambda i: vr(A + 2 * i, 2)
    neg = 'neg_lo:[0,1] neg_hi:[0,1]'
    mi = SW + ' neg_hi:[0,1]'
    pi = SW + ' neg_lo:[0,1]'
    if inverse: mi, pi = pi, mi
    k(f'''v_pk_add_f32 {a(0)}, {r(0)}, {r(4)}
v_pk_add_f32 {a(1)}, {r(0)}, {r(4)} {neg}
v_pk_add_f32 {a(2)}, {r(2)}, {r(6)}
v_pk_add_f32 {a(3)}, {r(2)}, {r(6)} {neg}
v_pk_add_f32 {a(4)}, {r(1)}, {r(5)}
v_pk_add_f32 {a(5)}, {r(1)}, {r(5)} {neg}
v_pk_add_f32 {a(6)}, {r(3)}, {r(7)}
v_pk_add_f32 {a(7)}, {r(3)}, {r(7)} {neg}
v_pk_add_f32 {r(0)}, {a(0)}, {a(2)}
v_pk_add_f32 {r(1)}, {a(0)}, {a(2)} {neg}
v_pk_add_f32 {r(2)}, {a(4)}, {a(6)}
v_pk_add_f32 {r(3)}, {a(4)}, {a(6)} {neg}
v_pk_add_f32 {r(4)}, {a(1)}, {a(3)} {mi}
v_pk_add_f32 {r(5)}, {a(1)}, {a(3)} {pi}
v_pk_add_f32 {r(6)}, {a(5)}, {a(7)} {mi}
v_pk_add_f32 {r(7)}, {a(5)}, {a(7)} {pi}
v_pk_add_f32 {a(0)}, {r(0)}, {r(2)}
v_pk_add_f32 {a(4)}, {r(0)}, {r(2)} {neg}
v_pk_add_f32 {a(2)}, {r(1)}, {r(3)} {mi}
v_pk_add_f32 {a(6)}, {r(1)}, {r(3)} {pi}
v_pk_add_f32 {r(0)}, {r(6)}, {r(6)} {mi}
v_pk_add_f32 {r(1)}, {r(7)}, {r(7)} {pi}
v_pk_fma_f32 {a(1)}, {r(0)}, {vr(vs,2)}, {r(4)} op_sel_hi:[1,0,1]
v_pk_fma_f32 {a(5)}, {r(0)}, {vr(vs,2)}, {r(4)} op_sel_hi:[1,0,1] neg_lo:[1,0,0] neg_hi:[1,0,0]
v_pk_fma_f32 {a(3)}, {r(1)}, {vr(vs,2)}, {r(5)} op_sel_hi:[1,0,1] neg_lo:[1,0,0] neg_hi:[1,0,0]
v_pk_fma_f32 {a(7)}, {r(1)}, {vr(vs,2)}, {r(5)} op_sel_hi:[1,0,1]''')
    return [A + 2 * i for i in range(8)]


def smul(k, dst, src, s, tmp, conj=False):
    k(f'v_pk_mul_f32 {vr(tmp,2)}, {vr(src,2)}, {sr(s,2)} op_sel_hi:[1,0]')
    ng = 'neg_hi:[1,0,0]' if conj else 'neg_lo:[1,0,0]'
    k(f'v_pk_fma_f32 {vr(dst,2)}, {vr(src,2)}, {sr(s,2)}, {vr(tmp,2)} op_sel:[1,1,0] op_sel_hi:[0,1,1] {ng}')


def k0_prefetch(k):
    L = [k.label('pf') for _ in range(8)]; J = k.label('pfj'); SK = k.label('pfs')
    if OPT.get('wl'):
        k(f'''s_mov_b32 s68, s12
s_mov_b32 s69, s13
s_mov_b32 s70, 0
s_mov_b32 s71, 0x00020000
s_mov_b32 s72, 0
v_mov_b32 v100, 0
s_cmp_lt_u32 s34, 5
s_cbranch_scc1 {J}''')
    elif not OPT.get('pfw'): k(f's_cmp_lt_u32 s34, 5\ns_cbranch_scc1 {SK}')
    k(f'''v_lshlrev_b32 v100, 7, v2
s_lshl_b32 s72, s2, 13
s_lshr_b32 s73, s2, 3
s_mov_b32 s71, 0x00020000
s_cmp_ge_u32 s34, 2
s_cbranch_scc1 {L[2]}
s_cmp_eq_u32 s34, 0
s_cselect_b32 s68, s56, s58
s_cselect_b32 s69, s57, s59
s_mov_b32 s70, {2048*642}
v_and_b32 v100, 7, v2
v_lshlrev_b32 v100, 7, v100
v_min_u32 v100, 640, v100
v_lshrrev_b32 v101, 3, v2
v_mul_u32_u24 v101, {8*642}, v101
v_add_u32 v100, v100, v101
s_and_b32 s72, s2, 7
s_lshl_b32 s74, s73, 6
s_add_u32 s72, s72, s74
s_mul_i32 s72, s72, 642
s_branch {J}
{L[2]}:
s_cmp_ge_u32 s34, 4
s_cbranch_scc1 {L[4]}
s_mov_b32 s68, s62
s_mov_b32 s69, s63
s_mov_b32 s70, {640*3456}
s_cmp_eq_u32 s34, 3
s_cselect_b32 s74, {1<<21}, 0
s_add_u32 s72, s72, s74
s_branch {J}
{L[4]}:
s_cmp_ge_u32 s34, 5
s_cbranch_scc1 {L[5]}
s_mov_b32 s68, s64
s_mov_b32 s69, s65
s_mov_b32 s70, {864*1280}
s_branch {J}
{L[5]}:
s_and_b32 s72, s73, 7
s_lshl_b32 s72, s72, 13
s_cmp_ge_u32 s34, 6
s_cbranch_scc1 {L[6]}
s_mov_b32 s68, s12
s_mov_b32 s69, s13
s_mov_b32 s70, s14
s_add_u32 s72, s72, 0x2000
s_branch {J}
{L[6]}:''')
    code_srd(k, 68, 'k1_kernel', 'code_end')
    k(f'''s_cmp_eq_u32 s34, 7
s_cselect_b32 s74, 0x10000, 0
s_add_u32 s72, s72, s74
{J}:
buffer_load_ubyte v101, v100, s[68:71], s72 offen
{SK}:''')


def k0_wrole(k, WROLE, END):
    k(f'''{WROLE}:
s_cmp_ge_u32 s2, 320
s_cbranch_scc1 {END}
s_load_dwordx4 s[4:7], s[0:1], 8
s_load_dwordx2 s[40:41], s[0:1], 80''')
    k.nst = 0
    k.stamp(True)
    k(f'''v_lshrrev_b32 v1, 6, v0
v_and_b32 v2, 63, v0
v_readfirstlane_b32 s34, v1
s_and_b32 s33, s2, 7
s_and_b32 s35, s2, 8
s_lshr_b32 s36, s2, 4
s_and_b32 s36, s36, 3
s_add_u32 s37, s35, s34
s_lshl_b32 s38, s36, 6
s_add_u32 s37, s37, s38
s_lshl_b32 s37, s37, 3
s_add_u32 s37, s37, s33
s_mul_i32 s42, s37, 642
s_and_b32 s42, s42, {-128 if OPT.get('wxb') else -4}
s_add_u32 s43, s42, {128*642}
s_add_u32 s44, s42, {256*642}
s_add_u32 s45, s42, {384*642}
v_lshlrev_b32 v3, 4, v2
s_mov_b32 exec_lo, -1
s_mov_b32 exec_hi, 0xff
s_waitcnt lgkmcnt(0)
s_mov_b32 s8, s6
s_mov_b32 s9, s7
s_mov_b32 s6, {2048*642}
s_mov_b32 s7, 0x00020000
s_mov_b32 s10, {2048*642}
s_mov_b32 s11, 0x00020000''')
    R = lambda r, a: 16 + 12 * r + 6 * a
    for r in range(4):
        k(f'buffer_load_dwordx4 {vr(R(r,0),4)}, v3, s[4:7], s{42+r} offen')
        k(f'buffer_load_dwordx4 {vr(R(r,1),4)}, v3, s[8:11], s{42+r} offen')
    if OPT.get('wxa'): k('s_mov_b64 exec, 1')
    for r in range(4):
        k(f'buffer_load_dword v{R(r,0)+4}, v3, s[4:7], s{42+r} offen offset:16')
        k(f'buffer_load_dword v{R(r,1)+4}, v3, s[8:11], s{42+r} offen offset:16')
    k('s_mov_b64 exec, -1')
    srd_from(k, 12, 40, 41, WS_WF, WF_BYTES)
    ODD = k.label('odd'); JN = k.label('jn')
    k(f'''s_lshl_b32 s38, s34, 4
v_mul_u32_u24 v6, 1040, v2
v_add_u32 v6, s38, v6
s_mul_i32 s38, s34, 1040
v_lshlrev_b32 v8, 4, v2
v_add_u32 v8, s38, v8
v_lshrrev_b32 v9, 3, v2
v_and_b32 v10, 7, v2
v_lshlrev_b32 v10, 4, v10
v_lshl_add_u32 v9, v9, 10, v10
s_mul_i32 s46, s33, {336*1024}
s_lshl_b32 s38, s36, 8
s_add_u32 s46, s46, s38
s_lshl_b32 s38, s35, 4
s_add_u32 s46, s46, s38
s_lshl_b32 s38, s34, 13
s_add_u32 s46, s46, s38
s_mov_b32 s47, 0x05040100
s_mov_b32 s48, 0x07060302
s_mov_b32 exec_lo, -1
s_mov_b32 exec_hi, 0xff
s_bitcmp1_b32 s33, 0
s_waitcnt vmcnt(8)''')
    k.stamp()
    k(f's_cbranch_scc1 {ODD}')
    for par in range(2):
        for j in range(9):
            hj = j + par
            if hj >= 8 and (j == 8 - par): k('s_waitcnt vmcnt(0)')
            if j == 8: k(f's_mov_b32 exec_lo, 0\ns_mov_b32 exec_hi, 0x80')
            for r in range(4):
                k(f'v_perm_b32 v{64+4*j+r}, v{R(r,1)+hj//2}, v{R(r,0)+hj//2}, s{47+(hj&1)}')
            k(f'ds_write_b128 v6, {vr(64+4*j,4)} offset:{128*j if j < 8 else 1040}')
        if par == 0: k(f's_branch {JN}\n{ODD}:')
    k(f'''{JN}:
s_mov_b64 exec, -1
s_waitcnt lgkmcnt(0)''')
    k.stamp()
    k('s_barrier')
    k.stamp()
    for i in range(5):
        k(f'ds_read_b128 {vr(16+4*i,4)}, v8 offset:{8*1040*i}')
    L = k.label('w5')
    k(f's_cmp_lg_u32 s34, 0\ns_cbranch_scc1 {L}\ns_mov_b64 exec, 0xff')
    k(f'''ds_read_b128 v[36:39], v8 offset:{40*1040}
s_add_u32 s38, s46, {320*1024}
s_waitcnt lgkmcnt(0)
buffer_store_dwordx4 v[36:39], v9, s[12:15], s38 offen sc1 ; W
s_mov_b64 exec, -1
{L}:''')
    for i in range(5):
        k(f's_waitcnt lgkmcnt({4-i})\nbuffer_store_dwordx4 {vr(16+4*i,4)}, v9, s[12:15], s46 offen sc1 ; W')
        if i < 4: k(f's_add_u32 s46, s46, {64*1024}')


def gen_k0():
    XP = 1280; EX0 = 10240; EXP = 2576
    WX = OPT.get('wx', 0)
    LT = OPT.get('lt', 0); TB0 = EX0 + 8 * EXP
    k = Kern('k0_kernel', 320 if WX else 256, 512, max(41 * 1040 if WX else 0, TB0 + 8192 * LT), nvgpr=128)
    END = k.label('end'); WROLE = k.label('wrole')
    k(f'''s_cmp_ge_u32 s2, 256
s_cbranch_scc1 {WROLE if WX else END}
{f"s_branch {END}" if OPT.get('wxc') else ""}
s_load_dwordx2 s[4:5], s[0:1], 0
s_load_dwordx2 s[40:41], s[0:1], 80
s_load_dwordx8 s[56:63], s[0:1], 8
s_load_dwordx2 s[64:65], s[0:1], 56''')
    k.stamp(True)
    tab_srd(k, 12)
    k(f'''s_and_b32 s3, s2, 7
s_lshl_b32 s3, s3, 5
s_lshr_b32 s33, s2, 3
s_add_u32 s3, s3, s33
s_lshl_b32 s33, s3, 6
s_add_u32 s33, s33, 32768
s_load_dwordx16 s[16:31], s[12:13], s33
v_lshrrev_b32 v1, 6, v0
v_and_b32 v2, 63, v0
v_readfirstlane_b32 s34, v1
v_lshlrev_b32 v3, 4, v2
s_movk_i32 s38, 0x1000''')
    if LT:
        k(f'''s_lshl_b32 s38, s34, 10
s_add_u32 m0, s38, {TB0}
buffer_load_dwordx4 v3, s[12:15], s38 offen lds''')
    else:
      for i in range(8):
        so = '0' if i < 4 else 's38'
        k(f'buffer_load_dwordx4 {vr(64+4*i,4)}, v3, s[12:15], {so} offen offset:{(i%4)*1024}')
    k(f'''s_lshl_b32 s35, s34, 8
s_add_u32 s35, s35, s3
s_mul_i32 s35, s35, 1280
v_lshlrev_b32 v58, 3, v2
v_lshlrev_b32 v59, 2, v2
s_waitcnt lgkmcnt(0)''')
    srd_from(k, 4, 4, 5, 0, X_BYTES)
    srd_from(k, 8, 40, 41, WS_T, TU_BYTES)
    k(f'''s_lshl_b32 s33, s2, 6
s_add_u32 s33, s33, 0x1800000
s_add_u32 s52, s40, s33
s_addc_u32 s53, s41, 0
s_mov_b32 s54, 64
s_mov_b32 s55, 0x00020000
v_lshlrev_b32 v62, 2, v0
v_mov_b32 v63, 0
buffer_store_dword v63, v62, s[52:55], 0 offen''')
    k(f'''buffer_load_dwordx2 v[4:5], v58, s[4:7], s35 offen
buffer_load_dwordx2 v[6:7], v58, s[4:7], s35 offen offset:512
buffer_load_dword v8, v59, s[4:7], s35 offen offset:1024''')
    WL = OPT.get('wl', 0)

    def w_loads():
        k(f'''s_and_b32 s76, s2, 7
s_lshr_b32 s77, s2, 3
s_and_b32 s77, s77, 7
s_lshl_b32 s77, s77, 1
s_and_b32 s78, s34, 1
s_add_u32 s77, s77, s78
s_lshr_b32 s78, s2, 6
s_lshl_b32 s79, s78, 6
s_add_u32 s79, s79, s77
s_lshl_b32 s79, s79, 3
s_add_u32 s79, s79, s76
s_mul_i32 s80, s79, 642
s_add_u32 s81, s80, {128*642}
s_add_u32 s82, s80, {256*642}
s_add_u32 s75, s80, {384*642}
s_lshl_b32 s78, s78, 4
s_add_u32 s78, s78, s77
s_lshl_b32 s78, s78, 4
s_mul_i32 s76, s76, {336*1024}
s_add_u32 s76, s76, s78
s_lshr_b32 s77, s34, 1
s_lshl_b32 s77, s77, 6
v_add_u32 v102, s77, v2
v_add_u32 v103, 256, v102
v_mov_b32 v104, 0x1fffff
v_cmp_gt_u32 vcc, 321, v103
v_cndmask_b32 v103, v104, v103, vcc
v_lshlrev_b32 v104, 1, v102
v_lshlrev_b32 v105, 1, v103
v_lshlrev_b32 v102, 10, v102
v_lshlrev_b32 v103, 10, v103
s_mov_b32 s62, s58
s_mov_b32 s63, s59
s_mov_b32 s58, {2048*642}
s_mov_b32 s59, 0x00020000
s_mov_b32 s60, s62
s_mov_b32 s61, s63
s_mov_b32 s62, {2048*642}
s_mov_b32 s63, 0x00020000''')
        srd_from(k, 64, 40, 41, WS_WF, WF_BYTES)
        so = ['s80', 's81', 's82', 's75']
        for u in range(2):
            for r in range(4):
                k(f'buffer_load_ushort v{108+4*u+r}, v{104+u}, s[56:59], {so[r]} offen')
                k(f'buffer_load_ushort v{116+4*u+r}, v{104+u}, s[60:63], {so[r]} offen')

    def w_stores(n):
        k(f's_waitcnt vmcnt({n})')
        for u in range(2):
            for r in range(4):
                k(f'v_lshl_or_b32 v{108+4*u+r}, v{116+4*u+r}, 16, v{108+4*u+r}')
            k(f'buffer_store_dwordx4 {vr(108+4*u,4)}, v{102+u}, s[64:67], s76 offen ; W')
    if WL == 1: w_loads()
    WD = OPT.get('wd', 0)
    if WD:
        k(f'''s_bitcmp1_b32 s34, 0
s_cselect_b32 s68, s58, s56
s_cselect_b32 s69, s59, s57
s_cmp_ge_u32 s34, {8-2}
s_cselect_b32 s70, {2048*642}, 0
s_mov_b32 s71, 0x00020000
v_and_b32 v100, 7, v2
v_lshlrev_b32 v100, 7, v100
v_min_u32 v100, 640, v100
v_lshrrev_b32 v101, 3, v2
v_mul_u32_u24 v101, {8*642}, v101
v_add_u32 v100, v100, v101
s_and_b32 s72, s2, 7
s_lshr_b32 s73, s2, 3
s_lshl_b32 s74, s73, 6
s_add_u32 s72, s72, s74
s_mul_i32 s72, s72, 642''')
        if WD == 1: k('buffer_load_ubyte v101, v100, s[68:71], s72 offen')
    if OPT.get('tlb'):
        TL = k.label('tl')
        k(f'''s_mov_b32 s82, 0
s_cmp_lg_u32 s34, 4
s_cbranch_scc1 {TL}
s_cmp_ge_u32 s2, {8*OPT['tlb']}
s_cbranch_scc1 {TL}
s_load_dwordx4 s[76:79], s[0:1], 40
s_load_dwordx2 s[80:81], s[0:1], 64
s_mov_b32 s82, 1
v_lshlrev_b32 v106, 21, v2
s_mov_b32 s71, 0x00020000''')
        for lo, sz in ((56, 2048*642), (58, 2048*642), (40, 0x2200000), (62, 640*3456), (64, 864*1280), (76, 2048*4096), (78, 4096), (80, X_BYTES)):
            if lo == 76: k('s_waitcnt lgkmcnt(0)')
            k(f's_mov_b32 s68, s{lo}\ns_mov_b32 s69, s{lo+1}\ns_mov_b32 s70, 0x{sz:x}\nbuffer_load_ubyte v107, v106, s[68:71], 0 offen')
        k(f's_waitcnt vmcnt(8)\n{TL}:')
    k(f'''s_mul_i32 s39, s34, {XP}
v_add_u32 v58, s39, v58
v_add_u32 v59, s39, v59
v_and_b32 v50, 15, v2
v_lshrrev_b32 v51, 4, v2
v_lshrrev_b32 v52, 2, v50
v_and_b32 v53, 3, v50
v_lshl_add_u32 v54, v51, 3, v52
v_add_u32 v55, 4, v54
v_subrev_u32 v56, 20, v54
v_min_u32 v54, v54, v56
v_subrev_u32 v56, 20, v55
v_min_u32 v55, v55, v56
v_lshlrev_b32 v53, 3, v53
v_lshl_add_u32 v54, v54, 6, v53
v_lshl_add_u32 v55, v55, 6, v53
v_add_u32 v54, s39, v54
v_add_u32 v55, s39, v55
s_mul_i32 s42, s34, {EXP}
s_add_u32 s42, s42, {EX0}
v_mul_u32_u24 v56, 80, v51
v_add_u32 v57, v56, v50
v_lshlrev_b32 v57, 3, v57
v_add_u32 v60, s42, v57
v_sub_u32 v61, {8*260}, v57
v_add_u32 v61, s42, v61
{"s_cmp_eq_u32 s82, 1" if OPT.get('tlb') else ""}
{"s_cbranch_scc1 k0_skipw" if OPT.get('tlb') else ""}
s_waitcnt vmcnt({16 if WL == 1 else (1 if WD == 1 else 0)})
{"k0_skipw:" if OPT.get('tlb') else ""}''')
    k.stamp()
    if LT:
        k('s_barrier')
        for i in range(8): k(f'ds_read_b128 {vr(64+4*i,4)}, v3 offset:{TB0+1024*i}')
    if WL == 2: w_loads()
    if WD == 2: k('buffer_load_ubyte v101, v100, s[68:71], s72 offen')
    if not OPT.get('nopf'):
        k0_prefetch(k)
    for i in range(5):
        k(f'v_lshlrev_b32 v{10+2*i}, 16, v{4+i}\nv_and_b32 v{11+2*i}, 0xffff0000, v{4+i}')
    k('''v_pk_add_f32 v[20:21], v[10:11], v[12:13]
v_pk_mul_f32 v[22:23], v[10:11], v[10:11]
v_pk_add_f32 v[24:25], v[14:15], v[16:17]
v_pk_fma_f32 v[22:23], v[12:13], v[12:13], v[22:23]
v_pk_add_f32 v[20:21], v[20:21], v[18:19]
v_pk_fma_f32 v[22:23], v[14:15], v[14:15], v[22:23]
v_pk_add_f32 v[20:21], v[20:21], v[24:25]
v_pk_fma_f32 v[22:23], v[16:17], v[16:17], v[22:23]
v_pk_fma_f32 v[22:23], v[18:19], v[18:19], v[22:23]
v_add_f32 v20, v20, v21
v_add_f32 v22, v22, v23''')
    wave_reduce2(k, 20, 22, 36, 37)
    ln_stats(k, 36, 37, 640, 20, 22, 24)
    ln_apply(k, 10, 10, 20, 22, 4)
    k('''ds_write_b64 v58, v[4:5]
ds_write_b64 v58, v[6:7] offset:512
ds_write_b32 v59, v8 offset:1024
s_waitcnt lgkmcnt(0)
ds_read_b64_tr_b16 v[4:5], v54
ds_read_b64_tr_b16 v[6:7], v55
ds_read_b64_tr_b16 v[8:9], v54 offset:32
ds_read_b64_tr_b16 v[10:11], v55 offset:32
s_waitcnt lgkmcnt(2)''')
    k(f'''{MFMA} v[12:15], v[4:7], v[64:67], 0
{MFMA} v[16:19], v[4:7], v[68:71], 0
s_waitcnt lgkmcnt(0)
{MFMA} v[20:23], v[8:11], v[64:67], 0
{MFMA} v[24:27], v[8:11], v[68:71], 0''')
    cmul_planar(k, 12, 16, 72, 76, 28, 32, 44)
    cmul_planar(k, 20, 24, 80, 84, 36, 40, 44)
    for t in range(2):
        for h in range(2):
            re = 28 + 8 * t + 2 * h; im = 32 + 8 * t + 2 * h; o = 2 * t + h
            k(f'''v_cvt_pk_bf16_f32 v{4+o}, v{re}, v{re+1}
v_cvt_pk_bf16_f32 v{8+o}, v{im}, v{im+1}
v_cvt_pk_bf16_f32 v{12+o}, -v{im}, -v{im+1}
v_cvt_pk_bf16_f32 v{16+o}, v{re}, -v{re+1}
v_cvt_pk_bf16_f32 v{20+o}, v{im}, -v{im+1}
v_cvt_pk_bf16_f32 v{24+o}, -v{im}, v{im+1}''')
    k(f'''{MFMA} v[28:31], v[88:91], v[4:7], 0
{MFMA} v[32:35], v[92:95], v[4:7], 0
{MFMA} v[36:39], v[88:91], v[16:19], 0
{MFMA} v[40:43], v[92:95], v[16:19], 0
{MFMA} v[28:31], v[92:95], v[12:15], v[28:31]
{MFMA} v[32:35], v[88:91], v[8:11], v[32:35]
{MFMA} v[36:39], v[92:95], v[24:27], v[36:39]
{MFMA} v[40:43], v[88:91], v[20:23], v[40:43]
s_mov_b32 exec_lo, 0x07ff07ff
s_mov_b32 exec_hi, 0x07ff07ff''')
    for r in range(4):
        k(f'ds_write2_b32 v60, v{28+r}, v{32+r} offset0:{40*r} offset1:{40*r+1}')
    for r in range(4):
        k(f'v_xor_b32 v{40+r}, 0x80000000, v{40+r}')
    for r in range(4):
        k(f'ds_write2_b32 v61, v{36+r}, v{40+r} offset0:{40*(3-r)} offset1:{40*(3-r)+1}')
    k(f'''s_mov_b64 exec, -1''')
    if WL == 1: w_stores(1)
    k(f'''s_waitcnt lgkmcnt(0)''')
    k.stamp()
    k(f'''s_barrier''')
    k.stamp()
    TAIL = k.label('tail'); TAIL2 = k.label('tail')
    k(f'''v_cmp_gt_u32 vcc, {TP//4 if OPT.get('fullt') else 321}, v0
s_and_saveexec_b64 s[44:45], vcc
s_cbranch_execz {TAIL if WL == 2 else END}
v_lshlrev_b32 v1, 3, v0
v_lshlrev_b32 v2, 2, v0''')
    for n in range(8):
        k(f'ds_read_b64 {vr(4+2*n,2)}, v1 offset:{EX0+n*EXP}')
    k(f'''v_mov_b32 v40, 0x3f3504f3
s_mul_i32 s46, s3, {8*TP}
s_add_u32 s47, s46, {3*TP}
s_add_u32 s48, s46, {6*TP}
s_waitcnt lgkmcnt(0)''')
    T = fft8(k, 4, 20, False, 40)
    for k2 in range(8):
        if k2 == 0:
            k(f'v_cvt_pk_bf16_f32 v4, v{T[0]}, v{T[0]+1}')
        else:
            smul(k, T[k2], T[k2], 16 + 2 * k2, 42 + 2 * (k2 & 1))
            k(f'v_cvt_pk_bf16_f32 v{4+k2}, v{T[k2]}, v{T[k2]+1}')
        k(f'buffer_store_dword v{4+k2}, v2, s[8:11], s{46+k2//3} offen offset:{(k2%3)*TP+4*(k2&1)*(OPT.get("sh",0)==1)}')
    if WL == 2:
        k(f's_waitcnt vmcnt(9)\ns_branch {TAIL2}\n{TAIL}:\ns_waitcnt vmcnt(1)\n{TAIL2}:\ns_mov_b64 exec, -1')
        w_stores(63)
    if WX:
        k(f's_branch {END}')
        k0_wrole(k, WROLE, END)
    k.finish(END)
    return k


def gen_k1():
    P = 1040; W0 = 16 * P
    import gen3
    NPF = OPT.get('npf1', 4)
    NG = 256 if NPF else 220
    k = Kern('k1_kernel', NG, 256, 83968 if NPF else 65536, nvgpr=160)
    END = k.label('end'); MAIN = k.label('main'); PREP = k.label('prep')
    k(f'''s_cmp_ge_u32 s2, {NG}
s_cbranch_scc1 {END}
s_cmp_lt_u32 s2, 168
s_cbranch_scc1 {MAIN}
s_load_dwordx2 s[40:41], s[0:1], 80''')
    k.stamp(True)
    if NPF:
        k(f'''s_cmp_lt_u32 s2, 220
s_cbranch_scc1 {PREP}
s_load_dwordx2 s[4:5], s[0:1], 40
v_lshrrev_b32 v1, 6, v0
v_and_b32 v2, 63, v0
v_readfirstlane_b32 s35, v1
s_sub_u32 s33, s2, 220
s_lshl_b32 s33, s33, 2
s_add_u32 s33, s33, s35
s_lshl_b32 s33, s33, 13
v_lshlrev_b32 v3, 7, v2
s_mov_b32 s6, {2048*4096}
s_mov_b32 s7, 0x00020000
s_waitcnt lgkmcnt(0)''')
        for i in range(NPF):
            k(f'buffer_load_ubyte v4, v3, s[4:7], s33 offen\ns_add_u32 s33, s33, {144*8192}')
        k(f's_branch {END}\n{PREP}:')
    if OPT.get('k1noprep'): k(f's_branch {END}')
    gen3.gen_prep(k, 168, END)
    k.nst = 0
    k(f'''{MAIN}:
s_load_dwordx2 s[4:5], s[0:1], 8
s_load_dwordx2 s[16:17], s[0:1], 16
s_load_dwordx2 s[40:41], s[0:1], 80''')
    k.stamp(True)
    tab_srd(k, 12)
    k(f'''s_and_b32 s33, s2, 7
s_lshr_b32 s34, s2, 3
v_lshrrev_b32 v1, 6, v0
v_and_b32 v2, 63, v0
v_readfirstlane_b32 s35, v1
v_lshlrev_b32 v3, 4, v2
s_movk_i32 s38, 0x2000
s_movk_i32 s39, 0x3000
v_and_b32 v4, 15, v2
v_lshrrev_b32 v5, 4, v2''')
    for i in range(8):
        k(f'buffer_load_dwordx4 {vr(96+4*i,4)}, v3, s[12:15], s{38+i//4} offen offset:{(i%4)*1024}')
    k(f'''v_mul_u32_u24 v6, {16*8*TP}, v4
v_lshl_add_u32 v6, v5, 4, v6
s_lshl_b32 s36, s35, 5
s_add_u32 s36, s36, s33
s_mul_i32 s36, s36, {TP}
s_lshl_b32 s37, s34, 6
s_add_u32 s36, s36, s37
s_add_u32 s42, s36, {8*TP}
s_add_u32 s43, s36, {16*TP}
s_add_u32 s44, s36, {24*TP}
v_and_b32 v7, 1, v5
v_lshrrev_b32 v8, 1, v5
v_lshl_add_u32 v9, v4, 4, v7
v_mul_u32_u24 v9, {8*642}, v9
v_lshl_add_u32 v9, v8, 4, v9
s_lshl_b32 s45, s35, 5
s_add_u32 s45, s45, s33
s_mul_i32 s45, s45, 642
s_lshl_b32 s37, s34, 5
s_add_u32 s45, s45, s37
s_add_u32 s46, s45, {16*642}
s_waitcnt lgkmcnt(0)''')
    srd_from(k, 4, 4, 5, 0, 2048 * 642)
    srd_from(k, 16, 16, 17, 0, 2048 * 642)
    srd_from(k, 8, 40, 41, WS_T, TU_BYTES)
    srd_from(k, 20, 40, 41, WS_U, TU_BYTES)
    so = ['s36', 's42', 's43', 's44']
    for i in range(4):
        k(f'buffer_load_dwordx4 {vr(16+4*i,4)}, v6, s[8:11], {so[i]} offen')
    for i in range(2):
        if OPT.get('k1now'):
            k(f'buffer_load_dwordx4 {vr(32+8*i,4)}, v3, s[12:15], 0 offen')
            k(f'buffer_load_dwordx4 {vr(36+8*i,4)}, v3, s[12:15], 0 offen')
            continue
        k(f'buffer_load_dwordx4 {vr(32+8*i,4)}, v9, s[4:7], s{45+i} offen')
        k(f'buffer_load_dwordx4 {vr(36+8*i,4)}, v9, s[16:19], s{45+i} offen')
    k(f'''v_mul_u32_u24 v10, {4*P}, v5
v_lshl_add_u32 v10, v4, 2, v10
s_lshl_b32 s37, s35, 8
v_add_u32 v10, s37, v10
v_mul_u32_u24 v11, {8*P}, v8
v_lshl_add_u32 v11, v7, 6, v11
v_lshl_add_u32 v11, v4, 2, v11
v_add_u32 v11, s37, v11
v_lshlrev_b32 v12, 6, v4
v_lshl_add_u32 v12, v5, 4, v12
s_mul_i32 s37, s35, {4*P}
v_add_u32 v12, s37, v12
s_mov_b32 s47, 0x05040100
s_mov_b32 s48, 0x07060302''')
    for i in range(4):
        k(f's_waitcnt vmcnt({7-i})')
        for j in range(4):
            k(f'ds_write_b32 v10, v{16+4*i+j} offset:{j*P+64*i}')
    k.stamp()
    for i in range(2):
        k(f's_waitcnt vmcnt({2-2*i})')
        for j in range(4):
            k(f'v_perm_b32 v{48+2*j}, v{36+8*i+j}, v{32+8*i+j}, s47')
            k(f'v_perm_b32 v{49+2*j}, v{36+8*i+j}, v{32+8*i+j}, s48')
        for j in range(8):
            k(f'ds_write_b32 v11, v{48+j} offset:{W0+j*P+128*i}')
    k('s_waitcnt lgkmcnt(0)')
    k.stamp()
    k('s_barrier')
    k.stamp()
    for c in range(4):
        k(f'ds_read_b128 {vr(16+4*c,4)}, v12 offset:{c*P}')
    for c in range(4):
        k(f'ds_read_b128 {vr(32+4*c,4)}, v12 offset:{W0+c*P}')
    for c in range(4):
        k(f's_waitcnt lgkmcnt({7-c})')
        k(f'{MFMA} {vr(48+8*c,4)}, {vr(16+4*c,4)}, v[96:99], 0')
        k(f'{MFMA} {vr(52+8*c,4)}, {vr(16+4*c,4)}, v[100:103], 0')

    def pack(c, re, im):
        k(f'''v_cvt_pk_bf16_f32 v{16+4*c}, v{re}, v{re+1}
v_cvt_pk_bf16_f32 v{17+4*c}, v{re+2}, v{re+3}
v_cvt_pk_bf16_f32 v{18+4*c}, v{im}, v{im+1}
v_cvt_pk_bf16_f32 v{19+4*c}, v{im+2}, v{im+3}''')
    for c in range(4):
        cmul_planar(k, 48 + 8 * c, 52 + 8 * c, 104, 108, 80, 84, 88)
        pack(c, 80, 84)
        k(f'{MFMA} {vr(48+8*c,4)}, v[112:115], {vr(16+4*c,4)}, 0')
        k(f'{MFMA} {vr(52+8*c,4)}, v[116:119], {vr(16+4*c,4)}, 0')
    k('s_waitcnt lgkmcnt(0)')
    for c in range(4):
        for r in range(4):
            k(f'v_lshlrev_b32 v{128+r}, 16, v{32+4*c+r}\nv_and_b32 v{132+r}, 0xffff0000, v{32+4*c+r}')
        cmul_planar(k, 48 + 8 * c, 52 + 8 * c, 128, 132, 80, 84, 88)
        pack(c, 80, 84)
        k(f'{MFMA} {vr(48+8*c,4)}, {vr(16+4*c,4)}, v[120:123], 0')
        k(f'{MFMA} {vr(52+8*c,4)}, {vr(16+4*c,4)}, v[124:127], 0')
    for c in range(4):
        cmul_planar(k, 48 + 8 * c, 52 + 8 * c, 104, 108, 80, 84, 88, conj=True)
        pack(c, 80, 84)
        k(f'{MFMA} {vr(48+8*c,4)}, v[120:123], {vr(16+4*c,4)}, 0')
        k(f'{MFMA} {vr(52+8*c,4)}, v[124:127], {vr(16+4*c,4)}, 0')
    for c in range(4):
        for r in range(4):
            k(f'v_cvt_pk_bf16_f32 v{16+4*c+r}, v{48+8*c+r}, v{52+8*c+r}')
        k(f'ds_write_b128 v12, {vr(16+4*c,4)} offset:{c*P}')
    k('s_waitcnt lgkmcnt(0)')
    k.stamp()
    k('s_barrier')
    k.stamp()
    for i in range(4):
        for j in range(4):
            k(f'ds_read_b32 v{16+4*i+j}, v10 offset:{j*P+64*i}')
    for i in range(4):
        k(f's_waitcnt lgkmcnt({12-4*i})')
        k(f'buffer_store_dwordx4 {vr(16+4*i,4)}, v6, s[20:23], {so[i]} offen')
    k.finish(END)
    return k


def gen_k1b():
    P = 1040
    import gen3
    k = Kern('k1_kernel', 256, 512, 81920, nvgpr=128)
    END = k.label('end'); MAIN = k.label('main')
    k(f'''s_cmp_ge_u32 s2, 256
s_cbranch_scc1 {END}
s_load_dwordx2 s[40:41], s[0:1], 80
s_cmp_lt_u32 s2, 168
s_cbranch_scc1 {MAIN}''')
    k.stamp(True)
    if OPT.get('k1noprep'): k(f's_branch {END}')
    gen3.gen_prep(k, 168, END, 1, 5)
    k.nst = 0
    k(f'{MAIN}:')
    k.stamp(True)
    tab_srd(k, 12)
    k(f'''s_and_b32 s33, s2, 7
s_lshr_b32 s34, s2, 3
v_lshrrev_b32 v1, 6, v0
v_and_b32 v2, 63, v0
v_readfirstlane_b32 s35, v1
v_lshlrev_b32 v3, 4, v2
s_movk_i32 s38, 0x2000
s_movk_i32 s39, 0x3000
v_and_b32 v4, 15, v2
v_lshrrev_b32 v5, 4, v2''')
    LT = OPT.get('lt', 0); TB1 = 16 * P
    if LT:
        k(f'''s_lshl_b32 s39, s35, 10
s_add_u32 m0, s39, {TB1}
s_add_u32 s38, s38, s39
buffer_load_dwordx4 v3, s[12:15], s38 offen lds''')
    else:
        for i in range(4):
            k(f'buffer_load_dwordx4 {vr(96+4*i,4)}, v3, s[12:15], s38 offen offset:{i*1024}')
        k('buffer_load_dwordx4 v[112:115], v3, s[12:15], s39 offen offset:3072')
        k('buffer_load_dwordx4 v[116:119], v3, s[12:15], s39 offen offset:1024')
    IIM = 'v[112:115]'; IRE = 'v[114:117]'; FIM = 'v[116:119]'; FRE = 'v[118:121]'
    k(f'''v_mul_u32_u24 v6, {16*8*TP}, v4
v_lshl_add_u32 v6, v5, 4, v6
s_lshl_b32 s36, s35, 4
s_add_u32 s36, s36, s33
s_mul_i32 s36, s36, {TP}
s_lshl_b32 s37, s34, 6
s_add_u32 s36, s36, s37
s_add_u32 s42, s36, {8*TP}
s_mul_i32 s45, s33, 336
s_lshl_b32 s37, s34, 4
s_add_u32 s45, s45, s37
s_lshl_b32 s37, s35, 1
s_add_u32 s45, s45, s37
s_lshl_b32 s45, s45, 10
s_lshl_b32 s37, s34, 3
s_add_u32 s37, s37, s35
s_cmp_gt_u32 s37, 160
s_cselect_b32 s45, 0x7f000000, s45
s_waitcnt lgkmcnt(0)''')
    srd_from(k, 8, 40, 41, WS_T, TU_BYTES)
    srd_from(k, 4, 40, 41, WS_WF, WF_BYTES)
    srd_from(k, 20, 40, 41, WS_U, TU_BYTES)
    so = ['s36', 's42']
    for i in range(2):
        k(f'buffer_load_dwordx4 {vr(16+4*i,4)}, v6, s[8:11], {so[i]} offen')
    WP = OPT.get('k1wp', 0)
    def wld():
        for i in range(2):
            if OPT.get('k1now'): k(f'buffer_load_dwordx4 {vr(32+4*i,4)}, v3, s[12:15], 0 offen offset:{1024*i}')
            else: k(f'buffer_load_dwordx4 {vr(32+4*i,4)}, v3, s[4:7], s45 offen offset:{1024*i}')
    if WP == 0: wld()
    if WP == 2: k('s_barrier'); wld()
    k(f'''v_mul_u32_u24 v10, {4*P}, v5
v_lshl_add_u32 v10, v4, 2, v10
s_lshl_b32 s37, s35, 7
v_add_u32 v10, s37, v10
v_lshlrev_b32 v12, 6, v4
v_lshl_add_u32 v12, v5, 4, v12
s_mul_i32 s37, s35, {2*P}
v_add_u32 v12, s37, v12
''')
    if not LT:
        k(f'''s_waitcnt vmcnt({2 if WP == 1 else 4})
v_mov_b32 v120, v112
v_mov_b32 v121, v113''')
    for i in range(2):
        k(f's_waitcnt vmcnt({(1 if WP == 1 else 3)-i})')
        for j in range(4):
            k(f'ds_write_b32 v10, v{16+4*i+j} offset:{j*P+64*i}')
    if WP == 1: wld()
    k.stamp()
    k('s_waitcnt lgkmcnt(0)')
    k.stamp()
    k('s_barrier')
    k.stamp()
    NC = 2
    if LT:
        k(f'''ds_read_b128 v[96:99], v3 offset:{TB1}
ds_read_b128 v[16:19], v12
ds_read_b128 v[100:103], v3 offset:{TB1+1024}
ds_read_b128 v[20:23], v12 offset:{P}
ds_read_b128 v[104:107], v3 offset:{TB1+2048}
ds_read_b128 v[108:111], v3 offset:{TB1+3072}
ds_read_b128 v[118:121], v3 offset:{TB1+4096}
ds_read_b64 v[116:117], v3 offset:{TB1+5120}
ds_read_b128 v[112:115], v3 offset:{TB1+7168}
s_waitcnt lgkmcnt(7)
{MFMA} v[48:51], v[16:19], v[96:99], 0
s_waitcnt lgkmcnt(6)
{MFMA} v[52:55], v[16:19], v[100:103], 0
s_waitcnt lgkmcnt(5)
{MFMA} v[56:59], v[20:23], v[96:99], 0
{MFMA} v[60:63], v[20:23], v[100:103], 0
s_waitcnt lgkmcnt(0)''')
    else:
      for c in range(NC):
        k(f'ds_read_b128 {vr(16+4*c,4)}, v12 offset:{c*P}')
      for c in range(NC):
        k(f's_waitcnt lgkmcnt({NC-1-c})')
        k(f'{MFMA} {vr(48+8*c,4)}, {vr(16+4*c,4)}, v[96:99], 0')
        k(f'{MFMA} {vr(52+8*c,4)}, {vr(16+4*c,4)}, v[100:103], 0')
    def wun():
        k('s_waitcnt vmcnt(0)')
        for c in range(NC):
            for r in range(4):
                k(f'v_lshlrev_b32 v{64+8*c+r}, 16, v{32+4*c+r}\nv_and_b32 v{68+8*c+r}, 0xffff0000, v{32+4*c+r}')
    if not OPT.get('k1wl'): wun()

    def pack(c, re, im):
        k(f'''v_cvt_pk_bf16_f32 v{16+4*c}, v{re}, v{re+1}
v_cvt_pk_bf16_f32 v{17+4*c}, v{re+2}, v{re+3}
v_cvt_pk_bf16_f32 v{18+4*c}, v{im}, v{im+1}
v_cvt_pk_bf16_f32 v{19+4*c}, v{im+2}, v{im+3}''')
    for c in range(NC):
        cmul_planar(k, 48 + 8 * c, 52 + 8 * c, 104, 108, 80, 84, 88)
        pack(c, 80, 84)
        k(f'{MFMA} {vr(48+8*c,4)}, {FRE}, {vr(16+4*c,4)}, 0')
        k(f'{MFMA} {vr(52+8*c,4)}, {FIM}, {vr(16+4*c,4)}, 0')
    if OPT.get('k1wl'): wun()
    for c in range(NC):
        cmul_planar(k, 48 + 8 * c, 52 + 8 * c, 64 + 8 * c, 68 + 8 * c, 80, 84, 88)
        pack(c, 80, 84)
        k(f'{MFMA} {vr(48+8*c,4)}, {vr(16+4*c,4)}, {IRE}, 0')
        k(f'{MFMA} {vr(52+8*c,4)}, {vr(16+4*c,4)}, {IIM}, 0')
    for c in range(NC):
        cmul_planar(k, 48 + 8 * c, 52 + 8 * c, 104, 108, 80, 84, 88, conj=True)
        pack(c, 80, 84)
        k(f'{MFMA} {vr(48+8*c,4)}, {IRE}, {vr(16+4*c,4)}, 0')
        k(f'{MFMA} {vr(52+8*c,4)}, {IIM}, {vr(16+4*c,4)}, 0')
    for c in range(NC):
        for r in range(4):
            k(f'v_cvt_pk_bf16_f32 v{16+4*c+r}, v{48+8*c+r}, v{52+8*c+r}')
        k(f'ds_write_b128 v12, {vr(16+4*c,4)} offset:{c*P}')
    k('s_waitcnt lgkmcnt(0)')
    k.stamp()
    k('s_barrier')
    k.stamp()
    for i in range(2):
        for j in range(4):
            k(f'ds_read_b32 v{16+4*i+j}, v10 offset:{j*P+64*i}')
    for i in range(2):
        k(f's_waitcnt lgkmcnt({4-4*i})')
        k(f'buffer_store_dwordx4 {vr(16+4*i,4)}, v6, s[20:23], {so[i]} offen')
    k.finish(END)
    return k


def gen_k1c():
    P = 1040; W0 = 16 * P; TB1 = 32 * P
    import gen3
    k = Kern('k1_kernel', 256, 512, 81920, nvgpr=128)
    END = k.label('end'); MAIN = k.label('main')
    k(f'''s_cmp_ge_u32 s2, 256
s_cbranch_scc1 {END}
s_load_dwordx2 s[40:41], s[0:1], 80
s_cmp_lt_u32 s2, 168
s_cbranch_scc1 {MAIN}''')
    k.stamp(True)
    if OPT.get('k1noprep'): k(f's_branch {END}')
    gen3.gen_prep(k, 168, END, 1, 5)
    k.nst = 0
    k(f'{MAIN}:\ns_load_dwordx4 s[4:7], s[0:1], 8')
    k.stamp(True)
    tab_srd(k, 12)
    k(f'''s_and_b32 s33, s2, 7
s_lshr_b32 s34, s2, 3
v_lshrrev_b32 v1, 6, v0
v_and_b32 v2, 63, v0
v_readfirstlane_b32 s35, v1
v_lshlrev_b32 v3, 4, v2
v_and_b32 v4, 15, v2
v_lshrrev_b32 v5, 4, v2
s_lshl_b32 s39, s35, 10
s_add_u32 m0, s39, {TB1}
s_add_u32 s38, s39, 0x2000
buffer_load_dwordx4 v3, s[12:15], s38 offen lds''')
    IIM = 'v[112:115]'; IRE = 'v[114:117]'; FIM = 'v[116:119]'; FRE = 'v[118:121]'
    k(f'''v_mul_u32_u24 v6, {16*8*TP}, v4
v_lshl_add_u32 v6, v5, 4, v6
s_lshl_b32 s36, s35, 4
s_add_u32 s36, s36, s33
s_mul_i32 s45, s36, 642
s_mul_i32 s36, s36, {TP}
s_lshl_b32 s37, s34, 6
s_add_u32 s36, s36, s37
s_add_u32 s42, s36, {8*TP}
s_lshl_b32 s37, s34, 5
s_add_u32 s45, s45, s37
s_and_b32 s45, s45, -4
v_and_b32 v7, 1, v5
v_lshrrev_b32 v8, 1, v5
v_lshl_add_u32 v9, v4, 4, v7
v_mul_u32_u24 v9, {8*642}, v9
v_lshl_add_u32 v9, v8, 4, v9
s_waitcnt lgkmcnt(0)''')
    srd_from(k, 8, 40, 41, WS_T, TU_BYTES)
    so = ['s36', 's42']
    if OPT.get('sh') == 2:
        k('s_and_b32 s37, s33, 1\ns_lshl_b32 s37, s37, 2\ns_sub_u32 s43, s36, s37\ns_sub_u32 s44, s42, s37')
    for i in range(2):
        k(f'buffer_load_dwordx4 {vr(16+4*i,4)}, v6, s[8:11], {so[i] if OPT.get("sh") != 2 else f"s{43+i}"} offen')
    k(f'''s_mov_b32 s16, s6
s_mov_b32 s17, s7
s_mov_b32 s6, {2048*642}
s_mov_b32 s7, 0x00020000
s_mov_b32 s18, {2048*642}
s_mov_b32 s19, 0x00020000''')
    srd_from(k, 20, 40, 41, WS_U, TU_BYTES)
    WP = OPT.get('k1wp', 2); SH = OPT.get('sh', 0)
    if WP == 2: k('s_barrier')
    def wld():
        k(f'''buffer_load_dwordx4 v[32:35], v9, s[4:7], s45 offen
buffer_load_dwordx4 v[38:41], v9, s[16:19], s45 offen''')
        if not SH: k(f'''s_bitcmp1_b32 s33, 0
s_cselect_b32 s46, s45, 0x7f000000
buffer_load_dword v36, v9, s[4:7], s46 offen offset:16
buffer_load_dword v42, v9, s[16:19], s46 offen offset:16''')
    if WP in (0, 2): wld()
    k(f'''v_mul_u32_u24 v10, {4*P}, v5
v_lshl_add_u32 v10, v4, 2, v10
s_lshl_b32 s37, s35, 7
v_add_u32 v10, s37, v10
v_mul_u32_u24 v11, {8*P}, v8
v_lshl_add_u32 v11, v7, 6, v11
v_lshl_add_u32 v11, v4, 2, v11
v_add_u32 v11, s37, v11
v_lshlrev_b32 v12, 6, v4
v_lshl_add_u32 v12, v5, 4, v12
s_mul_i32 s37, s35, {2*P}
v_add_u32 v12, s37, v12
s_mov_b32 s47, 0x05040100
s_mov_b32 s48, 0x07060302''')
    for i in range(2):
        k(f's_waitcnt vmcnt({((3 if SH else 5) if WP in (0, 2) else 1)-i})')
        for j in range(4):
            k(f'ds_write_b32 v10, v{16+4*i+j} offset:{j*P+64*i}')
    if WP == 1: wld()
    k.stamp()
    k('s_waitcnt lgkmcnt(0)\ns_barrier')
    if WP == 3: wld()
    k.stamp()
    NC = 2
    k(f'''ds_read_b128 v[96:99], v3 offset:{TB1}
ds_read_b128 v[16:19], v12
ds_read_b128 v[100:103], v3 offset:{TB1+1024}
ds_read_b128 v[20:23], v12 offset:{P}
ds_read_b128 v[104:107], v3 offset:{TB1+2048}
ds_read_b128 v[108:111], v3 offset:{TB1+3072}
ds_read_b128 v[118:121], v3 offset:{TB1+4096}
ds_read_b64 v[116:117], v3 offset:{TB1+5120}
ds_read_b128 v[112:115], v3 offset:{TB1+7168}
s_waitcnt lgkmcnt(7)
{MFMA} v[48:51], v[16:19], v[96:99], 0
s_waitcnt lgkmcnt(6)
{MFMA} v[52:55], v[16:19], v[100:103], 0
s_waitcnt lgkmcnt(5)
{MFMA} v[56:59], v[20:23], v[96:99], 0
{MFMA} v[60:63], v[20:23], v[100:103], 0
s_waitcnt lgkmcnt(0)''')

    def pack(c, re, im):
        k(f'''v_cvt_pk_bf16_f32 v{16+4*c}, v{re}, v{re+1}
v_cvt_pk_bf16_f32 v{17+4*c}, v{re+2}, v{re+3}
v_cvt_pk_bf16_f32 v{18+4*c}, v{im}, v{im+1}
v_cvt_pk_bf16_f32 v{19+4*c}, v{im+2}, v{im+3}''')
    for c in range(NC):
        cmul_planar(k, 48 + 8 * c, 52 + 8 * c, 104, 108, 80, 84, 88)
        pack(c, 80, 84)
        k(f'{MFMA} {vr(48+8*c,4)}, {FRE}, {vr(16+4*c,4)}, 0')
        k(f'{MFMA} {vr(52+8*c,4)}, {FIM}, {vr(16+4*c,4)}, 0')
    ODD = k.label('odd'); JN = k.label('jn')
    k(f's_bitcmp1_b32 s33, 0\ns_waitcnt vmcnt(0)')
    k.stamp()
    if not SH: k(f's_cbranch_scc1 {ODD}')
    for par in range(1 if SH else 2):
        for j in range(8):
            hj = j + par
            k(f'v_perm_b32 v{64+j}, v{38+hj//2}, v{32+hj//2}, s{47+(hj&1)}')
            k(f'ds_write_b32 v11, v{64+j} offset:{W0+j*P}')
        if par == 0 and not SH: k(f's_branch {JN}\n{ODD}:')
    k(f'{JN}:\ns_waitcnt lgkmcnt(0)\ns_barrier')
    k.stamp()
    for c in range(NC):
        k(f'ds_read_b128 {vr(32+4*c,4)}, v12 offset:{W0+c*P}')
    for c in range(NC):
        k(f's_waitcnt lgkmcnt({NC-1-c})')
        for r in range(4):
            k(f'v_lshlrev_b32 v{64+8*c+r}, 16, v{32+4*c+r}\nv_and_b32 v{68+8*c+r}, 0xffff0000, v{32+4*c+r}')
        cmul_planar(k, 48 + 8 * c, 52 + 8 * c, 64 + 8 * c, 68 + 8 * c, 80, 84, 88)
        pack(c, 80, 84)
        k(f'{MFMA} {vr(48+8*c,4)}, {vr(16+4*c,4)}, {IRE}, 0')
        k(f'{MFMA} {vr(52+8*c,4)}, {vr(16+4*c,4)}, {IIM}, 0')
    for c in range(NC):
        cmul_planar(k, 48 + 8 * c, 52 + 8 * c, 104, 108, 80, 84, 88, conj=True)
        pack(c, 80, 84)
        k(f'{MFMA} {vr(48+8*c,4)}, {IRE}, {vr(16+4*c,4)}, 0')
        k(f'{MFMA} {vr(52+8*c,4)}, {IIM}, {vr(16+4*c,4)}, 0')
    for c in range(NC):
        for r in range(4):
            k(f'v_cvt_pk_bf16_f32 v{16+4*c+r}, v{48+8*c+r}, v{52+8*c+r}')
        k(f'ds_write_b128 v12, {vr(16+4*c,4)} offset:{c*P}')
    k('s_waitcnt lgkmcnt(0)')
    k.stamp()
    k('s_barrier')
    k.stamp()
    for i in range(2):
        for j in range(4):
            k(f'ds_read_b32 v{16+4*i+j}, v10 offset:{j*P+64*i}')
    for i in range(2):
        k(f's_waitcnt lgkmcnt({4-4*i})')
        k(f'buffer_store_dwordx4 {vr(16+4*i,4)}, v6, s[20:23], {so[i]} offen')
    k.finish(END)
    return k


def gen_k2a():
    RP = 144; NP = 11 * RP + 16
    LT = OPT.get('lt', 0); TB2 = 8 * NP
    k = Kern('k2a_kernel', 256, 512, 8 * NP + 16384 * LT, nvgpr=128)
    END = k.label('end'); SKIP = k.label('skip')
    k(f'''s_cmp_ge_u32 s2, 256
s_cbranch_scc1 {END}
s_load_dwordx2 s[4:5], s[0:1], 0
s_load_dwordx2 s[40:41], s[0:1], 80
s_load_dwordx2 s[68:69], s[0:1], 40''')
    k.stamp(True)
    tab_srd(k, 12)
    k(f'''s_and_b32 s3, s2, 7
s_lshl_b32 s3, s3, 5
s_lshr_b32 s33, s2, 3
s_add_u32 s3, s3, s33
s_lshl_b32 s33, s3, 6
s_add_u32 s33, s33, 32768
s_load_dwordx16 s[16:31], s[12:13], s33
v_lshrrev_b32 v1, 6, v0
v_and_b32 v2, 63, v0
v_readfirstlane_b32 s34, v1
v_lshlrev_b32 v3, 4, v2
s_movk_i32 s38, 0x4000
s_movk_i32 s39, 0x5000
s_movk_i32 s49, 0x6000''')
    if LT:
        k(f'''s_lshl_b32 s39, s34, 11
s_add_u32 m0, s39, {TB2}
s_add_u32 s38, s38, s39
s_cmp_lt_u32 s34, 5
s_cselect_b32 s38, s38, 0x7f000000
buffer_load_dwordx4 v3, s[12:15], s38 offen lds
buffer_load_dwordx4 v3, s[12:15], s38 offen offset:1024 lds''')
    k(f'''s_mul_i32 s46, s3, {8*TP}
s_add_u32 s47, s46, {3*TP}
s_add_u32 s48, s46, {6*TP}
v_lshlrev_b32 v60, 2, v0
s_lshl_b32 s35, s34, 8
s_add_u32 s35, s35, s3
s_mul_i32 s35, s35, 1280
v_and_b32 v50, 15, v2
v_lshrrev_b32 v51, 4, v2
v_lshlrev_b32 v52, 6, v50
v_lshl_add_u32 v52, v51, 4, v52
v_add_u32 v53, 1024, v52
v_mov_b32 v54, 0x7fffffff
v_cmp_gt_u32 vcc, 4, v50
v_cndmask_b32 v53, v54, v53, vcc
v_lshlrev_b32 v112, 11, v50
v_lshl_add_u32 v112, v51, 8, v112
v_add_u32 v113, 32768, v112
v_cndmask_b32 v113, v54, v113, vcc
s_lshl_b32 s59, s34, 3
s_lshr_b32 s60, s3, 5
s_add_u32 s59, s59, s60
s_mul_i32 s59, s59, 40960
s_and_b32 s60, s3, 4
s_lshl_b32 s60, s60, 8
s_add_u32 s59, s59, s60
s_and_b32 s60, s3, 24
s_lshl_b32 s60, s60, 3
s_add_u32 s59, s59, s60
s_and_b32 s60, s3, 3
s_lshl_b32 s60, s60, 4
s_add_u32 s59, s59, s60
s_waitcnt lgkmcnt(0)''')
    srd_from(k, 4, 4, 5, 0, X_BYTES)
    srd_from(k, 8, 40, 41, WS_U, TU_BYTES)
    srd_from(k, 52, 40, 41, WS_H, X_BYTES)
    srd_from(k, 60, 40, 41, WS_HN, X_BYTES)
    for k2 in range(8):
        k(f'buffer_load_dword v{4+k2}, v60, s[8:11], s{46+k2//3} offen offset:{(k2%3)*TP+4*(k2&1)*(OPT.get("sh",0)>0)}')
    for i in range(0 if LT else 10):
        so = ['s38', 's39', 's49'][i // 4]
        k(f'buffer_load_dwordx4 {vr(64+4*i,4)}, v3, s[12:15], {so} offen offset:{(i%4)*1024}')
    k(f'''buffer_load_dwordx4 v[104:107], v52, s[4:7], s35 offen
buffer_load_dwordx4 v[108:111], v53, s[4:7], s35 offen''')
    k(f'''v_mul_u32_u24 v55, 3277, v0
v_lshrrev_b32 v55, 16, v55
v_mul_u32_u24 v56, 20, v55
v_sub_u32 v56, v0, v56
v_mul_u32_u24 v57, {RP}, v56
v_lshl_add_u32 v57, v55, 2, v57
v_mov_b32 v58, {11*RP}
v_cmp_ge_u32 vcc, 10, v56
v_cndmask_b32 v57, v58, v57, vcc
v_sub_u32 v59, 20, v56
v_mul_u32_u24 v59, {RP}, v59
v_sub_u32 v61, 31, v55
v_lshl_add_u32 v59, v61, 2, v59
v_cmp_le_u32 vcc, 10, v56
v_cndmask_b32 v59, v58, v59, vcc
v_sub_u32 v61, 32, v55
v_lshlrev_b32 v61, 2, v61
v_cmp_eq_u32 vcc, 0, v56
v_cndmask_b32 v59, v59, v61, vcc
v_cmp_eq_u32 vcc, 0, v0
v_cndmask_b32 v59, v59, v58, vcc
v_cmp_eq_u32 vcc, 320, v0
v_cndmask_b32 v59, v59, v58, vcc
v_mov_b32 v40, 0x3f3504f3
v_min_u32 v62, 10, v50
v_mul_u32_u24 v62, {RP}, v62
v_lshl_add_u32 v62, v51, 4, v62
s_mul_i32 s42, s34, {NP}
v_add_u32 v62, s42, v62
v_and_b32 v63, 1, v2
v_lshlrev_b32 v63, 31, v63
v_or_b32 v63, 1.0, v63
''')
    if LT:
        k('s_waitcnt vmcnt(10)\ns_barrier')
        for i in range(10): k(f'ds_read_b128 {vr(64+4*i,4)}, v3 offset:{TB2+1024*i}')
    k(f'''v_cmp_gt_u32 vcc, 321, v0
s_and_saveexec_b64 s[44:45], vcc
s_waitcnt vmcnt({2 if LT else 12})''')
    k.stamp()
    k(f'''s_cbranch_execz {SKIP}''')
    for k2 in range(8):
        k(f'v_lshlrev_b32 v{20+2*k2}, 16, v{4+k2}\nv_and_b32 v{21+2*k2}, 0xffff0000, v{4+k2}')
    for k2 in range(8):
        if k2 == 0:
            k('v_mov_b32 v4, v20\nv_mov_b32 v5, v21')
        else:
            smul(k, 4 + 2 * k2, 20 + 2 * k2, 16 + 2 * k2, 42 + 2 * (k2 & 1), conj=True)
    T = fft8(k, 4, 20, True, 40)
    for n in range(8):
        k(f'''v_cvt_pk_bf16_f32 v{4+2*n}, v{T[n]}, v{T[n]+1}
v_cvt_pk_bf16_f32 v{5+2*n}, v{T[n]}, -v{T[n]+1}
ds_write_b32 v57, v{4+2*n} offset:{n*NP}
ds_write_b32 v59, v{5+2*n} offset:{n*NP}''')
    k(f'''{SKIP}:
s_mov_b64 exec, -1
s_waitcnt lgkmcnt(0)''')
    k.stamp()
    k(f'''s_barrier''')
    k.stamp()
    k(f'''ds_read_b128 v[4:7], v62
ds_read_b128 v[8:11], v62 offset:64''')
    npf = 0
    if OPT.get('pf2a'):
        npf = 1
        k(f'''s_and_b32 s72, s2, 6
s_lshl_b32 s72, s72, 4
s_lshr_b32 s73, s2, 3
s_add_u32 s72, s72, s73
s_lshl_b32 s72, s72, 3
s_add_u32 s72, s72, s34
s_lshl_b32 s72, s72, 13
s_mov_b32 s70, {2048*4096}
s_mov_b32 s71, 0x00020000
v_lshlrev_b32 v114, 7, v2
buffer_load_ubyte v115, v114, s[68:71], s72 offen''')
    k(f'''s_waitcnt vmcnt({2+npf}) lgkmcnt(1)''')
    for u in range(2):
        if u == 1: k('s_waitcnt lgkmcnt(0)')
        for t in range(2):
            k(f'{MFMA} {vr(12+16*u+8*t,4)}, {vr(4+4*u,4)}, {vr(64+8*t,4)}, 0')
            k(f'{MFMA} {vr(16+16*u+8*t,4)}, {vr(4+4*u,4)}, {vr(68+8*t,4)}, 0')
    for i in range(0, 16, 2):
        k(f'v_pk_fma_f32 {vr(12+i,2)}, {vr(28+i,2)}, v[62:63], {vr(12+i,2)} op_sel:[0,1,0] op_sel_hi:[1,1,1]')
    for t in range(2):
        cmul_planar(k, 12 + 8 * t, 16 + 8 * t, 80 + 8 * t, 84 + 8 * t, 28, 32, 36)
        k(f'''v_cvt_pk_bf16_f32 v{4+4*t}, v28, v29
v_cvt_pk_bf16_f32 v{5+4*t}, v30, v31
v_cvt_pk_bf16_f32 v{6+4*t}, v32, v33
v_cvt_pk_bf16_f32 v{7+4*t}, v34, v35''')
    for v in range(2):
        for t in range(2):
            k(f'{MFMA} {vr(12+8*v+4*t,4)}, {vr(4+4*t,4)}, {vr(96+4*v,4)}, 0')
    k.stamp()
    k(f's_waitcnt vmcnt({npf})')
    k.stamp()
    for i in range(8):
        k(f'v_lshlrev_b32 v{28+2*i}, 16, v{104+i}\nv_and_b32 v{29+2*i}, 0xffff0000, v{104+i}')
    for i in range(8):
        k(f'v_cvt_pk_bf16_f32 v{4+i}, v{12+2*i}, v{13+2*i}')
    for i in range(8):
        k(f'v_lshlrev_b32 v{12+2*i}, 16, v{4+i}\nv_and_b32 v{13+2*i}, 0xffff0000, v{4+i}')
    for i in range(8):
        k(f'v_pk_add_f32 {vr(12+2*i,2)}, {vr(12+2*i,2)}, {vr(28+2*i,2)}')
    for i in range(8):
        k(f'v_cvt_pk_bf16_f32 v{4+i}, v{12+2*i}, v{13+2*i}')
    k('''buffer_store_dwordx4 v[4:7], v52, s[52:55], s35 offen
buffer_store_dwordx4 v[8:11], v53, s[52:55], s35 offen''')
    for i in range(8):
        k(f'v_lshlrev_b32 v{12+2*i}, 16, v{4+i}\nv_and_b32 v{13+2*i}, 0xffff0000, v{4+i}')
    k('''v_pk_add_f32 v[28:29], v[12:13], v[14:15]
v_pk_mul_f32 v[30:31], v[12:13], v[12:13]
v_pk_add_f32 v[32:33], v[16:17], v[18:19]
v_pk_mul_f32 v[34:35], v[14:15], v[14:15]''')
    for i in range(2, 8):
        k(f'v_pk_fma_f32 {vr(30+4*(i&1),2)}, {vr(12+2*i,2)}, {vr(12+2*i,2)}, {vr(30+4*(i&1),2)}')
        if i >= 4:
            k(f'v_pk_add_f32 {vr(28+4*(i&1),2)}, {vr(28+4*(i&1),2)}, {vr(12+2*i,2)}')
    k('''v_pk_add_f32 v[28:29], v[28:29], v[32:33]
v_pk_add_f32 v[30:31], v[30:31], v[34:35]
v_add_f32 v28, v28, v29
v_add_f32 v30, v30, v31''')
    wave_reduce2(k, 28, 30, 36, 37)
    ln_stats(k, 36, 37, 640, 28, 30, 32)
    ln_apply(k, 12, 16, 28, 30, 40)
    k(f'''buffer_store_dwordx4 v[40:43], v112, s[60:63], s59 offen
buffer_store_dwordx4 v[44:47], v113, s[60:63], s59 offen''')
    k.finish(END)
    return k
```

```python
import sys, re
from asmlib import *
from tables import build_tab
import gen_fft, gen3, gen4, gen5
opt = {}
for a in sys.argv[2:]:
    if a == 'prof': Kern.prof = True
    elif '=' in a: opt[a.split('=')[0]] = int(a.split('=')[1])
    else: opt[a] = 1
gen_fft.OPT = opt
mods = {3: gen3, 4: gen4, 5: gen5}
try:
    import gen6; mods[6] = gen6
except ImportError: pass
g3 = mods[opt.get('v3', 5)]
ks = [gen_fft.gen_k0(), (gen_fft.gen_k1c() if opt.get('k1c') else gen_fft.gen_k1b() if (opt.get('wl') or opt.get('wx')) else gen_fft.gen_k1()), gen_fft.gen_k2a(), gen3.gen_k2(opt), g3.gen_k3(opt), gen3.gen_k4(opt)]
if opt.get('dup3'):
    Kern.count = 5
    ks = ks[:5] + [g3.gen_k3(dict(opt, name3='k3b_kernel'))]
FL = {0: '', 1: 'nt', 2: 'sc1', 3: 'sc0 sc1', 4: 'sc0', 5: 'sc1 nt'}
for i, k in enumerate(ks):
    sf = opt.get(f'sf{i}', opt.get('sf', 0))
    for j, l in enumerate(k.lines):
        if sf and l.startswith('buffer_store') and 's[96:99]' not in l and '; W' not in l: k.lines[j] = l + ' ' + FL[sf]
        if k.name == 'k1_kernel' and l.startswith('buffer_store') and 's[16:19]' in l and opt.get('sfp'): k.lines[j] = l + ' ' + FL[opt['sfp']]
        if k.name == 'k1_kernel' and l.startswith('buffer_store') and 's[20:23]' in l and opt.get('sfu'): k.lines[j] = l + ' ' + FL[opt['sfu']]
        if k.name == 'k2a_kernel' and l.startswith('buffer_store') and 's[52:55]' in l and opt.get('sfh'): k.lines[j] = l + ' ' + FL[opt['sfh']]
        if k.name.startswith('k3'):
            if opt.get('zf') and l.startswith('buffer_load_dwordx4') and 's[8:11]' in l: k.lines[j] = l + ' ' + FL[opt['zf']]
            if opt.get('wf') and l.startswith('buffer_load_dwordx4') and 's[4:7]' in l: k.lines[j] = l + ' ' + FL[opt['wf']]
s = build_file(ks, {'tab': build_tab()})
open(sys.argv[1], 'w').write(s)
print(len(s))
```

```python
from asmlib import *
import gen_fft
from gen_fft import vr, sr, srd_from, tab_srd, MFMA, WS_H, WS_HN, WS_U, WS_T, X_BYTES, TU_BYTES, TP, fft8, smul, cmul_planar, wave_reduce2, ln_stats, ln_apply
from gen3 import *

WS_FL = 0x1800000
FL_BYTES = 0x8000
WS_PX = 0x1840000
PX_BYTES = 64 * 16 * 256
WS_WS = 0x2000000
WSP_BYTES = 8 << 20
Z2N_BYTES = 64 * 57344
A2_BYTES = 4 << 20
SPIN = 400000
PV = 0
MF16 = 'v_mfma_f32_16x16x16_bf16'
BIG = '0x7f000000'


def st(k, view, slot):
    if Kern.prof and PV == view:
        k.nst = slot; k.stamp()


def poll(k, srd, soff, va, vd, sc):
    LP = k.label('lp'); LD = k.label('ld')
    k(f'''s_mov_b32 s{sc}, {SPIN}
{LP}:
buffer_load_dword v{vd}, v{va}, {sr(srd,4)}, {soff} offen sc1
s_waitcnt vmcnt(0)
v_cmp_eq_u32 vcc, 0, v{vd}
s_cbranch_vccz {LD}
s_sub_u32 s{sc}, s{sc}, 1
s_cmp_lg_u32 s{sc}, 0
s_cbranch_scc1 {LP}
{LD}:''')


def map_g2(k):
    k('''s_and_b32 s33, s2, 7
s_lshr_b32 s42, s2, 3
s_lshr_b32 s35, s33, 1
s_lshl_b32 s35, s35, 3
s_and_b32 s36, s42, 7
s_add_u32 s35, s35, s36
s_and_b32 s36, s33, 1
s_lshl_b32 s36, s36, 2
s_lshr_b32 s42, s42, 3
s_add_u32 s36, s36, s42''')


def g2_wops(srd, so):
    ops = []
    for i in range(32):
        s = f'buffer_load_dwordx4 {ar(4*i,4)}, v3, {sr(srd,4)}, s{so} offen offset:{1024*(i%4)}'
        if i % 4 == 3 and i < 31: s += f'\ns_add_u32 s{so}, s{so}, 4096'
        ops.append(s)
    return ops


def unpk(l):
    m = re.match(r'v_pk_(add|mul)_f32 v\[(\d+):\d+\], v\[(\d+):\d+\], v\[(\d+):\d+\](.*)', l)
    if not m: return [l]
    op, d, a, b, mod = m.group(1), int(m.group(2)), int(m.group(3)), int(m.group(4)), m.group(5).strip()
    if mod == '': return [f'v_{op}_f32 v{d}, v{a}, v{b}', f'v_{op}_f32 v{d+1}, v{a+1}, v{b+1}']
    if mod == 'op_sel:[0,1] op_sel_hi:[1,1]': return [f'v_{op}_f32 v{d}, v{a}, v{b+1}', f'v_{op}_f32 v{d+1}, v{a+1}, v{b+1}']
    raise ValueError(l)


class Fill:
    def __init__(self): self.q = []
    def add(self, pos, f): self.q.append((pos, f))
    def emit(self, k, p, n):
        c = 0
        while self.q and self.q[0][0] <= p and c < n:
            f = self.q.pop(0)[1]
            f() if callable(f) else k(f)
            c += 1
    def flush(self, k): self.emit(k, 10**9, 10**9)


def ph_g2(k, opt, DONE, vm0, fused, post=None):
    HI = k.label('hi')
    NZ = opt.get('NZ', 14); ZR = 96 - 4 * NZ
    T = 8; S = 24; Z1 = 32
    assert ZR >= 40
    ACC = lambda n, tt: 96 + 16 * (n & 1) + 4 * tt
    SLOT = [0, 1, 2, 3, 4, 0, 1]
    srd_from(k, 8, 40, 41, WS_Z2, Z2N_BYTES)
    k(f'''s_lshl_b32 s56, s36, 3
s_add_u32 s56, s56, s34
s_mul_i32 s56, s56, 57344
v_and_b32 v2, 63, v0''')
    if fused:
        srd_from(k, 20, 40, 41, WS_FL, FL_BYTES)
        k(f'''v_lshrrev_b32 v4, 3, v2
v_and_b32 v5, 7, v2
v_lshl_add_u32 v4, v4, 6, v5
s_lshl_b32 s42, s34, 3
v_add_u32 v4, s42, v4
v_bfe_u32 v5, v2, 1, 1
v_and_b32 v6, 1, v2
v_lshl_add_u32 v5, v5, 6, v6
s_lshl_b32 s42, s35, 1
s_add_u32 s42, s42, 1024
v_add_u32 v5, s42, v5
v_cmp_gt_u32 vcc, 16, v2
v_cndmask_b32 v4, v5, v4, vcc
v_lshlrev_b32 v4, 2, v4
s_lshl_b32 s42, s36, 9
s_add_u32 s42, s42, 0x2000
s_mov_b64 exec, 0xfffff''')
        poll(k, 20, 's42', 4, 5, 43)
        k('s_mov_b64 exec, -1')
        vm0.done = len(vm0.tags)
    if opt.get('warm'):
        k('v_lshlrev_b32 v4, 7, v2\ns_mov_b32 s42, s56')
        for i in range(7): k('buffer_load_dword v5, v4, s[8:11], s42 offen\ns_add_u32 s42, s42, 8192')
        k('s_waitcnt vmcnt(0)\ns_barrier\ns_sleep 127')
    st(k, 2, 2)
    if opt.get('clkm'): k('s_memtime s[76:77]'); k.clkm = 1
    if opt.get('zpf'):
        k(f'''v_lshrrev_b32 v4, 3, v2
v_and_b32 v5, 7, v2
v_lshlrev_b32 v5, 7, v5
v_lshl_add_u32 v4, v4, 13, v5
s_and_b32 s42, s35, 7
s_lshl_b32 s42, s42, 10
s_add_u32 s42, s42, s56
s_mov_b32 exec_hi, 0x00ffffff
buffer_load_dword v36, v4, s[8:11], s42 offen
s_mov_b32 exec_hi, -1''')
        vm0.issue('pf')

    def zload(q, vm):
        if q >= 56 or opt.get('noz'): return
        if q and q % 4 == 0: k('s_add_u32 s56, s56, 4096')
        if q == 40: k(f's_cmp_eq_u32 s36, 7\ns_cselect_b32 s56, {BIG}, s56')
        k(f'buffer_load_dwordx4 {vr(ZR+4*(q%NZ),4)}, v3, s[8:11], s56 offen offset:{1024*(q%4)}'); vm.issue(f'z{q}')
    N0 = opt.get('N0', NZ)
    for q in range(N0): zload(q, vm0)
    srd_from(k, 12, 40, 41, WS_Z1, A2_BYTES)
    srd_from(k, 16, 40, 41, WS_A, A2_BYTES)
    srd_from(k, 24, 74, 75, 0, 4096)
    k(f'''s_and_b32 s37, s34, 3
s_lshl_b32 s44, s35, 3
s_add_u32 s44, s44, s36
s_lshl_b32 s44, s44, 2
s_add_u32 s44, s44, s37
s_lshl_b32 s44, s44, 12
s_and_b32 s42, s34, 1
s_lshl_b32 s42, s42, 3
s_lshl_b32 s45, s35, 4
s_add_u32 s45, s45, s42
s_and_b32 s42, s34, 2
s_lshl_b32 s42, s42, 10
s_add_u32 s45, s45, s42
v_bfe_u32 v4, v2, 2, 2
v_and_b32 v5, 3, v2
v_lshlrev_b32 v5, 9, v5
v_lshl_add_u32 v4, v4, 1, v5
buffer_load_ushort v1, v4, s[24:27], s45 offen
v_lshlrev_b32 v2, 3, v2
s_lshl_b32 s42, s34, 10
v_add_u32 v4, s42, v3
v_add_u32 v5, 0x10000, v4
v_add_u32 v6, 0x20000, v4
s_lshl_b32 s42, s37, 13
v_add_u32 v7, s42, v3
s_mov_b32 s58, 0xffff0000
s_cmp_eq_u32 s36, 7
s_cselect_b32 s46, {BIG}, s44
s_cselect_b32 s59, 0, -1
s_cmp_ge_u32 s34, 4
s_cbranch_scc1 {HI}''')
    vm0.issue('b')

    def body(hi):
        import copy
        vm = copy.deepcopy(vm0); lg = Cnt('lgkmcnt', 15)
        F = Fill()

        def wr(n, tt):
            a = SLOT[n] * 32768 + tt * 8192
            k(f'ds_write_b128 v{4+a//65536}, {vr(ACC(n,tt),4)} offset:{a%65536}'); lg.issue(f'w{n}')

        def bar(n):
            x = lg.wait(f'w{n}')
            if x: k(x)
            k('s_barrier')

        def unit(tiles, zr, off, so, pos):
            nt = len(tiles)
            ops = []
            for ti, n in enumerate(tiles):
                for b in range(2):
                    base = SLOT[n] * 32768 + 4096 * b
                    if base >= 65536 - 32768 + 8192 and False: pass
                    for i in range(4):
                        def rd(base=base, i=i, n=n, b=b):
                            a = base + 1024 * i
                            k(f'ds_read_b128 {vr(T+4*i,4)}, v{RB[a//65536]} offset:{a%65536}'); lg.issue(f'r{n}_{b}_{i}')
                        ops.append(rd)
                    s = S + 4 * ti
                    def w01(n=n, b=b): k(lg.wait(f'r{n}_{b}_1') or '')
                    def w23(n=n, b=b): k(lg.wait(f'r{n}_{b}_3') or '')
                    ops.append(None); ops.append(None)
                    ops.append(w01)
                    d = s if b == 0 else T
                    ops += [f'v_pk_add_f32 {vr(d,2)}, {vr(T,2)}, {vr(T+4,2)}', f'v_pk_add_f32 {vr(d+2,2)}, {vr(T+2,2)}, {vr(T+6,2)}']
                    if b: ops += [f'v_pk_add_f32 {vr(s,2)}, {vr(s,2)}, {vr(T,2)}', f'v_pk_add_f32 {vr(s+2,2)}, {vr(s+2,2)}, {vr(T+2,2)}']
                    ops.append(w23)
                    ops += [f'v_pk_add_f32 {vr(T+8,2)}, {vr(T+8,2)}, {vr(T+12,2)}', f'v_pk_add_f32 {vr(T+10,2)}, {vr(T+10,2)}, {vr(T+14,2)}',
                            f'v_pk_add_f32 {vr(s,2)}, {vr(s,2)}, {vr(T+8,2)}', f'v_pk_add_f32 {vr(s+2,2)}, {vr(s+2,2)}, {vr(T+10,2)}']
            h = 2 * nt
            ops += [f'v_cvt_pk_bf16_f32 v{T+i}, v{S+2*i}, v{S+2*i+1}' for i in range(h)]
            ops += [f'v_lshlrev_b32 v{S+2*i}, 16, v{T+i}\nv_and_b32 v{S+2*i+1}, s58, v{T+i}' for i in range(h)]
            ops.append(lambda: k(vm.wait(f'y{off}') or ''))
            ops += [f'v_pk_add_f32 {vr(S+2*i,2)}, {vr(S+2*i,2)}, v[0:1] op_sel:[0,1] op_sel_hi:[1,1]' for i in range(h)]
            ops += [f'v_lshlrev_b32 v{T+8+2*i}, 16, v{zr+i}\nv_and_b32 v{T+9+2*i}, s58, v{zr+i}' for i in range(h)]
            ops += [f'v_cvt_pk_bf16_f32 v{T+i}, v{S+2*i}, v{S+2*i+1}' for i in range(h)]
            ops += [f'v_lshlrev_b32 v{S+2*i}, 16, v{T+i}\nv_and_b32 v{S+2*i+1}, s58, v{T+i}' for i in range(h)]
            ops += [f'v_pk_mul_f32 {vr(S+2*i,2)}, {vr(S+2*i,2)}, {vr(T+8+2*i,2)}' for i in range(h)]
            ops += [f'v_cvt_pk_bf16_f32 v{zr+i}, v{S+2*i}, v{S+2*i+1}' for i in range(h)]

            if tiles == [4, 5]: ops += [f'v_and_b32 v{zr+2}, s59, v{zr+2}', f'v_and_b32 v{zr+3}, s59, v{zr+3}']

            def sto():
                if nt == 2: k(f'buffer_store_dwordx4 {vr(zr,4)}, v3, s[16:19], {so} offen offset:{off} sc1')
                else: k(f'buffer_store_dwordx2 {vr(zr,2)}, v2, s[16:19], {so} offen offset:{off} sc1')
                vm.issue('s')
            ops.append(sto)
            out = []
            for o in ops:
                if o is None: out.append('')
                elif callable(o): out.append(o)
                else:
                    for l in o.split('\n'): out += unpk(l) if opt.get('upk', 1) else [l]
            return out

        def z1load(zr, off, so, nt):
            if nt == 2: k(f'buffer_load_dwordx4 {vr(zr,4)}, v3, s[12:15], {so} offen offset:{off}')
            else: k(f'buffer_load_dwordx2 {vr(zr,2)}, v2, s[12:15], {so} offen offset:{off}')
            vm.issue(f'y{off}')
        RB = [7, 38, 39]
        k('v_add_u32 v38, 0x10000, v7\nv_add_u32 v39, 0x20000, v7')
        ev = {}
        def at(p, f): ev.setdefault(p, []).append(f)
        for n in range(6):
            for tt in range(4): at(32 * (n + 1) + 3 + 2 * tt, lambda n=n, tt=tt: wr(n, tt))
        BP = opt.get('G2B', 16)
        at(64 + BP, lambda: bar(1)); at(128 + BP, lambda: bar(3)); at(192 + BP, lambda: bar(5))
        if opt.get('pp'):
            bs = [-1, 64 + BP, 128 + BP, 192 + BP, 224]
            k('s_setprio 3')
            for a, b in zip(bs[:-1], bs[1:]):
                for i in range(4):
                    pp = a + (b - a) * i // 4
                    if pp >= 0: at(pp, lambda i=i: k(f's_setprio {3-i}'))
        at(40, lambda: k((vm.wait('b') or '') + '\nv_lshlrev_b32 v1, 16, v1'))
        fq = []
        if not hi:
            at(33, lambda: z1load(Z1, 0, 's44', 2))
            at(160, lambda: z1load(Z1, 2048, 's44', 2))
            fq.append((64 + BP + 1, lambda: unit([0, 1], Z1, 0, 's44', 0)))
            fq.append((192 + BP + 1, lambda: unit([4, 5], Z1, 2048, 's44', 0)))
        else:
            at(97, lambda: z1load(Z1, 1024, 's44', 2))
            at(190, lambda: z1load(Z1 + 4, 3072, 's46', 1))
            fq.append((128 + BP + 1, lambda: unit([2, 3], Z1, 1024, 's44', 0)))
        R = opt.get('G2R', 3)
        cur = []
        p = 0
        nq = [N0]
        for n in range(7):
            if n in (1, 3, 5): st(k, 2, 3 + n // 2)
            for j in range(8):
                q = 8 * n + j
                x = vm.wait(f'z{q}')
                if x: k(x)
                if q == 0:
                    x = vm.wait('w')
                    if x: k(x)
                for tt in range(4):
                    acc = vr(ACC(n, tt), 4)
                    k(f'{MFMA} {acc}, {vr(ZR+4*(q%NZ),4)}, {ar(16*j+4*tt,4)}, {"0" if j == 0 else acc}')
                    if tt in (1, 3) and nq[0] < q + NZ + (tt == 3): zload(nq[0], vm); nq[0] += 1
                    for f in ev.get(p, []): f()
                    if fq and fq[0][0] <= p: cur += fq.pop(0)[1]()
                    for _ in range(R):
                        if cur:
                            o = cur.pop(0)
                            o() if callable(o) else k(o)
                    p += 1
        if opt.get('clkm'): k('s_memtime s[78:79]')
        st(k, 2, 6)
        for tt in range(4): wr(6, tt)
        if post: post(vm)
        bar(6)
        st(k, 2, 7)
        if hi: cur = unit([6], Z1 + 4, 3072, 's46', 0)
        for o in cur: o() if callable(o) else k(o)
        st(k, 2, 8); st(k, 0, 7)
        if fused:
            k(f'''s_lshl_b32 s42, s35, 3
s_add_u32 s42, s42, s36
s_lshl_b32 s42, s42, 3
s_add_u32 s42, s42, s34
s_lshl_b32 s42, s42, 2
s_add_u32 s42, s42, 0x4000
s_waitcnt vmcnt(0)''')
            flag(k, 20, 's42')
        k('s_setprio 0')
        k(f's_branch {DONE}')
    body(False)
    k(f'{HI}:')
    body(True)


def gen_g2(opt):
    k = Kern('k3_kernel', 256, 512, 163840, nvgpr=128, nagpr=128)
    END = k.label('end')
    k(f'''s_cmp_ge_u32 s2, 256
s_cbranch_scc1 {END}
s_load_dwordx2 s[40:41], s[0:1], 80
s_load_dwordx2 s[74:75], s[0:1], 48
s_load_dwordx2 s[4:5], s[0:1], 40''')
    k.stamp(True)
    map_g2(k)
    k(f'''v_lshrrev_b32 v1, 6, v0
v_and_b32 v2, 63, v0
v_readfirstlane_b32 s34, v1
v_lshlrev_b32 v3, 4, v2
s_lshl_b32 s57, s35, 3
s_add_u32 s57, s57, s34
s_lshl_b32 s57, s57, 15
s_waitcnt lgkmcnt(0)''')
    if opt.get('fakew'): srd_from(k, 4, 4, 5, 0, WSP_BYTES)
    else: srd_from(k, 4, 40, 41, WS_WS, WSP_BYTES)
    vm = Cnt('vmcnt', 63)
    for o in g2_wops(4, 57): k(o); vm.issue('w')
    if opt.get('wsync'):
        k('s_waitcnt vmcnt(0)\ns_barrier'); vm.done = 32
        if opt['wsync'] > 1: k('s_sleep 127\ns_sleep 127')
    if opt.get('rep'):
        k('s_mov_b32 s60, 2\nk3_rep:\ns_waitcnt vmcnt(0) lgkmcnt(0)\ns_barrier')
    st(k, 2, 1)
    ph_g2(k, opt, 'k3_rep2' if opt.get('rep') else END, vm, False)
    if opt.get('rep'):
        k('k3_rep2:\ns_sub_u32 s60, s60, 1\ns_cmp_lg_u32 s60, 0\ns_cbranch_scc1 k3_rep')
    k.finish(END)
    return k


WOB = 17920
WO8_BYTES = 64 * WOB


def gen_prep8(k, base_wg, END, nwv=5):
    WO = k.label('wo'); J = k.label('j'); WO2 = k.label('wo2'); SG = k.label('sg')
    k(f'''s_load_dwordx2 s[4:5], s[0:1], 32
s_load_dwordx2 s[8:9], s[0:1], 56
v_lshrrev_b32 v1, 6, v0
v_and_b32 v2, 63, v0
v_readfirstlane_b32 s35, v1
s_sub_u32 s33, s2, {base_wg}
s_mul_i32 s33, s33, {nwv}
s_add_u32 s33, s33, s35
v_and_b32 v4, 15, v2
v_lshrrev_b32 v5, 4, v2
v_lshlrev_b32 v3, 4, v2
s_lshl_b32 s47, s35, 13
s_cmp_ge_u32 s35, {nwv}
s_cbranch_scc1 {END}
s_cmp_ge_u32 s33, 440
s_cbranch_scc1 {END}
s_waitcnt lgkmcnt(0)''')
    srd_from(k, 16, 40, 41, WS_WI, WS_WO - WS_WI + WO8_BYTES)
    k(f'''s_mov_b32 s23, 0x00020000
s_cmp_ge_u32 s33, 280
s_cbranch_scc1 {WO}
s_mul_i32 s51, s33, 4682
s_lshr_b32 s51, s51, 16
s_mul_i32 s52, s51, 14
s_sub_u32 s52, s33, s52
s_movk_i32 s50, 3456
s_lshl_b32 s53, s51, 5
s_mov_b32 s57, 8
s_mov_b32 s58, 4
s_mov_b64 s[20:21], s[4:5]
s_mov_b32 s22, {640*3456}
s_branch {J}
{WO}:
s_sub_u32 s34, s33, 280
s_mul_i32 s51, s34, 13108
s_lshr_b32 s51, s51, 16
s_mul_i32 s52, s51, 5
s_sub_u32 s52, s34, s52
s_movk_i32 s50, 1280
s_lshr_b32 s54, s51, 2
s_and_b32 s55, s51, 3
s_mul_i32 s53, s54, 112
s_lshl_b32 s42, s55, 5
s_add_u32 s53, s53, s42
s_mov_b32 s57, 4
s_mov_b32 s58, 16
s_mov_b64 s[20:21], s[8:9]
s_mov_b32 s22, {864*1280}
{J}:
v_mul_u32_u24 v6, s50, v5
v_lshl_add_u32 v6, v4, 4, v6
s_mul_i32 s42, s53, s50
s_lshl_b32 s43, s52, 8
s_add_u32 s42, s42, s43
v_add_u32 v6, s42, v6
s_lshl_b32 s43, s50, 2''')
    for i in range(8):
        k(f's_add_u32 m0, s47, {1024*i}')
        k(f'buffer_load_dwordx4 v6, s[20:23], 0 offen lds')
        if i < 7: k(f'v_add_u32 v6, s43, v6')
    k(f'''v_mul_u32_u24 v6, s57, v5
v_lshrrev_b32 v7, 2, v4
v_add_u32 v6, v6, v7
v_and_b32 v7, 3, v4
v_lshlrev_b32 v7, 3, v7
v_lshl_add_u32 v6, v6, 8, v7
v_add_u32 v6, s47, v6
s_lshl_b32 s42, s58, 8
v_add_u32 v7, s42, v6
v_lshlrev_b32 v8, 3, v2
s_waitcnt vmcnt(0)''')
    for i in range(8):
        k(f'ds_read_b64_tr_b16 {vr(16+4*i,2)}, v6 offset:{32*i}')
        k(f'ds_read_b64_tr_b16 {vr(18+4*i,2)}, v7 offset:{32*i}')
    k(f's_cmp_ge_u32 s33, 280\ns_cbranch_scc1 {WO2}')
    for i in range(8):
        k(f'''s_lshl_b32 s42, s52, 3
s_add_u32 s42, s42, {i}
s_add_u32 s43, s42, 2
s_cmp_ge_u32 s42, 54
s_cselect_b32 s43, s43, s42
s_cselect_b32 s46, 0, 1
s_mul_i32 s44, s43, 9363
s_lshr_b32 s44, s44, 16
s_mul_i32 s45, s44, 7
s_sub_u32 s43, s43, s45
s_and_b32 s44, s44, 7
s_lshl_b32 s44, s44, 1
s_lshr_b32 s45, s43, 2
s_xor_b32 s45, s45, s46
s_add_u32 s44, s44, s45
s_mul_i32 s44, s44, 140
s_add_u32 s43, s43, s44
s_mul_i32 s44, s51, 7
s_add_u32 s43, s43, s44
s_lshl_b32 s43, s43, 10
s_cmp_lt_u32 s42, 108
s_cselect_b32 s43, s43, {BIG}
s_waitcnt lgkmcnt({14-2*i})
buffer_store_dwordx4 {vr(16+4*i,4)}, v3, s[16:19], s43 offen''')
    k(f'''s_branch {END}
{WO2}:
s_mul_i32 s56, s54, {WOB}
s_add_u32 s56, s56, {WS_WO-WS_WI}
s_mul_i32 s42, s55, 5120
s_add_u32 s56, s56, s42
s_cmp_lt_u32 s53, 864
s_cselect_b32 s59, -1, 0
s_cmp_lt_u32 s53, 848
s_cselect_b32 s60, -1, 0
s_cmp_eq_u32 s55, 3
s_cbranch_scc1 {SG}''')
    for sg in range(2):
        for i in range(8):
            k(f'''s_lshl_b32 s42, s52, 3
s_add_u32 s42, s42, {i}
s_mul_i32 s44, s42, 13108
s_lshr_b32 s44, s44, 16
s_mul_i32 s45, s44, 5
s_sub_u32 s43, s42, s45
s_mul_i32 s44, s44, {8*WOB}
s_lshl_b32 s43, s43, {9 if sg else 10}
s_add_u32 s43, s43, s44
s_add_u32 s43, s43, s56
s_waitcnt lgkmcnt({14-2*i})''')
            for j in range(2 if sg else 4): k(f'v_and_b32 v{16+4*i+j}, s{59+j//2}, v{16+4*i+j}')
            if sg: k(f'buffer_store_dwordx2 {vr(16+4*i,2)}, v8, s[16:19], s43 offen')
            else: k(f'buffer_store_dwordx4 {vr(16+4*i,4)}, v3, s[16:19], s43 offen')
        k(f's_branch {END}')
        if sg == 0: k(f'{SG}:')


BB = 20480


def gelu_pk(k, pk, n, x, p, out, vc, tr=False, sc=False):
    for i in range(0, n, 2):
        k(f'v_lshlrev_b32 v{x+i}, 16, v{pk+i//2}\nv_and_b32 v{x+i+1}, 0xffff0000, v{pk+i//2}')
    if sc:
        for i in range(n): k(f'v_mul_f32 v{p+i}, v{x+i}, v{x+i}')
        for i in range(n): k(f'v_fma_f32 v{p+i}, v{p+i}, v{vc}, v{vc+1}')
        for i in range(n): k(f'v_mul_f32 v{p+i}, v{p+i}, v{x+i}')
    else:
        for i in range(0, n, 2):
            k(f'v_pk_mul_f32 {vr(p+i,2)}, {vr(x+i,2)}, {vr(x+i,2)}')
        for i in range(0, n, 2):
            k(f'v_pk_fma_f32 {vr(p+i,2)}, {vr(p+i,2)}, {vr(vc,2)}, {vr(vc,2)} op_sel:[0,0,1] op_sel_hi:[1,0,1]')
        for i in range(0, n, 2):
            k(f'v_pk_mul_f32 {vr(p+i,2)}, {vr(p+i,2)}, {vr(x+i,2)}')
    for i in range(n):
        k(f'v_exp_f32 v{p+i}, v{p+i}')
    if sc:
        for i in range(n): k(f'v_add_f32 v{p+i}, 1.0, v{p+i}')
    else:
        for i in range(0, n, 2):
            k(f'v_pk_add_f32 {vr(p+i,2)}, {vr(p+i,2)}, 1.0 op_sel_hi:[1,0]')
    for i in range(n):
        k(f'v_rcp_f32 v{p+i}, v{p+i}')
    if sc:
        for i in range(n): k(f'v_mul_f32 v{p+i}, v{p+i}, v{x+i}')
    else:
        for i in range(0, n, 2):
            k(f'v_pk_mul_f32 {vr(p+i,2)}, {vr(p+i,2)}, {vr(x+i,2)}')
    for i in range(0, n, 2):
        if tr:
            a = [0, 4, 1, 5][i // 2]
            k(f'v_cvt_pk_bf16_f32 v{out+i//2}, v{p+a}, v{p+a+2}')
        else: k(f'v_cvt_pk_bf16_f32 v{out+i//2}, v{p+i}, v{p+i+1}')


class Bulk:
    def __init__(self, k, ops): self.k = k; self.ops = list(ops)
    def __call__(self, n, vm=None, tag='w'):
        for _ in range(n):
            if not self.ops: return
            self.k(self.ops.pop(0))
            if vm is not None: vm.issue(tag)


def flag(k, srd, soff):
    k(f'''s_mov_b64 exec, 1
v_mov_b32 v8, 1
v_mov_b32 v9, 0
buffer_store_dword v8, v9, {sr(srd,4)}, {soff} offen sc1
s_mov_b64 exec, -1''')


def ph_k2a(k, opt, wb):
    RP = 144; NP = 11 * RP + 16
    TB2 = 8 * NP
    SKIP = k.label('skip')
    vm = Cnt('vmcnt', 63)
    k(f'''s_load_dwordx2 s[4:5], s[0:1], 0
s_load_dwordx2 s[40:41], s[0:1], 80
s_load_dwordx2 s[74:75], s[0:1], 48
s_load_dwordx2 s[80:81], s[0:1], 64''')
    tab_srd(k, 12)
    k(f'''s_and_b32 s3, s2, 7
s_lshl_b32 s3, s3, 5
s_lshr_b32 s33, s2, 3
s_add_u32 s3, s3, s33
s_lshl_b32 s33, s3, 6
s_add_u32 s33, s33, 32768
s_load_dwordx16 s[16:31], s[12:13], s33
v_lshrrev_b32 v1, 6, v0
v_and_b32 v2, 63, v0
v_readfirstlane_b32 s34, v1
v_lshlrev_b32 v3, 4, v2
s_movk_i32 s38, 0x4000
s_lshl_b32 s39, s34, 11
s_add_u32 m0, s39, {TB2}
s_add_u32 s38, s38, s39
s_cmp_lt_u32 s34, 5
s_cselect_b32 s38, s38, {BIG}
buffer_load_dwordx4 v3, s[12:15], s38 offen lds
buffer_load_dwordx4 v3, s[12:15], s38 offen offset:1024 lds''')
    vm.issue('t'); vm.issue('t')
    k(f'''s_mul_i32 s46, s3, {8*TP}
s_add_u32 s47, s46, {3*TP}
s_add_u32 s48, s46, {6*TP}
v_lshlrev_b32 v60, 2, v0
s_lshl_b32 s35, s34, 8
s_add_u32 s35, s35, s3
s_mul_i32 s35, s35, 1280
v_and_b32 v50, 15, v2
v_lshrrev_b32 v51, 4, v2
v_lshlrev_b32 v52, 6, v50
v_lshl_add_u32 v52, v51, 4, v52
v_add_u32 v53, 1024, v52
v_mov_b32 v54, 0x7fffffff
v_cmp_gt_u32 vcc, 4, v50
v_cndmask_b32 v53, v54, v53, vcc''')
    k(f'''v_mul_u32_u24 v112, 272, v50
v_lshl_add_u32 v112, v51, 6, v112
s_lshr_b32 s59, s34, 2
s_mul_i32 s59, s59, {20*272}
s_and_b32 s60, s34, 3
s_lshl_b32 s60, s60, 4
s_add_u32 s59, s59, s60
v_add_u32 v112, s59, v112
v_mul_u32_u24 v113, 272, v51
v_lshl_add_u32 v113, v50, 4, v113
s_mul_i32 s59, s34, {4*272}
v_add_u32 v113, s59, v113
s_mul_i32 s59, s3, 10240
s_lshl_b32 s60, s34, 10
s_add_u32 s59, s59, s60
s_add_u32 s49, s59, 8192
s_cmp_lt_u32 s34, 2
s_cselect_b32 s49, s49, {BIG}''')
    k(f'''s_and_b32 s58, s3, 15
s_mul_i32 s58, s58, {140*1024}
s_mul_i32 s57, s34, {17*1024}
s_min_u32 s57, s57, {116*1024}
s_add_u32 s56, s57, {BB+7168}
s_add_u32 s57, s57, s58
s_waitcnt lgkmcnt(0)''')
    srd_from(k, 4, 4, 5, 0, X_BYTES)
    srd_from(k, 8, 40, 41, WS_U, TU_BYTES)
    for k2 in range(8):
        k(f'buffer_load_dword v{4+k2}, v60, s[8:11], s{46+k2//3} offen offset:{(k2%3)*TP+4*(k2&1)*(opt.get("sh",0)>0)}')
        vm.issue('u')
    k(f'''buffer_load_dwordx4 v[104:107], v52, s[4:7], s35 offen
buffer_load_dwordx4 v[108:111], v53, s[4:7], s35 offen''')
    vm.issue('x'); vm.issue('x')
    srd_from(k, 52, 40, 41, WS_H, X_BYTES)
    srd_from(k, 60, 40, 41, WS_HN, X_BYTES)
    srd_from(k, 64, 40, 41, WS_WI, WI_BYTES)
    if wb: wb.setup()
    bq = list(range(17))
    BP = opt.get('BP', [0, 5, 4, 0, 4])
    WP = opt.get('WP', [0, 0, 0, 0, 0, 0])

    def bdma(n):
        for _ in range(n):
            if not bq: return
            i = bq.pop(0)
            if i % 4 == 0:
                k(f's_add_u32 m0, s56, {1024*i}')
                if i: k('s_add_u32 s57, s57, 4096')
            k(f'buffer_load_dwordx4 v3, s[64:67], s57 offen offset:{1024*(i%4)} lds'); vm.issue('b')

    def bulk(i):
        bdma(BP[i] if i < 5 else 17)
        if wb: wb(WP[i], vm)
    bulk(0)
    k(f'''v_mul_u32_u24 v55, 3277, v0
v_lshrrev_b32 v55, 16, v55
v_mul_u32_u24 v56, 20, v55
v_sub_u32 v56, v0, v56
v_mul_u32_u24 v57, {RP}, v56
v_lshl_add_u32 v57, v55, 2, v57
v_mov_b32 v58, {11*RP}
v_cmp_ge_u32 vcc, 10, v56
v_cndmask_b32 v57, v58, v57, vcc
v_sub_u32 v59, 20, v56
v_mul_u32_u24 v59, {RP}, v59
v_sub_u32 v61, 31, v55
v_lshl_add_u32 v59, v61, 2, v59
v_cmp_le_u32 vcc, 10, v56
v_cndmask_b32 v59, v58, v59, vcc
v_sub_u32 v61, 32, v55
v_lshlrev_b32 v61, 2, v61
v_cmp_eq_u32 vcc, 0, v56
v_cndmask_b32 v59, v59, v61, vcc
v_cmp_eq_u32 vcc, 0, v0
v_cndmask_b32 v59, v59, v58, vcc
v_cmp_eq_u32 vcc, 320, v0
v_cndmask_b32 v59, v59, v58, vcc
v_mov_b32 v40, 0x3f3504f3
v_min_u32 v62, 10, v50
v_mul_u32_u24 v62, {RP}, v62
v_lshl_add_u32 v62, v51, 4, v62
s_mul_i32 s42, s34, {NP}
v_add_u32 v62, s42, v62
v_and_b32 v63, 1, v2
v_lshlrev_b32 v63, 31, v63
v_or_b32 v63, 1.0, v63
''')
    k(vm.wait('t')); k('s_barrier')
    for i in range(10): k(f'ds_read_b128 {vr(64+4*i,4)}, v3 offset:{TB2+1024*i}')
    bulk(1)
    k(f'''v_cmp_gt_u32 vcc, 321, v0
s_and_saveexec_b64 s[44:45], vcc''')
    k(vm.wait('u'))
    st(k, 1, 1); st(k, 0, 1)
    k(f'''s_cbranch_execz {SKIP}''')
    for k2 in range(8):
        k(f'v_lshlrev_b32 v{20+2*k2}, 16, v{4+k2}\nv_and_b32 v{21+2*k2}, 0xffff0000, v{4+k2}')
    for k2 in range(8):
        if k2 == 0:
            k('v_mov_b32 v4, v20\nv_mov_b32 v5, v21')
        else:
            smul(k, 4 + 2 * k2, 20 + 2 * k2, 16 + 2 * k2, 42 + 2 * (k2 & 1), conj=True)
    T = fft8(k, 4, 20, True, 40)
    for n in range(8):
        k(f'''v_cvt_pk_bf16_f32 v{4+2*n}, v{T[n]}, v{T[n]+1}
v_cvt_pk_bf16_f32 v{5+2*n}, v{T[n]}, -v{T[n]+1}
ds_write_b32 v57, v{4+2*n} offset:{n*NP}
ds_write_b32 v59, v{5+2*n} offset:{n*NP}''')
    k(f'''{SKIP}:
s_mov_b64 exec, -1''')
    bulk(2)
    k(f'''s_waitcnt lgkmcnt(0)
s_barrier
ds_read_b128 v[4:7], v62
ds_read_b128 v[8:11], v62 offset:64''')
    bulk(3)
    k(f'''s_waitcnt lgkmcnt(1)''')
    for u in range(2):
        if u == 1: k('s_waitcnt lgkmcnt(0)')
        for t in range(2):
            k(f'{MFMA} {vr(12+16*u+8*t,4)}, {vr(4+4*u,4)}, {vr(64+8*t,4)}, 0')
            k(f'{MFMA} {vr(16+16*u+8*t,4)}, {vr(4+4*u,4)}, {vr(68+8*t,4)}, 0')
    bulk(4)
    for i in range(0, 16, 2):
        k(f'v_pk_fma_f32 {vr(12+i,2)}, {vr(28+i,2)}, v[62:63], {vr(12+i,2)} op_sel:[0,1,0] op_sel_hi:[1,1,1]')
    for t in range(2):
        cmul_planar(k, 12 + 8 * t, 16 + 8 * t, 80 + 8 * t, 84 + 8 * t, 28, 32, 36)
        k(f'''v_cvt_pk_bf16_f32 v{4+4*t}, v28, v29
v_cvt_pk_bf16_f32 v{5+4*t}, v30, v31
v_cvt_pk_bf16_f32 v{6+4*t}, v32, v33
v_cvt_pk_bf16_f32 v{7+4*t}, v34, v35''')
    for v in range(2):
        for t in range(2):
            k(f'{MFMA} {vr(12+8*v+4*t,4)}, {vr(4+4*t,4)}, {vr(96+4*v,4)}, 0')
    bulk(5)
    k(vm.wait('x'))
    for i in range(8):
        k(f'v_lshlrev_b32 v{28+2*i}, 16, v{104+i}\nv_and_b32 v{29+2*i}, 0xffff0000, v{104+i}')
    for i in range(8):
        k(f'v_cvt_pk_bf16_f32 v{4+i}, v{12+2*i}, v{13+2*i}')
    for i in range(8):
        k(f'v_lshlrev_b32 v{12+2*i}, 16, v{4+i}\nv_and_b32 v{13+2*i}, 0xffff0000, v{4+i}')
    for i in range(8):
        k(f'v_pk_add_f32 {vr(12+2*i,2)}, {vr(12+2*i,2)}, {vr(28+2*i,2)}')
    for i in range(8):
        k(f'v_cvt_pk_bf16_f32 v{4+i}, v{12+2*i}, v{13+2*i}')
    k('''buffer_store_dwordx4 v[4:7], v52, s[52:55], s35 offen sc1
buffer_store_dwordx4 v[8:11], v53, s[52:55], s35 offen sc1''')
    for i in range(8):
        k(f'v_lshlrev_b32 v{12+2*i}, 16, v{4+i}\nv_and_b32 v{13+2*i}, 0xffff0000, v{4+i}')
    k('''v_pk_add_f32 v[28:29], v[12:13], v[14:15]
v_pk_mul_f32 v[30:31], v[12:13], v[12:13]
v_pk_add_f32 v[32:33], v[16:17], v[18:19]
v_pk_mul_f32 v[34:35], v[14:15], v[14:15]''')
    for i in range(2, 8):
        k(f'v_pk_fma_f32 {vr(30+4*(i&1),2)}, {vr(12+2*i,2)}, {vr(12+2*i,2)}, {vr(30+4*(i&1),2)}')
        if i >= 4:
            k(f'v_pk_add_f32 {vr(28+4*(i&1),2)}, {vr(28+4*(i&1),2)}, {vr(12+2*i,2)}')
    k('''v_pk_add_f32 v[28:29], v[28:29], v[32:33]
v_pk_add_f32 v[30:31], v[30:31], v[34:35]
v_add_f32 v28, v28, v29
v_add_f32 v30, v30, v31''')
    wave_reduce2(k, 28, 30, 36, 37)
    ln_stats(k, 36, 37, 640, 28, 30, 32)
    ln_apply(k, 12, 16, 28, 30, 40)
    srd_from(k, 68, 40, 41, WS_FL, FL_BYTES)
    k(f'''ds_write_b128 v112, v[40:43] offset:{TB2}
s_mov_b32 exec_lo, 0x000f000f
s_mov_b32 exec_hi, 0x000f000f
ds_write_b128 v112, v[44:47] offset:{TB2+16*272}
s_mov_b64 exec, -1
s_waitcnt lgkmcnt(0)
s_barrier
ds_read_b128 v[40:43], v113 offset:{TB2}
ds_read_b128 v[44:47], v113 offset:{TB2+32*272}
s_min_u32 s42, s34, 6
s_lshl_b32 s42, s42, 10
s_add_u32 m0, s42, {BB}
s_add_u32 s42, s42, s58
s_add_u32 s42, s42, {133*1024}
s_lshl_b32 s43, s3, 3
s_add_u32 s43, s43, s34
s_lshl_b32 s43, s43, 2
s_waitcnt lgkmcnt(1)
buffer_store_dwordx4 v[40:43], v3, s[60:63], s59 offen sc1
s_waitcnt lgkmcnt(0)
buffer_store_dwordx4 v[44:47], v3, s[60:63], s49 offen sc1
s_barrier
buffer_load_dwordx4 v3, s[64:67], s42 offen lds''')
    st(k, 1, 2); st(k, 0, 2)
    k('s_waitcnt vmcnt(0)')
    flag(k, 68, 's43')
    st(k, 1, 3)


def ph_g1(k, opt, DONE, wb):
    L = {(g, z): k.label(f'g{g}z{z}') for g in range(2) for z in range(2)}
    NPL = k.label('npl')
    WQ = opt.get('WQ', [0, 0, 0])
    k(f'''s_lshr_b32 s35, s3, 4
s_bfe_u32 s36, s3, 0x30001
s_and_b32 s37, s3, 1
s_and_b32 s38, s34, 3
s_lshl_b32 s39, s35, 2
s_add_u32 s39, s39, s38
v_and_b32 v2, 63, v0
v_and_b32 v6, 15, v2
v_lshrrev_b32 v7, 4, v2
s_cmp_lg_u32 s34, {opt.get('plw', 7)}
s_cbranch_scc1 {NPL}
s_lshl_b32 s42, s35, 9
v_lshlrev_b32 v9, 3, v2''')
    LP = k.label('lp'); LD = k.label('ld')
    k(f'''s_mov_b32 s43, {SPIN}
{LP}:
buffer_load_dwordx2 v[10:11], v9, s[68:71], s42 offen sc1
s_waitcnt vmcnt(0)
v_min_u32 v10, v10, v11
v_cmp_eq_u32 vcc, 0, v10
s_cbranch_vccz {LD}
s_sub_u32 s43, s43, 1
s_cmp_lg_u32 s43, 0
s_cbranch_scc1 {LP}
s_branch {LD}
{NPL}:''')
    k(f'{LD}:')
    srd_from(k, 8, 40, 41, WS_HN, X_BYTES)
    k(f'''v_lshrrev_b32 v8, 2, v6
v_and_b32 v9, 3, v6
v_mul_u32_u24 v1, 10240, v8
v_lshl_add_u32 v1, v7, 6, v1
v_lshl_add_u32 v1, v9, 4, v1
v_add_u32 v2, {4*10240}, v1
s_lshr_b32 s44, s39, 1
s_lshl_b32 s44, s44, 4
s_and_b32 s45, s38, 1
s_add_u32 s44, s44, s45
s_mul_i32 s44, s44, 5120
s_add_u32 s45, s44, 4096
v_add_u32 v4, 57344, v3
v_add_u32 v5, 114688, v3
s_lshr_b32 s42, s34, 2
s_barrier''')
    st(k, 1, 4); st(k, 0, 3)
    aoff = lambda kk: (f's{44+kk//16}', 256 * (kk % 16))
    PD = opt.get('PD', 5); NA = PD + 1
    assert 40 + 8 * NA <= 96
    AR = lambda kk, u: vr(40 + 8 * (kk % NA) + 4 * u, 4)
    ACC = lambda u, n: 96 + ((n & 3) * 2 + u) * 4
    vm0 = Cnt('vmcnt', 63)

    def aload(kk, u, v):
        if kk >= 20: return
        so, off = aoff(kk)
        k(f'buffer_load_dwordx4 {AR(kk,u)}, v{1+u}, s[8:11], {so} offen offset:{off}'); v.issue(f'a{kk}')
    k(f'''s_cmp_eq_u32 s42, s37
s_cselect_b32 s43, 1, 0
s_cbranch_scc0 {NPL}x
s_setprio {opt.get('zprio', 2)}
{NPL}x:''')
    for kk in range(PD):
        for u in range(2): aload(kk, u, vm0)
    srd_from(k, 12, 40, 41, WS_Z1, A2_BYTES)
    srd_from(k, 16, 40, 41, WS_Z2, Z2N_BYTES)
    srd_from(k, 20, 40, 41, WS_PX, PX_BYTES)
    k(f'''s_lshl_b32 s47, s36, 1
s_add_u32 s47, s47, s37
s_lshl_b32 s47, s47, 6
s_add_u32 s47, s47, s39
s_lshl_b32 s47, s47, 2
s_add_u32 s47, s47, 0x2000
s_lshl_b32 s42, s42, 1
s_add_u32 s42, s42, s43
s_cmp_eq_u32 s42, 1
s_cbranch_scc1 {L[0,1]}
s_cmp_eq_u32 s42, 2
s_cbranch_scc1 {L[1,0]}
s_cmp_eq_u32 s42, 3
s_cbranch_scc1 {L[1,1]}''')
    NB = 8; LA = opt.get('LA', 6)
    SC = opt.get('gsc', 1)

    def path(grp, z2):
        import copy
        vm = copy.deepcopy(vm0)
        wq = copy.copy(wb) if wb else None
        if wq: wq.ops = list(wb.ops)
        tiles = [0, 1, 2, 3] if grp == 0 else [4, 5, 6]
        NT = len(tiles)
        order = [(kk, n) for kk in range(20) for n in tiles]

        def rdB(f):
            if f >= len(order): return
            kk, n = order[f]
            a = BB + ((kk + 1) % 20) * 7168 + n * 1024
            k(f'ds_read_b128 {vr(8+4*(f%NB),4)}, v{3+a//57344} offset:{a%57344}')
        for f in range(LA): rdB(f)
        for f, (kk, n) in enumerate(order):
            x = vm.wait(f'a{kk}')
            if x: k(x)
            if n == tiles[0] and kk in (0, 10): st(k, 1, 5 + kk // 10)
            rem = min(LA - 1, len(order) - 1 - f)
            k(f's_waitcnt lgkmcnt({rem})')
            b = vr(8 + 4 * (f % NB), 4)
            for u in range(2):
                acc = vr(ACC(u, n), 4)
                c = '0' if kk == 0 else acc
                if z2: k(f'{MFMA} {acc}, {AR(kk,u)}, {b}, {c}')
                else: k(f'{MFMA} {acc}, {b}, {AR(kk,u)}, {c}')
            rdB(f + LA)
            i = f % NT
            if i < 2: aload(kk + PD, i, vm)
            if i == 2 and wq: wq(WQ[z2] if kk >= WQ[2] else 0, vm)
        st(k, 1, 7); st(k, 0, 4)
        k(f'v_mov_b32 v4, {fbits(C1)}\nv_mov_b32 v5, {fbits(C0)}')
        if not z2:
            k(f'''s_lshr_b32 s42, s39, 1
s_lshl_b32 s42, s42, 3
s_add_u32 s42, s42, s36
s_lshl_b32 s42, s42, 1
s_and_b32 s43, s39, 1
s_add_u32 s42, s42, s43
s_lshl_b32 s42, s42, 13
s_add_u32 s43, s42, 4096
s_add_u32 s47, s47, 0x1000
v_lshrrev_b32 v2, 1, v3''')
            units = [(u, p) for p in ((0, 1) if grp == 0 else (2,)) for u in range(2)]
            for i, (u, p) in enumerate(units):
                o = 12 + 4 * (i & 1)
                for h in range(2):
                    a = ACC(u, 2 * p + h)
                    k(f'v_cvt_pk_bf16_f32 v{8+2*h}, v{a}, v{a+1}\nv_cvt_pk_bf16_f32 v{9+2*h}, v{a+2}, v{a+3}')
                gelu_pk(k, 8, 8, 20, 28, o, 4, sc=(SC > 1))
                k(f'buffer_store_dwordx4 {vr(o,4)}, v3, s[12:15], s{42+u} offen offset:{1024*p} sc1')
            if grp == 1:
                for u in range(2):
                    a = ACC(u, 6)
                    k(f'v_cvt_pk_bf16_f32 v{8+2*u}, v{a}, v{a+1}\nv_cvt_pk_bf16_f32 v{9+2*u}, v{a+2}, v{a+3}')
                gelu_pk(k, 8, 8, 20, 28, 12, 4, sc=(SC > 1))
                for u in range(2):
                    k(f'buffer_store_dwordx2 {vr(12+2*u,2)}, v2, s[12:15], s{42+u} offen offset:3072 sc1')
            st(k, 1, 8)
            k('s_waitcnt vmcnt(0)')
            flag(k, 68, 's47')
            if wq: wq(99)
            k(f's_branch {DONE}')
            return
        S = 72; Q = 80
        SK = k.label('sk')
        for i, n in enumerate(tiles):
            if n == 5: k(f's_cmp_eq_u32 s36, 7\ns_cbranch_scc1 {SK}')
            for r in range(4): k(f'v_cvt_pk_bf16_f32 v{8+r}, v{ACC(0,n)+r}, v{ACC(1,n)+r}')
            k(f'''v_permlane32_swap_b32 v8, v10
v_permlane32_swap_b32 v9, v11
v_permlane16_swap_b32 v8, v9
v_permlane16_swap_b32 v10, v11''')
            gelu_pk(k, 8, 8, 20, 28, 12, 4, tr=True, sc=(SC > 0))
            d = 40 + 8 * i
            for r in range(4):
                k(f'v_lshlrev_b32 v{d+2*r}, 16, v{12+r}\nv_and_b32 v{d+1+2*r}, 0xffff0000, v{12+r}')
            for e in range(8):
                if i == 0: k(f'v_mul_f32 v{Q+e}, v{d+e}, v{d+e}\nv_mov_b32 v{S+e}, v{d+e}')
                else: k(f'v_add_f32 v{S+e}, v{S+e}, v{d+e}\nv_fmac_f32 v{Q+e}, v{d+e}, v{d+e}')
        k(f'{SK}:')
        V = [0] * 16
        for e in range(8):
            V[2 * e] = S + e; V[2 * e + 1] = Q + e
        for i in range(8):
            k(f'v_add_f32_dpp v{V[i]}, v{V[i]}, v{V[i]} row_ror:8 row_mask:0xf bank_mask:0x3')
        for i in range(8):
            k(f'v_add_f32_dpp v{V[i]}, v{V[i+8]}, v{V[i+8]} row_ror:8 row_mask:0xf bank_mask:0xc')
        for i in range(4):
            k(f'v_add_f32_dpp v{V[i]}, v{V[i]}, v{V[i]} row_half_mirror row_mask:0xf bank_mask:0x5')
        for i in range(4):
            k(f'v_add_f32_dpp v{V[i]}, v{V[i+4]}, v{V[i+4]} row_half_mirror row_mask:0xf bank_mask:0xa')
        for m in ('quad_perm:[1,0,3,2]', 'quad_perm:[2,3,0,1]'):
            for i in range(4):
                k(f'v_add_f32_dpp v{V[i]}, v{V[i]}, v{V[i]} {m} row_mask:0xf bank_mask:0xf')
        k(f'''s_mov_b32 vcc_lo, 0xaaaaaaaa
s_mov_b32 vcc_hi, 0xaaaaaaaa
v_cndmask_b32 v8, v{V[0]}, v{V[1]}, vcc
v_cndmask_b32 v9, v{V[2]}, v{V[3]}, vcc
s_mov_b32 vcc_lo, 0xcccccccc
s_mov_b32 vcc_hi, 0xcccccccc
v_cndmask_b32 v8, v8, v9, vcc
s_lshl_b32 s42, s39, 12
s_and_b32 s43, s3, 15
s_lshl_b32 s43, s43, 8
s_add_u32 s43, s43, s42
v_lshrrev_b32 v2, 2, v3
buffer_store_dword v8, v2, s[20:23], s43 offen sc1
v_lshrrev_b32 v9, 2, v6
v_and_b32 v10, 3, v6
v_lshlrev_b32 v9, 8, v9
v_lshl_add_u32 v9, v7, 6, v9
v_lshl_add_u32 v1, v10, 4, v9''')
        st(k, 1, 8)
        LP = k.label('lp'); LD = k.label('ld')
        k(f'''s_lshl_b32 s44, s36, 3
s_lshr_b32 s45, s39, 3
s_add_u32 s44, s44, s45
s_mul_i32 s44, s44, 56
s_and_b32 s45, s39, 7
s_add_u32 s44, s44, s45
s_add_u32 s44, s44, {8*tiles[0]}
s_lshl_b32 s44, s44, 10
v_mov_b32 v4, {fbits(1.0/864)}
s_mov_b32 s43, {SPIN}
{LP}:''')
        for i in range(4): k(f'buffer_load_dwordx4 {vr(8+4*i,4)}, v1, s[20:23], s42 offen offset:{1024*i} sc1')
        k('s_waitcnt vmcnt(2)')
        k('v_max3_u32 v24, v8, v9, v10\nv_max3_u32 v25, v11, v12, v13\nv_max3_u32 v24, v24, v14, v15')
        for r in range(4): k(f'v_add_f32 v{28+r}, v{8+r}, v{12+r}')
        k('s_waitcnt vmcnt(0)')
        k('''v_max3_u32 v25, v25, v16, v17
v_max3_u32 v24, v24, v18, v19
v_max3_u32 v25, v25, v20, v21
v_max3_u32 v24, v24, v22, v23
v_max_u32 v24, v24, v25
v_cmp_eq_u32 vcc, -1, v24''')
        for r in range(4): k(f'v_add_f32 v{32+r}, v{16+r}, v{20+r}')
        k(f'''s_cbranch_vccz {LD}
s_sub_u32 s43, s43, 1
s_cmp_lg_u32 s43, 0
s_cbranch_scc1 {LP}
{LD}:''')
        st(k, 1, 9)
        for r in range(4): k(f'v_add_f32 v{28+r}, v{28+r}, v{32+r}')
        for m in ('row_ror:4', 'row_ror:8'):
            for r in range(4): k(f'v_add_f32_dpp v{28+r}, v{28+r}, v{28+r} {m} row_mask:0xf bank_mask:0xf')
        for r in range(4): k(f'v_mul_f32 v{28+r}, v{28+r}, v4')
        k(f'''v_fma_f32 v29, -v28, v28, v29
v_fma_f32 v31, -v30, v30, v31
v_max_f32 v29, 0, v29
v_max_f32 v31, 0, v31
v_cvt_pk_bf16_f32 v12, v28, v30
v_cvt_pk_bf16_f32 v13, v29, v31
v_lshlrev_b32 v8, 16, v12
v_and_b32 v9, 0xffff0000, v12
v_lshlrev_b32 v10, 16, v13
v_and_b32 v11, 0xffff0000, v13
v_add_f32 v10, 0x3727c5ac, v10
v_add_f32 v11, 0x3727c5ac, v11
v_cvt_pk_bf16_f32 v13, v10, v11
v_lshlrev_b32 v10, 16, v13
v_and_b32 v11, 0xffff0000, v13
v_sqrt_f32 v10, v10
v_sqrt_f32 v11, v11''')
        for e in range(8):
            k(f'v_mov_b32_dpp v{16+e}, v{8+(e&1)} quad_perm:[{e>>1},{e>>1},{e>>1},{e>>1}] row_mask:0xf bank_mask:0xf')
        k(f'''v_cvt_pk_bf16_f32 v13, v10, v11
v_lshlrev_b32 v10, 16, v13
v_and_b32 v11, 0xffff0000, v13
v_rcp_f32 v10, v10
v_rcp_f32 v11, v11''')
        for i in range(NT):
            d = 40 + 8 * i
            for e in range(0, 8, 2):
                k(f'v_pk_add_f32 {vr(d+e,2)}, {vr(d+e,2)}, {vr(16+e,2)} neg_lo:[0,1] neg_hi:[0,1]')
            if i == 0:
                for e in range(8):
                    k(f'v_mov_b32_dpp v{24+e}, v{10+(e&1)} quad_perm:[{e>>1},{e>>1},{e>>1},{e>>1}] row_mask:0xf bank_mask:0xf')
            o = 72 + 4 * i
            for r in range(4): k(f'v_cvt_pk_bf16_f32 v{o+r}, v{d+2*r}, v{d+2*r+1}')
            for r in range(4): k(f'v_lshlrev_b32 v{d+2*r}, 16, v{o+r}\nv_and_b32 v{d+1+2*r}, 0xffff0000, v{o+r}')
            for e in range(0, 8, 2):
                k(f'v_pk_mul_f32 {vr(d+e,2)}, {vr(d+e,2)}, {vr(24+e,2)}')
            for r in range(4): k(f'v_cvt_pk_bf16_f32 v{o+r}, v{d+2*r}, v{d+2*r+1}')
            k(f'buffer_store_dwordx4 {vr(o,4)}, v3, s[16:19], s44 offen sc1')
            if i < NT - 1: k('s_add_u32 s44, s44, 8192')
        k('s_waitcnt vmcnt(0)')
        flag(k, 68, 's47')
        k('s_setprio 0')
        if wq: wq(99)
        k(f's_branch {DONE}')
    for g in range(2):
        for z in range(2):
            k(f'{L[g,z]}:')
            path(g, z)


def gen_ka(opt):
    k = Kern('ka_kernel', 256, 512, 163840, nvgpr=128, nagpr=128)
    END = k.label('end')
    k(f's_cmp_ge_u32 s2, 256\ns_cbranch_scc1 {END}')
    k.stamp(True)
    ph_k2a(k, opt, None)
    ph_g1(k, opt, END, None)
    k.finish(END)
    return k


def g3_wo_setup(k):
    srd_from(k, 28, 40, 41, WS_WO, WO8_BYTES)
    k(f'''s_lshl_b32 s60, s36, 3
s_add_u32 s60, s60, s34
s_mul_i32 s60, s60, {WOB}''')


def g3_wo_ops():
    ops = []
    for i in range(15):
        s = f'buffer_load_dwordx4 {ar(4*i,4)}, v3, s[28:31], s60 offen offset:{1024*(i%4)}'
        if i % 4 == 3: s += '\ns_add_u32 s60, s60, 4096'
        if i == 14: s += '\ns_add_u32 s60, s60, 3072'
        ops.append(s)
    for n in range(5):
        ops.append(f'buffer_load_dwordx2 {ar(60+2*n,2)}, v2, s[28:31], s60 offen offset:{512*n}')
    return ops


def ph_g3(k, opt, fused):
    vm = Cnt('vmcnt', 63); lg = Cnt('lgkmcnt', 15)
    srd_from(k, 8, 40, 41, WS_A, A2_BYTES)
    srd_from(k, 12, 40, 41, WS_H, X_BYTES)
    k(f'''s_lshl_b32 s44, s35, 3
s_add_u32 s44, s44, s34
s_lshl_b32 s42, s44, 5
s_add_u32 s42, s42, 0x4000
s_lshl_b32 s44, s44, 14
v_lshrrev_b32 v1, 4, v3
v_and_b32 v6, 15, v1
v_lshrrev_b32 v7, 4, v1''')
    k(f'''s_lshr_b32 s45, s34, 1
s_mul_i32 s45, s45, 40960
s_and_b32 s46, s34, 1
s_lshl_b32 s46, s46, 3''')
    for p in range(3):
        k(f'''v_add_u32 v8, {64*p}, v1
v_mul_u32_u24 v9, 3277, v8
v_lshrrev_b32 v9, 16, v9
v_mul_u32_u24 v10, 20, v9
v_sub_u32 v10, v8, v10
v_add_u32 v9, s46, v9
v_add_u32 v11, v9, v10
v_and_b32 v11, 15, v11
v_lshlrev_b32 v11, 4, v11
v_lshrrev_b32 v12, 2, v10
v_lshl_add_u32 v11, v12, 13, v11
v_and_b32 v12, 3, v10
v_lshl_add_u32 v11, v12, 8, v11
v_add_u32 v{116+p}, s45, v11
v_lshrrev_b32 v11, 2, v9
v_and_b32 v12, 3, v9
v_lshl_add_u32 v11, v12, 8, v11
v_mul_u32_u24 v11, 1280, v11
v_lshl_add_u32 v{120+p}, v10, 3, v11''')
    k(f'''v_mov_b32 v8, 0x7fffffff
v_cmp_gt_u32 vcc, 32, v1
v_cndmask_b32 v122, v8, v122, vcc
s_lshl_b32 s47, s35, 3
s_and_b32 s43, s34, 2
s_lshl_b32 s43, s43, 1
s_add_u32 s47, s47, s43
s_and_b32 s43, s34, 4
s_lshl_b32 s43, s43, 8
s_add_u32 s47, s47, s43
s_mul_i32 s47, s47, 1280
s_mul_i32 s43, s36, 160
s_add_u32 s47, s47, s43''')
    for p in range(3):
        k(f'buffer_load_dwordx2 {vr(104+2*p,2)}, v{120+p}, s[12:15], s47 offen'); vm.issue('h')
    k(f'''s_lshl_b32 s43, s34, 10
v_add_u32 v8, v6, v7
v_lshlrev_b32 v9, 8, v7
v_add_u32 v9, s43, v9''')
    for n in range(5):
        k(f'''v_add_u32 v10, {4*n}, v8
v_and_b32 v10, 15, v10
v_lshl_add_u32 v10, v10, 4, v9
v_add_u32 v{88+n}, {8192*n}, v10
v_add_u32 v{93+n}, {8192*n+81920}, v10''')
    if fused:
        srd_from(k, 20, 40, 41, WS_FL, FL_BYTES)
        k('v_lshlrev_b32 v8, 2, v1\ns_mov_b64 exec, 0xff')
        poll(k, 20, 's42', 8, 9, 43)
        k('s_mov_b64 exec, -1')
        vm.done = 3
    st(k, 3, 1); st(k, 0, 8)
    k(f's_cmp_eq_u32 s34, 7\ns_cselect_b32 s48, {BIG}, 0')
    AF = lambda tt, p: 72 + 14 * tt + 4 * p
    for tt in range(4):
        for p in range(3):
            k(f'buffer_load_dwordx4 {ar(AF(tt,p),4)}, v3, s[8:11], s44 offen offset:{1024*p}'); vm.issue(f'a{tt}{p}')
        k(f's_add_u32 s49, s44, s48\nbuffer_load_dwordx2 {ar(AF(tt,3),2)}, v2, s[8:11], s49 offen offset:3072'); vm.issue(f'a{tt}3')
        if tt < 3: k('s_add_u32 s44, s44, 4096')
    srd_from(k, 16, 80, 81, 0, X_BYTES)
    if fused: k('s_barrier')
    ACC = lambda tt, n: 8 + 20 * (tt & 1) + 4 * n
    pend = []
    for tt in range(4):
        for p in range(4):
            x = vm.wait(f'a{tt}{p}')
            if x: k(x)
            if tt == 0 and p == 0: st(k, 3, 2)
            for n in range(5):
                acc = vr(ACC(tt, n), 4)
                if p < 3: k(f'{MFMA} {acc}, {ar(20*p+4*n,4)}, {ar(AF(tt,p),4)}, {"0" if p == 0 else acc}')
                else: k(f'{MF16} {acc}, {ar(60+2*n,2)}, {ar(AF(tt,3),2)}, {acc}')
                if pend and (5 * p + n) % 3 == 2: k(pend.pop(0))
        for n in range(5):
            pend.append(f'ds_write_b128 v{88+5*(tt>>1)+n}, {vr(ACC(tt,n),4)} offset:{40960*(tt&1)}')
    for o in pend: k(o)
    st(k, 3, 3)
    k('s_waitcnt lgkmcnt(0)\ns_barrier')
    st(k, 3, 4)
    for p in range(3):
        for s in range(8):
            k(f'ds_read_b128 {vr(8+32*p+4*s,4)}, v{116+p} offset:{1024*s}'); lg.issue(f'r{p}{s}')
        if p == 0:
            for q in range(3):
                k(f'v_lshlrev_b32 v{110+2*q}, 16, v{104+2*q}\nv_and_b32 v{104+2*q}, 0xffff0000, v{104+2*q}')
    for p in range(3):
        a = 8 + 32 * p
        for s in (0, 2, 4, 6):
            x = lg.wait(f'r{p}{s+1}')
            if x: k(x)
            for h in range(2): k(f'v_pk_add_f32 {vr(a+4*s+2*h,2)}, {vr(a+4*s+2*h,2)}, {vr(a+4*s+4+2*h,2)}')
            if s in (2, 6):
                for h in range(2): k(f'v_pk_add_f32 {vr(a+4*s-8+2*h,2)}, {vr(a+4*s-8+2*h,2)}, {vr(a+4*s+2*h,2)}')
        for h in range(2): k(f'v_pk_add_f32 {vr(a+2*h,2)}, {vr(a+2*h,2)}, {vr(a+16+2*h,2)}')
        k(f'''v_cvt_pk_bf16_f32 v{a+4}, v{a}, v{a+1}
v_cvt_pk_bf16_f32 v{a+5}, v{a+2}, v{a+3}
v_lshlrev_b32 v{a+8}, 16, v{105+2*p}
v_and_b32 v{a+9}, 0xffff0000, v{105+2*p}
v_lshlrev_b32 v{a}, 16, v{a+4}
v_and_b32 v{a+1}, 0xffff0000, v{a+4}
v_lshlrev_b32 v{a+2}, 16, v{a+5}
v_and_b32 v{a+3}, 0xffff0000, v{a+5}
v_add_f32 v{a}, v{a}, v{110+2*p}
v_add_f32 v{a+1}, v{a+1}, v{104+2*p}
v_pk_add_f32 {vr(a+2,2)}, {vr(a+2,2)}, {vr(a+8,2)}
v_cvt_pk_bf16_f32 v{a+4}, v{a}, v{a+1}
v_cvt_pk_bf16_f32 v{a+5}, v{a+2}, v{a+3}
buffer_store_dwordx2 {vr(a+4,2)}, v{120+p}, s[16:19], s47 offen''')


def gen_g3(opt):
    k = Kern('k4_kernel', 256, 512, 163840, nvgpr=128, nagpr=128)
    END = k.label('end')
    k(f'''s_cmp_ge_u32 s2, 256
s_cbranch_scc1 {END}
s_load_dwordx2 s[40:41], s[0:1], 80
s_load_dwordx2 s[80:81], s[0:1], 64''')
    k.stamp(True)
    map_g2(k)
    k(f'''v_lshrrev_b32 v1, 6, v0
v_and_b32 v2, 63, v0
v_readfirstlane_b32 s34, v1
v_lshlrev_b32 v3, 4, v2
v_lshlrev_b32 v2, 3, v2
s_waitcnt lgkmcnt(0)''')
    g3_wo_setup(k)
    for o in g3_wo_ops(): k(o)
    ph_g3(k, opt, False)
    k.finish(END)
    return k
```

```python
from asmlib import *
import gen_fft
from gen_fft import vr, sr, srd_from, tab_srd, MFMA, WS_H, WS_HN, WS_U, WS_T, X_BYTES, TU_BYTES, TP, fft8, smul, cmul_planar, wave_reduce2, ln_stats, ln_apply
from gen3 import *

WS_FL = 0x1800000
FL_BYTES = 0x40000
FLH = 0; FL2 = 0x8000; FL3 = 0x10000; FLU = 0x18000
FS = 7
WS_PX = 0x1840000
PX_BYTES = 64 * 16 * 256
WS_WS = 0x2000000
WSP_BYTES = 8 << 20
Z2N_BYTES = 64 * 57344
A2_BYTES = 4 << 20
SPIN = 400000
PV = 0
MF16 = 'v_mfma_f32_16x16x16_bf16'
BIG = '0x7f000000'


def st(k, view, slot):
    if Kern.prof and PV == view:
        k.nst = slot; k.stamp()


def poll(k, srd, soff, va, vd, sc):
    LP = k.label('lp'); LD = k.label('ld')
    k(f'''s_mov_b32 s{sc}, {SPIN}
{LP}:
buffer_load_dword v{vd}, v{va}, {sr(srd,4)}, {soff} offen sc1
s_waitcnt vmcnt(0)
v_cmp_eq_u32 vcc, 0, v{vd}
s_cbranch_vccz {LD}
s_sub_u32 s{sc}, s{sc}, 1
s_cmp_lg_u32 s{sc}, 0
s_cbranch_scc1 {LP}
{LD}:''')


def map_g2(k):
    k('''s_and_b32 s33, s2, 7
s_lshr_b32 s42, s2, 3
s_lshr_b32 s35, s33, 1
s_lshl_b32 s35, s35, 3
s_and_b32 s36, s42, 7
s_add_u32 s35, s35, s36
s_and_b32 s36, s33, 1
s_lshl_b32 s36, s36, 2
s_lshr_b32 s42, s42, 3
s_add_u32 s36, s36, s42''')


def w_setup(k, t0, t1):
    k(f'''s_mov_b32 s74, {2048*4096}
s_mov_b32 s75, 0x00020000
s_bfe_u32 s{t0}, s2, 0x20001
s_lshl_b32 s{t0}, s{t0}, 3
s_bfe_u32 s{t1}, s2, 0x30003
s_add_u32 s{t0}, s{t0}, s{t1}
s_lshl_b32 s50, s{t0}, 15
s_lshr_b32 s{t0}, s34, 2
s_lshl_b32 s{t0}, s{t0}, 11
s_and_b32 s{t1}, s34, 3
s_lshl_b32 s{t1}, s{t1}, 7
s_add_u32 s50, s50, s{t0}
s_add_u32 s50, s50, s{t1}
s_add_u32 s51, s50, 16384''')


def w_vaddr(k, d, t):
    k(f'''v_and_b32 v{d}, 48, v3
v_bfe_u32 v{t}, v3, 6, 2
v_lshl_add_u32 v{d}, v{t}, 12, v{d}
v_lshrrev_b32 v{t}, 8, v3
v_lshl_add_u32 v{d}, v{t}, 9, v{d}''')


def g2_wops(fl=''):
    ops = []
    for n2 in range(8):
        for u in range(2):
            for hi in range(2):
                o = f'buffer_load_dwordx4 {ar(16*(4*hi+(n2&3))+4*(2*(n2>>2)+u),4)}, @, s[72:75], s{50+u} offen offset:{64*hi}{fl}'
                if u and hi and n2 < 7: o += '\ns_add_u32 s50, s50, 0x100000\ns_add_u32 s51, s51, 0x100000'
                ops.append(o)
    return ops


def w_trans(k, vw, vrd, groups=None):
    PT = 520
    k(f'''s_mul_i32 s42, s34, 2560
v_lshrrev_b32 v{vw}, 1, v3
v_add_u32 v{vw}, s42, v{vw}
v_bfe_u32 v{vrd}, v3, 4, 2
v_mul_u32_u24 v{vrd}, {PT-8}, v{vrd}
v_add_u32 v{vrd}, v{vw}, v{vrd}''')
    for tt in range(4):
        for hi in range(2):
            if groups is not None and (tt >> 1) not in groups: continue
            for h in range(2):
                R = lambda i: ar(16 * (4 * hi + i) + 4 * tt + 2 * h, 2)
                for i in range(4): k(f'ds_write_b64 v{vw}, {R(i)} offset:{PT*i}')
                for c in range(4): k(f'ds_read_b64 {R(c)}, v{vrd} offset:{8*c}')


def unpk(l):
    m = re.match(r'v_pk_(add|mul)_f32 v\[(\d+):\d+\], v\[(\d+):\d+\], v\[(\d+):\d+\](.*)', l)
    if not m: return [l]
    op, d, a, b, mod = m.group(1), int(m.group(2)), int(m.group(3)), int(m.group(4)), m.group(5).strip()
    if mod == '': return [f'v_{op}_f32 v{d}, v{a}, v{b}', f'v_{op}_f32 v{d+1}, v{a+1}, v{b+1}']
    if mod == 'op_sel:[0,1] op_sel_hi:[1,1]': return [f'v_{op}_f32 v{d}, v{a}, v{b+1}', f'v_{op}_f32 v{d+1}, v{a+1}, v{b+1}']
    raise ValueError(l)


class Fill:
    def __init__(self): self.q = []
    def add(self, pos, f): self.q.append((pos, f))
    def emit(self, k, p, n):
        c = 0
        while self.q and self.q[0][0] <= p and c < n:
            f = self.q.pop(0)[1]
            f() if callable(f) else k(f)
            c += 1
    def flush(self, k): self.emit(k, 10**9, 10**9)


def ph_g2(k, opt, DONE, vm0, fused, post=None):
    HI = k.label('hi')
    NZ = opt.get('NZ', 14); ZR = 96 - 4 * NZ
    T = 8; S = 24; Z1 = 32
    assert ZR >= 40
    ACC = lambda n, tt: 96 + 16 * (n & 1) + 4 * tt
    SLOT = [0, 1, 2, 3, 4, 0, 1]
    srd_from(k, 8, 40, 41, WS_Z2, Z2N_BYTES)
    k(f'''s_lshl_b32 s56, s36, 3
s_add_u32 s56, s56, s34
s_mul_i32 s56, s56, 57344
v_and_b32 v2, 63, v0''')
    if opt.get('warm'):
        k('v_lshlrev_b32 v4, 7, v2\ns_mov_b32 s42, s56')
        for i in range(7): k('buffer_load_dword v5, v4, s[8:11], s42 offen\ns_add_u32 s42, s42, 8192')
        k('s_waitcnt vmcnt(0)\ns_barrier\ns_sleep 127')
    st(k, 2, 2)
    if opt.get('clkm'): k('s_memtime s[76:77]'); k.clkm = 1
    if opt.get('zpf'):
        k(f'''v_lshrrev_b32 v4, 3, v2
v_and_b32 v5, 7, v2
v_lshlrev_b32 v5, 7, v5
v_lshl_add_u32 v4, v4, 13, v5
s_and_b32 s42, s35, 7
s_lshl_b32 s42, s42, 10
s_add_u32 s42, s42, s56
s_mov_b32 exec_hi, 0x00ffffff
buffer_load_dword v36, v4, s[8:11], s42 offen
s_mov_b32 exec_hi, -1''')
        vm0.issue('pf')

    def zload(q, vm):
        if q >= 56 or opt.get('noz'): return
        if q and q % 4 == 0: k('s_add_u32 s56, s56, 4096')
        if q == 40: k(f's_cmp_eq_u32 s36, 7\ns_cselect_b32 s56, {BIG}, s56')
        k(f'buffer_load_dwordx4 {vr(ZR+4*(q%NZ),4)}, v3, s[8:11], s56 offen offset:{1024*(q%4)}'); vm.issue(f'z{q}')
    N0 = opt.get('N0', NZ)
    for q in range(N0): zload(q, vm0)
    srd_from(k, 12, 40, 41, WS_Z1, A2_BYTES)
    srd_from(k, 16, 40, 41, WS_A, A2_BYTES)
    srd_from(k, 24, 24, 25, 0, 4096)
    k(f'''s_and_b32 s37, s34, 3
s_lshl_b32 s44, s35, 3
s_add_u32 s44, s44, s36
s_lshl_b32 s44, s44, 2
s_add_u32 s44, s44, s37
s_lshl_b32 s44, s44, 12
s_and_b32 s42, s34, 1
s_lshl_b32 s42, s42, 3
s_lshl_b32 s45, s35, 4
s_add_u32 s45, s45, s42
s_and_b32 s42, s34, 2
s_lshl_b32 s42, s42, 10
s_add_u32 s45, s45, s42
v_bfe_u32 v4, v2, 2, 2
v_and_b32 v5, 3, v2
v_lshlrev_b32 v5, 9, v5
v_lshl_add_u32 v4, v4, 1, v5
buffer_load_ushort v1, v4, s[24:27], s45 offen
v_lshlrev_b32 v2, 3, v2
s_lshl_b32 s42, s34, 10
v_add_u32 v4, s42, v3
v_add_u32 v5, 0x10000, v4
v_add_u32 v6, 0x20000, v4
s_lshl_b32 s42, s37, 13
v_add_u32 v7, s42, v3
s_mov_b32 s58, 0xffff0000
s_cmp_eq_u32 s36, 7
s_cselect_b32 s46, {BIG}, s44
s_cselect_b32 s59, 0, -1
s_cmp_ge_u32 s34, 4
s_cbranch_scc1 {HI}''')
    vm0.issue('b')

    def body(hi):
        import copy
        vm = copy.deepcopy(vm0); lg = Cnt('lgkmcnt', 15)
        F = Fill()

        def wr(n, tt):
            a = SLOT[n] * 32768 + tt * 8192
            k(f'ds_write_b128 v{4+a//65536}, {vr(ACC(n,tt),4)} offset:{a%65536}'); lg.issue(f'w{n}')

        def bar(n):
            x = lg.wait(f'w{n}')
            if x: k(x)
            k('s_barrier')

        def unit(tiles, zr, off, so, pos):
            nt = len(tiles)
            ops = []
            for ti, n in enumerate(tiles):
                for b in range(2):
                    base = SLOT[n] * 32768 + 4096 * b
                    if base >= 65536 - 32768 + 8192 and False: pass
                    for i in range(4):
                        def rd(base=base, i=i, n=n, b=b):
                            a = base + 1024 * i
                            k(f'ds_read_b128 {vr(T+4*i,4)}, v{RB[a//65536]} offset:{a%65536}'); lg.issue(f'r{n}_{b}_{i}')
                        ops.append(rd)
                    s = S + 4 * ti
                    def w01(n=n, b=b): k(lg.wait(f'r{n}_{b}_1') or '')
                    def w23(n=n, b=b): k(lg.wait(f'r{n}_{b}_3') or '')
                    ops.append(None); ops.append(None)
                    ops.append(w01)
                    d = s if b == 0 else T
                    ops += [f'v_pk_add_f32 {vr(d,2)}, {vr(T,2)}, {vr(T+4,2)}', f'v_pk_add_f32 {vr(d+2,2)}, {vr(T+2,2)}, {vr(T+6,2)}']
                    if b: ops += [f'v_pk_add_f32 {vr(s,2)}, {vr(s,2)}, {vr(T,2)}', f'v_pk_add_f32 {vr(s+2,2)}, {vr(s+2,2)}, {vr(T+2,2)}']
                    ops.append(w23)
                    ops += [f'v_pk_add_f32 {vr(T+8,2)}, {vr(T+8,2)}, {vr(T+12,2)}', f'v_pk_add_f32 {vr(T+10,2)}, {vr(T+10,2)}, {vr(T+14,2)}',
                            f'v_pk_add_f32 {vr(s,2)}, {vr(s,2)}, {vr(T+8,2)}', f'v_pk_add_f32 {vr(s+2,2)}, {vr(s+2,2)}, {vr(T+10,2)}']
            h = 2 * nt
            ops += [f'v_cvt_pk_bf16_f32 v{T+i}, v{S+2*i}, v{S+2*i+1}' for i in range(h)]
            ops += [f'v_lshlrev_b32 v{S+2*i}, 16, v{T+i}\nv_and_b32 v{S+2*i+1}, s58, v{T+i}' for i in range(h)]
            ops.append(lambda: k(vm.wait(f'y{off}') or ''))
            ops += [f'v_pk_add_f32 {vr(S+2*i,2)}, {vr(S+2*i,2)}, v[0:1] op_sel:[0,1] op_sel_hi:[1,1]' for i in range(h)]
            ops += [f'v_lshlrev_b32 v{T+8+2*i}, 16, v{zr+i}\nv_and_b32 v{T+9+2*i}, s58, v{zr+i}' for i in range(h)]
            ops += [f'v_cvt_pk_bf16_f32 v{T+i}, v{S+2*i}, v{S+2*i+1}' for i in range(h)]
            ops += [f'v_lshlrev_b32 v{S+2*i}, 16, v{T+i}\nv_and_b32 v{S+2*i+1}, s58, v{T+i}' for i in range(h)]
            ops += [f'v_pk_mul_f32 {vr(S+2*i,2)}, {vr(S+2*i,2)}, {vr(T+8+2*i,2)}' for i in range(h)]
            ops += [f'v_cvt_pk_bf16_f32 v{zr+i}, v{S+2*i}, v{S+2*i+1}' for i in range(h)]

            if tiles == [4, 5]: ops += [f'v_and_b32 v{zr+2}, s59, v{zr+2}', f'v_and_b32 v{zr+3}, s59, v{zr+3}']

            def sto():
                if nt == 2: k(f'buffer_store_dwordx4 {vr(zr,4)}, v3, s[16:19], {so} offen offset:{off} sc1')
                else: k(f'buffer_store_dwordx2 {vr(zr,2)}, v2, s[16:19], {so} offen offset:{off} sc1')
                vm.issue('s')
            ops.append(sto)
            out = []
            for o in ops:
                if o is None: out.append('')
                elif callable(o): out.append(o)
                else:
                    for l in o.split('\n'): out += unpk(l) if opt.get('upk', 1) else [l]
            return out

        def z1load(zr, off, so, nt):
            if nt == 2: k(f'buffer_load_dwordx4 {vr(zr,4)}, v3, s[12:15], {so} offen offset:{off}')
            else: k(f'buffer_load_dwordx2 {vr(zr,2)}, v2, s[12:15], {so} offen offset:{off}')
            vm.issue(f'y{off}')
        RB = [7, 38, 39]
        k('v_add_u32 v38, 0x10000, v7\nv_add_u32 v39, 0x20000, v7')
        ev = {}
        def at(p, f): ev.setdefault(p, []).append(f)
        for n in range(6):
            for tt in range(4): at(32 * (n + 1) + 3 + 2 * tt, lambda n=n, tt=tt: wr(n, tt))
        BP = opt.get('G2B', 16)
        at(64 + BP, lambda: bar(1)); at(128 + BP, lambda: bar(3)); at(192 + BP, lambda: bar(5))
        if opt.get('pp'):
            bs = [-1, 64 + BP, 128 + BP, 192 + BP, 224]
            k('s_setprio 3')
            for a, b in zip(bs[:-1], bs[1:]):
                for i in range(4):
                    pp = a + (b - a) * i // 4
                    if pp >= 0: at(pp, lambda i=i: k(f's_setprio {3-i}'))
        at(40, lambda: k((vm.wait('b') or '') + '\nv_lshlrev_b32 v1, 16, v1'))
        fq = []
        if not hi:
            at(33, lambda: z1load(Z1, 0, 's44', 2))
            at(160, lambda: z1load(Z1, 2048, 's44', 2))
            fq.append((64 + BP + 1, lambda: unit([0, 1], Z1, 0, 's44', 0)))
            fq.append((192 + BP + 1, lambda: unit([4, 5], Z1, 2048, 's44', 0)))
        else:
            at(97, lambda: z1load(Z1, 1024, 's44', 2))
            at(190, lambda: z1load(Z1 + 4, 3072, 's46', 1))
            fq.append((128 + BP + 1, lambda: unit([2, 3], Z1, 1024, 's44', 0)))
        if post:
            po = list(post)
            def pw(n):
                for _ in range(n):
                    if po: k(po.pop(0)); vm.issue('o')
            for j in range(1, 8):
                for tt in range(4): at(192 + 4 * j + tt, lambda: pw(1))
        R = opt.get('G2R', 3)
        cur = []
        p = 0
        nq = [N0]
        for n in range(7):
            if n in (1, 3, 5): st(k, 2, 3 + n // 2)
            for j in range(8):
                q = 8 * n + j
                x = vm.wait(f'z{q}')
                if x: k(x)
                if q == 0:
                    x = vm.wait('w')
                    if x: k(x)
                for tt in range(4):
                    acc = vr(ACC(n, tt), 4)
                    k(f'{MFMA} {acc}, {vr(ZR+4*(q%NZ),4)}, {ar(16*j+4*tt,4)}, {"0" if j == 0 else acc}')
                    if tt in (1, 3) and nq[0] < q + NZ + (tt == 3): zload(nq[0], vm); nq[0] += 1
                    for f in ev.get(p, []): f()
                    if fq and fq[0][0] <= p: cur += fq.pop(0)[1]()
                    for _ in range(R):
                        if cur:
                            o = cur.pop(0)
                            o() if callable(o) else k(o)
                    p += 1
        if opt.get('clkm'): k('s_memtime s[78:79]')
        st(k, 2, 6)
        for tt in range(4): wr(6, tt)
        bar(6)
        st(k, 2, 7)
        if hi: cur = unit([6], Z1 + 4, 3072, 's46', 0)
        for o in cur: o() if callable(o) else k(o)
        st(k, 2, 8); st(k, 0, 7)
        k('s_setprio 0')
        k(f's_branch {DONE}')
    body(False)
    k(f'{HI}:')
    body(True)


def gen_g2(opt):
    k = Kern('k3_kernel', 256, 512, 163840, nvgpr=128, nagpr=128)
    END = k.label('end')
    k(f'''s_cmp_ge_u32 s2, 256
s_cbranch_scc1 {END}
s_load_dwordx2 s[40:41], s[0:1], 80
s_load_dwordx2 s[24:25], s[0:1], 48
s_load_dwordx2 s[72:73], s[0:1], 40''')
    k.stamp(True)
    map_g2(k)
    k(f'''v_lshrrev_b32 v1, 6, v0
v_and_b32 v2, 63, v0
v_readfirstlane_b32 s34, v1
v_lshlrev_b32 v3, 4, v2''')
    w_vaddr(k, 4, 5)
    w_setup(k, 42, 43)
    k('s_waitcnt lgkmcnt(0)')
    vm = Cnt('vmcnt', 63)
    wb = Bulk(k, g2_wops())
    wb(32, vm, 4)
    k('s_waitcnt vmcnt(0)')
    w_trans(k, 4, 5)
    k('s_waitcnt lgkmcnt(0)\ns_barrier')
    st(k, 2, 1)
    ph_g2(k, opt, END, vm, False)
    k.finish(END)
    return k


WOB = 17920
WO8_BYTES = 64 * WOB


def gen_prep8(k, base_wg, END, nwv=5):
    WO = k.label('wo'); J = k.label('j'); WO2 = k.label('wo2'); SG = k.label('sg')
    k(f'''s_load_dwordx2 s[4:5], s[0:1], 32
s_load_dwordx2 s[8:9], s[0:1], 56
v_lshrrev_b32 v1, 6, v0
v_and_b32 v2, 63, v0
v_readfirstlane_b32 s35, v1
s_sub_u32 s33, s2, {base_wg}
s_mul_i32 s33, s33, {nwv}
s_add_u32 s33, s33, s35
v_and_b32 v4, 15, v2
v_lshrrev_b32 v5, 4, v2
v_lshlrev_b32 v3, 4, v2
s_lshl_b32 s47, s35, 13
s_cmp_ge_u32 s35, {nwv}
s_cbranch_scc1 {END}
s_cmp_ge_u32 s33, 440
s_cbranch_scc1 {END}
s_waitcnt lgkmcnt(0)''')
    srd_from(k, 16, 40, 41, WS_WI, WS_WO - WS_WI + WO8_BYTES)
    k(f'''s_mov_b32 s23, 0x00020000
s_cmp_ge_u32 s33, 280
s_cbranch_scc1 {WO}
s_mul_i32 s51, s33, 4682
s_lshr_b32 s51, s51, 16
s_mul_i32 s52, s51, 14
s_sub_u32 s52, s33, s52
s_movk_i32 s50, 3456
s_lshl_b32 s53, s51, 5
s_mov_b32 s57, 8
s_mov_b32 s58, 4
s_mov_b64 s[20:21], s[4:5]
s_mov_b32 s22, {640*3456}
s_branch {J}
{WO}:
s_sub_u32 s34, s33, 280
s_mul_i32 s51, s34, 13108
s_lshr_b32 s51, s51, 16
s_mul_i32 s52, s51, 5
s_sub_u32 s52, s34, s52
s_movk_i32 s50, 1280
s_lshr_b32 s54, s51, 2
s_and_b32 s55, s51, 3
s_mul_i32 s53, s54, 112
s_lshl_b32 s42, s55, 5
s_add_u32 s53, s53, s42
s_mov_b32 s57, 4
s_mov_b32 s58, 16
s_mov_b64 s[20:21], s[8:9]
s_mov_b32 s22, {864*1280}
{J}:
v_mul_u32_u24 v6, s50, v5
v_lshl_add_u32 v6, v4, 4, v6
s_mul_i32 s42, s53, s50
s_lshl_b32 s43, s52, 8
s_add_u32 s42, s42, s43
v_add_u32 v6, s42, v6
s_lshl_b32 s43, s50, 2''')
    for i in range(8):
        k(f's_add_u32 m0, s47, {1024*i}')
        k(f'buffer_load_dwordx4 v6, s[20:23], 0 offen lds')
        if i < 7: k(f'v_add_u32 v6, s43, v6')
    k(f'''v_mul_u32_u24 v6, s57, v5
v_lshrrev_b32 v7, 2, v4
v_add_u32 v6, v6, v7
v_and_b32 v7, 3, v4
v_lshlrev_b32 v7, 3, v7
v_lshl_add_u32 v6, v6, 8, v7
v_add_u32 v6, s47, v6
s_lshl_b32 s42, s58, 8
v_add_u32 v7, s42, v6
v_lshlrev_b32 v8, 3, v2
s_waitcnt vmcnt(0)''')
    for i in range(8):
        k(f'ds_read_b64_tr_b16 {vr(16+4*i,2)}, v6 offset:{32*i}')
        k(f'ds_read_b64_tr_b16 {vr(18+4*i,2)}, v7 offset:{32*i}')
    k(f's_cmp_ge_u32 s33, 280\ns_cbranch_scc1 {WO2}')
    for i in range(8):
        k(f'''s_lshl_b32 s42, s52, 3
s_add_u32 s42, s42, {i}
s_add_u32 s43, s42, 2
s_cmp_ge_u32 s42, 54
s_cselect_b32 s43, s43, s42
s_cselect_b32 s46, 0, 1
s_mul_i32 s44, s43, 9363
s_lshr_b32 s44, s44, 16
s_mul_i32 s45, s44, 7
s_sub_u32 s43, s43, s45
s_and_b32 s44, s44, 7
s_lshl_b32 s44, s44, 1
s_lshr_b32 s45, s43, 2
s_xor_b32 s45, s45, s46
s_add_u32 s44, s44, s45
s_mul_i32 s44, s44, 140
s_add_u32 s43, s43, s44
s_mul_i32 s44, s51, 7
s_add_u32 s43, s43, s44
s_lshl_b32 s43, s43, 10
s_cmp_lt_u32 s42, 108
s_cselect_b32 s43, s43, {BIG}
s_waitcnt lgkmcnt({14-2*i})
buffer_store_dwordx4 {vr(16+4*i,4)}, v3, s[16:19], s43 offen''')
    k(f'''s_branch {END}
{WO2}:
s_mul_i32 s56, s54, {WOB}
s_add_u32 s56, s56, {WS_WO-WS_WI}
s_mul_i32 s42, s55, 5120
s_add_u32 s56, s56, s42
s_cmp_lt_u32 s53, 864
s_cselect_b32 s59, -1, 0
s_cmp_lt_u32 s53, 848
s_cselect_b32 s60, -1, 0
s_cmp_eq_u32 s55, 3
s_cbranch_scc1 {SG}''')
    for sg in range(2):
        for i in range(8):
            k(f'''s_lshl_b32 s42, s52, 3
s_add_u32 s42, s42, {i}
s_mul_i32 s44, s42, 13108
s_lshr_b32 s44, s44, 16
s_mul_i32 s45, s44, 5
s_sub_u32 s43, s42, s45
s_mul_i32 s44, s44, {8*WOB}
s_lshl_b32 s43, s43, {9 if sg else 10}
s_add_u32 s43, s43, s44
s_add_u32 s43, s43, s56
s_waitcnt lgkmcnt({14-2*i})''')
            for j in range(2 if sg else 4): k(f'v_and_b32 v{16+4*i+j}, s{59+j//2}, v{16+4*i+j}')
            if sg: k(f'buffer_store_dwordx2 {vr(16+4*i,2)}, v8, s[16:19], s43 offen')
            else: k(f'buffer_store_dwordx4 {vr(16+4*i,4)}, v3, s[16:19], s43 offen')
        k(f's_branch {END}')
        if sg == 0: k(f'{SG}:')


BB = 20480


def gelu_pk(k, pk, n, x, p, out, vc, tr=False, sc=False):
    for i in range(0, n, 2):
        k(f'v_lshlrev_b32 v{x+i}, 16, v{pk+i//2}\nv_and_b32 v{x+i+1}, 0xffff0000, v{pk+i//2}')
    if sc:
        for i in range(n): k(f'v_mul_f32 v{p+i}, v{x+i}, v{x+i}')
        for i in range(n): k(f'v_fma_f32 v{p+i}, v{p+i}, v{vc}, v{vc+1}')
        for i in range(n): k(f'v_mul_f32 v{p+i}, v{p+i}, v{x+i}')
    else:
        for i in range(0, n, 2):
            k(f'v_pk_mul_f32 {vr(p+i,2)}, {vr(x+i,2)}, {vr(x+i,2)}')
        for i in range(0, n, 2):
            k(f'v_pk_fma_f32 {vr(p+i,2)}, {vr(p+i,2)}, {vr(vc,2)}, {vr(vc,2)} op_sel:[0,0,1] op_sel_hi:[1,0,1]')
        for i in range(0, n, 2):
            k(f'v_pk_mul_f32 {vr(p+i,2)}, {vr(p+i,2)}, {vr(x+i,2)}')
    for i in range(n):
        k(f'v_exp_f32 v{p+i}, v{p+i}')
    if sc:
        for i in range(n): k(f'v_add_f32 v{p+i}, 1.0, v{p+i}')
    else:
        for i in range(0, n, 2):
            k(f'v_pk_add_f32 {vr(p+i,2)}, {vr(p+i,2)}, 1.0 op_sel_hi:[1,0]')
    for i in range(n):
        k(f'v_rcp_f32 v{p+i}, v{p+i}')
    if sc:
        for i in range(n): k(f'v_mul_f32 v{p+i}, v{p+i}, v{x+i}')
    else:
        for i in range(0, n, 2):
            k(f'v_pk_mul_f32 {vr(p+i,2)}, {vr(p+i,2)}, {vr(x+i,2)}')
    for i in range(0, n, 2):
        if tr:
            a = [0, 4, 1, 5][i // 2]
            k(f'v_cvt_pk_bf16_f32 v{out+i//2}, v{p+a}, v{p+a+2}')
        else: k(f'v_cvt_pk_bf16_f32 v{out+i//2}, v{p+i}, v{p+i+1}')


class Bulk:
    def __init__(self, k, ops): self.k = k; self.ops = list(ops)
    def copy(self): return Bulk(self.k, self.ops)
    def __call__(self, n, vm, va, tag='w'):
        for _ in range(n):
            if not self.ops: return
            self.k(self.ops.pop(0).replace('@', f'v{va}'))
            if vm is not None: vm.issue(tag)


def flag(k, srd, soff):
    k(f'''s_mov_b64 exec, 1
v_mov_b32 v8, 1
v_mov_b32 v9, 0
buffer_store_dword v8, v9, {sr(srd,4)}, {soff} offen sc1
s_mov_b64 exec, -1''')


def ph_k2a(k, opt, wb):
    RP = 144; NP = 11 * RP + 16
    TB2 = 0
    SKIP = k.label('skip')
    vm = Cnt('vmcnt', 63)
    k(f'''s_load_dwordx2 s[4:5], s[0:1], 0
s_load_dwordx2 s[40:41], s[0:1], 80
s_load_dwordx2 s[72:73], s[0:1], 40
s_load_dwordx2 s[80:81], s[0:1], 64''')
    tab_srd(k, 12)
    k(f'''s_and_b32 s3, s2, 7
s_lshl_b32 s3, s3, 5
s_lshr_b32 s33, s2, 3
s_add_u32 s3, s3, s33
s_lshl_b32 s33, s3, 6
s_add_u32 s33, s33, 32768
s_load_dwordx16 s[16:31], s[12:13], s33
v_lshrrev_b32 v1, 6, v0
v_and_b32 v2, 63, v0
v_readfirstlane_b32 s34, v1
v_lshlrev_b32 v3, 4, v2
s_movk_i32 s38, 0x4000
s_lshl_b32 s39, s34, 11
s_add_u32 m0, s39, {TB2}
s_add_u32 s38, s38, s39
s_cmp_lt_u32 s34, 5
s_cselect_b32 s38, s38, {BIG}
buffer_load_dwordx4 v3, s[12:15], s38 offen lds
buffer_load_dwordx4 v3, s[12:15], s38 offen offset:1024 lds''')
    vm.issue('t'); vm.issue('t')
    k(f'''s_mul_i32 s46, s3, {8*TP}
s_add_u32 s47, s46, {3*TP}
s_add_u32 s48, s46, {6*TP}
v_lshlrev_b32 v60, 2, v0
s_lshl_b32 s35, s34, 8
s_add_u32 s35, s35, s3
s_mul_i32 s35, s35, 1280
v_and_b32 v50, 15, v2
v_lshrrev_b32 v51, 4, v2
v_lshlrev_b32 v52, 6, v50
v_lshl_add_u32 v52, v51, 4, v52
v_add_u32 v53, 1024, v52
v_mov_b32 v54, 0x7fffffff
v_cmp_gt_u32 vcc, 4, v50
v_cndmask_b32 v53, v54, v53, vcc''')
    k(f'''s_mul_i32 s59, s34, {NP}
v_add_u32 v112, s59, v52
v_and_b32 v113, 3, v2
v_mul_u32_u24 v113, {NP}, v113
v_lshrrev_b32 v114, 2, v2
v_lshl_add_u32 v113, v114, 4, v113
s_cmp_ge_u32 s34, 5
s_cselect_b32 s59, {4*NP-5*256}, 0
s_lshl_b32 s60, s34, 8
s_add_u32 s59, s59, s60
v_add_u32 v113, s59, v113
s_mul_i32 s59, s3, 10240
s_lshl_b32 s60, s34, 10
s_add_u32 s59, s59, s60
s_add_u32 s49, s59, 8192
s_cmp_lt_u32 s34, 2
s_cselect_b32 s49, s49, {BIG}''')
    k(f'''s_and_b32 s58, s3, 15
s_mul_i32 s58, s58, {140*1024}
s_mul_i32 s57, s34, {18*1024}
s_min_u32 s57, s57, {122*1024}
s_add_u32 s56, s57, {BB}
s_add_u32 s57, s57, s58
s_waitcnt lgkmcnt(0)''')
    srd_from(k, 4, 4, 5, 0, X_BYTES)
    srd_from(k, 8, 40, 41, WS_U, TU_BYTES)
    for k2 in range(8):
        k(f'buffer_load_dword v{4+k2}, v60, s[8:11], s{46+k2//3} offen offset:{(k2%3)*TP+4*(k2&1)*(opt.get("sh",0)>0)}')
        vm.issue('u')
    k(f'''buffer_load_dwordx4 v[104:107], v52, s[4:7], s35 offen
buffer_load_dwordx4 v[108:111], v53, s[4:7], s35 offen''')
    vm.issue('x'); vm.issue('x')
    srd_from(k, 52, 40, 41, WS_H, X_BYTES)
    srd_from(k, 60, 40, 41, WS_HN, X_BYTES)
    srd_from(k, 64, 40, 41, WS_WI, WI_BYTES)
    if wb:
        w_setup(k, 42, 43); w_vaddr(k, 114, 115)
    if opt.get('ub'): k('s_barrier')
    bq = [] if opt.get('nob') else list(range(18))
    BP = opt.get('BP', [10, 8, 0, 0, 0, 0])
    assert sum(BP) >= 18

    def bulk(i):
        for _ in range(BP[i]):
            if bq:
                i = bq.pop(0)
                if i % 4 == 0:
                    k(f's_add_u32 m0, s56, {1024*i}')
                    if i: k('s_add_u32 s57, s57, 4096')
                k(f'buffer_load_dwordx4 v3, s[64:67], s57 offen offset:{1024*(i%4)} lds'); vm.issue('b')
            elif wb: wb(1, vm, 114)
    bulk(0)
    k(f'''v_mul_u32_u24 v55, 3277, v0
v_lshrrev_b32 v55, 16, v55
v_mul_u32_u24 v56, 20, v55
v_sub_u32 v56, v0, v56
v_mul_u32_u24 v57, {RP}, v56
v_lshl_add_u32 v57, v55, 2, v57
v_mov_b32 v58, {11*RP}
v_cmp_ge_u32 vcc, 10, v56
v_cndmask_b32 v57, v58, v57, vcc
v_sub_u32 v59, 20, v56
v_mul_u32_u24 v59, {RP}, v59
v_sub_u32 v61, 31, v55
v_lshl_add_u32 v59, v61, 2, v59
v_cmp_le_u32 vcc, 10, v56
v_cndmask_b32 v59, v58, v59, vcc
v_sub_u32 v61, 32, v55
v_lshlrev_b32 v61, 2, v61
v_cmp_eq_u32 vcc, 0, v56
v_cndmask_b32 v59, v59, v61, vcc
v_cmp_eq_u32 vcc, 0, v0
v_cndmask_b32 v59, v59, v58, vcc
v_cmp_eq_u32 vcc, 320, v0
v_cndmask_b32 v59, v59, v58, vcc
v_mov_b32 v40, 0x3f3504f3
v_min_u32 v62, 10, v50
v_mul_u32_u24 v62, {RP}, v62
v_lshl_add_u32 v62, v51, 4, v62
s_mul_i32 s42, s34, {NP}
v_add_u32 v62, s42, v62
v_and_b32 v63, 1, v2
v_lshlrev_b32 v63, 31, v63
v_or_b32 v63, 1.0, v63
''')
    k(vm.wait('t')); k('s_barrier')
    for i in range(10): k(f'ds_read_b128 {vr(64+4*i,4)}, v3 offset:{TB2+1024*i}')
    bulk(1)
    k('s_waitcnt lgkmcnt(0)\ns_barrier')
    k(f'''v_cmp_gt_u32 vcc, 321, v0
s_and_saveexec_b64 s[44:45], vcc''')
    k(vm.wait('u'))
    st(k, 1, 1); st(k, 0, 1)
    k(f'''s_cbranch_execz {SKIP}''')
    for k2 in range(8):
        k(f'v_lshlrev_b32 v{20+2*k2}, 16, v{4+k2}\nv_and_b32 v{21+2*k2}, 0xffff0000, v{4+k2}')
    for k2 in range(8):
        if k2 == 0:
            k('v_mov_b32 v4, v20\nv_mov_b32 v5, v21')
        else:
            smul(k, 4 + 2 * k2, 20 + 2 * k2, 16 + 2 * k2, 42 + 2 * (k2 & 1), conj=True)
    T = fft8(k, 4, 20, True, 40)
    for n in range(8):
        k(f'''v_cvt_pk_bf16_f32 v{4+2*n}, v{T[n]}, v{T[n]+1}
v_cvt_pk_bf16_f32 v{5+2*n}, v{T[n]}, -v{T[n]+1}
ds_write_b32 v57, v{4+2*n} offset:{n*NP}
ds_write_b32 v59, v{5+2*n} offset:{n*NP}''')
    k(f'''{SKIP}:
s_mov_b64 exec, -1''')
    bulk(2)
    k(f'''s_waitcnt lgkmcnt(0)
s_barrier
ds_read_b128 v[4:7], v62
ds_read_b128 v[8:11], v62 offset:64''')
    bulk(3)
    k(f'''s_waitcnt lgkmcnt(1)''')
    for u in range(2):
        if u == 1: k('s_waitcnt lgkmcnt(0)')
        for t in range(2):
            k(f'{MFMA} {vr(12+16*u+8*t,4)}, {vr(4+4*u,4)}, {vr(64+8*t,4)}, 0')
            k(f'{MFMA} {vr(16+16*u+8*t,4)}, {vr(4+4*u,4)}, {vr(68+8*t,4)}, 0')
    bulk(4)
    for i in range(0, 16, 2):
        k(f'v_pk_fma_f32 {vr(12+i,2)}, {vr(28+i,2)}, v[62:63], {vr(12+i,2)} op_sel:[0,1,0] op_sel_hi:[1,1,1]')
    for t in range(2):
        cmul_planar(k, 12 + 8 * t, 16 + 8 * t, 80 + 8 * t, 84 + 8 * t, 28, 32, 36)
        k(f'''v_cvt_pk_bf16_f32 v{4+4*t}, v28, v29
v_cvt_pk_bf16_f32 v{5+4*t}, v30, v31
v_cvt_pk_bf16_f32 v{6+4*t}, v32, v33
v_cvt_pk_bf16_f32 v{7+4*t}, v34, v35''')
    for v in range(2):
        for t in range(2):
            k(f'{MFMA} {vr(12+8*v+4*t,4)}, {vr(4+4*t,4)}, {vr(96+4*v,4)}, 0')
    bulk(5)
    k(vm.wait('x'))
    for i in range(8):
        k(f'v_lshlrev_b32 v{28+2*i}, 16, v{104+i}\nv_and_b32 v{29+2*i}, 0xffff0000, v{104+i}')
    for i in range(8):
        k(f'v_cvt_pk_bf16_f32 v{4+i}, v{12+2*i}, v{13+2*i}')
    for i in range(8):
        k(f'v_lshlrev_b32 v{12+2*i}, 16, v{4+i}\nv_and_b32 v{13+2*i}, 0xffff0000, v{4+i}')
    for i in range(8):
        k(f'v_pk_add_f32 {vr(12+2*i,2)}, {vr(12+2*i,2)}, {vr(28+2*i,2)}')
    for i in range(8):
        k(f'v_cvt_pk_bf16_f32 v{4+i}, v{12+2*i}, v{13+2*i}')
    k('''buffer_store_dwordx4 v[4:7], v52, s[52:55], s35 offen sc1
buffer_store_dwordx4 v[8:11], v53, s[52:55], s35 offen sc1''')
    for i in range(8):
        k(f'v_lshlrev_b32 v{12+2*i}, 16, v{4+i}\nv_and_b32 v{13+2*i}, 0xffff0000, v{4+i}')
    k('''v_pk_add_f32 v[28:29], v[12:13], v[14:15]
v_pk_mul_f32 v[30:31], v[12:13], v[12:13]
v_pk_add_f32 v[32:33], v[16:17], v[18:19]
v_pk_mul_f32 v[34:35], v[14:15], v[14:15]''')
    for i in range(2, 8):
        k(f'v_pk_fma_f32 {vr(30+4*(i&1),2)}, {vr(12+2*i,2)}, {vr(12+2*i,2)}, {vr(30+4*(i&1),2)}')
        if i >= 4:
            k(f'v_pk_add_f32 {vr(28+4*(i&1),2)}, {vr(28+4*(i&1),2)}, {vr(12+2*i,2)}')
    k('''v_pk_add_f32 v[28:29], v[28:29], v[32:33]
v_pk_add_f32 v[30:31], v[30:31], v[34:35]
v_add_f32 v28, v28, v29
v_add_f32 v30, v30, v31''')
    wave_reduce2(k, 28, 30, 36, 37)
    ln_stats(k, 36, 37, 640, 28, 30, 32)
    ln_apply(k, 12, 16, 28, 30, 40)
    srd_from(k, 68, 40, 41, WS_FL, FL_BYTES)
    k(f'''ds_write_b128 v112, v[40:43]
s_mov_b32 exec_lo, 0x000f000f
s_mov_b32 exec_hi, 0x000f000f
ds_write_b128 v112, v[44:47] offset:1024
s_mov_b64 exec, -1
s_waitcnt lgkmcnt(0)
s_barrier
ds_read_b128 v[40:43], v113
ds_read_b128 v[44:47], v113 offset:{4*NP+3*256}
s_waitcnt lgkmcnt(1)
buffer_store_dwordx4 v[40:43], v3, s[60:63], s59 offen sc1
s_waitcnt lgkmcnt(0)
buffer_store_dwordx4 v[44:47], v3, s[60:63], s49 offen sc1''')
    st(k, 1, 2); st(k, 0, 2)


def poll2(k, loads, chk, sc, sl=0):
    LP = k.label('lp'); LD = k.label('ld')
    k(f'''s_mov_b32 s{sc}, {SPIN}
{LP}:
{loads}
s_waitcnt vmcnt(0)
{chk}
s_cbranch_vccz {LD}
{f"s_sleep {sl}" if sl else ""}
s_sub_u32 s{sc}, s{sc}, 1
s_cmp_lg_u32 s{sc}, 0
s_cbranch_scc1 {LP}
{LD}:''')


def flag_poll(k, sf, sp, n, sl=0, d0=0, part=3):
    if part & 1:
        k(f'''v_lshrrev_b32 v10, 4, v3
v_lshlrev_b32 v10, {FS}, v10
s_mov_b64 exec, 1
v_mov_b32 v8, 1
buffer_store_dword v8, v10, s[68:71], s{sf} offen sc1''')
    if part & 2:
        k(f's_mov_b64 exec, {hex((1 << n) - 1)}')
        if d0: k(f's_sleep {d0}')
        poll2(k, f'buffer_load_dword v9, v10, s[68:71], s{sp} offen sc1', 'v_cmp_eq_u32 vcc, 0, v9', 43, sl)
    k('s_mov_b64 exec, -1')


def ph_g1(k, opt, DONE, wb, fused=False):
    L = {(g, z): k.label(f'g{g}z{z}') for g in range(2) for z in range(2)}
    WQ = opt.get('WQ', [32, 0, 8, 15])
    k(f'''s_lshr_b32 s35, s3, 4
s_bfe_u32 s36, s3, 0x30001
s_and_b32 s37, s3, 1
s_and_b32 s38, s34, 3
s_lshl_b32 s39, s35, 2
s_add_u32 s39, s39, s38
v_and_b32 v2, 63, v0
v_and_b32 v6, 15, v2
v_lshrrev_b32 v7, 4, v2''')
    if wb: k('v_mov_b32 v88, v114')
    srd_from(k, 8, 40, 41, WS_HN, X_BYTES)
    k(f'''v_lshlrev_b32 v9, 3, v2
v_lshrrev_b32 v8, 2, v6
v_and_b32 v10, 3, v6
v_mul_u32_u24 v1, 10240, v8
v_lshl_add_u32 v1, v7, 6, v1
v_lshl_add_u32 v1, v10, 4, v1
v_add_u32 v2, {4*10240}, v1
s_lshr_b32 s44, s39, 1
s_lshl_b32 s44, s44, 4
s_and_b32 s45, s38, 1
s_add_u32 s44, s44, s45
s_mul_i32 s44, s44, 5120
s_add_u32 s45, s44, 4096
v_add_u32 v4, 57344, v3
v_add_u32 v5, 114688, v3''')
    srd_from(k, 12, 40, 41, WS_Z1, A2_BYTES)
    srd_from(k, 16, 40, 41, WS_Z2, Z2N_BYTES)
    srd_from(k, 20, 40, 41, WS_PX, PX_BYTES)
    k(f'''s_and_b32 s47, s3, 15
s_lshl_b32 s47, s47, 4
s_add_u32 s47, s47, s35
s_lshl_b32 s47, s47, {FS}
s_add_u32 s47, s47, {FL2}
s_lshr_b32 s42, s34, 2
s_cmp_eq_u32 s42, s37
s_cselect_b32 s43, 1, 0
s_lshl_b32 s42, s42, 1
s_add_u32 s42, s42, s43
s_cmp_eq_u32 s42, 1
s_cbranch_scc1 {L[0,1]}
s_cmp_eq_u32 s42, 2
s_cbranch_scc1 {L[1,0]}
s_cmp_eq_u32 s42, 3
s_cbranch_scc1 {L[1,1]}''')
    PD = opt.get('PD', 5); NA = PD + 1
    assert 40 + 8 * NA <= 88
    AR = lambda kk, u: vr(40 + 8 * (kk % NA) + 4 * u, 4)
    ACC = lambda u, n: 96 + ((n & 3) * 2 + u) * 4

    def aload(kk, u, v):
        if kk >= 20: return
        k(f'buffer_load_dwordx4 {AR(kk,u)}, v{1+u}, s[8:11], s{44+kk//16} offen offset:{256*(kk%16)}'); v.issue(f'a{kk}')
    NB = 8; LA = opt.get('LA', 6)
    SC = opt.get('gsc', 1)

    def tail(z2, wq, tdone):
        if not fused:
            k(f's_branch {DONE}'); return
        map_g2(k)
        k('s_load_dwordx2 s[24:25], s[0:1], 48\ns_waitcnt vmcnt(0)')
        st(k, 0, 5)
        if z2: k('s_setprio 0')
        if opt.get('now'): tdone = True
        if not z2 and not wq.ops and not tdone:
            w_trans(k, 12, 13); tdone = True
        if not z2: wq(99, None, 88)
        k('s_barrier')
        if z2: wq(99, None, 88)
        NP2 = k.label('np2'); NP3 = k.label('np3')
        if not z2:
            k(f's_cmp_lg_u32 s38, 0\ns_cbranch_scc1 {NP2}')
            flag_poll(k, 47, 44, 32, part=1)
            k(f'{NP2}:')
        if not tdone:
            k('s_waitcnt vmcnt(0)')
            w_trans(k, 12, 13)
        if not z2:
            k(f'''s_cmp_lg_u32 s38, 0
s_cbranch_scc1 {NP3}
s_lshl_b32 s44, s36, {5+FS}
s_add_u32 s44, s44, {FL2}''')
            flag_poll(k, 47, 44, 32, opt.get('g2sl', 0), opt.get('g2d', 0) if tdone else 0, part=2)
            k(f'{NP3}:')
        k('s_waitcnt lgkmcnt(0)\ns_barrier')
        k(f's_branch {DONE}')

    def path(grp, z2):
        vm = Cnt('vmcnt', 63)
        wq = wb.copy() if wb else None
        tiles = [0, 1, 2, 3] if grp == 0 else [4, 5, 6]
        NT = len(tiles)
        order = [(kk, n) for kk in range(20) for n in tiles]
        k('s_waitcnt vmcnt(0)\ns_barrier')
        st(k, 1, 3)
        if z2:
            NPL = k.label('npl')
            k(f'''s_setprio {opt.get('zprio', 2)}
s_cmp_lg_u32 s38, 0
s_cbranch_scc1 {NPL}
s_lshl_b32 s42, s35, {4+FS}
s_lshl_b32 s46, s3, {FS}''')
            flag_poll(k, 46, 42, 16, opt.get('g1sl', 0), opt.get('g1d', 0))
            k(f'{NPL}:')
        elif wq: wq(WQ[0], vm, 88)
        k('s_barrier')
        st(k, 1, 4); st(k, 0, 3)
        if not z2 and opt.get('zd'): k(f's_sleep {opt["zd"]}')
        for kk in range(PD):
            for u in range(2): aload(kk, u, vm)

        def rdB(f):
            if f >= len(order): return
            kk, n = order[f]
            a = BB + kk * 7168 + n * 1024
            k(f'ds_read_b128 {vr(8+4*(f%NB),4)}, v{3+a//57344} offset:{a%57344}')
        for f in range(LA): rdB(f)
        for f, (kk, n) in enumerate(order):
            x = vm.wait(f'a{kk}')
            if x: k(x)
            if n == tiles[0] and kk in (0, 10): st(k, 1, 5 + kk // 10)
            rem = min(LA - 1, len(order) - 1 - f)
            k(f's_waitcnt lgkmcnt({rem})')
            b = vr(8 + 4 * (f % NB), 4)
            for u in range(2):
                acc = vr(ACC(u, n), 4)
                c = '0' if kk == 0 else acc
                if z2: k(f'{MFMA} {acc}, {AR(kk,u)}, {b}, {c}')
                else: k(f'{MFMA} {acc}, {b}, {AR(kk,u)}, {c}')
            rdB(f + LA)
            i = f % NT
            if i < 2: aload(kk + PD, i, vm)
            if wq and kk >= WQ[3]:
                c = WQ[1 + z2]
                wq((c * (i + 1)) // NT - (c * i) // NT, vm, 88)
        st(k, 1, 7); st(k, 0, 4)
        k(f'v_mov_b32 v4, {fbits(C1)}\nv_mov_b32 v5, {fbits(C0)}')
        if not z2:
            k(f'''s_lshr_b32 s42, s39, 1
s_lshl_b32 s42, s42, 3
s_add_u32 s42, s42, s36
s_lshl_b32 s42, s42, 1
s_and_b32 s43, s39, 1
s_add_u32 s42, s42, s43
s_lshl_b32 s42, s42, 13
s_add_u32 s43, s42, 4096
v_lshrrev_b32 v2, 1, v3''')
            units = [(u, p) for p in ((0, 1) if grp == 0 else (2,)) for u in range(2)]
            for i, (u, p) in enumerate(units):
                o = 12 + 4 * (i & 1)
                for h in range(2):
                    a = ACC(u, 2 * p + h)
                    k(f'v_cvt_pk_bf16_f32 v{8+2*h}, v{a}, v{a+1}\nv_cvt_pk_bf16_f32 v{9+2*h}, v{a+2}, v{a+3}')
                gelu_pk(k, 8, 8, 20, 28, o, 4, sc=(SC > 1))
                k(f'buffer_store_dwordx4 {vr(o,4)}, v3, s[12:15], s{42+u} offen offset:{1024*p} sc1')
            if grp == 1:
                for u in range(2):
                    a = ACC(u, 6)
                    k(f'v_cvt_pk_bf16_f32 v{8+2*u}, v{a}, v{a+1}\nv_cvt_pk_bf16_f32 v{9+2*u}, v{a+2}, v{a+3}')
                gelu_pk(k, 8, 8, 20, 28, 12, 4, sc=(SC > 1))
                for u in range(2):
                    k(f'buffer_store_dwordx2 {vr(12+2*u,2)}, v2, s[12:15], s{42+u} offen offset:3072 sc1')
            st(k, 1, 8)
            tail(False, wq, False)
            return
        S = 72; Q = 80
        SK = k.label('sk')
        for i, n in enumerate(tiles):
            if n == 5: k(f's_cmp_eq_u32 s36, 7\ns_cbranch_scc1 {SK}')
            for r in range(4): k(f'v_cvt_pk_bf16_f32 v{8+r}, v{ACC(0,n)+r}, v{ACC(1,n)+r}')
            k(f'''v_permlane32_swap_b32 v8, v10
v_permlane32_swap_b32 v9, v11
v_permlane16_swap_b32 v8, v9
v_permlane16_swap_b32 v10, v11''')
            gelu_pk(k, 8, 8, 20, 28, 12, 4, tr=True, sc=(SC > 0))
            d = 40 + 8 * i
            for r in range(4):
                k(f'v_lshlrev_b32 v{d+2*r}, 16, v{12+r}\nv_and_b32 v{d+1+2*r}, 0xffff0000, v{12+r}')
            for e in range(8):
                if i == 0: k(f'v_mul_f32 v{Q+e}, v{d+e}, v{d+e}\nv_mov_b32 v{S+e}, v{d+e}')
                else: k(f'v_add_f32 v{S+e}, v{S+e}, v{d+e}\nv_fmac_f32 v{Q+e}, v{d+e}, v{d+e}')
        k(f'{SK}:')
        V = [0] * 16
        for e in range(8):
            V[2 * e] = S + e; V[2 * e + 1] = Q + e
        for i in range(8):
            k(f'v_add_f32_dpp v{V[i]}, v{V[i]}, v{V[i]} row_ror:8 row_mask:0xf bank_mask:0x3')
        for i in range(8):
            k(f'v_add_f32_dpp v{V[i]}, v{V[i+8]}, v{V[i+8]} row_ror:8 row_mask:0xf bank_mask:0xc')
        for i in range(4):
            k(f'v_add_f32_dpp v{V[i]}, v{V[i]}, v{V[i]} row_half_mirror row_mask:0xf bank_mask:0x5')
        for i in range(4):
            k(f'v_add_f32_dpp v{V[i]}, v{V[i+4]}, v{V[i+4]} row_half_mirror row_mask:0xf bank_mask:0xa')
        for m in ('quad_perm:[1,0,3,2]', 'quad_perm:[2,3,0,1]'):
            for i in range(4):
                k(f'v_add_f32_dpp v{V[i]}, v{V[i]}, v{V[i]} {m} row_mask:0xf bank_mask:0xf')
        k(f'''s_mov_b32 vcc_lo, 0xaaaaaaaa
s_mov_b32 vcc_hi, 0xaaaaaaaa
v_cndmask_b32 v8, v{V[0]}, v{V[1]}, vcc
v_cndmask_b32 v9, v{V[2]}, v{V[3]}, vcc
s_mov_b32 vcc_lo, 0xcccccccc
s_mov_b32 vcc_hi, 0xcccccccc
v_cndmask_b32 v8, v8, v9, vcc
s_lshl_b32 s42, s39, 12
s_and_b32 s43, s3, 15
s_lshl_b32 s43, s43, 8
s_add_u32 s43, s43, s42
v_lshrrev_b32 v2, 2, v3
buffer_store_dword v8, v2, s[20:23], s43 offen sc1
v_lshrrev_b32 v9, 2, v6
v_and_b32 v10, 3, v6
v_lshlrev_b32 v9, 8, v9
v_lshl_add_u32 v9, v7, 6, v9
v_lshl_add_u32 v1, v10, 4, v9''')
        st(k, 1, 8)
        LP = k.label('lp'); LD = k.label('ld')
        k(f'''s_lshl_b32 s44, s36, 3
s_lshr_b32 s45, s39, 4
s_add_u32 s44, s44, s45
s_and_b32 s45, s39, 1
s_lshl_b32 s45, s45, 2
s_add_u32 s44, s44, s45
s_mul_i32 s44, s44, 56
s_bfe_u32 s45, s39, 0x30001
s_add_u32 s44, s44, s45
s_add_u32 s44, s44, {8*tiles[0]}
s_lshl_b32 s44, s44, 10
v_mov_b32 v4, {fbits(1.0/864)}
s_mov_b32 s43, {SPIN}''')
        tdn = bool(wq and not wq.ops and not opt.get('now') and opt.get('wtp', 1))
        if tdn:
            k('s_mov_b32 s46, s42\ns_waitcnt vmcnt(1)')
            w_trans(k, 8, 9)
            k('s_mov_b32 s42, s46')
        elif opt.get('pxd'): k(f"s_sleep {opt['pxd']}")
        k(f'{LP}:')
        for i in range(4): k(f'buffer_load_dwordx4 {vr(8+4*i,4)}, v1, s[20:23], s42 offen offset:{1024*i} sc1')
        k('s_waitcnt vmcnt(2)')
        k('v_max3_u32 v24, v8, v9, v10\nv_max3_u32 v25, v11, v12, v13\nv_max3_u32 v24, v24, v14, v15')
        for r in range(4): k(f'v_add_f32 v{28+r}, v{8+r}, v{12+r}')
        k('s_waitcnt vmcnt(0)')
        k('''v_max3_u32 v25, v25, v16, v17
v_max3_u32 v24, v24, v18, v19
v_max3_u32 v25, v25, v20, v21
v_max3_u32 v24, v24, v22, v23
v_max_u32 v24, v24, v25
v_cmp_eq_u32 vcc, -1, v24''')
        for r in range(4): k(f'v_add_f32 v{32+r}, v{16+r}, v{20+r}')
        k(f'''s_cbranch_vccz {LD}
{f"s_sleep {opt['pxs']}" if opt.get('pxs') else ""}
s_sub_u32 s43, s43, 1
s_cmp_lg_u32 s43, 0
s_cbranch_scc1 {LP}
{LD}:''')
        st(k, 1, 9); st(k, 0, 9)
        for r in range(4): k(f'v_add_f32 v{28+r}, v{28+r}, v{32+r}')
        for m in ('row_ror:4', 'row_ror:8'):
            for r in range(4): k(f'v_add_f32_dpp v{28+r}, v{28+r}, v{28+r} {m} row_mask:0xf bank_mask:0xf')
        for r in range(4): k(f'v_mul_f32 v{28+r}, v{28+r}, v4')
        k(f'''v_fma_f32 v29, -v28, v28, v29
v_fma_f32 v31, -v30, v30, v31
v_max_f32 v29, 0, v29
v_max_f32 v31, 0, v31
v_cvt_pk_bf16_f32 v12, v28, v30
v_cvt_pk_bf16_f32 v13, v29, v31
v_lshlrev_b32 v8, 16, v12
v_and_b32 v9, 0xffff0000, v12
v_lshlrev_b32 v10, 16, v13
v_and_b32 v11, 0xffff0000, v13
v_add_f32 v10, 0x3727c5ac, v10
v_add_f32 v11, 0x3727c5ac, v11
v_cvt_pk_bf16_f32 v13, v10, v11
v_lshlrev_b32 v10, 16, v13
v_and_b32 v11, 0xffff0000, v13
v_sqrt_f32 v10, v10
v_sqrt_f32 v11, v11''')
        for e in range(8):
            k(f'v_mov_b32_dpp v{16+e}, v{8+(e&1)} quad_perm:[{e>>1},{e>>1},{e>>1},{e>>1}] row_mask:0xf bank_mask:0xf')
        k(f'''v_cvt_pk_bf16_f32 v13, v10, v11
v_lshlrev_b32 v10, 16, v13
v_and_b32 v11, 0xffff0000, v13
v_rcp_f32 v10, v10
v_rcp_f32 v11, v11''')
        for i in range(NT):
            d = 40 + 8 * i
            for e in range(0, 8, 2):
                k(f'v_pk_add_f32 {vr(d+e,2)}, {vr(d+e,2)}, {vr(16+e,2)} neg_lo:[0,1] neg_hi:[0,1]')
            if i == 0:
                for e in range(8):
                    k(f'v_mov_b32_dpp v{24+e}, v{10+(e&1)} quad_perm:[{e>>1},{e>>1},{e>>1},{e>>1}] row_mask:0xf bank_mask:0xf')
            o = 72 + 4 * i
            for r in range(4): k(f'v_cvt_pk_bf16_f32 v{o+r}, v{d+2*r}, v{d+2*r+1}')
            for r in range(4): k(f'v_lshlrev_b32 v{d+2*r}, 16, v{o+r}\nv_and_b32 v{d+1+2*r}, 0xffff0000, v{o+r}')
            for e in range(0, 8, 2):
                k(f'v_pk_mul_f32 {vr(d+e,2)}, {vr(d+e,2)}, {vr(24+e,2)}')
            for r in range(4): k(f'v_cvt_pk_bf16_f32 v{o+r}, v{d+2*r}, v{d+2*r+1}')
            k(f'buffer_store_dwordx4 {vr(o,4)}, v3, s[16:19], s44 offen sc1')
            if i < NT - 1: k('s_add_u32 s44, s44, 8192')
        tail(True, wq, tdn)
    for g in range(2):
        for z in range(2):
            k(f'{L[g,z]}:')
            path(g, z)


def gen_ka(opt):
    k = Kern('ka_kernel', 256, 512, 163840, nvgpr=128, nagpr=128)
    END = k.label('end')
    k(f's_cmp_ge_u32 s2, 256\ns_cbranch_scc1 {END}')
    k.stamp(True)
    ph_k2a(k, opt, None)
    ph_g1(k, opt, END, None)
    k.finish(END)
    return k


def gen_p(opt, g3=True):
    k = Kern('kp_kernel', 256, 512, 163840, nvgpr=128, nagpr=128)
    END = k.label('end'); G2 = k.label('g2'); G3 = k.label('g3')
    k(f's_cmp_ge_u32 s2, 256\ns_cbranch_scc1 {END}')
    k.stamp(True)
    wb = Bulk(k, [] if opt.get('now') else g2_wops())
    ph_k2a(k, opt, wb)
    ph_g1(k, opt, G2, wb, True)
    k(f'{G2}:')
    st(k, 0, 6)
    vm = Cnt('vmcnt', 63); vm.issue('w')
    if g3:
        g3_wo_setup(k)
        ph_g2(k, opt, G3, vm, True, [] if opt.get('noo') else g3_wo_ops())
        k(f'{G3}:')
        ph_g3(k, opt, True)
    else:
        ph_g2(k, opt, END, vm, False)
    k.finish(END)
    return k


def build(opt):
    lv = opt.get('lv', 1)
    ks = [gen_fft.gen_k0(), gen_fft.gen_k1c()]
    if lv == 1: ks += [gen_ka(opt), gen_g2(opt), gen_g3(opt)]
    if lv == 2: ks += [gen_p(opt, False), gen_g3(opt)]
    if lv == 3: ks += [gen_p(opt)]
    return ks


def g3_wo_setup(k):
    srd_from(k, 28, 40, 41, WS_WO, WO8_BYTES)
    k(f'''s_lshl_b32 s60, s36, 3
s_add_u32 s60, s60, s34
s_mul_i32 s60, s60, {WOB}''')


def g3_wo_ops():
    ops = []
    for i in range(15):
        s = f'buffer_load_dwordx4 {ar(4*i,4)}, v3, s[28:31], s60 offen offset:{1024*(i%4)}'
        if i % 4 == 3: s += '\ns_add_u32 s60, s60, 4096'
        if i == 14: s += '\ns_add_u32 s60, s60, 3072'
        ops.append(s)
    for n in range(5):
        ops.append(f'buffer_load_dwordx2 {ar(60+2*n,2)}, v2, s[28:31], s60 offen offset:{512*n}')
    return ops


def ph_g3(k, opt, fused):
    vm = Cnt('vmcnt', 63); lg = Cnt('lgkmcnt', 15)
    srd_from(k, 8, 40, 41, WS_A, A2_BYTES)
    srd_from(k, 12, 40, 41, WS_H, X_BYTES)
    k(f'''s_lshl_b32 s44, s35, 3
s_add_u32 s44, s44, s34
s_lshl_b32 s44, s44, 14
v_lshrrev_b32 v1, 4, v3
v_and_b32 v6, 15, v1
v_lshrrev_b32 v7, 4, v1''')
    k(f'''s_lshr_b32 s45, s34, 1
s_mul_i32 s45, s45, 40960
s_and_b32 s46, s34, 1
s_lshl_b32 s46, s46, 3''')
    for p in range(3):
        k(f'''v_add_u32 v8, {64*p}, v1
v_mul_u32_u24 v9, 3277, v8
v_lshrrev_b32 v9, 16, v9
v_mul_u32_u24 v10, 20, v9
v_sub_u32 v10, v8, v10
v_add_u32 v9, s46, v9
v_add_u32 v11, v9, v10
v_and_b32 v11, 15, v11
v_lshlrev_b32 v11, 4, v11
v_lshrrev_b32 v12, 2, v10
v_lshl_add_u32 v11, v12, 13, v11
v_and_b32 v12, 3, v10
v_lshl_add_u32 v11, v12, 8, v11
v_add_u32 v{116+p}, s45, v11
v_lshrrev_b32 v11, 2, v9
v_and_b32 v12, 3, v9
v_lshl_add_u32 v11, v12, 8, v11
v_mul_u32_u24 v11, 1280, v11
v_lshl_add_u32 v{120+p}, v10, 3, v11''')
    k(f'''v_mov_b32 v8, 0x7fffffff
v_cmp_gt_u32 vcc, 32, v1
v_cndmask_b32 v122, v8, v122, vcc
s_lshl_b32 s47, s35, 3
s_and_b32 s43, s34, 2
s_lshl_b32 s43, s43, 1
s_add_u32 s47, s47, s43
s_and_b32 s43, s34, 4
s_lshl_b32 s43, s43, 8
s_add_u32 s47, s47, s43
s_mul_i32 s47, s47, 1280
s_mul_i32 s43, s36, 160
s_add_u32 s47, s47, s43''')
    for p in range(3):
        k(f'buffer_load_dwordx2 {vr(104+2*p,2)}, v{120+p}, s[12:15], s47 offen'); vm.issue('h')
    k(f'''s_lshl_b32 s43, s34, 10
v_add_u32 v8, v6, v7
v_lshlrev_b32 v9, 8, v7
v_add_u32 v9, s43, v9''')
    for n in range(5):
        k(f'''v_add_u32 v10, {4*n}, v8
v_and_b32 v10, 15, v10
v_lshl_add_u32 v10, v10, 4, v9
v_add_u32 v{88+n}, {8192*n}, v10
v_add_u32 v{93+n}, {8192*n+81920}, v10''')
    if fused:
        NP3 = k.label('np3')
        k(f'''s_waitcnt vmcnt(0)
s_barrier
s_cmp_lg_u32 s34, 0
s_cbranch_scc1 {NP3}
s_lshl_b32 s42, s35, {3+FS}
s_add_u32 s42, s42, {FL3}
s_lshl_b32 s46, s36, {FS}
s_add_u32 s46, s46, s42''')
        flag_poll(k, 46, 42, 8, opt.get('g3sl', 0), opt.get('g3d', 0))
        k(f'{NP3}:\ns_barrier')
        vm.done = 3
    st(k, 3, 1); st(k, 0, 8)
    k(f's_cmp_eq_u32 s34, 7\ns_cselect_b32 s48, {BIG}, 0')
    AF = lambda tt, p: 72 + 14 * tt + 4 * p
    for tt in range(4):
        for p in range(3):
            k(f'buffer_load_dwordx4 {ar(AF(tt,p),4)}, v3, s[8:11], s44 offen offset:{1024*p}'); vm.issue(f'a{tt}{p}')
        k(f's_add_u32 s49, s44, s48\nbuffer_load_dwordx2 {ar(AF(tt,3),2)}, v2, s[8:11], s49 offen offset:3072'); vm.issue(f'a{tt}3')
        if tt < 3: k('s_add_u32 s44, s44, 4096')
    srd_from(k, 16, 80, 81, 0, X_BYTES)
    ACC = lambda tt, n: 8 + 20 * (tt & 1) + 4 * n
    pend = []
    for tt in range(4):
        for p in range(4):
            x = vm.wait(f'a{tt}{p}')
            if x: k(x)
            if tt == 0 and p == 0: st(k, 3, 2)
            for n in range(5):
                acc = vr(ACC(tt, n), 4)
                if p < 3: k(f'{MFMA} {acc}, {ar(20*p+4*n,4)}, {ar(AF(tt,p),4)}, {"0" if p == 0 else acc}')
                else: k(f'{MF16} {acc}, {ar(60+2*n,2)}, {ar(AF(tt,3),2)}, {acc}')
                if pend and (5 * p + n) % 3 == 2: k(pend.pop(0))
        for n in range(5):
            pend.append(f'ds_write_b128 v{88+5*(tt>>1)+n}, {vr(ACC(tt,n),4)} offset:{40960*(tt&1)}')
    for o in pend: k(o)
    st(k, 3, 3)
    k('s_waitcnt lgkmcnt(0)\ns_barrier')
    st(k, 3, 4)
    for p in range(3):
        for s in range(8):
            k(f'ds_read_b128 {vr(8+32*p+4*s,4)}, v{116+p} offset:{1024*s}'); lg.issue(f'r{p}{s}')
        if p == 0:
            for q in range(3):
                k(f'v_lshlrev_b32 v{110+2*q}, 16, v{104+2*q}\nv_and_b32 v{104+2*q}, 0xffff0000, v{104+2*q}')
    for p in range(3):
        a = 8 + 32 * p
        for s in (0, 2, 4, 6):
            x = lg.wait(f'r{p}{s+1}')
            if x: k(x)
            for h in range(2): k(f'v_pk_add_f32 {vr(a+4*s+2*h,2)}, {vr(a+4*s+2*h,2)}, {vr(a+4*s+4+2*h,2)}')
            if s in (2, 6):
                for h in range(2): k(f'v_pk_add_f32 {vr(a+4*s-8+2*h,2)}, {vr(a+4*s-8+2*h,2)}, {vr(a+4*s+2*h,2)}')
        for h in range(2): k(f'v_pk_add_f32 {vr(a+2*h,2)}, {vr(a+2*h,2)}, {vr(a+16+2*h,2)}')
        k(f'''v_cvt_pk_bf16_f32 v{a+4}, v{a}, v{a+1}
v_cvt_pk_bf16_f32 v{a+5}, v{a+2}, v{a+3}
v_lshlrev_b32 v{a+8}, 16, v{105+2*p}
v_and_b32 v{a+9}, 0xffff0000, v{105+2*p}
v_lshlrev_b32 v{a}, 16, v{a+4}
v_and_b32 v{a+1}, 0xffff0000, v{a+4}
v_lshlrev_b32 v{a+2}, 16, v{a+5}
v_and_b32 v{a+3}, 0xffff0000, v{a+5}
v_add_f32 v{a}, v{a}, v{110+2*p}
v_add_f32 v{a+1}, v{a+1}, v{104+2*p}
v_pk_add_f32 {vr(a+2,2)}, {vr(a+2,2)}, {vr(a+8,2)}
v_cvt_pk_bf16_f32 v{a+4}, v{a}, v{a+1}
v_cvt_pk_bf16_f32 v{a+5}, v{a+2}, v{a+3}
buffer_store_dwordx2 {vr(a+4,2)}, v{120+p}, s[16:19], s47 offen''')


def gen_g3(opt):
    k = Kern('k4_kernel', 256, 512, 163840, nvgpr=128, nagpr=128)
    END = k.label('end')
    k(f'''s_cmp_ge_u32 s2, 256
s_cbranch_scc1 {END}
s_load_dwordx2 s[40:41], s[0:1], 80
s_load_dwordx2 s[80:81], s[0:1], 64''')
    k.stamp(True)
    map_g2(k)
    k(f'''v_lshrrev_b32 v1, 6, v0
v_and_b32 v2, 63, v0
v_readfirstlane_b32 s34, v1
v_lshlrev_b32 v3, 4, v2
v_lshlrev_b32 v2, 3, v2
s_waitcnt lgkmcnt(0)''')
    g3_wo_setup(k)
    for o in g3_wo_ops(): k(o)
    ph_g3(k, opt, False)
    k.finish(END)
    return k


def wq_role(k, base, END, half=None, fl='', sl=0):
    n = 256 if half is None else 128
    k(f'''s_sub_u32 s33, s2, {base}
s_cmp_ge_u32 s33, {n}
s_cbranch_scc1 {END}
s_load_dwordx2 s[4:5], s[0:1], 40
s_load_dwordx2 s[40:41], s[0:1], 80
{f"s_add_u32 s33, s33, 128" if half else ""}
v_lshrrev_b32 v1, 6, v0
v_and_b32 v2, 63, v0
v_readfirstlane_b32 s34, v1
v_lshlrev_b32 v3, 4, v2
v_lshrrev_b32 v4, 4, v2
v_bfe_u32 v5, v2, 2, 2
v_and_b32 v6, 3, v2
v_lshlrev_b32 v6, 4, v6
v_lshl_add_u32 v6, v4, 12, v6
v_lshl_add_u32 v6, v5, 20, v6
v_and_b32 v7, 15, v2
v_lshlrev_b32 v7, 6, v7
v_lshl_add_u32 v7, v4, 10, v7
s_lshl_b32 s39, s34, 12
v_add_u32 v7, s39, v7
s_bfe_u32 s35, s33, 0x20001
s_lshl_b32 s35, s35, 3
s_bfe_u32 s36, s33, 0x30003
s_add_u32 s35, s35, s36
s_lshr_b32 s36, s33, 6
s_and_b32 s37, s33, 1
s_lshl_b32 s42, s35, 15
s_and_b32 s43, s36, 1
s_lshl_b32 s43, s43, 14
s_add_u32 s42, s42, s43
s_lshr_b32 s43, s36, 1
s_lshl_b32 s43, s43, 22
s_add_u32 s42, s42, s43
s_lshl_b32 s43, s34, 6
s_add_u32 s42, s42, s43
s_lshl_b32 s43, s37, 11
s_add_u32 s42, s42, s43
s_lshl_b32 s44, s35, 3
s_add_u32 s44, s44, s34
s_lshl_b32 s44, s44, 15
s_lshl_b32 s43, s37, 12
s_add_u32 s44, s44, s43
s_lshl_b32 s43, s36, 10
s_add_u32 s44, s44, s43
s_waitcnt lgkmcnt(0)''')
    srd_from(k, 4, 4, 5, 0, 2048 * 4096)
    if sl: k(f's_sleep {sl}')
    M = gen_fft.OPT.get('wqm', 0)
    if M & 4:
        k('s_lshl_b32 s42, s33, 3\ns_add_u32 s42, s42, s34\ns_lshl_b32 s42, s42, 12')
        for g in range(4):
            k(f's_add_u32 m0, s39, 0')
            k(f'buffer_load_dwordx4 v3, s[4:7], s42 offen offset:{1024*g}{fl} lds')
    for g in range(4):
        if M & 6: break
        k(f's_add_u32 m0, s39, {512*g}')
        k(f'buffer_load_dwordx4 v6, s[4:7], s42 offen offset:{512*g}{fl} lds')
    srd_from(k, 8, 40, 41, WS_WS, WSP_BYTES)
    k('s_waitcnt vmcnt(0)')
    for c in range(4): k(f'ds_read_b128 {vr(8+4*c,4)}, v7 offset:{16*c}')
    for c in range(4):
        k(f's_waitcnt lgkmcnt({3-c})')
        if M & 1: continue
        k(f'buffer_store_dwordx4 {vr(8+4*c,4)}, v3, s[8:11], s44 offen{" nt" if M & 8 else ""}{" ; sc1" if M & 16 else " sc1"}')
        if c < 3: k('s_add_u32 s44, s44, 8192')
    k(f's_endpgm')
```

```python
from asmlib import *
from tables import TAB_BYTES

WS_T = 0x000000
WS_U = 0x300000
WS_H = 0x600000
WS_HN = 0x900000
WS_WF = 0x1E00000
WF_BYTES = 8 * 336 * 1024
import os
TP = int(os.environ.get('TP', 1344))
TU_BYTES = 256 * 8 * TP
X_BYTES = 2048 * 640 * 2
MFMA = 'v_mfma_f32_16x16x32_bf16'


def vr(a, n=1):
    return f'v{a}' if n == 1 else f'v[{a}:{a+n-1}]'


def sr(a, n=1):
    return f's{a}' if n == 1 else f's[{a}:{a+n-1}]'


def srd_from(k, s, lo, hi, off, size):
    if off:
        k(f's_add_u32 s{s}, s{lo}, 0x{off:x}\ns_addc_u32 s{s+1}, s{hi}, 0')
    elif s != lo:
        k(f's_mov_b32 s{s}, s{lo}\ns_mov_b32 s{s+1}, s{hi}')
    k(f's_mov_b32 s{s+2}, 0x{size:x}\ns_mov_b32 s{s+3}, 0x00020000')


def tab_srd(k, s):
    k(f'''s_getpc_b64 s[{s}:{s+1}]
s_add_u32 s{s}, s{s}, tab@rel32@lo+4
s_addc_u32 s{s+1}, s{s+1}, tab@rel32@hi+12
s_mov_b32 s{s+2}, {TAB_BYTES}
s_mov_b32 s{s+3}, 0x00020000''')


def code_srd(k, s, lab, end):
    k(f'''s_getpc_b64 s[{s}:{s+1}]
s_add_u32 s{s}, s{s}, {lab}@rel32@lo+4
s_addc_u32 s{s+1}, s{s+1}, {lab}@rel32@hi+12
s_mov_b32 s{s+2}, {end}-{lab}
s_mov_b32 s{s+3}, 0x00020000''')


OPT = {}
PFF = lambda: '' if OPT.get('nont') else 'nt'


def cmul_planar(k, a, b, c, d, ore, oim, t, conj=False):
    for h in (0, 2):
        k(f'v_pk_mul_f32 {vr(t+h,2)}, {vr(b+h,2)}, {vr(d+h,2)}')
    for h in (0, 2):
        k(f'v_pk_mul_f32 {vr(oim+h,2)}, {vr(b+h,2)}, {vr(c+h,2)}')
    for h in (0, 2):
        if not conj:
            k(f'v_pk_fma_f32 {vr(ore+h,2)}, {vr(a+h,2)}, {vr(c+h,2)}, {vr(t+h,2)} neg_lo:[0,0,1] neg_hi:[0,0,1]')
        else:
            k(f'v_pk_fma_f32 {vr(ore+h,2)}, {vr(a+h,2)}, {vr(c+h,2)}, {vr(t+h,2)}')
    for h in (0, 2):
        if not conj:
            k(f'v_pk_fma_f32 {vr(oim+h,2)}, {vr(a+h,2)}, {vr(d+h,2)}, {vr(oim+h,2)}')
        else:
            k(f'v_pk_fma_f32 {vr(oim+h,2)}, {vr(a+h,2)}, {vr(d+h,2)}, {vr(oim+h,2)} neg_lo:[1,0,0] neg_hi:[1,0,0]')


def wave_reduce2(k, a, b, sa, sb):
    for m in ('quad_perm:[1,0,3,2] row_mask:0xf bank_mask:0xf', 'quad_perm:[2,3,0,1] row_mask:0xf bank_mask:0xf',
              'row_half_mirror row_mask:0xf bank_mask:0xf', 'row_mirror row_mask:0xf bank_mask:0xf',
              'row_bcast:15 row_mask:0xa bank_mask:0xf', 'row_bcast:31 row_mask:0xc bank_mask:0xf'):
        k(f'v_add_f32_dpp v{a}, v{a}, v{a} {m}')
        k(f'v_add_f32_dpp v{b}, v{b}, v{b} {m}')
    k(f'v_readlane_b32 s{sa}, v{a}, 63\nv_readlane_b32 s{sb}, v{b}, 63')


def ln_stats(k, sa, sb, n, vm, vrs, t):
    inv = np.float32(1.0 / n).view(np.uint32)
    k(f'''v_mov_b32 v{t}, 0x{inv:x}
v_mul_f32 v{vm}, s{sa}, v{t}
v_mul_f32 v{t+1}, s{sb}, v{t}
v_fma_f32 v{t+1}, -v{vm}, v{vm}, v{t+1}
v_max_f32 v{t+1}, 0, v{t+1}
v_cvt_pk_bf16_f32 v{t}, v{vm}, v{t+1}
v_lshlrev_b32 v{vm}, 16, v{t}
v_and_b32 v{t+1}, 0xffff0000, v{t}
v_add_f32 v{t+1}, 0x3727c5ac, v{t+1}
v_cvt_pk_bf16_f32 v{t}, v{t+1}, v{t+1}
v_and_b32 v{t}, 0xffff0000, v{t}
v_sqrt_f32 v{t}, v{t}
v_cvt_pk_bf16_f32 v{t}, v{t}, v{t}
v_and_b32 v{t}, 0xffff0000, v{t}
v_rcp_f32 v{vrs}, v{t}''')


def ln_apply(k, f, n, vm, vrs, out):
    for i in range(0, n, 2):
        k(f'v_pk_add_f32 {vr(f+i,2)}, {vr(f+i,2)}, {vr(vm,2)} op_sel_hi:[1,0] neg_lo:[0,1] neg_hi:[0,1]')
    for i in range(0, n, 2):
        k(f'v_cvt_pk_bf16_f32 v{out+i//2}, v{f+i}, v{f+i+1}')
    for i in range(0, n, 2):
        k(f'v_lshlrev_b32 v{f+i}, 16, v{out+i//2}\nv_and_b32 v{f+i+1}, 0xffff0000, v{out+i//2}')
    for i in range(0, n, 2):
        k(f'v_pk_mul_f32 {vr(f+i,2)}, {vr(f+i,2)}, {vr(vrs,2)} op_sel_hi:[1,0]')
    for i in range(0, n, 2):
        k(f'v_cvt_pk_bf16_f32 v{out+i//2}, v{f+i}, v{f+i+1}')


SW = 'op_sel:[0,1] op_sel_hi:[1,0]'


def fft8(k, R, A, inverse, vs):
    r = lambda i: vr(R + 2 * i, 2)
    a = lambda i: vr(A + 2 * i, 2)
    neg = 'neg_lo:[0,1] neg_hi:[0,1]'
    mi = SW + ' neg_hi:[0,1]'
    pi = SW + ' neg_lo:[0,1]'
    if inverse: mi, pi = pi, mi
    k(f'''v_pk_add_f32 {a(0)}, {r(0)}, {r(4)}
v_pk_add_f32 {a(1)}, {r(0)}, {r(4)} {neg}
v_pk_add_f32 {a(2)}, {r(2)}, {r(6)}
v_pk_add_f32 {a(3)}, {r(2)}, {r(6)} {neg}
v_pk_add_f32 {a(4)}, {r(1)}, {r(5)}
v_pk_add_f32 {a(5)}, {r(1)}, {r(5)} {neg}
v_pk_add_f32 {a(6)}, {r(3)}, {r(7)}
v_pk_add_f32 {a(7)}, {r(3)}, {r(7)} {neg}
v_pk_add_f32 {r(0)}, {a(0)}, {a(2)}
v_pk_add_f32 {r(1)}, {a(0)}, {a(2)} {neg}
v_pk_add_f32 {r(2)}, {a(4)}, {a(6)}
v_pk_add_f32 {r(3)}, {a(4)}, {a(6)} {neg}
v_pk_add_f32 {r(4)}, {a(1)}, {a(3)} {mi}
v_pk_add_f32 {r(5)}, {a(1)}, {a(3)} {pi}
v_pk_add_f32 {r(6)}, {a(5)}, {a(7)} {mi}
v_pk_add_f32 {r(7)}, {a(5)}, {a(7)} {pi}
v_pk_add_f32 {a(0)}, {r(0)}, {r(2)}
v_pk_add_f32 {a(4)}, {r(0)}, {r(2)} {neg}
v_pk_add_f32 {a(2)}, {r(1)}, {r(3)} {mi}
v_pk_add_f32 {a(6)}, {r(1)}, {r(3)} {pi}
v_pk_add_f32 {r(0)}, {r(6)}, {r(6)} {mi}
v_pk_add_f32 {r(1)}, {r(7)}, {r(7)} {pi}
v_pk_fma_f32 {a(1)}, {r(0)}, {vr(vs,2)}, {r(4)} op_sel_hi:[1,0,1]
v_pk_fma_f32 {a(5)}, {r(0)}, {vr(vs,2)}, {r(4)} op_sel_hi:[1,0,1] neg_lo:[1,0,0] neg_hi:[1,0,0]
v_pk_fma_f32 {a(3)}, {r(1)}, {vr(vs,2)}, {r(5)} op_sel_hi:[1,0,1] neg_lo:[1,0,0] neg_hi:[1,0,0]
v_pk_fma_f32 {a(7)}, {r(1)}, {vr(vs,2)}, {r(5)} op_sel_hi:[1,0,1]''')
    return [A + 2 * i for i in range(8)]


def smul(k, dst, src, s, tmp, conj=False):
    k(f'v_pk_mul_f32 {vr(tmp,2)}, {vr(src,2)}, {sr(s,2)} op_sel_hi:[1,0]')
    ng = 'neg_hi:[1,0,0]' if conj else 'neg_lo:[1,0,0]'
    k(f'v_pk_fma_f32 {vr(dst,2)}, {vr(src,2)}, {sr(s,2)}, {vr(tmp,2)} op_sel:[1,1,0] op_sel_hi:[0,1,1] {ng}')


def w_touch(k, mode, sp, sw, v):
    k(f'''s_mov_b32 s{sp+2}, {2048*4096}
s_mov_b32 s{sp+3}, 0x00020000
s_lshr_b32 s75, s2, 3
s_lshl_b32 s75, s75, 3
s_add_u32 s75, s75, s{sw}
s_lshl_b32 s75, s75, 1
s_and_b32 s80, s2, 1
{"s_add_u32 s75, s75, s80" if mode == 1 else ""}
s_and_b32 s80, s75, 63
s_lshr_b32 s81, s75, 6
s_lshl_b32 s81, s81, 8
s_add_u32 s80, s80, s81
s_bfe_u32 s81, s2, 0x20001
s_lshl_b32 s81, s81, 6
s_add_u32 s80, s80, s81
s_lshl_b32 s80, s80, 12
v_lshlrev_b32 v{v}, 7, v2
{"s_mov_b32 exec_hi, 0" if mode == 1 else ""}
buffer_load_ubyte v{v+1}, v{v}, s[{sp}:{sp+3}], s80 offen
{"s_mov_b32 exec_hi, -1" if mode == 1 else ""}''')


def k0_prefetch(k):
    L = [k.label('pf') for _ in range(8)]; J = k.label('pfj'); SK = k.label('pfs')
    if OPT.get('wl'):
        k(f'''s_mov_b32 s68, s12
s_mov_b32 s69, s13
s_mov_b32 s70, 0
s_mov_b32 s71, 0x00020000
s_mov_b32 s72, 0
v_mov_b32 v100, 0
s_cmp_lt_u32 s34, 5
s_cbranch_scc1 {J}''')
    elif not OPT.get('pfw'): k(f's_cmp_lt_u32 s34, 5\ns_cbranch_scc1 {SK}')
    k(f'''v_lshlrev_b32 v100, 7, v2
s_lshl_b32 s72, s2, 13
s_lshr_b32 s73, s2, 3
s_mov_b32 s71, 0x00020000
s_cmp_ge_u32 s34, 2
s_cbranch_scc1 {L[2]}
s_cmp_eq_u32 s34, 0
s_cselect_b32 s68, s56, s58
s_cselect_b32 s69, s57, s59
s_mov_b32 s70, {2048*642}
v_and_b32 v100, 7, v2
v_lshlrev_b32 v100, 7, v100
v_min_u32 v100, 640, v100
v_lshrrev_b32 v101, 3, v2
v_mul_u32_u24 v101, {8*642}, v101
v_add_u32 v100, v100, v101
s_and_b32 s72, s2, 7
s_lshl_b32 s74, s73, 6
s_add_u32 s72, s72, s74
s_mul_i32 s72, s72, 642
s_branch {J}
{L[2]}:
s_cmp_ge_u32 s34, 4
s_cbranch_scc1 {L[4]}
s_mov_b32 s68, s62
s_mov_b32 s69, s63
s_mov_b32 s70, {640*3456}
s_cmp_eq_u32 s34, 3
s_cselect_b32 s74, {1<<21}, 0
s_add_u32 s72, s72, s74
s_branch {J}
{L[4]}:
s_cmp_ge_u32 s34, 5
s_cbranch_scc1 {L[5]}
s_mov_b32 s68, s64
s_mov_b32 s69, s65
s_mov_b32 s70, {864*1280}
s_branch {J}
{L[5]}:
s_and_b32 s72, s73, 7
s_lshl_b32 s72, s72, 13
s_cmp_ge_u32 s34, 6
s_cbranch_scc1 {L[6]}
s_mov_b32 s68, s12
s_mov_b32 s69, s13
s_mov_b32 s70, s14
s_add_u32 s72, s72, 0x2000
s_branch {J}
{L[6]}:''')
    code_srd(k, 68, 'k1_kernel', 'code_end')
    k(f'''s_cmp_eq_u32 s34, 7
s_cselect_b32 s74, 0x10000, 0
s_add_u32 s72, s72, s74
{J}:
buffer_load_ubyte v101, v100, s[68:71], s72 offen
{SK}:''')


def k0_wrole(k, WROLE, END):
    k(f'''{WROLE}:
s_cmp_ge_u32 s2, 320
s_cbranch_scc1 {END}
s_load_dwordx4 s[4:7], s[0:1], 8
s_load_dwordx2 s[40:41], s[0:1], 80''')
    k.nst = 0
    k.stamp(True)
    k(f'''v_lshrrev_b32 v1, 6, v0
v_and_b32 v2, 63, v0
v_readfirstlane_b32 s34, v1
s_and_b32 s33, s2, 7
s_and_b32 s35, s2, 8
s_lshr_b32 s36, s2, 4
s_and_b32 s36, s36, 3
s_add_u32 s37, s35, s34
s_lshl_b32 s38, s36, 6
s_add_u32 s37, s37, s38
s_lshl_b32 s37, s37, 3
s_add_u32 s37, s37, s33
s_mul_i32 s42, s37, 642
s_and_b32 s42, s42, {-128 if OPT.get('wxb') else -4}
s_add_u32 s43, s42, {128*642}
s_add_u32 s44, s42, {256*642}
s_add_u32 s45, s42, {384*642}
v_lshlrev_b32 v3, 4, v2
s_mov_b32 exec_lo, -1
s_mov_b32 exec_hi, 0xff
s_waitcnt lgkmcnt(0)
s_mov_b32 s8, s6
s_mov_b32 s9, s7
s_mov_b32 s6, {2048*642}
s_mov_b32 s7, 0x00020000
s_mov_b32 s10, {2048*642}
s_mov_b32 s11, 0x00020000''')
    R = lambda r, a: 16 + 12 * r + 6 * a
    for r in range(4):
        k(f'buffer_load_dwordx4 {vr(R(r,0),4)}, v3, s[4:7], s{42+r} offen')
        k(f'buffer_load_dwordx4 {vr(R(r,1),4)}, v3, s[8:11], s{42+r} offen')
    if OPT.get('wxa'): k('s_mov_b64 exec, 1')
    for r in range(4):
        k(f'buffer_load_dword v{R(r,0)+4}, v3, s[4:7], s{42+r} offen offset:16')
        k(f'buffer_load_dword v{R(r,1)+4}, v3, s[8:11], s{42+r} offen offset:16')
    k('s_mov_b64 exec, -1')
    srd_from(k, 12, 40, 41, WS_WF, WF_BYTES)
    ODD = k.label('odd'); JN = k.label('jn')
    k(f'''s_lshl_b32 s38, s34, 4
v_mul_u32_u24 v6, 1040, v2
v_add_u32 v6, s38, v6
s_mul_i32 s38, s34, 1040
v_lshlrev_b32 v8, 4, v2
v_add_u32 v8, s38, v8
v_lshrrev_b32 v9, 3, v2
v_and_b32 v10, 7, v2
v_lshlrev_b32 v10, 4, v10
v_lshl_add_u32 v9, v9, 10, v10
s_mul_i32 s46, s33, {336*1024}
s_lshl_b32 s38, s36, 8
s_add_u32 s46, s46, s38
s_lshl_b32 s38, s35, 4
s_add_u32 s46, s46, s38
s_lshl_b32 s38, s34, 13
s_add_u32 s46, s46, s38
s_mov_b32 s47, 0x05040100
s_mov_b32 s48, 0x07060302
s_mov_b32 exec_lo, -1
s_mov_b32 exec_hi, 0xff
s_bitcmp1_b32 s33, 0
s_waitcnt vmcnt(8)''')
    k.stamp()
    k(f's_cbranch_scc1 {ODD}')
    for par in range(2):
        for j in range(9):
            hj = j + par
            if hj >= 8 and (j == 8 - par): k('s_waitcnt vmcnt(0)')
            if j == 8: k(f's_mov_b32 exec_lo, 0\ns_mov_b32 exec_hi, 0x80')
            for r in range(4):
                k(f'v_perm_b32 v{64+4*j+r}, v{R(r,1)+hj//2}, v{R(r,0)+hj//2}, s{47+(hj&1)}')
            k(f'ds_write_b128 v6, {vr(64+4*j,4)} offset:{128*j if j < 8 else 1040}')
        if par == 0: k(f's_branch {JN}\n{ODD}:')
    k(f'''{JN}:
s_mov_b64 exec, -1
s_waitcnt lgkmcnt(0)''')
    k.stamp()
    k('s_barrier')
    k.stamp()
    for i in range(5):
        k(f'ds_read_b128 {vr(16+4*i,4)}, v8 offset:{8*1040*i}')
    L = k.label('w5')
    k(f's_cmp_lg_u32 s34, 0\ns_cbranch_scc1 {L}\ns_mov_b64 exec, 0xff')
    k(f'''ds_read_b128 v[36:39], v8 offset:{40*1040}
s_add_u32 s38, s46, {320*1024}
s_waitcnt lgkmcnt(0)
buffer_store_dwordx4 v[36:39], v9, s[12:15], s38 offen sc1 ; W
s_mov_b64 exec, -1
{L}:''')
    for i in range(5):
        k(f's_waitcnt lgkmcnt({4-i})\nbuffer_store_dwordx4 {vr(16+4*i,4)}, v9, s[12:15], s46 offen sc1 ; W')
        if i < 4: k(f's_add_u32 s46, s46, {64*1024}')


def gen_k0():
    XP = 1280; EX0 = 10240; EXP = 2576
    WX = OPT.get('wx', 0)
    LT = OPT.get('lt', 0); TB0 = EX0 + 8 * EXP
    WQ = OPT.get('wq', 0)
    k = Kern('k0_kernel', 320 if WX else 256 + [0, 256, 128, 0][WQ], 512, max(41 * 1040 if WX else 0, TB0 + 8192 * LT), nvgpr=128)
    END = k.label('end'); WROLE = k.label('wrole')
    k(f'''s_cmp_ge_u32 s2, 256
s_cbranch_scc1 {WROLE if (WX or WQ in (1, 2)) else END}
{f"s_branch {END}" if OPT.get('wxc') else ""}
s_load_dwordx2 s[4:5], s[0:1], 0
s_load_dwordx2 s[40:41], s[0:1], 80
s_load_dwordx8 s[56:63], s[0:1], 8
s_load_dwordx2 s[64:65], s[0:1], 56''')
    if OPT.get('wsp') or OPT.get('wt'): k('s_load_dwordx2 s[48:49], s[0:1], 40')
    k.stamp(True)
    tab_srd(k, 12)
    k(f'''s_and_b32 s3, s2, 7
s_lshl_b32 s3, s3, 5
s_lshr_b32 s33, s2, 3
s_add_u32 s3, s3, s33
s_lshl_b32 s33, s3, 6
s_add_u32 s33, s33, 32768
s_load_dwordx16 s[16:31], s[12:13], s33
v_lshrrev_b32 v1, 6, v0
v_and_b32 v2, 63, v0
v_readfirstlane_b32 s34, v1
v_lshlrev_b32 v3, 4, v2
s_movk_i32 s38, 0x1000''')
    if LT:
        k(f'''s_lshl_b32 s38, s34, 10
s_add_u32 m0, s38, {TB0}
buffer_load_dwordx4 v3, s[12:15], s38 offen lds''')
    else:
      for i in range(8):
        so = '0' if i < 4 else 's38'
        k(f'buffer_load_dwordx4 {vr(64+4*i,4)}, v3, s[12:15], {so} offen offset:{(i%4)*1024}')
    k(f'''s_lshl_b32 s35, s34, 8
s_add_u32 s35, s35, s3
s_mul_i32 s35, s35, 1280
v_lshlrev_b32 v58, 3, v2
v_lshlrev_b32 v59, 2, v2
s_waitcnt lgkmcnt(0)''')
    srd_from(k, 4, 4, 5, 0, X_BYTES)
    srd_from(k, 8, 40, 41, WS_T, TU_BYTES)
    if not OPT.get('fz'): k(f'''s_lshl_b32 s33, s2, 6
s_add_u32 s33, s33, 0x1800000
s_add_u32 s52, s40, s33
s_addc_u32 s53, s41, 0
s_mov_b32 s54, 64
s_mov_b32 s55, 0x00020000
v_lshlrev_b32 v62, 2, v0
v_mov_b32 v63, 0
buffer_store_dword v63, v62, s[52:55], 0 offen''')
    k(f'''buffer_load_dwordx2 v[4:5], v58, s[4:7], s35 offen
buffer_load_dwordx2 v[6:7], v58, s[4:7], s35 offen offset:512
buffer_load_dword v8, v59, s[4:7], s35 offen offset:1024''')
    WL = OPT.get('wl', 0)

    def wsp_loads():
        k(f'''s_mov_b32 s50, {2048*4096}
s_mov_b32 s51, 0x00020000
v_bfe_u32 v102, v2, 2, 2
v_and_b32 v103, 3, v2
v_lshlrev_b32 v103, 20, v103
v_lshl_add_u32 v102, v102, 12, v103
v_lshrrev_b32 v103, 4, v2
v_lshl_add_u32 v102, v103, 9, v102
s_lshr_b32 s75, s3, 3
s_lshl_b32 s80, s75, 15
s_and_b32 s81, s3, 2
s_lshl_b32 s81, s81, 13
s_add_u32 s80, s80, s81
s_and_b32 s81, s3, 4
s_lshl_b32 s81, s81, 20
s_add_u32 s80, s80, s81
s_and_b32 s81, s3, 1
s_lshl_b32 s82, s81, 11
s_add_u32 s80, s80, s82
s_lshl_b32 s82, s34, 6
s_add_u32 s80, s80, s82
s_lshl_b32 s75, s75, 18
s_lshl_b32 s81, s81, 12
s_add_u32 s75, s75, s81
s_lshl_b32 s81, s34, 15
s_add_u32 s75, s75, s81
s_and_b32 s81, s3, 6
s_lshl_b32 s81, s81, 9
s_add_u32 s75, s75, s81''')
        for i in range(4):
            k(f'buffer_load_dwordx4 {vr(104+4*i,4)}, v102, s[48:51], s80 offen offset:{16*i}')

    def wsp_stores(n):
        srd_from(k, 48, 40, 41, 0x2000000, 8 << 20)
        for i in range(4):
            k(f's_waitcnt vmcnt({n+3})')
            k(f'buffer_store_dwordx4 {vr(104+4*i,4)}, v3, s[48:51], s75 offen')
            if i < 3: k('s_add_u32 s75, s75, 8192')

    def w_loads():
        k(f'''s_and_b32 s76, s2, 7
s_lshr_b32 s77, s2, 3
s_and_b32 s77, s77, 7
s_lshl_b32 s77, s77, 1
s_and_b32 s78, s34, 1
s_add_u32 s77, s77, s78
s_lshr_b32 s78, s2, 6
s_lshl_b32 s79, s78, 6
s_add_u32 s79, s79, s77
s_lshl_b32 s79, s79, 3
s_add_u32 s79, s79, s76
s_mul_i32 s80, s79, 642
s_add_u32 s81, s80, {128*642}
s_add_u32 s82, s80, {256*642}
s_add_u32 s75, s80, {384*642}
s_lshl_b32 s78, s78, 4
s_add_u32 s78, s78, s77
s_lshl_b32 s78, s78, 4
s_mul_i32 s76, s76, {336*1024}
s_add_u32 s76, s76, s78
s_lshr_b32 s77, s34, 1
s_lshl_b32 s77, s77, 6
v_add_u32 v102, s77, v2
v_add_u32 v103, 256, v102
v_mov_b32 v104, 0x1fffff
v_cmp_gt_u32 vcc, 321, v103
v_cndmask_b32 v103, v104, v103, vcc
v_lshlrev_b32 v104, 1, v102
v_lshlrev_b32 v105, 1, v103
v_lshlrev_b32 v102, 10, v102
v_lshlrev_b32 v103, 10, v103
s_mov_b32 s62, s58
s_mov_b32 s63, s59
s_mov_b32 s58, {2048*642}
s_mov_b32 s59, 0x00020000
s_mov_b32 s60, s62
s_mov_b32 s61, s63
s_mov_b32 s62, {2048*642}
s_mov_b32 s63, 0x00020000''')
        srd_from(k, 64, 40, 41, WS_WF, WF_BYTES)
        so = ['s80', 's81', 's82', 's75']
        for u in range(2):
            for r in range(4):
                k(f'buffer_load_ushort v{108+4*u+r}, v{104+u}, s[56:59], {so[r]} offen')
                k(f'buffer_load_ushort v{116+4*u+r}, v{104+u}, s[60:63], {so[r]} offen')

    def w_stores(n):
        k(f's_waitcnt vmcnt({n})')
        for u in range(2):
            for r in range(4):
                k(f'v_lshl_or_b32 v{108+4*u+r}, v{116+4*u+r}, 16, v{108+4*u+r}')
            k(f'buffer_store_dwordx4 {vr(108+4*u,4)}, v{102+u}, s[64:67], s76 offen ; W')
    if WL == 1: w_loads()
    WD = OPT.get('wd', 0)
    if WD:
        k(f'''s_bitcmp1_b32 s34, 0
s_cselect_b32 s68, s58, s56
s_cselect_b32 s69, s59, s57
s_cmp_ge_u32 s34, {8-2}
s_cselect_b32 s70, {2048*642}, 0
s_mov_b32 s71, 0x00020000
v_and_b32 v100, 7, v2
v_lshlrev_b32 v100, 7, v100
v_min_u32 v100, 640, v100
v_lshrrev_b32 v101, 3, v2
v_mul_u32_u24 v101, {8*642}, v101
v_add_u32 v100, v100, v101
s_and_b32 s72, s2, 7
s_lshr_b32 s73, s2, 3
s_lshl_b32 s74, s73, 6
s_add_u32 s72, s72, s74
s_mul_i32 s72, s72, 642''')
        if WD == 1: k('buffer_load_ubyte v101, v100, s[68:71], s72 offen')
    if OPT.get('tlb'):
        TL = k.label('tl')
        k(f'''s_mov_b32 s82, 0
s_cmp_lg_u32 s34, 4
s_cbranch_scc1 {TL}
s_cmp_ge_u32 s2, {8*OPT['tlb']}
s_cbranch_scc1 {TL}
s_load_dwordx4 s[76:79], s[0:1], 40
s_load_dwordx2 s[80:81], s[0:1], 64
s_mov_b32 s82, 1
v_lshlrev_b32 v106, 21, v2
s_mov_b32 s71, 0x00020000''')
        for lo, sz in ((56, 2048*642), (58, 2048*642), (40, 0x2200000), (62, 640*3456), (64, 864*1280), (76, 2048*4096), (78, 4096), (80, X_BYTES)):
            if lo == 76: k('s_waitcnt lgkmcnt(0)')
            k(f's_mov_b32 s68, s{lo}\ns_mov_b32 s69, s{lo+1}\ns_mov_b32 s70, 0x{sz:x}\nbuffer_load_ubyte v107, v106, s[68:71], 0 offen')
        k(f's_waitcnt vmcnt(8)\n{TL}:')
    k(f'''s_mul_i32 s39, s34, {XP}
v_add_u32 v58, s39, v58
v_add_u32 v59, s39, v59
v_and_b32 v50, 15, v2
v_lshrrev_b32 v51, 4, v2
v_lshrrev_b32 v52, 2, v50
v_and_b32 v53, 3, v50
v_lshl_add_u32 v54, v51, 3, v52
v_add_u32 v55, 4, v54
v_subrev_u32 v56, 20, v54
v_min_u32 v54, v54, v56
v_subrev_u32 v56, 20, v55
v_min_u32 v55, v55, v56
v_lshlrev_b32 v53, 3, v53
v_lshl_add_u32 v54, v54, 6, v53
v_lshl_add_u32 v55, v55, 6, v53
v_add_u32 v54, s39, v54
v_add_u32 v55, s39, v55
s_mul_i32 s42, s34, {EXP}
s_add_u32 s42, s42, {EX0}
v_mul_u32_u24 v56, 80, v51
v_add_u32 v57, v56, v50
v_lshlrev_b32 v57, 3, v57
v_add_u32 v60, s42, v57
v_sub_u32 v61, {8*260}, v57
v_add_u32 v61, s42, v61
{"s_cmp_eq_u32 s82, 1" if OPT.get('tlb') else ""}
{"s_cbranch_scc1 k0_skipw" if OPT.get('tlb') else ""}
s_waitcnt vmcnt({16 if WL == 1 else (1 if WD == 1 else 0)})
{"k0_skipw:" if OPT.get('tlb') else ""}''')
    k.stamp()
    if LT:
        k('s_barrier')
        for i in range(8): k(f'ds_read_b128 {vr(64+4*i,4)}, v3 offset:{TB0+1024*i}')
    if WL == 2: w_loads()
    if WD == 2: k('buffer_load_ubyte v101, v100, s[68:71], s72 offen')
    if OPT.get('fz'):
        srd_from(k, 52, 40, 41, 0x1800000, 0x80000)
        k(f'''s_lshl_b32 s33, s2, 10
s_cmp_lt_u32 s2, {OPT.get('fzn', 32)}
s_cselect_b32 s43, s33, 0x7f000000
s_add_u32 s33, s33, 0x40000
s_cmp_eq_u32 s34, 1
s_cselect_b32 s33, s33, 0x7f000000
s_cselect_b32 s44, -1, 0
s_cmp_eq_u32 s34, 0
s_cselect_b32 s33, s43, s33
v_mov_b32 v120, s44
v_mov_b32 v121, s44
v_mov_b32 v122, s44
v_mov_b32 v123, s44
buffer_store_dwordx4 v[120:123], v3, s[52:55], s33 offen''')
    if not OPT.get('nopf'):
        k0_prefetch(k)
    if OPT.get('wsp'): wsp_loads()
    if OPT.get('wt'): w_touch(k, OPT['wt'], 48, 34, 102)
    for i in range(5):
        k(f'v_lshlrev_b32 v{10+2*i}, 16, v{4+i}\nv_and_b32 v{11+2*i}, 0xffff0000, v{4+i}')
    k('''v_pk_add_f32 v[20:21], v[10:11], v[12:13]
v_pk_mul_f32 v[22:23], v[10:11], v[10:11]
v_pk_add_f32 v[24:25], v[14:15], v[16:17]
v_pk_fma_f32 v[22:23], v[12:13], v[12:13], v[22:23]
v_pk_add_f32 v[20:21], v[20:21], v[18:19]
v_pk_fma_f32 v[22:23], v[14:15], v[14:15], v[22:23]
v_pk_add_f32 v[20:21], v[20:21], v[24:25]
v_pk_fma_f32 v[22:23], v[16:17], v[16:17], v[22:23]
v_pk_fma_f32 v[22:23], v[18:19], v[18:19], v[22:23]
v_add_f32 v20, v20, v21
v_add_f32 v22, v22, v23''')
    wave_reduce2(k, 20, 22, 36, 37)
    ln_stats(k, 36, 37, 640, 20, 22, 24)
    ln_apply(k, 10, 10, 20, 22, 4)
    k('''ds_write_b64 v58, v[4:5]
ds_write_b64 v58, v[6:7] offset:512
ds_write_b32 v59, v8 offset:1024
s_waitcnt lgkmcnt(0)
ds_read_b64_tr_b16 v[4:5], v54
ds_read_b64_tr_b16 v[6:7], v55
ds_read_b64_tr_b16 v[8:9], v54 offset:32
ds_read_b64_tr_b16 v[10:11], v55 offset:32
s_waitcnt lgkmcnt(2)''')
    k(f'''{MFMA} v[12:15], v[4:7], v[64:67], 0
{MFMA} v[16:19], v[4:7], v[68:71], 0
s_waitcnt lgkmcnt(0)
{MFMA} v[20:23], v[8:11], v[64:67], 0
{MFMA} v[24:27], v[8:11], v[68:71], 0''')
    cmul_planar(k, 12, 16, 72, 76, 28, 32, 44)
    cmul_planar(k, 20, 24, 80, 84, 36, 40, 44)
    for t in range(2):
        for h in range(2):
            re = 28 + 8 * t + 2 * h; im = 32 + 8 * t + 2 * h; o = 2 * t + h
            k(f'''v_cvt_pk_bf16_f32 v{4+o}, v{re}, v{re+1}
v_cvt_pk_bf16_f32 v{8+o}, v{im}, v{im+1}
v_cvt_pk_bf16_f32 v{12+o}, -v{im}, -v{im+1}
v_cvt_pk_bf16_f32 v{16+o}, v{re}, -v{re+1}
v_cvt_pk_bf16_f32 v{20+o}, v{im}, -v{im+1}
v_cvt_pk_bf16_f32 v{24+o}, -v{im}, v{im+1}''')
    k(f'''{MFMA} v[28:31], v[88:91], v[4:7], 0
{MFMA} v[32:35], v[92:95], v[4:7], 0
{MFMA} v[36:39], v[88:91], v[16:19], 0
{MFMA} v[40:43], v[92:95], v[16:19], 0
{MFMA} v[28:31], v[92:95], v[12:15], v[28:31]
{MFMA} v[32:35], v[88:91], v[8:11], v[32:35]
{MFMA} v[36:39], v[92:95], v[24:27], v[36:39]
{MFMA} v[40:43], v[88:91], v[20:23], v[40:43]
s_mov_b32 exec_lo, 0x07ff07ff
s_mov_b32 exec_hi, 0x07ff07ff''')
    for r in range(4):
        k(f'ds_write2_b32 v60, v{28+r}, v{32+r} offset0:{40*r} offset1:{40*r+1}')
    for r in range(4):
        k(f'v_xor_b32 v{40+r}, 0x80000000, v{40+r}')
    for r in range(4):
        k(f'ds_write2_b32 v61, v{36+r}, v{40+r} offset0:{40*(3-r)} offset1:{40*(3-r)+1}')
    k(f'''s_mov_b64 exec, -1''')
    if WL == 1: w_stores(1)
    k(f'''s_waitcnt lgkmcnt(0)''')
    k.stamp()
    k(f'''s_barrier''')
    k.stamp()
    TAIL = k.label('tail'); TAIL2 = k.label('tail')
    k(f'''v_cmp_gt_u32 vcc, {TP//4 if OPT.get('fullt') else 321}, v0
s_and_saveexec_b64 s[44:45], vcc
s_cbranch_execz {TAIL if (WL == 2 or OPT.get('wsp')) else END}
v_lshlrev_b32 v1, 3, v0
v_lshlrev_b32 v2, 2, v0''')
    for n in range(8):
        k(f'ds_read_b64 {vr(4+2*n,2)}, v1 offset:{EX0+n*EXP}')
    k(f'''v_mov_b32 v40, 0x3f3504f3
s_mul_i32 s46, s3, {8*TP}
s_add_u32 s47, s46, {3*TP}
s_add_u32 s48, s46, {6*TP}
s_waitcnt lgkmcnt(0)''')
    T = fft8(k, 4, 20, False, 40)
    for k2 in range(8):
        if k2 == 0:
            k(f'v_cvt_pk_bf16_f32 v4, v{T[0]}, v{T[0]+1}')
        else:
            smul(k, T[k2], T[k2], 16 + 2 * k2, 42 + 2 * (k2 & 1))
            k(f'v_cvt_pk_bf16_f32 v{4+k2}, v{T[k2]}, v{T[k2]+1}')
        k(f'buffer_store_dword v{4+k2}, v2, s[8:11], s{46+k2//3} offen offset:{(k2%3)*TP+4*(k2&1)*(OPT.get("sh",0)==1)}')
    if WL == 2:
        k(f's_waitcnt vmcnt(9)\ns_branch {TAIL2}\n{TAIL}:\ns_waitcnt vmcnt(1)\n{TAIL2}:\ns_mov_b64 exec, -1')
        w_stores(63)
    if OPT.get('wsp'):
        k(f's_mov_b64 exec, -1\ns_waitcnt vmcnt(8)\ns_branch {TAIL2}\n{TAIL}:\ns_mov_b64 exec, -1\ns_waitcnt vmcnt(0)\n{TAIL2}:')
        wsp_stores(60)
    if WX:
        k(f's_branch {END}')
        k0_wrole(k, WROLE, END)
    k.finish(END)
    if WQ in (1, 2):
        import gen9
        k(f'{WROLE}:')
        gen9.wq_role(k, 256, END, None if WQ == 1 else 0, ' nt' if OPT.get('wnt') else '', OPT.get('wsl0', 0))
    return k


def gen_k1():
    P = 1040; W0 = 16 * P
    import gen3
    NPF = OPT.get('npf1', 4)
    NG = 256 if NPF else 220
    k = Kern('k1_kernel', NG, 256, 83968 if NPF else 65536, nvgpr=160)
    END = k.label('end'); MAIN = k.label('main'); PREP = k.label('prep')
    k(f'''s_cmp_ge_u32 s2, {NG}
s_cbranch_scc1 {END}
s_cmp_lt_u32 s2, 168
s_cbranch_scc1 {MAIN}
s_load_dwordx2 s[40:41], s[0:1], 80''')
    k.stamp(True)
    if NPF:
        k(f'''s_cmp_lt_u32 s2, 220
s_cbranch_scc1 {PREP}
s_load_dwordx2 s[4:5], s[0:1], 40
v_lshrrev_b32 v1, 6, v0
v_and_b32 v2, 63, v0
v_readfirstlane_b32 s35, v1
s_sub_u32 s33, s2, 220
s_lshl_b32 s33, s33, 2
s_add_u32 s33, s33, s35
s_lshl_b32 s33, s33, 13
v_lshlrev_b32 v3, 7, v2
s_mov_b32 s6, {2048*4096}
s_mov_b32 s7, 0x00020000
s_waitcnt lgkmcnt(0)''')
        for i in range(NPF):
            k(f'buffer_load_ubyte v4, v3, s[4:7], s33 offen\ns_add_u32 s33, s33, {144*8192}')
        k(f's_branch {END}\n{PREP}:')
    if OPT.get('k1noprep'): k(f's_branch {END}')
    gen3.gen_prep(k, 168, END)
    k.nst = 0
    k(f'''{MAIN}:
s_load_dwordx2 s[4:5], s[0:1], 8
s_load_dwordx2 s[16:17], s[0:1], 16
s_load_dwordx2 s[40:41], s[0:1], 80''')
    k.stamp(True)
    tab_srd(k, 12)
    k(f'''s_and_b32 s33, s2, 7
s_lshr_b32 s34, s2, 3
v_lshrrev_b32 v1, 6, v0
v_and_b32 v2, 63, v0
v_readfirstlane_b32 s35, v1
v_lshlrev_b32 v3, 4, v2
s_movk_i32 s38, 0x2000
s_movk_i32 s39, 0x3000
v_and_b32 v4, 15, v2
v_lshrrev_b32 v5, 4, v2''')
    for i in range(8):
        k(f'buffer_load_dwordx4 {vr(96+4*i,4)}, v3, s[12:15], s{38+i//4} offen offset:{(i%4)*1024}')
    k(f'''v_mul_u32_u24 v6, {16*8*TP}, v4
v_lshl_add_u32 v6, v5, 4, v6
s_lshl_b32 s36, s35, 5
s_add_u32 s36, s36, s33
s_mul_i32 s36, s36, {TP}
s_lshl_b32 s37, s34, 6
s_add_u32 s36, s36, s37
s_add_u32 s42, s36, {8*TP}
s_add_u32 s43, s36, {16*TP}
s_add_u32 s44, s36, {24*TP}
v_and_b32 v7, 1, v5
v_lshrrev_b32 v8, 1, v5
v_lshl_add_u32 v9, v4, 4, v7
v_mul_u32_u24 v9, {8*642}, v9
v_lshl_add_u32 v9, v8, 4, v9
s_lshl_b32 s45, s35, 5
s_add_u32 s45, s45, s33
s_mul_i32 s45, s45, 642
s_lshl_b32 s37, s34, 5
s_add_u32 s45, s45, s37
s_add_u32 s46, s45, {16*642}
s_waitcnt lgkmcnt(0)''')
    srd_from(k, 4, 4, 5, 0, 2048 * 642)
    srd_from(k, 16, 16, 17, 0, 2048 * 642)
    srd_from(k, 8, 40, 41, WS_T, TU_BYTES)
    srd_from(k, 20, 40, 41, WS_U, TU_BYTES)
    so = ['s36', 's42', 's43', 's44']
    for i in range(4):
        k(f'buffer_load_dwordx4 {vr(16+4*i,4)}, v6, s[8:11], {so[i]} offen')
    for i in range(2):
        if OPT.get('k1now'):
            k(f'buffer_load_dwordx4 {vr(32+8*i,4)}, v3, s[12:15], 0 offen')
            k(f'buffer_load_dwordx4 {vr(36+8*i,4)}, v3, s[12:15], 0 offen')
            continue
        k(f'buffer_load_dwordx4 {vr(32+8*i,4)}, v9, s[4:7], s{45+i} offen')
        k(f'buffer_load_dwordx4 {vr(36+8*i,4)}, v9, s[16:19], s{45+i} offen')
    k(f'''v_mul_u32_u24 v10, {4*P}, v5
v_lshl_add_u32 v10, v4, 2, v10
s_lshl_b32 s37, s35, 8
v_add_u32 v10, s37, v10
v_mul_u32_u24 v11, {8*P}, v8
v_lshl_add_u32 v11, v7, 6, v11
v_lshl_add_u32 v11, v4, 2, v11
v_add_u32 v11, s37, v11
v_lshlrev_b32 v12, 6, v4
v_lshl_add_u32 v12, v5, 4, v12
s_mul_i32 s37, s35, {4*P}
v_add_u32 v12, s37, v12
s_mov_b32 s47, 0x05040100
s_mov_b32 s48, 0x07060302''')
    for i in range(4):
        k(f's_waitcnt vmcnt({7-i})')
        for j in range(4):
            k(f'ds_write_b32 v10, v{16+4*i+j} offset:{j*P+64*i}')
    k.stamp()
    for i in range(2):
        k(f's_waitcnt vmcnt({2-2*i})')
        for j in range(4):
            k(f'v_perm_b32 v{48+2*j}, v{36+8*i+j}, v{32+8*i+j}, s47')
            k(f'v_perm_b32 v{49+2*j}, v{36+8*i+j}, v{32+8*i+j}, s48')
        for j in range(8):
            k(f'ds_write_b32 v11, v{48+j} offset:{W0+j*P+128*i}')
    k('s_waitcnt lgkmcnt(0)')
    k.stamp()
    k('s_barrier')
    k.stamp()
    for c in range(4):
        k(f'ds_read_b128 {vr(16+4*c,4)}, v12 offset:{c*P}')
    for c in range(4):
        k(f'ds_read_b128 {vr(32+4*c,4)}, v12 offset:{W0+c*P}')
    for c in range(4):
        k(f's_waitcnt lgkmcnt({7-c})')
        k(f'{MFMA} {vr(48+8*c,4)}, {vr(16+4*c,4)}, v[96:99], 0')
        k(f'{MFMA} {vr(52+8*c,4)}, {vr(16+4*c,4)}, v[100:103], 0')

    def pack(c, re, im):
        k(f'''v_cvt_pk_bf16_f32 v{16+4*c}, v{re}, v{re+1}
v_cvt_pk_bf16_f32 v{17+4*c}, v{re+2}, v{re+3}
v_cvt_pk_bf16_f32 v{18+4*c}, v{im}, v{im+1}
v_cvt_pk_bf16_f32 v{19+4*c}, v{im+2}, v{im+3}''')
    for c in range(4):
        cmul_planar(k, 48 + 8 * c, 52 + 8 * c, 104, 108, 80, 84, 88)
        pack(c, 80, 84)
        k(f'{MFMA} {vr(48+8*c,4)}, v[112:115], {vr(16+4*c,4)}, 0')
        k(f'{MFMA} {vr(52+8*c,4)}, v[116:119], {vr(16+4*c,4)}, 0')
    k('s_waitcnt lgkmcnt(0)')
    for c in range(4):
        for r in range(4):
            k(f'v_lshlrev_b32 v{128+r}, 16, v{32+4*c+r}\nv_and_b32 v{132+r}, 0xffff0000, v{32+4*c+r}')
        cmul_planar(k, 48 + 8 * c, 52 + 8 * c, 128, 132, 80, 84, 88)
        pack(c, 80, 84)
        k(f'{MFMA} {vr(48+8*c,4)}, {vr(16+4*c,4)}, v[120:123], 0')
        k(f'{MFMA} {vr(52+8*c,4)}, {vr(16+4*c,4)}, v[124:127], 0')
    for c in range(4):
        cmul_planar(k, 48 + 8 * c, 52 + 8 * c, 104, 108, 80, 84, 88, conj=True)
        pack(c, 80, 84)
        k(f'{MFMA} {vr(48+8*c,4)}, v[120:123], {vr(16+4*c,4)}, 0')
        k(f'{MFMA} {vr(52+8*c,4)}, v[124:127], {vr(16+4*c,4)}, 0')
    for c in range(4):
        for r in range(4):
            k(f'v_cvt_pk_bf16_f32 v{16+4*c+r}, v{48+8*c+r}, v{52+8*c+r}')
        k(f'ds_write_b128 v12, {vr(16+4*c,4)} offset:{c*P}')
    k('s_waitcnt lgkmcnt(0)')
    k.stamp()
    k('s_barrier')
    k.stamp()
    for i in range(4):
        for j in range(4):
            k(f'ds_read_b32 v{16+4*i+j}, v10 offset:{j*P+64*i}')
    for i in range(4):
        k(f's_waitcnt lgkmcnt({12-4*i})')
        k(f'buffer_store_dwordx4 {vr(16+4*i,4)}, v6, s[20:23], {so[i]} offen')
    k.finish(END)
    return k


def gen_k1b():
    P = 1040
    import gen3
    WQ = OPT.get('wq', 0)
    k = Kern('k1_kernel', 256 + [0, 0, 128, 256][WQ], 512, OPT.get('k1lds', 81920), nvgpr=128)
    END = k.label('end'); MAIN = k.label('main'); WROLE = k.label('wrole')
    k(f'''s_cmp_ge_u32 s2, 256
s_cbranch_scc1 {WROLE if WQ >= 2 else END}
s_load_dwordx2 s[40:41], s[0:1], 80
s_cmp_lt_u32 s2, 168
s_cbranch_scc1 {MAIN}''')
    k.stamp(True)
    if OPT.get('k1noprep'): k(f's_branch {END}')
    gen3.gen_prep(k, 168, END, 1, 5)
    k.nst = 0
    k(f'{MAIN}:')
    k.stamp(True)
    tab_srd(k, 12)
    k(f'''s_and_b32 s33, s2, 7
s_lshr_b32 s34, s2, 3
v_lshrrev_b32 v1, 6, v0
v_and_b32 v2, 63, v0
v_readfirstlane_b32 s35, v1
v_lshlrev_b32 v3, 4, v2
s_movk_i32 s38, 0x2000
s_movk_i32 s39, 0x3000
v_and_b32 v4, 15, v2
v_lshrrev_b32 v5, 4, v2''')
    LT = OPT.get('lt', 0); TB1 = 16 * P
    if LT:
        k(f'''s_lshl_b32 s39, s35, 10
s_add_u32 m0, s39, {TB1}
s_add_u32 s38, s38, s39
buffer_load_dwordx4 v3, s[12:15], s38 offen lds''')
    else:
        for i in range(4):
            k(f'buffer_load_dwordx4 {vr(96+4*i,4)}, v3, s[12:15], s38 offen offset:{i*1024}')
        k('buffer_load_dwordx4 v[112:115], v3, s[12:15], s39 offen offset:3072')
        k('buffer_load_dwordx4 v[116:119], v3, s[12:15], s39 offen offset:1024')
    IIM = 'v[112:115]'; IRE = 'v[114:117]'; FIM = 'v[116:119]'; FRE = 'v[118:121]'
    k(f'''v_mul_u32_u24 v6, {16*8*TP}, v4
v_lshl_add_u32 v6, v5, 4, v6
s_lshl_b32 s36, s35, 4
s_add_u32 s36, s36, s33
s_mul_i32 s36, s36, {TP}
s_lshl_b32 s37, s34, 6
s_add_u32 s36, s36, s37
s_add_u32 s42, s36, {8*TP}
s_mul_i32 s45, s33, 336
s_lshl_b32 s37, s34, 4
s_add_u32 s45, s45, s37
s_lshl_b32 s37, s35, 1
s_add_u32 s45, s45, s37
s_lshl_b32 s45, s45, 10
s_lshl_b32 s37, s34, 3
s_add_u32 s37, s37, s35
s_cmp_gt_u32 s37, 160
s_cselect_b32 s45, 0x7f000000, s45
s_waitcnt lgkmcnt(0)''')
    srd_from(k, 8, 40, 41, WS_T, TU_BYTES)
    srd_from(k, 4, 40, 41, WS_WF, WF_BYTES)
    srd_from(k, 20, 40, 41, WS_U, TU_BYTES)
    so = ['s36', 's42']
    for i in range(2):
        k(f'buffer_load_dwordx4 {vr(16+4*i,4)}, v6, s[8:11], {so[i]} offen')
    WP = OPT.get('k1wp', 0)
    def wld():
        for i in range(2):
            if OPT.get('k1now'): k(f'buffer_load_dwordx4 {vr(32+4*i,4)}, v3, s[12:15], 0 offen offset:{1024*i}')
            else: k(f'buffer_load_dwordx4 {vr(32+4*i,4)}, v3, s[4:7], s45 offen offset:{1024*i}')
    if WP == 0: wld()
    if WP == 2: k('s_barrier'); wld()
    k(f'''v_mul_u32_u24 v10, {4*P}, v5
v_lshl_add_u32 v10, v4, 2, v10
s_lshl_b32 s37, s35, 7
v_add_u32 v10, s37, v10
v_lshlrev_b32 v12, 6, v4
v_lshl_add_u32 v12, v5, 4, v12
s_mul_i32 s37, s35, {2*P}
v_add_u32 v12, s37, v12
''')
    if not LT:
        k(f'''s_waitcnt vmcnt({2 if WP == 1 else 4})
v_mov_b32 v120, v112
v_mov_b32 v121, v113''')
    for i in range(2):
        k(f's_waitcnt vmcnt({(1 if WP == 1 else 3)-i})')
        for j in range(4):
            k(f'ds_write_b32 v10, v{16+4*i+j} offset:{j*P+64*i}')
    if WP == 1: wld()
    k.stamp()
    k('s_waitcnt lgkmcnt(0)')
    k.stamp()
    k('s_barrier')
    k.stamp()
    NC = 2
    if LT:
        k(f'''ds_read_b128 v[96:99], v3 offset:{TB1}
ds_read_b128 v[16:19], v12
ds_read_b128 v[100:103], v3 offset:{TB1+1024}
ds_read_b128 v[20:23], v12 offset:{P}
ds_read_b128 v[104:107], v3 offset:{TB1+2048}
ds_read_b128 v[108:111], v3 offset:{TB1+3072}
ds_read_b128 v[118:121], v3 offset:{TB1+4096}
ds_read_b64 v[116:117], v3 offset:{TB1+5120}
ds_read_b128 v[112:115], v3 offset:{TB1+7168}
s_waitcnt lgkmcnt(7)
{MFMA} v[48:51], v[16:19], v[96:99], 0
s_waitcnt lgkmcnt(6)
{MFMA} v[52:55], v[16:19], v[100:103], 0
s_waitcnt lgkmcnt(5)
{MFMA} v[56:59], v[20:23], v[96:99], 0
{MFMA} v[60:63], v[20:23], v[100:103], 0
s_waitcnt lgkmcnt(0)''')
    else:
      for c in range(NC):
        k(f'ds_read_b128 {vr(16+4*c,4)}, v12 offset:{c*P}')
      for c in range(NC):
        k(f's_waitcnt lgkmcnt({NC-1-c})')
        k(f'{MFMA} {vr(48+8*c,4)}, {vr(16+4*c,4)}, v[96:99], 0')
        k(f'{MFMA} {vr(52+8*c,4)}, {vr(16+4*c,4)}, v[100:103], 0')
    def wun():
        k('s_waitcnt vmcnt(0)')
        for c in range(NC):
            for r in range(4):
                k(f'v_lshlrev_b32 v{64+8*c+r}, 16, v{32+4*c+r}\nv_and_b32 v{68+8*c+r}, 0xffff0000, v{32+4*c+r}')
    if not OPT.get('k1wl'): wun()

    def pack(c, re, im):
        k(f'''v_cvt_pk_bf16_f32 v{16+4*c}, v{re}, v{re+1}
v_cvt_pk_bf16_f32 v{17+4*c}, v{re+2}, v{re+3}
v_cvt_pk_bf16_f32 v{18+4*c}, v{im}, v{im+1}
v_cvt_pk_bf16_f32 v{19+4*c}, v{im+2}, v{im+3}''')
    for c in range(NC):
        cmul_planar(k, 48 + 8 * c, 52 + 8 * c, 104, 108, 80, 84, 88)
        pack(c, 80, 84)
        k(f'{MFMA} {vr(48+8*c,4)}, {FRE}, {vr(16+4*c,4)}, 0')
        k(f'{MFMA} {vr(52+8*c,4)}, {FIM}, {vr(16+4*c,4)}, 0')
    if OPT.get('k1wl'): wun()
    for c in range(NC):
        cmul_planar(k, 48 + 8 * c, 52 + 8 * c, 64 + 8 * c, 68 + 8 * c, 80, 84, 88)
        pack(c, 80, 84)
        k(f'{MFMA} {vr(48+8*c,4)}, {vr(16+4*c,4)}, {IRE}, 0')
        k(f'{MFMA} {vr(52+8*c,4)}, {vr(16+4*c,4)}, {IIM}, 0')
    for c in range(NC):
        cmul_planar(k, 48 + 8 * c, 52 + 8 * c, 104, 108, 80, 84, 88, conj=True)
        pack(c, 80, 84)
        k(f'{MFMA} {vr(48+8*c,4)}, {IRE}, {vr(16+4*c,4)}, 0')
        k(f'{MFMA} {vr(52+8*c,4)}, {IIM}, {vr(16+4*c,4)}, 0')
    for c in range(NC):
        for r in range(4):
            k(f'v_cvt_pk_bf16_f32 v{16+4*c+r}, v{48+8*c+r}, v{52+8*c+r}')
        k(f'ds_write_b128 v12, {vr(16+4*c,4)} offset:{c*P}')
    k('s_waitcnt lgkmcnt(0)')
    k.stamp()
    k('s_barrier')
    k.stamp()
    for i in range(2):
        for j in range(4):
            k(f'ds_read_b32 v{16+4*i+j}, v10 offset:{j*P+64*i}')
    for i in range(2):
        k(f's_waitcnt lgkmcnt({4-4*i})')
        k(f'buffer_store_dwordx4 {vr(16+4*i,4)}, v6, s[20:23], {so[i]} offen')
    k.finish(END)
    return k


def gen_k1c():
    P = 1040; W0 = 16 * P; TB1 = 32 * P
    import gen3
    WQ = OPT.get('wq', 0)
    k = Kern('k1_kernel', 256 + [0, 0, 128, 256][WQ], 512, OPT.get('k1lds', 81920), nvgpr=128)
    END = k.label('end'); MAIN = k.label('main'); WROLE = k.label('wrole')
    k(f'''s_cmp_ge_u32 s2, 256
s_cbranch_scc1 {WROLE if WQ >= 2 else END}
s_load_dwordx2 s[40:41], s[0:1], 80
s_cmp_lt_u32 s2, 168
s_cbranch_scc1 {MAIN}''')
    k.stamp(True)
    if OPT.get('k1noprep'): k(f's_branch {END}')
    if OPT.get('p8'):
        import gen8
        gen8.gen_prep8(k, 168, END)
    else: gen3.gen_prep(k, 168, END, 1, 5)
    k.nst = 0
    k(f'{MAIN}:\ns_load_dwordx4 s[4:7], s[0:1], 8')
    k.stamp(True)
    tab_srd(k, 12)
    k(f'''s_and_b32 s33, s2, 7
s_lshr_b32 s34, s2, 3
v_lshrrev_b32 v1, 6, v0
v_and_b32 v2, 63, v0
v_readfirstlane_b32 s35, v1
v_lshlrev_b32 v3, 4, v2
v_and_b32 v4, 15, v2
v_lshrrev_b32 v5, 4, v2
s_lshl_b32 s39, s35, 10
s_add_u32 m0, s39, {TB1}
s_add_u32 s38, s39, 0x2000
buffer_load_dwordx4 v3, s[12:15], s38 offen lds''')
    IIM = 'v[112:115]'; IRE = 'v[114:117]'; FIM = 'v[116:119]'; FRE = 'v[118:121]'
    k(f'''v_mul_u32_u24 v6, {16*8*TP}, v4
v_lshl_add_u32 v6, v5, 4, v6
s_lshl_b32 s36, s35, 4
s_add_u32 s36, s36, s33
s_mul_i32 s45, s36, 642
s_mul_i32 s36, s36, {TP}
s_lshl_b32 s37, s34, 6
s_add_u32 s36, s36, s37
s_add_u32 s42, s36, {8*TP}
s_lshl_b32 s37, s34, 5
s_add_u32 s45, s45, s37
s_and_b32 s45, s45, -4
v_and_b32 v7, 1, v5
v_lshrrev_b32 v8, 1, v5
v_lshl_add_u32 v9, v4, 4, v7
v_mul_u32_u24 v9, {8*642}, v9
v_lshl_add_u32 v9, v8, 4, v9
s_waitcnt lgkmcnt(0)''')
    srd_from(k, 8, 40, 41, WS_T, TU_BYTES)
    so = ['s36', 's42']
    if OPT.get('sh') == 2:
        k('s_and_b32 s37, s33, 1\ns_lshl_b32 s37, s37, 2\ns_sub_u32 s43, s36, s37\ns_sub_u32 s44, s42, s37')
    for i in range(2):
        k(f'buffer_load_dwordx4 {vr(16+4*i,4)}, v6, s[8:11], {so[i] if OPT.get("sh") != 2 else f"s{43+i}"} offen')
    k(f'''s_mov_b32 s16, s6
s_mov_b32 s17, s7
s_mov_b32 s6, {2048*642}
s_mov_b32 s7, 0x00020000
s_mov_b32 s18, {2048*642}
s_mov_b32 s19, 0x00020000''')
    srd_from(k, 20, 40, 41, WS_U, TU_BYTES)
    WP = OPT.get('k1wp', 2); SH = OPT.get('sh', 0)
    if WP == 2: k('s_barrier')
    def wld():
        k(f'''buffer_load_dwordx4 v[32:35], v9, s[4:7], s45 offen
buffer_load_dwordx4 v[38:41], v9, s[16:19], s45 offen''')
        if not SH: k(f'''s_bitcmp1_b32 s33, 0
s_cselect_b32 s46, s45, 0x7f000000
buffer_load_dword v36, v9, s[4:7], s46 offen offset:16
buffer_load_dword v42, v9, s[16:19], s46 offen offset:16''')
    if WP in (0, 2): wld()
    k(f'''v_mul_u32_u24 v10, {4*P}, v5
v_lshl_add_u32 v10, v4, 2, v10
s_lshl_b32 s37, s35, 7
v_add_u32 v10, s37, v10
v_mul_u32_u24 v11, {8*P}, v8
v_lshl_add_u32 v11, v7, 6, v11
v_lshl_add_u32 v11, v4, 2, v11
v_add_u32 v11, s37, v11
v_lshlrev_b32 v12, 6, v4
v_lshl_add_u32 v12, v5, 4, v12
s_mul_i32 s37, s35, {2*P}
v_add_u32 v12, s37, v12
s_mov_b32 s47, 0x05040100
s_mov_b32 s48, 0x07060302''')
    for i in range(2):
        k(f's_waitcnt vmcnt({((3 if SH else 5) if WP in (0, 2) else 1)-i})')
        for j in range(4):
            k(f'ds_write_b32 v10, v{16+4*i+j} offset:{j*P+64*i}')
    if WP == 1: wld()
    k.stamp()
    k('s_waitcnt lgkmcnt(0)\ns_barrier')
    if WP == 3: wld()
    k.stamp()
    NC = 2
    k(f'''ds_read_b128 v[96:99], v3 offset:{TB1}
ds_read_b128 v[16:19], v12
ds_read_b128 v[100:103], v3 offset:{TB1+1024}
ds_read_b128 v[20:23], v12 offset:{P}
ds_read_b128 v[104:107], v3 offset:{TB1+2048}
ds_read_b128 v[108:111], v3 offset:{TB1+3072}
ds_read_b128 v[118:121], v3 offset:{TB1+4096}
ds_read_b64 v[116:117], v3 offset:{TB1+5120}
ds_read_b128 v[112:115], v3 offset:{TB1+7168}
s_waitcnt lgkmcnt(7)
{MFMA} v[48:51], v[16:19], v[96:99], 0
s_waitcnt lgkmcnt(6)
{MFMA} v[52:55], v[16:19], v[100:103], 0
s_waitcnt lgkmcnt(5)
{MFMA} v[56:59], v[20:23], v[96:99], 0
{MFMA} v[60:63], v[20:23], v[100:103], 0
s_waitcnt lgkmcnt(0)''')

    def pack(c, re, im):
        k(f'''v_cvt_pk_bf16_f32 v{16+4*c}, v{re}, v{re+1}
v_cvt_pk_bf16_f32 v{17+4*c}, v{re+2}, v{re+3}
v_cvt_pk_bf16_f32 v{18+4*c}, v{im}, v{im+1}
v_cvt_pk_bf16_f32 v{19+4*c}, v{im+2}, v{im+3}''')
    for c in range(NC):
        cmul_planar(k, 48 + 8 * c, 52 + 8 * c, 104, 108, 80, 84, 88)
        pack(c, 80, 84)
        k(f'{MFMA} {vr(48+8*c,4)}, {FRE}, {vr(16+4*c,4)}, 0')
        k(f'{MFMA} {vr(52+8*c,4)}, {FIM}, {vr(16+4*c,4)}, 0')
    ODD = k.label('odd'); JN = k.label('jn')
    k(f's_bitcmp1_b32 s33, 0\ns_waitcnt vmcnt(0)')
    k.stamp()
    if not SH: k(f's_cbranch_scc1 {ODD}')
    for par in range(1 if SH else 2):
        for j in range(8):
            hj = j + par
            k(f'v_perm_b32 v{64+j}, v{38+hj//2}, v{32+hj//2}, s{47+(hj&1)}')
            k(f'ds_write_b32 v11, v{64+j} offset:{W0+j*P}')
        if par == 0 and not SH: k(f's_branch {JN}\n{ODD}:')
    k(f'{JN}:\ns_waitcnt lgkmcnt(0)\ns_barrier')
    k.stamp()
    for c in range(NC):
        k(f'ds_read_b128 {vr(32+4*c,4)}, v12 offset:{W0+c*P}')
    for c in range(NC):
        k(f's_waitcnt lgkmcnt({NC-1-c})')
        for r in range(4):
            k(f'v_lshlrev_b32 v{64+8*c+r}, 16, v{32+4*c+r}\nv_and_b32 v{68+8*c+r}, 0xffff0000, v{32+4*c+r}')
        cmul_planar(k, 48 + 8 * c, 52 + 8 * c, 64 + 8 * c, 68 + 8 * c, 80, 84, 88)
        pack(c, 80, 84)
        k(f'{MFMA} {vr(48+8*c,4)}, {vr(16+4*c,4)}, {IRE}, 0')
        k(f'{MFMA} {vr(52+8*c,4)}, {vr(16+4*c,4)}, {IIM}, 0')
    for c in range(NC):
        cmul_planar(k, 48 + 8 * c, 52 + 8 * c, 104, 108, 80, 84, 88, conj=True)
        pack(c, 80, 84)
        k(f'{MFMA} {vr(48+8*c,4)}, {IRE}, {vr(16+4*c,4)}, 0')
        k(f'{MFMA} {vr(52+8*c,4)}, {IIM}, {vr(16+4*c,4)}, 0')
    for c in range(NC):
        for r in range(4):
            k(f'v_cvt_pk_bf16_f32 v{16+4*c+r}, v{48+8*c+r}, v{52+8*c+r}')
        k(f'ds_write_b128 v12, {vr(16+4*c,4)} offset:{c*P}')
    k('s_waitcnt lgkmcnt(0)')
    k.stamp()
    k('s_barrier')
    k.stamp()
    for i in range(2):
        for j in range(4):
            k(f'ds_read_b32 v{16+4*i+j}, v10 offset:{j*P+64*i}')
    for i in range(2):
        k(f's_waitcnt lgkmcnt({4-4*i})')
        k(f'buffer_store_dwordx4 {vr(16+4*i,4)}, v6, s[20:23], {so[i]} offen')
    k.finish(END)
    if WQ >= 2:
        import gen9
        k(f'{WROLE}:')
        gen9.wq_role(k, 256, END, None if WQ == 3 else 1, ' nt' if OPT.get('wnt') else '', OPT.get('wsl1', 0))
    return k


def gen_k2a():
    RP = 144; NP = 11 * RP + 16
    LT = OPT.get('lt', 0); TB2 = 8 * NP
    k = Kern('k2a_kernel', 256, 512, 8 * NP + 16384 * LT, nvgpr=128)
    END = k.label('end'); SKIP = k.label('skip')
    k(f'''s_cmp_ge_u32 s2, 256
s_cbranch_scc1 {END}
s_load_dwordx2 s[4:5], s[0:1], 0
s_load_dwordx2 s[40:41], s[0:1], 80
s_load_dwordx2 s[68:69], s[0:1], 40''')
    k.stamp(True)
    tab_srd(k, 12)
    k(f'''s_and_b32 s3, s2, 7
s_lshl_b32 s3, s3, 5
s_lshr_b32 s33, s2, 3
s_add_u32 s3, s3, s33
s_lshl_b32 s33, s3, 6
s_add_u32 s33, s33, 32768
s_load_dwordx16 s[16:31], s[12:13], s33
v_lshrrev_b32 v1, 6, v0
v_and_b32 v2, 63, v0
v_readfirstlane_b32 s34, v1
v_lshlrev_b32 v3, 4, v2
s_movk_i32 s38, 0x4000
s_movk_i32 s39, 0x5000
s_movk_i32 s49, 0x6000''')
    if LT:
        k(f'''s_lshl_b32 s39, s34, 11
s_add_u32 m0, s39, {TB2}
s_add_u32 s38, s38, s39
s_cmp_lt_u32 s34, 5
s_cselect_b32 s38, s38, 0x7f000000
buffer_load_dwordx4 v3, s[12:15], s38 offen lds
buffer_load_dwordx4 v3, s[12:15], s38 offen offset:1024 lds''')
    k(f'''s_mul_i32 s46, s3, {8*TP}
s_add_u32 s47, s46, {3*TP}
s_add_u32 s48, s46, {6*TP}
v_lshlrev_b32 v60, 2, v0
s_lshl_b32 s35, s34, 8
s_add_u32 s35, s35, s3
s_mul_i32 s35, s35, 1280
v_and_b32 v50, 15, v2
v_lshrrev_b32 v51, 4, v2
v_lshlrev_b32 v52, 6, v50
v_lshl_add_u32 v52, v51, 4, v52
v_add_u32 v53, 1024, v52
v_mov_b32 v54, 0x7fffffff
v_cmp_gt_u32 vcc, 4, v50
v_cndmask_b32 v53, v54, v53, vcc
v_lshlrev_b32 v112, 11, v50
v_lshl_add_u32 v112, v51, 8, v112
v_add_u32 v113, 32768, v112
v_cndmask_b32 v113, v54, v113, vcc
s_lshl_b32 s59, s34, 3
s_lshr_b32 s60, s3, 5
s_add_u32 s59, s59, s60
s_mul_i32 s59, s59, 40960
s_and_b32 s60, s3, 4
s_lshl_b32 s60, s60, 8
s_add_u32 s59, s59, s60
s_and_b32 s60, s3, 24
s_lshl_b32 s60, s60, 3
s_add_u32 s59, s59, s60
s_and_b32 s60, s3, 3
s_lshl_b32 s60, s60, 4
s_add_u32 s59, s59, s60
s_waitcnt lgkmcnt(0)''')
    srd_from(k, 4, 4, 5, 0, X_BYTES)
    srd_from(k, 8, 40, 41, WS_U, TU_BYTES)
    srd_from(k, 52, 40, 41, WS_H, X_BYTES)
    srd_from(k, 60, 40, 41, WS_HN, X_BYTES)
    for k2 in range(8):
        k(f'buffer_load_dword v{4+k2}, v60, s[8:11], s{46+k2//3} offen offset:{(k2%3)*TP+4*(k2&1)*(OPT.get("sh",0)>0)}')
    for i in range(0 if LT else 10):
        so = ['s38', 's39', 's49'][i // 4]
        k(f'buffer_load_dwordx4 {vr(64+4*i,4)}, v3, s[12:15], {so} offen offset:{(i%4)*1024}')
    k(f'''buffer_load_dwordx4 v[104:107], v52, s[4:7], s35 offen
buffer_load_dwordx4 v[108:111], v53, s[4:7], s35 offen''')
    k(f'''v_mul_u32_u24 v55, 3277, v0
v_lshrrev_b32 v55, 16, v55
v_mul_u32_u24 v56, 20, v55
v_sub_u32 v56, v0, v56
v_mul_u32_u24 v57, {RP}, v56
v_lshl_add_u32 v57, v55, 2, v57
v_mov_b32 v58, {11*RP}
v_cmp_ge_u32 vcc, 10, v56
v_cndmask_b32 v57, v58, v57, vcc
v_sub_u32 v59, 20, v56
v_mul_u32_u24 v59, {RP}, v59
v_sub_u32 v61, 31, v55
v_lshl_add_u32 v59, v61, 2, v59
v_cmp_le_u32 vcc, 10, v56
v_cndmask_b32 v59, v58, v59, vcc
v_sub_u32 v61, 32, v55
v_lshlrev_b32 v61, 2, v61
v_cmp_eq_u32 vcc, 0, v56
v_cndmask_b32 v59, v59, v61, vcc
v_cmp_eq_u32 vcc, 0, v0
v_cndmask_b32 v59, v59, v58, vcc
v_cmp_eq_u32 vcc, 320, v0
v_cndmask_b32 v59, v59, v58, vcc
v_mov_b32 v40, 0x3f3504f3
v_min_u32 v62, 10, v50
v_mul_u32_u24 v62, {RP}, v62
v_lshl_add_u32 v62, v51, 4, v62
s_mul_i32 s42, s34, {NP}
v_add_u32 v62, s42, v62
v_and_b32 v63, 1, v2
v_lshlrev_b32 v63, 31, v63
v_or_b32 v63, 1.0, v63
''')
    if LT:
        k('s_waitcnt vmcnt(10)\ns_barrier')
        for i in range(10): k(f'ds_read_b128 {vr(64+4*i,4)}, v3 offset:{TB2+1024*i}')
    k(f'''v_cmp_gt_u32 vcc, 321, v0
s_and_saveexec_b64 s[44:45], vcc
s_waitcnt vmcnt({2 if LT else 12})''')
    k.stamp()
    k(f'''s_cbranch_execz {SKIP}''')
    for k2 in range(8):
        k(f'v_lshlrev_b32 v{20+2*k2}, 16, v{4+k2}\nv_and_b32 v{21+2*k2}, 0xffff0000, v{4+k2}')
    for k2 in range(8):
        if k2 == 0:
            k('v_mov_b32 v4, v20\nv_mov_b32 v5, v21')
        else:
            smul(k, 4 + 2 * k2, 20 + 2 * k2, 16 + 2 * k2, 42 + 2 * (k2 & 1), conj=True)
    T = fft8(k, 4, 20, True, 40)
    for n in range(8):
        k(f'''v_cvt_pk_bf16_f32 v{4+2*n}, v{T[n]}, v{T[n]+1}
v_cvt_pk_bf16_f32 v{5+2*n}, v{T[n]}, -v{T[n]+1}
ds_write_b32 v57, v{4+2*n} offset:{n*NP}
ds_write_b32 v59, v{5+2*n} offset:{n*NP}''')
    k(f'''{SKIP}:
s_mov_b64 exec, -1
s_waitcnt lgkmcnt(0)''')
    k.stamp()
    k(f'''s_barrier''')
    k.stamp()
    k(f'''ds_read_b128 v[4:7], v62
ds_read_b128 v[8:11], v62 offset:64''')
    npf = 0
    if OPT.get('pf2a'):
        npf = 1
        k(f'''s_and_b32 s72, s2, 6
s_lshl_b32 s72, s72, 4
s_lshr_b32 s73, s2, 3
s_add_u32 s72, s72, s73
s_lshl_b32 s72, s72, 3
s_add_u32 s72, s72, s34
s_lshl_b32 s72, s72, 13
s_mov_b32 s70, {2048*4096}
s_mov_b32 s71, 0x00020000
v_lshlrev_b32 v114, 7, v2
buffer_load_ubyte v115, v114, s[68:71], s72 offen''')
    k(f'''s_waitcnt vmcnt({2+npf}) lgkmcnt(1)''')
    for u in range(2):
        if u == 1: k('s_waitcnt lgkmcnt(0)')
        for t in range(2):
            k(f'{MFMA} {vr(12+16*u+8*t,4)}, {vr(4+4*u,4)}, {vr(64+8*t,4)}, 0')
            k(f'{MFMA} {vr(16+16*u+8*t,4)}, {vr(4+4*u,4)}, {vr(68+8*t,4)}, 0')
    for i in range(0, 16, 2):
        k(f'v_pk_fma_f32 {vr(12+i,2)}, {vr(28+i,2)}, v[62:63], {vr(12+i,2)} op_sel:[0,1,0] op_sel_hi:[1,1,1]')
    for t in range(2):
        cmul_planar(k, 12 + 8 * t, 16 + 8 * t, 80 + 8 * t, 84 + 8 * t, 28, 32, 36)
        k(f'''v_cvt_pk_bf16_f32 v{4+4*t}, v28, v29
v_cvt_pk_bf16_f32 v{5+4*t}, v30, v31
v_cvt_pk_bf16_f32 v{6+4*t}, v32, v33
v_cvt_pk_bf16_f32 v{7+4*t}, v34, v35''')
    for v in range(2):
        for t in range(2):
            k(f'{MFMA} {vr(12+8*v+4*t,4)}, {vr(4+4*t,4)}, {vr(96+4*v,4)}, 0')
    k.stamp()
    k(f's_waitcnt vmcnt({npf})')
    k.stamp()
    for i in range(8):
        k(f'v_lshlrev_b32 v{28+2*i}, 16, v{104+i}\nv_and_b32 v{29+2*i}, 0xffff0000, v{104+i}')
    for i in range(8):
        k(f'v_cvt_pk_bf16_f32 v{4+i}, v{12+2*i}, v{13+2*i}')
    for i in range(8):
        k(f'v_lshlrev_b32 v{12+2*i}, 16, v{4+i}\nv_and_b32 v{13+2*i}, 0xffff0000, v{4+i}')
    for i in range(8):
        k(f'v_pk_add_f32 {vr(12+2*i,2)}, {vr(12+2*i,2)}, {vr(28+2*i,2)}')
    for i in range(8):
        k(f'v_cvt_pk_bf16_f32 v{4+i}, v{12+2*i}, v{13+2*i}')
    k('''buffer_store_dwordx4 v[4:7], v52, s[52:55], s35 offen
buffer_store_dwordx4 v[8:11], v53, s[52:55], s35 offen''')
    for i in range(8):
        k(f'v_lshlrev_b32 v{12+2*i}, 16, v{4+i}\nv_and_b32 v{13+2*i}, 0xffff0000, v{4+i}')
    k('''v_pk_add_f32 v[28:29], v[12:13], v[14:15]
v_pk_mul_f32 v[30:31], v[12:13], v[12:13]
v_pk_add_f32 v[32:33], v[16:17], v[18:19]
v_pk_mul_f32 v[34:35], v[14:15], v[14:15]''')
    for i in range(2, 8):
        k(f'v_pk_fma_f32 {vr(30+4*(i&1),2)}, {vr(12+2*i,2)}, {vr(12+2*i,2)}, {vr(30+4*(i&1),2)}')
        if i >= 4:
            k(f'v_pk_add_f32 {vr(28+4*(i&1),2)}, {vr(28+4*(i&1),2)}, {vr(12+2*i,2)}')
    k('''v_pk_add_f32 v[28:29], v[28:29], v[32:33]
v_pk_add_f32 v[30:31], v[30:31], v[34:35]
v_add_f32 v28, v28, v29
v_add_f32 v30, v30, v31''')
    wave_reduce2(k, 28, 30, 36, 37)
    ln_stats(k, 36, 37, 640, 28, 30, 32)
    ln_apply(k, 12, 16, 28, 30, 40)
    k(f'''buffer_store_dwordx4 v[40:43], v112, s[60:63], s59 offen
buffer_store_dwordx4 v[44:47], v113, s[60:63], s59 offen''')
    k.finish(END)
    return k
```

```python
import sys, re
from asmlib import *
from tables import build_tab
import gen_fft, gen3, gen9
opt = dict(npf1=0, sf0=2, lt=1, k1c=1, wd=2, sh=2, k1wp=1, sfu=2, fullt=1, fz=1, fzn=128, pxd=10, pxs=6, g1d=8, g2d=8, g3d=8, p8=1, pp=1, G2R=3, N0=4, NZ=10)
for a in sys.argv[2:]:
    if a == 'prof': Kern.prof = True
    elif '=' in a:
        v = a.split('=')[1]
        opt[a.split('=')[0]] = [int(x) for x in v.split(',')] if ',' in v else int(v)
    else: opt[a] = 1
gen_fft.OPT = opt
gen9.PV = opt.get('pv', 0)
gen9.FS = opt.get('FS', 7)
ks = gen9.build(opt)
for k in ks:
    for j, l in enumerate(k.lines):
        if not l.startswith('buffer_store') or 's[96:99]' in l or 'sc1' in l: continue
        if k.name in ('k0_kernel',): k.lines[j] = l + ' sc1'
        if k.name == 'k1_kernel' and 's[20:23]' in l: k.lines[j] = l + ' sc1'
s = build_file(ks, {'tab': build_tab()})
open(sys.argv[1], 'w').write(s)
print(len(s))
```

```python
from asmlib import *
import gen_fft
from gen_fft import vr, sr, srd_from, tab_srd, MFMA, WS_H, WS_HN, WS_U, WS_T, X_BYTES, TU_BYTES, TP, fft8, smul, cmul_planar, wave_reduce2, ln_stats, ln_apply
from gen3 import *

WS_FL = 0x1800000
FL_BYTES = 0x40000
FLH = 0; FL2 = 0x8000; FL3 = 0x10000; FLU = 0x18000
FS = 7
WS_PX = 0x1840000
PX_BYTES = 64 * 16 * 256
WS_WS = 0x2000000
WSP_BYTES = 8 << 20
Z2N_BYTES = 64 * 57344
A2_BYTES = 4 << 20
SPIN = 400000
PV = 0
ROT = 0
W128 = 0
MF16 = 'v_mfma_f32_16x16x16_bf16'
BIG = '0x7f000000'


def st(k, view, slot):
    if Kern.prof and PV == view:
        k.nst = slot; k.stamp()


def poll(k, srd, soff, va, vd, sc):
    LP = k.label('lp'); LD = k.label('ld')
    k(f'''s_mov_b32 s{sc}, {SPIN}
{LP}:
buffer_load_dword v{vd}, v{va}, {sr(srd,4)}, {soff} offen sc1
s_waitcnt vmcnt(0)
v_cmp_eq_u32 vcc, 0, v{vd}
s_cbranch_vccz {LD}
s_sub_u32 s{sc}, s{sc}, 1
s_cmp_lg_u32 s{sc}, 0
s_cbranch_scc1 {LP}
{LD}:''')


def map_g2(k):
    if gen_fft.OPT.get('g2m'):
        k('''s_and_b32 s35, s2, 7
s_lshl_b32 s35, s35, 2
s_bfe_u32 s36, s2, 0x20003
s_add_u32 s35, s35, s36
s_lshr_b32 s36, s2, 5''')
        return
    k('''s_and_b32 s33, s2, 7
s_lshr_b32 s42, s2, 3
s_lshr_b32 s35, s33, 1
s_lshl_b32 s35, s35, 3
s_and_b32 s36, s42, 7
s_add_u32 s35, s35, s36
s_and_b32 s36, s33, 1
s_lshl_b32 s36, s36, 2
s_lshr_b32 s42, s42, 3
s_add_u32 s36, s36, s42''')


def g1id(k, d, t):
    m = gen_fft.OPT.get('g1m', 0)
    k(f'''s_bfe_u32 s{d}, s2, {hex(((3-m) << 16) | m)}
s_lshl_b32 s{d}, s{d}, {1+m}
s_lshr_b32 s{t}, s2, {7-m}
s_add_u32 s{d}, s{d}, s{t}
s_lshl_b32 s{d}, s{d}, {m}
s_and_b32 s{t}, s2, {(1 << m) - 1}
s_add_u32 s{d}, s{d}, s{t}
s_lshl_b32 s{d}, s{d}, {4-m}
s_bfe_u32 s{t}, s2, {hex(((4-m) << 16) | 3)}
s_add_u32 s{d}, s{d}, s{t}''')


def w_setup(k, t0, t1):
    G2M = gen_fft.OPT.get('g2m', 0)
    k(f'''s_mov_b32 s74, {2048*4096}
s_mov_b32 s75, 0x00020000
s_bfe_u32 s{t0}, s2, {"0x30000" if G2M else "0x20001"}
s_lshl_b32 s{t0}, s{t0}, {2 if G2M else 3}
s_bfe_u32 s{t1}, s2, {"0x20003" if G2M else "0x30003"}
s_add_u32 s{t0}, s{t0}, s{t1}
s_lshl_b32 s50, s{t0}, 15
s_lshr_b32 s{t0}, s34, 2
s_lshl_b32 s{t0}, s{t0}, 11
s_and_b32 s{t1}, s34, 3
s_lshl_b32 s{t1}, s{t1}, 7
s_add_u32 s50, s50, s{t0}
s_add_u32 s50, s50, s{t1}
s_add_u32 s51, s50, 16384''')
    if ROT:
        k(f'''s_bfe_u32 s{t0}, s2, 0x10006
s_lshl_b32 s{t0}, s{t0}, 14
s_add_u32 s50, s50, s{t0}
s_bfe_u32 s{t0}, s2, 0x10007
s_lshl_b32 s{t0}, s{t0}, 22
s_add_u32 s50, s50, s{t0}
s_mov_b32 s51, s50''')
    if W128: k('s_mov_b32 s82, s50\ns_add_u32 s51, s50, 4096')


def w_vaddr(k, d, t):
    if W128:
        k(f'''v_and_b32 v{d}, 112, v3
v_bfe_u32 v{t}, v3, 7, 1
v_lshl_add_u32 v{d}, v{t}, 13, v{d}
v_lshrrev_b32 v{t}, 8, v3
v_lshl_add_u32 v{d}, v{t}, 9, v{d}''')
        return
    k(f'''v_and_b32 v{d}, 48, v3
v_bfe_u32 v{t}, v3, 6, 2
v_lshl_add_u32 v{d}, v{t}, 12, v{d}
v_lshrrev_b32 v{t}, 8, v3
v_lshl_add_u32 v{d}, v{t}, 9, v{d}''')


def g2_wops(fl=''):
    ops = []
    if W128:
        for g in range(4):
            for n in range(4):
                for ih in range(2):
                    o = f'buffer_load_dwordx4 {ar(16*(4*ih+n)+4*g,4)}, @, s[72:75], s{50+ih} offen{fl}'
                    if ih and n < 3: o += '\ns_add_u32 s50, s50, 0x100000\ns_add_u32 s51, s51, 0x100000'
                    if ih and n == 3 and g < 3: o += f'\ns_xor_b32 s50, s82, {((g+1)&1)*16384 + ((g+1)>>1)*(4<<20)}\ns_add_u32 s51, s50, 4096'
                    ops.append(o)
        return ops
    if ROT:
        for g in range(4):
            for n in range(4):
                for hi in range(2):
                    o = f'buffer_load_dwordx4 {ar(16*(4*hi+n)+4*g,4)}, @, s[72:75], s50 offen offset:{64*hi}{fl}'
                    if hi and n < 3: o += '\ns_add_u32 s50, s50, 0x100000'
                    if hi and n == 3 and g < 3: o += f'\ns_xor_b32 s50, s51, {((g+1)&1)*16384 + ((g+1)>>1)*(4<<20)}'
                    ops.append(o)
        return ops
    for n2 in range(8):
        for u in range(2):
            for hi in range(2):
                o = f'buffer_load_dwordx4 {ar(16*(4*hi+(n2&3))+4*(2*(n2>>2)+u),4)}, @, s[72:75], s{50+u} offen offset:{64*hi}{fl}'
                if u and hi and n2 < 7: o += '\ns_add_u32 s50, s50, 0x100000\ns_add_u32 s51, s51, 0x100000'
                ops.append(o)
    return ops


def w_trans(k, vw, vrd, groups=None, ts=42):
    PT = 520
    if (groups is not None and not groups) or gen_fft.OPT.get('nowt'): return
    if W128:
        k(f'''s_and_b32 s{ts}, s34, 3
s_mul_i32 s{ts}, s{ts}, 4160
v_lshrrev_b32 v{vw}, 1, v3
v_add_u32 v{vw}, s{ts}, v{vw}
v_bfe_u32 v{vrd}, v3, 4, 3
v_mul_u32_u24 v{vrd}, {PT-8}, v{vrd}
v_add_u32 v{vrd}, v{vw}, v{vrd}''')
        for tt in range(4):
            if groups is not None and tt not in groups: continue
            for h in range(2):
                R = lambda i: ar(16 * i + 4 * tt + 2 * h, 2)
                for i in range(8): k(f'ds_write_b64 v{vw}, {R(i)} offset:{PT*i}')
                for c in range(8): k(f'ds_read_b64 {R(c)}, v{vrd} offset:{8*c}')
        return
    k(f'''s_mul_i32 s{ts}, s34, 2560
v_lshrrev_b32 v{vw}, 1, v3
v_add_u32 v{vw}, s{ts}, v{vw}
v_bfe_u32 v{vrd}, v3, 4, 2
v_mul_u32_u24 v{vrd}, {PT-8}, v{vrd}
v_add_u32 v{vrd}, v{vw}, v{vrd}''')
    for tt in range(4):
        for hi in range(2):
            if groups is not None and tt not in groups: continue
            for h in range(2):
                R = lambda i: ar(16 * (4 * hi + i) + 4 * tt + 2 * h, 2)
                for i in range(4): k(f'ds_write_b64 v{vw}, {R(i)} offset:{PT*i}')
                for c in range(4): k(f'ds_read_b64 {R(c)}, v{vrd} offset:{8*c}')


def unpk(l):
    m = re.match(r'v_pk_(add|mul)_f32 v\[(\d+):\d+\], v\[(\d+):\d+\], v\[(\d+):\d+\](.*)', l)
    if not m: return [l]
    op, d, a, b, mod = m.group(1), int(m.group(2)), int(m.group(3)), int(m.group(4)), m.group(5).strip()
    if mod == '': return [f'v_{op}_f32 v{d}, v{a}, v{b}', f'v_{op}_f32 v{d+1}, v{a+1}, v{b+1}']
    if mod == 'op_sel:[0,1] op_sel_hi:[1,1]': return [f'v_{op}_f32 v{d}, v{a}, v{b+1}', f'v_{op}_f32 v{d+1}, v{a+1}, v{b+1}']
    raise ValueError(l)


class Fill:
    def __init__(self): self.q = []
    def add(self, pos, f): self.q.append((pos, f))
    def emit(self, k, p, n):
        c = 0
        while self.q and self.q[0][0] <= p and c < n:
            f = self.q.pop(0)[1]
            f() if callable(f) else k(f)
            c += 1
    def flush(self, k): self.emit(k, 10**9, 10**9)


def ph_g2(k, opt, DONE, vm0, fused, post=None, early=None):
    HI = k.label('hi')
    NZ = opt.get('NZ', 14); ZR = 96 - 4 * NZ
    T = 8; S = 24; Z1 = 32
    assert ZR >= 40
    ACC = lambda n, tt: 96 + 16 * (n & 1) + 4 * tt
    SLOT = [0, 1, 2, 3, 4, 0, 1]
    srd_from(k, 8, 40, 41, WS_Z2, Z2N_BYTES)
    k(f'''s_lshl_b32 s56, s36, 3
s_add_u32 s56, s56, s34
s_mul_i32 s56, s56, 57344
v_and_b32 v2, 63, v0''')
    if opt.get('warm'):
        k('v_lshlrev_b32 v4, 7, v2\ns_mov_b32 s42, s56')
        for i in range(7): k('buffer_load_dword v5, v4, s[8:11], s42 offen\ns_add_u32 s42, s42, 8192')
        k('s_waitcnt vmcnt(0)\ns_barrier\ns_sleep 127')
    st(k, 2, 2)
    if opt.get('clkm'): k('s_memtime s[76:77]'); k.clkm = 1
    if opt.get('zpf'):
        k(f'''v_lshrrev_b32 v4, 3, v2
v_and_b32 v5, 7, v2
v_lshlrev_b32 v5, 7, v5
v_lshl_add_u32 v4, v4, 13, v5
s_and_b32 s42, s35, 7
s_lshl_b32 s42, s42, 10
s_add_u32 s42, s42, s56
s_mov_b32 exec_hi, 0x00ffffff
buffer_load_dword v36, v4, s[8:11], s42 offen
s_mov_b32 exec_hi, -1''')
        vm0.issue('pf')

    def zload(q, vm):
        if q >= 56 or opt.get('noz'): return
        if q and q % 4 == 0: k('s_add_u32 s56, s56, 4096')
        if q == 40: k(f's_cmp_eq_u32 s36, 7\ns_cselect_b32 s56, {BIG}, s56')
        k(f'buffer_load_dwordx4 {vr(ZR+4*(q%NZ),4)}, v3, s[8:11], s56 offen offset:{1024*(q%4)}'); vm.issue(f'z{q}')
    N0 = opt.get('N0', NZ)
    for q in range(N0): zload(q, vm0)
    srd_from(k, 12, 40, 41, WS_Z1, A2_BYTES)
    srd_from(k, 16, 40, 41, WS_Z1 if opt.get('ain') else WS_A, A2_BYTES)
    srd_from(k, 24, 24, 25, 0, 4096)
    k(f'''s_and_b32 s37, s34, 3
s_bfe_u32 s43, s2, {"0x20006" if ROT else "0"}
s_xor_b32 s43, s43, s37
s_lshl_b32 s44, s35, 3
s_add_u32 s44, s44, s36
s_lshl_b32 s44, s44, 2
s_add_u32 s44, s44, s43
s_lshl_b32 s44, s44, 12
s_and_b32 s42, s43, 1
s_lshl_b32 s42, s42, 3
s_lshl_b32 s45, s35, 4
s_add_u32 s45, s45, s42
s_and_b32 s42, s43, 2
s_lshl_b32 s42, s42, 10
s_add_u32 s45, s45, s42
v_bfe_u32 v4, v2, 2, 2
v_and_b32 v5, 3, v2
v_lshlrev_b32 v5, 9, v5
v_lshl_add_u32 v4, v4, 1, v5
buffer_load_ushort v1, v4, s[24:27], s45 offen
v_lshlrev_b32 v2, 3, v2
s_lshl_b32 s42, s34, 10
v_add_u32 v4, s42, v3
v_add_u32 v5, 0x10000, v4
v_add_u32 v6, 0x20000, v4
s_lshl_b32 s42, s37, 13
v_add_u32 v7, s42, v3
s_mov_b32 s58, 0xffff0000
s_cmp_eq_u32 s36, 7
s_cselect_b32 s46, {BIG}, s44
s_cselect_b32 s59, 0, -1
s_cmp_ge_u32 s34, 4
s_cbranch_scc1 {HI}''')
    vm0.issue('b')

    def body(hi):
        import copy
        vm = copy.deepcopy(vm0); lg = Cnt('lgkmcnt', 15)
        F = Fill()

        def wr(n, tt):
            a = SLOT[n] * 32768 + tt * 8192
            k(f'ds_write_b128 v{4+a//65536}, {vr(ACC(n,tt),4)} offset:{a%65536}'); lg.issue(f'w{n}')

        def bar(n):
            x = lg.wait(f'w{n}')
            if x: k(x)
            k('s_barrier')

        def unit(tiles, zr, off, so, pos):
            nt = len(tiles)
            ops = []
            for ti, n in enumerate(tiles):
                for b in range(2):
                    base = SLOT[n] * 32768 + 4096 * b
                    if base >= 65536 - 32768 + 8192 and False: pass
                    for i in range(4):
                        def rd(base=base, i=i, n=n, b=b):
                            a = base + 1024 * i
                            k(f'ds_read_b128 {vr(T+4*i,4)}, v{RB[a//65536]} offset:{a%65536}'); lg.issue(f'r{n}_{b}_{i}')
                        ops.append(rd)
                    s = S + 4 * ti
                    def w01(n=n, b=b): k(lg.wait(f'r{n}_{b}_1') or '')
                    def w23(n=n, b=b): k(lg.wait(f'r{n}_{b}_3') or '')
                    ops.append(None); ops.append(None)
                    ops.append(w01)
                    d = s if b == 0 else T
                    ops += [f'v_pk_add_f32 {vr(d,2)}, {vr(T,2)}, {vr(T+4,2)}', f'v_pk_add_f32 {vr(d+2,2)}, {vr(T+2,2)}, {vr(T+6,2)}']
                    if b: ops += [f'v_pk_add_f32 {vr(s,2)}, {vr(s,2)}, {vr(T,2)}', f'v_pk_add_f32 {vr(s+2,2)}, {vr(s+2,2)}, {vr(T+2,2)}']
                    ops.append(w23)
                    ops += [f'v_pk_add_f32 {vr(T+8,2)}, {vr(T+8,2)}, {vr(T+12,2)}', f'v_pk_add_f32 {vr(T+10,2)}, {vr(T+10,2)}, {vr(T+14,2)}',
                            f'v_pk_add_f32 {vr(s,2)}, {vr(s,2)}, {vr(T+8,2)}', f'v_pk_add_f32 {vr(s+2,2)}, {vr(s+2,2)}, {vr(T+10,2)}']
            h = 2 * nt
            ops += [f'v_cvt_pk_bf16_f32 v{T+i}, v{S+2*i}, v{S+2*i+1}' for i in range(h)]
            ops += [f'v_lshlrev_b32 v{S+2*i}, 16, v{T+i}\nv_and_b32 v{S+2*i+1}, s58, v{T+i}' for i in range(h)]
            ops.append(lambda: k(vm.wait(f'y{off}') or ''))
            ops += [f'v_pk_add_f32 {vr(S+2*i,2)}, {vr(S+2*i,2)}, v[0:1] op_sel:[0,1] op_sel_hi:[1,1]' for i in range(h)]
            ops += [f'v_lshlrev_b32 v{T+8+2*i}, 16, v{zr+i}\nv_and_b32 v{T+9+2*i}, s58, v{zr+i}' for i in range(h)]
            ops += [f'v_cvt_pk_bf16_f32 v{T+i}, v{S+2*i}, v{S+2*i+1}' for i in range(h)]
            ops += [f'v_lshlrev_b32 v{S+2*i}, 16, v{T+i}\nv_and_b32 v{S+2*i+1}, s58, v{T+i}' for i in range(h)]
            ops += [f'v_pk_mul_f32 {vr(S+2*i,2)}, {vr(S+2*i,2)}, {vr(T+8+2*i,2)}' for i in range(h)]
            ops += [f'v_cvt_pk_bf16_f32 v{zr+i}, v{S+2*i}, v{S+2*i+1}' for i in range(h)]

            if tiles == [4, 5]: ops += [f'v_and_b32 v{zr+2}, s59, v{zr+2}', f'v_and_b32 v{zr+3}, s59, v{zr+3}']

            def sto():
                if nt == 2: k(f'buffer_store_dwordx4 {vr(zr,4)}, v3, s[16:19], {so} offen offset:{off} sc1')
                else: k(f'buffer_store_dwordx2 {vr(zr,2)}, v2, s[16:19], {so} offen offset:{off} sc1')
                vm.issue('s')
            ops.append(sto)
            out = []
            for o in ops:
                if o is None: out.append('')
                elif callable(o): out.append(o)
                else:
                    for l in o.split('\n'): out += unpk(l) if opt.get('upk', 1) else [l]
            return out

        def z1load(zr, off, so, nt):
            if nt == 2: k(f'buffer_load_dwordx4 {vr(zr,4)}, v3, s[12:15], {so} offen offset:{off}')
            else: k(f'buffer_load_dwordx2 {vr(zr,2)}, v2, s[12:15], {so} offen offset:{off}')
            vm.issue(f'y{off}')
        RB = [7, 38, 39]
        k('v_add_u32 v38, 0x10000, v7\nv_add_u32 v39, 0x20000, v7')
        ev = {}
        def at(p, f): ev.setdefault(p, []).append(f)
        for n in range(6):
            for tt in range(4): at(32 * (n + 1) + 3 + 2 * tt, lambda n=n, tt=tt: wr(n, tt))
        BP = opt.get('G2B', 16)
        at(64 + BP, lambda: bar(1)); at(128 + BP, lambda: bar(3)); at(192 + BP, lambda: bar(5))
        if opt.get('pp'):
            bs = [-1, 64 + BP, 128 + BP, 192 + BP, 224]
            k('s_setprio 3')
            for a, b in zip(bs[:-1], bs[1:]):
                for i in range(4):
                    pp = a + (b - a) * i // 4
                    if pp >= 0: at(pp, lambda i=i: k(f's_setprio {3-i}'))
        at(40, lambda: k((vm.wait('b') or '') + '\nv_lshlrev_b32 v1, 16, v1'))
        fq = []
        if not hi:
            at(33, lambda: z1load(Z1, 0, 's44', 2))
            at(160, lambda: z1load(Z1, 2048, 's44', 2))
            fq.append((64 + BP + 1, lambda: unit([0, 1], Z1, 0, 's44', 0)))
            fq.append((192 + BP + 1, lambda: unit([4, 5], Z1, 2048, 's44', 0)))
        else:
            at(97, lambda: z1load(Z1, 1024, 's44', 2))
            at(190, lambda: z1load(Z1 + 4, 3072, 's46', 1))
            fq.append((128 + BP + 1, lambda: unit([2, 3], Z1, 1024, 's44', 0)))
        if post:
            po = list(post)
            def pw(n):
                for _ in range(n):
                    if po: k(po.pop(0)); vm.issue('o')
            for j in range(1, 8):
                for tt in range(4): at(192 + 4 * j + tt, lambda: pw(1))
        R = opt.get('G2R', 3)
        cur = []
        p = 0
        nq = [N0]
        for n in range(7):
            if n in (1, 3, 5): st(k, 2, 3 + n // 2)
            for j in range(8):
                q = 8 * n + j
                x = vm.wait(f'z{q}')
                if x: k(x)
                if q == 0:
                    x = vm.wait('w')
                    if x: k(x)
                for tt in range(4):
                    acc = vr(ACC(n, tt), 4)
                    k(f'{MFMA} {acc}, {vr(ZR+4*(q%NZ),4)}, {ar(16*j+4*tt,4)}, {"0" if j == 0 else acc}')
                    if tt in (1, 3) and nq[0] < q + NZ + (tt == 3): zload(nq[0], vm); nq[0] += 1
                    for f in ev.get(p, []): f()
                    if fq and fq[0][0] <= p: cur += fq.pop(0)[1]()
                    for _ in range(R):
                        if cur:
                            o = cur.pop(0)
                            o() if callable(o) else k(o)
                    p += 1
        if opt.get('clkm'): k('s_memtime s[78:79]')
        st(k, 2, 6)
        EP = opt.get('g3e', 0)
        if early and EP == 0:
            for o in early: k(o); vm.issue('e')
        for tt in range(4): wr(6, tt)
        if early and EP == 1:
            for o in early: k(o); vm.issue('e')
        bar(6)
        if early and EP == 2:
            for o in early: k(o); vm.issue('e')
        st(k, 2, 7)
        if hi: cur = unit([6], Z1 + 4, 3072, 's46', 0)
        for o in cur: o() if callable(o) else k(o)
        st(k, 2, 8); st(k, 0, 7)
        k('s_setprio 0')
        k(f's_branch {DONE}')
        return len(vm.tags) - 1 - max([i for i, t in enumerate(vm.tags) if t == 'e'] + [-1])
    n0 = body(False)
    k(f'{HI}:')
    n1 = body(True)
    return min(n0, n1)


def gen_g2(opt):
    k = Kern('k3_kernel', 256, 512, 163840, nvgpr=128, nagpr=128)
    END = k.label('end')
    k(f'''s_cmp_ge_u32 s2, 256
s_cbranch_scc1 {END}
s_load_dwordx2 s[40:41], s[0:1], 80
s_load_dwordx2 s[24:25], s[0:1], 48
s_load_dwordx2 s[72:73], s[0:1], 40''')
    k.stamp(True)
    map_g2(k)
    k(f'''v_lshrrev_b32 v1, 6, v0
v_and_b32 v2, 63, v0
v_readfirstlane_b32 s34, v1
v_lshlrev_b32 v3, 4, v2''')
    w_vaddr(k, 4, 5)
    w_setup(k, 42, 43)
    k('s_waitcnt lgkmcnt(0)')
    vm = Cnt('vmcnt', 63)
    wb = Bulk(k, g2_wops())
    wb(32, vm, 4)
    k('s_waitcnt vmcnt(0)')
    w_trans(k, 4, 5)
    k('s_waitcnt lgkmcnt(0)\ns_barrier')
    st(k, 2, 1)
    ph_g2(k, opt, END, vm, False)
    k.finish(END)
    return k


WOB = 17920
WO8_BYTES = 64 * WOB


def gen_prep8(k, base_wg, END, nwv=5):
    WO = k.label('wo'); J = k.label('j'); WO2 = k.label('wo2'); SG = k.label('sg')
    k(f'''s_load_dwordx2 s[4:5], s[0:1], 32
s_load_dwordx2 s[8:9], s[0:1], 56
v_lshrrev_b32 v1, 6, v0
v_and_b32 v2, 63, v0
v_readfirstlane_b32 s35, v1
s_sub_u32 s33, s2, {base_wg}
s_mul_i32 s33, s33, {nwv}
s_add_u32 s33, s33, s35
v_and_b32 v4, 15, v2
v_lshrrev_b32 v5, 4, v2
v_lshlrev_b32 v3, 4, v2
s_lshl_b32 s47, s35, 13
s_cmp_ge_u32 s35, {nwv}
s_cbranch_scc1 {END}
s_cmp_ge_u32 s33, 440
s_cbranch_scc1 {END}
s_waitcnt lgkmcnt(0)''')
    srd_from(k, 16, 40, 41, WS_WI, WS_WO - WS_WI + WO8_BYTES)
    k(f'''s_mov_b32 s23, 0x00020000
s_cmp_ge_u32 s33, 280
s_cbranch_scc1 {WO}
s_mul_i32 s51, s33, 4682
s_lshr_b32 s51, s51, 16
s_mul_i32 s52, s51, 14
s_sub_u32 s52, s33, s52
s_movk_i32 s50, 3456
s_lshl_b32 s53, s51, 5
s_mov_b32 s57, 8
s_mov_b32 s58, 4
s_mov_b64 s[20:21], s[4:5]
s_mov_b32 s22, {640*3456}
s_branch {J}
{WO}:
s_sub_u32 s34, s33, 280
s_mul_i32 s51, s34, 13108
s_lshr_b32 s51, s51, 16
s_mul_i32 s52, s51, 5
s_sub_u32 s52, s34, s52
s_movk_i32 s50, 1280
s_lshr_b32 s54, s51, 2
s_and_b32 s55, s51, 3
s_mul_i32 s53, s54, 112
s_lshl_b32 s42, s55, 5
s_add_u32 s53, s53, s42
s_mov_b32 s57, 4
s_mov_b32 s58, 16
s_mov_b64 s[20:21], s[8:9]
s_mov_b32 s22, {864*1280}
{J}:
v_mul_u32_u24 v6, s50, v5
v_lshl_add_u32 v6, v4, 4, v6
s_mul_i32 s42, s53, s50
s_lshl_b32 s43, s52, 8
s_add_u32 s42, s42, s43
v_add_u32 v6, s42, v6
s_lshl_b32 s43, s50, 2''')
    for i in range(8):
        k(f's_add_u32 m0, s47, {1024*i}')
        k(f'buffer_load_dwordx4 v6, s[20:23], 0 offen lds')
        if i < 7: k(f'v_add_u32 v6, s43, v6')
    k(f'''v_mul_u32_u24 v6, s57, v5
v_lshrrev_b32 v7, 2, v4
v_add_u32 v6, v6, v7
v_and_b32 v7, 3, v4
v_lshlrev_b32 v7, 3, v7
v_lshl_add_u32 v6, v6, 8, v7
v_add_u32 v6, s47, v6
s_lshl_b32 s42, s58, 8
v_add_u32 v7, s42, v6
v_lshlrev_b32 v8, 3, v2
s_waitcnt vmcnt(0)''')
    prep_tail(k, END, WO2, SG)


def prep_tail(k, END, WO2, SG):
    PADW = gen_fft.OPT.get('padw', 0); NL = '\n'
    for i in range(8):
        k(f'ds_read_b64_tr_b16 {vr(16+4*i,2)}, v6 offset:{32*i}')
        k(f'ds_read_b64_tr_b16 {vr(18+4*i,2)}, v7 offset:{32*i}')
    k(f's_cmp_ge_u32 s33, 280\ns_cbranch_scc1 {WO2}')
    for i in range(8):
        k(f'''s_lshl_b32 s42, s52, 3
s_add_u32 s42, s42, {i}
s_add_u32 s43, s42, 2
s_cmp_ge_u32 s42, 54
s_cselect_b32 s43, s43, s42
s_cselect_b32 s46, 0, 1
{f"s_cmp_ge_u32 s42, 110{NL}s_cselect_b32 s43, {48+i}, s43{NL}s_cselect_b32 s46, 1, s46" if PADW and i >= 6 else ""}
s_mul_i32 s44, s43, 9363
s_lshr_b32 s44, s44, 16
s_mul_i32 s45, s44, 7
s_sub_u32 s43, s43, s45
s_and_b32 s44, s44, 7
s_lshl_b32 s44, s44, 1
s_lshr_b32 s45, s43, 2
s_xor_b32 s45, s45, s46
s_add_u32 s44, s44, s45
s_mul_i32 s44, s44, 140
s_add_u32 s43, s43, s44
s_mul_i32 s44, s51, 7
s_add_u32 s43, s43, s44
s_lshl_b32 s43, s43, 10
{"" if PADW else f"s_cmp_lt_u32 s42, 108{NL}s_cselect_b32 s43, s43, {BIG}"}
s_waitcnt lgkmcnt({14-2*i})
buffer_store_dwordx4 {vr(16+4*i,4)}, v3, s[16:19], s43 offen''')
    k(f'''s_branch {END}
{WO2}:
s_mul_i32 s56, s54, {WOB}
s_add_u32 s56, s56, {WS_WO-WS_WI}
s_mul_i32 s42, s55, 5120
s_add_u32 s56, s56, s42
s_cmp_lt_u32 s53, 864
s_cselect_b32 s59, -1, 0
s_cmp_lt_u32 s53, 848
s_cselect_b32 s60, -1, 0
s_cmp_eq_u32 s55, 3
s_cbranch_scc1 {SG}''')
    for sg in range(2):
        for i in range(8):
            k(f'''s_lshl_b32 s42, s52, 3
s_add_u32 s42, s42, {i}
s_mul_i32 s44, s42, 13108
s_lshr_b32 s44, s44, 16
s_mul_i32 s45, s44, 5
s_sub_u32 s43, s42, s45
s_mul_i32 s44, s44, {8*WOB}
s_lshl_b32 s43, s43, {9 if sg else 10}
s_add_u32 s43, s43, s44
s_add_u32 s43, s43, s56
s_waitcnt lgkmcnt({14-2*i})''')
            for j in range(2 if sg else 4): k(f'v_and_b32 v{16+4*i+j}, s{59+j//2}, v{16+4*i+j}')
            if sg: k(f'buffer_store_dwordx2 {vr(16+4*i,2)}, v8, s[16:19], s43 offen')
            else: k(f'buffer_store_dwordx4 {vr(16+4*i,4)}, v3, s[16:19], s43 offen')
        k(f's_branch {END}')
        if sg == 0: k(f'{SG}:')


def prep_inl(k, part, LB, END, nv=0):
    WO = k.label('wo'); J = k.label('j'); WO2 = k.label('wo2'); SG = k.label('sg')
    txt = f"""s_lshl_b32 s33, s2, 1
s_add_u32 s33, s33, s34
s_sub_u32 s33, s33, 6
s_sub_u32 s47, s34, 6
s_lshl_b32 s47, s47, 13
s_add_u32 s47, s47, {LB}
v_and_b32 v4, 15, v2
v_lshrrev_b32 v5, 4, v2
s_mov_b32 s23, 0x00020000
s_cmp_ge_u32 s33, 280
s_cbranch_scc1 {WO}
s_mul_i32 s51, s33, 4682
s_lshr_b32 s51, s51, 16
s_mul_i32 s52, s51, 14
s_sub_u32 s52, s33, s52
s_movk_i32 s50, 3456
s_lshl_b32 s53, s51, 5
s_mov_b32 s57, 8
s_mov_b32 s58, 4
s_mov_b64 s[20:21], s[62:63]
s_mov_b32 s22, {640*3456}
s_branch {J}
{WO}:
s_sub_u32 s35, s33, 280
s_mul_i32 s51, s35, 13108
s_lshr_b32 s51, s51, 16
s_mul_i32 s52, s51, 5
s_sub_u32 s52, s35, s52
s_movk_i32 s50, 1280
s_lshr_b32 s54, s51, 2
s_and_b32 s55, s51, 3
s_mul_i32 s53, s54, 112
s_lshl_b32 s42, s55, 5
s_add_u32 s53, s53, s42
s_mov_b32 s57, 4
s_mov_b32 s58, 16
s_mov_b64 s[20:21], s[64:65]
s_mov_b32 s22, {864*1280}
{J}:
"""
    if part == 'A':
        txt += """v_mul_u32_u24 v6, s50, v5
v_lshl_add_u32 v6, v4, 4, v6
s_mul_i32 s42, s53, s50
s_lshl_b32 s43, s52, 8
s_add_u32 s42, s42, s43
v_add_u32 v6, s42, v6
s_lshl_b32 s43, s50, 2
"""
        for i in range(8):
            txt += f's_add_u32 m0, s47, {1024*i}\nbuffer_load_dwordx4 v6, s[20:23], 0 offen lds\n'
            if i < 7: txt += 'v_add_u32 v6, s43, v6\n'
        mp = dict(s33='s16', s35='s17', s42='s18', s43='s19', s47='s24', s50='s25', s51='s26', s52='s27', s53='s28', s54='s29', s55='s30', s57='s31', s58='s31', v4='v104', v5='v105', v6='v106')
        txt = re.sub(r'\b([sv]\d+)\b', lambda m: mp.get(m.group(1), m.group(1)), txt)
        k(txt)
        return
    k(txt)
    k(f's_cmp_ge_u32 s33, 440\ns_cbranch_scc1 {END}')
    srd_from(k, 16, 40, 41, WS_WI, WS_WO - WS_WI + WO8_BYTES)
    k(f"""v_mul_u32_u24 v6, s57, v5
v_lshrrev_b32 v7, 2, v4
v_add_u32 v6, v6, v7
v_and_b32 v7, 3, v4
v_lshlrev_b32 v7, 3, v7
v_lshl_add_u32 v6, v6, 8, v7
v_add_u32 v6, s47, v6
s_lshl_b32 s42, s58, 8
v_add_u32 v7, s42, v6
v_lshlrev_b32 v8, 3, v2
s_waitcnt vmcnt({nv})""")
    prep_tail(k, END, WO2, SG)


BB = 20480


def gelu_pk(k, pk, n, x, p, out, vc, tr=False, sc=False):
    for i in range(0, n, 2):
        k(f'v_lshlrev_b32 v{x+i}, 16, v{pk+i//2}\nv_and_b32 v{x+i+1}, 0xffff0000, v{pk+i//2}')
    if sc:
        for i in range(n): k(f'v_mul_f32 v{p+i}, v{x+i}, v{x+i}')
        for i in range(n): k(f'v_fma_f32 v{p+i}, v{p+i}, v{vc}, v{vc+1}')
        for i in range(n): k(f'v_mul_f32 v{p+i}, v{p+i}, v{x+i}')
    else:
        for i in range(0, n, 2):
            k(f'v_pk_mul_f32 {vr(p+i,2)}, {vr(x+i,2)}, {vr(x+i,2)}')
        for i in range(0, n, 2):
            k(f'v_pk_fma_f32 {vr(p+i,2)}, {vr(p+i,2)}, {vr(vc,2)}, {vr(vc,2)} op_sel:[0,0,1] op_sel_hi:[1,0,1]')
        for i in range(0, n, 2):
            k(f'v_pk_mul_f32 {vr(p+i,2)}, {vr(p+i,2)}, {vr(x+i,2)}')
    for i in range(n):
        k(f'v_exp_f32 v{p+i}, v{p+i}')
    if sc:
        for i in range(n): k(f'v_add_f32 v{p+i}, 1.0, v{p+i}')
    else:
        for i in range(0, n, 2):
            k(f'v_pk_add_f32 {vr(p+i,2)}, {vr(p+i,2)}, 1.0 op_sel_hi:[1,0]')
    for i in range(n):
        k(f'v_rcp_f32 v{p+i}, v{p+i}')
    if sc:
        for i in range(n): k(f'v_mul_f32 v{p+i}, v{p+i}, v{x+i}')
    else:
        for i in range(0, n, 2):
            k(f'v_pk_mul_f32 {vr(p+i,2)}, {vr(p+i,2)}, {vr(x+i,2)}')
    for i in range(0, n, 2):
        if tr:
            a = [0, 4, 1, 5][i // 2]
            k(f'v_cvt_pk_bf16_f32 v{out+i//2}, v{p+a}, v{p+a+2}')
        else: k(f'v_cvt_pk_bf16_f32 v{out+i//2}, v{p+i}, v{p+i+1}')


class Bulk:
    def __init__(self, k, ops): self.k = k; self.ops = list(ops)
    def copy(self): return Bulk(self.k, self.ops)
    def __call__(self, n, vm, va, tag='w'):
        for _ in range(n):
            if not self.ops: return
            self.k(self.ops.pop(0).replace('@', f'v{va}'))
            if vm is not None: vm.issue(tag)


def weave_in(k, i0, q, n, vm, va, tag='q'):
    body = k.lines[i0:]
    ok = []; full = True
    for i, l in enumerate(body):
        if l.startswith('s_mov_b64 exec, -1'): full = True
        elif 'exec' in l.split(',')[0] or 'saveexec' in l: full = False
        if full and l.startswith(('v_', 'ds_')) and not l.startswith('v_cmp') and 'vcc' not in l: ok.append(i)
    n = min(n, len(q.ops))
    if not n: return
    pos = {}
    for j in range(n):
        p = ok[(j * len(ok)) // n]
        pos[p] = pos.get(p, 0) + 1
    del k.lines[i0:]
    for i, l in enumerate(body):
        if i in pos: q(pos[i], vm, va, tag)
        k.lines.append(l)


def flag(k, srd, soff):
    k(f'''s_mov_b64 exec, 1
v_mov_b32 v8, 1
v_mov_b32 v9, 0
buffer_store_dword v8, v9, {sr(srd,4)}, {soff} offen sc1
s_mov_b64 exec, -1''')


def ph_k2a(k, opt, wb):
    RP = 144; NP = 11 * RP + 16
    TB2 = 0
    SKIP = k.label('skip')
    vm = Cnt('vmcnt', 63)
    k(f'''s_load_dwordx2 s[4:5], s[0:1], 0
s_load_dwordx2 s[40:41], s[0:1], 80
s_load_dwordx2 s[72:73], s[0:1], 40
s_load_dwordx2 s[80:81], s[0:1], 64''')
    tab_srd(k, 12)
    k(f'''s_and_b32 s3, s2, 7
s_lshl_b32 s3, s3, 5
s_lshr_b32 s33, s2, 3
s_add_u32 s3, s3, s33
s_lshl_b32 s33, s3, 6
s_add_u32 s33, s33, 32768
s_load_dwordx16 s[16:31], s[12:13], s33
v_lshrrev_b32 v1, 6, v0
v_and_b32 v2, 63, v0
v_readfirstlane_b32 s34, v1
v_lshlrev_b32 v3, 4, v2
s_movk_i32 s38, 0x4000
s_lshl_b32 s39, s34, 11
s_add_u32 m0, s39, {TB2}
s_add_u32 s38, s38, s39
s_cmp_lt_u32 s34, 5
s_cselect_b32 s38, s38, {BIG}
buffer_load_dwordx4 v3, s[12:15], s38 offen lds
buffer_load_dwordx4 v3, s[12:15], s38 offen offset:1024 lds''')
    vm.issue('t'); vm.issue('t')
    k(f'''s_mul_i32 s46, s3, {8*TP}
s_add_u32 s47, s46, {3*TP}
s_add_u32 s48, s46, {6*TP}
v_lshlrev_b32 v60, 2, v0
s_lshl_b32 s35, s34, 8
s_add_u32 s35, s35, s3
s_mul_i32 s35, s35, 1280
v_and_b32 v50, 15, v2
v_lshrrev_b32 v51, 4, v2
v_lshlrev_b32 v52, 6, v50
v_lshl_add_u32 v52, v51, 4, v52
v_add_u32 v53, 1024, v52
v_mov_b32 v54, 0x7fffffff
v_cmp_gt_u32 vcc, 4, v50
v_cndmask_b32 v53, v54, v53, vcc''')
    k(f'''s_mul_i32 s59, s34, {NP}
v_add_u32 v112, s59, v52
v_and_b32 v113, 3, v2
v_mul_u32_u24 v113, {NP}, v113
v_lshrrev_b32 v114, 2, v2
v_lshl_add_u32 v113, v114, 4, v113
s_cmp_ge_u32 s34, 5
s_cselect_b32 s59, {4*NP-5*256}, 0
s_lshl_b32 s60, s34, 8
s_add_u32 s59, s59, s60
v_add_u32 v113, s59, v113
s_mul_i32 s59, s3, 10240
s_lshl_b32 s60, s34, 10
s_add_u32 s59, s59, s60
s_add_u32 s49, s59, 8192
s_cmp_lt_u32 s34, 2
s_cselect_b32 s49, s49, {BIG}''')
    k(f'''s_and_b32 s58, s3, 15
s_mul_i32 s58, s58, {140*1024}
s_mul_i32 s57, s34, {18*1024}
s_min_u32 s57, s57, {122*1024}
s_add_u32 s56, s57, {BB}
s_add_u32 s57, s57, s58
s_waitcnt lgkmcnt(0)''')
    srd_from(k, 4, 4, 5, 0, X_BYTES)
    srd_from(k, 8, 40, 41, WS_U, TU_BYTES)
    for k2 in range(8):
        k(f'buffer_load_dword v{4+k2}, v60, s[8:11], s{46+k2//3} offen offset:{(k2%3)*TP+4*(k2&1)*(opt.get("sh",0)>0)}')
        vm.issue('u')
    k(f'''buffer_load_dwordx4 v[104:107], v52, s[4:7], s35 offen
buffer_load_dwordx4 v[108:111], v53, s[4:7], s35 offen''')
    vm.issue('x'); vm.issue('x')
    srd_from(k, 52, 40, 41, WS_H, X_BYTES)
    srd_from(k, 60, 40, 41, WS_HN, X_BYTES)
    srd_from(k, 64, 40, 41, WS_WI, WI_BYTES)
    if wb:
        w_setup(k, 42, 43); w_vaddr(k, 114, 115)
    if opt.get('ub'): k('s_barrier')
    bq = [] if opt.get('nob') else list(range(18))
    BP = opt.get('BP', [10, 8, 0, 0, 0, 0])
    assert sum(BP) >= 18

    def bulk(i):
        for _ in range(BP[i]):
            if bq:
                i = bq.pop(0)
                if i % 4 == 0:
                    k(f's_add_u32 m0, s56, {1024*i}')
                    if i: k('s_add_u32 s57, s57, 4096')
                k(f'buffer_load_dwordx4 v3, s[64:67], s57 offen offset:{1024*(i%4)} lds'); vm.issue('b')
            elif wb: wb(1, vm, 114)
    bulk(0)
    k(f'''v_mul_u32_u24 v55, 3277, v0
v_lshrrev_b32 v55, 16, v55
v_mul_u32_u24 v56, 20, v55
v_sub_u32 v56, v0, v56
v_mul_u32_u24 v57, {RP}, v56
v_lshl_add_u32 v57, v55, 2, v57
v_mov_b32 v58, {11*RP}
v_cmp_ge_u32 vcc, 10, v56
v_cndmask_b32 v57, v58, v57, vcc
v_sub_u32 v59, 20, v56
v_mul_u32_u24 v59, {RP}, v59
v_sub_u32 v61, 31, v55
v_lshl_add_u32 v59, v61, 2, v59
v_cmp_le_u32 vcc, 10, v56
v_cndmask_b32 v59, v58, v59, vcc
v_sub_u32 v61, 32, v55
v_lshlrev_b32 v61, 2, v61
v_cmp_eq_u32 vcc, 0, v56
v_cndmask_b32 v59, v59, v61, vcc
v_cmp_eq_u32 vcc, 0, v0
v_cndmask_b32 v59, v59, v58, vcc
v_cmp_eq_u32 vcc, 320, v0
v_cndmask_b32 v59, v59, v58, vcc
v_mov_b32 v40, 0x3f3504f3
v_min_u32 v62, 10, v50
v_mul_u32_u24 v62, {RP}, v62
v_lshl_add_u32 v62, v51, 4, v62
s_mul_i32 s42, s34, {NP}
v_add_u32 v62, s42, v62
v_and_b32 v63, 1, v2
v_lshlrev_b32 v63, 31, v63
v_or_b32 v63, 1.0, v63
''')
    k(vm.wait('t')); k('s_barrier')
    for i in range(10): k(f'ds_read_b128 {vr(64+4*i,4)}, v3 offset:{TB2+1024*i}')
    bulk(1)
    k('s_waitcnt lgkmcnt(0)\ns_barrier')
    k(f'''v_cmp_gt_u32 vcc, 321, v0
s_and_saveexec_b64 s[44:45], vcc''')
    k(vm.wait('u'))
    st(k, 1, 1); st(k, 0, 1)
    k(f'''s_cbranch_execz {SKIP}''')
    for k2 in range(8):
        k(f'v_lshlrev_b32 v{20+2*k2}, 16, v{4+k2}\nv_and_b32 v{21+2*k2}, 0xffff0000, v{4+k2}')
    for k2 in range(8):
        if k2 == 0:
            k('v_mov_b32 v4, v20\nv_mov_b32 v5, v21')
        else:
            smul(k, 4 + 2 * k2, 20 + 2 * k2, 16 + 2 * k2, 42 + 2 * (k2 & 1), conj=True)
    T = fft8(k, 4, 20, True, 40)
    for n in range(8):
        k(f'''v_cvt_pk_bf16_f32 v{4+2*n}, v{T[n]}, v{T[n]+1}
v_cvt_pk_bf16_f32 v{5+2*n}, v{T[n]}, -v{T[n]+1}
ds_write_b32 v57, v{4+2*n} offset:{n*NP}
ds_write_b32 v59, v{5+2*n} offset:{n*NP}''')
    k(f'''{SKIP}:
s_mov_b64 exec, -1''')
    bulk(2)
    k(f'''s_waitcnt lgkmcnt(0)
s_barrier
ds_read_b128 v[4:7], v62
ds_read_b128 v[8:11], v62 offset:64''')
    bulk(3)
    k(f'''s_waitcnt lgkmcnt(1)''')
    for u in range(2):
        if u == 1: k('s_waitcnt lgkmcnt(0)')
        for t in range(2):
            k(f'{MFMA} {vr(12+16*u+8*t,4)}, {vr(4+4*u,4)}, {vr(64+8*t,4)}, 0')
            k(f'{MFMA} {vr(16+16*u+8*t,4)}, {vr(4+4*u,4)}, {vr(68+8*t,4)}, 0')
    bulk(4)
    for i in range(0, 16, 2):
        k(f'v_pk_fma_f32 {vr(12+i,2)}, {vr(28+i,2)}, v[62:63], {vr(12+i,2)} op_sel:[0,1,0] op_sel_hi:[1,1,1]')
    for t in range(2):
        cmul_planar(k, 12 + 8 * t, 16 + 8 * t, 80 + 8 * t, 84 + 8 * t, 28, 32, 36)
        k(f'''v_cvt_pk_bf16_f32 v{4+4*t}, v28, v29
v_cvt_pk_bf16_f32 v{5+4*t}, v30, v31
v_cvt_pk_bf16_f32 v{6+4*t}, v32, v33
v_cvt_pk_bf16_f32 v{7+4*t}, v34, v35''')
    for v in range(2):
        for t in range(2):
            k(f'{MFMA} {vr(12+8*v+4*t,4)}, {vr(4+4*t,4)}, {vr(96+4*v,4)}, 0')
    bulk(5)
    k(vm.wait('x'))
    for i in range(8):
        k(f'v_lshlrev_b32 v{28+2*i}, 16, v{104+i}\nv_and_b32 v{29+2*i}, 0xffff0000, v{104+i}')
    for i in range(8):
        k(f'v_cvt_pk_bf16_f32 v{4+i}, v{12+2*i}, v{13+2*i}')
    for i in range(8):
        k(f'v_lshlrev_b32 v{12+2*i}, 16, v{4+i}\nv_and_b32 v{13+2*i}, 0xffff0000, v{4+i}')
    for i in range(8):
        k(f'v_pk_add_f32 {vr(12+2*i,2)}, {vr(12+2*i,2)}, {vr(28+2*i,2)}')
    for i in range(8):
        k(f'v_cvt_pk_bf16_f32 v{4+i}, v{12+2*i}, v{13+2*i}')
    k('''buffer_store_dwordx4 v[4:7], v52, s[52:55], s35 offen sc1
buffer_store_dwordx4 v[8:11], v53, s[52:55], s35 offen sc1''')
    for i in range(8):
        k(f'v_lshlrev_b32 v{12+2*i}, 16, v{4+i}\nv_and_b32 v{13+2*i}, 0xffff0000, v{4+i}')
    k('''v_pk_add_f32 v[28:29], v[12:13], v[14:15]
v_pk_mul_f32 v[30:31], v[12:13], v[12:13]
v_pk_add_f32 v[32:33], v[16:17], v[18:19]
v_pk_mul_f32 v[34:35], v[14:15], v[14:15]''')
    for i in range(2, 8):
        k(f'v_pk_fma_f32 {vr(30+4*(i&1),2)}, {vr(12+2*i,2)}, {vr(12+2*i,2)}, {vr(30+4*(i&1),2)}')
        if i >= 4:
            k(f'v_pk_add_f32 {vr(28+4*(i&1),2)}, {vr(28+4*(i&1),2)}, {vr(12+2*i,2)}')
    k('''v_pk_add_f32 v[28:29], v[28:29], v[32:33]
v_pk_add_f32 v[30:31], v[30:31], v[34:35]
v_add_f32 v28, v28, v29
v_add_f32 v30, v30, v31''')
    wave_reduce2(k, 28, 30, 36, 37)
    ln_stats(k, 36, 37, 640, 28, 30, 32)
    ln_apply(k, 12, 16, 28, 30, 40)
    srd_from(k, 68, 40, 41, WS_FL, FL_BYTES)
    k(f'''ds_write_b128 v112, v[40:43]
s_mov_b32 exec_lo, 0x000f000f
s_mov_b32 exec_hi, 0x000f000f
ds_write_b128 v112, v[44:47] offset:1024
s_mov_b64 exec, -1
s_waitcnt lgkmcnt(0)
s_barrier
ds_read_b128 v[40:43], v113
ds_read_b128 v[44:47], v113 offset:{4*NP+3*256}
s_waitcnt lgkmcnt(1)
buffer_store_dwordx4 v[40:43], v3, s[60:63], s59 offen sc1
s_waitcnt lgkmcnt(0)
buffer_store_dwordx4 v[44:47], v3, s[60:63], s49 offen sc1''')
    st(k, 1, 2); st(k, 0, 2)


def ph_k12(k, opt, wb):
    P = 1040; W0 = 16 * P; TB1 = 32 * P; TB2 = TB1 + 8192
    RP = 144; NP = 11 * RP + 16
    IDLE = k.label('idle'); JOIN = k.label('join'); SKIP = k.label('skip')
    vm = Cnt('vmcnt', 63)
    k(f"""s_load_dwordx4 s[4:7], s[0:1], 8
s_load_dwordx2 s[40:41], s[0:1], 80
s_load_dwordx2 s[72:73], s[0:1], 40
s_load_dwordx2 s[80:81], s[0:1], 64""")
    tab_srd(k, 12)
    k(f"""s_and_b32 s33, s2, 7
s_lshr_b32 s35, s2, 3
v_lshrrev_b32 v1, 6, v0
v_and_b32 v2, 63, v0
v_readfirstlane_b32 s34, v1
v_lshlrev_b32 v3, 4, v2
v_and_b32 v4, 15, v2
v_lshrrev_b32 v5, 4, v2
s_lshl_b32 s39, s34, 10
s_add_u32 m0, s39, {TB1}
s_add_u32 s38, s39, 0x2000
buffer_load_dwordx4 v3, s[12:15], s38 offen lds""")
    vm.issue('t1')
    IIM = 'v[112:115]'; IRE = 'v[114:117]'; FIM = 'v[116:119]'; FRE = 'v[118:121]'
    k(f"""v_mul_u32_u24 v6, {16*8*TP}, v4
v_lshl_add_u32 v6, v5, 4, v6
s_lshl_b32 s36, s34, 4
s_add_u32 s36, s36, s33
s_mul_i32 s45, s36, 642
s_mul_i32 s36, s36, {TP}
s_lshl_b32 s37, s35, 6
s_add_u32 s36, s36, s37
s_add_u32 s42, s36, {8*TP}
s_lshl_b32 s37, s35, 5
s_add_u32 s45, s45, s37
s_and_b32 s45, s45, -4
v_and_b32 v7, 1, v5
v_lshrrev_b32 v8, 1, v5
v_lshl_add_u32 v9, v4, 4, v7
v_mul_u32_u24 v9, {8*642}, v9
v_lshl_add_u32 v9, v8, 4, v9
s_and_b32 s37, s33, 1
s_lshl_b32 s37, s37, 2
s_sub_u32 s43, s36, s37
s_sub_u32 s44, s42, s37
s_lshl_b32 s3, s33, 5
s_add_u32 s3, s3, s35
s_cmp_lt_u32 s2, 168
s_cselect_b32 s43, s43, {BIG}
s_cselect_b32 s44, s44, {BIG}
s_cselect_b32 s45, s45, {BIG}
s_waitcnt lgkmcnt(0)""")
    srd_from(k, 60, 40, 41, WS_T, TU_BYTES)
    for i in range(2):
        k(f'buffer_load_dwordx4 {vr(16+4*i,4)}, v6, s[60:63], s{43+i} offen'); vm.issue(f'T{i}')
    k(f"""s_mov_b32 s52, s6
s_mov_b32 s53, s7
s_mov_b32 s6, {2048*642}
s_mov_b32 s7, 0x00020000
s_mov_b32 s54, {2048*642}
s_mov_b32 s55, 0x00020000""")
    WP = opt.get('k1wp', 0)

    def wld():
        k(f"""buffer_load_dwordx4 v[32:35], v9, s[4:7], s45 offen
buffer_load_dwordx4 v[38:41], v9, s[52:55], s45 offen
s_load_dwordx2 s[4:5], s[0:1], 0""")
        vm.issue('W'); vm.issue('W')
    if opt.get('ob1'): k('s_barrier')
    if WP == 0: wld()
    k(f"""s_min_u32 s39, s34, 4
s_lshl_b32 s39, s39, 11
s_add_u32 m0, s39, {TB2}
s_add_u32 s38, s39, 0x4000
buffer_load_dwordx4 v3, s[12:15], s38 offen lds
buffer_load_dwordx4 v3, s[12:15], s38 offen offset:1024 lds
s_lshl_b32 s38, s3, 6
s_add_u32 s38, s38, 32768
s_load_dwordx16 s[16:31], s[12:13], s38""")
    vm.issue('t2'); vm.issue('t2')
    srd_from(k, 8, 40, 41, WS_U, TU_BYTES)
    srd_from(k, 64, 40, 41, WS_WI, WI_BYTES)
    w_setup(k, 46, 47); w_vaddr(k, 124, 125)
    BR = opt.get('brot', 0)
    g1id(k, 58, 57)
    k(f"""s_and_b32 s58, s58, 15
s_mul_i32 s58, s58, {140*1024}
s_mul_i32 s57, s34, {14*1024}
s_add_u32 s57, s57, {31*1024}
s_min_u32 s57, s57, {(124 if BR else 126)*1024}
s_add_u32 s56, s57, {BB}
s_add_u32 s57, s57, s58""")
    if opt.get('hot'): k('s_sub_u32 s57, s57, s58\ns_mov_b32 s58, 0\ns_and_b32 s50, s50, 0x7fff\ns_and_b32 s51, s51, 0x7fff\ns_and_b32 s82, s82, 0x7fff')
    if opt.get('hotw'): k('s_and_b32 s50, s50, 0x7fff\ns_and_b32 s51, s51, 0x7fff\ns_and_b32 s82, s82, 0x7fff')
    if opt.get('hotb'): k('s_sub_u32 s57, s57, s58\ns_mov_b32 s58, 0')
    if BR: k('s_bfe_u32 s38, s3, 0x10004\ns_lshl_b32 s38, s38, 13')
    bops = []
    for i in range(0 if opt.get('nob') else (16 if BR else 14)):
        if BR:
            o = f's_xor_b32 s39, s38, {1024*(i-i%4)}\ns_add_u32 m0, s56, s39\ns_add_u32 s39, s39, s57\n'
            bops.append(o + f'buffer_load_dwordx4 v3, s[64:67], s39 offen offset:{1024*(i%4)} lds')
            continue
        o = f's_add_u32 m0, s56, {1024*(i-i%4)}\n'
        if i % 4 == 0 and i: o += 's_add_u32 s57, s57, 4096\n'
        bops.append(o + f'buffer_load_dwordx4 v3, s[64:67], s57 offen offset:{1024*(i%4)} lds')
    wops = wb.ops
    NWL = opt.get('nwl', 0)
    wpre = wops[:len(wops) - NWL]; wb.ops = wops[len(wops) - NWL:]
    order = opt.get('bo', 0)
    if order == 0: pre = wpre + bops
    elif order == 1: pre = bops + wpre
    else:
        pre = []
        a, b = list(wpre), list(bops)
        while a or b:
            pre += a[:8]; a = a[8:]
            pre += b[:4]; b = b[4:]
    import copy
    KP = opt.get('KP', [8, 4, 4, 4, 4, 4, 4, 4, 4, 99])
    CP = opt.get('CP', [0, 0, 0, 0, 0])
    NPRE = sum(KP) + sum(opt.get('KW', [0, 0, 0])[:2])
    post = pre[NPRE:]; pre = pre[:NPRE]
    assert len(post) <= sum(CP) + opt.get('KW', [0, 0, 0])[2], (len(post), CP)
    k(f's_cmp_ge_u32 s2, 168\ns_cbranch_scc1 {IDLE}')
    vi = copy.deepcopy(vm)
    q = Bulk(k, pre)

    def bulk(i): q(KP[i], vm, 124, 'q')
    bulk(0)
    k(f"""v_mul_u32_u24 v10, {4*P}, v5
v_lshl_add_u32 v10, v4, 2, v10
s_lshl_b32 s37, s34, 7
v_add_u32 v10, s37, v10
v_mul_u32_u24 v11, {8*P}, v8
v_lshl_add_u32 v11, v7, 6, v11
v_lshl_add_u32 v11, v4, 2, v11
v_add_u32 v11, s37, v11
v_lshlrev_b32 v12, 6, v4
v_lshl_add_u32 v12, v5, 4, v12
s_mul_i32 s37, s34, {2*P}
v_add_u32 v12, s37, v12
s_mov_b32 s47, 0x05040100
s_mov_b32 s48, 0x07060302""")
    for i in range(2):
        k(vm.wait(f'T{i}'))
        if i == 0: st(k, 4, 1)
        for j in range(4):
            k(f'ds_write_b32 v10, v{16+4*i+j} offset:{j*P+64*i}')
    if WP == 1: wld()
    bulk(1)
    k('s_waitcnt lgkmcnt(0)\ns_barrier')
    NC = 2
    KW = opt.get('KW', [0, 0, 0])
    i0 = len(k.lines)
    k(f"""ds_read_b128 v[96:99], v3 offset:{TB1}
ds_read_b128 v[16:19], v12
ds_read_b128 v[100:103], v3 offset:{TB1+1024}
ds_read_b128 v[20:23], v12 offset:{P}
ds_read_b128 v[104:107], v3 offset:{TB1+2048}
ds_read_b128 v[108:111], v3 offset:{TB1+3072}
ds_read_b128 v[118:121], v3 offset:{TB1+4096}
ds_read_b64 v[116:117], v3 offset:{TB1+5120}
ds_read_b128 v[112:115], v3 offset:{TB1+7168}""")
    bulk(2)
    k(f"""s_waitcnt lgkmcnt(7)
{MFMA} v[48:51], v[16:19], v[96:99], 0
s_waitcnt lgkmcnt(6)
{MFMA} v[52:55], v[16:19], v[100:103], 0
s_waitcnt lgkmcnt(5)
{MFMA} v[56:59], v[20:23], v[96:99], 0
{MFMA} v[60:63], v[20:23], v[100:103], 0""")
    bulk(3)
    k('s_waitcnt lgkmcnt(0)')

    def pack(c, re, im):
        k(f"""v_cvt_pk_bf16_f32 v{16+4*c}, v{re}, v{re+1}
v_cvt_pk_bf16_f32 v{17+4*c}, v{re+2}, v{re+3}
v_cvt_pk_bf16_f32 v{18+4*c}, v{im}, v{im+1}
v_cvt_pk_bf16_f32 v{19+4*c}, v{im+2}, v{im+3}""")
    for c in range(NC):
        cmul_planar(k, 48 + 8 * c, 52 + 8 * c, 104, 108, 80, 84, 88)
        pack(c, 80, 84)
        k(f'{MFMA} {vr(48+8*c,4)}, {FRE}, {vr(16+4*c,4)}, 0')
        k(f'{MFMA} {vr(52+8*c,4)}, {FIM}, {vr(16+4*c,4)}, 0')
    bulk(4)
    weave_in(k, i0, q, KW[0], vm, 124)
    k(vm.wait('W') or '')
    k(vm.wait('t2') or '')
    st(k, 4, 2)
    i0 = len(k.lines)
    for j in range(8):
        k(f'v_perm_b32 v{64+j}, v{38+j//2}, v{32+j//2}, s{47+(j&1)}')
        k(f'ds_write_b32 v11, v{64+j} offset:{W0+j*P}')
    bulk(5)
    k(f's_waitcnt lgkmcnt(0)\ns_barrier')
    for c in range(NC):
        k(f'ds_read_b128 {vr(32+4*c,4)}, v12 offset:{W0+c*P}')
    bulk(6)
    for c in range(NC):
        k(f's_waitcnt lgkmcnt({NC-1-c})')
        for r in range(4):
            k(f'v_lshlrev_b32 v{64+8*c+r}, 16, v{32+4*c+r}\nv_and_b32 v{68+8*c+r}, 0xffff0000, v{32+4*c+r}')
        cmul_planar(k, 48 + 8 * c, 52 + 8 * c, 64 + 8 * c, 68 + 8 * c, 80, 84, 88)
        pack(c, 80, 84)
        k(f'{MFMA} {vr(48+8*c,4)}, {vr(16+4*c,4)}, {IRE}, 0')
        k(f'{MFMA} {vr(52+8*c,4)}, {vr(16+4*c,4)}, {IIM}, 0')
    bulk(7)
    for c in range(NC):
        cmul_planar(k, 48 + 8 * c, 52 + 8 * c, 104, 108, 80, 84, 88, conj=True)
        pack(c, 80, 84)
        k(f'{MFMA} {vr(48+8*c,4)}, {IRE}, {vr(16+4*c,4)}, 0')
        k(f'{MFMA} {vr(52+8*c,4)}, {IIM}, {vr(16+4*c,4)}, 0')
    bulk(8)
    for c in range(NC):
        for r in range(4):
            k(f'v_cvt_pk_bf16_f32 v{16+4*c+r}, v{48+8*c+r}, v{52+8*c+r}')
        k(f'ds_write_b128 v12, {vr(16+4*c,4)} offset:{c*P}')
    weave_in(k, i0, q, KW[1], vm, 124)
    k('s_waitcnt lgkmcnt(0)\ns_barrier')
    for i in range(2):
        for j in range(4):
            k(f'ds_read_b32 v{16+4*i+j}, v10 offset:{j*P+64*i}')
    for i in range(10): k(f'ds_read_b128 {vr(64+4*i,4)}, v3 offset:{TB2+1024*i}')
    for i in range(2):
        k(f's_waitcnt lgkmcnt({14-4*i})')
        k(f'buffer_store_dwordx4 {vr(16+4*i,4)}, v6, s[8:11], {["s36","s42"][i]} offen sc1')
    st(k, 4, 3)
    if opt.get('ob2'): k('s_barrier')
    q(99, vm, 124, 'q')
    k(f's_branch {JOIN}\n{IDLE}:')
    if WP: k('s_load_dwordx2 s[4:5], s[0:1], 0')
    if opt.get('it'):
        k(f'''s_sub_u32 s43, s35, 21
s_and_b32 s44, s33, 1
s_mul_i32 s44, s44, 11
s_add_u32 s43, s43, s44
s_lshl_b32 s44, s43, 3
s_add_u32 s44, s44, s34
s_mul_i32 s45, s34, 22
s_add_u32 s45, s45, s43
s_add_u32 s45, s45, 176
s_lshr_b32 s46, s33, 1
s_lshl_b32 s46, s46, 18
v_lshlrev_b32 v10, 7, v2''')
        for r in (44, 45):
            k(f'''s_and_b32 s47, s{r}, 31
s_lshl_b32 s47, s47, 13
s_lshr_b32 s48, s{r}, 5
s_lshl_b32 s48, s48, 20
s_add_u32 s47, s47, s48
s_add_u32 s47, s47, s46
buffer_load_ubyte v11, v10, s[72:75], s47 offen''')
            vi.issue('q')
        if opt['it'] > 1: k('s_barrier')
    if opt.get('iw'):
        wp = [o for o in pre if o in wpre]; bp = [o for o in pre if o not in wpre]
        assert len(bp) == len(bops)
        IW = opt['iw']
        nb0 = opt.get('ib0', 0)
        Bulk(k, bp[:nb0])(99, vi, 124, 'q')
        Bulk(k, wp)(99, vi, 124, 'q')
        k('s_mov_b32 s46, s50\ns_mov_b32 s47, s51')
        Bulk(k, wpre[len(wp):len(wp) + IW])(99, vi, 124, 'q')
        k('s_mov_b32 s50, s46\ns_mov_b32 s51, s47')
        Bulk(k, bp[nb0:])(99, vi, 124, 'q')
    else:
        q = Bulk(k, pre)
        q(99, vi, 124, 'q')
    k(vi.wait('t2'))
    k('s_barrier')
    for i in range(10): k(f'ds_read_b128 {vr(64+4*i,4)}, v3 offset:{TB2+1024*i}')
    if opt.get('idl'): k(f's_sleep {opt["idl"]}')
    k(f'{JOIN}:')
    vm = Cnt('vmcnt', 63); vm.issue('q')
    if opt.get('g3s'):
        srd_from(k, 60, 40, 41, WS_A, A2_BYTES)
        k('''s_lshl_b32 s46, s2, 14
s_lshl_b32 s47, s34, 11
s_add_u32 s46, s46, s47
v_mov_b32 v28, -1
v_mov_b32 v29, -1
v_mov_b32 v30, -1
v_mov_b32 v31, -1
buffer_store_dwordx4 v[28:31], v3, s[60:63], s46 offen sc1
buffer_store_dwordx4 v[28:31], v3, s[60:63], s46 offen offset:1024 sc1''')
        vm.issue('f'); vm.issue('f')
    k(f"""s_mul_i32 s46, s3, {8*TP}
s_add_u32 s47, s46, {3*TP}
s_add_u32 s48, s46, {6*TP}
v_lshlrev_b32 v60, 2, v0
s_lshl_b32 s35, s34, 8
s_add_u32 s35, s35, s3
s_mul_i32 s35, s35, 1280
v_and_b32 v50, 15, v2
v_lshrrev_b32 v51, 4, v2
v_lshlrev_b32 v52, 6, v50
v_lshl_add_u32 v52, v51, 4, v52
v_add_u32 v53, 1024, v52
v_mov_b32 v54, 0x7fffffff
v_cmp_gt_u32 vcc, 4, v50
v_cndmask_b32 v53, v54, v53, vcc
s_lshl_b32 s42, s34, 12
s_min_u32 s42, s42, {27*1024}
s_add_u32 m0, s42, {BB}
s_add_u32 s42, s42, s58
s_waitcnt lgkmcnt(0)
s_barrier""")
    srd_from(k, 4, 4, 5, 0, X_BYTES)
    for i in range(0 if opt.get('nob') else 4):
        k(f'buffer_load_dwordx4 v3, s[64:67], s42 offen offset:{1024*i} lds'); vm.issue('b')
    k(f"""buffer_load_dwordx4 v[104:107], v52, s[4:7], s35 offen
buffer_load_dwordx4 v[108:111], v53, s[4:7], s35 offen""")
    vm.issue('x'); vm.issue('x')
    k(f"""s_mul_i32 s59, s34, {NP}
v_add_u32 v112, s59, v52
v_and_b32 v113, 3, v2
v_mul_u32_u24 v113, {NP}, v113
v_lshrrev_b32 v114, 2, v2
v_lshl_add_u32 v113, v114, 4, v113
s_cmp_ge_u32 s34, 5
s_cselect_b32 s59, {4*NP-5*256}, 0
s_lshl_b32 s60, s34, 8
s_add_u32 s59, s59, s60
v_add_u32 v113, s59, v113
s_mul_i32 s59, s3, 10240
s_lshl_b32 s60, s34, 10
s_add_u32 s59, s59, s60
s_add_u32 s49, s59, 8192
s_cmp_lt_u32 s34, 2
s_cselect_b32 s49, s49, {BIG}""")
    srd_from(k, 52, 80, 81, 0, X_BYTES) if opt.get('hout') else srd_from(k, 52, 40, 41, WS_H, X_BYTES)
    srd_from(k, 60, 40, 41, WS_HN, X_BYTES)
    k(f"""v_mul_u32_u24 v55, 3277, v0
v_lshrrev_b32 v55, 16, v55
v_mul_u32_u24 v56, 20, v55
v_sub_u32 v56, v0, v56
v_mul_u32_u24 v57, {RP}, v56
v_lshl_add_u32 v57, v55, 2, v57
v_mov_b32 v58, {11*RP}
v_cmp_ge_u32 vcc, 10, v56
v_cndmask_b32 v57, v58, v57, vcc
v_sub_u32 v59, 20, v56
v_mul_u32_u24 v59, {RP}, v59
v_sub_u32 v61, 31, v55
v_lshl_add_u32 v59, v61, 2, v59
v_cmp_le_u32 vcc, 10, v56
v_cndmask_b32 v59, v58, v59, vcc
v_sub_u32 v61, 32, v55
v_lshlrev_b32 v61, 2, v61
v_cmp_eq_u32 vcc, 0, v56
v_cndmask_b32 v59, v59, v61, vcc
v_cmp_eq_u32 vcc, 0, v0
v_cndmask_b32 v59, v59, v58, vcc
v_cmp_eq_u32 vcc, 320, v0
v_cndmask_b32 v59, v59, v58, vcc
v_mov_b32 v40, 0x3f3504f3
v_min_u32 v62, 10, v50
v_mul_u32_u24 v62, {RP}, v62
v_lshl_add_u32 v62, v51, 4, v62
s_mul_i32 s42, s34, {NP}
v_add_u32 v62, s42, v62
v_and_b32 v63, 1, v2
v_lshlrev_b32 v63, 31, v63
v_or_b32 v63, 1.0, v63
""")
    WT0 = opt.get('wt0', 0) if not opt.get('now') else 0
    assert not (WT0 and NWL)
    if WT0:
        k(vm.wait('q'))
        w_trans(k, 44, 45, list(range(WT0)))
    st(k, 4, 4)
    LP = k.label('lp'); LD = k.label('ld'); SK0 = k.label('sk0'); STUB = k.label('stub'); GO = k.label('go')
    q = Bulk(k, post)
    UNI = KW[2] > 0
    if UNI:
        assert not WT0
        k(f"""v_cmp_gt_u32 vcc, 321, v0
v_cndmask_b32 v57, v58, v57, vcc
v_cndmask_b32 v59, v58, v59, vcc
s_mov_b64 exec, vcc
s_mov_b32 s43, {SPIN}
s_cmp_lt_u32 s34, 6
s_cbranch_scc1 {LP}
s_waitcnt vmcnt(0)
{f"s_sleep {opt['c67']}" if opt.get('c67') else ""}
s_branch {LD}
{LP}:""")
    else:
      k(f"""v_cmp_gt_u32 vcc, 321, v0
s_mov_b64 s[44:45], vcc
s_cmp_lt_u32 s34, 6
s_cbranch_scc1 {GO}
s_waitcnt vmcnt(0)""")
      if opt.get('c67'): k(f's_sleep {opt["c67"]}')
      q.copy()(CP[0], None, 124)
      k(f"""s_mov_b64 exec, 0
s_branch {SK0 if WT0 else SKIP}
{GO}:
s_mov_b64 exec, s[44:45]
s_mov_b32 s43, {SPIN}
{LP}:""")
    for k2 in range(8):
        k(f'buffer_load_dword v{4+k2}, v60, s[8:11], s{46+k2//3} offen offset:{(k2%3)*TP+4*(k2&1)} sc1')
    k(f"""s_waitcnt vmcnt(0)
v_max3_u32 v12, v4, v5, v6
v_max3_u32 v13, v7, v8, v9
v_max3_u32 v12, v12, v10, v11
v_max_u32 v12, v12, v13
v_cmp_eq_u32 vcc, -1, v12
s_cbranch_vccz {LD}
{f"s_sleep {opt['usl']}" if opt.get('usl') else ""}
s_sub_u32 s43, s43, 1
s_cmp_lg_u32 s43, 0
s_cbranch_scc1 {LP}
{LD}:""")
    st(k, 4, 5); st(k, 0, 1)
    if UNI:
        k('s_mov_b64 exec, -1')
        if opt.get('ob3'): k('s_barrier')
        q(CP[0], None, 124)
        i0 = len(k.lines)
    elif CP[0] and post:
        k('s_mov_b64 exec, -1')
        q(CP[0], None, 124)
        k('s_mov_b64 exec, s[44:45]')
    for k2 in range(8):
        k(f'v_lshlrev_b32 v{20+2*k2}, 16, v{4+k2}\nv_and_b32 v{21+2*k2}, 0xffff0000, v{4+k2}')
    for k2 in range(8):
        if k2 == 0:
            k('v_mov_b32 v4, v20\nv_mov_b32 v5, v21')
        else:
            smul(k, 4 + 2 * k2, 20 + 2 * k2, 16 + 2 * k2, 42 + 2 * (k2 & 1), conj=True)
    T = fft8(k, 4, 20, True, 40)
    if WT0:
        k(f'{SK0}:\ns_waitcnt lgkmcnt(0)\ns_barrier\ns_cbranch_execz {SKIP}')
    for n in range(8):
        k(f"""v_cvt_pk_bf16_f32 v{4+2*n}, v{T[n]}, v{T[n]+1}
v_cvt_pk_bf16_f32 v{5+2*n}, v{T[n]}, -v{T[n]+1}
ds_write_b32 v57, v{4+2*n} offset:{n*NP}
ds_write_b32 v59, v{5+2*n} offset:{n*NP}""")
    k(f"""{SKIP}:
s_mov_b64 exec, -1""")
    q(CP[1], None, 124)
    k(f"""s_waitcnt lgkmcnt(0)
s_barrier
ds_read_b128 v[4:7], v62
ds_read_b128 v[8:11], v62 offset:64""")
    if opt.get('kw0'): i0 = len(k.lines)
    q(CP[2], None, 124)
    k('s_waitcnt lgkmcnt(1)')
    for u in range(2):
        if u == 1: k('s_waitcnt lgkmcnt(0)')
        for t in range(2):
            k(f'{MFMA} {vr(12+16*u+8*t,4)}, {vr(4+4*u,4)}, {vr(64+8*t,4)}, 0')
            k(f'{MFMA} {vr(16+16*u+8*t,4)}, {vr(4+4*u,4)}, {vr(68+8*t,4)}, 0')
    q(CP[3], None, 124)
    for i in range(0, 16, 2):
        k(f'v_pk_fma_f32 {vr(12+i,2)}, {vr(28+i,2)}, v[62:63], {vr(12+i,2)} op_sel:[0,1,0] op_sel_hi:[1,1,1]')
    for t in range(2):
        cmul_planar(k, 12 + 8 * t, 16 + 8 * t, 80 + 8 * t, 84 + 8 * t, 28, 32, 36)
        k(f"""v_cvt_pk_bf16_f32 v{4+4*t}, v28, v29
v_cvt_pk_bf16_f32 v{5+4*t}, v30, v31
v_cvt_pk_bf16_f32 v{6+4*t}, v32, v33
v_cvt_pk_bf16_f32 v{7+4*t}, v34, v35""")
    for v in range(2):
        for t in range(2):
            k(f'{MFMA} {vr(12+8*v+4*t,4)}, {vr(4+4*t,4)}, {vr(96+4*v,4)}, 0')
    q(CP[4], None, 124)
    if UNI and opt.get('kwe', 1) == 0: weave_in(k, i0, q, KW[2], None, 124)
    for i in range(8):
        k(f'v_lshlrev_b32 v{28+2*i}, 16, v{104+i}\nv_and_b32 v{29+2*i}, 0xffff0000, v{104+i}')
    for i in range(8):
        k(f'v_cvt_pk_bf16_f32 v{4+i}, v{12+2*i}, v{13+2*i}')
    for i in range(8):
        k(f'v_lshlrev_b32 v{12+2*i}, 16, v{4+i}\nv_and_b32 v{13+2*i}, 0xffff0000, v{4+i}')
    for i in range(8):
        k(f'v_pk_add_f32 {vr(12+2*i,2)}, {vr(12+2*i,2)}, {vr(28+2*i,2)}')
    for i in range(8):
        k(f'v_cvt_pk_bf16_f32 v{4+i}, v{12+2*i}, v{13+2*i}')
    k("""buffer_store_dwordx4 v[4:7], v52, s[52:55], s35 offen sc1
buffer_store_dwordx4 v[8:11], v53, s[52:55], s35 offen sc1""")
    for i in range(8):
        k(f'v_lshlrev_b32 v{12+2*i}, 16, v{4+i}\nv_and_b32 v{13+2*i}, 0xffff0000, v{4+i}')
    k("""v_pk_add_f32 v[28:29], v[12:13], v[14:15]
v_pk_mul_f32 v[30:31], v[12:13], v[12:13]
v_pk_add_f32 v[32:33], v[16:17], v[18:19]
v_pk_mul_f32 v[34:35], v[14:15], v[14:15]""")
    for i in range(2, 8):
        k(f'v_pk_fma_f32 {vr(30+4*(i&1),2)}, {vr(12+2*i,2)}, {vr(12+2*i,2)}, {vr(30+4*(i&1),2)}')
        if i >= 4:
            k(f'v_pk_add_f32 {vr(28+4*(i&1),2)}, {vr(28+4*(i&1),2)}, {vr(12+2*i,2)}')
    k("""v_pk_add_f32 v[28:29], v[28:29], v[32:33]
v_pk_add_f32 v[30:31], v[30:31], v[34:35]
v_add_f32 v28, v28, v29
v_add_f32 v30, v30, v31""")
    wave_reduce2(k, 28, 30, 36, 37)
    ln_stats(k, 36, 37, 640, 28, 30, 32)
    ln_apply(k, 12, 16, 28, 30, 40)
    if UNI and opt.get('kwe', 1) == 1: weave_in(k, i0, q, KW[2], None, 124)
    srd_from(k, 68, 40, 41, WS_FL, FL_BYTES)
    k(f"""ds_write_b128 v112, v[40:43]
s_mov_b32 exec_lo, 0x000f000f
s_mov_b32 exec_hi, 0x000f000f
ds_write_b128 v112, v[44:47] offset:1024
s_mov_b64 exec, -1
s_waitcnt lgkmcnt(0)
s_barrier
ds_read_b128 v[40:43], v113
ds_read_b128 v[44:47], v113 offset:{4*NP+3*256}
s_waitcnt lgkmcnt(1)
buffer_store_dwordx4 v[40:43], v3, s[60:63], s59 offen sc1
s_waitcnt lgkmcnt(0)
buffer_store_dwordx4 v[44:47], v3, s[60:63], s49 offen sc1
v_mov_b32 v114, v124""")
    st(k, 4, 6); st(k, 0, 2)


def poll2(k, loads, chk, sc, sl=0):
    LP = k.label('lp'); LD = k.label('ld')
    k(f'''s_mov_b32 s{sc}, {SPIN}
{LP}:
{loads}
s_waitcnt vmcnt(0)
{chk}
s_cbranch_vccz {LD}
{f"s_sleep {sl}" if sl else ""}
s_sub_u32 s{sc}, s{sc}, 1
s_cmp_lg_u32 s{sc}, 0
s_cbranch_scc1 {LP}
{LD}:''')


def flag_poll(k, sf, sp, n, sl=0, d0=0, part=3):
    if part & 1:
        k(f'''v_lshrrev_b32 v10, 4, v3
v_lshlrev_b32 v10, {FS}, v10
s_mov_b64 exec, 1
v_mov_b32 v8, 1
buffer_store_dword v8, v10, s[68:71], s{sf} offen sc1''')
    if part & 2:
        k(f's_mov_b64 exec, {hex((1 << n) - 1)}')
        if d0: k(f's_sleep {d0}')
        poll2(k, f'buffer_load_dword v9, v10, s[68:71], s{sp} offen sc1', 'v_cmp_eq_u32 vcc, 0, v9', 43, sl)
    k('s_mov_b64 exec, -1')


def ph_g1(k, opt, DONE, wb, fused=False):
    L = {(g, z): k.label(f'g{g}z{z}') for g in range(2) for z in range(2)}
    WQ = opt.get('WQ', [32, 0, 8, 15])
    k(f's_lshl_b32 s49, s3, {FS}')
    g1id(k, 3, 35)
    k(f'''s_lshr_b32 s35, s3, 4
s_bfe_u32 s36, s3, 0x30001
s_and_b32 s37, s3, 1
s_and_b32 s38, s34, 3
s_lshl_b32 s39, s35, 2
s_add_u32 s39, s39, s38
v_and_b32 v2, 63, v0
v_and_b32 v6, 15, v2
v_lshrrev_b32 v7, 4, v2''')
    if wb: k('v_mov_b32 v88, v114')
    srd_from(k, 8, 40, 41, WS_HN, X_BYTES)
    k(f'''v_lshlrev_b32 v9, 3, v2
v_lshrrev_b32 v8, 2, v6
v_and_b32 v10, 3, v6
v_mul_u32_u24 v1, 10240, v8
v_lshl_add_u32 v1, v7, 6, v1
v_lshl_add_u32 v1, v10, 4, v1
v_add_u32 v2, {4*10240}, v1
s_lshr_b32 s44, s39, 1
s_lshl_b32 s44, s44, 4
s_and_b32 s45, s38, 1
s_add_u32 s44, s44, s45
s_mul_i32 s44, s44, 5120
s_add_u32 s45, s44, 4096
v_add_u32 v4, 57344, v3
v_add_u32 v5, 114688, v3''')
    srd_from(k, 12, 40, 41, WS_Z1, A2_BYTES)
    srd_from(k, 16, 40, 41, WS_Z2, Z2N_BYTES)
    srd_from(k, 20, 40, 41, WS_PX, PX_BYTES)
    k(f'''s_and_b32 s47, s3, 15
s_lshl_b32 s47, s47, 4
s_add_u32 s47, s47, s35
s_lshl_b32 s47, s47, {FS}
s_add_u32 s47, s47, {FL2}
s_lshr_b32 s42, s34, 2
s_cmp_eq_u32 s42, s37
s_cselect_b32 s43, 1, 0
s_lshl_b32 s42, s42, 1
s_add_u32 s42, s42, s43
s_cmp_eq_u32 s42, 1
s_cbranch_scc1 {L[0,1]}
s_cmp_eq_u32 s42, 2
s_cbranch_scc1 {L[1,0]}
s_cmp_eq_u32 s42, 3
s_cbranch_scc1 {L[1,1]}''')
    PD = opt.get('PD', 5); NA = PD + 1
    assert 40 + 8 * NA <= 88
    AR = lambda kk, u: vr(40 + 8 * (kk % NA) + 4 * u, 4)
    ACC = lambda u, n: 96 + ((n & 3) * 2 + u) * 4

    def aload(kk, u, v):
        if kk >= 20: return
        k(f'buffer_load_dwordx4 {AR(kk,u)}, v{1+u}, s[8:11], s{44+kk//16} offen offset:{256*(kk%16)}'); v.issue(f'a{kk}')
    NB = 8; LA = opt.get('LA', 6)
    SC = opt.get('gsc', 1)

    def tail(z2, wq, rest):
        if not fused:
            k(f's_branch {DONE}'); return
        map_g2(k)
        k('s_load_dwordx2 s[24:25], s[0:1], 48')
        if not z2 and not wq.ops and rest and opt.get('wte', 1) and not W128:
            w_trans(k, 12, 13, rest); rest = []
        k('s_waitcnt vmcnt(0)')
        st(k, 0, 5)
        if z2: k('s_setprio 0')
        if not z2 and not wq.ops and rest and not W128:
            w_trans(k, 12, 13, rest); rest = []
        if W128: assert not wq.ops and not (z2 and rest)
        if not z2: wq(99, None, 88)
        k('s_barrier')
        if z2: wq(99, None, 88)
        NP2 = k.label('np2'); NP3 = k.label('np3')
        if not z2:
            k(f's_cmp_lg_u32 s38, 0\ns_cbranch_scc1 {NP2}')
            flag_poll(k, 47, 44, 32, part=1)
            k(f'{NP2}:')
        if rest:
            k('s_waitcnt vmcnt(0)')
            w_trans(k, 12, 13, rest)
        if not z2:
            k(f'''s_cmp_lg_u32 s38, 0
s_cbranch_scc1 {NP3}
s_lshl_b32 s44, s36, {5+FS}
s_add_u32 s44, s44, {FL2}''')
            flag_poll(k, 47, 44, 32, opt.get('g2sl', 0), opt.get('g2d', 0) if not rest else 0, part=2)
            k(f'{NP3}:')
        k('s_waitcnt lgkmcnt(0)\ns_barrier')
        k(f's_branch {DONE}')

    def path(grp, z2):
        vm = Cnt('vmcnt', 63)
        wq = wb.copy() if wb else None
        tiles = [0, 1, 2, 3] if grp == 0 else [4, 5, 6]
        NT = len(tiles)
        order = [(kk, n) for kk in range(20) for n in tiles]
        k('s_waitcnt vmcnt(0)\ns_barrier')
        st(k, 1, 3); st(k, 4, 7)
        rest = [] if opt.get('now') else list(range(opt.get('wt0', 0), 4))
        n1 = opt.get('wt1', [0, 0])[z2] if not wq.ops else 0
        if W128: n1 = min(opt['wt1'][z2], (32 - len(wq.ops)) // 8)
        now, rest = rest[:n1], rest[n1:]
        if z2:
            NPL = k.label('npl'); NPM = k.label('npm')
            k(f'''s_setprio {opt.get('zprio', 2)}
s_lshl_b32 s42, s35, {4+FS}
s_mov_b32 s46, s49
s_cmp_lg_u32 s38, 0
s_cbranch_scc1 {NPM}''')
            flag_poll(k, 46, 42, 16, part=1)
            k(f'{NPM}:')
            w_trans(k, 12, 13, now, 48)
            k(f's_cmp_lg_u32 s38, 0\ns_cbranch_scc1 {NPL}')
            flag_poll(k, 46, 42, 16, opt.get('g1sl', 0), opt.get('g1d', 0) if not now else 0, part=2)
            k(f'{NPL}:')
        else:
            w_trans(k, 12, 13, now, 48)
            if wq: wq(WQ[0], vm, 88)
        k('s_waitcnt lgkmcnt(0)\ns_barrier')
        st(k, 4, 8)
        st(k, 1, 4); st(k, 0, 3)
        if not z2 and opt.get('zd'): k(f's_sleep {opt["zd"]}')
        for kk in range(PD):
            for u in range(2): aload(kk, u, vm)

        def rdB(f):
            if f >= len(order): return
            kk, n = order[f]
            a = BB + kk * 7168 + n * 1024
            k(f'ds_read_b128 {vr(8+4*(f%NB),4)}, v{3+a//57344} offset:{a%57344}')
        for f in range(LA): rdB(f)
        for f, (kk, n) in enumerate(order):
            x = vm.wait(f'a{kk}')
            if x: k(x)
            if n == tiles[0] and kk in (0, 10): st(k, 1, 5 + kk // 10)
            rem = min(LA - 1, len(order) - 1 - f)
            k(f's_waitcnt lgkmcnt({rem})')
            b = vr(8 + 4 * (f % NB), 4)
            for u in range(2):
                acc = vr(ACC(u, n), 4)
                c = '0' if kk == 0 else acc
                if z2: k(f'{MFMA} {acc}, {AR(kk,u)}, {b}, {c}')
                else: k(f'{MFMA} {acc}, {b}, {AR(kk,u)}, {c}')
            rdB(f + LA)
            i = f % NT
            if i < 2: aload(kk + PD, i, vm)
            if wq and kk >= WQ[3]:
                c = WQ[1 + z2]
                wq((c * (i + 1)) // NT - (c * i) // NT, vm, 88)
        st(k, 1, 7); st(k, 0, 4); st(k, 4, 9)
        k(f'v_mov_b32 v4, {fbits(C1)}\nv_mov_b32 v5, {fbits(C0)}')
        if not z2:
            k(f'''s_lshr_b32 s42, s39, 1
s_lshl_b32 s42, s42, 3
s_add_u32 s42, s42, s36
s_lshl_b32 s42, s42, 1
s_and_b32 s43, s39, 1
s_add_u32 s42, s42, s43
s_lshl_b32 s42, s42, 13
s_add_u32 s43, s42, 4096
v_lshrrev_b32 v2, 1, v3''')
            units = [(u, p) for p in ((0, 1) if grp == 0 else (2,)) for u in range(2)]
            for i, (u, p) in enumerate(units):
                o = 12 + 4 * (i & 1)
                for h in range(2):
                    a = ACC(u, 2 * p + h)
                    k(f'v_cvt_pk_bf16_f32 v{8+2*h}, v{a}, v{a+1}\nv_cvt_pk_bf16_f32 v{9+2*h}, v{a+2}, v{a+3}')
                gelu_pk(k, 8, 8, 20, 28, o, 4, sc=(SC > 1))
                k(f'buffer_store_dwordx4 {vr(o,4)}, v3, s[12:15], s{42+u} offen offset:{1024*p} sc1')
            if grp == 1:
                for u in range(2):
                    a = ACC(u, 6)
                    k(f'v_cvt_pk_bf16_f32 v{8+2*u}, v{a}, v{a+1}\nv_cvt_pk_bf16_f32 v{9+2*u}, v{a+2}, v{a+3}')
                gelu_pk(k, 8, 8, 20, 28, 12, 4, sc=(SC > 1))
                for u in range(2):
                    k(f'buffer_store_dwordx2 {vr(12+2*u,2)}, v2, s[12:15], s{42+u} offen offset:3072 sc1')
            st(k, 1, 8)
            tail(False, wq, rest)
            return
        S = 72; Q = 80
        SK = k.label('sk')
        for i, n in enumerate(tiles):
            if n == 5: k(f's_cmp_eq_u32 s36, 7\ns_cbranch_scc1 {SK}')
            for r in range(4): k(f'v_cvt_pk_bf16_f32 v{8+r}, v{ACC(0,n)+r}, v{ACC(1,n)+r}')
            k(f'''v_permlane32_swap_b32 v8, v10
v_permlane32_swap_b32 v9, v11
v_permlane16_swap_b32 v8, v9
v_permlane16_swap_b32 v10, v11''')
            gelu_pk(k, 8, 8, 20, 28, 12, 4, tr=True, sc=(SC > 0))
            d = 40 + 8 * i
            for r in range(4):
                k(f'v_lshlrev_b32 v{d+2*r}, 16, v{12+r}\nv_and_b32 v{d+1+2*r}, 0xffff0000, v{12+r}')
            for e in range(8):
                if i == 0: k(f'v_mul_f32 v{Q+e}, v{d+e}, v{d+e}\nv_mov_b32 v{S+e}, v{d+e}')
                else: k(f'v_add_f32 v{S+e}, v{S+e}, v{d+e}\nv_fmac_f32 v{Q+e}, v{d+e}, v{d+e}')
        k(f'{SK}:')
        V = [0] * 16
        for e in range(8):
            V[2 * e] = S + e; V[2 * e + 1] = Q + e
        for i in range(8):
            k(f'v_add_f32_dpp v{V[i]}, v{V[i]}, v{V[i]} row_ror:8 row_mask:0xf bank_mask:0x3')
        for i in range(8):
            k(f'v_add_f32_dpp v{V[i]}, v{V[i+8]}, v{V[i+8]} row_ror:8 row_mask:0xf bank_mask:0xc')
        for i in range(4):
            k(f'v_add_f32_dpp v{V[i]}, v{V[i]}, v{V[i]} row_half_mirror row_mask:0xf bank_mask:0x5')
        for i in range(4):
            k(f'v_add_f32_dpp v{V[i]}, v{V[i+4]}, v{V[i+4]} row_half_mirror row_mask:0xf bank_mask:0xa')
        for m in ('quad_perm:[1,0,3,2]', 'quad_perm:[2,3,0,1]'):
            for i in range(4):
                k(f'v_add_f32_dpp v{V[i]}, v{V[i]}, v{V[i]} {m} row_mask:0xf bank_mask:0xf')
        k(f'''s_mov_b32 vcc_lo, 0xaaaaaaaa
s_mov_b32 vcc_hi, 0xaaaaaaaa
v_cndmask_b32 v8, v{V[0]}, v{V[1]}, vcc
v_cndmask_b32 v9, v{V[2]}, v{V[3]}, vcc
s_mov_b32 vcc_lo, 0xcccccccc
s_mov_b32 vcc_hi, 0xcccccccc
v_cndmask_b32 v8, v8, v9, vcc
s_lshl_b32 s42, s39, 12
s_and_b32 s43, s3, 15
s_lshl_b32 s43, s43, 8
s_add_u32 s43, s43, s42
v_lshrrev_b32 v2, 2, v3
buffer_store_dword v8, v2, s[20:23], s43 offen sc1
v_lshrrev_b32 v9, 2, v6
v_and_b32 v10, 3, v6
v_lshlrev_b32 v9, 8, v9
v_lshl_add_u32 v9, v7, 6, v9
v_lshl_add_u32 v1, v10, 4, v9''')
        st(k, 1, 8)
        LP = k.label('lp'); LD = k.label('ld')
        k(f'''s_lshl_b32 s44, s36, 3
s_lshr_b32 s45, s39, 4
s_add_u32 s44, s44, s45
s_and_b32 s45, s39, 1
s_lshl_b32 s45, s45, 2
s_add_u32 s44, s44, s45
s_mul_i32 s44, s44, 56
s_bfe_u32 s45, s39, 0x30001
s_add_u32 s44, s44, s45
s_add_u32 s44, s44, {8*tiles[0]}
s_lshl_b32 s44, s44, 10
v_mov_b32 v4, {fbits(1.0/864)}
s_mov_b32 s43, {SPIN}''')
        if rest and wq and not wq.ops and opt.get('wtp', 1):
            k('s_waitcnt vmcnt(1)')
            w_trans(k, 8, 9, rest, 46); rest = []
        elif opt.get('pxd'): k(f"s_sleep {opt['pxd']}")
        k(f'{LP}:')
        for i in range(4): k(f'buffer_load_dwordx4 {vr(8+4*i,4)}, v1, s[20:23], s42 offen offset:{1024*i} sc1')
        k('s_waitcnt vmcnt(2)')
        k('v_max3_u32 v24, v8, v9, v10\nv_max3_u32 v25, v11, v12, v13\nv_max3_u32 v24, v24, v14, v15')
        for r in range(4): k(f'v_add_f32 v{28+r}, v{8+r}, v{12+r}')
        k('s_waitcnt vmcnt(0)')
        k('''v_max3_u32 v25, v25, v16, v17
v_max3_u32 v24, v24, v18, v19
v_max3_u32 v25, v25, v20, v21
v_max3_u32 v24, v24, v22, v23
v_max_u32 v24, v24, v25
v_cmp_eq_u32 vcc, -1, v24''')
        for r in range(4): k(f'v_add_f32 v{32+r}, v{16+r}, v{20+r}')
        k(f'''s_cbranch_vccz {LD}
{f"s_sleep {opt['pxs']}" if opt.get('pxs') else ""}
s_sub_u32 s43, s43, 1
s_cmp_lg_u32 s43, 0
s_cbranch_scc1 {LP}
{LD}:''')
        st(k, 1, 9); st(k, 0, 9)
        for r in range(4): k(f'v_add_f32 v{28+r}, v{28+r}, v{32+r}')
        for m in ('row_ror:4', 'row_ror:8'):
            for r in range(4): k(f'v_add_f32_dpp v{28+r}, v{28+r}, v{28+r} {m} row_mask:0xf bank_mask:0xf')
        for r in range(4): k(f'v_mul_f32 v{28+r}, v{28+r}, v4')
        k(f'''v_fma_f32 v29, -v28, v28, v29
v_fma_f32 v31, -v30, v30, v31
v_max_f32 v29, 0, v29
v_max_f32 v31, 0, v31
v_cvt_pk_bf16_f32 v12, v28, v30
v_cvt_pk_bf16_f32 v13, v29, v31
v_lshlrev_b32 v8, 16, v12
v_and_b32 v9, 0xffff0000, v12
v_lshlrev_b32 v10, 16, v13
v_and_b32 v11, 0xffff0000, v13
v_add_f32 v10, 0x3727c5ac, v10
v_add_f32 v11, 0x3727c5ac, v11
v_cvt_pk_bf16_f32 v13, v10, v11
v_lshlrev_b32 v10, 16, v13
v_and_b32 v11, 0xffff0000, v13
v_sqrt_f32 v10, v10
v_sqrt_f32 v11, v11''')
        for e in range(8):
            k(f'v_mov_b32_dpp v{16+e}, v{8+(e&1)} quad_perm:[{e>>1},{e>>1},{e>>1},{e>>1}] row_mask:0xf bank_mask:0xf')
        k(f'''v_cvt_pk_bf16_f32 v13, v10, v11
v_lshlrev_b32 v10, 16, v13
v_and_b32 v11, 0xffff0000, v13
v_rcp_f32 v10, v10
v_rcp_f32 v11, v11''')
        for i in range(NT):
            d = 40 + 8 * i
            for e in range(0, 8, 2):
                k(f'v_pk_add_f32 {vr(d+e,2)}, {vr(d+e,2)}, {vr(16+e,2)} neg_lo:[0,1] neg_hi:[0,1]')
            if i == 0:
                for e in range(8):
                    k(f'v_mov_b32_dpp v{24+e}, v{10+(e&1)} quad_perm:[{e>>1},{e>>1},{e>>1},{e>>1}] row_mask:0xf bank_mask:0xf')
            o = 72 + 4 * i
            for r in range(4): k(f'v_cvt_pk_bf16_f32 v{o+r}, v{d+2*r}, v{d+2*r+1}')
            for r in range(4): k(f'v_lshlrev_b32 v{d+2*r}, 16, v{o+r}\nv_and_b32 v{d+1+2*r}, 0xffff0000, v{o+r}')
            for e in range(0, 8, 2):
                k(f'v_pk_mul_f32 {vr(d+e,2)}, {vr(d+e,2)}, {vr(24+e,2)}')
            for r in range(4): k(f'v_cvt_pk_bf16_f32 v{o+r}, v{d+2*r}, v{d+2*r+1}')
            k(f'buffer_store_dwordx4 {vr(o,4)}, v3, s[16:19], s44 offen sc1')
            if i < NT - 1: k('s_add_u32 s44, s44, 8192')
        tail(True, wq, rest)
    for g in range(2):
        for z in range(2):
            k(f'{L[g,z]}:')
            path(g, z)


def gen_ka(opt):
    k = Kern('ka_kernel', 256, 512, 163840, nvgpr=128, nagpr=128)
    END = k.label('end')
    k(f's_cmp_ge_u32 s2, 256\ns_cbranch_scc1 {END}')
    k.stamp(True)
    ph_k2a(k, opt, None)
    ph_g1(k, opt, END, None)
    k.finish(END)
    return k


def gen_p(opt, g3=True):
    k = Kern('kp_kernel', 256, 512, 163840, nvgpr=128, nagpr=128)
    END = k.label('end'); G2 = k.label('g2'); G3 = k.label('g3')
    k(f's_cmp_ge_u32 s2, 256\ns_cbranch_scc1 {END}')
    k.stamp(True)
    wb = Bulk(k, [] if opt.get('now') else g2_wops())
    ph_k2a(k, opt, wb)
    ph_g1(k, opt, G2, wb, True)
    k(f'{G2}:')
    st(k, 0, 6)
    vm = Cnt('vmcnt', 63); vm.issue('w')
    if g3:
        g3_wo_setup(k)
        ph_g2(k, opt, G3, vm, True, [] if opt.get('noo') else g3_wo_ops())
        k(f'{G3}:')
        ph_g3(k, opt, True)
    else:
        ph_g2(k, opt, END, vm, False)
    k.finish(END)
    return k


def gen_q(opt):
    k = Kern('k1_kernel', 256, 512, 163840, nvgpr=128, nagpr=128)
    END = k.label('end'); G2 = k.label('g2'); G3 = k.label('g3')
    k(f's_cmp_ge_u32 s2, 256\ns_cbranch_scc1 {END}')
    k.stamp(True)
    wb = Bulk(k, [] if opt.get('now') else g2_wops())
    ph_k12(k, opt, wb)
    ph_g1(k, opt, G2, wb, True)
    k(f'{G2}:')
    st(k, 0, 6)
    vm = Cnt('vmcnt', 63); vm.issue('w')
    g3_wo_setup(k)
    if opt.get('g3s'):
        k('s_lshl_b32 s61, s35, 3\ns_add_u32 s61, s61, s34\ns_lshl_b32 s61, s61, 14\ns_add_u32 s62, s61, 8192')
        na = ph_g2(k, opt, G3, vm, True, g3_wo_ops(), g3s_early())
        k(f'{G3}:')
        ph_g3s(k, opt, na)
        k.finish(END)
        return k
    ph_g2(k, opt, G3, vm, True, [] if opt.get('noo') else g3_wo_ops())
    k(f'{G3}:')
    ph_g3(k, opt, True)
    k.finish(END)
    return k


def build(opt):
    lv = opt.get('lv', 1)
    if lv == 4: return [gen_fft.gen_k0(), gen_q(opt)]
    ks = [gen_fft.gen_k0(), gen_fft.gen_k1c()]
    if lv == 1: ks += [gen_ka(opt), gen_g2(opt), gen_g3(opt)]
    if lv == 2: ks += [gen_p(opt, False), gen_g3(opt)]
    if lv == 3: ks += [gen_p(opt)]
    return ks


def g3_wo_setup(k):
    srd_from(k, 28, 40, 41, WS_WO, WO8_BYTES)
    k(f'''s_lshl_b32 s60, s36, 3
s_add_u32 s60, s60, s34
s_mul_i32 s60, s60, {WOB}''')


def g3_wo_ops():
    ops = []
    for i in range(15):
        s = f'buffer_load_dwordx4 {ar(4*i,4)}, v3, s[28:31], s60 offen offset:{1024*(i%4)}'
        if i % 4 == 3: s += '\ns_add_u32 s60, s60, 4096'
        if i == 14: s += '\ns_add_u32 s60, s60, 3072'
        ops.append(s)
    for n in range(5):
        ops.append(f'buffer_load_dwordx2 {ar(60+2*n,2)}, v2, s[28:31], s60 offen offset:{512*n}')
    return ops


def ph_g3(k, opt, fused):
    vm = Cnt('vmcnt', 63); lg = Cnt('lgkmcnt', 15)
    srd_from(k, 8, 40, 41, WS_Z1 if opt.get('ain') else WS_A, A2_BYTES)
    srd_from(k, 12, 80, 81, 0, X_BYTES) if opt.get('hout') else srd_from(k, 12, 40, 41, WS_H, X_BYTES)
    k(f'''s_lshl_b32 s44, s35, 3
s_add_u32 s44, s44, s34
s_lshl_b32 s44, s44, 14
v_lshrrev_b32 v1, 4, v3
v_and_b32 v6, 15, v1
v_lshrrev_b32 v7, 4, v1''')
    k(f'''s_lshr_b32 s45, s34, 1
s_mul_i32 s45, s45, 40960
s_and_b32 s46, s34, 1
s_lshl_b32 s46, s46, 3''')
    for p in range(3):
        k(f'''v_add_u32 v8, {64*p}, v1
v_mul_u32_u24 v9, 3277, v8
v_lshrrev_b32 v9, 16, v9
v_mul_u32_u24 v10, 20, v9
v_sub_u32 v10, v8, v10
v_add_u32 v9, s46, v9
v_add_u32 v11, v9, v10
v_and_b32 v11, 15, v11
v_lshlrev_b32 v11, 4, v11
v_lshrrev_b32 v12, 2, v10
v_lshl_add_u32 v11, v12, 13, v11
v_and_b32 v12, 3, v10
v_lshl_add_u32 v11, v12, 8, v11
v_add_u32 v{116+p}, s45, v11
v_lshrrev_b32 v11, 2, v9
v_and_b32 v12, 3, v9
v_lshl_add_u32 v11, v12, 8, v11
v_mul_u32_u24 v11, 1280, v11
v_lshl_add_u32 v{120+p}, v10, 3, v11''')
    k(f'''v_mov_b32 v8, 0x7fffffff
v_cmp_gt_u32 vcc, 32, v1
v_cndmask_b32 v122, v8, v122, vcc
s_lshl_b32 s47, s35, 3
s_and_b32 s43, s34, 2
s_lshl_b32 s43, s43, 1
s_add_u32 s47, s47, s43
s_and_b32 s43, s34, 4
s_lshl_b32 s43, s43, 8
s_add_u32 s47, s47, s43
s_mul_i32 s47, s47, 1280
s_mul_i32 s43, s36, 160
s_add_u32 s47, s47, s43''')
    for p in range(3):
        k(f'buffer_load_dwordx2 {vr(104+2*p,2)}, v{120+p}, s[12:15], s47 offen'); vm.issue('h')
    k(f'''s_lshl_b32 s43, s34, 10
v_add_u32 v8, v6, v7
v_lshlrev_b32 v9, 8, v7
v_add_u32 v9, s43, v9''')
    for n in range(5):
        k(f'''v_add_u32 v10, {4*n}, v8
v_and_b32 v10, 15, v10
v_lshl_add_u32 v10, v10, 4, v9
v_add_u32 v{88+n}, {8192*n}, v10
v_add_u32 v{93+n}, {8192*n+81920}, v10''')
    if fused:
        NP3 = k.label('np3')
        k(f'''s_waitcnt vmcnt(0)
s_barrier
s_cmp_lg_u32 s34, 0
s_cbranch_scc1 {NP3}
s_lshl_b32 s42, s35, {3+FS}
s_add_u32 s42, s42, {FL3}
s_lshl_b32 s46, s36, {FS}
s_add_u32 s46, s46, s42''')
        flag_poll(k, 46, 42, 8, opt.get('g3sl', 0), opt.get('g3d', 0))
        k(f'{NP3}:\ns_barrier')
        vm.done = 3
    st(k, 3, 1); st(k, 0, 8)
    k(f's_cmp_eq_u32 s34, 7\ns_cselect_b32 s48, {BIG}, 0')
    AF = lambda tt, p: 72 + 14 * tt + 4 * p
    for tt in range(4):
        for p in range(3):
            k(f'buffer_load_dwordx4 {ar(AF(tt,p),4)}, v3, s[8:11], s44 offen offset:{1024*p}'); vm.issue(f'a{tt}{p}')
        k(f's_add_u32 s49, s44, s48\nbuffer_load_dwordx2 {ar(AF(tt,3),2)}, v2, s[8:11], s49 offen offset:3072'); vm.issue(f'a{tt}3')
        if tt < 3: k('s_add_u32 s44, s44, 4096')
    srd_from(k, 16, 80, 81, 0, X_BYTES)
    ACC = lambda tt, n: 8 + 20 * (tt & 1) + 4 * n
    pend = []
    for tt in range(4):
        for p in range(4):
            x = vm.wait(f'a{tt}{p}')
            if x: k(x)
            if tt == 0 and p == 0: st(k, 3, 2)
            for n in range(5):
                acc = vr(ACC(tt, n), 4)
                if p < 3: k(f'{MFMA} {acc}, {ar(20*p+4*n,4)}, {ar(AF(tt,p),4)}, {"0" if p == 0 else acc}')
                else: k(f'{MF16} {acc}, {ar(60+2*n,2)}, {ar(AF(tt,3),2)}, {acc}')
                if pend and (5 * p + n) % 3 == 2: k(pend.pop(0))
        for n in range(5):
            pend.append(f'ds_write_b128 v{88+5*(tt>>1)+n}, {vr(ACC(tt,n),4)} offset:{40960*(tt&1)}')
    for o in pend: k(o)
    st(k, 3, 3)
    k('s_waitcnt lgkmcnt(0)\ns_barrier')
    st(k, 3, 4)
    for p in range(3):
        for s in range(8):
            k(f'ds_read_b128 {vr(8+32*p+4*s,4)}, v{116+p} offset:{1024*s}'); lg.issue(f'r{p}{s}')
        if p == 0:
            for q in range(3):
                k(f'v_lshlrev_b32 v{110+2*q}, 16, v{104+2*q}\nv_and_b32 v{104+2*q}, 0xffff0000, v{104+2*q}')
    for p in range(3):
        a = 8 + 32 * p
        for s in (0, 2, 4, 6):
            x = lg.wait(f'r{p}{s+1}')
            if x: k(x)
            for h in range(2): k(f'v_pk_add_f32 {vr(a+4*s+2*h,2)}, {vr(a+4*s+2*h,2)}, {vr(a+4*s+4+2*h,2)}')
            if s in (2, 6):
                for h in range(2): k(f'v_pk_add_f32 {vr(a+4*s-8+2*h,2)}, {vr(a+4*s-8+2*h,2)}, {vr(a+4*s+2*h,2)}')
        for h in range(2): k(f'v_pk_add_f32 {vr(a+2*h,2)}, {vr(a+2*h,2)}, {vr(a+16+2*h,2)}')
        k(f'''v_cvt_pk_bf16_f32 v{a+4}, v{a}, v{a+1}
v_cvt_pk_bf16_f32 v{a+5}, v{a+2}, v{a+3}
v_lshlrev_b32 v{a+8}, 16, v{105+2*p}
v_and_b32 v{a+9}, 0xffff0000, v{105+2*p}
v_lshlrev_b32 v{a}, 16, v{a+4}
v_and_b32 v{a+1}, 0xffff0000, v{a+4}
v_lshlrev_b32 v{a+2}, 16, v{a+5}
v_and_b32 v{a+3}, 0xffff0000, v{a+5}
v_add_f32 v{a}, v{a}, v{110+2*p}
v_add_f32 v{a+1}, v{a+1}, v{104+2*p}
v_pk_add_f32 {vr(a+2,2)}, {vr(a+2,2)}, {vr(a+8,2)}
v_cvt_pk_bf16_f32 v{a+4}, v{a}, v{a+1}
v_cvt_pk_bf16_f32 v{a+5}, v{a+2}, v{a+3}
buffer_store_dwordx2 {vr(a+4,2)}, v{120+p}, s[16:19], s47 offen''')


def g3s_ld(tt, p, fl=''):
    if p < 2: return f'buffer_load_dwordx4 {vr(56+8*tt+4*p,4)}, v3, s[16:19], s{61+(tt>>1)} offen offset:{1024*p}{fl}' if not (tt & 1) else \
        f'buffer_load_dwordx4 {vr(56+8*tt+4*p,4)}, v88, s[16:19], s{61+(tt>>1)} offen offset:{1024*p}{fl}'
    if p == 2: return f'buffer_load_dwordx4 {vr(8+4*tt,4)}, v{88 if tt & 1 else 3}, s[16:19], s{61+(tt>>1)} offen offset:2048{fl}'
    return f'buffer_load_dwordx2 {vr(24+2*tt,2)}, v{89 if tt & 1 else 2}, s[16:19], s{63+(tt>>1)} offen offset:3072{fl}'


def g3s_early():
    ops = [g3s_ld(tt, p) for p in range(2) for tt in range(4)]
    ops[0] = 'v_add_u32 v88, 4096, v3\nv_add_u32 v89, 4096, v2\n' + ops[0]
    return ops


def chk_max(k, regs, t):
    regs = list(regs)
    acc = [None, None]; i = 0
    while regs:
        j = i & 1; i += 1
        if acc[j] is None:
            if len(regs) >= 3: k(f'v_max3_u32 v{t+j}, v{regs[0]}, v{regs[1]}, v{regs[2]}'); regs = regs[3:]
            elif len(regs) == 2: k(f'v_max_u32 v{t+j}, v{regs[0]}, v{regs[1]}'); regs = []
            else: k(f'v_mov_b32 v{t+j}, v{regs[0]}'); regs = []
            acc[j] = 1
        elif len(regs) >= 2: k(f'v_max3_u32 v{t+j}, v{t+j}, v{regs[0]}, v{regs[1]}'); regs = regs[2:]
        else: k(f'v_max_u32 v{t+j}, v{t+j}, v{regs[0]}'); regs = []
    if acc[1]: k(f'v_max_u32 v{t}, v{t}, v{t+1}')
    k(f'v_cmp_eq_u32 vcc, -1, v{t}')


def ph_g3s(k, opt, na):
    vm = Cnt('vmcnt', 63); lg = Cnt('lgkmcnt', 15)
    if opt.get('g3e', 0) == 3:
        for o in g3s_early(): k(o)
        na = 0
    vm.issue('e')
    for _ in range(na): vm.issue('s')
    srd_from(k, 12, 80, 81, 0, X_BYTES) if opt.get('hout') else srd_from(k, 12, 40, 41, WS_H, X_BYTES)
    LW = 90
    k(f'''s_cmp_eq_u32 s34, 7
s_cselect_b32 s63, {BIG}, s61
s_cselect_b32 s64, {BIG}, s62
v_lshrrev_b32 v1, 4, v3
v_and_b32 v6, 15, v1
v_lshrrev_b32 v7, 4, v1
s_lshr_b32 s45, s34, 1
s_mul_i32 s45, s45, 40960
s_and_b32 s46, s34, 1
s_lshl_b32 s46, s46, 3''')
    I2 = opt.get('g3i', [0, 20])
    if I2[0] < 0:
        for tt in range(4): k(g3s_ld(tt, 2, ' sc1')); vm.issue('p2')
    for p in range(3):
        k(f'''v_add_u32 v100, {64*p}, v1
v_mul_u32_u24 v101, 3277, v100
v_lshrrev_b32 v101, 16, v101
v_mul_u32_u24 v102, 20, v101
v_sub_u32 v102, v100, v102
v_add_u32 v101, s46, v101
v_add_u32 v103, v101, v102
v_and_b32 v103, 15, v103
v_lshlrev_b32 v103, 4, v103
v_lshrrev_b32 v110, 2, v102
v_lshl_add_u32 v103, v110, 13, v103
v_and_b32 v110, 3, v102
v_lshl_add_u32 v103, v110, 8, v103
v_add_u32 v{116+p}, s45, v103
v_lshrrev_b32 v103, 2, v101
v_and_b32 v110, 3, v101
v_lshl_add_u32 v103, v110, 8, v103
v_mul_u32_u24 v103, 1280, v103
v_lshl_add_u32 v{120+p}, v102, 3, v103''')
    k(f'''v_mov_b32 v100, 0x7fffffff
v_cmp_gt_u32 vcc, 32, v1
v_cndmask_b32 v122, v100, v122, vcc
s_lshl_b32 s47, s35, 3
s_and_b32 s43, s34, 2
s_lshl_b32 s43, s43, 1
s_add_u32 s47, s47, s43
s_and_b32 s43, s34, 4
s_lshl_b32 s43, s43, 8
s_add_u32 s47, s47, s43
s_mul_i32 s47, s47, 1280
s_mul_i32 s43, s36, 160
s_add_u32 s47, s47, s43''')
    for p in range(3):
        k(f'buffer_load_dwordx2 {vr(104+2*p,2)}, v{120+p}, s[12:15], s47 offen'); vm.issue('h')
    k(f'''s_lshl_b32 s43, s34, 10
v_add_u32 v100, v6, v7
v_lshlrev_b32 v101, 8, v7
v_add_u32 v101, s43, v101''')
    for n in range(5):
        k(f'''v_add_u32 v102, {4*n}, v100
v_and_b32 v102, 15, v102
v_lshl_add_u32 v102, v102, 4, v101
v_add_u32 v{LW+n}, {8192*n}, v102
v_add_u32 v{LW+5+n}, {8192*n+81920}, v102''')
    srd_from(k, 8, 80, 81, 0, X_BYTES)

    def ACC(tt, n):
        i = 5 * tt + n
        return ar(72 + 4 * i, 4) if i < 14 else vr(32 + 4 * (i - 14), 4)

    def gate(tag, regs, lds, sl):
        LP = k.label('lp'); LD = k.label('ld')
        k(vm.wait(tag) or '')
        chk_max(k, regs, 100)
        k(f's_cbranch_vccz {LD}\ns_mov_b32 s43, {SPIN}\n{LP}:')
        if sl: k(f's_sleep {sl}')
        for o in lds: k(o)
        k('s_waitcnt vmcnt(0)')
        chk_max(k, regs, 100)
        k(f's_cbranch_vccz {LD}\ns_sub_u32 s43, s43, 1\ns_cmp_lg_u32 s43, 0\ns_cbranch_scc1 {LP}\n{LD}:')
    st(k, 3, 1); st(k, 0, 8)
    gate('e', range(56, 88), [g3s_ld(tt, p, ' sc1') for p in range(2) for tt in range(4)], 0)
    st(k, 3, 2)
    i = 0
    for p in range(3):
        if p == 2:
            st(k, 3, 5)
            gate('p2', range(8, 24), [g3s_ld(tt, 2, ' sc1') for tt in range(4)], opt.get('g3r', 0))
            st(k, 3, 6)
            k('s_barrier')
        for tt in range(4):
            for n in range(5):
                if i == I2[0]:
                    for t2 in range(4): k(g3s_ld(t2, 2, ' sc1')); vm.issue('p2')
                if i == I2[1]:
                    for t2 in range(4): k(g3s_ld(t2, 3, ' sc1')); vm.issue('p3')
                acc = ACC(tt, n)
                b = vr(56 + 8 * tt + 4 * p, 4) if p < 2 else vr(8 + 4 * tt, 4)
                k(f'{MFMA} {acc}, {ar(20*p+4*n,4)}, {b}, {"0" if p == 0 else acc}')
                i += 1
    st(k, 3, 7)
    gate('p3', range(24, 32), [g3s_ld(tt, 3, ' sc1') for tt in range(4)], opt.get('g3r', 0))
    st(k, 3, 8)
    pend = []
    for tt in range(4):
        for n in range(5):
            acc = ACC(tt, n)
            k(f'{MF16} {acc}, {ar(60+2*n,2)}, {vr(24+2*tt,2)}, {acc}')
            pend.append(f'ds_write_b128 v{LW+5*(tt>>1)+n}, {acc} offset:{40960*(tt&1)}')
            if len(pend) > 3: k(pend.pop(0))
    for o in pend: k(o)
    st(k, 3, 3)
    k('s_waitcnt lgkmcnt(0)\ns_barrier')
    st(k, 3, 4)
    for p in range(3):
        for s in range(8):
            k(f'ds_read_b128 {vr(8+32*p+4*s,4)}, v{116+p} offset:{1024*s}'); lg.issue(f'r{p}{s}')
        if p == 0:
            for q in range(3):
                k(f'v_lshlrev_b32 v{110+2*q}, 16, v{104+2*q}\nv_and_b32 v{104+2*q}, 0xffff0000, v{104+2*q}')
    for p in range(3):
        a = 8 + 32 * p
        for s in (0, 2, 4, 6):
            x = lg.wait(f'r{p}{s+1}')
            if x: k(x)
            for h in range(2): k(f'v_pk_add_f32 {vr(a+4*s+2*h,2)}, {vr(a+4*s+2*h,2)}, {vr(a+4*s+4+2*h,2)}')
            if s in (2, 6):
                for h in range(2): k(f'v_pk_add_f32 {vr(a+4*s-8+2*h,2)}, {vr(a+4*s-8+2*h,2)}, {vr(a+4*s+2*h,2)}')
        for h in range(2): k(f'v_pk_add_f32 {vr(a+2*h,2)}, {vr(a+2*h,2)}, {vr(a+16+2*h,2)}')
        k(f'''v_cvt_pk_bf16_f32 v{a+4}, v{a}, v{a+1}
v_cvt_pk_bf16_f32 v{a+5}, v{a+2}, v{a+3}
v_lshlrev_b32 v{a+8}, 16, v{105+2*p}
v_and_b32 v{a+9}, 0xffff0000, v{105+2*p}
v_lshlrev_b32 v{a}, 16, v{a+4}
v_and_b32 v{a+1}, 0xffff0000, v{a+4}
v_lshlrev_b32 v{a+2}, 16, v{a+5}
v_and_b32 v{a+3}, 0xffff0000, v{a+5}
v_add_f32 v{a}, v{a}, v{110+2*p}
v_add_f32 v{a+1}, v{a+1}, v{104+2*p}
v_pk_add_f32 {vr(a+2,2)}, {vr(a+2,2)}, {vr(a+8,2)}
v_cvt_pk_bf16_f32 v{a+4}, v{a}, v{a+1}
v_cvt_pk_bf16_f32 v{a+5}, v{a+2}, v{a+3}
buffer_store_dwordx2 {vr(a+4,2)}, v{120+p}, s[8:11], s47 offen''')


def gen_g3(opt):
    k = Kern('k4_kernel', 256, 512, 163840, nvgpr=128, nagpr=128)
    END = k.label('end')
    k(f'''s_cmp_ge_u32 s2, 256
s_cbranch_scc1 {END}
s_load_dwordx2 s[40:41], s[0:1], 80
s_load_dwordx2 s[80:81], s[0:1], 64''')
    k.stamp(True)
    map_g2(k)
    k(f'''v_lshrrev_b32 v1, 6, v0
v_and_b32 v2, 63, v0
v_readfirstlane_b32 s34, v1
v_lshlrev_b32 v3, 4, v2
v_lshlrev_b32 v2, 3, v2
s_waitcnt lgkmcnt(0)''')
    g3_wo_setup(k)
    for o in g3_wo_ops(): k(o)
    ph_g3(k, opt, False)
    k.finish(END)
    return k


def wq_role(k, base, END, half=None, fl='', sl=0):
    n = 256 if half is None else 128
    k(f'''s_sub_u32 s33, s2, {base}
s_cmp_ge_u32 s33, {n}
s_cbranch_scc1 {END}
s_load_dwordx2 s[4:5], s[0:1], 40
s_load_dwordx2 s[40:41], s[0:1], 80
{f"s_add_u32 s33, s33, 128" if half else ""}
v_lshrrev_b32 v1, 6, v0
v_and_b32 v2, 63, v0
v_readfirstlane_b32 s34, v1
v_lshlrev_b32 v3, 4, v2
v_lshrrev_b32 v4, 4, v2
v_bfe_u32 v5, v2, 2, 2
v_and_b32 v6, 3, v2
v_lshlrev_b32 v6, 4, v6
v_lshl_add_u32 v6, v4, 12, v6
v_lshl_add_u32 v6, v5, 20, v6
v_and_b32 v7, 15, v2
v_lshlrev_b32 v7, 6, v7
v_lshl_add_u32 v7, v4, 10, v7
s_lshl_b32 s39, s34, 12
v_add_u32 v7, s39, v7
s_bfe_u32 s35, s33, 0x20001
s_lshl_b32 s35, s35, 3
s_bfe_u32 s36, s33, 0x30003
s_add_u32 s35, s35, s36
s_lshr_b32 s36, s33, 6
s_and_b32 s37, s33, 1
s_lshl_b32 s42, s35, 15
s_and_b32 s43, s36, 1
s_lshl_b32 s43, s43, 14
s_add_u32 s42, s42, s43
s_lshr_b32 s43, s36, 1
s_lshl_b32 s43, s43, 22
s_add_u32 s42, s42, s43
s_lshl_b32 s43, s34, 6
s_add_u32 s42, s42, s43
s_lshl_b32 s43, s37, 11
s_add_u32 s42, s42, s43
s_lshl_b32 s44, s35, 3
s_add_u32 s44, s44, s34
s_lshl_b32 s44, s44, 15
s_lshl_b32 s43, s37, 12
s_add_u32 s44, s44, s43
s_lshl_b32 s43, s36, 10
s_add_u32 s44, s44, s43
s_waitcnt lgkmcnt(0)''')
    srd_from(k, 4, 4, 5, 0, 2048 * 4096)
    if sl: k(f's_sleep {sl}')
    M = gen_fft.OPT.get('wqm', 0)
    if M & 4:
        k('s_lshl_b32 s42, s33, 3\ns_add_u32 s42, s42, s34\ns_lshl_b32 s42, s42, 12')
        for g in range(4):
            k(f's_add_u32 m0, s39, 0')
            k(f'buffer_load_dwordx4 v3, s[4:7], s42 offen offset:{1024*g}{fl} lds')
    for g in range(4):
        if M & 6: break
        k(f's_add_u32 m0, s39, {512*g}')
        k(f'buffer_load_dwordx4 v6, s[4:7], s42 offen offset:{512*g}{fl} lds')
    srd_from(k, 8, 40, 41, WS_WS, WSP_BYTES)
    k('s_waitcnt vmcnt(0)')
    for c in range(4): k(f'ds_read_b128 {vr(8+4*c,4)}, v7 offset:{16*c}')
    for c in range(4):
        k(f's_waitcnt lgkmcnt({3-c})')
        if M & 1: continue
        k(f'buffer_store_dwordx4 {vr(8+4*c,4)}, v3, s[8:11], s44 offen{" nt" if M & 8 else ""}{" ; sc1" if M & 16 else " sc1"}')
        if c < 3: k('s_add_u32 s44, s44, 8192')
    k(f's_endpgm')
```

```python
from asmlib import *
from tables import TAB_BYTES

WS_T = 0x000000
WS_U = 0x300000
WS_H = 0x600000
WS_HN = 0x900000
WS_WF = 0x1E00000
WF_BYTES = 8 * 336 * 1024
import os
TP = int(os.environ.get('TP', 1344))
TU_BYTES = 256 * 8 * TP
X_BYTES = 2048 * 640 * 2
MFMA = 'v_mfma_f32_16x16x32_bf16'


def vr(a, n=1):
    return f'v{a}' if n == 1 else f'v[{a}:{a+n-1}]'


def sr(a, n=1):
    return f's{a}' if n == 1 else f's[{a}:{a+n-1}]'


def srd_from(k, s, lo, hi, off, size):
    if off:
        k(f's_add_u32 s{s}, s{lo}, 0x{off:x}\ns_addc_u32 s{s+1}, s{hi}, 0')
    elif s != lo:
        k(f's_mov_b32 s{s}, s{lo}\ns_mov_b32 s{s+1}, s{hi}')
    k(f's_mov_b32 s{s+2}, 0x{size:x}\ns_mov_b32 s{s+3}, 0x00020000')


def tab_srd(k, s):
    k(f'''s_getpc_b64 s[{s}:{s+1}]
s_add_u32 s{s}, s{s}, tab@rel32@lo+4
s_addc_u32 s{s+1}, s{s+1}, tab@rel32@hi+12
s_mov_b32 s{s+2}, {TAB_BYTES}
s_mov_b32 s{s+3}, 0x00020000''')


def code_srd(k, s, lab, end):
    k(f'''s_getpc_b64 s[{s}:{s+1}]
s_add_u32 s{s}, s{s}, {lab}@rel32@lo+4
s_addc_u32 s{s+1}, s{s+1}, {lab}@rel32@hi+12
s_mov_b32 s{s+2}, {end}-{lab}
s_mov_b32 s{s+3}, 0x00020000''')


OPT = {}
PFF = lambda: '' if OPT.get('nont') else 'nt'


def cmul_planar(k, a, b, c, d, ore, oim, t, conj=False):
    for h in (0, 2):
        k(f'v_pk_mul_f32 {vr(t+h,2)}, {vr(b+h,2)}, {vr(d+h,2)}')
    for h in (0, 2):
        k(f'v_pk_mul_f32 {vr(oim+h,2)}, {vr(b+h,2)}, {vr(c+h,2)}')
    for h in (0, 2):
        if not conj:
            k(f'v_pk_fma_f32 {vr(ore+h,2)}, {vr(a+h,2)}, {vr(c+h,2)}, {vr(t+h,2)} neg_lo:[0,0,1] neg_hi:[0,0,1]')
        else:
            k(f'v_pk_fma_f32 {vr(ore+h,2)}, {vr(a+h,2)}, {vr(c+h,2)}, {vr(t+h,2)}')
    for h in (0, 2):
        if not conj:
            k(f'v_pk_fma_f32 {vr(oim+h,2)}, {vr(a+h,2)}, {vr(d+h,2)}, {vr(oim+h,2)}')
        else:
            k(f'v_pk_fma_f32 {vr(oim+h,2)}, {vr(a+h,2)}, {vr(d+h,2)}, {vr(oim+h,2)} neg_lo:[1,0,0] neg_hi:[1,0,0]')


def wave_reduce2(k, a, b, sa, sb):
    for m in ('quad_perm:[1,0,3,2] row_mask:0xf bank_mask:0xf', 'quad_perm:[2,3,0,1] row_mask:0xf bank_mask:0xf',
              'row_half_mirror row_mask:0xf bank_mask:0xf', 'row_mirror row_mask:0xf bank_mask:0xf',
              'row_bcast:15 row_mask:0xa bank_mask:0xf', 'row_bcast:31 row_mask:0xc bank_mask:0xf'):
        k(f'v_add_f32_dpp v{a}, v{a}, v{a} {m}')
        k(f'v_add_f32_dpp v{b}, v{b}, v{b} {m}')
    k(f'v_readlane_b32 s{sa}, v{a}, 63\nv_readlane_b32 s{sb}, v{b}, 63')


def ln_stats(k, sa, sb, n, vm, vrs, t):
    inv = np.float32(1.0 / n).view(np.uint32)
    k(f'''v_mov_b32 v{t}, 0x{inv:x}
v_mul_f32 v{vm}, s{sa}, v{t}
v_mul_f32 v{t+1}, s{sb}, v{t}
v_fma_f32 v{t+1}, -v{vm}, v{vm}, v{t+1}
v_max_f32 v{t+1}, 0, v{t+1}
v_cvt_pk_bf16_f32 v{t}, v{vm}, v{t+1}
v_lshlrev_b32 v{vm}, 16, v{t}
v_and_b32 v{t+1}, 0xffff0000, v{t}
v_add_f32 v{t+1}, 0x3727c5ac, v{t+1}
v_cvt_pk_bf16_f32 v{t}, v{t+1}, v{t+1}
v_and_b32 v{t}, 0xffff0000, v{t}
v_sqrt_f32 v{t}, v{t}
v_cvt_pk_bf16_f32 v{t}, v{t}, v{t}
v_and_b32 v{t}, 0xffff0000, v{t}
v_rcp_f32 v{vrs}, v{t}''')


def ln_apply(k, f, n, vm, vrs, out):
    for i in range(0, n, 2):
        k(f'v_pk_add_f32 {vr(f+i,2)}, {vr(f+i,2)}, {vr(vm,2)} op_sel_hi:[1,0] neg_lo:[0,1] neg_hi:[0,1]')
    for i in range(0, n, 2):
        k(f'v_cvt_pk_bf16_f32 v{out+i//2}, v{f+i}, v{f+i+1}')
    for i in range(0, n, 2):
        k(f'v_lshlrev_b32 v{f+i}, 16, v{out+i//2}\nv_and_b32 v{f+i+1}, 0xffff0000, v{out+i//2}')
    for i in range(0, n, 2):
        k(f'v_pk_mul_f32 {vr(f+i,2)}, {vr(f+i,2)}, {vr(vrs,2)} op_sel_hi:[1,0]')
    for i in range(0, n, 2):
        k(f'v_cvt_pk_bf16_f32 v{out+i//2}, v{f+i}, v{f+i+1}')


SW = 'op_sel:[0,1] op_sel_hi:[1,0]'


def fft8(k, R, A, inverse, vs):
    r = lambda i: vr(R + 2 * i, 2)
    a = lambda i: vr(A + 2 * i, 2)
    neg = 'neg_lo:[0,1] neg_hi:[0,1]'
    mi = SW + ' neg_hi:[0,1]'
    pi = SW + ' neg_lo:[0,1]'
    if inverse: mi, pi = pi, mi
    k(f'''v_pk_add_f32 {a(0)}, {r(0)}, {r(4)}
v_pk_add_f32 {a(1)}, {r(0)}, {r(4)} {neg}
v_pk_add_f32 {a(2)}, {r(2)}, {r(6)}
v_pk_add_f32 {a(3)}, {r(2)}, {r(6)} {neg}
v_pk_add_f32 {a(4)}, {r(1)}, {r(5)}
v_pk_add_f32 {a(5)}, {r(1)}, {r(5)} {neg}
v_pk_add_f32 {a(6)}, {r(3)}, {r(7)}
v_pk_add_f32 {a(7)}, {r(3)}, {r(7)} {neg}
v_pk_add_f32 {r(0)}, {a(0)}, {a(2)}
v_pk_add_f32 {r(1)}, {a(0)}, {a(2)} {neg}
v_pk_add_f32 {r(2)}, {a(4)}, {a(6)}
v_pk_add_f32 {r(3)}, {a(4)}, {a(6)} {neg}
v_pk_add_f32 {r(4)}, {a(1)}, {a(3)} {mi}
v_pk_add_f32 {r(5)}, {a(1)}, {a(3)} {pi}
v_pk_add_f32 {r(6)}, {a(5)}, {a(7)} {mi}
v_pk_add_f32 {r(7)}, {a(5)}, {a(7)} {pi}
v_pk_add_f32 {a(0)}, {r(0)}, {r(2)}
v_pk_add_f32 {a(4)}, {r(0)}, {r(2)} {neg}
v_pk_add_f32 {a(2)}, {r(1)}, {r(3)} {mi}
v_pk_add_f32 {a(6)}, {r(1)}, {r(3)} {pi}
v_pk_add_f32 {r(0)}, {r(6)}, {r(6)} {mi}
v_pk_add_f32 {r(1)}, {r(7)}, {r(7)} {pi}
v_pk_fma_f32 {a(1)}, {r(0)}, {vr(vs,2)}, {r(4)} op_sel_hi:[1,0,1]
v_pk_fma_f32 {a(5)}, {r(0)}, {vr(vs,2)}, {r(4)} op_sel_hi:[1,0,1] neg_lo:[1,0,0] neg_hi:[1,0,0]
v_pk_fma_f32 {a(3)}, {r(1)}, {vr(vs,2)}, {r(5)} op_sel_hi:[1,0,1] neg_lo:[1,0,0] neg_hi:[1,0,0]
v_pk_fma_f32 {a(7)}, {r(1)}, {vr(vs,2)}, {r(5)} op_sel_hi:[1,0,1]''')
    return [A + 2 * i for i in range(8)]


def smul(k, dst, src, s, tmp, conj=False):
    k(f'v_pk_mul_f32 {vr(tmp,2)}, {vr(src,2)}, {sr(s,2)} op_sel_hi:[1,0]')
    ng = 'neg_hi:[1,0,0]' if conj else 'neg_lo:[1,0,0]'
    k(f'v_pk_fma_f32 {vr(dst,2)}, {vr(src,2)}, {sr(s,2)}, {vr(tmp,2)} op_sel:[1,1,0] op_sel_hi:[0,1,1] {ng}')


def w_touch(k, mode, sp, sw, v):
    k(f'''s_mov_b32 s{sp+2}, {2048*4096}
s_mov_b32 s{sp+3}, 0x00020000
s_lshr_b32 s75, s2, 3
s_lshl_b32 s75, s75, 3
s_add_u32 s75, s75, s{sw}
s_lshl_b32 s75, s75, 1
s_and_b32 s80, s2, 1
{"s_add_u32 s75, s75, s80" if mode == 1 else ""}
s_and_b32 s80, s75, 63
s_lshr_b32 s81, s75, 6
s_lshl_b32 s81, s81, 8
s_add_u32 s80, s80, s81
s_bfe_u32 s81, s2, 0x20001
s_lshl_b32 s81, s81, 6
s_add_u32 s80, s80, s81
s_lshl_b32 s80, s80, 12
v_lshlrev_b32 v{v}, 7, v2
{"s_mov_b32 exec_hi, 0" if mode == 1 else ""}
buffer_load_ubyte v{v+1}, v{v}, s[{sp}:{sp+3}], s80 offen
{"s_mov_b32 exec_hi, -1" if mode == 1 else ""}''')


def k0_prefetch(k):
    L = [k.label('pf') for _ in range(8)]; J = k.label('pfj'); SK = k.label('pfs')
    if OPT.get('wl'):
        k(f'''s_mov_b32 s68, s12
s_mov_b32 s69, s13
s_mov_b32 s70, 0
s_mov_b32 s71, 0x00020000
s_mov_b32 s72, 0
v_mov_b32 v100, 0
s_cmp_lt_u32 s34, 5
s_cbranch_scc1 {J}''')
    elif not OPT.get('pfw'): k(f's_cmp_lt_u32 s34, 5\ns_cbranch_scc1 {SK}')
    k(f'''v_lshlrev_b32 v100, 7, v2
s_lshl_b32 s72, s2, 13
s_lshr_b32 s73, s2, 3
s_mov_b32 s71, 0x00020000
s_cmp_ge_u32 s34, 2
s_cbranch_scc1 {L[2]}
s_cmp_eq_u32 s34, 0
s_cselect_b32 s68, s56, s58
s_cselect_b32 s69, s57, s59
s_mov_b32 s70, {2048*642}
v_and_b32 v100, 7, v2
v_lshlrev_b32 v100, 7, v100
v_min_u32 v100, 640, v100
v_lshrrev_b32 v101, 3, v2
v_mul_u32_u24 v101, {8*642}, v101
v_add_u32 v100, v100, v101
s_and_b32 s72, s2, 7
s_lshl_b32 s74, s73, 6
s_add_u32 s72, s72, s74
s_mul_i32 s72, s72, 642
s_branch {J}
{L[2]}:
s_cmp_ge_u32 s34, 4
s_cbranch_scc1 {L[4]}
s_mov_b32 s68, s62
s_mov_b32 s69, s63
s_mov_b32 s70, {640*3456}
s_cmp_eq_u32 s34, 3
s_cselect_b32 s74, {1<<21}, 0
s_add_u32 s72, s72, s74
s_branch {J}
{L[4]}:
s_cmp_ge_u32 s34, 5
s_cbranch_scc1 {L[5]}
s_mov_b32 s68, s64
s_mov_b32 s69, s65
s_mov_b32 s70, {864*1280}
s_branch {J}
{L[5]}:
s_and_b32 s72, s73, 7
s_lshl_b32 s72, s72, 13
s_cmp_ge_u32 s34, 6
s_cbranch_scc1 {L[6]}
s_mov_b32 s68, s12
s_mov_b32 s69, s13
s_mov_b32 s70, s14
s_add_u32 s72, s72, 0x2000
s_branch {J}
{L[6]}:''')
    code_srd(k, 68, 'k1_kernel', 'code_end')
    k(f'''s_cmp_eq_u32 s34, 7
s_cselect_b32 s74, 0x10000, 0
s_add_u32 s72, s72, s74
{J}:
buffer_load_ubyte v101, v100, s[68:71], s72 offen
{SK}:''')


def k0_wrole(k, WROLE, END):
    k(f'''{WROLE}:
s_cmp_ge_u32 s2, 320
s_cbranch_scc1 {END}
s_load_dwordx4 s[4:7], s[0:1], 8
s_load_dwordx2 s[40:41], s[0:1], 80''')
    k.nst = 0
    k.stamp(True)
    k(f'''v_lshrrev_b32 v1, 6, v0
v_and_b32 v2, 63, v0
v_readfirstlane_b32 s34, v1
s_and_b32 s33, s2, 7
s_and_b32 s35, s2, 8
s_lshr_b32 s36, s2, 4
s_and_b32 s36, s36, 3
s_add_u32 s37, s35, s34
s_lshl_b32 s38, s36, 6
s_add_u32 s37, s37, s38
s_lshl_b32 s37, s37, 3
s_add_u32 s37, s37, s33
s_mul_i32 s42, s37, 642
s_and_b32 s42, s42, {-128 if OPT.get('wxb') else -4}
s_add_u32 s43, s42, {128*642}
s_add_u32 s44, s42, {256*642}
s_add_u32 s45, s42, {384*642}
v_lshlrev_b32 v3, 4, v2
s_mov_b32 exec_lo, -1
s_mov_b32 exec_hi, 0xff
s_waitcnt lgkmcnt(0)
s_mov_b32 s8, s6
s_mov_b32 s9, s7
s_mov_b32 s6, {2048*642}
s_mov_b32 s7, 0x00020000
s_mov_b32 s10, {2048*642}
s_mov_b32 s11, 0x00020000''')
    R = lambda r, a: 16 + 12 * r + 6 * a
    for r in range(4):
        k(f'buffer_load_dwordx4 {vr(R(r,0),4)}, v3, s[4:7], s{42+r} offen')
        k(f'buffer_load_dwordx4 {vr(R(r,1),4)}, v3, s[8:11], s{42+r} offen')
    if OPT.get('wxa'): k('s_mov_b64 exec, 1')
    for r in range(4):
        k(f'buffer_load_dword v{R(r,0)+4}, v3, s[4:7], s{42+r} offen offset:16')
        k(f'buffer_load_dword v{R(r,1)+4}, v3, s[8:11], s{42+r} offen offset:16')
    k('s_mov_b64 exec, -1')
    srd_from(k, 12, 40, 41, WS_WF, WF_BYTES)
    ODD = k.label('odd'); JN = k.label('jn')
    k(f'''s_lshl_b32 s38, s34, 4
v_mul_u32_u24 v6, 1040, v2
v_add_u32 v6, s38, v6
s_mul_i32 s38, s34, 1040
v_lshlrev_b32 v8, 4, v2
v_add_u32 v8, s38, v8
v_lshrrev_b32 v9, 3, v2
v_and_b32 v10, 7, v2
v_lshlrev_b32 v10, 4, v10
v_lshl_add_u32 v9, v9, 10, v10
s_mul_i32 s46, s33, {336*1024}
s_lshl_b32 s38, s36, 8
s_add_u32 s46, s46, s38
s_lshl_b32 s38, s35, 4
s_add_u32 s46, s46, s38
s_lshl_b32 s38, s34, 13
s_add_u32 s46, s46, s38
s_mov_b32 s47, 0x05040100
s_mov_b32 s48, 0x07060302
s_mov_b32 exec_lo, -1
s_mov_b32 exec_hi, 0xff
s_bitcmp1_b32 s33, 0
s_waitcnt vmcnt(8)''')
    k.stamp()
    k(f's_cbranch_scc1 {ODD}')
    for par in range(2):
        for j in range(9):
            hj = j + par
            if hj >= 8 and (j == 8 - par): k('s_waitcnt vmcnt(0)')
            if j == 8: k(f's_mov_b32 exec_lo, 0\ns_mov_b32 exec_hi, 0x80')
            for r in range(4):
                k(f'v_perm_b32 v{64+4*j+r}, v{R(r,1)+hj//2}, v{R(r,0)+hj//2}, s{47+(hj&1)}')
            k(f'ds_write_b128 v6, {vr(64+4*j,4)} offset:{128*j if j < 8 else 1040}')
        if par == 0: k(f's_branch {JN}\n{ODD}:')
    k(f'''{JN}:
s_mov_b64 exec, -1
s_waitcnt lgkmcnt(0)''')
    k.stamp()
    k('s_barrier')
    k.stamp()
    for i in range(5):
        k(f'ds_read_b128 {vr(16+4*i,4)}, v8 offset:{8*1040*i}')
    L = k.label('w5')
    k(f's_cmp_lg_u32 s34, 0\ns_cbranch_scc1 {L}\ns_mov_b64 exec, 0xff')
    k(f'''ds_read_b128 v[36:39], v8 offset:{40*1040}
s_add_u32 s38, s46, {320*1024}
s_waitcnt lgkmcnt(0)
buffer_store_dwordx4 v[36:39], v9, s[12:15], s38 offen sc1 ; W
s_mov_b64 exec, -1
{L}:''')
    for i in range(5):
        k(f's_waitcnt lgkmcnt({4-i})\nbuffer_store_dwordx4 {vr(16+4*i,4)}, v9, s[12:15], s46 offen sc1 ; W')
        if i < 4: k(f's_add_u32 s46, s46, {64*1024}')


def gen_k0():
    XP = 1280; EX0 = 10240; EXP = 2576
    WX = OPT.get('wx', 0)
    LT = OPT.get('lt', 0); TB0 = EX0 + 8 * EXP
    WQ = OPT.get('wq', 0)
    PK = OPT.get('k0p', 0)
    k = Kern('k0_kernel', 256 + (440 + PK - 1) // PK if PK else (320 if WX else 256 + [0, 256, 128, 0][WQ]), 512, max(41 * 1040 if WX else 0, TB0 + 8192 * LT + 16384 * (OPT.get('k0i', 0) > 0), 8192 * PK), nvgpr=128)
    END = k.label('end'); WROLE = k.label('wrole')
    if OPT.get('pfirst'):
        NPW = (440 + PK - 1) // PK
        assert NPW % 8 == 0
        if OPT.get('spf'):
            code_srd(k, 68, 'k0_kernel', 'k1_kernel')
            k(f'v_lshlrev_b32 v100, {OPT["spf"]}, v0\nbuffer_load_ubyte v101, v100, s[68:71], 0 offen')
        k(f's_cmp_lt_u32 s2, {NPW}\ns_cbranch_scc1 {WROLE}\ns_sub_u32 s2, s2, {NPW}')
    k(f'''s_cmp_ge_u32 s2, 256
s_cbranch_scc1 {WROLE if (WX or WQ in (1, 2) or (PK and not OPT.get('pfirst'))) else END}
{f"s_branch {END}" if OPT.get('wxc') else ""}
s_load_dwordx2 s[4:5], s[0:1], 0
s_load_dwordx2 s[40:41], s[0:1], 80
s_load_dwordx8 s[56:63], s[0:1], 8
s_load_dwordx2 s[64:65], s[0:1], 56''')
    if OPT.get('wsp') or OPT.get('wt'): k('s_load_dwordx2 s[48:49], s[0:1], 40')
    if OPT.get('spf') and not OPT.get('pfirst'):
        code_srd(k, 68, 'k0_kernel', 'k1_kernel')
        k(f'v_lshlrev_b32 v100, {OPT["spf"]}, v0\nbuffer_load_ubyte v101, v100, s[68:71], 0 offen')
    k.stamp(True)
    tab_srd(k, 12)
    k(f'''s_and_b32 s3, s2, 7
s_lshl_b32 s3, s3, 5
s_lshr_b32 s33, s2, 3
s_add_u32 s3, s3, s33
s_lshl_b32 s33, s3, 6
s_add_u32 s33, s33, 32768
s_load_dwordx16 s[16:31], s[12:13], s33
v_lshrrev_b32 v1, 6, v0
v_and_b32 v2, 63, v0
v_readfirstlane_b32 s34, v1
v_lshlrev_b32 v3, 4, v2
s_movk_i32 s38, 0x1000''')
    if LT:
        k(f'''s_lshl_b32 s38, s34, 10
s_add_u32 m0, s38, {TB0}
buffer_load_dwordx4 v3, s[12:15], s38 offen lds''')
    else:
      for i in range(8):
        so = '0' if i < 4 else 's38'
        k(f'buffer_load_dwordx4 {vr(64+4*i,4)}, v3, s[12:15], {so} offen offset:{(i%4)*1024}')
    k(f'''s_lshl_b32 s35, s34, 8
s_add_u32 s35, s35, s3
s_mul_i32 s35, s35, 1280
v_lshlrev_b32 v58, 3, v2
v_lshlrev_b32 v59, 2, v2
s_waitcnt lgkmcnt(0)''')
    srd_from(k, 4, 4, 5, 0, X_BYTES)
    srd_from(k, 8, 40, 41, WS_T, TU_BYTES)
    if not OPT.get('fz'): k(f'''s_lshl_b32 s33, s2, 6
s_add_u32 s33, s33, 0x1800000
s_add_u32 s52, s40, s33
s_addc_u32 s53, s41, 0
s_mov_b32 s54, 64
s_mov_b32 s55, 0x00020000
v_lshlrev_b32 v62, 2, v0
v_mov_b32 v63, 0
buffer_store_dword v63, v62, s[52:55], 0 offen''')
    k(f'''buffer_load_dwordx2 v[4:5], v58, s[4:7], s35 offen
buffer_load_dwordx2 v[6:7], v58, s[4:7], s35 offen offset:512
buffer_load_dword v8, v59, s[4:7], s35 offen offset:1024''')
    WL = OPT.get('wl', 0)

    def wsp_loads():
        k(f'''s_mov_b32 s50, {2048*4096}
s_mov_b32 s51, 0x00020000
v_bfe_u32 v102, v2, 2, 2
v_and_b32 v103, 3, v2
v_lshlrev_b32 v103, 20, v103
v_lshl_add_u32 v102, v102, 12, v103
v_lshrrev_b32 v103, 4, v2
v_lshl_add_u32 v102, v103, 9, v102
s_lshr_b32 s75, s3, 3
s_lshl_b32 s80, s75, 15
s_and_b32 s81, s3, 2
s_lshl_b32 s81, s81, 13
s_add_u32 s80, s80, s81
s_and_b32 s81, s3, 4
s_lshl_b32 s81, s81, 20
s_add_u32 s80, s80, s81
s_and_b32 s81, s3, 1
s_lshl_b32 s82, s81, 11
s_add_u32 s80, s80, s82
s_lshl_b32 s82, s34, 6
s_add_u32 s80, s80, s82
s_lshl_b32 s75, s75, 18
s_lshl_b32 s81, s81, 12
s_add_u32 s75, s75, s81
s_lshl_b32 s81, s34, 15
s_add_u32 s75, s75, s81
s_and_b32 s81, s3, 6
s_lshl_b32 s81, s81, 9
s_add_u32 s75, s75, s81''')
        for i in range(4):
            k(f'buffer_load_dwordx4 {vr(104+4*i,4)}, v102, s[48:51], s80 offen offset:{16*i}')

    def wsp_stores(n):
        srd_from(k, 48, 40, 41, 0x2000000, 8 << 20)
        for i in range(4):
            k(f's_waitcnt vmcnt({n+3})')
            k(f'buffer_store_dwordx4 {vr(104+4*i,4)}, v3, s[48:51], s75 offen')
            if i < 3: k('s_add_u32 s75, s75, 8192')

    def w_loads():
        k(f'''s_and_b32 s76, s2, 7
s_lshr_b32 s77, s2, 3
s_and_b32 s77, s77, 7
s_lshl_b32 s77, s77, 1
s_and_b32 s78, s34, 1
s_add_u32 s77, s77, s78
s_lshr_b32 s78, s2, 6
s_lshl_b32 s79, s78, 6
s_add_u32 s79, s79, s77
s_lshl_b32 s79, s79, 3
s_add_u32 s79, s79, s76
s_mul_i32 s80, s79, 642
s_add_u32 s81, s80, {128*642}
s_add_u32 s82, s80, {256*642}
s_add_u32 s75, s80, {384*642}
s_lshl_b32 s78, s78, 4
s_add_u32 s78, s78, s77
s_lshl_b32 s78, s78, 4
s_mul_i32 s76, s76, {336*1024}
s_add_u32 s76, s76, s78
s_lshr_b32 s77, s34, 1
s_lshl_b32 s77, s77, 6
v_add_u32 v102, s77, v2
v_add_u32 v103, 256, v102
v_mov_b32 v104, 0x1fffff
v_cmp_gt_u32 vcc, 321, v103
v_cndmask_b32 v103, v104, v103, vcc
v_lshlrev_b32 v104, 1, v102
v_lshlrev_b32 v105, 1, v103
v_lshlrev_b32 v102, 10, v102
v_lshlrev_b32 v103, 10, v103
s_mov_b32 s62, s58
s_mov_b32 s63, s59
s_mov_b32 s58, {2048*642}
s_mov_b32 s59, 0x00020000
s_mov_b32 s60, s62
s_mov_b32 s61, s63
s_mov_b32 s62, {2048*642}
s_mov_b32 s63, 0x00020000''')
        srd_from(k, 64, 40, 41, WS_WF, WF_BYTES)
        so = ['s80', 's81', 's82', 's75']
        for u in range(2):
            for r in range(4):
                k(f'buffer_load_ushort v{108+4*u+r}, v{104+u}, s[56:59], {so[r]} offen')
                k(f'buffer_load_ushort v{116+4*u+r}, v{104+u}, s[60:63], {so[r]} offen')

    def w_stores(n):
        k(f's_waitcnt vmcnt({n})')
        for u in range(2):
            for r in range(4):
                k(f'v_lshl_or_b32 v{108+4*u+r}, v{116+4*u+r}, 16, v{108+4*u+r}')
            k(f'buffer_store_dwordx4 {vr(108+4*u,4)}, v{102+u}, s[64:67], s76 offen ; W')
    if WL == 1: w_loads()
    WD = OPT.get('wd', 0)
    if WD:
        k(f'''s_bitcmp1_b32 s34, 0
s_cselect_b32 s68, s58, s56
s_cselect_b32 s69, s59, s57
s_cmp_ge_u32 s34, {8-2}
s_cselect_b32 s70, {2048*642}, 0
s_mov_b32 s71, 0x00020000
v_and_b32 v100, 7, v2
v_lshlrev_b32 v100, 7, v100
v_min_u32 v100, {671 if OPT.get('wd7') else 640}, v100
v_lshrrev_b32 v101, 3, v2
v_mul_u32_u24 v101, {8*642}, v101
v_add_u32 v100, v100, v101
s_and_b32 s72, s2, 7
s_lshr_b32 s73, s2, 3
s_lshl_b32 s74, s73, 6
s_add_u32 s72, s72, s74
s_mul_i32 s72, s72, 642''')
        if WD == 1: k('buffer_load_ubyte v101, v100, s[68:71], s72 offen')
    if OPT.get('tlb'):
        TL = k.label('tl')
        k(f'''s_mov_b32 s82, 0
s_cmp_lg_u32 s34, 4
s_cbranch_scc1 {TL}
s_cmp_ge_u32 s2, {8*OPT['tlb']}
s_cbranch_scc1 {TL}
s_load_dwordx4 s[76:79], s[0:1], 40
s_load_dwordx2 s[80:81], s[0:1], 64
s_mov_b32 s82, 1
v_lshlrev_b32 v106, 21, v2
s_mov_b32 s71, 0x00020000''')
        for lo, sz in ((56, 2048*642), (58, 2048*642), (40, 0x2200000), (62, 640*3456), (64, 864*1280), (76, 2048*4096), (78, 4096), (80, X_BYTES)):
            if lo == 76: k('s_waitcnt lgkmcnt(0)')
            k(f's_mov_b32 s68, s{lo}\ns_mov_b32 s69, s{lo+1}\ns_mov_b32 s70, 0x{sz:x}\nbuffer_load_ubyte v107, v106, s[68:71], 0 offen')
        k(f's_waitcnt vmcnt(8)\n{TL}:')
    k(f'''s_mul_i32 s39, s34, {XP}
v_add_u32 v58, s39, v58
v_add_u32 v59, s39, v59
v_and_b32 v50, 15, v2
v_lshrrev_b32 v51, 4, v2
v_lshrrev_b32 v52, 2, v50
v_and_b32 v53, 3, v50
v_lshl_add_u32 v54, v51, 3, v52
v_add_u32 v55, 4, v54
v_subrev_u32 v56, 20, v54
v_min_u32 v54, v54, v56
v_subrev_u32 v56, 20, v55
v_min_u32 v55, v55, v56
v_lshlrev_b32 v53, 3, v53
v_lshl_add_u32 v54, v54, 6, v53
v_lshl_add_u32 v55, v55, 6, v53
v_add_u32 v54, s39, v54
v_add_u32 v55, s39, v55
s_mul_i32 s42, s34, {EXP}
s_add_u32 s42, s42, {EX0}
v_mul_u32_u24 v56, 80, v51
v_add_u32 v57, v56, v50
v_lshlrev_b32 v57, 3, v57
v_add_u32 v60, s42, v57
v_sub_u32 v61, {8*260}, v57
v_add_u32 v61, s42, v61
{"s_cmp_eq_u32 s82, 1" if OPT.get('tlb') else ""}
{"s_cbranch_scc1 k0_skipw" if OPT.get('tlb') else ""}''')
    if OPT.get('k0i') == 2:
        import gen10
        PA = k.label('pa')
        k(f's_waitcnt vmcnt(0)\ns_cmp_lt_u32 s34, 6\ns_cbranch_scc1 {PA}')
        gen10.prep_inl(k, 'A', TB0 + 8192, None)
        k(f'{PA}:')
    elif OPT.get('k0i'):
        import gen10
        PA = k.label('pa'); PB = k.label('pb')
        k(f's_cmp_lt_u32 s34, 6\ns_cbranch_scc1 {PA}')
        gen10.prep_inl(k, 'A', TB0 + 8192, None)
        k(f's_waitcnt vmcnt(8)\ns_branch {PB}\n{PA}:\ns_waitcnt vmcnt(0)\n{PB}:')
    else: k(f'''s_waitcnt vmcnt({16 if WL == 1 else (1 if WD == 1 else 0)})
{"k0_skipw:" if OPT.get('tlb') else ""}''')
    k.stamp()
    if LT:
        k('s_barrier')
        for i in range(8): k(f'ds_read_b128 {vr(64+4*i,4)}, v3 offset:{TB0+1024*i}')
    if WL == 2: w_loads()
    if WD == 2: k('buffer_load_ubyte v101, v100, s[68:71], s72 offen')
    if OPT.get('fz'):
        srd_from(k, 52, 40, 41, 0x1800000, 0x80000)
        k(f'''s_lshl_b32 s33, s2, 10
s_cmp_lt_u32 s2, {OPT.get('fzn', 32)}
s_cselect_b32 s43, s33, 0x7f000000
s_add_u32 s33, s33, 0x40000
s_cmp_eq_u32 s34, 1
s_cselect_b32 s33, s33, 0x7f000000
s_cselect_b32 s44, -1, 0
s_cmp_eq_u32 s34, 0
s_cselect_b32 s33, s43, s33
v_mov_b32 v120, s44
v_mov_b32 v121, s44
v_mov_b32 v122, s44
v_mov_b32 v123, s44
buffer_store_dwordx4 v[120:123], v3, s[52:55], s33 offen''')
    if OPT.get('us'):
        k(f'''s_mul_i32 s33, s3, {8*TP}
s_add_u32 s33, s33, {WS_U}
s_add_u32 s52, s40, s33
s_addc_u32 s53, s41, 0
s_mov_b32 s54, {8*TP}
v_mov_b32 v116, -1
v_mov_b32 v117, -1
v_mov_b32 v118, -1
v_mov_b32 v119, -1
v_lshlrev_b32 v124, 4, v0
s_movk_i32 s33, 0x2000
buffer_store_dwordx4 v[116:119], v124, s[52:55], 0 offen
buffer_store_dwordx4 v[116:119], v124, s[52:55], s33 offen''')
    if not OPT.get('nopf'):
        k0_prefetch(k)
    if OPT.get('wsp'): wsp_loads()
    if OPT.get('wt'): w_touch(k, OPT['wt'], 48, 34, 102)
    for i in range(5):
        k(f'v_lshlrev_b32 v{10+2*i}, 16, v{4+i}\nv_and_b32 v{11+2*i}, 0xffff0000, v{4+i}')
    k('''v_pk_add_f32 v[20:21], v[10:11], v[12:13]
v_pk_mul_f32 v[22:23], v[10:11], v[10:11]
v_pk_add_f32 v[24:25], v[14:15], v[16:17]
v_pk_fma_f32 v[22:23], v[12:13], v[12:13], v[22:23]
v_pk_add_f32 v[20:21], v[20:21], v[18:19]
v_pk_fma_f32 v[22:23], v[14:15], v[14:15], v[22:23]
v_pk_add_f32 v[20:21], v[20:21], v[24:25]
v_pk_fma_f32 v[22:23], v[16:17], v[16:17], v[22:23]
v_pk_fma_f32 v[22:23], v[18:19], v[18:19], v[22:23]
v_add_f32 v20, v20, v21
v_add_f32 v22, v22, v23''')
    wave_reduce2(k, 20, 22, 36, 37)
    ln_stats(k, 36, 37, 640, 20, 22, 24)
    ln_apply(k, 10, 10, 20, 22, 4)
    k('''ds_write_b64 v58, v[4:5]
ds_write_b64 v58, v[6:7] offset:512
ds_write_b32 v59, v8 offset:1024
s_waitcnt lgkmcnt(0)
ds_read_b64_tr_b16 v[4:5], v54
ds_read_b64_tr_b16 v[6:7], v55
ds_read_b64_tr_b16 v[8:9], v54 offset:32
ds_read_b64_tr_b16 v[10:11], v55 offset:32
s_waitcnt lgkmcnt(2)''')
    k(f'''{MFMA} v[12:15], v[4:7], v[64:67], 0
{MFMA} v[16:19], v[4:7], v[68:71], 0
s_waitcnt lgkmcnt(0)
{MFMA} v[20:23], v[8:11], v[64:67], 0
{MFMA} v[24:27], v[8:11], v[68:71], 0''')
    cmul_planar(k, 12, 16, 72, 76, 28, 32, 44)
    cmul_planar(k, 20, 24, 80, 84, 36, 40, 44)
    for t in range(2):
        for h in range(2):
            re = 28 + 8 * t + 2 * h; im = 32 + 8 * t + 2 * h; o = 2 * t + h
            k(f'''v_cvt_pk_bf16_f32 v{4+o}, v{re}, v{re+1}
v_cvt_pk_bf16_f32 v{8+o}, v{im}, v{im+1}
v_cvt_pk_bf16_f32 v{12+o}, -v{im}, -v{im+1}
v_cvt_pk_bf16_f32 v{16+o}, v{re}, -v{re+1}
v_cvt_pk_bf16_f32 v{20+o}, v{im}, -v{im+1}
v_cvt_pk_bf16_f32 v{24+o}, -v{im}, v{im+1}''')
    k(f'''{MFMA} v[28:31], v[88:91], v[4:7], 0
{MFMA} v[32:35], v[92:95], v[4:7], 0
{MFMA} v[36:39], v[88:91], v[16:19], 0
{MFMA} v[40:43], v[92:95], v[16:19], 0
{MFMA} v[28:31], v[92:95], v[12:15], v[28:31]
{MFMA} v[32:35], v[88:91], v[8:11], v[32:35]
{MFMA} v[36:39], v[92:95], v[24:27], v[36:39]
{MFMA} v[40:43], v[88:91], v[20:23], v[40:43]
s_mov_b32 exec_lo, 0x07ff07ff
s_mov_b32 exec_hi, 0x07ff07ff''')
    for r in range(4):
        k(f'ds_write2_b32 v60, v{28+r}, v{32+r} offset0:{40*r} offset1:{40*r+1}')
    for r in range(4):
        k(f'v_xor_b32 v{40+r}, 0x80000000, v{40+r}')
    for r in range(4):
        k(f'ds_write2_b32 v61, v{36+r}, v{40+r} offset0:{40*(3-r)} offset1:{40*(3-r)+1}')
    k(f'''s_mov_b64 exec, -1''')
    if WL == 1: w_stores(1)
    k(f'''s_waitcnt lgkmcnt(0)''')
    k.stamp()
    k(f'''s_barrier''')
    k.stamp()
    TAIL = k.label('tail'); TAIL2 = k.label('tail')
    k(f'''v_cmp_gt_u32 vcc, {TP//4 if OPT.get('fullt') else 321}, v0
s_and_saveexec_b64 s[44:45], vcc
s_cbranch_execz {TAIL if (WL == 2 or OPT.get('wsp') or OPT.get('k0i')) else END}
v_lshlrev_b32 v1, 3, v0
v_lshlrev_b32 v2, 2, v0''')
    for n in range(8):
        k(f'ds_read_b64 {vr(4+2*n,2)}, v1 offset:{EX0+n*EXP}')
    k(f'''v_mov_b32 v40, 0x3f3504f3
s_mul_i32 s46, s3, {8*TP}
s_add_u32 s47, s46, {3*TP}
s_add_u32 s48, s46, {6*TP}
s_waitcnt lgkmcnt(0)''')
    T = fft8(k, 4, 20, False, 40)
    for k2 in range(8):
        if k2 == 0:
            k(f'v_cvt_pk_bf16_f32 v4, v{T[0]}, v{T[0]+1}')
        else:
            smul(k, T[k2], T[k2], 16 + 2 * k2, 42 + 2 * (k2 & 1))
            k(f'v_cvt_pk_bf16_f32 v{4+k2}, v{T[k2]}, v{T[k2]+1}')
        k(f'buffer_store_dword v{4+k2}, v2, s[8:11], s{46+k2//3} offen offset:{(k2%3)*TP+4*(k2&1)*(OPT.get("sh",0)==1)}')
    if WL == 2:
        k(f's_waitcnt vmcnt(9)\ns_branch {TAIL2}\n{TAIL}:\ns_waitcnt vmcnt(1)\n{TAIL2}:\ns_mov_b64 exec, -1')
        w_stores(63)
    if OPT.get('wsp'):
        k(f's_mov_b64 exec, -1\ns_waitcnt vmcnt(8)\ns_branch {TAIL2}\n{TAIL}:\ns_mov_b64 exec, -1\ns_waitcnt vmcnt(0)\n{TAIL2}:')
        wsp_stores(60)
    if OPT.get('k0i'):
        k(f's_branch {END}\n{TAIL}:\ns_mov_b64 exec, -1')
        gen10.prep_inl(k, 'B', TB0 + 8192, END, (WD == 2) + 1 + 2 * OPT.get('us', 0) + 1)
    if WX:
        k(f's_branch {END}')
        k0_wrole(k, WROLE, END)
    k.finish(END)
    if PK:
        import gen10
        E2 = k.label('end')
        k(f'{WROLE}:\ns_load_dwordx2 s[40:41], s[0:1], 80')
        gen10.gen_prep8(k, 0 if OPT.get('pfirst') else 256, E2, PK)
        k(f'{E2}:\ns_endpgm')
    if WQ in (1, 2):
        import gen9
        k(f'{WROLE}:')
        gen9.wq_role(k, 256, END, None if WQ == 1 else 0, ' nt' if OPT.get('wnt') else '', OPT.get('wsl0', 0))
    return k


def gen_k1():
    P = 1040; W0 = 16 * P
    import gen3
    NPF = OPT.get('npf1', 4)
    NG = 256 if NPF else 220
    k = Kern('k1_kernel', NG, 256, 83968 if NPF else 65536, nvgpr=160)
    END = k.label('end'); MAIN = k.label('main'); PREP = k.label('prep')
    k(f'''s_cmp_ge_u32 s2, {NG}
s_cbranch_scc1 {END}
s_cmp_lt_u32 s2, 168
s_cbranch_scc1 {MAIN}
s_load_dwordx2 s[40:41], s[0:1], 80''')
    k.stamp(True)
    if NPF:
        k(f'''s_cmp_lt_u32 s2, 220
s_cbranch_scc1 {PREP}
s_load_dwordx2 s[4:5], s[0:1], 40
v_lshrrev_b32 v1, 6, v0
v_and_b32 v2, 63, v0
v_readfirstlane_b32 s35, v1
s_sub_u32 s33, s2, 220
s_lshl_b32 s33, s33, 2
s_add_u32 s33, s33, s35
s_lshl_b32 s33, s33, 13
v_lshlrev_b32 v3, 7, v2
s_mov_b32 s6, {2048*4096}
s_mov_b32 s7, 0x00020000
s_waitcnt lgkmcnt(0)''')
        for i in range(NPF):
            k(f'buffer_load_ubyte v4, v3, s[4:7], s33 offen\ns_add_u32 s33, s33, {144*8192}')
        k(f's_branch {END}\n{PREP}:')
    if OPT.get('k1noprep'): k(f's_branch {END}')
    gen3.gen_prep(k, 168, END)
    k.nst = 0
    k(f'''{MAIN}:
s_load_dwordx2 s[4:5], s[0:1], 8
s_load_dwordx2 s[16:17], s[0:1], 16
s_load_dwordx2 s[40:41], s[0:1], 80''')
    k.stamp(True)
    tab_srd(k, 12)
    k(f'''s_and_b32 s33, s2, 7
s_lshr_b32 s34, s2, 3
v_lshrrev_b32 v1, 6, v0
v_and_b32 v2, 63, v0
v_readfirstlane_b32 s35, v1
v_lshlrev_b32 v3, 4, v2
s_movk_i32 s38, 0x2000
s_movk_i32 s39, 0x3000
v_and_b32 v4, 15, v2
v_lshrrev_b32 v5, 4, v2''')
    for i in range(8):
        k(f'buffer_load_dwordx4 {vr(96+4*i,4)}, v3, s[12:15], s{38+i//4} offen offset:{(i%4)*1024}')
    k(f'''v_mul_u32_u24 v6, {16*8*TP}, v4
v_lshl_add_u32 v6, v5, 4, v6
s_lshl_b32 s36, s35, 5
s_add_u32 s36, s36, s33
s_mul_i32 s36, s36, {TP}
s_lshl_b32 s37, s34, 6
s_add_u32 s36, s36, s37
s_add_u32 s42, s36, {8*TP}
s_add_u32 s43, s36, {16*TP}
s_add_u32 s44, s36, {24*TP}
v_and_b32 v7, 1, v5
v_lshrrev_b32 v8, 1, v5
v_lshl_add_u32 v9, v4, 4, v7
v_mul_u32_u24 v9, {8*642}, v9
v_lshl_add_u32 v9, v8, 4, v9
s_lshl_b32 s45, s35, 5
s_add_u32 s45, s45, s33
s_mul_i32 s45, s45, 642
s_lshl_b32 s37, s34, 5
s_add_u32 s45, s45, s37
s_add_u32 s46, s45, {16*642}
s_waitcnt lgkmcnt(0)''')
    srd_from(k, 4, 4, 5, 0, 2048 * 642)
    srd_from(k, 16, 16, 17, 0, 2048 * 642)
    srd_from(k, 8, 40, 41, WS_T, TU_BYTES)
    srd_from(k, 20, 40, 41, WS_U, TU_BYTES)
    so = ['s36', 's42', 's43', 's44']
    for i in range(4):
        k(f'buffer_load_dwordx4 {vr(16+4*i,4)}, v6, s[8:11], {so[i]} offen')
    for i in range(2):
        if OPT.get('k1now'):
            k(f'buffer_load_dwordx4 {vr(32+8*i,4)}, v3, s[12:15], 0 offen')
            k(f'buffer_load_dwordx4 {vr(36+8*i,4)}, v3, s[12:15], 0 offen')
            continue
        k(f'buffer_load_dwordx4 {vr(32+8*i,4)}, v9, s[4:7], s{45+i} offen')
        k(f'buffer_load_dwordx4 {vr(36+8*i,4)}, v9, s[16:19], s{45+i} offen')
    k(f'''v_mul_u32_u24 v10, {4*P}, v5
v_lshl_add_u32 v10, v4, 2, v10
s_lshl_b32 s37, s35, 8
v_add_u32 v10, s37, v10
v_mul_u32_u24 v11, {8*P}, v8
v_lshl_add_u32 v11, v7, 6, v11
v_lshl_add_u32 v11, v4, 2, v11
v_add_u32 v11, s37, v11
v_lshlrev_b32 v12, 6, v4
v_lshl_add_u32 v12, v5, 4, v12
s_mul_i32 s37, s35, {4*P}
v_add_u32 v12, s37, v12
s_mov_b32 s47, 0x05040100
s_mov_b32 s48, 0x07060302''')
    for i in range(4):
        k(f's_waitcnt vmcnt({7-i})')
        for j in range(4):
            k(f'ds_write_b32 v10, v{16+4*i+j} offset:{j*P+64*i}')
    k.stamp()
    for i in range(2):
        k(f's_waitcnt vmcnt({2-2*i})')
        for j in range(4):
            k(f'v_perm_b32 v{48+2*j}, v{36+8*i+j}, v{32+8*i+j}, s47')
            k(f'v_perm_b32 v{49+2*j}, v{36+8*i+j}, v{32+8*i+j}, s48')
        for j in range(8):
            k(f'ds_write_b32 v11, v{48+j} offset:{W0+j*P+128*i}')
    k('s_waitcnt lgkmcnt(0)')
    k.stamp()
    k('s_barrier')
    k.stamp()
    for c in range(4):
        k(f'ds_read_b128 {vr(16+4*c,4)}, v12 offset:{c*P}')
    for c in range(4):
        k(f'ds_read_b128 {vr(32+4*c,4)}, v12 offset:{W0+c*P}')
    for c in range(4):
        k(f's_waitcnt lgkmcnt({7-c})')
        k(f'{MFMA} {vr(48+8*c,4)}, {vr(16+4*c,4)}, v[96:99], 0')
        k(f'{MFMA} {vr(52+8*c,4)}, {vr(16+4*c,4)}, v[100:103], 0')

    def pack(c, re, im):
        k(f'''v_cvt_pk_bf16_f32 v{16+4*c}, v{re}, v{re+1}
v_cvt_pk_bf16_f32 v{17+4*c}, v{re+2}, v{re+3}
v_cvt_pk_bf16_f32 v{18+4*c}, v{im}, v{im+1}
v_cvt_pk_bf16_f32 v{19+4*c}, v{im+2}, v{im+3}''')
    for c in range(4):
        cmul_planar(k, 48 + 8 * c, 52 + 8 * c, 104, 108, 80, 84, 88)
        pack(c, 80, 84)
        k(f'{MFMA} {vr(48+8*c,4)}, v[112:115], {vr(16+4*c,4)}, 0')
        k(f'{MFMA} {vr(52+8*c,4)}, v[116:119], {vr(16+4*c,4)}, 0')
    k('s_waitcnt lgkmcnt(0)')
    for c in range(4):
        for r in range(4):
            k(f'v_lshlrev_b32 v{128+r}, 16, v{32+4*c+r}\nv_and_b32 v{132+r}, 0xffff0000, v{32+4*c+r}')
        cmul_planar(k, 48 + 8 * c, 52 + 8 * c, 128, 132, 80, 84, 88)
        pack(c, 80, 84)
        k(f'{MFMA} {vr(48+8*c,4)}, {vr(16+4*c,4)}, v[120:123], 0')
        k(f'{MFMA} {vr(52+8*c,4)}, {vr(16+4*c,4)}, v[124:127], 0')
    for c in range(4):
        cmul_planar(k, 48 + 8 * c, 52 + 8 * c, 104, 108, 80, 84, 88, conj=True)
        pack(c, 80, 84)
        k(f'{MFMA} {vr(48+8*c,4)}, v[120:123], {vr(16+4*c,4)}, 0')
        k(f'{MFMA} {vr(52+8*c,4)}, v[124:127], {vr(16+4*c,4)}, 0')
    for c in range(4):
        for r in range(4):
            k(f'v_cvt_pk_bf16_f32 v{16+4*c+r}, v{48+8*c+r}, v{52+8*c+r}')
        k(f'ds_write_b128 v12, {vr(16+4*c,4)} offset:{c*P}')
    k('s_waitcnt lgkmcnt(0)')
    k.stamp()
    k('s_barrier')
    k.stamp()
    for i in range(4):
        for j in range(4):
            k(f'ds_read_b32 v{16+4*i+j}, v10 offset:{j*P+64*i}')
    for i in range(4):
        k(f's_waitcnt lgkmcnt({12-4*i})')
        k(f'buffer_store_dwordx4 {vr(16+4*i,4)}, v6, s[20:23], {so[i]} offen')
    k.finish(END)
    return k


def gen_k1b():
    P = 1040
    import gen3
    WQ = OPT.get('wq', 0)
    k = Kern('k1_kernel', 256 + [0, 0, 128, 256][WQ], 512, OPT.get('k1lds', 81920), nvgpr=128)
    END = k.label('end'); MAIN = k.label('main'); WROLE = k.label('wrole')
    k(f'''s_cmp_ge_u32 s2, 256
s_cbranch_scc1 {WROLE if WQ >= 2 else END}
s_load_dwordx2 s[40:41], s[0:1], 80
s_cmp_lt_u32 s2, 168
s_cbranch_scc1 {MAIN}''')
    k.stamp(True)
    if OPT.get('k1noprep'): k(f's_branch {END}')
    gen3.gen_prep(k, 168, END, 1, 5)
    k.nst = 0
    k(f'{MAIN}:')
    k.stamp(True)
    tab_srd(k, 12)
    k(f'''s_and_b32 s33, s2, 7
s_lshr_b32 s34, s2, 3
v_lshrrev_b32 v1, 6, v0
v_and_b32 v2, 63, v0
v_readfirstlane_b32 s35, v1
v_lshlrev_b32 v3, 4, v2
s_movk_i32 s38, 0x2000
s_movk_i32 s39, 0x3000
v_and_b32 v4, 15, v2
v_lshrrev_b32 v5, 4, v2''')
    LT = OPT.get('lt', 0); TB1 = 16 * P
    if LT:
        k(f'''s_lshl_b32 s39, s35, 10
s_add_u32 m0, s39, {TB1}
s_add_u32 s38, s38, s39
buffer_load_dwordx4 v3, s[12:15], s38 offen lds''')
    else:
        for i in range(4):
            k(f'buffer_load_dwordx4 {vr(96+4*i,4)}, v3, s[12:15], s38 offen offset:{i*1024}')
        k('buffer_load_dwordx4 v[112:115], v3, s[12:15], s39 offen offset:3072')
        k('buffer_load_dwordx4 v[116:119], v3, s[12:15], s39 offen offset:1024')
    IIM = 'v[112:115]'; IRE = 'v[114:117]'; FIM = 'v[116:119]'; FRE = 'v[118:121]'
    k(f'''v_mul_u32_u24 v6, {16*8*TP}, v4
v_lshl_add_u32 v6, v5, 4, v6
s_lshl_b32 s36, s35, 4
s_add_u32 s36, s36, s33
s_mul_i32 s36, s36, {TP}
s_lshl_b32 s37, s34, 6
s_add_u32 s36, s36, s37
s_add_u32 s42, s36, {8*TP}
s_mul_i32 s45, s33, 336
s_lshl_b32 s37, s34, 4
s_add_u32 s45, s45, s37
s_lshl_b32 s37, s35, 1
s_add_u32 s45, s45, s37
s_lshl_b32 s45, s45, 10
s_lshl_b32 s37, s34, 3
s_add_u32 s37, s37, s35
s_cmp_gt_u32 s37, 160
s_cselect_b32 s45, 0x7f000000, s45
s_waitcnt lgkmcnt(0)''')
    srd_from(k, 8, 40, 41, WS_T, TU_BYTES)
    srd_from(k, 4, 40, 41, WS_WF, WF_BYTES)
    srd_from(k, 20, 40, 41, WS_U, TU_BYTES)
    so = ['s36', 's42']
    for i in range(2):
        k(f'buffer_load_dwordx4 {vr(16+4*i,4)}, v6, s[8:11], {so[i]} offen')
    WP = OPT.get('k1wp', 0)
    def wld():
        for i in range(2):
            if OPT.get('k1now'): k(f'buffer_load_dwordx4 {vr(32+4*i,4)}, v3, s[12:15], 0 offen offset:{1024*i}')
            else: k(f'buffer_load_dwordx4 {vr(32+4*i,4)}, v3, s[4:7], s45 offen offset:{1024*i}')
    if WP == 0: wld()
    if WP == 2: k('s_barrier'); wld()
    k(f'''v_mul_u32_u24 v10, {4*P}, v5
v_lshl_add_u32 v10, v4, 2, v10
s_lshl_b32 s37, s35, 7
v_add_u32 v10, s37, v10
v_lshlrev_b32 v12, 6, v4
v_lshl_add_u32 v12, v5, 4, v12
s_mul_i32 s37, s35, {2*P}
v_add_u32 v12, s37, v12
''')
    if not LT:
        k(f'''s_waitcnt vmcnt({2 if WP == 1 else 4})
v_mov_b32 v120, v112
v_mov_b32 v121, v113''')
    for i in range(2):
        k(f's_waitcnt vmcnt({(1 if WP == 1 else 3)-i})')
        for j in range(4):
            k(f'ds_write_b32 v10, v{16+4*i+j} offset:{j*P+64*i}')
    if WP == 1: wld()
    k.stamp()
    k('s_waitcnt lgkmcnt(0)')
    k.stamp()
    k('s_barrier')
    k.stamp()
    NC = 2
    if LT:
        k(f'''ds_read_b128 v[96:99], v3 offset:{TB1}
ds_read_b128 v[16:19], v12
ds_read_b128 v[100:103], v3 offset:{TB1+1024}
ds_read_b128 v[20:23], v12 offset:{P}
ds_read_b128 v[104:107], v3 offset:{TB1+2048}
ds_read_b128 v[108:111], v3 offset:{TB1+3072}
ds_read_b128 v[118:121], v3 offset:{TB1+4096}
ds_read_b64 v[116:117], v3 offset:{TB1+5120}
ds_read_b128 v[112:115], v3 offset:{TB1+7168}
s_waitcnt lgkmcnt(7)
{MFMA} v[48:51], v[16:19], v[96:99], 0
s_waitcnt lgkmcnt(6)
{MFMA} v[52:55], v[16:19], v[100:103], 0
s_waitcnt lgkmcnt(5)
{MFMA} v[56:59], v[20:23], v[96:99], 0
{MFMA} v[60:63], v[20:23], v[100:103], 0
s_waitcnt lgkmcnt(0)''')
    else:
      for c in range(NC):
        k(f'ds_read_b128 {vr(16+4*c,4)}, v12 offset:{c*P}')
      for c in range(NC):
        k(f's_waitcnt lgkmcnt({NC-1-c})')
        k(f'{MFMA} {vr(48+8*c,4)}, {vr(16+4*c,4)}, v[96:99], 0')
        k(f'{MFMA} {vr(52+8*c,4)}, {vr(16+4*c,4)}, v[100:103], 0')
    def wun():
        k('s_waitcnt vmcnt(0)')
        for c in range(NC):
            for r in range(4):
                k(f'v_lshlrev_b32 v{64+8*c+r}, 16, v{32+4*c+r}\nv_and_b32 v{68+8*c+r}, 0xffff0000, v{32+4*c+r}')
    if not OPT.get('k1wl'): wun()

    def pack(c, re, im):
        k(f'''v_cvt_pk_bf16_f32 v{16+4*c}, v{re}, v{re+1}
v_cvt_pk_bf16_f32 v{17+4*c}, v{re+2}, v{re+3}
v_cvt_pk_bf16_f32 v{18+4*c}, v{im}, v{im+1}
v_cvt_pk_bf16_f32 v{19+4*c}, v{im+2}, v{im+3}''')
    for c in range(NC):
        cmul_planar(k, 48 + 8 * c, 52 + 8 * c, 104, 108, 80, 84, 88)
        pack(c, 80, 84)
        k(f'{MFMA} {vr(48+8*c,4)}, {FRE}, {vr(16+4*c,4)}, 0')
        k(f'{MFMA} {vr(52+8*c,4)}, {FIM}, {vr(16+4*c,4)}, 0')
    if OPT.get('k1wl'): wun()
    for c in range(NC):
        cmul_planar(k, 48 + 8 * c, 52 + 8 * c, 64 + 8 * c, 68 + 8 * c, 80, 84, 88)
        pack(c, 80, 84)
        k(f'{MFMA} {vr(48+8*c,4)}, {vr(16+4*c,4)}, {IRE}, 0')
        k(f'{MFMA} {vr(52+8*c,4)}, {vr(16+4*c,4)}, {IIM}, 0')
    for c in range(NC):
        cmul_planar(k, 48 + 8 * c, 52 + 8 * c, 104, 108, 80, 84, 88, conj=True)
        pack(c, 80, 84)
        k(f'{MFMA} {vr(48+8*c,4)}, {IRE}, {vr(16+4*c,4)}, 0')
        k(f'{MFMA} {vr(52+8*c,4)}, {IIM}, {vr(16+4*c,4)}, 0')
    for c in range(NC):
        for r in range(4):
            k(f'v_cvt_pk_bf16_f32 v{16+4*c+r}, v{48+8*c+r}, v{52+8*c+r}')
        k(f'ds_write_b128 v12, {vr(16+4*c,4)} offset:{c*P}')
    k('s_waitcnt lgkmcnt(0)')
    k.stamp()
    k('s_barrier')
    k.stamp()
    for i in range(2):
        for j in range(4):
            k(f'ds_read_b32 v{16+4*i+j}, v10 offset:{j*P+64*i}')
    for i in range(2):
        k(f's_waitcnt lgkmcnt({4-4*i})')
        k(f'buffer_store_dwordx4 {vr(16+4*i,4)}, v6, s[20:23], {so[i]} offen')
    k.finish(END)
    return k


def gen_k1c():
    P = 1040; W0 = 16 * P; TB1 = 32 * P
    import gen3
    WQ = OPT.get('wq', 0)
    k = Kern('k1_kernel', 256 + [0, 0, 128, 256][WQ], 512, OPT.get('k1lds', 81920), nvgpr=128)
    END = k.label('end'); MAIN = k.label('main'); WROLE = k.label('wrole')
    k(f'''s_cmp_ge_u32 s2, 256
s_cbranch_scc1 {WROLE if WQ >= 2 else END}
s_load_dwordx2 s[40:41], s[0:1], 80
s_cmp_lt_u32 s2, 168
s_cbranch_scc1 {MAIN}''')
    k.stamp(True)
    if OPT.get('k1noprep'): k(f's_branch {END}')
    if OPT.get('p8'):
        import gen8
        gen8.gen_prep8(k, 168, END)
    else: gen3.gen_prep(k, 168, END, 1, 5)
    k.nst = 0
    k(f'{MAIN}:\ns_load_dwordx4 s[4:7], s[0:1], 8')
    k.stamp(True)
    tab_srd(k, 12)
    k(f'''s_and_b32 s33, s2, 7
s_lshr_b32 s34, s2, 3
v_lshrrev_b32 v1, 6, v0
v_and_b32 v2, 63, v0
v_readfirstlane_b32 s35, v1
v_lshlrev_b32 v3, 4, v2
v_and_b32 v4, 15, v2
v_lshrrev_b32 v5, 4, v2
s_lshl_b32 s39, s35, 10
s_add_u32 m0, s39, {TB1}
s_add_u32 s38, s39, 0x2000
buffer_load_dwordx4 v3, s[12:15], s38 offen lds''')
    IIM = 'v[112:115]'; IRE = 'v[114:117]'; FIM = 'v[116:119]'; FRE = 'v[118:121]'
    k(f'''v_mul_u32_u24 v6, {16*8*TP}, v4
v_lshl_add_u32 v6, v5, 4, v6
s_lshl_b32 s36, s35, 4
s_add_u32 s36, s36, s33
s_mul_i32 s45, s36, 642
s_mul_i32 s36, s36, {TP}
s_lshl_b32 s37, s34, 6
s_add_u32 s36, s36, s37
s_add_u32 s42, s36, {8*TP}
s_lshl_b32 s37, s34, 5
s_add_u32 s45, s45, s37
s_and_b32 s45, s45, -4
v_and_b32 v7, 1, v5
v_lshrrev_b32 v8, 1, v5
v_lshl_add_u32 v9, v4, 4, v7
v_mul_u32_u24 v9, {8*642}, v9
v_lshl_add_u32 v9, v8, 4, v9
s_waitcnt lgkmcnt(0)''')
    srd_from(k, 8, 40, 41, WS_T, TU_BYTES)
    so = ['s36', 's42']
    if OPT.get('sh') == 2:
        k('s_and_b32 s37, s33, 1\ns_lshl_b32 s37, s37, 2\ns_sub_u32 s43, s36, s37\ns_sub_u32 s44, s42, s37')
    for i in range(2):
        k(f'buffer_load_dwordx4 {vr(16+4*i,4)}, v6, s[8:11], {so[i] if OPT.get("sh") != 2 else f"s{43+i}"} offen')
    k(f'''s_mov_b32 s16, s6
s_mov_b32 s17, s7
s_mov_b32 s6, {2048*642}
s_mov_b32 s7, 0x00020000
s_mov_b32 s18, {2048*642}
s_mov_b32 s19, 0x00020000''')
    srd_from(k, 20, 40, 41, WS_U, TU_BYTES)
    WP = OPT.get('k1wp', 2); SH = OPT.get('sh', 0)
    if WP == 2: k('s_barrier')
    def wld():
        k(f'''buffer_load_dwordx4 v[32:35], v9, s[4:7], s45 offen
buffer_load_dwordx4 v[38:41], v9, s[16:19], s45 offen''')
        if not SH: k(f'''s_bitcmp1_b32 s33, 0
s_cselect_b32 s46, s45, 0x7f000000
buffer_load_dword v36, v9, s[4:7], s46 offen offset:16
buffer_load_dword v42, v9, s[16:19], s46 offen offset:16''')
    if WP in (0, 2): wld()
    k(f'''v_mul_u32_u24 v10, {4*P}, v5
v_lshl_add_u32 v10, v4, 2, v10
s_lshl_b32 s37, s35, 7
v_add_u32 v10, s37, v10
v_mul_u32_u24 v11, {8*P}, v8
v_lshl_add_u32 v11, v7, 6, v11
v_lshl_add_u32 v11, v4, 2, v11
v_add_u32 v11, s37, v11
v_lshlrev_b32 v12, 6, v4
v_lshl_add_u32 v12, v5, 4, v12
s_mul_i32 s37, s35, {2*P}
v_add_u32 v12, s37, v12
s_mov_b32 s47, 0x05040100
s_mov_b32 s48, 0x07060302''')
    for i in range(2):
        k(f's_waitcnt vmcnt({((3 if SH else 5) if WP in (0, 2) else 1)-i})')
        for j in range(4):
            k(f'ds_write_b32 v10, v{16+4*i+j} offset:{j*P+64*i}')
    if WP == 1: wld()
    k.stamp()
    k('s_waitcnt lgkmcnt(0)\ns_barrier')
    if WP == 3: wld()
    k.stamp()
    NC = 2
    k(f'''ds_read_b128 v[96:99], v3 offset:{TB1}
ds_read_b128 v[16:19], v12
ds_read_b128 v[100:103], v3 offset:{TB1+1024}
ds_read_b128 v[20:23], v12 offset:{P}
ds_read_b128 v[104:107], v3 offset:{TB1+2048}
ds_read_b128 v[108:111], v3 offset:{TB1+3072}
ds_read_b128 v[118:121], v3 offset:{TB1+4096}
ds_read_b64 v[116:117], v3 offset:{TB1+5120}
ds_read_b128 v[112:115], v3 offset:{TB1+7168}
s_waitcnt lgkmcnt(7)
{MFMA} v[48:51], v[16:19], v[96:99], 0
s_waitcnt lgkmcnt(6)
{MFMA} v[52:55], v[16:19], v[100:103], 0
s_waitcnt lgkmcnt(5)
{MFMA} v[56:59], v[20:23], v[96:99], 0
{MFMA} v[60:63], v[20:23], v[100:103], 0
s_waitcnt lgkmcnt(0)''')

    def pack(c, re, im):
        k(f'''v_cvt_pk_bf16_f32 v{16+4*c}, v{re}, v{re+1}
v_cvt_pk_bf16_f32 v{17+4*c}, v{re+2}, v{re+3}
v_cvt_pk_bf16_f32 v{18+4*c}, v{im}, v{im+1}
v_cvt_pk_bf16_f32 v{19+4*c}, v{im+2}, v{im+3}''')
    for c in range(NC):
        cmul_planar(k, 48 + 8 * c, 52 + 8 * c, 104, 108, 80, 84, 88)
        pack(c, 80, 84)
        k(f'{MFMA} {vr(48+8*c,4)}, {FRE}, {vr(16+4*c,4)}, 0')
        k(f'{MFMA} {vr(52+8*c,4)}, {FIM}, {vr(16+4*c,4)}, 0')
    ODD = k.label('odd'); JN = k.label('jn')
    k(f's_bitcmp1_b32 s33, 0\ns_waitcnt vmcnt(0)')
    k.stamp()
    if not SH: k(f's_cbranch_scc1 {ODD}')
    for par in range(1 if SH else 2):
        for j in range(8):
            hj = j + par
            k(f'v_perm_b32 v{64+j}, v{38+hj//2}, v{32+hj//2}, s{47+(hj&1)}')
            k(f'ds_write_b32 v11, v{64+j} offset:{W0+j*P}')
        if par == 0 and not SH: k(f's_branch {JN}\n{ODD}:')
    k(f'{JN}:\ns_waitcnt lgkmcnt(0)\ns_barrier')
    k.stamp()
    for c in range(NC):
        k(f'ds_read_b128 {vr(32+4*c,4)}, v12 offset:{W0+c*P}')
    for c in range(NC):
        k(f's_waitcnt lgkmcnt({NC-1-c})')
        for r in range(4):
            k(f'v_lshlrev_b32 v{64+8*c+r}, 16, v{32+4*c+r}\nv_and_b32 v{68+8*c+r}, 0xffff0000, v{32+4*c+r}')
        cmul_planar(k, 48 + 8 * c, 52 + 8 * c, 64 + 8 * c, 68 + 8 * c, 80, 84, 88)
        pack(c, 80, 84)
        k(f'{MFMA} {vr(48+8*c,4)}, {vr(16+4*c,4)}, {IRE}, 0')
        k(f'{MFMA} {vr(52+8*c,4)}, {vr(16+4*c,4)}, {IIM}, 0')
    for c in range(NC):
        cmul_planar(k, 48 + 8 * c, 52 + 8 * c, 104, 108, 80, 84, 88, conj=True)
        pack(c, 80, 84)
        k(f'{MFMA} {vr(48+8*c,4)}, {IRE}, {vr(16+4*c,4)}, 0')
        k(f'{MFMA} {vr(52+8*c,4)}, {IIM}, {vr(16+4*c,4)}, 0')
    for c in range(NC):
        for r in range(4):
            k(f'v_cvt_pk_bf16_f32 v{16+4*c+r}, v{48+8*c+r}, v{52+8*c+r}')
        k(f'ds_write_b128 v12, {vr(16+4*c,4)} offset:{c*P}')
    k('s_waitcnt lgkmcnt(0)')
    k.stamp()
    k('s_barrier')
    k.stamp()
    for i in range(2):
        for j in range(4):
            k(f'ds_read_b32 v{16+4*i+j}, v10 offset:{j*P+64*i}')
    for i in range(2):
        k(f's_waitcnt lgkmcnt({4-4*i})')
        k(f'buffer_store_dwordx4 {vr(16+4*i,4)}, v6, s[20:23], {so[i]} offen')
    k.finish(END)
    if WQ >= 2:
        import gen9
        k(f'{WROLE}:')
        gen9.wq_role(k, 256, END, None if WQ == 3 else 1, ' nt' if OPT.get('wnt') else '', OPT.get('wsl1', 0))
    return k


def gen_k2a():
    RP = 144; NP = 11 * RP + 16
    LT = OPT.get('lt', 0); TB2 = 8 * NP
    k = Kern('k2a_kernel', 256, 512, 8 * NP + 16384 * LT, nvgpr=128)
    END = k.label('end'); SKIP = k.label('skip')
    k(f'''s_cmp_ge_u32 s2, 256
s_cbranch_scc1 {END}
s_load_dwordx2 s[4:5], s[0:1], 0
s_load_dwordx2 s[40:41], s[0:1], 80
s_load_dwordx2 s[68:69], s[0:1], 40''')
    k.stamp(True)
    tab_srd(k, 12)
    k(f'''s_and_b32 s3, s2, 7
s_lshl_b32 s3, s3, 5
s_lshr_b32 s33, s2, 3
s_add_u32 s3, s3, s33
s_lshl_b32 s33, s3, 6
s_add_u32 s33, s33, 32768
s_load_dwordx16 s[16:31], s[12:13], s33
v_lshrrev_b32 v1, 6, v0
v_and_b32 v2, 63, v0
v_readfirstlane_b32 s34, v1
v_lshlrev_b32 v3, 4, v2
s_movk_i32 s38, 0x4000
s_movk_i32 s39, 0x5000
s_movk_i32 s49, 0x6000''')
    if LT:
        k(f'''s_lshl_b32 s39, s34, 11
s_add_u32 m0, s39, {TB2}
s_add_u32 s38, s38, s39
s_cmp_lt_u32 s34, 5
s_cselect_b32 s38, s38, 0x7f000000
buffer_load_dwordx4 v3, s[12:15], s38 offen lds
buffer_load_dwordx4 v3, s[12:15], s38 offen offset:1024 lds''')
    k(f'''s_mul_i32 s46, s3, {8*TP}
s_add_u32 s47, s46, {3*TP}
s_add_u32 s48, s46, {6*TP}
v_lshlrev_b32 v60, 2, v0
s_lshl_b32 s35, s34, 8
s_add_u32 s35, s35, s3
s_mul_i32 s35, s35, 1280
v_and_b32 v50, 15, v2
v_lshrrev_b32 v51, 4, v2
v_lshlrev_b32 v52, 6, v50
v_lshl_add_u32 v52, v51, 4, v52
v_add_u32 v53, 1024, v52
v_mov_b32 v54, 0x7fffffff
v_cmp_gt_u32 vcc, 4, v50
v_cndmask_b32 v53, v54, v53, vcc
v_lshlrev_b32 v112, 11, v50
v_lshl_add_u32 v112, v51, 8, v112
v_add_u32 v113, 32768, v112
v_cndmask_b32 v113, v54, v113, vcc
s_lshl_b32 s59, s34, 3
s_lshr_b32 s60, s3, 5
s_add_u32 s59, s59, s60
s_mul_i32 s59, s59, 40960
s_and_b32 s60, s3, 4
s_lshl_b32 s60, s60, 8
s_add_u32 s59, s59, s60
s_and_b32 s60, s3, 24
s_lshl_b32 s60, s60, 3
s_add_u32 s59, s59, s60
s_and_b32 s60, s3, 3
s_lshl_b32 s60, s60, 4
s_add_u32 s59, s59, s60
s_waitcnt lgkmcnt(0)''')
    srd_from(k, 4, 4, 5, 0, X_BYTES)
    srd_from(k, 8, 40, 41, WS_U, TU_BYTES)
    srd_from(k, 52, 40, 41, WS_H, X_BYTES)
    srd_from(k, 60, 40, 41, WS_HN, X_BYTES)
    for k2 in range(8):
        k(f'buffer_load_dword v{4+k2}, v60, s[8:11], s{46+k2//3} offen offset:{(k2%3)*TP+4*(k2&1)*(OPT.get("sh",0)>0)}')
    for i in range(0 if LT else 10):
        so = ['s38', 's39', 's49'][i // 4]
        k(f'buffer_load_dwordx4 {vr(64+4*i,4)}, v3, s[12:15], {so} offen offset:{(i%4)*1024}')
    k(f'''buffer_load_dwordx4 v[104:107], v52, s[4:7], s35 offen
buffer_load_dwordx4 v[108:111], v53, s[4:7], s35 offen''')
    k(f'''v_mul_u32_u24 v55, 3277, v0
v_lshrrev_b32 v55, 16, v55
v_mul_u32_u24 v56, 20, v55
v_sub_u32 v56, v0, v56
v_mul_u32_u24 v57, {RP}, v56
v_lshl_add_u32 v57, v55, 2, v57
v_mov_b32 v58, {11*RP}
v_cmp_ge_u32 vcc, 10, v56
v_cndmask_b32 v57, v58, v57, vcc
v_sub_u32 v59, 20, v56
v_mul_u32_u24 v59, {RP}, v59
v_sub_u32 v61, 31, v55
v_lshl_add_u32 v59, v61, 2, v59
v_cmp_le_u32 vcc, 10, v56
v_cndmask_b32 v59, v58, v59, vcc
v_sub_u32 v61, 32, v55
v_lshlrev_b32 v61, 2, v61
v_cmp_eq_u32 vcc, 0, v56
v_cndmask_b32 v59, v59, v61, vcc
v_cmp_eq_u32 vcc, 0, v0
v_cndmask_b32 v59, v59, v58, vcc
v_cmp_eq_u32 vcc, 320, v0
v_cndmask_b32 v59, v59, v58, vcc
v_mov_b32 v40, 0x3f3504f3
v_min_u32 v62, 10, v50
v_mul_u32_u24 v62, {RP}, v62
v_lshl_add_u32 v62, v51, 4, v62
s_mul_i32 s42, s34, {NP}
v_add_u32 v62, s42, v62
v_and_b32 v63, 1, v2
v_lshlrev_b32 v63, 31, v63
v_or_b32 v63, 1.0, v63
''')
    if LT:
        k('s_waitcnt vmcnt(10)\ns_barrier')
        for i in range(10): k(f'ds_read_b128 {vr(64+4*i,4)}, v3 offset:{TB2+1024*i}')
    k(f'''v_cmp_gt_u32 vcc, 321, v0
s_and_saveexec_b64 s[44:45], vcc
s_waitcnt vmcnt({2 if LT else 12})''')
    k.stamp()
    k(f'''s_cbranch_execz {SKIP}''')
    for k2 in range(8):
        k(f'v_lshlrev_b32 v{20+2*k2}, 16, v{4+k2}\nv_and_b32 v{21+2*k2}, 0xffff0000, v{4+k2}')
    for k2 in range(8):
        if k2 == 0:
            k('v_mov_b32 v4, v20\nv_mov_b32 v5, v21')
        else:
            smul(k, 4 + 2 * k2, 20 + 2 * k2, 16 + 2 * k2, 42 + 2 * (k2 & 1), conj=True)
    T = fft8(k, 4, 20, True, 40)
    for n in range(8):
        k(f'''v_cvt_pk_bf16_f32 v{4+2*n}, v{T[n]}, v{T[n]+1}
v_cvt_pk_bf16_f32 v{5+2*n}, v{T[n]}, -v{T[n]+1}
ds_write_b32 v57, v{4+2*n} offset:{n*NP}
ds_write_b32 v59, v{5+2*n} offset:{n*NP}''')
    k(f'''{SKIP}:
s_mov_b64 exec, -1
s_waitcnt lgkmcnt(0)''')
    k.stamp()
    k(f'''s_barrier''')
    k.stamp()
    k(f'''ds_read_b128 v[4:7], v62
ds_read_b128 v[8:11], v62 offset:64''')
    npf = 0
    if OPT.get('pf2a'):
        npf = 1
        k(f'''s_and_b32 s72, s2, 6
s_lshl_b32 s72, s72, 4
s_lshr_b32 s73, s2, 3
s_add_u32 s72, s72, s73
s_lshl_b32 s72, s72, 3
s_add_u32 s72, s72, s34
s_lshl_b32 s72, s72, 13
s_mov_b32 s70, {2048*4096}
s_mov_b32 s71, 0x00020000
v_lshlrev_b32 v114, 7, v2
buffer_load_ubyte v115, v114, s[68:71], s72 offen''')
    k(f'''s_waitcnt vmcnt({2+npf}) lgkmcnt(1)''')
    for u in range(2):
        if u == 1: k('s_waitcnt lgkmcnt(0)')
        for t in range(2):
            k(f'{MFMA} {vr(12+16*u+8*t,4)}, {vr(4+4*u,4)}, {vr(64+8*t,4)}, 0')
            k(f'{MFMA} {vr(16+16*u+8*t,4)}, {vr(4+4*u,4)}, {vr(68+8*t,4)}, 0')
    for i in range(0, 16, 2):
        k(f'v_pk_fma_f32 {vr(12+i,2)}, {vr(28+i,2)}, v[62:63], {vr(12+i,2)} op_sel:[0,1,0] op_sel_hi:[1,1,1]')
    for t in range(2):
        cmul_planar(k, 12 + 8 * t, 16 + 8 * t, 80 + 8 * t, 84 + 8 * t, 28, 32, 36)
        k(f'''v_cvt_pk_bf16_f32 v{4+4*t}, v28, v29
v_cvt_pk_bf16_f32 v{5+4*t}, v30, v31
v_cvt_pk_bf16_f32 v{6+4*t}, v32, v33
v_cvt_pk_bf16_f32 v{7+4*t}, v34, v35''')
    for v in range(2):
        for t in range(2):
            k(f'{MFMA} {vr(12+8*v+4*t,4)}, {vr(4+4*t,4)}, {vr(96+4*v,4)}, 0')
    k.stamp()
    k(f's_waitcnt vmcnt({npf})')
    k.stamp()
    for i in range(8):
        k(f'v_lshlrev_b32 v{28+2*i}, 16, v{104+i}\nv_and_b32 v{29+2*i}, 0xffff0000, v{104+i}')
    for i in range(8):
        k(f'v_cvt_pk_bf16_f32 v{4+i}, v{12+2*i}, v{13+2*i}')
    for i in range(8):
        k(f'v_lshlrev_b32 v{12+2*i}, 16, v{4+i}\nv_and_b32 v{13+2*i}, 0xffff0000, v{4+i}')
    for i in range(8):
        k(f'v_pk_add_f32 {vr(12+2*i,2)}, {vr(12+2*i,2)}, {vr(28+2*i,2)}')
    for i in range(8):
        k(f'v_cvt_pk_bf16_f32 v{4+i}, v{12+2*i}, v{13+2*i}')
    k('''buffer_store_dwordx4 v[4:7], v52, s[52:55], s35 offen
buffer_store_dwordx4 v[8:11], v53, s[52:55], s35 offen''')
    for i in range(8):
        k(f'v_lshlrev_b32 v{12+2*i}, 16, v{4+i}\nv_and_b32 v{13+2*i}, 0xffff0000, v{4+i}')
    k('''v_pk_add_f32 v[28:29], v[12:13], v[14:15]
v_pk_mul_f32 v[30:31], v[12:13], v[12:13]
v_pk_add_f32 v[32:33], v[16:17], v[18:19]
v_pk_mul_f32 v[34:35], v[14:15], v[14:15]''')
    for i in range(2, 8):
        k(f'v_pk_fma_f32 {vr(30+4*(i&1),2)}, {vr(12+2*i,2)}, {vr(12+2*i,2)}, {vr(30+4*(i&1),2)}')
        if i >= 4:
            k(f'v_pk_add_f32 {vr(28+4*(i&1),2)}, {vr(28+4*(i&1),2)}, {vr(12+2*i,2)}')
    k('''v_pk_add_f32 v[28:29], v[28:29], v[32:33]
v_pk_add_f32 v[30:31], v[30:31], v[34:35]
v_add_f32 v28, v28, v29
v_add_f32 v30, v30, v31''')
    wave_reduce2(k, 28, 30, 36, 37)
    ln_stats(k, 36, 37, 640, 28, 30, 32)
    ln_apply(k, 12, 16, 28, 30, 40)
    k(f'''buffer_store_dwordx4 v[40:43], v112, s[60:63], s59 offen
buffer_store_dwordx4 v[44:47], v113, s[60:63], s59 offen''')
    k.finish(END)
    return k
```

```python
import sys, re
from asmlib import *
from tables import build_tab
import gen_fft, gen3, gen10
opt = dict(lv=4, k0i=1, us=1, npf1=0, sf0=2, lt=1, k1c=1, wd=2, sh=2, k1wp=0, sfu=2, fullt=1, fz=1, fzn=128, pxd=10, pxs=6, g1d=8, g2d=8, g3d=8, p8=1, pp=1, G2R=3, N0=4, NZ=10)
for a in sys.argv[2:]:
    if a == 'prof': Kern.prof = True
    elif '=' in a:
        v = a.split('=')[1]
        opt[a.split('=')[0]] = [int(x) for x in v.split(',')] if ',' in v else int(v)
    else: opt[a] = 1
gen_fft.OPT = opt
gen10.PV = opt.get('pv', 0)
gen10.ROT = opt.get('rot', 0)
gen10.W128 = opt.get('w128', 0)
if gen10.W128: assert opt.get('wt1')[1] == 0 and not opt.get('wt0')
gen10.FS = opt.get('FS', 7)
ks = gen10.build(opt)
for k in ks:
    for j, l in enumerate(k.lines):
        if not l.startswith('buffer_store') or 's[96:99]' in l or 'sc1' in l: continue
        if k.name in ('k0_kernel',): k.lines[j] = l + ' sc1'
s = build_file(ks, {'tab': build_tab()})
open(sys.argv[1], 'w').write(s)
print(len(s))
```

```python
from asmlib import *
import gen_fft
from gen_fft import vr, sr, srd_from, tab_srd, MFMA, WS_H, WS_HN, WS_U, WS_T, X_BYTES, TU_BYTES, TP, fft8, smul, cmul_planar, wave_reduce2, ln_stats, ln_apply
from gen3 import *

WS_FL = 0x1800000
FL_BYTES = 0x40000
FLH = 0; FL2 = 0x8000; FL3 = 0x10000; FLU = 0x18000
FS = 7
WS_PX = 0x1840000
PX_BYTES = 64 * 16 * 256
WS_WS = 0x2000000
WSP_BYTES = 8 << 20
Z2N_BYTES = 64 * 57344
A2_BYTES = 4 << 20
SPIN = 400000
PV = 0
ROT = 0
W128 = 0
MF16 = 'v_mfma_f32_16x16x16_bf16'
BIG = '0x7f000000'


def st(k, view, slot):
    if Kern.prof and PV == view:
        k.nst = slot; k.stamp()


def poll(k, srd, soff, va, vd, sc):
    LP = k.label('lp'); LD = k.label('ld')
    k(f'''s_mov_b32 s{sc}, {SPIN}
{LP}:
buffer_load_dword v{vd}, v{va}, {sr(srd,4)}, {soff} offen sc1
s_waitcnt vmcnt(0)
v_cmp_eq_u32 vcc, 0, v{vd}
s_cbranch_vccz {LD}
s_sub_u32 s{sc}, s{sc}, 1
s_cmp_lg_u32 s{sc}, 0
s_cbranch_scc1 {LP}
{LD}:''')


def map_g2(k):
    if gen_fft.OPT.get('g2m'):
        k('''s_and_b32 s35, s2, 7
s_lshl_b32 s35, s35, 2
s_bfe_u32 s36, s2, 0x20003
s_add_u32 s35, s35, s36
s_lshr_b32 s36, s2, 5''')
        return
    k('''s_and_b32 s33, s2, 7
s_lshr_b32 s42, s2, 3
s_lshr_b32 s35, s33, 1
s_lshl_b32 s35, s35, 3
s_and_b32 s36, s42, 7
s_add_u32 s35, s35, s36
s_and_b32 s36, s33, 1
s_lshl_b32 s36, s36, 2
s_lshr_b32 s42, s42, 3
s_add_u32 s36, s36, s42''')


def g1id(k, d, t):
    m = gen_fft.OPT.get('g1m', 0)
    k(f'''s_bfe_u32 s{d}, s2, {hex(((3-m) << 16) | m)}
s_lshl_b32 s{d}, s{d}, {1+m}
s_lshr_b32 s{t}, s2, {7-m}
s_add_u32 s{d}, s{d}, s{t}
s_lshl_b32 s{d}, s{d}, {m}
s_and_b32 s{t}, s2, {(1 << m) - 1}
s_add_u32 s{d}, s{d}, s{t}
s_lshl_b32 s{d}, s{d}, {4-m}
s_bfe_u32 s{t}, s2, {hex(((4-m) << 16) | 3)}
s_add_u32 s{d}, s{d}, s{t}''')


def w_setup(k, t0, t1):
    G2M = gen_fft.OPT.get('g2m', 0)
    k(f'''s_mov_b32 s74, {2048*4096}
s_mov_b32 s75, 0x00020000
s_bfe_u32 s{t0}, s2, {"0x30000" if G2M else "0x20001"}
s_lshl_b32 s{t0}, s{t0}, {2 if G2M else 3}
s_bfe_u32 s{t1}, s2, {"0x20003" if G2M else "0x30003"}
s_add_u32 s{t0}, s{t0}, s{t1}
s_lshl_b32 s50, s{t0}, 15
s_lshr_b32 s{t0}, s34, 2
s_lshl_b32 s{t0}, s{t0}, 11
s_and_b32 s{t1}, s34, 3
s_lshl_b32 s{t1}, s{t1}, 7
s_add_u32 s50, s50, s{t0}
s_add_u32 s50, s50, s{t1}
s_add_u32 s51, s50, 16384''')
    if ROT:
        k(f'''s_bfe_u32 s{t0}, s2, 0x10006
s_lshl_b32 s{t0}, s{t0}, 14
s_add_u32 s50, s50, s{t0}
s_bfe_u32 s{t0}, s2, 0x10007
s_lshl_b32 s{t0}, s{t0}, 22
s_add_u32 s50, s50, s{t0}
s_mov_b32 s51, s50''')
    if W128: k('s_mov_b32 s82, s50\ns_add_u32 s51, s50, 4096')


def w_vaddr(k, d, t):
    if W128:
        k(f'''v_and_b32 v{d}, 112, v3
v_bfe_u32 v{t}, v3, 7, 1
v_lshl_add_u32 v{d}, v{t}, 13, v{d}
v_lshrrev_b32 v{t}, 8, v3
v_lshl_add_u32 v{d}, v{t}, 9, v{d}''')
        return
    k(f'''v_and_b32 v{d}, 48, v3
v_bfe_u32 v{t}, v3, 6, 2
v_lshl_add_u32 v{d}, v{t}, 12, v{d}
v_lshrrev_b32 v{t}, 8, v3
v_lshl_add_u32 v{d}, v{t}, 9, v{d}''')


def g2_wops(fl=''):
    ops = []
    if W128:
        for g in range(4):
            for n in range(4):
                for ih in range(2):
                    o = f'buffer_load_dwordx4 {ar(16*(4*ih+n)+4*g,4)}, @, s[72:75], s{50+ih} offen{fl}'
                    if ih and n < 3: o += '\ns_add_u32 s50, s50, 0x100000\ns_add_u32 s51, s51, 0x100000'
                    if ih and n == 3 and g < 3: o += f'\ns_xor_b32 s50, s82, {((g+1)&1)*16384 + ((g+1)>>1)*(4<<20)}\ns_add_u32 s51, s50, 4096'
                    ops.append(o)
        return ops
    if ROT:
        for g in range(4):
            for n in range(4):
                for hi in range(2):
                    o = f'buffer_load_dwordx4 {ar(16*(4*hi+n)+4*g,4)}, @, s[72:75], s50 offen offset:{64*hi}{fl}'
                    if hi and n < 3: o += '\ns_add_u32 s50, s50, 0x100000'
                    if hi and n == 3 and g < 3: o += f'\ns_xor_b32 s50, s51, {((g+1)&1)*16384 + ((g+1)>>1)*(4<<20)}'
                    ops.append(o)
        return ops
    for n2 in range(8):
        for u in range(2):
            for hi in range(2):
                o = f'buffer_load_dwordx4 {ar(16*(4*hi+(n2&3))+4*(2*(n2>>2)+u),4)}, @, s[72:75], s{50+u} offen offset:{64*hi}{fl}'
                if u and hi and n2 < 7: o += '\ns_add_u32 s50, s50, 0x100000\ns_add_u32 s51, s51, 0x100000'
                ops.append(o)
    return ops


def w_trans(k, vw, vrd, groups=None, ts=42):
    PT = 520
    if (groups is not None and not groups) or gen_fft.OPT.get('nowt'): return
    if W128:
        k(f'''s_and_b32 s{ts}, s34, 3
s_mul_i32 s{ts}, s{ts}, 4160
v_lshrrev_b32 v{vw}, 1, v3
v_add_u32 v{vw}, s{ts}, v{vw}
v_bfe_u32 v{vrd}, v3, 4, 3
v_mul_u32_u24 v{vrd}, {PT-8}, v{vrd}
v_add_u32 v{vrd}, v{vw}, v{vrd}''')
        for tt in range(4):
            if groups is not None and tt not in groups: continue
            for h in range(2):
                R = lambda i: ar(16 * i + 4 * tt + 2 * h, 2)
                for i in range(8): k(f'ds_write_b64 v{vw}, {R(i)} offset:{PT*i}')
                for c in range(8): k(f'ds_read_b64 {R(c)}, v{vrd} offset:{8*c}')
        return
    k(f'''s_mul_i32 s{ts}, s34, 2560
v_lshrrev_b32 v{vw}, 1, v3
v_add_u32 v{vw}, s{ts}, v{vw}
v_bfe_u32 v{vrd}, v3, 4, 2
v_mul_u32_u24 v{vrd}, {PT-8}, v{vrd}
v_add_u32 v{vrd}, v{vw}, v{vrd}''')
    for tt in range(4):
        for hi in range(2):
            if groups is not None and tt not in groups: continue
            for h in range(2):
                R = lambda i: ar(16 * (4 * hi + i) + 4 * tt + 2 * h, 2)
                for i in range(4): k(f'ds_write_b64 v{vw}, {R(i)} offset:{PT*i}')
                for c in range(4): k(f'ds_read_b64 {R(c)}, v{vrd} offset:{8*c}')


def unpk(l):
    m = re.match(r'v_pk_(add|mul)_f32 v\[(\d+):\d+\], v\[(\d+):\d+\], v\[(\d+):\d+\](.*)', l)
    if not m: return [l]
    op, d, a, b, mod = m.group(1), int(m.group(2)), int(m.group(3)), int(m.group(4)), m.group(5).strip()
    if mod == '': return [f'v_{op}_f32 v{d}, v{a}, v{b}', f'v_{op}_f32 v{d+1}, v{a+1}, v{b+1}']
    if mod == 'op_sel:[0,1] op_sel_hi:[1,1]': return [f'v_{op}_f32 v{d}, v{a}, v{b+1}', f'v_{op}_f32 v{d+1}, v{a+1}, v{b+1}']
    raise ValueError(l)


class Fill:
    def __init__(self): self.q = []
    def add(self, pos, f): self.q.append((pos, f))
    def emit(self, k, p, n):
        c = 0
        while self.q and self.q[0][0] <= p and c < n:
            f = self.q.pop(0)[1]
            f() if callable(f) else k(f)
            c += 1
    def flush(self, k): self.emit(k, 10**9, 10**9)


def ph_g2(k, opt, DONE, vm0, fused, post=None, early=None):
    HI = k.label('hi')
    NZ = opt.get('NZ', 14); ZR = 96 - 4 * NZ
    T = 8; S = 24; Z1 = 32
    assert ZR >= 40
    ACC = lambda n, tt: 96 + 16 * (n & 1) + 4 * tt
    SLOT = [0, 1, 2, 3, 4, 0, 1]
    srd_from(k, 8, 40, 41, WS_Z2, Z2N_BYTES)
    k(f'''s_lshl_b32 s56, s36, 3
s_add_u32 s56, s56, s34
s_mul_i32 s56, s56, 57344
v_and_b32 v2, 63, v0''')
    if opt.get('warm'):
        k('v_lshlrev_b32 v4, 7, v2\ns_mov_b32 s42, s56')
        for i in range(7): k('buffer_load_dword v5, v4, s[8:11], s42 offen\ns_add_u32 s42, s42, 8192')
        k('s_waitcnt vmcnt(0)\ns_barrier\ns_sleep 127')
    st(k, 2, 2)
    if opt.get('clkm'): k('s_memtime s[76:77]'); k.clkm = 1
    if opt.get('zpf'):
        k(f'''v_lshrrev_b32 v4, 3, v2
v_and_b32 v5, 7, v2
v_lshlrev_b32 v5, 7, v5
v_lshl_add_u32 v4, v4, 13, v5
s_and_b32 s42, s35, 7
s_lshl_b32 s42, s42, 10
s_add_u32 s42, s42, s56
s_mov_b32 exec_hi, 0x00ffffff
buffer_load_dword v36, v4, s[8:11], s42 offen
s_mov_b32 exec_hi, -1''')
        vm0.issue('pf')

    def zload(q, vm):
        if q >= 56 or opt.get('noz'): return
        if q and q % 4 == 0: k('s_add_u32 s56, s56, 4096')
        if q == 40: k(f's_cmp_eq_u32 s36, 7\ns_cselect_b32 s56, {BIG}, s56')
        k(f'buffer_load_dwordx4 {vr(ZR+4*(q%NZ),4)}, v3, s[8:11], s56 offen offset:{1024*(q%4)}'); vm.issue(f'z{q}')
    N0 = opt.get('N0', NZ)
    for q in range(N0): zload(q, vm0)
    srd_from(k, 12, 40, 41, WS_Z1, A2_BYTES)
    srd_from(k, 16, 40, 41, WS_Z1 if opt.get('ain') else WS_A, A2_BYTES)
    srd_from(k, 24, 24, 25, 0, 4096)
    k(f'''s_and_b32 s37, s34, 3
s_bfe_u32 s43, s2, {"0x20006" if ROT else "0"}
s_xor_b32 s43, s43, s37
s_lshl_b32 s44, s35, 3
s_add_u32 s44, s44, s36
s_lshl_b32 s44, s44, 2
s_add_u32 s44, s44, s43
s_lshl_b32 s44, s44, 12
s_and_b32 s42, s43, 1
s_lshl_b32 s42, s42, 3
s_lshl_b32 s45, s35, 4
s_add_u32 s45, s45, s42
s_and_b32 s42, s43, 2
s_lshl_b32 s42, s42, 10
s_add_u32 s45, s45, s42
v_bfe_u32 v4, v2, 2, 2
v_and_b32 v5, 3, v2
v_lshlrev_b32 v5, 9, v5
v_lshl_add_u32 v4, v4, 1, v5
buffer_load_ushort v1, v4, s[24:27], s45 offen
v_lshlrev_b32 v2, 3, v2
s_lshl_b32 s42, s34, 10
v_add_u32 v4, s42, v3
v_add_u32 v5, 0x10000, v4
v_add_u32 v6, 0x20000, v4
s_lshl_b32 s42, s37, 13
v_add_u32 v7, s42, v3
s_mov_b32 s58, 0xffff0000
s_cmp_eq_u32 s36, 7
s_cselect_b32 s46, {BIG}, s44
s_cselect_b32 s59, 0, -1
s_cmp_ge_u32 s34, 4
s_cbranch_scc1 {HI}''')
    vm0.issue('b')

    def body(hi):
        import copy
        vm = copy.deepcopy(vm0); lg = Cnt('lgkmcnt', 15)
        F = Fill()

        def wr(n, tt):
            a = SLOT[n] * 32768 + tt * 8192
            k(f'ds_write_b128 v{4+a//65536}, {vr(ACC(n,tt),4)} offset:{a%65536}'); lg.issue(f'w{n}')

        def bar(n):
            x = lg.wait(f'w{n}')
            if x: k(x)
            k('s_barrier')

        def unit(tiles, zr, off, so, pos):
            nt = len(tiles)
            ops = []
            for ti, n in enumerate(tiles):
                for b in range(2):
                    base = SLOT[n] * 32768 + 4096 * b
                    if base >= 65536 - 32768 + 8192 and False: pass
                    for i in range(4):
                        def rd(base=base, i=i, n=n, b=b):
                            a = base + 1024 * i
                            k(f'ds_read_b128 {vr(T+4*i,4)}, v{RB[a//65536]} offset:{a%65536}'); lg.issue(f'r{n}_{b}_{i}')
                        ops.append(rd)
                    s = S + 4 * ti
                    def w01(n=n, b=b): k(lg.wait(f'r{n}_{b}_1') or '')
                    def w23(n=n, b=b): k(lg.wait(f'r{n}_{b}_3') or '')
                    ops.append(None); ops.append(None)
                    ops.append(w01)
                    d = s if b == 0 else T
                    ops += [f'v_pk_add_f32 {vr(d,2)}, {vr(T,2)}, {vr(T+4,2)}', f'v_pk_add_f32 {vr(d+2,2)}, {vr(T+2,2)}, {vr(T+6,2)}']
                    if b: ops += [f'v_pk_add_f32 {vr(s,2)}, {vr(s,2)}, {vr(T,2)}', f'v_pk_add_f32 {vr(s+2,2)}, {vr(s+2,2)}, {vr(T+2,2)}']
                    ops.append(w23)
                    ops += [f'v_pk_add_f32 {vr(T+8,2)}, {vr(T+8,2)}, {vr(T+12,2)}', f'v_pk_add_f32 {vr(T+10,2)}, {vr(T+10,2)}, {vr(T+14,2)}',
                            f'v_pk_add_f32 {vr(s,2)}, {vr(s,2)}, {vr(T+8,2)}', f'v_pk_add_f32 {vr(s+2,2)}, {vr(s+2,2)}, {vr(T+10,2)}']
            h = 2 * nt
            ops += [f'v_cvt_pk_bf16_f32 v{T+i}, v{S+2*i}, v{S+2*i+1}' for i in range(h)]
            ops += [f'v_lshlrev_b32 v{S+2*i}, 16, v{T+i}\nv_and_b32 v{S+2*i+1}, s58, v{T+i}' for i in range(h)]
            ops.append(lambda: k(vm.wait(f'y{off}') or ''))
            ops += [f'v_pk_add_f32 {vr(S+2*i,2)}, {vr(S+2*i,2)}, v[0:1] op_sel:[0,1] op_sel_hi:[1,1]' for i in range(h)]
            ops += [f'v_lshlrev_b32 v{T+8+2*i}, 16, v{zr+i}\nv_and_b32 v{T+9+2*i}, s58, v{zr+i}' for i in range(h)]
            ops += [f'v_cvt_pk_bf16_f32 v{T+i}, v{S+2*i}, v{S+2*i+1}' for i in range(h)]
            ops += [f'v_lshlrev_b32 v{S+2*i}, 16, v{T+i}\nv_and_b32 v{S+2*i+1}, s58, v{T+i}' for i in range(h)]
            ops += [f'v_pk_mul_f32 {vr(S+2*i,2)}, {vr(S+2*i,2)}, {vr(T+8+2*i,2)}' for i in range(h)]
            ops += [f'v_cvt_pk_bf16_f32 v{zr+i}, v{S+2*i}, v{S+2*i+1}' for i in range(h)]

            if tiles == [4, 5]: ops += [f'v_and_b32 v{zr+2}, s59, v{zr+2}', f'v_and_b32 v{zr+3}, s59, v{zr+3}']

            def sto():
                if nt == 2: k(f'buffer_store_dwordx4 {vr(zr,4)}, v3, s[16:19], {so} offen offset:{off} sc1')
                else: k(f'buffer_store_dwordx2 {vr(zr,2)}, v2, s[16:19], {so} offen offset:{off} sc1')
                vm.issue('s')
            ops.append(sto)
            out = []
            for o in ops:
                if o is None: out.append('')
                elif callable(o): out.append(o)
                else:
                    for l in o.split('\n'): out += unpk(l) if opt.get('upk', 1) else [l]
            return out

        def z1load(zr, off, so, nt):
            if nt == 2: k(f'buffer_load_dwordx4 {vr(zr,4)}, v3, s[12:15], {so} offen offset:{off}')
            else: k(f'buffer_load_dwordx2 {vr(zr,2)}, v2, s[12:15], {so} offen offset:{off}')
            vm.issue(f'y{off}')
        RB = [7, 38, 39]
        k('v_add_u32 v38, 0x10000, v7\nv_add_u32 v39, 0x20000, v7')
        ev = {}
        def at(p, f): ev.setdefault(p, []).append(f)
        for n in range(6):
            for tt in range(4): at(32 * (n + 1) + 3 + 2 * tt, lambda n=n, tt=tt: wr(n, tt))
        BP = opt.get('G2B', 16)
        at(64 + BP, lambda: bar(1)); at(128 + BP, lambda: bar(3)); at(192 + BP, lambda: bar(5))
        if opt.get('pp'):
            bs = [-1, 64 + BP, 128 + BP, 192 + BP, 224]
            k('s_setprio 3')
            for a, b in zip(bs[:-1], bs[1:]):
                for i in range(4):
                    pp = a + (b - a) * i // 4
                    if pp >= 0: at(pp, lambda i=i: k(f's_setprio {3-i}'))
        at(40, lambda: k((vm.wait('b') or '') + '\nv_lshlrev_b32 v1, 16, v1'))
        fq = []
        if not hi:
            at(33, lambda: z1load(Z1, 0, 's44', 2))
            at(160, lambda: z1load(Z1, 2048, 's44', 2))
            fq.append((64 + BP + 1, lambda: unit([0, 1], Z1, 0, 's44', 0)))
            fq.append((192 + BP + 1, lambda: unit([4, 5], Z1, 2048, 's44', 0)))
        else:
            at(97, lambda: z1load(Z1, 1024, 's44', 2))
            at(190, lambda: z1load(Z1 + 4, 3072, 's46', 1))
            fq.append((128 + BP + 1, lambda: unit([2, 3], Z1, 1024, 's44', 0)))
        if post:
            po = list(post)
            def pw(n):
                for _ in range(n):
                    if po: k(po.pop(0)); vm.issue('o')
            for j in range(1, 8):
                for tt in range(4): at(192 + 4 * j + tt, lambda: pw(1))
        R = opt.get('G2R', 3)
        cur = []
        p = 0
        nq = [N0]
        for n in range(7):
            if n in (1, 3, 5): st(k, 2, 3 + n // 2)
            for j in range(8):
                q = 8 * n + j
                x = vm.wait(f'z{q}')
                if x: k(x)
                if q == 0:
                    x = vm.wait('w')
                    if x: k(x)
                for tt in range(4):
                    acc = vr(ACC(n, tt), 4)
                    k(f'{MFMA} {acc}, {vr(ZR+4*(q%NZ),4)}, {ar(16*j+4*tt,4)}, {"0" if j == 0 else acc}')
                    if tt in (1, 3) and nq[0] < q + NZ + (tt == 3): zload(nq[0], vm); nq[0] += 1
                    for f in ev.get(p, []): f()
                    if fq and fq[0][0] <= p: cur += fq.pop(0)[1]()
                    for _ in range(R):
                        if cur:
                            o = cur.pop(0)
                            o() if callable(o) else k(o)
                    p += 1
        if opt.get('clkm'): k('s_memtime s[78:79]')
        st(k, 2, 6)
        EP = opt.get('g3e', 0)
        if early and EP == 0:
            for o in early: k(o); vm.issue('e')
        for tt in range(4): wr(6, tt)
        if early and EP == 1:
            for o in early: k(o); vm.issue('e')
        bar(6)
        if early and EP == 2:
            for o in early: k(o); vm.issue('e')
        st(k, 2, 7)
        if hi: cur = unit([6], Z1 + 4, 3072, 's46', 0)
        for o in cur: o() if callable(o) else k(o)
        st(k, 2, 8); st(k, 0, 7)
        k('s_setprio 0')
        k(f's_branch {DONE}')
        return len(vm.tags) - 1 - max([i for i, t in enumerate(vm.tags) if t == 'e'] + [-1])
    n0 = body(False)
    k(f'{HI}:')
    n1 = body(True)
    return min(n0, n1)


def gen_g2(opt):
    k = Kern('k3_kernel', 256, 512, 163840, nvgpr=128, nagpr=128)
    END = k.label('end')
    k(f'''s_cmp_ge_u32 s2, 256
s_cbranch_scc1 {END}
s_load_dwordx2 s[40:41], s[0:1], 80
s_load_dwordx2 s[24:25], s[0:1], 48
s_load_dwordx2 s[72:73], s[0:1], 40''')
    k.stamp(True)
    map_g2(k)
    k(f'''v_lshrrev_b32 v1, 6, v0
v_and_b32 v2, 63, v0
v_readfirstlane_b32 s34, v1
v_lshlrev_b32 v3, 4, v2''')
    w_vaddr(k, 4, 5)
    w_setup(k, 42, 43)
    k('s_waitcnt lgkmcnt(0)')
    vm = Cnt('vmcnt', 63)
    wb = Bulk(k, g2_wops())
    wb(32, vm, 4)
    k('s_waitcnt vmcnt(0)')
    w_trans(k, 4, 5)
    k('s_waitcnt lgkmcnt(0)\ns_barrier')
    st(k, 2, 1)
    ph_g2(k, opt, END, vm, False)
    k.finish(END)
    return k


WOB = 17920
WO8_BYTES = 64 * WOB


def gen_prep8(k, base_wg, END, nwv=5):
    WO = k.label('wo'); J = k.label('j'); WO2 = k.label('wo2'); SG = k.label('sg')
    k(f'''s_load_dwordx2 s[4:5], s[0:1], 32
s_load_dwordx2 s[8:9], s[0:1], 56
v_lshrrev_b32 v1, 6, v0
v_and_b32 v2, 63, v0
v_readfirstlane_b32 s35, v1
s_sub_u32 s33, s2, {base_wg}
s_mul_i32 s33, s33, {nwv}
s_add_u32 s33, s33, s35
v_and_b32 v4, 15, v2
v_lshrrev_b32 v5, 4, v2
v_lshlrev_b32 v3, 4, v2
s_lshl_b32 s47, s35, 13
s_cmp_ge_u32 s35, {nwv}
s_cbranch_scc1 {END}
s_cmp_ge_u32 s33, 440
s_cbranch_scc1 {END}
s_waitcnt lgkmcnt(0)''')
    srd_from(k, 16, 40, 41, WS_WI, WS_WO - WS_WI + WO8_BYTES)
    k(f'''s_mov_b32 s23, 0x00020000
s_cmp_ge_u32 s33, 280
s_cbranch_scc1 {WO}
s_mul_i32 s51, s33, 4682
s_lshr_b32 s51, s51, 16
s_mul_i32 s52, s51, 14
s_sub_u32 s52, s33, s52
s_movk_i32 s50, 3456
s_lshl_b32 s53, s51, 5
s_mov_b32 s57, 8
s_mov_b32 s58, 4
s_mov_b64 s[20:21], s[4:5]
s_mov_b32 s22, {640*3456}
s_branch {J}
{WO}:
s_sub_u32 s34, s33, 280
s_mul_i32 s51, s34, 13108
s_lshr_b32 s51, s51, 16
s_mul_i32 s52, s51, 5
s_sub_u32 s52, s34, s52
s_movk_i32 s50, 1280
s_lshr_b32 s54, s51, 2
s_and_b32 s55, s51, 3
s_mul_i32 s53, s54, 112
s_lshl_b32 s42, s55, 5
s_add_u32 s53, s53, s42
s_mov_b32 s57, 4
s_mov_b32 s58, 16
s_mov_b64 s[20:21], s[8:9]
s_mov_b32 s22, {864*1280}
{J}:
v_mul_u32_u24 v6, s50, v5
v_lshl_add_u32 v6, v4, 4, v6
s_mul_i32 s42, s53, s50
s_lshl_b32 s43, s52, 8
s_add_u32 s42, s42, s43
v_add_u32 v6, s42, v6
s_lshl_b32 s43, s50, 2''')
    for i in range(8):
        k(f's_add_u32 m0, s47, {1024*i}')
        k(f'buffer_load_dwordx4 v6, s[20:23], 0 offen lds')
        if i < 7: k(f'v_add_u32 v6, s43, v6')
    k(f'''v_mul_u32_u24 v6, s57, v5
v_lshrrev_b32 v7, 2, v4
v_add_u32 v6, v6, v7
v_and_b32 v7, 3, v4
v_lshlrev_b32 v7, 3, v7
v_lshl_add_u32 v6, v6, 8, v7
v_add_u32 v6, s47, v6
s_lshl_b32 s42, s58, 8
v_add_u32 v7, s42, v6
v_lshlrev_b32 v8, 3, v2
s_waitcnt vmcnt(0)''')
    prep_tail(k, END, WO2, SG)


def prep_tail(k, END, WO2, SG):
    PADW = gen_fft.OPT.get('padw', 0); NL = '\n'
    for i in range(8):
        k(f'ds_read_b64_tr_b16 {vr(16+4*i,2)}, v6 offset:{32*i}')
        k(f'ds_read_b64_tr_b16 {vr(18+4*i,2)}, v7 offset:{32*i}')
    k(f's_cmp_ge_u32 s33, 280\ns_cbranch_scc1 {WO2}')
    for i in range(8):
        k(f'''s_lshl_b32 s42, s52, 3
s_add_u32 s42, s42, {i}
s_add_u32 s43, s42, 2
s_cmp_ge_u32 s42, 54
s_cselect_b32 s43, s43, s42
s_cselect_b32 s46, 0, 1
{f"s_cmp_ge_u32 s42, 110{NL}s_cselect_b32 s43, {48+i}, s43{NL}s_cselect_b32 s46, 1, s46" if PADW and i >= 6 else ""}
s_mul_i32 s44, s43, 9363
s_lshr_b32 s44, s44, 16
s_mul_i32 s45, s44, 7
s_sub_u32 s43, s43, s45
s_and_b32 s44, s44, 7
s_lshl_b32 s44, s44, 1
s_lshr_b32 s45, s43, 2
s_xor_b32 s45, s45, s46
s_add_u32 s44, s44, s45
s_mul_i32 s44, s44, 140
s_add_u32 s43, s43, s44
s_mul_i32 s44, s51, 7
s_add_u32 s43, s43, s44
s_lshl_b32 s43, s43, 10
{"" if PADW else f"s_cmp_lt_u32 s42, 108{NL}s_cselect_b32 s43, s43, {BIG}"}
s_waitcnt lgkmcnt({14-2*i})
buffer_store_dwordx4 {vr(16+4*i,4)}, v3, s[16:19], s43 offen''')
    k(f'''s_branch {END}
{WO2}:
s_mul_i32 s56, s54, {WOB}
s_add_u32 s56, s56, {WS_WO-WS_WI}
s_mul_i32 s42, s55, 5120
s_add_u32 s56, s56, s42
s_cmp_lt_u32 s53, 864
s_cselect_b32 s59, -1, 0
s_cmp_lt_u32 s53, 848
s_cselect_b32 s60, -1, 0
s_cmp_eq_u32 s55, 3
s_cbranch_scc1 {SG}''')
    for sg in range(2):
        for i in range(8):
            k(f'''s_lshl_b32 s42, s52, 3
s_add_u32 s42, s42, {i}
s_mul_i32 s44, s42, 13108
s_lshr_b32 s44, s44, 16
s_mul_i32 s45, s44, 5
s_sub_u32 s43, s42, s45
s_mul_i32 s44, s44, {8*WOB}
s_lshl_b32 s43, s43, {9 if sg else 10}
s_add_u32 s43, s43, s44
s_add_u32 s43, s43, s56
s_waitcnt lgkmcnt({14-2*i})''')
            for j in range(2 if sg else 4): k(f'v_and_b32 v{16+4*i+j}, s{59+j//2}, v{16+4*i+j}')
            if sg: k(f'buffer_store_dwordx2 {vr(16+4*i,2)}, v8, s[16:19], s43 offen')
            else: k(f'buffer_store_dwordx4 {vr(16+4*i,4)}, v3, s[16:19], s43 offen')
        k(f's_branch {END}')
        if sg == 0: k(f'{SG}:')


def prep_inl(k, part, LB, END, nv=0):
    WO = k.label('wo'); J = k.label('j'); WO2 = k.label('wo2'); SG = k.label('sg')
    txt = f"""s_lshl_b32 s33, s2, 1
s_add_u32 s33, s33, s34
s_sub_u32 s33, s33, 6
s_sub_u32 s47, s34, 6
s_lshl_b32 s47, s47, 13
s_add_u32 s47, s47, {LB}
v_and_b32 v4, 15, v2
v_lshrrev_b32 v5, 4, v2
s_mov_b32 s23, 0x00020000
s_cmp_ge_u32 s33, 280
s_cbranch_scc1 {WO}
s_mul_i32 s51, s33, 4682
s_lshr_b32 s51, s51, 16
s_mul_i32 s52, s51, 14
s_sub_u32 s52, s33, s52
s_movk_i32 s50, 3456
s_lshl_b32 s53, s51, 5
s_mov_b32 s57, 8
s_mov_b32 s58, 4
s_mov_b64 s[20:21], s[62:63]
s_mov_b32 s22, {640*3456}
s_branch {J}
{WO}:
s_sub_u32 s35, s33, 280
s_mul_i32 s51, s35, 13108
s_lshr_b32 s51, s51, 16
s_mul_i32 s52, s51, 5
s_sub_u32 s52, s35, s52
s_movk_i32 s50, 1280
s_lshr_b32 s54, s51, 2
s_and_b32 s55, s51, 3
s_mul_i32 s53, s54, 112
s_lshl_b32 s42, s55, 5
s_add_u32 s53, s53, s42
s_mov_b32 s57, 4
s_mov_b32 s58, 16
s_mov_b64 s[20:21], s[64:65]
s_mov_b32 s22, {864*1280}
{J}:
"""
    if part == 'A':
        txt += """v_mul_u32_u24 v6, s50, v5
v_lshl_add_u32 v6, v4, 4, v6
s_mul_i32 s42, s53, s50
s_lshl_b32 s43, s52, 8
s_add_u32 s42, s42, s43
v_add_u32 v6, s42, v6
s_lshl_b32 s43, s50, 2
"""
        for i in range(8):
            txt += f's_add_u32 m0, s47, {1024*i}\nbuffer_load_dwordx4 v6, s[20:23], 0 offen lds\n'
            if i < 7: txt += 'v_add_u32 v6, s43, v6\n'
        mp = dict(s33='s16', s35='s17', s42='s18', s43='s19', s47='s24', s50='s25', s51='s26', s52='s27', s53='s28', s54='s29', s55='s30', s57='s31', s58='s31', v4='v104', v5='v105', v6='v106')
        txt = re.sub(r'\b([sv]\d+)\b', lambda m: mp.get(m.group(1), m.group(1)), txt)
        k(txt)
        return
    k(txt)
    k(f's_cmp_ge_u32 s33, 440\ns_cbranch_scc1 {END}')
    srd_from(k, 16, 40, 41, WS_WI, WS_WO - WS_WI + WO8_BYTES)
    k(f"""v_mul_u32_u24 v6, s57, v5
v_lshrrev_b32 v7, 2, v4
v_add_u32 v6, v6, v7
v_and_b32 v7, 3, v4
v_lshlrev_b32 v7, 3, v7
v_lshl_add_u32 v6, v6, 8, v7
v_add_u32 v6, s47, v6
s_lshl_b32 s42, s58, 8
v_add_u32 v7, s42, v6
v_lshlrev_b32 v8, 3, v2
s_waitcnt vmcnt({nv})""")
    prep_tail(k, END, WO2, SG)


BB = 20480


def gelu_pk(k, pk, n, x, p, out, vc, tr=False, sc=False):
    for i in range(0, n, 2):
        k(f'v_lshlrev_b32 v{x+i}, 16, v{pk+i//2}\nv_and_b32 v{x+i+1}, 0xffff0000, v{pk+i//2}')
    if sc:
        for i in range(n): k(f'v_mul_f32 v{p+i}, v{x+i}, v{x+i}')
        for i in range(n): k(f'v_fma_f32 v{p+i}, v{p+i}, v{vc}, v{vc+1}')
        for i in range(n): k(f'v_mul_f32 v{p+i}, v{p+i}, v{x+i}')
    else:
        for i in range(0, n, 2):
            k(f'v_pk_mul_f32 {vr(p+i,2)}, {vr(x+i,2)}, {vr(x+i,2)}')
        for i in range(0, n, 2):
            k(f'v_pk_fma_f32 {vr(p+i,2)}, {vr(p+i,2)}, {vr(vc,2)}, {vr(vc,2)} op_sel:[0,0,1] op_sel_hi:[1,0,1]')
        for i in range(0, n, 2):
            k(f'v_pk_mul_f32 {vr(p+i,2)}, {vr(p+i,2)}, {vr(x+i,2)}')
    for i in range(n):
        k(f'v_exp_f32 v{p+i}, v{p+i}')
    if sc:
        for i in range(n): k(f'v_add_f32 v{p+i}, 1.0, v{p+i}')
    else:
        for i in range(0, n, 2):
            k(f'v_pk_add_f32 {vr(p+i,2)}, {vr(p+i,2)}, 1.0 op_sel_hi:[1,0]')
    for i in range(n):
        k(f'v_rcp_f32 v{p+i}, v{p+i}')
    if sc:
        for i in range(n): k(f'v_mul_f32 v{p+i}, v{p+i}, v{x+i}')
    else:
        for i in range(0, n, 2):
            k(f'v_pk_mul_f32 {vr(p+i,2)}, {vr(p+i,2)}, {vr(x+i,2)}')
    for i in range(0, n, 2):
        if tr:
            a = [0, 4, 1, 5][i // 2]
            k(f'v_cvt_pk_bf16_f32 v{out+i//2}, v{p+a}, v{p+a+2}')
        else: k(f'v_cvt_pk_bf16_f32 v{out+i//2}, v{p+i}, v{p+i+1}')


class Bulk:
    def __init__(self, k, ops): self.k = k; self.ops = list(ops)
    def copy(self): return Bulk(self.k, self.ops)
    def __call__(self, n, vm, va, tag='w'):
        for _ in range(n):
            if not self.ops: return
            self.k(self.ops.pop(0).replace('@', f'v{va}'))
            if vm is not None: vm.issue(tag)


def weave_in(k, i0, q, n, vm, va, tag='q'):
    body = k.lines[i0:]
    ok = []; full = True
    for i, l in enumerate(body):
        if l.startswith('s_mov_b64 exec, -1'): full = True
        elif 'exec' in l.split(',')[0] or 'saveexec' in l: full = False
        if full and l.startswith(('v_', 'ds_')) and not l.startswith('v_cmp') and 'vcc' not in l: ok.append(i)
    n = min(n, len(q.ops))
    if not n: return
    pos = {}
    for j in range(n):
        p = ok[(j * len(ok)) // n]
        pos[p] = pos.get(p, 0) + 1
    del k.lines[i0:]
    for i, l in enumerate(body):
        if i in pos: q(pos[i], vm, va, tag)
        k.lines.append(l)


def flag(k, srd, soff):
    k(f'''s_mov_b64 exec, 1
v_mov_b32 v8, 1
v_mov_b32 v9, 0
buffer_store_dword v8, v9, {sr(srd,4)}, {soff} offen sc1
s_mov_b64 exec, -1''')


def ph_k2a(k, opt, wb):
    RP = 144; NP = 11 * RP + 16
    TB2 = 0
    SKIP = k.label('skip')
    vm = Cnt('vmcnt', 63)
    k(f'''s_load_dwordx2 s[4:5], s[0:1], 0
s_load_dwordx2 s[40:41], s[0:1], 80
s_load_dwordx2 s[72:73], s[0:1], 40
s_load_dwordx2 s[80:81], s[0:1], 64''')
    tab_srd(k, 12)
    k(f'''s_and_b32 s3, s2, 7
s_lshl_b32 s3, s3, 5
s_lshr_b32 s33, s2, 3
s_add_u32 s3, s3, s33
s_lshl_b32 s33, s3, 6
s_add_u32 s33, s33, 32768
s_load_dwordx16 s[16:31], s[12:13], s33
v_lshrrev_b32 v1, 6, v0
v_and_b32 v2, 63, v0
v_readfirstlane_b32 s34, v1
v_lshlrev_b32 v3, 4, v2
s_movk_i32 s38, 0x4000
s_lshl_b32 s39, s34, 11
s_add_u32 m0, s39, {TB2}
s_add_u32 s38, s38, s39
s_cmp_lt_u32 s34, 5
s_cselect_b32 s38, s38, {BIG}
buffer_load_dwordx4 v3, s[12:15], s38 offen lds
buffer_load_dwordx4 v3, s[12:15], s38 offen offset:1024 lds''')
    vm.issue('t'); vm.issue('t')
    k(f'''s_mul_i32 s46, s3, {8*TP}
s_add_u32 s47, s46, {3*TP}
s_add_u32 s48, s46, {6*TP}
v_lshlrev_b32 v60, 2, v0
s_lshl_b32 s35, s34, 8
s_add_u32 s35, s35, s3
s_mul_i32 s35, s35, 1280
v_and_b32 v50, 15, v2
v_lshrrev_b32 v51, 4, v2
v_lshlrev_b32 v52, 6, v50
v_lshl_add_u32 v52, v51, 4, v52
v_add_u32 v53, 1024, v52
v_mov_b32 v54, 0x7fffffff
v_cmp_gt_u32 vcc, 4, v50
v_cndmask_b32 v53, v54, v53, vcc''')
    k(f'''s_mul_i32 s59, s34, {NP}
v_add_u32 v112, s59, v52
v_and_b32 v113, 3, v2
v_mul_u32_u24 v113, {NP}, v113
v_lshrrev_b32 v114, 2, v2
v_lshl_add_u32 v113, v114, 4, v113
s_cmp_ge_u32 s34, 5
s_cselect_b32 s59, {4*NP-5*256}, 0
s_lshl_b32 s60, s34, 8
s_add_u32 s59, s59, s60
v_add_u32 v113, s59, v113
s_mul_i32 s59, s3, 10240
s_lshl_b32 s60, s34, 10
s_add_u32 s59, s59, s60
s_add_u32 s49, s59, 8192
s_cmp_lt_u32 s34, 2
s_cselect_b32 s49, s49, {BIG}''')
    k(f'''s_and_b32 s58, s3, 15
s_mul_i32 s58, s58, {140*1024}
s_mul_i32 s57, s34, {18*1024}
s_min_u32 s57, s57, {122*1024}
s_add_u32 s56, s57, {BB}
s_add_u32 s57, s57, s58
s_waitcnt lgkmcnt(0)''')
    srd_from(k, 4, 4, 5, 0, X_BYTES)
    srd_from(k, 8, 40, 41, WS_U, TU_BYTES)
    for k2 in range(8):
        k(f'buffer_load_dword v{4+k2}, v60, s[8:11], s{46+k2//3} offen offset:{(k2%3)*TP+4*(k2&1)*(opt.get("sh",0)>0)}')
        vm.issue('u')
    k(f'''buffer_load_dwordx4 v[104:107], v52, s[4:7], s35 offen
buffer_load_dwordx4 v[108:111], v53, s[4:7], s35 offen''')
    vm.issue('x'); vm.issue('x')
    srd_from(k, 52, 40, 41, WS_H, X_BYTES)
    srd_from(k, 60, 40, 41, WS_HN, X_BYTES)
    srd_from(k, 64, 40, 41, WS_WI, WI_BYTES)
    if wb:
        w_setup(k, 42, 43); w_vaddr(k, 114, 115)
    if opt.get('ub'): k('s_barrier')
    bq = [] if opt.get('nob') else list(range(18))
    BP = opt.get('BP', [10, 8, 0, 0, 0, 0])
    assert sum(BP) >= 18

    def bulk(i):
        for _ in range(BP[i]):
            if bq:
                i = bq.pop(0)
                if i % 4 == 0:
                    k(f's_add_u32 m0, s56, {1024*i}')
                    if i: k('s_add_u32 s57, s57, 4096')
                k(f'buffer_load_dwordx4 v3, s[64:67], s57 offen offset:{1024*(i%4)} lds'); vm.issue('b')
            elif wb: wb(1, vm, 114)
    bulk(0)
    k(f'''v_mul_u32_u24 v55, 3277, v0
v_lshrrev_b32 v55, 16, v55
v_mul_u32_u24 v56, 20, v55
v_sub_u32 v56, v0, v56
v_mul_u32_u24 v57, {RP}, v56
v_lshl_add_u32 v57, v55, 2, v57
v_mov_b32 v58, {11*RP}
v_cmp_ge_u32 vcc, 10, v56
v_cndmask_b32 v57, v58, v57, vcc
v_sub_u32 v59, 20, v56
v_mul_u32_u24 v59, {RP}, v59
v_sub_u32 v61, 31, v55
v_lshl_add_u32 v59, v61, 2, v59
v_cmp_le_u32 vcc, 10, v56
v_cndmask_b32 v59, v58, v59, vcc
v_sub_u32 v61, 32, v55
v_lshlrev_b32 v61, 2, v61
v_cmp_eq_u32 vcc, 0, v56
v_cndmask_b32 v59, v59, v61, vcc
v_cmp_eq_u32 vcc, 0, v0
v_cndmask_b32 v59, v59, v58, vcc
v_cmp_eq_u32 vcc, 320, v0
v_cndmask_b32 v59, v59, v58, vcc
v_mov_b32 v40, 0x3f3504f3
v_min_u32 v62, 10, v50
v_mul_u32_u24 v62, {RP}, v62
v_lshl_add_u32 v62, v51, 4, v62
s_mul_i32 s42, s34, {NP}
v_add_u32 v62, s42, v62
v_and_b32 v63, 1, v2
v_lshlrev_b32 v63, 31, v63
v_or_b32 v63, 1.0, v63
''')
    k(vm.wait('t')); k('s_barrier')
    for i in range(10): k(f'ds_read_b128 {vr(64+4*i,4)}, v3 offset:{TB2+1024*i}')
    bulk(1)
    k('s_waitcnt lgkmcnt(0)\ns_barrier')
    k(f'''v_cmp_gt_u32 vcc, 321, v0
s_and_saveexec_b64 s[44:45], vcc''')
    k(vm.wait('u'))
    st(k, 1, 1); st(k, 0, 1)
    k(f'''s_cbranch_execz {SKIP}''')
    for k2 in range(8):
        k(f'v_lshlrev_b32 v{20+2*k2}, 16, v{4+k2}\nv_and_b32 v{21+2*k2}, 0xffff0000, v{4+k2}')
    for k2 in range(8):
        if k2 == 0:
            k('v_mov_b32 v4, v20\nv_mov_b32 v5, v21')
        else:
            smul(k, 4 + 2 * k2, 20 + 2 * k2, 16 + 2 * k2, 42 + 2 * (k2 & 1), conj=True)
    T = fft8(k, 4, 20, True, 40)
    for n in range(8):
        k(f'''v_cvt_pk_bf16_f32 v{4+2*n}, v{T[n]}, v{T[n]+1}
v_cvt_pk_bf16_f32 v{5+2*n}, v{T[n]}, -v{T[n]+1}
ds_write_b32 v57, v{4+2*n} offset:{n*NP}
ds_write_b32 v59, v{5+2*n} offset:{n*NP}''')
    k(f'''{SKIP}:
s_mov_b64 exec, -1''')
    bulk(2)
    k(f'''s_waitcnt lgkmcnt(0)
s_barrier
ds_read_b128 v[4:7], v62
ds_read_b128 v[8:11], v62 offset:64''')
    bulk(3)
    k(f'''s_waitcnt lgkmcnt(1)''')
    for u in range(2):
        if u == 1: k('s_waitcnt lgkmcnt(0)')
        for t in range(2):
            k(f'{MFMA} {vr(12+16*u+8*t,4)}, {vr(4+4*u,4)}, {vr(64+8*t,4)}, 0')
            k(f'{MFMA} {vr(16+16*u+8*t,4)}, {vr(4+4*u,4)}, {vr(68+8*t,4)}, 0')
    bulk(4)
    for i in range(0, 16, 2):
        k(f'v_pk_fma_f32 {vr(12+i,2)}, {vr(28+i,2)}, v[62:63], {vr(12+i,2)} op_sel:[0,1,0] op_sel_hi:[1,1,1]')
    for t in range(2):
        cmul_planar(k, 12 + 8 * t, 16 + 8 * t, 80 + 8 * t, 84 + 8 * t, 28, 32, 36)
        k(f'''v_cvt_pk_bf16_f32 v{4+4*t}, v28, v29
v_cvt_pk_bf16_f32 v{5+4*t}, v30, v31
v_cvt_pk_bf16_f32 v{6+4*t}, v32, v33
v_cvt_pk_bf16_f32 v{7+4*t}, v34, v35''')
    for v in range(2):
        for t in range(2):
            k(f'{MFMA} {vr(12+8*v+4*t,4)}, {vr(4+4*t,4)}, {vr(96+4*v,4)}, 0')
    bulk(5)
    k(vm.wait('x'))
    for i in range(8):
        k(f'v_lshlrev_b32 v{28+2*i}, 16, v{104+i}\nv_and_b32 v{29+2*i}, 0xffff0000, v{104+i}')
    for i in range(8):
        k(f'v_cvt_pk_bf16_f32 v{4+i}, v{12+2*i}, v{13+2*i}')
    for i in range(8):
        k(f'v_lshlrev_b32 v{12+2*i}, 16, v{4+i}\nv_and_b32 v{13+2*i}, 0xffff0000, v{4+i}')
    for i in range(8):
        k(f'v_pk_add_f32 {vr(12+2*i,2)}, {vr(12+2*i,2)}, {vr(28+2*i,2)}')
    for i in range(8):
        k(f'v_cvt_pk_bf16_f32 v{4+i}, v{12+2*i}, v{13+2*i}')
    k('''buffer_store_dwordx4 v[4:7], v52, s[52:55], s35 offen sc1
buffer_store_dwordx4 v[8:11], v53, s[52:55], s35 offen sc1''')
    for i in range(8):
        k(f'v_lshlrev_b32 v{12+2*i}, 16, v{4+i}\nv_and_b32 v{13+2*i}, 0xffff0000, v{4+i}')
    k('''v_pk_add_f32 v[28:29], v[12:13], v[14:15]
v_pk_mul_f32 v[30:31], v[12:13], v[12:13]
v_pk_add_f32 v[32:33], v[16:17], v[18:19]
v_pk_mul_f32 v[34:35], v[14:15], v[14:15]''')
    for i in range(2, 8):
        k(f'v_pk_fma_f32 {vr(30+4*(i&1),2)}, {vr(12+2*i,2)}, {vr(12+2*i,2)}, {vr(30+4*(i&1),2)}')
        if i >= 4:
            k(f'v_pk_add_f32 {vr(28+4*(i&1),2)}, {vr(28+4*(i&1),2)}, {vr(12+2*i,2)}')
    k('''v_pk_add_f32 v[28:29], v[28:29], v[32:33]
v_pk_add_f32 v[30:31], v[30:31], v[34:35]
v_add_f32 v28, v28, v29
v_add_f32 v30, v30, v31''')
    wave_reduce2(k, 28, 30, 36, 37)
    ln_stats(k, 36, 37, 640, 28, 30, 32)
    ln_apply(k, 12, 16, 28, 30, 40)
    srd_from(k, 68, 40, 41, WS_FL, FL_BYTES)
    k(f'''ds_write_b128 v112, v[40:43]
s_mov_b32 exec_lo, 0x000f000f
s_mov_b32 exec_hi, 0x000f000f
ds_write_b128 v112, v[44:47] offset:1024
s_mov_b64 exec, -1
s_waitcnt lgkmcnt(0)
s_barrier
ds_read_b128 v[40:43], v113
ds_read_b128 v[44:47], v113 offset:{4*NP+3*256}
s_waitcnt lgkmcnt(1)
buffer_store_dwordx4 v[40:43], v3, s[60:63], s59 offen sc1
s_waitcnt lgkmcnt(0)
buffer_store_dwordx4 v[44:47], v3, s[60:63], s49 offen sc1''')
    st(k, 1, 2); st(k, 0, 2)


def ph_k12(k, opt, wb):
    P = 1040; W0 = 16 * P; TB1 = 32 * P; TB2 = TB1 + 8192
    RP = 144; NP = 11 * RP + 16
    IDLE = k.label('idle'); JOIN = k.label('join'); SKIP = k.label('skip')
    vm = Cnt('vmcnt', 63)
    k(f"""s_load_dwordx4 s[4:7], s[0:1], 8
s_load_dwordx2 s[40:41], s[0:1], 80
s_load_dwordx2 s[72:73], s[0:1], 40
s_load_dwordx2 s[80:81], s[0:1], 64""")
    tab_srd(k, 12)
    k(f"""s_and_b32 s33, s2, 7
s_lshr_b32 s35, s2, 3
v_lshrrev_b32 v1, 6, v0
v_and_b32 v2, 63, v0
v_readfirstlane_b32 s34, v1
v_lshlrev_b32 v3, 4, v2
v_and_b32 v4, 15, v2
v_lshrrev_b32 v5, 4, v2
s_lshl_b32 s39, s34, 10
s_add_u32 m0, s39, {TB1}
s_add_u32 s38, s39, 0x2000
buffer_load_dwordx4 v3, s[12:15], s38 offen lds""")
    vm.issue('t1')
    IIM = 'v[112:115]'; IRE = 'v[114:117]'; FIM = 'v[116:119]'; FRE = 'v[118:121]'
    k(f"""v_mul_u32_u24 v6, {16*8*TP}, v4
v_lshl_add_u32 v6, v5, 4, v6
s_lshl_b32 s36, s34, 4
s_add_u32 s36, s36, s33
s_mul_i32 s45, s36, 642
s_mul_i32 s36, s36, {TP}
s_lshl_b32 s37, s35, 6
s_add_u32 s36, s36, s37
s_add_u32 s42, s36, {8*TP}
s_lshl_b32 s37, s35, 5
s_add_u32 s45, s45, s37
s_and_b32 s45, s45, -4
v_and_b32 v7, 1, v5
v_lshrrev_b32 v8, 1, v5
v_lshl_add_u32 v9, v4, 4, v7
v_mul_u32_u24 v9, {8*642}, v9
v_lshl_add_u32 v9, v8, 4, v9
s_and_b32 s37, s33, 1
s_lshl_b32 s37, s37, 2
s_sub_u32 s43, s36, s37
s_sub_u32 s44, s42, s37
s_lshl_b32 s3, s33, 5
s_add_u32 s3, s3, s35
s_cmp_lt_u32 s2, 168
s_cselect_b32 s43, s43, {BIG}
s_cselect_b32 s44, s44, {BIG}
s_cselect_b32 s45, s45, {BIG}
s_waitcnt lgkmcnt(0)""")
    srd_from(k, 60, 40, 41, WS_T, TU_BYTES)
    for i in range(2):
        k(f'buffer_load_dwordx4 {vr(16+4*i,4)}, v6, s[60:63], s{43+i} offen'); vm.issue(f'T{i}')
    k(f"""s_mov_b32 s52, s6
s_mov_b32 s53, s7
s_mov_b32 s6, {2048*642}
s_mov_b32 s7, 0x00020000
s_mov_b32 s54, {2048*642}
s_mov_b32 s55, 0x00020000""")
    WP = opt.get('k1wp', 0)

    def wld():
        k(f"""buffer_load_dwordx4 v[32:35], v9, s[4:7], s45 offen
buffer_load_dwordx4 v[38:41], v9, s[52:55], s45 offen
s_load_dwordx2 s[4:5], s[0:1], 0""")
        vm.issue('W'); vm.issue('W')
    if opt.get('ob1'): k('s_barrier')
    if WP == 0: wld()
    k(f"""s_min_u32 s39, s34, 4
s_lshl_b32 s39, s39, 11
s_add_u32 m0, s39, {TB2}
s_add_u32 s38, s39, 0x4000
buffer_load_dwordx4 v3, s[12:15], s38 offen lds
buffer_load_dwordx4 v3, s[12:15], s38 offen offset:1024 lds
s_lshl_b32 s38, s3, 6
s_add_u32 s38, s38, 32768
s_load_dwordx16 s[16:31], s[12:13], s38""")
    vm.issue('t2'); vm.issue('t2')
    srd_from(k, 8, 40, 41, WS_U, TU_BYTES)
    srd_from(k, 64, 40, 41, WS_WI, WI_BYTES)
    w_setup(k, 46, 47); w_vaddr(k, 124, 125)
    BR = opt.get('brot', 0)
    g1id(k, 58, 57)
    k(f"""s_and_b32 s58, s58, 15
s_mul_i32 s58, s58, {140*1024}
s_mul_i32 s57, s34, {14*1024}
s_add_u32 s57, s57, {31*1024}
s_min_u32 s57, s57, {(124 if BR else 126)*1024}
s_add_u32 s56, s57, {BB}
s_add_u32 s57, s57, s58""")
    if opt.get('hot'): k('s_sub_u32 s57, s57, s58\ns_mov_b32 s58, 0\ns_and_b32 s50, s50, 0x7fff\ns_and_b32 s51, s51, 0x7fff\ns_and_b32 s82, s82, 0x7fff')
    if opt.get('hotw'): k('s_and_b32 s50, s50, 0x7fff\ns_and_b32 s51, s51, 0x7fff\ns_and_b32 s82, s82, 0x7fff')
    if opt.get('hotb'): k('s_sub_u32 s57, s57, s58\ns_mov_b32 s58, 0')
    if BR: k('s_bfe_u32 s38, s3, 0x10004\ns_lshl_b32 s38, s38, 13')
    bops = []
    for i in range(0 if opt.get('nob') else (16 if BR else 14)):
        if BR:
            o = f's_xor_b32 s39, s38, {1024*(i-i%4)}\ns_add_u32 m0, s56, s39\ns_add_u32 s39, s39, s57\n'
            bops.append(o + f'buffer_load_dwordx4 v3, s[64:67], s39 offen offset:{1024*(i%4)} lds')
            continue
        o = f's_add_u32 m0, s56, {1024*(i-i%4)}\n'
        if i % 4 == 0 and i: o += 's_add_u32 s57, s57, 4096\n'
        bops.append(o + f'buffer_load_dwordx4 v3, s[64:67], s57 offen offset:{1024*(i%4)} lds')
    wops = wb.ops
    NWL = opt.get('nwl', 0)
    wpre = wops[:len(wops) - NWL]; wb.ops = wops[len(wops) - NWL:]
    order = opt.get('bo', 0)
    if order == 0: pre = wpre + bops
    elif order == 1: pre = bops + wpre
    else:
        pre = []
        a, b = list(wpre), list(bops)
        while a or b:
            pre += a[:8]; a = a[8:]
            pre += b[:4]; b = b[4:]
    import copy
    KP = opt.get('KP', [8, 4, 4, 4, 4, 4, 4, 4, 4, 99])
    CP = opt.get('CP', [0, 0, 0, 0, 0])
    NPRE = sum(KP) + sum(opt.get('KW', [0, 0, 0])[:2])
    post = pre[NPRE:]; pre = pre[:NPRE]
    assert len(post) <= sum(CP) + opt.get('KW', [0, 0, 0])[2], (len(post), CP)
    k(f's_cmp_ge_u32 s2, 168\ns_cbranch_scc1 {IDLE}')
    vi = copy.deepcopy(vm)
    q = Bulk(k, pre)

    def bulk(i): q(KP[i], vm, 124, 'q')
    bulk(0)
    k(f"""v_mul_u32_u24 v10, {4*P}, v5
v_lshl_add_u32 v10, v4, 2, v10
s_lshl_b32 s37, s34, 7
v_add_u32 v10, s37, v10
v_mul_u32_u24 v11, {8*P}, v8
v_lshl_add_u32 v11, v7, 6, v11
v_lshl_add_u32 v11, v4, 2, v11
v_add_u32 v11, s37, v11
v_lshlrev_b32 v12, 6, v4
v_lshl_add_u32 v12, v5, 4, v12
s_mul_i32 s37, s34, {2*P}
v_add_u32 v12, s37, v12
s_mov_b32 s47, 0x05040100
s_mov_b32 s48, 0x07060302""")
    for i in range(2):
        k(vm.wait(f'T{i}'))
        if i == 0: st(k, 4, 1)
        for j in range(4):
            k(f'ds_write_b32 v10, v{16+4*i+j} offset:{j*P+64*i}')
    if WP == 1: wld()
    bulk(1)
    k('s_waitcnt lgkmcnt(0)\ns_barrier')
    NC = 2
    KW = opt.get('KW', [0, 0, 0])
    i0 = len(k.lines)
    k(f"""ds_read_b128 v[96:99], v3 offset:{TB1}
ds_read_b128 v[16:19], v12
ds_read_b128 v[100:103], v3 offset:{TB1+1024}
ds_read_b128 v[20:23], v12 offset:{P}
ds_read_b128 v[104:107], v3 offset:{TB1+2048}
ds_read_b128 v[108:111], v3 offset:{TB1+3072}
ds_read_b128 v[118:121], v3 offset:{TB1+4096}
ds_read_b64 v[116:117], v3 offset:{TB1+5120}
ds_read_b128 v[112:115], v3 offset:{TB1+7168}""")
    bulk(2)
    k(f"""s_waitcnt lgkmcnt(7)
{MFMA} v[48:51], v[16:19], v[96:99], 0
s_waitcnt lgkmcnt(6)
{MFMA} v[52:55], v[16:19], v[100:103], 0
s_waitcnt lgkmcnt(5)
{MFMA} v[56:59], v[20:23], v[96:99], 0
{MFMA} v[60:63], v[20:23], v[100:103], 0""")
    bulk(3)
    k('s_waitcnt lgkmcnt(0)')

    def pack(c, re, im):
        k(f"""v_cvt_pk_bf16_f32 v{16+4*c}, v{re}, v{re+1}
v_cvt_pk_bf16_f32 v{17+4*c}, v{re+2}, v{re+3}
v_cvt_pk_bf16_f32 v{18+4*c}, v{im}, v{im+1}
v_cvt_pk_bf16_f32 v{19+4*c}, v{im+2}, v{im+3}""")
    for c in range(NC):
        cmul_planar(k, 48 + 8 * c, 52 + 8 * c, 104, 108, 80, 84, 88)
        pack(c, 80, 84)
        k(f'{MFMA} {vr(48+8*c,4)}, {FRE}, {vr(16+4*c,4)}, 0')
        k(f'{MFMA} {vr(52+8*c,4)}, {FIM}, {vr(16+4*c,4)}, 0')
    bulk(4)
    weave_in(k, i0, q, KW[0], vm, 124)
    k(vm.wait('W') or '')
    k(vm.wait('t2') or '')
    st(k, 4, 2)
    i0 = len(k.lines)
    for j in range(8):
        k(f'v_perm_b32 v{64+j}, v{38+j//2}, v{32+j//2}, s{47+(j&1)}')
        k(f'ds_write_b32 v11, v{64+j} offset:{W0+j*P}')
    bulk(5)
    k(f's_waitcnt lgkmcnt(0)\ns_barrier')
    for c in range(NC):
        k(f'ds_read_b128 {vr(32+4*c,4)}, v12 offset:{W0+c*P}')
    bulk(6)
    for c in range(NC):
        k(f's_waitcnt lgkmcnt({NC-1-c})')
        for r in range(4):
            k(f'v_lshlrev_b32 v{64+8*c+r}, 16, v{32+4*c+r}\nv_and_b32 v{68+8*c+r}, 0xffff0000, v{32+4*c+r}')
        cmul_planar(k, 48 + 8 * c, 52 + 8 * c, 64 + 8 * c, 68 + 8 * c, 80, 84, 88)
        pack(c, 80, 84)
        k(f'{MFMA} {vr(48+8*c,4)}, {vr(16+4*c,4)}, {IRE}, 0')
        k(f'{MFMA} {vr(52+8*c,4)}, {vr(16+4*c,4)}, {IIM}, 0')
    bulk(7)
    for c in range(NC):
        cmul_planar(k, 48 + 8 * c, 52 + 8 * c, 104, 108, 80, 84, 88, conj=True)
        pack(c, 80, 84)
        k(f'{MFMA} {vr(48+8*c,4)}, {IRE}, {vr(16+4*c,4)}, 0')
        k(f'{MFMA} {vr(52+8*c,4)}, {IIM}, {vr(16+4*c,4)}, 0')
    bulk(8)
    for c in range(NC):
        for r in range(4):
            k(f'v_cvt_pk_bf16_f32 v{16+4*c+r}, v{48+8*c+r}, v{52+8*c+r}')
        k(f'ds_write_b128 v12, {vr(16+4*c,4)} offset:{c*P}')
    weave_in(k, i0, q, KW[1], vm, 124)
    k('s_waitcnt lgkmcnt(0)\ns_barrier')
    for i in range(2):
        for j in range(4):
            k(f'ds_read_b32 v{16+4*i+j}, v10 offset:{j*P+64*i}')
    for i in range(10): k(f'ds_read_b128 {vr(64+4*i,4)}, v3 offset:{TB2+1024*i}')
    for i in range(2):
        k(f's_waitcnt lgkmcnt({14-4*i})')
        k(f'buffer_store_dwordx4 {vr(16+4*i,4)}, v6, s[8:11], {["s36","s42"][i]} offen sc1')
    st(k, 4, 3)
    if opt.get('ob2'): k('s_barrier')
    q(99, vm, 124, 'q')
    k(f's_branch {JOIN}\n{IDLE}:')
    if WP: k('s_load_dwordx2 s[4:5], s[0:1], 0')
    if opt.get('it2'):
        WM = opt.get('wte', 0)
        k(f'''s_sub_u32 s43, s35, 21
s_and_b32 s44, s33, 1
s_mul_i32 s44, s44, 11
s_add_u32 s43, s43, s44
s_mul_i32 s44, s34, 22
s_add_u32 s44, s44, s43
s_add_u32 s44, s44, {64*WM}
s_add_u32 s45, s44, 176
s_lshr_b32 s46, s33, 1
s_lshl_b32 s46, s46, 18
v_lshlrev_b32 v10, 7, v2''')
        for r in (44, 45)[:2 if 64*(4-WM) > 176 else 1]:
            k(f'''s_and_b32 s47, s{r}, 31
s_lshl_b32 s47, s47, 13
s_add_u32 s47, s47, s46
s_bfe_u32 s48, s{r}, 0x10005
s_lshl_b32 s48, s48, 22
s_add_u32 s47, s47, s48
s_lshr_b32 s48, s{r}, 6
s_lshl_b32 s48, s48, 20
s_add_u32 s47, s47, s48
s_cmp_lt_u32 s{r}, 256
s_cselect_b32 s47, s47, {BIG}
buffer_load_ubyte v11, v10, s[72:75], s47 offen''')
            vi.issue('q')
            if opt['it2'] > 1: k('s_barrier')
    if opt.get('it'):
        k(f'''s_sub_u32 s43, s35, 21
s_and_b32 s44, s33, 1
s_mul_i32 s44, s44, 11
s_add_u32 s43, s43, s44
s_lshl_b32 s44, s43, 3
s_add_u32 s44, s44, s34
s_mul_i32 s45, s34, 22
s_add_u32 s45, s45, s43
s_add_u32 s45, s45, 176
s_lshr_b32 s46, s33, 1
s_lshl_b32 s46, s46, 18
v_lshlrev_b32 v10, 7, v2''')
        for r in (44, 45):
            k(f'''s_and_b32 s47, s{r}, 31
s_lshl_b32 s47, s47, 13
s_lshr_b32 s48, s{r}, 5
s_lshl_b32 s48, s48, 20
s_add_u32 s47, s47, s48
s_add_u32 s47, s47, s46
buffer_load_ubyte v11, v10, s[72:75], s47 offen''')
            vi.issue('q')
        if opt.get('bt'):
            k('''s_load_dwordx2 s[44:45], s[0:1], 48
s_mov_b32 s46, 4096
s_mov_b32 s47, 0x00020000
v_lshlrev_b32 v12, 6, v2
s_waitcnt lgkmcnt(0)
buffer_load_ubyte v11, v12, s[44:47], 0 offen''')
            vi.issue('q')
        if opt['it'] > 1: k('s_barrier')
    if opt.get('iw'):
        wp = [o for o in pre if o in wpre]; bp = [o for o in pre if o not in wpre]
        assert len(bp) == len(bops)
        IW = opt['iw']
        nb0 = opt.get('ib0', 0)
        Bulk(k, bp[:nb0])(99, vi, 124, 'q')
        Bulk(k, wp)(99, vi, 124, 'q')
        k('s_mov_b32 s46, s50\ns_mov_b32 s47, s51')
        Bulk(k, wpre[len(wp):len(wp) + IW])(99, vi, 124, 'q')
        k('s_mov_b32 s50, s46\ns_mov_b32 s51, s47')
        Bulk(k, bp[nb0:])(99, vi, 124, 'q')
    else:
        q = Bulk(k, pre)
        q(99, vi, 124, 'q')
    k(vi.wait('t2'))
    k('s_barrier')
    for i in range(10): k(f'ds_read_b128 {vr(64+4*i,4)}, v3 offset:{TB2+1024*i}')
    if opt.get('idl'): k(f's_sleep {opt["idl"]}')
    k(f'{JOIN}:')
    vm = Cnt('vmcnt', 63); vm.issue('q')
    if opt.get('g3s'):
        srd_from(k, 60, 40, 41, WS_A, A2_BYTES)
        k('''s_lshl_b32 s46, s2, 14
s_lshl_b32 s47, s34, 11
s_add_u32 s46, s46, s47
v_mov_b32 v28, -1
v_mov_b32 v29, -1
v_mov_b32 v30, -1
v_mov_b32 v31, -1
buffer_store_dwordx4 v[28:31], v3, s[60:63], s46 offen sc1
buffer_store_dwordx4 v[28:31], v3, s[60:63], s46 offen offset:1024 sc1''')
        vm.issue('f'); vm.issue('f')
    k(f"""s_mul_i32 s46, s3, {8*TP}
s_add_u32 s47, s46, {3*TP}
s_add_u32 s48, s46, {6*TP}
v_lshlrev_b32 v60, 2, v0
s_lshl_b32 s35, s34, 8
s_add_u32 s35, s35, s3
s_mul_i32 s35, s35, 1280
v_and_b32 v50, 15, v2
v_lshrrev_b32 v51, 4, v2
v_lshlrev_b32 v52, 6, v50
v_lshl_add_u32 v52, v51, 4, v52
v_add_u32 v53, 1024, v52
v_mov_b32 v54, 0x7fffffff
v_cmp_gt_u32 vcc, 4, v50
v_cndmask_b32 v53, v54, v53, vcc
s_lshl_b32 s42, s34, 12
s_min_u32 s42, s42, {27*1024}
s_add_u32 m0, s42, {BB}
s_add_u32 s42, s42, s58
s_waitcnt lgkmcnt(0)
s_barrier""")
    srd_from(k, 4, 4, 5, 0, X_BYTES)
    for i in range(0 if opt.get('nob') else 4):
        k(f'buffer_load_dwordx4 v3, s[64:67], s42 offen offset:{1024*i} lds'); vm.issue('b')
    k(f"""buffer_load_dwordx4 v[104:107], v52, s[4:7], s35 offen
buffer_load_dwordx4 v[108:111], v53, s[4:7], s35 offen""")
    vm.issue('x'); vm.issue('x')
    k(f"""s_mul_i32 s59, s34, {NP}
v_add_u32 v112, s59, v52
v_and_b32 v113, 3, v2
v_mul_u32_u24 v113, {NP}, v113
v_lshrrev_b32 v114, 2, v2
v_lshl_add_u32 v113, v114, 4, v113
s_cmp_ge_u32 s34, 5
s_cselect_b32 s59, {4*NP-5*256}, 0
s_lshl_b32 s60, s34, 8
s_add_u32 s59, s59, s60
v_add_u32 v113, s59, v113
s_mul_i32 s59, s3, 10240
s_lshl_b32 s60, s34, 10
s_add_u32 s59, s59, s60
s_add_u32 s49, s59, 8192
s_cmp_lt_u32 s34, 2
s_cselect_b32 s49, s49, {BIG}""")
    srd_from(k, 52, 80, 81, 0, X_BYTES) if opt.get('hout') else srd_from(k, 52, 40, 41, WS_H, X_BYTES)
    srd_from(k, 60, 40, 41, WS_HN, X_BYTES)
    k(f"""v_mul_u32_u24 v55, 3277, v0
v_lshrrev_b32 v55, 16, v55
v_mul_u32_u24 v56, 20, v55
v_sub_u32 v56, v0, v56
v_mul_u32_u24 v57, {RP}, v56
v_lshl_add_u32 v57, v55, 2, v57
v_mov_b32 v58, {11*RP}
v_cmp_ge_u32 vcc, 10, v56
v_cndmask_b32 v57, v58, v57, vcc
v_sub_u32 v59, 20, v56
v_mul_u32_u24 v59, {RP}, v59
v_sub_u32 v61, 31, v55
v_lshl_add_u32 v59, v61, 2, v59
v_cmp_le_u32 vcc, 10, v56
v_cndmask_b32 v59, v58, v59, vcc
v_sub_u32 v61, 32, v55
v_lshlrev_b32 v61, 2, v61
v_cmp_eq_u32 vcc, 0, v56
v_cndmask_b32 v59, v59, v61, vcc
v_cmp_eq_u32 vcc, 0, v0
v_cndmask_b32 v59, v59, v58, vcc
v_cmp_eq_u32 vcc, 320, v0
v_cndmask_b32 v59, v59, v58, vcc
v_mov_b32 v40, 0x3f3504f3
v_min_u32 v62, 10, v50
v_mul_u32_u24 v62, {RP}, v62
v_lshl_add_u32 v62, v51, 4, v62
s_mul_i32 s42, s34, {NP}
v_add_u32 v62, s42, v62
v_and_b32 v63, 1, v2
v_lshlrev_b32 v63, 31, v63
v_or_b32 v63, 1.0, v63
""")
    WT0 = opt.get('wt0', 0) if not opt.get('now') else 0
    assert not (WT0 and NWL)
    if WT0:
        k(vm.wait('q'))
        w_trans(k, 44, 45, list(range(WT0)))
    st(k, 4, 4)
    LP = k.label('lp'); LD = k.label('ld'); SK0 = k.label('sk0'); STUB = k.label('stub'); GO = k.label('go')
    q = Bulk(k, post)
    UNI = KW[2] > 0
    if UNI:
        assert not WT0
        k(f"""v_cmp_gt_u32 vcc, 321, v0
v_cndmask_b32 v57, v58, v57, vcc
v_cndmask_b32 v59, v58, v59, vcc
s_mov_b64 exec, vcc
s_mov_b32 s43, {SPIN}
s_cmp_lt_u32 s34, 6
s_cbranch_scc1 {LP}
s_waitcnt vmcnt(0)
{f"s_sleep {opt['c67']}" if opt.get('c67') else ""}
s_branch {LD}
{LP}:""")
    else:
      k(f"""v_cmp_gt_u32 vcc, 321, v0
s_mov_b64 s[44:45], vcc
s_cmp_lt_u32 s34, 6
s_cbranch_scc1 {GO}
s_waitcnt vmcnt(0)""")
      if opt.get('c67'): k(f's_sleep {opt["c67"]}')
      q.copy()(CP[0], None, 124)
      k(f"""s_mov_b64 exec, 0
s_branch {SK0 if WT0 else SKIP}
{GO}:
s_mov_b64 exec, s[44:45]
s_mov_b32 s43, {SPIN}
{LP}:""")
    for k2 in range(8):
        k(f'buffer_load_dword v{4+k2}, v60, s[8:11], s{46+k2//3} offen offset:{(k2%3)*TP+4*(k2&1)} sc1')
    k(f"""s_waitcnt vmcnt(0)
v_max3_u32 v12, v4, v5, v6
v_max3_u32 v13, v7, v8, v9
v_max3_u32 v12, v12, v10, v11
v_max_u32 v12, v12, v13
v_cmp_eq_u32 vcc, -1, v12
s_cbranch_vccz {LD}
{f"s_sleep {opt['usl']}" if opt.get('usl') else ""}
s_sub_u32 s43, s43, 1
s_cmp_lg_u32 s43, 0
s_cbranch_scc1 {LP}
{LD}:""")
    st(k, 4, 5); st(k, 0, 1)
    if UNI:
        k('s_mov_b64 exec, -1')
        if opt.get('ob3'): k('s_barrier')
        q(CP[0], None, 124)
        i0 = len(k.lines)
    elif CP[0] and post:
        k('s_mov_b64 exec, -1')
        q(CP[0], None, 124)
        k('s_mov_b64 exec, s[44:45]')
    for k2 in range(8):
        k(f'v_lshlrev_b32 v{20+2*k2}, 16, v{4+k2}\nv_and_b32 v{21+2*k2}, 0xffff0000, v{4+k2}')
    for k2 in range(8):
        if k2 == 0:
            k('v_mov_b32 v4, v20\nv_mov_b32 v5, v21')
        else:
            smul(k, 4 + 2 * k2, 20 + 2 * k2, 16 + 2 * k2, 42 + 2 * (k2 & 1), conj=True)
    T = fft8(k, 4, 20, True, 40)
    if WT0:
        k(f'{SK0}:\ns_waitcnt lgkmcnt(0)\ns_barrier\ns_cbranch_execz {SKIP}')
    for n in range(8):
        k(f"""v_cvt_pk_bf16_f32 v{4+2*n}, v{T[n]}, v{T[n]+1}
v_cvt_pk_bf16_f32 v{5+2*n}, v{T[n]}, -v{T[n]+1}
ds_write_b32 v57, v{4+2*n} offset:{n*NP}
ds_write_b32 v59, v{5+2*n} offset:{n*NP}""")
    k(f"""{SKIP}:
s_mov_b64 exec, -1""")
    q(CP[1], None, 124)
    k(f"""s_waitcnt lgkmcnt(0)
s_barrier
ds_read_b128 v[4:7], v62
ds_read_b128 v[8:11], v62 offset:64""")
    if opt.get('kw0'): i0 = len(k.lines)
    q(CP[2], None, 124)
    k('s_waitcnt lgkmcnt(1)')
    for u in range(2):
        if u == 1: k('s_waitcnt lgkmcnt(0)')
        for t in range(2):
            k(f'{MFMA} {vr(12+16*u+8*t,4)}, {vr(4+4*u,4)}, {vr(64+8*t,4)}, 0')
            k(f'{MFMA} {vr(16+16*u+8*t,4)}, {vr(4+4*u,4)}, {vr(68+8*t,4)}, 0')
    q(CP[3], None, 124)
    for i in range(0, 16, 2):
        k(f'v_pk_fma_f32 {vr(12+i,2)}, {vr(28+i,2)}, v[62:63], {vr(12+i,2)} op_sel:[0,1,0] op_sel_hi:[1,1,1]')
    for t in range(2):
        cmul_planar(k, 12 + 8 * t, 16 + 8 * t, 80 + 8 * t, 84 + 8 * t, 28, 32, 36)
        k(f"""v_cvt_pk_bf16_f32 v{4+4*t}, v28, v29
v_cvt_pk_bf16_f32 v{5+4*t}, v30, v31
v_cvt_pk_bf16_f32 v{6+4*t}, v32, v33
v_cvt_pk_bf16_f32 v{7+4*t}, v34, v35""")
    for v in range(2):
        for t in range(2):
            k(f'{MFMA} {vr(12+8*v+4*t,4)}, {vr(4+4*t,4)}, {vr(96+4*v,4)}, 0')
    q(CP[4], None, 124)
    if UNI and opt.get('kwe', 1) == 0: weave_in(k, i0, q, KW[2], None, 124)
    for i in range(8):
        k(f'v_lshlrev_b32 v{28+2*i}, 16, v{104+i}\nv_and_b32 v{29+2*i}, 0xffff0000, v{104+i}')
    for i in range(8):
        k(f'v_cvt_pk_bf16_f32 v{4+i}, v{12+2*i}, v{13+2*i}')
    for i in range(8):
        k(f'v_lshlrev_b32 v{12+2*i}, 16, v{4+i}\nv_and_b32 v{13+2*i}, 0xffff0000, v{4+i}')
    for i in range(8):
        k(f'v_pk_add_f32 {vr(12+2*i,2)}, {vr(12+2*i,2)}, {vr(28+2*i,2)}')
    for i in range(8):
        k(f'v_cvt_pk_bf16_f32 v{4+i}, v{12+2*i}, v{13+2*i}')
    k("""buffer_store_dwordx4 v[4:7], v52, s[52:55], s35 offen sc1
buffer_store_dwordx4 v[8:11], v53, s[52:55], s35 offen sc1""")
    for i in range(8):
        k(f'v_lshlrev_b32 v{12+2*i}, 16, v{4+i}\nv_and_b32 v{13+2*i}, 0xffff0000, v{4+i}')
    k("""v_pk_add_f32 v[28:29], v[12:13], v[14:15]
v_pk_mul_f32 v[30:31], v[12:13], v[12:13]
v_pk_add_f32 v[32:33], v[16:17], v[18:19]
v_pk_mul_f32 v[34:35], v[14:15], v[14:15]""")
    for i in range(2, 8):
        k(f'v_pk_fma_f32 {vr(30+4*(i&1),2)}, {vr(12+2*i,2)}, {vr(12+2*i,2)}, {vr(30+4*(i&1),2)}')
        if i >= 4:
            k(f'v_pk_add_f32 {vr(28+4*(i&1),2)}, {vr(28+4*(i&1),2)}, {vr(12+2*i,2)}')
    k("""v_pk_add_f32 v[28:29], v[28:29], v[32:33]
v_pk_add_f32 v[30:31], v[30:31], v[34:35]
v_add_f32 v28, v28, v29
v_add_f32 v30, v30, v31""")
    wave_reduce2(k, 28, 30, 36, 37)
    ln_stats(k, 36, 37, 640, 28, 30, 32)
    ln_apply(k, 12, 16, 28, 30, 40)
    if UNI and opt.get('kwe', 1) == 1: weave_in(k, i0, q, KW[2], None, 124)
    srd_from(k, 68, 40, 41, WS_FL, FL_BYTES)
    k(f"""ds_write_b128 v112, v[40:43]
s_mov_b32 exec_lo, 0x000f000f
s_mov_b32 exec_hi, 0x000f000f
ds_write_b128 v112, v[44:47] offset:1024
s_mov_b64 exec, -1
s_waitcnt lgkmcnt(0)
s_barrier
ds_read_b128 v[40:43], v113
ds_read_b128 v[44:47], v113 offset:{4*NP+3*256}
s_waitcnt lgkmcnt(1)
buffer_store_dwordx4 v[40:43], v3, s[60:63], s59 offen sc1
s_waitcnt lgkmcnt(0)
buffer_store_dwordx4 v[44:47], v3, s[60:63], s49 offen sc1
v_mov_b32 v114, v124""")
    st(k, 4, 6); st(k, 0, 2)


def poll2(k, loads, chk, sc, sl=0):
    LP = k.label('lp'); LD = k.label('ld')
    k(f'''s_mov_b32 s{sc}, {SPIN}
{LP}:
{loads}
s_waitcnt vmcnt(0)
{chk}
s_cbranch_vccz {LD}
{f"s_sleep {sl}" if sl else ""}
s_sub_u32 s{sc}, s{sc}, 1
s_cmp_lg_u32 s{sc}, 0
s_cbranch_scc1 {LP}
{LD}:''')


def flag_poll(k, sf, sp, n, sl=0, d0=0, part=3):
    if part & 1:
        k(f'''v_lshrrev_b32 v10, 4, v3
v_lshlrev_b32 v10, {FS}, v10
s_mov_b64 exec, 1
v_mov_b32 v8, 1
buffer_store_dword v8, v10, s[68:71], s{sf} offen sc1''')
    if part & 2:
        k(f's_mov_b64 exec, {hex((1 << n) - 1)}')
        if d0: k(f's_sleep {d0}')
        poll2(k, f'buffer_load_dword v9, v10, s[68:71], s{sp} offen sc1', 'v_cmp_eq_u32 vcc, 0, v9', 43, sl)
    k('s_mov_b64 exec, -1')


def ph_g1(k, opt, DONE, wb, fused=False):
    L = {(g, z): k.label(f'g{g}z{z}') for g in range(2) for z in range(2)}
    WQ = opt.get('WQ', [32, 0, 8, 15])
    k(f's_lshl_b32 s49, s3, {FS}')
    g1id(k, 3, 35)
    k(f'''s_lshr_b32 s35, s3, 4
s_bfe_u32 s36, s3, 0x30001
s_and_b32 s37, s3, 1
s_and_b32 s38, s34, 3
s_lshl_b32 s39, s35, 2
s_add_u32 s39, s39, s38
v_and_b32 v2, 63, v0
v_and_b32 v6, 15, v2
v_lshrrev_b32 v7, 4, v2''')
    if wb: k('v_mov_b32 v88, v114')
    srd_from(k, 8, 40, 41, WS_HN, X_BYTES)
    k(f'''v_lshlrev_b32 v9, 3, v2
v_lshrrev_b32 v8, 2, v6
v_and_b32 v10, 3, v6
v_mul_u32_u24 v1, 10240, v8
v_lshl_add_u32 v1, v7, 6, v1
v_lshl_add_u32 v1, v10, 4, v1
v_add_u32 v2, {4*10240}, v1
s_lshr_b32 s44, s39, 1
s_lshl_b32 s44, s44, 4
s_and_b32 s45, s38, 1
s_add_u32 s44, s44, s45
s_mul_i32 s44, s44, 5120
s_add_u32 s45, s44, 4096
v_add_u32 v4, 57344, v3
v_add_u32 v5, 114688, v3''')
    srd_from(k, 12, 40, 41, WS_Z1, A2_BYTES)
    srd_from(k, 16, 40, 41, WS_Z2, Z2N_BYTES)
    srd_from(k, 20, 40, 41, WS_PX, PX_BYTES)
    k(f'''s_and_b32 s47, s3, 15
s_lshl_b32 s47, s47, 4
s_add_u32 s47, s47, s35
s_lshl_b32 s47, s47, {FS}
s_add_u32 s47, s47, {FL2}
s_lshr_b32 s42, s34, 2
s_cmp_eq_u32 s42, s37
s_cselect_b32 s43, 1, 0
s_lshl_b32 s42, s42, 1
s_add_u32 s42, s42, s43
s_cmp_eq_u32 s42, 1
s_cbranch_scc1 {L[0,1]}
s_cmp_eq_u32 s42, 2
s_cbranch_scc1 {L[1,0]}
s_cmp_eq_u32 s42, 3
s_cbranch_scc1 {L[1,1]}''')
    PD = opt.get('PD', 5); NA = PD + 1
    assert 40 + 8 * NA <= 88
    AR = lambda kk, u: vr(40 + 8 * (kk % NA) + 4 * u, 4)
    ACC = lambda u, n: 96 + ((n & 3) * 2 + u) * 4

    def aload(kk, u, v):
        if kk >= 20: return
        k(f'buffer_load_dwordx4 {AR(kk,u)}, v{1+u}, s[8:11], s{44+kk//16} offen offset:{256*(kk%16)}'); v.issue(f'a{kk}')
    NB = 8; LA = opt.get('LA', 6)
    SC = opt.get('gsc', 1)

    def tail(z2, wq, rest):
        if not fused:
            k(f's_branch {DONE}'); return
        map_g2(k)
        k('s_load_dwordx2 s[24:25], s[0:1], 48')
        if not z2 and not wq.ops and rest and opt.get('wte', 1) and not W128:
            w_trans(k, 12, 13, rest); rest = []
        k('s_waitcnt vmcnt(0)')
        st(k, 0, 5)
        if z2: k('s_setprio 0')
        if not z2 and not wq.ops and rest and not W128:
            w_trans(k, 12, 13, rest); rest = []
        if W128: assert not wq.ops and not (z2 and rest)
        if not z2: wq(99, None, 88)
        k('s_barrier')
        if z2: wq(99, None, 88)
        NP2 = k.label('np2'); NP3 = k.label('np3')
        if not z2:
            k(f's_cmp_lg_u32 s38, 0\ns_cbranch_scc1 {NP2}')
            flag_poll(k, 47, 44, 32, part=1)
            k(f'{NP2}:')
        if rest:
            k('s_waitcnt vmcnt(0)')
            w_trans(k, 12, 13, rest)
        if not z2:
            k(f'''s_cmp_lg_u32 s38, 0
s_cbranch_scc1 {NP3}
s_lshl_b32 s44, s36, {5+FS}
s_add_u32 s44, s44, {FL2}''')
            flag_poll(k, 47, 44, 32, opt.get('g2sl', 0), opt.get('g2d', 0) if not rest else 0, part=2)
            k(f'{NP3}:')
        k('s_waitcnt lgkmcnt(0)\ns_barrier')
        k(f's_branch {DONE}')

    def path(grp, z2):
        vm = Cnt('vmcnt', 63)
        wq = wb.copy() if wb else None
        tiles = [0, 1, 2, 3] if grp == 0 else [4, 5, 6]
        NT = len(tiles)
        order = [(kk, n) for kk in range(20) for n in tiles]
        k('s_waitcnt vmcnt(0)\ns_barrier')
        st(k, 1, 3); st(k, 4, 7)
        rest = [] if opt.get('now') else list(range(opt.get('wt0', 0), 4))
        n1 = opt.get('wt1', [0, 0])[z2] if not wq.ops else 0
        if W128: n1 = min(opt['wt1'][z2], (32 - len(wq.ops)) // 8)
        now, rest = rest[:n1], rest[n1:]
        if z2:
            NPL = k.label('npl'); NPM = k.label('npm')
            k(f'''s_setprio {opt.get('zprio', 2)}
s_lshl_b32 s42, s35, {4+FS}
s_mov_b32 s46, s49
s_cmp_lg_u32 s38, 0
s_cbranch_scc1 {NPM}''')
            flag_poll(k, 46, 42, 16, part=1)
            k(f'{NPM}:')
            w_trans(k, 12, 13, now, 48)
            k(f's_cmp_lg_u32 s38, 0\ns_cbranch_scc1 {NPL}')
            flag_poll(k, 46, 42, 16, opt.get('g1sl', 0), opt.get('g1d', 0) if not now else 0, part=2)
            k(f'{NPL}:')
        else:
            w_trans(k, 12, 13, now, 48)
            if wq: wq(WQ[0], vm, 88)
        k('s_waitcnt lgkmcnt(0)\ns_barrier')
        st(k, 4, 8)
        st(k, 1, 4); st(k, 0, 3)
        if not z2 and opt.get('zd'): k(f's_sleep {opt["zd"]}')
        for kk in range(PD):
            for u in range(2): aload(kk, u, vm)

        def rdB(f):
            if f >= len(order): return
            kk, n = order[f]
            a = BB + kk * 7168 + n * 1024
            k(f'ds_read_b128 {vr(8+4*(f%NB),4)}, v{3+a//57344} offset:{a%57344}')
        for f in range(LA): rdB(f)
        for f, (kk, n) in enumerate(order):
            x = vm.wait(f'a{kk}')
            if x: k(x)
            if n == tiles[0] and kk in (0, 10): st(k, 1, 5 + kk // 10)
            rem = min(LA - 1, len(order) - 1 - f)
            k(f's_waitcnt lgkmcnt({rem})')
            b = vr(8 + 4 * (f % NB), 4)
            for u in range(2):
                acc = vr(ACC(u, n), 4)
                c = '0' if kk == 0 else acc
                if z2: k(f'{MFMA} {acc}, {AR(kk,u)}, {b}, {c}')
                else: k(f'{MFMA} {acc}, {b}, {AR(kk,u)}, {c}')
            rdB(f + LA)
            i = f % NT
            if i < 2: aload(kk + PD, i, vm)
            if wq and kk >= WQ[3]:
                c = WQ[1 + z2]
                wq((c * (i + 1)) // NT - (c * i) // NT, vm, 88)
        st(k, 1, 7); st(k, 0, 4); st(k, 4, 9)
        k(f'v_mov_b32 v4, {fbits(C1)}\nv_mov_b32 v5, {fbits(C0)}')
        if not z2:
            k(f'''s_lshr_b32 s42, s39, 1
s_lshl_b32 s42, s42, 3
s_add_u32 s42, s42, s36
s_lshl_b32 s42, s42, 1
s_and_b32 s43, s39, 1
s_add_u32 s42, s42, s43
s_lshl_b32 s42, s42, 13
s_add_u32 s43, s42, 4096
v_lshrrev_b32 v2, 1, v3''')
            units = [(u, p) for p in ((0, 1) if grp == 0 else (2,)) for u in range(2)]
            for i, (u, p) in enumerate(units):
                o = 12 + 4 * (i & 1)
                for h in range(2):
                    a = ACC(u, 2 * p + h)
                    k(f'v_cvt_pk_bf16_f32 v{8+2*h}, v{a}, v{a+1}\nv_cvt_pk_bf16_f32 v{9+2*h}, v{a+2}, v{a+3}')
                gelu_pk(k, 8, 8, 20, 28, o, 4, sc=(SC > 1))
                k(f'buffer_store_dwordx4 {vr(o,4)}, v3, s[12:15], s{42+u} offen offset:{1024*p} sc1')
            if grp == 1:
                for u in range(2):
                    a = ACC(u, 6)
                    k(f'v_cvt_pk_bf16_f32 v{8+2*u}, v{a}, v{a+1}\nv_cvt_pk_bf16_f32 v{9+2*u}, v{a+2}, v{a+3}')
                gelu_pk(k, 8, 8, 20, 28, 12, 4, sc=(SC > 1))
                for u in range(2):
                    k(f'buffer_store_dwordx2 {vr(12+2*u,2)}, v2, s[12:15], s{42+u} offen offset:3072 sc1')
            st(k, 1, 8)
            tail(False, wq, rest)
            return
        S = 72; Q = 80
        SK = k.label('sk')
        for i, n in enumerate(tiles):
            if n == 5: k(f's_cmp_eq_u32 s36, 7\ns_cbranch_scc1 {SK}')
            for r in range(4): k(f'v_cvt_pk_bf16_f32 v{8+r}, v{ACC(0,n)+r}, v{ACC(1,n)+r}')
            k(f'''v_permlane32_swap_b32 v8, v10
v_permlane32_swap_b32 v9, v11
v_permlane16_swap_b32 v8, v9
v_permlane16_swap_b32 v10, v11''')
            gelu_pk(k, 8, 8, 20, 28, 12, 4, tr=True, sc=(SC > 0))
            d = 40 + 8 * i
            for r in range(4):
                k(f'v_lshlrev_b32 v{d+2*r}, 16, v{12+r}\nv_and_b32 v{d+1+2*r}, 0xffff0000, v{12+r}')
            for e in range(8):
                if i == 0: k(f'v_mul_f32 v{Q+e}, v{d+e}, v{d+e}\nv_mov_b32 v{S+e}, v{d+e}')
                else: k(f'v_add_f32 v{S+e}, v{S+e}, v{d+e}\nv_fmac_f32 v{Q+e}, v{d+e}, v{d+e}')
        k(f'{SK}:')
        V = [0] * 16
        for e in range(8):
            V[2 * e] = S + e; V[2 * e + 1] = Q + e
        for i in range(8):
            k(f'v_add_f32_dpp v{V[i]}, v{V[i]}, v{V[i]} row_ror:8 row_mask:0xf bank_mask:0x3')
        for i in range(8):
            k(f'v_add_f32_dpp v{V[i]}, v{V[i+8]}, v{V[i+8]} row_ror:8 row_mask:0xf bank_mask:0xc')
        for i in range(4):
            k(f'v_add_f32_dpp v{V[i]}, v{V[i]}, v{V[i]} row_half_mirror row_mask:0xf bank_mask:0x5')
        for i in range(4):
            k(f'v_add_f32_dpp v{V[i]}, v{V[i+4]}, v{V[i+4]} row_half_mirror row_mask:0xf bank_mask:0xa')
        for m in ('quad_perm:[1,0,3,2]', 'quad_perm:[2,3,0,1]'):
            for i in range(4):
                k(f'v_add_f32_dpp v{V[i]}, v{V[i]}, v{V[i]} {m} row_mask:0xf bank_mask:0xf')
        k(f'''s_mov_b32 vcc_lo, 0xaaaaaaaa
s_mov_b32 vcc_hi, 0xaaaaaaaa
v_cndmask_b32 v8, v{V[0]}, v{V[1]}, vcc
v_cndmask_b32 v9, v{V[2]}, v{V[3]}, vcc
s_mov_b32 vcc_lo, 0xcccccccc
s_mov_b32 vcc_hi, 0xcccccccc
v_cndmask_b32 v8, v8, v9, vcc
s_lshl_b32 s42, s39, 12
s_and_b32 s43, s3, 15
s_lshl_b32 s43, s43, 8
s_add_u32 s43, s43, s42
v_lshrrev_b32 v2, 2, v3
buffer_store_dword v8, v2, s[20:23], s43 offen sc1
v_lshrrev_b32 v9, 2, v6
v_and_b32 v10, 3, v6
v_lshlrev_b32 v9, 8, v9
v_lshl_add_u32 v9, v7, 6, v9
v_lshl_add_u32 v1, v10, 4, v9''')
        st(k, 1, 8)
        LP = k.label('lp'); LD = k.label('ld')
        k(f'''s_lshl_b32 s44, s36, 3
s_lshr_b32 s45, s39, 4
s_add_u32 s44, s44, s45
s_and_b32 s45, s39, 1
s_lshl_b32 s45, s45, 2
s_add_u32 s44, s44, s45
s_mul_i32 s44, s44, 56
s_bfe_u32 s45, s39, 0x30001
s_add_u32 s44, s44, s45
s_add_u32 s44, s44, {8*tiles[0]}
s_lshl_b32 s44, s44, 10
v_mov_b32 v4, {fbits(1.0/864)}
s_mov_b32 s43, {SPIN}''')
        if rest and wq and not wq.ops and opt.get('wtp', 1):
            k('s_waitcnt vmcnt(1)')
            w_trans(k, 8, 9, rest, 46); rest = []
        elif opt.get('pxd'): k(f"s_sleep {opt['pxd']}")
        k(f'{LP}:')
        for i in range(4): k(f'buffer_load_dwordx4 {vr(8+4*i,4)}, v1, s[20:23], s42 offen offset:{1024*i} sc1')
        k('s_waitcnt vmcnt(2)')
        k('v_max3_u32 v24, v8, v9, v10\nv_max3_u32 v25, v11, v12, v13\nv_max3_u32 v24, v24, v14, v15')
        for r in range(4): k(f'v_add_f32 v{28+r}, v{8+r}, v{12+r}')
        k('s_waitcnt vmcnt(0)')
        k('''v_max3_u32 v25, v25, v16, v17
v_max3_u32 v24, v24, v18, v19
v_max3_u32 v25, v25, v20, v21
v_max3_u32 v24, v24, v22, v23
v_max_u32 v24, v24, v25
v_cmp_eq_u32 vcc, -1, v24''')
        for r in range(4): k(f'v_add_f32 v{32+r}, v{16+r}, v{20+r}')
        k(f'''s_cbranch_vccz {LD}
{f"s_sleep {opt['pxs']}" if opt.get('pxs') else ""}
s_sub_u32 s43, s43, 1
s_cmp_lg_u32 s43, 0
s_cbranch_scc1 {LP}
{LD}:''')
        st(k, 1, 9); st(k, 0, 9)
        for r in range(4): k(f'v_add_f32 v{28+r}, v{28+r}, v{32+r}')
        for m in ('row_ror:4', 'row_ror:8'):
            for r in range(4): k(f'v_add_f32_dpp v{28+r}, v{28+r}, v{28+r} {m} row_mask:0xf bank_mask:0xf')
        for r in range(4): k(f'v_mul_f32 v{28+r}, v{28+r}, v4')
        k(f'''v_fma_f32 v29, -v28, v28, v29
v_fma_f32 v31, -v30, v30, v31
v_max_f32 v29, 0, v29
v_max_f32 v31, 0, v31
v_cvt_pk_bf16_f32 v12, v28, v30
v_cvt_pk_bf16_f32 v13, v29, v31
v_lshlrev_b32 v8, 16, v12
v_and_b32 v9, 0xffff0000, v12
v_lshlrev_b32 v10, 16, v13
v_and_b32 v11, 0xffff0000, v13
v_add_f32 v10, 0x3727c5ac, v10
v_add_f32 v11, 0x3727c5ac, v11
v_cvt_pk_bf16_f32 v13, v10, v11
v_lshlrev_b32 v10, 16, v13
v_and_b32 v11, 0xffff0000, v13
v_sqrt_f32 v10, v10
v_sqrt_f32 v11, v11''')
        for e in range(8):
            k(f'v_mov_b32_dpp v{16+e}, v{8+(e&1)} quad_perm:[{e>>1},{e>>1},{e>>1},{e>>1}] row_mask:0xf bank_mask:0xf')
        k(f'''v_cvt_pk_bf16_f32 v13, v10, v11
v_lshlrev_b32 v10, 16, v13
v_and_b32 v11, 0xffff0000, v13
v_rcp_f32 v10, v10
v_rcp_f32 v11, v11''')
        for i in range(NT):
            d = 40 + 8 * i
            for e in range(0, 8, 2):
                k(f'v_pk_add_f32 {vr(d+e,2)}, {vr(d+e,2)}, {vr(16+e,2)} neg_lo:[0,1] neg_hi:[0,1]')
            if i == 0:
                for e in range(8):
                    k(f'v_mov_b32_dpp v{24+e}, v{10+(e&1)} quad_perm:[{e>>1},{e>>1},{e>>1},{e>>1}] row_mask:0xf bank_mask:0xf')
            o = 72 + 4 * i
            for r in range(4): k(f'v_cvt_pk_bf16_f32 v{o+r}, v{d+2*r}, v{d+2*r+1}')
            for r in range(4): k(f'v_lshlrev_b32 v{d+2*r}, 16, v{o+r}\nv_and_b32 v{d+1+2*r}, 0xffff0000, v{o+r}')
            for e in range(0, 8, 2):
                k(f'v_pk_mul_f32 {vr(d+e,2)}, {vr(d+e,2)}, {vr(24+e,2)}')
            for r in range(4): k(f'v_cvt_pk_bf16_f32 v{o+r}, v{d+2*r}, v{d+2*r+1}')
            k(f'buffer_store_dwordx4 {vr(o,4)}, v3, s[16:19], s44 offen sc1')
            if i < NT - 1: k('s_add_u32 s44, s44, 8192')
        tail(True, wq, rest)
    for g in range(2):
        for z in range(2):
            k(f'{L[g,z]}:')
            path(g, z)


def gen_ka(opt):
    k = Kern('ka_kernel', 256, 512, 163840, nvgpr=128, nagpr=128)
    END = k.label('end')
    k(f's_cmp_ge_u32 s2, 256\ns_cbranch_scc1 {END}')
    k.stamp(True)
    ph_k2a(k, opt, None)
    ph_g1(k, opt, END, None)
    k.finish(END)
    return k


def gen_p(opt, g3=True):
    k = Kern('kp_kernel', 256, 512, 163840, nvgpr=128, nagpr=128)
    END = k.label('end'); G2 = k.label('g2'); G3 = k.label('g3')
    k(f's_cmp_ge_u32 s2, 256\ns_cbranch_scc1 {END}')
    k.stamp(True)
    wb = Bulk(k, [] if opt.get('now') else g2_wops())
    ph_k2a(k, opt, wb)
    ph_g1(k, opt, G2, wb, True)
    k(f'{G2}:')
    st(k, 0, 6)
    vm = Cnt('vmcnt', 63); vm.issue('w')
    if g3:
        g3_wo_setup(k)
        ph_g2(k, opt, G3, vm, True, [] if opt.get('noo') else g3_wo_ops())
        k(f'{G3}:')
        ph_g3(k, opt, True)
    else:
        ph_g2(k, opt, END, vm, False)
    k.finish(END)
    return k


def gen_q(opt):
    k = Kern('k1_kernel', 256, 512, 163840, nvgpr=128, nagpr=128)
    END = k.label('end'); G2 = k.label('g2'); G3 = k.label('g3')
    k(f's_cmp_ge_u32 s2, 256\ns_cbranch_scc1 {END}')
    k.stamp(True)
    wb = Bulk(k, [] if opt.get('now') else g2_wops())
    ph_k12(k, opt, wb)
    ph_g1(k, opt, G2, wb, True)
    k(f'{G2}:')
    st(k, 0, 6)
    vm = Cnt('vmcnt', 63); vm.issue('w')
    g3_wo_setup(k)
    if opt.get('g3s'):
        k('s_lshl_b32 s61, s35, 3\ns_add_u32 s61, s61, s34\ns_lshl_b32 s61, s61, 14\ns_add_u32 s62, s61, 8192')
        na = ph_g2(k, opt, G3, vm, True, g3_wo_ops(), g3s_early())
        k(f'{G3}:')
        ph_g3s(k, opt, na)
        k.finish(END)
        return k
    ph_g2(k, opt, G3, vm, True, [] if opt.get('noo') else g3_wo_ops())
    k(f'{G3}:')
    ph_g3(k, opt, True)
    k.finish(END)
    return k


def build(opt):
    lv = opt.get('lv', 1)
    if lv == 4: return [gen_fft.gen_k0(), gen_q(opt)]
    ks = [gen_fft.gen_k0(), gen_fft.gen_k1c()]
    if lv == 1: ks += [gen_ka(opt), gen_g2(opt), gen_g3(opt)]
    if lv == 2: ks += [gen_p(opt, False), gen_g3(opt)]
    if lv == 3: ks += [gen_p(opt)]
    return ks


def g3_wo_setup(k):
    srd_from(k, 28, 40, 41, WS_WO, WO8_BYTES)
    k(f'''s_lshl_b32 s60, s36, 3
s_add_u32 s60, s60, s34
s_mul_i32 s60, s60, {WOB}''')


def g3_wo_ops():
    ops = []
    for i in range(15):
        s = f'buffer_load_dwordx4 {ar(4*i,4)}, v3, s[28:31], s60 offen offset:{1024*(i%4)}'
        if i % 4 == 3: s += '\ns_add_u32 s60, s60, 4096'
        if i == 14: s += '\ns_add_u32 s60, s60, 3072'
        ops.append(s)
    for n in range(5):
        ops.append(f'buffer_load_dwordx2 {ar(60+2*n,2)}, v2, s[28:31], s60 offen offset:{512*n}')
    return ops


def ph_g3(k, opt, fused):
    vm = Cnt('vmcnt', 63); lg = Cnt('lgkmcnt', 15)
    srd_from(k, 8, 40, 41, WS_Z1 if opt.get('ain') else WS_A, A2_BYTES)
    srd_from(k, 12, 80, 81, 0, X_BYTES) if opt.get('hout') else srd_from(k, 12, 40, 41, WS_H, X_BYTES)
    k(f'''s_lshl_b32 s44, s35, 3
s_add_u32 s44, s44, s34
s_lshl_b32 s44, s44, 14
v_lshrrev_b32 v1, 4, v3
v_and_b32 v6, 15, v1
v_lshrrev_b32 v7, 4, v1''')
    k(f'''s_lshr_b32 s45, s34, 1
s_mul_i32 s45, s45, 40960
s_and_b32 s46, s34, 1
s_lshl_b32 s46, s46, 3''')
    for p in range(3):
        k(f'''v_add_u32 v8, {64*p}, v1
v_mul_u32_u24 v9, 3277, v8
v_lshrrev_b32 v9, 16, v9
v_mul_u32_u24 v10, 20, v9
v_sub_u32 v10, v8, v10
v_add_u32 v9, s46, v9
v_add_u32 v11, v9, v10
v_and_b32 v11, 15, v11
v_lshlrev_b32 v11, 4, v11
v_lshrrev_b32 v12, 2, v10
v_lshl_add_u32 v11, v12, 13, v11
v_and_b32 v12, 3, v10
v_lshl_add_u32 v11, v12, 8, v11
v_add_u32 v{116+p}, s45, v11
v_lshrrev_b32 v11, 2, v9
v_and_b32 v12, 3, v9
v_lshl_add_u32 v11, v12, 8, v11
v_mul_u32_u24 v11, 1280, v11
v_lshl_add_u32 v{120+p}, v10, 3, v11''')
    k(f'''v_mov_b32 v8, 0x7fffffff
v_cmp_gt_u32 vcc, 32, v1
v_cndmask_b32 v122, v8, v122, vcc
s_lshl_b32 s47, s35, 3
s_and_b32 s43, s34, 2
s_lshl_b32 s43, s43, 1
s_add_u32 s47, s47, s43
s_and_b32 s43, s34, 4
s_lshl_b32 s43, s43, 8
s_add_u32 s47, s47, s43
s_mul_i32 s47, s47, 1280
s_mul_i32 s43, s36, 160
s_add_u32 s47, s47, s43''')
    for p in range(3):
        k(f'buffer_load_dwordx2 {vr(104+2*p,2)}, v{120+p}, s[12:15], s47 offen'); vm.issue('h')
    k(f'''s_lshl_b32 s43, s34, 10
v_add_u32 v8, v6, v7
v_lshlrev_b32 v9, 8, v7
v_add_u32 v9, s43, v9''')
    for n in range(5):
        k(f'''v_add_u32 v10, {4*n}, v8
v_and_b32 v10, 15, v10
v_lshl_add_u32 v10, v10, 4, v9
v_add_u32 v{88+n}, {8192*n}, v10
v_add_u32 v{93+n}, {8192*n+81920}, v10''')
    if fused:
        NP3 = k.label('np3')
        k(f'''s_waitcnt vmcnt(0)
s_barrier
s_cmp_lg_u32 s34, 0
s_cbranch_scc1 {NP3}
s_lshl_b32 s42, s35, {3+FS}
s_add_u32 s42, s42, {FL3}
s_lshl_b32 s46, s36, {FS}
s_add_u32 s46, s46, s42''')
        flag_poll(k, 46, 42, 8, opt.get('g3sl', 0), opt.get('g3d', 0))
        k(f'{NP3}:\ns_barrier')
        vm.done = 3
    st(k, 3, 1); st(k, 0, 8)
    k(f's_cmp_eq_u32 s34, 7\ns_cselect_b32 s48, {BIG}, 0')
    AF = lambda tt, p: 72 + 14 * tt + 4 * p
    for tt in range(4):
        for p in range(3):
            k(f'buffer_load_dwordx4 {ar(AF(tt,p),4)}, v3, s[8:11], s44 offen offset:{1024*p}'); vm.issue(f'a{tt}{p}')
        k(f's_add_u32 s49, s44, s48\nbuffer_load_dwordx2 {ar(AF(tt,3),2)}, v2, s[8:11], s49 offen offset:3072'); vm.issue(f'a{tt}3')
        if tt < 3: k('s_add_u32 s44, s44, 4096')
    srd_from(k, 16, 80, 81, 0, X_BYTES)
    ACC = lambda tt, n: 8 + 20 * (tt & 1) + 4 * n
    pend = []
    for tt in range(4):
        for p in range(4):
            x = vm.wait(f'a{tt}{p}')
            if x: k(x)
            if tt == 0 and p == 0: st(k, 3, 2)
            for n in range(5):
                acc = vr(ACC(tt, n), 4)
                if p < 3: k(f'{MFMA} {acc}, {ar(20*p+4*n,4)}, {ar(AF(tt,p),4)}, {"0" if p == 0 else acc}')
                else: k(f'{MF16} {acc}, {ar(60+2*n,2)}, {ar(AF(tt,3),2)}, {acc}')
                if pend and (5 * p + n) % 3 == 2: k(pend.pop(0))
        for n in range(5):
            pend.append(f'ds_write_b128 v{88+5*(tt>>1)+n}, {vr(ACC(tt,n),4)} offset:{40960*(tt&1)}')
    for o in pend: k(o)
    st(k, 3, 3)
    k('s_waitcnt lgkmcnt(0)\ns_barrier')
    st(k, 3, 4)
    for p in range(3):
        for s in range(8):
            k(f'ds_read_b128 {vr(8+32*p+4*s,4)}, v{116+p} offset:{1024*s}'); lg.issue(f'r{p}{s}')
        if p == 0:
            for q in range(3):
                k(f'v_lshlrev_b32 v{110+2*q}, 16, v{104+2*q}\nv_and_b32 v{104+2*q}, 0xffff0000, v{104+2*q}')
    for p in range(3):
        a = 8 + 32 * p
        for s in (0, 2, 4, 6):
            x = lg.wait(f'r{p}{s+1}')
            if x: k(x)
            for h in range(2): k(f'v_pk_add_f32 {vr(a+4*s+2*h,2)}, {vr(a+4*s+2*h,2)}, {vr(a+4*s+4+2*h,2)}')
            if s in (2, 6):
                for h in range(2): k(f'v_pk_add_f32 {vr(a+4*s-8+2*h,2)}, {vr(a+4*s-8+2*h,2)}, {vr(a+4*s+2*h,2)}')
        for h in range(2): k(f'v_pk_add_f32 {vr(a+2*h,2)}, {vr(a+2*h,2)}, {vr(a+16+2*h,2)}')
        k(f'''v_cvt_pk_bf16_f32 v{a+4}, v{a}, v{a+1}
v_cvt_pk_bf16_f32 v{a+5}, v{a+2}, v{a+3}
v_lshlrev_b32 v{a+8}, 16, v{105+2*p}
v_and_b32 v{a+9}, 0xffff0000, v{105+2*p}
v_lshlrev_b32 v{a}, 16, v{a+4}
v_and_b32 v{a+1}, 0xffff0000, v{a+4}
v_lshlrev_b32 v{a+2}, 16, v{a+5}
v_and_b32 v{a+3}, 0xffff0000, v{a+5}
v_add_f32 v{a}, v{a}, v{110+2*p}
v_add_f32 v{a+1}, v{a+1}, v{104+2*p}
v_pk_add_f32 {vr(a+2,2)}, {vr(a+2,2)}, {vr(a+8,2)}
v_cvt_pk_bf16_f32 v{a+4}, v{a}, v{a+1}
v_cvt_pk_bf16_f32 v{a+5}, v{a+2}, v{a+3}
buffer_store_dwordx2 {vr(a+4,2)}, v{120+p}, s[16:19], s47 offen''')


def g3s_ld(tt, p, fl=''):
    if p < 2: return f'buffer_load_dwordx4 {vr(56+8*tt+4*p,4)}, v3, s[16:19], s{61+(tt>>1)} offen offset:{1024*p}{fl}' if not (tt & 1) else \
        f'buffer_load_dwordx4 {vr(56+8*tt+4*p,4)}, v88, s[16:19], s{61+(tt>>1)} offen offset:{1024*p}{fl}'
    if p == 2: return f'buffer_load_dwordx4 {vr(8+4*tt,4)}, v{88 if tt & 1 else 3}, s[16:19], s{61+(tt>>1)} offen offset:2048{fl}'
    return f'buffer_load_dwordx2 {vr(24+2*tt,2)}, v{89 if tt & 1 else 2}, s[16:19], s{63+(tt>>1)} offen offset:3072{fl}'


def g3s_early():
    ops = [g3s_ld(tt, p) for p in range(2) for tt in range(4)]
    ops[0] = 'v_add_u32 v88, 4096, v3\nv_add_u32 v89, 4096, v2\n' + ops[0]
    return ops


def chk_max(k, regs, t):
    regs = list(regs)
    acc = [None, None]; i = 0
    while regs:
        j = i & 1; i += 1
        if acc[j] is None:
            if len(regs) >= 3: k(f'v_max3_u32 v{t+j}, v{regs[0]}, v{regs[1]}, v{regs[2]}'); regs = regs[3:]
            elif len(regs) == 2: k(f'v_max_u32 v{t+j}, v{regs[0]}, v{regs[1]}'); regs = []
            else: k(f'v_mov_b32 v{t+j}, v{regs[0]}'); regs = []
            acc[j] = 1
        elif len(regs) >= 2: k(f'v_max3_u32 v{t+j}, v{t+j}, v{regs[0]}, v{regs[1]}'); regs = regs[2:]
        else: k(f'v_max_u32 v{t+j}, v{t+j}, v{regs[0]}'); regs = []
    if acc[1]: k(f'v_max_u32 v{t}, v{t}, v{t+1}')
    k(f'v_cmp_eq_u32 vcc, -1, v{t}')


def ph_g3s(k, opt, na):
    vm = Cnt('vmcnt', 63); lg = Cnt('lgkmcnt', 15)
    if opt.get('g3e', 0) == 3:
        for o in g3s_early(): k(o)
        na = 0
    vm.issue('e')
    for _ in range(na): vm.issue('s')
    srd_from(k, 12, 80, 81, 0, X_BYTES) if opt.get('hout') else srd_from(k, 12, 40, 41, WS_H, X_BYTES)
    LW = 90
    k(f'''s_cmp_eq_u32 s34, 7
s_cselect_b32 s63, {BIG}, s61
s_cselect_b32 s64, {BIG}, s62
v_lshrrev_b32 v1, 4, v3
v_and_b32 v6, 15, v1
v_lshrrev_b32 v7, 4, v1
s_lshr_b32 s45, s34, 1
s_mul_i32 s45, s45, 40960
s_and_b32 s46, s34, 1
s_lshl_b32 s46, s46, 3''')
    I2 = opt.get('g3i', [0, 20])
    if I2[0] < 0:
        for tt in range(4): k(g3s_ld(tt, 2, ' sc1')); vm.issue('p2')
    for p in range(3):
        k(f'''v_add_u32 v100, {64*p}, v1
v_mul_u32_u24 v101, 3277, v100
v_lshrrev_b32 v101, 16, v101
v_mul_u32_u24 v102, 20, v101
v_sub_u32 v102, v100, v102
v_add_u32 v101, s46, v101
v_add_u32 v103, v101, v102
v_and_b32 v103, 15, v103
v_lshlrev_b32 v103, 4, v103
v_lshrrev_b32 v110, 2, v102
v_lshl_add_u32 v103, v110, 13, v103
v_and_b32 v110, 3, v102
v_lshl_add_u32 v103, v110, 8, v103
v_add_u32 v{116+p}, s45, v103
v_lshrrev_b32 v103, 2, v101
v_and_b32 v110, 3, v101
v_lshl_add_u32 v103, v110, 8, v103
v_mul_u32_u24 v103, 1280, v103
v_lshl_add_u32 v{120+p}, v102, 3, v103''')
    k(f'''v_mov_b32 v100, 0x7fffffff
v_cmp_gt_u32 vcc, 32, v1
v_cndmask_b32 v122, v100, v122, vcc
s_lshl_b32 s47, s35, 3
s_and_b32 s43, s34, 2
s_lshl_b32 s43, s43, 1
s_add_u32 s47, s47, s43
s_and_b32 s43, s34, 4
s_lshl_b32 s43, s43, 8
s_add_u32 s47, s47, s43
s_mul_i32 s47, s47, 1280
s_mul_i32 s43, s36, 160
s_add_u32 s47, s47, s43''')
    for p in range(3):
        k(f'buffer_load_dwordx2 {vr(104+2*p,2)}, v{120+p}, s[12:15], s47 offen'); vm.issue('h')
    k(f'''s_lshl_b32 s43, s34, 10
v_add_u32 v100, v6, v7
v_lshlrev_b32 v101, 8, v7
v_add_u32 v101, s43, v101''')
    for n in range(5):
        k(f'''v_add_u32 v102, {4*n}, v100
v_and_b32 v102, 15, v102
v_lshl_add_u32 v102, v102, 4, v101
v_add_u32 v{LW+n}, {8192*n}, v102
v_add_u32 v{LW+5+n}, {8192*n+81920}, v102''')
    srd_from(k, 8, 80, 81, 0, X_BYTES)

    def ACC(tt, n):
        i = 5 * tt + n
        return ar(72 + 4 * i, 4) if i < 14 else vr(32 + 4 * (i - 14), 4)

    def gate(tag, regs, lds, sl):
        LP = k.label('lp'); LD = k.label('ld')
        k(vm.wait(tag) or '')
        chk_max(k, regs, 100)
        k(f's_cbranch_vccz {LD}\ns_mov_b32 s43, {SPIN}\n{LP}:')
        if sl: k(f's_sleep {sl}')
        for o in lds: k(o)
        k('s_waitcnt vmcnt(0)')
        chk_max(k, regs, 100)
        k(f's_cbranch_vccz {LD}\ns_sub_u32 s43, s43, 1\ns_cmp_lg_u32 s43, 0\ns_cbranch_scc1 {LP}\n{LD}:')
    st(k, 3, 1); st(k, 0, 8)
    gate('e', range(56, 88), [g3s_ld(tt, p, ' sc1') for p in range(2) for tt in range(4)], 0)
    st(k, 3, 2)
    i = 0
    for p in range(3):
        if p == 2:
            st(k, 3, 5)
            gate('p2', range(8, 24), [g3s_ld(tt, 2, ' sc1') for tt in range(4)], opt.get('g3r', 0))
            st(k, 3, 6)
            k('s_barrier')
        for tt in range(4):
            for n in range(5):
                if i == I2[0]:
                    for t2 in range(4): k(g3s_ld(t2, 2, ' sc1')); vm.issue('p2')
                if i == I2[1]:
                    for t2 in range(4): k(g3s_ld(t2, 3, ' sc1')); vm.issue('p3')
                acc = ACC(tt, n)
                b = vr(56 + 8 * tt + 4 * p, 4) if p < 2 else vr(8 + 4 * tt, 4)
                k(f'{MFMA} {acc}, {ar(20*p+4*n,4)}, {b}, {"0" if p == 0 else acc}')
                i += 1
    st(k, 3, 7)
    gate('p3', range(24, 32), [g3s_ld(tt, 3, ' sc1') for tt in range(4)], opt.get('g3r', 0))
    st(k, 3, 8)
    pend = []
    for tt in range(4):
        for n in range(5):
            acc = ACC(tt, n)
            k(f'{MF16} {acc}, {ar(60+2*n,2)}, {vr(24+2*tt,2)}, {acc}')
            pend.append(f'ds_write_b128 v{LW+5*(tt>>1)+n}, {acc} offset:{40960*(tt&1)}')
            if len(pend) > 3: k(pend.pop(0))
    for o in pend: k(o)
    st(k, 3, 3)
    k('s_waitcnt lgkmcnt(0)\ns_barrier')
    st(k, 3, 4)
    for p in range(3):
        for s in range(8):
            k(f'ds_read_b128 {vr(8+32*p+4*s,4)}, v{116+p} offset:{1024*s}'); lg.issue(f'r{p}{s}')
        if p == 0:
            for q in range(3):
                k(f'v_lshlrev_b32 v{110+2*q}, 16, v{104+2*q}\nv_and_b32 v{104+2*q}, 0xffff0000, v{104+2*q}')
    for p in range(3):
        a = 8 + 32 * p
        for s in (0, 2, 4, 6):
            x = lg.wait(f'r{p}{s+1}')
            if x: k(x)
            for h in range(2): k(f'v_pk_add_f32 {vr(a+4*s+2*h,2)}, {vr(a+4*s+2*h,2)}, {vr(a+4*s+4+2*h,2)}')
            if s in (2, 6):
                for h in range(2): k(f'v_pk_add_f32 {vr(a+4*s-8+2*h,2)}, {vr(a+4*s-8+2*h,2)}, {vr(a+4*s+2*h,2)}')
        for h in range(2): k(f'v_pk_add_f32 {vr(a+2*h,2)}, {vr(a+2*h,2)}, {vr(a+16+2*h,2)}')
        k(f'''v_cvt_pk_bf16_f32 v{a+4}, v{a}, v{a+1}
v_cvt_pk_bf16_f32 v{a+5}, v{a+2}, v{a+3}
v_lshlrev_b32 v{a+8}, 16, v{105+2*p}
v_and_b32 v{a+9}, 0xffff0000, v{105+2*p}
v_lshlrev_b32 v{a}, 16, v{a+4}
v_and_b32 v{a+1}, 0xffff0000, v{a+4}
v_lshlrev_b32 v{a+2}, 16, v{a+5}
v_and_b32 v{a+3}, 0xffff0000, v{a+5}
v_add_f32 v{a}, v{a}, v{110+2*p}
v_add_f32 v{a+1}, v{a+1}, v{104+2*p}
v_pk_add_f32 {vr(a+2,2)}, {vr(a+2,2)}, {vr(a+8,2)}
v_cvt_pk_bf16_f32 v{a+4}, v{a}, v{a+1}
v_cvt_pk_bf16_f32 v{a+5}, v{a+2}, v{a+3}
buffer_store_dwordx2 {vr(a+4,2)}, v{120+p}, s[8:11], s47 offen''')


def gen_g3(opt):
    k = Kern('k4_kernel', 256, 512, 163840, nvgpr=128, nagpr=128)
    END = k.label('end')
    k(f'''s_cmp_ge_u32 s2, 256
s_cbranch_scc1 {END}
s_load_dwordx2 s[40:41], s[0:1], 80
s_load_dwordx2 s[80:81], s[0:1], 64''')
    k.stamp(True)
    map_g2(k)
    k(f'''v_lshrrev_b32 v1, 6, v0
v_and_b32 v2, 63, v0
v_readfirstlane_b32 s34, v1
v_lshlrev_b32 v3, 4, v2
v_lshlrev_b32 v2, 3, v2
s_waitcnt lgkmcnt(0)''')
    g3_wo_setup(k)
    for o in g3_wo_ops(): k(o)
    ph_g3(k, opt, False)
    k.finish(END)
    return k


def wq_role(k, base, END, half=None, fl='', sl=0):
    n = 256 if half is None else 128
    k(f'''s_sub_u32 s33, s2, {base}
s_cmp_ge_u32 s33, {n}
s_cbranch_scc1 {END}
s_load_dwordx2 s[4:5], s[0:1], 40
s_load_dwordx2 s[40:41], s[0:1], 80
{f"s_add_u32 s33, s33, 128" if half else ""}
v_lshrrev_b32 v1, 6, v0
v_and_b32 v2, 63, v0
v_readfirstlane_b32 s34, v1
v_lshlrev_b32 v3, 4, v2
v_lshrrev_b32 v4, 4, v2
v_bfe_u32 v5, v2, 2, 2
v_and_b32 v6, 3, v2
v_lshlrev_b32 v6, 4, v6
v_lshl_add_u32 v6, v4, 12, v6
v_lshl_add_u32 v6, v5, 20, v6
v_and_b32 v7, 15, v2
v_lshlrev_b32 v7, 6, v7
v_lshl_add_u32 v7, v4, 10, v7
s_lshl_b32 s39, s34, 12
v_add_u32 v7, s39, v7
s_bfe_u32 s35, s33, 0x20001
s_lshl_b32 s35, s35, 3
s_bfe_u32 s36, s33, 0x30003
s_add_u32 s35, s35, s36
s_lshr_b32 s36, s33, 6
s_and_b32 s37, s33, 1
s_lshl_b32 s42, s35, 15
s_and_b32 s43, s36, 1
s_lshl_b32 s43, s43, 14
s_add_u32 s42, s42, s43
s_lshr_b32 s43, s36, 1
s_lshl_b32 s43, s43, 22
s_add_u32 s42, s42, s43
s_lshl_b32 s43, s34, 6
s_add_u32 s42, s42, s43
s_lshl_b32 s43, s37, 11
s_add_u32 s42, s42, s43
s_lshl_b32 s44, s35, 3
s_add_u32 s44, s44, s34
s_lshl_b32 s44, s44, 15
s_lshl_b32 s43, s37, 12
s_add_u32 s44, s44, s43
s_lshl_b32 s43, s36, 10
s_add_u32 s44, s44, s43
s_waitcnt lgkmcnt(0)''')
    srd_from(k, 4, 4, 5, 0, 2048 * 4096)
    if sl: k(f's_sleep {sl}')
    M = gen_fft.OPT.get('wqm', 0)
    if M & 4:
        k('s_lshl_b32 s42, s33, 3\ns_add_u32 s42, s42, s34\ns_lshl_b32 s42, s42, 12')
        for g in range(4):
            k(f's_add_u32 m0, s39, 0')
            k(f'buffer_load_dwordx4 v3, s[4:7], s42 offen offset:{1024*g}{fl} lds')
    for g in range(4):
        if M & 6: break
        k(f's_add_u32 m0, s39, {512*g}')
        k(f'buffer_load_dwordx4 v6, s[4:7], s42 offen offset:{512*g}{fl} lds')
    srd_from(k, 8, 40, 41, WS_WS, WSP_BYTES)
    k('s_waitcnt vmcnt(0)')
    for c in range(4): k(f'ds_read_b128 {vr(8+4*c,4)}, v7 offset:{16*c}')
    for c in range(4):
        k(f's_waitcnt lgkmcnt({3-c})')
        if M & 1: continue
        k(f'buffer_store_dwordx4 {vr(8+4*c,4)}, v3, s[8:11], s44 offen{" nt" if M & 8 else ""}{" ; sc1" if M & 16 else " sc1"}')
        if c < 3: k('s_add_u32 s44, s44, 8192')
    k(f's_endpgm')
```

```python
from asmlib import *
from tables import TAB_BYTES

WS_T = 0x000000
WS_U = 0x300000
WS_H = 0x600000
WS_HN = 0x900000
WS_WF = 0x1E00000
WF_BYTES = 8 * 336 * 1024
import os
TP = int(os.environ.get('TP', 1344))
TU_BYTES = 256 * 8 * TP
X_BYTES = 2048 * 640 * 2
MFMA = 'v_mfma_f32_16x16x32_bf16'


def vr(a, n=1):
    return f'v{a}' if n == 1 else f'v[{a}:{a+n-1}]'


def sr(a, n=1):
    return f's{a}' if n == 1 else f's[{a}:{a+n-1}]'


def srd_from(k, s, lo, hi, off, size):
    if off:
        k(f's_add_u32 s{s}, s{lo}, 0x{off:x}\ns_addc_u32 s{s+1}, s{hi}, 0')
    elif s != lo:
        k(f's_mov_b32 s{s}, s{lo}\ns_mov_b32 s{s+1}, s{hi}')
    k(f's_mov_b32 s{s+2}, 0x{size:x}\ns_mov_b32 s{s+3}, 0x00020000')


def tab_srd(k, s):
    k(f'''s_getpc_b64 s[{s}:{s+1}]
s_add_u32 s{s}, s{s}, tab@rel32@lo+4
s_addc_u32 s{s+1}, s{s+1}, tab@rel32@hi+12
s_mov_b32 s{s+2}, {TAB_BYTES}
s_mov_b32 s{s+3}, 0x00020000''')


def code_srd(k, s, lab, end):
    k(f'''s_getpc_b64 s[{s}:{s+1}]
s_add_u32 s{s}, s{s}, {lab}@rel32@lo+4
s_addc_u32 s{s+1}, s{s+1}, {lab}@rel32@hi+12
s_mov_b32 s{s+2}, {end}-{lab}
s_mov_b32 s{s+3}, 0x00020000''')


OPT = {}
PFF = lambda: '' if OPT.get('nont') else 'nt'


def cmul_planar(k, a, b, c, d, ore, oim, t, conj=False):
    for h in (0, 2):
        k(f'v_pk_mul_f32 {vr(t+h,2)}, {vr(b+h,2)}, {vr(d+h,2)}')
    for h in (0, 2):
        k(f'v_pk_mul_f32 {vr(oim+h,2)}, {vr(b+h,2)}, {vr(c+h,2)}')
    for h in (0, 2):
        if not conj:
            k(f'v_pk_fma_f32 {vr(ore+h,2)}, {vr(a+h,2)}, {vr(c+h,2)}, {vr(t+h,2)} neg_lo:[0,0,1] neg_hi:[0,0,1]')
        else:
            k(f'v_pk_fma_f32 {vr(ore+h,2)}, {vr(a+h,2)}, {vr(c+h,2)}, {vr(t+h,2)}')
    for h in (0, 2):
        if not conj:
            k(f'v_pk_fma_f32 {vr(oim+h,2)}, {vr(a+h,2)}, {vr(d+h,2)}, {vr(oim+h,2)}')
        else:
            k(f'v_pk_fma_f32 {vr(oim+h,2)}, {vr(a+h,2)}, {vr(d+h,2)}, {vr(oim+h,2)} neg_lo:[1,0,0] neg_hi:[1,0,0]')


def wave_reduce2(k, a, b, sa, sb):
    for m in ('quad_perm:[1,0,3,2] row_mask:0xf bank_mask:0xf', 'quad_perm:[2,3,0,1] row_mask:0xf bank_mask:0xf',
              'row_half_mirror row_mask:0xf bank_mask:0xf', 'row_mirror row_mask:0xf bank_mask:0xf',
              'row_bcast:15 row_mask:0xa bank_mask:0xf', 'row_bcast:31 row_mask:0xc bank_mask:0xf'):
        k(f'v_add_f32_dpp v{a}, v{a}, v{a} {m}')
        k(f'v_add_f32_dpp v{b}, v{b}, v{b} {m}')
    k(f'v_readlane_b32 s{sa}, v{a}, 63\nv_readlane_b32 s{sb}, v{b}, 63')


def ln_stats(k, sa, sb, n, vm, vrs, t):
    inv = np.float32(1.0 / n).view(np.uint32)
    k(f'''v_mov_b32 v{t}, 0x{inv:x}
v_mul_f32 v{vm}, s{sa}, v{t}
v_mul_f32 v{t+1}, s{sb}, v{t}
v_fma_f32 v{t+1}, -v{vm}, v{vm}, v{t+1}
v_max_f32 v{t+1}, 0, v{t+1}
v_cvt_pk_bf16_f32 v{t}, v{vm}, v{t+1}
v_lshlrev_b32 v{vm}, 16, v{t}
v_and_b32 v{t+1}, 0xffff0000, v{t}
v_add_f32 v{t+1}, 0x3727c5ac, v{t+1}
v_cvt_pk_bf16_f32 v{t}, v{t+1}, v{t+1}
v_and_b32 v{t}, 0xffff0000, v{t}
v_sqrt_f32 v{t}, v{t}
v_cvt_pk_bf16_f32 v{t}, v{t}, v{t}
v_and_b32 v{t}, 0xffff0000, v{t}
v_rcp_f32 v{vrs}, v{t}''')


def ln_apply(k, f, n, vm, vrs, out):
    for i in range(0, n, 2):
        k(f'v_pk_add_f32 {vr(f+i,2)}, {vr(f+i,2)}, {vr(vm,2)} op_sel_hi:[1,0] neg_lo:[0,1] neg_hi:[0,1]')
    for i in range(0, n, 2):
        k(f'v_cvt_pk_bf16_f32 v{out+i//2}, v{f+i}, v{f+i+1}')
    for i in range(0, n, 2):
        k(f'v_lshlrev_b32 v{f+i}, 16, v{out+i//2}\nv_and_b32 v{f+i+1}, 0xffff0000, v{out+i//2}')
    for i in range(0, n, 2):
        k(f'v_pk_mul_f32 {vr(f+i,2)}, {vr(f+i,2)}, {vr(vrs,2)} op_sel_hi:[1,0]')
    for i in range(0, n, 2):
        k(f'v_cvt_pk_bf16_f32 v{out+i//2}, v{f+i}, v{f+i+1}')


SW = 'op_sel:[0,1] op_sel_hi:[1,0]'


def fft8(k, R, A, inverse, vs):
    r = lambda i: vr(R + 2 * i, 2)
    a = lambda i: vr(A + 2 * i, 2)
    neg = 'neg_lo:[0,1] neg_hi:[0,1]'
    mi = SW + ' neg_hi:[0,1]'
    pi = SW + ' neg_lo:[0,1]'
    if inverse: mi, pi = pi, mi
    k(f'''v_pk_add_f32 {a(0)}, {r(0)}, {r(4)}
v_pk_add_f32 {a(1)}, {r(0)}, {r(4)} {neg}
v_pk_add_f32 {a(2)}, {r(2)}, {r(6)}
v_pk_add_f32 {a(3)}, {r(2)}, {r(6)} {neg}
v_pk_add_f32 {a(4)}, {r(1)}, {r(5)}
v_pk_add_f32 {a(5)}, {r(1)}, {r(5)} {neg}
v_pk_add_f32 {a(6)}, {r(3)}, {r(7)}
v_pk_add_f32 {a(7)}, {r(3)}, {r(7)} {neg}
v_pk_add_f32 {r(0)}, {a(0)}, {a(2)}
v_pk_add_f32 {r(1)}, {a(0)}, {a(2)} {neg}
v_pk_add_f32 {r(2)}, {a(4)}, {a(6)}
v_pk_add_f32 {r(3)}, {a(4)}, {a(6)} {neg}
v_pk_add_f32 {r(4)}, {a(1)}, {a(3)} {mi}
v_pk_add_f32 {r(5)}, {a(1)}, {a(3)} {pi}
v_pk_add_f32 {r(6)}, {a(5)}, {a(7)} {mi}
v_pk_add_f32 {r(7)}, {a(5)}, {a(7)} {pi}
v_pk_add_f32 {a(0)}, {r(0)}, {r(2)}
v_pk_add_f32 {a(4)}, {r(0)}, {r(2)} {neg}
v_pk_add_f32 {a(2)}, {r(1)}, {r(3)} {mi}
v_pk_add_f32 {a(6)}, {r(1)}, {r(3)} {pi}
v_pk_add_f32 {r(0)}, {r(6)}, {r(6)} {mi}
v_pk_add_f32 {r(1)}, {r(7)}, {r(7)} {pi}
v_pk_fma_f32 {a(1)}, {r(0)}, {vr(vs,2)}, {r(4)} op_sel_hi:[1,0,1]
v_pk_fma_f32 {a(5)}, {r(0)}, {vr(vs,2)}, {r(4)} op_sel_hi:[1,0,1] neg_lo:[1,0,0] neg_hi:[1,0,0]
v_pk_fma_f32 {a(3)}, {r(1)}, {vr(vs,2)}, {r(5)} op_sel_hi:[1,0,1] neg_lo:[1,0,0] neg_hi:[1,0,0]
v_pk_fma_f32 {a(7)}, {r(1)}, {vr(vs,2)}, {r(5)} op_sel_hi:[1,0,1]''')
    return [A + 2 * i for i in range(8)]


def smul(k, dst, src, s, tmp, conj=False):
    k(f'v_pk_mul_f32 {vr(tmp,2)}, {vr(src,2)}, {sr(s,2)} op_sel_hi:[1,0]')
    ng = 'neg_hi:[1,0,0]' if conj else 'neg_lo:[1,0,0]'
    k(f'v_pk_fma_f32 {vr(dst,2)}, {vr(src,2)}, {sr(s,2)}, {vr(tmp,2)} op_sel:[1,1,0] op_sel_hi:[0,1,1] {ng}')


def w_touch(k, mode, sp, sw, v):
    k(f'''s_mov_b32 s{sp+2}, {2048*4096}
s_mov_b32 s{sp+3}, 0x00020000
s_lshr_b32 s75, s2, 3
s_lshl_b32 s75, s75, 3
s_add_u32 s75, s75, s{sw}
s_lshl_b32 s75, s75, 1
s_and_b32 s80, s2, 1
{"s_add_u32 s75, s75, s80" if mode == 1 else ""}
s_and_b32 s80, s75, 63
s_lshr_b32 s81, s75, 6
s_lshl_b32 s81, s81, 8
s_add_u32 s80, s80, s81
s_bfe_u32 s81, s2, 0x20001
s_lshl_b32 s81, s81, 6
s_add_u32 s80, s80, s81
s_lshl_b32 s80, s80, 12
v_lshlrev_b32 v{v}, 7, v2
{"s_mov_b32 exec_hi, 0" if mode == 1 else ""}
buffer_load_ubyte v{v+1}, v{v}, s[{sp}:{sp+3}], s80 offen
{"s_mov_b32 exec_hi, -1" if mode == 1 else ""}''')


def k0_prefetch(k):
    L = [k.label('pf') for _ in range(8)]; J = k.label('pfj'); SK = k.label('pfs')
    if OPT.get('wl'):
        k(f'''s_mov_b32 s68, s12
s_mov_b32 s69, s13
s_mov_b32 s70, 0
s_mov_b32 s71, 0x00020000
s_mov_b32 s72, 0
v_mov_b32 v100, 0
s_cmp_lt_u32 s34, 5
s_cbranch_scc1 {J}''')
    elif not OPT.get('pfw'): k(f's_cmp_lt_u32 s34, 5\ns_cbranch_scc1 {SK}')
    k(f'''v_lshlrev_b32 v100, 7, v2
s_lshl_b32 s72, s2, 13
s_lshr_b32 s73, s2, 3
s_mov_b32 s71, 0x00020000
s_cmp_ge_u32 s34, 2
s_cbranch_scc1 {L[2]}
s_cmp_eq_u32 s34, 0
s_cselect_b32 s68, s56, s58
s_cselect_b32 s69, s57, s59
s_mov_b32 s70, {2048*642}
v_and_b32 v100, 7, v2
v_lshlrev_b32 v100, 7, v100
v_min_u32 v100, 640, v100
v_lshrrev_b32 v101, 3, v2
v_mul_u32_u24 v101, {8*642}, v101
v_add_u32 v100, v100, v101
s_and_b32 s72, s2, 7
s_lshl_b32 s74, s73, 6
s_add_u32 s72, s72, s74
s_mul_i32 s72, s72, 642
s_branch {J}
{L[2]}:
s_cmp_ge_u32 s34, 4
s_cbranch_scc1 {L[4]}
s_mov_b32 s68, s62
s_mov_b32 s69, s63
s_mov_b32 s70, {640*3456}
s_cmp_eq_u32 s34, 3
s_cselect_b32 s74, {1<<21}, 0
s_add_u32 s72, s72, s74
s_branch {J}
{L[4]}:
s_cmp_ge_u32 s34, 5
s_cbranch_scc1 {L[5]}
s_mov_b32 s68, s64
s_mov_b32 s69, s65
s_mov_b32 s70, {864*1280}
s_branch {J}
{L[5]}:
s_and_b32 s72, s73, 7
s_lshl_b32 s72, s72, 13
s_cmp_ge_u32 s34, 6
s_cbranch_scc1 {L[6]}
s_mov_b32 s68, s12
s_mov_b32 s69, s13
s_mov_b32 s70, s14
s_add_u32 s72, s72, 0x2000
s_branch {J}
{L[6]}:''')
    code_srd(k, 68, 'k1_kernel', 'code_end')
    k(f'''s_cmp_eq_u32 s34, 7
s_cselect_b32 s74, 0x10000, 0
s_add_u32 s72, s72, s74
{J}:
buffer_load_ubyte v101, v100, s[68:71], s72 offen
{SK}:''')


def k0_wrole(k, WROLE, END):
    k(f'''{WROLE}:
s_cmp_ge_u32 s2, 320
s_cbranch_scc1 {END}
s_load_dwordx4 s[4:7], s[0:1], 8
s_load_dwordx2 s[40:41], s[0:1], 80''')
    k.nst = 0
    k.stamp(True)
    k(f'''v_lshrrev_b32 v1, 6, v0
v_and_b32 v2, 63, v0
v_readfirstlane_b32 s34, v1
s_and_b32 s33, s2, 7
s_and_b32 s35, s2, 8
s_lshr_b32 s36, s2, 4
s_and_b32 s36, s36, 3
s_add_u32 s37, s35, s34
s_lshl_b32 s38, s36, 6
s_add_u32 s37, s37, s38
s_lshl_b32 s37, s37, 3
s_add_u32 s37, s37, s33
s_mul_i32 s42, s37, 642
s_and_b32 s42, s42, {-128 if OPT.get('wxb') else -4}
s_add_u32 s43, s42, {128*642}
s_add_u32 s44, s42, {256*642}
s_add_u32 s45, s42, {384*642}
v_lshlrev_b32 v3, 4, v2
s_mov_b32 exec_lo, -1
s_mov_b32 exec_hi, 0xff
s_waitcnt lgkmcnt(0)
s_mov_b32 s8, s6
s_mov_b32 s9, s7
s_mov_b32 s6, {2048*642}
s_mov_b32 s7, 0x00020000
s_mov_b32 s10, {2048*642}
s_mov_b32 s11, 0x00020000''')
    R = lambda r, a: 16 + 12 * r + 6 * a
    for r in range(4):
        k(f'buffer_load_dwordx4 {vr(R(r,0),4)}, v3, s[4:7], s{42+r} offen')
        k(f'buffer_load_dwordx4 {vr(R(r,1),4)}, v3, s[8:11], s{42+r} offen')
    if OPT.get('wxa'): k('s_mov_b64 exec, 1')
    for r in range(4):
        k(f'buffer_load_dword v{R(r,0)+4}, v3, s[4:7], s{42+r} offen offset:16')
        k(f'buffer_load_dword v{R(r,1)+4}, v3, s[8:11], s{42+r} offen offset:16')
    k('s_mov_b64 exec, -1')
    srd_from(k, 12, 40, 41, WS_WF, WF_BYTES)
    ODD = k.label('odd'); JN = k.label('jn')
    k(f'''s_lshl_b32 s38, s34, 4
v_mul_u32_u24 v6, 1040, v2
v_add_u32 v6, s38, v6
s_mul_i32 s38, s34, 1040
v_lshlrev_b32 v8, 4, v2
v_add_u32 v8, s38, v8
v_lshrrev_b32 v9, 3, v2
v_and_b32 v10, 7, v2
v_lshlrev_b32 v10, 4, v10
v_lshl_add_u32 v9, v9, 10, v10
s_mul_i32 s46, s33, {336*1024}
s_lshl_b32 s38, s36, 8
s_add_u32 s46, s46, s38
s_lshl_b32 s38, s35, 4
s_add_u32 s46, s46, s38
s_lshl_b32 s38, s34, 13
s_add_u32 s46, s46, s38
s_mov_b32 s47, 0x05040100
s_mov_b32 s48, 0x07060302
s_mov_b32 exec_lo, -1
s_mov_b32 exec_hi, 0xff
s_bitcmp1_b32 s33, 0
s_waitcnt vmcnt(8)''')
    k.stamp()
    k(f's_cbranch_scc1 {ODD}')
    for par in range(2):
        for j in range(9):
            hj = j + par
            if hj >= 8 and (j == 8 - par): k('s_waitcnt vmcnt(0)')
            if j == 8: k(f's_mov_b32 exec_lo, 0\ns_mov_b32 exec_hi, 0x80')
            for r in range(4):
                k(f'v_perm_b32 v{64+4*j+r}, v{R(r,1)+hj//2}, v{R(r,0)+hj//2}, s{47+(hj&1)}')
            k(f'ds_write_b128 v6, {vr(64+4*j,4)} offset:{128*j if j < 8 else 1040}')
        if par == 0: k(f's_branch {JN}\n{ODD}:')
    k(f'''{JN}:
s_mov_b64 exec, -1
s_waitcnt lgkmcnt(0)''')
    k.stamp()
    k('s_barrier')
    k.stamp()
    for i in range(5):
        k(f'ds_read_b128 {vr(16+4*i,4)}, v8 offset:{8*1040*i}')
    L = k.label('w5')
    k(f's_cmp_lg_u32 s34, 0\ns_cbranch_scc1 {L}\ns_mov_b64 exec, 0xff')
    k(f'''ds_read_b128 v[36:39], v8 offset:{40*1040}
s_add_u32 s38, s46, {320*1024}
s_waitcnt lgkmcnt(0)
buffer_store_dwordx4 v[36:39], v9, s[12:15], s38 offen sc1 ; W
s_mov_b64 exec, -1
{L}:''')
    for i in range(5):
        k(f's_waitcnt lgkmcnt({4-i})\nbuffer_store_dwordx4 {vr(16+4*i,4)}, v9, s[12:15], s46 offen sc1 ; W')
        if i < 4: k(f's_add_u32 s46, s46, {64*1024}')


def gen_k0():
    XP = 1280; EX0 = 10240; EXP = 2576
    WX = OPT.get('wx', 0)
    LT = OPT.get('lt', 0); TB0 = EX0 + 8 * EXP
    WQ = OPT.get('wq', 0)
    PK = OPT.get('k0p', 0)
    k = Kern('k0_kernel', 256 + (440 + PK - 1) // PK if PK else (320 if WX else 256 + [0, 256, 128, 0][WQ]), 512, max(41 * 1040 if WX else 0, TB0 + 8192 * LT + 16384 * (OPT.get('k0i', 0) > 0), 8192 * PK), nvgpr=128)
    END = k.label('end'); WROLE = k.label('wrole')
    if OPT.get('pfirst'):
        NPW = (440 + PK - 1) // PK
        assert NPW % 8 == 0
        if OPT.get('spf'):
            code_srd(k, 68, 'k0_kernel', 'k1_kernel')
            k(f'v_lshlrev_b32 v100, {OPT["spf"]}, v0\nbuffer_load_ubyte v101, v100, s[68:71], 0 offen')
        k(f's_cmp_lt_u32 s2, {NPW}\ns_cbranch_scc1 {WROLE}\ns_sub_u32 s2, s2, {NPW}')
    k(f'''s_cmp_ge_u32 s2, 256
s_cbranch_scc1 {WROLE if (WX or WQ in (1, 2) or (PK and not OPT.get('pfirst'))) else END}
{f"s_branch {END}" if OPT.get('wxc') else ""}
s_load_dwordx2 s[4:5], s[0:1], 0
s_load_dwordx2 s[40:41], s[0:1], 80
s_load_dwordx8 s[56:63], s[0:1], 8
s_load_dwordx2 s[64:65], s[0:1], 56''')
    if OPT.get('wsp') or OPT.get('wt'): k('s_load_dwordx2 s[48:49], s[0:1], 40')
    if OPT.get('wte'): k('s_load_dwordx2 s[66:67], s[0:1], 40')
    if OPT.get('spf') and not OPT.get('pfirst'):
        code_srd(k, 68, 'k0_kernel', 'k1_kernel')
        k(f'v_lshlrev_b32 v100, {OPT["spf"]}, v0\nbuffer_load_ubyte v101, v100, s[68:71], 0 offen')
    k.stamp(True)
    tab_srd(k, 12)
    k(f'''s_and_b32 s3, s2, 7
s_lshl_b32 s3, s3, 5
s_lshr_b32 s33, s2, 3
s_add_u32 s3, s3, s33
s_lshl_b32 s33, s3, 6
s_add_u32 s33, s33, 32768
s_load_dwordx16 s[16:31], s[12:13], s33
v_lshrrev_b32 v1, 6, v0
v_and_b32 v2, 63, v0
v_readfirstlane_b32 s34, v1
v_lshlrev_b32 v3, 4, v2
s_movk_i32 s38, 0x1000''')
    if LT:
        k(f'''s_lshl_b32 s38, s34, 10
s_add_u32 m0, s38, {TB0}
buffer_load_dwordx4 v3, s[12:15], s38 offen lds''')
    else:
      for i in range(8):
        so = '0' if i < 4 else 's38'
        k(f'buffer_load_dwordx4 {vr(64+4*i,4)}, v3, s[12:15], {so} offen offset:{(i%4)*1024}')
    k(f'''s_lshl_b32 s35, s34, 8
s_add_u32 s35, s35, s3
s_mul_i32 s35, s35, 1280
v_lshlrev_b32 v58, 3, v2
v_lshlrev_b32 v59, 2, v2
s_waitcnt lgkmcnt(0)''')
    srd_from(k, 4, 4, 5, 0, X_BYTES)
    srd_from(k, 8, 40, 41, WS_T, TU_BYTES)
    if not OPT.get('fz'): k(f'''s_lshl_b32 s33, s2, 6
s_add_u32 s33, s33, 0x1800000
s_add_u32 s52, s40, s33
s_addc_u32 s53, s41, 0
s_mov_b32 s54, 64
s_mov_b32 s55, 0x00020000
v_lshlrev_b32 v62, 2, v0
v_mov_b32 v63, 0
buffer_store_dword v63, v62, s[52:55], 0 offen''')
    k(f'''buffer_load_dwordx2 v[4:5], v58, s[4:7], s35 offen
buffer_load_dwordx2 v[6:7], v58, s[4:7], s35 offen offset:512
buffer_load_dword v8, v59, s[4:7], s35 offen offset:1024''')
    WL = OPT.get('wl', 0)

    def wsp_loads():
        k(f'''s_mov_b32 s50, {2048*4096}
s_mov_b32 s51, 0x00020000
v_bfe_u32 v102, v2, 2, 2
v_and_b32 v103, 3, v2
v_lshlrev_b32 v103, 20, v103
v_lshl_add_u32 v102, v102, 12, v103
v_lshrrev_b32 v103, 4, v2
v_lshl_add_u32 v102, v103, 9, v102
s_lshr_b32 s75, s3, 3
s_lshl_b32 s80, s75, 15
s_and_b32 s81, s3, 2
s_lshl_b32 s81, s81, 13
s_add_u32 s80, s80, s81
s_and_b32 s81, s3, 4
s_lshl_b32 s81, s81, 20
s_add_u32 s80, s80, s81
s_and_b32 s81, s3, 1
s_lshl_b32 s82, s81, 11
s_add_u32 s80, s80, s82
s_lshl_b32 s82, s34, 6
s_add_u32 s80, s80, s82
s_lshl_b32 s75, s75, 18
s_lshl_b32 s81, s81, 12
s_add_u32 s75, s75, s81
s_lshl_b32 s81, s34, 15
s_add_u32 s75, s75, s81
s_and_b32 s81, s3, 6
s_lshl_b32 s81, s81, 9
s_add_u32 s75, s75, s81''')
        for i in range(4):
            k(f'buffer_load_dwordx4 {vr(104+4*i,4)}, v102, s[48:51], s80 offen offset:{16*i}')

    def wsp_stores(n):
        srd_from(k, 48, 40, 41, 0x2000000, 8 << 20)
        for i in range(4):
            k(f's_waitcnt vmcnt({n+3})')
            k(f'buffer_store_dwordx4 {vr(104+4*i,4)}, v3, s[48:51], s75 offen')
            if i < 3: k('s_add_u32 s75, s75, 8192')

    def w_loads():
        k(f'''s_and_b32 s76, s2, 7
s_lshr_b32 s77, s2, 3
s_and_b32 s77, s77, 7
s_lshl_b32 s77, s77, 1
s_and_b32 s78, s34, 1
s_add_u32 s77, s77, s78
s_lshr_b32 s78, s2, 6
s_lshl_b32 s79, s78, 6
s_add_u32 s79, s79, s77
s_lshl_b32 s79, s79, 3
s_add_u32 s79, s79, s76
s_mul_i32 s80, s79, 642
s_add_u32 s81, s80, {128*642}
s_add_u32 s82, s80, {256*642}
s_add_u32 s75, s80, {384*642}
s_lshl_b32 s78, s78, 4
s_add_u32 s78, s78, s77
s_lshl_b32 s78, s78, 4
s_mul_i32 s76, s76, {336*1024}
s_add_u32 s76, s76, s78
s_lshr_b32 s77, s34, 1
s_lshl_b32 s77, s77, 6
v_add_u32 v102, s77, v2
v_add_u32 v103, 256, v102
v_mov_b32 v104, 0x1fffff
v_cmp_gt_u32 vcc, 321, v103
v_cndmask_b32 v103, v104, v103, vcc
v_lshlrev_b32 v104, 1, v102
v_lshlrev_b32 v105, 1, v103
v_lshlrev_b32 v102, 10, v102
v_lshlrev_b32 v103, 10, v103
s_mov_b32 s62, s58
s_mov_b32 s63, s59
s_mov_b32 s58, {2048*642}
s_mov_b32 s59, 0x00020000
s_mov_b32 s60, s62
s_mov_b32 s61, s63
s_mov_b32 s62, {2048*642}
s_mov_b32 s63, 0x00020000''')
        srd_from(k, 64, 40, 41, WS_WF, WF_BYTES)
        so = ['s80', 's81', 's82', 's75']
        for u in range(2):
            for r in range(4):
                k(f'buffer_load_ushort v{108+4*u+r}, v{104+u}, s[56:59], {so[r]} offen')
                k(f'buffer_load_ushort v{116+4*u+r}, v{104+u}, s[60:63], {so[r]} offen')

    def w_stores(n):
        k(f's_waitcnt vmcnt({n})')
        for u in range(2):
            for r in range(4):
                k(f'v_lshl_or_b32 v{108+4*u+r}, v{116+4*u+r}, 16, v{108+4*u+r}')
            k(f'buffer_store_dwordx4 {vr(108+4*u,4)}, v{102+u}, s[64:67], s76 offen ; W')
    if WL == 1: w_loads()
    WD = OPT.get('wd', 0)
    if WD:
        k(f'''s_bitcmp1_b32 s34, 0
s_cselect_b32 s68, s58, s56
s_cselect_b32 s69, s59, s57
s_cmp_ge_u32 s34, {8-2}
s_cselect_b32 s70, {2048*642}, 0
s_mov_b32 s71, 0x00020000
v_and_b32 v100, 7, v2
v_lshlrev_b32 v100, 7, v100
v_min_u32 v100, {671 if OPT.get('wd7') else 640}, v100
v_lshrrev_b32 v101, 3, v2
v_mul_u32_u24 v101, {8*642}, v101
v_add_u32 v100, v100, v101
s_and_b32 s72, s2, 7
s_lshr_b32 s73, s2, 3
s_lshl_b32 s74, s73, 6
s_add_u32 s72, s72, s74
s_mul_i32 s72, s72, 642''')
        if WD == 1: k('buffer_load_ubyte v101, v100, s[68:71], s72 offen')
    if OPT.get('tlb'):
        TL = k.label('tl')
        k(f'''s_mov_b32 s82, 0
s_cmp_lg_u32 s34, 4
s_cbranch_scc1 {TL}
s_cmp_ge_u32 s2, {8*OPT['tlb']}
s_cbranch_scc1 {TL}
s_load_dwordx4 s[76:79], s[0:1], 40
s_load_dwordx2 s[80:81], s[0:1], 64
s_mov_b32 s82, 1
v_lshlrev_b32 v106, 21, v2
s_mov_b32 s71, 0x00020000''')
        for lo, sz in ((56, 2048*642), (58, 2048*642), (40, 0x2200000), (62, 640*3456), (64, 864*1280), (76, 2048*4096), (78, 4096), (80, X_BYTES)):
            if lo == 76: k('s_waitcnt lgkmcnt(0)')
            k(f's_mov_b32 s68, s{lo}\ns_mov_b32 s69, s{lo+1}\ns_mov_b32 s70, 0x{sz:x}\nbuffer_load_ubyte v107, v106, s[68:71], 0 offen')
        k(f's_waitcnt vmcnt(8)\n{TL}:')
    k(f'''s_mul_i32 s39, s34, {XP}
v_add_u32 v58, s39, v58
v_add_u32 v59, s39, v59
v_and_b32 v50, 15, v2
v_lshrrev_b32 v51, 4, v2
v_lshrrev_b32 v52, 2, v50
v_and_b32 v53, 3, v50
v_lshl_add_u32 v54, v51, 3, v52
v_add_u32 v55, 4, v54
v_subrev_u32 v56, 20, v54
v_min_u32 v54, v54, v56
v_subrev_u32 v56, 20, v55
v_min_u32 v55, v55, v56
v_lshlrev_b32 v53, 3, v53
v_lshl_add_u32 v54, v54, 6, v53
v_lshl_add_u32 v55, v55, 6, v53
v_add_u32 v54, s39, v54
v_add_u32 v55, s39, v55
s_mul_i32 s42, s34, {EXP}
s_add_u32 s42, s42, {EX0}
v_mul_u32_u24 v56, 80, v51
v_add_u32 v57, v56, v50
v_lshlrev_b32 v57, 3, v57
v_add_u32 v60, s42, v57
v_sub_u32 v61, {8*260}, v57
v_add_u32 v61, s42, v61
{"s_cmp_eq_u32 s82, 1" if OPT.get('tlb') else ""}
{"s_cbranch_scc1 k0_skipw" if OPT.get('tlb') else ""}''')
    if OPT.get('k0i') == 2:
        import gen10
        PA = k.label('pa')
        k(f's_waitcnt vmcnt(0)\ns_cmp_lt_u32 s34, 6\ns_cbranch_scc1 {PA}')
        gen10.prep_inl(k, 'A', TB0 + 8192, None)
        k(f'{PA}:')
    elif OPT.get('k0i'):
        import gen10
        PA = k.label('pa'); PB = k.label('pb')
        k(f's_cmp_lt_u32 s34, 6\ns_cbranch_scc1 {PA}')
        gen10.prep_inl(k, 'A', TB0 + 8192, None)
        k(f's_waitcnt vmcnt(8)\ns_branch {PB}\n{PA}:\ns_waitcnt vmcnt(0)\n{PB}:')
    else: k(f'''s_waitcnt vmcnt({16 if WL == 1 else (1 if WD == 1 else 0)})
{"k0_skipw:" if OPT.get('tlb') else ""}''')
    k.stamp()
    if LT:
        k('s_barrier')
        for i in range(8): k(f'ds_read_b128 {vr(64+4*i,4)}, v3 offset:{TB0+1024*i}')
    if WL == 2: w_loads()
    if WD == 2: k('buffer_load_ubyte v101, v100, s[68:71], s72 offen')
    if OPT.get('fz'):
        srd_from(k, 52, 40, 41, 0x1800000, 0x80000)
        k(f'''s_lshl_b32 s33, s2, 10
s_cmp_lt_u32 s2, {OPT.get('fzn', 32)}
s_cselect_b32 s43, s33, 0x7f000000
s_add_u32 s33, s33, 0x40000
s_cmp_eq_u32 s34, 1
s_cselect_b32 s33, s33, 0x7f000000
s_cselect_b32 s44, -1, 0
s_cmp_eq_u32 s34, 0
s_cselect_b32 s33, s43, s33
v_mov_b32 v120, s44
v_mov_b32 v121, s44
v_mov_b32 v122, s44
v_mov_b32 v123, s44
buffer_store_dwordx4 v[120:123], v3, s[52:55], s33 offen''')
    if OPT.get('us'):
        k(f'''s_mul_i32 s33, s3, {8*TP}
s_add_u32 s33, s33, {WS_U}
s_add_u32 s52, s40, s33
s_addc_u32 s53, s41, 0
s_mov_b32 s54, {8*TP}
v_mov_b32 v116, -1
v_mov_b32 v117, -1
v_mov_b32 v118, -1
v_mov_b32 v119, -1
v_lshlrev_b32 v124, 4, v0
s_movk_i32 s33, 0x2000
buffer_store_dwordx4 v[116:119], v124, s[52:55], 0 offen
buffer_store_dwordx4 v[116:119], v124, s[52:55], s33 offen''')
    if not OPT.get('nopf'):
        k0_prefetch(k)
    if OPT.get('tl2'):
        TL = k.label('tl'); sh = OPT['tl2']
        k(f'''s_cmp_ge_u32 s2, {8*OPT.get('tln', 1)}
s_cbranch_scc1 {TL}
s_cmp_ge_u32 s34, 5
s_cbranch_scc1 {TL}
s_load_dwordx4 s[76:79], s[0:1], 40
s_load_dwordx2 s[80:81], s[0:1], 64
v_lshlrev_b32 v106, {sh}, v2
s_mov_b32 s71, 0x00020000
s_lshl_b32 s72, s34, {sh + 6}
s_mov_b32 s68, s40
s_mov_b32 s69, s41
s_mov_b32 s70, 0x1e00000
buffer_load_ubyte v107, v106, s[68:71], s72 offen
s_add_u32 s73, s72, {5 << (sh + 6)}
buffer_load_ubyte v107, v106, s[68:71], s73 offen
s_waitcnt lgkmcnt(0)''')
        for lo, sz in ((76, 2048*4096), (78, 4096), (80, X_BYTES)):
            k(f's_mov_b32 s68, s{lo}\ns_mov_b32 s69, s{lo+1}\ns_mov_b32 s70, 0x{sz:x}\nbuffer_load_ubyte v107, v106, s[68:71], s72 offen')
        k(f'{TL}:')
    if OPT.get('wsp'): wsp_loads()
    if OPT.get('wt'): w_touch(k, OPT['wt'], 48, 34, 102)
    for i in range(5):
        k(f'v_lshlrev_b32 v{10+2*i}, 16, v{4+i}\nv_and_b32 v{11+2*i}, 0xffff0000, v{4+i}')
    k('''v_pk_add_f32 v[20:21], v[10:11], v[12:13]
v_pk_mul_f32 v[22:23], v[10:11], v[10:11]
v_pk_add_f32 v[24:25], v[14:15], v[16:17]
v_pk_fma_f32 v[22:23], v[12:13], v[12:13], v[22:23]
v_pk_add_f32 v[20:21], v[20:21], v[18:19]
v_pk_fma_f32 v[22:23], v[14:15], v[14:15], v[22:23]
v_pk_add_f32 v[20:21], v[20:21], v[24:25]
v_pk_fma_f32 v[22:23], v[16:17], v[16:17], v[22:23]
v_pk_fma_f32 v[22:23], v[18:19], v[18:19], v[22:23]
v_add_f32 v20, v20, v21
v_add_f32 v22, v22, v23''')
    wave_reduce2(k, 20, 22, 36, 37)
    ln_stats(k, 36, 37, 640, 20, 22, 24)
    ln_apply(k, 10, 10, 20, 22, 4)
    k('''ds_write_b64 v58, v[4:5]
ds_write_b64 v58, v[6:7] offset:512
ds_write_b32 v59, v8 offset:1024
s_waitcnt lgkmcnt(0)
ds_read_b64_tr_b16 v[4:5], v54
ds_read_b64_tr_b16 v[6:7], v55
ds_read_b64_tr_b16 v[8:9], v54 offset:32
ds_read_b64_tr_b16 v[10:11], v55 offset:32
s_waitcnt lgkmcnt(2)''')
    k(f'''{MFMA} v[12:15], v[4:7], v[64:67], 0
{MFMA} v[16:19], v[4:7], v[68:71], 0
s_waitcnt lgkmcnt(0)
{MFMA} v[20:23], v[8:11], v[64:67], 0
{MFMA} v[24:27], v[8:11], v[68:71], 0''')
    cmul_planar(k, 12, 16, 72, 76, 28, 32, 44)
    cmul_planar(k, 20, 24, 80, 84, 36, 40, 44)
    for t in range(2):
        for h in range(2):
            re = 28 + 8 * t + 2 * h; im = 32 + 8 * t + 2 * h; o = 2 * t + h
            k(f'''v_cvt_pk_bf16_f32 v{4+o}, v{re}, v{re+1}
v_cvt_pk_bf16_f32 v{8+o}, v{im}, v{im+1}
v_cvt_pk_bf16_f32 v{12+o}, -v{im}, -v{im+1}
v_cvt_pk_bf16_f32 v{16+o}, v{re}, -v{re+1}
v_cvt_pk_bf16_f32 v{20+o}, v{im}, -v{im+1}
v_cvt_pk_bf16_f32 v{24+o}, -v{im}, v{im+1}''')
    k(f'''{MFMA} v[28:31], v[88:91], v[4:7], 0
{MFMA} v[32:35], v[92:95], v[4:7], 0
{MFMA} v[36:39], v[88:91], v[16:19], 0
{MFMA} v[40:43], v[92:95], v[16:19], 0
{MFMA} v[28:31], v[92:95], v[12:15], v[28:31]
{MFMA} v[32:35], v[88:91], v[8:11], v[32:35]
{MFMA} v[36:39], v[92:95], v[24:27], v[36:39]
{MFMA} v[40:43], v[88:91], v[20:23], v[40:43]
s_mov_b32 exec_lo, 0x07ff07ff
s_mov_b32 exec_hi, 0x07ff07ff''')
    for r in range(4):
        k(f'ds_write2_b32 v60, v{28+r}, v{32+r} offset0:{40*r} offset1:{40*r+1}')
    for r in range(4):
        k(f'v_xor_b32 v{40+r}, 0x80000000, v{40+r}')
    for r in range(4):
        k(f'ds_write2_b32 v61, v{36+r}, v{40+r} offset0:{40*(3-r)} offset1:{40*(3-r)+1}')
    k(f'''s_mov_b64 exec, -1''')
    if WL == 1: w_stores(1)
    k(f'''s_waitcnt lgkmcnt(0)''')
    k.stamp()
    k(f'''s_barrier''')
    k.stamp()
    TAIL = k.label('tail'); TAIL2 = k.label('tail')
    k(f'''v_cmp_gt_u32 vcc, {TP//4 if OPT.get('fullt') else 321}, v0
s_and_saveexec_b64 s[44:45], vcc
s_cbranch_execz {TAIL if (WL == 2 or OPT.get('wsp') or OPT.get('k0i')) else END}
v_lshlrev_b32 v1, 3, v0
v_lshlrev_b32 v2, 2, v0''')
    for n in range(8):
        k(f'ds_read_b64 {vr(4+2*n,2)}, v1 offset:{EX0+n*EXP}')
    k(f'''v_mov_b32 v40, 0x3f3504f3
s_mul_i32 s46, s3, {8*TP}
s_add_u32 s47, s46, {3*TP}
s_add_u32 s48, s46, {6*TP}
s_waitcnt lgkmcnt(0)''')
    T = fft8(k, 4, 20, False, 40)
    for k2 in range(8):
        if k2 == 0:
            k(f'v_cvt_pk_bf16_f32 v4, v{T[0]}, v{T[0]+1}')
        else:
            smul(k, T[k2], T[k2], 16 + 2 * k2, 42 + 2 * (k2 & 1))
            k(f'v_cvt_pk_bf16_f32 v{4+k2}, v{T[k2]}, v{T[k2]+1}')
        k(f'buffer_store_dword v{4+k2}, v2, s[8:11], s{46+k2//3} offen offset:{(k2%3)*TP+4*(k2&1)*(OPT.get("sh",0)==1)}')
    if OPT.get('wte'):
        k(f'''s_cmp_ge_u32 s34, {OPT['wte']}
s_cbranch_scc1 {END}
s_mov_b32 s76, s66
s_mov_b32 s77, s67
s_mov_b32 s78, {2048*4096}
s_mov_b32 s79, 0x00020000
s_bfe_u32 s80, s2, 0x40003
s_lshl_b32 s80, s80, 1
s_and_b32 s81, s2, 1
s_add_u32 s80, s80, s81
s_lshl_b32 s80, s80, 13
s_bfe_u32 s81, s2, 0x20001
s_lshl_b32 s81, s81, 18
s_add_u32 s80, s80, s81
s_lshr_b32 s81, s2, 7
s_lshl_b32 s81, s81, 2
s_add_u32 s81, s81, s34
s_lshl_b32 s81, s81, 20
s_add_u32 s80, s80, s81
v_lshlrev_b32 v102, 3, v3
buffer_load_ubyte v103, v102, s[76:79], s80 offen''')
    if WL == 2:
        k(f's_waitcnt vmcnt(9)\ns_branch {TAIL2}\n{TAIL}:\ns_waitcnt vmcnt(1)\n{TAIL2}:\ns_mov_b64 exec, -1')
        w_stores(63)
    if OPT.get('wsp'):
        k(f's_mov_b64 exec, -1\ns_waitcnt vmcnt(8)\ns_branch {TAIL2}\n{TAIL}:\ns_mov_b64 exec, -1\ns_waitcnt vmcnt(0)\n{TAIL2}:')
        wsp_stores(60)
    if OPT.get('k0i'):
        k(f's_branch {END}\n{TAIL}:\ns_mov_b64 exec, -1')
        gen10.prep_inl(k, 'B', TB0 + 8192, END, (WD == 2) + 1 + 2 * OPT.get('us', 0) + 1)
    if WX:
        k(f's_branch {END}')
        k0_wrole(k, WROLE, END)
    k.finish(END)
    if PK:
        import gen10
        E2 = k.label('end')
        k(f'{WROLE}:\ns_load_dwordx2 s[40:41], s[0:1], 80')
        gen10.gen_prep8(k, 0 if OPT.get('pfirst') else 256, E2, PK)
        k(f'{E2}:\ns_endpgm')
    if WQ in (1, 2):
        import gen9
        k(f'{WROLE}:')
        gen9.wq_role(k, 256, END, None if WQ == 1 else 0, ' nt' if OPT.get('wnt') else '', OPT.get('wsl0', 0))
    return k


def gen_k1():
    P = 1040; W0 = 16 * P
    import gen3
    NPF = OPT.get('npf1', 4)
    NG = 256 if NPF else 220
    k = Kern('k1_kernel', NG, 256, 83968 if NPF else 65536, nvgpr=160)
    END = k.label('end'); MAIN = k.label('main'); PREP = k.label('prep')
    k(f'''s_cmp_ge_u32 s2, {NG}
s_cbranch_scc1 {END}
s_cmp_lt_u32 s2, 168
s_cbranch_scc1 {MAIN}
s_load_dwordx2 s[40:41], s[0:1], 80''')
    k.stamp(True)
    if NPF:
        k(f'''s_cmp_lt_u32 s2, 220
s_cbranch_scc1 {PREP}
s_load_dwordx2 s[4:5], s[0:1], 40
v_lshrrev_b32 v1, 6, v0
v_and_b32 v2, 63, v0
v_readfirstlane_b32 s35, v1
s_sub_u32 s33, s2, 220
s_lshl_b32 s33, s33, 2
s_add_u32 s33, s33, s35
s_lshl_b32 s33, s33, 13
v_lshlrev_b32 v3, 7, v2
s_mov_b32 s6, {2048*4096}
s_mov_b32 s7, 0x00020000
s_waitcnt lgkmcnt(0)''')
        for i in range(NPF):
            k(f'buffer_load_ubyte v4, v3, s[4:7], s33 offen\ns_add_u32 s33, s33, {144*8192}')
        k(f's_branch {END}\n{PREP}:')
    if OPT.get('k1noprep'): k(f's_branch {END}')
    gen3.gen_prep(k, 168, END)
    k.nst = 0
    k(f'''{MAIN}:
s_load_dwordx2 s[4:5], s[0:1], 8
s_load_dwordx2 s[16:17], s[0:1], 16
s_load_dwordx2 s[40:41], s[0:1], 80''')
    k.stamp(True)
    tab_srd(k, 12)
    k(f'''s_and_b32 s33, s2, 7
s_lshr_b32 s34, s2, 3
v_lshrrev_b32 v1, 6, v0
v_and_b32 v2, 63, v0
v_readfirstlane_b32 s35, v1
v_lshlrev_b32 v3, 4, v2
s_movk_i32 s38, 0x2000
s_movk_i32 s39, 0x3000
v_and_b32 v4, 15, v2
v_lshrrev_b32 v5, 4, v2''')
    for i in range(8):
        k(f'buffer_load_dwordx4 {vr(96+4*i,4)}, v3, s[12:15], s{38+i//4} offen offset:{(i%4)*1024}')
    k(f'''v_mul_u32_u24 v6, {16*8*TP}, v4
v_lshl_add_u32 v6, v5, 4, v6
s_lshl_b32 s36, s35, 5
s_add_u32 s36, s36, s33
s_mul_i32 s36, s36, {TP}
s_lshl_b32 s37, s34, 6
s_add_u32 s36, s36, s37
s_add_u32 s42, s36, {8*TP}
s_add_u32 s43, s36, {16*TP}
s_add_u32 s44, s36, {24*TP}
v_and_b32 v7, 1, v5
v_lshrrev_b32 v8, 1, v5
v_lshl_add_u32 v9, v4, 4, v7
v_mul_u32_u24 v9, {8*642}, v9
v_lshl_add_u32 v9, v8, 4, v9
s_lshl_b32 s45, s35, 5
s_add_u32 s45, s45, s33
s_mul_i32 s45, s45, 642
s_lshl_b32 s37, s34, 5
s_add_u32 s45, s45, s37
s_add_u32 s46, s45, {16*642}
s_waitcnt lgkmcnt(0)''')
    srd_from(k, 4, 4, 5, 0, 2048 * 642)
    srd_from(k, 16, 16, 17, 0, 2048 * 642)
    srd_from(k, 8, 40, 41, WS_T, TU_BYTES)
    srd_from(k, 20, 40, 41, WS_U, TU_BYTES)
    so = ['s36', 's42', 's43', 's44']
    for i in range(4):
        k(f'buffer_load_dwordx4 {vr(16+4*i,4)}, v6, s[8:11], {so[i]} offen')
    for i in range(2):
        if OPT.get('k1now'):
            k(f'buffer_load_dwordx4 {vr(32+8*i,4)}, v3, s[12:15], 0 offen')
            k(f'buffer_load_dwordx4 {vr(36+8*i,4)}, v3, s[12:15], 0 offen')
            continue
        k(f'buffer_load_dwordx4 {vr(32+8*i,4)}, v9, s[4:7], s{45+i} offen')
        k(f'buffer_load_dwordx4 {vr(36+8*i,4)}, v9, s[16:19], s{45+i} offen')
    k(f'''v_mul_u32_u24 v10, {4*P}, v5
v_lshl_add_u32 v10, v4, 2, v10
s_lshl_b32 s37, s35, 8
v_add_u32 v10, s37, v10
v_mul_u32_u24 v11, {8*P}, v8
v_lshl_add_u32 v11, v7, 6, v11
v_lshl_add_u32 v11, v4, 2, v11
v_add_u32 v11, s37, v11
v_lshlrev_b32 v12, 6, v4
v_lshl_add_u32 v12, v5, 4, v12
s_mul_i32 s37, s35, {4*P}
v_add_u32 v12, s37, v12
s_mov_b32 s47, 0x05040100
s_mov_b32 s48, 0x07060302''')
    for i in range(4):
        k(f's_waitcnt vmcnt({7-i})')
        for j in range(4):
            k(f'ds_write_b32 v10, v{16+4*i+j} offset:{j*P+64*i}')
    k.stamp()
    for i in range(2):
        k(f's_waitcnt vmcnt({2-2*i})')
        for j in range(4):
            k(f'v_perm_b32 v{48+2*j}, v{36+8*i+j}, v{32+8*i+j}, s47')
            k(f'v_perm_b32 v{49+2*j}, v{36+8*i+j}, v{32+8*i+j}, s48')
        for j in range(8):
            k(f'ds_write_b32 v11, v{48+j} offset:{W0+j*P+128*i}')
    k('s_waitcnt lgkmcnt(0)')
    k.stamp()
    k('s_barrier')
    k.stamp()
    for c in range(4):
        k(f'ds_read_b128 {vr(16+4*c,4)}, v12 offset:{c*P}')
    for c in range(4):
        k(f'ds_read_b128 {vr(32+4*c,4)}, v12 offset:{W0+c*P}')
    for c in range(4):
        k(f's_waitcnt lgkmcnt({7-c})')
        k(f'{MFMA} {vr(48+8*c,4)}, {vr(16+4*c,4)}, v[96:99], 0')
        k(f'{MFMA} {vr(52+8*c,4)}, {vr(16+4*c,4)}, v[100:103], 0')

    def pack(c, re, im):
        k(f'''v_cvt_pk_bf16_f32 v{16+4*c}, v{re}, v{re+1}
v_cvt_pk_bf16_f32 v{17+4*c}, v{re+2}, v{re+3}
v_cvt_pk_bf16_f32 v{18+4*c}, v{im}, v{im+1}
v_cvt_pk_bf16_f32 v{19+4*c}, v{im+2}, v{im+3}''')
    for c in range(4):
        cmul_planar(k, 48 + 8 * c, 52 + 8 * c, 104, 108, 80, 84, 88)
        pack(c, 80, 84)
        k(f'{MFMA} {vr(48+8*c,4)}, v[112:115], {vr(16+4*c,4)}, 0')
        k(f'{MFMA} {vr(52+8*c,4)}, v[116:119], {vr(16+4*c,4)}, 0')
    k('s_waitcnt lgkmcnt(0)')
    for c in range(4):
        for r in range(4):
            k(f'v_lshlrev_b32 v{128+r}, 16, v{32+4*c+r}\nv_and_b32 v{132+r}, 0xffff0000, v{32+4*c+r}')
        cmul_planar(k, 48 + 8 * c, 52 + 8 * c, 128, 132, 80, 84, 88)
        pack(c, 80, 84)
        k(f'{MFMA} {vr(48+8*c,4)}, {vr(16+4*c,4)}, v[120:123], 0')
        k(f'{MFMA} {vr(52+8*c,4)}, {vr(16+4*c,4)}, v[124:127], 0')
    for c in range(4):
        cmul_planar(k, 48 + 8 * c, 52 + 8 * c, 104, 108, 80, 84, 88, conj=True)
        pack(c, 80, 84)
        k(f'{MFMA} {vr(48+8*c,4)}, v[120:123], {vr(16+4*c,4)}, 0')
        k(f'{MFMA} {vr(52+8*c,4)}, v[124:127], {vr(16+4*c,4)}, 0')
    for c in range(4):
        for r in range(4):
            k(f'v_cvt_pk_bf16_f32 v{16+4*c+r}, v{48+8*c+r}, v{52+8*c+r}')
        k(f'ds_write_b128 v12, {vr(16+4*c,4)} offset:{c*P}')
    k('s_waitcnt lgkmcnt(0)')
    k.stamp()
    k('s_barrier')
    k.stamp()
    for i in range(4):
        for j in range(4):
            k(f'ds_read_b32 v{16+4*i+j}, v10 offset:{j*P+64*i}')
    for i in range(4):
        k(f's_waitcnt lgkmcnt({12-4*i})')
        k(f'buffer_store_dwordx4 {vr(16+4*i,4)}, v6, s[20:23], {so[i]} offen')
    k.finish(END)
    return k


def gen_k1b():
    P = 1040
    import gen3
    WQ = OPT.get('wq', 0)
    k = Kern('k1_kernel', 256 + [0, 0, 128, 256][WQ], 512, OPT.get('k1lds', 81920), nvgpr=128)
    END = k.label('end'); MAIN = k.label('main'); WROLE = k.label('wrole')
    k(f'''s_cmp_ge_u32 s2, 256
s_cbranch_scc1 {WROLE if WQ >= 2 else END}
s_load_dwordx2 s[40:41], s[0:1], 80
s_cmp_lt_u32 s2, 168
s_cbranch_scc1 {MAIN}''')
    k.stamp(True)
    if OPT.get('k1noprep'): k(f's_branch {END}')
    gen3.gen_prep(k, 168, END, 1, 5)
    k.nst = 0
    k(f'{MAIN}:')
    k.stamp(True)
    tab_srd(k, 12)
    k(f'''s_and_b32 s33, s2, 7
s_lshr_b32 s34, s2, 3
v_lshrrev_b32 v1, 6, v0
v_and_b32 v2, 63, v0
v_readfirstlane_b32 s35, v1
v_lshlrev_b32 v3, 4, v2
s_movk_i32 s38, 0x2000
s_movk_i32 s39, 0x3000
v_and_b32 v4, 15, v2
v_lshrrev_b32 v5, 4, v2''')
    LT = OPT.get('lt', 0); TB1 = 16 * P
    if LT:
        k(f'''s_lshl_b32 s39, s35, 10
s_add_u32 m0, s39, {TB1}
s_add_u32 s38, s38, s39
buffer_load_dwordx4 v3, s[12:15], s38 offen lds''')
    else:
        for i in range(4):
            k(f'buffer_load_dwordx4 {vr(96+4*i,4)}, v3, s[12:15], s38 offen offset:{i*1024}')
        k('buffer_load_dwordx4 v[112:115], v3, s[12:15], s39 offen offset:3072')
        k('buffer_load_dwordx4 v[116:119], v3, s[12:15], s39 offen offset:1024')
    IIM = 'v[112:115]'; IRE = 'v[114:117]'; FIM = 'v[116:119]'; FRE = 'v[118:121]'
    k(f'''v_mul_u32_u24 v6, {16*8*TP}, v4
v_lshl_add_u32 v6, v5, 4, v6
s_lshl_b32 s36, s35, 4
s_add_u32 s36, s36, s33
s_mul_i32 s36, s36, {TP}
s_lshl_b32 s37, s34, 6
s_add_u32 s36, s36, s37
s_add_u32 s42, s36, {8*TP}
s_mul_i32 s45, s33, 336
s_lshl_b32 s37, s34, 4
s_add_u32 s45, s45, s37
s_lshl_b32 s37, s35, 1
s_add_u32 s45, s45, s37
s_lshl_b32 s45, s45, 10
s_lshl_b32 s37, s34, 3
s_add_u32 s37, s37, s35
s_cmp_gt_u32 s37, 160
s_cselect_b32 s45, 0x7f000000, s45
s_waitcnt lgkmcnt(0)''')
    srd_from(k, 8, 40, 41, WS_T, TU_BYTES)
    srd_from(k, 4, 40, 41, WS_WF, WF_BYTES)
    srd_from(k, 20, 40, 41, WS_U, TU_BYTES)
    so = ['s36', 's42']
    for i in range(2):
        k(f'buffer_load_dwordx4 {vr(16+4*i,4)}, v6, s[8:11], {so[i]} offen')
    WP = OPT.get('k1wp', 0)
    def wld():
        for i in range(2):
            if OPT.get('k1now'): k(f'buffer_load_dwordx4 {vr(32+4*i,4)}, v3, s[12:15], 0 offen offset:{1024*i}')
            else: k(f'buffer_load_dwordx4 {vr(32+4*i,4)}, v3, s[4:7], s45 offen offset:{1024*i}')
    if WP == 0: wld()
    if WP == 2: k('s_barrier'); wld()
    k(f'''v_mul_u32_u24 v10, {4*P}, v5
v_lshl_add_u32 v10, v4, 2, v10
s_lshl_b32 s37, s35, 7
v_add_u32 v10, s37, v10
v_lshlrev_b32 v12, 6, v4
v_lshl_add_u32 v12, v5, 4, v12
s_mul_i32 s37, s35, {2*P}
v_add_u32 v12, s37, v12
''')
    if not LT:
        k(f'''s_waitcnt vmcnt({2 if WP == 1 else 4})
v_mov_b32 v120, v112
v_mov_b32 v121, v113''')
    for i in range(2):
        k(f's_waitcnt vmcnt({(1 if WP == 1 else 3)-i})')
        for j in range(4):
            k(f'ds_write_b32 v10, v{16+4*i+j} offset:{j*P+64*i}')
    if WP == 1: wld()
    k.stamp()
    k('s_waitcnt lgkmcnt(0)')
    k.stamp()
    k('s_barrier')
    k.stamp()
    NC = 2
    if LT:
        k(f'''ds_read_b128 v[96:99], v3 offset:{TB1}
ds_read_b128 v[16:19], v12
ds_read_b128 v[100:103], v3 offset:{TB1+1024}
ds_read_b128 v[20:23], v12 offset:{P}
ds_read_b128 v[104:107], v3 offset:{TB1+2048}
ds_read_b128 v[108:111], v3 offset:{TB1+3072}
ds_read_b128 v[118:121], v3 offset:{TB1+4096}
ds_read_b64 v[116:117], v3 offset:{TB1+5120}
ds_read_b128 v[112:115], v3 offset:{TB1+7168}
s_waitcnt lgkmcnt(7)
{MFMA} v[48:51], v[16:19], v[96:99], 0
s_waitcnt lgkmcnt(6)
{MFMA} v[52:55], v[16:19], v[100:103], 0
s_waitcnt lgkmcnt(5)
{MFMA} v[56:59], v[20:23], v[96:99], 0
{MFMA} v[60:63], v[20:23], v[100:103], 0
s_waitcnt lgkmcnt(0)''')
    else:
      for c in range(NC):
        k(f'ds_read_b128 {vr(16+4*c,4)}, v12 offset:{c*P}')
      for c in range(NC):
        k(f's_waitcnt lgkmcnt({NC-1-c})')
        k(f'{MFMA} {vr(48+8*c,4)}, {vr(16+4*c,4)}, v[96:99], 0')
        k(f'{MFMA} {vr(52+8*c,4)}, {vr(16+4*c,4)}, v[100:103], 0')
    def wun():
        k('s_waitcnt vmcnt(0)')
        for c in range(NC):
            for r in range(4):
                k(f'v_lshlrev_b32 v{64+8*c+r}, 16, v{32+4*c+r}\nv_and_b32 v{68+8*c+r}, 0xffff0000, v{32+4*c+r}')
    if not OPT.get('k1wl'): wun()

    def pack(c, re, im):
        k(f'''v_cvt_pk_bf16_f32 v{16+4*c}, v{re}, v{re+1}
v_cvt_pk_bf16_f32 v{17+4*c}, v{re+2}, v{re+3}
v_cvt_pk_bf16_f32 v{18+4*c}, v{im}, v{im+1}
v_cvt_pk_bf16_f32 v{19+4*c}, v{im+2}, v{im+3}''')
    for c in range(NC):
        cmul_planar(k, 48 + 8 * c, 52 + 8 * c, 104, 108, 80, 84, 88)
        pack(c, 80, 84)
        k(f'{MFMA} {vr(48+8*c,4)}, {FRE}, {vr(16+4*c,4)}, 0')
        k(f'{MFMA} {vr(52+8*c,4)}, {FIM}, {vr(16+4*c,4)}, 0')
    if OPT.get('k1wl'): wun()
    for c in range(NC):
        cmul_planar(k, 48 + 8 * c, 52 + 8 * c, 64 + 8 * c, 68 + 8 * c, 80, 84, 88)
        pack(c, 80, 84)
        k(f'{MFMA} {vr(48+8*c,4)}, {vr(16+4*c,4)}, {IRE}, 0')
        k(f'{MFMA} {vr(52+8*c,4)}, {vr(16+4*c,4)}, {IIM}, 0')
    for c in range(NC):
        cmul_planar(k, 48 + 8 * c, 52 + 8 * c, 104, 108, 80, 84, 88, conj=True)
        pack(c, 80, 84)
        k(f'{MFMA} {vr(48+8*c,4)}, {IRE}, {vr(16+4*c,4)}, 0')
        k(f'{MFMA} {vr(52+8*c,4)}, {IIM}, {vr(16+4*c,4)}, 0')
    for c in range(NC):
        for r in range(4):
            k(f'v_cvt_pk_bf16_f32 v{16+4*c+r}, v{48+8*c+r}, v{52+8*c+r}')
        k(f'ds_write_b128 v12, {vr(16+4*c,4)} offset:{c*P}')
    k('s_waitcnt lgkmcnt(0)')
    k.stamp()
    k('s_barrier')
    k.stamp()
    for i in range(2):
        for j in range(4):
            k(f'ds_read_b32 v{16+4*i+j}, v10 offset:{j*P+64*i}')
    for i in range(2):
        k(f's_waitcnt lgkmcnt({4-4*i})')
        k(f'buffer_store_dwordx4 {vr(16+4*i,4)}, v6, s[20:23], {so[i]} offen')
    k.finish(END)
    return k


def gen_k1c():
    P = 1040; W0 = 16 * P; TB1 = 32 * P
    import gen3
    WQ = OPT.get('wq', 0)
    k = Kern('k1_kernel', 256 + [0, 0, 128, 256][WQ], 512, OPT.get('k1lds', 81920), nvgpr=128)
    END = k.label('end'); MAIN = k.label('main'); WROLE = k.label('wrole')
    k(f'''s_cmp_ge_u32 s2, 256
s_cbranch_scc1 {WROLE if WQ >= 2 else END}
s_load_dwordx2 s[40:41], s[0:1], 80
s_cmp_lt_u32 s2, 168
s_cbranch_scc1 {MAIN}''')
    k.stamp(True)
    if OPT.get('k1noprep'): k(f's_branch {END}')
    if OPT.get('p8'):
        import gen8
        gen8.gen_prep8(k, 168, END)
    else: gen3.gen_prep(k, 168, END, 1, 5)
    k.nst = 0
    k(f'{MAIN}:\ns_load_dwordx4 s[4:7], s[0:1], 8')
    k.stamp(True)
    tab_srd(k, 12)
    k(f'''s_and_b32 s33, s2, 7
s_lshr_b32 s34, s2, 3
v_lshrrev_b32 v1, 6, v0
v_and_b32 v2, 63, v0
v_readfirstlane_b32 s35, v1
v_lshlrev_b32 v3, 4, v2
v_and_b32 v4, 15, v2
v_lshrrev_b32 v5, 4, v2
s_lshl_b32 s39, s35, 10
s_add_u32 m0, s39, {TB1}
s_add_u32 s38, s39, 0x2000
buffer_load_dwordx4 v3, s[12:15], s38 offen lds''')
    IIM = 'v[112:115]'; IRE = 'v[114:117]'; FIM = 'v[116:119]'; FRE = 'v[118:121]'
    k(f'''v_mul_u32_u24 v6, {16*8*TP}, v4
v_lshl_add_u32 v6, v5, 4, v6
s_lshl_b32 s36, s35, 4
s_add_u32 s36, s36, s33
s_mul_i32 s45, s36, 642
s_mul_i32 s36, s36, {TP}
s_lshl_b32 s37, s34, 6
s_add_u32 s36, s36, s37
s_add_u32 s42, s36, {8*TP}
s_lshl_b32 s37, s34, 5
s_add_u32 s45, s45, s37
s_and_b32 s45, s45, -4
v_and_b32 v7, 1, v5
v_lshrrev_b32 v8, 1, v5
v_lshl_add_u32 v9, v4, 4, v7
v_mul_u32_u24 v9, {8*642}, v9
v_lshl_add_u32 v9, v8, 4, v9
s_waitcnt lgkmcnt(0)''')
    srd_from(k, 8, 40, 41, WS_T, TU_BYTES)
    so = ['s36', 's42']
    if OPT.get('sh') == 2:
        k('s_and_b32 s37, s33, 1\ns_lshl_b32 s37, s37, 2\ns_sub_u32 s43, s36, s37\ns_sub_u32 s44, s42, s37')
    for i in range(2):
        k(f'buffer_load_dwordx4 {vr(16+4*i,4)}, v6, s[8:11], {so[i] if OPT.get("sh") != 2 else f"s{43+i}"} offen')
    k(f'''s_mov_b32 s16, s6
s_mov_b32 s17, s7
s_mov_b32 s6, {2048*642}
s_mov_b32 s7, 0x00020000
s_mov_b32 s18, {2048*642}
s_mov_b32 s19, 0x00020000''')
    srd_from(k, 20, 40, 41, WS_U, TU_BYTES)
    WP = OPT.get('k1wp', 2); SH = OPT.get('sh', 0)
    if WP == 2: k('s_barrier')
    def wld():
        k(f'''buffer_load_dwordx4 v[32:35], v9, s[4:7], s45 offen
buffer_load_dwordx4 v[38:41], v9, s[16:19], s45 offen''')
        if not SH: k(f'''s_bitcmp1_b32 s33, 0
s_cselect_b32 s46, s45, 0x7f000000
buffer_load_dword v36, v9, s[4:7], s46 offen offset:16
buffer_load_dword v42, v9, s[16:19], s46 offen offset:16''')
    if WP in (0, 2): wld()
    k(f'''v_mul_u32_u24 v10, {4*P}, v5
v_lshl_add_u32 v10, v4, 2, v10
s_lshl_b32 s37, s35, 7
v_add_u32 v10, s37, v10
v_mul_u32_u24 v11, {8*P}, v8
v_lshl_add_u32 v11, v7, 6, v11
v_lshl_add_u32 v11, v4, 2, v11
v_add_u32 v11, s37, v11
v_lshlrev_b32 v12, 6, v4
v_lshl_add_u32 v12, v5, 4, v12
s_mul_i32 s37, s35, {2*P}
v_add_u32 v12, s37, v12
s_mov_b32 s47, 0x05040100
s_mov_b32 s48, 0x07060302''')
    for i in range(2):
        k(f's_waitcnt vmcnt({((3 if SH else 5) if WP in (0, 2) else 1)-i})')
        for j in range(4):
            k(f'ds_write_b32 v10, v{16+4*i+j} offset:{j*P+64*i}')
    if WP == 1: wld()
    k.stamp()
    k('s_waitcnt lgkmcnt(0)\ns_barrier')
    if WP == 3: wld()
    k.stamp()
    NC = 2
    k(f'''ds_read_b128 v[96:99], v3 offset:{TB1}
ds_read_b128 v[16:19], v12
ds_read_b128 v[100:103], v3 offset:{TB1+1024}
ds_read_b128 v[20:23], v12 offset:{P}
ds_read_b128 v[104:107], v3 offset:{TB1+2048}
ds_read_b128 v[108:111], v3 offset:{TB1+3072}
ds_read_b128 v[118:121], v3 offset:{TB1+4096}
ds_read_b64 v[116:117], v3 offset:{TB1+5120}
ds_read_b128 v[112:115], v3 offset:{TB1+7168}
s_waitcnt lgkmcnt(7)
{MFMA} v[48:51], v[16:19], v[96:99], 0
s_waitcnt lgkmcnt(6)
{MFMA} v[52:55], v[16:19], v[100:103], 0
s_waitcnt lgkmcnt(5)
{MFMA} v[56:59], v[20:23], v[96:99], 0
{MFMA} v[60:63], v[20:23], v[100:103], 0
s_waitcnt lgkmcnt(0)''')

    def pack(c, re, im):
        k(f'''v_cvt_pk_bf16_f32 v{16+4*c}, v{re}, v{re+1}
v_cvt_pk_bf16_f32 v{17+4*c}, v{re+2}, v{re+3}
v_cvt_pk_bf16_f32 v{18+4*c}, v{im}, v{im+1}
v_cvt_pk_bf16_f32 v{19+4*c}, v{im+2}, v{im+3}''')
    for c in range(NC):
        cmul_planar(k, 48 + 8 * c, 52 + 8 * c, 104, 108, 80, 84, 88)
        pack(c, 80, 84)
        k(f'{MFMA} {vr(48+8*c,4)}, {FRE}, {vr(16+4*c,4)}, 0')
        k(f'{MFMA} {vr(52+8*c,4)}, {FIM}, {vr(16+4*c,4)}, 0')
    ODD = k.label('odd'); JN = k.label('jn')
    k(f's_bitcmp1_b32 s33, 0\ns_waitcnt vmcnt(0)')
    k.stamp()
    if not SH: k(f's_cbranch_scc1 {ODD}')
    for par in range(1 if SH else 2):
        for j in range(8):
            hj = j + par
            k(f'v_perm_b32 v{64+j}, v{38+hj//2}, v{32+hj//2}, s{47+(hj&1)}')
            k(f'ds_write_b32 v11, v{64+j} offset:{W0+j*P}')
        if par == 0 and not SH: k(f's_branch {JN}\n{ODD}:')
    k(f'{JN}:\ns_waitcnt lgkmcnt(0)\ns_barrier')
    k.stamp()
    for c in range(NC):
        k(f'ds_read_b128 {vr(32+4*c,4)}, v12 offset:{W0+c*P}')
    for c in range(NC):
        k(f's_waitcnt lgkmcnt({NC-1-c})')
        for r in range(4):
            k(f'v_lshlrev_b32 v{64+8*c+r}, 16, v{32+4*c+r}\nv_and_b32 v{68+8*c+r}, 0xffff0000, v{32+4*c+r}')
        cmul_planar(k, 48 + 8 * c, 52 + 8 * c, 64 + 8 * c, 68 + 8 * c, 80, 84, 88)
        pack(c, 80, 84)
        k(f'{MFMA} {vr(48+8*c,4)}, {vr(16+4*c,4)}, {IRE}, 0')
        k(f'{MFMA} {vr(52+8*c,4)}, {vr(16+4*c,4)}, {IIM}, 0')
    for c in range(NC):
        cmul_planar(k, 48 + 8 * c, 52 + 8 * c, 104, 108, 80, 84, 88, conj=True)
        pack(c, 80, 84)
        k(f'{MFMA} {vr(48+8*c,4)}, {IRE}, {vr(16+4*c,4)}, 0')
        k(f'{MFMA} {vr(52+8*c,4)}, {IIM}, {vr(16+4*c,4)}, 0')
    for c in range(NC):
        for r in range(4):
            k(f'v_cvt_pk_bf16_f32 v{16+4*c+r}, v{48+8*c+r}, v{52+8*c+r}')
        k(f'ds_write_b128 v12, {vr(16+4*c,4)} offset:{c*P}')
    k('s_waitcnt lgkmcnt(0)')
    k.stamp()
    k('s_barrier')
    k.stamp()
    for i in range(2):
        for j in range(4):
            k(f'ds_read_b32 v{16+4*i+j}, v10 offset:{j*P+64*i}')
    for i in range(2):
        k(f's_waitcnt lgkmcnt({4-4*i})')
        k(f'buffer_store_dwordx4 {vr(16+4*i,4)}, v6, s[20:23], {so[i]} offen')
    k.finish(END)
    if WQ >= 2:
        import gen9
        k(f'{WROLE}:')
        gen9.wq_role(k, 256, END, None if WQ == 3 else 1, ' nt' if OPT.get('wnt') else '', OPT.get('wsl1', 0))
    return k


def gen_k2a():
    RP = 144; NP = 11 * RP + 16
    LT = OPT.get('lt', 0); TB2 = 8 * NP
    k = Kern('k2a_kernel', 256, 512, 8 * NP + 16384 * LT, nvgpr=128)
    END = k.label('end'); SKIP = k.label('skip')
    k(f'''s_cmp_ge_u32 s2, 256
s_cbranch_scc1 {END}
s_load_dwordx2 s[4:5], s[0:1], 0
s_load_dwordx2 s[40:41], s[0:1], 80
s_load_dwordx2 s[68:69], s[0:1], 40''')
    k.stamp(True)
    tab_srd(k, 12)
    k(f'''s_and_b32 s3, s2, 7
s_lshl_b32 s3, s3, 5
s_lshr_b32 s33, s2, 3
s_add_u32 s3, s3, s33
s_lshl_b32 s33, s3, 6
s_add_u32 s33, s33, 32768
s_load_dwordx16 s[16:31], s[12:13], s33
v_lshrrev_b32 v1, 6, v0
v_and_b32 v2, 63, v0
v_readfirstlane_b32 s34, v1
v_lshlrev_b32 v3, 4, v2
s_movk_i32 s38, 0x4000
s_movk_i32 s39, 0x5000
s_movk_i32 s49, 0x6000''')
    if LT:
        k(f'''s_lshl_b32 s39, s34, 11
s_add_u32 m0, s39, {TB2}
s_add_u32 s38, s38, s39
s_cmp_lt_u32 s34, 5
s_cselect_b32 s38, s38, 0x7f000000
buffer_load_dwordx4 v3, s[12:15], s38 offen lds
buffer_load_dwordx4 v3, s[12:15], s38 offen offset:1024 lds''')
    k(f'''s_mul_i32 s46, s3, {8*TP}
s_add_u32 s47, s46, {3*TP}
s_add_u32 s48, s46, {6*TP}
v_lshlrev_b32 v60, 2, v0
s_lshl_b32 s35, s34, 8
s_add_u32 s35, s35, s3
s_mul_i32 s35, s35, 1280
v_and_b32 v50, 15, v2
v_lshrrev_b32 v51, 4, v2
v_lshlrev_b32 v52, 6, v50
v_lshl_add_u32 v52, v51, 4, v52
v_add_u32 v53, 1024, v52
v_mov_b32 v54, 0x7fffffff
v_cmp_gt_u32 vcc, 4, v50
v_cndmask_b32 v53, v54, v53, vcc
v_lshlrev_b32 v112, 11, v50
v_lshl_add_u32 v112, v51, 8, v112
v_add_u32 v113, 32768, v112
v_cndmask_b32 v113, v54, v113, vcc
s_lshl_b32 s59, s34, 3
s_lshr_b32 s60, s3, 5
s_add_u32 s59, s59, s60
s_mul_i32 s59, s59, 40960
s_and_b32 s60, s3, 4
s_lshl_b32 s60, s60, 8
s_add_u32 s59, s59, s60
s_and_b32 s60, s3, 24
s_lshl_b32 s60, s60, 3
s_add_u32 s59, s59, s60
s_and_b32 s60, s3, 3
s_lshl_b32 s60, s60, 4
s_add_u32 s59, s59, s60
s_waitcnt lgkmcnt(0)''')
    srd_from(k, 4, 4, 5, 0, X_BYTES)
    srd_from(k, 8, 40, 41, WS_U, TU_BYTES)
    srd_from(k, 52, 40, 41, WS_H, X_BYTES)
    srd_from(k, 60, 40, 41, WS_HN, X_BYTES)
    for k2 in range(8):
        k(f'buffer_load_dword v{4+k2}, v60, s[8:11], s{46+k2//3} offen offset:{(k2%3)*TP+4*(k2&1)*(OPT.get("sh",0)>0)}')
    for i in range(0 if LT else 10):
        so = ['s38', 's39', 's49'][i // 4]
        k(f'buffer_load_dwordx4 {vr(64+4*i,4)}, v3, s[12:15], {so} offen offset:{(i%4)*1024}')
    k(f'''buffer_load_dwordx4 v[104:107], v52, s[4:7], s35 offen
buffer_load_dwordx4 v[108:111], v53, s[4:7], s35 offen''')
    k(f'''v_mul_u32_u24 v55, 3277, v0
v_lshrrev_b32 v55, 16, v55
v_mul_u32_u24 v56, 20, v55
v_sub_u32 v56, v0, v56
v_mul_u32_u24 v57, {RP}, v56
v_lshl_add_u32 v57, v55, 2, v57
v_mov_b32 v58, {11*RP}
v_cmp_ge_u32 vcc, 10, v56
v_cndmask_b32 v57, v58, v57, vcc
v_sub_u32 v59, 20, v56
v_mul_u32_u24 v59, {RP}, v59
v_sub_u32 v61, 31, v55
v_lshl_add_u32 v59, v61, 2, v59
v_cmp_le_u32 vcc, 10, v56
v_cndmask_b32 v59, v58, v59, vcc
v_sub_u32 v61, 32, v55
v_lshlrev_b32 v61, 2, v61
v_cmp_eq_u32 vcc, 0, v56
v_cndmask_b32 v59, v59, v61, vcc
v_cmp_eq_u32 vcc, 0, v0
v_cndmask_b32 v59, v59, v58, vcc
v_cmp_eq_u32 vcc, 320, v0
v_cndmask_b32 v59, v59, v58, vcc
v_mov_b32 v40, 0x3f3504f3
v_min_u32 v62, 10, v50
v_mul_u32_u24 v62, {RP}, v62
v_lshl_add_u32 v62, v51, 4, v62
s_mul_i32 s42, s34, {NP}
v_add_u32 v62, s42, v62
v_and_b32 v63, 1, v2
v_lshlrev_b32 v63, 31, v63
v_or_b32 v63, 1.0, v63
''')
    if LT:
        k('s_waitcnt vmcnt(10)\ns_barrier')
        for i in range(10): k(f'ds_read_b128 {vr(64+4*i,4)}, v3 offset:{TB2+1024*i}')
    k(f'''v_cmp_gt_u32 vcc, 321, v0
s_and_saveexec_b64 s[44:45], vcc
s_waitcnt vmcnt({2 if LT else 12})''')
    k.stamp()
    k(f'''s_cbranch_execz {SKIP}''')
    for k2 in range(8):
        k(f'v_lshlrev_b32 v{20+2*k2}, 16, v{4+k2}\nv_and_b32 v{21+2*k2}, 0xffff0000, v{4+k2}')
    for k2 in range(8):
        if k2 == 0:
            k('v_mov_b32 v4, v20\nv_mov_b32 v5, v21')
        else:
            smul(k, 4 + 2 * k2, 20 + 2 * k2, 16 + 2 * k2, 42 + 2 * (k2 & 1), conj=True)
    T = fft8(k, 4, 20, True, 40)
    for n in range(8):
        k(f'''v_cvt_pk_bf16_f32 v{4+2*n}, v{T[n]}, v{T[n]+1}
v_cvt_pk_bf16_f32 v{5+2*n}, v{T[n]}, -v{T[n]+1}
ds_write_b32 v57, v{4+2*n} offset:{n*NP}
ds_write_b32 v59, v{5+2*n} offset:{n*NP}''')
    k(f'''{SKIP}:
s_mov_b64 exec, -1
s_waitcnt lgkmcnt(0)''')
    k.stamp()
    k(f'''s_barrier''')
    k.stamp()
    k(f'''ds_read_b128 v[4:7], v62
ds_read_b128 v[8:11], v62 offset:64''')
    npf = 0
    if OPT.get('pf2a'):
        npf = 1
        k(f'''s_and_b32 s72, s2, 6
s_lshl_b32 s72, s72, 4
s_lshr_b32 s73, s2, 3
s_add_u32 s72, s72, s73
s_lshl_b32 s72, s72, 3
s_add_u32 s72, s72, s34
s_lshl_b32 s72, s72, 13
s_mov_b32 s70, {2048*4096}
s_mov_b32 s71, 0x00020000
v_lshlrev_b32 v114, 7, v2
buffer_load_ubyte v115, v114, s[68:71], s72 offen''')
    k(f'''s_waitcnt vmcnt({2+npf}) lgkmcnt(1)''')
    for u in range(2):
        if u == 1: k('s_waitcnt lgkmcnt(0)')
        for t in range(2):
            k(f'{MFMA} {vr(12+16*u+8*t,4)}, {vr(4+4*u,4)}, {vr(64+8*t,4)}, 0')
            k(f'{MFMA} {vr(16+16*u+8*t,4)}, {vr(4+4*u,4)}, {vr(68+8*t,4)}, 0')
    for i in range(0, 16, 2):
        k(f'v_pk_fma_f32 {vr(12+i,2)}, {vr(28+i,2)}, v[62:63], {vr(12+i,2)} op_sel:[0,1,0] op_sel_hi:[1,1,1]')
    for t in range(2):
        cmul_planar(k, 12 + 8 * t, 16 + 8 * t, 80 + 8 * t, 84 + 8 * t, 28, 32, 36)
        k(f'''v_cvt_pk_bf16_f32 v{4+4*t}, v28, v29
v_cvt_pk_bf16_f32 v{5+4*t}, v30, v31
v_cvt_pk_bf16_f32 v{6+4*t}, v32, v33
v_cvt_pk_bf16_f32 v{7+4*t}, v34, v35''')
    for v in range(2):
        for t in range(2):
            k(f'{MFMA} {vr(12+8*v+4*t,4)}, {vr(4+4*t,4)}, {vr(96+4*v,4)}, 0')
    k.stamp()
    k(f's_waitcnt vmcnt({npf})')
    k.stamp()
    for i in range(8):
        k(f'v_lshlrev_b32 v{28+2*i}, 16, v{104+i}\nv_and_b32 v{29+2*i}, 0xffff0000, v{104+i}')
    for i in range(8):
        k(f'v_cvt_pk_bf16_f32 v{4+i}, v{12+2*i}, v{13+2*i}')
    for i in range(8):
        k(f'v_lshlrev_b32 v{12+2*i}, 16, v{4+i}\nv_and_b32 v{13+2*i}, 0xffff0000, v{4+i}')
    for i in range(8):
        k(f'v_pk_add_f32 {vr(12+2*i,2)}, {vr(12+2*i,2)}, {vr(28+2*i,2)}')
    for i in range(8):
        k(f'v_cvt_pk_bf16_f32 v{4+i}, v{12+2*i}, v{13+2*i}')
    k('''buffer_store_dwordx4 v[4:7], v52, s[52:55], s35 offen
buffer_store_dwordx4 v[8:11], v53, s[52:55], s35 offen''')
    for i in range(8):
        k(f'v_lshlrev_b32 v{12+2*i}, 16, v{4+i}\nv_and_b32 v{13+2*i}, 0xffff0000, v{4+i}')
    k('''v_pk_add_f32 v[28:29], v[12:13], v[14:15]
v_pk_mul_f32 v[30:31], v[12:13], v[12:13]
v_pk_add_f32 v[32:33], v[16:17], v[18:19]
v_pk_mul_f32 v[34:35], v[14:15], v[14:15]''')
    for i in range(2, 8):
        k(f'v_pk_fma_f32 {vr(30+4*(i&1),2)}, {vr(12+2*i,2)}, {vr(12+2*i,2)}, {vr(30+4*(i&1),2)}')
        if i >= 4:
            k(f'v_pk_add_f32 {vr(28+4*(i&1),2)}, {vr(28+4*(i&1),2)}, {vr(12+2*i,2)}')
    k('''v_pk_add_f32 v[28:29], v[28:29], v[32:33]
v_pk_add_f32 v[30:31], v[30:31], v[34:35]
v_add_f32 v28, v28, v29
v_add_f32 v30, v30, v31''')
    wave_reduce2(k, 28, 30, 36, 37)
    ln_stats(k, 36, 37, 640, 28, 30, 32)
    ln_apply(k, 12, 16, 28, 30, 40)
    k(f'''buffer_store_dwordx4 v[40:43], v112, s[60:63], s59 offen
buffer_store_dwordx4 v[44:47], v113, s[60:63], s59 offen''')
    k.finish(END)
    return k
```

```python
import re
import numpy as np

REG_RE = re.compile(r'\b([vas])(\d+)\b|\b([vas])\[(\d+):(\d+)\]|\b(vcc_lo|vcc_hi|vcc|exec_lo|exec_hi|exec|m0|scc)\b')

TRANS = ('v_exp_', 'v_log_', 'v_rcp_', 'v_rsq_', 'v_sqrt_', 'v_sin_', 'v_cos_')


def regs_of(tok):
    out = set()
    for m in REG_RE.finditer(tok):
        if m.group(1):
            out.add((m.group(1), int(m.group(2))))
        elif m.group(3):
            for i in range(int(m.group(4)), int(m.group(5)) + 1):
                out.add((m.group(3), i))
        else:
            n = m.group(6)
            if n == 'vcc':
                out.add(('x', 'vcc_lo')); out.add(('x', 'vcc_hi'))
            elif n == 'exec':
                out.add(('x', 'exec_lo')); out.add(('x', 'exec_hi'))
            else:
                out.add(('x', n))
    return out


def split_ops(s):
    ops = []; depth = 0; cur = ''
    for ch in s:
        if ch == '[': depth += 1
        if ch == ']': depth -= 1
        if ch == ',' and depth == 0:
            ops.append(cur.strip()); cur = ''
        else:
            cur += ch
    if cur.strip(): ops.append(cur.strip())
    return ops


class Ins:
    __slots__ = ('text', 'mn', 'kind', 'w', 'r', 'srcc', 'srcab', 'passes', 'dpp', 'trans', 'wide', 'nop', 'label',
                 'target', 'ldsdma', 'opsel', 'dot', 'dtok', 'ctok', 'lanesel')

    def __init__(self, text):
        self.text = text
        t = text.split(';')[0].strip()
        self.label = None; self.target = None; self.nop = 0
        self.w = set(); self.r = set(); self.srcc = set(); self.srcab = set()
        self.passes = 0; self.dpp = False; self.trans = False; self.wide = False; self.ldsdma = False
        self.opsel = False; self.dot = False; self.dtok = None; self.ctok = None; self.lanesel = set()
        if t.endswith(':'):
            self.kind = 'label'; self.label = t[:-1]; self.mn = ''
            return
        if t == '' or t.startswith('.'):
            self.kind = 'dir'; self.mn = ''
            return
        parts = t.split(None, 1)
        mn = parts[0]; self.mn = mn
        rest = parts[1] if len(parts) > 1 else ''
        ops = split_ops(rest)
        mods = ''
        if ops:
            last = ops[-1].split(None, 1)
            if len(last) > 1:
                ops[-1] = last[0]; mods = last[1]
        R = [regs_of(o) for o in ops]
        allr = set().union(*R) if R else set()
        if mn == 's_nop':
            self.kind = 'nop'; self.nop = int(ops[0], 0) + 1
        elif mn.startswith('s_cbranch') or mn == 's_branch':
            self.kind = 'branch'; self.target = ops[0]
        elif mn.startswith('v_mfma'):
            self.kind = 'mfma'
            self.w = R[0]; self.srcab = R[1] | R[2]; self.srcc = R[3]; self.r = self.srcab | self.srcc
            self.dtok = ops[0]; self.ctok = ops[3]
            self.passes = 8 if '32x32' in mn else 4
        elif mn.startswith('v_'):
            self.kind = 'valu'
            nd = 1
            if '_co_' in mn or mn.startswith('v_div_scale'): nd = 2
            if mn.startswith('v_permlane') and 'swap' in mn:
                self.w = R[0] | R[1]; self.r = R[0] | R[1]
            else:
                self.w = set().union(*R[:nd]); self.r = set().union(*R[nd:]) if len(R) > nd else set()
            if mn.startswith('v_cmpx'):
                self.w |= {('x', 'exec_lo'), ('x', 'exec_hi')}
            if mn.startswith(('v_fmac', 'v_mac', 'v_dot2c', 'v_writelane', 'v_pk_fmac')) or 'dpp' in mn or any(k in mods for k in ('row_', 'quad_perm', 'wave_')):
                self.r |= R[0]
            if mn.startswith('v_cndmask') and len(ops) == 3:
                self.r |= {('x', 'vcc_lo'), ('x', 'vcc_hi')}
            if mn.startswith(('v_addc', 'v_subb')) and len(ops) <= 4:
                self.r |= {('x', 'vcc_lo'), ('x', 'vcc_hi')}
            self.dpp = any(k in mods for k in ('row_', 'quad_perm', 'wave_'))
            self.trans = mn.startswith(TRANS)
            self.dot = mn.startswith('v_dot')
            self.opsel = ('sdwa' in mn) or ('dst_sel' in mods) or (('op_sel' in mods) and not mn.startswith('v_pk_'))
            if mn.startswith(('v_readlane', 'v_writelane')):
                self.lanesel = R[2]
        elif mn.startswith(('buffer_', 'global_', 'flat_')):
            self.kind = 'vmem'
            is_lds = (' lds' in (' ' + mods)) or ('_lds_' in mn)
            self.ldsdma = is_lds
            if ('load' in mn) and not is_lds:
                self.w = R[0]; self.r = set().union(*R[1:])
            elif 'atomic' in mn and 'sc0' in mods:
                self.w = R[0]; self.r = allr
            else:
                self.r = allr
            if is_lds: self.r |= {('x', 'm0')}
            self.wide = ('store' in mn) and ('x3' in mn or 'x4' in mn)
            if self.wide:
                self.srcc = R[0] if mn.startswith('buffer_') else R[1]
        elif mn.startswith('ds_'):
            self.kind = 'ds'
            if mn.startswith(('ds_read', 'ds_bpermute', 'ds_permute', 'ds_swizzle')) or '_rtn' in mn:
                self.w = R[0]; self.r = set().union(*R[1:])
            else:
                self.r = allr
        elif mn.startswith('s_'):
            self.kind = 'salu'
            if mn.startswith(('s_cmp', 's_waitcnt', 's_barrier', 's_endpgm', 's_setprio', 's_sleep', 's_bitcmp')):
                self.r = allr
            else:
                self.w = R[0] if R else set(); self.r = set().union(*R[1:]) if len(R) > 1 else set()
                if 'saveexec' in mn:
                    self.w |= {('x', 'exec_lo'), ('x', 'exec_hi')}
        else:
            raise ValueError('unknown instr ' + text)


EXEC = {('x', 'exec_lo'), ('x', 'exec_hi')}


def is_sg(r):
    return r[0] in ('s', 'x')


def need(p, c):
    n = 0
    if p.kind == 'valu':
        vw = {r for r in p.w if r[0] in 'va'}
        sw = {r for r in p.w if is_sg(r)}
        if c.kind == 'mfma' and (vw & c.r): n = max(n, 2)
        if c.kind == 'valu':
            if c.dpp and (vw & c.r): n = max(n, 2)
            if c.mn.startswith(('v_readlane', 'v_readfirstlane')) and (vw & c.r): n = max(n, 1)
            if c.mn.startswith('v_permlane') and (vw & c.r): n = max(n, 2)
            if sw & c.r: n = max(n, 2)
            if sw & c.lanesel: n = max(n, 4)
            if p.opsel and (vw & (c.r | c.w)): n = max(n, 1)
            if (sw & EXEC):
                if c.dpp: n = max(n, 5)
                if c.mn.startswith(('v_readlane', 'v_readfirstlane', 'v_writelane', 'v_permlane')): n = max(n, 4)
        if p.trans and (vw & c.r) and not (c.kind == 'valu' and c.trans): n = max(n, 1)
        if p.dot and (vw & (c.r | c.w)):
            n = max(n, 3)
        if c.kind == 'vmem' and (sw & c.r): n = max(n, 5)
        if c.kind == 'mfma' and (sw & EXEC): n = max(n, 4)
    if p.kind == 'mfma':
        P = p.passes
        if c.kind == 'mfma':
            if p.w & c.srcab: n = max(n, 8 if P == 4 else 12)
            if p.w & c.srcc:
                if not (c.ctok == p.dtok and c.passes == P and c.mn == p.mn): n = max(n, 6 if P == 4 else 10)
            elif p.w & c.w:
                n = max(n, 8 if P == 4 else 12)
        elif c.kind in ('valu', 'vmem', 'ds'):
            if p.w & (c.r | c.w): n = max(n, 8 if P == 4 else 12)
            if c.kind == 'valu' and (p.srcc & c.w): n = max(n, 3 if P == 4 else 7)
    if p.kind == 'vmem' and p.wide:
        if p.srcc & c.w: n = max(n, 2)
    if p.kind == 'salu' and ('x', 'm0') in p.w and c.kind == 'vmem' and c.ldsdma: n = max(n, 1)
    return n


def slots(i):
    if i.kind in ('label', 'dir'): return 0
    if i.kind == 'nop': return i.nop
    return 1


def required(hist, c):
    if c.kind in ('label', 'dir', 'nop'): return 0
    d = 0; worst = 0
    for p in reversed(hist):
        if d >= 20: break
        if p.kind not in ('label', 'dir', 'nop'):
            worst = max(worst, need(p, c) - d)
        d += slots(p)
    return worst


def fix_hazards(lines):
    ins = [Ins(l) for l in lines]
    changed = True
    it = 0
    while changed:
        changed = False; it += 1
        assert it < 50
        out = []
        for c in ins:
            n = required(out[-40:], c)
            if n > 0:
                out.append(Ins(f's_nop {n-1}')); changed = True
            out.append(c)
        ins = out
        labels = {i.label: k for k, i in enumerate(ins) if i.kind == 'label'}
        for k, b in enumerate(ins):
            if b.kind == 'branch' and b.target in labels:
                hist = ins[max(0, k - 40):k + 1]
                j = labels[b.target] + 1
                seen = []
                cnt = 0
                while j < len(ins) and cnt < 24:
                    c = ins[j]
                    n = required(hist + seen, c)
                    if n > 0:
                        ins.insert(j, Ins(f's_nop {n-1}')); changed = True
                        break
                    seen.append(c); cnt += slots(c); j += 1
                if changed: break
    return [i.text for i in ins]


def fix_pk(l):
    m = re.match(r'(v_pk_(?:add|mul|fma)_f32) (.*)', l)
    if not m or 'op_sel:' not in l: return l
    ops = split_ops(m.group(2))
    last = ops[-1].split(None, 1); ops[-1] = last[0]; mods = last[1]
    md = {a: [int(x) for x in b.split(',')] for a, b in re.findall(r'(\w+):\[([\d,]+)\]', mods)}
    n = len(ops) - 1
    md.setdefault('op_sel_hi', [1] * n)
    o = md['op_sel']
    if o[0] == 0 and o[1] == 1 and ops[2].startswith('v') and ops[2] != ops[1]:
        ops[1], ops[2] = ops[2], ops[1]
        for v in md.values(): v[0], v[1] = v[1], v[0]
        l = m.group(1) + ' ' + ', '.join(ops) + ' ' + ' '.join(f'{a}:[{",".join(map(str, md[a]))}]' for a in ('op_sel', 'op_sel_hi', 'neg_lo', 'neg_hi') if a in md)
        o = md['op_sel']
    if n == 3 and o[0] == 0 and o[2] == 1 and ops[3] == ops[2] and ops[2] != ops[1]:
        raise ValueError('unsafe packed form ' + l)
    return l


class Kern:
    def __init__(self, name, grid, block, lds, nvgpr=128, nagpr=0, nsgpr=96):
        self.name = name; self.grid = grid; self.block = block; self.lds = lds
        self.nvgpr = nvgpr; self.nagpr = nagpr; self.nsgpr = nsgpr
        self.lines = []
        self._lab = 0
        self.nst = 0
        self.kidx = Kern.count; Kern.count += 1

    prof = False
    count = 0
    fixpk = True

    def stamp(self, first=False):
        if not Kern.prof: return
        if first:
            self('v_lshrrev_b32 v1, 6, v0\nv_readfirstlane_b32 s83, v1\ns_memtime s[76:77]')
        assert self.nst < 12
        self(f's_memrealtime s[96:97]\ns_waitcnt lgkmcnt(0)\ns_mov_b32 s{84+self.nst}, s96')
        self.nst += 1

    def finish(self, END):
        if Kern.prof:
            self.nsgpr = 102
            seen = False
            for i, l in enumerate(self.lines):
                if l.startswith('s_cbranch') or l.startswith('s_branch'):
                    if l.split()[-1] == END:
                        if not self.lines[i-1].startswith('s_cmp_ge_u32 s2,'): self.lines[i] = l + '_d'
            self(f'{END}_d:')
            self.nst = 10
            self.stamp()
            self('s_waitcnt vmcnt(0)\n' + ('' if getattr(self, 'clkm', 0) else 's_memtime s[78:79]'))
            self.stamp()
            self(f'''s_load_dwordx2 s[96:97], s[0:1], 80
s_lshl_b32 s98, s2, 4
s_add_u32 s98, s98, s83
s_lshl_b32 s98, s98, 6
s_add_u32 s98, s98, {0x8000000 + self.kidx * 0x100000}
s_mov_b64 exec, 1
s_waitcnt lgkmcnt(0) vmcnt(0)
s_add_u32 s96, s96, s98
s_addc_u32 s97, s97, 0
s_mov_b32 s98, 64
s_mov_b32 s99, 0x00020000
v_mov_b32 v0, 0''')
            for i in range(12): self(f'v_mov_b32 v{4+i}, s{84+i}')
            self('v_mov_b32 v16, s76\nv_mov_b32 v17, s78\nv_mov_b32 v18, 0\nv_mov_b32 v19, 0')
            for i in range(4): self(f'buffer_store_dwordx4 v[{4+4*i}:{7+4*i}], v0, s[96:99], 0 offen offset:{16*i}')
        self(f'{END}:\ns_endpgm')

    def __call__(self, text):
        for l in text.strip('\n').split('\n'):
            l = l.strip()
            if l: self.lines.append(l)

    def label(self, base='L'):
        self._lab += 1
        return f'{self.name}_{base}{self._lab}'

    def text(self):
        body = fix_hazards([fix_pk(l) for l in self.lines] if Kern.fixpk else self.lines)
        s = f'.globl {self.name}\n.p2align 8\n.type {self.name},@function\n{self.name}:\n'
        for l in body:
            s += (l if l.endswith(':') else '  ' + l) + '\n'
        return s

    def desc(self):
        acc = (self.nvgpr + 3) // 4 * 4
        tot = acc + self.nagpr
        return f""".p2align 6
.amdhsa_kernel {self.name}
  .amdhsa_next_free_vgpr {tot}
  .amdhsa_next_free_sgpr {self.nsgpr}
  .amdhsa_accum_offset {acc}
  .amdhsa_group_segment_fixed_size 0
  .amdhsa_kernarg_size 88
  .amdhsa_user_sgpr_count 2
  .amdhsa_user_sgpr_kernarg_segment_ptr 1
  .amdhsa_system_sgpr_workgroup_id_x 1
.end_amdhsa_kernel
"""


def table_text(name, u32):
    u32 = np.ascontiguousarray(u32).view(np.uint32).ravel()
    s = f'.p2align 8\n.type {name},@object\n{name}:\n'
    for i in range(0, len(u32), 8):
        s += '.long ' + ','.join('0x%x' % v if v else '0' for v in u32[i:i + 8]) + '\n'
    return s


def build_file(kerns, tables, header=''):
    s = header
    for k in kerns:
        s += f'; @launch kernel={k.name} grid=({k.grid},1,1) block=({k.block},1,1) lds={k.lds}\n'
    s += '.amdgcn_target "amdgcn-amd-amdhsa--gfx950"\n.text\n'
    for k in kerns:
        s += k.text()
    s += 'code_end:\n'
    s += '.section .rodata,"a"\n'
    for k in kerns:
        s += k.desc()
    for n, t in tables.items():
        s += table_text(n, t)
    return s
```

```python
from asmlib import *
import gen_fft
from gen_fft import vr, sr, srd_from, tab_srd, MFMA, WS_H, WS_HN, WS_U, WS_T, X_BYTES, TU_BYTES, TP, fft8, smul, cmul_planar, wave_reduce2, ln_stats, ln_apply
from gen3 import *

WS_FL = 0x1800000
FL_BYTES = 0x40000
FLH = 0; FL2 = 0x8000; FL3 = 0x10000; FLU = 0x18000
FS = 7
WS_PX = 0x1840000
PX_BYTES = 64 * 16 * 256
WS_WS = 0x2000000
WSP_BYTES = 8 << 20
Z2N_BYTES = 64 * 57344
A2_BYTES = 4 << 20
SPIN = 400000
PV = 0
ROT = 0
W128 = 0
G1S = 0
GV = 0
HP = 10368
HN_BYTES = 256 * HP
MF16 = 'v_mfma_f32_16x16x16_bf16'
BIG = '0x7f000000'


def st(k, view, slot):
    if Kern.prof and PV == view:
        k.nst = slot; k.stamp()


def poll(k, srd, soff, va, vd, sc):
    LP = k.label('lp'); LD = k.label('ld')
    k(f'''s_mov_b32 s{sc}, {SPIN}
{LP}:
buffer_load_dword v{vd}, v{va}, {sr(srd,4)}, {soff} offen sc1
s_waitcnt vmcnt(0)
v_cmp_eq_u32 vcc, 0, v{vd}
s_cbranch_vccz {LD}
s_sub_u32 s{sc}, s{sc}, 1
s_cmp_lg_u32 s{sc}, 0
s_cbranch_scc1 {LP}
{LD}:''')


def map_g2(k):
    if gen_fft.OPT.get('g2m'):
        k('''s_and_b32 s35, s2, 7
s_lshl_b32 s35, s35, 2
s_bfe_u32 s36, s2, 0x20003
s_add_u32 s35, s35, s36
s_lshr_b32 s36, s2, 5''')
        return
    k('''s_and_b32 s33, s2, 7
s_lshr_b32 s42, s2, 3
s_lshr_b32 s35, s33, 1
s_lshl_b32 s35, s35, 3
s_and_b32 s36, s42, 7
s_add_u32 s35, s35, s36
s_and_b32 s36, s33, 1
s_lshl_b32 s36, s36, 2
s_lshr_b32 s42, s42, 3
s_add_u32 s36, s36, s42''')


def g1id(k, d, t):
    m = gen_fft.OPT.get('g1m', 0)
    k(f'''s_bfe_u32 s{d}, s2, {hex(((3-m) << 16) | m)}
s_lshl_b32 s{d}, s{d}, {1+m}
s_lshr_b32 s{t}, s2, {7-m}
s_add_u32 s{d}, s{d}, s{t}
s_lshl_b32 s{d}, s{d}, {m}
s_and_b32 s{t}, s2, {(1 << m) - 1}
s_add_u32 s{d}, s{d}, s{t}
s_lshl_b32 s{d}, s{d}, {4-m}
s_bfe_u32 s{t}, s2, {hex(((4-m) << 16) | 3)}
s_add_u32 s{d}, s{d}, s{t}''')


def w_setup(k, t0, t1):
    G2M = gen_fft.OPT.get('g2m', 0)
    k(f'''s_mov_b32 s74, {2048*4096}
s_mov_b32 s75, 0x00020000
s_bfe_u32 s{t0}, s2, {"0x30000" if G2M else "0x20001"}
s_lshl_b32 s{t0}, s{t0}, {2 if G2M else 3}
s_bfe_u32 s{t1}, s2, {"0x20003" if G2M else "0x30003"}
s_add_u32 s{t0}, s{t0}, s{t1}
s_lshl_b32 s50, s{t0}, 15
s_lshr_b32 s{t0}, s34, 2
s_lshl_b32 s{t0}, s{t0}, 11
s_and_b32 s{t1}, s34, 3
s_lshl_b32 s{t1}, s{t1}, 7
s_add_u32 s50, s50, s{t0}
s_add_u32 s50, s50, s{t1}
s_add_u32 s51, s50, 16384''')
    if ROT:
        k(f'''s_bfe_u32 s{t0}, s2, 0x10006
s_lshl_b32 s{t0}, s{t0}, {21 if G1S else 14}
s_add_u32 s50, s50, s{t0}
s_bfe_u32 s{t0}, s2, 0x10007
s_lshl_b32 s{t0}, s{t0}, 22
s_add_u32 s50, s50, s{t0}
s_mov_b32 s51, s50''')
    if W128: k(f's_mov_b32 s82, s50\ns_add_u32 s51, s50, {0x100000 if G1S else 4096}')


def w_vaddr(k, d, t):
    if W128:
        k(f'''v_and_b32 v{d}, 112, v3
v_bfe_u32 v{t}, v3, 7, 1
v_lshl_add_u32 v{d}, v{t}, {14 if G1S else 13}, v{d}
v_lshrrev_b32 v{t}, 8, v3
v_lshl_add_u32 v{d}, v{t}, 9, v{d}''')
        return
    k(f'''v_and_b32 v{d}, 48, v3
v_bfe_u32 v{t}, v3, 6, 2
v_lshl_add_u32 v{d}, v{t}, 12, v{d}
v_lshrrev_b32 v{t}, 8, v3
v_lshl_add_u32 v{d}, v{t}, 9, v{d}''')


def g2_wops(fl=''):
    ops = []
    if W128:
        for g in range(4):
            for n in range(4):
                for ih in range(2):
                    o = f'buffer_load_dwordx4 {ar(16*(4*ih+n)+4*g,4)}, @, s[72:75], s{50+ih} offen{fl}'
                    sn, si, su = (4096, 0x100000, 2 << 20) if G1S else (0x100000, 4096, 16384)
                    if ih and n < 3: o += f'\ns_add_u32 s50, s50, {sn}\ns_add_u32 s51, s51, {sn}'
                    if ih and n == 3 and g < 3: o += f'\ns_xor_b32 s50, s82, {((g+1)&1)*su + ((g+1)>>1)*(4<<20)}\ns_add_u32 s51, s50, {si}'
                    ops.append(o)
        return ops
    if ROT:
        for g in range(4):
            for n in range(4):
                for hi in range(2):
                    o = f'buffer_load_dwordx4 {ar(16*(4*hi+n)+4*g,4)}, @, s[72:75], s50 offen offset:{64*hi}{fl}'
                    if hi and n < 3: o += '\ns_add_u32 s50, s50, 0x100000'
                    if hi and n == 3 and g < 3: o += f'\ns_xor_b32 s50, s51, {((g+1)&1)*16384 + ((g+1)>>1)*(4<<20)}'
                    ops.append(o)
        return ops
    for n2 in range(8):
        for u in range(2):
            for hi in range(2):
                o = f'buffer_load_dwordx4 {ar(16*(4*hi+(n2&3))+4*(2*(n2>>2)+u),4)}, @, s[72:75], s{50+u} offen offset:{64*hi}{fl}'
                if u and hi and n2 < 7: o += '\ns_add_u32 s50, s50, 0x100000\ns_add_u32 s51, s51, 0x100000'
                ops.append(o)
    return ops


def w_trans(k, vw, vrd, groups=None, ts=42):
    PT = 520
    if (groups is not None and not groups) or gen_fft.OPT.get('nowt'): return
    if W128:
        k(f'''s_and_b32 s{ts}, s34, 3
s_mul_i32 s{ts}, s{ts}, 4160
v_lshrrev_b32 v{vw}, 1, v3
v_add_u32 v{vw}, s{ts}, v{vw}
v_bfe_u32 v{vrd}, v3, 4, 3
v_mul_u32_u24 v{vrd}, {PT-8}, v{vrd}
v_add_u32 v{vrd}, v{vw}, v{vrd}''')
        for tt in range(4):
            if groups is not None and tt not in groups: continue
            for h in range(2):
                R = lambda i: ar(16 * i + 4 * tt + 2 * h, 2)
                for i in range(8): k(f'ds_write_b64 v{vw}, {R(i)} offset:{PT*i}')
                for c in range(8): k(f'ds_read_b64 {R(c)}, v{vrd} offset:{8*c}')
        return
    k(f'''s_mul_i32 s{ts}, s34, 2560
v_lshrrev_b32 v{vw}, 1, v3
v_add_u32 v{vw}, s{ts}, v{vw}
v_bfe_u32 v{vrd}, v3, 4, 2
v_mul_u32_u24 v{vrd}, {PT-8}, v{vrd}
v_add_u32 v{vrd}, v{vw}, v{vrd}''')
    for tt in range(4):
        for hi in range(2):
            if groups is not None and tt not in groups: continue
            for h in range(2):
                R = lambda i: ar(16 * (4 * hi + i) + 4 * tt + 2 * h, 2)
                for i in range(4): k(f'ds_write_b64 v{vw}, {R(i)} offset:{PT*i}')
                for c in range(4): k(f'ds_read_b64 {R(c)}, v{vrd} offset:{8*c}')


def unpk(l):
    m = re.match(r'v_pk_(add|mul)_f32 v\[(\d+):\d+\], v\[(\d+):\d+\], v\[(\d+):\d+\](.*)', l)
    if not m: return [l]
    op, d, a, b, mod = m.group(1), int(m.group(2)), int(m.group(3)), int(m.group(4)), m.group(5).strip()
    if mod == '': return [f'v_{op}_f32 v{d}, v{a}, v{b}', f'v_{op}_f32 v{d+1}, v{a+1}, v{b+1}']
    if mod == 'op_sel:[0,1] op_sel_hi:[1,1]': return [f'v_{op}_f32 v{d}, v{a}, v{b+1}', f'v_{op}_f32 v{d+1}, v{a+1}, v{b+1}']
    raise ValueError(l)


class Fill:
    def __init__(self): self.q = []
    def add(self, pos, f): self.q.append((pos, f))
    def emit(self, k, p, n):
        c = 0
        while self.q and self.q[0][0] <= p and c < n:
            f = self.q.pop(0)[1]
            f() if callable(f) else k(f)
            c += 1
    def flush(self, k): self.emit(k, 10**9, 10**9)


def ph_g2(k, opt, DONE, vm0, fused, post=None, early=None):
    HI = k.label('hi')
    NZ = opt.get('NZ', 14); ZR = 96 - 4 * NZ
    T = 8; S = 24; Z1 = 32
    assert ZR >= 40
    ACC = lambda n, tt: 96 + 16 * (n & 1) + 4 * tt
    SLOT = [0, 1, 2, 3, 4, 0, 1]
    srd_from(k, 8, 40, 41, WS_Z2, Z2N_BYTES)
    k(f'''s_lshl_b32 s56, s36, 3
s_add_u32 s56, s56, s34
s_mul_i32 s56, s56, 57344
v_and_b32 v2, 63, v0''')
    if opt.get('warm'):
        k('v_lshlrev_b32 v4, 7, v2\ns_mov_b32 s42, s56')
        for i in range(7): k('buffer_load_dword v5, v4, s[8:11], s42 offen\ns_add_u32 s42, s42, 8192')
        k('s_waitcnt vmcnt(0)\ns_barrier\ns_sleep 127')
    st(k, 2, 2)
    if opt.get('clkm'): k('s_memtime s[76:77]'); k.clkm = 1
    if opt.get('zpf'):
        k(f'''v_lshrrev_b32 v4, 3, v2
v_and_b32 v5, 7, v2
v_lshlrev_b32 v5, 7, v5
v_lshl_add_u32 v4, v4, 13, v5
s_and_b32 s42, s35, 7
s_lshl_b32 s42, s42, 10
s_add_u32 s42, s42, s56
s_mov_b32 exec_hi, 0x00ffffff
buffer_load_dword v36, v4, s[8:11], s42 offen
s_mov_b32 exec_hi, -1''')
        vm0.issue('pf')

    def zload(q, vm):
        if q >= 56 or opt.get('noz'): return
        if q and q % 4 == 0: k('s_add_u32 s56, s56, 4096')
        if q == 40: k(f's_cmp_eq_u32 s36, 7\ns_cselect_b32 s56, {BIG}, s56')
        k(f'buffer_load_dwordx4 {vr(ZR+4*(q%NZ),4)}, v3, s[8:11], s56 offen offset:{1024*(q%4)}'); vm.issue(f'z{q}')
    N0 = opt.get('N0', NZ)
    for q in range(N0): zload(q, vm0)
    srd_from(k, 12, 40, 41, WS_Z1, A2_BYTES)
    srd_from(k, 16, 40, 41, WS_Z1 if opt.get('ain') else WS_A, A2_BYTES)
    srd_from(k, 24, 24, 25, 0, 4096)
    PW = opt.get('pw', 0); FZS = opt.get('fzs', 5)
    PWS = f'''s_lshl_b32 s47, s35, 1
s_lshr_b32 s42, s43, 1
s_add_u32 s47, s47, s42
s_lshl_b32 s47, s47, 3
s_add_u32 s47, s47, s36
s_lshl_b32 s47, s47, {FZS+1}
s_add_u32 s47, s47, {FLU}
v_bfe_u32 v40, v3, 4, 1
v_lshlrev_b32 v40, {FZS}, v40''' if PW else ''
    BADR = '''s_lshl_b32 s42, s43, 10
s_lshl_b32 s45, s35, 4
s_add_u32 s45, s45, s42
v_and_b32 v4, 8, v2
v_and_b32 v5, 3, v2
v_lshl_add_u32 v4, v5, 1, v4
v_bfe_u32 v5, v2, 2, 1
v_lshl_add_u32 v4, v5, 9, v4''' if G1S else '''s_and_b32 s42, s43, 1
s_lshl_b32 s42, s42, 3
s_lshl_b32 s45, s35, 4
s_add_u32 s45, s45, s42
s_and_b32 s42, s43, 2
s_lshl_b32 s42, s42, 10
s_add_u32 s45, s45, s42
v_bfe_u32 v4, v2, 2, 2
v_and_b32 v5, 3, v2
v_lshlrev_b32 v5, 9, v5
v_lshl_add_u32 v4, v4, 1, v5'''
    k(f'''s_and_b32 s37, s34, 3
s_bfe_u32 s43, s2, {"0x20006" if ROT else "0"}
s_xor_b32 s43, s43, s37
s_lshl_b32 s44, s35, 3
s_add_u32 s44, s44, s36
s_lshl_b32 s44, s44, 2
s_add_u32 s44, s44, s43
s_lshl_b32 s44, s44, 12
{BADR}
buffer_load_ushort v1, v4, s[24:27], s45 offen
v_lshlrev_b32 v2, 3, v2
s_lshl_b32 s42, s34, 10
v_add_u32 v4, s42, v3
v_add_u32 v5, 0x10000, v4
v_add_u32 v6, 0x20000, v4
s_lshl_b32 s42, s37, 13
v_add_u32 v7, s42, v3
s_mov_b32 s58, 0xffff0000
{PWS}
s_cmp_eq_u32 s36, 7
s_cselect_b32 s46, {BIG}, s44
s_cselect_b32 s59, 0, -1
s_cmp_ge_u32 s34, 4
s_cbranch_scc1 {HI}''')
    vm0.issue('b')

    def body(hi):
        import copy
        vm = copy.deepcopy(vm0); lg = Cnt('lgkmcnt', 15)
        F = Fill()

        def wr(n, tt):
            a = SLOT[n] * 32768 + tt * 8192
            k(f'ds_write_b128 v{4+a//65536}, {vr(ACC(n,tt),4)} offset:{a%65536}'); lg.issue(f'w{n}')

        def bar(n):
            x = lg.wait(f'w{n}')
            if x: k(x)
            k('s_barrier')

        def unit(tiles, zr, off, so, pos):
            nt = len(tiles)
            ops = []
            for ti, n in enumerate(tiles):
                for b in range(2):
                    base = SLOT[n] * 32768 + 4096 * b
                    if base >= 65536 - 32768 + 8192 and False: pass
                    for i in range(4):
                        def rd(base=base, i=i, n=n, b=b):
                            a = base + 1024 * i
                            k(f'ds_read_b128 {vr(T+4*i,4)}, v{RB[a//65536]} offset:{a%65536}'); lg.issue(f'r{n}_{b}_{i}')
                        ops.append(rd)
                    s = S + 4 * ti
                    def w01(n=n, b=b): k(lg.wait(f'r{n}_{b}_1') or '')
                    def w23(n=n, b=b): k(lg.wait(f'r{n}_{b}_3') or '')
                    ops.append(None); ops.append(None)
                    ops.append(w01)
                    d = s if b == 0 else T
                    ops += [f'v_pk_add_f32 {vr(d,2)}, {vr(T,2)}, {vr(T+4,2)}', f'v_pk_add_f32 {vr(d+2,2)}, {vr(T+2,2)}, {vr(T+6,2)}']
                    if b: ops += [f'v_pk_add_f32 {vr(s,2)}, {vr(s,2)}, {vr(T,2)}', f'v_pk_add_f32 {vr(s+2,2)}, {vr(s+2,2)}, {vr(T+2,2)}']
                    ops.append(w23)
                    ops += [f'v_pk_add_f32 {vr(T+8,2)}, {vr(T+8,2)}, {vr(T+12,2)}', f'v_pk_add_f32 {vr(T+10,2)}, {vr(T+10,2)}, {vr(T+14,2)}',
                            f'v_pk_add_f32 {vr(s,2)}, {vr(s,2)}, {vr(T+8,2)}', f'v_pk_add_f32 {vr(s+2,2)}, {vr(s+2,2)}, {vr(T+10,2)}']
            h = 2 * nt
            ops += [f'v_cvt_pk_bf16_f32 v{T+i}, v{S+2*i}, v{S+2*i+1}' for i in range(h)]
            ops += [f'v_lshlrev_b32 v{S+2*i}, 16, v{T+i}\nv_and_b32 v{S+2*i+1}, s58, v{T+i}' for i in range(h)]
            ops.append(lambda: k(vm.wait(f'y{off}') or ''))
            ops += [f'v_pk_add_f32 {vr(S+2*i,2)}, {vr(S+2*i,2)}, v[0:1] op_sel:[0,1] op_sel_hi:[1,1]' for i in range(h)]
            ops += [f'v_lshlrev_b32 v{T+8+2*i}, 16, v{zr+i}\nv_and_b32 v{T+9+2*i}, s58, v{zr+i}' for i in range(h)]
            ops += [f'v_cvt_pk_bf16_f32 v{T+i}, v{S+2*i}, v{S+2*i+1}' for i in range(h)]
            ops += [f'v_lshlrev_b32 v{S+2*i}, 16, v{T+i}\nv_and_b32 v{S+2*i+1}, s58, v{T+i}' for i in range(h)]
            ops += [f'v_pk_mul_f32 {vr(S+2*i,2)}, {vr(S+2*i,2)}, {vr(T+8+2*i,2)}' for i in range(h)]
            ops += [f'v_cvt_pk_bf16_f32 v{zr+i}, v{S+2*i}, v{S+2*i+1}' for i in range(h)]

            if tiles == [4, 5]: ops += [f'v_and_b32 v{zr+2}, s59, v{zr+2}', f'v_and_b32 v{zr+3}, s59, v{zr+3}']

            def sto():
                if nt == 2: k(f'buffer_store_dwordx4 {vr(zr,4)}, v3, s[16:19], {so} offen offset:{off} sc1')
                else: k(f'buffer_store_dwordx2 {vr(zr,2)}, v2, s[16:19], {so} offen offset:{off} sc1')
                vm.issue('s')
            ops.append(sto)
            out = []
            for o in ops:
                if o is None: out.append('')
                elif callable(o): out.append(o)
                else:
                    for l in o.split('\n'): out += unpk(l) if opt.get('upk', 1) else [l]
            return out

        def z1load(zr, off, so, nt):
            if nt == 2: k(f'buffer_load_dwordx4 {vr(zr,4)}, v3, s[12:15], {so} offen offset:{off}')
            else: k(f'buffer_load_dwordx2 {vr(zr,2)}, v2, s[12:15], {so} offen offset:{off}')
            vm.issue(f'y{off}')
        RB = [7, 38, 39]
        k('v_add_u32 v38, 0x10000, v7\nv_add_u32 v39, 0x20000, v7')
        ev = {}
        def at(p, f): ev.setdefault(p, []).append(f)
        for n in range(6):
            for tt in range(4): at(32 * (n + 1) + 3 + 2 * tt, lambda n=n, tt=tt: wr(n, tt))
        BP = opt.get('G2B', 16)
        at(64 + BP, lambda: bar(1)); at(128 + BP, lambda: bar(3)); at(192 + BP, lambda: bar(5))
        if opt.get('pp'):
            bs = [-1, 64 + BP, 128 + BP, 192 + BP, 224]
            k('s_setprio 3')
            for a, b in zip(bs[:-1], bs[1:]):
                for i in range(4):
                    pp = a + (b - a) * i // 4
                    if pp >= 0: at(pp, lambda i=i: k(f's_setprio {3-i}'))
        at(40, lambda: k((vm.wait('b') or '') + '\nv_lshlrev_b32 v1, 16, v1'))
        fq = []
        if PW:
            PZ = opt.get('pz', [30, 40, 64])
            at(PZ[0], lambda: k('s_barrier'))
            ZF = 'buffer_load_dword v41, v40, s[68:71], s47 offen sc1'
            def zf1(): k(ZF); vm.issue('zf')
            def zf2():
                LP = k.label('lp'); LD = k.label('ld')
                k(f'''{vm.wait('zf') or ''}
v_cmp_eq_u32 vcc, 0, v41
s_cbranch_vccz {LD}
s_mov_b32 s43, {SPIN}
{LP}:
{ZF}
s_waitcnt vmcnt(0)
v_cmp_eq_u32 vcc, 0, v41
s_cbranch_vccz {LD}
s_sub_u32 s43, s43, 1
s_cmp_lg_u32 s43, 0
s_cbranch_scc1 {LP}
{LD}:''')
            at(PZ[1] + (24 if hi else 0), zf1); at(PZ[2] + (24 if hi else 0), zf2)
        if not hi:
            at(PZ[2] + 1 if PW else 33, lambda: z1load(Z1, 0, 's44', 2))
            at(160, lambda: z1load(Z1, 2048, 's44', 2))
            fq.append((64 + BP + 1, lambda: unit([0, 1], Z1, 0, 's44', 0)))
            fq.append((192 + BP + 1, lambda: unit([4, 5], Z1, 2048, 's44', 0)))
        else:
            at(97, lambda: z1load(Z1, 1024, 's44', 2))
            at(190, lambda: z1load(Z1 + 4, 3072, 's46', 1))
            fq.append((128 + BP + 1, lambda: unit([2, 3], Z1, 1024, 's44', 0)))
        if post:
            po = list(post)
            def pw(n):
                for _ in range(n):
                    if po: k(po.pop(0)); vm.issue('o')
            for j in range(1, 8):
                for tt in range(4): at(192 + 4 * j + tt, lambda: pw(1))
        R = opt.get('G2R', 3)
        cur = []
        p = 0
        nq = [N0]
        for n in range(7):
            if n in (1, 3, 5): st(k, 2, 3 + n // 2)
            for j in range(8):
                q = 8 * n + j
                x = vm.wait(f'z{q}')
                if x: k(x)
                if q == 0:
                    x = vm.wait('w')
                    if x: k(x)
                for tt in range(4):
                    acc = vr(ACC(n, tt), 4)
                    k(f'{MFMA} {acc}, {vr(ZR+4*(q%NZ),4)}, {ar(16*j+4*tt,4)}, {"0" if j == 0 else acc}')
                    if tt in (1, 3) and nq[0] < q + NZ + (tt == 3): zload(nq[0], vm); nq[0] += 1
                    for f in ev.get(p, []): f()
                    if fq and fq[0][0] <= p: cur += fq.pop(0)[1]()
                    for _ in range(R):
                        if cur:
                            o = cur.pop(0)
                            o() if callable(o) else k(o)
                    p += 1
        if opt.get('clkm'): k('s_memtime s[78:79]')
        st(k, 2, 6)
        EP = opt.get('g3e', 0)
        if early and EP == 0:
            for o in early: k(o); vm.issue('e')
        for tt in range(4): wr(6, tt)
        if early and EP == 1:
            for o in early: k(o); vm.issue('e')
        bar(6)
        if early and EP == 2:
            for o in early: k(o); vm.issue('e')
        st(k, 2, 7)
        if hi: cur = unit([6], Z1 + 4, 3072, 's46', 0)
        for o in cur: o() if callable(o) else k(o)
        st(k, 2, 8); st(k, 0, 7)
        k('s_setprio 0')
        k(f's_branch {DONE}')
        return len(vm.tags) - 1 - max([i for i, t in enumerate(vm.tags) if t == 'e'] + [-1])
    n0 = body(False)
    k(f'{HI}:')
    n1 = body(True)
    return min(n0, n1)


def gen_g2(opt):
    k = Kern('k3_kernel', 256, 512, 163840, nvgpr=128, nagpr=128)
    END = k.label('end')
    k(f'''s_cmp_ge_u32 s2, 256
s_cbranch_scc1 {END}
s_load_dwordx2 s[40:41], s[0:1], 80
s_load_dwordx2 s[24:25], s[0:1], 48
s_load_dwordx2 s[72:73], s[0:1], 40''')
    k.stamp(True)
    map_g2(k)
    k(f'''v_lshrrev_b32 v1, 6, v0
v_and_b32 v2, 63, v0
v_readfirstlane_b32 s34, v1
v_lshlrev_b32 v3, 4, v2''')
    w_vaddr(k, 4, 5)
    w_setup(k, 42, 43)
    k('s_waitcnt lgkmcnt(0)')
    vm = Cnt('vmcnt', 63)
    wb = Bulk(k, g2_wops())
    wb(32, vm, 4)
    k('s_waitcnt vmcnt(0)')
    w_trans(k, 4, 5)
    k('s_waitcnt lgkmcnt(0)\ns_barrier')
    st(k, 2, 1)
    ph_g2(k, opt, END, vm, False)
    k.finish(END)
    return k


WOB = 17920
WO8_BYTES = 64 * WOB


def gen_prep8(k, base_wg, END, nwv=5):
    WO = k.label('wo'); J = k.label('j'); WO2 = k.label('wo2'); SG = k.label('sg')
    k(f'''s_load_dwordx2 s[4:5], s[0:1], 32
s_load_dwordx2 s[8:9], s[0:1], 56
v_lshrrev_b32 v1, 6, v0
v_and_b32 v2, 63, v0
v_readfirstlane_b32 s35, v1
s_sub_u32 s33, s2, {base_wg}
s_mul_i32 s33, s33, {nwv}
s_add_u32 s33, s33, s35
v_and_b32 v4, 15, v2
v_lshrrev_b32 v5, 4, v2
v_lshlrev_b32 v3, 4, v2
s_lshl_b32 s47, s35, 13
s_cmp_ge_u32 s35, {nwv}
s_cbranch_scc1 {END}
s_cmp_ge_u32 s33, 440
s_cbranch_scc1 {END}
s_waitcnt lgkmcnt(0)''')
    srd_from(k, 16, 40, 41, WS_WI, WS_WO - WS_WI + WO8_BYTES)
    k(f'''s_mov_b32 s23, 0x00020000
s_cmp_ge_u32 s33, 280
s_cbranch_scc1 {WO}
s_mul_i32 s51, s33, 4682
s_lshr_b32 s51, s51, 16
s_mul_i32 s52, s51, 14
s_sub_u32 s52, s33, s52
s_movk_i32 s50, 3456
s_lshl_b32 s53, s51, 5
s_mov_b32 s57, 8
s_mov_b32 s58, 4
s_mov_b64 s[20:21], s[4:5]
s_mov_b32 s22, {640*3456}
s_branch {J}
{WO}:
s_sub_u32 s34, s33, 280
s_mul_i32 s51, s34, 13108
s_lshr_b32 s51, s51, 16
s_mul_i32 s52, s51, 5
s_sub_u32 s52, s34, s52
s_movk_i32 s50, 1280
s_lshr_b32 s54, s51, 2
s_and_b32 s55, s51, 3
s_mul_i32 s53, s54, 112
s_lshl_b32 s42, s55, 5
s_add_u32 s53, s53, s42
s_mov_b32 s57, 4
s_mov_b32 s58, 16
s_mov_b64 s[20:21], s[8:9]
s_mov_b32 s22, {864*1280}
{J}:
v_mul_u32_u24 v6, s50, v5
v_lshl_add_u32 v6, v4, 4, v6
s_mul_i32 s42, s53, s50
s_lshl_b32 s43, s52, 8
s_add_u32 s42, s42, s43
v_add_u32 v6, s42, v6
s_lshl_b32 s43, s50, 2''')
    for i in range(8):
        k(f's_add_u32 m0, s47, {1024*i}')
        k(f'buffer_load_dwordx4 v6, s[20:23], 0 offen lds')
        if i < 7: k(f'v_add_u32 v6, s43, v6')
    k(f'''v_mul_u32_u24 v6, s57, v5
v_lshrrev_b32 v7, 2, v4
v_add_u32 v6, v6, v7
v_and_b32 v7, 3, v4
v_lshlrev_b32 v7, 3, v7
v_lshl_add_u32 v6, v6, 8, v7
v_add_u32 v6, s47, v6
s_lshl_b32 s42, s58, 8
v_add_u32 v7, s42, v6
v_lshlrev_b32 v8, 3, v2
s_waitcnt vmcnt(0)''')
    prep_tail(k, END, WO2, SG)


def prep_tail(k, END, WO2, SG):
    PADW = gen_fft.OPT.get('padw', 0); NL = '\n'
    for i in range(8):
        k(f'ds_read_b64_tr_b16 {vr(16+4*i,2)}, v6 offset:{32*i}')
        k(f'ds_read_b64_tr_b16 {vr(18+4*i,2)}, v7 offset:{32*i}')
    st(k, 5, 6)
    k(f's_cmp_ge_u32 s33, 280\ns_cbranch_scc1 {WO2}')
    for i in range(8):
        if i in (1, 4): st(k, 5, 7 + i // 4)
        k(f'''s_lshl_b32 s42, s52, 3
s_add_u32 s42, s42, {i}
s_add_u32 s43, s42, 2
s_cmp_ge_u32 s42, 54
s_cselect_b32 s43, s43, s42
s_cselect_b32 s46, 0, 1
{f"s_cmp_ge_u32 s42, 110{NL}s_cselect_b32 s43, {48+i}, s43{NL}s_cselect_b32 s46, 1, s46" if PADW and i >= 6 else ""}
s_mul_i32 s44, s43, 9363
s_lshr_b32 s44, s44, 16
s_mul_i32 s45, s44, 7
s_sub_u32 s43, s43, s45
s_and_b32 s44, s44, 7
s_lshl_b32 s44, s44, 1
s_lshr_b32 s45, s43, 2
s_xor_b32 s45, s45, s46
s_add_u32 s44, s44, s45
s_mul_i32 s44, s44, 140
s_add_u32 s43, s43, s44
s_mul_i32 s44, s51, 7
s_add_u32 s43, s43, s44
s_lshl_b32 s43, s43, 10
{"" if PADW else f"s_cmp_lt_u32 s42, 108{NL}s_cselect_b32 s43, s43, {BIG}"}
s_waitcnt lgkmcnt({14-2*i})
buffer_store_dwordx4 {vr(16+4*i,4)}, v3, s[16:19], s43 offen''')
    k(f'''s_branch {END}
{WO2}:
s_mul_i32 s56, s54, {WOB}
s_add_u32 s56, s56, {WS_WO-WS_WI}
s_mul_i32 s42, s55, 5120
s_add_u32 s56, s56, s42
s_cmp_lt_u32 s53, 864
s_cselect_b32 s59, -1, 0
s_cmp_lt_u32 s53, 848
s_cselect_b32 s60, -1, 0
s_cmp_eq_u32 s55, 3
s_cbranch_scc1 {SG}''')
    for sg in range(2):
        for i in range(8):
            k(f'''s_lshl_b32 s42, s52, 3
s_add_u32 s42, s42, {i}
s_mul_i32 s44, s42, 13108
s_lshr_b32 s44, s44, 16
s_mul_i32 s45, s44, 5
s_sub_u32 s43, s42, s45
s_mul_i32 s44, s44, {8*WOB}
s_lshl_b32 s43, s43, {9 if sg else 10}
s_add_u32 s43, s43, s44
s_add_u32 s43, s43, s56
s_waitcnt lgkmcnt({14-2*i})''')
            for j in range(2 if sg else 4): k(f'v_and_b32 v{16+4*i+j}, s{59+j//2}, v{16+4*i+j}')
            if sg: k(f'buffer_store_dwordx2 {vr(16+4*i,2)}, v8, s[16:19], s43 offen')
            else: k(f'buffer_store_dwordx4 {vr(16+4*i,4)}, v3, s[16:19], s43 offen')
        k(f's_branch {END}')
        if sg == 0: k(f'{SG}:')


def prep_inl(k, part, LB, END, nv=0):
    WO = k.label('wo'); J = k.label('j'); WO2 = k.label('wo2'); SG = k.label('sg')
    txt = f"""s_lshl_b32 s33, s2, 1
s_add_u32 s33, s33, s34
s_sub_u32 s33, s33, 6
s_sub_u32 s47, s34, 6
s_lshl_b32 s47, s47, 13
s_add_u32 s47, s47, {LB}
v_and_b32 v4, 15, v2
v_lshrrev_b32 v5, 4, v2
s_mov_b32 s23, 0x00020000
s_cmp_ge_u32 s33, 280
s_cbranch_scc1 {WO}
s_mul_i32 s51, s33, 4682
s_lshr_b32 s51, s51, 16
s_mul_i32 s52, s51, 14
s_sub_u32 s52, s33, s52
s_movk_i32 s50, 3456
s_lshl_b32 s53, s51, 5
s_mov_b32 s57, 8
s_mov_b32 s58, 4
s_mov_b64 s[20:21], s[62:63]
s_mov_b32 s22, {640*3456}
s_branch {J}
{WO}:
s_sub_u32 s35, s33, 280
s_mul_i32 s51, s35, 13108
s_lshr_b32 s51, s51, 16
s_mul_i32 s52, s51, 5
s_sub_u32 s52, s35, s52
s_movk_i32 s50, 1280
s_lshr_b32 s54, s51, 2
s_and_b32 s55, s51, 3
s_mul_i32 s53, s54, 112
s_lshl_b32 s42, s55, 5
s_add_u32 s53, s53, s42
s_mov_b32 s57, 4
s_mov_b32 s58, 16
s_mov_b64 s[20:21], s[64:65]
s_mov_b32 s22, {864*1280}
{J}:
"""
    if part == 'A':
        txt += """v_mul_u32_u24 v6, s50, v5
v_lshl_add_u32 v6, v4, 4, v6
s_mul_i32 s42, s53, s50
s_lshl_b32 s43, s52, 8
s_add_u32 s42, s42, s43
v_add_u32 v6, s42, v6
s_lshl_b32 s43, s50, 2
"""
        for i in range(8):
            txt += f's_add_u32 m0, s47, {1024*i}\nbuffer_load_dwordx4 v6, s[20:23], 0 offen lds\n'
            if i < 7: txt += 'v_add_u32 v6, s43, v6\n'
        mp = dict(s33='s16', s35='s17', s42='s18', s43='s19', s47='s24', s50='s25', s51='s26', s52='s27', s53='s28', s54='s29', s55='s30', s57='s31', s58='s31', v4='v104', v5='v105', v6='v106')
        txt = re.sub(r'\b([sv]\d+)\b', lambda m: mp.get(m.group(1), m.group(1)), txt)
        k(txt)
        return
    k(txt)
    k(f's_cmp_ge_u32 s33, 440\ns_cbranch_scc1 {END}')
    srd_from(k, 16, 40, 41, WS_WI, WS_WO - WS_WI + WO8_BYTES)
    k(f"""v_mul_u32_u24 v6, s57, v5
v_lshrrev_b32 v7, 2, v4
v_add_u32 v6, v6, v7
v_and_b32 v7, 3, v4
v_lshlrev_b32 v7, 3, v7
v_lshl_add_u32 v6, v6, 8, v7
v_add_u32 v6, s47, v6
s_lshl_b32 s42, s58, 8
v_add_u32 v7, s42, v6
v_lshlrev_b32 v8, 3, v2""")
    st(k, 5, 4)
    k(f's_waitcnt vmcnt({nv})')
    st(k, 5, 5)
    prep_tail(k, END, WO2, SG)


BB = 20480


def gelu_pk(k, pk, n, x, p, out, vc, tr=False, sc=False):
    for i in range(0, n, 2):
        k(f'v_lshlrev_b32 v{x+i}, 16, v{pk+i//2}\nv_and_b32 v{x+i+1}, 0xffff0000, v{pk+i//2}')
    if sc:
        for i in range(n): k(f'v_mul_f32 v{p+i}, v{x+i}, v{x+i}')
        for i in range(n): k(f'v_fma_f32 v{p+i}, v{p+i}, {"s62" if GV else f"v{vc}"}, v{vc+1}')
        for i in range(n): k(f'v_mul_f32 v{p+i}, v{p+i}, v{x+i}')
    else:
        for i in range(0, n, 2):
            k(f'v_pk_mul_f32 {vr(p+i,2)}, {vr(x+i,2)}, {vr(x+i,2)}')
        for i in range(0, n, 2):
            if GV == 1: k(f'v_pk_fma_f32 {vr(p+i,2)}, {vr(p+i,2)}, s[62:63], {vr(vc,2)}')
            elif GV == 2: k(f'v_fma_f32 v{p+i}, v{p+i}, s62, v{vc+1}\nv_fma_f32 v{p+i+1}, v{p+i+1}, s62, v{vc+1}')
            else: k(f'v_pk_fma_f32 {vr(p+i,2)}, {vr(p+i,2)}, {vr(vc,2)}, {vr(vc,2)} op_sel:[0,0,1] op_sel_hi:[1,0,1]')
        for i in range(0, n, 2):
            k(f'v_pk_mul_f32 {vr(p+i,2)}, {vr(p+i,2)}, {vr(x+i,2)}')
    for i in range(n):
        k(f'v_exp_f32 v{p+i}, v{p+i}')
    if sc:
        for i in range(n): k(f'v_add_f32 v{p+i}, 1.0, v{p+i}')
    else:
        for i in range(0, n, 2):
            k(f'v_pk_add_f32 {vr(p+i,2)}, {vr(p+i,2)}, 1.0 op_sel_hi:[1,0]')
    for i in range(n):
        k(f'v_rcp_f32 v{p+i}, v{p+i}')
    if sc:
        for i in range(n): k(f'v_mul_f32 v{p+i}, v{p+i}, v{x+i}')
    else:
        for i in range(0, n, 2):
            k(f'v_pk_mul_f32 {vr(p+i,2)}, {vr(p+i,2)}, {vr(x+i,2)}')
    for i in range(0, n, 2):
        if tr:
            a = [0, 4, 1, 5][i // 2]
            k(f'v_cvt_pk_bf16_f32 v{out+i//2}, v{p+a}, v{p+a+2}')
        else: k(f'v_cvt_pk_bf16_f32 v{out+i//2}, v{p+i}, v{p+i+1}')


class Bulk:
    def __init__(self, k, ops): self.k = k; self.ops = list(ops)
    def copy(self): return Bulk(self.k, self.ops)
    def __call__(self, n, vm, va, tag='w'):
        for _ in range(n):
            if not self.ops: return
            self.k(self.ops.pop(0).replace('@', f'v{va}'))
            if vm is not None: vm.issue(tag)


def weave_in(k, i0, q, n, vm, va, tag='q'):
    body = k.lines[i0:]
    ok = []; full = True
    for i, l in enumerate(body):
        if l.startswith('s_mov_b64 exec, -1'): full = True
        elif 'exec' in l.split(',')[0] or 'saveexec' in l: full = False
        if full and l.startswith(('v_', 'ds_')) and not l.startswith('v_cmp') and 'vcc' not in l: ok.append(i)
    n = min(n, len(q.ops))
    if not n: return
    pos = {}
    for j in range(n):
        p = ok[(j * len(ok)) // n]
        pos[p] = pos.get(p, 0) + 1
    del k.lines[i0:]
    for i, l in enumerate(body):
        if i in pos: q(pos[i], vm, va, tag)
        k.lines.append(l)


def flag(k, srd, soff):
    k(f'''s_mov_b64 exec, 1
v_mov_b32 v8, 1
v_mov_b32 v9, 0
buffer_store_dword v8, v9, {sr(srd,4)}, {soff} offen sc1
s_mov_b64 exec, -1''')


def ph_k2a(k, opt, wb):
    RP = 144; NP = 11 * RP + 16
    TB2 = 0
    SKIP = k.label('skip')
    vm = Cnt('vmcnt', 63)
    k(f'''s_load_dwordx2 s[4:5], s[0:1], 0
s_load_dwordx2 s[40:41], s[0:1], 80
s_load_dwordx2 s[72:73], s[0:1], 40
s_load_dwordx2 s[80:81], s[0:1], 64''')
    tab_srd(k, 12)
    k(f'''s_and_b32 s3, s2, 7
s_lshl_b32 s3, s3, 5
s_lshr_b32 s33, s2, 3
s_add_u32 s3, s3, s33
s_lshl_b32 s33, s3, 6
s_add_u32 s33, s33, 32768
s_load_dwordx16 s[16:31], s[12:13], s33
v_lshrrev_b32 v1, 6, v0
v_and_b32 v2, 63, v0
v_readfirstlane_b32 s34, v1
v_lshlrev_b32 v3, 4, v2
s_movk_i32 s38, 0x4000
s_lshl_b32 s39, s34, 11
s_add_u32 m0, s39, {TB2}
s_add_u32 s38, s38, s39
s_cmp_lt_u32 s34, 5
s_cselect_b32 s38, s38, {BIG}
buffer_load_dwordx4 v3, s[12:15], s38 offen lds
buffer_load_dwordx4 v3, s[12:15], s38 offen offset:1024 lds''')
    vm.issue('t'); vm.issue('t')
    k(f'''s_mul_i32 s46, s3, {8*TP}
s_add_u32 s47, s46, {3*TP}
s_add_u32 s48, s46, {6*TP}
v_lshlrev_b32 v60, 2, v0
s_lshl_b32 s35, s34, 8
s_add_u32 s35, s35, s3
s_mul_i32 s35, s35, 1280
v_and_b32 v50, 15, v2
v_lshrrev_b32 v51, 4, v2
v_lshlrev_b32 v52, 6, v50
v_lshl_add_u32 v52, v51, 4, v52
v_add_u32 v53, 1024, v52
v_mov_b32 v54, 0x7fffffff
v_cmp_gt_u32 vcc, 4, v50
v_cndmask_b32 v53, v54, v53, vcc''')
    k(f'''s_mul_i32 s59, s34, {NP}
v_add_u32 v112, s59, v52
v_and_b32 v113, 3, v2
v_mul_u32_u24 v113, {NP}, v113
v_lshrrev_b32 v114, 2, v2
v_lshl_add_u32 v113, v114, 4, v113
s_cmp_ge_u32 s34, 5
s_cselect_b32 s59, {4*NP-5*256}, 0
s_lshl_b32 s60, s34, 8
s_add_u32 s59, s59, s60
v_add_u32 v113, s59, v113
s_mul_i32 s59, s3, 10240
s_lshl_b32 s60, s34, 10
s_add_u32 s59, s59, s60
s_add_u32 s49, s59, 8192
s_cmp_lt_u32 s34, 2
s_cselect_b32 s49, s49, {BIG}''')
    k(f'''s_and_b32 s58, s3, 15
s_mul_i32 s58, s58, {140*1024}
s_mul_i32 s57, s34, {18*1024}
s_min_u32 s57, s57, {122*1024}
s_add_u32 s56, s57, {BB}
s_add_u32 s57, s57, s58
s_waitcnt lgkmcnt(0)''')
    srd_from(k, 4, 4, 5, 0, X_BYTES)
    srd_from(k, 8, 40, 41, WS_U, TU_BYTES)
    for k2 in range(8):
        k(f'buffer_load_dword v{4+k2}, v60, s[8:11], s{46+k2//3} offen offset:{(k2%3)*TP+4*(k2&1)*(opt.get("sh",0)>0)}')
        vm.issue('u')
    k(f'''buffer_load_dwordx4 v[104:107], v52, s[4:7], s35 offen
buffer_load_dwordx4 v[108:111], v53, s[4:7], s35 offen''')
    vm.issue('x'); vm.issue('x')
    srd_from(k, 52, 40, 41, WS_H, X_BYTES)
    srd_from(k, 60, 40, 41, WS_HN, X_BYTES)
    srd_from(k, 64, 40, 41, WS_WI, WI_BYTES)
    if wb:
        w_setup(k, 42, 43); w_vaddr(k, 114, 115)
    if opt.get('ub'): k('s_barrier')
    bq = [] if opt.get('nob') else list(range(18))
    BP = opt.get('BP', [10, 8, 0, 0, 0, 0])
    assert sum(BP) >= 18

    def bulk(i):
        for _ in range(BP[i]):
            if bq:
                i = bq.pop(0)
                if i % 4 == 0:
                    k(f's_add_u32 m0, s56, {1024*i}')
                    if i: k('s_add_u32 s57, s57, 4096')
                k(f'buffer_load_dwordx4 v3, s[64:67], s57 offen offset:{1024*(i%4)} lds'); vm.issue('b')
            elif wb: wb(1, vm, 114)
    bulk(0)
    k(f'''v_mul_u32_u24 v55, 3277, v0
v_lshrrev_b32 v55, 16, v55
v_mul_u32_u24 v56, 20, v55
v_sub_u32 v56, v0, v56
v_mul_u32_u24 v57, {RP}, v56
v_lshl_add_u32 v57, v55, 2, v57
v_mov_b32 v58, {11*RP}
v_cmp_ge_u32 vcc, 10, v56
v_cndmask_b32 v57, v58, v57, vcc
v_sub_u32 v59, 20, v56
v_mul_u32_u24 v59, {RP}, v59
v_sub_u32 v61, 31, v55
v_lshl_add_u32 v59, v61, 2, v59
v_cmp_le_u32 vcc, 10, v56
v_cndmask_b32 v59, v58, v59, vcc
v_sub_u32 v61, 32, v55
v_lshlrev_b32 v61, 2, v61
v_cmp_eq_u32 vcc, 0, v56
v_cndmask_b32 v59, v59, v61, vcc
v_cmp_eq_u32 vcc, 0, v0
v_cndmask_b32 v59, v59, v58, vcc
v_cmp_eq_u32 vcc, 320, v0
v_cndmask_b32 v59, v59, v58, vcc
v_mov_b32 v40, 0x3f3504f3
v_min_u32 v62, 10, v50
v_mul_u32_u24 v62, {RP}, v62
v_lshl_add_u32 v62, v51, 4, v62
s_mul_i32 s42, s34, {NP}
v_add_u32 v62, s42, v62
v_and_b32 v63, 1, v2
v_lshlrev_b32 v63, 31, v63
v_or_b32 v63, 1.0, v63
''')
    k(vm.wait('t')); k('s_barrier')
    for i in range(10): k(f'ds_read_b128 {vr(64+4*i,4)}, v3 offset:{TB2+1024*i}')
    bulk(1)
    k('s_waitcnt lgkmcnt(0)\ns_barrier')
    k(f'''v_cmp_gt_u32 vcc, 321, v0
s_and_saveexec_b64 s[44:45], vcc''')
    k(vm.wait('u'))
    st(k, 1, 1); st(k, 0, 1)
    k(f'''s_cbranch_execz {SKIP}''')
    for k2 in range(8):
        k(f'v_lshlrev_b32 v{20+2*k2}, 16, v{4+k2}\nv_and_b32 v{21+2*k2}, 0xffff0000, v{4+k2}')
    for k2 in range(8):
        if k2 == 0:
            k('v_mov_b32 v4, v20\nv_mov_b32 v5, v21')
        else:
            smul(k, 4 + 2 * k2, 20 + 2 * k2, 16 + 2 * k2, 42 + 2 * (k2 & 1), conj=True)
    T = fft8(k, 4, 20, True, 40)
    for n in range(8):
        k(f'''v_cvt_pk_bf16_f32 v{4+2*n}, v{T[n]}, v{T[n]+1}
v_cvt_pk_bf16_f32 v{5+2*n}, v{T[n]}, -v{T[n]+1}
ds_write_b32 v57, v{4+2*n} offset:{n*NP}
ds_write_b32 v59, v{5+2*n} offset:{n*NP}''')
    k(f'''{SKIP}:
s_mov_b64 exec, -1''')
    bulk(2)
    k(f'''s_waitcnt lgkmcnt(0)
s_barrier
ds_read_b128 v[4:7], v62
ds_read_b128 v[8:11], v62 offset:64''')
    bulk(3)
    k(f'''s_waitcnt lgkmcnt(1)''')
    for u in range(2):
        if u == 1: k('s_waitcnt lgkmcnt(0)')
        for t in range(2):
            k(f'{MFMA} {vr(12+16*u+8*t,4)}, {vr(4+4*u,4)}, {vr(64+8*t,4)}, 0')
            k(f'{MFMA} {vr(16+16*u+8*t,4)}, {vr(4+4*u,4)}, {vr(68+8*t,4)}, 0')
    bulk(4)
    for i in range(0, 16, 2):
        k(f'v_pk_fma_f32 {vr(12+i,2)}, {vr(28+i,2)}, v[62:63], {vr(12+i,2)} op_sel:[0,1,0] op_sel_hi:[1,1,1]')
    for t in range(2):
        cmul_planar(k, 12 + 8 * t, 16 + 8 * t, 80 + 8 * t, 84 + 8 * t, 28, 32, 36)
        k(f'''v_cvt_pk_bf16_f32 v{4+4*t}, v28, v29
v_cvt_pk_bf16_f32 v{5+4*t}, v30, v31
v_cvt_pk_bf16_f32 v{6+4*t}, v32, v33
v_cvt_pk_bf16_f32 v{7+4*t}, v34, v35''')
    for v in range(2):
        for t in range(2):
            k(f'{MFMA} {vr(12+8*v+4*t,4)}, {vr(4+4*t,4)}, {vr(96+4*v,4)}, 0')
    bulk(5)
    k(vm.wait('x'))
    for i in range(8):
        k(f'v_lshlrev_b32 v{28+2*i}, 16, v{104+i}\nv_and_b32 v{29+2*i}, 0xffff0000, v{104+i}')
    for i in range(8):
        k(f'v_cvt_pk_bf16_f32 v{4+i}, v{12+2*i}, v{13+2*i}')
    for i in range(8):
        k(f'v_lshlrev_b32 v{12+2*i}, 16, v{4+i}\nv_and_b32 v{13+2*i}, 0xffff0000, v{4+i}')
    for i in range(8):
        k(f'v_pk_add_f32 {vr(12+2*i,2)}, {vr(12+2*i,2)}, {vr(28+2*i,2)}')
    for i in range(8):
        k(f'v_cvt_pk_bf16_f32 v{4+i}, v{12+2*i}, v{13+2*i}')
    k('''buffer_store_dwordx4 v[4:7], v52, s[52:55], s35 offen sc1
buffer_store_dwordx4 v[8:11], v53, s[52:55], s35 offen sc1''')
    for i in range(8):
        k(f'v_lshlrev_b32 v{12+2*i}, 16, v{4+i}\nv_and_b32 v{13+2*i}, 0xffff0000, v{4+i}')
    k('''v_pk_add_f32 v[28:29], v[12:13], v[14:15]
v_pk_mul_f32 v[30:31], v[12:13], v[12:13]
v_pk_add_f32 v[32:33], v[16:17], v[18:19]
v_pk_mul_f32 v[34:35], v[14:15], v[14:15]''')
    for i in range(2, 8):
        k(f'v_pk_fma_f32 {vr(30+4*(i&1),2)}, {vr(12+2*i,2)}, {vr(12+2*i,2)}, {vr(30+4*(i&1),2)}')
        if i >= 4:
            k(f'v_pk_add_f32 {vr(28+4*(i&1),2)}, {vr(28+4*(i&1),2)}, {vr(12+2*i,2)}')
    k('''v_pk_add_f32 v[28:29], v[28:29], v[32:33]
v_pk_add_f32 v[30:31], v[30:31], v[34:35]
v_add_f32 v28, v28, v29
v_add_f32 v30, v30, v31''')
    wave_reduce2(k, 28, 30, 36, 37)
    ln_stats(k, 36, 37, 640, 28, 30, 32)
    ln_apply(k, 12, 16, 28, 30, 40)
    srd_from(k, 68, 40, 41, WS_FL, FL_BYTES)
    k(f'''ds_write_b128 v112, v[40:43]
s_mov_b32 exec_lo, 0x000f000f
s_mov_b32 exec_hi, 0x000f000f
ds_write_b128 v112, v[44:47] offset:1024
s_mov_b64 exec, -1
s_waitcnt lgkmcnt(0)
s_barrier
ds_read_b128 v[40:43], v113
ds_read_b128 v[44:47], v113 offset:{4*NP+3*256}
s_waitcnt lgkmcnt(1)
buffer_store_dwordx4 v[40:43], v3, s[60:63], s59 offen sc1
s_waitcnt lgkmcnt(0)
buffer_store_dwordx4 v[44:47], v3, s[60:63], s49 offen sc1''')
    st(k, 1, 2); st(k, 0, 2)


def ph_k12(k, opt, wb):
    P = 1040; W0 = 16 * P; TB1 = 32 * P; TB2 = TB1 + 8192
    RP = 144; NP = 11 * RP + 16
    IDLE = k.label('idle'); JOIN = k.label('join'); SKIP = k.label('skip')
    vm = Cnt('vmcnt', 63)
    k(f"""s_load_dwordx4 s[4:7], s[0:1], 8
s_load_dwordx2 s[40:41], s[0:1], 80
s_load_dwordx2 s[72:73], s[0:1], 40
s_load_dwordx2 s[80:81], s[0:1], 64""")
    tab_srd(k, 12)
    k(f"""s_and_b32 s33, s2, 7
s_lshr_b32 s35, s2, 3
v_lshrrev_b32 v1, 6, v0
v_and_b32 v2, 63, v0
v_readfirstlane_b32 s34, v1
v_lshlrev_b32 v3, 4, v2
v_and_b32 v4, 15, v2
v_lshrrev_b32 v5, 4, v2
s_lshl_b32 s39, s34, 10
s_add_u32 m0, s39, {TB1}
s_add_u32 s38, s39, 0x2000
buffer_load_dwordx4 v3, s[12:15], s38 offen lds""")
    vm.issue('t1')
    IIM = 'v[112:115]'; IRE = 'v[114:117]'; FIM = 'v[116:119]'; FRE = 'v[118:121]'
    k(f"""v_mul_u32_u24 v6, {16*8*TP}, v4
v_lshl_add_u32 v6, v5, 4, v6
s_lshl_b32 s36, s34, 4
s_add_u32 s36, s36, s33
s_mul_i32 s45, s36, 642
s_mul_i32 s36, s36, {TP}
s_lshl_b32 s37, s35, 6
s_add_u32 s36, s36, s37
s_add_u32 s42, s36, {8*TP}
s_lshl_b32 s37, s35, 5
s_add_u32 s45, s45, s37
s_and_b32 s45, s45, -4
v_and_b32 v7, 1, v5
v_lshrrev_b32 v8, 1, v5
v_lshl_add_u32 v9, v4, 4, v7
v_mul_u32_u24 v9, {8*642}, v9
v_lshl_add_u32 v9, v8, 4, v9
s_and_b32 s37, s33, 1
s_lshl_b32 s37, s37, 2
s_sub_u32 s43, s36, s37
s_sub_u32 s44, s42, s37
s_lshl_b32 s3, s33, 5
s_add_u32 s3, s3, s35
s_cmp_lt_u32 s2, 168
s_cselect_b32 s43, s43, {BIG}
s_cselect_b32 s44, s44, {BIG}
s_cselect_b32 s45, s45, {BIG}
s_waitcnt lgkmcnt(0)""")
    srd_from(k, 60, 40, 41, WS_T, TU_BYTES)
    for i in range(2):
        k(f'buffer_load_dwordx4 {vr(16+4*i,4)}, v6, s[60:63], s{43+i} offen'); vm.issue(f'T{i}')
    k(f"""s_mov_b32 s52, s6
s_mov_b32 s53, s7
s_mov_b32 s6, {2048*642}
s_mov_b32 s7, 0x00020000
s_mov_b32 s54, {2048*642}
s_mov_b32 s55, 0x00020000""")
    WP = opt.get('k1wp', 0)

    def wld():
        k(f"""buffer_load_dwordx4 v[32:35], v9, s[4:7], s45 offen
buffer_load_dwordx4 v[38:41], v9, s[52:55], s45 offen
s_load_dwordx2 s[4:5], s[0:1], 0""")
        vm.issue('W'); vm.issue('W')
    if opt.get('ob1'): k('s_barrier')
    if WP == 0: wld()
    k(f"""s_min_u32 s39, s34, 4
s_lshl_b32 s39, s39, 11
s_add_u32 m0, s39, {TB2}
s_add_u32 s38, s39, 0x4000
buffer_load_dwordx4 v3, s[12:15], s38 offen lds
buffer_load_dwordx4 v3, s[12:15], s38 offen offset:1024 lds
s_lshl_b32 s38, s3, 6
s_add_u32 s38, s38, 32768
s_load_dwordx16 s[16:31], s[12:13], s38""")
    vm.issue('t2'); vm.issue('t2')
    srd_from(k, 8, 40, 41, WS_U, TU_BYTES)
    srd_from(k, 64, 40, 41, WS_WI, WI_BYTES)
    w_setup(k, 46, 47); w_vaddr(k, 124, 125)
    BR = opt.get('brot', 0)
    g1id(k, 58, 57)
    k(f"""s_and_b32 s58, s58, 15
s_mul_i32 s58, s58, {140*1024}
s_mul_i32 s57, s34, {14*1024}
s_add_u32 s57, s57, {31*1024}
s_min_u32 s57, s57, {(124 if BR else 126)*1024}
s_add_u32 s56, s57, {BB}
s_add_u32 s57, s57, s58""")
    if opt.get('hot'): k('s_sub_u32 s57, s57, s58\ns_mov_b32 s58, 0\ns_and_b32 s50, s50, 0x7fff\ns_and_b32 s51, s51, 0x7fff\ns_and_b32 s82, s82, 0x7fff')
    if opt.get('hotw'): k('s_and_b32 s50, s50, 0x7fff\ns_and_b32 s51, s51, 0x7fff\ns_and_b32 s82, s82, 0x7fff')
    if opt.get('hotb'): k('s_sub_u32 s57, s57, s58\ns_mov_b32 s58, 0')
    if BR: k('s_bfe_u32 s38, s3, 0x10004\ns_lshl_b32 s38, s38, 13')
    bops = []
    for i in range(0 if opt.get('nob') else (16 if BR else 14)):
        if BR:
            o = f's_xor_b32 s39, s38, {1024*(i-i%4)}\ns_add_u32 m0, s56, s39\ns_add_u32 s39, s39, s57\n'
            bops.append(o + f'buffer_load_dwordx4 v3, s[64:67], s39 offen offset:{1024*(i%4)} lds')
            continue
        o = f's_add_u32 m0, s56, {1024*(i-i%4)}\n'
        if i % 4 == 0 and i: o += 's_add_u32 s57, s57, 4096\n'
        bops.append(o + f'buffer_load_dwordx4 v3, s[64:67], s57 offen offset:{1024*(i%4)} lds')
    wops = wb.ops
    NWL = opt.get('nwl', 0)
    wpre = wops[:len(wops) - NWL]; wb.ops = wops[len(wops) - NWL:]
    order = opt.get('bo', 0)
    if order == 0: pre = wpre + bops
    elif order == 1: pre = bops + wpre
    else:
        pre = []
        a, b = list(wpre), list(bops)
        while a or b:
            pre += a[:8]; a = a[8:]
            pre += b[:4]; b = b[4:]
    import copy
    KP = opt.get('KP', [8, 4, 4, 4, 4, 4, 4, 4, 4, 99])
    CP = opt.get('CP', [0, 0, 0, 0, 0])
    NPRE = sum(KP) + sum(opt.get('KW', [0, 0, 0])[:2])
    post = pre[NPRE:]; pre = pre[:NPRE]
    assert len(post) <= sum(CP) + opt.get('KW', [0, 0, 0])[2], (len(post), CP)
    k(f's_cmp_ge_u32 s2, 168\ns_cbranch_scc1 {IDLE}')
    vi = copy.deepcopy(vm)
    q = Bulk(k, pre)

    def bulk(i): q(KP[i], vm, 124, 'q')
    bulk(0)
    k(f"""v_mul_u32_u24 v10, {4*P}, v5
v_lshl_add_u32 v10, v4, 2, v10
s_lshl_b32 s37, s34, 7
v_add_u32 v10, s37, v10
v_mul_u32_u24 v11, {8*P}, v8
v_lshl_add_u32 v11, v7, 6, v11
v_lshl_add_u32 v11, v4, 2, v11
v_add_u32 v11, s37, v11
v_lshlrev_b32 v12, 6, v4
v_lshl_add_u32 v12, v5, 4, v12
s_mul_i32 s37, s34, {2*P}
v_add_u32 v12, s37, v12
s_mov_b32 s47, 0x05040100
s_mov_b32 s48, 0x07060302""")
    for i in range(2):
        k(vm.wait(f'T{i}'))
        if i == 0: st(k, 4, 1)
        for j in range(4):
            k(f'ds_write_b32 v10, v{16+4*i+j} offset:{j*P+64*i}')
    if WP == 1: wld()
    bulk(1)
    k('s_waitcnt lgkmcnt(0)\ns_barrier')
    NC = 2
    KW = opt.get('KW', [0, 0, 0])
    i0 = len(k.lines)
    k(f"""ds_read_b128 v[96:99], v3 offset:{TB1}
ds_read_b128 v[16:19], v12
ds_read_b128 v[100:103], v3 offset:{TB1+1024}
ds_read_b128 v[20:23], v12 offset:{P}
ds_read_b128 v[104:107], v3 offset:{TB1+2048}
ds_read_b128 v[108:111], v3 offset:{TB1+3072}
ds_read_b128 v[118:121], v3 offset:{TB1+4096}
ds_read_b64 v[116:117], v3 offset:{TB1+5120}
ds_read_b128 v[112:115], v3 offset:{TB1+7168}""")
    bulk(2)
    k(f"""s_waitcnt lgkmcnt(7)
{MFMA} v[48:51], v[16:19], v[96:99], 0
s_waitcnt lgkmcnt(6)
{MFMA} v[52:55], v[16:19], v[100:103], 0
s_waitcnt lgkmcnt(5)
{MFMA} v[56:59], v[20:23], v[96:99], 0
{MFMA} v[60:63], v[20:23], v[100:103], 0""")
    bulk(3)
    k('s_waitcnt lgkmcnt(0)')

    def pack(c, re, im):
        k(f"""v_cvt_pk_bf16_f32 v{16+4*c}, v{re}, v{re+1}
v_cvt_pk_bf16_f32 v{17+4*c}, v{re+2}, v{re+3}
v_cvt_pk_bf16_f32 v{18+4*c}, v{im}, v{im+1}
v_cvt_pk_bf16_f32 v{19+4*c}, v{im+2}, v{im+3}""")
    for c in range(NC):
        cmul_planar(k, 48 + 8 * c, 52 + 8 * c, 104, 108, 80, 84, 88)
        pack(c, 80, 84)
        k(f'{MFMA} {vr(48+8*c,4)}, {FRE}, {vr(16+4*c,4)}, 0')
        k(f'{MFMA} {vr(52+8*c,4)}, {FIM}, {vr(16+4*c,4)}, 0')
    bulk(4)
    weave_in(k, i0, q, KW[0], vm, 124)
    k(vm.wait('W') or '')
    k(vm.wait('t2') or '')
    st(k, 4, 2)
    i0 = len(k.lines)
    for j in range(8):
        k(f'v_perm_b32 v{64+j}, v{38+j//2}, v{32+j//2}, s{47+(j&1)}')
        k(f'ds_write_b32 v11, v{64+j} offset:{W0+j*P}')
    bulk(5)
    k(f's_waitcnt lgkmcnt(0)\ns_barrier')
    for c in range(NC):
        k(f'ds_read_b128 {vr(32+4*c,4)}, v12 offset:{W0+c*P}')
    bulk(6)
    for c in range(NC):
        k(f's_waitcnt lgkmcnt({NC-1-c})')
        for r in range(4):
            k(f'v_lshlrev_b32 v{64+8*c+r}, 16, v{32+4*c+r}\nv_and_b32 v{68+8*c+r}, 0xffff0000, v{32+4*c+r}')
        cmul_planar(k, 48 + 8 * c, 52 + 8 * c, 64 + 8 * c, 68 + 8 * c, 80, 84, 88)
        pack(c, 80, 84)
        k(f'{MFMA} {vr(48+8*c,4)}, {vr(16+4*c,4)}, {IRE}, 0')
        k(f'{MFMA} {vr(52+8*c,4)}, {vr(16+4*c,4)}, {IIM}, 0')
    bulk(7)
    for c in range(NC):
        cmul_planar(k, 48 + 8 * c, 52 + 8 * c, 104, 108, 80, 84, 88, conj=True)
        pack(c, 80, 84)
        k(f'{MFMA} {vr(48+8*c,4)}, {IRE}, {vr(16+4*c,4)}, 0')
        k(f'{MFMA} {vr(52+8*c,4)}, {IIM}, {vr(16+4*c,4)}, 0')
    bulk(8)
    for c in range(NC):
        for r in range(4):
            k(f'v_cvt_pk_bf16_f32 v{16+4*c+r}, v{48+8*c+r}, v{52+8*c+r}')
        k(f'ds_write_b128 v12, {vr(16+4*c,4)} offset:{c*P}')
    weave_in(k, i0, q, KW[1], vm, 124)
    k('s_waitcnt lgkmcnt(0)\ns_barrier')
    for i in range(2):
        for j in range(4):
            k(f'ds_read_b32 v{16+4*i+j}, v10 offset:{j*P+64*i}')
    for i in range(10): k(f'ds_read_b128 {vr(64+4*i,4)}, v3 offset:{TB2+1024*i}')
    for i in range(2):
        k(f's_waitcnt lgkmcnt({14-4*i})')
        k(f'buffer_store_dwordx4 {vr(16+4*i,4)}, v6, s[8:11], {["s36","s42"][i]} offen sc1')
    st(k, 4, 3)
    if opt.get('ob2'): k('s_barrier')
    q(99, vm, 124, 'q')
    k(f's_branch {JOIN}\n{IDLE}:')
    if WP: k('s_load_dwordx2 s[4:5], s[0:1], 0')
    if opt.get('it2'):
        WM = opt.get('wte', 0)
        k(f'''s_sub_u32 s43, s35, 21
s_and_b32 s44, s33, 1
s_mul_i32 s44, s44, 11
s_add_u32 s43, s43, s44
s_mul_i32 s44, s34, 22
s_add_u32 s44, s44, s43
s_add_u32 s44, s44, {64*WM}
s_add_u32 s45, s44, 176
s_lshr_b32 s46, s33, 1
s_lshl_b32 s46, s46, 18
v_lshlrev_b32 v10, 7, v2''')
        for r in (44, 45)[:2 if 64*(4-WM) > 176 else 1]:
            k(f'''s_and_b32 s47, s{r}, 31
s_lshl_b32 s47, s47, 13
s_add_u32 s47, s47, s46
s_bfe_u32 s48, s{r}, 0x10005
s_lshl_b32 s48, s48, 22
s_add_u32 s47, s47, s48
s_lshr_b32 s48, s{r}, 6
s_lshl_b32 s48, s48, 20
s_add_u32 s47, s47, s48
s_cmp_lt_u32 s{r}, 256
s_cselect_b32 s47, s47, {BIG}
buffer_load_ubyte v11, v10, s[72:75], s47 offen''')
            vi.issue('q')
            if opt['it2'] > 1: k('s_barrier')
    if opt.get('itd'): k(f's_sleep {opt["itd"]}')
    if opt.get('it'):
        k(f'''s_sub_u32 s43, s35, 21
s_and_b32 s44, s33, 1
s_mul_i32 s44, s44, 11
s_add_u32 s43, s43, s44
s_lshl_b32 s44, s43, 3
s_add_u32 s44, s44, s34
s_mul_i32 s45, s34, 22
s_add_u32 s45, s45, s43
s_add_u32 s45, s45, 176
s_lshr_b32 s46, s33, 1
s_lshl_b32 s46, s46, 18
v_lshlrev_b32 v10, 7, v2''')
        for r in (44, 45):
            k(f'''s_and_b32 s47, s{r}, 31
s_lshl_b32 s47, s47, 13
s_lshr_b32 s48, s{r}, 5
s_lshl_b32 s48, s48, 20
s_add_u32 s47, s47, s48
s_add_u32 s47, s47, s46
buffer_load_ubyte v11, v10, s[72:75], s47 offen''')
            vi.issue('q')
        if opt.get('bt'):
            k('''s_load_dwordx2 s[44:45], s[0:1], 48
s_mov_b32 s46, 4096
s_mov_b32 s47, 0x00020000
v_lshlrev_b32 v12, 6, v2
s_waitcnt lgkmcnt(0)
buffer_load_ubyte v11, v12, s[44:47], 0 offen''')
            vi.issue('q')
        if opt['it'] > 1: k('s_barrier')
    if opt.get('iw'):
        wp = [o for o in pre if o in wpre]; bp = [o for o in pre if o not in wpre]
        assert len(bp) == len(bops)
        IW = opt['iw']
        nb0 = opt.get('ib0', 0)
        Bulk(k, bp[:nb0])(99, vi, 124, 'q')
        Bulk(k, wp)(99, vi, 124, 'q')
        k('s_mov_b32 s46, s50\ns_mov_b32 s47, s51')
        Bulk(k, wpre[len(wp):len(wp) + IW])(99, vi, 124, 'q')
        k('s_mov_b32 s50, s46\ns_mov_b32 s51, s47')
        Bulk(k, bp[nb0:])(99, vi, 124, 'q')
    else:
        q = Bulk(k, pre)
        q(99, vi, 124, 'q')
    k(vi.wait('t2'))
    k('s_barrier')
    for i in range(10): k(f'ds_read_b128 {vr(64+4*i,4)}, v3 offset:{TB2+1024*i}')
    if opt.get('idl'): k(f's_sleep {opt["idl"]}')
    k(f'{JOIN}:')
    vm = Cnt('vmcnt', 63); vm.issue('q')
    if opt.get('g3s'):
        srd_from(k, 60, 40, 41, WS_A, A2_BYTES)
        k('''s_lshl_b32 s46, s2, 14
s_lshl_b32 s47, s34, 11
s_add_u32 s46, s46, s47
v_mov_b32 v28, -1
v_mov_b32 v29, -1
v_mov_b32 v30, -1
v_mov_b32 v31, -1
buffer_store_dwordx4 v[28:31], v3, s[60:63], s46 offen sc1
buffer_store_dwordx4 v[28:31], v3, s[60:63], s46 offen offset:1024 sc1''')
        vm.issue('f'); vm.issue('f')
    k(f"""s_mul_i32 s46, s3, {8*TP}
s_add_u32 s47, s46, {3*TP}
s_add_u32 s48, s46, {6*TP}
v_lshlrev_b32 v60, 2, v0
s_lshl_b32 s35, s34, 8
s_add_u32 s35, s35, s3
s_mul_i32 s35, s35, 1280
v_and_b32 v50, 15, v2
v_lshrrev_b32 v51, 4, v2
v_lshlrev_b32 v52, 6, v50
v_lshl_add_u32 v52, v51, 4, v52
v_add_u32 v53, 1024, v52
v_mov_b32 v54, 0x7fffffff
v_cmp_gt_u32 vcc, 4, v50
v_cndmask_b32 v53, v54, v53, vcc
s_lshl_b32 s42, s34, 12
s_min_u32 s42, s42, {27*1024}
s_add_u32 m0, s42, {BB}
s_add_u32 s42, s42, s58
s_waitcnt lgkmcnt(0)
s_barrier""")
    srd_from(k, 4, 4, 5, 0, X_BYTES)
    for i in range(0 if opt.get('nob') else 4):
        k(f'buffer_load_dwordx4 v3, s[64:67], s42 offen offset:{1024*i} lds'); vm.issue('b')
    k(f"""buffer_load_dwordx4 v[104:107], v52, s[4:7], s35 offen
buffer_load_dwordx4 v[108:111], v53, s[4:7], s35 offen""")
    vm.issue('x'); vm.issue('x')
    HP0 = opt.get('hp0', 10240)
    if G1S:
        k(f"""s_mul_i32 s59, s34, {NP}
v_add_u32 v112, s59, v52""")
        for j, d in enumerate((113, 115)):
            k(f"""v_add_u32 v116, {512*j}, v0
v_mul_u32_u24 v117, 410, v116
v_lshrrev_b32 v117, 16, v117
v_mul_u32_u24 v118, 160, v117
v_sub_u32 v116, v116, v118
v_and_b32 v118, 1, v116
v_lshl_add_u32 v117, v117, 1, v118
v_mul_u32_u24 v117, {NP}, v117
v_lshrrev_b32 v116, 1, v116
v_lshl_add_u32 v{d}, v116, 4, v117""")
        k(f"""s_mul_i32 s59, s3, {HP}
s_lshl_b32 s60, s34, 10
s_add_u32 s59, s59, s60
s_add_u32 s49, s59, 8192
s_cmp_lt_u32 s34, 2
s_cselect_b32 s49, s49, {BIG}""")
    else: k(f"""s_mul_i32 s59, s34, {NP}
v_add_u32 v112, s59, v52
v_and_b32 v113, 3, v2
v_mul_u32_u24 v113, {NP}, v113
v_lshrrev_b32 v114, 2, v2
v_lshl_add_u32 v113, v114, 4, v113
s_cmp_ge_u32 s34, 5
s_cselect_b32 s59, {4*NP-5*256}, 0
s_lshl_b32 s60, s34, 8
s_add_u32 s59, s59, s60
v_add_u32 v113, s59, v113
s_mul_i32 s59, s3, {HP0}
s_lshl_b32 s60, s34, 10
s_add_u32 s59, s59, s60
s_add_u32 s49, s59, 8192
s_cmp_lt_u32 s34, 2
s_cselect_b32 s49, s49, {BIG}""")
    srd_from(k, 52, 80, 81, 0, X_BYTES) if opt.get('hout') else srd_from(k, 52, 40, 41, WS_H, X_BYTES)
    srd_from(k, 60, 40, 41, WS_HN, 0x300000)
    k(f"""v_mul_u32_u24 v55, 3277, v0
v_lshrrev_b32 v55, 16, v55
v_mul_u32_u24 v56, 20, v55
v_sub_u32 v56, v0, v56
v_mul_u32_u24 v57, {RP}, v56
v_lshl_add_u32 v57, v55, 2, v57
v_mov_b32 v58, {11*RP}
v_cmp_ge_u32 vcc, 10, v56
v_cndmask_b32 v57, v58, v57, vcc
v_sub_u32 v59, 20, v56
v_mul_u32_u24 v59, {RP}, v59
v_sub_u32 v61, 31, v55
v_lshl_add_u32 v59, v61, 2, v59
v_cmp_le_u32 vcc, 10, v56
v_cndmask_b32 v59, v58, v59, vcc
v_sub_u32 v61, 32, v55
v_lshlrev_b32 v61, 2, v61
v_cmp_eq_u32 vcc, 0, v56
v_cndmask_b32 v59, v59, v61, vcc
v_cmp_eq_u32 vcc, 0, v0
v_cndmask_b32 v59, v59, v58, vcc
v_cmp_eq_u32 vcc, 320, v0
v_cndmask_b32 v59, v59, v58, vcc
v_mov_b32 v40, 0x3f3504f3
v_min_u32 v62, 10, v50
v_mul_u32_u24 v62, {RP}, v62
v_lshl_add_u32 v62, v51, 4, v62
s_mul_i32 s42, s34, {NP}
v_add_u32 v62, s42, v62
v_and_b32 v63, 1, v2
v_lshlrev_b32 v63, 31, v63
v_or_b32 v63, 1.0, v63
""")
    WT0 = opt.get('wt0', 0) if not opt.get('now') else 0
    assert not (WT0 and NWL)
    if WT0:
        k(vm.wait('q'))
        w_trans(k, 44, 45, list(range(WT0)))
    st(k, 4, 4)
    LP = k.label('lp'); LD = k.label('ld'); SK0 = k.label('sk0'); STUB = k.label('stub'); GO = k.label('go')
    q = Bulk(k, post)
    UNI = KW[2] > 0
    if UNI:
        assert not WT0
        k(f"""v_cmp_gt_u32 vcc, 321, v0
v_cndmask_b32 v57, v58, v57, vcc
v_cndmask_b32 v59, v58, v59, vcc
s_mov_b64 exec, vcc
s_mov_b32 s43, {SPIN}
s_cmp_lt_u32 s34, 6
s_cbranch_scc1 {LP}
s_waitcnt vmcnt(0)
{f"s_sleep {opt['c67']}" if opt.get('c67') else ""}
s_branch {LD}
{LP}:""")
    else:
      k(f"""v_cmp_gt_u32 vcc, 321, v0
s_mov_b64 s[44:45], vcc
s_cmp_lt_u32 s34, 6
s_cbranch_scc1 {GO}
s_waitcnt vmcnt(0)""")
      if opt.get('c67'): k(f's_sleep {opt["c67"]}')
      q.copy()(CP[0], None, 124)
      k(f"""s_mov_b64 exec, 0
s_branch {SK0 if WT0 else SKIP}
{GO}:
s_mov_b64 exec, s[44:45]
s_mov_b32 s43, {SPIN}
{LP}:""")
    for k2 in range(8):
        k(f'buffer_load_dword v{4+k2}, v60, s[8:11], s{46+k2//3} offen offset:{(k2%3)*TP+4*(k2&1)} sc1')
    k(f"""s_waitcnt vmcnt(0)
v_max3_u32 v12, v4, v5, v6
v_max3_u32 v13, v7, v8, v9
v_max3_u32 v12, v12, v10, v11
v_max_u32 v12, v12, v13
v_cmp_eq_u32 vcc, -1, v12
s_cbranch_vccz {LD}
{f"s_sleep {opt['usl']}" if opt.get('usl') else ""}
s_sub_u32 s43, s43, 1
s_cmp_lg_u32 s43, 0
s_cbranch_scc1 {LP}
{LD}:""")
    st(k, 4, 5); st(k, 0, 1)
    if UNI:
        k('s_mov_b64 exec, -1')
        if opt.get('ob3'): k('s_barrier')
        q(CP[0], None, 124)
        i0 = len(k.lines)
    elif CP[0] and post:
        k('s_mov_b64 exec, -1')
        q(CP[0], None, 124)
        k('s_mov_b64 exec, s[44:45]')
    for k2 in range(8):
        k(f'v_lshlrev_b32 v{20+2*k2}, 16, v{4+k2}\nv_and_b32 v{21+2*k2}, 0xffff0000, v{4+k2}')
    for k2 in range(8):
        if k2 == 0:
            k('v_mov_b32 v4, v20\nv_mov_b32 v5, v21')
        else:
            smul(k, 4 + 2 * k2, 20 + 2 * k2, 16 + 2 * k2, 42 + 2 * (k2 & 1), conj=True)
    T = fft8(k, 4, 20, True, 40)
    if WT0:
        k(f'{SK0}:\ns_waitcnt lgkmcnt(0)\ns_barrier\ns_cbranch_execz {SKIP}')
    for n in range(8):
        k(f"""v_cvt_pk_bf16_f32 v{4+2*n}, v{T[n]}, v{T[n]+1}
v_cvt_pk_bf16_f32 v{5+2*n}, v{T[n]}, -v{T[n]+1}
ds_write_b32 v57, v{4+2*n} offset:{n*NP}
ds_write_b32 v59, v{5+2*n} offset:{n*NP}""")
    k(f"""{SKIP}:
s_mov_b64 exec, -1""")
    q(CP[1], None, 124)
    k(f"""s_waitcnt lgkmcnt(0)
s_barrier
ds_read_b128 v[4:7], v62
ds_read_b128 v[8:11], v62 offset:64""")
    if opt.get('kw0'): i0 = len(k.lines)
    q(CP[2], None, 124)
    k('s_waitcnt lgkmcnt(1)')
    for u in range(2):
        if u == 1: k('s_waitcnt lgkmcnt(0)')
        for t in range(2):
            k(f'{MFMA} {vr(12+16*u+8*t,4)}, {vr(4+4*u,4)}, {vr(64+8*t,4)}, 0')
            k(f'{MFMA} {vr(16+16*u+8*t,4)}, {vr(4+4*u,4)}, {vr(68+8*t,4)}, 0')
    q(CP[3], None, 124)
    for i in range(0, 16, 2):
        k(f'v_pk_fma_f32 {vr(12+i,2)}, {vr(28+i,2)}, v[62:63], {vr(12+i,2)} op_sel:[0,1,0] op_sel_hi:[1,1,1]')
    for t in range(2):
        cmul_planar(k, 12 + 8 * t, 16 + 8 * t, 80 + 8 * t, 84 + 8 * t, 28, 32, 36)
        k(f"""v_cvt_pk_bf16_f32 v{4+4*t}, v28, v29
v_cvt_pk_bf16_f32 v{5+4*t}, v30, v31
v_cvt_pk_bf16_f32 v{6+4*t}, v32, v33
v_cvt_pk_bf16_f32 v{7+4*t}, v34, v35""")
    for v in range(2):
        for t in range(2):
            k(f'{MFMA} {vr(12+8*v+4*t,4)}, {vr(4+4*t,4)}, {vr(96+4*v,4)}, 0')
    q(CP[4], None, 124)
    if UNI and opt.get('kwe', 1) == 0: weave_in(k, i0, q, KW[2], None, 124)
    for i in range(8):
        k(f'v_lshlrev_b32 v{28+2*i}, 16, v{104+i}\nv_and_b32 v{29+2*i}, 0xffff0000, v{104+i}')
    for i in range(8):
        k(f'v_cvt_pk_bf16_f32 v{4+i}, v{12+2*i}, v{13+2*i}')
    for i in range(8):
        k(f'v_lshlrev_b32 v{12+2*i}, 16, v{4+i}\nv_and_b32 v{13+2*i}, 0xffff0000, v{4+i}')
    for i in range(8):
        k(f'v_pk_add_f32 {vr(12+2*i,2)}, {vr(12+2*i,2)}, {vr(28+2*i,2)}')
    for i in range(8):
        k(f'v_cvt_pk_bf16_f32 v{4+i}, v{12+2*i}, v{13+2*i}')
    k("""buffer_store_dwordx4 v[4:7], v52, s[52:55], s35 offen sc1
buffer_store_dwordx4 v[8:11], v53, s[52:55], s35 offen sc1""")
    for i in range(8):
        k(f'v_lshlrev_b32 v{12+2*i}, 16, v{4+i}\nv_and_b32 v{13+2*i}, 0xffff0000, v{4+i}')
    k("""v_pk_add_f32 v[28:29], v[12:13], v[14:15]
v_pk_mul_f32 v[30:31], v[12:13], v[12:13]
v_pk_add_f32 v[32:33], v[16:17], v[18:19]
v_pk_mul_f32 v[34:35], v[14:15], v[14:15]""")
    for i in range(2, 8):
        k(f'v_pk_fma_f32 {vr(30+4*(i&1),2)}, {vr(12+2*i,2)}, {vr(12+2*i,2)}, {vr(30+4*(i&1),2)}')
        if i >= 4:
            k(f'v_pk_add_f32 {vr(28+4*(i&1),2)}, {vr(28+4*(i&1),2)}, {vr(12+2*i,2)}')
    k("""v_pk_add_f32 v[28:29], v[28:29], v[32:33]
v_pk_add_f32 v[30:31], v[30:31], v[34:35]
v_add_f32 v28, v28, v29
v_add_f32 v30, v30, v31""")
    wave_reduce2(k, 28, 30, 36, 37)
    ln_stats(k, 36, 37, 640, 28, 30, 32)
    ln_apply(k, 12, 16, 28, 30, 40)
    if UNI and opt.get('kwe', 1) == 1: weave_in(k, i0, q, KW[2], None, 124)
    srd_from(k, 68, 40, 41, WS_FL, FL_BYTES)
    k(f"""ds_write_b128 v112, v[40:43]
s_mov_b32 exec_lo, 0x000f000f
s_mov_b32 exec_hi, 0x000f000f
ds_write_b128 v112, v[44:47] offset:1024
s_mov_b64 exec, -1
s_waitcnt lgkmcnt(0)
s_barrier
ds_read_b128 v[40:43], v113
{"ds_read_b128 v[44:47], v115" if G1S else f"ds_read_b128 v[44:47], v113 offset:{4*NP+3*256}"}
s_waitcnt lgkmcnt(1)
buffer_store_dwordx4 v[40:43], v3, s[60:63], s59 offen sc1
s_waitcnt lgkmcnt(0)
buffer_store_dwordx4 v[44:47], v3, s[60:63], s49 offen sc1
v_mov_b32 v114, v124""")
    st(k, 4, 6); st(k, 0, 2)


def poll2(k, loads, chk, sc, sl=0):
    LP = k.label('lp'); LD = k.label('ld')
    k(f'''s_mov_b32 s{sc}, {SPIN}
{LP}:
{loads}
s_waitcnt vmcnt(0)
{chk}
s_cbranch_vccz {LD}
{f"s_sleep {sl}" if sl else ""}
s_sub_u32 s{sc}, s{sc}, 1
s_cmp_lg_u32 s{sc}, 0
s_cbranch_scc1 {LP}
{LD}:''')


def flag_poll(k, sf, sp, n, sl=0, d0=0, part=3, fs=None):
    if part & 1:
        k(f'''v_lshrrev_b32 v10, 4, v3
v_lshlrev_b32 v10, {FS if fs is None else fs}, v10
s_mov_b64 exec, 1
v_mov_b32 v8, 1
buffer_store_dword v8, v10, s[68:71], s{sf} offen sc1''')
    if part & 2:
        k(f's_mov_b64 exec, {hex((1 << n) - 1)}')
        if d0: k(f's_sleep {d0}')
        poll2(k, f'buffer_load_dword v9, v10, s[68:71], s{sp} offen sc1', 'v_cmp_eq_u32 vcc, 0, v9', 43, sl)
    k('s_mov_b64 exec, -1')


def ph_g1(k, opt, DONE, wb, fused=False):
    L = {(g, z): k.label(f'g{g}z{z}') for g in range(2) for z in range(2)}
    WQ = opt.get('WQ', [32, 0, 8, 15])
    k(f's_lshl_b32 s49, s3, {FS}')
    g1id(k, 3, 35)
    k(f'''s_lshr_b32 s35, s3, 4
s_bfe_u32 s36, s3, 0x30001
s_and_b32 s37, s3, 1
s_and_b32 s38, s34, 3
s_lshl_b32 s39, s35, 2
s_add_u32 s39, s39, s38
v_and_b32 v2, 63, v0
v_and_b32 v6, 15, v2
v_lshrrev_b32 v7, 4, v2''')
    if wb: k('v_mov_b32 v88, v114')
    HP0 = opt.get('hp0', 10240)
    srd_from(k, 8, 40, 41, WS_HN, 0x300000)
    k(f'''v_lshlrev_b32 v9, 3, v2
v_lshrrev_b32 v8, 2, v6
v_and_b32 v10, 3, v6
v_mul_u32_u24 v1, {HP0}, v8
v_lshl_add_u32 v1, v7, 6, v1
v_lshl_add_u32 v1, v10, 4, v1
v_add_u32 v2, {4*HP0}, v1
s_lshr_b32 s44, s39, 1
s_mul_i32 s44, s44, {8*HP0}
s_and_b32 s45, s38, 1
s_mul_i32 s45, s45, 5120
s_add_u32 s44, s44, s45
s_add_u32 s45, s44, 4096
v_add_u32 v4, 57344, v3
v_add_u32 v5, 114688, v3''')
    srd_from(k, 12, 40, 41, WS_Z1, A2_BYTES)
    srd_from(k, 16, 40, 41, WS_Z2, Z2N_BYTES)
    srd_from(k, 20, 40, 41, WS_PX, PX_BYTES)
    k(f'''s_and_b32 s47, s3, 15
s_lshl_b32 s47, s47, 4
s_add_u32 s47, s47, s35
s_lshl_b32 s47, s47, {FS}
s_add_u32 s47, s47, {FL2}
s_lshr_b32 s42, s34, 2
s_cmp_eq_u32 s42, s37
s_cselect_b32 s43, 1, 0
s_lshl_b32 s42, s42, 1
s_add_u32 s42, s42, s43
s_cmp_eq_u32 s42, 1
s_cbranch_scc1 {L[0,1]}
s_cmp_eq_u32 s42, 2
s_cbranch_scc1 {L[1,0]}
s_cmp_eq_u32 s42, 3
s_cbranch_scc1 {L[1,1]}''')
    PD = opt.get('PD', 5); NA = PD + 1
    assert 40 + 8 * NA <= 88
    AR = lambda kk, u: vr(40 + 8 * (kk % NA) + 4 * u, 4)
    ACC = lambda u, n: 96 + ((n & 3) * 2 + u) * 4

    def aload(kk, u, v):
        if kk >= 20: return
        k(f'buffer_load_dwordx4 {AR(kk,u)}, v{1+u}, s[8:11], s{44+kk//16} offen offset:{256*(kk%16)}'); v.issue(f'a{kk}')
    NB = 8; LA = opt.get('LA', 6)
    SC = opt.get('gsc', 1)

    def tail(z2, wq, rest):
        if not fused:
            k(f's_branch {DONE}'); return
        if opt.get('pw'):
            assert not rest and not wq.ops
            F2S = opt.get('f2s', 5); FZS = opt.get('fzs', 5)
            if z2:
                k(f'''s_lshl_b32 s47, s36, 3
s_lshr_b32 s42, s39, 4
s_add_u32 s47, s47, s42
s_and_b32 s42, s39, 1
s_lshl_b32 s42, s42, 2
s_add_u32 s47, s47, s42
s_lshl_b32 s47, s47, 4
s_and_b32 s42, s39, 14
s_add_u32 s47, s47, s42
s_add_u32 s47, s47, s37
s_lshl_b32 s47, s47, {F2S}
s_add_u32 s47, s47, {FL2}''')
            else:
                k(f'''s_lshl_b32 s47, s39, 4
s_and_b32 s42, s3, 15
s_add_u32 s47, s47, s42
s_lshl_b32 s47, s47, {FZS}
s_add_u32 s47, s47, {FLU}''')
            map_g2(k)
            k(f'''s_load_dwordx2 s[24:25], s[0:1], 48
s_lshl_b32 s44, s36, 3
s_add_u32 s44, s44, s34
s_lshl_b32 s44, s44, {4+F2S}
s_add_u32 s44, s44, {FL2}
s_waitcnt vmcnt(0)''')
            st(k, 0, 5)
            flag_poll(k, 47, 44, 16, opt.get('g2sl', 0), opt.get('g2d', 0) if z2 else 0, fs=F2S)
            k(f's_waitcnt lgkmcnt(0)\ns_branch {DONE}')
            return
        map_g2(k)
        k('s_load_dwordx2 s[24:25], s[0:1], 48')
        if not z2 and not wq.ops and rest and opt.get('wte', 1) and not W128:
            w_trans(k, 12, 13, rest); rest = []
        k('s_waitcnt vmcnt(0)')
        st(k, 0, 5)
        if z2: k('s_setprio 0')
        if not z2 and not wq.ops and rest and not W128:
            w_trans(k, 12, 13, rest); rest = []
        if W128: assert not wq.ops and not (z2 and rest)
        if not z2: wq(99, None, 88)
        k('s_barrier')
        if z2: wq(99, None, 88)
        NP2 = k.label('np2'); NP3 = k.label('np3')
        if not z2:
            k(f's_cmp_lg_u32 s38, 0\ns_cbranch_scc1 {NP2}')
            flag_poll(k, 47, 44, 32, part=1)
            k(f'{NP2}:')
        if rest:
            k('s_waitcnt vmcnt(0)')
            w_trans(k, 12, 13, rest)
        if not z2:
            k(f'''s_cmp_lg_u32 s38, 0
s_cbranch_scc1 {NP3}
s_lshl_b32 s44, s36, {5+FS}
s_add_u32 s44, s44, {FL2}''')
            flag_poll(k, 47, 44, 32, opt.get('g2sl', 0), opt.get('g2d', 0) if not rest else 0, part=2)
            k(f'{NP3}:')
        k('s_waitcnt lgkmcnt(0)\ns_barrier')
        k(f's_branch {DONE}')

    def path(grp, z2):
        vm = Cnt('vmcnt', 63)
        wq = wb.copy() if wb else None
        tiles = [0, 1, 2, 3] if grp == 0 else [4, 5, 6]
        NT = len(tiles)
        order = [(kk, n) for kk in range(20) for n in tiles]
        k('s_waitcnt vmcnt(0)\ns_barrier')
        st(k, 1, 3); st(k, 4, 7)
        rest = [] if opt.get('now') else list(range(opt.get('wt0', 0), 4))
        n1 = opt.get('wt1', [0, 0])[z2] if not wq.ops else 0
        if W128: n1 = min(opt['wt1'][z2], (32 - len(wq.ops)) // 8)
        now, rest = rest[:n1], rest[n1:]
        if z2:
            NPL = k.label('npl'); NPM = k.label('npm')
            k(f'''s_setprio {opt.get('zprio', 2)}
s_lshl_b32 s42, s35, {4+FS}
s_mov_b32 s46, s49
s_cmp_lg_u32 s38, 0
s_cbranch_scc1 {NPM}''')
            flag_poll(k, 46, 42, 16, part=1)
            k(f'{NPM}:')
            w_trans(k, 12, 13, now, 48)
            k(f's_cmp_lg_u32 s38, 0\ns_cbranch_scc1 {NPL}')
            flag_poll(k, 46, 42, 16, opt.get('g1sl', 0), opt.get('g1d', 0) if not now else 0, part=2)
            k(f'{NPL}:')
        else:
            w_trans(k, 12, 13, now, 48)
            if wq: wq(WQ[0], vm, 88)
        k('s_waitcnt lgkmcnt(0)\ns_barrier')
        st(k, 4, 8)
        st(k, 1, 4); st(k, 0, 3)
        if not z2 and opt.get('zd'): k(f's_sleep {opt["zd"]}')
        for kk in range(PD):
            for u in range(2): aload(kk, u, vm)

        def rdB(f):
            if f >= len(order): return
            kk, n = order[f]
            a = BB + kk * 7168 + n * 1024
            k(f'ds_read_b128 {vr(8+4*(f%NB),4)}, v{3+a//57344} offset:{a%57344}')
        for f in range(LA): rdB(f)
        for f, (kk, n) in enumerate(order):
            x = vm.wait(f'a{kk}')
            if x: k(x)
            if n == tiles[0] and kk in (0, 10): st(k, 1, 5 + kk // 10)
            rem = min(LA - 1, len(order) - 1 - f)
            k(f's_waitcnt lgkmcnt({rem})')
            b = vr(8 + 4 * (f % NB), 4)
            for u in range(2):
                acc = vr(ACC(u, n), 4)
                c = '0' if kk == 0 else acc
                if z2: k(f'{MFMA} {acc}, {AR(kk,u)}, {b}, {c}')
                else: k(f'{MFMA} {acc}, {b}, {AR(kk,u)}, {c}')
            rdB(f + LA)
            i = f % NT
            if i < 2: aload(kk + PD, i, vm)
            if wq and kk >= WQ[3]:
                c = WQ[1 + z2]
                wq((c * (i + 1)) // NT - (c * i) // NT, vm, 88)
        st(k, 1, 7); st(k, 0, 4); st(k, 4, 9)
        k(f'v_mov_b32 v4, {fbits(C1)}\nv_mov_b32 v5, {fbits(C0)}')
        if not z2:
            k(f'''s_lshr_b32 s42, s39, 1
s_lshl_b32 s42, s42, 3
s_add_u32 s42, s42, s36
s_lshl_b32 s42, s42, 1
s_and_b32 s43, s39, 1
s_add_u32 s42, s42, s43
s_lshl_b32 s42, s42, 13
s_add_u32 s43, s42, 4096
v_lshrrev_b32 v2, 1, v3''')
            units = [(u, p) for p in ((0, 1) if grp == 0 else (2,)) for u in range(2)]
            for i, (u, p) in enumerate(units):
                o = 12 + 4 * (i & 1)
                for h in range(2):
                    a = ACC(u, 2 * p + h)
                    k(f'v_cvt_pk_bf16_f32 v{8+2*h}, v{a}, v{a+1}\nv_cvt_pk_bf16_f32 v{9+2*h}, v{a+2}, v{a+3}')
                gelu_pk(k, 8, 8, 20, 28, o, 4, sc=(SC > 1))
                k(f'buffer_store_dwordx4 {vr(o,4)}, v3, s[12:15], s{42+u} offen offset:{1024*p} sc1')
            if grp == 1:
                for u in range(2):
                    a = ACC(u, 6)
                    k(f'v_cvt_pk_bf16_f32 v{8+2*u}, v{a}, v{a+1}\nv_cvt_pk_bf16_f32 v{9+2*u}, v{a+2}, v{a+3}')
                gelu_pk(k, 8, 8, 20, 28, 12, 4, sc=(SC > 1))
                for u in range(2):
                    k(f'buffer_store_dwordx2 {vr(12+2*u,2)}, v2, s[12:15], s{42+u} offen offset:3072 sc1')
            st(k, 1, 8)
            tail(False, wq, rest)
            return
        S = 72; Q = 80
        SK = k.label('sk')
        for i, n in enumerate(tiles):
            if n == 5: k(f's_cmp_eq_u32 s36, 7\ns_cbranch_scc1 {SK}')
            for r in range(4): k(f'v_cvt_pk_bf16_f32 v{8+r}, v{ACC(0,n)+r}, v{ACC(1,n)+r}')
            k(f'''v_permlane32_swap_b32 v8, v10
v_permlane32_swap_b32 v9, v11
v_permlane16_swap_b32 v8, v9
v_permlane16_swap_b32 v10, v11''')
            gelu_pk(k, 8, 8, 20, 28, 12, 4, tr=True, sc=(SC > 0))
            d = 40 + 8 * i
            for r in range(4):
                k(f'v_lshlrev_b32 v{d+2*r}, 16, v{12+r}\nv_and_b32 v{d+1+2*r}, 0xffff0000, v{12+r}')
            for e in range(8):
                if i == 0: k(f'v_mul_f32 v{Q+e}, v{d+e}, v{d+e}\nv_mov_b32 v{S+e}, v{d+e}')
                else: k(f'v_add_f32 v{S+e}, v{S+e}, v{d+e}\nv_fmac_f32 v{Q+e}, v{d+e}, v{d+e}')
        k(f'{SK}:')
        V = [0] * 16
        for e in range(8):
            V[2 * e] = S + e; V[2 * e + 1] = Q + e
        for i in range(8):
            k(f'v_add_f32_dpp v{V[i]}, v{V[i]}, v{V[i]} row_ror:8 row_mask:0xf bank_mask:0x3')
        for i in range(8):
            k(f'v_add_f32_dpp v{V[i]}, v{V[i+8]}, v{V[i+8]} row_ror:8 row_mask:0xf bank_mask:0xc')
        for i in range(4):
            k(f'v_add_f32_dpp v{V[i]}, v{V[i]}, v{V[i]} row_half_mirror row_mask:0xf bank_mask:0x5')
        for i in range(4):
            k(f'v_add_f32_dpp v{V[i]}, v{V[i+4]}, v{V[i+4]} row_half_mirror row_mask:0xf bank_mask:0xa')
        for m in ('quad_perm:[1,0,3,2]', 'quad_perm:[2,3,0,1]'):
            for i in range(4):
                k(f'v_add_f32_dpp v{V[i]}, v{V[i]}, v{V[i]} {m} row_mask:0xf bank_mask:0xf')
        k(f'''s_mov_b32 vcc_lo, 0xaaaaaaaa
s_mov_b32 vcc_hi, 0xaaaaaaaa
v_cndmask_b32 v8, v{V[0]}, v{V[1]}, vcc
v_cndmask_b32 v9, v{V[2]}, v{V[3]}, vcc
s_mov_b32 vcc_lo, 0xcccccccc
s_mov_b32 vcc_hi, 0xcccccccc
v_cndmask_b32 v8, v8, v9, vcc
s_lshl_b32 s42, s39, 12
s_and_b32 s43, s3, 15
s_lshl_b32 s43, s43, 8
s_add_u32 s43, s43, s42
v_lshrrev_b32 v2, 2, v3
buffer_store_dword v8, v2, s[20:23], s43 offen sc1
v_lshrrev_b32 v9, 2, v6
v_and_b32 v10, 3, v6
v_lshlrev_b32 v9, 8, v9
v_lshl_add_u32 v9, v7, 6, v9
v_lshl_add_u32 v1, v10, 4, v9''')
        st(k, 1, 8)
        LP = k.label('lp'); LD = k.label('ld')
        k(f'''s_lshl_b32 s44, s36, 3
s_lshr_b32 s45, s39, 4
s_add_u32 s44, s44, s45
s_and_b32 s45, s39, 1
s_lshl_b32 s45, s45, 2
s_add_u32 s44, s44, s45
s_mul_i32 s44, s44, 56
s_bfe_u32 s45, s39, 0x30001
s_add_u32 s44, s44, s45
s_add_u32 s44, s44, {8*tiles[0]}
s_lshl_b32 s44, s44, 10
v_mov_b32 v4, {fbits(1.0/864)}
s_mov_b32 s43, {SPIN}''')
        if rest and wq and not wq.ops and opt.get('wtp', 1):
            k('s_waitcnt vmcnt(1)')
            w_trans(k, 8, 9, rest, 46); rest = []
        elif opt.get('pxd'): k(f"s_sleep {opt['pxd']}")
        k(f'{LP}:')
        for i in range(4): k(f'buffer_load_dwordx4 {vr(8+4*i,4)}, v1, s[20:23], s42 offen offset:{1024*i} sc1')
        k('s_waitcnt vmcnt(2)')
        k('v_max3_u32 v24, v8, v9, v10\nv_max3_u32 v25, v11, v12, v13\nv_max3_u32 v24, v24, v14, v15')
        for r in range(4): k(f'v_add_f32 v{28+r}, v{8+r}, v{12+r}')
        k('s_waitcnt vmcnt(0)')
        k('''v_max3_u32 v25, v25, v16, v17
v_max3_u32 v24, v24, v18, v19
v_max3_u32 v25, v25, v20, v21
v_max3_u32 v24, v24, v22, v23
v_max_u32 v24, v24, v25
v_cmp_eq_u32 vcc, -1, v24''')
        for r in range(4): k(f'v_add_f32 v{32+r}, v{16+r}, v{20+r}')
        k(f'''s_cbranch_vccz {LD}
{f"s_sleep {opt['pxs']}" if opt.get('pxs') else ""}
s_sub_u32 s43, s43, 1
s_cmp_lg_u32 s43, 0
s_cbranch_scc1 {LP}
{LD}:''')
        st(k, 1, 9); st(k, 0, 9)
        for r in range(4): k(f'v_add_f32 v{28+r}, v{28+r}, v{32+r}')
        for m in ('row_ror:4', 'row_ror:8'):
            for r in range(4): k(f'v_add_f32_dpp v{28+r}, v{28+r}, v{28+r} {m} row_mask:0xf bank_mask:0xf')
        for r in range(4): k(f'v_mul_f32 v{28+r}, v{28+r}, v4')
        k(f'''v_fma_f32 v29, -v28, v28, v29
v_fma_f32 v31, -v30, v30, v31
v_max_f32 v29, 0, v29
v_max_f32 v31, 0, v31
v_cvt_pk_bf16_f32 v12, v28, v30
v_cvt_pk_bf16_f32 v13, v29, v31
v_lshlrev_b32 v8, 16, v12
v_and_b32 v9, 0xffff0000, v12
v_lshlrev_b32 v10, 16, v13
v_and_b32 v11, 0xffff0000, v13
v_add_f32 v10, 0x3727c5ac, v10
v_add_f32 v11, 0x3727c5ac, v11
v_cvt_pk_bf16_f32 v13, v10, v11
v_lshlrev_b32 v10, 16, v13
v_and_b32 v11, 0xffff0000, v13
v_sqrt_f32 v10, v10
v_sqrt_f32 v11, v11''')
        for e in range(8):
            k(f'v_mov_b32_dpp v{16+e}, v{8+(e&1)} quad_perm:[{e>>1},{e>>1},{e>>1},{e>>1}] row_mask:0xf bank_mask:0xf')
        k(f'''v_cvt_pk_bf16_f32 v13, v10, v11
v_lshlrev_b32 v10, 16, v13
v_and_b32 v11, 0xffff0000, v13
v_rcp_f32 v10, v10
v_rcp_f32 v11, v11''')
        for i in range(NT):
            d = 40 + 8 * i
            for e in range(0, 8, 2):
                k(f'v_pk_add_f32 {vr(d+e,2)}, {vr(d+e,2)}, {vr(16+e,2)} neg_lo:[0,1] neg_hi:[0,1]')
            if i == 0:
                for e in range(8):
                    k(f'v_mov_b32_dpp v{24+e}, v{10+(e&1)} quad_perm:[{e>>1},{e>>1},{e>>1},{e>>1}] row_mask:0xf bank_mask:0xf')
            o = 72 + 4 * i
            for r in range(4): k(f'v_cvt_pk_bf16_f32 v{o+r}, v{d+2*r}, v{d+2*r+1}')
            for r in range(4): k(f'v_lshlrev_b32 v{d+2*r}, 16, v{o+r}\nv_and_b32 v{d+1+2*r}, 0xffff0000, v{o+r}')
            for e in range(0, 8, 2):
                k(f'v_pk_mul_f32 {vr(d+e,2)}, {vr(d+e,2)}, {vr(24+e,2)}')
            for r in range(4): k(f'v_cvt_pk_bf16_f32 v{o+r}, v{d+2*r}, v{d+2*r+1}')
            k(f'buffer_store_dwordx4 {vr(o,4)}, v3, s[16:19], s44 offen sc1')
            if i < NT - 1: k('s_add_u32 s44, s44, 8192')
        tail(True, wq, rest)
    for g in range(2):
        for z in range(2):
            k(f'{L[g,z]}:')
            path(g, z)


def ph_g1s(k, opt, DONE, wb):
    assert W128 and not (wb and wb.ops)
    LH = k.label('h1')
    k(f's_lshl_b32 s49, s3, {FS}')
    g1id(k, 3, 35)
    k(f'''s_lshr_b32 s35, s3, 4
s_bfe_u32 s36, s3, 0x30001
s_and_b32 s37, s3, 1
s_and_b32 s38, s34, 3
s_lshl_b32 s39, s35, 2
s_add_u32 s39, s39, s38
s_lshr_b32 s46, s34, 2
v_and_b32 v2, 63, v0
v_and_b32 v6, 15, v2
v_lshrrev_b32 v7, 4, v2''')
    srd_from(k, 8, 40, 41, WS_HN, HN_BYTES)
    k(f'''v_lshrrev_b32 v8, 3, v6
v_and_b32 v10, 3, v6
v_lshl_add_u32 v8, v8, 2, v10
v_mul_u32_u24 v1, {HP}, v8
v_lshl_add_u32 v1, v7, 5, v1
v_bfe_u32 v10, v6, 2, 1
v_lshl_add_u32 v1, v10, 4, v1
s_lshr_b32 s44, s39, 1
s_mul_i32 s44, s44, {8*HP}
s_and_b32 s45, s38, 1
s_lshl_b32 s45, s45, 1
s_add_u32 s45, s45, s46
s_mul_i32 s45, s45, 2560
s_add_u32 s44, s44, s45
v_add_u32 v4, 57344, v3
v_add_u32 v5, 114688, v3''')
    k(f'''v_lshrrev_b32 v8, 2, v6
v_and_b32 v9, 1, v6
v_lshl_add_u32 v8, v8, 1, v9
v_lshlrev_b32 v8, 2, v8
v_lshl_add_u32 v8, v7, 5, v8
v_lshrrev_b32 v10, 1, v6
v_lshlrev_b32 v10, 7, v10
v_lshl_add_u32 v10, v7, 5, v10
v_lshl_add_u32 v10, v9, 4, v10
v_lshl_add_u32 v2, v10, 16, v8
v_mov_b32 v6, {fbits(C1)}
v_mov_b32 v7, {fbits(C0)}''')
    srd_from(k, 12, 40, 41, WS_Z1, A2_BYTES)
    srd_from(k, 16, 40, 41, WS_Z2, Z2N_BYTES)
    srd_from(k, 20, 40, 41, WS_PX, PX_BYTES)
    k(f'''s_and_b32 s47, s3, 15
s_lshl_b32 s53, s47, 7
s_lshl_b32 s47, s47, 4
s_add_u32 s47, s47, s35
s_lshl_b32 s47, s47, {FS}
s_add_u32 s47, s47, {FL2}
s_lshl_b32 s52, s39, 1
s_add_u32 s52, s52, s46
s_lshl_b32 s52, s52, 11
s_add_u32 s53, s53, s52
s_lshl_b32 s54, s36, 3
s_lshr_b32 s42, s39, 4
s_add_u32 s54, s54, s42
s_and_b32 s42, s39, 1
s_lshl_b32 s42, s42, 2
s_add_u32 s54, s54, s42
s_mul_i32 s54, s54, 56
s_bfe_u32 s42, s39, 0x30001
s_add_u32 s54, s54, s42
s_lshl_b32 s42, s37, 5
s_add_u32 s54, s54, s42
s_lshl_b32 s54, s54, 1
s_add_u32 s54, s54, s46
s_lshl_b32 s54, s54, 9
s_lshr_b32 s55, s39, 1
s_lshl_b32 s55, s55, 3
s_add_u32 s55, s55, s36
s_lshl_b32 s55, s55, 1
s_and_b32 s42, s39, 1
s_add_u32 s55, s55, s42
s_lshl_b32 s55, s55, 1
s_add_u32 s55, s55, s46
s_lshl_b32 s55, s55, 12
s_cmp_eq_u32 s36, 7
s_cselect_b32 s48, 0, -1
s_lshl_b32 s42, s35, {4+FS}
s_waitcnt vmcnt(0)
s_barrier''')
    st(k, 1, 3); st(k, 4, 7)
    W4 = k.label('w4'); WJ = k.label('wj')
    NOW = opt.get('now', 0)
    WT2 = opt.get('wt2', 0)
    k(f's_cmp_ge_u32 s34, 4\ns_cbranch_scc1 {W4}')
    if not NOW: w_trans(k, 12, 13, [0, 1, 2, 3], 43)
    k(f's_branch {WJ}\n{W4}:\ns_cmp_lg_u32 s34, 4\ns_cbranch_scc1 {WJ}')
    flag_poll(k, 49, 42, 16, opt.get('g1sl', 0), opt.get('g1d', 0))
    k(f'{WJ}:\ns_waitcnt lgkmcnt(0)\ns_barrier')
    st(k, 4, 8); st(k, 1, 4); st(k, 0, 3)
    AR = lambda kk: 32 + 4 * kk
    PD = opt.get('PD', 8)

    def aload(kk, vm=None):
        if kk >= 20: return
        k(f'buffer_load_dwordx4 {vr(AR(kk),4)}, v1, s[8:11], s44 offen offset:{128*kk}')
        if vm: vm.issue(f'a{kk}')
    for kk in range(PD): aload(kk)
    if WT2 and not NOW:
        W5 = k.label('w5')
        k(f's_cmp_lt_u32 s34, 4\ns_cbranch_scc1 {W5}')
        w_trans(k, 12, 13, list(range(WT2)), 43)
        k(f's_waitcnt lgkmcnt(0)\n{W5}:')
    k(f's_cmp_eq_u32 s37, 1\ns_cbranch_scc1 {LH}')
    LA = opt.get('LA', 5); LA1 = opt.get('LA1', 6)
    SC = opt.get('gsc', 0)
    ACC = lambda i: 112 + 4 * i

    def path(hh):
        vm = Cnt('vmcnt', 63); lg = Cnt('lgkmcnt', 15)
        for kk in range(PD): vm.issue(f'a{kk}')
        tz = [0, 1, 2, 3] if hh == 0 else [4, 5, 6]
        t1 = [4, 5, 6] if hh == 0 else [0, 1, 2, 3]

        def gpass(tiles, z2, free, la, ev=None, order=None, fill=None, R=0):
            order = order or [(kk, i) for kk in range(20) for i in range(len(tiles))]
            last = {}
            for f, (kk, i) in enumerate(order): last[kk] = f
            buf = {}; nr = [0]; pend = []

            def reads(f):
                while nr[0] < len(order) and nr[0] <= f + la and free:
                    q = nr[0]; kk, i = order[q]
                    b = free.pop(0); buf[q] = b
                    a = BB + kk * 7168 + tiles[i] * 1024
                    k(f'ds_read_b128 {vr(b,4)}, v{3+a//57344} offset:{a%57344}'); lg.issue(f'b{z2}_{q}')
                    nr[0] += 1
            reads(-1)
            for f, (kk, i) in enumerate(order):
                x = vm.wait(f'a{kk}')
                if x: k(x)
                if z2 and i == 0 and kk in (0, 10): st(k, 1, 5 + kk // 10)
                x = lg.wait(f'b{z2}_{f}')
                if x: k(x)
                acc = vr(ACC(i), 4); c = '0' if kk == 0 else acc
                b = vr(buf[f], 4); a = vr(AR(kk), 4)
                k(f'{MFMA} {acc}, {a}, {b}, {c}' if z2 else f'{MFMA} {acc}, {b}, {a}, {c}')
                free += pend; pend = [buf[f]]
                if not z2 and last[kk] == f: pend.append(AR(kk))
                reads(f)
                if z2 and i == 0: aload(kk + PD, vm)
                if ev and f in ev:
                    for e in ev[f]: e()
                if fill:
                    for _ in range(R):
                        if fill and fill[0][0] <= f:
                            o = fill.pop(0)[1]
                            o() if callable(o) else k(o)
        if opt.get('zprio'): k(f's_setprio {opt["zprio"]}')
        gpass(tz, 1, [8, 12, 16, 20, 24, 28], LA)
        st(k, 1, 7); st(k, 0, 4); st(k, 4, 9)
        S = 20; Q = 8
        prs = [(0, 2), (2, 2)] if hh == 0 else [(0, 2), (2, 1)]
        for pi, (i0, nt) in enumerate(prs):
            xp = 24 + 2 * i0; a = ACC(i0); n = 4 * nt
            for h in range(2 * nt): k(f'v_cvt_pk_bf16_f32 v{xp+h}, v{a+2*h}, v{a+2*h+1}')
            if hh:
                for h in range(2 * nt):
                    if tz[i0 + h // 2] >= 5: k(f'v_and_b32 v{xp+h}, s48, v{xp+h}')
            gelu_pk(k, xp, n, a, 12, xp, 6, sc=(SC > 0))
            for h in range(2 * nt):
                k(f'v_lshlrev_b32 v{a+2*h}, 16, v{xp+h}\nv_and_b32 v{a+1+2*h}, 0xffff0000, v{xp+h}')
            if SC > 0:
                for e in range(n):
                    r = e & 3
                    if pi == 0 and e < 4: k(f'v_mul_f32 v{Q+r}, v{a+e}, v{a+e}')
                    elif pi == 0: k(f'v_add_f32 v{S+r}, v{a+r}, v{a+e}\nv_fmac_f32 v{Q+r}, v{a+e}, v{a+e}')
                    else: k(f'v_add_f32 v{S+r}, v{S+r}, v{a+e}\nv_fmac_f32 v{Q+r}, v{a+e}, v{a+e}')
            else:
                for e in range(0, n, 2):
                    r = e & 3
                    d = vr(a + e, 2); q = vr(Q + r, 2); s_ = vr(S + r, 2)
                    if pi == 0 and e < 4: k(f'v_pk_mul_f32 {q}, {d}, {d}')
                    elif pi == 0: k(f'v_pk_add_f32 {s_}, {vr(a+r,2)}, {d}\nv_pk_fma_f32 {q}, {d}, {d}, {q}')
                    else: k(f'v_pk_add_f32 {s_}, {s_}, {d}\nv_pk_fma_f32 {q}, {d}, {d}, {q}')
        V = []
        for r in range(4): V += [S + r, Q + r]
        for i in range(4): k(f'v_add_f32_dpp v{V[i]}, v{V[i]}, v{V[i]} row_ror:8 row_mask:0xf bank_mask:0x3')
        for i in range(4): k(f'v_add_f32_dpp v{V[i]}, v{V[i+4]}, v{V[i+4]} row_ror:8 row_mask:0xf bank_mask:0xc')
        for i in range(2): k(f'v_add_f32_dpp v{V[i]}, v{V[i]}, v{V[i]} row_half_mirror row_mask:0xf bank_mask:0x5')
        k('v_and_b32 v12, 0xffff, v2')
        for i in range(2): k(f'v_add_f32_dpp v{V[i]}, v{V[i+2]}, v{V[i+2]} row_half_mirror row_mask:0xf bank_mask:0xa')
        k('v_lshrrev_b32 v1, 16, v2\ns_mov_b32 vcc_lo, 0xaaaaaaaa\ns_mov_b32 vcc_hi, 0xaaaaaaaa')
        for m in ('quad_perm:[1,0,3,2]', 'quad_perm:[2,3,0,1]'):
            for i in range(2): k(f'v_add_f32_dpp v{V[i]}, v{V[i]}, v{V[i]} {m} row_mask:0xf bank_mask:0xf')
        k(f'''v_cndmask_b32 v13, v{V[0]}, v{V[1]}, vcc
buffer_store_dword v13, v12, s[20:23], s53 offen sc1''')
        vm.issue('px')
        st(k, 1, 8)
        if opt.get('zprio'): k('s_setprio 0')
        n1 = 20 * len(t1)
        PB = 32

        def pxld():
            for i in range(2): k(f'buffer_load_dwordx4 {vr(PB+4*i,4)}, v1, s[20:23], s52 offen offset:{1024*i} sc1')
        ev = {}
        PXE = opt.get('pxe', 12)
        ev[n1 - 1 - PXE] = [lambda: (pxld(), vm.issue('pl'), vm.issue('pl'))]

        class Pool(list):
            def __iadd__(self, o):
                return list.__iadd__(self, [x for x in o if x not in (32, 36)])
        gpass(t1, 0, Pool([16, 8, 20, 12]), LA1, ev)
        st(k, 1, 9)
        LP = k.label('lp'); LD = k.label('ld'); L1 = k.label('l1')
        k(f'''v_and_b32 v2, 31, v0
v_lshlrev_b32 v2, 4, v2
v_bfe_u32 v4, v0, 5, 1
v_lshl_add_u32 v2, v4, 13, v2
v_mov_b32 v4, {fbits(1.0/864)}
s_mov_b32 s43, {SPIN}
s_branch {L1}
{LP}:''')
        if opt.get('pxs'): k(f"s_sleep {opt['pxs']}")
        pxld()
        k(f'''{L1}:
s_waitcnt vmcnt(0)
v_max3_u32 v8, v32, v33, v34
v_max3_u32 v9, v35, v36, v37
v_max3_u32 v8, v8, v38, v39
v_max_u32 v8, v8, v9
v_cmp_eq_u32 vcc, -1, v8''')
        for r in range(4): k(f'v_add_f32 v{40+r}, v{32+r}, v{36+r}')
        k(f'''s_cbranch_vccz {LD}
s_sub_u32 s43, s43, 1
s_cmp_lg_u32 s43, 0
s_cbranch_scc1 {LP}
{LD}:''')
        st(k, 0, 9); st(k, 6, 1)
        for m in ('row_ror:2', 'row_ror:4', 'row_ror:8'):
            for r in range(4): k(f'v_add_f32_dpp v{40+r}, v{40+r}, v{40+r} {m} row_mask:0xf bank_mask:0xf')
        for r in range(4): k(f'v_mul_f32 v{40+r}, v{40+r}, v4')
        k(f'''v_fma_f32 v41, -v40, v40, v41
v_fma_f32 v43, -v42, v42, v43
v_max_f32 v41, 0, v41
v_max_f32 v43, 0, v43
v_cvt_pk_bf16_f32 v12, v40, v42
v_cvt_pk_bf16_f32 v13, v41, v43
v_lshlrev_b32 v8, 16, v12
v_and_b32 v9, 0xffff0000, v12
v_lshlrev_b32 v10, 16, v13
v_and_b32 v11, 0xffff0000, v13
v_add_f32 v10, 0x3727c5ac, v10
v_add_f32 v11, 0x3727c5ac, v11
v_cvt_pk_bf16_f32 v13, v10, v11
v_lshlrev_b32 v10, 16, v13
v_and_b32 v11, 0xffff0000, v13
v_sqrt_f32 v10, v10
v_sqrt_f32 v11, v11''')
        for r in range(4):
            k(f'v_mov_b32_dpp v{16+r}, v{8+(r&1)} quad_perm:[{r>>1},{r>>1},{r>>1},{r>>1}] row_mask:0xf bank_mask:0xf')
        k(f'''v_cvt_pk_bf16_f32 v13, v10, v11
v_lshlrev_b32 v10, 16, v13
v_and_b32 v11, 0xffff0000, v13
v_rcp_f32 v10, v10
v_rcp_f32 v11, v11''')
        NT = len(tz)
        D = 48
        for h in range(2 * NT):
            k(f'v_lshlrev_b32 v{D+2*h}, 16, v{24+h}\nv_and_b32 v{D+1+2*h}, 0xffff0000, v{24+h}')
        for h in range(2 * NT):
            k(f'v_pk_add_f32 {vr(D+2*h,2)}, {vr(D+2*h,2)}, {vr(16+2*(h&1),2)} neg_lo:[0,1] neg_hi:[0,1]')
        for r in range(4):
            k(f'v_mov_b32_dpp v{20+r}, v{10+(r&1)} quad_perm:[{r>>1},{r>>1},{r>>1},{r>>1}] row_mask:0xf bank_mask:0xf')
        for pi, (i0, nt) in enumerate(prs):
            hs = range(2 * i0, 2 * i0 + 2 * nt)
            for h in hs: k(f'v_cvt_pk_bf16_f32 v{24+h}, v{D+2*h}, v{D+2*h+1}')
            for h in hs: k(f'v_lshlrev_b32 v{D+2*h}, 16, v{24+h}\nv_and_b32 v{D+1+2*h}, 0xffff0000, v{24+h}')
            for h in hs: k(f'v_pk_mul_f32 {vr(D+2*h,2)}, {vr(D+2*h,2)}, {vr(20+2*(h&1),2)}')
            for h in hs: k(f'v_cvt_pk_bf16_f32 v{24+h}, v{D+2*h}, v{D+2*h+1}')
            xp = 24 + 2 * i0
            if nt == 1:
                for h in hs: k(f'v_cvt_pk_bf16_f32 v{26+h}, v{D+2*h}, v{D+2*h+1}')
            k(f'v_permlane32_swap_b32 v{xp}, v{xp+2}\nv_permlane32_swap_b32 v{xp+1}, v{xp+3}')
            if nt == 1: k('s_mov_b32 exec_hi, 0')
            k(f'buffer_store_dwordx4 {vr(xp,4)}, v2, s[16:19], s54 offen sc1')
            if nt == 1: k('s_mov_b32 exec_hi, -1')
            if pi == 0: k('s_add_u32 s54, s54, 16384')
        st(k, 6, 2)
        k('v_lshrrev_b32 v1, 1, v3')
        p1 = [(0, 2, 2048), (2, 1, 3072)] if hh == 0 else [(0, 2, 0), (2, 2, 1024)]
        for pi, (i0, nt, off) in enumerate(p1):
            o = 8 + 4 * pi; a = ACC(i0)
            for h in range(2 * nt): k(f'v_cvt_pk_bf16_f32 v{o+h}, v{a+2*h}, v{a+2*h+1}')
            gelu_pk(k, o, 4 * nt, 32 + 16 * pi, 40 + 16 * pi, o, 6, sc=(SC > 1))
            if nt == 2: k(f'buffer_store_dwordx4 {vr(o,4)}, v3, s[12:15], s55 offen offset:{off} sc1')
            else: k(f'buffer_store_dwordx2 {vr(o,2)}, v1, s[12:15], s55 offen offset:{off} sc1')
        st(k, 6, 3)
        map_g2(k)
        k('s_load_dwordx2 s[24:25], s[0:1], 48\ns_waitcnt vmcnt(0)')
        st(k, 0, 5); st(k, 6, 4)
        T4 = k.label('t4'); TJ = k.label('tj')
        k(f'''s_barrier
s_cmp_ge_u32 s34, 4
s_cbranch_scc1 {T4}
s_cmp_lg_u32 s34, 0
s_cbranch_scc1 {TJ}
s_lshl_b32 s44, s36, {5+FS}
s_add_u32 s44, s44, {FL2}''')
        flag_poll(k, 47, 44, 32, opt.get('g2sl', 0), opt.get('g2d', 0))
        k(f's_branch {TJ}\n{T4}:')
        if not NOW: w_trans(k, 12, 13, list(range(WT2, 4)), 43)
        st(k, 6, 5)
        k(f'{TJ}:\ns_waitcnt lgkmcnt(0)\ns_barrier\ns_branch {DONE}')
    path(0)
    k(f'{LH}:')
    path(1)


def ph_g1t(k, opt, DONE, wb):
    assert W128 and not (wb and wb.ops) and not G1S
    LH = k.label('h1')
    HP0 = opt.get('hp0', 10240)
    k(f's_lshl_b32 s49, s3, {FS}')
    g1id(k, 3, 35)
    k(f'''s_lshr_b32 s35, s3, 4
s_bfe_u32 s36, s3, 0x30001
s_and_b32 s37, s3, 1
s_and_b32 s38, s34, 3
s_lshl_b32 s39, s35, 2
s_add_u32 s39, s39, s38
s_lshr_b32 s46, s34, 2
v_and_b32 v2, 63, v0
v_and_b32 v6, 15, v2
v_lshrrev_b32 v7, 4, v2''')
    srd_from(k, 8, 40, 41, WS_HN, 0x300000)
    k(f'''v_lshrrev_b32 v8, 2, v6
v_and_b32 v10, 3, v6
v_mul_u32_u24 v1, {HP0}, v8
v_lshl_add_u32 v1, v7, 6, v1
v_lshl_add_u32 v1, v10, 4, v1
s_and_b32 s44, s39, -2
s_add_u32 s44, s44, s46
s_mul_i32 s44, s44, {4*HP0}
s_and_b32 s45, s38, 1
s_mul_i32 s45, s45, 5120
s_add_u32 s44, s44, s45
s_add_u32 s45, s44, 4096
v_add_u32 v4, 57344, v3
v_add_u32 v5, 114688, v3''')
    k(f'''v_and_b32 v9, 1, v6
v_lshl_add_u32 v9, v8, 1, v9
v_lshlrev_b32 v9, 2, v9
v_lshl_add_u32 v9, v7, 6, v9
v_lshlrev_b32 v8, 8, v8
v_lshl_add_u32 v8, v7, 6, v8
v_lshl_add_u32 v8, v10, 4, v8
v_lshl_add_u32 v2, v8, 16, v9
v_mov_b32 v6, {fbits(C0 if GV else C1)}
v_mov_b32 v7, {fbits(C0)}
s_mov_b32 s62, {fbits(C1)}
s_mov_b32 s63, {fbits(C1)}''')
    srd_from(k, 12, 40, 41, WS_Z1, A2_BYTES)
    srd_from(k, 16, 40, 41, WS_Z2, Z2N_BYTES)
    srd_from(k, 20, 40, 41, WS_PX, PX_BYTES)
    k(f'''s_and_b32 s47, s3, 15
s_lshl_b32 s53, s47, 8
s_lshl_b32 s47, s47, 4
s_add_u32 s47, s47, s35
s_lshl_b32 s47, s47, {FS}
s_add_u32 s47, s47, {FL2}
s_lshl_b32 s52, s39, 12
s_add_u32 s53, s53, s52
s_lshl_b32 s42, s46, 5
s_add_u32 s53, s53, s42
s_lshl_b32 s54, s36, 3
s_lshr_b32 s42, s39, 4
s_add_u32 s54, s54, s42
s_and_b32 s42, s39, 1
s_lshl_b32 s42, s42, 2
s_add_u32 s54, s54, s42
s_mul_i32 s54, s54, 56
s_bfe_u32 s42, s39, 0x30001
s_add_u32 s54, s54, s42
s_lshl_b32 s42, s37, 5
s_add_u32 s54, s54, s42
s_lshl_b32 s42, s46, 4
s_add_u32 s54, s54, s42
s_lshl_b32 s54, s54, 10
s_add_u32 s56, s54, 8192
s_and_b32 s42, s37, s46
s_cmp_eq_u32 s42, 1
s_cselect_b32 s56, {BIG}, s56
s_lshr_b32 s55, s39, 1
s_lshl_b32 s55, s55, 3
s_add_u32 s55, s55, s36
s_lshl_b32 s55, s55, 1
s_and_b32 s42, s39, 1
s_add_u32 s55, s55, s42
s_lshl_b32 s55, s55, 1
s_add_u32 s55, s55, s46
s_lshl_b32 s55, s55, 12
s_cmp_eq_u32 s36, 7
s_cselect_b32 s48, 0, -1
s_cselect_b32 s59, 0xffff, -1
s_lshl_b32 s58, s38, 12
s_lshl_b32 s57, s46, 3
s_add_u32 s57, s57, s58
s_lshl_b32 s42, s46, 11
s_add_u32 s58, s58, s42
s_lshl_b32 s42, s35, {4+FS}
s_waitcnt vmcnt(0)
s_barrier''')
    st(k, 1, 3); st(k, 4, 7)
    W4 = k.label('w4'); WJ = k.label('wj')
    NOW = opt.get('now', 0)
    k(f's_cmp_ge_u32 s34, 4\ns_cbranch_scc1 {W4}')
    if not NOW: w_trans(k, 12, 13, [0, 1, 2, 3], 43)
    k(f's_branch {WJ}\n{W4}:\ns_cmp_lg_u32 s34, 4\ns_cbranch_scc1 {WJ}')
    flag_poll(k, 49, 42, 16, opt.get('g1sl', 0), opt.get('g1d', 0))
    k(f'{WJ}:\ns_waitcnt lgkmcnt(0)\ns_barrier')
    st(k, 4, 8); st(k, 1, 4); st(k, 0, 3)
    AR = lambda kk: 32 + 4 * kk
    PD = opt.get('PD', 8)

    def aload(kk, vm=None):
        if kk >= 20: return
        k(f'buffer_load_dwordx4 {vr(AR(kk),4)}, v1, s[8:11], s{44+kk//16} offen offset:{256*(kk%16)}')
        if vm: vm.issue(f'a{kk}')
    for kk in range(PD): aload(kk)
    k(f's_cmp_eq_u32 s37, 1\ns_cbranch_scc1 {LH}')
    LA = opt.get('LA', 5); LA1 = opt.get('LA1', 6)
    SC = opt.get('gsc', 0)
    ACC = lambda i: 112 + 4 * i

    def path(hh):
        vm = Cnt('vmcnt', 63); lg = Cnt('lgkmcnt', 15)
        for kk in range(PD): vm.issue(f'a{kk}')
        tz = [0, 1, 2, 3] if hh == 0 else [4, 5, 6]
        t1 = [4, 5, 6] if hh == 0 else [0, 1, 2, 3]

        def gpass(tiles, z2, free, la, ev=None, keep=()):
            order = [(kk, i) for kk in range(20) for i in range(len(tiles))]
            last = {}
            for f, (kk, i) in enumerate(order): last[kk] = f
            buf = {}; nr = [0]; pend = []

            def reads(f):
                while nr[0] < len(order) and nr[0] <= f + la and free:
                    q = nr[0]; kk, i = order[q]
                    b = free.pop(0); buf[q] = b
                    a = BB + kk * 7168 + tiles[i] * 1024
                    k(f'ds_read_b128 {vr(b,4)}, v{3+a//57344} offset:{a%57344}'); lg.issue(f'b{z2}_{q}')
                    nr[0] += 1
            reads(-1)
            for f, (kk, i) in enumerate(order):
                x = vm.wait(f'a{kk}')
                if x: k(x)
                if z2 and i == 0 and kk in (0, 10): st(k, 1, 5 + kk // 10)
                x = lg.wait(f'b{z2}_{f}')
                if x: k(x)
                acc = vr(ACC(i), 4); c = '0' if kk == 0 else acc
                b = vr(buf[f], 4); a = vr(AR(kk), 4)
                k(f'{MFMA} {acc}, {a}, {b}, {c}' if z2 else f'{MFMA} {acc}, {b}, {a}, {c}')
                free.extend(pend); pend = [buf[f]]
                if not z2 and last[kk] == f and AR(kk) not in keep: pend.append(AR(kk))
                reads(f)
                if z2 and i == 0: aload(kk + PD, vm)
                if ev and f in ev:
                    for e in ev[f]: e()
        if opt.get('zprio'): k(f's_setprio {opt["zprio"]}')
        gpass(tz, 1, [8, 12, 16, 20, 24, 28], LA)
        st(k, 1, 7); st(k, 0, 4); st(k, 4, 9)
        S = 20; Q = 8
        k('v_add_u32 v1, s57, v3')
        prs = [(0, 2), (2, 2)] if hh == 0 else [(0, 2), (2, 1)]
        for pi, (i0, nt) in enumerate(prs):
            xp = 24 + 2 * i0; a = ACC(i0); n = 4 * nt
            if nt == 2:
                for r in range(4): k(f'v_cvt_pk_bf16_f32 v{xp+r}, v{a+r}, v{a+4+r}')
                if hh:
                    for r in range(4): k(f'v_and_b32 v{xp+r}, s59, v{xp+r}')
                k(f'''v_permlane32_swap_b32 v{xp}, v{xp+2}
v_permlane32_swap_b32 v{xp+1}, v{xp+3}
v_permlane16_swap_b32 v{xp}, v{xp+1}
v_permlane16_swap_b32 v{xp+2}, v{xp+3}''')
                gelu_pk(k, xp, 8, a, 12, xp, 6, tr=True, sc=(SC > 0))
            else:
                k(f'''v_permlane32_swap_b32 v{a}, v{a+2}
v_permlane32_swap_b32 v{a+1}, v{a+3}
v_permlane16_swap_b32 v{a}, v{a+1}
v_permlane16_swap_b32 v{a+2}, v{a+3}''')
                for h in range(2): k(f'v_cvt_pk_bf16_f32 v{xp+h}, v{a+2*h}, v{a+2*h+1}')
                for h in range(2): k(f'v_and_b32 v{xp+h}, s48, v{xp+h}')
                gelu_pk(k, xp, 4, a, 12, xp, 6, sc=(SC > 0))
            for t in range(nt):
                k(f'ds_write_b64 v1, {vr(xp+2*t,2)} offset:{1024*(i0+t)}'); lg.issue('x')
            for h in range(2 * nt):
                k(f'v_lshlrev_b32 v{a+2*h}, 16, v{xp+h}\nv_and_b32 v{a+1+2*h}, 0xffff0000, v{xp+h}')
            if SC > 0:
                for e in range(n):
                    r = e & 3
                    if pi == 0 and e < 4: k(f'v_mul_f32 v{Q+r}, v{a+e}, v{a+e}')
                    elif pi == 0: k(f'v_add_f32 v{S+r}, v{a+r}, v{a+e}\nv_fmac_f32 v{Q+r}, v{a+e}, v{a+e}')
                    else: k(f'v_add_f32 v{S+r}, v{S+r}, v{a+e}\nv_fmac_f32 v{Q+r}, v{a+e}, v{a+e}')
            else:
                for e in range(0, n, 2):
                    r = e & 3
                    d = vr(a + e, 2); q = vr(Q + r, 2); s_ = vr(S + r, 2)
                    if pi == 0 and e < 4: k(f'v_pk_mul_f32 {q}, {d}, {d}')
                    elif pi == 0: k(f'v_pk_add_f32 {s_}, {vr(a+r,2)}, {d}\nv_pk_fma_f32 {q}, {d}, {d}, {q}')
                    else: k(f'v_pk_add_f32 {s_}, {s_}, {d}\nv_pk_fma_f32 {q}, {d}, {d}, {q}')
        V = []
        for r in range(4): V += [S + r, Q + r]
        for i in range(4): k(f'v_add_f32_dpp v{V[i]}, v{V[i]}, v{V[i]} row_ror:8 row_mask:0xf bank_mask:0x3')
        for i in range(4): k(f'v_add_f32_dpp v{V[i]}, v{V[i+4]}, v{V[i+4]} row_ror:8 row_mask:0xf bank_mask:0xc')
        for i in range(2): k(f'v_add_f32_dpp v{V[i]}, v{V[i]}, v{V[i]} row_half_mirror row_mask:0xf bank_mask:0x5')
        k('v_and_b32 v12, 0xffff, v2')
        for i in range(2): k(f'v_add_f32_dpp v{V[i]}, v{V[i+2]}, v{V[i+2]} row_half_mirror row_mask:0xf bank_mask:0xa')
        k('v_lshrrev_b32 v1, 16, v2\ns_mov_b32 vcc_lo, 0xaaaaaaaa\ns_mov_b32 vcc_hi, 0xaaaaaaaa')
        for m in ('quad_perm:[1,0,3,2]', 'quad_perm:[2,3,0,1]'):
            for i in range(2): k(f'v_add_f32_dpp v{V[i]}, v{V[i]}, v{V[i]} {m} row_mask:0xf bank_mask:0xf')
        k(f'''v_cndmask_b32 v13, v{V[0]}, v{V[1]}, vcc
buffer_store_dword v13, v12, s[20:23], s53 offen sc1
v_add_u32 v2, s58, v3''')
        vm.issue('px')
        st(k, 1, 8)
        if opt.get('zprio'): k('s_setprio 0')
        n1 = 20 * len(t1)
        PB = 32; XR = 48

        def pxld():
            for i in range(4): k(f'buffer_load_dwordx4 {vr(PB+4*i,4)}, v1, s[20:23], s52 offen offset:{1024*i} sc1')

        def xrd():
            k('s_barrier')
            for t in range(2):
                k(f'ds_read_b128 {vr(XR+4*t,4)}, v2 offset:{1024*t}'); lg.issue('xr')
        ev = {}
        PXE = opt.get('pxe', 12); XE = opt.get('xe', 8)
        ev.setdefault(n1 - 1 - PXE, []).append(pxld)
        ev.setdefault(n1 - 1 - XE, []).append(xrd)
        assert n1 - 1 - max(PXE, XE) >= 6 * len(t1)
        gpass(t1, 0, [16, 24, 28, 8, 20, 12], LA1, ev, keep=(32, 36, 40, 44, 48, 52))
        st(k, 1, 9)
        LP = k.label('lp'); LD = k.label('ld'); L1 = k.label('l1')
        D = 56
        k(f'''v_mov_b32 v4, {fbits(1.0/864)}
s_mov_b32 s43, {SPIN}
s_waitcnt lgkmcnt(0)''')
        for h in range(8):
            k(f'v_lshlrev_b32 v{D+2*h}, 16, v{XR+h}\nv_and_b32 v{D+1+2*h}, 0xffff0000, v{XR+h}')
        k(f'''s_branch {L1}
{LP}:''')
        if opt.get('pxs'): k(f"s_sleep {opt['pxs']}")
        pxld()
        k(f'''{L1}:
s_waitcnt vmcnt(2)
v_max3_u32 v24, v32, v33, v34
v_max3_u32 v25, v35, v36, v37
v_max3_u32 v24, v24, v38, v39''')
        for r in range(4): k(f'v_add_f32 v{28+r}, v{32+r}, v{36+r}')
        k('''s_waitcnt vmcnt(0)
v_max3_u32 v25, v25, v40, v41
v_max3_u32 v24, v24, v42, v43
v_max3_u32 v25, v25, v44, v45
v_max3_u32 v24, v24, v46, v47
v_max_u32 v24, v24, v25
v_cmp_eq_u32 vcc, -1, v24''')
        for r in range(4): k(f'v_add_f32 v{16+r}, v{40+r}, v{44+r}')
        k(f'''s_cbranch_vccz {LD}
s_sub_u32 s43, s43, 1
s_cmp_lg_u32 s43, 0
s_cbranch_scc1 {LP}
{LD}:''')
        st(k, 0, 9); st(k, 6, 1)
        for r in range(4): k(f'v_add_f32 v{28+r}, v{28+r}, v{16+r}')
        for m in ('row_ror:4', 'row_ror:8'):
            for r in range(4): k(f'v_add_f32_dpp v{28+r}, v{28+r}, v{28+r} {m} row_mask:0xf bank_mask:0xf')
        for r in range(4): k(f'v_mul_f32 v{28+r}, v{28+r}, v4')
        k(f'''v_fma_f32 v29, -v28, v28, v29
v_fma_f32 v31, -v30, v30, v31
v_max_f32 v29, 0, v29
v_max_f32 v31, 0, v31
v_cvt_pk_bf16_f32 v12, v28, v30
v_cvt_pk_bf16_f32 v13, v29, v31
v_lshlrev_b32 v8, 16, v12
v_and_b32 v9, 0xffff0000, v12
v_lshlrev_b32 v10, 16, v13
v_and_b32 v11, 0xffff0000, v13
v_add_f32 v10, 0x3727c5ac, v10
v_add_f32 v11, 0x3727c5ac, v11
v_cvt_pk_bf16_f32 v13, v10, v11
v_lshlrev_b32 v10, 16, v13
v_and_b32 v11, 0xffff0000, v13
v_sqrt_f32 v10, v10
v_sqrt_f32 v11, v11''')
        for e in range(8):
            k(f'v_mov_b32_dpp v{16+e}, v{8+(e&1)} quad_perm:[{e>>1},{e>>1},{e>>1},{e>>1}] row_mask:0xf bank_mask:0xf')
        k(f'''v_cvt_pk_bf16_f32 v13, v10, v11
v_lshlrev_b32 v10, 16, v13
v_and_b32 v11, 0xffff0000, v13
v_rcp_f32 v10, v10
v_rcp_f32 v11, v11''')
        for i in range(2):
            d = D + 8 * i
            for e in range(0, 8, 2):
                k(f'v_pk_add_f32 {vr(d+e,2)}, {vr(d+e,2)}, {vr(16+e,2)} neg_lo:[0,1] neg_hi:[0,1]')
            if i == 0:
                for e in range(8):
                    k(f'v_mov_b32_dpp v{24+e}, v{10+(e&1)} quad_perm:[{e>>1},{e>>1},{e>>1},{e>>1}] row_mask:0xf bank_mask:0xf')
            o = XR + 4 * i
            for r in range(4): k(f'v_cvt_pk_bf16_f32 v{o+r}, v{d+2*r}, v{d+2*r+1}')
            for r in range(4): k(f'v_lshlrev_b32 v{d+2*r}, 16, v{o+r}\nv_and_b32 v{d+1+2*r}, 0xffff0000, v{o+r}')
            for e in range(0, 8, 2):
                k(f'v_pk_mul_f32 {vr(d+e,2)}, {vr(d+e,2)}, {vr(24+e,2)}')
            for r in range(4): k(f'v_cvt_pk_bf16_f32 v{o+r}, v{d+2*r}, v{d+2*r+1}')
            k(f'buffer_store_dwordx4 {vr(o,4)}, v3, s[16:19], s{54+2*i} offen sc1')
        st(k, 6, 2)
        k('v_lshrrev_b32 v1, 1, v3')
        p1 = [(0, 2, 2048), (2, 1, 3072)] if hh == 0 else [(0, 2, 0), (2, 2, 1024)]
        for pi, (i0, nt, off) in enumerate(p1):
            o = 8 + 4 * pi; a = ACC(i0)
            for h in range(2 * nt): k(f'v_cvt_pk_bf16_f32 v{o+h}, v{a+2*h}, v{a+2*h+1}')
            gelu_pk(k, o, 4 * nt, 72 + 16 * pi, 80 + 16 * pi, o, 6, sc=(SC > 1))
            if nt == 2: k(f'buffer_store_dwordx4 {vr(o,4)}, v3, s[12:15], s55 offen offset:{off} sc1')
            else: k(f'buffer_store_dwordx2 {vr(o,2)}, v1, s[12:15], s55 offen offset:{off} sc1')
        st(k, 6, 3)
        map_g2(k)
        k('s_load_dwordx2 s[24:25], s[0:1], 48\ns_waitcnt vmcnt(0)')
        st(k, 0, 5); st(k, 6, 4)
        T4 = k.label('t4'); TJ = k.label('tj')
        k(f'''s_barrier
s_cmp_ge_u32 s34, 4
s_cbranch_scc1 {T4}
s_cmp_lg_u32 s34, 0
s_cbranch_scc1 {TJ}
s_lshl_b32 s44, s36, {5+FS}
s_add_u32 s44, s44, {FL2}''')
        flag_poll(k, 47, 44, 32, opt.get('g2sl', 0), opt.get('g2d', 0))
        k(f's_branch {TJ}\n{T4}:')
        if not NOW: w_trans(k, 12, 13, [0, 1, 2, 3], 43)
        st(k, 6, 5)
        k(f'{TJ}:\ns_waitcnt lgkmcnt(0)\ns_barrier\ns_branch {DONE}')
    path(0)
    k(f'{LH}:')
    path(1)


def gen_ka(opt):
    k = Kern('ka_kernel', 256, 512, 163840, nvgpr=128, nagpr=128)
    END = k.label('end')
    k(f's_cmp_ge_u32 s2, 256\ns_cbranch_scc1 {END}')
    k.stamp(True)
    ph_k2a(k, opt, None)
    ph_g1(k, opt, END, None)
    k.finish(END)
    return k


def gen_p(opt, g3=True):
    k = Kern('kp_kernel', 256, 512, 163840, nvgpr=128, nagpr=128)
    END = k.label('end'); G2 = k.label('g2'); G3 = k.label('g3')
    k(f's_cmp_ge_u32 s2, 256\ns_cbranch_scc1 {END}')
    k.stamp(True)
    wb = Bulk(k, [] if opt.get('now') else g2_wops())
    ph_k2a(k, opt, wb)
    ph_g1(k, opt, G2, wb, True)
    k(f'{G2}:')
    st(k, 0, 6)
    vm = Cnt('vmcnt', 63); vm.issue('w')
    if g3:
        g3_wo_setup(k)
        ph_g2(k, opt, G3, vm, True, [] if opt.get('noo') else g3_wo_ops())
        k(f'{G3}:')
        ph_g3(k, opt, True)
    else:
        ph_g2(k, opt, END, vm, False)
    k.finish(END)
    return k


def gen_q(opt):
    k = Kern('k1_kernel', 256, 512, 163840, nvgpr=128, nagpr=128)
    END = k.label('end'); G2 = k.label('g2'); G3 = k.label('g3')
    k(f's_cmp_ge_u32 s2, 256\ns_cbranch_scc1 {END}')
    k.stamp(True)
    wb = Bulk(k, [] if opt.get('now') else g2_wops())
    ph_k12(k, opt, wb)
    if G1S: ph_g1s(k, opt, G2, wb)
    elif opt.get('g1t'): ph_g1t(k, opt, G2, wb)
    else: ph_g1(k, opt, G2, wb, True)
    k(f'{G2}:')
    st(k, 0, 6)
    vm = Cnt('vmcnt', 63); vm.issue('w')
    g3_wo_setup(k)
    if opt.get('g3s'):
        k('s_lshl_b32 s61, s35, 3\ns_add_u32 s61, s61, s34\ns_lshl_b32 s61, s61, 14\ns_add_u32 s62, s61, 8192')
        na = ph_g2(k, opt, G3, vm, True, g3_wo_ops(), g3s_early())
        k(f'{G3}:')
        ph_g3s(k, opt, na)
        k.finish(END)
        return k
    ph_g2(k, opt, G3, vm, True, [] if opt.get('noo') else g3_wo_ops())
    k(f'{G3}:')
    ph_g3(k, opt, True)
    k.finish(END)
    return k


def build(opt):
    lv = opt.get('lv', 1)
    if lv == 4: return [gen_fft.gen_k0(), gen_q(opt)]
    ks = [gen_fft.gen_k0(), gen_fft.gen_k1c()]
    if lv == 1: ks += [gen_ka(opt), gen_g2(opt), gen_g3(opt)]
    if lv == 2: ks += [gen_p(opt, False), gen_g3(opt)]
    if lv == 3: ks += [gen_p(opt)]
    return ks


def g3_wo_setup(k):
    srd_from(k, 28, 40, 41, WS_WO, WO8_BYTES)
    k(f'''s_lshl_b32 s60, s36, 3
s_add_u32 s60, s60, s34
s_mul_i32 s60, s60, {WOB}''')


def g3_wo_ops():
    ops = []
    for i in range(15):
        s = f'buffer_load_dwordx4 {ar(4*i,4)}, v3, s[28:31], s60 offen offset:{1024*(i%4)}'
        if i % 4 == 3: s += '\ns_add_u32 s60, s60, 4096'
        if i == 14: s += '\ns_add_u32 s60, s60, 3072'
        ops.append(s)
    for n in range(5):
        ops.append(f'buffer_load_dwordx2 {ar(60+2*n,2)}, v2, s[28:31], s60 offen offset:{512*n}')
    return ops


def ph_g3(k, opt, fused):
    vm = Cnt('vmcnt', 63); lg = Cnt('lgkmcnt', 15)
    srd_from(k, 8, 40, 41, WS_Z1 if opt.get('ain') else WS_A, A2_BYTES)
    srd_from(k, 12, 80, 81, 0, X_BYTES) if opt.get('hout') else srd_from(k, 12, 40, 41, WS_H, X_BYTES)
    k(f'''s_lshl_b32 s44, s35, 3
s_add_u32 s44, s44, s34
s_lshl_b32 s44, s44, 14
v_lshrrev_b32 v1, 4, v3
v_and_b32 v6, 15, v1
v_lshrrev_b32 v7, 4, v1''')
    k(f'''s_lshr_b32 s45, s34, 1
s_mul_i32 s45, s45, 40960
s_and_b32 s46, s34, 1
s_lshl_b32 s46, s46, 3''')
    ROWA = '''v_lshrrev_b32 v11, 3, v9
v_and_b32 v12, 3, v9
v_lshl_add_u32 v11, v11, 2, v12
v_bfe_u32 v12, v9, 2, 1
v_lshl_add_u32 v11, v12, 8, v11''' if G1S else '''v_lshrrev_b32 v11, 2, v9
v_and_b32 v12, 3, v9
v_lshl_add_u32 v11, v12, 8, v11'''
    for p in range(3):
        k(f'''v_add_u32 v8, {64*p}, v1
v_mul_u32_u24 v9, 3277, v8
v_lshrrev_b32 v9, 16, v9
v_mul_u32_u24 v10, 20, v9
v_sub_u32 v10, v8, v10
v_add_u32 v9, s46, v9
v_add_u32 v11, v9, v10
v_and_b32 v11, 15, v11
v_lshlrev_b32 v11, 4, v11
v_lshrrev_b32 v12, 2, v10
v_lshl_add_u32 v11, v12, 13, v11
v_and_b32 v12, 3, v10
v_lshl_add_u32 v11, v12, 8, v11
v_add_u32 v{116+p}, s45, v11
{ROWA}
v_mul_u32_u24 v11, 1280, v11
v_lshl_add_u32 v{120+p}, v10, 3, v11''')
    k(f'''v_mov_b32 v8, 0x7fffffff
v_cmp_gt_u32 vcc, 32, v1
v_cndmask_b32 v122, v8, v122, vcc
s_lshl_b32 s47, s35, 3
s_and_b32 s43, s34, 2
s_lshl_b32 s43, s43, {8 if G1S else 1}
s_add_u32 s47, s47, s43
s_and_b32 s43, s34, 4
s_lshl_b32 s43, s43, 8
s_add_u32 s47, s47, s43
s_mul_i32 s47, s47, 1280
s_mul_i32 s43, s36, 160
s_add_u32 s47, s47, s43''')
    for p in range(3):
        k(f'buffer_load_dwordx2 {vr(104+2*p,2)}, v{120+p}, s[12:15], s47 offen'); vm.issue('h')
    k(f'''s_lshl_b32 s43, s34, 10
v_add_u32 v8, v6, v7
v_lshlrev_b32 v9, 8, v7
v_add_u32 v9, s43, v9''')
    for n in range(5):
        k(f'''v_add_u32 v10, {4*n}, v8
v_and_b32 v10, 15, v10
v_lshl_add_u32 v10, v10, 4, v9
v_add_u32 v{88+n}, {8192*n}, v10
v_add_u32 v{93+n}, {8192*n+81920}, v10''')
    if fused:
        NP3 = k.label('np3')
        k(f'''s_waitcnt vmcnt(0)
s_barrier
s_cmp_lg_u32 s34, 0
s_cbranch_scc1 {NP3}
s_lshl_b32 s42, s35, {3+FS}
s_add_u32 s42, s42, {FL3}
s_lshl_b32 s46, s36, {FS}
s_add_u32 s46, s46, s42''')
        flag_poll(k, 46, 42, 8, opt.get('g3sl', 0), opt.get('g3d', 0))
        k(f'{NP3}:\ns_barrier')
        vm.done = 3
    st(k, 3, 1); st(k, 0, 8)
    k(f's_cmp_eq_u32 s34, 7\ns_cselect_b32 s48, {BIG}, 0')
    AF = lambda tt, p: 72 + 14 * tt + 4 * p
    for tt in range(4):
        for p in range(3):
            k(f'buffer_load_dwordx4 {ar(AF(tt,p),4)}, v3, s[8:11], s44 offen offset:{1024*p}'); vm.issue(f'a{tt}{p}')
        k(f's_add_u32 s49, s44, s48\nbuffer_load_dwordx2 {ar(AF(tt,3),2)}, v2, s[8:11], s49 offen offset:3072'); vm.issue(f'a{tt}3')
        if tt < 3: k('s_add_u32 s44, s44, 4096')
    srd_from(k, 16, 80, 81, 0, X_BYTES)
    ACC = lambda tt, n: 8 + 20 * (tt & 1) + 4 * n
    pend = []
    for tt in range(4):
        for p in range(4):
            x = vm.wait(f'a{tt}{p}')
            if x: k(x)
            if tt == 0 and p == 0: st(k, 3, 2)
            for n in range(5):
                acc = vr(ACC(tt, n), 4)
                if p < 3: k(f'{MFMA} {acc}, {ar(20*p+4*n,4)}, {ar(AF(tt,p),4)}, {"0" if p == 0 else acc}')
                else: k(f'{MF16} {acc}, {ar(60+2*n,2)}, {ar(AF(tt,3),2)}, {acc}')
                if pend and (5 * p + n) % 3 == 2: k(pend.pop(0))
        for n in range(5):
            pend.append(f'ds_write_b128 v{88+5*(tt>>1)+n}, {vr(ACC(tt,n),4)} offset:{40960*(tt&1)}')
    for o in pend: k(o)
    st(k, 3, 3)
    k('s_waitcnt lgkmcnt(0)\ns_barrier')
    st(k, 3, 4)
    for p in range(3):
        for s in range(8):
            k(f'ds_read_b128 {vr(8+32*p+4*s,4)}, v{116+p} offset:{1024*s}'); lg.issue(f'r{p}{s}')
        if p == 0:
            for q in range(3):
                k(f'v_lshlrev_b32 v{110+2*q}, 16, v{104+2*q}\nv_and_b32 v{104+2*q}, 0xffff0000, v{104+2*q}')
    for p in range(3):
        a = 8 + 32 * p
        for s in (0, 2, 4, 6):
            x = lg.wait(f'r{p}{s+1}')
            if x: k(x)
            for h in range(2): k(f'v_pk_add_f32 {vr(a+4*s+2*h,2)}, {vr(a+4*s+2*h,2)}, {vr(a+4*s+4+2*h,2)}')
            if s in (2, 6):
                for h in range(2): k(f'v_pk_add_f32 {vr(a+4*s-8+2*h,2)}, {vr(a+4*s-8+2*h,2)}, {vr(a+4*s+2*h,2)}')
        for h in range(2): k(f'v_pk_add_f32 {vr(a+2*h,2)}, {vr(a+2*h,2)}, {vr(a+16+2*h,2)}')
        k(f'''v_cvt_pk_bf16_f32 v{a+4}, v{a}, v{a+1}
v_cvt_pk_bf16_f32 v{a+5}, v{a+2}, v{a+3}
v_lshlrev_b32 v{a+8}, 16, v{105+2*p}
v_and_b32 v{a+9}, 0xffff0000, v{105+2*p}
v_lshlrev_b32 v{a}, 16, v{a+4}
v_and_b32 v{a+1}, 0xffff0000, v{a+4}
v_lshlrev_b32 v{a+2}, 16, v{a+5}
v_and_b32 v{a+3}, 0xffff0000, v{a+5}
v_add_f32 v{a}, v{a}, v{110+2*p}
v_add_f32 v{a+1}, v{a+1}, v{104+2*p}
v_pk_add_f32 {vr(a+2,2)}, {vr(a+2,2)}, {vr(a+8,2)}
v_cvt_pk_bf16_f32 v{a+4}, v{a}, v{a+1}
v_cvt_pk_bf16_f32 v{a+5}, v{a+2}, v{a+3}
buffer_store_dwordx2 {vr(a+4,2)}, v{120+p}, s[16:19], s47 offen''')


def g3s_ld(tt, p, fl=''):
    if p < 2: return f'buffer_load_dwordx4 {vr(56+8*tt+4*p,4)}, v3, s[16:19], s{61+(tt>>1)} offen offset:{1024*p}{fl}' if not (tt & 1) else \
        f'buffer_load_dwordx4 {vr(56+8*tt+4*p,4)}, v88, s[16:19], s{61+(tt>>1)} offen offset:{1024*p}{fl}'
    if p == 2: return f'buffer_load_dwordx4 {vr(8+4*tt,4)}, v{88 if tt & 1 else 3}, s[16:19], s{61+(tt>>1)} offen offset:2048{fl}'
    return f'buffer_load_dwordx2 {vr(24+2*tt,2)}, v{89 if tt & 1 else 2}, s[16:19], s{63+(tt>>1)} offen offset:3072{fl}'


def g3s_early():
    ops = [g3s_ld(tt, p) for p in range(2) for tt in range(4)]
    ops[0] = 'v_add_u32 v88, 4096, v3\nv_add_u32 v89, 4096, v2\n' + ops[0]
    return ops


def chk_max(k, regs, t):
    regs = list(regs)
    acc = [None, None]; i = 0
    while regs:
        j = i & 1; i += 1
        if acc[j] is None:
            if len(regs) >= 3: k(f'v_max3_u32 v{t+j}, v{regs[0]}, v{regs[1]}, v{regs[2]}'); regs = regs[3:]
            elif len(regs) == 2: k(f'v_max_u32 v{t+j}, v{regs[0]}, v{regs[1]}'); regs = []
            else: k(f'v_mov_b32 v{t+j}, v{regs[0]}'); regs = []
            acc[j] = 1
        elif len(regs) >= 2: k(f'v_max3_u32 v{t+j}, v{t+j}, v{regs[0]}, v{regs[1]}'); regs = regs[2:]
        else: k(f'v_max_u32 v{t+j}, v{t+j}, v{regs[0]}'); regs = []
    if acc[1]: k(f'v_max_u32 v{t}, v{t}, v{t+1}')
    k(f'v_cmp_eq_u32 vcc, -1, v{t}')


def ph_g3s(k, opt, na):
    vm = Cnt('vmcnt', 63); lg = Cnt('lgkmcnt', 15)
    if opt.get('g3e', 0) == 3:
        for o in g3s_early(): k(o)
        na = 0
    vm.issue('e')
    for _ in range(na): vm.issue('s')
    srd_from(k, 12, 80, 81, 0, X_BYTES) if opt.get('hout') else srd_from(k, 12, 40, 41, WS_H, X_BYTES)
    LW = 90
    k(f'''s_cmp_eq_u32 s34, 7
s_cselect_b32 s63, {BIG}, s61
s_cselect_b32 s64, {BIG}, s62
v_lshrrev_b32 v1, 4, v3
v_and_b32 v6, 15, v1
v_lshrrev_b32 v7, 4, v1
s_lshr_b32 s45, s34, 1
s_mul_i32 s45, s45, 40960
s_and_b32 s46, s34, 1
s_lshl_b32 s46, s46, 3''')
    I2 = opt.get('g3i', [0, 20])
    if I2[0] < 0:
        for tt in range(4): k(g3s_ld(tt, 2, ' sc1')); vm.issue('p2')
    for p in range(3):
        k(f'''v_add_u32 v100, {64*p}, v1
v_mul_u32_u24 v101, 3277, v100
v_lshrrev_b32 v101, 16, v101
v_mul_u32_u24 v102, 20, v101
v_sub_u32 v102, v100, v102
v_add_u32 v101, s46, v101
v_add_u32 v103, v101, v102
v_and_b32 v103, 15, v103
v_lshlrev_b32 v103, 4, v103
v_lshrrev_b32 v110, 2, v102
v_lshl_add_u32 v103, v110, 13, v103
v_and_b32 v110, 3, v102
v_lshl_add_u32 v103, v110, 8, v103
v_add_u32 v{116+p}, s45, v103
v_lshrrev_b32 v103, 2, v101
v_and_b32 v110, 3, v101
v_lshl_add_u32 v103, v110, 8, v103
v_mul_u32_u24 v103, 1280, v103
v_lshl_add_u32 v{120+p}, v102, 3, v103''')
    k(f'''v_mov_b32 v100, 0x7fffffff
v_cmp_gt_u32 vcc, 32, v1
v_cndmask_b32 v122, v100, v122, vcc
s_lshl_b32 s47, s35, 3
s_and_b32 s43, s34, 2
s_lshl_b32 s43, s43, 1
s_add_u32 s47, s47, s43
s_and_b32 s43, s34, 4
s_lshl_b32 s43, s43, 8
s_add_u32 s47, s47, s43
s_mul_i32 s47, s47, 1280
s_mul_i32 s43, s36, 160
s_add_u32 s47, s47, s43''')
    for p in range(3):
        k(f'buffer_load_dwordx2 {vr(104+2*p,2)}, v{120+p}, s[12:15], s47 offen'); vm.issue('h')
    k(f'''s_lshl_b32 s43, s34, 10
v_add_u32 v100, v6, v7
v_lshlrev_b32 v101, 8, v7
v_add_u32 v101, s43, v101''')
    for n in range(5):
        k(f'''v_add_u32 v102, {4*n}, v100
v_and_b32 v102, 15, v102
v_lshl_add_u32 v102, v102, 4, v101
v_add_u32 v{LW+n}, {8192*n}, v102
v_add_u32 v{LW+5+n}, {8192*n+81920}, v102''')
    srd_from(k, 8, 80, 81, 0, X_BYTES)

    def ACC(tt, n):
        i = 5 * tt + n
        return ar(72 + 4 * i, 4) if i < 14 else vr(32 + 4 * (i - 14), 4)

    def gate(tag, regs, lds, sl):
        LP = k.label('lp'); LD = k.label('ld')
        k(vm.wait(tag) or '')
        chk_max(k, regs, 100)
        k(f's_cbranch_vccz {LD}\ns_mov_b32 s43, {SPIN}\n{LP}:')
        if sl: k(f's_sleep {sl}')
        for o in lds: k(o)
        k('s_waitcnt vmcnt(0)')
        chk_max(k, regs, 100)
        k(f's_cbranch_vccz {LD}\ns_sub_u32 s43, s43, 1\ns_cmp_lg_u32 s43, 0\ns_cbranch_scc1 {LP}\n{LD}:')
    st(k, 3, 1); st(k, 0, 8)
    gate('e', range(56, 88), [g3s_ld(tt, p, ' sc1') for p in range(2) for tt in range(4)], 0)
    st(k, 3, 2)
    i = 0
    for p in range(3):
        if p == 2:
            st(k, 3, 5)
            gate('p2', range(8, 24), [g3s_ld(tt, 2, ' sc1') for tt in range(4)], opt.get('g3r', 0))
            st(k, 3, 6)
            k('s_barrier')
        for tt in range(4):
            for n in range(5):
                if i == I2[0]:
                    for t2 in range(4): k(g3s_ld(t2, 2, ' sc1')); vm.issue('p2')
                if i == I2[1]:
                    for t2 in range(4): k(g3s_ld(t2, 3, ' sc1')); vm.issue('p3')
                acc = ACC(tt, n)
                b = vr(56 + 8 * tt + 4 * p, 4) if p < 2 else vr(8 + 4 * tt, 4)
                k(f'{MFMA} {acc}, {ar(20*p+4*n,4)}, {b}, {"0" if p == 0 else acc}')
                i += 1
    st(k, 3, 7)
    gate('p3', range(24, 32), [g3s_ld(tt, 3, ' sc1') for tt in range(4)], opt.get('g3r', 0))
    st(k, 3, 8)
    pend = []
    for tt in range(4):
        for n in range(5):
            acc = ACC(tt, n)
            k(f'{MF16} {acc}, {ar(60+2*n,2)}, {vr(24+2*tt,2)}, {acc}')
            pend.append(f'ds_write_b128 v{LW+5*(tt>>1)+n}, {acc} offset:{40960*(tt&1)}')
            if len(pend) > 3: k(pend.pop(0))
    for o in pend: k(o)
    st(k, 3, 3)
    k('s_waitcnt lgkmcnt(0)\ns_barrier')
    st(k, 3, 4)
    for p in range(3):
        for s in range(8):
            k(f'ds_read_b128 {vr(8+32*p+4*s,4)}, v{116+p} offset:{1024*s}'); lg.issue(f'r{p}{s}')
        if p == 0:
            for q in range(3):
                k(f'v_lshlrev_b32 v{110+2*q}, 16, v{104+2*q}\nv_and_b32 v{104+2*q}, 0xffff0000, v{104+2*q}')
    for p in range(3):
        a = 8 + 32 * p
        for s in (0, 2, 4, 6):
            x = lg.wait(f'r{p}{s+1}')
            if x: k(x)
            for h in range(2): k(f'v_pk_add_f32 {vr(a+4*s+2*h,2)}, {vr(a+4*s+2*h,2)}, {vr(a+4*s+4+2*h,2)}')
            if s in (2, 6):
                for h in range(2): k(f'v_pk_add_f32 {vr(a+4*s-8+2*h,2)}, {vr(a+4*s-8+2*h,2)}, {vr(a+4*s+2*h,2)}')
        for h in range(2): k(f'v_pk_add_f32 {vr(a+2*h,2)}, {vr(a+2*h,2)}, {vr(a+16+2*h,2)}')
        k(f'''v_cvt_pk_bf16_f32 v{a+4}, v{a}, v{a+1}
v_cvt_pk_bf16_f32 v{a+5}, v{a+2}, v{a+3}
v_lshlrev_b32 v{a+8}, 16, v{105+2*p}
v_and_b32 v{a+9}, 0xffff0000, v{105+2*p}
v_lshlrev_b32 v{a}, 16, v{a+4}
v_and_b32 v{a+1}, 0xffff0000, v{a+4}
v_lshlrev_b32 v{a+2}, 16, v{a+5}
v_and_b32 v{a+3}, 0xffff0000, v{a+5}
v_add_f32 v{a}, v{a}, v{110+2*p}
v_add_f32 v{a+1}, v{a+1}, v{104+2*p}
v_pk_add_f32 {vr(a+2,2)}, {vr(a+2,2)}, {vr(a+8,2)}
v_cvt_pk_bf16_f32 v{a+4}, v{a}, v{a+1}
v_cvt_pk_bf16_f32 v{a+5}, v{a+2}, v{a+3}
buffer_store_dwordx2 {vr(a+4,2)}, v{120+p}, s[8:11], s47 offen''')


def gen_g3(opt):
    k = Kern('k4_kernel', 256, 512, 163840, nvgpr=128, nagpr=128)
    END = k.label('end')
    k(f'''s_cmp_ge_u32 s2, 256
s_cbranch_scc1 {END}
s_load_dwordx2 s[40:41], s[0:1], 80
s_load_dwordx2 s[80:81], s[0:1], 64''')
    k.stamp(True)
    map_g2(k)
    k(f'''v_lshrrev_b32 v1, 6, v0
v_and_b32 v2, 63, v0
v_readfirstlane_b32 s34, v1
v_lshlrev_b32 v3, 4, v2
v_lshlrev_b32 v2, 3, v2
s_waitcnt lgkmcnt(0)''')
    g3_wo_setup(k)
    for o in g3_wo_ops(): k(o)
    ph_g3(k, opt, False)
    k.finish(END)
    return k


def wq_role(k, base, END, half=None, fl='', sl=0):
    n = 256 if half is None else 128
    k(f'''s_sub_u32 s33, s2, {base}
s_cmp_ge_u32 s33, {n}
s_cbranch_scc1 {END}
s_load_dwordx2 s[4:5], s[0:1], 40
s_load_dwordx2 s[40:41], s[0:1], 80
{f"s_add_u32 s33, s33, 128" if half else ""}
v_lshrrev_b32 v1, 6, v0
v_and_b32 v2, 63, v0
v_readfirstlane_b32 s34, v1
v_lshlrev_b32 v3, 4, v2
v_lshrrev_b32 v4, 4, v2
v_bfe_u32 v5, v2, 2, 2
v_and_b32 v6, 3, v2
v_lshlrev_b32 v6, 4, v6
v_lshl_add_u32 v6, v4, 12, v6
v_lshl_add_u32 v6, v5, 20, v6
v_and_b32 v7, 15, v2
v_lshlrev_b32 v7, 6, v7
v_lshl_add_u32 v7, v4, 10, v7
s_lshl_b32 s39, s34, 12
v_add_u32 v7, s39, v7
s_bfe_u32 s35, s33, 0x20001
s_lshl_b32 s35, s35, 3
s_bfe_u32 s36, s33, 0x30003
s_add_u32 s35, s35, s36
s_lshr_b32 s36, s33, 6
s_and_b32 s37, s33, 1
s_lshl_b32 s42, s35, 15
s_and_b32 s43, s36, 1
s_lshl_b32 s43, s43, 14
s_add_u32 s42, s42, s43
s_lshr_b32 s43, s36, 1
s_lshl_b32 s43, s43, 22
s_add_u32 s42, s42, s43
s_lshl_b32 s43, s34, 6
s_add_u32 s42, s42, s43
s_lshl_b32 s43, s37, 11
s_add_u32 s42, s42, s43
s_lshl_b32 s44, s35, 3
s_add_u32 s44, s44, s34
s_lshl_b32 s44, s44, 15
s_lshl_b32 s43, s37, 12
s_add_u32 s44, s44, s43
s_lshl_b32 s43, s36, 10
s_add_u32 s44, s44, s43
s_waitcnt lgkmcnt(0)''')
    srd_from(k, 4, 4, 5, 0, 2048 * 4096)
    if sl: k(f's_sleep {sl}')
    M = gen_fft.OPT.get('wqm', 0)
    if M & 4:
        k('s_lshl_b32 s42, s33, 3\ns_add_u32 s42, s42, s34\ns_lshl_b32 s42, s42, 12')
        for g in range(4):
            k(f's_add_u32 m0, s39, 0')
            k(f'buffer_load_dwordx4 v3, s[4:7], s42 offen offset:{1024*g}{fl} lds')
    for g in range(4):
        if M & 6: break
        k(f's_add_u32 m0, s39, {512*g}')
        k(f'buffer_load_dwordx4 v6, s[4:7], s42 offen offset:{512*g}{fl} lds')
    srd_from(k, 8, 40, 41, WS_WS, WSP_BYTES)
    k('s_waitcnt vmcnt(0)')
    for c in range(4): k(f'ds_read_b128 {vr(8+4*c,4)}, v7 offset:{16*c}')
    for c in range(4):
        k(f's_waitcnt lgkmcnt({3-c})')
        if M & 1: continue
        k(f'buffer_store_dwordx4 {vr(8+4*c,4)}, v3, s[8:11], s44 offen{" nt" if M & 8 else ""}{" ; sc1" if M & 16 else " sc1"}')
        if c < 3: k('s_add_u32 s44, s44, 8192')
    k(f's_endpgm')
```

```python
import sys, re
from asmlib import *
from tables import build_tab
import gen_fft, gen3, gen10
opt = dict(lv=4, k0i=1, us=1, npf1=0, sf0=2, lt=1, k1c=1, wd=2, sh=2, k1wp=0, sfu=2, fullt=1, fz=1, fzn=128, pxd=10, pxs=6, g1d=8, g2d=8, g3d=8, p8=1, pp=1, G2R=3, N0=4, NZ=10)
for a in sys.argv[2:]:
    if a == 'prof': Kern.prof = True
    elif '=' in a:
        v = a.split('=')[1]
        opt[a.split('=')[0]] = [int(x) for x in v.split(',')] if ',' in v else int(v)
    else: opt[a] = 1
gen_fft.OPT = opt
Kern.dbgp = opt.get('dbgp')
gen10.PV = opt.get('pv', 0)
gen10.ROT = opt.get('rot', 0)
gen10.W128 = opt.get('w128', 0)
gen10.G1S = opt.get('g1s', 0)
gen10.GV = opt.get('gv', 0)
if gen10.GV: assert opt.get('g1t')
if gen10.W128: assert opt.get('wt1')[1] == 0 and not opt.get('wt0')
gen10.FS = opt.get('FS', 7)
ks = gen10.build(opt)
for k in ks:
    for j, l in enumerate(k.lines):
        if not l.startswith('buffer_store') or 's[96:99]' in l or 'sc1' in l: continue
        if k.name in ('k0_kernel',): k.lines[j] = l + ' sc1'
NT = opt.get('ntm', 0)
for k in ks:
    for j, l in enumerate(k.lines):
        k0 = k.name == 'k0_kernel'
        add = False
        if k0 and NT & 1 and l.startswith('buffer_load') and 's[20:23]' in l: add = True
        if k0 and NT & 2 and l.startswith('buffer_load') and 's[4:7]' in l: add = True
        if not k0 and NT & 4 and l.startswith('buffer_load_dwordx4') and 's[72:75]' in l: add = True
        if not k0 and NT & 8 and l.startswith('buffer_load_ubyte') and 's[72:75]' in l: add = True
        if k0 and NT & 16 and l.startswith('buffer_load_ubyte') and 's[68:71]' in l: add = True
        if k0 and NT & 32 and l.startswith('buffer_store') and 's[52:55]' in l: add = True
        if k0 and NT & 64 and l.startswith('buffer_store') and 's[8:11]' in l: add = True
        if k0 and NT & 128 and l.startswith('buffer_store') and 's[16:19]' in l: add = True
        if not k0 and NT & 256 and l.startswith('buffer_load_dwordx4 v[10') and 's[4:7]' in l: add = True
        if add:
            if l.endswith(' lds'): k.lines[j] = l[:-4] + ' nt lds'
            else: k.lines[j] = l + ' nt'
s = build_file(ks, {'tab': build_tab()})
open(sys.argv[1], 'w').write(s)
print(len(s))
```

```python
import re
import numpy as np

REG_RE = re.compile(r'\b([vas])(\d+)\b|\b([vas])\[(\d+):(\d+)\]|\b(vcc_lo|vcc_hi|vcc|exec_lo|exec_hi|exec|m0|scc)\b')

TRANS = ('v_exp_', 'v_log_', 'v_rcp_', 'v_rsq_', 'v_sqrt_', 'v_sin_', 'v_cos_')


def regs_of(tok):
    out = set()
    for m in REG_RE.finditer(tok):
        if m.group(1):
            out.add((m.group(1), int(m.group(2))))
        elif m.group(3):
            for i in range(int(m.group(4)), int(m.group(5)) + 1):
                out.add((m.group(3), i))
        else:
            n = m.group(6)
            if n == 'vcc':
                out.add(('x', 'vcc_lo')); out.add(('x', 'vcc_hi'))
            elif n == 'exec':
                out.add(('x', 'exec_lo')); out.add(('x', 'exec_hi'))
            else:
                out.add(('x', n))
    return out


def split_ops(s):
    ops = []; depth = 0; cur = ''
    for ch in s:
        if ch == '[': depth += 1
        if ch == ']': depth -= 1
        if ch == ',' and depth == 0:
            ops.append(cur.strip()); cur = ''
        else:
            cur += ch
    if cur.strip(): ops.append(cur.strip())
    return ops


class Ins:
    __slots__ = ('text', 'mn', 'kind', 'w', 'r', 'srcc', 'srcab', 'passes', 'dpp', 'trans', 'wide', 'nop', 'label',
                 'target', 'ldsdma', 'opsel', 'dot', 'dtok', 'ctok', 'lanesel')

    def __init__(self, text):
        self.text = text
        t = text.split(';')[0].strip()
        self.label = None; self.target = None; self.nop = 0
        self.w = set(); self.r = set(); self.srcc = set(); self.srcab = set()
        self.passes = 0; self.dpp = False; self.trans = False; self.wide = False; self.ldsdma = False
        self.opsel = False; self.dot = False; self.dtok = None; self.ctok = None; self.lanesel = set()
        if t.endswith(':'):
            self.kind = 'label'; self.label = t[:-1]; self.mn = ''
            return
        if t == '' or t.startswith('.'):
            self.kind = 'dir'; self.mn = ''
            return
        parts = t.split(None, 1)
        mn = parts[0]; self.mn = mn
        rest = parts[1] if len(parts) > 1 else ''
        ops = split_ops(rest)
        mods = ''
        if ops:
            last = ops[-1].split(None, 1)
            if len(last) > 1:
                ops[-1] = last[0]; mods = last[1]
        R = [regs_of(o) for o in ops]
        allr = set().union(*R) if R else set()
        if mn == 's_nop':
            self.kind = 'nop'; self.nop = int(ops[0], 0) + 1
        elif mn.startswith('s_cbranch') or mn == 's_branch':
            self.kind = 'branch'; self.target = ops[0]
        elif mn.startswith('v_mfma'):
            self.kind = 'mfma'
            self.w = R[0]; self.srcab = R[1] | R[2]; self.srcc = R[3]; self.r = self.srcab | self.srcc
            self.dtok = ops[0]; self.ctok = ops[3]
            self.passes = 8 if '32x32' in mn else 4
        elif mn.startswith('v_'):
            self.kind = 'valu'
            nd = 1
            if '_co_' in mn or mn.startswith('v_div_scale'): nd = 2
            if mn.startswith('v_permlane') and 'swap' in mn:
                self.w = R[0] | R[1]; self.r = R[0] | R[1]
            else:
                self.w = set().union(*R[:nd]); self.r = set().union(*R[nd:]) if len(R) > nd else set()
            if mn.startswith('v_cmpx'):
                self.w |= {('x', 'exec_lo'), ('x', 'exec_hi')}
            if mn.startswith(('v_fmac', 'v_mac', 'v_dot2c', 'v_writelane', 'v_pk_fmac')) or 'dpp' in mn or any(k in mods for k in ('row_', 'quad_perm', 'wave_')):
                self.r |= R[0]
            if mn.startswith('v_cndmask') and len(ops) == 3:
                self.r |= {('x', 'vcc_lo'), ('x', 'vcc_hi')}
            if mn.startswith(('v_addc', 'v_subb')) and len(ops) <= 4:
                self.r |= {('x', 'vcc_lo'), ('x', 'vcc_hi')}
            self.dpp = any(k in mods for k in ('row_', 'quad_perm', 'wave_'))
            self.trans = mn.startswith(TRANS)
            self.dot = mn.startswith('v_dot')
            self.opsel = ('sdwa' in mn) or ('dst_sel' in mods) or (('op_sel' in mods) and not mn.startswith('v_pk_'))
            if mn.startswith(('v_readlane', 'v_writelane')):
                self.lanesel = R[2]
        elif mn.startswith(('buffer_', 'global_', 'flat_')):
            self.kind = 'vmem'
            is_lds = (' lds' in (' ' + mods)) or ('_lds_' in mn)
            self.ldsdma = is_lds
            if ('load' in mn) and not is_lds:
                self.w = R[0]; self.r = set().union(*R[1:])
            elif 'atomic' in mn and 'sc0' in mods:
                self.w = R[0]; self.r = allr
            else:
                self.r = allr
            if is_lds: self.r |= {('x', 'm0')}
            self.wide = ('store' in mn) and ('x3' in mn or 'x4' in mn)
            if self.wide:
                self.srcc = R[0] if mn.startswith('buffer_') else R[1]
        elif mn.startswith('ds_'):
            self.kind = 'ds'
            if mn.startswith(('ds_read', 'ds_bpermute', 'ds_permute', 'ds_swizzle')) or '_rtn' in mn:
                self.w = R[0]; self.r = set().union(*R[1:])
            else:
                self.r = allr
        elif mn.startswith('s_'):
            self.kind = 'salu'
            if mn.startswith(('s_cmp', 's_waitcnt', 's_barrier', 's_endpgm', 's_setprio', 's_sleep', 's_bitcmp')):
                self.r = allr
            else:
                self.w = R[0] if R else set(); self.r = set().union(*R[1:]) if len(R) > 1 else set()
                if 'saveexec' in mn:
                    self.w |= {('x', 'exec_lo'), ('x', 'exec_hi')}
        else:
            raise ValueError('unknown instr ' + text)


EXEC = {('x', 'exec_lo'), ('x', 'exec_hi')}


def is_sg(r):
    return r[0] in ('s', 'x')


def need(p, c):
    n = 0
    if p.kind == 'valu':
        vw = {r for r in p.w if r[0] in 'va'}
        sw = {r for r in p.w if is_sg(r)}
        if c.kind == 'mfma' and (vw & c.r): n = max(n, 2)
        if c.kind == 'valu':
            if c.dpp and (vw & c.r): n = max(n, 2)
            if c.mn.startswith(('v_readlane', 'v_readfirstlane')) and (vw & c.r): n = max(n, 1)
            if c.mn.startswith('v_permlane') and (vw & c.r): n = max(n, 2)
            if sw & c.r: n = max(n, 2)
            if sw & c.lanesel: n = max(n, 4)
            if p.opsel and (vw & (c.r | c.w)): n = max(n, 1)
            if (sw & EXEC):
                if c.dpp: n = max(n, 5)
                if c.mn.startswith(('v_readlane', 'v_readfirstlane', 'v_writelane', 'v_permlane')): n = max(n, 4)
        if p.trans and (vw & c.r) and not (c.kind == 'valu' and c.trans): n = max(n, 1)
        if p.dot and (vw & (c.r | c.w)):
            n = max(n, 3)
        if c.kind == 'vmem' and (sw & c.r): n = max(n, 5)
        if c.kind == 'mfma' and (sw & EXEC): n = max(n, 4)
    if p.kind == 'mfma':
        P = p.passes
        if c.kind == 'mfma':
            if p.w & c.srcab: n = max(n, 8 if P == 4 else 12)
            if p.w & c.srcc:
                if not (c.ctok == p.dtok and c.passes == P and c.mn == p.mn): n = max(n, 6 if P == 4 else 10)
            elif p.w & c.w:
                n = max(n, 8 if P == 4 else 12)
        elif c.kind in ('valu', 'vmem', 'ds'):
            if p.w & (c.r | c.w): n = max(n, 8 if P == 4 else 12)
            if c.kind == 'valu' and (p.srcc & c.w): n = max(n, 3 if P == 4 else 7)
    if p.kind == 'vmem' and p.wide:
        if p.srcc & c.w: n = max(n, 2)
    if p.kind == 'salu' and ('x', 'm0') in p.w and c.kind == 'vmem' and c.ldsdma: n = max(n, 1)
    return n


def slots(i):
    if i.kind in ('label', 'dir'): return 0
    if i.kind == 'nop': return i.nop
    return 1


def required(hist, c):
    if c.kind in ('label', 'dir', 'nop'): return 0
    d = 0; worst = 0
    for p in reversed(hist):
        if d >= 20: break
        if p.kind not in ('label', 'dir', 'nop'):
            worst = max(worst, need(p, c) - d)
        d += slots(p)
    return worst


def fix_hazards(lines):
    ins = [Ins(l) for l in lines]
    changed = True
    it = 0
    while changed:
        changed = False; it += 1
        assert it < 50
        out = []
        for c in ins:
            n = required(out[-40:], c)
            if n > 0:
                out.append(Ins(f's_nop {n-1}')); changed = True
            out.append(c)
        ins = out
        labels = {i.label: k for k, i in enumerate(ins) if i.kind == 'label'}
        for k, b in enumerate(ins):
            if b.kind == 'branch' and b.target in labels:
                hist = ins[max(0, k - 40):k + 1]
                j = labels[b.target] + 1
                seen = []
                cnt = 0
                while j < len(ins) and cnt < 24:
                    c = ins[j]
                    n = required(hist + seen, c)
                    if n > 0:
                        ins.insert(j, Ins(f's_nop {n-1}')); changed = True
                        break
                    seen.append(c); cnt += slots(c); j += 1
                if changed: break
    return [i.text for i in ins]


def fix_pk(l):
    m = re.match(r'(v_pk_(?:add|mul|fma)_f32) (.*)', l)
    if not m or 'op_sel:' not in l: return l
    ops = split_ops(m.group(2))
    last = ops[-1].split(None, 1); ops[-1] = last[0]; mods = last[1]
    md = {a: [int(x) for x in b.split(',')] for a, b in re.findall(r'(\w+):\[([\d,]+)\]', mods)}
    n = len(ops) - 1
    md.setdefault('op_sel_hi', [1] * n)
    o = md['op_sel']
    if o[0] == 0 and o[1] == 1 and ops[2].startswith('v') and ops[2] != ops[1]:
        ops[1], ops[2] = ops[2], ops[1]
        for v in md.values(): v[0], v[1] = v[1], v[0]
        l = m.group(1) + ' ' + ', '.join(ops) + ' ' + ' '.join(f'{a}:[{",".join(map(str, md[a]))}]' for a in ('op_sel', 'op_sel_hi', 'neg_lo', 'neg_hi') if a in md)
        o = md['op_sel']
    if n == 3 and o[0] == 0 and o[2] == 1 and ops[3] == ops[2] and ops[2] != ops[1]:
        raise ValueError('unsafe packed form ' + l)
    return l


class Kern:
    def __init__(self, name, grid, block, lds, nvgpr=128, nagpr=0, nsgpr=96):
        self.name = name; self.grid = grid; self.block = block; self.lds = lds
        self.nvgpr = nvgpr; self.nagpr = nagpr; self.nsgpr = nsgpr
        self.lines = []
        self._lab = 0
        self.nst = 0
        self.kidx = Kern.count; Kern.count += 1

    prof = False
    count = 0
    fixpk = True
    dbgp = None

    def stamp(self, first=False):
        if not Kern.prof: return
        if first:
            self('v_lshrrev_b32 v1, 6, v0\nv_readfirstlane_b32 s83, v1\ns_memtime s[76:77]')
        assert self.nst < 12
        self(f's_memrealtime s[96:97]\ns_waitcnt lgkmcnt(0)\ns_mov_b32 s{84+self.nst}, s96')
        self.nst += 1

    def finish(self, END):
        if Kern.prof:
            self.nsgpr = 102
            seen = False
            for i, l in enumerate(self.lines):
                if l.startswith('s_cbranch') or l.startswith('s_branch'):
                    if l.split()[-1] == END:
                        if not self.lines[i-1].startswith('s_cmp_ge_u32 s2,'): self.lines[i] = l + '_d'
            self(f'{END}_d:')
            self.nst = 10
            self.stamp()
            self('s_waitcnt vmcnt(0)\n' + ('' if getattr(self, 'clkm', 0) else 's_memtime s[78:79]'))
            self.stamp()
            self(f'''s_load_dwordx2 s[96:97], s[0:1], 80
s_lshl_b32 s98, s2, 4
s_add_u32 s98, s98, s83
s_lshl_b32 s98, s98, 6
s_add_u32 s98, s98, {0x8000000 + self.kidx * 0x100000}
s_mov_b64 exec, 1
s_waitcnt lgkmcnt(0) vmcnt(0)
s_add_u32 s96, s96, s98
s_addc_u32 s97, s97, 0
s_mov_b32 s98, 64
s_mov_b32 s99, 0x00020000
v_mov_b32 v0, 0''')
            for i in range(12): self(f'v_mov_b32 v{4+i}, s{84+i}')
            self('v_mov_b32 v16, s76\nv_mov_b32 v17, s78\nv_mov_b32 v18, 0\nv_mov_b32 v19, 0')
            for i in range(4): self(f'buffer_store_dwordx4 v[{4+4*i}:{7+4*i}], v0, s[96:99], 0 offen offset:{16*i}')
            if Kern.dbgp is not None:
                self(f'''s_lshl_b32 s98, s2, 4
s_add_u32 s98, s98, s83
s_cmp_lg_u32 s98, {Kern.dbgp * 16}
s_cbranch_scc1 {END}
s_load_dwordx2 s[96:97], s[0:1], 72
s_waitcnt lgkmcnt(0) vmcnt(0)
s_add_u32 s96, s96, 0
s_addc_u32 s97, s97, 0
s_mov_b32 s98, 64
s_mov_b32 s99, 0x00020000''')
                if self.kidx == 0:
                    for i in range(1, 12): self(f'v_sub_u32 v{4+i}, v{4+i}, v4')
                    for i in range(3): self(f'buffer_store_dwordx4 v[{4+4*i}:{7+4*i}], v0, s[96:99], 0 offen offset:{16*i}')
                else:
                    for i in range(3): self(f'buffer_store_dwordx4 v[{4+4*i}:{7+4*i}], v0, s[96:99], 0 offen offset:{16+16*i}')
        self(f'{END}:\ns_endpgm')

    def __call__(self, text):
        for l in text.strip('\n').split('\n'):
            l = l.strip()
            if l: self.lines.append(l)

    def label(self, base='L'):
        self._lab += 1
        return f'{self.name}_{base}{self._lab}'

    def text(self):
        body = fix_hazards([fix_pk(l) for l in self.lines] if Kern.fixpk else self.lines)
        s = f'.globl {self.name}\n.p2align 8\n.type {self.name},@function\n{self.name}:\n'
        for l in body:
            s += (l if l.endswith(':') else '  ' + l) + '\n'
        return s

    def desc(self):
        acc = (self.nvgpr + 3) // 4 * 4
        tot = acc + self.nagpr
        return f""".p2align 6
.amdhsa_kernel {self.name}
  .amdhsa_next_free_vgpr {tot}
  .amdhsa_next_free_sgpr {self.nsgpr}
  .amdhsa_accum_offset {acc}
  .amdhsa_group_segment_fixed_size 0
  .amdhsa_kernarg_size 88
  .amdhsa_user_sgpr_count 2
  .amdhsa_user_sgpr_kernarg_segment_ptr 1
  .amdhsa_system_sgpr_workgroup_id_x 1
.end_amdhsa_kernel
"""


def table_text(name, u32):
    u32 = np.ascontiguousarray(u32).view(np.uint32).ravel()
    s = f'.p2align 8\n.type {name},@object\n{name}:\n'
    for i in range(0, len(u32), 8):
        s += '.long ' + ','.join('0x%x' % v if v else '0' for v in u32[i:i + 8]) + '\n'
    return s


def build_file(kerns, tables, header=''):
    s = header
    for k in kerns:
        s += f'; @launch kernel={k.name} grid=({k.grid},1,1) block=({k.block},1,1) lds={k.lds}\n'
    s += '.amdgcn_target "amdgcn-amd-amdhsa--gfx950"\n.text\n'
    for k in kerns:
        s += k.text()
    s += 'code_end:\n'
    s += '.section .rodata,"a"\n'
    for k in kerns:
        s += k.desc()
    for n, t in tables.items():
        s += table_text(n, t)
    return s
```

```python
from asmlib import *
import gen_fft
from gen_fft import vr, sr, srd_from, tab_srd, MFMA, WS_H, WS_HN, WS_U, WS_T, X_BYTES, TU_BYTES, TP, fft8, smul, cmul_planar, wave_reduce2, ln_stats, ln_apply
from gen3 import *

WS_FL = 0x1800000
FL_BYTES = 0x40000
FLH = 0; FL2 = 0x8000; FL3 = 0x10000; FLU = 0x18000
FS = 7
WS_PX = 0x1840000
PX_BYTES = 64 * 16 * 256
WS_WS = 0x2000000
WSP_BYTES = 8 << 20
Z2N_BYTES = 64 * 57344
A2_BYTES = 4 << 20
SPIN = 400000
PV = 0
ROT = 0
W128 = 0
G1S = 0
GV = 0
HP = 10368
HN_BYTES = 256 * HP
MF16 = 'v_mfma_f32_16x16x16_bf16'
BIG = '0x7f000000'


def st(k, view, slot):
    if Kern.prof and PV == view:
        k.nst = slot; k.stamp()


def poll(k, srd, soff, va, vd, sc):
    LP = k.label('lp'); LD = k.label('ld')
    k(f'''s_mov_b32 s{sc}, {SPIN}
{LP}:
buffer_load_dword v{vd}, v{va}, {sr(srd,4)}, {soff} offen sc1
s_waitcnt vmcnt(0)
v_cmp_eq_u32 vcc, 0, v{vd}
s_cbranch_vccz {LD}
s_sub_u32 s{sc}, s{sc}, 1
s_cmp_lg_u32 s{sc}, 0
s_cbranch_scc1 {LP}
{LD}:''')


def map_g2(k):
    if gen_fft.OPT.get('g2m'):
        k('''s_and_b32 s35, s2, 7
s_lshl_b32 s35, s35, 2
s_bfe_u32 s36, s2, 0x20003
s_add_u32 s35, s35, s36
s_lshr_b32 s36, s2, 5''')
        return
    k('''s_and_b32 s33, s2, 7
s_lshr_b32 s42, s2, 3
s_lshr_b32 s35, s33, 1
s_lshl_b32 s35, s35, 3
s_and_b32 s36, s42, 7
s_add_u32 s35, s35, s36
s_and_b32 s36, s33, 1
s_lshl_b32 s36, s36, 2
s_lshr_b32 s42, s42, 3
s_add_u32 s36, s36, s42''')


def g1id(k, d, t):
    m = gen_fft.OPT.get('g1m', 0)
    k(f'''s_bfe_u32 s{d}, s2, {hex(((3-m) << 16) | m)}
s_lshl_b32 s{d}, s{d}, {1+m}
s_lshr_b32 s{t}, s2, {7-m}
s_add_u32 s{d}, s{d}, s{t}
s_lshl_b32 s{d}, s{d}, {m}
s_and_b32 s{t}, s2, {(1 << m) - 1}
s_add_u32 s{d}, s{d}, s{t}
s_lshl_b32 s{d}, s{d}, {4-m}
s_bfe_u32 s{t}, s2, {hex(((4-m) << 16) | 3)}
s_add_u32 s{d}, s{d}, s{t}''')


def w_setup(k, t0, t1):
    G2M = gen_fft.OPT.get('g2m', 0)
    k(f'''s_mov_b32 s74, {2048*4096}
s_mov_b32 s75, 0x00020000
s_bfe_u32 s{t0}, s2, {"0x30000" if G2M else "0x20001"}
s_lshl_b32 s{t0}, s{t0}, {2 if G2M else 3}
s_bfe_u32 s{t1}, s2, {"0x20003" if G2M else "0x30003"}
s_add_u32 s{t0}, s{t0}, s{t1}
s_lshl_b32 s50, s{t0}, 15
s_lshr_b32 s{t0}, s34, 2
s_lshl_b32 s{t0}, s{t0}, 11
s_and_b32 s{t1}, s34, 3
s_lshl_b32 s{t1}, s{t1}, 7
s_add_u32 s50, s50, s{t0}
s_add_u32 s50, s50, s{t1}
s_add_u32 s51, s50, 16384''')
    if ROT:
        k(f'''s_bfe_u32 s{t0}, s2, 0x10006
s_lshl_b32 s{t0}, s{t0}, {21 if G1S else 14}
s_add_u32 s50, s50, s{t0}
s_bfe_u32 s{t0}, s2, 0x10007
s_lshl_b32 s{t0}, s{t0}, 22
s_add_u32 s50, s50, s{t0}
s_mov_b32 s51, s50''')
    if W128: k(f's_mov_b32 s82, s50\ns_add_u32 s51, s50, {0x100000 if G1S else 4096}')


def w_vaddr(k, d, t):
    if W128:
        k(f'''v_and_b32 v{d}, 112, v3
v_bfe_u32 v{t}, v3, 7, 1
v_lshl_add_u32 v{d}, v{t}, {14 if G1S else 13}, v{d}
v_lshrrev_b32 v{t}, 8, v3
v_lshl_add_u32 v{d}, v{t}, 9, v{d}''')
        return
    k(f'''v_and_b32 v{d}, 48, v3
v_bfe_u32 v{t}, v3, 6, 2
v_lshl_add_u32 v{d}, v{t}, 12, v{d}
v_lshrrev_b32 v{t}, 8, v3
v_lshl_add_u32 v{d}, v{t}, 9, v{d}''')


def g2_wops(fl=''):
    ops = []
    if W128:
        for g in range(4):
            for n in range(4):
                for ih in range(2):
                    o = f'buffer_load_dwordx4 {ar(16*(4*ih+n)+4*g,4)}, @, s[72:75], s{50+ih} offen{fl}'
                    sn, si, su = (4096, 0x100000, 2 << 20) if G1S else (0x100000, 4096, 16384)
                    if ih and n < 3: o += f'\ns_add_u32 s50, s50, {sn}\ns_add_u32 s51, s51, {sn}'
                    if ih and n == 3 and g < 3: o += f'\ns_xor_b32 s50, s82, {((g+1)&1)*su + ((g+1)>>1)*(4<<20)}\ns_add_u32 s51, s50, {si}'
                    ops.append(o)
        return ops
    if ROT:
        for g in range(4):
            for n in range(4):
                for hi in range(2):
                    o = f'buffer_load_dwordx4 {ar(16*(4*hi+n)+4*g,4)}, @, s[72:75], s50 offen offset:{64*hi}{fl}'
                    if hi and n < 3: o += '\ns_add_u32 s50, s50, 0x100000'
                    if hi and n == 3 and g < 3: o += f'\ns_xor_b32 s50, s51, {((g+1)&1)*16384 + ((g+1)>>1)*(4<<20)}'
                    ops.append(o)
        return ops
    for n2 in range(8):
        for u in range(2):
            for hi in range(2):
                o = f'buffer_load_dwordx4 {ar(16*(4*hi+(n2&3))+4*(2*(n2>>2)+u),4)}, @, s[72:75], s{50+u} offen offset:{64*hi}{fl}'
                if u and hi and n2 < 7: o += '\ns_add_u32 s50, s50, 0x100000\ns_add_u32 s51, s51, 0x100000'
                ops.append(o)
    return ops


def w_trans(k, vw, vrd, groups=None, ts=42):
    PT = 520
    if (groups is not None and not groups) or gen_fft.OPT.get('nowt'): return
    if W128:
        k(f'''s_and_b32 s{ts}, s34, 3
s_mul_i32 s{ts}, s{ts}, 4160
v_lshrrev_b32 v{vw}, 1, v3
v_add_u32 v{vw}, s{ts}, v{vw}
v_bfe_u32 v{vrd}, v3, 4, 3
v_mul_u32_u24 v{vrd}, {PT-8}, v{vrd}
v_add_u32 v{vrd}, v{vw}, v{vrd}''')
        for tt in range(4):
            if groups is not None and tt not in groups: continue
            for h in range(2):
                R = lambda i: ar(16 * i + 4 * tt + 2 * h, 2)
                for i in range(8): k(f'ds_write_b64 v{vw}, {R(i)} offset:{PT*i}')
                for c in range(8): k(f'ds_read_b64 {R(c)}, v{vrd} offset:{8*c}')
        return
    k(f'''s_mul_i32 s{ts}, s34, 2560
v_lshrrev_b32 v{vw}, 1, v3
v_add_u32 v{vw}, s{ts}, v{vw}
v_bfe_u32 v{vrd}, v3, 4, 2
v_mul_u32_u24 v{vrd}, {PT-8}, v{vrd}
v_add_u32 v{vrd}, v{vw}, v{vrd}''')
    for tt in range(4):
        for hi in range(2):
            if groups is not None and tt not in groups: continue
            for h in range(2):
                R = lambda i: ar(16 * (4 * hi + i) + 4 * tt + 2 * h, 2)
                for i in range(4): k(f'ds_write_b64 v{vw}, {R(i)} offset:{PT*i}')
                for c in range(4): k(f'ds_read_b64 {R(c)}, v{vrd} offset:{8*c}')


def unpk(l):
    m = re.match(r'v_pk_(add|mul)_f32 v\[(\d+):\d+\], v\[(\d+):\d+\], v\[(\d+):\d+\](.*)', l)
    if not m: return [l]
    op, d, a, b, mod = m.group(1), int(m.group(2)), int(m.group(3)), int(m.group(4)), m.group(5).strip()
    if mod == '': return [f'v_{op}_f32 v{d}, v{a}, v{b}', f'v_{op}_f32 v{d+1}, v{a+1}, v{b+1}']
    if mod == 'op_sel:[0,1] op_sel_hi:[1,1]': return [f'v_{op}_f32 v{d}, v{a}, v{b+1}', f'v_{op}_f32 v{d+1}, v{a+1}, v{b+1}']
    raise ValueError(l)


class Fill:
    def __init__(self): self.q = []
    def add(self, pos, f): self.q.append((pos, f))
    def emit(self, k, p, n):
        c = 0
        while self.q and self.q[0][0] <= p and c < n:
            f = self.q.pop(0)[1]
            f() if callable(f) else k(f)
            c += 1
    def flush(self, k): self.emit(k, 10**9, 10**9)


def ph_g2(k, opt, DONE, vm0, fused, post=None, early=None):
    HI = k.label('hi')
    NZ = opt.get('NZ', 14); ZR = 96 - 4 * NZ
    T = 8; S = 24; Z1 = 32
    assert ZR >= 40
    ACC = lambda n, tt: 96 + 16 * (n & 1) + 4 * tt
    SLOT = [0, 1, 2, 3, 4, 0, 1]
    srd_from(k, 8, 40, 41, WS_Z2, Z2N_BYTES)
    k(f'''s_lshl_b32 s56, s36, 3
s_add_u32 s56, s56, s34
s_mul_i32 s56, s56, 57344
v_and_b32 v2, 63, v0''')
    if opt.get('warm'):
        k('v_lshlrev_b32 v4, 7, v2\ns_mov_b32 s42, s56')
        for i in range(7): k('buffer_load_dword v5, v4, s[8:11], s42 offen\ns_add_u32 s42, s42, 8192')
        k('s_waitcnt vmcnt(0)\ns_barrier\ns_sleep 127')
    st(k, 2, 2)
    if opt.get('clkm'): k('s_memtime s[76:77]'); k.clkm = 1
    if opt.get('zpf'):
        k(f'''v_lshrrev_b32 v4, 3, v2
v_and_b32 v5, 7, v2
v_lshlrev_b32 v5, 7, v5
v_lshl_add_u32 v4, v4, 13, v5
s_and_b32 s42, s35, 7
s_lshl_b32 s42, s42, 10
s_add_u32 s42, s42, s56
s_mov_b32 exec_hi, 0x00ffffff
buffer_load_dword v36, v4, s[8:11], s42 offen
s_mov_b32 exec_hi, -1''')
        vm0.issue('pf')

    def zload(q, vm):
        if q >= 56 or opt.get('noz'): return
        if q and q % 4 == 0: k('s_add_u32 s56, s56, 4096')
        if q == 40: k(f's_cmp_eq_u32 s36, 7\ns_cselect_b32 s56, {BIG}, s56')
        k(f'buffer_load_dwordx4 {vr(ZR+4*(q%NZ),4)}, v3, s[8:11], s56 offen offset:{1024*(q%4)}'); vm.issue(f'z{q}')
    N0 = opt.get('N0', NZ)
    for q in range(N0): zload(q, vm0)
    srd_from(k, 12, 40, 41, WS_Z1, A2_BYTES)
    srd_from(k, 16, 40, 41, WS_Z1 if opt.get('ain') else WS_A, A2_BYTES)
    srd_from(k, 24, 24, 25, 0, 4096)
    PW = opt.get('pw', 0); FZS = opt.get('fzs', 5)
    PWS = f'''s_lshl_b32 s47, s35, 1
s_lshr_b32 s42, s43, 1
s_add_u32 s47, s47, s42
s_lshl_b32 s47, s47, 3
s_add_u32 s47, s47, s36
s_lshl_b32 s47, s47, {FZS+1}
s_add_u32 s47, s47, {FLU}
v_bfe_u32 v40, v3, 4, 1
v_lshlrev_b32 v40, {FZS}, v40''' if PW else ''
    BADR = '''s_lshl_b32 s42, s43, 10
s_lshl_b32 s45, s35, 4
s_add_u32 s45, s45, s42
v_and_b32 v4, 8, v2
v_and_b32 v5, 3, v2
v_lshl_add_u32 v4, v5, 1, v4
v_bfe_u32 v5, v2, 2, 1
v_lshl_add_u32 v4, v5, 9, v4''' if G1S else '''s_and_b32 s42, s43, 1
s_lshl_b32 s42, s42, 3
s_lshl_b32 s45, s35, 4
s_add_u32 s45, s45, s42
s_and_b32 s42, s43, 2
s_lshl_b32 s42, s42, 10
s_add_u32 s45, s45, s42
v_bfe_u32 v4, v2, 2, 2
v_and_b32 v5, 3, v2
v_lshlrev_b32 v5, 9, v5
v_lshl_add_u32 v4, v4, 1, v5'''
    k(f'''s_and_b32 s37, s34, 3
s_bfe_u32 s43, s2, {"0x20006" if ROT else "0"}
s_xor_b32 s43, s43, s37
s_lshl_b32 s44, s35, 3
s_add_u32 s44, s44, s36
s_lshl_b32 s44, s44, 2
s_add_u32 s44, s44, s43
s_lshl_b32 s44, s44, 12
{BADR}
buffer_load_ushort v1, v4, s[24:27], s45 offen
v_lshlrev_b32 v2, 3, v2
s_lshl_b32 s42, s34, 10
v_add_u32 v4, s42, v3
v_add_u32 v5, 0x10000, v4
v_add_u32 v6, 0x20000, v4
s_lshl_b32 s42, s37, 13
v_add_u32 v7, s42, v3
s_mov_b32 s58, 0xffff0000
{PWS}
s_cmp_eq_u32 s36, 7
s_cselect_b32 s46, {BIG}, s44
s_cselect_b32 s59, 0, -1
s_cmp_ge_u32 s34, 4
s_cbranch_scc1 {HI}''')
    vm0.issue('b')

    def body(hi):
        import copy
        vm = copy.deepcopy(vm0); lg = Cnt('lgkmcnt', 15)
        F = Fill()

        def wr(n, tt):
            a = SLOT[n] * 32768 + tt * 8192
            k(f'ds_write_b128 v{4+a//65536}, {vr(ACC(n,tt),4)} offset:{a%65536}'); lg.issue(f'w{n}')

        def bar(n):
            x = lg.wait(f'w{n}')
            if x: k(x)
            k('s_barrier')

        def unit(tiles, zr, off, so, pos):
            nt = len(tiles)
            ops = []
            for ti, n in enumerate(tiles):
                for b in range(2):
                    base = SLOT[n] * 32768 + 4096 * b
                    if base >= 65536 - 32768 + 8192 and False: pass
                    for i in range(4):
                        def rd(base=base, i=i, n=n, b=b):
                            a = base + 1024 * i
                            k(f'ds_read_b128 {vr(T+4*i,4)}, v{RB[a//65536]} offset:{a%65536}'); lg.issue(f'r{n}_{b}_{i}')
                        ops.append(rd)
                    s = S + 4 * ti
                    def w01(n=n, b=b): k(lg.wait(f'r{n}_{b}_1') or '')
                    def w23(n=n, b=b): k(lg.wait(f'r{n}_{b}_3') or '')
                    ops.append(None); ops.append(None)
                    ops.append(w01)
                    d = s if b == 0 else T
                    ops += [f'v_pk_add_f32 {vr(d,2)}, {vr(T,2)}, {vr(T+4,2)}', f'v_pk_add_f32 {vr(d+2,2)}, {vr(T+2,2)}, {vr(T+6,2)}']
                    if b: ops += [f'v_pk_add_f32 {vr(s,2)}, {vr(s,2)}, {vr(T,2)}', f'v_pk_add_f32 {vr(s+2,2)}, {vr(s+2,2)}, {vr(T+2,2)}']
                    ops.append(w23)
                    ops += [f'v_pk_add_f32 {vr(T+8,2)}, {vr(T+8,2)}, {vr(T+12,2)}', f'v_pk_add_f32 {vr(T+10,2)}, {vr(T+10,2)}, {vr(T+14,2)}',
                            f'v_pk_add_f32 {vr(s,2)}, {vr(s,2)}, {vr(T+8,2)}', f'v_pk_add_f32 {vr(s+2,2)}, {vr(s+2,2)}, {vr(T+10,2)}']
            h = 2 * nt
            ops += [f'v_cvt_pk_bf16_f32 v{T+i}, v{S+2*i}, v{S+2*i+1}' for i in range(h)]
            ops += [f'v_lshlrev_b32 v{S+2*i}, 16, v{T+i}\nv_and_b32 v{S+2*i+1}, s58, v{T+i}' for i in range(h)]
            ops.append(lambda: k(vm.wait(f'y{off}') or ''))
            ops += [f'v_pk_add_f32 {vr(S+2*i,2)}, {vr(S+2*i,2)}, v[0:1] op_sel:[0,1] op_sel_hi:[1,1]' for i in range(h)]
            ops += [f'v_lshlrev_b32 v{T+8+2*i}, 16, v{zr+i}\nv_and_b32 v{T+9+2*i}, s58, v{zr+i}' for i in range(h)]
            ops += [f'v_cvt_pk_bf16_f32 v{T+i}, v{S+2*i}, v{S+2*i+1}' for i in range(h)]
            ops += [f'v_lshlrev_b32 v{S+2*i}, 16, v{T+i}\nv_and_b32 v{S+2*i+1}, s58, v{T+i}' for i in range(h)]
            ops += [f'v_pk_mul_f32 {vr(S+2*i,2)}, {vr(S+2*i,2)}, {vr(T+8+2*i,2)}' for i in range(h)]
            ops += [f'v_cvt_pk_bf16_f32 v{zr+i}, v{S+2*i}, v{S+2*i+1}' for i in range(h)]

            if tiles == [4, 5]: ops += [f'v_and_b32 v{zr+2}, s59, v{zr+2}', f'v_and_b32 v{zr+3}, s59, v{zr+3}']

            def sto():
                if nt == 2: k(f'buffer_store_dwordx4 {vr(zr,4)}, v3, s[16:19], {so} offen offset:{off} sc1')
                else: k(f'buffer_store_dwordx2 {vr(zr,2)}, v2, s[16:19], {so} offen offset:{off} sc1')
                vm.issue('s')
            ops.append(sto)
            out = []
            for o in ops:
                if o is None: out.append('')
                elif callable(o): out.append(o)
                else:
                    for l in o.split('\n'): out += unpk(l) if opt.get('upk', 1) else [l]
            return out

        def z1load(zr, off, so, nt):
            if nt == 2: k(f'buffer_load_dwordx4 {vr(zr,4)}, v3, s[12:15], {so} offen offset:{off}')
            else: k(f'buffer_load_dwordx2 {vr(zr,2)}, v2, s[12:15], {so} offen offset:{off}')
            vm.issue(f'y{off}')
        RB = [7, 38, 39]
        k('v_add_u32 v38, 0x10000, v7\nv_add_u32 v39, 0x20000, v7')
        ev = {}
        def at(p, f): ev.setdefault(p, []).append(f)
        for n in range(6):
            for tt in range(4): at(32 * (n + 1) + 3 + 2 * tt, lambda n=n, tt=tt: wr(n, tt))
        BP = opt.get('G2B', 16)
        at(64 + BP, lambda: bar(1)); at(128 + BP, lambda: bar(3)); at(192 + BP, lambda: bar(5))
        if opt.get('pp'):
            bs = [-1, 64 + BP, 128 + BP, 192 + BP, 224]
            k('s_setprio 3')
            for a, b in zip(bs[:-1], bs[1:]):
                for i in range(4):
                    pp = a + (b - a) * i // 4
                    if pp >= 0: at(pp, lambda i=i: k(f's_setprio {3-i}'))
        at(40, lambda: k((vm.wait('b') or '') + '\nv_lshlrev_b32 v1, 16, v1'))
        fq = []
        if PW:
            PZ = opt.get('pz', [30, 40, 64])
            at(PZ[0], lambda: k('s_barrier'))
            ZF = 'buffer_load_dword v41, v40, s[68:71], s47 offen sc1'
            def zf1(): k(ZF); vm.issue('zf')
            def zf2():
                LP = k.label('lp'); LD = k.label('ld')
                k(f'''{vm.wait('zf') or ''}
v_cmp_eq_u32 vcc, 0, v41
s_cbranch_vccz {LD}
s_mov_b32 s43, {SPIN}
{LP}:
{ZF}
s_waitcnt vmcnt(0)
v_cmp_eq_u32 vcc, 0, v41
s_cbranch_vccz {LD}
s_sub_u32 s43, s43, 1
s_cmp_lg_u32 s43, 0
s_cbranch_scc1 {LP}
{LD}:''')
            at(PZ[1] + (24 if hi else 0), zf1); at(PZ[2] + (24 if hi else 0), zf2)
        if not hi:
            at(PZ[2] + 1 if PW else 33, lambda: z1load(Z1, 0, 's44', 2))
            at(160, lambda: z1load(Z1, 2048, 's44', 2))
            fq.append((64 + BP + 1, lambda: unit([0, 1], Z1, 0, 's44', 0)))
            fq.append((192 + BP + 1, lambda: unit([4, 5], Z1, 2048, 's44', 0)))
        else:
            at(97, lambda: z1load(Z1, 1024, 's44', 2))
            at(190, lambda: z1load(Z1 + 4, 3072, 's46', 1))
            fq.append((128 + BP + 1, lambda: unit([2, 3], Z1, 1024, 's44', 0)))
        if post:
            po = list(post)
            def pw(n):
                for _ in range(n):
                    if po: k(po.pop(0)); vm.issue('o')
            for j in range(1, 8):
                for tt in range(4): at(192 + 4 * j + tt, lambda: pw(1))
        R = opt.get('G2R', 3)
        cur = []
        p = 0
        nq = [N0]
        for n in range(7):
            if n in (1, 3, 5): st(k, 2, 3 + n // 2)
            for j in range(8):
                q = 8 * n + j
                x = vm.wait(f'z{q}')
                if x: k(x)
                if q == 0:
                    x = vm.wait('w')
                    if x: k(x)
                for tt in range(4):
                    acc = vr(ACC(n, tt), 4)
                    k(f'{MFMA} {acc}, {vr(ZR+4*(q%NZ),4)}, {ar(16*j+4*tt,4)}, {"0" if j == 0 else acc}')
                    if tt in (1, 3) and nq[0] < q + NZ + (tt == 3): zload(nq[0], vm); nq[0] += 1
                    for f in ev.get(p, []): f()
                    if fq and fq[0][0] <= p: cur += fq.pop(0)[1]()
                    for _ in range(R):
                        if cur:
                            o = cur.pop(0)
                            o() if callable(o) else k(o)
                    p += 1
        if opt.get('clkm'): k('s_memtime s[78:79]')
        st(k, 2, 6)
        EP = opt.get('g3e', 0)
        if early and EP == 0:
            for o in early: k(o); vm.issue('e')
        for tt in range(4): wr(6, tt)
        if early and EP == 1:
            for o in early: k(o); vm.issue('e')
        bar(6)
        if early and EP == 2:
            for o in early: k(o); vm.issue('e')
        st(k, 2, 7)
        if hi: cur = unit([6], Z1 + 4, 3072, 's46', 0)
        for o in cur: o() if callable(o) else k(o)
        st(k, 2, 8); st(k, 0, 7)
        k('s_setprio 0')
        k(f's_branch {DONE}')
        return len(vm.tags) - 1 - max([i for i, t in enumerate(vm.tags) if t == 'e'] + [-1])
    n0 = body(False)
    k(f'{HI}:')
    n1 = body(True)
    return min(n0, n1)


def gen_g2(opt):
    k = Kern('k3_kernel', 256, 512, 163840, nvgpr=128, nagpr=128)
    END = k.label('end')
    k(f'''s_cmp_ge_u32 s2, 256
s_cbranch_scc1 {END}
s_load_dwordx2 s[40:41], s[0:1], 80
s_load_dwordx2 s[24:25], s[0:1], 48
s_load_dwordx2 s[72:73], s[0:1], 40''')
    k.stamp(True)
    map_g2(k)
    k(f'''v_lshrrev_b32 v1, 6, v0
v_and_b32 v2, 63, v0
v_readfirstlane_b32 s34, v1
v_lshlrev_b32 v3, 4, v2''')
    w_vaddr(k, 4, 5)
    w_setup(k, 42, 43)
    k('s_waitcnt lgkmcnt(0)')
    vm = Cnt('vmcnt', 63)
    wb = Bulk(k, g2_wops())
    wb(32, vm, 4)
    k('s_waitcnt vmcnt(0)')
    w_trans(k, 4, 5)
    k('s_waitcnt lgkmcnt(0)\ns_barrier')
    st(k, 2, 1)
    ph_g2(k, opt, END, vm, False)
    k.finish(END)
    return k


WOB = 17920
WO8_BYTES = 64 * WOB


def gen_prep8(k, base_wg, END, nwv=5):
    WO = k.label('wo'); J = k.label('j'); WO2 = k.label('wo2'); SG = k.label('sg')
    k(f'''s_load_dwordx2 s[4:5], s[0:1], 32
s_load_dwordx2 s[8:9], s[0:1], 56
v_lshrrev_b32 v1, 6, v0
v_and_b32 v2, 63, v0
v_readfirstlane_b32 s35, v1
s_sub_u32 s33, s2, {base_wg}
s_mul_i32 s33, s33, {nwv}
s_add_u32 s33, s33, s35
v_and_b32 v4, 15, v2
v_lshrrev_b32 v5, 4, v2
v_lshlrev_b32 v3, 4, v2
s_lshl_b32 s47, s35, 13
s_cmp_ge_u32 s35, {nwv}
s_cbranch_scc1 {END}
s_cmp_ge_u32 s33, 440
s_cbranch_scc1 {END}
s_waitcnt lgkmcnt(0)''')
    srd_from(k, 16, 40, 41, WS_WI, WS_WO - WS_WI + WO8_BYTES)
    k(f'''s_mov_b32 s23, 0x00020000
s_cmp_ge_u32 s33, 280
s_cbranch_scc1 {WO}
s_mul_i32 s51, s33, 4682
s_lshr_b32 s51, s51, 16
s_mul_i32 s52, s51, 14
s_sub_u32 s52, s33, s52
s_movk_i32 s50, 3456
s_lshl_b32 s53, s51, 5
s_mov_b32 s57, 8
s_mov_b32 s58, 4
s_mov_b64 s[20:21], s[4:5]
s_mov_b32 s22, {640*3456}
s_branch {J}
{WO}:
s_sub_u32 s34, s33, 280
s_mul_i32 s51, s34, 13108
s_lshr_b32 s51, s51, 16
s_mul_i32 s52, s51, 5
s_sub_u32 s52, s34, s52
s_movk_i32 s50, 1280
s_lshr_b32 s54, s51, 2
s_and_b32 s55, s51, 3
s_mul_i32 s53, s54, 112
s_lshl_b32 s42, s55, 5
s_add_u32 s53, s53, s42
s_mov_b32 s57, 4
s_mov_b32 s58, 16
s_mov_b64 s[20:21], s[8:9]
s_mov_b32 s22, {864*1280}
{J}:
v_mul_u32_u24 v6, s50, v5
v_lshl_add_u32 v6, v4, 4, v6
s_mul_i32 s42, s53, s50
s_lshl_b32 s43, s52, 8
s_add_u32 s42, s42, s43
v_add_u32 v6, s42, v6
s_lshl_b32 s43, s50, 2''')
    for i in range(8):
        k(f's_add_u32 m0, s47, {1024*i}')
        k(f'buffer_load_dwordx4 v6, s[20:23], 0 offen lds')
        if i < 7: k(f'v_add_u32 v6, s43, v6')
    k(f'''v_mul_u32_u24 v6, s57, v5
v_lshrrev_b32 v7, 2, v4
v_add_u32 v6, v6, v7
v_and_b32 v7, 3, v4
v_lshlrev_b32 v7, 3, v7
v_lshl_add_u32 v6, v6, 8, v7
v_add_u32 v6, s47, v6
s_lshl_b32 s42, s58, 8
v_add_u32 v7, s42, v6
v_lshlrev_b32 v8, 3, v2
s_waitcnt vmcnt(0)''')
    prep_tail(k, END, WO2, SG)


def prep_tail(k, END, WO2, SG):
    PADW = gen_fft.OPT.get('padw', 0); NL = '\n'
    for i in range(8):
        k(f'ds_read_b64_tr_b16 {vr(16+4*i,2)}, v6 offset:{32*i}')
        k(f'ds_read_b64_tr_b16 {vr(18+4*i,2)}, v7 offset:{32*i}')
    st(k, 5, 6)
    k(f's_cmp_ge_u32 s33, 280\ns_cbranch_scc1 {WO2}')
    for i in range(8):
        if i in (1, 4): st(k, 5, 7 + i // 4)
        k(f'''s_lshl_b32 s42, s52, 3
s_add_u32 s42, s42, {i}
s_add_u32 s43, s42, 2
s_cmp_ge_u32 s42, 54
s_cselect_b32 s43, s43, s42
s_cselect_b32 s46, 0, 1
{f"s_cmp_ge_u32 s42, 110{NL}s_cselect_b32 s43, {48+i}, s43{NL}s_cselect_b32 s46, 1, s46" if PADW and i >= 6 else ""}
s_mul_i32 s44, s43, 9363
s_lshr_b32 s44, s44, 16
s_mul_i32 s45, s44, 7
s_sub_u32 s43, s43, s45
s_and_b32 s44, s44, 7
s_lshl_b32 s44, s44, 1
s_lshr_b32 s45, s43, 2
s_xor_b32 s45, s45, s46
s_add_u32 s44, s44, s45
s_mul_i32 s44, s44, 140
s_add_u32 s43, s43, s44
s_mul_i32 s44, s51, 7
s_add_u32 s43, s43, s44
s_lshl_b32 s43, s43, 10
{"" if PADW else f"s_cmp_lt_u32 s42, 108{NL}s_cselect_b32 s43, s43, {BIG}"}
s_waitcnt lgkmcnt({14-2*i})
buffer_store_dwordx4 {vr(16+4*i,4)}, v3, s[16:19], s43 offen''')
    k(f'''s_branch {END}
{WO2}:
s_mul_i32 s56, s54, {WOB}
s_add_u32 s56, s56, {WS_WO-WS_WI}
s_mul_i32 s42, s55, 5120
s_add_u32 s56, s56, s42
s_cmp_lt_u32 s53, 864
s_cselect_b32 s59, -1, 0
s_cmp_lt_u32 s53, 848
s_cselect_b32 s60, -1, 0
s_cmp_eq_u32 s55, 3
s_cbranch_scc1 {SG}''')
    for sg in range(2):
        for i in range(8):
            k(f'''s_lshl_b32 s42, s52, 3
s_add_u32 s42, s42, {i}
s_mul_i32 s44, s42, 13108
s_lshr_b32 s44, s44, 16
s_mul_i32 s45, s44, 5
s_sub_u32 s43, s42, s45
s_mul_i32 s44, s44, {8*WOB}
s_lshl_b32 s43, s43, {9 if sg else 10}
s_add_u32 s43, s43, s44
s_add_u32 s43, s43, s56
s_waitcnt lgkmcnt({14-2*i})''')
            for j in range(2 if sg else 4): k(f'v_and_b32 v{16+4*i+j}, s{59+j//2}, v{16+4*i+j}')
            if sg: k(f'buffer_store_dwordx2 {vr(16+4*i,2)}, v8, s[16:19], s43 offen')
            else: k(f'buffer_store_dwordx4 {vr(16+4*i,4)}, v3, s[16:19], s43 offen')
        k(f's_branch {END}')
        if sg == 0: k(f'{SG}:')


def prep_inl(k, part, LB, END, nv=0):
    WO = k.label('wo'); J = k.label('j'); WO2 = k.label('wo2'); SG = k.label('sg')
    txt = f"""s_lshl_b32 s33, s2, 1
s_add_u32 s33, s33, s34
s_sub_u32 s33, s33, 6
s_sub_u32 s47, s34, 6
s_lshl_b32 s47, s47, 13
s_add_u32 s47, s47, {LB}
v_and_b32 v4, 15, v2
v_lshrrev_b32 v5, 4, v2
s_mov_b32 s23, 0x00020000
s_cmp_ge_u32 s33, 280
s_cbranch_scc1 {WO}
s_mul_i32 s51, s33, 4682
s_lshr_b32 s51, s51, 16
s_mul_i32 s52, s51, 14
s_sub_u32 s52, s33, s52
s_movk_i32 s50, 3456
s_lshl_b32 s53, s51, 5
s_mov_b32 s57, 8
s_mov_b32 s58, 4
s_mov_b64 s[20:21], s[62:63]
s_mov_b32 s22, {640*3456}
s_branch {J}
{WO}:
s_sub_u32 s35, s33, 280
s_mul_i32 s51, s35, 13108
s_lshr_b32 s51, s51, 16
s_mul_i32 s52, s51, 5
s_sub_u32 s52, s35, s52
s_movk_i32 s50, 1280
s_lshr_b32 s54, s51, 2
s_and_b32 s55, s51, 3
s_mul_i32 s53, s54, 112
s_lshl_b32 s42, s55, 5
s_add_u32 s53, s53, s42
s_mov_b32 s57, 4
s_mov_b32 s58, 16
s_mov_b64 s[20:21], s[64:65]
s_mov_b32 s22, {864*1280}
{J}:
"""
    if part == 'A':
        txt += """v_mul_u32_u24 v6, s50, v5
v_lshl_add_u32 v6, v4, 4, v6
s_mul_i32 s42, s53, s50
s_lshl_b32 s43, s52, 8
s_add_u32 s42, s42, s43
v_add_u32 v6, s42, v6
s_lshl_b32 s43, s50, 2
"""
        for i in range(8):
            txt += f's_add_u32 m0, s47, {1024*i}\nbuffer_load_dwordx4 v6, s[20:23], 0 offen lds\n'
            if i < 7: txt += 'v_add_u32 v6, s43, v6\n'
        mp = dict(s33='s16', s35='s17', s42='s18', s43='s19', s47='s24', s50='s25', s51='s26', s52='s27', s53='s28', s54='s29', s55='s30', s57='s31', s58='s31', v4='v104', v5='v105', v6='v106')
        txt = re.sub(r'\b([sv]\d+)\b', lambda m: mp.get(m.group(1), m.group(1)), txt)
        k(txt)
        return
    k(txt)
    k(f's_cmp_ge_u32 s33, 440\ns_cbranch_scc1 {END}')
    srd_from(k, 16, 40, 41, WS_WI, WS_WO - WS_WI + WO8_BYTES)
    k(f"""v_mul_u32_u24 v6, s57, v5
v_lshrrev_b32 v7, 2, v4
v_add_u32 v6, v6, v7
v_and_b32 v7, 3, v4
v_lshlrev_b32 v7, 3, v7
v_lshl_add_u32 v6, v6, 8, v7
v_add_u32 v6, s47, v6
s_lshl_b32 s42, s58, 8
v_add_u32 v7, s42, v6
v_lshlrev_b32 v8, 3, v2""")
    st(k, 5, 4)
    k(f's_waitcnt vmcnt({nv})')
    st(k, 5, 5)
    prep_tail(k, END, WO2, SG)


BB = 20480


def gelu_pk(k, pk, n, x, p, out, vc, tr=False, sc=False):
    for i in range(0, n, 2):
        k(f'v_lshlrev_b32 v{x+i}, 16, v{pk+i//2}\nv_and_b32 v{x+i+1}, 0xffff0000, v{pk+i//2}')
    if sc:
        for i in range(n): k(f'v_mul_f32 v{p+i}, v{x+i}, v{x+i}')
        for i in range(n): k(f'v_fma_f32 v{p+i}, v{p+i}, {"s62" if GV else f"v{vc}"}, v{vc+1}')
        for i in range(n): k(f'v_mul_f32 v{p+i}, v{p+i}, v{x+i}')
    else:
        for i in range(0, n, 2):
            k(f'v_pk_mul_f32 {vr(p+i,2)}, {vr(x+i,2)}, {vr(x+i,2)}')
        for i in range(0, n, 2):
            if GV == 1: k(f'v_pk_fma_f32 {vr(p+i,2)}, {vr(p+i,2)}, s[62:63], {vr(vc,2)}')
            elif GV == 2: k(f'v_fma_f32 v{p+i}, v{p+i}, s62, v{vc+1}\nv_fma_f32 v{p+i+1}, v{p+i+1}, s62, v{vc+1}')
            else: k(f'v_pk_fma_f32 {vr(p+i,2)}, {vr(p+i,2)}, {vr(vc,2)}, {vr(vc,2)} op_sel:[0,0,1] op_sel_hi:[1,0,1]')
        for i in range(0, n, 2):
            k(f'v_pk_mul_f32 {vr(p+i,2)}, {vr(p+i,2)}, {vr(x+i,2)}')
    for i in range(n):
        k(f'v_exp_f32 v{p+i}, v{p+i}')
    if sc:
        for i in range(n): k(f'v_add_f32 v{p+i}, 1.0, v{p+i}')
    else:
        for i in range(0, n, 2):
            k(f'v_pk_add_f32 {vr(p+i,2)}, {vr(p+i,2)}, 1.0 op_sel_hi:[1,0]')
    for i in range(n):
        k(f'v_rcp_f32 v{p+i}, v{p+i}')
    if sc:
        for i in range(n): k(f'v_mul_f32 v{p+i}, v{p+i}, v{x+i}')
    else:
        for i in range(0, n, 2):
            k(f'v_pk_mul_f32 {vr(p+i,2)}, {vr(p+i,2)}, {vr(x+i,2)}')
    for i in range(0, n, 2):
        if tr:
            a = [0, 4, 1, 5][i // 2]
            k(f'v_cvt_pk_bf16_f32 v{out+i//2}, v{p+a}, v{p+a+2}')
        else: k(f'v_cvt_pk_bf16_f32 v{out+i//2}, v{p+i}, v{p+i+1}')


class Bulk:
    def __init__(self, k, ops): self.k = k; self.ops = list(ops)
    def copy(self): return Bulk(self.k, self.ops)
    def __call__(self, n, vm, va, tag='w'):
        for _ in range(n):
            if not self.ops: return
            self.k(self.ops.pop(0).replace('@', f'v{va}'))
            if vm is not None: vm.issue(tag)


def weave_in(k, i0, q, n, vm, va, tag='q'):
    body = k.lines[i0:]
    ok = []; full = True
    for i, l in enumerate(body):
        if l.startswith('s_mov_b64 exec, -1'): full = True
        elif 'exec' in l.split(',')[0] or 'saveexec' in l: full = False
        if full and l.startswith(('v_', 'ds_')) and not l.startswith('v_cmp') and 'vcc' not in l: ok.append(i)
    n = min(n, len(q.ops))
    if not n: return
    pos = {}
    for j in range(n):
        p = ok[(j * len(ok)) // n]
        pos[p] = pos.get(p, 0) + 1
    del k.lines[i0:]
    for i, l in enumerate(body):
        if i in pos: q(pos[i], vm, va, tag)
        k.lines.append(l)


def flag(k, srd, soff):
    k(f'''s_mov_b64 exec, 1
v_mov_b32 v8, 1
v_mov_b32 v9, 0
buffer_store_dword v8, v9, {sr(srd,4)}, {soff} offen sc1
s_mov_b64 exec, -1''')


def ph_k2a(k, opt, wb):
    RP = 144; NP = 11 * RP + 16
    TB2 = 0
    SKIP = k.label('skip')
    vm = Cnt('vmcnt', 63)
    k(f'''s_load_dwordx2 s[4:5], s[0:1], 0
s_load_dwordx2 s[40:41], s[0:1], 80
s_load_dwordx2 s[72:73], s[0:1], 40
s_load_dwordx2 s[80:81], s[0:1], 64''')
    tab_srd(k, 12)
    k(f'''s_and_b32 s3, s2, 7
s_lshl_b32 s3, s3, 5
s_lshr_b32 s33, s2, 3
s_add_u32 s3, s3, s33
s_lshl_b32 s33, s3, 6
s_add_u32 s33, s33, 32768
s_load_dwordx16 s[16:31], s[12:13], s33
v_lshrrev_b32 v1, 6, v0
v_and_b32 v2, 63, v0
v_readfirstlane_b32 s34, v1
v_lshlrev_b32 v3, 4, v2
s_movk_i32 s38, 0x4000
s_lshl_b32 s39, s34, 11
s_add_u32 m0, s39, {TB2}
s_add_u32 s38, s38, s39
s_cmp_lt_u32 s34, 5
s_cselect_b32 s38, s38, {BIG}
buffer_load_dwordx4 v3, s[12:15], s38 offen lds
buffer_load_dwordx4 v3, s[12:15], s38 offen offset:1024 lds''')
    vm.issue('t'); vm.issue('t')
    k(f'''s_mul_i32 s46, s3, {8*TP}
s_add_u32 s47, s46, {3*TP}
s_add_u32 s48, s46, {6*TP}
v_lshlrev_b32 v60, 2, v0
s_lshl_b32 s35, s34, 8
s_add_u32 s35, s35, s3
s_mul_i32 s35, s35, 1280
v_and_b32 v50, 15, v2
v_lshrrev_b32 v51, 4, v2
v_lshlrev_b32 v52, 6, v50
v_lshl_add_u32 v52, v51, 4, v52
v_add_u32 v53, 1024, v52
v_mov_b32 v54, 0x7fffffff
v_cmp_gt_u32 vcc, 4, v50
v_cndmask_b32 v53, v54, v53, vcc''')
    k(f'''s_mul_i32 s59, s34, {NP}
v_add_u32 v112, s59, v52
v_and_b32 v113, 3, v2
v_mul_u32_u24 v113, {NP}, v113
v_lshrrev_b32 v114, 2, v2
v_lshl_add_u32 v113, v114, 4, v113
s_cmp_ge_u32 s34, 5
s_cselect_b32 s59, {4*NP-5*256}, 0
s_lshl_b32 s60, s34, 8
s_add_u32 s59, s59, s60
v_add_u32 v113, s59, v113
s_mul_i32 s59, s3, 10240
s_lshl_b32 s60, s34, 10
s_add_u32 s59, s59, s60
s_add_u32 s49, s59, 8192
s_cmp_lt_u32 s34, 2
s_cselect_b32 s49, s49, {BIG}''')
    k(f'''s_and_b32 s58, s3, 15
s_mul_i32 s58, s58, {140*1024}
s_mul_i32 s57, s34, {18*1024}
s_min_u32 s57, s57, {122*1024}
s_add_u32 s56, s57, {BB}
s_add_u32 s57, s57, s58
s_waitcnt lgkmcnt(0)''')
    srd_from(k, 4, 4, 5, 0, X_BYTES)
    srd_from(k, 8, 40, 41, WS_U, TU_BYTES)
    for k2 in range(8):
        k(f'buffer_load_dword v{4+k2}, v60, s[8:11], s{46+k2//3} offen offset:{(k2%3)*TP+4*(k2&1)*(opt.get("sh",0)>0)}')
        vm.issue('u')
    k(f'''buffer_load_dwordx4 v[104:107], v52, s[4:7], s35 offen
buffer_load_dwordx4 v[108:111], v53, s[4:7], s35 offen''')
    vm.issue('x'); vm.issue('x')
    srd_from(k, 52, 40, 41, WS_H, X_BYTES)
    srd_from(k, 60, 40, 41, WS_HN, X_BYTES)
    srd_from(k, 64, 40, 41, WS_WI, WI_BYTES)
    if wb:
        w_setup(k, 42, 43); w_vaddr(k, 114, 115)
    if opt.get('ub'): k('s_barrier')
    bq = [] if opt.get('nob') else list(range(18))
    BP = opt.get('BP', [10, 8, 0, 0, 0, 0])
    assert sum(BP) >= 18

    def bulk(i):
        for _ in range(BP[i]):
            if bq:
                i = bq.pop(0)
                if i % 4 == 0:
                    k(f's_add_u32 m0, s56, {1024*i}')
                    if i: k('s_add_u32 s57, s57, 4096')
                k(f'buffer_load_dwordx4 v3, s[64:67], s57 offen offset:{1024*(i%4)} lds'); vm.issue('b')
            elif wb: wb(1, vm, 114)
    bulk(0)
    k(f'''v_mul_u32_u24 v55, 3277, v0
v_lshrrev_b32 v55, 16, v55
v_mul_u32_u24 v56, 20, v55
v_sub_u32 v56, v0, v56
v_mul_u32_u24 v57, {RP}, v56
v_lshl_add_u32 v57, v55, 2, v57
v_mov_b32 v58, {11*RP}
v_cmp_ge_u32 vcc, 10, v56
v_cndmask_b32 v57, v58, v57, vcc
v_sub_u32 v59, 20, v56
v_mul_u32_u24 v59, {RP}, v59
v_sub_u32 v61, 31, v55
v_lshl_add_u32 v59, v61, 2, v59
v_cmp_le_u32 vcc, 10, v56
v_cndmask_b32 v59, v58, v59, vcc
v_sub_u32 v61, 32, v55
v_lshlrev_b32 v61, 2, v61
v_cmp_eq_u32 vcc, 0, v56
v_cndmask_b32 v59, v59, v61, vcc
v_cmp_eq_u32 vcc, 0, v0
v_cndmask_b32 v59, v59, v58, vcc
v_cmp_eq_u32 vcc, 320, v0
v_cndmask_b32 v59, v59, v58, vcc
v_mov_b32 v40, 0x3f3504f3
v_min_u32 v62, 10, v50
v_mul_u32_u24 v62, {RP}, v62
v_lshl_add_u32 v62, v51, 4, v62
s_mul_i32 s42, s34, {NP}
v_add_u32 v62, s42, v62
v_and_b32 v63, 1, v2
v_lshlrev_b32 v63, 31, v63
v_or_b32 v63, 1.0, v63
''')
    k(vm.wait('t')); k('s_barrier')
    for i in range(10): k(f'ds_read_b128 {vr(64+4*i,4)}, v3 offset:{TB2+1024*i}')
    bulk(1)
    k('s_waitcnt lgkmcnt(0)\ns_barrier')
    k(f'''v_cmp_gt_u32 vcc, 321, v0
s_and_saveexec_b64 s[44:45], vcc''')
    k(vm.wait('u'))
    st(k, 1, 1); st(k, 0, 1)
    k(f'''s_cbranch_execz {SKIP}''')
    for k2 in range(8):
        k(f'v_lshlrev_b32 v{20+2*k2}, 16, v{4+k2}\nv_and_b32 v{21+2*k2}, 0xffff0000, v{4+k2}')
    for k2 in range(8):
        if k2 == 0:
            k('v_mov_b32 v4, v20\nv_mov_b32 v5, v21')
        else:
            smul(k, 4 + 2 * k2, 20 + 2 * k2, 16 + 2 * k2, 42 + 2 * (k2 & 1), conj=True)
    T = fft8(k, 4, 20, True, 40)
    for n in range(8):
        k(f'''v_cvt_pk_bf16_f32 v{4+2*n}, v{T[n]}, v{T[n]+1}
v_cvt_pk_bf16_f32 v{5+2*n}, v{T[n]}, -v{T[n]+1}
ds_write_b32 v57, v{4+2*n} offset:{n*NP}
ds_write_b32 v59, v{5+2*n} offset:{n*NP}''')
    k(f'''{SKIP}:
s_mov_b64 exec, -1''')
    bulk(2)
    k(f'''s_waitcnt lgkmcnt(0)
s_barrier
ds_read_b128 v[4:7], v62
ds_read_b128 v[8:11], v62 offset:64''')
    bulk(3)
    k(f'''s_waitcnt lgkmcnt(1)''')
    for u in range(2):
        if u == 1: k('s_waitcnt lgkmcnt(0)')
        for t in range(2):
            k(f'{MFMA} {vr(12+16*u+8*t,4)}, {vr(4+4*u,4)}, {vr(64+8*t,4)}, 0')
            k(f'{MFMA} {vr(16+16*u+8*t,4)}, {vr(4+4*u,4)}, {vr(68+8*t,4)}, 0')
    bulk(4)
    for i in range(0, 16, 2):
        k(f'v_pk_fma_f32 {vr(12+i,2)}, {vr(28+i,2)}, v[62:63], {vr(12+i,2)} op_sel:[0,1,0] op_sel_hi:[1,1,1]')
    for t in range(2):
        cmul_planar(k, 12 + 8 * t, 16 + 8 * t, 80 + 8 * t, 84 + 8 * t, 28, 32, 36)
        k(f'''v_cvt_pk_bf16_f32 v{4+4*t}, v28, v29
v_cvt_pk_bf16_f32 v{5+4*t}, v30, v31
v_cvt_pk_bf16_f32 v{6+4*t}, v32, v33
v_cvt_pk_bf16_f32 v{7+4*t}, v34, v35''')
    for v in range(2):
        for t in range(2):
            k(f'{MFMA} {vr(12+8*v+4*t,4)}, {vr(4+4*t,4)}, {vr(96+4*v,4)}, 0')
    bulk(5)
    k(vm.wait('x'))
    for i in range(8):
        k(f'v_lshlrev_b32 v{28+2*i}, 16, v{104+i}\nv_and_b32 v{29+2*i}, 0xffff0000, v{104+i}')
    for i in range(8):
        k(f'v_cvt_pk_bf16_f32 v{4+i}, v{12+2*i}, v{13+2*i}')
    for i in range(8):
        k(f'v_lshlrev_b32 v{12+2*i}, 16, v{4+i}\nv_and_b32 v{13+2*i}, 0xffff0000, v{4+i}')
    for i in range(8):
        k(f'v_pk_add_f32 {vr(12+2*i,2)}, {vr(12+2*i,2)}, {vr(28+2*i,2)}')
    for i in range(8):
        k(f'v_cvt_pk_bf16_f32 v{4+i}, v{12+2*i}, v{13+2*i}')
    k('''buffer_store_dwordx4 v[4:7], v52, s[52:55], s35 offen sc1
buffer_store_dwordx4 v[8:11], v53, s[52:55], s35 offen sc1''')
    for i in range(8):
        k(f'v_lshlrev_b32 v{12+2*i}, 16, v{4+i}\nv_and_b32 v{13+2*i}, 0xffff0000, v{4+i}')
    k('''v_pk_add_f32 v[28:29], v[12:13], v[14:15]
v_pk_mul_f32 v[30:31], v[12:13], v[12:13]
v_pk_add_f32 v[32:33], v[16:17], v[18:19]
v_pk_mul_f32 v[34:35], v[14:15], v[14:15]''')
    for i in range(2, 8):
        k(f'v_pk_fma_f32 {vr(30+4*(i&1),2)}, {vr(12+2*i,2)}, {vr(12+2*i,2)}, {vr(30+4*(i&1),2)}')
        if i >= 4:
            k(f'v_pk_add_f32 {vr(28+4*(i&1),2)}, {vr(28+4*(i&1),2)}, {vr(12+2*i,2)}')
    k('''v_pk_add_f32 v[28:29], v[28:29], v[32:33]
v_pk_add_f32 v[30:31], v[30:31], v[34:35]
v_add_f32 v28, v28, v29
v_add_f32 v30, v30, v31''')
    wave_reduce2(k, 28, 30, 36, 37)
    ln_stats(k, 36, 37, 640, 28, 30, 32)
    ln_apply(k, 12, 16, 28, 30, 40)
    srd_from(k, 68, 40, 41, WS_FL, FL_BYTES)
    k(f'''ds_write_b128 v112, v[40:43]
s_mov_b32 exec_lo, 0x000f000f
s_mov_b32 exec_hi, 0x000f000f
ds_write_b128 v112, v[44:47] offset:1024
s_mov_b64 exec, -1
s_waitcnt lgkmcnt(0)
s_barrier
ds_read_b128 v[40:43], v113
ds_read_b128 v[44:47], v113 offset:{4*NP+3*256}
s_waitcnt lgkmcnt(1)
buffer_store_dwordx4 v[40:43], v3, s[60:63], s59 offen sc1
s_waitcnt lgkmcnt(0)
buffer_store_dwordx4 v[44:47], v3, s[60:63], s49 offen sc1''')
    st(k, 1, 2); st(k, 0, 2)


def ph_k12(k, opt, wb):
    P = 1040; W0 = 16 * P; TB1 = 32 * P; TB2 = TB1 + 8192
    RP = 144; NP = 11 * RP + 16
    IDLE = k.label('idle'); JOIN = k.label('join'); SKIP = k.label('skip')
    vm = Cnt('vmcnt', 63)
    k(f"""s_load_dwordx4 s[4:7], s[0:1], 8
s_load_dwordx2 s[40:41], s[0:1], 80
s_load_dwordx2 s[72:73], s[0:1], 40
s_load_dwordx2 s[80:81], s[0:1], 64""")
    tab_srd(k, 12)
    k(f"""s_and_b32 s33, s2, 7
s_lshr_b32 s35, s2, 3
v_lshrrev_b32 v1, 6, v0
v_and_b32 v2, 63, v0
v_readfirstlane_b32 s34, v1
v_lshlrev_b32 v3, 4, v2
v_and_b32 v4, 15, v2
v_lshrrev_b32 v5, 4, v2
s_lshl_b32 s39, s34, 10
s_add_u32 m0, s39, {TB1}
s_add_u32 s38, s39, 0x2000
buffer_load_dwordx4 v3, s[12:15], s38 offen lds""")
    vm.issue('t1')
    IIM = 'v[112:115]'; IRE = 'v[114:117]'; FIM = 'v[116:119]'; FRE = 'v[118:121]'
    k(f"""v_mul_u32_u24 v6, {16*8*TP}, v4
v_lshl_add_u32 v6, v5, 4, v6
s_lshl_b32 s36, s34, 4
s_add_u32 s36, s36, s33
s_mul_i32 s45, s36, 642
s_mul_i32 s36, s36, {TP}
s_lshl_b32 s37, s35, 6
s_add_u32 s36, s36, s37
s_add_u32 s42, s36, {8*TP}
s_lshl_b32 s37, s35, 5
s_add_u32 s45, s45, s37
s_and_b32 s45, s45, -4
v_and_b32 v7, 1, v5
v_lshrrev_b32 v8, 1, v5
v_lshl_add_u32 v9, v4, 4, v7
v_mul_u32_u24 v9, {8*642}, v9
v_lshl_add_u32 v9, v8, 4, v9
s_and_b32 s37, s33, 1
s_lshl_b32 s37, s37, 2
s_sub_u32 s43, s36, s37
s_sub_u32 s44, s42, s37
s_lshl_b32 s3, s33, 5
s_add_u32 s3, s3, s35
s_cmp_lt_u32 s2, 168
s_cselect_b32 s43, s43, {BIG}
s_cselect_b32 s44, s44, {BIG}
s_cselect_b32 s45, s45, {BIG}
s_waitcnt lgkmcnt(0)""")
    srd_from(k, 60, 40, 41, WS_T, TU_BYTES)
    for i in range(2):
        k(f'buffer_load_dwordx4 {vr(16+4*i,4)}, v6, s[60:63], s{43+i} offen'); vm.issue(f'T{i}')
    k(f"""s_mov_b32 s52, s6
s_mov_b32 s53, s7
s_mov_b32 s6, {2048*642}
s_mov_b32 s7, 0x00020000
s_mov_b32 s54, {2048*642}
s_mov_b32 s55, 0x00020000""")
    WP = opt.get('k1wp', 0)

    def wld():
        k(f"""buffer_load_dwordx4 v[32:35], v9, s[4:7], s45 offen
buffer_load_dwordx4 v[38:41], v9, s[52:55], s45 offen
s_load_dwordx2 s[4:5], s[0:1], 0""")
        vm.issue('W'); vm.issue('W')
    if opt.get('ob1'): k('s_barrier')
    if WP == 0: wld()
    k(f"""s_min_u32 s39, s34, 4
s_lshl_b32 s39, s39, 11
s_add_u32 m0, s39, {TB2}
s_add_u32 s38, s39, 0x4000
buffer_load_dwordx4 v3, s[12:15], s38 offen lds
buffer_load_dwordx4 v3, s[12:15], s38 offen offset:1024 lds
s_lshl_b32 s38, s3, 6
s_add_u32 s38, s38, 32768
s_load_dwordx16 s[16:31], s[12:13], s38""")
    vm.issue('t2'); vm.issue('t2')
    srd_from(k, 8, 40, 41, WS_U, TU_BYTES)
    srd_from(k, 64, 40, 41, WS_WI, WI_BYTES)
    w_setup(k, 46, 47); w_vaddr(k, 124, 125)
    BR = opt.get('brot', 0)
    g1id(k, 58, 57)
    k(f"""s_and_b32 s58, s58, 15
s_mul_i32 s58, s58, {140*1024}
s_mul_i32 s57, s34, {14*1024}
s_add_u32 s57, s57, {31*1024}
s_min_u32 s57, s57, {(124 if BR else 126)*1024}
s_add_u32 s56, s57, {BB}
s_add_u32 s57, s57, s58""")
    if opt.get('hot'): k('s_sub_u32 s57, s57, s58\ns_mov_b32 s58, 0\ns_and_b32 s50, s50, 0x7fff\ns_and_b32 s51, s51, 0x7fff\ns_and_b32 s82, s82, 0x7fff')
    if opt.get('hotw'): k('s_and_b32 s50, s50, 0x7fff\ns_and_b32 s51, s51, 0x7fff\ns_and_b32 s82, s82, 0x7fff')
    if opt.get('hotb'): k('s_sub_u32 s57, s57, s58\ns_mov_b32 s58, 0')
    if BR: k('s_bfe_u32 s38, s3, 0x10004\ns_lshl_b32 s38, s38, 13')
    bops = []
    for i in range(0 if opt.get('nob') else (16 if BR else 14)):
        if BR:
            o = f's_xor_b32 s39, s38, {1024*(i-i%4)}\ns_add_u32 m0, s56, s39\ns_add_u32 s39, s39, s57\n'
            bops.append(o + f'buffer_load_dwordx4 v3, s[64:67], s39 offen offset:{1024*(i%4)} lds')
            continue
        o = f's_add_u32 m0, s56, {1024*(i-i%4)}\n'
        if i % 4 == 0 and i: o += 's_add_u32 s57, s57, 4096\n'
        bops.append(o + f'buffer_load_dwordx4 v3, s[64:67], s57 offen offset:{1024*(i%4)} lds')
    wops = wb.ops
    NWL = opt.get('nwl', 0)
    wpre = wops[:len(wops) - NWL]; wb.ops = wops[len(wops) - NWL:]
    order = opt.get('bo', 0)
    if order == 0: pre = wpre + bops
    elif order == 1: pre = bops + wpre
    else:
        pre = []
        a, b = list(wpre), list(bops)
        while a or b:
            pre += a[:8]; a = a[8:]
            pre += b[:4]; b = b[4:]
    import copy
    KP = opt.get('KP', [8, 4, 4, 4, 4, 4, 4, 4, 4, 99])
    CP = opt.get('CP', [0, 0, 0, 0, 0])
    NPRE = sum(KP) + sum(opt.get('KW', [0, 0, 0])[:2])
    post = pre[NPRE:]; pre = pre[:NPRE]
    assert len(post) <= sum(CP) + opt.get('KW', [0, 0, 0])[2], (len(post), CP)
    k(f's_cmp_ge_u32 s2, 168\ns_cbranch_scc1 {IDLE}')
    vi = copy.deepcopy(vm)
    q = Bulk(k, pre)

    def bulk(i): q(KP[i], vm, 124, 'q')
    bulk(0)
    k(f"""v_mul_u32_u24 v10, {4*P}, v5
v_lshl_add_u32 v10, v4, 2, v10
s_lshl_b32 s37, s34, 7
v_add_u32 v10, s37, v10
v_mul_u32_u24 v11, {8*P}, v8
v_lshl_add_u32 v11, v7, 6, v11
v_lshl_add_u32 v11, v4, 2, v11
v_add_u32 v11, s37, v11
v_lshlrev_b32 v12, 6, v4
v_lshl_add_u32 v12, v5, 4, v12
s_mul_i32 s37, s34, {2*P}
v_add_u32 v12, s37, v12
s_mov_b32 s47, 0x05040100
s_mov_b32 s48, 0x07060302""")
    for i in range(2):
        k(vm.wait(f'T{i}'))
        if i == 0: st(k, 4, 1)
        for j in range(4):
            k(f'ds_write_b32 v10, v{16+4*i+j} offset:{j*P+64*i}')
    if WP == 1: wld()
    bulk(1)
    k('s_waitcnt lgkmcnt(0)\ns_barrier')
    NC = 2
    KW = opt.get('KW', [0, 0, 0])
    i0 = len(k.lines)
    k(f"""ds_read_b128 v[96:99], v3 offset:{TB1}
ds_read_b128 v[16:19], v12
ds_read_b128 v[100:103], v3 offset:{TB1+1024}
ds_read_b128 v[20:23], v12 offset:{P}
ds_read_b128 v[104:107], v3 offset:{TB1+2048}
ds_read_b128 v[108:111], v3 offset:{TB1+3072}
ds_read_b128 v[118:121], v3 offset:{TB1+4096}
ds_read_b64 v[116:117], v3 offset:{TB1+5120}
ds_read_b128 v[112:115], v3 offset:{TB1+7168}""")
    bulk(2)
    k(f"""s_waitcnt lgkmcnt(7)
{MFMA} v[48:51], v[16:19], v[96:99], 0
s_waitcnt lgkmcnt(6)
{MFMA} v[52:55], v[16:19], v[100:103], 0
s_waitcnt lgkmcnt(5)
{MFMA} v[56:59], v[20:23], v[96:99], 0
{MFMA} v[60:63], v[20:23], v[100:103], 0""")
    bulk(3)
    k('s_waitcnt lgkmcnt(0)')

    def pack(c, re, im):
        k(f"""v_cvt_pk_bf16_f32 v{16+4*c}, v{re}, v{re+1}
v_cvt_pk_bf16_f32 v{17+4*c}, v{re+2}, v{re+3}
v_cvt_pk_bf16_f32 v{18+4*c}, v{im}, v{im+1}
v_cvt_pk_bf16_f32 v{19+4*c}, v{im+2}, v{im+3}""")
    for c in range(NC):
        cmul_planar(k, 48 + 8 * c, 52 + 8 * c, 104, 108, 80, 84, 88)
        pack(c, 80, 84)
        k(f'{MFMA} {vr(48+8*c,4)}, {FRE}, {vr(16+4*c,4)}, 0')
        k(f'{MFMA} {vr(52+8*c,4)}, {FIM}, {vr(16+4*c,4)}, 0')
    bulk(4)
    weave_in(k, i0, q, KW[0], vm, 124)
    k(vm.wait('W') or '')
    k(vm.wait('t2') or '')
    st(k, 4, 2)
    i0 = len(k.lines)
    for j in range(8):
        k(f'v_perm_b32 v{64+j}, v{38+j//2}, v{32+j//2}, s{47+(j&1)}')
        k(f'ds_write_b32 v11, v{64+j} offset:{W0+j*P}')
    bulk(5)
    k(f's_waitcnt lgkmcnt(0)\ns_barrier')
    for c in range(NC):
        k(f'ds_read_b128 {vr(32+4*c,4)}, v12 offset:{W0+c*P}')
    bulk(6)
    for c in range(NC):
        k(f's_waitcnt lgkmcnt({NC-1-c})')
        for r in range(4):
            k(f'v_lshlrev_b32 v{64+8*c+r}, 16, v{32+4*c+r}\nv_and_b32 v{68+8*c+r}, 0xffff0000, v{32+4*c+r}')
        cmul_planar(k, 48 + 8 * c, 52 + 8 * c, 64 + 8 * c, 68 + 8 * c, 80, 84, 88)
        pack(c, 80, 84)
        k(f'{MFMA} {vr(48+8*c,4)}, {vr(16+4*c,4)}, {IRE}, 0')
        k(f'{MFMA} {vr(52+8*c,4)}, {vr(16+4*c,4)}, {IIM}, 0')
    bulk(7)
    for c in range(NC):
        cmul_planar(k, 48 + 8 * c, 52 + 8 * c, 104, 108, 80, 84, 88, conj=True)
        pack(c, 80, 84)
        k(f'{MFMA} {vr(48+8*c,4)}, {IRE}, {vr(16+4*c,4)}, 0')
        k(f'{MFMA} {vr(52+8*c,4)}, {IIM}, {vr(16+4*c,4)}, 0')
    bulk(8)
    for c in range(NC):
        for r in range(4):
            k(f'v_cvt_pk_bf16_f32 v{16+4*c+r}, v{48+8*c+r}, v{52+8*c+r}')
        k(f'ds_write_b128 v12, {vr(16+4*c,4)} offset:{c*P}')
    weave_in(k, i0, q, KW[1], vm, 124)
    k('s_waitcnt lgkmcnt(0)\ns_barrier')
    for i in range(2):
        for j in range(4):
            k(f'ds_read_b32 v{16+4*i+j}, v10 offset:{j*P+64*i}')
    for i in range(10): k(f'ds_read_b128 {vr(64+4*i,4)}, v3 offset:{TB2+1024*i}')
    for i in range(2):
        k(f's_waitcnt lgkmcnt({14-4*i})')
        k(f'buffer_store_dwordx4 {vr(16+4*i,4)}, v6, s[8:11], {["s36","s42"][i]} offen sc1')
    st(k, 4, 3)
    if opt.get('ob2'): k('s_barrier')
    q(99, vm, 124, 'q')
    k(f's_branch {JOIN}\n{IDLE}:')
    if WP: k('s_load_dwordx2 s[4:5], s[0:1], 0')
    if opt.get('it2'):
        WM = opt.get('wte', 0)
        k(f'''s_sub_u32 s43, s35, 21
s_and_b32 s44, s33, 1
s_mul_i32 s44, s44, 11
s_add_u32 s43, s43, s44
s_mul_i32 s44, s34, 22
s_add_u32 s44, s44, s43
s_add_u32 s44, s44, {64*WM}
s_add_u32 s45, s44, 176
s_lshr_b32 s46, s33, 1
s_lshl_b32 s46, s46, 18
v_lshlrev_b32 v10, 7, v2''')
        for r in (44, 45)[:2 if 64*(4-WM) > 176 else 1]:
            k(f'''s_and_b32 s47, s{r}, 31
s_lshl_b32 s47, s47, 13
s_add_u32 s47, s47, s46
s_bfe_u32 s48, s{r}, 0x10005
s_lshl_b32 s48, s48, 22
s_add_u32 s47, s47, s48
s_lshr_b32 s48, s{r}, 6
s_lshl_b32 s48, s48, 20
s_add_u32 s47, s47, s48
s_cmp_lt_u32 s{r}, 256
s_cselect_b32 s47, s47, {BIG}
buffer_load_ubyte v11, v10, s[72:75], s47 offen''')
            vi.issue('q')
            if opt['it2'] > 1: k('s_barrier')
    if opt.get('itd'): k(f's_sleep {opt["itd"]}')
    if opt.get('it'):
        k(f'''s_sub_u32 s43, s35, 21
s_and_b32 s44, s33, 1
s_mul_i32 s44, s44, 11
s_add_u32 s43, s43, s44
s_lshl_b32 s44, s43, 3
s_add_u32 s44, s44, s34
s_mul_i32 s45, s34, 22
s_add_u32 s45, s45, s43
s_add_u32 s45, s45, 176
s_lshr_b32 s46, s33, 1
s_lshl_b32 s46, s46, 18
v_lshlrev_b32 v10, 7, v2''')
        for r in (44, 45):
            k(f'''s_and_b32 s47, s{r}, 31
s_lshl_b32 s47, s47, 13
s_lshr_b32 s48, s{r}, 5
s_lshl_b32 s48, s48, 20
s_add_u32 s47, s47, s48
s_add_u32 s47, s47, s46
buffer_load_ubyte v11, v10, s[72:75], s47 offen''')
            vi.issue('q')
        if opt.get('bt'):
            k('''s_load_dwordx2 s[44:45], s[0:1], 48
s_mov_b32 s46, 4096
s_mov_b32 s47, 0x00020000
v_lshlrev_b32 v12, 6, v2
s_waitcnt lgkmcnt(0)
buffer_load_ubyte v11, v12, s[44:47], 0 offen''')
            vi.issue('q')
        if opt['it'] > 1: k('s_barrier')
    if opt.get('iw'):
        wp = [o for o in pre if o in wpre]; bp = [o for o in pre if o not in wpre]
        assert len(bp) == len(bops)
        IW = opt['iw']
        nb0 = opt.get('ib0', 0)
        Bulk(k, bp[:nb0])(99, vi, 124, 'q')
        Bulk(k, wp)(99, vi, 124, 'q')
        k('s_mov_b32 s46, s50\ns_mov_b32 s47, s51')
        Bulk(k, wpre[len(wp):len(wp) + IW])(99, vi, 124, 'q')
        k('s_mov_b32 s50, s46\ns_mov_b32 s51, s47')
        Bulk(k, bp[nb0:])(99, vi, 124, 'q')
    else:
        q = Bulk(k, pre)
        q(99, vi, 124, 'q')
    k(vi.wait('t2'))
    k('s_barrier')
    for i in range(10): k(f'ds_read_b128 {vr(64+4*i,4)}, v3 offset:{TB2+1024*i}')
    if opt.get('idl'): k(f's_sleep {opt["idl"]}')
    k(f'{JOIN}:')
    ph_k2b(k, opt, post, NWL)


def ph_k2b(k, opt, post, NWL=0, fused=False):
    RP = 144; NP = 11 * RP + 16
    SKIP = k.label('skip')
    KW = opt.get('KW', [0, 0, 0])
    CP = opt.get('CP', [0, 0, 0, 0, 0])
    vm = Cnt('vmcnt', 63); vm.issue('q')
    if opt.get('g3s'):
        srd_from(k, 60, 40, 41, WS_A, A2_BYTES)
        k('''s_lshl_b32 s46, s2, 14
s_lshl_b32 s47, s34, 11
s_add_u32 s46, s46, s47
v_mov_b32 v28, -1
v_mov_b32 v29, -1
v_mov_b32 v30, -1
v_mov_b32 v31, -1
buffer_store_dwordx4 v[28:31], v3, s[60:63], s46 offen sc1
buffer_store_dwordx4 v[28:31], v3, s[60:63], s46 offen offset:1024 sc1''')
        vm.issue('f'); vm.issue('f')
    k(f"""s_mul_i32 s46, s3, {8*TP}
s_add_u32 s47, s46, {3*TP}
s_add_u32 s48, s46, {6*TP}
v_lshlrev_b32 v60, 2, v0
s_lshl_b32 s35, s34, 8
s_add_u32 s35, s35, s3
s_mul_i32 s35, s35, 1280
v_and_b32 v50, 15, v2
v_lshrrev_b32 v51, 4, v2
v_lshlrev_b32 v52, 6, v50
v_lshl_add_u32 v52, v51, 4, v52
v_add_u32 v53, 1024, v52
v_mov_b32 v54, 0x7fffffff
v_cmp_gt_u32 vcc, 4, v50
v_cndmask_b32 v53, v54, v53, vcc
s_lshl_b32 s42, s34, 12
s_min_u32 s42, s42, {27*1024}
s_add_u32 m0, s42, {BB}
s_add_u32 s42, s42, s58
s_waitcnt lgkmcnt(0)
s_barrier""")
    if not fused: srd_from(k, 4, 4, 5, 0, X_BYTES)
    for i in range(0 if opt.get('nob') else 4):
        k(f'buffer_load_dwordx4 v3, s[64:67], s42 offen offset:{1024*i} lds'); vm.issue('b')
    k(f"""buffer_load_dwordx4 v[104:107], v52, s[4:7], s35 offen
buffer_load_dwordx4 v[108:111], v53, s[4:7], s35 offen""")
    vm.issue('x'); vm.issue('x')
    HP0 = opt.get('hp0', 10240)
    if G1S:
        k(f"""s_mul_i32 s59, s34, {NP}
v_add_u32 v112, s59, v52""")
        for j, d in enumerate((113, 115)):
            k(f"""v_add_u32 v116, {512*j}, v0
v_mul_u32_u24 v117, 410, v116
v_lshrrev_b32 v117, 16, v117
v_mul_u32_u24 v118, 160, v117
v_sub_u32 v116, v116, v118
v_and_b32 v118, 1, v116
v_lshl_add_u32 v117, v117, 1, v118
v_mul_u32_u24 v117, {NP}, v117
v_lshrrev_b32 v116, 1, v116
v_lshl_add_u32 v{d}, v116, 4, v117""")
        k(f"""s_mul_i32 s59, s3, {HP}
s_lshl_b32 s60, s34, 10
s_add_u32 s59, s59, s60
s_add_u32 s49, s59, 8192
s_cmp_lt_u32 s34, 2
s_cselect_b32 s49, s49, {BIG}""")
    else: k(f"""s_mul_i32 s59, s34, {NP}
v_add_u32 v112, s59, v52
v_and_b32 v113, 3, v2
v_mul_u32_u24 v113, {NP}, v113
v_lshrrev_b32 v114, 2, v2
v_lshl_add_u32 v113, v114, 4, v113
s_cmp_ge_u32 s34, 5
s_cselect_b32 s59, {4*NP-5*256}, 0
s_lshl_b32 s60, s34, 8
s_add_u32 s59, s59, s60
v_add_u32 v113, s59, v113
s_mul_i32 s59, s3, {HP0}
s_lshl_b32 s60, s34, 10
s_add_u32 s59, s59, s60
s_add_u32 s49, s59, 8192
s_cmp_lt_u32 s34, 2
s_cselect_b32 s49, s49, {BIG}""")
    srd_from(k, 52, 80, 81, 0, X_BYTES) if opt.get('hout') else srd_from(k, 52, 40, 41, WS_H, X_BYTES)
    srd_from(k, 60, 40, 41, WS_HN, 0x300000)
    k(f"""v_mul_u32_u24 v55, 3277, v0
v_lshrrev_b32 v55, 16, v55
v_mul_u32_u24 v56, 20, v55
v_sub_u32 v56, v0, v56
v_mul_u32_u24 v57, {RP}, v56
v_lshl_add_u32 v57, v55, 2, v57
v_mov_b32 v58, {11*RP}
v_cmp_ge_u32 vcc, 10, v56
v_cndmask_b32 v57, v58, v57, vcc
v_sub_u32 v59, 20, v56
v_mul_u32_u24 v59, {RP}, v59
v_sub_u32 v61, 31, v55
v_lshl_add_u32 v59, v61, 2, v59
v_cmp_le_u32 vcc, 10, v56
v_cndmask_b32 v59, v58, v59, vcc
v_sub_u32 v61, 32, v55
v_lshlrev_b32 v61, 2, v61
v_cmp_eq_u32 vcc, 0, v56
v_cndmask_b32 v59, v59, v61, vcc
v_cmp_eq_u32 vcc, 0, v0
v_cndmask_b32 v59, v59, v58, vcc
v_cmp_eq_u32 vcc, 320, v0
v_cndmask_b32 v59, v59, v58, vcc
v_mov_b32 v40, 0x3f3504f3
v_min_u32 v62, 10, v50
v_mul_u32_u24 v62, {RP}, v62
v_lshl_add_u32 v62, v51, 4, v62
s_mul_i32 s42, s34, {NP}
v_add_u32 v62, s42, v62
v_and_b32 v63, 1, v2
v_lshlrev_b32 v63, 31, v63
v_or_b32 v63, 1.0, v63
""")
    WT0 = opt.get('wt0', 0) if not opt.get('now') else 0
    assert not (WT0 and NWL)
    if WT0:
        k(vm.wait('q'))
        w_trans(k, 44, 45, list(range(WT0)))
    st(k, 4, 4)
    LP = k.label('lp'); LD = k.label('ld'); SK0 = k.label('sk0'); STUB = k.label('stub'); GO = k.label('go')
    q = Bulk(k, post)
    UNI = KW[2] > 0
    if UNI:
        assert not WT0
        k(f"""v_cmp_gt_u32 vcc, 321, v0
v_cndmask_b32 v57, v58, v57, vcc
v_cndmask_b32 v59, v58, v59, vcc
s_mov_b64 exec, vcc
s_mov_b32 s43, {SPIN}
s_cmp_lt_u32 s34, 6
s_cbranch_scc1 {LP}
s_waitcnt vmcnt(0)
{f"s_sleep {opt['c67']}" if opt.get('c67') else ""}
s_branch {LD}
{LP}:""")
    else:
      k(f"""v_cmp_gt_u32 vcc, 321, v0
s_mov_b64 s[44:45], vcc
s_cmp_lt_u32 s34, 6
s_cbranch_scc1 {GO}
s_waitcnt vmcnt(0)""")
      if opt.get('c67'): k(f's_sleep {opt["c67"]}')
      q.copy()(CP[0], None, 124)
      k(f"""s_mov_b64 exec, 0
s_branch {SK0 if WT0 else SKIP}
{GO}:
s_mov_b64 exec, s[44:45]
s_mov_b32 s43, {SPIN}
{LP}:""")
    for k2 in range(8):
        k(f'buffer_load_dword v{4+k2}, v60, s[8:11], s{46+k2//3} offen offset:{(k2%3)*TP+4*(k2&1)} sc1')
    k(f"""s_waitcnt vmcnt(0)
v_max3_u32 v12, v4, v5, v6
v_max3_u32 v13, v7, v8, v9
v_max3_u32 v12, v12, v10, v11
v_max_u32 v12, v12, v13
v_cmp_eq_u32 vcc, -1, v12
s_cbranch_vccz {LD}
{f"s_sleep {opt['usl']}" if opt.get('usl') else ""}
s_sub_u32 s43, s43, 1
s_cmp_lg_u32 s43, 0
s_cbranch_scc1 {LP}
{LD}:""")
    st(k, 4, 5); st(k, 0, 1)
    if UNI:
        k('s_mov_b64 exec, -1')
        if opt.get('ob3'): k('s_barrier')
        q(CP[0], None, 124)
        i0 = len(k.lines)
    elif CP[0] and post:
        k('s_mov_b64 exec, -1')
        q(CP[0], None, 124)
        k('s_mov_b64 exec, s[44:45]')
    for k2 in range(8):
        k(f'v_lshlrev_b32 v{20+2*k2}, 16, v{4+k2}\nv_and_b32 v{21+2*k2}, 0xffff0000, v{4+k2}')
    for k2 in range(8):
        if k2 == 0:
            k('v_mov_b32 v4, v20\nv_mov_b32 v5, v21')
        else:
            smul(k, 4 + 2 * k2, 20 + 2 * k2, 16 + 2 * k2, 42 + 2 * (k2 & 1), conj=True)
    T = fft8(k, 4, 20, True, 40)
    if WT0:
        k(f'{SK0}:\ns_waitcnt lgkmcnt(0)\ns_barrier\ns_cbranch_execz {SKIP}')
    for n in range(8):
        k(f"""v_cvt_pk_bf16_f32 v{4+2*n}, v{T[n]}, v{T[n]+1}
v_cvt_pk_bf16_f32 v{5+2*n}, v{T[n]}, -v{T[n]+1}
ds_write_b32 v57, v{4+2*n} offset:{n*NP}
ds_write_b32 v59, v{5+2*n} offset:{n*NP}""")
    k(f"""{SKIP}:
s_mov_b64 exec, -1""")
    q(CP[1], None, 124)
    k(f"""s_waitcnt lgkmcnt(0)
s_barrier
ds_read_b128 v[4:7], v62
ds_read_b128 v[8:11], v62 offset:64""")
    if opt.get('kw0'): i0 = len(k.lines)
    q(CP[2], None, 124)
    k('s_waitcnt lgkmcnt(1)')
    for u in range(2):
        if u == 1: k('s_waitcnt lgkmcnt(0)')
        for t in range(2):
            k(f'{MFMA} {vr(12+16*u+8*t,4)}, {vr(4+4*u,4)}, {vr(64+8*t,4)}, 0')
            k(f'{MFMA} {vr(16+16*u+8*t,4)}, {vr(4+4*u,4)}, {vr(68+8*t,4)}, 0')
    q(CP[3], None, 124)
    for i in range(0, 16, 2):
        k(f'v_pk_fma_f32 {vr(12+i,2)}, {vr(28+i,2)}, v[62:63], {vr(12+i,2)} op_sel:[0,1,0] op_sel_hi:[1,1,1]')
    for t in range(2):
        cmul_planar(k, 12 + 8 * t, 16 + 8 * t, 80 + 8 * t, 84 + 8 * t, 28, 32, 36)
        k(f"""v_cvt_pk_bf16_f32 v{4+4*t}, v28, v29
v_cvt_pk_bf16_f32 v{5+4*t}, v30, v31
v_cvt_pk_bf16_f32 v{6+4*t}, v32, v33
v_cvt_pk_bf16_f32 v{7+4*t}, v34, v35""")
    for v in range(2):
        for t in range(2):
            k(f'{MFMA} {vr(12+8*v+4*t,4)}, {vr(4+4*t,4)}, {vr(96+4*v,4)}, 0')
    q(CP[4], None, 124)
    if UNI and opt.get('kwe', 1) == 0: weave_in(k, i0, q, KW[2], None, 124)
    for i in range(8):
        k(f'v_lshlrev_b32 v{28+2*i}, 16, v{104+i}\nv_and_b32 v{29+2*i}, 0xffff0000, v{104+i}')
    for i in range(8):
        k(f'v_cvt_pk_bf16_f32 v{4+i}, v{12+2*i}, v{13+2*i}')
    for i in range(8):
        k(f'v_lshlrev_b32 v{12+2*i}, 16, v{4+i}\nv_and_b32 v{13+2*i}, 0xffff0000, v{4+i}')
    for i in range(8):
        k(f'v_pk_add_f32 {vr(12+2*i,2)}, {vr(12+2*i,2)}, {vr(28+2*i,2)}')
    for i in range(8):
        k(f'v_cvt_pk_bf16_f32 v{4+i}, v{12+2*i}, v{13+2*i}')
    k("""buffer_store_dwordx4 v[4:7], v52, s[52:55], s35 offen sc1
buffer_store_dwordx4 v[8:11], v53, s[52:55], s35 offen sc1""")
    for i in range(8):
        k(f'v_lshlrev_b32 v{12+2*i}, 16, v{4+i}\nv_and_b32 v{13+2*i}, 0xffff0000, v{4+i}')
    k("""v_pk_add_f32 v[28:29], v[12:13], v[14:15]
v_pk_mul_f32 v[30:31], v[12:13], v[12:13]
v_pk_add_f32 v[32:33], v[16:17], v[18:19]
v_pk_mul_f32 v[34:35], v[14:15], v[14:15]""")
    for i in range(2, 8):
        k(f'v_pk_fma_f32 {vr(30+4*(i&1),2)}, {vr(12+2*i,2)}, {vr(12+2*i,2)}, {vr(30+4*(i&1),2)}')
        if i >= 4:
            k(f'v_pk_add_f32 {vr(28+4*(i&1),2)}, {vr(28+4*(i&1),2)}, {vr(12+2*i,2)}')
    k("""v_pk_add_f32 v[28:29], v[28:29], v[32:33]
v_pk_add_f32 v[30:31], v[30:31], v[34:35]
v_add_f32 v28, v28, v29
v_add_f32 v30, v30, v31""")
    wave_reduce2(k, 28, 30, 36, 37)
    ln_stats(k, 36, 37, 640, 28, 30, 32)
    ln_apply(k, 12, 16, 28, 30, 40)
    if UNI and opt.get('kwe', 1) == 1: weave_in(k, i0, q, KW[2], None, 124)
    assert not q.ops
    if not fused: srd_from(k, 68, 40, 41, WS_FL, FL_BYTES)
    k(f"""ds_write_b128 v112, v[40:43]
s_mov_b32 exec_lo, 0x000f000f
s_mov_b32 exec_hi, 0x000f000f
ds_write_b128 v112, v[44:47] offset:1024
s_mov_b64 exec, -1
s_waitcnt lgkmcnt(0)
s_barrier
ds_read_b128 v[40:43], v113
{"ds_read_b128 v[44:47], v115" if G1S else f"ds_read_b128 v[44:47], v113 offset:{4*NP+3*256}"}
s_waitcnt lgkmcnt(1)
buffer_store_dwordx4 v[40:43], v3, s[60:63], s59 offen sc1
s_waitcnt lgkmcnt(0)
buffer_store_dwordx4 v[44:47], v3, s[60:63], s49 offen sc1
v_mov_b32 v114, v124""")
    st(k, 4, 6); st(k, 0, 2)


def poll2(k, loads, chk, sc, sl=0):
    LP = k.label('lp'); LD = k.label('ld')
    k(f'''s_mov_b32 s{sc}, {SPIN}
{LP}:
{loads}
s_waitcnt vmcnt(0)
{chk}
s_cbranch_vccz {LD}
{f"s_sleep {sl}" if sl else ""}
s_sub_u32 s{sc}, s{sc}, 1
s_cmp_lg_u32 s{sc}, 0
s_cbranch_scc1 {LP}
{LD}:''')


def flag_poll(k, sf, sp, n, sl=0, d0=0, part=3, fs=None):
    if part & 1:
        k(f'''v_lshrrev_b32 v10, 4, v3
v_lshlrev_b32 v10, {FS if fs is None else fs}, v10
s_mov_b64 exec, 1
v_mov_b32 v8, 1
buffer_store_dword v8, v10, s[68:71], s{sf} offen sc1''')
    if part & 2:
        k(f's_mov_b64 exec, {hex((1 << n) - 1)}')
        if d0: k(f's_sleep {d0}')
        poll2(k, f'buffer_load_dword v9, v10, s[68:71], s{sp} offen sc1', 'v_cmp_eq_u32 vcc, 0, v9', 43, sl)
    k('s_mov_b64 exec, -1')


def ph_g1(k, opt, DONE, wb, fused=False):
    L = {(g, z): k.label(f'g{g}z{z}') for g in range(2) for z in range(2)}
    WQ = opt.get('WQ', [32, 0, 8, 15])
    k(f's_lshl_b32 s49, s3, {FS}')
    g1id(k, 3, 35)
    k(f'''s_lshr_b32 s35, s3, 4
s_bfe_u32 s36, s3, 0x30001
s_and_b32 s37, s3, 1
s_and_b32 s38, s34, 3
s_lshl_b32 s39, s35, 2
s_add_u32 s39, s39, s38
v_and_b32 v2, 63, v0
v_and_b32 v6, 15, v2
v_lshrrev_b32 v7, 4, v2''')
    if wb: k('v_mov_b32 v88, v114')
    HP0 = opt.get('hp0', 10240)
    srd_from(k, 8, 40, 41, WS_HN, 0x300000)
    k(f'''v_lshlrev_b32 v9, 3, v2
v_lshrrev_b32 v8, 2, v6
v_and_b32 v10, 3, v6
v_mul_u32_u24 v1, {HP0}, v8
v_lshl_add_u32 v1, v7, 6, v1
v_lshl_add_u32 v1, v10, 4, v1
v_add_u32 v2, {4*HP0}, v1
s_lshr_b32 s44, s39, 1
s_mul_i32 s44, s44, {8*HP0}
s_and_b32 s45, s38, 1
s_mul_i32 s45, s45, 5120
s_add_u32 s44, s44, s45
s_add_u32 s45, s44, 4096
v_add_u32 v4, 57344, v3
v_add_u32 v5, 114688, v3''')
    srd_from(k, 12, 40, 41, WS_Z1, A2_BYTES)
    srd_from(k, 16, 40, 41, WS_Z2, Z2N_BYTES)
    srd_from(k, 20, 40, 41, WS_PX, PX_BYTES)
    k(f'''s_and_b32 s47, s3, 15
s_lshl_b32 s47, s47, 4
s_add_u32 s47, s47, s35
s_lshl_b32 s47, s47, {FS}
s_add_u32 s47, s47, {FL2}
s_lshr_b32 s42, s34, 2
s_cmp_eq_u32 s42, s37
s_cselect_b32 s43, 1, 0
s_lshl_b32 s42, s42, 1
s_add_u32 s42, s42, s43
s_cmp_eq_u32 s42, 1
s_cbranch_scc1 {L[0,1]}
s_cmp_eq_u32 s42, 2
s_cbranch_scc1 {L[1,0]}
s_cmp_eq_u32 s42, 3
s_cbranch_scc1 {L[1,1]}''')
    PD = opt.get('PD', 5); NA = PD + 1
    assert 40 + 8 * NA <= 88
    AR = lambda kk, u: vr(40 + 8 * (kk % NA) + 4 * u, 4)
    ACC = lambda u, n: 96 + ((n & 3) * 2 + u) * 4

    def aload(kk, u, v):
        if kk >= 20: return
        k(f'buffer_load_dwordx4 {AR(kk,u)}, v{1+u}, s[8:11], s{44+kk//16} offen offset:{256*(kk%16)}'); v.issue(f'a{kk}')
    NB = 8; LA = opt.get('LA', 6)
    SC = opt.get('gsc', 1)

    def tail(z2, wq, rest):
        if not fused:
            k(f's_branch {DONE}'); return
        if opt.get('pw'):
            assert not rest and not wq.ops
            F2S = opt.get('f2s', 5); FZS = opt.get('fzs', 5)
            if z2:
                k(f'''s_lshl_b32 s47, s36, 3
s_lshr_b32 s42, s39, 4
s_add_u32 s47, s47, s42
s_and_b32 s42, s39, 1
s_lshl_b32 s42, s42, 2
s_add_u32 s47, s47, s42
s_lshl_b32 s47, s47, 4
s_and_b32 s42, s39, 14
s_add_u32 s47, s47, s42
s_add_u32 s47, s47, s37
s_lshl_b32 s47, s47, {F2S}
s_add_u32 s47, s47, {FL2}''')
            else:
                k(f'''s_lshl_b32 s47, s39, 4
s_and_b32 s42, s3, 15
s_add_u32 s47, s47, s42
s_lshl_b32 s47, s47, {FZS}
s_add_u32 s47, s47, {FLU}''')
            map_g2(k)
            k(f'''s_load_dwordx2 s[24:25], s[0:1], 48
s_lshl_b32 s44, s36, 3
s_add_u32 s44, s44, s34
s_lshl_b32 s44, s44, {4+F2S}
s_add_u32 s44, s44, {FL2}
s_waitcnt vmcnt(0)''')
            st(k, 0, 5)
            flag_poll(k, 47, 44, 16, opt.get('g2sl', 0), opt.get('g2d', 0) if z2 else 0, fs=F2S)
            k(f's_waitcnt lgkmcnt(0)\ns_branch {DONE}')
            return
        map_g2(k)
        k('s_load_dwordx2 s[24:25], s[0:1], 48')
        if not z2 and not wq.ops and rest and opt.get('wte', 1) and not W128:
            w_trans(k, 12, 13, rest); rest = []
        k('s_waitcnt vmcnt(0)')
        st(k, 0, 5)
        if z2: k('s_setprio 0')
        if not z2 and not wq.ops and rest and not W128:
            w_trans(k, 12, 13, rest); rest = []
        if W128: assert not wq.ops and not (z2 and rest)
        if not z2: wq(99, None, 88)
        k('s_barrier')
        if z2: wq(99, None, 88)
        NP2 = k.label('np2'); NP3 = k.label('np3')
        if not z2:
            k(f's_cmp_lg_u32 s38, 0\ns_cbranch_scc1 {NP2}')
            flag_poll(k, 47, 44, 32, part=1)
            k(f'{NP2}:')
        if rest:
            k('s_waitcnt vmcnt(0)')
            w_trans(k, 12, 13, rest)
        if not z2:
            k(f'''s_cmp_lg_u32 s38, 0
s_cbranch_scc1 {NP3}
s_lshl_b32 s44, s36, {5+FS}
s_add_u32 s44, s44, {FL2}''')
            flag_poll(k, 47, 44, 32, opt.get('g2sl', 0), opt.get('g2d', 0) if not rest else 0, part=2)
            k(f'{NP3}:')
        k('s_waitcnt lgkmcnt(0)\ns_barrier')
        k(f's_branch {DONE}')

    def path(grp, z2):
        vm = Cnt('vmcnt', 63)
        wq = wb.copy() if wb else None
        tiles = [0, 1, 2, 3] if grp == 0 else [4, 5, 6]
        NT = len(tiles)
        order = [(kk, n) for kk in range(20) for n in tiles]
        k('s_waitcnt vmcnt(0)\ns_barrier')
        st(k, 1, 3); st(k, 4, 7)
        rest = [] if opt.get('now') else list(range(opt.get('wt0', 0), 4))
        n1 = opt.get('wt1', [0, 0])[z2] if not wq.ops else 0
        if W128: n1 = min(opt['wt1'][z2], (32 - len(wq.ops)) // 8)
        now, rest = rest[:n1], rest[n1:]
        if z2:
            NPL = k.label('npl'); NPM = k.label('npm')
            k(f'''s_setprio {opt.get('zprio', 2)}
s_lshl_b32 s42, s35, {4+FS}
s_mov_b32 s46, s49
s_cmp_lg_u32 s38, 0
s_cbranch_scc1 {NPM}''')
            flag_poll(k, 46, 42, 16, part=1)
            k(f'{NPM}:')
            w_trans(k, 12, 13, now, 48)
            k(f's_cmp_lg_u32 s38, 0\ns_cbranch_scc1 {NPL}')
            flag_poll(k, 46, 42, 16, opt.get('g1sl', 0), opt.get('g1d', 0) if not now else 0, part=2)
            k(f'{NPL}:')
        else:
            w_trans(k, 12, 13, now, 48)
            if wq: wq(WQ[0], vm, 88)
        k('s_waitcnt lgkmcnt(0)\ns_barrier')
        st(k, 4, 8)
        st(k, 1, 4); st(k, 0, 3)
        if not z2 and opt.get('zd'): k(f's_sleep {opt["zd"]}')
        for kk in range(PD):
            for u in range(2): aload(kk, u, vm)

        def rdB(f):
            if f >= len(order): return
            kk, n = order[f]
            a = BB + kk * 7168 + n * 1024
            k(f'ds_read_b128 {vr(8+4*(f%NB),4)}, v{3+a//57344} offset:{a%57344}')
        for f in range(LA): rdB(f)
        for f, (kk, n) in enumerate(order):
            x = vm.wait(f'a{kk}')
            if x: k(x)
            if n == tiles[0] and kk in (0, 10): st(k, 1, 5 + kk // 10)
            rem = min(LA - 1, len(order) - 1 - f)
            k(f's_waitcnt lgkmcnt({rem})')
            b = vr(8 + 4 * (f % NB), 4)
            for u in range(2):
                acc = vr(ACC(u, n), 4)
                c = '0' if kk == 0 else acc
                if z2: k(f'{MFMA} {acc}, {AR(kk,u)}, {b}, {c}')
                else: k(f'{MFMA} {acc}, {b}, {AR(kk,u)}, {c}')
            rdB(f + LA)
            i = f % NT
            if i < 2: aload(kk + PD, i, vm)
            if wq and kk >= WQ[3]:
                c = WQ[1 + z2]
                wq((c * (i + 1)) // NT - (c * i) // NT, vm, 88)
        st(k, 1, 7); st(k, 0, 4); st(k, 4, 9)
        k(f'v_mov_b32 v4, {fbits(C1)}\nv_mov_b32 v5, {fbits(C0)}')
        if not z2:
            k(f'''s_lshr_b32 s42, s39, 1
s_lshl_b32 s42, s42, 3
s_add_u32 s42, s42, s36
s_lshl_b32 s42, s42, 1
s_and_b32 s43, s39, 1
s_add_u32 s42, s42, s43
s_lshl_b32 s42, s42, 13
s_add_u32 s43, s42, 4096
v_lshrrev_b32 v2, 1, v3''')
            units = [(u, p) for p in ((0, 1) if grp == 0 else (2,)) for u in range(2)]
            for i, (u, p) in enumerate(units):
                o = 12 + 4 * (i & 1)
                for h in range(2):
                    a = ACC(u, 2 * p + h)
                    k(f'v_cvt_pk_bf16_f32 v{8+2*h}, v{a}, v{a+1}\nv_cvt_pk_bf16_f32 v{9+2*h}, v{a+2}, v{a+3}')
                gelu_pk(k, 8, 8, 20, 28, o, 4, sc=(SC > 1))
                k(f'buffer_store_dwordx4 {vr(o,4)}, v3, s[12:15], s{42+u} offen offset:{1024*p} sc1')
            if grp == 1:
                for u in range(2):
                    a = ACC(u, 6)
                    k(f'v_cvt_pk_bf16_f32 v{8+2*u}, v{a}, v{a+1}\nv_cvt_pk_bf16_f32 v{9+2*u}, v{a+2}, v{a+3}')
                gelu_pk(k, 8, 8, 20, 28, 12, 4, sc=(SC > 1))
                for u in range(2):
                    k(f'buffer_store_dwordx2 {vr(12+2*u,2)}, v2, s[12:15], s{42+u} offen offset:3072 sc1')
            st(k, 1, 8)
            tail(False, wq, rest)
            return
        S = 72; Q = 80
        SK = k.label('sk')
        for i, n in enumerate(tiles):
            if n == 5: k(f's_cmp_eq_u32 s36, 7\ns_cbranch_scc1 {SK}')
            for r in range(4): k(f'v_cvt_pk_bf16_f32 v{8+r}, v{ACC(0,n)+r}, v{ACC(1,n)+r}')
            k(f'''v_permlane32_swap_b32 v8, v10
v_permlane32_swap_b32 v9, v11
v_permlane16_swap_b32 v8, v9
v_permlane16_swap_b32 v10, v11''')
            gelu_pk(k, 8, 8, 20, 28, 12, 4, tr=True, sc=(SC > 0))
            d = 40 + 8 * i
            for r in range(4):
                k(f'v_lshlrev_b32 v{d+2*r}, 16, v{12+r}\nv_and_b32 v{d+1+2*r}, 0xffff0000, v{12+r}')
            for e in range(8):
                if i == 0: k(f'v_mul_f32 v{Q+e}, v{d+e}, v{d+e}\nv_mov_b32 v{S+e}, v{d+e}')
                else: k(f'v_add_f32 v{S+e}, v{S+e}, v{d+e}\nv_fmac_f32 v{Q+e}, v{d+e}, v{d+e}')
        k(f'{SK}:')
        V = [0] * 16
        for e in range(8):
            V[2 * e] = S + e; V[2 * e + 1] = Q + e
        for i in range(8):
            k(f'v_add_f32_dpp v{V[i]}, v{V[i]}, v{V[i]} row_ror:8 row_mask:0xf bank_mask:0x3')
        for i in range(8):
            k(f'v_add_f32_dpp v{V[i]}, v{V[i+8]}, v{V[i+8]} row_ror:8 row_mask:0xf bank_mask:0xc')
        for i in range(4):
            k(f'v_add_f32_dpp v{V[i]}, v{V[i]}, v{V[i]} row_half_mirror row_mask:0xf bank_mask:0x5')
        for i in range(4):
            k(f'v_add_f32_dpp v{V[i]}, v{V[i+4]}, v{V[i+4]} row_half_mirror row_mask:0xf bank_mask:0xa')
        for m in ('quad_perm:[1,0,3,2]', 'quad_perm:[2,3,0,1]'):
            for i in range(4):
                k(f'v_add_f32_dpp v{V[i]}, v{V[i]}, v{V[i]} {m} row_mask:0xf bank_mask:0xf')
        k(f'''s_mov_b32 vcc_lo, 0xaaaaaaaa
s_mov_b32 vcc_hi, 0xaaaaaaaa
v_cndmask_b32 v8, v{V[0]}, v{V[1]}, vcc
v_cndmask_b32 v9, v{V[2]}, v{V[3]}, vcc
s_mov_b32 vcc_lo, 0xcccccccc
s_mov_b32 vcc_hi, 0xcccccccc
v_cndmask_b32 v8, v8, v9, vcc
s_lshl_b32 s42, s39, 12
s_and_b32 s43, s3, 15
s_lshl_b32 s43, s43, 8
s_add_u32 s43, s43, s42
v_lshrrev_b32 v2, 2, v3
buffer_store_dword v8, v2, s[20:23], s43 offen sc1
v_lshrrev_b32 v9, 2, v6
v_and_b32 v10, 3, v6
v_lshlrev_b32 v9, 8, v9
v_lshl_add_u32 v9, v7, 6, v9
v_lshl_add_u32 v1, v10, 4, v9''')
        st(k, 1, 8)
        LP = k.label('lp'); LD = k.label('ld')
        k(f'''s_lshl_b32 s44, s36, 3
s_lshr_b32 s45, s39, 4
s_add_u32 s44, s44, s45
s_and_b32 s45, s39, 1
s_lshl_b32 s45, s45, 2
s_add_u32 s44, s44, s45
s_mul_i32 s44, s44, 56
s_bfe_u32 s45, s39, 0x30001
s_add_u32 s44, s44, s45
s_add_u32 s44, s44, {8*tiles[0]}
s_lshl_b32 s44, s44, 10
v_mov_b32 v4, {fbits(1.0/864)}
s_mov_b32 s43, {SPIN}''')
        if rest and wq and not wq.ops and opt.get('wtp', 1):
            k('s_waitcnt vmcnt(1)')
            w_trans(k, 8, 9, rest, 46); rest = []
        elif opt.get('pxd'): k(f"s_sleep {opt['pxd']}")
        k(f'{LP}:')
        for i in range(4): k(f'buffer_load_dwordx4 {vr(8+4*i,4)}, v1, s[20:23], s42 offen offset:{1024*i} sc1')
        k('s_waitcnt vmcnt(2)')
        k('v_max3_u32 v24, v8, v9, v10\nv_max3_u32 v25, v11, v12, v13\nv_max3_u32 v24, v24, v14, v15')
        for r in range(4): k(f'v_add_f32 v{28+r}, v{8+r}, v{12+r}')
        k('s_waitcnt vmcnt(0)')
        k('''v_max3_u32 v25, v25, v16, v17
v_max3_u32 v24, v24, v18, v19
v_max3_u32 v25, v25, v20, v21
v_max3_u32 v24, v24, v22, v23
v_max_u32 v24, v24, v25
v_cmp_eq_u32 vcc, -1, v24''')
        for r in range(4): k(f'v_add_f32 v{32+r}, v{16+r}, v{20+r}')
        k(f'''s_cbranch_vccz {LD}
{f"s_sleep {opt['pxs']}" if opt.get('pxs') else ""}
s_sub_u32 s43, s43, 1
s_cmp_lg_u32 s43, 0
s_cbranch_scc1 {LP}
{LD}:''')
        st(k, 1, 9); st(k, 0, 9)
        for r in range(4): k(f'v_add_f32 v{28+r}, v{28+r}, v{32+r}')
        for m in ('row_ror:4', 'row_ror:8'):
            for r in range(4): k(f'v_add_f32_dpp v{28+r}, v{28+r}, v{28+r} {m} row_mask:0xf bank_mask:0xf')
        for r in range(4): k(f'v_mul_f32 v{28+r}, v{28+r}, v4')
        k(f'''v_fma_f32 v29, -v28, v28, v29
v_fma_f32 v31, -v30, v30, v31
v_max_f32 v29, 0, v29
v_max_f32 v31, 0, v31
v_cvt_pk_bf16_f32 v12, v28, v30
v_cvt_pk_bf16_f32 v13, v29, v31
v_lshlrev_b32 v8, 16, v12
v_and_b32 v9, 0xffff0000, v12
v_lshlrev_b32 v10, 16, v13
v_and_b32 v11, 0xffff0000, v13
v_add_f32 v10, 0x3727c5ac, v10
v_add_f32 v11, 0x3727c5ac, v11
v_cvt_pk_bf16_f32 v13, v10, v11
v_lshlrev_b32 v10, 16, v13
v_and_b32 v11, 0xffff0000, v13
v_sqrt_f32 v10, v10
v_sqrt_f32 v11, v11''')
        for e in range(8):
            k(f'v_mov_b32_dpp v{16+e}, v{8+(e&1)} quad_perm:[{e>>1},{e>>1},{e>>1},{e>>1}] row_mask:0xf bank_mask:0xf')
        k(f'''v_cvt_pk_bf16_f32 v13, v10, v11
v_lshlrev_b32 v10, 16, v13
v_and_b32 v11, 0xffff0000, v13
v_rcp_f32 v10, v10
v_rcp_f32 v11, v11''')
        for i in range(NT):
            d = 40 + 8 * i
            for e in range(0, 8, 2):
                k(f'v_pk_add_f32 {vr(d+e,2)}, {vr(d+e,2)}, {vr(16+e,2)} neg_lo:[0,1] neg_hi:[0,1]')
            if i == 0:
                for e in range(8):
                    k(f'v_mov_b32_dpp v{24+e}, v{10+(e&1)} quad_perm:[{e>>1},{e>>1},{e>>1},{e>>1}] row_mask:0xf bank_mask:0xf')
            o = 72 + 4 * i
            for r in range(4): k(f'v_cvt_pk_bf16_f32 v{o+r}, v{d+2*r}, v{d+2*r+1}')
            for r in range(4): k(f'v_lshlrev_b32 v{d+2*r}, 16, v{o+r}\nv_and_b32 v{d+1+2*r}, 0xffff0000, v{o+r}')
            for e in range(0, 8, 2):
                k(f'v_pk_mul_f32 {vr(d+e,2)}, {vr(d+e,2)}, {vr(24+e,2)}')
            for r in range(4): k(f'v_cvt_pk_bf16_f32 v{o+r}, v{d+2*r}, v{d+2*r+1}')
            k(f'buffer_store_dwordx4 {vr(o,4)}, v3, s[16:19], s44 offen sc1')
            if i < NT - 1: k('s_add_u32 s44, s44, 8192')
        tail(True, wq, rest)
    for g in range(2):
        for z in range(2):
            k(f'{L[g,z]}:')
            path(g, z)


def ph_g1s(k, opt, DONE, wb):
    assert W128 and not (wb and wb.ops)
    LH = k.label('h1')
    k(f's_lshl_b32 s49, s3, {FS}')
    g1id(k, 3, 35)
    k(f'''s_lshr_b32 s35, s3, 4
s_bfe_u32 s36, s3, 0x30001
s_and_b32 s37, s3, 1
s_and_b32 s38, s34, 3
s_lshl_b32 s39, s35, 2
s_add_u32 s39, s39, s38
s_lshr_b32 s46, s34, 2
v_and_b32 v2, 63, v0
v_and_b32 v6, 15, v2
v_lshrrev_b32 v7, 4, v2''')
    srd_from(k, 8, 40, 41, WS_HN, HN_BYTES)
    k(f'''v_lshrrev_b32 v8, 3, v6
v_and_b32 v10, 3, v6
v_lshl_add_u32 v8, v8, 2, v10
v_mul_u32_u24 v1, {HP}, v8
v_lshl_add_u32 v1, v7, 5, v1
v_bfe_u32 v10, v6, 2, 1
v_lshl_add_u32 v1, v10, 4, v1
s_lshr_b32 s44, s39, 1
s_mul_i32 s44, s44, {8*HP}
s_and_b32 s45, s38, 1
s_lshl_b32 s45, s45, 1
s_add_u32 s45, s45, s46
s_mul_i32 s45, s45, 2560
s_add_u32 s44, s44, s45
v_add_u32 v4, 57344, v3
v_add_u32 v5, 114688, v3''')
    k(f'''v_lshrrev_b32 v8, 2, v6
v_and_b32 v9, 1, v6
v_lshl_add_u32 v8, v8, 1, v9
v_lshlrev_b32 v8, 2, v8
v_lshl_add_u32 v8, v7, 5, v8
v_lshrrev_b32 v10, 1, v6
v_lshlrev_b32 v10, 7, v10
v_lshl_add_u32 v10, v7, 5, v10
v_lshl_add_u32 v10, v9, 4, v10
v_lshl_add_u32 v2, v10, 16, v8
v_mov_b32 v6, {fbits(C1)}
v_mov_b32 v7, {fbits(C0)}''')
    srd_from(k, 12, 40, 41, WS_Z1, A2_BYTES)
    srd_from(k, 16, 40, 41, WS_Z2, Z2N_BYTES)
    srd_from(k, 20, 40, 41, WS_PX, PX_BYTES)
    k(f'''s_and_b32 s47, s3, 15
s_lshl_b32 s53, s47, 7
s_lshl_b32 s47, s47, 4
s_add_u32 s47, s47, s35
s_lshl_b32 s47, s47, {FS}
s_add_u32 s47, s47, {FL2}
s_lshl_b32 s52, s39, 1
s_add_u32 s52, s52, s46
s_lshl_b32 s52, s52, 11
s_add_u32 s53, s53, s52
s_lshl_b32 s54, s36, 3
s_lshr_b32 s42, s39, 4
s_add_u32 s54, s54, s42
s_and_b32 s42, s39, 1
s_lshl_b32 s42, s42, 2
s_add_u32 s54, s54, s42
s_mul_i32 s54, s54, 56
s_bfe_u32 s42, s39, 0x30001
s_add_u32 s54, s54, s42
s_lshl_b32 s42, s37, 5
s_add_u32 s54, s54, s42
s_lshl_b32 s54, s54, 1
s_add_u32 s54, s54, s46
s_lshl_b32 s54, s54, 9
s_lshr_b32 s55, s39, 1
s_lshl_b32 s55, s55, 3
s_add_u32 s55, s55, s36
s_lshl_b32 s55, s55, 1
s_and_b32 s42, s39, 1
s_add_u32 s55, s55, s42
s_lshl_b32 s55, s55, 1
s_add_u32 s55, s55, s46
s_lshl_b32 s55, s55, 12
s_cmp_eq_u32 s36, 7
s_cselect_b32 s48, 0, -1
s_lshl_b32 s42, s35, {4+FS}
s_waitcnt vmcnt(0)
s_barrier''')
    st(k, 1, 3); st(k, 4, 7)
    W4 = k.label('w4'); WJ = k.label('wj')
    NOW = opt.get('now', 0)
    WT2 = opt.get('wt2', 0)
    k(f's_cmp_ge_u32 s34, 4\ns_cbranch_scc1 {W4}')
    if not NOW: w_trans(k, 12, 13, [0, 1, 2, 3], 43)
    k(f's_branch {WJ}\n{W4}:\ns_cmp_lg_u32 s34, 4\ns_cbranch_scc1 {WJ}')
    flag_poll(k, 49, 42, 16, opt.get('g1sl', 0), opt.get('g1d', 0))
    k(f'{WJ}:\ns_waitcnt lgkmcnt(0)\ns_barrier')
    st(k, 4, 8); st(k, 1, 4); st(k, 0, 3)
    AR = lambda kk: 32 + 4 * kk
    PD = opt.get('PD', 8)

    def aload(kk, vm=None):
        if kk >= 20: return
        k(f'buffer_load_dwordx4 {vr(AR(kk),4)}, v1, s[8:11], s44 offen offset:{128*kk}')
        if vm: vm.issue(f'a{kk}')
    for kk in range(PD): aload(kk)
    if WT2 and not NOW:
        W5 = k.label('w5')
        k(f's_cmp_lt_u32 s34, 4\ns_cbranch_scc1 {W5}')
        w_trans(k, 12, 13, list(range(WT2)), 43)
        k(f's_waitcnt lgkmcnt(0)\n{W5}:')
    k(f's_cmp_eq_u32 s37, 1\ns_cbranch_scc1 {LH}')
    LA = opt.get('LA', 5); LA1 = opt.get('LA1', 6)
    SC = opt.get('gsc', 0)
    ACC = lambda i: 112 + 4 * i

    def path(hh):
        vm = Cnt('vmcnt', 63); lg = Cnt('lgkmcnt', 15)
        for kk in range(PD): vm.issue(f'a{kk}')
        tz = [0, 1, 2, 3] if hh == 0 else [4, 5, 6]
        t1 = [4, 5, 6] if hh == 0 else [0, 1, 2, 3]

        def gpass(tiles, z2, free, la, ev=None, order=None, fill=None, R=0):
            order = order or [(kk, i) for kk in range(20) for i in range(len(tiles))]
            last = {}
            for f, (kk, i) in enumerate(order): last[kk] = f
            buf = {}; nr = [0]; pend = []

            def reads(f):
                while nr[0] < len(order) and nr[0] <= f + la and free:
                    q = nr[0]; kk, i = order[q]
                    b = free.pop(0); buf[q] = b
                    a = BB + kk * 7168 + tiles[i] * 1024
                    k(f'ds_read_b128 {vr(b,4)}, v{3+a//57344} offset:{a%57344}'); lg.issue(f'b{z2}_{q}')
                    nr[0] += 1
            reads(-1)
            for f, (kk, i) in enumerate(order):
                x = vm.wait(f'a{kk}')
                if x: k(x)
                if z2 and i == 0 and kk in (0, 10): st(k, 1, 5 + kk // 10)
                x = lg.wait(f'b{z2}_{f}')
                if x: k(x)
                acc = vr(ACC(i), 4); c = '0' if kk == 0 else acc
                b = vr(buf[f], 4); a = vr(AR(kk), 4)
                k(f'{MFMA} {acc}, {a}, {b}, {c}' if z2 else f'{MFMA} {acc}, {b}, {a}, {c}')
                free += pend; pend = [buf[f]]
                if not z2 and last[kk] == f: pend.append(AR(kk))
                reads(f)
                if z2 and i == 0: aload(kk + PD, vm)
                if ev and f in ev:
                    for e in ev[f]: e()
                if fill:
                    for _ in range(R):
                        if fill and fill[0][0] <= f:
                            o = fill.pop(0)[1]
                            o() if callable(o) else k(o)
        if opt.get('zprio'): k(f's_setprio {opt["zprio"]}')
        gpass(tz, 1, [8, 12, 16, 20, 24, 28], LA)
        st(k, 1, 7); st(k, 0, 4); st(k, 4, 9)
        S = 20; Q = 8
        prs = [(0, 2), (2, 2)] if hh == 0 else [(0, 2), (2, 1)]
        for pi, (i0, nt) in enumerate(prs):
            xp = 24 + 2 * i0; a = ACC(i0); n = 4 * nt
            for h in range(2 * nt): k(f'v_cvt_pk_bf16_f32 v{xp+h}, v{a+2*h}, v{a+2*h+1}')
            if hh:
                for h in range(2 * nt):
                    if tz[i0 + h // 2] >= 5: k(f'v_and_b32 v{xp+h}, s48, v{xp+h}')
            gelu_pk(k, xp, n, a, 12, xp, 6, sc=(SC > 0))
            for h in range(2 * nt):
                k(f'v_lshlrev_b32 v{a+2*h}, 16, v{xp+h}\nv_and_b32 v{a+1+2*h}, 0xffff0000, v{xp+h}')
            if SC > 0:
                for e in range(n):
                    r = e & 3
                    if pi == 0 and e < 4: k(f'v_mul_f32 v{Q+r}, v{a+e}, v{a+e}')
                    elif pi == 0: k(f'v_add_f32 v{S+r}, v{a+r}, v{a+e}\nv_fmac_f32 v{Q+r}, v{a+e}, v{a+e}')
                    else: k(f'v_add_f32 v{S+r}, v{S+r}, v{a+e}\nv_fmac_f32 v{Q+r}, v{a+e}, v{a+e}')
            else:
                for e in range(0, n, 2):
                    r = e & 3
                    d = vr(a + e, 2); q = vr(Q + r, 2); s_ = vr(S + r, 2)
                    if pi == 0 and e < 4: k(f'v_pk_mul_f32 {q}, {d}, {d}')
                    elif pi == 0: k(f'v_pk_add_f32 {s_}, {vr(a+r,2)}, {d}\nv_pk_fma_f32 {q}, {d}, {d}, {q}')
                    else: k(f'v_pk_add_f32 {s_}, {s_}, {d}\nv_pk_fma_f32 {q}, {d}, {d}, {q}')
        V = []
        for r in range(4): V += [S + r, Q + r]
        for i in range(4): k(f'v_add_f32_dpp v{V[i]}, v{V[i]}, v{V[i]} row_ror:8 row_mask:0xf bank_mask:0x3')
        for i in range(4): k(f'v_add_f32_dpp v{V[i]}, v{V[i+4]}, v{V[i+4]} row_ror:8 row_mask:0xf bank_mask:0xc')
        for i in range(2): k(f'v_add_f32_dpp v{V[i]}, v{V[i]}, v{V[i]} row_half_mirror row_mask:0xf bank_mask:0x5')
        k('v_and_b32 v12, 0xffff, v2')
        for i in range(2): k(f'v_add_f32_dpp v{V[i]}, v{V[i+2]}, v{V[i+2]} row_half_mirror row_mask:0xf bank_mask:0xa')
        k('v_lshrrev_b32 v1, 16, v2\ns_mov_b32 vcc_lo, 0xaaaaaaaa\ns_mov_b32 vcc_hi, 0xaaaaaaaa')
        for m in ('quad_perm:[1,0,3,2]', 'quad_perm:[2,3,0,1]'):
            for i in range(2): k(f'v_add_f32_dpp v{V[i]}, v{V[i]}, v{V[i]} {m} row_mask:0xf bank_mask:0xf')
        k(f'''v_cndmask_b32 v13, v{V[0]}, v{V[1]}, vcc
buffer_store_dword v13, v12, s[20:23], s53 offen sc1''')
        vm.issue('px')
        st(k, 1, 8)
        if opt.get('zprio'): k('s_setprio 0')
        n1 = 20 * len(t1)
        PB = 32

        def pxld():
            for i in range(2): k(f'buffer_load_dwordx4 {vr(PB+4*i,4)}, v1, s[20:23], s52 offen offset:{1024*i} sc1')
        ev = {}
        PXE = opt.get('pxe', 12)
        ev[n1 - 1 - PXE] = [lambda: (pxld(), vm.issue('pl'), vm.issue('pl'))]

        class Pool(list):
            def __iadd__(self, o):
                return list.__iadd__(self, [x for x in o if x not in (32, 36)])
        gpass(t1, 0, Pool([16, 8, 20, 12]), LA1, ev)
        st(k, 1, 9)
        LP = k.label('lp'); LD = k.label('ld'); L1 = k.label('l1')
        k(f'''v_and_b32 v2, 31, v0
v_lshlrev_b32 v2, 4, v2
v_bfe_u32 v4, v0, 5, 1
v_lshl_add_u32 v2, v4, 13, v2
v_mov_b32 v4, {fbits(1.0/864)}
s_mov_b32 s43, {SPIN}
s_branch {L1}
{LP}:''')
        if opt.get('pxs'): k(f"s_sleep {opt['pxs']}")
        pxld()
        k(f'''{L1}:
s_waitcnt vmcnt(0)
v_max3_u32 v8, v32, v33, v34
v_max3_u32 v9, v35, v36, v37
v_max3_u32 v8, v8, v38, v39
v_max_u32 v8, v8, v9
v_cmp_eq_u32 vcc, -1, v8''')
        for r in range(4): k(f'v_add_f32 v{40+r}, v{32+r}, v{36+r}')
        k(f'''s_cbranch_vccz {LD}
s_sub_u32 s43, s43, 1
s_cmp_lg_u32 s43, 0
s_cbranch_scc1 {LP}
{LD}:''')
        st(k, 0, 9); st(k, 6, 1)
        for m in ('row_ror:2', 'row_ror:4', 'row_ror:8'):
            for r in range(4): k(f'v_add_f32_dpp v{40+r}, v{40+r}, v{40+r} {m} row_mask:0xf bank_mask:0xf')
        for r in range(4): k(f'v_mul_f32 v{40+r}, v{40+r}, v4')
        k(f'''v_fma_f32 v41, -v40, v40, v41
v_fma_f32 v43, -v42, v42, v43
v_max_f32 v41, 0, v41
v_max_f32 v43, 0, v43
v_cvt_pk_bf16_f32 v12, v40, v42
v_cvt_pk_bf16_f32 v13, v41, v43
v_lshlrev_b32 v8, 16, v12
v_and_b32 v9, 0xffff0000, v12
v_lshlrev_b32 v10, 16, v13
v_and_b32 v11, 0xffff0000, v13
v_add_f32 v10, 0x3727c5ac, v10
v_add_f32 v11, 0x3727c5ac, v11
v_cvt_pk_bf16_f32 v13, v10, v11
v_lshlrev_b32 v10, 16, v13
v_and_b32 v11, 0xffff0000, v13
v_sqrt_f32 v10, v10
v_sqrt_f32 v11, v11''')
        for r in range(4):
            k(f'v_mov_b32_dpp v{16+r}, v{8+(r&1)} quad_perm:[{r>>1},{r>>1},{r>>1},{r>>1}] row_mask:0xf bank_mask:0xf')
        k(f'''v_cvt_pk_bf16_f32 v13, v10, v11
v_lshlrev_b32 v10, 16, v13
v_and_b32 v11, 0xffff0000, v13
v_rcp_f32 v10, v10
v_rcp_f32 v11, v11''')
        NT = len(tz)
        D = 48
        for h in range(2 * NT):
            k(f'v_lshlrev_b32 v{D+2*h}, 16, v{24+h}\nv_and_b32 v{D+1+2*h}, 0xffff0000, v{24+h}')
        for h in range(2 * NT):
            k(f'v_pk_add_f32 {vr(D+2*h,2)}, {vr(D+2*h,2)}, {vr(16+2*(h&1),2)} neg_lo:[0,1] neg_hi:[0,1]')
        for r in range(4):
            k(f'v_mov_b32_dpp v{20+r}, v{10+(r&1)} quad_perm:[{r>>1},{r>>1},{r>>1},{r>>1}] row_mask:0xf bank_mask:0xf')
        for pi, (i0, nt) in enumerate(prs):
            hs = range(2 * i0, 2 * i0 + 2 * nt)
            for h in hs: k(f'v_cvt_pk_bf16_f32 v{24+h}, v{D+2*h}, v{D+2*h+1}')
            for h in hs: k(f'v_lshlrev_b32 v{D+2*h}, 16, v{24+h}\nv_and_b32 v{D+1+2*h}, 0xffff0000, v{24+h}')
            for h in hs: k(f'v_pk_mul_f32 {vr(D+2*h,2)}, {vr(D+2*h,2)}, {vr(20+2*(h&1),2)}')
            for h in hs: k(f'v_cvt_pk_bf16_f32 v{24+h}, v{D+2*h}, v{D+2*h+1}')
            xp = 24 + 2 * i0
            if nt == 1:
                for h in hs: k(f'v_cvt_pk_bf16_f32 v{26+h}, v{D+2*h}, v{D+2*h+1}')
            k(f'v_permlane32_swap_b32 v{xp}, v{xp+2}\nv_permlane32_swap_b32 v{xp+1}, v{xp+3}')
            if nt == 1: k('s_mov_b32 exec_hi, 0')
            k(f'buffer_store_dwordx4 {vr(xp,4)}, v2, s[16:19], s54 offen sc1')
            if nt == 1: k('s_mov_b32 exec_hi, -1')
            if pi == 0: k('s_add_u32 s54, s54, 16384')
        st(k, 6, 2)
        k('v_lshrrev_b32 v1, 1, v3')
        p1 = [(0, 2, 2048), (2, 1, 3072)] if hh == 0 else [(0, 2, 0), (2, 2, 1024)]
        for pi, (i0, nt, off) in enumerate(p1):
            o = 8 + 4 * pi; a = ACC(i0)
            for h in range(2 * nt): k(f'v_cvt_pk_bf16_f32 v{o+h}, v{a+2*h}, v{a+2*h+1}')
            gelu_pk(k, o, 4 * nt, 32 + 16 * pi, 40 + 16 * pi, o, 6, sc=(SC > 1))
            if nt == 2: k(f'buffer_store_dwordx4 {vr(o,4)}, v3, s[12:15], s55 offen offset:{off} sc1')
            else: k(f'buffer_store_dwordx2 {vr(o,2)}, v1, s[12:15], s55 offen offset:{off} sc1')
        st(k, 6, 3)
        map_g2(k)
        k('s_load_dwordx2 s[24:25], s[0:1], 48\ns_waitcnt vmcnt(0)')
        st(k, 0, 5); st(k, 6, 4)
        T4 = k.label('t4'); TJ = k.label('tj')
        k(f'''s_barrier
s_cmp_ge_u32 s34, 4
s_cbranch_scc1 {T4}
s_cmp_lg_u32 s34, 0
s_cbranch_scc1 {TJ}
s_lshl_b32 s44, s36, {5+FS}
s_add_u32 s44, s44, {FL2}''')
        flag_poll(k, 47, 44, 32, opt.get('g2sl', 0), opt.get('g2d', 0))
        k(f's_branch {TJ}\n{T4}:')
        if not NOW: w_trans(k, 12, 13, list(range(WT2, 4)), 43)
        st(k, 6, 5)
        k(f'{TJ}:\ns_waitcnt lgkmcnt(0)\ns_barrier\ns_branch {DONE}')
    path(0)
    k(f'{LH}:')
    path(1)


def ph_g1t(k, opt, DONE, wb):
    assert W128 and not (wb and wb.ops) and not G1S
    LH = k.label('h1')
    HP0 = opt.get('hp0', 10240)
    k(f's_lshl_b32 s49, s3, {FS}')
    g1id(k, 3, 35)
    k(f'''s_lshr_b32 s35, s3, 4
s_bfe_u32 s36, s3, 0x30001
s_and_b32 s37, s3, 1
s_and_b32 s38, s34, 3
s_lshl_b32 s39, s35, 2
s_add_u32 s39, s39, s38
s_lshr_b32 s46, s34, 2
v_and_b32 v2, 63, v0
v_and_b32 v6, 15, v2
v_lshrrev_b32 v7, 4, v2''')
    srd_from(k, 8, 40, 41, WS_HN, 0x300000)
    k(f'''v_lshrrev_b32 v8, 2, v6
v_and_b32 v10, 3, v6
v_mul_u32_u24 v1, {HP0}, v8
v_lshl_add_u32 v1, v7, 6, v1
v_lshl_add_u32 v1, v10, 4, v1
s_and_b32 s44, s39, -2
s_add_u32 s44, s44, s46
s_mul_i32 s44, s44, {4*HP0}
s_and_b32 s45, s38, 1
s_mul_i32 s45, s45, 5120
s_add_u32 s44, s44, s45
s_add_u32 s45, s44, 4096
v_add_u32 v4, 57344, v3
v_add_u32 v5, 114688, v3''')
    k(f'''v_and_b32 v9, 1, v6
v_lshl_add_u32 v9, v8, 1, v9
v_lshlrev_b32 v9, 2, v9
v_lshl_add_u32 v9, v7, 6, v9
v_lshlrev_b32 v8, 8, v8
v_lshl_add_u32 v8, v7, 6, v8
v_lshl_add_u32 v8, v10, 4, v8
v_lshl_add_u32 v2, v8, 16, v9
v_mov_b32 v6, {fbits(C0 if GV else C1)}
v_mov_b32 v7, {fbits(C0)}
s_mov_b32 s62, {fbits(C1)}
s_mov_b32 s63, {fbits(C1)}''')
    srd_from(k, 12, 40, 41, WS_Z1, A2_BYTES)
    srd_from(k, 16, 40, 41, WS_Z2, Z2N_BYTES)
    srd_from(k, 20, 40, 41, WS_PX, PX_BYTES)
    k(f'''s_and_b32 s47, s3, 15
s_lshl_b32 s53, s47, 8
s_lshl_b32 s47, s47, 4
s_add_u32 s47, s47, s35
s_lshl_b32 s47, s47, {FS}
s_add_u32 s47, s47, {FL2}
s_lshl_b32 s52, s39, 12
s_add_u32 s53, s53, s52
s_lshl_b32 s42, s46, 5
s_add_u32 s53, s53, s42
s_lshl_b32 s54, s36, 3
s_lshr_b32 s42, s39, 4
s_add_u32 s54, s54, s42
s_and_b32 s42, s39, 1
s_lshl_b32 s42, s42, 2
s_add_u32 s54, s54, s42
s_mul_i32 s54, s54, 56
s_bfe_u32 s42, s39, 0x30001
s_add_u32 s54, s54, s42
s_lshl_b32 s42, s37, 5
s_add_u32 s54, s54, s42
s_lshl_b32 s42, s46, 4
s_add_u32 s54, s54, s42
s_lshl_b32 s54, s54, 10
s_add_u32 s56, s54, 8192
s_and_b32 s42, s37, s46
s_cmp_eq_u32 s42, 1
s_cselect_b32 s56, {BIG}, s56
s_lshr_b32 s55, s39, 1
s_lshl_b32 s55, s55, 3
s_add_u32 s55, s55, s36
s_lshl_b32 s55, s55, 1
s_and_b32 s42, s39, 1
s_add_u32 s55, s55, s42
s_lshl_b32 s55, s55, 1
s_add_u32 s55, s55, s46
s_lshl_b32 s55, s55, 12
s_cmp_eq_u32 s36, 7
s_cselect_b32 s48, 0, -1
s_cselect_b32 s59, 0xffff, -1
s_lshl_b32 s58, s38, 12
s_lshl_b32 s57, s46, 3
s_add_u32 s57, s57, s58
s_lshl_b32 s42, s46, 11
s_add_u32 s58, s58, s42
s_lshl_b32 s42, s35, {4+FS}
s_waitcnt vmcnt(0)
s_barrier''')
    st(k, 1, 3); st(k, 4, 7)
    W4 = k.label('w4'); WJ = k.label('wj')
    NOW = opt.get('now', 0)
    k(f's_cmp_ge_u32 s34, 4\ns_cbranch_scc1 {W4}')
    if not NOW: w_trans(k, 12, 13, [0, 1, 2, 3], 43)
    k(f's_branch {WJ}\n{W4}:\ns_cmp_lg_u32 s34, 4\ns_cbranch_scc1 {WJ}')
    flag_poll(k, 49, 42, 16, opt.get('g1sl', 0), opt.get('g1d', 0))
    k(f'{WJ}:\ns_waitcnt lgkmcnt(0)\ns_barrier')
    st(k, 4, 8); st(k, 1, 4); st(k, 0, 3)
    AR = lambda kk: 32 + 4 * kk
    PD = opt.get('PD', 8)

    def aload(kk, vm=None):
        if kk >= 20: return
        k(f'buffer_load_dwordx4 {vr(AR(kk),4)}, v1, s[8:11], s{44+kk//16} offen offset:{256*(kk%16)}')
        if vm: vm.issue(f'a{kk}')
    for kk in range(PD): aload(kk)
    k(f's_cmp_eq_u32 s37, 1\ns_cbranch_scc1 {LH}')
    LA = opt.get('LA', 5); LA1 = opt.get('LA1', 6)
    SC = opt.get('gsc', 0)
    ACC = lambda i: 112 + 4 * i

    def path(hh):
        vm = Cnt('vmcnt', 63); lg = Cnt('lgkmcnt', 15)
        for kk in range(PD): vm.issue(f'a{kk}')
        tz = [0, 1, 2, 3] if hh == 0 else [4, 5, 6]
        t1 = [4, 5, 6] if hh == 0 else [0, 1, 2, 3]

        def gpass(tiles, z2, free, la, ev=None, keep=()):
            order = [(kk, i) for kk in range(20) for i in range(len(tiles))]
            last = {}
            for f, (kk, i) in enumerate(order): last[kk] = f
            buf = {}; nr = [0]; pend = []

            def reads(f):
                while nr[0] < len(order) and nr[0] <= f + la and free:
                    q = nr[0]; kk, i = order[q]
                    b = free.pop(0); buf[q] = b
                    a = BB + kk * 7168 + tiles[i] * 1024
                    k(f'ds_read_b128 {vr(b,4)}, v{3+a//57344} offset:{a%57344}'); lg.issue(f'b{z2}_{q}')
                    nr[0] += 1
            reads(-1)
            for f, (kk, i) in enumerate(order):
                x = vm.wait(f'a{kk}')
                if x: k(x)
                if z2 and i == 0 and kk in (0, 10): st(k, 1, 5 + kk // 10)
                x = lg.wait(f'b{z2}_{f}')
                if x: k(x)
                acc = vr(ACC(i), 4); c = '0' if kk == 0 else acc
                b = vr(buf[f], 4); a = vr(AR(kk), 4)
                k(f'{MFMA} {acc}, {a}, {b}, {c}' if z2 else f'{MFMA} {acc}, {b}, {a}, {c}')
                free.extend(pend); pend = [buf[f]]
                if not z2 and last[kk] == f and AR(kk) not in keep: pend.append(AR(kk))
                reads(f)
                if z2 and i == 0: aload(kk + PD, vm)
                if ev and f in ev:
                    for e in ev[f]: e()
        if opt.get('zprio'): k(f's_setprio {opt["zprio"]}')
        gpass(tz, 1, [8, 12, 16, 20, 24, 28], LA)
        st(k, 1, 7); st(k, 0, 4); st(k, 4, 9)
        S = 20; Q = 8
        k('v_add_u32 v1, s57, v3')
        prs = [(0, 2), (2, 2)] if hh == 0 else [(0, 2), (2, 1)]
        for pi, (i0, nt) in enumerate(prs):
            xp = 24 + 2 * i0; a = ACC(i0); n = 4 * nt
            if nt == 2:
                for r in range(4): k(f'v_cvt_pk_bf16_f32 v{xp+r}, v{a+r}, v{a+4+r}')
                if hh:
                    for r in range(4): k(f'v_and_b32 v{xp+r}, s59, v{xp+r}')
                k(f'''v_permlane32_swap_b32 v{xp}, v{xp+2}
v_permlane32_swap_b32 v{xp+1}, v{xp+3}
v_permlane16_swap_b32 v{xp}, v{xp+1}
v_permlane16_swap_b32 v{xp+2}, v{xp+3}''')
                gelu_pk(k, xp, 8, a, 12, xp, 6, tr=True, sc=(SC > 0))
            else:
                k(f'''v_permlane32_swap_b32 v{a}, v{a+2}
v_permlane32_swap_b32 v{a+1}, v{a+3}
v_permlane16_swap_b32 v{a}, v{a+1}
v_permlane16_swap_b32 v{a+2}, v{a+3}''')
                for h in range(2): k(f'v_cvt_pk_bf16_f32 v{xp+h}, v{a+2*h}, v{a+2*h+1}')
                for h in range(2): k(f'v_and_b32 v{xp+h}, s48, v{xp+h}')
                gelu_pk(k, xp, 4, a, 12, xp, 6, sc=(SC > 0))
            for t in range(nt):
                k(f'ds_write_b64 v1, {vr(xp+2*t,2)} offset:{1024*(i0+t)}'); lg.issue('x')
            for h in range(2 * nt):
                k(f'v_lshlrev_b32 v{a+2*h}, 16, v{xp+h}\nv_and_b32 v{a+1+2*h}, 0xffff0000, v{xp+h}')
            if SC > 0:
                for e in range(n):
                    r = e & 3
                    if pi == 0 and e < 4: k(f'v_mul_f32 v{Q+r}, v{a+e}, v{a+e}')
                    elif pi == 0: k(f'v_add_f32 v{S+r}, v{a+r}, v{a+e}\nv_fmac_f32 v{Q+r}, v{a+e}, v{a+e}')
                    else: k(f'v_add_f32 v{S+r}, v{S+r}, v{a+e}\nv_fmac_f32 v{Q+r}, v{a+e}, v{a+e}')
            else:
                for e in range(0, n, 2):
                    r = e & 3
                    d = vr(a + e, 2); q = vr(Q + r, 2); s_ = vr(S + r, 2)
                    if pi == 0 and e < 4: k(f'v_pk_mul_f32 {q}, {d}, {d}')
                    elif pi == 0: k(f'v_pk_add_f32 {s_}, {vr(a+r,2)}, {d}\nv_pk_fma_f32 {q}, {d}, {d}, {q}')
                    else: k(f'v_pk_add_f32 {s_}, {s_}, {d}\nv_pk_fma_f32 {q}, {d}, {d}, {q}')
        V = []
        for r in range(4): V += [S + r, Q + r]
        for i in range(4): k(f'v_add_f32_dpp v{V[i]}, v{V[i]}, v{V[i]} row_ror:8 row_mask:0xf bank_mask:0x3')
        for i in range(4): k(f'v_add_f32_dpp v{V[i]}, v{V[i+4]}, v{V[i+4]} row_ror:8 row_mask:0xf bank_mask:0xc')
        for i in range(2): k(f'v_add_f32_dpp v{V[i]}, v{V[i]}, v{V[i]} row_half_mirror row_mask:0xf bank_mask:0x5')
        k('v_and_b32 v12, 0xffff, v2')
        for i in range(2): k(f'v_add_f32_dpp v{V[i]}, v{V[i+2]}, v{V[i+2]} row_half_mirror row_mask:0xf bank_mask:0xa')
        k('v_lshrrev_b32 v1, 16, v2\ns_mov_b32 vcc_lo, 0xaaaaaaaa\ns_mov_b32 vcc_hi, 0xaaaaaaaa')
        for m in ('quad_perm:[1,0,3,2]', 'quad_perm:[2,3,0,1]'):
            for i in range(2): k(f'v_add_f32_dpp v{V[i]}, v{V[i]}, v{V[i]} {m} row_mask:0xf bank_mask:0xf')
        k(f'''v_cndmask_b32 v13, v{V[0]}, v{V[1]}, vcc
buffer_store_dword v13, v12, s[20:23], s53 offen sc1
v_add_u32 v2, s58, v3''')
        vm.issue('px')
        st(k, 1, 8)
        if opt.get('zprio'): k('s_setprio 0')
        n1 = 20 * len(t1)
        PB = 32; XR = 48

        def pxld():
            for i in range(4): k(f'buffer_load_dwordx4 {vr(PB+4*i,4)}, v1, s[20:23], s52 offen offset:{1024*i} sc1')

        def xrd():
            k('s_barrier')
            for t in range(2):
                k(f'ds_read_b128 {vr(XR+4*t,4)}, v2 offset:{1024*t}'); lg.issue('xr')
        ev = {}
        PXE = opt.get('pxe', 12); XE = opt.get('xe', 8)
        ev.setdefault(n1 - 1 - PXE, []).append(pxld)
        ev.setdefault(n1 - 1 - XE, []).append(xrd)
        assert n1 - 1 - max(PXE, XE) >= 6 * len(t1)
        gpass(t1, 0, [16, 24, 28, 8, 20, 12], LA1, ev, keep=(32, 36, 40, 44, 48, 52))
        st(k, 1, 9)
        LP = k.label('lp'); LD = k.label('ld'); L1 = k.label('l1')
        D = 56
        k(f'''v_mov_b32 v4, {fbits(1.0/864)}
s_mov_b32 s43, {SPIN}
s_waitcnt lgkmcnt(0)''')
        for h in range(8):
            k(f'v_lshlrev_b32 v{D+2*h}, 16, v{XR+h}\nv_and_b32 v{D+1+2*h}, 0xffff0000, v{XR+h}')
        k(f'''s_branch {L1}
{LP}:''')
        if opt.get('pxs'): k(f"s_sleep {opt['pxs']}")
        pxld()
        k(f'''{L1}:
s_waitcnt vmcnt(2)
v_max3_u32 v24, v32, v33, v34
v_max3_u32 v25, v35, v36, v37
v_max3_u32 v24, v24, v38, v39''')
        for r in range(4): k(f'v_add_f32 v{28+r}, v{32+r}, v{36+r}')
        k('''s_waitcnt vmcnt(0)
v_max3_u32 v25, v25, v40, v41
v_max3_u32 v24, v24, v42, v43
v_max3_u32 v25, v25, v44, v45
v_max3_u32 v24, v24, v46, v47
v_max_u32 v24, v24, v25
v_cmp_eq_u32 vcc, -1, v24''')
        for r in range(4): k(f'v_add_f32 v{16+r}, v{40+r}, v{44+r}')
        k(f'''s_cbranch_vccz {LD}
s_sub_u32 s43, s43, 1
s_cmp_lg_u32 s43, 0
s_cbranch_scc1 {LP}
{LD}:''')
        st(k, 0, 9); st(k, 6, 1)
        for r in range(4): k(f'v_add_f32 v{28+r}, v{28+r}, v{16+r}')
        for m in ('row_ror:4', 'row_ror:8'):
            for r in range(4): k(f'v_add_f32_dpp v{28+r}, v{28+r}, v{28+r} {m} row_mask:0xf bank_mask:0xf')
        for r in range(4): k(f'v_mul_f32 v{28+r}, v{28+r}, v4')
        k(f'''v_fma_f32 v29, -v28, v28, v29
v_fma_f32 v31, -v30, v30, v31
v_max_f32 v29, 0, v29
v_max_f32 v31, 0, v31
v_cvt_pk_bf16_f32 v12, v28, v30
v_cvt_pk_bf16_f32 v13, v29, v31
v_lshlrev_b32 v8, 16, v12
v_and_b32 v9, 0xffff0000, v12
v_lshlrev_b32 v10, 16, v13
v_and_b32 v11, 0xffff0000, v13
v_add_f32 v10, 0x3727c5ac, v10
v_add_f32 v11, 0x3727c5ac, v11
v_cvt_pk_bf16_f32 v13, v10, v11
v_lshlrev_b32 v10, 16, v13
v_and_b32 v11, 0xffff0000, v13
v_sqrt_f32 v10, v10
v_sqrt_f32 v11, v11''')
        for e in range(8):
            k(f'v_mov_b32_dpp v{16+e}, v{8+(e&1)} quad_perm:[{e>>1},{e>>1},{e>>1},{e>>1}] row_mask:0xf bank_mask:0xf')
        k(f'''v_cvt_pk_bf16_f32 v13, v10, v11
v_lshlrev_b32 v10, 16, v13
v_and_b32 v11, 0xffff0000, v13
v_rcp_f32 v10, v10
v_rcp_f32 v11, v11''')
        for i in range(2):
            d = D + 8 * i
            for e in range(0, 8, 2):
                k(f'v_pk_add_f32 {vr(d+e,2)}, {vr(d+e,2)}, {vr(16+e,2)} neg_lo:[0,1] neg_hi:[0,1]')
            if i == 0:
                for e in range(8):
                    k(f'v_mov_b32_dpp v{24+e}, v{10+(e&1)} quad_perm:[{e>>1},{e>>1},{e>>1},{e>>1}] row_mask:0xf bank_mask:0xf')
            o = XR + 4 * i
            for r in range(4): k(f'v_cvt_pk_bf16_f32 v{o+r}, v{d+2*r}, v{d+2*r+1}')
            for r in range(4): k(f'v_lshlrev_b32 v{d+2*r}, 16, v{o+r}\nv_and_b32 v{d+1+2*r}, 0xffff0000, v{o+r}')
            for e in range(0, 8, 2):
                k(f'v_pk_mul_f32 {vr(d+e,2)}, {vr(d+e,2)}, {vr(24+e,2)}')
            for r in range(4): k(f'v_cvt_pk_bf16_f32 v{o+r}, v{d+2*r}, v{d+2*r+1}')
            k(f'buffer_store_dwordx4 {vr(o,4)}, v3, s[16:19], s{54+2*i} offen sc1')
        st(k, 6, 2)
        k('v_lshrrev_b32 v1, 1, v3')
        p1 = [(0, 2, 2048), (2, 1, 3072)] if hh == 0 else [(0, 2, 0), (2, 2, 1024)]
        for pi, (i0, nt, off) in enumerate(p1):
            o = 8 + 4 * pi; a = ACC(i0)
            for h in range(2 * nt): k(f'v_cvt_pk_bf16_f32 v{o+h}, v{a+2*h}, v{a+2*h+1}')
            gelu_pk(k, o, 4 * nt, 72 + 16 * pi, 80 + 16 * pi, o, 6, sc=(SC > 1))
            if nt == 2: k(f'buffer_store_dwordx4 {vr(o,4)}, v3, s[12:15], s55 offen offset:{off} sc1')
            else: k(f'buffer_store_dwordx2 {vr(o,2)}, v1, s[12:15], s55 offen offset:{off} sc1')
        st(k, 6, 3)
        map_g2(k)
        k('s_load_dwordx2 s[24:25], s[0:1], 48\ns_waitcnt vmcnt(0)')
        st(k, 0, 5); st(k, 6, 4)
        T4 = k.label('t4'); TJ = k.label('tj')
        k(f'''s_barrier
s_cmp_ge_u32 s34, 4
s_cbranch_scc1 {T4}
s_cmp_lg_u32 s34, 0
s_cbranch_scc1 {TJ}
s_lshl_b32 s44, s36, {5+FS}
s_add_u32 s44, s44, {FL2}''')
        flag_poll(k, 47, 44, 32, opt.get('g2sl', 0), opt.get('g2d', 0))
        k(f's_branch {TJ}\n{T4}:')
        if not NOW: w_trans(k, 12, 13, [0, 1, 2, 3], 43)
        st(k, 6, 5)
        k(f'{TJ}:\ns_waitcnt lgkmcnt(0)\ns_barrier\ns_branch {DONE}')
    path(0)
    k(f'{LH}:')
    path(1)


def gen_ka(opt):
    k = Kern('ka_kernel', 256, 512, 163840, nvgpr=128, nagpr=128)
    END = k.label('end')
    k(f's_cmp_ge_u32 s2, 256\ns_cbranch_scc1 {END}')
    k.stamp(True)
    ph_k2a(k, opt, None)
    ph_g1(k, opt, END, None)
    k.finish(END)
    return k


def gen_p(opt, g3=True):
    k = Kern('kp_kernel', 256, 512, 163840, nvgpr=128, nagpr=128)
    END = k.label('end'); G2 = k.label('g2'); G3 = k.label('g3')
    k(f's_cmp_ge_u32 s2, 256\ns_cbranch_scc1 {END}')
    k.stamp(True)
    wb = Bulk(k, [] if opt.get('now') else g2_wops())
    ph_k2a(k, opt, wb)
    ph_g1(k, opt, G2, wb, True)
    k(f'{G2}:')
    st(k, 0, 6)
    vm = Cnt('vmcnt', 63); vm.issue('w')
    if g3:
        g3_wo_setup(k)
        ph_g2(k, opt, G3, vm, True, [] if opt.get('noo') else g3_wo_ops())
        k(f'{G3}:')
        ph_g3(k, opt, True)
    else:
        ph_g2(k, opt, END, vm, False)
    k.finish(END)
    return k


def gen_q(opt):
    k = Kern('k1_kernel', 256, 512, 163840, nvgpr=128, nagpr=128)
    END = k.label('end'); G2 = k.label('g2'); G3 = k.label('g3')
    k(f's_cmp_ge_u32 s2, 256\ns_cbranch_scc1 {END}')
    k.stamp(True)
    wb = Bulk(k, [] if opt.get('now') else g2_wops())
    ph_k12(k, opt, wb)
    if G1S: ph_g1s(k, opt, G2, wb)
    elif opt.get('g1t'): ph_g1t(k, opt, G2, wb)
    else: ph_g1(k, opt, G2, wb, True)
    k(f'{G2}:')
    st(k, 0, 6)
    vm = Cnt('vmcnt', 63); vm.issue('w')
    g3_wo_setup(k)
    if opt.get('g3s'):
        k('s_lshl_b32 s61, s35, 3\ns_add_u32 s61, s61, s34\ns_lshl_b32 s61, s61, 14\ns_add_u32 s62, s61, 8192')
        na = ph_g2(k, opt, G3, vm, True, g3_wo_ops(), g3s_early())
        k(f'{G3}:')
        ph_g3s(k, opt, na)
        k.finish(END)
        return k
    ph_g2(k, opt, G3, vm, True, [] if opt.get('noo') else g3_wo_ops())
    k(f'{G3}:')
    ph_g3(k, opt, True)
    k.finish(END)
    return k


def build(opt):
    lv = opt.get('lv', 1)
    if lv == 4: return [gen_fft.gen_k0(), gen_q(opt)]
    ks = [gen_fft.gen_k0(), gen_fft.gen_k1c()]
    if lv == 1: ks += [gen_ka(opt), gen_g2(opt), gen_g3(opt)]
    if lv == 2: ks += [gen_p(opt, False), gen_g3(opt)]
    if lv == 3: ks += [gen_p(opt)]
    return ks


def g3_wo_setup(k):
    srd_from(k, 28, 40, 41, WS_WO, WO8_BYTES)
    k(f'''s_lshl_b32 s60, s36, 3
s_add_u32 s60, s60, s34
s_mul_i32 s60, s60, {WOB}''')


def g3_wo_ops():
    ops = []
    for i in range(15):
        s = f'buffer_load_dwordx4 {ar(4*i,4)}, v3, s[28:31], s60 offen offset:{1024*(i%4)}'
        if i % 4 == 3: s += '\ns_add_u32 s60, s60, 4096'
        if i == 14: s += '\ns_add_u32 s60, s60, 3072'
        ops.append(s)
    for n in range(5):
        ops.append(f'buffer_load_dwordx2 {ar(60+2*n,2)}, v2, s[28:31], s60 offen offset:{512*n}')
    return ops


def ph_g3(k, opt, fused):
    vm = Cnt('vmcnt', 63); lg = Cnt('lgkmcnt', 15)
    srd_from(k, 8, 40, 41, WS_Z1 if opt.get('ain') else WS_A, A2_BYTES)
    srd_from(k, 12, 80, 81, 0, X_BYTES) if opt.get('hout') else srd_from(k, 12, 40, 41, WS_H, X_BYTES)
    k(f'''s_lshl_b32 s44, s35, 3
s_add_u32 s44, s44, s34
s_lshl_b32 s44, s44, 14
v_lshrrev_b32 v1, 4, v3
v_and_b32 v6, 15, v1
v_lshrrev_b32 v7, 4, v1''')
    k(f'''s_lshr_b32 s45, s34, 1
s_mul_i32 s45, s45, 40960
s_and_b32 s46, s34, 1
s_lshl_b32 s46, s46, 3''')
    ROWA = '''v_lshrrev_b32 v11, 3, v9
v_and_b32 v12, 3, v9
v_lshl_add_u32 v11, v11, 2, v12
v_bfe_u32 v12, v9, 2, 1
v_lshl_add_u32 v11, v12, 8, v11''' if G1S else '''v_lshrrev_b32 v11, 2, v9
v_and_b32 v12, 3, v9
v_lshl_add_u32 v11, v12, 8, v11'''
    for p in range(3):
        k(f'''v_add_u32 v8, {64*p}, v1
v_mul_u32_u24 v9, 3277, v8
v_lshrrev_b32 v9, 16, v9
v_mul_u32_u24 v10, 20, v9
v_sub_u32 v10, v8, v10
v_add_u32 v9, s46, v9
v_add_u32 v11, v9, v10
v_and_b32 v11, 15, v11
v_lshlrev_b32 v11, 4, v11
v_lshrrev_b32 v12, 2, v10
v_lshl_add_u32 v11, v12, 13, v11
v_and_b32 v12, 3, v10
v_lshl_add_u32 v11, v12, 8, v11
v_add_u32 v{116+p}, s45, v11
{ROWA}
v_mul_u32_u24 v11, 1280, v11
v_lshl_add_u32 v{120+p}, v10, 3, v11''')
    k(f'''v_mov_b32 v8, 0x7fffffff
v_cmp_gt_u32 vcc, 32, v1
v_cndmask_b32 v122, v8, v122, vcc
s_lshl_b32 s47, s35, 3
s_and_b32 s43, s34, 2
s_lshl_b32 s43, s43, {8 if G1S else 1}
s_add_u32 s47, s47, s43
s_and_b32 s43, s34, 4
s_lshl_b32 s43, s43, 8
s_add_u32 s47, s47, s43
s_mul_i32 s47, s47, 1280
s_mul_i32 s43, s36, 160
s_add_u32 s47, s47, s43''')
    for p in range(3):
        k(f'buffer_load_dwordx2 {vr(104+2*p,2)}, v{120+p}, s[12:15], s47 offen'); vm.issue('h')
    k(f'''s_lshl_b32 s43, s34, 10
v_add_u32 v8, v6, v7
v_lshlrev_b32 v9, 8, v7
v_add_u32 v9, s43, v9''')
    for n in range(5):
        k(f'''v_add_u32 v10, {4*n}, v8
v_and_b32 v10, 15, v10
v_lshl_add_u32 v10, v10, 4, v9
v_add_u32 v{88+n}, {8192*n}, v10
v_add_u32 v{93+n}, {8192*n+81920}, v10''')
    if fused:
        NP3 = k.label('np3')
        k(f'''s_waitcnt vmcnt(0)
s_barrier
s_cmp_lg_u32 s34, 0
s_cbranch_scc1 {NP3}
s_lshl_b32 s42, s35, {3+FS}
s_add_u32 s42, s42, {FL3}
s_lshl_b32 s46, s36, {FS}
s_add_u32 s46, s46, s42''')
        flag_poll(k, 46, 42, 8, opt.get('g3sl', 0), opt.get('g3d', 0))
        k(f'{NP3}:\ns_barrier')
        vm.done = 3
    st(k, 3, 1); st(k, 0, 8)
    k(f's_cmp_eq_u32 s34, 7\ns_cselect_b32 s48, {BIG}, 0')
    AF = lambda tt, p: 72 + 14 * tt + 4 * p
    for tt in range(4):
        for p in range(3):
            k(f'buffer_load_dwordx4 {ar(AF(tt,p),4)}, v3, s[8:11], s44 offen offset:{1024*p}'); vm.issue(f'a{tt}{p}')
        k(f's_add_u32 s49, s44, s48\nbuffer_load_dwordx2 {ar(AF(tt,3),2)}, v2, s[8:11], s49 offen offset:3072'); vm.issue(f'a{tt}3')
        if tt < 3: k('s_add_u32 s44, s44, 4096')
    srd_from(k, 16, 80, 81, 0, X_BYTES)
    ACC = lambda tt, n: 8 + 20 * (tt & 1) + 4 * n
    pend = []
    for tt in range(4):
        for p in range(4):
            x = vm.wait(f'a{tt}{p}')
            if x: k(x)
            if tt == 0 and p == 0: st(k, 3, 2)
            for n in range(5):
                acc = vr(ACC(tt, n), 4)
                if p < 3: k(f'{MFMA} {acc}, {ar(20*p+4*n,4)}, {ar(AF(tt,p),4)}, {"0" if p == 0 else acc}')
                else: k(f'{MF16} {acc}, {ar(60+2*n,2)}, {ar(AF(tt,3),2)}, {acc}')
                if pend and (5 * p + n) % 3 == 2: k(pend.pop(0))
        for n in range(5):
            pend.append(f'ds_write_b128 v{88+5*(tt>>1)+n}, {vr(ACC(tt,n),4)} offset:{40960*(tt&1)}')
    for o in pend: k(o)
    st(k, 3, 3)
    k('s_waitcnt lgkmcnt(0)\ns_barrier')
    st(k, 3, 4)
    for p in range(3):
        for s in range(8):
            k(f'ds_read_b128 {vr(8+32*p+4*s,4)}, v{116+p} offset:{1024*s}'); lg.issue(f'r{p}{s}')
        if p == 0:
            for q in range(3):
                k(f'v_lshlrev_b32 v{110+2*q}, 16, v{104+2*q}\nv_and_b32 v{104+2*q}, 0xffff0000, v{104+2*q}')
    for p in range(3):
        a = 8 + 32 * p
        for s in (0, 2, 4, 6):
            x = lg.wait(f'r{p}{s+1}')
            if x: k(x)
            for h in range(2): k(f'v_pk_add_f32 {vr(a+4*s+2*h,2)}, {vr(a+4*s+2*h,2)}, {vr(a+4*s+4+2*h,2)}')
            if s in (2, 6):
                for h in range(2): k(f'v_pk_add_f32 {vr(a+4*s-8+2*h,2)}, {vr(a+4*s-8+2*h,2)}, {vr(a+4*s+2*h,2)}')
        for h in range(2): k(f'v_pk_add_f32 {vr(a+2*h,2)}, {vr(a+2*h,2)}, {vr(a+16+2*h,2)}')
        k(f'''v_cvt_pk_bf16_f32 v{a+4}, v{a}, v{a+1}
v_cvt_pk_bf16_f32 v{a+5}, v{a+2}, v{a+3}
v_lshlrev_b32 v{a+8}, 16, v{105+2*p}
v_and_b32 v{a+9}, 0xffff0000, v{105+2*p}
v_lshlrev_b32 v{a}, 16, v{a+4}
v_and_b32 v{a+1}, 0xffff0000, v{a+4}
v_lshlrev_b32 v{a+2}, 16, v{a+5}
v_and_b32 v{a+3}, 0xffff0000, v{a+5}
v_add_f32 v{a}, v{a}, v{110+2*p}
v_add_f32 v{a+1}, v{a+1}, v{104+2*p}
v_pk_add_f32 {vr(a+2,2)}, {vr(a+2,2)}, {vr(a+8,2)}
v_cvt_pk_bf16_f32 v{a+4}, v{a}, v{a+1}
v_cvt_pk_bf16_f32 v{a+5}, v{a+2}, v{a+3}
buffer_store_dwordx2 {vr(a+4,2)}, v{120+p}, s[16:19], s47 offen''')


def g3s_ld(tt, p, fl=''):
    if p < 2: return f'buffer_load_dwordx4 {vr(56+8*tt+4*p,4)}, v3, s[16:19], s{61+(tt>>1)} offen offset:{1024*p}{fl}' if not (tt & 1) else \
        f'buffer_load_dwordx4 {vr(56+8*tt+4*p,4)}, v88, s[16:19], s{61+(tt>>1)} offen offset:{1024*p}{fl}'
    if p == 2: return f'buffer_load_dwordx4 {vr(8+4*tt,4)}, v{88 if tt & 1 else 3}, s[16:19], s{61+(tt>>1)} offen offset:2048{fl}'
    return f'buffer_load_dwordx2 {vr(24+2*tt,2)}, v{89 if tt & 1 else 2}, s[16:19], s{63+(tt>>1)} offen offset:3072{fl}'


def g3s_early():
    ops = [g3s_ld(tt, p) for p in range(2) for tt in range(4)]
    ops[0] = 'v_add_u32 v88, 4096, v3\nv_add_u32 v89, 4096, v2\n' + ops[0]
    return ops


def chk_max(k, regs, t):
    regs = list(regs)
    acc = [None, None]; i = 0
    while regs:
        j = i & 1; i += 1
        if acc[j] is None:
            if len(regs) >= 3: k(f'v_max3_u32 v{t+j}, v{regs[0]}, v{regs[1]}, v{regs[2]}'); regs = regs[3:]
            elif len(regs) == 2: k(f'v_max_u32 v{t+j}, v{regs[0]}, v{regs[1]}'); regs = []
            else: k(f'v_mov_b32 v{t+j}, v{regs[0]}'); regs = []
            acc[j] = 1
        elif len(regs) >= 2: k(f'v_max3_u32 v{t+j}, v{t+j}, v{regs[0]}, v{regs[1]}'); regs = regs[2:]
        else: k(f'v_max_u32 v{t+j}, v{t+j}, v{regs[0]}'); regs = []
    if acc[1]: k(f'v_max_u32 v{t}, v{t}, v{t+1}')
    k(f'v_cmp_eq_u32 vcc, -1, v{t}')


def ph_g3s(k, opt, na):
    vm = Cnt('vmcnt', 63); lg = Cnt('lgkmcnt', 15)
    if opt.get('g3e', 0) == 3:
        for o in g3s_early(): k(o)
        na = 0
    vm.issue('e')
    for _ in range(na): vm.issue('s')
    srd_from(k, 12, 80, 81, 0, X_BYTES) if opt.get('hout') else srd_from(k, 12, 40, 41, WS_H, X_BYTES)
    LW = 90
    k(f'''s_cmp_eq_u32 s34, 7
s_cselect_b32 s63, {BIG}, s61
s_cselect_b32 s64, {BIG}, s62
v_lshrrev_b32 v1, 4, v3
v_and_b32 v6, 15, v1
v_lshrrev_b32 v7, 4, v1
s_lshr_b32 s45, s34, 1
s_mul_i32 s45, s45, 40960
s_and_b32 s46, s34, 1
s_lshl_b32 s46, s46, 3''')
    I2 = opt.get('g3i', [0, 20])
    if I2[0] < 0:
        for tt in range(4): k(g3s_ld(tt, 2, ' sc1')); vm.issue('p2')
    for p in range(3):
        k(f'''v_add_u32 v100, {64*p}, v1
v_mul_u32_u24 v101, 3277, v100
v_lshrrev_b32 v101, 16, v101
v_mul_u32_u24 v102, 20, v101
v_sub_u32 v102, v100, v102
v_add_u32 v101, s46, v101
v_add_u32 v103, v101, v102
v_and_b32 v103, 15, v103
v_lshlrev_b32 v103, 4, v103
v_lshrrev_b32 v110, 2, v102
v_lshl_add_u32 v103, v110, 13, v103
v_and_b32 v110, 3, v102
v_lshl_add_u32 v103, v110, 8, v103
v_add_u32 v{116+p}, s45, v103
v_lshrrev_b32 v103, 2, v101
v_and_b32 v110, 3, v101
v_lshl_add_u32 v103, v110, 8, v103
v_mul_u32_u24 v103, 1280, v103
v_lshl_add_u32 v{120+p}, v102, 3, v103''')
    k(f'''v_mov_b32 v100, 0x7fffffff
v_cmp_gt_u32 vcc, 32, v1
v_cndmask_b32 v122, v100, v122, vcc
s_lshl_b32 s47, s35, 3
s_and_b32 s43, s34, 2
s_lshl_b32 s43, s43, 1
s_add_u32 s47, s47, s43
s_and_b32 s43, s34, 4
s_lshl_b32 s43, s43, 8
s_add_u32 s47, s47, s43
s_mul_i32 s47, s47, 1280
s_mul_i32 s43, s36, 160
s_add_u32 s47, s47, s43''')
    for p in range(3):
        k(f'buffer_load_dwordx2 {vr(104+2*p,2)}, v{120+p}, s[12:15], s47 offen'); vm.issue('h')
    k(f'''s_lshl_b32 s43, s34, 10
v_add_u32 v100, v6, v7
v_lshlrev_b32 v101, 8, v7
v_add_u32 v101, s43, v101''')
    for n in range(5):
        k(f'''v_add_u32 v102, {4*n}, v100
v_and_b32 v102, 15, v102
v_lshl_add_u32 v102, v102, 4, v101
v_add_u32 v{LW+n}, {8192*n}, v102
v_add_u32 v{LW+5+n}, {8192*n+81920}, v102''')
    srd_from(k, 8, 80, 81, 0, X_BYTES)

    def ACC(tt, n):
        i = 5 * tt + n
        return ar(72 + 4 * i, 4) if i < 14 else vr(32 + 4 * (i - 14), 4)

    def gate(tag, regs, lds, sl):
        LP = k.label('lp'); LD = k.label('ld')
        k(vm.wait(tag) or '')
        chk_max(k, regs, 100)
        k(f's_cbranch_vccz {LD}\ns_mov_b32 s43, {SPIN}\n{LP}:')
        if sl: k(f's_sleep {sl}')
        for o in lds: k(o)
        k('s_waitcnt vmcnt(0)')
        chk_max(k, regs, 100)
        k(f's_cbranch_vccz {LD}\ns_sub_u32 s43, s43, 1\ns_cmp_lg_u32 s43, 0\ns_cbranch_scc1 {LP}\n{LD}:')
    st(k, 3, 1); st(k, 0, 8)
    gate('e', range(56, 88), [g3s_ld(tt, p, ' sc1') for p in range(2) for tt in range(4)], 0)
    st(k, 3, 2)
    i = 0
    for p in range(3):
        if p == 2:
            st(k, 3, 5)
            gate('p2', range(8, 24), [g3s_ld(tt, 2, ' sc1') for tt in range(4)], opt.get('g3r', 0))
            st(k, 3, 6)
            k('s_barrier')
        for tt in range(4):
            for n in range(5):
                if i == I2[0]:
                    for t2 in range(4): k(g3s_ld(t2, 2, ' sc1')); vm.issue('p2')
                if i == I2[1]:
                    for t2 in range(4): k(g3s_ld(t2, 3, ' sc1')); vm.issue('p3')
                acc = ACC(tt, n)
                b = vr(56 + 8 * tt + 4 * p, 4) if p < 2 else vr(8 + 4 * tt, 4)
                k(f'{MFMA} {acc}, {ar(20*p+4*n,4)}, {b}, {"0" if p == 0 else acc}')
                i += 1
    st(k, 3, 7)
    gate('p3', range(24, 32), [g3s_ld(tt, 3, ' sc1') for tt in range(4)], opt.get('g3r', 0))
    st(k, 3, 8)
    pend = []
    for tt in range(4):
        for n in range(5):
            acc = ACC(tt, n)
            k(f'{MF16} {acc}, {ar(60+2*n,2)}, {vr(24+2*tt,2)}, {acc}')
            pend.append(f'ds_write_b128 v{LW+5*(tt>>1)+n}, {acc} offset:{40960*(tt&1)}')
            if len(pend) > 3: k(pend.pop(0))
    for o in pend: k(o)
    st(k, 3, 3)
    k('s_waitcnt lgkmcnt(0)\ns_barrier')
    st(k, 3, 4)
    for p in range(3):
        for s in range(8):
            k(f'ds_read_b128 {vr(8+32*p+4*s,4)}, v{116+p} offset:{1024*s}'); lg.issue(f'r{p}{s}')
        if p == 0:
            for q in range(3):
                k(f'v_lshlrev_b32 v{110+2*q}, 16, v{104+2*q}\nv_and_b32 v{104+2*q}, 0xffff0000, v{104+2*q}')
    for p in range(3):
        a = 8 + 32 * p
        for s in (0, 2, 4, 6):
            x = lg.wait(f'r{p}{s+1}')
            if x: k(x)
            for h in range(2): k(f'v_pk_add_f32 {vr(a+4*s+2*h,2)}, {vr(a+4*s+2*h,2)}, {vr(a+4*s+4+2*h,2)}')
            if s in (2, 6):
                for h in range(2): k(f'v_pk_add_f32 {vr(a+4*s-8+2*h,2)}, {vr(a+4*s-8+2*h,2)}, {vr(a+4*s+2*h,2)}')
        for h in range(2): k(f'v_pk_add_f32 {vr(a+2*h,2)}, {vr(a+2*h,2)}, {vr(a+16+2*h,2)}')
        k(f'''v_cvt_pk_bf16_f32 v{a+4}, v{a}, v{a+1}
v_cvt_pk_bf16_f32 v{a+5}, v{a+2}, v{a+3}
v_lshlrev_b32 v{a+8}, 16, v{105+2*p}
v_and_b32 v{a+9}, 0xffff0000, v{105+2*p}
v_lshlrev_b32 v{a}, 16, v{a+4}
v_and_b32 v{a+1}, 0xffff0000, v{a+4}
v_lshlrev_b32 v{a+2}, 16, v{a+5}
v_and_b32 v{a+3}, 0xffff0000, v{a+5}
v_add_f32 v{a}, v{a}, v{110+2*p}
v_add_f32 v{a+1}, v{a+1}, v{104+2*p}
v_pk_add_f32 {vr(a+2,2)}, {vr(a+2,2)}, {vr(a+8,2)}
v_cvt_pk_bf16_f32 v{a+4}, v{a}, v{a+1}
v_cvt_pk_bf16_f32 v{a+5}, v{a+2}, v{a+3}
buffer_store_dwordx2 {vr(a+4,2)}, v{120+p}, s[8:11], s47 offen''')


def gen_g3(opt):
    k = Kern('k4_kernel', 256, 512, 163840, nvgpr=128, nagpr=128)
    END = k.label('end')
    k(f'''s_cmp_ge_u32 s2, 256
s_cbranch_scc1 {END}
s_load_dwordx2 s[40:41], s[0:1], 80
s_load_dwordx2 s[80:81], s[0:1], 64''')
    k.stamp(True)
    map_g2(k)
    k(f'''v_lshrrev_b32 v1, 6, v0
v_and_b32 v2, 63, v0
v_readfirstlane_b32 s34, v1
v_lshlrev_b32 v3, 4, v2
v_lshlrev_b32 v2, 3, v2
s_waitcnt lgkmcnt(0)''')
    g3_wo_setup(k)
    for o in g3_wo_ops(): k(o)
    ph_g3(k, opt, False)
    k.finish(END)
    return k


def wq_role(k, base, END, half=None, fl='', sl=0):
    n = 256 if half is None else 128
    k(f'''s_sub_u32 s33, s2, {base}
s_cmp_ge_u32 s33, {n}
s_cbranch_scc1 {END}
s_load_dwordx2 s[4:5], s[0:1], 40
s_load_dwordx2 s[40:41], s[0:1], 80
{f"s_add_u32 s33, s33, 128" if half else ""}
v_lshrrev_b32 v1, 6, v0
v_and_b32 v2, 63, v0
v_readfirstlane_b32 s34, v1
v_lshlrev_b32 v3, 4, v2
v_lshrrev_b32 v4, 4, v2
v_bfe_u32 v5, v2, 2, 2
v_and_b32 v6, 3, v2
v_lshlrev_b32 v6, 4, v6
v_lshl_add_u32 v6, v4, 12, v6
v_lshl_add_u32 v6, v5, 20, v6
v_and_b32 v7, 15, v2
v_lshlrev_b32 v7, 6, v7
v_lshl_add_u32 v7, v4, 10, v7
s_lshl_b32 s39, s34, 12
v_add_u32 v7, s39, v7
s_bfe_u32 s35, s33, 0x20001
s_lshl_b32 s35, s35, 3
s_bfe_u32 s36, s33, 0x30003
s_add_u32 s35, s35, s36
s_lshr_b32 s36, s33, 6
s_and_b32 s37, s33, 1
s_lshl_b32 s42, s35, 15
s_and_b32 s43, s36, 1
s_lshl_b32 s43, s43, 14
s_add_u32 s42, s42, s43
s_lshr_b32 s43, s36, 1
s_lshl_b32 s43, s43, 22
s_add_u32 s42, s42, s43
s_lshl_b32 s43, s34, 6
s_add_u32 s42, s42, s43
s_lshl_b32 s43, s37, 11
s_add_u32 s42, s42, s43
s_lshl_b32 s44, s35, 3
s_add_u32 s44, s44, s34
s_lshl_b32 s44, s44, 15
s_lshl_b32 s43, s37, 12
s_add_u32 s44, s44, s43
s_lshl_b32 s43, s36, 10
s_add_u32 s44, s44, s43
s_waitcnt lgkmcnt(0)''')
    srd_from(k, 4, 4, 5, 0, 2048 * 4096)
    if sl: k(f's_sleep {sl}')
    M = gen_fft.OPT.get('wqm', 0)
    if M & 4:
        k('s_lshl_b32 s42, s33, 3\ns_add_u32 s42, s42, s34\ns_lshl_b32 s42, s42, 12')
        for g in range(4):
            k(f's_add_u32 m0, s39, 0')
            k(f'buffer_load_dwordx4 v3, s[4:7], s42 offen offset:{1024*g}{fl} lds')
    for g in range(4):
        if M & 6: break
        k(f's_add_u32 m0, s39, {512*g}')
        k(f'buffer_load_dwordx4 v6, s[4:7], s42 offen offset:{512*g}{fl} lds')
    srd_from(k, 8, 40, 41, WS_WS, WSP_BYTES)
    k('s_waitcnt vmcnt(0)')
    for c in range(4): k(f'ds_read_b128 {vr(8+4*c,4)}, v7 offset:{16*c}')
    for c in range(4):
        k(f's_waitcnt lgkmcnt({3-c})')
        if M & 1: continue
        k(f'buffer_store_dwordx4 {vr(8+4*c,4)}, v3, s[8:11], s44 offen{" nt" if M & 8 else ""}{" ; sc1" if M & 16 else " sc1"}')
        if c < 3: k('s_add_u32 s44, s44, 8192')
    k(f's_endpgm')
```

```python
from gen10 import *
import gen10
from gen_fft import code_srd

FT = 0x20000
FP = 0x22000
MAGIC = 0xA7C3E591


def ph_k01(k, opt, wb):
    XP = 1280; EX0 = 10240; EXP = 2576
    P = 1040; W0 = 16 * P; TB1 = 32 * P; TB2 = TB1 + 8192; TB0 = TB2 + 10240; LB = TB0 + 8192; CNT = LB + 16384
    IDLE = k.label('idle'); JOIN = k.label('join'); J1 = k.label('j1'); TAIL = k.label('tail'); PD = k.label('pd'); NF = k.label('nf')
    FW = opt.get('FW', [8, 8, 8])
    l0 = len(k.lines)
    k(f'''s_load_dwordx2 s[4:5], s[0:1], 0
s_load_dwordx2 s[40:41], s[0:1], 80
s_load_dwordx4 s[52:55], s[0:1], 8
s_load_dwordx2 s[62:63], s[0:1], 32
s_load_dwordx2 s[64:65], s[0:1], 56
s_load_dwordx2 s[72:73], s[0:1], 40''')
    tab_srd(k, 12)
    k(f'''s_and_b32 s33, s2, 7
s_lshl_b32 s3, s33, 5
s_lshr_b32 s36, s2, 3
s_add_u32 s3, s3, s36
v_lshrrev_b32 v1, 6, v0
v_and_b32 v2, 63, v0
v_readfirstlane_b32 s34, v1
v_lshlrev_b32 v3, 4, v2
s_lshl_b32 s38, s34, 10
s_add_u32 m0, s38, {TB0}
buffer_load_dwordx4 v3, s[12:15], s38 offen lds
s_lshl_b32 s35, s34, 8
s_add_u32 s35, s35, s3
s_mul_i32 s35, s35, 1280
v_lshlrev_b32 v58, 3, v2
v_lshlrev_b32 v59, 2, v2
v_and_b32 v50, 15, v2
v_lshrrev_b32 v51, 4, v2
s_waitcnt lgkmcnt(0)''')
    srd_from(k, 4, 4, 5, 0, X_BYTES)
    k(f'''buffer_load_dwordx2 v[4:5], v58, s[4:7], s35 offen
buffer_load_dwordx2 v[6:7], v58, s[4:7], s35 offen offset:512
buffer_load_dword v8, v59, s[4:7], s35 offen offset:1024''')
    vm = Cnt('vmcnt', 63); vm.issue('x')
    srd_from(k, 8, 40, 41, WS_T, TU_BYTES)
    PA = k.label('pa'); PB = k.label('pb')
    k(f's_cmp_lt_u32 s34, 6\ns_cbranch_scc1 {PA}')
    i0 = len(k.lines)
    prep_inl(k, 'A', LB, None)
    for j in range(i0, len(k.lines)):
        l = re.sub(r'\bv10([456])\b', lambda m: f'v{96+int(m.group(1))-4}', k.lines[j])
        if l.startswith('buffer_load') and opt.get('ntm', 0) & 1: l = l[:-4] + ' nt lds'
        k.lines[j] = l
    k(f'{PA}:')

    def late():
        k(f'''s_add_u32 m0, s38, {TB1}
s_add_u32 s37, s38, 0x2000
buffer_load_dwordx4 v3, s[12:15], s37 offen lds
s_min_u32 s39, s34, 4
s_lshl_b32 s39, s39, 11
s_add_u32 m0, s39, {TB2}
s_add_u32 s37, s39, 0x4000
buffer_load_dwordx4 v3, s[12:15], s37 offen lds
buffer_load_dwordx4 v3, s[12:15], s37 offen offset:1024 lds''')
        for _ in range(3): vm.issue('t')

    def wld(l16, g, sa, vm):
        k(f'''s_and_b32 s33, s2, 7
s_lshr_b32 s37, s2, 3
s_lshl_b32 s39, s34, 4
s_add_u32 s39, s39, s33
s_mul_i32 s39, s39, 642
s_lshl_b32 s37, s37, 5
s_add_u32 s39, s39, s37
s_and_b32 s39, s39, -4
s_cmp_lt_u32 s2, 168
s_cselect_b32 s39, s39, {BIG}
s_add_u32 s37, s39, {8*642}
v_lshrrev_b32 v99, 6, v3
v_mul_u32_u24 v99, {16*8*642}, v99
v_bfe_u32 v100, v3, 4, 2
v_lshl_add_u32 v99, v100, 3, v99
{"s_waitcnt lgkmcnt(0)" if sa != 68 else ""}
s_mov_b32 s{sa}, s54
s_mov_b32 s{sa+1}, s55
s_mov_b32 s54, {2048*642}
s_mov_b32 s55, 0x00020000
s_mov_b32 s{sa+2}, {2048*642}
s_mov_b32 s{sa+3}, 0x00020000
buffer_load_dwordx2 v[104:105], v99, s[52:55], s39 offen
buffer_load_dwordx2 v[108:109], v99, s[{sa}:{sa+3}], s39 offen
buffer_load_dwordx2 v[106:107], v99, s[52:55], s37 offen
buffer_load_dwordx2 v[110:111], v99, s[{sa}:{sa+3}], s37 offen''')
        for _ in range(4): vm.issue('W')

    def wtouch():
        k(f'''s_bitcmp1_b32 s34, 0
s_cselect_b32 s68, s54, s52
s_cselect_b32 s69, s55, s53
s_cmp_ge_u32 s34, 6
s_cselect_b32 s70, {2048*642}, 0
s_mov_b32 s71, 0x00020000
v_and_b32 v100, 7, v2
v_lshlrev_b32 v100, 7, v100
v_min_u32 v100, 671, v100
v_lshrrev_b32 v101, 3, v2
v_mul_u32_u24 v101, {8*642}, v101
v_add_u32 v100, v100, v101
s_and_b32 s33, s2, 7
s_lshr_b32 s37, s2, 3
s_lshl_b32 s37, s37, 6
s_add_u32 s33, s33, s37
s_mul_i32 s33, s33, 642
buffer_load_ubyte v101, v100, s[68:71], s33 offen''')
        vm.issue('c')
    WL = opt.get('fwl', 2)
    LT = opt.get('flt', 0)
    if LT == 0: late()
    if WL == 0: wld(50, 51, 68, vm)
    w_setup(k, 46, 47); w_vaddr(k, 124, 125)
    q = Bulk(k, wb.ops); wb.ops = []
    q(FW[0], vm, 124, 'q')
    k(f'''s_mul_i32 s39, s34, {XP}
v_add_u32 v58, s39, v58
v_add_u32 v59, s39, v59
v_lshrrev_b32 v52, 2, v50
v_and_b32 v53, 3, v50
v_lshl_add_u32 v54, v51, 3, v52
v_add_u32 v55, 4, v54
v_subrev_u32 v56, 20, v54
v_min_u32 v54, v54, v56
v_subrev_u32 v56, 20, v55
v_min_u32 v55, v55, v56
v_lshlrev_b32 v53, 3, v53
v_lshl_add_u32 v54, v54, 6, v53
v_lshl_add_u32 v55, v55, 6, v53
v_add_u32 v54, s39, v54
v_add_u32 v55, s39, v55
s_mul_i32 s42, s34, {EXP}
s_add_u32 s42, s42, {EX0}
v_mul_u32_u24 v56, 80, v51
v_add_u32 v57, v56, v50
v_lshlrev_b32 v57, 3, v57
v_add_u32 v60, s42, v57
v_sub_u32 v61, {8*260}, v57
v_add_u32 v61, s42, v61
v_mov_b32 v126, {CNT}
v_mov_b32 v127, 0
ds_write_b32 v126, v127''')
    n = len(vm.tags) - 1
    k(f'''s_cmp_lt_u32 s34, 6
s_cbranch_scc1 {PB}
s_waitcnt vmcnt({n+8})
s_branch {PB}x
{PB}:
s_waitcnt vmcnt({n})
{PB}x:
s_waitcnt lgkmcnt(0)''')
    vm.done = 1
    st(k, 7, 1); st(k, 5, 1)
    k('s_barrier')
    for i in range(8): k(f'ds_read_b128 {vr(64+4*i,4)}, v3 offset:{TB0+1024*i}')
    k(f'''s_lshl_b32 s33, s3, 6
s_add_u32 s33, s33, 32768
s_load_dwordx16 s[16:31], s[12:13], s33
s_load_dwordx2 s[80:81], s[0:1], 64''')
    if WL == 2: wtouch()
    if LT == 1: late()
    if WL == 1: wld(50, 51, 68, vm)
    srd_from(k, 52, 40, 41, WS_FL, 0x80000)
    k(f'''s_lshl_b32 s33, s2, 10
s_cmp_lt_u32 s2, 128
s_cselect_b32 s43, s33, {BIG}
s_add_u32 s33, s33, 0x40000
s_cmp_eq_u32 s34, 1
s_cselect_b32 s33, s33, {BIG}
s_cselect_b32 s44, -1, 0
s_cmp_eq_u32 s34, 0
s_cselect_b32 s33, s43, s33
v_mov_b32 v120, s44
v_mov_b32 v121, s44
v_mov_b32 v122, s44
v_mov_b32 v123, s44
buffer_store_dwordx4 v[120:123], v3, s[52:55], s33 offen
s_mul_i32 s33, s3, {8*TP}
s_add_u32 s33, s33, {WS_U}
s_add_u32 s52, s40, s33
s_addc_u32 s53, s41, 0
s_mov_b32 s54, {8*TP}
v_mov_b32 v116, -1
v_mov_b32 v117, -1
v_mov_b32 v118, -1
v_mov_b32 v119, -1
v_lshlrev_b32 v125, 4, v0
s_movk_i32 s33, 0x2000
buffer_store_dwordx4 v[116:119], v125, s[52:55], 0 offen
buffer_store_dwordx4 v[116:119], v125, s[52:55], s33 offen''')
    for _ in range(3): vm.issue('f')
    if not opt.get('nopf'):
        code_srd(k, 68, J1, 'code_end')
        k(f'''s_cmp_ge_u32 s34, 6
s_cselect_b32 s70, s70, 0
s_bfe_u32 s33, s2, 0x30003
s_lshl_b32 s33, s33, 13
s_and_b32 s43, s34, 1
s_lshl_b32 s43, s43, 16
s_add_u32 s33, s33, s43
v_lshlrev_b32 v100, 7, v2
buffer_load_ubyte v101, v100, s[68:71], s33 offen''')
        vm.issue('c')
    i0 = len(k.lines)
    for i in range(5):
        k(f'v_lshlrev_b32 v{10+2*i}, 16, v{4+i}\nv_and_b32 v{11+2*i}, 0xffff0000, v{4+i}')
    k('''v_pk_add_f32 v[20:21], v[10:11], v[12:13]
v_pk_mul_f32 v[22:23], v[10:11], v[10:11]
v_pk_add_f32 v[24:25], v[14:15], v[16:17]
v_pk_fma_f32 v[22:23], v[12:13], v[12:13], v[22:23]
v_pk_add_f32 v[20:21], v[20:21], v[18:19]
v_pk_fma_f32 v[22:23], v[14:15], v[14:15], v[22:23]
v_pk_add_f32 v[20:21], v[20:21], v[24:25]
v_pk_fma_f32 v[22:23], v[16:17], v[16:17], v[22:23]
v_pk_fma_f32 v[22:23], v[18:19], v[18:19], v[22:23]
v_add_f32 v20, v20, v21
v_add_f32 v22, v22, v23''')
    wave_reduce2(k, 20, 22, 36, 37)
    ln_stats(k, 36, 37, 640, 20, 22, 24)
    ln_apply(k, 10, 10, 20, 22, 4)
    k('''ds_write_b64 v58, v[4:5]
ds_write_b64 v58, v[6:7] offset:512
ds_write_b32 v59, v8 offset:1024
s_waitcnt lgkmcnt(0)
ds_read_b64_tr_b16 v[4:5], v54
ds_read_b64_tr_b16 v[6:7], v55
ds_read_b64_tr_b16 v[8:9], v54 offset:32
ds_read_b64_tr_b16 v[10:11], v55 offset:32
s_waitcnt lgkmcnt(2)''')
    k(f'''{MFMA} v[12:15], v[4:7], v[64:67], 0
{MFMA} v[16:19], v[4:7], v[68:71], 0
s_waitcnt lgkmcnt(0)
{MFMA} v[20:23], v[8:11], v[64:67], 0
{MFMA} v[24:27], v[8:11], v[68:71], 0''')
    cmul_planar(k, 12, 16, 72, 76, 28, 32, 44)
    cmul_planar(k, 20, 24, 80, 84, 36, 40, 44)
    if opt.get('fwe', 0) == 1: weave_in(k, i0, q, FW[1], vm, 124)
    for t in range(2):
        for h in range(2):
            re_ = 28 + 8 * t + 2 * h; im = 32 + 8 * t + 2 * h; o = 2 * t + h
            k(f'''v_cvt_pk_bf16_f32 v{4+o}, v{re_}, v{re_+1}
v_cvt_pk_bf16_f32 v{8+o}, v{im}, v{im+1}
v_cvt_pk_bf16_f32 v{12+o}, -v{im}, -v{im+1}
v_cvt_pk_bf16_f32 v{16+o}, v{re_}, -v{re_+1}
v_cvt_pk_bf16_f32 v{20+o}, v{im}, -v{im+1}
v_cvt_pk_bf16_f32 v{24+o}, -v{im}, v{im+1}''')
    k(f'''{MFMA} v[28:31], v[88:91], v[4:7], 0
{MFMA} v[32:35], v[92:95], v[4:7], 0
{MFMA} v[36:39], v[88:91], v[16:19], 0
{MFMA} v[40:43], v[92:95], v[16:19], 0
{MFMA} v[28:31], v[92:95], v[12:15], v[28:31]
{MFMA} v[32:35], v[88:91], v[8:11], v[32:35]
{MFMA} v[36:39], v[92:95], v[24:27], v[36:39]
{MFMA} v[40:43], v[88:91], v[20:23], v[40:43]''')
    if opt.get('fwe', 0) == 0: weave_in(k, i0, q, FW[1], vm, 124)
    k('''s_mov_b32 exec_lo, 0x07ff07ff
s_mov_b32 exec_hi, 0x07ff07ff''')
    for r in range(4):
        k(f'ds_write2_b32 v60, v{28+r}, v{32+r} offset0:{40*r} offset1:{40*r+1}')
    for r in range(4):
        k(f'v_xor_b32 v{40+r}, 0x80000000, v{40+r}')
    for r in range(4):
        k(f'ds_write2_b32 v61, v{36+r}, v{40+r} offset0:{40*(3-r)} offset1:{40*(3-r)+1}')
    k('s_mov_b64 exec, -1')
    srd_from(k, 68, 40, 41, WS_FL, FL_BYTES)
    k(vm.wait('f'))
    k('s_waitcnt lgkmcnt(0)')
    st(k, 7, 2); st(k, 5, 2)
    k('s_barrier')
    k(f'''v_cmp_gt_u32 vcc, {TP//4}, v0
s_and_saveexec_b64 s[44:45], vcc
s_cbranch_execz {TAIL}
v_lshlrev_b32 v1, 3, v0
v_lshlrev_b32 v2, 2, v0''')
    for n in range(8):
        k(f'ds_read_b64 {vr(4+2*n,2)}, v1 offset:{EX0+n*EXP}')
    k(f'''v_mov_b32 v40, 0x3f3504f3
s_mul_i32 s46, s3, {8*TP}
s_add_u32 s47, s46, {3*TP}
s_add_u32 s48, s46, {6*TP}
s_waitcnt lgkmcnt(0)
s_barrier''')
    st(k, 7, 3); st(k, 5, 3)
    T = fft8(k, 4, 20, False, 40)
    for k2 in range(8):
        if k2 == 0:
            k(f'v_cvt_pk_bf16_f32 v4, v{T[0]}, v{T[0]+1}')
        else:
            smul(k, T[k2], T[k2], 16 + 2 * k2, 42 + 2 * (k2 & 1))
            k(f'v_cvt_pk_bf16_f32 v{4+k2}, v{T[k2]}, v{T[k2]+1}')
        k(f'buffer_store_dword v{4+k2}, v2, s[8:11], s{46+k2//3} offen offset:{(k2%3)*TP}')
    k('s_mov_b64 exec, -1')
    st(k, 7, 4)
    qt = q.copy()
    q(FW[2], None, 124)
    k(f'''s_bfe_u32 s42, s3, 0x30001
s_lshl_b32 s42, s42, 7
s_lshr_b32 s43, s3, 4
s_lshl_b32 s43, s43, 3
s_add_u32 s42, s42, s43
s_and_b32 s43, s3, 1
s_lshl_b32 s43, s43, 2
s_add_u32 s42, s42, s43
s_add_u32 s42, s42, {FT}
v_lshlrev_b32 v12, 6, v3
v_mov_b32 v13, {MAGIC}
v_mov_b32 v127, 1
s_mov_b64 exec, 1
s_waitcnt vmcnt({min(FW[2], len(qt.ops))})
ds_add_rtn_u32 v127, v126, v127
s_waitcnt lgkmcnt(0)
v_readfirstlane_b32 s43, v127
s_mov_b64 exec, 0xff
s_cmp_lg_u32 s43, 5
s_cbranch_scc1 {NF}
buffer_store_dword v13, v12, s[68:71], s42 offen
{NF}:
s_mov_b64 exec, -1''')
    st(k, 7, 5)
    k(f's_branch {J1}\n{TAIL}:\ns_mov_b64 exec, -1\ns_barrier')
    st(k, 7, 3); st(k, 5, 3)
    qt(FW[2], None, 124)
    i0 = len(k.lines)
    prep_inl(k, 'B', LB, PD, 63)
    for j in range(i0, len(k.lines)):
        k.lines[j] = re.sub(r'\bs5([01])\b', lambda m: f's{24+int(m.group(1))}', k.lines[j])
    k(f'''{PD}:
s_lshl_b32 s42, s2, 3
s_lshl_b32 s43, s34, 2
s_add_u32 s42, s42, s43
s_add_u32 s42, s42, {FP - 24}
v_lshlrev_b32 v12, 7, v3
v_mov_b32 v13, {MAGIC}''')
    st(k, 7, 4); st(k, 5, 9)
    k(f'''s_mov_b64 exec, 0xff
s_waitcnt vmcnt(0)
buffer_store_dword v13, v12, s[68:71], s42 offen
s_mov_b64 exec, -1''')
    st(k, 7, 5)
    for j in range(l0, len(k.lines)):
        l = k.lines[j]
        if l.startswith('buffer_store') and 'sc1' not in l: k.lines[j] = l + ' sc1'
    k(f'{J1}:')
    vm = Cnt('vmcnt', 63); vm.issue('q')
    IIM = 'v[112:115]'; IRE = 'v[114:117]'; FIM = 'v[116:119]'; FRE = 'v[118:121]'
    if WL == 2: k('s_load_dwordx4 s[52:55], s[0:1], 8')
    k(f"""v_and_b32 v2, 63, v0
v_and_b32 v4, 15, v2
v_lshrrev_b32 v5, 4, v2""")
    if WL == 2: wld(4, 5, 60, vm)
    k(f"""s_and_b32 s33, s2, 7
s_lshr_b32 s35, s2, 3
v_lshrrev_b32 v7, 2, v2
v_and_b32 v8, 3, v2
v_mul_u32_u24 v6, {16*8*TP}, v7
v_lshl_add_u32 v6, v8, 4, v6
s_lshl_b32 s36, s34, 4
s_add_u32 s36, s36, s33
s_mul_i32 s36, s36, {TP}
s_lshl_b32 s37, s35, 6
s_add_u32 s36, s36, s37
s_add_u32 s42, s36, {8*TP}
s_and_b32 s37, s33, 1
s_lshl_b32 s37, s37, 2
s_sub_u32 s43, s36, s37
s_sub_u32 s44, s42, s37
s_lshl_b32 s45, s33, 10
s_lshl_b32 s49, s33, 11
s_add_u32 s49, s49, {FP}
s_lshl_b32 s37, s34, 7
s_add_u32 s45, s45, s37
s_add_u32 s45, s45, {FT}
v_and_b32 v9, 31, v2
v_lshlrev_b32 v9, 2, v9""")
    srd_from(k, 60, 40, 41, WS_T, TU_BYTES)
    srd_from(k, 8, 40, 41, WS_U, TU_BYTES)
    srd_from(k, 64, 40, 41, WS_WI, WI_BYTES)
    g1id(k, 58, 57)
    k(f"""s_and_b32 s58, s58, 15
s_mul_i32 s58, s58, {140*1024}
s_mul_i32 s57, s34, {14*1024}
s_add_u32 s57, s57, {31*1024}
s_min_u32 s57, s57, {126*1024}
s_add_u32 s56, s57, {BB}
s_add_u32 s57, s57, s58""")
    bops = []
    for i in range(14):
        o = f's_add_u32 m0, s56, {1024*(i-i%4)}\n'
        if i % 4 == 0 and i: o += 's_add_u32 s57, s57, 4096\n'
        bops.append(o + f'buffer_load_dwordx4 v3, s[64:67], s57 offen offset:{1024*(i%4)} lds')
    KW = opt.get('KW', [0, 0, 0]); K9 = opt.get('K9', 8); KT = opt.get('KT', 0)
    wrest = list(q.ops)
    nw1 = min(len(wrest), KT + KW[0] + KW[1])
    rest = wrest[nw1:] + bops
    if opt.get('bo'): rest = bops + wrest[nw1:]
    post = rest[K9:]
    assert len(post) <= KW[2], (len(post), KW)

    def pld():
        k('buffer_load_dwordx4 v[24:27], v3, s[68:71], s49 offen sc1\nbuffer_load_dwordx4 v[28:31], v3, s[68:71], s49 offen offset:1024 sc1')

    def pchk(n):
        LP = k.label('lp'); LD = k.label('ld'); L1 = k.label('l1')
        k(f's_mov_b32 s43, {SPIN}\ns_waitcnt vmcnt({n})\ns_branch {L1}\n{LP}:\ns_sleep 4')
        pld()
        k(f'''s_waitcnt vmcnt(0)
{L1}:
v_min3_u32 v13, v24, v25, v26
v_max3_u32 v14, v24, v25, v26
v_min3_u32 v13, v13, v27, v28
v_max3_u32 v14, v14, v27, v28
v_min3_u32 v13, v13, v29, v30
v_max3_u32 v14, v14, v29, v30
v_min_u32 v13, v13, v31
v_max_u32 v14, v14, v31
v_xor_b32 v13, {MAGIC}, v13
v_xor_b32 v14, {MAGIC}, v14
v_or_b32 v24, v13, v14
v_cmp_ne_u32 vcc, 0, v24
s_cbranch_vccz {LD}
s_sub_u32 s43, s43, 1
s_cmp_lg_u32 s43, 0
s_cbranch_scc1 {LP}
{LD}:''')
    k(f's_cmp_ge_u32 s2, 168\ns_cbranch_scc1 {IDLE}')
    q = Bulk(k, wrest[:nw1])
    k(f"""v_mul_u32_u24 v10, {4*P}, v8
v_lshl_add_u32 v10, v7, 2, v10
s_lshl_b32 s37, s34, 7
v_add_u32 v10, s37, v10
v_lshlrev_b32 v12, 6, v4
v_lshl_add_u32 v12, v5, 4, v12
s_mul_i32 s37, s34, {2*P}
v_add_u32 v12, s37, v12
s_mov_b32 s47, 0x05040100
s_mov_b32 s48, 0x07060302""")
    if WL == 2: k('s_waitcnt vmcnt(0)')
    for j in range(8):
        k(f'v_perm_b32 v{64+j}, v{108+j//2}, v{104+j//2}, s{47+(j&1)}')
        k(f'ds_write_b32 v10, v{64+j} offset:{W0+(j&3)*P+64*(j>>2)}')
    k(f"""ds_read_b128 v[96:99], v3 offset:{TB1}
ds_read_b128 v[100:103], v3 offset:{TB1+1024}
ds_read_b128 v[104:107], v3 offset:{TB1+2048}
ds_read_b128 v[108:111], v3 offset:{TB1+3072}
ds_read_b128 v[118:121], v3 offset:{TB1+4096}
ds_read_b64 v[116:117], v3 offset:{TB1+5120}
ds_read_b128 v[112:115], v3 offset:{TB1+7168}""")
    st(k, 7, 6)
    if opt.get('td'): k(f's_sleep {opt["td"]}')
    poll2(k, 'buffer_load_dword v13, v9, s[68:71], s45 offen sc1', f'v_cmp_ne_u32 vcc, {MAGIC}, v13', 46, opt.get('tsl', 0))
    st(k, 7, 7)
    vm.done = len(vm.tags)
    for i in range(2):
        k(f'buffer_load_dwordx4 {vr(16+4*i,4)}, v6, s[60:63], s{43+i} offen'); vm.issue(f'T{i}')
    q(KT, vm, 124, 'q')
    for i in range(2):
        k(vm.wait(f'T{i}'))
        if i == 0: st(k, 4, 1); st(k, 7, 8)
        for j in range(4):
            k(f'ds_write_b32 v10, v{16+4*i+j} offset:{j*P+64*i}')
    k('s_waitcnt lgkmcnt(0)\ns_barrier')
    NC = 2
    i0 = len(k.lines)
    k(f"""ds_read_b128 v[16:19], v12
ds_read_b128 v[20:23], v12 offset:{P}
ds_read_b128 v[32:35], v12 offset:{W0}
ds_read_b128 v[36:39], v12 offset:{W0+P}
s_waitcnt lgkmcnt(3)
{MFMA} v[48:51], v[16:19], v[96:99], 0
{MFMA} v[52:55], v[16:19], v[100:103], 0
s_waitcnt lgkmcnt(2)
{MFMA} v[56:59], v[20:23], v[96:99], 0
{MFMA} v[60:63], v[20:23], v[100:103], 0
s_waitcnt lgkmcnt(0)""")
    for c in range(NC):
        for r in range(4):
            k(f'v_lshlrev_b32 v{64+8*c+r}, 16, v{32+4*c+r}\nv_and_b32 v{68+8*c+r}, 0xffff0000, v{32+4*c+r}')

    def pack(c, re, im):
        k(f"""v_cvt_pk_bf16_f32 v{16+4*c}, v{re}, v{re+1}
v_cvt_pk_bf16_f32 v{17+4*c}, v{re+2}, v{re+3}
v_cvt_pk_bf16_f32 v{18+4*c}, v{im}, v{im+1}
v_cvt_pk_bf16_f32 v{19+4*c}, v{im+2}, v{im+3}""")
    for c in range(NC):
        cmul_planar(k, 48 + 8 * c, 52 + 8 * c, 104, 108, 80, 84, 88)
        pack(c, 80, 84)
        k(f'{MFMA} {vr(48+8*c,4)}, {FRE}, {vr(16+4*c,4)}, 0')
        k(f'{MFMA} {vr(52+8*c,4)}, {FIM}, {vr(16+4*c,4)}, 0')
    weave_in(k, i0, q, KW[0], vm, 124)
    st(k, 4, 2)
    i0 = len(k.lines)
    for c in range(NC):
        cmul_planar(k, 48 + 8 * c, 52 + 8 * c, 64 + 8 * c, 68 + 8 * c, 80, 84, 88)
        pack(c, 80, 84)
        k(f'{MFMA} {vr(48+8*c,4)}, {vr(16+4*c,4)}, {IRE}, 0')
        k(f'{MFMA} {vr(52+8*c,4)}, {vr(16+4*c,4)}, {IIM}, 0')
    for c in range(NC):
        cmul_planar(k, 48 + 8 * c, 52 + 8 * c, 104, 108, 80, 84, 88, conj=True)
        pack(c, 80, 84)
        k(f'{MFMA} {vr(48+8*c,4)}, {IRE}, {vr(16+4*c,4)}, 0')
        k(f'{MFMA} {vr(52+8*c,4)}, {IIM}, {vr(16+4*c,4)}, 0')
    weave_in(k, i0, q, KW[1], vm, 124)
    assert not q.ops
    pld()
    for c in range(NC):
        for r in range(4):
            k(f'v_cvt_pk_bf16_f32 v{16+4*c+r}, v{48+8*c+r}, v{52+8*c+r}')
        k(f'ds_write_b128 v12, {vr(16+4*c,4)} offset:{c*P}')
    k('s_waitcnt lgkmcnt(0)\ns_barrier')
    for i in range(2):
        for j in range(4):
            k(f'ds_read_b32 v{16+4*i+j}, v10 offset:{j*P+64*i}')
    for i in range(10): k(f'ds_read_b128 {vr(64+4*i,4)}, v3 offset:{TB2+1024*i}')
    for i in range(2):
        k(f's_waitcnt lgkmcnt({14-4*i})')
        k(f'buffer_store_dwordx4 {vr(16+4*i,4)}, v6, s[8:11], {["s36","s42"][i]} offen sc1')
    st(k, 4, 3); st(k, 7, 9)
    if opt.get('ob2'): k('s_barrier')
    pchk(2)
    Bulk(k, rest[:K9])(99, None, 124)
    k(f's_branch {JOIN}\n{IDLE}:')
    IT = opt.get('it', 2)
    if IT:
        LP = k.label('lp'); LD = k.label('ld')
        k(f'''s_cmp_ge_u32 s34, 6
s_cbranch_scc1 {LD}x
s_sub_u32 s43, s35, 21
s_and_b32 s44, s33, {1 if IT == 2 else 0}
s_mul_i32 s44, s44, 11
s_add_u32 s43, s43, s44
s_mul_i32 s44, s34, {22 if IT == 2 else 11}
s_add_u32 s44, s44, s43
s_lshr_b32 s46, s33, 1
s_lshl_b32 s46, s46, 18
v_lshlrev_b32 v10, 7, v2
s_mov_b32 s43, {SPIN}
{LP}:
ds_read_b32 v11, v126
s_waitcnt lgkmcnt(0)
v_cmp_gt_u32 vcc, 6, v11
s_cbranch_vccz {LD}
s_sleep 1
s_sub_u32 s43, s43, 1
s_cmp_lg_u32 s43, 0
s_cbranch_scc1 {LP}
{LD}:''')
        if opt.get('itd'): k(f's_sleep {opt["itd"]}')
        for r in range(IT):
            k(f'''s_and_b32 s47, s44, 31
s_lshl_b32 s47, s47, 13
s_lshr_b32 s48, s44, 5
s_lshl_b32 s48, s48, 20
s_add_u32 s47, s47, s48
s_add_u32 s47, s47, s46
buffer_load_ubyte v11, v10, s[72:75], s47 offen
s_add_u32 s44, s44, {132 if IT == 2 else 66}''')
        k(f'{LD}x:')
    k('s_barrier')
    Bulk(k, wrest[:nw1])(99, None, 124)
    for i in range(10): k(f'ds_read_b128 {vr(64+4*i,4)}, v3 offset:{TB2+1024*i}')
    pld()
    pchk(0)
    Bulk(k, rest[:K9])(99, None, 124)
    if opt.get('idl'): k(f's_sleep {opt["idl"]}')
    k(f'{JOIN}:')
    ph_k2b(k, opt, post, 0, True)


def clean(k):
    NC_ = k.label('nc')
    k(f'''s_cmp_lg_u32 s34, 0
s_cbranch_scc1 {NC_}
s_bfe_u32 s42, s2, 0x30004
s_lshl_b32 s42, s42, 7
s_and_b32 s43, s2, 7
s_lshl_b32 s43, s43, 4
s_add_u32 s42, s42, s43
s_lshr_b32 s43, s2, 7
s_lshl_b32 s43, s43, 3
s_add_u32 s42, s42, s43
s_bfe_u32 s43, s2, 0x10003
s_lshl_b32 s43, s43, 2
s_add_u32 s42, s42, s43
s_add_u32 s42, s42, {FT}
s_lshl_b32 s43, s2, 3
s_add_u32 s43, s43, {FP}
v_lshlrev_b32 v4, 6, v3
v_lshlrev_b32 v5, 7, v3
v_mov_b32 v6, 0
v_mov_b32 v7, 0
s_mov_b64 exec, 0xff
buffer_store_dword v6, v4, s[68:71], s42 offen sc1
buffer_store_dwordx2 v[6:7], v5, s[68:71], s43 offen sc1
s_mov_b64 exec, -1
{NC_}:''')


def gen_f(opt):
    k = Kern('kf_kernel', 256, 512, 163840, nvgpr=128, nagpr=128)
    END = k.label('end'); G2 = k.label('g2'); G3 = k.label('g3')
    k(f's_cmp_ge_u32 s2, 256\ns_cbranch_scc1 {END}')
    k.stamp(True)
    wb = Bulk(k, g2_wops())
    ph_k01(k, opt, wb)
    ph_g1t(k, opt, G2, wb)
    k(f'{G2}:')
    st(k, 0, 6)
    vm = Cnt('vmcnt', 63); vm.issue('w')
    g3_wo_setup(k)
    ph_g2(k, opt, G3, vm, True, g3_wo_ops())
    k(f'{G3}:')
    ph_g3(k, opt, True)
    clean(k)
    k.finish(END)
    return [k]
```

```python
import sys, re
from asmlib import *
from tables import build_tab
import gen_fft, gen3, gen10
opt = dict(lv=4, k0i=1, us=1, npf1=0, sf0=2, lt=1, k1c=1, wd=2, sh=2, k1wp=0, sfu=2, fullt=1, fz=1, fzn=128, pxd=10, pxs=6, g1d=8, g2d=8, g3d=8, p8=1, pp=1, G2R=3, N0=4, NZ=10)
for a in sys.argv[2:]:
    if a == 'prof': Kern.prof = True
    elif '=' in a:
        v = a.split('=')[1]
        opt[a.split('=')[0]] = [int(x) for x in v.split(',')] if ',' in v else int(v)
    else: opt[a] = 1
gen_fft.OPT = opt
Kern.dbgp = opt.get('dbgp')
gen10.PV = opt.get('pv', 0)
gen10.ROT = opt.get('rot', 0)
gen10.W128 = opt.get('w128', 0)
gen10.G1S = opt.get('g1s', 0)
gen10.GV = opt.get('gv', 0)
if gen10.GV: assert opt.get('g1t')
if gen10.W128: assert opt.get('wt1')[1] == 0 and not opt.get('wt0')
gen10.FS = opt.get('FS', 7)
if opt.get('spin'): gen10.SPIN = opt['spin']
if opt.get('fu'):
    import gen11
    ks = gen11.gen_f(opt)
else: ks = gen10.build(opt)
for k in ks:
    for j, l in enumerate(k.lines):
        if not l.startswith('buffer_store') or 's[96:99]' in l or 'sc1' in l: continue
        if k.name in ('k0_kernel',): k.lines[j] = l + ' sc1'
NT = opt.get('ntm', 0)
for k in ks:
    for j, l in enumerate(k.lines):
        k0 = k.name == 'k0_kernel'
        add = False
        if k0 and NT & 1 and l.startswith('buffer_load') and 's[20:23]' in l: add = True
        if k0 and NT & 2 and l.startswith('buffer_load') and 's[4:7]' in l: add = True
        if not k0 and NT & 4 and l.startswith('buffer_load_dwordx4') and 's[72:75]' in l: add = True
        if not k0 and NT & 8 and l.startswith('buffer_load_ubyte') and 's[72:75]' in l: add = True
        if k0 and NT & 16 and l.startswith('buffer_load_ubyte') and 's[68:71]' in l: add = True
        if k0 and NT & 32 and l.startswith('buffer_store') and 's[52:55]' in l: add = True
        if k0 and NT & 64 and l.startswith('buffer_store') and 's[8:11]' in l: add = True
        if k0 and NT & 128 and l.startswith('buffer_store') and 's[16:19]' in l: add = True
        if not k0 and NT & 256 and l.startswith('buffer_load_dwordx4 v[10') and 's[4:7]' in l: add = True
        if add:
            if l.endswith(' lds'): k.lines[j] = l[:-4] + ' nt lds'
            else: k.lines[j] = l + ' nt'
s = build_file(ks, {'tab': build_tab()})
open(sys.argv[1], 'w').write(s)
print(len(s))
```

```python
from asmlib import *
import gen_fft
from gen_fft import vr, sr, srd_from, tab_srd, MFMA, WS_H, WS_HN, WS_U, WS_T, X_BYTES, TU_BYTES, TP, fft8, smul, cmul_planar, wave_reduce2, ln_stats, ln_apply
from gen3 import *

WS_FL = 0x1800000
FL_BYTES = 0x40000
FLH = 0; FL2 = 0x8000; FL3 = 0x10000; FLU = 0x18000
FS = 7
WS_PX = 0x1840000
PX_BYTES = 64 * 16 * 256
WS_WS = 0x2000000
WSP_BYTES = 8 << 20
Z2N_BYTES = 64 * 57344
A2_BYTES = 4 << 20
SPIN = 400000
PV = 0
ROT = 0
W128 = 0
G1S = 0
GV = 0
HP = 10368
HN_BYTES = 256 * HP
MF16 = 'v_mfma_f32_16x16x16_bf16'
BIG = '0x7f000000'


def st(k, view, slot):
    if Kern.prof and PV == view:
        k.nst = slot; k.stamp()


def poll(k, srd, soff, va, vd, sc):
    LP = k.label('lp'); LD = k.label('ld')
    k(f'''s_mov_b32 s{sc}, {SPIN}
{LP}:
buffer_load_dword v{vd}, v{va}, {sr(srd,4)}, {soff} offen sc1
s_waitcnt vmcnt(0)
v_cmp_eq_u32 vcc, 0, v{vd}
s_cbranch_vccz {LD}
s_sub_u32 s{sc}, s{sc}, 1
s_cmp_lg_u32 s{sc}, 0
s_cbranch_scc1 {LP}
{LD}:''')


def map_g2(k):
    if gen_fft.OPT.get('g2m'):
        k('''s_and_b32 s35, s2, 7
s_lshl_b32 s35, s35, 2
s_bfe_u32 s36, s2, 0x20003
s_add_u32 s35, s35, s36
s_lshr_b32 s36, s2, 5''')
        return
    k('''s_and_b32 s33, s2, 7
s_lshr_b32 s42, s2, 3
s_lshr_b32 s35, s33, 1
s_lshl_b32 s35, s35, 3
s_and_b32 s36, s42, 7
s_add_u32 s35, s35, s36
s_and_b32 s36, s33, 1
s_lshl_b32 s36, s36, 2
s_lshr_b32 s42, s42, 3
s_add_u32 s36, s36, s42''')


def g1id(k, d, t):
    m = gen_fft.OPT.get('g1m', 0)
    k(f'''s_bfe_u32 s{d}, s2, {hex(((3-m) << 16) | m)}
s_lshl_b32 s{d}, s{d}, {1+m}
s_lshr_b32 s{t}, s2, {7-m}
s_add_u32 s{d}, s{d}, s{t}
s_lshl_b32 s{d}, s{d}, {m}
s_and_b32 s{t}, s2, {(1 << m) - 1}
s_add_u32 s{d}, s{d}, s{t}
s_lshl_b32 s{d}, s{d}, {4-m}
s_bfe_u32 s{t}, s2, {hex(((4-m) << 16) | 3)}
s_add_u32 s{d}, s{d}, s{t}''')


def w_setup(k, t0, t1):
    G2M = gen_fft.OPT.get('g2m', 0)
    k(f'''s_mov_b32 s74, {2048*4096}
s_mov_b32 s75, 0x00020000
s_bfe_u32 s{t0}, s2, {"0x30000" if G2M else "0x20001"}
s_lshl_b32 s{t0}, s{t0}, {2 if G2M else 3}
s_bfe_u32 s{t1}, s2, {"0x20003" if G2M else "0x30003"}
s_add_u32 s{t0}, s{t0}, s{t1}
s_lshl_b32 s50, s{t0}, 15
s_lshr_b32 s{t0}, s34, 2
s_lshl_b32 s{t0}, s{t0}, 11
s_and_b32 s{t1}, s34, 3
s_lshl_b32 s{t1}, s{t1}, 7
s_add_u32 s50, s50, s{t0}
s_add_u32 s50, s50, s{t1}
s_add_u32 s51, s50, 16384''')
    if ROT:
        k(f'''s_bfe_u32 s{t0}, s2, 0x10006
s_lshl_b32 s{t0}, s{t0}, {21 if G1S else 14}
s_add_u32 s50, s50, s{t0}
s_bfe_u32 s{t0}, s2, 0x10007
s_lshl_b32 s{t0}, s{t0}, 22
s_add_u32 s50, s50, s{t0}
s_mov_b32 s51, s50''')
    if W128: k(f's_mov_b32 s82, s50\ns_add_u32 s51, s50, {0x100000 if G1S else 4096}')


def w_vaddr(k, d, t):
    if W128:
        k(f'''v_and_b32 v{d}, 112, v3
v_bfe_u32 v{t}, v3, 7, 1
v_lshl_add_u32 v{d}, v{t}, {14 if G1S else 13}, v{d}
v_lshrrev_b32 v{t}, 8, v3
v_lshl_add_u32 v{d}, v{t}, 9, v{d}''')
        return
    k(f'''v_and_b32 v{d}, 48, v3
v_bfe_u32 v{t}, v3, 6, 2
v_lshl_add_u32 v{d}, v{t}, 12, v{d}
v_lshrrev_b32 v{t}, 8, v3
v_lshl_add_u32 v{d}, v{t}, 9, v{d}''')


def g2_wops(fl=''):
    ops = []
    if W128:
        for g in range(4):
            for n in range(4):
                for ih in range(2):
                    o = f'buffer_load_dwordx4 {ar(16*(4*ih+n)+4*g,4)}, @, s[72:75], s{50+ih} offen{fl}'
                    sn, si, su = (4096, 0x100000, 2 << 20) if G1S else (0x100000, 4096, 16384)
                    if ih and n < 3: o += f'\ns_add_u32 s50, s50, {sn}\ns_add_u32 s51, s51, {sn}'
                    if ih and n == 3 and g < 3: o += f'\ns_xor_b32 s50, s82, {((g+1)&1)*su + ((g+1)>>1)*(4<<20)}\ns_add_u32 s51, s50, {si}'
                    ops.append(o)
        return ops
    if ROT:
        for g in range(4):
            for n in range(4):
                for hi in range(2):
                    o = f'buffer_load_dwordx4 {ar(16*(4*hi+n)+4*g,4)}, @, s[72:75], s50 offen offset:{64*hi}{fl}'
                    if hi and n < 3: o += '\ns_add_u32 s50, s50, 0x100000'
                    if hi and n == 3 and g < 3: o += f'\ns_xor_b32 s50, s51, {((g+1)&1)*16384 + ((g+1)>>1)*(4<<20)}'
                    ops.append(o)
        return ops
    for n2 in range(8):
        for u in range(2):
            for hi in range(2):
                o = f'buffer_load_dwordx4 {ar(16*(4*hi+(n2&3))+4*(2*(n2>>2)+u),4)}, @, s[72:75], s{50+u} offen offset:{64*hi}{fl}'
                if u and hi and n2 < 7: o += '\ns_add_u32 s50, s50, 0x100000\ns_add_u32 s51, s51, 0x100000'
                ops.append(o)
    return ops


def w_trans(k, vw, vrd, groups=None, ts=42, priv=False):
    PT = 520
    if (groups is not None and not groups) or gen_fft.OPT.get('nowt'): return
    if W128:
        k(f's_add_u32 s{ts}, s32, 3072' if priv else f's_and_b32 s{ts}, s34, 3\ns_mul_i32 s{ts}, s{ts}, 4160')
        k(f'''v_lshrrev_b32 v{vw}, 1, v3
v_add_u32 v{vw}, s{ts}, v{vw}
v_bfe_u32 v{vrd}, v3, 4, 3
v_mul_u32_u24 v{vrd}, {PT-8}, v{vrd}
v_add_u32 v{vrd}, v{vw}, v{vrd}''')
        for tt in range(4):
            if groups is not None and tt not in groups: continue
            for h in range(2):
                R = lambda i: ar(16 * i + 4 * tt + 2 * h, 2)
                for i in range(8): k(f'ds_write_b64 v{vw}, {R(i)} offset:{PT*i}')
                for c in range(8): k(f'ds_read_b64 {R(c)}, v{vrd} offset:{8*c}')
        return
    k(f'''s_mul_i32 s{ts}, s34, 2560
v_lshrrev_b32 v{vw}, 1, v3
v_add_u32 v{vw}, s{ts}, v{vw}
v_bfe_u32 v{vrd}, v3, 4, 2
v_mul_u32_u24 v{vrd}, {PT-8}, v{vrd}
v_add_u32 v{vrd}, v{vw}, v{vrd}''')
    for tt in range(4):
        for hi in range(2):
            if groups is not None and tt not in groups: continue
            for h in range(2):
                R = lambda i: ar(16 * (4 * hi + i) + 4 * tt + 2 * h, 2)
                for i in range(4): k(f'ds_write_b64 v{vw}, {R(i)} offset:{PT*i}')
                for c in range(4): k(f'ds_read_b64 {R(c)}, v{vrd} offset:{8*c}')


def unpk(l):
    m = re.match(r'v_pk_(add|mul)_f32 v\[(\d+):\d+\], v\[(\d+):\d+\], v\[(\d+):\d+\](.*)', l)
    if not m: return [l]
    op, d, a, b, mod = m.group(1), int(m.group(2)), int(m.group(3)), int(m.group(4)), m.group(5).strip()
    if mod == '': return [f'v_{op}_f32 v{d}, v{a}, v{b}', f'v_{op}_f32 v{d+1}, v{a+1}, v{b+1}']
    if mod == 'op_sel:[0,1] op_sel_hi:[1,1]': return [f'v_{op}_f32 v{d}, v{a}, v{b+1}', f'v_{op}_f32 v{d+1}, v{a+1}, v{b+1}']
    raise ValueError(l)


class Fill:
    def __init__(self): self.q = []
    def add(self, pos, f): self.q.append((pos, f))
    def emit(self, k, p, n):
        c = 0
        while self.q and self.q[0][0] <= p and c < n:
            f = self.q.pop(0)[1]
            f() if callable(f) else k(f)
            c += 1
    def flush(self, k): self.emit(k, 10**9, 10**9)


def ph_g2(k, opt, DONE, vm0, fused, post=None, early=None):
    HI = k.label('hi')
    NZ = opt.get('NZ', 14); ZR = 96 - 4 * NZ
    T = 8; S = 24; Z1 = 32
    assert ZR >= 40
    ACC = lambda n, tt: 96 + 16 * (n & 1) + 4 * tt
    SLOT = [0, 1, 2, 3, 4, 0, 1]
    srd_from(k, 8, 40, 41, WS_Z2, Z2N_BYTES)
    k(f'''s_lshl_b32 s56, s36, 3
s_add_u32 s56, s56, s34
s_mul_i32 s56, s56, 57344
v_and_b32 v2, 63, v0''')
    if opt.get('warm'):
        k('v_lshlrev_b32 v4, 7, v2\ns_mov_b32 s42, s56')
        for i in range(7): k('buffer_load_dword v5, v4, s[8:11], s42 offen\ns_add_u32 s42, s42, 8192')
        k('s_waitcnt vmcnt(0)\ns_barrier\ns_sleep 127')
    st(k, 2, 2)
    if opt.get('clkm'): k('s_memtime s[76:77]'); k.clkm = 1
    if opt.get('zpf'):
        k(f'''v_lshrrev_b32 v4, 3, v2
v_and_b32 v5, 7, v2
v_lshlrev_b32 v5, 7, v5
v_lshl_add_u32 v4, v4, 13, v5
s_and_b32 s42, s35, 7
s_lshl_b32 s42, s42, 10
s_add_u32 s42, s42, s56
s_mov_b32 exec_hi, 0x00ffffff
buffer_load_dword v36, v4, s[8:11], s42 offen
s_mov_b32 exec_hi, -1''')
        vm0.issue('pf')

    def zload(q, vm):
        if q >= 56 or opt.get('noz'): return
        if q and q % 4 == 0: k('s_add_u32 s56, s56, 4096')
        if q == 40: k(f's_cmp_eq_u32 s36, 7\ns_cselect_b32 s56, {BIG}, s56')
        k(f'buffer_load_dwordx4 {vr(ZR+4*(q%NZ),4)}, v3, s[8:11], s56 offen offset:{1024*(q%4)}'); vm.issue(f'z{q}')
    N0 = opt.get('N0', NZ)
    for q in range(N0): zload(q, vm0)
    srd_from(k, 12, 40, 41, WS_Z1, A2_BYTES)
    srd_from(k, 16, 40, 41, WS_Z1 if opt.get('ain') else WS_A, A2_BYTES)
    srd_from(k, 24, 24, 25, 0, 4096)
    PW = opt.get('pw', 0); FZS = opt.get('fzs', 5)
    PWS = f'''s_lshl_b32 s47, s35, 1
s_lshr_b32 s42, s43, 1
s_add_u32 s47, s47, s42
s_lshl_b32 s47, s47, 3
s_add_u32 s47, s47, s36
s_lshl_b32 s47, s47, {FZS+1}
s_add_u32 s47, s47, {FLU}
v_bfe_u32 v40, v3, 4, 1
v_lshlrev_b32 v40, {FZS}, v40''' if PW else ''
    BADR = '''s_lshl_b32 s42, s43, 10
s_lshl_b32 s45, s35, 4
s_add_u32 s45, s45, s42
v_and_b32 v4, 8, v2
v_and_b32 v5, 3, v2
v_lshl_add_u32 v4, v5, 1, v4
v_bfe_u32 v5, v2, 2, 1
v_lshl_add_u32 v4, v5, 9, v4''' if G1S else '''s_and_b32 s42, s43, 1
s_lshl_b32 s42, s42, 3
s_lshl_b32 s45, s35, 4
s_add_u32 s45, s45, s42
s_and_b32 s42, s43, 2
s_lshl_b32 s42, s42, 10
s_add_u32 s45, s45, s42
v_bfe_u32 v4, v2, 2, 2
v_and_b32 v5, 3, v2
v_lshlrev_b32 v5, 9, v5
v_lshl_add_u32 v4, v4, 1, v5'''
    k(f'''s_and_b32 s37, s34, 3
s_bfe_u32 s43, s2, {"0x20006" if ROT else "0"}
s_xor_b32 s43, s43, s37
s_lshl_b32 s44, s35, 3
s_add_u32 s44, s44, s36
s_lshl_b32 s44, s44, 2
s_add_u32 s44, s44, s43
s_lshl_b32 s44, s44, 12
{BADR}
buffer_load_ushort v1, v4, s[24:27], s45 offen
v_lshlrev_b32 v2, 3, v2
s_lshl_b32 s42, s34, 10
v_add_u32 v4, s42, v3
v_add_u32 v5, 0x10000, v4
v_add_u32 v6, 0x20000, v4
s_lshl_b32 s42, s37, 13
v_add_u32 v7, s42, v3
s_mov_b32 s58, 0xffff0000
{PWS}
s_cmp_eq_u32 s36, 7
s_cselect_b32 s46, {BIG}, s44
s_cselect_b32 s59, 0, -1
s_cmp_ge_u32 s34, 4
s_cbranch_scc1 {HI}''')
    vm0.issue('b')

    def body(hi):
        import copy
        vm = copy.deepcopy(vm0); lg = Cnt('lgkmcnt', 15)
        F = Fill()

        def wr(n, tt):
            a = SLOT[n] * 32768 + tt * 8192
            k(f'ds_write_b128 v{4+a//65536}, {vr(ACC(n,tt),4)} offset:{a%65536}'); lg.issue(f'w{n}')

        def bar(n):
            x = lg.wait(f'w{n}')
            if x: k(x)
            k('s_barrier')

        def unit(tiles, zr, off, so, pos):
            nt = len(tiles)
            ops = []
            for ti, n in enumerate(tiles):
                for b in range(2):
                    base = SLOT[n] * 32768 + 4096 * b
                    if base >= 65536 - 32768 + 8192 and False: pass
                    for i in range(4):
                        def rd(base=base, i=i, n=n, b=b):
                            a = base + 1024 * i
                            k(f'ds_read_b128 {vr(T+4*i,4)}, v{RB[a//65536]} offset:{a%65536}'); lg.issue(f'r{n}_{b}_{i}')
                        ops.append(rd)
                    s = S + 4 * ti
                    def w01(n=n, b=b): k(lg.wait(f'r{n}_{b}_1') or '')
                    def w23(n=n, b=b): k(lg.wait(f'r{n}_{b}_3') or '')
                    ops.append(None); ops.append(None)
                    ops.append(w01)
                    d = s if b == 0 else T
                    ops += [f'v_pk_add_f32 {vr(d,2)}, {vr(T,2)}, {vr(T+4,2)}', f'v_pk_add_f32 {vr(d+2,2)}, {vr(T+2,2)}, {vr(T+6,2)}']
                    if b: ops += [f'v_pk_add_f32 {vr(s,2)}, {vr(s,2)}, {vr(T,2)}', f'v_pk_add_f32 {vr(s+2,2)}, {vr(s+2,2)}, {vr(T+2,2)}']
                    ops.append(w23)
                    ops += [f'v_pk_add_f32 {vr(T+8,2)}, {vr(T+8,2)}, {vr(T+12,2)}', f'v_pk_add_f32 {vr(T+10,2)}, {vr(T+10,2)}, {vr(T+14,2)}',
                            f'v_pk_add_f32 {vr(s,2)}, {vr(s,2)}, {vr(T+8,2)}', f'v_pk_add_f32 {vr(s+2,2)}, {vr(s+2,2)}, {vr(T+10,2)}']
            h = 2 * nt
            ops += [f'v_cvt_pk_bf16_f32 v{T+i}, v{S+2*i}, v{S+2*i+1}' for i in range(h)]
            ops += [f'v_lshlrev_b32 v{S+2*i}, 16, v{T+i}\nv_and_b32 v{S+2*i+1}, s58, v{T+i}' for i in range(h)]
            ops.append(lambda: k(vm.wait(f'y{off}') or ''))
            ops += [f'v_pk_add_f32 {vr(S+2*i,2)}, {vr(S+2*i,2)}, v[0:1] op_sel:[0,1] op_sel_hi:[1,1]' for i in range(h)]
            ops += [f'v_lshlrev_b32 v{T+8+2*i}, 16, v{zr+i}\nv_and_b32 v{T+9+2*i}, s58, v{zr+i}' for i in range(h)]
            ops += [f'v_cvt_pk_bf16_f32 v{T+i}, v{S+2*i}, v{S+2*i+1}' for i in range(h)]
            ops += [f'v_lshlrev_b32 v{S+2*i}, 16, v{T+i}\nv_and_b32 v{S+2*i+1}, s58, v{T+i}' for i in range(h)]
            ops += [f'v_pk_mul_f32 {vr(S+2*i,2)}, {vr(S+2*i,2)}, {vr(T+8+2*i,2)}' for i in range(h)]
            ops += [f'v_cvt_pk_bf16_f32 v{zr+i}, v{S+2*i}, v{S+2*i+1}' for i in range(h)]

            if tiles == [4, 5]: ops += [f'v_and_b32 v{zr+2}, s59, v{zr+2}', f'v_and_b32 v{zr+3}, s59, v{zr+3}']

            def sto():
                if nt == 2: k(f'buffer_store_dwordx4 {vr(zr,4)}, v3, s[16:19], {so} offen offset:{off} sc1')
                else: k(f'buffer_store_dwordx2 {vr(zr,2)}, v2, s[16:19], {so} offen offset:{off} sc1')
                vm.issue('s')
            ops.append(sto)
            out = []
            for o in ops:
                if o is None: out.append('')
                elif callable(o): out.append(o)
                else:
                    for l in o.split('\n'): out += unpk(l) if opt.get('upk', 1) else [l]
            return out

        def z1load(zr, off, so, nt):
            if nt == 2: k(f'buffer_load_dwordx4 {vr(zr,4)}, v3, s[12:15], {so} offen offset:{off}')
            else: k(f'buffer_load_dwordx2 {vr(zr,2)}, v2, s[12:15], {so} offen offset:{off}')
            vm.issue(f'y{off}')
        RB = [7, 38, 39]
        k('v_add_u32 v38, 0x10000, v7\nv_add_u32 v39, 0x20000, v7')
        ev = {}
        def at(p, f): ev.setdefault(p, []).append(f)
        for n in range(6):
            for tt in range(4): at(32 * (n + 1) + 3 + 2 * tt, lambda n=n, tt=tt: wr(n, tt))
        BP = opt.get('G2B', 16)
        at(64 + BP, lambda: bar(1)); at(128 + BP, lambda: bar(3)); at(192 + BP, lambda: bar(5))
        if opt.get('pp'):
            bs = [-1, 64 + BP, 128 + BP, 192 + BP, 224]
            k('s_setprio 3')
            for a, b in zip(bs[:-1], bs[1:]):
                for i in range(4):
                    pp = a + (b - a) * i // 4
                    if pp >= 0: at(pp, lambda i=i: k(f's_setprio {3-i}'))
        at(40, lambda: k((vm.wait('b') or '') + '\nv_lshlrev_b32 v1, 16, v1'))
        if opt.get('opf') is not None:
            def opf():
                k(f'''s_and_b32 s42, s35, 7
s_lshl_b32 s43, s36, 3
s_add_u32 s42, s42, s43
s_mul_i32 s42, s42, {WOB}
s_mul_i32 s43, s34, {18*128}
s_add_u32 s42, s42, s43
v_lshlrev_b32 v40, 3, v3
s_mov_b64 exec, 0x3ffff
buffer_load_ubyte v41, v40, s[28:31], s42 offen
s_mov_b64 exec, -1'''); vm.issue('opf')
            at(opt['opf'], opf)
        fq = []
        if PW:
            PZ = opt.get('pz', [30, 40, 64])
            at(PZ[0], lambda: k('s_barrier'))
            ZF = 'buffer_load_dword v41, v40, s[68:71], s47 offen sc1'
            def zf1(): k(ZF); vm.issue('zf')
            def zf2():
                LP = k.label('lp'); LD = k.label('ld')
                k(f'''{vm.wait('zf') or ''}
v_cmp_eq_u32 vcc, 0, v41
s_cbranch_vccz {LD}
s_mov_b32 s43, {SPIN}
{LP}:
{ZF}
s_waitcnt vmcnt(0)
v_cmp_eq_u32 vcc, 0, v41
s_cbranch_vccz {LD}
s_sub_u32 s43, s43, 1
s_cmp_lg_u32 s43, 0
s_cbranch_scc1 {LP}
{LD}:''')
            at(PZ[1] + (24 if hi else 0), zf1); at(PZ[2] + (24 if hi else 0), zf2)
        if not hi:
            at(PZ[2] + 1 if PW else 33, lambda: z1load(Z1, 0, 's44', 2))
            at(160, lambda: z1load(Z1, 2048, 's44', 2))
            fq.append((64 + BP + 1, lambda: unit([0, 1], Z1, 0, 's44', 0)))
            fq.append((192 + BP + 1, lambda: unit([4, 5], Z1, 2048, 's44', 0)))
        else:
            at(97, lambda: z1load(Z1, 1024, 's44', 2))
            at(190, lambda: z1load(Z1 + 4, 3072, 's46', 1))
            fq.append((128 + BP + 1, lambda: unit([2, 3], Z1, 1024, 's44', 0)))
        if post:
            po = list(post)[:opt.get('wol', [99, 99])[hi]]
            def pw(n):
                for _ in range(n):
                    if po: k(po.pop(0)); vm.issue('o')
            for j in range(1, 8):
                for tt in range(4): at(192 + 4 * j + tt, lambda: pw(1))
        R = opt.get('G2R', 3)
        cur = []
        p = 0
        nq = [N0]
        for n in range(7):
            if n in (1, 3, 5): st(k, 2, 3 + n // 2)
            for j in range(8):
                q = 8 * n + j
                x = vm.wait(f'z{q}')
                if x: k(x)
                if q == 0:
                    x = vm.wait('w')
                    if x: k(x)
                for tt in range(4):
                    acc = vr(ACC(n, tt), 4)
                    k(f'{MFMA} {acc}, {vr(ZR+4*(q%NZ),4)}, {ar(16*j+4*tt,4)}, {"0" if j == 0 else acc}')
                    if tt in (1, 3) and nq[0] < q + NZ + (tt == 3): zload(nq[0], vm); nq[0] += 1
                    for f in ev.get(p, []): f()
                    if fq and fq[0][0] <= p: cur += fq.pop(0)[1]()
                    for _ in range(R):
                        if cur:
                            o = cur.pop(0)
                            o() if callable(o) else k(o)
                    p += 1
        if opt.get('clkm'): k('s_memtime s[78:79]')
        st(k, 2, 6)
        EP = opt.get('g3e', 0)
        if early and EP == 0:
            for o in early: k(o); vm.issue('e')
        for tt in range(4): wr(6, tt)
        if early and EP == 1:
            for o in early: k(o); vm.issue('e')
        bar(6)
        if early and EP == 2:
            for o in early: k(o); vm.issue('e')
        st(k, 2, 7)
        if hi: cur = unit([6], Z1 + 4, 3072, 's46', 0)
        for o in cur: o() if callable(o) else k(o)
        st(k, 2, 8); st(k, 0, 7)
        k('s_setprio 0')
        k(f's_branch {DONE}')
        return len(vm.tags) - 1 - max([i for i, t in enumerate(vm.tags) if t == 'e'] + [-1])
    n0 = body(False)
    k(f'{HI}:')
    n1 = body(True)
    return min(n0, n1)


def gen_g2(opt):
    k = Kern('k3_kernel', 256, 512, 163840, nvgpr=128, nagpr=128)
    END = k.label('end')
    k(f'''s_cmp_ge_u32 s2, 256
s_cbranch_scc1 {END}
s_load_dwordx2 s[40:41], s[0:1], 80
s_load_dwordx2 s[24:25], s[0:1], 48
s_load_dwordx2 s[72:73], s[0:1], 40''')
    k.stamp(True)
    map_g2(k)
    k(f'''v_lshrrev_b32 v1, 6, v0
v_and_b32 v2, 63, v0
v_readfirstlane_b32 s34, v1
v_lshlrev_b32 v3, 4, v2''')
    w_vaddr(k, 4, 5)
    w_setup(k, 42, 43)
    k('s_waitcnt lgkmcnt(0)')
    vm = Cnt('vmcnt', 63)
    wb = Bulk(k, g2_wops())
    wb(32, vm, 4)
    k('s_waitcnt vmcnt(0)')
    w_trans(k, 4, 5)
    k('s_waitcnt lgkmcnt(0)\ns_barrier')
    st(k, 2, 1)
    ph_g2(k, opt, END, vm, False)
    k.finish(END)
    return k


WOB = 17920
WO8_BYTES = 64 * WOB


def gen_prep8(k, base_wg, END, nwv=5):
    WO = k.label('wo'); J = k.label('j'); WO2 = k.label('wo2'); SG = k.label('sg')
    k(f'''s_load_dwordx2 s[4:5], s[0:1], 32
s_load_dwordx2 s[8:9], s[0:1], 56
v_lshrrev_b32 v1, 6, v0
v_and_b32 v2, 63, v0
v_readfirstlane_b32 s35, v1
s_sub_u32 s33, s2, {base_wg}
s_mul_i32 s33, s33, {nwv}
s_add_u32 s33, s33, s35
v_and_b32 v4, 15, v2
v_lshrrev_b32 v5, 4, v2
v_lshlrev_b32 v3, 4, v2
s_lshl_b32 s47, s35, 13
s_cmp_ge_u32 s35, {nwv}
s_cbranch_scc1 {END}
s_cmp_ge_u32 s33, 440
s_cbranch_scc1 {END}
s_waitcnt lgkmcnt(0)''')
    srd_from(k, 16, 40, 41, WS_WI, WS_WO - WS_WI + WO8_BYTES)
    k(f'''s_mov_b32 s23, 0x00020000
s_cmp_ge_u32 s33, 280
s_cbranch_scc1 {WO}
s_mul_i32 s51, s33, 4682
s_lshr_b32 s51, s51, 16
s_mul_i32 s52, s51, 14
s_sub_u32 s52, s33, s52
s_movk_i32 s50, 3456
s_lshl_b32 s53, s51, 5
s_mov_b32 s57, 8
s_mov_b32 s58, 4
s_mov_b64 s[20:21], s[4:5]
s_mov_b32 s22, {640*3456}
s_branch {J}
{WO}:
s_sub_u32 s34, s33, 280
s_mul_i32 s51, s34, 13108
s_lshr_b32 s51, s51, 16
s_mul_i32 s52, s51, 5
s_sub_u32 s52, s34, s52
s_movk_i32 s50, 1280
s_lshr_b32 s54, s51, 2
s_and_b32 s55, s51, 3
s_mul_i32 s53, s54, 112
s_lshl_b32 s42, s55, 5
s_add_u32 s53, s53, s42
s_mov_b32 s57, 4
s_mov_b32 s58, 16
s_mov_b64 s[20:21], s[8:9]
s_mov_b32 s22, {864*1280}
{J}:
v_mul_u32_u24 v6, s50, v5
v_lshl_add_u32 v6, v4, 4, v6
s_mul_i32 s42, s53, s50
s_lshl_b32 s43, s52, 8
s_add_u32 s42, s42, s43
v_add_u32 v6, s42, v6
s_lshl_b32 s43, s50, 2''')
    for i in range(8):
        k(f's_add_u32 m0, s47, {1024*i}')
        k(f'buffer_load_dwordx4 v6, s[20:23], 0 offen lds')
        if i < 7: k(f'v_add_u32 v6, s43, v6')
    k(f'''v_mul_u32_u24 v6, s57, v5
v_lshrrev_b32 v7, 2, v4
v_add_u32 v6, v6, v7
v_and_b32 v7, 3, v4
v_lshlrev_b32 v7, 3, v7
v_lshl_add_u32 v6, v6, 8, v7
v_add_u32 v6, s47, v6
s_lshl_b32 s42, s58, 8
v_add_u32 v7, s42, v6
v_lshlrev_b32 v8, 3, v2
s_waitcnt vmcnt(0)''')
    prep_tail(k, END, WO2, SG)


def prep_tail(k, END, WO2, SG):
    PADW = gen_fft.OPT.get('padw', 0); NL = '\n'
    for i in range(8):
        k(f'ds_read_b64_tr_b16 {vr(16+4*i,2)}, v6 offset:{32*i}')
        k(f'ds_read_b64_tr_b16 {vr(18+4*i,2)}, v7 offset:{32*i}')
    st(k, 5, 6)
    k(f's_cmp_ge_u32 s33, 280\ns_cbranch_scc1 {WO2}')
    for i in range(8):
        if i in (1, 4): st(k, 5, 7 + i // 4)
        k(f'''s_lshl_b32 s42, s52, 3
s_add_u32 s42, s42, {i}
s_add_u32 s43, s42, 2
s_cmp_ge_u32 s42, 54
s_cselect_b32 s43, s43, s42
s_cselect_b32 s46, 0, 1
{f"s_cmp_ge_u32 s42, 110{NL}s_cselect_b32 s43, {48+i}, s43{NL}s_cselect_b32 s46, 1, s46" if PADW and i >= 6 else ""}
s_mul_i32 s44, s43, 9363
s_lshr_b32 s44, s44, 16
s_mul_i32 s45, s44, 7
s_sub_u32 s43, s43, s45
s_and_b32 s44, s44, 7
s_lshl_b32 s44, s44, 1
s_lshr_b32 s45, s43, 2
s_xor_b32 s45, s45, s46
s_add_u32 s44, s44, s45
s_mul_i32 s44, s44, 140
s_add_u32 s43, s43, s44
s_mul_i32 s44, s51, 7
s_add_u32 s43, s43, s44
s_lshl_b32 s43, s43, 10
{"" if PADW else f"s_cmp_lt_u32 s42, 108{NL}s_cselect_b32 s43, s43, {BIG}"}
s_waitcnt lgkmcnt({14-2*i})
buffer_store_dwordx4 {vr(16+4*i,4)}, v3, s[16:19], s43 offen''')
    k(f'''s_branch {END}
{WO2}:
s_mul_i32 s56, s54, {WOB}
s_add_u32 s56, s56, {WS_WO-WS_WI}
s_mul_i32 s42, s55, 5120
s_add_u32 s56, s56, s42
s_cmp_lt_u32 s53, 864
s_cselect_b32 s59, -1, 0
s_cmp_lt_u32 s53, 848
s_cselect_b32 s60, -1, 0
s_cmp_eq_u32 s55, 3
s_cbranch_scc1 {SG}''')
    for sg in range(2):
        for i in range(8):
            k(f'''s_lshl_b32 s42, s52, 3
s_add_u32 s42, s42, {i}
s_mul_i32 s44, s42, 13108
s_lshr_b32 s44, s44, 16
s_mul_i32 s45, s44, 5
s_sub_u32 s43, s42, s45
s_mul_i32 s44, s44, {8*WOB}
s_lshl_b32 s43, s43, {9 if sg else 10}
s_add_u32 s43, s43, s44
s_add_u32 s43, s43, s56
s_waitcnt lgkmcnt({14-2*i})''')
            for j in range(2 if sg else 4): k(f'v_and_b32 v{16+4*i+j}, s{59+j//2}, v{16+4*i+j}')
            if sg: k(f'buffer_store_dwordx2 {vr(16+4*i,2)}, v8, s[16:19], s43 offen')
            else: k(f'buffer_store_dwordx4 {vr(16+4*i,4)}, v3, s[16:19], s43 offen')
        k(f's_branch {END}')
        if sg == 0: k(f'{SG}:')


def prep_inl(k, part, LB, END, nv=0, hdr=None):
    WO = k.label('wo'); J = k.label('j'); WO2 = k.label('wo2'); SG = k.label('sg')
    txt = hdr or f"""s_lshl_b32 s33, s2, 1
s_add_u32 s33, s33, s34
s_sub_u32 s33, s33, 6
s_sub_u32 s47, s34, 6
s_lshl_b32 s47, s47, 13
s_add_u32 s47, s47, {LB}
"""
    txt += f"""v_and_b32 v4, 15, v2
v_lshrrev_b32 v5, 4, v2
s_mov_b32 s23, 0x00020000
s_cmp_ge_u32 s33, 280
s_cbranch_scc1 {WO}
s_mul_i32 s51, s33, 4682
s_lshr_b32 s51, s51, 16
s_mul_i32 s52, s51, 14
s_sub_u32 s52, s33, s52
s_movk_i32 s50, 3456
s_lshl_b32 s53, s51, 5
s_mov_b32 s57, 8
s_mov_b32 s58, 4
s_mov_b64 s[20:21], s[62:63]
s_mov_b32 s22, {640*3456}
s_branch {J}
{WO}:
s_sub_u32 s35, s33, 280
s_mul_i32 s51, s35, 13108
s_lshr_b32 s51, s51, 16
s_mul_i32 s52, s51, 5
s_sub_u32 s52, s35, s52
s_movk_i32 s50, 1280
s_lshr_b32 s54, s51, 2
s_and_b32 s55, s51, 3
s_mul_i32 s53, s54, 112
s_lshl_b32 s42, s55, 5
s_add_u32 s53, s53, s42
s_mov_b32 s57, 4
s_mov_b32 s58, 16
s_mov_b64 s[20:21], s[64:65]
s_mov_b32 s22, {864*1280}
{J}:
"""
    if part == 'A':
        txt += """v_mul_u32_u24 v6, s50, v5
v_lshl_add_u32 v6, v4, 4, v6
s_mul_i32 s42, s53, s50
s_lshl_b32 s43, s52, 8
s_add_u32 s42, s42, s43
v_add_u32 v6, s42, v6
s_lshl_b32 s43, s50, 2
"""
        for i in range(8):
            txt += f's_add_u32 m0, s47, {1024*i}\nbuffer_load_dwordx4 v6, s[20:23], 0 offen lds\n'
            if i < 7: txt += 'v_add_u32 v6, s43, v6\n'
        mp = dict(s33='s16', s35='s17', s42='s18', s43='s19', s47='s24', s50='s25', s51='s26', s52='s27', s53='s28', s54='s29', s55='s30', s57='s31', s58='s31', v4='v104', v5='v105', v6='v106')
        txt = re.sub(r'\b([sv]\d+)\b', lambda m: mp.get(m.group(1), m.group(1)), txt)
        k(txt)
        return
    k(txt)
    if not hdr: k(f's_cmp_ge_u32 s33, 440\ns_cbranch_scc1 {END}')
    srd_from(k, 16, 40, 41, WS_WI, WS_WO - WS_WI + WO8_BYTES)
    k(f"""v_mul_u32_u24 v6, s57, v5
v_lshrrev_b32 v7, 2, v4
v_add_u32 v6, v6, v7
v_and_b32 v7, 3, v4
v_lshlrev_b32 v7, 3, v7
v_lshl_add_u32 v6, v6, 8, v7
v_add_u32 v6, s47, v6
s_lshl_b32 s42, s58, 8
v_add_u32 v7, s42, v6
v_lshlrev_b32 v8, 3, v2""")
    st(k, 5, 4)
    k(f's_waitcnt vmcnt({nv})')
    st(k, 5, 5)
    prep_tail(k, END, WO2, SG)


BB = 20480


def gelu_pk(k, pk, n, x, p, out, vc, tr=False, sc=False):
    for i in range(0, n, 2):
        k(f'v_lshlrev_b32 v{x+i}, 16, v{pk+i//2}\nv_and_b32 v{x+i+1}, 0xffff0000, v{pk+i//2}')
    if sc:
        for i in range(n): k(f'v_mul_f32 v{p+i}, v{x+i}, v{x+i}')
        for i in range(n): k(f'v_fma_f32 v{p+i}, v{p+i}, {"s62" if GV else f"v{vc}"}, v{vc+1}')
        for i in range(n): k(f'v_mul_f32 v{p+i}, v{p+i}, v{x+i}')
    else:
        for i in range(0, n, 2):
            k(f'v_pk_mul_f32 {vr(p+i,2)}, {vr(x+i,2)}, {vr(x+i,2)}')
        for i in range(0, n, 2):
            if GV == 1: k(f'v_pk_fma_f32 {vr(p+i,2)}, {vr(p+i,2)}, s[62:63], {vr(vc,2)}')
            elif GV == 2: k(f'v_fma_f32 v{p+i}, v{p+i}, s62, v{vc+1}\nv_fma_f32 v{p+i+1}, v{p+i+1}, s62, v{vc+1}')
            else: k(f'v_pk_fma_f32 {vr(p+i,2)}, {vr(p+i,2)}, {vr(vc,2)}, {vr(vc,2)} op_sel:[0,0,1] op_sel_hi:[1,0,1]')
        for i in range(0, n, 2):
            k(f'v_pk_mul_f32 {vr(p+i,2)}, {vr(p+i,2)}, {vr(x+i,2)}')
    for i in range(n):
        k(f'v_exp_f32 v{p+i}, v{p+i}')
    if sc:
        for i in range(n): k(f'v_add_f32 v{p+i}, 1.0, v{p+i}')
    else:
        for i in range(0, n, 2):
            k(f'v_pk_add_f32 {vr(p+i,2)}, {vr(p+i,2)}, 1.0 op_sel_hi:[1,0]')
    for i in range(n):
        k(f'v_rcp_f32 v{p+i}, v{p+i}')
    if sc:
        for i in range(n): k(f'v_mul_f32 v{p+i}, v{p+i}, v{x+i}')
    else:
        for i in range(0, n, 2):
            k(f'v_pk_mul_f32 {vr(p+i,2)}, {vr(p+i,2)}, {vr(x+i,2)}')
    for i in range(0, n, 2):
        if tr:
            a = [0, 4, 1, 5][i // 2]
            k(f'v_cvt_pk_bf16_f32 v{out+i//2}, v{p+a}, v{p+a+2}')
        else: k(f'v_cvt_pk_bf16_f32 v{out+i//2}, v{p+i}, v{p+i+1}')


class Bulk:
    def __init__(self, k, ops): self.k = k; self.ops = list(ops)
    def copy(self): return Bulk(self.k, self.ops)
    def __call__(self, n, vm, va, tag='w'):
        for _ in range(n):
            if not self.ops: return
            self.k(self.ops.pop(0).replace('@', f'v{va}'))
            if vm is not None: vm.issue(tag)


def weave_in(k, i0, q, n, vm, va, tag='q'):
    body = k.lines[i0:]
    ok = []; full = True
    for i, l in enumerate(body):
        if l.startswith('s_mov_b64 exec, -1'): full = True
        elif 'exec' in l.split(',')[0] or 'saveexec' in l: full = False
        if full and l.startswith(('v_', 'ds_')) and not l.startswith('v_cmp') and 'vcc' not in l: ok.append(i)
    n = min(n, len(q.ops))
    if not n: return
    pos = {}
    for j in range(n):
        p = ok[(j * len(ok)) // n]
        pos[p] = pos.get(p, 0) + 1
    del k.lines[i0:]
    for i, l in enumerate(body):
        if i in pos: q(pos[i], vm, va, tag)
        k.lines.append(l)


def flag(k, srd, soff):
    k(f'''s_mov_b64 exec, 1
v_mov_b32 v8, 1
v_mov_b32 v9, 0
buffer_store_dword v8, v9, {sr(srd,4)}, {soff} offen sc1
s_mov_b64 exec, -1''')


def ph_k2a(k, opt, wb):
    RP = 144; NP = 11 * RP + 16
    TB2 = 0
    SKIP = k.label('skip')
    vm = Cnt('vmcnt', 63)
    k(f'''s_load_dwordx2 s[4:5], s[0:1], 0
s_load_dwordx2 s[40:41], s[0:1], 80
s_load_dwordx2 s[72:73], s[0:1], 40
s_load_dwordx2 s[80:81], s[0:1], 64''')
    tab_srd(k, 12)
    k(f'''s_and_b32 s3, s2, 7
s_lshl_b32 s3, s3, 5
s_lshr_b32 s33, s2, 3
s_add_u32 s3, s3, s33
s_lshl_b32 s33, s3, 6
s_add_u32 s33, s33, 32768
s_load_dwordx16 s[16:31], s[12:13], s33
v_lshrrev_b32 v1, 6, v0
v_and_b32 v2, 63, v0
v_readfirstlane_b32 s34, v1
v_lshlrev_b32 v3, 4, v2
s_movk_i32 s38, 0x4000
s_lshl_b32 s39, s34, 11
s_add_u32 m0, s39, {TB2}
s_add_u32 s38, s38, s39
s_cmp_lt_u32 s34, 5
s_cselect_b32 s38, s38, {BIG}
buffer_load_dwordx4 v3, s[12:15], s38 offen lds
buffer_load_dwordx4 v3, s[12:15], s38 offen offset:1024 lds''')
    vm.issue('t'); vm.issue('t')
    k(f'''s_mul_i32 s46, s3, {8*TP}
s_add_u32 s47, s46, {3*TP}
s_add_u32 s48, s46, {6*TP}
v_lshlrev_b32 v60, 2, v0
s_lshl_b32 s35, s34, 8
s_add_u32 s35, s35, s3
s_mul_i32 s35, s35, 1280
v_and_b32 v50, 15, v2
v_lshrrev_b32 v51, 4, v2
v_lshlrev_b32 v52, 6, v50
v_lshl_add_u32 v52, v51, 4, v52
v_add_u32 v53, 1024, v52
v_mov_b32 v54, 0x7fffffff
v_cmp_gt_u32 vcc, 4, v50
v_cndmask_b32 v53, v54, v53, vcc''')
    k(f'''s_mul_i32 s59, s34, {NP}
v_add_u32 v112, s59, v52
v_and_b32 v113, 3, v2
v_mul_u32_u24 v113, {NP}, v113
v_lshrrev_b32 v114, 2, v2
v_lshl_add_u32 v113, v114, 4, v113
s_cmp_ge_u32 s34, 5
s_cselect_b32 s59, {4*NP-5*256}, 0
s_lshl_b32 s60, s34, 8
s_add_u32 s59, s59, s60
v_add_u32 v113, s59, v113
s_mul_i32 s59, s3, 10240
s_lshl_b32 s60, s34, 10
s_add_u32 s59, s59, s60
s_add_u32 s49, s59, 8192
s_cmp_lt_u32 s34, 2
s_cselect_b32 s49, s49, {BIG}''')
    k(f'''s_and_b32 s58, s3, 15
s_mul_i32 s58, s58, {140*1024}
s_mul_i32 s57, s34, {18*1024}
s_min_u32 s57, s57, {122*1024}
s_add_u32 s56, s57, {BB}
s_add_u32 s57, s57, s58
s_waitcnt lgkmcnt(0)''')
    srd_from(k, 4, 4, 5, 0, X_BYTES)
    srd_from(k, 8, 40, 41, WS_U, TU_BYTES)
    for k2 in range(8):
        k(f'buffer_load_dword v{4+k2}, v60, s[8:11], s{46+k2//3} offen offset:{(k2%3)*TP+4*(k2&1)*(opt.get("sh",0)>0)}')
        vm.issue('u')
    k(f'''buffer_load_dwordx4 v[104:107], v52, s[4:7], s35 offen
buffer_load_dwordx4 v[108:111], v53, s[4:7], s35 offen''')
    vm.issue('x'); vm.issue('x')
    srd_from(k, 52, 40, 41, WS_H, X_BYTES)
    srd_from(k, 60, 40, 41, WS_HN, X_BYTES)
    srd_from(k, 64, 40, 41, WS_WI, WI_BYTES)
    if wb:
        w_setup(k, 42, 43); w_vaddr(k, 114, 115)
    if opt.get('ub'): k('s_barrier')
    bq = [] if opt.get('nob') else list(range(18))
    BP = opt.get('BP', [10, 8, 0, 0, 0, 0])
    assert sum(BP) >= 18

    def bulk(i):
        for _ in range(BP[i]):
            if bq:
                i = bq.pop(0)
                if i % 4 == 0:
                    k(f's_add_u32 m0, s56, {1024*i}')
                    if i: k('s_add_u32 s57, s57, 4096')
                k(f'buffer_load_dwordx4 v3, s[64:67], s57 offen offset:{1024*(i%4)} lds'); vm.issue('b')
            elif wb: wb(1, vm, 114)
    bulk(0)
    k(f'''v_mul_u32_u24 v55, 3277, v0
v_lshrrev_b32 v55, 16, v55
v_mul_u32_u24 v56, 20, v55
v_sub_u32 v56, v0, v56
v_mul_u32_u24 v57, {RP}, v56
v_lshl_add_u32 v57, v55, 2, v57
v_mov_b32 v58, {11*RP}
v_cmp_ge_u32 vcc, 10, v56
v_cndmask_b32 v57, v58, v57, vcc
v_sub_u32 v59, 20, v56
v_mul_u32_u24 v59, {RP}, v59
v_sub_u32 v61, 31, v55
v_lshl_add_u32 v59, v61, 2, v59
v_cmp_le_u32 vcc, 10, v56
v_cndmask_b32 v59, v58, v59, vcc
v_sub_u32 v61, 32, v55
v_lshlrev_b32 v61, 2, v61
v_cmp_eq_u32 vcc, 0, v56
v_cndmask_b32 v59, v59, v61, vcc
v_cmp_eq_u32 vcc, 0, v0
v_cndmask_b32 v59, v59, v58, vcc
v_cmp_eq_u32 vcc, 320, v0
v_cndmask_b32 v59, v59, v58, vcc
v_mov_b32 v40, 0x3f3504f3
v_min_u32 v62, 10, v50
v_mul_u32_u24 v62, {RP}, v62
v_lshl_add_u32 v62, v51, 4, v62
s_mul_i32 s42, s34, {NP}
v_add_u32 v62, s42, v62
v_and_b32 v63, 1, v2
v_lshlrev_b32 v63, 31, v63
v_or_b32 v63, 1.0, v63
''')
    k(vm.wait('t')); k('s_barrier')
    for i in range(10): k(f'ds_read_b128 {vr(64+4*i,4)}, v3 offset:{TB2+1024*i}')
    bulk(1)
    k('s_waitcnt lgkmcnt(0)\ns_barrier')
    k(f'''v_cmp_gt_u32 vcc, 321, v0
s_and_saveexec_b64 s[44:45], vcc''')
    k(vm.wait('u'))
    st(k, 1, 1); st(k, 0, 1)
    k(f'''s_cbranch_execz {SKIP}''')
    for k2 in range(8):
        k(f'v_lshlrev_b32 v{20+2*k2}, 16, v{4+k2}\nv_and_b32 v{21+2*k2}, 0xffff0000, v{4+k2}')
    for k2 in range(8):
        if k2 == 0:
            k('v_mov_b32 v4, v20\nv_mov_b32 v5, v21')
        else:
            smul(k, 4 + 2 * k2, 20 + 2 * k2, 16 + 2 * k2, 42 + 2 * (k2 & 1), conj=True)
    T = fft8(k, 4, 20, True, 40)
    for n in range(8):
        k(f'''v_cvt_pk_bf16_f32 v{4+2*n}, v{T[n]}, v{T[n]+1}
v_cvt_pk_bf16_f32 v{5+2*n}, v{T[n]}, -v{T[n]+1}
ds_write_b32 v57, v{4+2*n} offset:{n*NP}
ds_write_b32 v59, v{5+2*n} offset:{n*NP}''')
    k(f'''{SKIP}:
s_mov_b64 exec, -1''')
    bulk(2)
    k(f'''s_waitcnt lgkmcnt(0)
s_barrier
ds_read_b128 v[4:7], v62
ds_read_b128 v[8:11], v62 offset:64''')
    bulk(3)
    k(f'''s_waitcnt lgkmcnt(1)''')
    for u in range(2):
        if u == 1: k('s_waitcnt lgkmcnt(0)')
        for t in range(2):
            k(f'{MFMA} {vr(12+16*u+8*t,4)}, {vr(4+4*u,4)}, {vr(64+8*t,4)}, 0')
            k(f'{MFMA} {vr(16+16*u+8*t,4)}, {vr(4+4*u,4)}, {vr(68+8*t,4)}, 0')
    bulk(4)
    for i in range(0, 16, 2):
        k(f'v_pk_fma_f32 {vr(12+i,2)}, {vr(28+i,2)}, v[62:63], {vr(12+i,2)} op_sel:[0,1,0] op_sel_hi:[1,1,1]')
    for t in range(2):
        cmul_planar(k, 12 + 8 * t, 16 + 8 * t, 80 + 8 * t, 84 + 8 * t, 28, 32, 36)
        k(f'''v_cvt_pk_bf16_f32 v{4+4*t}, v28, v29
v_cvt_pk_bf16_f32 v{5+4*t}, v30, v31
v_cvt_pk_bf16_f32 v{6+4*t}, v32, v33
v_cvt_pk_bf16_f32 v{7+4*t}, v34, v35''')
    for v in range(2):
        for t in range(2):
            k(f'{MFMA} {vr(12+8*v+4*t,4)}, {vr(4+4*t,4)}, {vr(96+4*v,4)}, 0')
    bulk(5)
    k(vm.wait('x'))
    for i in range(8):
        k(f'v_lshlrev_b32 v{28+2*i}, 16, v{104+i}\nv_and_b32 v{29+2*i}, 0xffff0000, v{104+i}')
    for i in range(8):
        k(f'v_cvt_pk_bf16_f32 v{4+i}, v{12+2*i}, v{13+2*i}')
    for i in range(8):
        k(f'v_lshlrev_b32 v{12+2*i}, 16, v{4+i}\nv_and_b32 v{13+2*i}, 0xffff0000, v{4+i}')
    for i in range(8):
        k(f'v_pk_add_f32 {vr(12+2*i,2)}, {vr(12+2*i,2)}, {vr(28+2*i,2)}')
    for i in range(8):
        k(f'v_cvt_pk_bf16_f32 v{4+i}, v{12+2*i}, v{13+2*i}')
    k('''buffer_store_dwordx4 v[4:7], v52, s[52:55], s35 offen sc1
buffer_store_dwordx4 v[8:11], v53, s[52:55], s35 offen sc1''')
    for i in range(8):
        k(f'v_lshlrev_b32 v{12+2*i}, 16, v{4+i}\nv_and_b32 v{13+2*i}, 0xffff0000, v{4+i}')
    k('''v_pk_add_f32 v[28:29], v[12:13], v[14:15]
v_pk_mul_f32 v[30:31], v[12:13], v[12:13]
v_pk_add_f32 v[32:33], v[16:17], v[18:19]
v_pk_mul_f32 v[34:35], v[14:15], v[14:15]''')
    for i in range(2, 8):
        k(f'v_pk_fma_f32 {vr(30+4*(i&1),2)}, {vr(12+2*i,2)}, {vr(12+2*i,2)}, {vr(30+4*(i&1),2)}')
        if i >= 4:
            k(f'v_pk_add_f32 {vr(28+4*(i&1),2)}, {vr(28+4*(i&1),2)}, {vr(12+2*i,2)}')
    k('''v_pk_add_f32 v[28:29], v[28:29], v[32:33]
v_pk_add_f32 v[30:31], v[30:31], v[34:35]
v_add_f32 v28, v28, v29
v_add_f32 v30, v30, v31''')
    wave_reduce2(k, 28, 30, 36, 37)
    ln_stats(k, 36, 37, 640, 28, 30, 32)
    ln_apply(k, 12, 16, 28, 30, 40)
    srd_from(k, 68, 40, 41, WS_FL, FL_BYTES)
    k(f'''ds_write_b128 v112, v[40:43]
s_mov_b32 exec_lo, 0x000f000f
s_mov_b32 exec_hi, 0x000f000f
ds_write_b128 v112, v[44:47] offset:1024
s_mov_b64 exec, -1
s_waitcnt lgkmcnt(0)
s_barrier
ds_read_b128 v[40:43], v113
ds_read_b128 v[44:47], v113 offset:{4*NP+3*256}
s_waitcnt lgkmcnt(1)
buffer_store_dwordx4 v[40:43], v3, s[60:63], s59 offen sc1
s_waitcnt lgkmcnt(0)
buffer_store_dwordx4 v[44:47], v3, s[60:63], s49 offen sc1''')
    st(k, 1, 2); st(k, 0, 2)


def ph_k12(k, opt, wb):
    P = 1040; W0 = 16 * P; TB1 = 32 * P; TB2 = TB1 + 8192
    RP = 144; NP = 11 * RP + 16
    IDLE = k.label('idle'); JOIN = k.label('join'); SKIP = k.label('skip')
    vm = Cnt('vmcnt', 63)
    k(f"""s_load_dwordx4 s[4:7], s[0:1], 8
s_load_dwordx2 s[40:41], s[0:1], 80
s_load_dwordx2 s[72:73], s[0:1], 40
s_load_dwordx2 s[80:81], s[0:1], 64""")
    tab_srd(k, 12)
    k(f"""s_and_b32 s33, s2, 7
s_lshr_b32 s35, s2, 3
v_lshrrev_b32 v1, 6, v0
v_and_b32 v2, 63, v0
v_readfirstlane_b32 s34, v1
v_lshlrev_b32 v3, 4, v2
v_and_b32 v4, 15, v2
v_lshrrev_b32 v5, 4, v2
s_lshl_b32 s39, s34, 10
s_add_u32 m0, s39, {TB1}
s_add_u32 s38, s39, 0x2000
buffer_load_dwordx4 v3, s[12:15], s38 offen lds""")
    vm.issue('t1')
    IIM = 'v[112:115]'; IRE = 'v[114:117]'; FIM = 'v[116:119]'; FRE = 'v[118:121]'
    k(f"""v_mul_u32_u24 v6, {16*8*TP}, v4
v_lshl_add_u32 v6, v5, 4, v6
s_lshl_b32 s36, s34, 4
s_add_u32 s36, s36, s33
s_mul_i32 s45, s36, 642
s_mul_i32 s36, s36, {TP}
s_lshl_b32 s37, s35, 6
s_add_u32 s36, s36, s37
s_add_u32 s42, s36, {8*TP}
s_lshl_b32 s37, s35, 5
s_add_u32 s45, s45, s37
s_and_b32 s45, s45, -4
v_and_b32 v7, 1, v5
v_lshrrev_b32 v8, 1, v5
v_lshl_add_u32 v9, v4, 4, v7
v_mul_u32_u24 v9, {8*642}, v9
v_lshl_add_u32 v9, v8, 4, v9
s_and_b32 s37, s33, 1
s_lshl_b32 s37, s37, 2
s_sub_u32 s43, s36, s37
s_sub_u32 s44, s42, s37
s_lshl_b32 s3, s33, 5
s_add_u32 s3, s3, s35
s_cmp_lt_u32 s2, 168
s_cselect_b32 s43, s43, {BIG}
s_cselect_b32 s44, s44, {BIG}
s_cselect_b32 s45, s45, {BIG}
s_waitcnt lgkmcnt(0)""")
    srd_from(k, 60, 40, 41, WS_T, TU_BYTES)
    for i in range(2):
        k(f'buffer_load_dwordx4 {vr(16+4*i,4)}, v6, s[60:63], s{43+i} offen'); vm.issue(f'T{i}')
    k(f"""s_mov_b32 s52, s6
s_mov_b32 s53, s7
s_mov_b32 s6, {2048*642}
s_mov_b32 s7, 0x00020000
s_mov_b32 s54, {2048*642}
s_mov_b32 s55, 0x00020000""")
    WP = opt.get('k1wp', 0)

    def wld():
        k(f"""buffer_load_dwordx4 v[32:35], v9, s[4:7], s45 offen
buffer_load_dwordx4 v[38:41], v9, s[52:55], s45 offen
s_load_dwordx2 s[4:5], s[0:1], 0""")
        vm.issue('W'); vm.issue('W')
    if opt.get('ob1'): k('s_barrier')
    if WP == 0: wld()
    k(f"""s_min_u32 s39, s34, 4
s_lshl_b32 s39, s39, 11
s_add_u32 m0, s39, {TB2}
s_add_u32 s38, s39, 0x4000
buffer_load_dwordx4 v3, s[12:15], s38 offen lds
buffer_load_dwordx4 v3, s[12:15], s38 offen offset:1024 lds
s_lshl_b32 s38, s3, 6
s_add_u32 s38, s38, 32768
s_load_dwordx16 s[16:31], s[12:13], s38""")
    vm.issue('t2'); vm.issue('t2')
    srd_from(k, 8, 40, 41, WS_U, TU_BYTES)
    srd_from(k, 64, 40, 41, WS_WI, WI_BYTES)
    w_setup(k, 46, 47); w_vaddr(k, 124, 125)
    BR = opt.get('brot', 0)
    g1id(k, 58, 57)
    k(f"""s_and_b32 s58, s58, 15
s_mul_i32 s58, s58, {140*1024}
s_mul_i32 s57, s34, {14*1024}
s_add_u32 s57, s57, {31*1024}
s_min_u32 s57, s57, {(124 if BR else 126)*1024}
s_add_u32 s56, s57, {BB}
s_add_u32 s57, s57, s58""")
    if opt.get('hot'): k('s_sub_u32 s57, s57, s58\ns_mov_b32 s58, 0\ns_and_b32 s50, s50, 0x7fff\ns_and_b32 s51, s51, 0x7fff\ns_and_b32 s82, s82, 0x7fff')
    if opt.get('hotw'): k('s_and_b32 s50, s50, 0x7fff\ns_and_b32 s51, s51, 0x7fff\ns_and_b32 s82, s82, 0x7fff')
    if opt.get('hotb'): k('s_sub_u32 s57, s57, s58\ns_mov_b32 s58, 0')
    if BR: k('s_bfe_u32 s38, s3, 0x10004\ns_lshl_b32 s38, s38, 13')
    bops = []
    for i in range(0 if opt.get('nob') else (16 if BR else 14)):
        if BR:
            o = f's_xor_b32 s39, s38, {1024*(i-i%4)}\ns_add_u32 m0, s56, s39\ns_add_u32 s39, s39, s57\n'
            bops.append(o + f'buffer_load_dwordx4 v3, s[64:67], s39 offen offset:{1024*(i%4)} lds')
            continue
        o = f's_add_u32 m0, s56, {1024*(i-i%4)}\n'
        if i % 4 == 0 and i: o += 's_add_u32 s57, s57, 4096\n'
        bops.append(o + f'buffer_load_dwordx4 v3, s[64:67], s57 offen offset:{1024*(i%4)} lds')
    wops = wb.ops
    NWL = opt.get('nwl', 0)
    wpre = wops[:len(wops) - NWL]; wb.ops = wops[len(wops) - NWL:]
    order = opt.get('bo', 0)
    if order == 0: pre = wpre + bops
    elif order == 1: pre = bops + wpre
    else:
        pre = []
        a, b = list(wpre), list(bops)
        while a or b:
            pre += a[:8]; a = a[8:]
            pre += b[:4]; b = b[4:]
    import copy
    KP = opt.get('KP', [8, 4, 4, 4, 4, 4, 4, 4, 4, 99])
    CP = opt.get('CP', [0, 0, 0, 0, 0])
    NPRE = sum(KP) + sum(opt.get('KW', [0, 0, 0])[:2])
    post = pre[NPRE:]; pre = pre[:NPRE]
    assert len(post) <= sum(CP) + opt.get('KW', [0, 0, 0])[2], (len(post), CP)
    k(f's_cmp_ge_u32 s2, 168\ns_cbranch_scc1 {IDLE}')
    vi = copy.deepcopy(vm)
    q = Bulk(k, pre)

    def bulk(i): q(KP[i], vm, 124, 'q')
    bulk(0)
    k(f"""v_mul_u32_u24 v10, {4*P}, v5
v_lshl_add_u32 v10, v4, 2, v10
s_lshl_b32 s37, s34, 7
v_add_u32 v10, s37, v10
v_mul_u32_u24 v11, {8*P}, v8
v_lshl_add_u32 v11, v7, 6, v11
v_lshl_add_u32 v11, v4, 2, v11
v_add_u32 v11, s37, v11
v_lshlrev_b32 v12, 6, v4
v_lshl_add_u32 v12, v5, 4, v12
s_mul_i32 s37, s34, {2*P}
v_add_u32 v12, s37, v12
s_mov_b32 s47, 0x05040100
s_mov_b32 s48, 0x07060302""")
    for i in range(2):
        k(vm.wait(f'T{i}'))
        if i == 0: st(k, 4, 1)
        for j in range(4):
            k(f'ds_write_b32 v10, v{16+4*i+j} offset:{j*P+64*i}')
    if WP == 1: wld()
    bulk(1)
    k('s_waitcnt lgkmcnt(0)\ns_barrier')
    NC = 2
    KW = opt.get('KW', [0, 0, 0])
    i0 = len(k.lines)
    k(f"""ds_read_b128 v[96:99], v3 offset:{TB1}
ds_read_b128 v[16:19], v12
ds_read_b128 v[100:103], v3 offset:{TB1+1024}
ds_read_b128 v[20:23], v12 offset:{P}
ds_read_b128 v[104:107], v3 offset:{TB1+2048}
ds_read_b128 v[108:111], v3 offset:{TB1+3072}
ds_read_b128 v[118:121], v3 offset:{TB1+4096}
ds_read_b64 v[116:117], v3 offset:{TB1+5120}
ds_read_b128 v[112:115], v3 offset:{TB1+7168}""")
    bulk(2)
    k(f"""s_waitcnt lgkmcnt(7)
{MFMA} v[48:51], v[16:19], v[96:99], 0
s_waitcnt lgkmcnt(6)
{MFMA} v[52:55], v[16:19], v[100:103], 0
s_waitcnt lgkmcnt(5)
{MFMA} v[56:59], v[20:23], v[96:99], 0
{MFMA} v[60:63], v[20:23], v[100:103], 0""")
    bulk(3)
    k('s_waitcnt lgkmcnt(0)')

    def pack(c, re, im):
        k(f"""v_cvt_pk_bf16_f32 v{16+4*c}, v{re}, v{re+1}
v_cvt_pk_bf16_f32 v{17+4*c}, v{re+2}, v{re+3}
v_cvt_pk_bf16_f32 v{18+4*c}, v{im}, v{im+1}
v_cvt_pk_bf16_f32 v{19+4*c}, v{im+2}, v{im+3}""")
    for c in range(NC):
        cmul_planar(k, 48 + 8 * c, 52 + 8 * c, 104, 108, 80, 84, 88)
        pack(c, 80, 84)
        k(f'{MFMA} {vr(48+8*c,4)}, {FRE}, {vr(16+4*c,4)}, 0')
        k(f'{MFMA} {vr(52+8*c,4)}, {FIM}, {vr(16+4*c,4)}, 0')
    bulk(4)
    weave_in(k, i0, q, KW[0], vm, 124)
    k(vm.wait('W') or '')
    k(vm.wait('t2') or '')
    st(k, 4, 2)
    i0 = len(k.lines)
    for j in range(8):
        k(f'v_perm_b32 v{64+j}, v{38+j//2}, v{32+j//2}, s{47+(j&1)}')
        k(f'ds_write_b32 v11, v{64+j} offset:{W0+j*P}')
    bulk(5)
    k(f's_waitcnt lgkmcnt(0)\ns_barrier')
    for c in range(NC):
        k(f'ds_read_b128 {vr(32+4*c,4)}, v12 offset:{W0+c*P}')
    bulk(6)
    for c in range(NC):
        k(f's_waitcnt lgkmcnt({NC-1-c})')
        for r in range(4):
            k(f'v_lshlrev_b32 v{64+8*c+r}, 16, v{32+4*c+r}\nv_and_b32 v{68+8*c+r}, 0xffff0000, v{32+4*c+r}')
        cmul_planar(k, 48 + 8 * c, 52 + 8 * c, 64 + 8 * c, 68 + 8 * c, 80, 84, 88)
        pack(c, 80, 84)
        k(f'{MFMA} {vr(48+8*c,4)}, {vr(16+4*c,4)}, {IRE}, 0')
        k(f'{MFMA} {vr(52+8*c,4)}, {vr(16+4*c,4)}, {IIM}, 0')
    bulk(7)
    for c in range(NC):
        cmul_planar(k, 48 + 8 * c, 52 + 8 * c, 104, 108, 80, 84, 88, conj=True)
        pack(c, 80, 84)
        k(f'{MFMA} {vr(48+8*c,4)}, {IRE}, {vr(16+4*c,4)}, 0')
        k(f'{MFMA} {vr(52+8*c,4)}, {IIM}, {vr(16+4*c,4)}, 0')
    bulk(8)
    for c in range(NC):
        for r in range(4):
            k(f'v_cvt_pk_bf16_f32 v{16+4*c+r}, v{48+8*c+r}, v{52+8*c+r}')
        k(f'ds_write_b128 v12, {vr(16+4*c,4)} offset:{c*P}')
    weave_in(k, i0, q, KW[1], vm, 124)
    k('s_waitcnt lgkmcnt(0)\ns_barrier')
    for i in range(2):
        for j in range(4):
            k(f'ds_read_b32 v{16+4*i+j}, v10 offset:{j*P+64*i}')
    for i in range(10): k(f'ds_read_b128 {vr(64+4*i,4)}, v3 offset:{TB2+1024*i}')
    for i in range(2):
        k(f's_waitcnt lgkmcnt({14-4*i})')
        k(f'buffer_store_dwordx4 {vr(16+4*i,4)}, v6, s[8:11], {["s36","s42"][i]} offen sc1')
    st(k, 4, 3)
    if opt.get('ob2'): k('s_barrier')
    q(99, vm, 124, 'q')
    k(f's_branch {JOIN}\n{IDLE}:')
    if WP: k('s_load_dwordx2 s[4:5], s[0:1], 0')
    if opt.get('it2'):
        WM = opt.get('wte', 0)
        k(f'''s_sub_u32 s43, s35, 21
s_and_b32 s44, s33, 1
s_mul_i32 s44, s44, 11
s_add_u32 s43, s43, s44
s_mul_i32 s44, s34, 22
s_add_u32 s44, s44, s43
s_add_u32 s44, s44, {64*WM}
s_add_u32 s45, s44, 176
s_lshr_b32 s46, s33, 1
s_lshl_b32 s46, s46, 18
v_lshlrev_b32 v10, 7, v2''')
        for r in (44, 45)[:2 if 64*(4-WM) > 176 else 1]:
            k(f'''s_and_b32 s47, s{r}, 31
s_lshl_b32 s47, s47, 13
s_add_u32 s47, s47, s46
s_bfe_u32 s48, s{r}, 0x10005
s_lshl_b32 s48, s48, 22
s_add_u32 s47, s47, s48
s_lshr_b32 s48, s{r}, 6
s_lshl_b32 s48, s48, 20
s_add_u32 s47, s47, s48
s_cmp_lt_u32 s{r}, 256
s_cselect_b32 s47, s47, {BIG}
buffer_load_ubyte v11, v10, s[72:75], s47 offen''')
            vi.issue('q')
            if opt['it2'] > 1: k('s_barrier')
    if opt.get('itd'): k(f's_sleep {opt["itd"]}')
    if opt.get('it'):
        k(f'''s_sub_u32 s43, s35, 21
s_and_b32 s44, s33, 1
s_mul_i32 s44, s44, 11
s_add_u32 s43, s43, s44
s_lshl_b32 s44, s43, 3
s_add_u32 s44, s44, s34
s_mul_i32 s45, s34, 22
s_add_u32 s45, s45, s43
s_add_u32 s45, s45, 176
s_lshr_b32 s46, s33, 1
s_lshl_b32 s46, s46, 18
v_lshlrev_b32 v10, 7, v2''')
        for r in (44, 45):
            k(f'''s_and_b32 s47, s{r}, 31
s_lshl_b32 s47, s47, 13
s_lshr_b32 s48, s{r}, 5
s_lshl_b32 s48, s48, 20
s_add_u32 s47, s47, s48
s_add_u32 s47, s47, s46
buffer_load_ubyte v11, v10, s[72:75], s47 offen''')
            vi.issue('q')
        if opt.get('bt'):
            k('''s_load_dwordx2 s[44:45], s[0:1], 48
s_mov_b32 s46, 4096
s_mov_b32 s47, 0x00020000
v_lshlrev_b32 v12, 6, v2
s_waitcnt lgkmcnt(0)
buffer_load_ubyte v11, v12, s[44:47], 0 offen''')
            vi.issue('q')
        if opt['it'] > 1: k('s_barrier')
    if opt.get('iw'):
        wp = [o for o in pre if o in wpre]; bp = [o for o in pre if o not in wpre]
        assert len(bp) == len(bops)
        IW = opt['iw']
        nb0 = opt.get('ib0', 0)
        Bulk(k, bp[:nb0])(99, vi, 124, 'q')
        Bulk(k, wp)(99, vi, 124, 'q')
        k('s_mov_b32 s46, s50\ns_mov_b32 s47, s51')
        Bulk(k, wpre[len(wp):len(wp) + IW])(99, vi, 124, 'q')
        k('s_mov_b32 s50, s46\ns_mov_b32 s51, s47')
        Bulk(k, bp[nb0:])(99, vi, 124, 'q')
    else:
        q = Bulk(k, pre)
        q(99, vi, 124, 'q')
    k(vi.wait('t2'))
    k('s_barrier')
    for i in range(10): k(f'ds_read_b128 {vr(64+4*i,4)}, v3 offset:{TB2+1024*i}')
    if opt.get('idl'): k(f's_sleep {opt["idl"]}')
    k(f'{JOIN}:')
    ph_k2b(k, opt, post, NWL)


def ph_k2b(k, opt, post, NWL=0, fused=False):
    RP = 144; NP = 11 * RP + 16
    SKIP = k.label('skip')
    KW = opt.get('KW', [0, 0, 0])
    CP = opt.get('CP', [0, 0, 0, 0, 0])
    vm = Cnt('vmcnt', 63); vm.issue('q')
    if opt.get('g3s'):
        srd_from(k, 60, 40, 41, WS_A, A2_BYTES)
        k('''s_lshl_b32 s46, s2, 14
s_lshl_b32 s47, s34, 11
s_add_u32 s46, s46, s47
v_mov_b32 v28, -1
v_mov_b32 v29, -1
v_mov_b32 v30, -1
v_mov_b32 v31, -1
buffer_store_dwordx4 v[28:31], v3, s[60:63], s46 offen sc1
buffer_store_dwordx4 v[28:31], v3, s[60:63], s46 offen offset:1024 sc1''')
        vm.issue('f'); vm.issue('f')
    k(f"""s_mul_i32 s46, s3, {8*TP}
s_add_u32 s47, s46, {3*TP}
s_add_u32 s48, s46, {6*TP}
v_lshlrev_b32 v60, 2, v0
s_lshl_b32 s35, s34, 8
s_add_u32 s35, s35, s3
s_mul_i32 s35, s35, 1280
v_and_b32 v50, 15, v2
v_lshrrev_b32 v51, 4, v2
v_lshlrev_b32 v52, 6, v50
v_lshl_add_u32 v52, v51, 4, v52
v_add_u32 v53, 1024, v52
v_mov_b32 v54, 0x7fffffff
v_cmp_gt_u32 vcc, 4, v50
v_cndmask_b32 v53, v54, v53, vcc
s_lshl_b32 s42, s34, 12
s_min_u32 s42, s42, {27*1024}
s_add_u32 m0, s42, {BB}
s_add_u32 s42, s42, s58
s_waitcnt lgkmcnt(0)
s_barrier""")
    if not fused: srd_from(k, 4, 4, 5, 0, X_BYTES)
    for i in range(0 if opt.get('nob') else 4):
        k(f'buffer_load_dwordx4 v3, s[64:67], s42 offen offset:{1024*i} lds'); vm.issue('b')
    if opt.get('xs'):
        k(f"""v_add_u32 v54, s32, v52
v_mov_b32 v108, 0
v_mov_b32 v109, 0
v_mov_b32 v110, 0
v_mov_b32 v111, 0
ds_read_b128 v[104:107], v54 offset:8192
s_mov_b64 exec, vcc
ds_read_b128 v[108:111], v54 offset:{8192+1024}
s_mov_b64 exec, -1""")
    else:
        k(f"""buffer_load_dwordx4 v[104:107], v52, s[4:7], s35 offen
buffer_load_dwordx4 v[108:111], v53, s[4:7], s35 offen""")
        vm.issue('x'); vm.issue('x')
    HP0 = opt.get('hp0', 10240)
    if G1S:
        k(f"""s_mul_i32 s59, s34, {NP}
v_add_u32 v112, s59, v52""")
        for j, d in enumerate((113, 115)):
            k(f"""v_add_u32 v116, {512*j}, v0
v_mul_u32_u24 v117, 410, v116
v_lshrrev_b32 v117, 16, v117
v_mul_u32_u24 v118, 160, v117
v_sub_u32 v116, v116, v118
v_and_b32 v118, 1, v116
v_lshl_add_u32 v117, v117, 1, v118
v_mul_u32_u24 v117, {NP}, v117
v_lshrrev_b32 v116, 1, v116
v_lshl_add_u32 v{d}, v116, 4, v117""")
        k(f"""s_mul_i32 s59, s3, {HP}
s_lshl_b32 s60, s34, 10
s_add_u32 s59, s59, s60
s_add_u32 s49, s59, 8192
s_cmp_lt_u32 s34, 2
s_cselect_b32 s49, s49, {BIG}""")
    else: k(f"""s_mul_i32 s59, s34, {NP}
v_add_u32 v112, s59, v52
v_and_b32 v113, 3, v2
v_mul_u32_u24 v113, {NP}, v113
v_lshrrev_b32 v114, 2, v2
v_lshl_add_u32 v113, v114, 4, v113
s_cmp_ge_u32 s34, 5
s_cselect_b32 s59, {4*NP-5*256}, 0
s_lshl_b32 s60, s34, 8
s_add_u32 s59, s59, s60
v_add_u32 v113, s59, v113
s_mul_i32 s59, s3, {HP0}
s_lshl_b32 s60, s34, 10
s_add_u32 s59, s59, s60
s_add_u32 s49, s59, 8192
s_cmp_lt_u32 s34, 2
s_cselect_b32 s49, s49, {BIG}""")
    srd_from(k, 52, 80, 81, 0, X_BYTES) if opt.get('hout') else srd_from(k, 52, 40, 41, WS_H, X_BYTES)
    srd_from(k, 60, 40, 41, WS_HN, 0x300000)
    k(f"""v_mul_u32_u24 v55, 3277, v0
v_lshrrev_b32 v55, 16, v55
v_mul_u32_u24 v56, 20, v55
v_sub_u32 v56, v0, v56
v_mul_u32_u24 v57, {RP}, v56
v_lshl_add_u32 v57, v55, 2, v57
v_mov_b32 v58, {11*RP}
v_cmp_ge_u32 vcc, 10, v56
v_cndmask_b32 v57, v58, v57, vcc
v_sub_u32 v59, 20, v56
v_mul_u32_u24 v59, {RP}, v59
v_sub_u32 v61, 31, v55
v_lshl_add_u32 v59, v61, 2, v59
v_cmp_le_u32 vcc, 10, v56
v_cndmask_b32 v59, v58, v59, vcc
v_sub_u32 v61, 32, v55
v_lshlrev_b32 v61, 2, v61
v_cmp_eq_u32 vcc, 0, v56
v_cndmask_b32 v59, v59, v61, vcc
v_cmp_eq_u32 vcc, 0, v0
v_cndmask_b32 v59, v59, v58, vcc
v_cmp_eq_u32 vcc, 320, v0
v_cndmask_b32 v59, v59, v58, vcc
v_mov_b32 v40, 0x3f3504f3
v_min_u32 v62, 10, v50
v_mul_u32_u24 v62, {RP}, v62
v_lshl_add_u32 v62, v51, 4, v62
s_mul_i32 s42, s34, {NP}
v_add_u32 v62, s42, v62
v_and_b32 v63, 1, v2
v_lshlrev_b32 v63, 31, v63
v_or_b32 v63, 1.0, v63
""")
    WT0 = opt.get('wt0', 0) if not opt.get('now') else 0
    assert not (WT0 and NWL)
    if WT0:
        k(vm.wait('q'))
        w_trans(k, 44, 45, list(range(WT0)))
    st(k, 4, 4)
    LP = k.label('lp'); LD = k.label('ld'); SK0 = k.label('sk0'); STUB = k.label('stub'); GO = k.label('go')
    q = Bulk(k, post)
    UNI = KW[2] > 0
    L0 = k.label('l0'); L1 = None
    if UNI:
        assert not WT0
        k(f"""v_cmp_gt_u32 vcc, 321, v0
v_cndmask_b32 v57, v58, v57, vcc
v_cndmask_b32 v59, v58, v59, vcc
s_mov_b64 exec, vcc
s_mov_b32 s43, {SPIN}
s_cmp_lt_u32 s34, 6
s_cbranch_scc1 {L0}
s_waitcnt vmcnt(0)
{f"s_sleep {opt['c67']}" if opt.get('c67') else ""}""")
        if opt.get('wt67'):
            k('s_mov_b64 exec, -1')
            w_trans(k, 44, 45, [0, 1, 2, 3], 42, True)
        k(f's_branch {LD}\n{L0}:')
        if opt.get('wte'):
            L1 = k.label('l1')
            for k2 in range(8):
                k(f'buffer_load_dword v{4+k2}, v60, s[8:11], s{46+k2//3} offen offset:{(k2%3)*TP+(0 if opt.get("ip") else 4*(k2&1))} sc1')
            k('s_mov_b64 exec, -1')
            w_trans(k, 44, 45, list(range(opt['wte'])), 42, True)
            k(f's_mov_b64 exec, vcc\ns_branch {L1}')
        k(f'{LP}:')
    else:
      k(f"""v_cmp_gt_u32 vcc, 321, v0
s_mov_b64 s[44:45], vcc
s_cmp_lt_u32 s34, 6
s_cbranch_scc1 {GO}
s_waitcnt vmcnt(0)""")
      if opt.get('c67'): k(f's_sleep {opt["c67"]}')
      q.copy()(CP[0], None, 124)
      k(f"""s_mov_b64 exec, 0
s_branch {SK0 if WT0 else SKIP}
{GO}:
s_mov_b64 exec, s[44:45]
s_mov_b32 s43, {SPIN}
{LP}:""")
    for k2 in range(8):
        k(f'buffer_load_dword v{4+k2}, v60, s[8:11], s{46+k2//3} offen offset:{(k2%3)*TP+(0 if opt.get("ip") else 4*(k2&1))} sc1')
    if L1: k(f'{L1}:')
    CHK = """v_and_b32 v12, v4, v5
v_and_b32 v13, v6, v7
v_and_b32 v14, v8, v9
v_and_b32 v15, v10, v11
v_and_b32 v12, v12, v13
v_and_b32 v14, v14, v15
v_and_b32 v12, 1, v12
v_and_b32 v12, v12, v14
v_cmp_eq_u32 vcc, 0, v12""" if opt.get('ip') else """v_max3_u32 v12, v4, v5, v6
v_max3_u32 v13, v7, v8, v9
v_max3_u32 v12, v12, v10, v11
v_max_u32 v12, v12, v13
v_cmp_eq_u32 vcc, -1, v12"""
    k(f"""s_waitcnt vmcnt(0)
{CHK}
s_cbranch_vccz {LD}
{f"s_sleep {opt['usl']}" if opt.get('usl') else ""}
s_sub_u32 s43, s43, 1
s_cmp_lg_u32 s43, 0
s_cbranch_scc1 {LP}
{LD}:""")
    st(k, 4, 5); st(k, 0, 1)
    if UNI:
        k('s_mov_b64 exec, -1')
        if opt.get('xs') or opt.get('wte') or opt.get('wt67'): k('s_waitcnt lgkmcnt(0)')
        if opt.get('ob3'): k('s_barrier')
        q(CP[0], None, 124)
        i0 = len(k.lines)
    elif CP[0] and post:
        k('s_mov_b64 exec, -1')
        q(CP[0], None, 124)
        k('s_mov_b64 exec, s[44:45]')
    for k2 in range(8):
        k(f'v_lshlrev_b32 v{20+2*k2}, 16, v{4+k2}\nv_and_b32 v{21+2*k2}, 0xffff0000, v{4+k2}')
    for k2 in range(8):
        if k2 == 0:
            k('v_mov_b32 v4, v20\nv_mov_b32 v5, v21')
        else:
            smul(k, 4 + 2 * k2, 20 + 2 * k2, 16 + 2 * k2, 42 + 2 * (k2 & 1), conj=True)
    T = fft8(k, 4, 20, True, 40)
    if WT0:
        k(f'{SK0}:\ns_waitcnt lgkmcnt(0)\ns_barrier\ns_cbranch_execz {SKIP}')
    for n in range(8):
        k(f"""v_cvt_pk_bf16_f32 v{4+2*n}, v{T[n]}, v{T[n]+1}
v_cvt_pk_bf16_f32 v{5+2*n}, v{T[n]}, -v{T[n]+1}
ds_write_b32 v57, v{4+2*n} offset:{n*NP}
ds_write_b32 v59, v{5+2*n} offset:{n*NP}""")
    k(f"""{SKIP}:
s_mov_b64 exec, -1""")
    q(CP[1], None, 124)
    k(f"""s_waitcnt lgkmcnt(0)
s_barrier
ds_read_b128 v[4:7], v62
ds_read_b128 v[8:11], v62 offset:64""")
    if opt.get('kw0'): i0 = len(k.lines)
    q(CP[2], None, 124)
    k('s_waitcnt lgkmcnt(1)')
    for u in range(2):
        if u == 1: k('s_waitcnt lgkmcnt(0)')
        for t in range(2):
            k(f'{MFMA} {vr(12+16*u+8*t,4)}, {vr(4+4*u,4)}, {vr(64+8*t,4)}, 0')
            k(f'{MFMA} {vr(16+16*u+8*t,4)}, {vr(4+4*u,4)}, {vr(68+8*t,4)}, 0')
    q(CP[3], None, 124)
    for i in range(0, 16, 2):
        k(f'v_pk_fma_f32 {vr(12+i,2)}, {vr(28+i,2)}, v[62:63], {vr(12+i,2)} op_sel:[0,1,0] op_sel_hi:[1,1,1]')
    for t in range(2):
        cmul_planar(k, 12 + 8 * t, 16 + 8 * t, 80 + 8 * t, 84 + 8 * t, 28, 32, 36)
        k(f"""v_cvt_pk_bf16_f32 v{4+4*t}, v28, v29
v_cvt_pk_bf16_f32 v{5+4*t}, v30, v31
v_cvt_pk_bf16_f32 v{6+4*t}, v32, v33
v_cvt_pk_bf16_f32 v{7+4*t}, v34, v35""")
    for v in range(2):
        for t in range(2):
            k(f'{MFMA} {vr(12+8*v+4*t,4)}, {vr(4+4*t,4)}, {vr(96+4*v,4)}, 0')
    q(CP[4], None, 124)
    if UNI and opt.get('kwe', 1) == 0: weave_in(k, i0, q, KW[2], None, 124)
    for i in range(8):
        k(f'v_lshlrev_b32 v{28+2*i}, 16, v{104+i}\nv_and_b32 v{29+2*i}, 0xffff0000, v{104+i}')
    for i in range(8):
        k(f'v_cvt_pk_bf16_f32 v{4+i}, v{12+2*i}, v{13+2*i}')
    for i in range(8):
        k(f'v_lshlrev_b32 v{12+2*i}, 16, v{4+i}\nv_and_b32 v{13+2*i}, 0xffff0000, v{4+i}')
    for i in range(8):
        k(f'v_pk_add_f32 {vr(12+2*i,2)}, {vr(12+2*i,2)}, {vr(28+2*i,2)}')
    for i in range(8):
        k(f'v_cvt_pk_bf16_f32 v{4+i}, v{12+2*i}, v{13+2*i}')
    HS = """buffer_store_dwordx4 v[4:7], v52, s[52:55], s35 offen sc1
buffer_store_dwordx4 v[8:11], v53, s[52:55], s35 offen sc1"""
    if not opt.get('hd'): k(HS)
    for i in range(8):
        k(f'v_lshlrev_b32 v{12+2*i}, 16, v{4+i}\nv_and_b32 v{13+2*i}, 0xffff0000, v{4+i}')
    k("""v_pk_add_f32 v[28:29], v[12:13], v[14:15]
v_pk_mul_f32 v[30:31], v[12:13], v[12:13]
v_pk_add_f32 v[32:33], v[16:17], v[18:19]
v_pk_mul_f32 v[34:35], v[14:15], v[14:15]""")
    for i in range(2, 8):
        k(f'v_pk_fma_f32 {vr(30+4*(i&1),2)}, {vr(12+2*i,2)}, {vr(12+2*i,2)}, {vr(30+4*(i&1),2)}')
        if i >= 4:
            k(f'v_pk_add_f32 {vr(28+4*(i&1),2)}, {vr(28+4*(i&1),2)}, {vr(12+2*i,2)}')
    k("""v_pk_add_f32 v[28:29], v[28:29], v[32:33]
v_pk_add_f32 v[30:31], v[30:31], v[34:35]
v_add_f32 v28, v28, v29
v_add_f32 v30, v30, v31""")
    wave_reduce2(k, 28, 30, 36, 37)
    ln_stats(k, 36, 37, 640, 28, 30, 32)
    ln_apply(k, 12, 16, 28, 30, 40)
    if UNI and opt.get('kwe', 1) == 1: weave_in(k, i0, q, KW[2], None, 124)
    assert not q.ops
    if not fused: srd_from(k, 68, 40, 41, WS_FL, FL_BYTES)
    k(f"""ds_write_b128 v112, v[40:43]
s_mov_b32 exec_lo, 0x000f000f
s_mov_b32 exec_hi, 0x000f000f
ds_write_b128 v112, v[44:47] offset:1024
s_mov_b64 exec, -1
s_waitcnt lgkmcnt(0)
s_barrier
ds_read_b128 v[40:43], v113
{"ds_read_b128 v[44:47], v115" if G1S else f"ds_read_b128 v[44:47], v113 offset:{4*NP+3*256}"}
s_waitcnt lgkmcnt(1)
buffer_store_dwordx4 v[40:43], v3, s[60:63], s59 offen sc1
s_waitcnt lgkmcnt(0)
buffer_store_dwordx4 v[44:47], v3, s[60:63], s49 offen sc1
v_mov_b32 v114, v124""")
    if opt.get('hd'): k(HS)
    st(k, 4, 6); st(k, 0, 2)


def poll2(k, loads, chk, sc, sl=0):
    LP = k.label('lp'); LD = k.label('ld')
    k(f'''s_mov_b32 s{sc}, {SPIN}
{LP}:
{loads}
s_waitcnt vmcnt(0)
{chk}
s_cbranch_vccz {LD}
{f"s_sleep {sl}" if sl else ""}
s_sub_u32 s{sc}, s{sc}, 1
s_cmp_lg_u32 s{sc}, 0
s_cbranch_scc1 {LP}
{LD}:''')


def flag_poll(k, sf, sp, n, sl=0, d0=0, part=3, fs=None):
    if part & 1:
        k(f'''v_lshrrev_b32 v10, 4, v3
v_lshlrev_b32 v10, {FS if fs is None else fs}, v10
s_mov_b64 exec, 1
v_mov_b32 v8, 1
buffer_store_dword v8, v10, s[68:71], s{sf} offen sc1''')
    if part & 2:
        k(f's_mov_b64 exec, {hex((1 << n) - 1)}')
        if d0: k(f's_sleep {d0}')
        poll2(k, f'buffer_load_dword v9, v10, s[68:71], s{sp} offen sc1', 'v_cmp_eq_u32 vcc, 0, v9', 43, sl)
    k('s_mov_b64 exec, -1')


def ph_g1(k, opt, DONE, wb, fused=False):
    L = {(g, z): k.label(f'g{g}z{z}') for g in range(2) for z in range(2)}
    WQ = opt.get('WQ', [32, 0, 8, 15])
    k(f's_lshl_b32 s49, s3, {FS}')
    g1id(k, 3, 35)
    k(f'''s_lshr_b32 s35, s3, 4
s_bfe_u32 s36, s3, 0x30001
s_and_b32 s37, s3, 1
s_and_b32 s38, s34, 3
s_lshl_b32 s39, s35, 2
s_add_u32 s39, s39, s38
v_and_b32 v2, 63, v0
v_and_b32 v6, 15, v2
v_lshrrev_b32 v7, 4, v2''')
    if wb: k('v_mov_b32 v88, v114')
    HP0 = opt.get('hp0', 10240)
    srd_from(k, 8, 40, 41, WS_HN, 0x300000)
    k(f'''v_lshlrev_b32 v9, 3, v2
v_lshrrev_b32 v8, 2, v6
v_and_b32 v10, 3, v6
v_mul_u32_u24 v1, {HP0}, v8
v_lshl_add_u32 v1, v7, 6, v1
v_lshl_add_u32 v1, v10, 4, v1
v_add_u32 v2, {4*HP0}, v1
s_lshr_b32 s44, s39, 1
s_mul_i32 s44, s44, {8*HP0}
s_and_b32 s45, s38, 1
s_mul_i32 s45, s45, 5120
s_add_u32 s44, s44, s45
s_add_u32 s45, s44, 4096
v_add_u32 v4, 57344, v3
v_add_u32 v5, 114688, v3''')
    srd_from(k, 12, 40, 41, WS_Z1, A2_BYTES)
    srd_from(k, 16, 40, 41, WS_Z2, Z2N_BYTES)
    srd_from(k, 20, 40, 41, WS_PX, PX_BYTES)
    k(f'''s_and_b32 s47, s3, 15
s_lshl_b32 s47, s47, 4
s_add_u32 s47, s47, s35
s_lshl_b32 s47, s47, {FS}
s_add_u32 s47, s47, {FL2}
s_lshr_b32 s42, s34, 2
s_cmp_eq_u32 s42, s37
s_cselect_b32 s43, 1, 0
s_lshl_b32 s42, s42, 1
s_add_u32 s42, s42, s43
s_cmp_eq_u32 s42, 1
s_cbranch_scc1 {L[0,1]}
s_cmp_eq_u32 s42, 2
s_cbranch_scc1 {L[1,0]}
s_cmp_eq_u32 s42, 3
s_cbranch_scc1 {L[1,1]}''')
    PD = opt.get('PD', 5); NA = PD + 1
    assert 40 + 8 * NA <= 88
    AR = lambda kk, u: vr(40 + 8 * (kk % NA) + 4 * u, 4)
    ACC = lambda u, n: 96 + ((n & 3) * 2 + u) * 4

    def aload(kk, u, v):
        if kk >= 20: return
        k(f'buffer_load_dwordx4 {AR(kk,u)}, v{1+u}, s[8:11], s{44+kk//16} offen offset:{256*(kk%16)}'); v.issue(f'a{kk}')
    NB = 8; LA = opt.get('LA', 6)
    SC = opt.get('gsc', 1)

    def tail(z2, wq, rest):
        if not fused:
            k(f's_branch {DONE}'); return
        if opt.get('pw'):
            assert not rest and not wq.ops
            F2S = opt.get('f2s', 5); FZS = opt.get('fzs', 5)
            if z2:
                k(f'''s_lshl_b32 s47, s36, 3
s_lshr_b32 s42, s39, 4
s_add_u32 s47, s47, s42
s_and_b32 s42, s39, 1
s_lshl_b32 s42, s42, 2
s_add_u32 s47, s47, s42
s_lshl_b32 s47, s47, 4
s_and_b32 s42, s39, 14
s_add_u32 s47, s47, s42
s_add_u32 s47, s47, s37
s_lshl_b32 s47, s47, {F2S}
s_add_u32 s47, s47, {FL2}''')
            else:
                k(f'''s_lshl_b32 s47, s39, 4
s_and_b32 s42, s3, 15
s_add_u32 s47, s47, s42
s_lshl_b32 s47, s47, {FZS}
s_add_u32 s47, s47, {FLU}''')
            map_g2(k)
            k(f'''s_load_dwordx2 s[24:25], s[0:1], 48
s_lshl_b32 s44, s36, 3
s_add_u32 s44, s44, s34
s_lshl_b32 s44, s44, {4+F2S}
s_add_u32 s44, s44, {FL2}
s_waitcnt vmcnt(0)''')
            st(k, 0, 5)
            flag_poll(k, 47, 44, 16, opt.get('g2sl', 0), opt.get('g2d', 0) if z2 else 0, fs=F2S)
            k(f's_waitcnt lgkmcnt(0)\ns_branch {DONE}')
            return
        map_g2(k)
        k('s_load_dwordx2 s[24:25], s[0:1], 48')
        if not z2 and not wq.ops and rest and opt.get('wte', 1) and not W128:
            w_trans(k, 12, 13, rest); rest = []
        k('s_waitcnt vmcnt(0)')
        st(k, 0, 5)
        if z2: k('s_setprio 0')
        if not z2 and not wq.ops and rest and not W128:
            w_trans(k, 12, 13, rest); rest = []
        if W128: assert not wq.ops and not (z2 and rest)
        if not z2: wq(99, None, 88)
        k('s_barrier')
        if z2: wq(99, None, 88)
        NP2 = k.label('np2'); NP3 = k.label('np3')
        if not z2:
            k(f's_cmp_lg_u32 s38, 0\ns_cbranch_scc1 {NP2}')
            flag_poll(k, 47, 44, 32, part=1)
            k(f'{NP2}:')
        if rest:
            k('s_waitcnt vmcnt(0)')
            w_trans(k, 12, 13, rest)
        if not z2:
            k(f'''s_cmp_lg_u32 s38, 0
s_cbranch_scc1 {NP3}
s_lshl_b32 s44, s36, {5+FS}
s_add_u32 s44, s44, {FL2}''')
            flag_poll(k, 47, 44, 32, opt.get('g2sl', 0), opt.get('g2d', 0) if not rest else 0, part=2)
            k(f'{NP3}:')
        k('s_waitcnt lgkmcnt(0)\ns_barrier')
        k(f's_branch {DONE}')

    def path(grp, z2):
        vm = Cnt('vmcnt', 63)
        wq = wb.copy() if wb else None
        tiles = [0, 1, 2, 3] if grp == 0 else [4, 5, 6]
        NT = len(tiles)
        order = [(kk, n) for kk in range(20) for n in tiles]
        k('s_waitcnt vmcnt(0)\ns_barrier')
        st(k, 1, 3); st(k, 4, 7)
        rest = [] if opt.get('now') else list(range(opt.get('wt0', 0), 4))
        n1 = opt.get('wt1', [0, 0])[z2] if not wq.ops else 0
        if W128: n1 = min(opt['wt1'][z2], (32 - len(wq.ops)) // 8)
        now, rest = rest[:n1], rest[n1:]
        if z2:
            NPL = k.label('npl'); NPM = k.label('npm')
            k(f'''s_setprio {opt.get('zprio', 2)}
s_lshl_b32 s42, s35, {4+FS}
s_mov_b32 s46, s49
s_cmp_lg_u32 s38, 0
s_cbranch_scc1 {NPM}''')
            flag_poll(k, 46, 42, 16, part=1)
            k(f'{NPM}:')
            w_trans(k, 12, 13, now, 48)
            k(f's_cmp_lg_u32 s38, 0\ns_cbranch_scc1 {NPL}')
            flag_poll(k, 46, 42, 16, opt.get('g1sl', 0), opt.get('g1d', 0) if not now else 0, part=2)
            k(f'{NPL}:')
        else:
            w_trans(k, 12, 13, now, 48)
            if wq: wq(WQ[0], vm, 88)
        k('s_waitcnt lgkmcnt(0)\ns_barrier')
        st(k, 4, 8)
        st(k, 1, 4); st(k, 0, 3)
        if not z2 and opt.get('zd'): k(f's_sleep {opt["zd"]}')
        for kk in range(PD):
            for u in range(2): aload(kk, u, vm)

        def rdB(f):
            if f >= len(order): return
            kk, n = order[f]
            a = BB + kk * 7168 + n * 1024
            k(f'ds_read_b128 {vr(8+4*(f%NB),4)}, v{3+a//57344} offset:{a%57344}')
        for f in range(LA): rdB(f)
        for f, (kk, n) in enumerate(order):
            x = vm.wait(f'a{kk}')
            if x: k(x)
            if n == tiles[0] and kk in (0, 10): st(k, 1, 5 + kk // 10)
            rem = min(LA - 1, len(order) - 1 - f)
            k(f's_waitcnt lgkmcnt({rem})')
            b = vr(8 + 4 * (f % NB), 4)
            for u in range(2):
                acc = vr(ACC(u, n), 4)
                c = '0' if kk == 0 else acc
                if z2: k(f'{MFMA} {acc}, {AR(kk,u)}, {b}, {c}')
                else: k(f'{MFMA} {acc}, {b}, {AR(kk,u)}, {c}')
            rdB(f + LA)
            i = f % NT
            if i < 2: aload(kk + PD, i, vm)
            if wq and kk >= WQ[3]:
                c = WQ[1 + z2]
                wq((c * (i + 1)) // NT - (c * i) // NT, vm, 88)
        st(k, 1, 7); st(k, 0, 4); st(k, 4, 9)
        k(f'v_mov_b32 v4, {fbits(C1)}\nv_mov_b32 v5, {fbits(C0)}')
        if not z2:
            k(f'''s_lshr_b32 s42, s39, 1
s_lshl_b32 s42, s42, 3
s_add_u32 s42, s42, s36
s_lshl_b32 s42, s42, 1
s_and_b32 s43, s39, 1
s_add_u32 s42, s42, s43
s_lshl_b32 s42, s42, 13
s_add_u32 s43, s42, 4096
v_lshrrev_b32 v2, 1, v3''')
            units = [(u, p) for p in ((0, 1) if grp == 0 else (2,)) for u in range(2)]
            for i, (u, p) in enumerate(units):
                o = 12 + 4 * (i & 1)
                for h in range(2):
                    a = ACC(u, 2 * p + h)
                    k(f'v_cvt_pk_bf16_f32 v{8+2*h}, v{a}, v{a+1}\nv_cvt_pk_bf16_f32 v{9+2*h}, v{a+2}, v{a+3}')
                gelu_pk(k, 8, 8, 20, 28, o, 4, sc=(SC > 1))
                k(f'buffer_store_dwordx4 {vr(o,4)}, v3, s[12:15], s{42+u} offen offset:{1024*p} sc1')
            if grp == 1:
                for u in range(2):
                    a = ACC(u, 6)
                    k(f'v_cvt_pk_bf16_f32 v{8+2*u}, v{a}, v{a+1}\nv_cvt_pk_bf16_f32 v{9+2*u}, v{a+2}, v{a+3}')
                gelu_pk(k, 8, 8, 20, 28, 12, 4, sc=(SC > 1))
                for u in range(2):
                    k(f'buffer_store_dwordx2 {vr(12+2*u,2)}, v2, s[12:15], s{42+u} offen offset:3072 sc1')
            st(k, 1, 8)
            tail(False, wq, rest)
            return
        S = 72; Q = 80
        SK = k.label('sk')
        for i, n in enumerate(tiles):
            if n == 5: k(f's_cmp_eq_u32 s36, 7\ns_cbranch_scc1 {SK}')
            for r in range(4): k(f'v_cvt_pk_bf16_f32 v{8+r}, v{ACC(0,n)+r}, v{ACC(1,n)+r}')
            k(f'''v_permlane32_swap_b32 v8, v10
v_permlane32_swap_b32 v9, v11
v_permlane16_swap_b32 v8, v9
v_permlane16_swap_b32 v10, v11''')
            gelu_pk(k, 8, 8, 20, 28, 12, 4, tr=True, sc=(SC > 0))
            d = 40 + 8 * i
            for r in range(4):
                k(f'v_lshlrev_b32 v{d+2*r}, 16, v{12+r}\nv_and_b32 v{d+1+2*r}, 0xffff0000, v{12+r}')
            for e in range(8):
                if i == 0: k(f'v_mul_f32 v{Q+e}, v{d+e}, v{d+e}\nv_mov_b32 v{S+e}, v{d+e}')
                else: k(f'v_add_f32 v{S+e}, v{S+e}, v{d+e}\nv_fmac_f32 v{Q+e}, v{d+e}, v{d+e}')
        k(f'{SK}:')
        V = [0] * 16
        for e in range(8):
            V[2 * e] = S + e; V[2 * e + 1] = Q + e
        for i in range(8):
            k(f'v_add_f32_dpp v{V[i]}, v{V[i]}, v{V[i]} row_ror:8 row_mask:0xf bank_mask:0x3')
        for i in range(8):
            k(f'v_add_f32_dpp v{V[i]}, v{V[i+8]}, v{V[i+8]} row_ror:8 row_mask:0xf bank_mask:0xc')
        for i in range(4):
            k(f'v_add_f32_dpp v{V[i]}, v{V[i]}, v{V[i]} row_half_mirror row_mask:0xf bank_mask:0x5')
        for i in range(4):
            k(f'v_add_f32_dpp v{V[i]}, v{V[i+4]}, v{V[i+4]} row_half_mirror row_mask:0xf bank_mask:0xa')
        for m in ('quad_perm:[1,0,3,2]', 'quad_perm:[2,3,0,1]'):
            for i in range(4):
                k(f'v_add_f32_dpp v{V[i]}, v{V[i]}, v{V[i]} {m} row_mask:0xf bank_mask:0xf')
        k(f'''s_mov_b32 vcc_lo, 0xaaaaaaaa
s_mov_b32 vcc_hi, 0xaaaaaaaa
v_cndmask_b32 v8, v{V[0]}, v{V[1]}, vcc
v_cndmask_b32 v9, v{V[2]}, v{V[3]}, vcc
s_mov_b32 vcc_lo, 0xcccccccc
s_mov_b32 vcc_hi, 0xcccccccc
v_cndmask_b32 v8, v8, v9, vcc
s_lshl_b32 s42, s39, 12
s_and_b32 s43, s3, 15
s_lshl_b32 s43, s43, 8
s_add_u32 s43, s43, s42
v_lshrrev_b32 v2, 2, v3
buffer_store_dword v8, v2, s[20:23], s43 offen sc1
v_lshrrev_b32 v9, 2, v6
v_and_b32 v10, 3, v6
v_lshlrev_b32 v9, 8, v9
v_lshl_add_u32 v9, v7, 6, v9
v_lshl_add_u32 v1, v10, 4, v9''')
        st(k, 1, 8)
        LP = k.label('lp'); LD = k.label('ld')
        k(f'''s_lshl_b32 s44, s36, 3
s_lshr_b32 s45, s39, 4
s_add_u32 s44, s44, s45
s_and_b32 s45, s39, 1
s_lshl_b32 s45, s45, 2
s_add_u32 s44, s44, s45
s_mul_i32 s44, s44, 56
s_bfe_u32 s45, s39, 0x30001
s_add_u32 s44, s44, s45
s_add_u32 s44, s44, {8*tiles[0]}
s_lshl_b32 s44, s44, 10
v_mov_b32 v4, {fbits(1.0/864)}
s_mov_b32 s43, {SPIN}''')
        if rest and wq and not wq.ops and opt.get('wtp', 1):
            k('s_waitcnt vmcnt(1)')
            w_trans(k, 8, 9, rest, 46); rest = []
        elif opt.get('pxd'): k(f"s_sleep {opt['pxd']}")
        k(f'{LP}:')
        for i in range(4): k(f'buffer_load_dwordx4 {vr(8+4*i,4)}, v1, s[20:23], s42 offen offset:{1024*i} sc1')
        k('s_waitcnt vmcnt(2)')
        k('v_max3_u32 v24, v8, v9, v10\nv_max3_u32 v25, v11, v12, v13\nv_max3_u32 v24, v24, v14, v15')
        for r in range(4): k(f'v_add_f32 v{28+r}, v{8+r}, v{12+r}')
        k('s_waitcnt vmcnt(0)')
        k('''v_max3_u32 v25, v25, v16, v17
v_max3_u32 v24, v24, v18, v19
v_max3_u32 v25, v25, v20, v21
v_max3_u32 v24, v24, v22, v23
v_max_u32 v24, v24, v25
v_cmp_eq_u32 vcc, -1, v24''')
        for r in range(4): k(f'v_add_f32 v{32+r}, v{16+r}, v{20+r}')
        k(f'''s_cbranch_vccz {LD}
{f"s_sleep {opt['pxs']}" if opt.get('pxs') else ""}
s_sub_u32 s43, s43, 1
s_cmp_lg_u32 s43, 0
s_cbranch_scc1 {LP}
{LD}:''')
        st(k, 1, 9); st(k, 0, 9)
        for r in range(4): k(f'v_add_f32 v{28+r}, v{28+r}, v{32+r}')
        for m in ('row_ror:4', 'row_ror:8'):
            for r in range(4): k(f'v_add_f32_dpp v{28+r}, v{28+r}, v{28+r} {m} row_mask:0xf bank_mask:0xf')
        for r in range(4): k(f'v_mul_f32 v{28+r}, v{28+r}, v4')
        k(f'''v_fma_f32 v29, -v28, v28, v29
v_fma_f32 v31, -v30, v30, v31
v_max_f32 v29, 0, v29
v_max_f32 v31, 0, v31
v_cvt_pk_bf16_f32 v12, v28, v30
v_cvt_pk_bf16_f32 v13, v29, v31
v_lshlrev_b32 v8, 16, v12
v_and_b32 v9, 0xffff0000, v12
v_lshlrev_b32 v10, 16, v13
v_and_b32 v11, 0xffff0000, v13
v_add_f32 v10, 0x3727c5ac, v10
v_add_f32 v11, 0x3727c5ac, v11
v_cvt_pk_bf16_f32 v13, v10, v11
v_lshlrev_b32 v10, 16, v13
v_and_b32 v11, 0xffff0000, v13
v_sqrt_f32 v10, v10
v_sqrt_f32 v11, v11''')
        for e in range(8):
            k(f'v_mov_b32_dpp v{16+e}, v{8+(e&1)} quad_perm:[{e>>1},{e>>1},{e>>1},{e>>1}] row_mask:0xf bank_mask:0xf')
        k(f'''v_cvt_pk_bf16_f32 v13, v10, v11
v_lshlrev_b32 v10, 16, v13
v_and_b32 v11, 0xffff0000, v13
v_rcp_f32 v10, v10
v_rcp_f32 v11, v11''')
        for i in range(NT):
            d = 40 + 8 * i
            for e in range(0, 8, 2):
                k(f'v_pk_add_f32 {vr(d+e,2)}, {vr(d+e,2)}, {vr(16+e,2)} neg_lo:[0,1] neg_hi:[0,1]')
            if i == 0:
                for e in range(8):
                    k(f'v_mov_b32_dpp v{24+e}, v{10+(e&1)} quad_perm:[{e>>1},{e>>1},{e>>1},{e>>1}] row_mask:0xf bank_mask:0xf')
            o = 72 + 4 * i
            for r in range(4): k(f'v_cvt_pk_bf16_f32 v{o+r}, v{d+2*r}, v{d+2*r+1}')
            for r in range(4): k(f'v_lshlrev_b32 v{d+2*r}, 16, v{o+r}\nv_and_b32 v{d+1+2*r}, 0xffff0000, v{o+r}')
            for e in range(0, 8, 2):
                k(f'v_pk_mul_f32 {vr(d+e,2)}, {vr(d+e,2)}, {vr(24+e,2)}')
            for r in range(4): k(f'v_cvt_pk_bf16_f32 v{o+r}, v{d+2*r}, v{d+2*r+1}')
            k(f'buffer_store_dwordx4 {vr(o,4)}, v3, s[16:19], s44 offen sc1')
            if i < NT - 1: k('s_add_u32 s44, s44, 8192')
        tail(True, wq, rest)
    for g in range(2):
        for z in range(2):
            k(f'{L[g,z]}:')
            path(g, z)


def ph_g1s(k, opt, DONE, wb):
    assert W128 and not (wb and wb.ops)
    LH = k.label('h1')
    k(f's_lshl_b32 s49, s3, {FS}')
    g1id(k, 3, 35)
    k(f'''s_lshr_b32 s35, s3, 4
s_bfe_u32 s36, s3, 0x30001
s_and_b32 s37, s3, 1
s_and_b32 s38, s34, 3
s_lshl_b32 s39, s35, 2
s_add_u32 s39, s39, s38
s_lshr_b32 s46, s34, 2
v_and_b32 v2, 63, v0
v_and_b32 v6, 15, v2
v_lshrrev_b32 v7, 4, v2''')
    srd_from(k, 8, 40, 41, WS_HN, HN_BYTES)
    k(f'''v_lshrrev_b32 v8, 3, v6
v_and_b32 v10, 3, v6
v_lshl_add_u32 v8, v8, 2, v10
v_mul_u32_u24 v1, {HP}, v8
v_lshl_add_u32 v1, v7, 5, v1
v_bfe_u32 v10, v6, 2, 1
v_lshl_add_u32 v1, v10, 4, v1
s_lshr_b32 s44, s39, 1
s_mul_i32 s44, s44, {8*HP}
s_and_b32 s45, s38, 1
s_lshl_b32 s45, s45, 1
s_add_u32 s45, s45, s46
s_mul_i32 s45, s45, 2560
s_add_u32 s44, s44, s45
v_add_u32 v4, 57344, v3
v_add_u32 v5, 114688, v3''')
    k(f'''v_lshrrev_b32 v8, 2, v6
v_and_b32 v9, 1, v6
v_lshl_add_u32 v8, v8, 1, v9
v_lshlrev_b32 v8, 2, v8
v_lshl_add_u32 v8, v7, 5, v8
v_lshrrev_b32 v10, 1, v6
v_lshlrev_b32 v10, 7, v10
v_lshl_add_u32 v10, v7, 5, v10
v_lshl_add_u32 v10, v9, 4, v10
v_lshl_add_u32 v2, v10, 16, v8
v_mov_b32 v6, {fbits(C1)}
v_mov_b32 v7, {fbits(C0)}''')
    srd_from(k, 12, 40, 41, WS_Z1, A2_BYTES)
    srd_from(k, 16, 40, 41, WS_Z2, Z2N_BYTES)
    srd_from(k, 20, 40, 41, WS_PX, PX_BYTES)
    k(f'''s_and_b32 s47, s3, 15
s_lshl_b32 s53, s47, 7
s_lshl_b32 s47, s47, 4
s_add_u32 s47, s47, s35
s_lshl_b32 s47, s47, {FS}
s_add_u32 s47, s47, {FL2}
s_lshl_b32 s52, s39, 1
s_add_u32 s52, s52, s46
s_lshl_b32 s52, s52, 11
s_add_u32 s53, s53, s52
s_lshl_b32 s54, s36, 3
s_lshr_b32 s42, s39, 4
s_add_u32 s54, s54, s42
s_and_b32 s42, s39, 1
s_lshl_b32 s42, s42, 2
s_add_u32 s54, s54, s42
s_mul_i32 s54, s54, 56
s_bfe_u32 s42, s39, 0x30001
s_add_u32 s54, s54, s42
s_lshl_b32 s42, s37, 5
s_add_u32 s54, s54, s42
s_lshl_b32 s54, s54, 1
s_add_u32 s54, s54, s46
s_lshl_b32 s54, s54, 9
s_lshr_b32 s55, s39, 1
s_lshl_b32 s55, s55, 3
s_add_u32 s55, s55, s36
s_lshl_b32 s55, s55, 1
s_and_b32 s42, s39, 1
s_add_u32 s55, s55, s42
s_lshl_b32 s55, s55, 1
s_add_u32 s55, s55, s46
s_lshl_b32 s55, s55, 12
s_cmp_eq_u32 s36, 7
s_cselect_b32 s48, 0, -1
s_lshl_b32 s42, s35, {4+FS}
s_waitcnt vmcnt(0)
s_barrier''')
    st(k, 1, 3); st(k, 4, 7)
    W4 = k.label('w4'); WJ = k.label('wj')
    NOW = opt.get('now', 0)
    WT2 = opt.get('wt2', 0)
    k(f's_cmp_ge_u32 s34, 4\ns_cbranch_scc1 {W4}')
    if not NOW: w_trans(k, 12, 13, [0, 1, 2, 3], 43)
    k(f's_branch {WJ}\n{W4}:\ns_cmp_lg_u32 s34, 4\ns_cbranch_scc1 {WJ}')
    flag_poll(k, 49, 42, 16, opt.get('g1sl', 0), opt.get('g1d', 0))
    k(f'{WJ}:\ns_waitcnt lgkmcnt(0)\ns_barrier')
    st(k, 4, 8); st(k, 1, 4); st(k, 0, 3)
    AR = lambda kk: 32 + 4 * kk
    PD = opt.get('PD', 8)

    def aload(kk, vm=None):
        if kk >= 20: return
        k(f'buffer_load_dwordx4 {vr(AR(kk),4)}, v1, s[8:11], s44 offen offset:{128*kk}')
        if vm: vm.issue(f'a{kk}')
    for kk in range(PD): aload(kk)
    if WT2 and not NOW:
        W5 = k.label('w5')
        k(f's_cmp_lt_u32 s34, 4\ns_cbranch_scc1 {W5}')
        w_trans(k, 12, 13, list(range(WT2)), 43)
        k(f's_waitcnt lgkmcnt(0)\n{W5}:')
    k(f's_cmp_eq_u32 s37, 1\ns_cbranch_scc1 {LH}')
    LA = opt.get('LA', 5); LA1 = opt.get('LA1', 6)
    SC = opt.get('gsc', 0)
    ACC = lambda i: 112 + 4 * i

    def path(hh):
        vm = Cnt('vmcnt', 63); lg = Cnt('lgkmcnt', 15)
        for kk in range(PD): vm.issue(f'a{kk}')
        tz = [0, 1, 2, 3] if hh == 0 else [4, 5, 6]
        t1 = [4, 5, 6] if hh == 0 else [0, 1, 2, 3]

        def gpass(tiles, z2, free, la, ev=None, order=None, fill=None, R=0):
            order = order or [(kk, i) for kk in range(20) for i in range(len(tiles))]
            last = {}
            for f, (kk, i) in enumerate(order): last[kk] = f
            buf = {}; nr = [0]; pend = []

            def reads(f):
                while nr[0] < len(order) and nr[0] <= f + la and free:
                    q = nr[0]; kk, i = order[q]
                    b = free.pop(0); buf[q] = b
                    a = BB + kk * 7168 + tiles[i] * 1024
                    k(f'ds_read_b128 {vr(b,4)}, v{3+a//57344} offset:{a%57344}'); lg.issue(f'b{z2}_{q}')
                    nr[0] += 1
            reads(-1)
            for f, (kk, i) in enumerate(order):
                x = vm.wait(f'a{kk}')
                if x: k(x)
                if z2 and i == 0 and kk in (0, 10): st(k, 1, 5 + kk // 10)
                x = lg.wait(f'b{z2}_{f}')
                if x: k(x)
                acc = vr(ACC(i), 4); c = '0' if kk == 0 else acc
                b = vr(buf[f], 4); a = vr(AR(kk), 4)
                k(f'{MFMA} {acc}, {a}, {b}, {c}' if z2 else f'{MFMA} {acc}, {b}, {a}, {c}')
                free += pend; pend = [buf[f]]
                if not z2 and last[kk] == f: pend.append(AR(kk))
                reads(f)
                if z2 and i == 0: aload(kk + PD, vm)
                if ev and f in ev:
                    for e in ev[f]: e()
                if fill:
                    for _ in range(R):
                        if fill and fill[0][0] <= f:
                            o = fill.pop(0)[1]
                            o() if callable(o) else k(o)
        if opt.get('zprio'): k(f's_setprio {opt["zprio"]}')
        gpass(tz, 1, [8, 12, 16, 20, 24, 28], LA)
        st(k, 1, 7); st(k, 0, 4); st(k, 4, 9)
        S = 20; Q = 8
        prs = [(0, 2), (2, 2)] if hh == 0 else [(0, 2), (2, 1)]
        for pi, (i0, nt) in enumerate(prs):
            xp = 24 + 2 * i0; a = ACC(i0); n = 4 * nt
            for h in range(2 * nt): k(f'v_cvt_pk_bf16_f32 v{xp+h}, v{a+2*h}, v{a+2*h+1}')
            if hh:
                for h in range(2 * nt):
                    if tz[i0 + h // 2] >= 5: k(f'v_and_b32 v{xp+h}, s48, v{xp+h}')
            gelu_pk(k, xp, n, a, 12, xp, 6, sc=(SC > 0))
            for h in range(2 * nt):
                k(f'v_lshlrev_b32 v{a+2*h}, 16, v{xp+h}\nv_and_b32 v{a+1+2*h}, 0xffff0000, v{xp+h}')
            if SC > 0:
                for e in range(n):
                    r = e & 3
                    if pi == 0 and e < 4: k(f'v_mul_f32 v{Q+r}, v{a+e}, v{a+e}')
                    elif pi == 0: k(f'v_add_f32 v{S+r}, v{a+r}, v{a+e}\nv_fmac_f32 v{Q+r}, v{a+e}, v{a+e}')
                    else: k(f'v_add_f32 v{S+r}, v{S+r}, v{a+e}\nv_fmac_f32 v{Q+r}, v{a+e}, v{a+e}')
            else:
                for e in range(0, n, 2):
                    r = e & 3
                    d = vr(a + e, 2); q = vr(Q + r, 2); s_ = vr(S + r, 2)
                    if pi == 0 and e < 4: k(f'v_pk_mul_f32 {q}, {d}, {d}')
                    elif pi == 0: k(f'v_pk_add_f32 {s_}, {vr(a+r,2)}, {d}\nv_pk_fma_f32 {q}, {d}, {d}, {q}')
                    else: k(f'v_pk_add_f32 {s_}, {s_}, {d}\nv_pk_fma_f32 {q}, {d}, {d}, {q}')
        V = []
        for r in range(4): V += [S + r, Q + r]
        for i in range(4): k(f'v_add_f32_dpp v{V[i]}, v{V[i]}, v{V[i]} row_ror:8 row_mask:0xf bank_mask:0x3')
        for i in range(4): k(f'v_add_f32_dpp v{V[i]}, v{V[i+4]}, v{V[i+4]} row_ror:8 row_mask:0xf bank_mask:0xc')
        for i in range(2): k(f'v_add_f32_dpp v{V[i]}, v{V[i]}, v{V[i]} row_half_mirror row_mask:0xf bank_mask:0x5')
        k('v_and_b32 v12, 0xffff, v2')
        for i in range(2): k(f'v_add_f32_dpp v{V[i]}, v{V[i+2]}, v{V[i+2]} row_half_mirror row_mask:0xf bank_mask:0xa')
        k('v_lshrrev_b32 v1, 16, v2\ns_mov_b32 vcc_lo, 0xaaaaaaaa\ns_mov_b32 vcc_hi, 0xaaaaaaaa')
        for m in ('quad_perm:[1,0,3,2]', 'quad_perm:[2,3,0,1]'):
            for i in range(2): k(f'v_add_f32_dpp v{V[i]}, v{V[i]}, v{V[i]} {m} row_mask:0xf bank_mask:0xf')
        k(f'''v_cndmask_b32 v13, v{V[0]}, v{V[1]}, vcc
buffer_store_dword v13, v12, s[20:23], s53 offen sc1''')
        vm.issue('px')
        st(k, 1, 8)
        if opt.get('zprio'): k('s_setprio 0')
        n1 = 20 * len(t1)
        PB = 32

        def pxld():
            for i in range(2): k(f'buffer_load_dwordx4 {vr(PB+4*i,4)}, v1, s[20:23], s52 offen offset:{1024*i} sc1')
        ev = {}
        PXE = opt.get('pxe', 12)
        ev[n1 - 1 - PXE] = [lambda: (pxld(), vm.issue('pl'), vm.issue('pl'))]

        class Pool(list):
            def __iadd__(self, o):
                return list.__iadd__(self, [x for x in o if x not in (32, 36)])
        gpass(t1, 0, Pool([16, 8, 20, 12]), LA1, ev)
        st(k, 1, 9)
        LP = k.label('lp'); LD = k.label('ld'); L1 = k.label('l1')
        k(f'''v_and_b32 v2, 31, v0
v_lshlrev_b32 v2, 4, v2
v_bfe_u32 v4, v0, 5, 1
v_lshl_add_u32 v2, v4, 13, v2
v_mov_b32 v4, {fbits(1.0/864)}
s_mov_b32 s43, {SPIN}
s_branch {L1}
{LP}:''')
        if opt.get('pxs'): k(f"s_sleep {opt['pxs']}")
        pxld()
        k(f'''{L1}:
s_waitcnt vmcnt(0)
v_max3_u32 v8, v32, v33, v34
v_max3_u32 v9, v35, v36, v37
v_max3_u32 v8, v8, v38, v39
v_max_u32 v8, v8, v9
v_cmp_eq_u32 vcc, -1, v8''')
        for r in range(4): k(f'v_add_f32 v{40+r}, v{32+r}, v{36+r}')
        k(f'''s_cbranch_vccz {LD}
s_sub_u32 s43, s43, 1
s_cmp_lg_u32 s43, 0
s_cbranch_scc1 {LP}
{LD}:''')
        st(k, 0, 9); st(k, 6, 1)
        for m in ('row_ror:2', 'row_ror:4', 'row_ror:8'):
            for r in range(4): k(f'v_add_f32_dpp v{40+r}, v{40+r}, v{40+r} {m} row_mask:0xf bank_mask:0xf')
        for r in range(4): k(f'v_mul_f32 v{40+r}, v{40+r}, v4')
        k(f'''v_fma_f32 v41, -v40, v40, v41
v_fma_f32 v43, -v42, v42, v43
v_max_f32 v41, 0, v41
v_max_f32 v43, 0, v43
v_cvt_pk_bf16_f32 v12, v40, v42
v_cvt_pk_bf16_f32 v13, v41, v43
v_lshlrev_b32 v8, 16, v12
v_and_b32 v9, 0xffff0000, v12
v_lshlrev_b32 v10, 16, v13
v_and_b32 v11, 0xffff0000, v13
v_add_f32 v10, 0x3727c5ac, v10
v_add_f32 v11, 0x3727c5ac, v11
v_cvt_pk_bf16_f32 v13, v10, v11
v_lshlrev_b32 v10, 16, v13
v_and_b32 v11, 0xffff0000, v13
v_sqrt_f32 v10, v10
v_sqrt_f32 v11, v11''')
        for r in range(4):
            k(f'v_mov_b32_dpp v{16+r}, v{8+(r&1)} quad_perm:[{r>>1},{r>>1},{r>>1},{r>>1}] row_mask:0xf bank_mask:0xf')
        k(f'''v_cvt_pk_bf16_f32 v13, v10, v11
v_lshlrev_b32 v10, 16, v13
v_and_b32 v11, 0xffff0000, v13
v_rcp_f32 v10, v10
v_rcp_f32 v11, v11''')
        NT = len(tz)
        D = 48
        for h in range(2 * NT):
            k(f'v_lshlrev_b32 v{D+2*h}, 16, v{24+h}\nv_and_b32 v{D+1+2*h}, 0xffff0000, v{24+h}')
        for h in range(2 * NT):
            k(f'v_pk_add_f32 {vr(D+2*h,2)}, {vr(D+2*h,2)}, {vr(16+2*(h&1),2)} neg_lo:[0,1] neg_hi:[0,1]')
        for r in range(4):
            k(f'v_mov_b32_dpp v{20+r}, v{10+(r&1)} quad_perm:[{r>>1},{r>>1},{r>>1},{r>>1}] row_mask:0xf bank_mask:0xf')
        for pi, (i0, nt) in enumerate(prs):
            hs = range(2 * i0, 2 * i0 + 2 * nt)
            for h in hs: k(f'v_cvt_pk_bf16_f32 v{24+h}, v{D+2*h}, v{D+2*h+1}')
            for h in hs: k(f'v_lshlrev_b32 v{D+2*h}, 16, v{24+h}\nv_and_b32 v{D+1+2*h}, 0xffff0000, v{24+h}')
            for h in hs: k(f'v_pk_mul_f32 {vr(D+2*h,2)}, {vr(D+2*h,2)}, {vr(20+2*(h&1),2)}')
            for h in hs: k(f'v_cvt_pk_bf16_f32 v{24+h}, v{D+2*h}, v{D+2*h+1}')
            xp = 24 + 2 * i0
            if nt == 1:
                for h in hs: k(f'v_cvt_pk_bf16_f32 v{26+h}, v{D+2*h}, v{D+2*h+1}')
            k(f'v_permlane32_swap_b32 v{xp}, v{xp+2}\nv_permlane32_swap_b32 v{xp+1}, v{xp+3}')
            if nt == 1: k('s_mov_b32 exec_hi, 0')
            k(f'buffer_store_dwordx4 {vr(xp,4)}, v2, s[16:19], s54 offen sc1')
            if nt == 1: k('s_mov_b32 exec_hi, -1')
            if pi == 0: k('s_add_u32 s54, s54, 16384')
        st(k, 6, 2)
        k('v_lshrrev_b32 v1, 1, v3')
        p1 = [(0, 2, 2048), (2, 1, 3072)] if hh == 0 else [(0, 2, 0), (2, 2, 1024)]
        for pi, (i0, nt, off) in enumerate(p1):
            o = 8 + 4 * pi; a = ACC(i0)
            for h in range(2 * nt): k(f'v_cvt_pk_bf16_f32 v{o+h}, v{a+2*h}, v{a+2*h+1}')
            gelu_pk(k, o, 4 * nt, 32 + 16 * pi, 40 + 16 * pi, o, 6, sc=(SC > 1))
            if nt == 2: k(f'buffer_store_dwordx4 {vr(o,4)}, v3, s[12:15], s55 offen offset:{off} sc1')
            else: k(f'buffer_store_dwordx2 {vr(o,2)}, v1, s[12:15], s55 offen offset:{off} sc1')
        st(k, 6, 3)
        map_g2(k)
        k('s_load_dwordx2 s[24:25], s[0:1], 48\ns_waitcnt vmcnt(0)')
        st(k, 0, 5); st(k, 6, 4)
        T4 = k.label('t4'); TJ = k.label('tj')
        k(f'''s_barrier
s_cmp_ge_u32 s34, 4
s_cbranch_scc1 {T4}
s_cmp_lg_u32 s34, 0
s_cbranch_scc1 {TJ}
s_lshl_b32 s44, s36, {5+FS}
s_add_u32 s44, s44, {FL2}''')
        flag_poll(k, 47, 44, 32, opt.get('g2sl', 0), opt.get('g2d', 0))
        k(f's_branch {TJ}\n{T4}:')
        if not NOW: w_trans(k, 12, 13, list(range(WT2, 4)), 43)
        st(k, 6, 5)
        k(f'{TJ}:\ns_waitcnt lgkmcnt(0)\ns_barrier\ns_branch {DONE}')
    path(0)
    k(f'{LH}:')
    path(1)


def ph_g1t(k, opt, DONE, wb):
    assert W128 and not (wb and wb.ops) and not G1S
    LH = k.label('h1')
    HP0 = opt.get('hp0', 10240)
    k(f's_lshl_b32 s49, s3, {FS}')
    g1id(k, 3, 35)
    k(f'''s_lshr_b32 s35, s3, 4
s_bfe_u32 s36, s3, 0x30001
s_and_b32 s37, s3, 1
s_and_b32 s38, s34, 3
s_lshl_b32 s39, s35, 2
s_add_u32 s39, s39, s38
s_lshr_b32 s46, s34, 2
v_and_b32 v2, 63, v0
v_and_b32 v6, 15, v2
v_lshrrev_b32 v7, 4, v2''')
    srd_from(k, 8, 40, 41, WS_HN, 0x300000)
    k(f'''v_lshrrev_b32 v8, 2, v6
v_and_b32 v10, 3, v6
v_mul_u32_u24 v1, {HP0}, v8
v_lshl_add_u32 v1, v7, 6, v1
v_lshl_add_u32 v1, v10, 4, v1
s_and_b32 s44, s39, -2
s_add_u32 s44, s44, s46
s_mul_i32 s44, s44, {4*HP0}
s_and_b32 s45, s38, 1
s_mul_i32 s45, s45, 5120
s_add_u32 s44, s44, s45
s_add_u32 s45, s44, 4096
v_add_u32 v4, 57344, v3
v_add_u32 v5, 114688, v3''')
    k(f'''v_and_b32 v9, 1, v6
v_lshl_add_u32 v9, v8, 1, v9
v_lshlrev_b32 v9, 2, v9
v_lshl_add_u32 v9, v7, 6, v9
v_lshlrev_b32 v8, 8, v8
v_lshl_add_u32 v8, v7, 6, v8
v_lshl_add_u32 v8, v10, 4, v8
v_lshl_add_u32 v2, v8, 16, v9
v_mov_b32 v6, {fbits(C0 if GV else C1)}
v_mov_b32 v7, {fbits(C0)}
s_mov_b32 s62, {fbits(C1)}
s_mov_b32 s63, {fbits(C1)}''')
    srd_from(k, 12, 40, 41, WS_Z1, A2_BYTES)
    srd_from(k, 16, 40, 41, WS_Z2, Z2N_BYTES)
    srd_from(k, 20, 40, 41, WS_PX, PX_BYTES)
    k(f'''s_and_b32 s47, s3, 15
s_lshl_b32 s53, s47, 8
s_lshl_b32 s47, s47, 4
s_add_u32 s47, s47, s35
s_lshl_b32 s47, s47, {FS}
s_add_u32 s47, s47, {FL2}
s_lshl_b32 s52, s39, 12
s_add_u32 s53, s53, s52
s_lshl_b32 s42, s46, 5
s_add_u32 s53, s53, s42
s_lshl_b32 s54, s36, 3
s_lshr_b32 s42, s39, 4
s_add_u32 s54, s54, s42
s_and_b32 s42, s39, 1
s_lshl_b32 s42, s42, 2
s_add_u32 s54, s54, s42
s_mul_i32 s54, s54, 56
s_bfe_u32 s42, s39, 0x30001
s_add_u32 s54, s54, s42
s_lshl_b32 s42, s37, 5
s_add_u32 s54, s54, s42
s_lshl_b32 s42, s46, 4
s_add_u32 s54, s54, s42
s_lshl_b32 s54, s54, 10
s_add_u32 s56, s54, 8192
s_and_b32 s42, s37, s46
s_cmp_eq_u32 s42, 1
s_cselect_b32 s56, {BIG}, s56
s_lshr_b32 s55, s39, 1
s_lshl_b32 s55, s55, 3
s_add_u32 s55, s55, s36
s_lshl_b32 s55, s55, 1
s_and_b32 s42, s39, 1
s_add_u32 s55, s55, s42
s_lshl_b32 s55, s55, 1
s_add_u32 s55, s55, s46
s_lshl_b32 s55, s55, 12
s_cmp_eq_u32 s36, 7
s_cselect_b32 s48, 0, -1
s_cselect_b32 s59, 0xffff, -1
s_lshl_b32 s58, s38, 12
s_lshl_b32 s57, s46, 3
s_add_u32 s57, s57, s58
s_lshl_b32 s42, s46, 11
s_add_u32 s58, s58, s42
s_lshl_b32 s42, s35, {4+FS}
s_waitcnt vmcnt({2 if opt.get('hd') else 0})
s_barrier''')
    st(k, 1, 3); st(k, 4, 7)
    W4 = k.label('w4'); WJ = k.label('wj')
    NOW = opt.get('now', 0)
    k(f's_cmp_ge_u32 s34, 4\ns_cbranch_scc1 {W4}')
    WG_ = [0, 1, 2, 3][opt.get('wte', 0):]
    if not NOW: w_trans(k, 12, 13, WG_, 43)
    k(f's_branch {WJ}\n{W4}:\ns_cmp_lg_u32 s34, 4\ns_cbranch_scc1 {WJ}')
    flag_poll(k, 49, 42, 16, opt.get('g1sl', 0), opt.get('g1d', 0))
    k(f'{WJ}:\ns_waitcnt lgkmcnt(0)\ns_barrier')
    st(k, 4, 8); st(k, 1, 4); st(k, 0, 3)
    AR = lambda kk: 32 + 4 * kk
    PD = opt.get('PD', 8)

    def aload(kk, vm=None):
        if kk >= 20: return
        k(f'buffer_load_dwordx4 {vr(AR(kk),4)}, v1, s[8:11], s{44+kk//16} offen offset:{256*(kk%16)}')
        if vm: vm.issue(f'a{kk}')
    for kk in range(PD): aload(kk)
    k(f's_cmp_eq_u32 s37, 1\ns_cbranch_scc1 {LH}')
    LA = opt.get('LA', 5); LA1 = opt.get('LA1', 6)
    SC = opt.get('gsc', 0)
    ACC = lambda i: 112 + 4 * i

    def path(hh):
        vm = Cnt('vmcnt', 63); lg = Cnt('lgkmcnt', 15)
        for kk in range(PD): vm.issue(f'a{kk}')
        tz = [0, 1, 2, 3] if hh == 0 else [4, 5, 6]
        t1 = [4, 5, 6] if hh == 0 else [0, 1, 2, 3]

        def gpass(tiles, z2, free, la, ev=None, keep=()):
            order = [(kk, i) for kk in range(20) for i in range(len(tiles))]
            last = {}
            for f, (kk, i) in enumerate(order): last[kk] = f
            buf = {}; nr = [0]; pend = []

            def reads(f):
                while nr[0] < len(order) and nr[0] <= f + la and free:
                    q = nr[0]; kk, i = order[q]
                    b = free.pop(0); buf[q] = b
                    a = BB + kk * 7168 + tiles[i] * 1024
                    k(f'ds_read_b128 {vr(b,4)}, v{3+a//57344} offset:{a%57344}'); lg.issue(f'b{z2}_{q}')
                    nr[0] += 1
            reads(-1)
            for f, (kk, i) in enumerate(order):
                x = vm.wait(f'a{kk}')
                if x: k(x)
                if z2 and i == 0 and kk in (0, 10): st(k, 1, 5 + kk // 10)
                x = lg.wait(f'b{z2}_{f}')
                if x: k(x)
                acc = vr(ACC(i), 4); c = '0' if kk == 0 else acc
                b = vr(buf[f], 4); a = vr(AR(kk), 4)
                k(f'{MFMA} {acc}, {a}, {b}, {c}' if z2 else f'{MFMA} {acc}, {b}, {a}, {c}')
                free.extend(pend); pend = [buf[f]]
                if not z2 and last[kk] == f and AR(kk) not in keep: pend.append(AR(kk))
                reads(f)
                if z2 and i == 0: aload(kk + PD, vm)
                if ev and f in ev:
                    for e in ev[f]: e()
        if opt.get('zprio'): k(f's_setprio {opt["zprio"]}')
        gpass(tz, 1, [8, 12, 16, 20, 24, 28], LA)
        st(k, 1, 7); st(k, 0, 4); st(k, 4, 9)
        S = 20; Q = 8
        k('v_add_u32 v1, s57, v3')
        prs = [(0, 2), (2, 2)] if hh == 0 else [(0, 2), (2, 1)]
        for pi, (i0, nt) in enumerate(prs):
            xp = 24 + 2 * i0; a = ACC(i0); n = 4 * nt
            if nt == 2:
                for r in range(4): k(f'v_cvt_pk_bf16_f32 v{xp+r}, v{a+r}, v{a+4+r}')
                if hh:
                    for r in range(4): k(f'v_and_b32 v{xp+r}, s59, v{xp+r}')
                k(f'''v_permlane32_swap_b32 v{xp}, v{xp+2}
v_permlane32_swap_b32 v{xp+1}, v{xp+3}
v_permlane16_swap_b32 v{xp}, v{xp+1}
v_permlane16_swap_b32 v{xp+2}, v{xp+3}''')
                gelu_pk(k, xp, 8, a, 12, xp, 6, tr=True, sc=(SC > 0))
            else:
                k(f'''v_permlane32_swap_b32 v{a}, v{a+2}
v_permlane32_swap_b32 v{a+1}, v{a+3}
v_permlane16_swap_b32 v{a}, v{a+1}
v_permlane16_swap_b32 v{a+2}, v{a+3}''')
                for h in range(2): k(f'v_cvt_pk_bf16_f32 v{xp+h}, v{a+2*h}, v{a+2*h+1}')
                for h in range(2): k(f'v_and_b32 v{xp+h}, s48, v{xp+h}')
                gelu_pk(k, xp, 4, a, 12, xp, 6, sc=(SC > 0))
            for t in range(nt):
                k(f'ds_write_b64 v1, {vr(xp+2*t,2)} offset:{1024*(i0+t)}'); lg.issue('x')
            for h in range(2 * nt):
                k(f'v_lshlrev_b32 v{a+2*h}, 16, v{xp+h}\nv_and_b32 v{a+1+2*h}, 0xffff0000, v{xp+h}')
            if SC > 0:
                for e in range(n):
                    r = e & 3
                    if pi == 0 and e < 4: k(f'v_mul_f32 v{Q+r}, v{a+e}, v{a+e}')
                    elif pi == 0: k(f'v_add_f32 v{S+r}, v{a+r}, v{a+e}\nv_fmac_f32 v{Q+r}, v{a+e}, v{a+e}')
                    else: k(f'v_add_f32 v{S+r}, v{S+r}, v{a+e}\nv_fmac_f32 v{Q+r}, v{a+e}, v{a+e}')
            else:
                for e in range(0, n, 2):
                    r = e & 3
                    d = vr(a + e, 2); q = vr(Q + r, 2); s_ = vr(S + r, 2)
                    if pi == 0 and e < 4: k(f'v_pk_mul_f32 {q}, {d}, {d}')
                    elif pi == 0: k(f'v_pk_add_f32 {s_}, {vr(a+r,2)}, {d}\nv_pk_fma_f32 {q}, {d}, {d}, {q}')
                    else: k(f'v_pk_add_f32 {s_}, {s_}, {d}\nv_pk_fma_f32 {q}, {d}, {d}, {q}')
        V = []
        for r in range(4): V += [S + r, Q + r]
        for i in range(4): k(f'v_add_f32_dpp v{V[i]}, v{V[i]}, v{V[i]} row_ror:8 row_mask:0xf bank_mask:0x3')
        for i in range(4): k(f'v_add_f32_dpp v{V[i]}, v{V[i+4]}, v{V[i+4]} row_ror:8 row_mask:0xf bank_mask:0xc')
        for i in range(2): k(f'v_add_f32_dpp v{V[i]}, v{V[i]}, v{V[i]} row_half_mirror row_mask:0xf bank_mask:0x5')
        k('v_and_b32 v12, 0xffff, v2')
        for i in range(2): k(f'v_add_f32_dpp v{V[i]}, v{V[i+2]}, v{V[i+2]} row_half_mirror row_mask:0xf bank_mask:0xa')
        k('v_lshrrev_b32 v1, 16, v2\ns_mov_b32 vcc_lo, 0xaaaaaaaa\ns_mov_b32 vcc_hi, 0xaaaaaaaa')
        for m in ('quad_perm:[1,0,3,2]', 'quad_perm:[2,3,0,1]'):
            for i in range(2): k(f'v_add_f32_dpp v{V[i]}, v{V[i]}, v{V[i]} {m} row_mask:0xf bank_mask:0xf')
        k(f'''v_cndmask_b32 v13, v{V[0]}, v{V[1]}, vcc
buffer_store_dword v13, v12, s[20:23], s53 offen sc1
v_add_u32 v2, s58, v3''')
        vm.issue('px')
        st(k, 1, 8)
        if opt.get('zprio'): k('s_setprio 0')
        n1 = 20 * len(t1)
        PB = 32; XR = 48

        def pxld():
            for i in range(4): k(f'buffer_load_dwordx4 {vr(PB+4*i,4)}, v1, s[20:23], s52 offen offset:{1024*i} sc1')

        def xrd():
            k('s_barrier')
            for t in range(2):
                k(f'ds_read_b128 {vr(XR+4*t,4)}, v2 offset:{1024*t}'); lg.issue('xr')
        ev = {}
        PXE = opt.get('pxe', 12); XE = opt.get('xe', 8)
        ev.setdefault(n1 - 1 - PXE, []).append(pxld)
        ev.setdefault(n1 - 1 - XE, []).append(xrd)
        assert n1 - 1 - max(PXE, XE) >= 6 * len(t1)
        gpass(t1, 0, [16, 24, 28, 8, 20, 12], LA1, ev, keep=(32, 36, 40, 44, 48, 52))
        st(k, 1, 9)
        LP = k.label('lp'); LD = k.label('ld'); L1 = k.label('l1')
        D = 56
        k(f'''v_mov_b32 v4, {fbits(1.0/864)}
s_mov_b32 s43, {SPIN}
s_waitcnt lgkmcnt(0)''')
        for h in range(8):
            k(f'v_lshlrev_b32 v{D+2*h}, 16, v{XR+h}\nv_and_b32 v{D+1+2*h}, 0xffff0000, v{XR+h}')
        k(f'''s_branch {L1}
{LP}:''')
        if opt.get('pxs'): k(f"s_sleep {opt['pxs']}")
        pxld()
        k(f'''{L1}:
s_waitcnt vmcnt(2)
v_max3_u32 v24, v32, v33, v34
v_max3_u32 v25, v35, v36, v37
v_max3_u32 v24, v24, v38, v39''')
        for r in range(4): k(f'v_add_f32 v{28+r}, v{32+r}, v{36+r}')
        k('''s_waitcnt vmcnt(0)
v_max3_u32 v25, v25, v40, v41
v_max3_u32 v24, v24, v42, v43
v_max3_u32 v25, v25, v44, v45
v_max3_u32 v24, v24, v46, v47
v_max_u32 v24, v24, v25
v_cmp_eq_u32 vcc, -1, v24''')
        for r in range(4): k(f'v_add_f32 v{16+r}, v{40+r}, v{44+r}')
        k(f'''s_cbranch_vccz {LD}
s_sub_u32 s43, s43, 1
s_cmp_lg_u32 s43, 0
s_cbranch_scc1 {LP}
{LD}:''')
        st(k, 0, 9); st(k, 6, 1)
        for r in range(4): k(f'v_add_f32 v{28+r}, v{28+r}, v{16+r}')
        for m in ('row_ror:4', 'row_ror:8'):
            for r in range(4): k(f'v_add_f32_dpp v{28+r}, v{28+r}, v{28+r} {m} row_mask:0xf bank_mask:0xf')
        for r in range(4): k(f'v_mul_f32 v{28+r}, v{28+r}, v4')
        k(f'''v_fma_f32 v29, -v28, v28, v29
v_fma_f32 v31, -v30, v30, v31
v_max_f32 v29, 0, v29
v_max_f32 v31, 0, v31
v_cvt_pk_bf16_f32 v12, v28, v30
v_cvt_pk_bf16_f32 v13, v29, v31
v_lshlrev_b32 v8, 16, v12
v_and_b32 v9, 0xffff0000, v12
v_lshlrev_b32 v10, 16, v13
v_and_b32 v11, 0xffff0000, v13
v_add_f32 v10, 0x3727c5ac, v10
v_add_f32 v11, 0x3727c5ac, v11
v_cvt_pk_bf16_f32 v13, v10, v11
v_lshlrev_b32 v10, 16, v13
v_and_b32 v11, 0xffff0000, v13
v_sqrt_f32 v10, v10
v_sqrt_f32 v11, v11''')
        for e in range(8):
            k(f'v_mov_b32_dpp v{16+e}, v{8+(e&1)} quad_perm:[{e>>1},{e>>1},{e>>1},{e>>1}] row_mask:0xf bank_mask:0xf')
        k(f'''v_cvt_pk_bf16_f32 v13, v10, v11
v_lshlrev_b32 v10, 16, v13
v_and_b32 v11, 0xffff0000, v13
v_rcp_f32 v10, v10
v_rcp_f32 v11, v11''')
        for i in range(2):
            d = D + 8 * i
            for e in range(0, 8, 2):
                k(f'v_pk_add_f32 {vr(d+e,2)}, {vr(d+e,2)}, {vr(16+e,2)} neg_lo:[0,1] neg_hi:[0,1]')
            if i == 0:
                for e in range(8):
                    k(f'v_mov_b32_dpp v{24+e}, v{10+(e&1)} quad_perm:[{e>>1},{e>>1},{e>>1},{e>>1}] row_mask:0xf bank_mask:0xf')
            o = XR + 4 * i
            for r in range(4): k(f'v_cvt_pk_bf16_f32 v{o+r}, v{d+2*r}, v{d+2*r+1}')
            for r in range(4): k(f'v_lshlrev_b32 v{d+2*r}, 16, v{o+r}\nv_and_b32 v{d+1+2*r}, 0xffff0000, v{o+r}')
            for e in range(0, 8, 2):
                k(f'v_pk_mul_f32 {vr(d+e,2)}, {vr(d+e,2)}, {vr(24+e,2)}')
            for r in range(4): k(f'v_cvt_pk_bf16_f32 v{o+r}, v{d+2*r}, v{d+2*r+1}')
            k(f'buffer_store_dwordx4 {vr(o,4)}, v3, s[16:19], s{54+2*i} offen sc1')
        st(k, 6, 2)
        k('v_lshrrev_b32 v1, 1, v3')
        p1 = [(0, 2, 2048), (2, 1, 3072)] if hh == 0 else [(0, 2, 0), (2, 2, 1024)]
        for pi, (i0, nt, off) in enumerate(p1):
            o = 8 + 4 * pi; a = ACC(i0)
            for h in range(2 * nt): k(f'v_cvt_pk_bf16_f32 v{o+h}, v{a+2*h}, v{a+2*h+1}')
            gelu_pk(k, o, 4 * nt, 72 + 16 * pi, 80 + 16 * pi, o, 6, sc=(SC > 1))
            if nt == 2: k(f'buffer_store_dwordx4 {vr(o,4)}, v3, s[12:15], s55 offen offset:{off} sc1')
            else: k(f'buffer_store_dwordx2 {vr(o,2)}, v1, s[12:15], s55 offen offset:{off} sc1')
        st(k, 6, 3)
        map_g2(k)
        k('s_load_dwordx2 s[24:25], s[0:1], 48\ns_waitcnt vmcnt(0)')
        st(k, 0, 5); st(k, 6, 4)
        T4 = k.label('t4'); TJ = k.label('tj')
        k(f'''s_barrier
s_cmp_ge_u32 s34, 4
s_cbranch_scc1 {T4}
s_cmp_lg_u32 s34, 0
s_cbranch_scc1 {TJ}
s_lshl_b32 s44, s36, {5+FS}
s_add_u32 s44, s44, {FL2}''')
        flag_poll(k, 47, 44, 32, opt.get('g2sl', 0), opt.get('g2d', 0))
        k(f's_branch {TJ}\n{T4}:')
        if opt.get('wt67'): k(f's_cmp_ge_u32 s34, 6\ns_cbranch_scc1 {TJ}')
        else: assert not opt.get('wte')
        if not NOW: w_trans(k, 12, 13, WG_, 43)
        st(k, 6, 5)
        k(f'{TJ}:\ns_waitcnt lgkmcnt(0)\ns_barrier\ns_branch {DONE}')
    path(0)
    k(f'{LH}:')
    path(1)


def gen_ka(opt):
    k = Kern('ka_kernel', 256, 512, 163840, nvgpr=128, nagpr=128)
    END = k.label('end')
    k(f's_cmp_ge_u32 s2, 256\ns_cbranch_scc1 {END}')
    k.stamp(True)
    ph_k2a(k, opt, None)
    ph_g1(k, opt, END, None)
    k.finish(END)
    return k


def gen_p(opt, g3=True):
    k = Kern('kp_kernel', 256, 512, 163840, nvgpr=128, nagpr=128)
    END = k.label('end'); G2 = k.label('g2'); G3 = k.label('g3')
    k(f's_cmp_ge_u32 s2, 256\ns_cbranch_scc1 {END}')
    k.stamp(True)
    wb = Bulk(k, [] if opt.get('now') else g2_wops())
    ph_k2a(k, opt, wb)
    ph_g1(k, opt, G2, wb, True)
    k(f'{G2}:')
    st(k, 0, 6)
    vm = Cnt('vmcnt', 63); vm.issue('w')
    if g3:
        g3_wo_setup(k)
        ph_g2(k, opt, G3, vm, True, [] if opt.get('noo') else g3_wo_ops())
        k(f'{G3}:')
        ph_g3(k, opt, True)
    else:
        ph_g2(k, opt, END, vm, False)
    k.finish(END)
    return k


def gen_q(opt):
    k = Kern('k1_kernel', 256, 512, 163840, nvgpr=128, nagpr=128)
    END = k.label('end'); G2 = k.label('g2'); G3 = k.label('g3')
    k(f's_cmp_ge_u32 s2, 256\ns_cbranch_scc1 {END}')
    k.stamp(True)
    wb = Bulk(k, [] if opt.get('now') else g2_wops())
    ph_k12(k, opt, wb)
    if G1S: ph_g1s(k, opt, G2, wb)
    elif opt.get('g1t'): ph_g1t(k, opt, G2, wb)
    else: ph_g1(k, opt, G2, wb, True)
    k(f'{G2}:')
    st(k, 0, 6)
    vm = Cnt('vmcnt', 63); vm.issue('w')
    g3_wo_setup(k)
    if opt.get('g3s'):
        k('s_lshl_b32 s61, s35, 3\ns_add_u32 s61, s61, s34\ns_lshl_b32 s61, s61, 14\ns_add_u32 s62, s61, 8192')
        na = ph_g2(k, opt, G3, vm, True, g3_wo_ops(), g3s_early())
        k(f'{G3}:')
        ph_g3s(k, opt, na)
        k.finish(END)
        return k
    ph_g2(k, opt, G3, vm, True, [] if opt.get('noo') else g3_wo_ops())
    k(f'{G3}:')
    ph_g3(k, opt, True)
    k.finish(END)
    return k


def build(opt):
    lv = opt.get('lv', 1)
    if lv == 4: return [gen_fft.gen_k0(), gen_q(opt)]
    ks = [gen_fft.gen_k0(), gen_fft.gen_k1c()]
    if lv == 1: ks += [gen_ka(opt), gen_g2(opt), gen_g3(opt)]
    if lv == 2: ks += [gen_p(opt, False), gen_g3(opt)]
    if lv == 3: ks += [gen_p(opt)]
    return ks


def g3_wo_setup(k):
    srd_from(k, 28, 40, 41, WS_WO, WO8_BYTES)
    k(f'''s_lshl_b32 s60, s36, 3
s_add_u32 s60, s60, s34
s_mul_i32 s60, s60, {WOB}''')


def g3_wo_ops():
    ops = []
    for i in range(15):
        s = f'buffer_load_dwordx4 {ar(4*i,4)}, v3, s[28:31], s60 offen offset:{1024*(i%4)}'
        if i % 4 == 3: s += '\ns_add_u32 s60, s60, 4096'
        if i == 14: s += '\ns_add_u32 s60, s60, 3072'
        ops.append(s)
    for n in range(5):
        ops.append(f'buffer_load_dwordx2 {ar(60+2*n,2)}, v2, s[28:31], s60 offen offset:{512*n}')
    return ops


def ph_g3(k, opt, fused):
    vm = Cnt('vmcnt', 63); lg = Cnt('lgkmcnt', 15)
    G3F = opt.get('g3f', 0)
    WOL = opt.get('wol', [99, 99]); W0L = opt.get('w0l', 0)
    if G3F:
        NP2 = k.label('np2'); WH = k.label('wh'); WX = k.label('wx')
        k(f'''s_lshl_b32 s42, s35, {3+FS}
s_add_u32 s42, s42, {FL3}
s_lshl_b32 s46, s36, {FS}
s_add_u32 s46, s46, s42
v_lshrrev_b32 v124, 4, v3
v_lshlrev_b32 v124, {FS}, v124
v_mov_b32 v125, 1
s_waitcnt vmcnt(0)
s_barrier
s_cmp_lg_u32 s34, 0
s_cbranch_scc1 {NP2}
s_mov_b64 exec, 1
buffer_store_dword v125, v124, s[68:71], s46 offen sc1
s_mov_b64 exec, -1
{f"s_branch {WX}" if W0L else ""}
{NP2}:''')
        ro = [g3_wo_ops()[WOL[0]:], g3_wo_ops()[WOL[1]:]]
        if ro[0] == ro[1]:
            for o in ro[0]: k(o)
        else:
            k(f's_cmp_ge_u32 s34, 4\ns_cbranch_scc1 {WH}')
            for o in ro[0]: k(o)
            k(f's_branch {WX}\n{WH}:')
            for o in ro[1]: k(o)
        k(f'{WX}:')
    else: assert WOL == [99, 99]
    srd_from(k, 8, 40, 41, WS_Z1 if opt.get('ain') else WS_A, A2_BYTES)
    srd_from(k, 12, 80, 81, 0, X_BYTES) if opt.get('hout') else srd_from(k, 12, 40, 41, WS_H, X_BYTES)
    k(f'''s_lshl_b32 s44, s35, 3
s_add_u32 s44, s44, s34
s_lshl_b32 s44, s44, 14
v_lshrrev_b32 v1, 4, v3
v_and_b32 v6, 15, v1
v_lshrrev_b32 v7, 4, v1''')
    k(f'''s_lshr_b32 s45, s34, 1
s_mul_i32 s45, s45, 40960
s_and_b32 s46, s34, 1
s_lshl_b32 s46, s46, 3''')
    ROWA = '''v_lshrrev_b32 v11, 3, v9
v_and_b32 v12, 3, v9
v_lshl_add_u32 v11, v11, 2, v12
v_bfe_u32 v12, v9, 2, 1
v_lshl_add_u32 v11, v12, 8, v11''' if G1S else '''v_lshrrev_b32 v11, 2, v9
v_and_b32 v12, 3, v9
v_lshl_add_u32 v11, v12, 8, v11'''
    for p in range(3):
        k(f'''v_add_u32 v8, {64*p}, v1
v_mul_u32_u24 v9, 3277, v8
v_lshrrev_b32 v9, 16, v9
v_mul_u32_u24 v10, 20, v9
v_sub_u32 v10, v8, v10
v_add_u32 v9, s46, v9
v_add_u32 v11, v9, v10
v_and_b32 v11, 15, v11
v_lshlrev_b32 v11, 4, v11
v_lshrrev_b32 v12, 2, v10
v_lshl_add_u32 v11, v12, 13, v11
v_and_b32 v12, 3, v10
v_lshl_add_u32 v11, v12, 8, v11
v_add_u32 v{116+p}, s45, v11
{ROWA}
v_mul_u32_u24 v11, 1280, v11
v_lshl_add_u32 v{120+p}, v10, 3, v11''')
    k(f'''v_mov_b32 v8, 0x7fffffff
v_cmp_gt_u32 vcc, 32, v1
v_cndmask_b32 v122, v8, v122, vcc
s_lshl_b32 s47, s35, 3
s_and_b32 s43, s34, 2
s_lshl_b32 s43, s43, {8 if G1S else 1}
s_add_u32 s47, s47, s43
s_and_b32 s43, s34, 4
s_lshl_b32 s43, s43, 8
s_add_u32 s47, s47, s43
s_mul_i32 s47, s47, 1280
s_mul_i32 s43, s36, 160
s_add_u32 s47, s47, s43''')
    def hld():
        for p in range(3): k(f'buffer_load_dwordx2 {vr(104+2*p,2)}, v{120+p}, s[12:15], s47 offen')
    NH = k.label('nh')
    if G3F: k(f's_cmp_eq_u32 s34, 0\ns_cbranch_scc1 {NH}')
    hld()
    k(f'{NH}:')
    for p in range(3): vm.issue('h')
    k(f'''s_lshl_b32 s43, s34, 10
v_add_u32 v8, v6, v7
v_lshlrev_b32 v9, 8, v7
v_add_u32 v9, s43, v9''')
    for n in range(5):
        k(f'''v_add_u32 v10, {4*n}, v8
v_and_b32 v10, 15, v10
v_lshl_add_u32 v10, v10, 4, v9
v_add_u32 v{88+n}, {8192*n}, v10
v_add_u32 v{93+n}, {8192*n+81920}, v10''')
    if G3F:
        NP3 = k.label('np3')
        k(f's_cmp_lg_u32 s34, 0\ns_cbranch_scc1 {NP3}\ns_mov_b64 exec, 0xff')
        if opt.get('g3d'): k(f's_sleep {opt["g3d"]}')
        poll2(k, 'buffer_load_dword v125, v124, s[68:71], s42 offen sc1', 'v_cmp_eq_u32 vcc, 0, v125', 43, opt.get('g3sl', 0))
        k('s_mov_b64 exec, -1')
        if W0L == 1:
            for o in ro[0]: k(o)
        if W0L < 2: hld()
        k(f'{NP3}:\ns_barrier')
        if W0L == 2:
            NP4 = k.label('np4')
            k(f's_cmp_lg_u32 s34, 0\ns_cbranch_scc1 {NP4}')
            for o in ro[0]: k(o)
            hld()
            k(f'{NP4}:')
    elif fused:
        NP3 = k.label('np3')
        k(f'''s_waitcnt vmcnt(0)
s_barrier
s_cmp_lg_u32 s34, 0
s_cbranch_scc1 {NP3}
s_lshl_b32 s42, s35, {3+FS}
s_add_u32 s42, s42, {FL3}
s_lshl_b32 s46, s36, {FS}
s_add_u32 s46, s46, s42''')
        flag_poll(k, 46, 42, 8, opt.get('g3sl', 0), opt.get('g3d', 0))
        k(f'{NP3}:\ns_barrier')
        vm.done = 3
    st(k, 3, 1); st(k, 0, 8)
    k(f's_cmp_eq_u32 s34, 7\ns_cselect_b32 s48, {BIG}, 0')
    AF = lambda tt, p: 72 + 14 * tt + 4 * p
    for tt in range(4):
        for p in range(3):
            k(f'buffer_load_dwordx4 {ar(AF(tt,p),4)}, v3, s[8:11], s44 offen offset:{1024*p}'); vm.issue(f'a{tt}{p}')
        k(f's_add_u32 s49, s44, s48\nbuffer_load_dwordx2 {ar(AF(tt,3),2)}, v2, s[8:11], s49 offen offset:3072'); vm.issue(f'a{tt}3')
        if tt < 3: k('s_add_u32 s44, s44, 4096')
    srd_from(k, 16, 80, 81, 0, X_BYTES)
    ACC = lambda tt, n: 8 + 20 * (tt & 1) + 4 * n
    pend = []
    for tt in range(4):
        for p in range(4):
            x = vm.wait(f'a{tt}{p}')
            if x: k(x)
            if tt == 0 and p == 0: st(k, 3, 2)
            for n in range(5):
                acc = vr(ACC(tt, n), 4)
                if p < 3: k(f'{MFMA} {acc}, {ar(20*p+4*n,4)}, {ar(AF(tt,p),4)}, {"0" if p == 0 else acc}')
                else: k(f'{MF16} {acc}, {ar(60+2*n,2)}, {ar(AF(tt,3),2)}, {acc}')
                if pend and (5 * p + n) % 3 == 2: k(pend.pop(0))
        for n in range(5):
            pend.append(f'ds_write_b128 v{88+5*(tt>>1)+n}, {vr(ACC(tt,n),4)} offset:{40960*(tt&1)}')
    for o in pend: k(o)
    st(k, 3, 3)
    k('s_waitcnt lgkmcnt(0)\ns_barrier')
    st(k, 3, 4)
    for p in range(3):
        for s in range(8):
            k(f'ds_read_b128 {vr(8+32*p+4*s,4)}, v{116+p} offset:{1024*s}'); lg.issue(f'r{p}{s}')
        if p == 0:
            for q in range(3):
                k(f'v_lshlrev_b32 v{110+2*q}, 16, v{104+2*q}\nv_and_b32 v{104+2*q}, 0xffff0000, v{104+2*q}')
    for p in range(3):
        a = 8 + 32 * p
        for s in (0, 2, 4, 6):
            x = lg.wait(f'r{p}{s+1}')
            if x: k(x)
            for h in range(2): k(f'v_pk_add_f32 {vr(a+4*s+2*h,2)}, {vr(a+4*s+2*h,2)}, {vr(a+4*s+4+2*h,2)}')
            if s in (2, 6):
                for h in range(2): k(f'v_pk_add_f32 {vr(a+4*s-8+2*h,2)}, {vr(a+4*s-8+2*h,2)}, {vr(a+4*s+2*h,2)}')
        for h in range(2): k(f'v_pk_add_f32 {vr(a+2*h,2)}, {vr(a+2*h,2)}, {vr(a+16+2*h,2)}')
        k(f'''v_cvt_pk_bf16_f32 v{a+4}, v{a}, v{a+1}
v_cvt_pk_bf16_f32 v{a+5}, v{a+2}, v{a+3}
v_lshlrev_b32 v{a+8}, 16, v{105+2*p}
v_and_b32 v{a+9}, 0xffff0000, v{105+2*p}
v_lshlrev_b32 v{a}, 16, v{a+4}
v_and_b32 v{a+1}, 0xffff0000, v{a+4}
v_lshlrev_b32 v{a+2}, 16, v{a+5}
v_and_b32 v{a+3}, 0xffff0000, v{a+5}
v_add_f32 v{a}, v{a}, v{110+2*p}
v_add_f32 v{a+1}, v{a+1}, v{104+2*p}
v_pk_add_f32 {vr(a+2,2)}, {vr(a+2,2)}, {vr(a+8,2)}
v_cvt_pk_bf16_f32 v{a+4}, v{a}, v{a+1}
v_cvt_pk_bf16_f32 v{a+5}, v{a+2}, v{a+3}
buffer_store_dwordx2 {vr(a+4,2)}, v{120+p}, s[16:19], s47 offen''')


def g3s_ld(tt, p, fl=''):
    if p < 2: return f'buffer_load_dwordx4 {vr(56+8*tt+4*p,4)}, v3, s[16:19], s{61+(tt>>1)} offen offset:{1024*p}{fl}' if not (tt & 1) else \
        f'buffer_load_dwordx4 {vr(56+8*tt+4*p,4)}, v88, s[16:19], s{61+(tt>>1)} offen offset:{1024*p}{fl}'
    if p == 2: return f'buffer_load_dwordx4 {vr(8+4*tt,4)}, v{88 if tt & 1 else 3}, s[16:19], s{61+(tt>>1)} offen offset:2048{fl}'
    return f'buffer_load_dwordx2 {vr(24+2*tt,2)}, v{89 if tt & 1 else 2}, s[16:19], s{63+(tt>>1)} offen offset:3072{fl}'


def g3s_early():
    ops = [g3s_ld(tt, p) for p in range(2) for tt in range(4)]
    ops[0] = 'v_add_u32 v88, 4096, v3\nv_add_u32 v89, 4096, v2\n' + ops[0]
    return ops


def chk_max(k, regs, t):
    regs = list(regs)
    acc = [None, None]; i = 0
    while regs:
        j = i & 1; i += 1
        if acc[j] is None:
            if len(regs) >= 3: k(f'v_max3_u32 v{t+j}, v{regs[0]}, v{regs[1]}, v{regs[2]}'); regs = regs[3:]
            elif len(regs) == 2: k(f'v_max_u32 v{t+j}, v{regs[0]}, v{regs[1]}'); regs = []
            else: k(f'v_mov_b32 v{t+j}, v{regs[0]}'); regs = []
            acc[j] = 1
        elif len(regs) >= 2: k(f'v_max3_u32 v{t+j}, v{t+j}, v{regs[0]}, v{regs[1]}'); regs = regs[2:]
        else: k(f'v_max_u32 v{t+j}, v{t+j}, v{regs[0]}'); regs = []
    if acc[1]: k(f'v_max_u32 v{t}, v{t}, v{t+1}')
    k(f'v_cmp_eq_u32 vcc, -1, v{t}')


def ph_g3s(k, opt, na):
    vm = Cnt('vmcnt', 63); lg = Cnt('lgkmcnt', 15)
    if opt.get('g3e', 0) == 3:
        for o in g3s_early(): k(o)
        na = 0
    vm.issue('e')
    for _ in range(na): vm.issue('s')
    srd_from(k, 12, 80, 81, 0, X_BYTES) if opt.get('hout') else srd_from(k, 12, 40, 41, WS_H, X_BYTES)
    LW = 90
    k(f'''s_cmp_eq_u32 s34, 7
s_cselect_b32 s63, {BIG}, s61
s_cselect_b32 s64, {BIG}, s62
v_lshrrev_b32 v1, 4, v3
v_and_b32 v6, 15, v1
v_lshrrev_b32 v7, 4, v1
s_lshr_b32 s45, s34, 1
s_mul_i32 s45, s45, 40960
s_and_b32 s46, s34, 1
s_lshl_b32 s46, s46, 3''')
    I2 = opt.get('g3i', [0, 20])
    if I2[0] < 0:
        for tt in range(4): k(g3s_ld(tt, 2, ' sc1')); vm.issue('p2')
    for p in range(3):
        k(f'''v_add_u32 v100, {64*p}, v1
v_mul_u32_u24 v101, 3277, v100
v_lshrrev_b32 v101, 16, v101
v_mul_u32_u24 v102, 20, v101
v_sub_u32 v102, v100, v102
v_add_u32 v101, s46, v101
v_add_u32 v103, v101, v102
v_and_b32 v103, 15, v103
v_lshlrev_b32 v103, 4, v103
v_lshrrev_b32 v110, 2, v102
v_lshl_add_u32 v103, v110, 13, v103
v_and_b32 v110, 3, v102
v_lshl_add_u32 v103, v110, 8, v103
v_add_u32 v{116+p}, s45, v103
v_lshrrev_b32 v103, 2, v101
v_and_b32 v110, 3, v101
v_lshl_add_u32 v103, v110, 8, v103
v_mul_u32_u24 v103, 1280, v103
v_lshl_add_u32 v{120+p}, v102, 3, v103''')
    k(f'''v_mov_b32 v100, 0x7fffffff
v_cmp_gt_u32 vcc, 32, v1
v_cndmask_b32 v122, v100, v122, vcc
s_lshl_b32 s47, s35, 3
s_and_b32 s43, s34, 2
s_lshl_b32 s43, s43, 1
s_add_u32 s47, s47, s43
s_and_b32 s43, s34, 4
s_lshl_b32 s43, s43, 8
s_add_u32 s47, s47, s43
s_mul_i32 s47, s47, 1280
s_mul_i32 s43, s36, 160
s_add_u32 s47, s47, s43''')
    for p in range(3):
        k(f'buffer_load_dwordx2 {vr(104+2*p,2)}, v{120+p}, s[12:15], s47 offen'); vm.issue('h')
    k(f'''s_lshl_b32 s43, s34, 10
v_add_u32 v100, v6, v7
v_lshlrev_b32 v101, 8, v7
v_add_u32 v101, s43, v101''')
    for n in range(5):
        k(f'''v_add_u32 v102, {4*n}, v100
v_and_b32 v102, 15, v102
v_lshl_add_u32 v102, v102, 4, v101
v_add_u32 v{LW+n}, {8192*n}, v102
v_add_u32 v{LW+5+n}, {8192*n+81920}, v102''')
    srd_from(k, 8, 80, 81, 0, X_BYTES)

    def ACC(tt, n):
        i = 5 * tt + n
        return ar(72 + 4 * i, 4) if i < 14 else vr(32 + 4 * (i - 14), 4)

    def gate(tag, regs, lds, sl):
        LP = k.label('lp'); LD = k.label('ld')
        k(vm.wait(tag) or '')
        chk_max(k, regs, 100)
        k(f's_cbranch_vccz {LD}\ns_mov_b32 s43, {SPIN}\n{LP}:')
        if sl: k(f's_sleep {sl}')
        for o in lds: k(o)
        k('s_waitcnt vmcnt(0)')
        chk_max(k, regs, 100)
        k(f's_cbranch_vccz {LD}\ns_sub_u32 s43, s43, 1\ns_cmp_lg_u32 s43, 0\ns_cbranch_scc1 {LP}\n{LD}:')
    st(k, 3, 1); st(k, 0, 8)
    gate('e', range(56, 88), [g3s_ld(tt, p, ' sc1') for p in range(2) for tt in range(4)], 0)
    st(k, 3, 2)
    i = 0
    for p in range(3):
        if p == 2:
            st(k, 3, 5)
            gate('p2', range(8, 24), [g3s_ld(tt, 2, ' sc1') for tt in range(4)], opt.get('g3r', 0))
            st(k, 3, 6)
            k('s_barrier')
        for tt in range(4):
            for n in range(5):
                if i == I2[0]:
                    for t2 in range(4): k(g3s_ld(t2, 2, ' sc1')); vm.issue('p2')
                if i == I2[1]:
                    for t2 in range(4): k(g3s_ld(t2, 3, ' sc1')); vm.issue('p3')
                acc = ACC(tt, n)
                b = vr(56 + 8 * tt + 4 * p, 4) if p < 2 else vr(8 + 4 * tt, 4)
                k(f'{MFMA} {acc}, {ar(20*p+4*n,4)}, {b}, {"0" if p == 0 else acc}')
                i += 1
    st(k, 3, 7)
    gate('p3', range(24, 32), [g3s_ld(tt, 3, ' sc1') for tt in range(4)], opt.get('g3r', 0))
    st(k, 3, 8)
    pend = []
    for tt in range(4):
        for n in range(5):
            acc = ACC(tt, n)
            k(f'{MF16} {acc}, {ar(60+2*n,2)}, {vr(24+2*tt,2)}, {acc}')
            pend.append(f'ds_write_b128 v{LW+5*(tt>>1)+n}, {acc} offset:{40960*(tt&1)}')
            if len(pend) > 3: k(pend.pop(0))
    for o in pend: k(o)
    st(k, 3, 3)
    k('s_waitcnt lgkmcnt(0)\ns_barrier')
    st(k, 3, 4)
    for p in range(3):
        for s in range(8):
            k(f'ds_read_b128 {vr(8+32*p+4*s,4)}, v{116+p} offset:{1024*s}'); lg.issue(f'r{p}{s}')
        if p == 0:
            for q in range(3):
                k(f'v_lshlrev_b32 v{110+2*q}, 16, v{104+2*q}\nv_and_b32 v{104+2*q}, 0xffff0000, v{104+2*q}')
    for p in range(3):
        a = 8 + 32 * p
        for s in (0, 2, 4, 6):
            x = lg.wait(f'r{p}{s+1}')
            if x: k(x)
            for h in range(2): k(f'v_pk_add_f32 {vr(a+4*s+2*h,2)}, {vr(a+4*s+2*h,2)}, {vr(a+4*s+4+2*h,2)}')
            if s in (2, 6):
                for h in range(2): k(f'v_pk_add_f32 {vr(a+4*s-8+2*h,2)}, {vr(a+4*s-8+2*h,2)}, {vr(a+4*s+2*h,2)}')
        for h in range(2): k(f'v_pk_add_f32 {vr(a+2*h,2)}, {vr(a+2*h,2)}, {vr(a+16+2*h,2)}')
        k(f'''v_cvt_pk_bf16_f32 v{a+4}, v{a}, v{a+1}
v_cvt_pk_bf16_f32 v{a+5}, v{a+2}, v{a+3}
v_lshlrev_b32 v{a+8}, 16, v{105+2*p}
v_and_b32 v{a+9}, 0xffff0000, v{105+2*p}
v_lshlrev_b32 v{a}, 16, v{a+4}
v_and_b32 v{a+1}, 0xffff0000, v{a+4}
v_lshlrev_b32 v{a+2}, 16, v{a+5}
v_and_b32 v{a+3}, 0xffff0000, v{a+5}
v_add_f32 v{a}, v{a}, v{110+2*p}
v_add_f32 v{a+1}, v{a+1}, v{104+2*p}
v_pk_add_f32 {vr(a+2,2)}, {vr(a+2,2)}, {vr(a+8,2)}
v_cvt_pk_bf16_f32 v{a+4}, v{a}, v{a+1}
v_cvt_pk_bf16_f32 v{a+5}, v{a+2}, v{a+3}
buffer_store_dwordx2 {vr(a+4,2)}, v{120+p}, s[8:11], s47 offen''')


def gen_g3(opt):
    k = Kern('k4_kernel', 256, 512, 163840, nvgpr=128, nagpr=128)
    END = k.label('end')
    k(f'''s_cmp_ge_u32 s2, 256
s_cbranch_scc1 {END}
s_load_dwordx2 s[40:41], s[0:1], 80
s_load_dwordx2 s[80:81], s[0:1], 64''')
    k.stamp(True)
    map_g2(k)
    k(f'''v_lshrrev_b32 v1, 6, v0
v_and_b32 v2, 63, v0
v_readfirstlane_b32 s34, v1
v_lshlrev_b32 v3, 4, v2
v_lshlrev_b32 v2, 3, v2
s_waitcnt lgkmcnt(0)''')
    g3_wo_setup(k)
    for o in g3_wo_ops(): k(o)
    ph_g3(k, opt, False)
    k.finish(END)
    return k


def wq_role(k, base, END, half=None, fl='', sl=0):
    n = 256 if half is None else 128
    k(f'''s_sub_u32 s33, s2, {base}
s_cmp_ge_u32 s33, {n}
s_cbranch_scc1 {END}
s_load_dwordx2 s[4:5], s[0:1], 40
s_load_dwordx2 s[40:41], s[0:1], 80
{f"s_add_u32 s33, s33, 128" if half else ""}
v_lshrrev_b32 v1, 6, v0
v_and_b32 v2, 63, v0
v_readfirstlane_b32 s34, v1
v_lshlrev_b32 v3, 4, v2
v_lshrrev_b32 v4, 4, v2
v_bfe_u32 v5, v2, 2, 2
v_and_b32 v6, 3, v2
v_lshlrev_b32 v6, 4, v6
v_lshl_add_u32 v6, v4, 12, v6
v_lshl_add_u32 v6, v5, 20, v6
v_and_b32 v7, 15, v2
v_lshlrev_b32 v7, 6, v7
v_lshl_add_u32 v7, v4, 10, v7
s_lshl_b32 s39, s34, 12
v_add_u32 v7, s39, v7
s_bfe_u32 s35, s33, 0x20001
s_lshl_b32 s35, s35, 3
s_bfe_u32 s36, s33, 0x30003
s_add_u32 s35, s35, s36
s_lshr_b32 s36, s33, 6
s_and_b32 s37, s33, 1
s_lshl_b32 s42, s35, 15
s_and_b32 s43, s36, 1
s_lshl_b32 s43, s43, 14
s_add_u32 s42, s42, s43
s_lshr_b32 s43, s36, 1
s_lshl_b32 s43, s43, 22
s_add_u32 s42, s42, s43
s_lshl_b32 s43, s34, 6
s_add_u32 s42, s42, s43
s_lshl_b32 s43, s37, 11
s_add_u32 s42, s42, s43
s_lshl_b32 s44, s35, 3
s_add_u32 s44, s44, s34
s_lshl_b32 s44, s44, 15
s_lshl_b32 s43, s37, 12
s_add_u32 s44, s44, s43
s_lshl_b32 s43, s36, 10
s_add_u32 s44, s44, s43
s_waitcnt lgkmcnt(0)''')
    srd_from(k, 4, 4, 5, 0, 2048 * 4096)
    if sl: k(f's_sleep {sl}')
    M = gen_fft.OPT.get('wqm', 0)
    if M & 4:
        k('s_lshl_b32 s42, s33, 3\ns_add_u32 s42, s42, s34\ns_lshl_b32 s42, s42, 12')
        for g in range(4):
            k(f's_add_u32 m0, s39, 0')
            k(f'buffer_load_dwordx4 v3, s[4:7], s42 offen offset:{1024*g}{fl} lds')
    for g in range(4):
        if M & 6: break
        k(f's_add_u32 m0, s39, {512*g}')
        k(f'buffer_load_dwordx4 v6, s[4:7], s42 offen offset:{512*g}{fl} lds')
    srd_from(k, 8, 40, 41, WS_WS, WSP_BYTES)
    k('s_waitcnt vmcnt(0)')
    for c in range(4): k(f'ds_read_b128 {vr(8+4*c,4)}, v7 offset:{16*c}')
    for c in range(4):
        k(f's_waitcnt lgkmcnt({3-c})')
        if M & 1: continue
        k(f'buffer_store_dwordx4 {vr(8+4*c,4)}, v3, s[8:11], s44 offen{" nt" if M & 8 else ""}{" ; sc1" if M & 16 else " sc1"}')
        if c < 3: k('s_add_u32 s44, s44, 8192')
    k(f's_endpgm')
```

```python
from gen10 import *
import gen10
from gen_fft import code_srd

FT = 0x20000
FP = 0x22000
MAGIC = 0xA7C3E591


def ph_k01(k, opt, wb):
    XP = 1280; EX0 = 10240; EXP = 2576
    P = 1040; W0 = 16 * P; TB1 = 32 * P; TB2 = TB1 + 8192; TB0 = TB2 + 10240; CNT = TB1 - 16
    PREPB = k.label('prepb'); CS = k.label('cs'); NCP = k.label('ncp'); NW = k.label('nw'); FX = k.label('fx')
    HDR = """s_sub_u32 s33, s2, 168
s_mul_i32 s33, s33, 5
s_add_u32 s33, s33, s34
s_sub_u32 s33, s33, 3
s_mov_b32 s47, s32
"""
    IDLE = k.label('idle'); JOIN = k.label('join'); J1 = k.label('j1'); TAIL = k.label('tail'); PD = k.label('pd'); NF = k.label('nf')
    l0 = len(k.lines)
    k(f'''s_load_dwordx2 s[4:5], s[0:1], 0
s_load_dwordx2 s[40:41], s[0:1], 80
s_load_dwordx4 s[52:55], s[0:1], 8
s_load_dwordx2 s[62:63], s[0:1], 32
s_load_dwordx2 s[64:65], s[0:1], 56
s_load_dwordx2 s[72:73], s[0:1], 40''')
    tab_srd(k, 12)
    k(f'''s_and_b32 s33, s2, 7
s_lshl_b32 s3, s33, 5
s_lshr_b32 s36, s2, 3
s_add_u32 s3, s3, s36
v_lshrrev_b32 v1, 6, v0
v_and_b32 v2, 63, v0
v_readfirstlane_b32 s34, v1
v_lshlrev_b32 v3, 4, v2
''')
    CP0 = opt.get('cp0', 2)
    if CP0:
        k(f's_cmp_ge_u32 s34, {CP0}\ns_cbranch_scc1 {NCP}')
        code_srd(k, 68, CS, 'code_end')
        k(f'''v_lshlrev_b32 v100, 7, v2
s_lshl_b32 s33, s34, 13
buffer_load_ubyte v103, v100, s[68:71], s33 offen
{NCP}:''')
    k(f'''{CS}:
s_lshl_b32 s38, s34, 10
s_add_u32 m0, s38, {TB0}
buffer_load_dwordx4 v3, s[12:15], s38 offen lds
s_lshl_b32 s35, s34, 8
s_add_u32 s35, s35, s3
s_mul_i32 s35, s35, 1280
v_lshlrev_b32 v58, 3, v2
v_lshlrev_b32 v59, 2, v2
v_and_b32 v50, 15, v2
v_lshrrev_b32 v51, 4, v2
s_waitcnt lgkmcnt(0)''')
    srd_from(k, 4, 4, 5, 0, X_BYTES)
    k(f'''buffer_load_dwordx2 v[4:5], v58, s[4:7], s35 offen
buffer_load_dwordx2 v[6:7], v58, s[4:7], s35 offen offset:512
buffer_load_dword v8, v59, s[4:7], s35 offen offset:1024''')
    vm = Cnt('vmcnt', 63); vm.issue('x')
    srd_from(k, 8, 40, 41, WS_T, TU_BYTES)
    PA = k.label('pa'); PB = k.label('pb'); PL = opt.get('pl', 6)
    k(f'''s_mul_i32 s32, s34, {14*1024}
s_add_u32 s32, s32, {31*1024}
s_min_u32 s32, s32, {126*1024}
s_add_u32 s32, s32, {BB}
s_cmp_ge_u32 s2, 168
s_cselect_b32 s100, 3, 8
s_cselect_b32 s101, {PL}, 8
s_cmp_lt_u32 s34, s101
s_cbranch_scc1 {PA}''')

    def prepa():
        i0 = len(k.lines)
        prep_inl(k, 'A', 0, None, hdr=HDR)
        for j in range(i0, len(k.lines)):
            l = re.sub(r'\bv10([456])\b', lambda m: f'v{96+int(m.group(1))-4}', k.lines[j])
            if l.startswith('buffer_load') and opt.get('ntm', 0) & 1: l = l[:-4] + ' nt lds'
            k.lines[j] = l
    prepa()
    k(f'{PA}:')
    if opt.get('twe', 1):
        k(f'''s_lshl_b32 s33, s3, 6
s_add_u32 s33, s33, 32768
s_load_dwordx16 s[16:31], s[12:13], s33
s_load_dwordx2 s[80:81], s[0:1], 64''')

    def late():
        k(f'''s_add_u32 m0, s38, {TB1}
s_add_u32 s37, s38, 0x2000
buffer_load_dwordx4 v3, s[12:15], s37 offen lds
s_min_u32 s39, s34, 4
s_lshl_b32 s39, s39, 11
s_add_u32 m0, s39, {TB2}
s_add_u32 s37, s39, 0x4000
buffer_load_dwordx4 v3, s[12:15], s37 offen lds
buffer_load_dwordx4 v3, s[12:15], s37 offen offset:1024 lds''')
        for _ in range(3): vm.issue('t')

    LT = opt.get('flt', 0)
    if LT == 0: late()
    w_setup(k, 46, 47); w_vaddr(k, 124, 125)
    WT0 = opt.get('wtn', 0); WP = opt.get('wp', 0)

    def wt0():
        k(f'''s_andn2_b32 s46, s82, 0xfff
s_and_b32 s47, s34, 1
s_lshl_b32 s47, s47, 13
s_add_u32 s46, s46, s47
s_cmp_ge_u32 s34, 6
s_cselect_b32 s46, s46, {BIG}
v_lshlrev_b32 v100, 7, v2''')
        for n in range(WT0):
            k('buffer_load_ubyte v123, v100, s[72:75], s46 offen'); vm.issue('c')
            if n < WT0 - 1: k('s_add_u32 s46, s46, 0x100000')
    if WT0 and WP == 0: wt0()
    q = Bulk(k, wb.ops); wb.ops = []
    k(f'''s_mul_i32 s39, s34, {XP}
v_add_u32 v62, s32, v58
v_add_u32 v63, s32, v59
v_add_u32 v58, s39, v58
v_add_u32 v59, s39, v59
v_lshrrev_b32 v52, 2, v50
v_and_b32 v53, 3, v50
v_lshl_add_u32 v54, v51, 3, v52
v_add_u32 v55, 4, v54
v_subrev_u32 v56, 20, v54
v_min_u32 v54, v54, v56
v_subrev_u32 v56, 20, v55
v_min_u32 v55, v55, v56
v_lshlrev_b32 v53, 3, v53
v_lshl_add_u32 v54, v54, 6, v53
v_lshl_add_u32 v55, v55, 6, v53
v_add_u32 v54, s39, v54
v_add_u32 v55, s39, v55
s_mul_i32 s42, s34, {EXP}
s_add_u32 s42, s42, {EX0}
v_mul_u32_u24 v56, 80, v51
v_add_u32 v57, v56, v50
v_lshlrev_b32 v57, 3, v57
v_add_u32 v60, s42, v57
v_sub_u32 v61, {8*260}, v57
v_add_u32 v61, s42, v61
v_mov_b32 v126, {CNT}
v_mov_b32 v127, 0
ds_write_b32 v126, v127''')
    SB = opt.get('sb', 1)

    def vw2(n):
        L = k.label('pb')
        k(f'''s_cmp_lt_u32 s34, s101
s_cbranch_scc1 {L}
s_waitcnt vmcnt({n+8})
s_branch {L}x
{L}:
s_waitcnt vmcnt({n})
{L}x:''')

    def xwait():
        vw2(len(vm.tags) - 1)
        vm.done = 1
        st(k, 7, 1); st(k, 5, 1)
        if opt.get('xs'):
            k('''ds_write_b64 v62, v[4:5] offset:8192
ds_write_b64 v62, v[6:7] offset:8704
ds_write_b32 v63, v8 offset:9216''')
    if SB: vw2(len(vm.tags) + 2)
    else: xwait()
    k('s_barrier')
    for i in range(8): k(f'ds_read_b128 {vr(64+4*i,4)}, v3 offset:{TB0+1024*i}')
    if not opt.get('twe', 1):
        k(f'''s_lshl_b32 s33, s3, 6
s_add_u32 s33, s33, 32768
s_load_dwordx16 s[16:31], s[12:13], s33
s_load_dwordx2 s[80:81], s[0:1], 64''')
    if LT == 1: late()
    srd_from(k, 56, 40, 41, WS_FL, 0x80000)
    k(f'''s_lshl_b32 s33, s2, 10
s_cmp_lt_u32 s2, 128
s_cselect_b32 s43, s33, {BIG}
s_add_u32 s33, s33, 0x40000
s_cmp_eq_u32 s34, 1
s_cselect_b32 s33, s33, {BIG}
s_cselect_b32 s44, -1, 0
s_cmp_eq_u32 s34, 0
s_cselect_b32 s33, s43, s33
v_mov_b32 v120, s44
v_mov_b32 v121, s44
v_mov_b32 v122, s44
v_mov_b32 v123, s44
buffer_store_dwordx4 v[120:123], v3, s[56:59], s33 offen''')
    IP = opt.get('ip', 0)
    if not IP: k(f'''s_mul_i32 s33, s3, {8*TP}
s_add_u32 s33, s33, {WS_U}
s_add_u32 s56, s40, s33
s_addc_u32 s57, s41, 0
s_mov_b32 s58, {8*TP}
v_mov_b32 v116, -1
v_mov_b32 v117, -1
v_mov_b32 v118, -1
v_mov_b32 v119, -1
v_lshlrev_b32 v125, 4, v0
s_movk_i32 s33, 0x2000
buffer_store_dwordx4 v[116:119], v125, s[56:59], 0 offen
buffer_store_dwordx4 v[116:119], v125, s[56:59], s33 offen''')
    for _ in range(1 if IP else 3): vm.issue('f')
    if not opt.get('nopf'):
        code_srd(k, 68, CS, 'code_end')
        k(f'''s_cmp_ge_u32 s34, 6
s_cselect_b32 s70, s70, 0
s_bfe_u32 s33, s2, 0x30003
s_lshl_b32 s33, s33, 13
s_and_b32 s43, s34, 1
s_lshl_b32 s43, s43, 16
s_add_u32 s33, s33, s43
s_add_u32 s33, s33, {8192*CP0}
v_lshlrev_b32 v100, 7, v2
buffer_load_ubyte v122, v100, s[68:71], s33 offen''')
        vm.issue('c')
    k(f'''s_bitcmp1_b32 s34, 0
s_cselect_b32 s68, s54, s52
s_cselect_b32 s69, s55, s53
s_cmp_ge_u32 s34, 6
s_cselect_b32 s70, {0 if opt.get('xT') else 2048*642}, 0
s_mov_b32 s71, 0x00020000
v_and_b32 v100, 7, v2
v_lshlrev_b32 v100, 7, v100
v_min_u32 v100, 671, v100
v_lshrrev_b32 v102, 3, v2
v_mul_u32_u24 v102, {8*642}, v102
v_add_u32 v100, v100, v102
s_and_b32 s33, s2, 7
s_lshr_b32 s37, s2, 3
s_lshl_b32 s37, s37, 6
s_add_u32 s33, s33, s37
s_mul_i32 s33, s33, 642
buffer_load_ubyte v123, v100, s[68:71], s33 offen''')
    vm.issue('c')
    if WT0 and WP == 1: wt0()
    if SB: xwait()
    if WT0 and WP == 2: wt0()
    i0 = len(k.lines)
    for i in range(5):
        k(f'v_lshlrev_b32 v{10+2*i}, 16, v{4+i}\nv_and_b32 v{11+2*i}, 0xffff0000, v{4+i}')
    k('''v_pk_add_f32 v[20:21], v[10:11], v[12:13]
v_pk_mul_f32 v[22:23], v[10:11], v[10:11]
v_pk_add_f32 v[24:25], v[14:15], v[16:17]
v_pk_fma_f32 v[22:23], v[12:13], v[12:13], v[22:23]
v_pk_add_f32 v[20:21], v[20:21], v[18:19]
v_pk_fma_f32 v[22:23], v[14:15], v[14:15], v[22:23]
v_pk_add_f32 v[20:21], v[20:21], v[24:25]
v_pk_fma_f32 v[22:23], v[16:17], v[16:17], v[22:23]
v_pk_fma_f32 v[22:23], v[18:19], v[18:19], v[22:23]
v_add_f32 v20, v20, v21
v_add_f32 v22, v22, v23''')
    wave_reduce2(k, 20, 22, 36, 37)
    ln_stats(k, 36, 37, 640, 20, 22, 24)
    ln_apply(k, 10, 10, 20, 22, 4)
    k('''ds_write_b64 v58, v[4:5]
ds_write_b64 v58, v[6:7] offset:512
ds_write_b32 v59, v8 offset:1024
s_waitcnt lgkmcnt(0)
ds_read_b64_tr_b16 v[4:5], v54
ds_read_b64_tr_b16 v[6:7], v55
ds_read_b64_tr_b16 v[8:9], v54 offset:32
ds_read_b64_tr_b16 v[10:11], v55 offset:32
s_waitcnt lgkmcnt(2)''')
    k(f'''{MFMA} v[12:15], v[4:7], v[64:67], 0
{MFMA} v[16:19], v[4:7], v[68:71], 0
s_waitcnt lgkmcnt(0)
{MFMA} v[20:23], v[8:11], v[64:67], 0
{MFMA} v[24:27], v[8:11], v[68:71], 0''')
    cmul_planar(k, 12, 16, 72, 76, 28, 32, 44)
    cmul_planar(k, 20, 24, 80, 84, 36, 40, 44)
    for t in range(2):
        for h in range(2):
            re_ = 28 + 8 * t + 2 * h; im = 32 + 8 * t + 2 * h; o = 2 * t + h
            k(f'''v_cvt_pk_bf16_f32 v{4+o}, v{re_}, v{re_+1}
v_cvt_pk_bf16_f32 v{8+o}, v{im}, v{im+1}
v_cvt_pk_bf16_f32 v{12+o}, -v{im}, -v{im+1}
v_cvt_pk_bf16_f32 v{16+o}, v{re_}, -v{re_+1}
v_cvt_pk_bf16_f32 v{20+o}, v{im}, -v{im+1}
v_cvt_pk_bf16_f32 v{24+o}, -v{im}, v{im+1}''')
    k(f'''{MFMA} v[28:31], v[88:91], v[4:7], 0
{MFMA} v[32:35], v[92:95], v[4:7], 0
{MFMA} v[36:39], v[88:91], v[16:19], 0
{MFMA} v[40:43], v[92:95], v[16:19], 0
{MFMA} v[28:31], v[92:95], v[12:15], v[28:31]
{MFMA} v[32:35], v[88:91], v[8:11], v[32:35]
{MFMA} v[36:39], v[92:95], v[24:27], v[36:39]
{MFMA} v[40:43], v[88:91], v[20:23], v[40:43]''')
    k('''s_mov_b32 exec_lo, 0x07ff07ff
s_mov_b32 exec_hi, 0x07ff07ff''')
    for r in range(4):
        k(f'ds_write2_b32 v60, v{28+r}, v{32+r} offset0:{40*r} offset1:{40*r+1}')
    for r in range(4):
        k(f'v_xor_b32 v{40+r}, 0x80000000, v{40+r}')
    for r in range(4):
        k(f'ds_write2_b32 v61, v{36+r}, v{40+r} offset0:{40*(3-r)} offset1:{40*(3-r)+1}')
    k('s_mov_b64 exec, -1')
    srd_from(k, 68, 40, 41, WS_FL, FL_BYTES)
    k(vm.wait('f'))
    k('s_waitcnt lgkmcnt(0)')
    st(k, 7, 2); st(k, 5, 2)
    k('s_barrier')
    k(f'''v_cmp_gt_u32 vcc, {TP//4}, v0
s_and_saveexec_b64 s[44:45], vcc
s_cbranch_execz {TAIL}
v_lshlrev_b32 v1, 3, v0
v_lshlrev_b32 v2, 2, v0''')
    for n in range(8):
        k(f'ds_read_b64 {vr(4+2*n,2)}, v1 offset:{EX0+n*EXP}')
    k(f'''v_mov_b32 v40, 0x3f3504f3
s_mul_i32 s46, s3, {8*TP}
s_add_u32 s47, s46, {3*TP}
s_add_u32 s48, s46, {6*TP}
s_waitcnt lgkmcnt(0)
s_barrier''')
    st(k, 7, 3); st(k, 5, 3)
    T = fft8(k, 4, 20, False, 40)
    for k2 in range(8):
        if k2 == 0:
            k(f'v_cvt_pk_bf16_f32 v4, v{T[0]}, v{T[0]+1}')
        else:
            smul(k, T[k2], T[k2], 16 + 2 * k2, 42 + 2 * (k2 & 1))
            k(f'v_cvt_pk_bf16_f32 v{4+k2}, v{T[k2]}, v{T[k2]+1}')
        if IP: k(f'v_and_b32 v{4+k2}, -2, v{4+k2}')
        k(f'buffer_store_dword v{4+k2}, v2, s[8:11], s{46+k2//3} offen offset:{(k2%3)*TP}')
    k('s_mov_b64 exec, -1')
    st(k, 7, 4)
    k(f'''s_bfe_u32 s42, s3, 0x30001
s_lshl_b32 s42, s42, 7
s_lshr_b32 s43, s3, 4
s_lshl_b32 s43, s43, 3
s_add_u32 s42, s42, s43
s_and_b32 s43, s3, 1
s_lshl_b32 s43, s43, 2
s_add_u32 s42, s42, s43
s_add_u32 s42, s42, {FT}
v_lshlrev_b32 v12, 6, v3
v_mov_b32 v13, {MAGIC}
v_mov_b32 v127, 1
s_mov_b64 exec, 1
s_waitcnt vmcnt(0)
ds_add_rtn_u32 v127, v126, v127
s_waitcnt lgkmcnt(0)
v_readfirstlane_b32 s43, v127
s_mov_b64 exec, 0xff
s_and_b32 s43, s43, 0xff
s_cmp_lg_u32 s43, 5
s_cbranch_scc1 {NF}
buffer_store_dword v13, v12, s[68:71], s42 offen
{NF}:
s_mov_b64 exec, -1''')
    st(k, 7, 5)
    CADD = f's_mov_b64 exec, 1\nv_mov_b32 v127, 0x100\nds_add_u32 v126, v127\ns_mov_b64 exec, -1'
    k(f'''v_and_b32 v2, 63, v0
s_cmp_ge_u32 s34, s100
s_cbranch_scc1 {PREPB}
{CADD}
s_branch {J1}
{TAIL}:
s_mov_b64 exec, -1
s_barrier''')
    st(k, 7, 3); st(k, 5, 3)
    k(f's_cmp_lt_u32 s34, s100\ns_cbranch_scc1 {J1}\n{PREPB}:')
    if opt.get('tch') == 2: k(CADD)
    if PL > 3:
        if opt.get('pd'): k(f's_sleep {opt["pd"]}')
        k(f's_cmp_ge_u32 s34, s101\ns_cbranch_scc1 {PB}')
        prepa()
        k(f's_waitcnt vmcnt(0)\n{PB}:')
    i0 = len(k.lines)
    prep_inl(k, 'B', 0, PD, 63, hdr=HDR)
    for j in range(i0, len(k.lines)):
        k.lines[j] = re.sub(r'\bs5([01])\b', lambda m: f's{24+int(m.group(1))}', k.lines[j])
    k(f'''{PD}:
{CADD if not opt.get('tch') else ''}
s_lshl_b32 s42, s33, 2
s_add_u32 s42, s42, {FP}
v_lshlrev_b32 v12, 7, v3
v_mov_b32 v13, {MAGIC}
s_lshl_b32 s33, s3, 6
s_add_u32 s33, s33, 32768
s_load_dwordx16 s[16:31], s[12:13], s33''')
    st(k, 7, 6); st(k, 5, 9)
    k(f'''s_mov_b64 exec, 0xff
s_waitcnt vmcnt(0)
buffer_store_dword v13, v12, s[68:71], s42 offen
s_mov_b64 exec, -1
{CADD if opt.get('tch') == 1 else ''}''')
    st(k, 7, 7)
    for j in range(l0, len(k.lines)):
        l = k.lines[j]
        if l.startswith('buffer_store') and 'sc1' not in l: k.lines[j] = l + ' sc1'
    k(f'{J1}:')
    vm = Cnt('vmcnt', 63); vm.issue('q')
    IIM = 'v[112:115]'; IRE = 'v[114:117]'; FIM = 'v[116:119]'; FRE = 'v[118:121]'
    k(f"""v_and_b32 v4, 15, v2
v_lshrrev_b32 v5, 4, v2""")
    k(f"""s_and_b32 s33, s2, 7
s_lshr_b32 s35, s2, 3
v_lshrrev_b32 v7, 2, v2
v_and_b32 v8, 3, v2
v_mul_u32_u24 v6, {16*8*TP}, v7
v_lshl_add_u32 v6, v8, 4, v6
s_lshl_b32 s36, s34, 4
s_add_u32 s36, s36, s33
s_mul_i32 s36, s36, {TP}
s_lshl_b32 s37, s35, 6
s_add_u32 s36, s36, s37
s_add_u32 s42, s36, {8*TP}
s_and_b32 s37, s33, {1-IP}
s_lshl_b32 s37, s37, 2
s_sub_u32 s43, s36, s37
s_sub_u32 s44, s42, s37
s_lshl_b32 s45, s33, 10
s_lshl_b32 s49, s33, 11
s_add_u32 s49, s49, {FP}
s_lshl_b32 s37, s34, 7
s_add_u32 s45, s45, s37
s_add_u32 s45, s45, {FT}
v_and_b32 v9, 31, v2
v_lshlrev_b32 v9, 2, v9""")
    srd_from(k, 60, 40, 41, WS_T, TU_BYTES)
    srd_from(k, 8, 40, 41, WS_T if IP else WS_U, TU_BYTES)
    srd_from(k, 64, 40, 41, WS_WI, WI_BYTES)
    g1id(k, 58, 57)
    k(f"""s_and_b32 s58, s58, 15
s_mul_i32 s58, s58, {140*1024}
s_mov_b32 s56, s32
s_sub_u32 s57, s32, {BB}
s_add_u32 s57, s57, s58""")
    bops = []
    for i in range(14):
        o = f's_add_u32 m0, s56, {1024*(i-i%4)}\n'
        if i % 4 == 0 and i: o += 's_add_u32 s57, s57, 4096\n'
        bops.append(o + f'buffer_load_dwordx4 v3, s[64:67], s57 offen offset:{1024*(i%4)} lds')
    KW = opt.get('KW', [0, 0, 0]); K9 = opt.get('K9', 8); KT = opt.get('KT', 0); KA = opt.get('KA', 0)
    wrest = list(q.ops)
    nw1 = min(len(wrest), KA + KT + KW[0] + KW[1])
    rest = wrest[nw1:] + bops
    if opt.get('bo'): rest = bops + wrest[nw1:]
    post = rest[K9:]
    assert not opt.get('bo') and K9 <= len(wrest) - nw1 and 8 * opt.get('wte', 0) <= nw1
    if opt.get('wt67'): assert K9 == len(wrest) - nw1
    assert len(post) <= KW[2], (len(post), KW)

    def pld():
        k('buffer_load_dwordx4 v[24:27], v3, s[68:71], s49 offen sc1\nbuffer_load_dwordx4 v[28:31], v3, s[68:71], s49 offen offset:736 sc1')

    def pchk(n):
        LP = k.label('lp'); LD = k.label('ld'); L1 = k.label('l1')
        k(f's_mov_b32 s43, {SPIN}\ns_waitcnt vmcnt({n})\ns_branch {L1}\n{LP}:\ns_sleep 4')
        pld()
        k(f'''s_waitcnt vmcnt(0)
{L1}:
v_min3_u32 v13, v24, v25, v26
v_max3_u32 v14, v24, v25, v26
v_min3_u32 v13, v13, v27, v28
v_max3_u32 v14, v14, v27, v28
v_min3_u32 v13, v13, v29, v30
v_max3_u32 v14, v14, v29, v30
v_min_u32 v13, v13, v31
v_max_u32 v14, v14, v31
v_xor_b32 v13, {MAGIC}, v13
v_xor_b32 v14, {MAGIC}, v14
v_or_b32 v24, v13, v14
v_cmp_ne_u32 vcc, 0, v24
s_cbranch_vccz {LD}
s_sub_u32 s43, s43, 1
s_cmp_lg_u32 s43, 0
s_cbranch_scc1 {LP}
{LD}:''')
    k(f's_cmp_ge_u32 s2, 168\ns_cbranch_scc1 {IDLE}')
    q = Bulk(k, wrest[:nw1])
    k(f"""v_mul_u32_u24 v10, {4*P}, v8
v_lshl_add_u32 v10, v7, 2, v10
s_lshl_b32 s37, s34, 7
v_add_u32 v10, s37, v10
v_lshlrev_b32 v12, 6, v4
v_lshl_add_u32 v12, v5, 4, v12
s_mul_i32 s37, s34, {2*P}
v_add_u32 v12, s37, v12""")
    k(f"""ds_read_b128 v[96:99], v3 offset:{TB1}
ds_read_b128 v[100:103], v3 offset:{TB1+1024}
ds_read_b128 v[104:107], v3 offset:{TB1+2048}
ds_read_b128 v[108:111], v3 offset:{TB1+3072}
ds_read_b128 v[118:121], v3 offset:{TB1+4096}
ds_read_b64 v[116:117], v3 offset:{TB1+5120}
ds_read_b128 v[112:115], v3 offset:{TB1+7168}""")
    st(k, 7, 6)
    assert opt.get('xs')
    LP = k.label('lp'); LD = k.label('ld'); L1 = k.label('l1')
    PL = 'buffer_load_dword v13, v9, s[68:71], s45 offen sc1'
    q(KA, None, 124)
    WLD = """buffer_load_dwordx3 v[80:82], v14, s[52:55], s39 offen
buffer_load_dwordx3 v[88:90], v14, s[4:7], s39 offen
buffer_load_dwordx3 v[84:86], v14, s[52:55], s37 offen
buffer_load_dwordx3 v[92:94], v14, s[4:7], s37 offen
s_and_b32 s39, s33, 1
s_lshl_b32 s39, s39, 4""" if IP else """buffer_load_dwordx2 v[64:65], v14, s[52:55], s39 offen
buffer_load_dwordx2 v[68:69], v14, s[4:7], s39 offen
buffer_load_dwordx2 v[66:67], v14, s[52:55], s37 offen
buffer_load_dwordx2 v[70:71], v14, s[4:7], s37 offen"""
    WF = opt.get('wf', 0)
    WA = f'''s_lshl_b32 s39, s34, 4
s_add_u32 s39, s39, s33
s_mul_i32 s39, s39, 642
s_lshl_b32 s37, s35, 5
s_add_u32 s39, s39, s37
s_and_b32 s39, s39, -4
{f"s_mov_b32 s39, {BIG}" if opt.get('xW') else ""}
s_add_u32 s37, s39, {8*642}
v_mul_u32_u24 v14, {16*8*642}, v7
v_lshl_add_u32 v14, v8, 3, v14
s_mov_b32 s4, s54
s_mov_b32 s5, s55
s_mov_b32 s54, {2048*642}
s_mov_b32 s55, 0x00020000
s_mov_b32 s6, {2048*642}
s_mov_b32 s7, 0x00020000
{WLD}
s_mov_b32 s47, 0x05040100
s_mov_b32 s48, 0x07060302'''

    def wput():
        if IP:
            for j in range(8): k(f'v_alignbit_b32 v{64+j}, v{81+4*(j//2)+(j&1)}, v{80+4*(j//2)+(j&1)}, s39')
        for j in range(8):
            k(f'v_perm_b32 v{72+j}, v{68+j//2}, v{64+j//2}, s{47+(j&1)}')
            k(f'ds_write_b32 v10, v{72+j} offset:{W0+(j&3)*P+64*(j>>2)}')
    if WF:
        if opt.get('wd0'): k(f's_sleep {opt["wd0"]}')
        k(WA)
    if opt.get('td'): k(f's_sleep {opt["td"]}')
    if WF:
        k('s_waitcnt vmcnt(0)')
        st(k, 7, 6)
        k(PL)
        wput()
    else: k(PL + '\n' + WA)
    k(f'''s_mov_b32 s46, {SPIN}
s_waitcnt vmcnt({0 if WF else 4})
s_branch {L1}
{LP}:
{f"s_sleep {opt['tsl']}" if opt.get('tsl') else ""}
{PL}
s_waitcnt vmcnt(0)
{L1}:
v_cmp_ne_u32 vcc, {MAGIC}, v13
s_cbranch_vccz {LD}
s_sub_u32 s46, s46, 1
s_cmp_lg_u32 s46, 0
s_cbranch_scc1 {LP}
{LD}:''')
    st(k, 7, 7)
    vm.done = len(vm.tags)
    for i in range(2):
        k(f'buffer_load_dwordx4 {vr(16+4*i,4)}, v6, s[60:63], s{43+i} offen'); vm.issue(f'T{i}')
    if not WF:
        k('s_waitcnt vmcnt(2)')
        wput()
    q(KT, vm, 124, 'q')
    for i in range(2):
        k(vm.wait(f'T{i}'))
        if i == 0: st(k, 4, 1); st(k, 7, 8)
        for j in range(4):
            k(f'ds_write_b32 v10, v{16+4*i+j} offset:{j*P+64*i}')
    k('s_waitcnt lgkmcnt(0)\ns_barrier')
    NC = 2
    i0 = len(k.lines)
    k(f"""ds_read_b128 v[16:19], v12
ds_read_b128 v[20:23], v12 offset:{P}
ds_read_b128 v[32:35], v12 offset:{W0}
ds_read_b128 v[36:39], v12 offset:{W0+P}
s_waitcnt lgkmcnt(3)
{MFMA} v[48:51], v[16:19], v[96:99], 0
{MFMA} v[52:55], v[16:19], v[100:103], 0
s_waitcnt lgkmcnt(2)
{MFMA} v[56:59], v[20:23], v[96:99], 0
{MFMA} v[60:63], v[20:23], v[100:103], 0
s_waitcnt lgkmcnt(0)""")
    for c in range(NC):
        for r in range(4):
            k(f'v_lshlrev_b32 v{64+8*c+r}, 16, v{32+4*c+r}\nv_and_b32 v{68+8*c+r}, 0xffff0000, v{32+4*c+r}')

    def pack(c, re, im):
        k(f"""v_cvt_pk_bf16_f32 v{16+4*c}, v{re}, v{re+1}
v_cvt_pk_bf16_f32 v{17+4*c}, v{re+2}, v{re+3}
v_cvt_pk_bf16_f32 v{18+4*c}, v{im}, v{im+1}
v_cvt_pk_bf16_f32 v{19+4*c}, v{im+2}, v{im+3}""")
    for c in range(NC):
        cmul_planar(k, 48 + 8 * c, 52 + 8 * c, 104, 108, 80, 84, 88)
        pack(c, 80, 84)
        k(f'{MFMA} {vr(48+8*c,4)}, {FRE}, {vr(16+4*c,4)}, 0')
        k(f'{MFMA} {vr(52+8*c,4)}, {FIM}, {vr(16+4*c,4)}, 0')
    weave_in(k, i0, q, KW[0], vm, 124)
    st(k, 4, 2)
    i0 = len(k.lines)
    for c in range(NC):
        cmul_planar(k, 48 + 8 * c, 52 + 8 * c, 64 + 8 * c, 68 + 8 * c, 80, 84, 88)
        pack(c, 80, 84)
        k(f'{MFMA} {vr(48+8*c,4)}, {vr(16+4*c,4)}, {IRE}, 0')
        k(f'{MFMA} {vr(52+8*c,4)}, {vr(16+4*c,4)}, {IIM}, 0')
    for c in range(NC):
        cmul_planar(k, 48 + 8 * c, 52 + 8 * c, 104, 108, 80, 84, 88, conj=True)
        pack(c, 80, 84)
        k(f'{MFMA} {vr(48+8*c,4)}, {IRE}, {vr(16+4*c,4)}, 0')
        k(f'{MFMA} {vr(52+8*c,4)}, {IIM}, {vr(16+4*c,4)}, 0')
    weave_in(k, i0, q, KW[1], vm, 124)
    assert not q.ops
    pld()
    for c in range(NC):
        for r in range(4):
            k(f'v_cvt_pk_bf16_f32 v{16+4*c+r}, v{48+8*c+r}, v{52+8*c+r}')
        if IP:
            for r in range(4): k(f'v_or_b32 v{16+4*c+r}, 1, v{16+4*c+r}')
        k(f'ds_write_b128 v12, {vr(16+4*c,4)} offset:{c*P}')
    k('s_waitcnt lgkmcnt(0)\ns_barrier')
    for i in range(2):
        for j in range(4):
            k(f'ds_read_b32 v{16+4*i+j}, v10 offset:{j*P+64*i}')
    for i in range(10): k(f'ds_read_b128 {vr(64+4*i,4)}, v3 offset:{TB2+1024*i}')
    for i in range(2):
        k(f's_waitcnt lgkmcnt({14-4*i})')
        k(f'buffer_store_dwordx4 {vr(16+4*i,4)}, v6, s[8:11], {["s36","s42"][i]} offen sc1')
    st(k, 4, 3); st(k, 7, 9)
    if opt.get('ob2'): k('s_barrier')
    pchk(2)
    Bulk(k, rest[:K9])(99, None, 124)
    k(f's_branch {JOIN}\n{IDLE}:')
    IT = opt.get('it', 2)
    if IT:
        LP = k.label('lp'); LD = k.label('ld')
        k(f'''s_cmp_ge_u32 s34, 3
s_cbranch_scc1 {LD}x
s_sub_u32 s43, s35, 21
s_and_b32 s44, s33, 1
s_mul_i32 s44, s44, 11
s_add_u32 s43, s43, s44
s_mul_i32 s44, s34, 22
s_add_u32 s44, s44, s43
s_lshr_b32 s46, s33, 1
s_lshl_b32 s46, s46, 18
v_lshlrev_b32 v10, 7, v2
s_mov_b32 s43, {SPIN}
{LP}:
ds_read_b32 v11, v126
s_waitcnt lgkmcnt(0)
v_cmp_gt_u32 vcc, 0x800, v11
s_cbranch_vccz {LD}
s_sleep 1
s_sub_u32 s43, s43, 1
s_cmp_lg_u32 s43, 0
s_cbranch_scc1 {LP}
{LD}:''')
        if opt.get('itd'): k(f's_sleep {opt["itd"]}')
        for r in range(4):
            k(f'''s_and_b32 s47, s44, 31
s_lshl_b32 s47, s47, 13
s_lshr_b32 s48, s44, 5
s_lshl_b32 s48, s48, 20
s_add_u32 s47, s47, s48
s_add_u32 s47, s47, s46
buffer_load_ubyte v11, v10, s[72:75], s47 offen
s_add_u32 s44, s44, 66''')
        k(f'{LD}x:')
    k('s_barrier')
    Bulk(k, wrest[:nw1])(99, None, 124)
    for i in range(10): k(f'ds_read_b128 {vr(64+4*i,4)}, v3 offset:{TB2+1024*i}')
    pld()
    pchk(0)
    Bulk(k, rest[:K9])(99, None, 124)
    if opt.get('idl'): k(f's_sleep {opt["idl"]}')
    k(f'{JOIN}:')
    ph_k2b(k, opt, post, 0, True)


def clean(k):
    NC_ = k.label('nc')
    k(f'''s_cmp_lg_u32 s34, 0
s_cbranch_scc1 {NC_}
s_bfe_u32 s42, s2, 0x30004
s_lshl_b32 s42, s42, 7
s_and_b32 s43, s2, 7
s_lshl_b32 s43, s43, 4
s_add_u32 s42, s42, s43
s_lshr_b32 s43, s2, 7
s_lshl_b32 s43, s43, 3
s_add_u32 s42, s42, s43
s_bfe_u32 s43, s2, 0x10003
s_lshl_b32 s43, s43, 2
s_add_u32 s42, s42, s43
s_add_u32 s42, s42, {FT}
s_lshl_b32 s43, s2, 3
s_add_u32 s43, s43, {FP}
v_lshlrev_b32 v4, 6, v3
v_lshlrev_b32 v5, 7, v3
v_mov_b32 v6, 0
v_mov_b32 v7, 0
s_mov_b64 exec, 0xff
buffer_store_dword v6, v4, s[68:71], s42 offen sc1
buffer_store_dwordx2 v[6:7], v5, s[68:71], s43 offen sc1
s_mov_b64 exec, -1
{NC_}:''')


def gen_f(opt):
    k = Kern('kf_kernel', 256, 512, 163840, nvgpr=128, nagpr=128)
    END = k.label('end'); G2 = k.label('g2'); G3 = k.label('g3')
    k(f's_cmp_ge_u32 s2, 256\ns_cbranch_scc1 {END}')
    k.stamp(True)
    wb = Bulk(k, g2_wops())
    ph_k01(k, opt, wb)
    ph_g1t(k, opt, G2, wb)
    k(f'{G2}:')
    st(k, 0, 6)
    vm = Cnt('vmcnt', 63); vm.issue('w')
    g3_wo_setup(k)
    ph_g2(k, opt, G3, vm, True, g3_wo_ops())
    k(f'{G3}:')
    ph_g3(k, opt, True)
    clean(k)
    k.finish(END)
    return [k]
```

```python
import sys, re
from asmlib import *
from tables import build_tab
import gen_fft, gen3, gen10
opt = dict(lv=4, k0i=1, us=1, npf1=0, sf0=2, lt=1, k1c=1, wd=2, sh=2, k1wp=0, sfu=2, fullt=1, fz=1, fzn=128, pxd=10, pxs=6, g1d=8, g2d=8, g3d=8, p8=1, pp=1, G2R=3, N0=4, NZ=10)
for a in sys.argv[2:]:
    if a == 'prof': Kern.prof = True
    elif '=' in a:
        v = a.split('=')[1]
        opt[a.split('=')[0]] = [int(x) for x in v.split(',')] if ',' in v else int(v)
    else: opt[a] = 1
gen_fft.OPT = opt
Kern.dbgp = opt.get('dbgp')
gen10.PV = opt.get('pv', 0)
gen10.ROT = opt.get('rot', 0)
gen10.W128 = opt.get('w128', 0)
gen10.G1S = opt.get('g1s', 0)
gen10.GV = opt.get('gv', 0)
if gen10.GV: assert opt.get('g1t')
if gen10.W128: assert opt.get('wt1')[1] == 0 and not opt.get('wt0')
gen10.FS = opt.get('FS', 7)
if opt.get('spin'): gen10.SPIN = opt['spin']
if opt.get('fu') == 2:
    import gen12
    ks = gen12.gen_f(opt)
elif opt.get('fu'):
    import gen11
    ks = gen11.gen_f(opt)
else: ks = gen10.build(opt)
for k in ks:
    for j, l in enumerate(k.lines):
        if not l.startswith('buffer_store') or 's[96:99]' in l or 'sc1' in l: continue
        if k.name in ('k0_kernel',): k.lines[j] = l + ' sc1'
NT = opt.get('ntm', 0)
for k in ks:
    for j, l in enumerate(k.lines):
        k0 = k.name == 'k0_kernel'
        add = False
        if k0 and NT & 1 and l.startswith('buffer_load') and 's[20:23]' in l: add = True
        if k0 and NT & 2 and l.startswith('buffer_load') and 's[4:7]' in l: add = True
        if not k0 and NT & 4 and l.startswith('buffer_load_dwordx4') and 's[72:75]' in l: add = True
        if not k0 and NT & 8 and l.startswith('buffer_load_ubyte') and 's[72:75]' in l: add = True
        if k0 and NT & 16 and l.startswith('buffer_load_ubyte') and 's[68:71]' in l: add = True
        if k0 and NT & 32 and l.startswith('buffer_store') and 's[52:55]' in l: add = True
        if k0 and NT & 64 and l.startswith('buffer_store') and 's[8:11]' in l: add = True
        if k0 and NT & 128 and l.startswith('buffer_store') and 's[16:19]' in l: add = True
        if not k0 and NT & 256 and l.startswith('buffer_load_dwordx4 v[10') and 's[4:7]' in l: add = True
        if add:
            if l.endswith(' lds'): k.lines[j] = l[:-4] + ' nt lds'
            else: k.lines[j] = l + ' nt'
s = build_file(ks, {'tab': build_tab()})
open(sys.argv[1], 'w').write(s)
print(len(s))
```

```python
from asmlib import *
import gen_fft
from gen_fft import vr, sr, srd_from, tab_srd, MFMA, WS_H, WS_HN, WS_U, WS_T, X_BYTES, TU_BYTES, TP, fft8, smul, cmul_planar, wave_reduce2, ln_stats, ln_apply
from gen3 import *

WS_FL = 0x1800000
FL_BYTES = 0x40000
FLH = 0; FL2 = 0x8000; FL3 = 0x10000; FLU = 0x18000
FS = 7
WS_PX = 0x1840000
PX_BYTES = 64 * 16 * 256
WS_WS = 0x2000000
WSP_BYTES = 8 << 20
Z2N_BYTES = 64 * 57344
A2_BYTES = 4 << 20
SPIN = 400000
PV = 0
ROT = 0
W128 = 0
G1S = 0
GV = 0
HP = 10368
HN_BYTES = 256 * HP
MF16 = 'v_mfma_f32_16x16x16_bf16'
BIG = '0x7f000000'


def ln_apply2(k, f, n, vm, vrs, out):
    k(f'v_mul_f32 v{vm}, v{vm}, v{vrs}')
    for i in range(0, n, 2):
        k(f'v_pk_fma_f32 {vr(f+i,2)}, {vr(f+i,2)}, {vr(vrs,2)}, {vr(vm,2)} op_sel_hi:[1,0,0] neg_lo:[0,0,1] neg_hi:[0,0,1]')
    for i in range(0, n, 2):
        k(f'v_cvt_pk_bf16_f32 v{out+i//2}, v{f+i}, v{f+i+1}')


def st(k, view, slot):
    if Kern.prof and PV == view:
        k.nst = slot; k.stamp()


def poll(k, srd, soff, va, vd, sc):
    LP = k.label('lp'); LD = k.label('ld')
    k(f'''s_mov_b32 s{sc}, {SPIN}
{LP}:
buffer_load_dword v{vd}, v{va}, {sr(srd,4)}, {soff} offen sc1
s_waitcnt vmcnt(0)
v_cmp_eq_u32 vcc, 0, v{vd}
s_cbranch_vccz {LD}
s_sub_u32 s{sc}, s{sc}, 1
s_cmp_lg_u32 s{sc}, 0
s_cbranch_scc1 {LP}
{LD}:''')


def map_g2(k):
    if gen_fft.OPT.get('g2m'):
        k('''s_and_b32 s35, s2, 7
s_lshl_b32 s35, s35, 2
s_bfe_u32 s36, s2, 0x20003
s_add_u32 s35, s35, s36
s_lshr_b32 s36, s2, 5''')
        return
    k('''s_and_b32 s33, s2, 7
s_lshr_b32 s42, s2, 3
s_lshr_b32 s35, s33, 1
s_lshl_b32 s35, s35, 3
s_and_b32 s36, s42, 7
s_add_u32 s35, s35, s36
s_and_b32 s36, s33, 1
s_lshl_b32 s36, s36, 2
s_lshr_b32 s42, s42, 3
s_add_u32 s36, s36, s42''')


def g1id(k, d, t):
    m = gen_fft.OPT.get('g1m', 0)
    k(f'''s_bfe_u32 s{d}, s2, {hex(((3-m) << 16) | m)}
s_lshl_b32 s{d}, s{d}, {1+m}
s_lshr_b32 s{t}, s2, {7-m}
s_add_u32 s{d}, s{d}, s{t}
s_lshl_b32 s{d}, s{d}, {m}
s_and_b32 s{t}, s2, {(1 << m) - 1}
s_add_u32 s{d}, s{d}, s{t}
s_lshl_b32 s{d}, s{d}, {4-m}
s_bfe_u32 s{t}, s2, {hex(((4-m) << 16) | 3)}
s_add_u32 s{d}, s{d}, s{t}''')


def w_setup(k, t0, t1):
    G2M = gen_fft.OPT.get('g2m', 0)
    k(f'''s_mov_b32 s74, {2048*4096}
s_mov_b32 s75, 0x00020000
s_bfe_u32 s{t0}, s2, {"0x30000" if G2M else "0x20001"}
s_lshl_b32 s{t0}, s{t0}, {2 if G2M else 3}
s_bfe_u32 s{t1}, s2, {"0x20003" if G2M else "0x30003"}
s_add_u32 s{t0}, s{t0}, s{t1}
s_lshl_b32 s50, s{t0}, 15
s_lshr_b32 s{t0}, s34, 2
s_lshl_b32 s{t0}, s{t0}, 11
s_and_b32 s{t1}, s34, 3
s_lshl_b32 s{t1}, s{t1}, 7
s_add_u32 s50, s50, s{t0}
s_add_u32 s50, s50, s{t1}
s_add_u32 s51, s50, 16384''')
    if ROT:
        k(f'''s_bfe_u32 s{t0}, s2, 0x10006
s_lshl_b32 s{t0}, s{t0}, {21 if G1S else 14}
s_add_u32 s50, s50, s{t0}
s_bfe_u32 s{t0}, s2, 0x10007
s_lshl_b32 s{t0}, s{t0}, 22
s_add_u32 s50, s50, s{t0}
s_mov_b32 s51, s50''')
    if W128: k(f's_mov_b32 s82, s50\ns_add_u32 s51, s50, {0x100000 if G1S else 4096}')


def w_vaddr(k, d, t):
    if W128:
        k(f'''v_and_b32 v{d}, 112, v3
v_bfe_u32 v{t}, v3, 7, 1
v_lshl_add_u32 v{d}, v{t}, {14 if G1S else 13}, v{d}
v_lshrrev_b32 v{t}, 8, v3
v_lshl_add_u32 v{d}, v{t}, 9, v{d}''')
        return
    k(f'''v_and_b32 v{d}, 48, v3
v_bfe_u32 v{t}, v3, 6, 2
v_lshl_add_u32 v{d}, v{t}, 12, v{d}
v_lshrrev_b32 v{t}, 8, v3
v_lshl_add_u32 v{d}, v{t}, 9, v{d}''')


def g2_wops(fl=''):
    ops = []
    if W128:
        for g in range(4):
            for n in range(4):
                for ih in range(2):
                    o = f'buffer_load_dwordx4 {ar(16*(4*ih+n)+4*g,4)}, @, s[72:75], s{50+ih} offen{fl}'
                    sn, si, su = (4096, 0x100000, 2 << 20) if G1S else (0x100000, 4096, 16384)
                    if ih and n < 3: o += f'\ns_add_u32 s50, s50, {sn}\ns_add_u32 s51, s51, {sn}'
                    if ih and n == 3 and g < 3: o += f'\ns_xor_b32 s50, s82, {((g+1)&1)*su + ((g+1)>>1)*(4<<20)}\ns_add_u32 s51, s50, {si}'
                    ops.append(o)
        return ops
    if ROT:
        for g in range(4):
            for n in range(4):
                for hi in range(2):
                    o = f'buffer_load_dwordx4 {ar(16*(4*hi+n)+4*g,4)}, @, s[72:75], s50 offen offset:{64*hi}{fl}'
                    if hi and n < 3: o += '\ns_add_u32 s50, s50, 0x100000'
                    if hi and n == 3 and g < 3: o += f'\ns_xor_b32 s50, s51, {((g+1)&1)*16384 + ((g+1)>>1)*(4<<20)}'
                    ops.append(o)
        return ops
    for n2 in range(8):
        for u in range(2):
            for hi in range(2):
                o = f'buffer_load_dwordx4 {ar(16*(4*hi+(n2&3))+4*(2*(n2>>2)+u),4)}, @, s[72:75], s{50+u} offen offset:{64*hi}{fl}'
                if u and hi and n2 < 7: o += '\ns_add_u32 s50, s50, 0x100000\ns_add_u32 s51, s51, 0x100000'
                ops.append(o)
    return ops


def w_trans(k, vw, vrd, groups=None, ts=42, priv=False):
    PT = 520
    if (groups is not None and not groups) or gen_fft.OPT.get('nowt'): return
    if W128:
        k(f's_add_u32 s{ts}, s32, 3072' if priv else f's_and_b32 s{ts}, s34, 3\ns_mul_i32 s{ts}, s{ts}, 4160')
        k(f'''v_lshrrev_b32 v{vw}, 1, v3
v_add_u32 v{vw}, s{ts}, v{vw}
v_bfe_u32 v{vrd}, v3, 4, 3
v_mul_u32_u24 v{vrd}, {PT-8}, v{vrd}
v_add_u32 v{vrd}, v{vw}, v{vrd}''')
        for tt in range(4):
            if groups is not None and tt not in groups: continue
            for h in range(2):
                R = lambda i: ar(16 * i + 4 * tt + 2 * h, 2)
                for i in range(8): k(f'ds_write_b64 v{vw}, {R(i)} offset:{PT*i}')
                for c in range(8): k(f'ds_read_b64 {R(c)}, v{vrd} offset:{8*c}')
        return
    k(f'''s_mul_i32 s{ts}, s34, 2560
v_lshrrev_b32 v{vw}, 1, v3
v_add_u32 v{vw}, s{ts}, v{vw}
v_bfe_u32 v{vrd}, v3, 4, 2
v_mul_u32_u24 v{vrd}, {PT-8}, v{vrd}
v_add_u32 v{vrd}, v{vw}, v{vrd}''')
    for tt in range(4):
        for hi in range(2):
            if groups is not None and tt not in groups: continue
            for h in range(2):
                R = lambda i: ar(16 * (4 * hi + i) + 4 * tt + 2 * h, 2)
                for i in range(4): k(f'ds_write_b64 v{vw}, {R(i)} offset:{PT*i}')
                for c in range(4): k(f'ds_read_b64 {R(c)}, v{vrd} offset:{8*c}')


def unpk(l):
    m = re.match(r'v_pk_(add|mul)_f32 v\[(\d+):\d+\], v\[(\d+):\d+\], v\[(\d+):\d+\](.*)', l)
    if not m: return [l]
    op, d, a, b, mod = m.group(1), int(m.group(2)), int(m.group(3)), int(m.group(4)), m.group(5).strip()
    if mod == '': return [f'v_{op}_f32 v{d}, v{a}, v{b}', f'v_{op}_f32 v{d+1}, v{a+1}, v{b+1}']
    if mod == 'op_sel:[0,1] op_sel_hi:[1,1]': return [f'v_{op}_f32 v{d}, v{a}, v{b+1}', f'v_{op}_f32 v{d+1}, v{a+1}, v{b+1}']
    raise ValueError(l)


class Fill:
    def __init__(self): self.q = []
    def add(self, pos, f): self.q.append((pos, f))
    def emit(self, k, p, n):
        c = 0
        while self.q and self.q[0][0] <= p and c < n:
            f = self.q.pop(0)[1]
            f() if callable(f) else k(f)
            c += 1
    def flush(self, k): self.emit(k, 10**9, 10**9)


def ph_g2(k, opt, DONE, vm0, fused, post=None, early=None):
    HI = k.label('hi')
    NZ = opt.get('NZ', 14); ZR = 96 - 4 * NZ
    T = 8; S = 24; Z1 = 32
    assert ZR >= 40
    ACC = lambda n, tt: 96 + 16 * (n & 1) + 4 * tt
    SLOT = [0, 1, 2, 3, 4, 0, 1]
    srd_from(k, 8, 40, 41, WS_Z2, Z2N_BYTES)
    k(f'''s_lshl_b32 s56, s36, 3
s_add_u32 s56, s56, s34
s_mul_i32 s56, s56, 57344
v_lshrrev_b32 v2, 4, v3''')
    if opt.get('warm'):
        k('v_lshlrev_b32 v4, 7, v2\ns_mov_b32 s42, s56')
        for i in range(7): k('buffer_load_dword v5, v4, s[8:11], s42 offen\ns_add_u32 s42, s42, 8192')
        k('s_waitcnt vmcnt(0)\ns_barrier\ns_sleep 127')
    st(k, 2, 2)
    if opt.get('clkm'): k('s_memtime s[76:77]'); k.clkm = 1
    if opt.get('zpf'):
        k(f'''v_lshrrev_b32 v4, 3, v2
v_and_b32 v5, 7, v2
v_lshlrev_b32 v5, 7, v5
v_lshl_add_u32 v4, v4, 13, v5
s_and_b32 s42, s35, 7
s_lshl_b32 s42, s42, 10
s_add_u32 s42, s42, s56
s_mov_b32 exec_hi, 0x00ffffff
buffer_load_dword v36, v4, s[8:11], s42 offen
s_mov_b32 exec_hi, -1''')
        vm0.issue('pf')

    def zload(q, vm):
        if q >= 56 or opt.get('noz'): return
        if q and q % 4 == 0: k('s_add_u32 s56, s56, 4096')
        if q == 40: k(f's_cmp_eq_u32 s36, 7\ns_cselect_b32 s56, {BIG}, s56')
        k(f'buffer_load_dwordx4 {vr(ZR+4*(q%NZ),4)}, v3, s[8:11], s56 offen offset:{1024*(q%4)}'); vm.issue(f'z{q}')
    N0 = opt.get('N0', NZ)
    for q in range(N0): zload(q, vm0)
    srd_from(k, 12, 40, 41, WS_Z1, A2_BYTES)
    srd_from(k, 16, 40, 41, WS_Z1 if opt.get('ain') else WS_A, A2_BYTES)
    srd_from(k, 24, 24, 25, 0, 4096)
    PW = opt.get('pw', 0); FZS = opt.get('fzs', 5)
    PWS = f'''s_lshl_b32 s47, s35, 1
s_lshr_b32 s42, s43, 1
s_add_u32 s47, s47, s42
s_lshl_b32 s47, s47, 3
s_add_u32 s47, s47, s36
s_lshl_b32 s47, s47, {FZS+1}
s_add_u32 s47, s47, {FLU}
v_bfe_u32 v40, v3, 4, 1
v_lshlrev_b32 v40, {FZS}, v40''' if PW else ''
    BADR = '''s_lshl_b32 s42, s43, 10
s_lshl_b32 s45, s35, 4
s_add_u32 s45, s45, s42
v_and_b32 v4, 8, v2
v_and_b32 v5, 3, v2
v_lshl_add_u32 v4, v5, 1, v4
v_bfe_u32 v5, v2, 2, 1
v_lshl_add_u32 v4, v5, 9, v4''' if G1S else '''s_and_b32 s42, s43, 1
s_lshl_b32 s42, s42, 3
s_lshl_b32 s45, s35, 4
s_add_u32 s45, s45, s42
s_and_b32 s42, s43, 2
s_lshl_b32 s42, s42, 10
s_add_u32 s45, s45, s42
v_bfe_u32 v4, v2, 2, 2
v_and_b32 v5, 3, v2
v_lshlrev_b32 v5, 9, v5
v_lshl_add_u32 v4, v4, 1, v5'''
    k(f'''s_and_b32 s37, s34, 3
s_bfe_u32 s43, s2, {"0x20006" if ROT else "0"}
s_xor_b32 s43, s43, s37
s_lshl_b32 s44, s35, 3
s_add_u32 s44, s44, s36
s_lshl_b32 s44, s44, 2
s_add_u32 s44, s44, s43
s_lshl_b32 s44, s44, 12
{BADR}
buffer_load_ushort v1, v4, s[24:27], s45 offen
v_lshlrev_b32 v2, 3, v2
s_lshl_b32 s42, s34, 10
v_add_u32 v4, s42, v3
v_add_u32 v5, 0x10000, v4
v_add_u32 v6, 0x20000, v4
s_lshl_b32 s42, s37, 13
v_add_u32 v7, s42, v3
s_mov_b32 s58, 0xffff0000
{PWS}
s_cmp_eq_u32 s36, 7
s_cselect_b32 s46, {BIG}, s44
s_cselect_b32 s59, 0, -1
s_cmp_ge_u32 s34, 4
s_cbranch_scc1 {HI}''')
    vm0.issue('b')

    def body(hi):
        import copy
        vm = copy.deepcopy(vm0); lg = Cnt('lgkmcnt', 15)
        F = Fill()

        def wr(n, tt):
            a = SLOT[n] * 32768 + tt * 8192
            k(f'ds_write_b128 v{4+a//65536}, {vr(ACC(n,tt),4)} offset:{a%65536}'); lg.issue(f'w{n}')

        def bar(n):
            x = lg.wait(f'w{n}')
            if x: k(x)
            k('s_barrier')

        def unit(tiles, zr, off, so, pos):
            nt = len(tiles)
            ops = []
            for ti, n in enumerate(tiles):
                for b in range(2):
                    base = SLOT[n] * 32768 + 4096 * b
                    if base >= 65536 - 32768 + 8192 and False: pass
                    for i in range(4):
                        def rd(base=base, i=i, n=n, b=b):
                            a = base + 1024 * i
                            k(f'ds_read_b128 {vr(T+4*i,4)}, v{RB[a//65536]} offset:{a%65536}'); lg.issue(f'r{n}_{b}_{i}')
                        ops.append(rd)
                    s = S + 4 * ti
                    def w01(n=n, b=b): k(lg.wait(f'r{n}_{b}_1') or '')
                    def w23(n=n, b=b): k(lg.wait(f'r{n}_{b}_3') or '')
                    ops.append(None); ops.append(None)
                    ops.append(w01)
                    d = s if b == 0 else T
                    ops += [f'v_pk_add_f32 {vr(d,2)}, {vr(T,2)}, {vr(T+4,2)}', f'v_pk_add_f32 {vr(d+2,2)}, {vr(T+2,2)}, {vr(T+6,2)}']
                    if b: ops += [f'v_pk_add_f32 {vr(s,2)}, {vr(s,2)}, {vr(T,2)}', f'v_pk_add_f32 {vr(s+2,2)}, {vr(s+2,2)}, {vr(T+2,2)}']
                    ops.append(w23)
                    ops += [f'v_pk_add_f32 {vr(T+8,2)}, {vr(T+8,2)}, {vr(T+12,2)}', f'v_pk_add_f32 {vr(T+10,2)}, {vr(T+10,2)}, {vr(T+14,2)}',
                            f'v_pk_add_f32 {vr(s,2)}, {vr(s,2)}, {vr(T+8,2)}', f'v_pk_add_f32 {vr(s+2,2)}, {vr(s+2,2)}, {vr(T+10,2)}']
            h = 2 * nt
            if not opt.get('lean', 0) & 8:
                ops += [f'v_cvt_pk_bf16_f32 v{T+i}, v{S+2*i}, v{S+2*i+1}' for i in range(h)]
                ops += [f'v_lshlrev_b32 v{S+2*i}, 16, v{T+i}\nv_and_b32 v{S+2*i+1}, s58, v{T+i}' for i in range(h)]
            ops.append(lambda: k(vm.wait(f'y{off}') or ''))
            ops += [f'v_pk_add_f32 {vr(S+2*i,2)}, {vr(S+2*i,2)}, v[0:1] op_sel:[0,1] op_sel_hi:[1,1]' for i in range(h)]
            ops += [f'v_lshlrev_b32 v{T+8+2*i}, 16, v{zr+i}\nv_and_b32 v{T+9+2*i}, s58, v{zr+i}' for i in range(h)]
            if not opt.get('lean', 0) & 8:
                ops += [f'v_cvt_pk_bf16_f32 v{T+i}, v{S+2*i}, v{S+2*i+1}' for i in range(h)]
                ops += [f'v_lshlrev_b32 v{S+2*i}, 16, v{T+i}\nv_and_b32 v{S+2*i+1}, s58, v{T+i}' for i in range(h)]
            ops += [f'v_pk_mul_f32 {vr(S+2*i,2)}, {vr(S+2*i,2)}, {vr(T+8+2*i,2)}' for i in range(h)]
            ops += [f'v_cvt_pk_bf16_f32 v{zr+i}, v{S+2*i}, v{S+2*i+1}' for i in range(h)]

            if tiles == [4, 5]: ops += [f'v_and_b32 v{zr+2}, s59, v{zr+2}', f'v_and_b32 v{zr+3}, s59, v{zr+3}']

            def sto():
                if nt == 2: k(f'buffer_store_dwordx4 {vr(zr,4)}, v3, s[16:19], {so} offen offset:{off} sc1')
                else: k(f'buffer_store_dwordx2 {vr(zr,2)}, v2, s[16:19], {so} offen offset:{off} sc1')
                vm.issue('s')
            ops.append(sto)
            out = []
            for o in ops:
                if o is None: out.append('')
                elif callable(o): out.append(o)
                else:
                    for l in o.split('\n'): out += unpk(l) if opt.get('upk', 1) else [l]
            return out

        def z1load(zr, off, so, nt):
            if nt == 2: k(f'buffer_load_dwordx4 {vr(zr,4)}, v3, s[12:15], {so} offen offset:{off}')
            else: k(f'buffer_load_dwordx2 {vr(zr,2)}, v2, s[12:15], {so} offen offset:{off}')
            vm.issue(f'y{off}')
        RB = [7, 38, 39]
        k('v_add_u32 v38, 0x10000, v7\nv_add_u32 v39, 0x20000, v7')
        ev = {}
        def at(p, f): ev.setdefault(p, []).append(f)
        for n in range(6):
            for tt in range(4): at(32 * (n + 1) + 3 + 2 * tt, lambda n=n, tt=tt: wr(n, tt))
        BP = opt.get('G2B', 16)
        at(64 + BP, lambda: bar(1)); at(128 + BP, lambda: bar(3)); at(192 + BP, lambda: bar(5))
        if opt.get('pp'):
            bs = [-1, 64 + BP, 128 + BP, 192 + BP, 224]
            k('s_setprio 3')
            for a, b in zip(bs[:-1], bs[1:]):
                for i in range(4):
                    pp = a + (b - a) * i // 4
                    if pp >= 0: at(pp, lambda i=i: k(f's_setprio {3-i}'))
        at(40, lambda: k((vm.wait('b') or '') + '\nv_lshlrev_b32 v1, 16, v1'))
        if opt.get('opf') is not None:
            def opf():
                k(f'''s_and_b32 s42, s35, 7
s_lshl_b32 s43, s36, 3
s_add_u32 s42, s42, s43
s_mul_i32 s42, s42, {WOB}
s_mul_i32 s43, s34, {18*128}
s_add_u32 s42, s42, s43
v_lshlrev_b32 v40, 3, v3
s_mov_b64 exec, 0x3ffff
buffer_load_ubyte v41, v40, s[28:31], s42 offen
s_mov_b64 exec, -1'''); vm.issue('opf')
            at(opt['opf'], opf)
        fq = []
        if PW:
            PZ = opt.get('pz', [30, 40, 64])
            at(PZ[0], lambda: k('s_barrier'))
            ZF = 'buffer_load_dword v41, v40, s[68:71], s47 offen sc1'
            def zf1(): k(ZF); vm.issue('zf')
            def zf2():
                LP = k.label('lp'); LD = k.label('ld')
                k(f'''{vm.wait('zf') or ''}
v_cmp_eq_u32 vcc, 0, v41
s_cbranch_vccz {LD}
s_mov_b32 s43, {SPIN}
{LP}:
{ZF}
s_waitcnt vmcnt(0)
v_cmp_eq_u32 vcc, 0, v41
s_cbranch_vccz {LD}
s_sub_u32 s43, s43, 1
s_cmp_lg_u32 s43, 0
s_cbranch_scc1 {LP}
{LD}:''')
            at(PZ[1] + (24 if hi else 0), zf1); at(PZ[2] + (24 if hi else 0), zf2)
        if not hi:
            at(PZ[2] + 1 if PW else 33, lambda: z1load(Z1, 0, 's44', 2))
            at(160, lambda: z1load(Z1, 2048, 's44', 2))
            fq.append((64 + BP + 1, lambda: unit([0, 1], Z1, 0, 's44', 0)))
            fq.append((192 + BP + 1, lambda: unit([4, 5], Z1, 2048, 's44', 0)))
        else:
            at(97, lambda: z1load(Z1, 1024, 's44', 2))
            at(190, lambda: z1load(Z1 + 4, 3072, 's46', 1))
            fq.append((128 + BP + 1, lambda: unit([2, 3], Z1, 1024, 's44', 0)))
        if post:
            po = list(post)[:opt.get('wol', [99, 99])[hi]]
            def pw(n):
                for _ in range(n):
                    if po: k(po.pop(0)); vm.issue('o')
            for j in range(1, 8):
                for tt in range(4): at(192 + 4 * j + tt, lambda: pw(1))
        R = opt.get('G2R', 3)
        cur = []
        p = 0
        nq = [N0]
        for n in range(7):
            if n in (1, 3, 5): st(k, 2, 3 + n // 2)
            for j in range(8):
                q = 8 * n + j
                x = vm.wait(f'z{q}')
                if x: k(x)
                if q == 0:
                    x = vm.wait('w')
                    if x: k(x)
                for tt in range(4):
                    acc = vr(ACC(n, tt), 4)
                    k(f'{MFMA} {acc}, {vr(ZR+4*(q%NZ),4)}, {ar(16*j+4*tt,4)}, {"0" if j == 0 else acc}')
                    if tt in (1, 3) and nq[0] < q + NZ + (tt == 3): zload(nq[0], vm); nq[0] += 1
                    for f in ev.get(p, []): f()
                    if fq and fq[0][0] <= p: cur += fq.pop(0)[1]()
                    for _ in range(R):
                        if cur:
                            o = cur.pop(0)
                            o() if callable(o) else k(o)
                    p += 1
        if opt.get('clkm'): k('s_memtime s[78:79]')
        st(k, 2, 6)
        EP = opt.get('g3e', 0)
        if early and EP == 0:
            for o in early: k(o); vm.issue('e')
        for tt in range(4): wr(6, tt)
        if early and EP == 1:
            for o in early: k(o); vm.issue('e')
        bar(6)
        if early and EP == 2:
            for o in early: k(o); vm.issue('e')
        st(k, 2, 7)
        if hi: cur = unit([6], Z1 + 4, 3072, 's46', 0)
        for o in cur: o() if callable(o) else k(o)
        st(k, 2, 8); st(k, 0, 7)
        k('s_setprio 0')
        k(f's_branch {DONE}')
        return len(vm.tags) - 1 - max([i for i, t in enumerate(vm.tags) if t == 'e'] + [-1])
    n0 = body(False)
    k(f'{HI}:')
    n1 = body(True)
    return min(n0, n1)


def gen_g2(opt):
    k = Kern('k3_kernel', 256, 512, 163840, nvgpr=128, nagpr=128)
    END = k.label('end')
    k(f'''s_cmp_ge_u32 s2, 256
s_cbranch_scc1 {END}
s_load_dwordx2 s[40:41], s[0:1], 80
s_load_dwordx2 s[24:25], s[0:1], 48
s_load_dwordx2 s[72:73], s[0:1], 40''')
    k.stamp(True)
    map_g2(k)
    k(f'''v_lshrrev_b32 v1, 6, v0
v_and_b32 v2, 63, v0
v_readfirstlane_b32 s34, v1
v_lshlrev_b32 v3, 4, v2''')
    w_vaddr(k, 4, 5)
    w_setup(k, 42, 43)
    k('s_waitcnt lgkmcnt(0)')
    vm = Cnt('vmcnt', 63)
    wb = Bulk(k, g2_wops())
    wb(32, vm, 4)
    k('s_waitcnt vmcnt(0)')
    w_trans(k, 4, 5)
    k('s_waitcnt lgkmcnt(0)\ns_barrier')
    st(k, 2, 1)
    ph_g2(k, opt, END, vm, False)
    k.finish(END)
    return k


WOB = 17920
WO8_BYTES = 64 * WOB


def gen_prep8(k, base_wg, END, nwv=5):
    WO = k.label('wo'); J = k.label('j'); WO2 = k.label('wo2'); SG = k.label('sg')
    k(f'''s_load_dwordx2 s[4:5], s[0:1], 32
s_load_dwordx2 s[8:9], s[0:1], 56
v_lshrrev_b32 v1, 6, v0
v_and_b32 v2, 63, v0
v_readfirstlane_b32 s35, v1
s_sub_u32 s33, s2, {base_wg}
s_mul_i32 s33, s33, {nwv}
s_add_u32 s33, s33, s35
v_and_b32 v4, 15, v2
v_lshrrev_b32 v5, 4, v2
v_lshlrev_b32 v3, 4, v2
s_lshl_b32 s47, s35, 13
s_cmp_ge_u32 s35, {nwv}
s_cbranch_scc1 {END}
s_cmp_ge_u32 s33, 440
s_cbranch_scc1 {END}
s_waitcnt lgkmcnt(0)''')
    srd_from(k, 16, 40, 41, WS_WI, WS_WO - WS_WI + WO8_BYTES)
    k(f'''s_mov_b32 s23, 0x00020000
s_cmp_ge_u32 s33, 280
s_cbranch_scc1 {WO}
s_mul_i32 s51, s33, 4682
s_lshr_b32 s51, s51, 16
s_mul_i32 s52, s51, 14
s_sub_u32 s52, s33, s52
s_movk_i32 s50, 3456
s_lshl_b32 s53, s51, 5
s_mov_b32 s57, 8
s_mov_b32 s58, 4
s_mov_b64 s[20:21], s[4:5]
s_mov_b32 s22, {640*3456}
s_branch {J}
{WO}:
s_sub_u32 s34, s33, 280
s_mul_i32 s51, s34, 13108
s_lshr_b32 s51, s51, 16
s_mul_i32 s52, s51, 5
s_sub_u32 s52, s34, s52
s_movk_i32 s50, 1280
s_lshr_b32 s54, s51, 2
s_and_b32 s55, s51, 3
s_mul_i32 s53, s54, 112
s_lshl_b32 s42, s55, 5
s_add_u32 s53, s53, s42
s_mov_b32 s57, 4
s_mov_b32 s58, 16
s_mov_b64 s[20:21], s[8:9]
s_mov_b32 s22, {864*1280}
{J}:
v_mul_u32_u24 v6, s50, v5
v_lshl_add_u32 v6, v4, 4, v6
s_mul_i32 s42, s53, s50
s_lshl_b32 s43, s52, 8
s_add_u32 s42, s42, s43
v_add_u32 v6, s42, v6
s_lshl_b32 s43, s50, 2''')
    for i in range(8):
        k(f's_add_u32 m0, s47, {1024*i}')
        k(f'buffer_load_dwordx4 v6, s[20:23], 0 offen lds')
        if i < 7: k(f'v_add_u32 v6, s43, v6')
    k(f'''v_mul_u32_u24 v6, s57, v5
v_lshrrev_b32 v7, 2, v4
v_add_u32 v6, v6, v7
v_and_b32 v7, 3, v4
v_lshlrev_b32 v7, 3, v7
v_lshl_add_u32 v6, v6, 8, v7
v_add_u32 v6, s47, v6
s_lshl_b32 s42, s58, 8
v_add_u32 v7, s42, v6
v_lshlrev_b32 v8, 3, v2
s_waitcnt vmcnt(0)''')
    prep_tail(k, END, WO2, SG)


def prep_tail(k, END, WO2, SG):
    PADW = gen_fft.OPT.get('padw', 0); NL = '\n'
    for i in range(8):
        k(f'ds_read_b64_tr_b16 {vr(16+4*i,2)}, v6 offset:{32*i}')
        k(f'ds_read_b64_tr_b16 {vr(18+4*i,2)}, v7 offset:{32*i}')
    st(k, 5, 6)
    k(f's_cmp_ge_u32 s33, 280\ns_cbranch_scc1 {WO2}')
    for i in range(8):
        if i in (1, 4): st(k, 5, 7 + i // 4)
        k(f'''s_lshl_b32 s42, s52, 3
s_add_u32 s42, s42, {i}
s_add_u32 s43, s42, 2
s_cmp_ge_u32 s42, 54
s_cselect_b32 s43, s43, s42
s_cselect_b32 s46, 0, 1
{f"s_cmp_ge_u32 s42, 110{NL}s_cselect_b32 s43, {48+i}, s43{NL}s_cselect_b32 s46, 1, s46" if PADW and i >= 6 else ""}
s_mul_i32 s44, s43, 9363
s_lshr_b32 s44, s44, 16
s_mul_i32 s45, s44, 7
s_sub_u32 s43, s43, s45
s_and_b32 s44, s44, 7
s_lshl_b32 s44, s44, 1
s_lshr_b32 s45, s43, 2
s_xor_b32 s45, s45, s46
s_add_u32 s44, s44, s45
s_mul_i32 s44, s44, 140
s_add_u32 s43, s43, s44
s_mul_i32 s44, s51, 7
s_add_u32 s43, s43, s44
s_lshl_b32 s43, s43, 10
{"" if PADW else f"s_cmp_lt_u32 s42, 108{NL}s_cselect_b32 s43, s43, {BIG}"}
s_waitcnt lgkmcnt({14-2*i})
buffer_store_dwordx4 {vr(16+4*i,4)}, v3, s[16:19], s43 offen''')
    k(f'''s_branch {END}
{WO2}:
s_mul_i32 s56, s54, {WOB}
s_add_u32 s56, s56, {WS_WO-WS_WI}
s_mul_i32 s42, s55, 5120
s_add_u32 s56, s56, s42
s_cmp_lt_u32 s53, 864
s_cselect_b32 s59, -1, 0
s_cmp_lt_u32 s53, 848
s_cselect_b32 s60, -1, 0
s_cmp_eq_u32 s55, 3
s_cbranch_scc1 {SG}''')
    for sg in range(2):
        for i in range(8):
            k(f'''s_lshl_b32 s42, s52, 3
s_add_u32 s42, s42, {i}
s_mul_i32 s44, s42, 13108
s_lshr_b32 s44, s44, 16
s_mul_i32 s45, s44, 5
s_sub_u32 s43, s42, s45
s_mul_i32 s44, s44, {8*WOB}
s_lshl_b32 s43, s43, {9 if sg else 10}
s_add_u32 s43, s43, s44
s_add_u32 s43, s43, s56
s_waitcnt lgkmcnt({14-2*i})''')
            for j in range(2 if sg else 4): k(f'v_and_b32 v{16+4*i+j}, s{59+j//2}, v{16+4*i+j}')
            if sg: k(f'buffer_store_dwordx2 {vr(16+4*i,2)}, v8, s[16:19], s43 offen')
            else: k(f'buffer_store_dwordx4 {vr(16+4*i,4)}, v3, s[16:19], s43 offen')
        k(f's_branch {END}')
        if sg == 0: k(f'{SG}:')


def prep_inl(k, part, LB, END, nv=0, hdr=None):
    WO = k.label('wo'); J = k.label('j'); WO2 = k.label('wo2'); SG = k.label('sg')
    txt = hdr or f"""s_lshl_b32 s33, s2, 1
s_add_u32 s33, s33, s34
s_sub_u32 s33, s33, 6
s_sub_u32 s47, s34, 6
s_lshl_b32 s47, s47, 13
s_add_u32 s47, s47, {LB}
"""
    txt += f"""v_and_b32 v4, 15, v2
v_lshrrev_b32 v5, 4, v2
s_mov_b32 s23, 0x00020000
s_cmp_ge_u32 s33, 280
s_cbranch_scc1 {WO}
s_mul_i32 s51, s33, 4682
s_lshr_b32 s51, s51, 16
s_mul_i32 s52, s51, 14
s_sub_u32 s52, s33, s52
s_movk_i32 s50, 3456
s_lshl_b32 s53, s51, 5
s_mov_b32 s57, 8
s_mov_b32 s58, 4
s_mov_b64 s[20:21], s[62:63]
s_mov_b32 s22, {640*3456}
s_branch {J}
{WO}:
s_sub_u32 s35, s33, 280
s_mul_i32 s51, s35, 13108
s_lshr_b32 s51, s51, 16
s_mul_i32 s52, s51, 5
s_sub_u32 s52, s35, s52
s_movk_i32 s50, 1280
s_lshr_b32 s54, s51, 2
s_and_b32 s55, s51, 3
s_mul_i32 s53, s54, 112
s_lshl_b32 s42, s55, 5
s_add_u32 s53, s53, s42
s_mov_b32 s57, 4
s_mov_b32 s58, 16
s_mov_b64 s[20:21], s[64:65]
s_mov_b32 s22, {864*1280}
{J}:
"""
    if part == 'A':
        txt += """v_mul_u32_u24 v6, s50, v5
v_lshl_add_u32 v6, v4, 4, v6
s_mul_i32 s42, s53, s50
s_lshl_b32 s43, s52, 8
s_add_u32 s42, s42, s43
v_add_u32 v6, s42, v6
s_lshl_b32 s43, s50, 2
"""
        for i in range(8):
            txt += f's_add_u32 m0, s47, {1024*i}\nbuffer_load_dwordx4 v6, s[20:23], 0 offen lds\n'
            if i < 7: txt += 'v_add_u32 v6, s43, v6\n'
        mp = dict(s33='s16', s35='s17', s42='s18', s43='s19', s47='s24', s50='s25', s51='s26', s52='s27', s53='s28', s54='s29', s55='s30', s57='s31', s58='s31', v4='v104', v5='v105', v6='v106')
        txt = re.sub(r'\b([sv]\d+)\b', lambda m: mp.get(m.group(1), m.group(1)), txt)
        k(txt)
        return
    k(txt)
    if not hdr: k(f's_cmp_ge_u32 s33, 440\ns_cbranch_scc1 {END}')
    srd_from(k, 16, 40, 41, WS_WI, WS_WO - WS_WI + WO8_BYTES)
    k(f"""v_mul_u32_u24 v6, s57, v5
v_lshrrev_b32 v7, 2, v4
v_add_u32 v6, v6, v7
v_and_b32 v7, 3, v4
v_lshlrev_b32 v7, 3, v7
v_lshl_add_u32 v6, v6, 8, v7
v_add_u32 v6, s47, v6
s_lshl_b32 s42, s58, 8
v_add_u32 v7, s42, v6
v_lshlrev_b32 v8, 3, v2""")
    st(k, 5, 4)
    k(f's_waitcnt vmcnt({nv})')
    st(k, 5, 5)
    prep_tail(k, END, WO2, SG)


BB = 20480


def gelu_pk(k, pk, n, x, p, out, vc, tr=False, sc=False):
    for i in range(0, n if pk is not None else 0, 2):
        k(f'v_lshlrev_b32 v{x+i}, 16, v{pk+i//2}\nv_and_b32 v{x+i+1}, 0xffff0000, v{pk+i//2}')
    if sc:
        for i in range(n): k(f'v_mul_f32 v{p+i}, v{x+i}, v{x+i}')
        for i in range(n): k(f'v_fma_f32 v{p+i}, v{p+i}, {"s62" if GV else f"v{vc}"}, v{vc+1}')
        for i in range(n): k(f'v_mul_f32 v{p+i}, v{p+i}, v{x+i}')
    else:
        for i in range(0, n, 2):
            k(f'v_pk_mul_f32 {vr(p+i,2)}, {vr(x+i,2)}, {vr(x+i,2)}')
        for i in range(0, n, 2):
            if GV == 1: k(f'v_pk_fma_f32 {vr(p+i,2)}, {vr(p+i,2)}, s[62:63], {vr(vc,2)}')
            elif GV == 2: k(f'v_fma_f32 v{p+i}, v{p+i}, s62, v{vc+1}\nv_fma_f32 v{p+i+1}, v{p+i+1}, s62, v{vc+1}')
            else: k(f'v_pk_fma_f32 {vr(p+i,2)}, {vr(p+i,2)}, {vr(vc,2)}, {vr(vc,2)} op_sel:[0,0,1] op_sel_hi:[1,0,1]')
        for i in range(0, n, 2):
            k(f'v_pk_mul_f32 {vr(p+i,2)}, {vr(p+i,2)}, {vr(x+i,2)}')
    for i in range(n):
        k(f'v_exp_f32 v{p+i}, v{p+i}')
    if sc:
        for i in range(n): k(f'v_add_f32 v{p+i}, 1.0, v{p+i}')
    else:
        for i in range(0, n, 2):
            k(f'v_pk_add_f32 {vr(p+i,2)}, {vr(p+i,2)}, 1.0 op_sel_hi:[1,0]')
    for i in range(n):
        k(f'v_rcp_f32 v{p+i}, v{p+i}')
    if sc:
        for i in range(n): k(f'v_mul_f32 v{p+i}, v{p+i}, v{x+i}')
    else:
        for i in range(0, n, 2):
            k(f'v_pk_mul_f32 {vr(p+i,2)}, {vr(p+i,2)}, {vr(x+i,2)}')
    for i in range(0, n, 2):
        if tr:
            a = [0, 4, 1, 5][i // 2]
            k(f'v_cvt_pk_bf16_f32 v{out+i//2}, v{p+a}, v{p+a+2}')
        else: k(f'v_cvt_pk_bf16_f32 v{out+i//2}, v{p+i}, v{p+i+1}')


class Bulk:
    def __init__(self, k, ops): self.k = k; self.ops = list(ops)
    def copy(self): return Bulk(self.k, self.ops)
    def __call__(self, n, vm, va, tag='w'):
        for _ in range(n):
            if not self.ops: return
            self.k(self.ops.pop(0).replace('@', f'v{va}'))
            if vm is not None: vm.issue(tag)


def weave_in(k, i0, q, n, vm, va, tag='q'):
    body = k.lines[i0:]
    ok = []; full = True
    for i, l in enumerate(body):
        if l.startswith('s_mov_b64 exec, -1'): full = True
        elif 'exec' in l.split(',')[0] or 'saveexec' in l: full = False
        if full and l.startswith(('v_', 'ds_')) and not l.startswith('v_cmp') and 'vcc' not in l: ok.append(i)
    n = min(n, len(q.ops))
    if not n: return
    pos = {}
    for j in range(n):
        p = ok[(j * len(ok)) // n]
        pos[p] = pos.get(p, 0) + 1
    del k.lines[i0:]
    for i, l in enumerate(body):
        if i in pos: q(pos[i], vm, va, tag)
        k.lines.append(l)


def flag(k, srd, soff):
    k(f'''s_mov_b64 exec, 1
v_mov_b32 v8, 1
v_mov_b32 v9, 0
buffer_store_dword v8, v9, {sr(srd,4)}, {soff} offen sc1
s_mov_b64 exec, -1''')


def ph_k2a(k, opt, wb):
    RP = 144; NP = 11 * RP + 16
    TB2 = 0
    SKIP = k.label('skip')
    vm = Cnt('vmcnt', 63)
    k(f'''s_load_dwordx2 s[4:5], s[0:1], 0
s_load_dwordx2 s[40:41], s[0:1], 80
s_load_dwordx2 s[72:73], s[0:1], 40
s_load_dwordx2 s[80:81], s[0:1], 64''')
    tab_srd(k, 12)
    k(f'''s_and_b32 s3, s2, 7
s_lshl_b32 s3, s3, 5
s_lshr_b32 s33, s2, 3
s_add_u32 s3, s3, s33
s_lshl_b32 s33, s3, 6
s_add_u32 s33, s33, 32768
s_load_dwordx16 s[16:31], s[12:13], s33
v_lshrrev_b32 v1, 6, v0
v_and_b32 v2, 63, v0
v_readfirstlane_b32 s34, v1
v_lshlrev_b32 v3, 4, v2
s_movk_i32 s38, 0x4000
s_lshl_b32 s39, s34, 11
s_add_u32 m0, s39, {TB2}
s_add_u32 s38, s38, s39
s_cmp_lt_u32 s34, 5
s_cselect_b32 s38, s38, {BIG}
buffer_load_dwordx4 v3, s[12:15], s38 offen lds
buffer_load_dwordx4 v3, s[12:15], s38 offen offset:1024 lds''')
    vm.issue('t'); vm.issue('t')
    k(f'''s_mul_i32 s46, s3, {8*TP}
s_add_u32 s47, s46, {3*TP}
s_add_u32 s48, s46, {6*TP}
v_lshlrev_b32 v60, 2, v0
s_lshl_b32 s35, s34, 8
s_add_u32 s35, s35, s3
s_mul_i32 s35, s35, 1280
v_and_b32 v50, 15, v2
v_lshrrev_b32 v51, 4, v2
v_lshlrev_b32 v52, 6, v50
v_lshl_add_u32 v52, v51, 4, v52
v_add_u32 v53, 1024, v52
v_mov_b32 v54, 0x7fffffff
v_cmp_gt_u32 vcc, 4, v50
v_cndmask_b32 v53, v54, v53, vcc''')
    k(f'''s_mul_i32 s59, s34, {NP}
v_add_u32 v112, s59, v52
v_and_b32 v113, 3, v2
v_mul_u32_u24 v113, {NP}, v113
v_lshrrev_b32 v114, 2, v2
v_lshl_add_u32 v113, v114, 4, v113
s_cmp_ge_u32 s34, 5
s_cselect_b32 s59, {4*NP-5*256}, 0
s_lshl_b32 s60, s34, 8
s_add_u32 s59, s59, s60
v_add_u32 v113, s59, v113
s_mul_i32 s59, s3, 10240
s_lshl_b32 s60, s34, 10
s_add_u32 s59, s59, s60
s_add_u32 s49, s59, 8192
s_cmp_lt_u32 s34, 2
s_cselect_b32 s49, s49, {BIG}''')
    k(f'''s_and_b32 s58, s3, 15
s_mul_i32 s58, s58, {140*1024}
s_mul_i32 s57, s34, {18*1024}
s_min_u32 s57, s57, {122*1024}
s_add_u32 s56, s57, {BB}
s_add_u32 s57, s57, s58
s_waitcnt lgkmcnt(0)''')
    srd_from(k, 4, 4, 5, 0, X_BYTES)
    srd_from(k, 8, 40, 41, WS_U, TU_BYTES)
    for k2 in range(8):
        k(f'buffer_load_dword v{4+k2}, v60, s[8:11], s{46+k2//3} offen offset:{(k2%3)*TP+4*(k2&1)*(opt.get("sh",0)>0)}')
        vm.issue('u')
    k(f'''buffer_load_dwordx4 v[104:107], v52, s[4:7], s35 offen
buffer_load_dwordx4 v[108:111], v53, s[4:7], s35 offen''')
    vm.issue('x'); vm.issue('x')
    srd_from(k, 52, 40, 41, WS_H, X_BYTES)
    srd_from(k, 60, 40, 41, WS_HN, X_BYTES)
    srd_from(k, 64, 40, 41, WS_WI, WI_BYTES)
    if wb:
        w_setup(k, 42, 43); w_vaddr(k, 114, 115)
    if opt.get('ub'): k('s_barrier')
    bq = [] if opt.get('nob') else list(range(18))
    BP = opt.get('BP', [10, 8, 0, 0, 0, 0])
    assert sum(BP) >= 18

    def bulk(i):
        for _ in range(BP[i]):
            if bq:
                i = bq.pop(0)
                if i % 4 == 0:
                    k(f's_add_u32 m0, s56, {1024*i}')
                    if i: k('s_add_u32 s57, s57, 4096')
                k(f'buffer_load_dwordx4 v3, s[64:67], s57 offen offset:{1024*(i%4)} lds'); vm.issue('b')
            elif wb: wb(1, vm, 114)
    bulk(0)
    k(f'''v_mul_u32_u24 v55, 3277, v0
v_lshrrev_b32 v55, 16, v55
v_mul_u32_u24 v56, 20, v55
v_sub_u32 v56, v0, v56
v_mul_u32_u24 v57, {RP}, v56
v_lshl_add_u32 v57, v55, 2, v57
v_mov_b32 v58, {11*RP}
v_cmp_ge_u32 vcc, 10, v56
v_cndmask_b32 v57, v58, v57, vcc
v_sub_u32 v59, 20, v56
v_mul_u32_u24 v59, {RP}, v59
v_sub_u32 v61, 31, v55
v_lshl_add_u32 v59, v61, 2, v59
v_cmp_le_u32 vcc, 10, v56
v_cndmask_b32 v59, v58, v59, vcc
v_sub_u32 v61, 32, v55
v_lshlrev_b32 v61, 2, v61
v_cmp_eq_u32 vcc, 0, v56
v_cndmask_b32 v59, v59, v61, vcc
v_cmp_eq_u32 vcc, 0, v0
v_cndmask_b32 v59, v59, v58, vcc
v_cmp_eq_u32 vcc, 320, v0
v_cndmask_b32 v59, v59, v58, vcc
v_mov_b32 v40, 0x3f3504f3
v_min_u32 v62, 10, v50
v_mul_u32_u24 v62, {RP}, v62
v_lshl_add_u32 v62, v51, 4, v62
s_mul_i32 s42, s34, {NP}
v_add_u32 v62, s42, v62
v_and_b32 v63, 1, v2
v_lshlrev_b32 v63, 31, v63
v_or_b32 v63, 1.0, v63
''')
    k(vm.wait('t')); k('s_barrier')
    for i in range(10): k(f'ds_read_b128 {vr(64+4*i,4)}, v3 offset:{TB2+1024*i}')
    bulk(1)
    k('s_waitcnt lgkmcnt(0)\ns_barrier')
    k(f'''v_cmp_gt_u32 vcc, 321, v0
s_and_saveexec_b64 s[44:45], vcc''')
    k(vm.wait('u'))
    st(k, 1, 1); st(k, 0, 1)
    k(f'''s_cbranch_execz {SKIP}''')
    for k2 in range(8):
        k(f'v_lshlrev_b32 v{20+2*k2}, 16, v{4+k2}\nv_and_b32 v{21+2*k2}, 0xffff0000, v{4+k2}')
    for k2 in range(8):
        if k2 == 0:
            k('v_mov_b32 v4, v20\nv_mov_b32 v5, v21')
        else:
            smul(k, 4 + 2 * k2, 20 + 2 * k2, 16 + 2 * k2, 42 + 2 * (k2 & 1), conj=True)
    T = fft8(k, 4, 20, True, 40)
    for n in range(8):
        k(f'''v_cvt_pk_bf16_f32 v{4+2*n}, v{T[n]}, v{T[n]+1}
v_cvt_pk_bf16_f32 v{5+2*n}, v{T[n]}, -v{T[n]+1}
ds_write_b32 v57, v{4+2*n} offset:{n*NP}
ds_write_b32 v59, v{5+2*n} offset:{n*NP}''')
    k(f'''{SKIP}:
s_mov_b64 exec, -1''')
    bulk(2)
    k(f'''s_waitcnt lgkmcnt(0)
s_barrier
ds_read_b128 v[4:7], v62
ds_read_b128 v[8:11], v62 offset:64''')
    bulk(3)
    k(f'''s_waitcnt lgkmcnt(1)''')
    for u in range(2):
        if u == 1: k('s_waitcnt lgkmcnt(0)')
        for t in range(2):
            k(f'{MFMA} {vr(12+16*u+8*t,4)}, {vr(4+4*u,4)}, {vr(64+8*t,4)}, 0')
            k(f'{MFMA} {vr(16+16*u+8*t,4)}, {vr(4+4*u,4)}, {vr(68+8*t,4)}, 0')
    bulk(4)
    for i in range(0, 16, 2):
        k(f'v_pk_fma_f32 {vr(12+i,2)}, {vr(28+i,2)}, v[62:63], {vr(12+i,2)} op_sel:[0,1,0] op_sel_hi:[1,1,1]')
    for t in range(2):
        cmul_planar(k, 12 + 8 * t, 16 + 8 * t, 80 + 8 * t, 84 + 8 * t, 28, 32, 36)
        k(f'''v_cvt_pk_bf16_f32 v{4+4*t}, v28, v29
v_cvt_pk_bf16_f32 v{5+4*t}, v30, v31
v_cvt_pk_bf16_f32 v{6+4*t}, v32, v33
v_cvt_pk_bf16_f32 v{7+4*t}, v34, v35''')
    for v in range(2):
        for t in range(2):
            k(f'{MFMA} {vr(12+8*v+4*t,4)}, {vr(4+4*t,4)}, {vr(96+4*v,4)}, 0')
    bulk(5)
    k(vm.wait('x'))
    for i in range(8):
        k(f'v_lshlrev_b32 v{28+2*i}, 16, v{104+i}\nv_and_b32 v{29+2*i}, 0xffff0000, v{104+i}')
    for i in range(8):
        k(f'v_cvt_pk_bf16_f32 v{4+i}, v{12+2*i}, v{13+2*i}')
    for i in range(8):
        k(f'v_lshlrev_b32 v{12+2*i}, 16, v{4+i}\nv_and_b32 v{13+2*i}, 0xffff0000, v{4+i}')
    for i in range(8):
        k(f'v_pk_add_f32 {vr(12+2*i,2)}, {vr(12+2*i,2)}, {vr(28+2*i,2)}')
    for i in range(8):
        k(f'v_cvt_pk_bf16_f32 v{4+i}, v{12+2*i}, v{13+2*i}')
    k('''buffer_store_dwordx4 v[4:7], v52, s[52:55], s35 offen sc1
buffer_store_dwordx4 v[8:11], v53, s[52:55], s35 offen sc1''')
    for i in range(8):
        k(f'v_lshlrev_b32 v{12+2*i}, 16, v{4+i}\nv_and_b32 v{13+2*i}, 0xffff0000, v{4+i}')
    k('''v_pk_add_f32 v[28:29], v[12:13], v[14:15]
v_pk_mul_f32 v[30:31], v[12:13], v[12:13]
v_pk_add_f32 v[32:33], v[16:17], v[18:19]
v_pk_mul_f32 v[34:35], v[14:15], v[14:15]''')
    for i in range(2, 8):
        k(f'v_pk_fma_f32 {vr(30+4*(i&1),2)}, {vr(12+2*i,2)}, {vr(12+2*i,2)}, {vr(30+4*(i&1),2)}')
        if i >= 4:
            k(f'v_pk_add_f32 {vr(28+4*(i&1),2)}, {vr(28+4*(i&1),2)}, {vr(12+2*i,2)}')
    k('''v_pk_add_f32 v[28:29], v[28:29], v[32:33]
v_pk_add_f32 v[30:31], v[30:31], v[34:35]
v_add_f32 v28, v28, v29
v_add_f32 v30, v30, v31''')
    wave_reduce2(k, 28, 30, 36, 37)
    ln_stats(k, 36, 37, 640, 28, 30, 32)
    ln_apply(k, 12, 16, 28, 30, 40)
    srd_from(k, 68, 40, 41, WS_FL, FL_BYTES)
    k(f'''ds_write_b128 v112, v[40:43]
s_mov_b32 exec_lo, 0x000f000f
s_mov_b32 exec_hi, 0x000f000f
ds_write_b128 v112, v[44:47] offset:1024
s_mov_b64 exec, -1
s_waitcnt lgkmcnt(0)
s_barrier
ds_read_b128 v[40:43], v113
ds_read_b128 v[44:47], v113 offset:{4*NP+3*256}
s_waitcnt lgkmcnt(1)
buffer_store_dwordx4 v[40:43], v3, s[60:63], s59 offen sc1
s_waitcnt lgkmcnt(0)
buffer_store_dwordx4 v[44:47], v3, s[60:63], s49 offen sc1''')
    st(k, 1, 2); st(k, 0, 2)


def ph_k12(k, opt, wb):
    P = 1040; W0 = 16 * P; TB1 = 32 * P; TB2 = TB1 + 8192
    RP = 144; NP = 11 * RP + 16
    IDLE = k.label('idle'); JOIN = k.label('join'); SKIP = k.label('skip')
    vm = Cnt('vmcnt', 63)
    k(f"""s_load_dwordx4 s[4:7], s[0:1], 8
s_load_dwordx2 s[40:41], s[0:1], 80
s_load_dwordx2 s[72:73], s[0:1], 40
s_load_dwordx2 s[80:81], s[0:1], 64""")
    tab_srd(k, 12)
    k(f"""s_and_b32 s33, s2, 7
s_lshr_b32 s35, s2, 3
v_lshrrev_b32 v1, 6, v0
v_and_b32 v2, 63, v0
v_readfirstlane_b32 s34, v1
v_lshlrev_b32 v3, 4, v2
v_and_b32 v4, 15, v2
v_lshrrev_b32 v5, 4, v2
s_lshl_b32 s39, s34, 10
s_add_u32 m0, s39, {TB1}
s_add_u32 s38, s39, 0x2000
buffer_load_dwordx4 v3, s[12:15], s38 offen lds""")
    vm.issue('t1')
    IIM = 'v[112:115]'; IRE = 'v[114:117]'; FIM = 'v[116:119]'; FRE = 'v[118:121]'
    k(f"""v_mul_u32_u24 v6, {16*8*TP}, v4
v_lshl_add_u32 v6, v5, 4, v6
s_lshl_b32 s36, s34, 4
s_add_u32 s36, s36, s33
s_mul_i32 s45, s36, 642
s_mul_i32 s36, s36, {TP}
s_lshl_b32 s37, s35, 6
s_add_u32 s36, s36, s37
s_add_u32 s42, s36, {8*TP}
s_lshl_b32 s37, s35, 5
s_add_u32 s45, s45, s37
s_and_b32 s45, s45, -4
v_and_b32 v7, 1, v5
v_lshrrev_b32 v8, 1, v5
v_lshl_add_u32 v9, v4, 4, v7
v_mul_u32_u24 v9, {8*642}, v9
v_lshl_add_u32 v9, v8, 4, v9
s_and_b32 s37, s33, 1
s_lshl_b32 s37, s37, 2
s_sub_u32 s43, s36, s37
s_sub_u32 s44, s42, s37
s_lshl_b32 s3, s33, 5
s_add_u32 s3, s3, s35
s_cmp_lt_u32 s2, 168
s_cselect_b32 s43, s43, {BIG}
s_cselect_b32 s44, s44, {BIG}
s_cselect_b32 s45, s45, {BIG}
s_waitcnt lgkmcnt(0)""")
    srd_from(k, 60, 40, 41, WS_T, TU_BYTES)
    for i in range(2):
        k(f'buffer_load_dwordx4 {vr(16+4*i,4)}, v6, s[60:63], s{43+i} offen'); vm.issue(f'T{i}')
    k(f"""s_mov_b32 s52, s6
s_mov_b32 s53, s7
s_mov_b32 s6, {2048*642}
s_mov_b32 s7, 0x00020000
s_mov_b32 s54, {2048*642}
s_mov_b32 s55, 0x00020000""")
    WP = opt.get('k1wp', 0)

    def wld():
        k(f"""buffer_load_dwordx4 v[32:35], v9, s[4:7], s45 offen
buffer_load_dwordx4 v[38:41], v9, s[52:55], s45 offen
s_load_dwordx2 s[4:5], s[0:1], 0""")
        vm.issue('W'); vm.issue('W')
    if opt.get('ob1'): k('s_barrier')
    if WP == 0: wld()
    k(f"""s_min_u32 s39, s34, 4
s_lshl_b32 s39, s39, 11
s_add_u32 m0, s39, {TB2}
s_add_u32 s38, s39, 0x4000
buffer_load_dwordx4 v3, s[12:15], s38 offen lds
buffer_load_dwordx4 v3, s[12:15], s38 offen offset:1024 lds
s_lshl_b32 s38, s3, 6
s_add_u32 s38, s38, 32768
s_load_dwordx16 s[16:31], s[12:13], s38""")
    vm.issue('t2'); vm.issue('t2')
    srd_from(k, 8, 40, 41, WS_U, TU_BYTES)
    srd_from(k, 64, 40, 41, WS_WI, WI_BYTES)
    w_setup(k, 46, 47); w_vaddr(k, 124, 125)
    BR = opt.get('brot', 0)
    g1id(k, 58, 57)
    k(f"""s_and_b32 s58, s58, 15
s_mul_i32 s58, s58, {140*1024}
s_mul_i32 s57, s34, {14*1024}
s_add_u32 s57, s57, {31*1024}
s_min_u32 s57, s57, {(124 if BR else 126)*1024}
s_add_u32 s56, s57, {BB}
s_add_u32 s57, s57, s58""")
    if opt.get('hot'): k('s_sub_u32 s57, s57, s58\ns_mov_b32 s58, 0\ns_and_b32 s50, s50, 0x7fff\ns_and_b32 s51, s51, 0x7fff\ns_and_b32 s82, s82, 0x7fff')
    if opt.get('hotw'): k('s_and_b32 s50, s50, 0x7fff\ns_and_b32 s51, s51, 0x7fff\ns_and_b32 s82, s82, 0x7fff')
    if opt.get('hotb'): k('s_sub_u32 s57, s57, s58\ns_mov_b32 s58, 0')
    if BR: k('s_bfe_u32 s38, s3, 0x10004\ns_lshl_b32 s38, s38, 13')
    bops = []
    for i in range(0 if opt.get('nob') else (16 if BR else 14)):
        if BR:
            o = f's_xor_b32 s39, s38, {1024*(i-i%4)}\ns_add_u32 m0, s56, s39\ns_add_u32 s39, s39, s57\n'
            bops.append(o + f'buffer_load_dwordx4 v3, s[64:67], s39 offen offset:{1024*(i%4)} lds')
            continue
        o = f's_add_u32 m0, s56, {1024*(i-i%4)}\n'
        if i % 4 == 0 and i: o += 's_add_u32 s57, s57, 4096\n'
        bops.append(o + f'buffer_load_dwordx4 v3, s[64:67], s57 offen offset:{1024*(i%4)} lds')
    wops = wb.ops
    NWL = opt.get('nwl', 0)
    wpre = wops[:len(wops) - NWL]; wb.ops = wops[len(wops) - NWL:]
    order = opt.get('bo', 0)
    if order == 0: pre = wpre + bops
    elif order == 1: pre = bops + wpre
    else:
        pre = []
        a, b = list(wpre), list(bops)
        while a or b:
            pre += a[:8]; a = a[8:]
            pre += b[:4]; b = b[4:]
    import copy
    KP = opt.get('KP', [8, 4, 4, 4, 4, 4, 4, 4, 4, 99])
    CP = opt.get('CP', [0, 0, 0, 0, 0])
    NPRE = sum(KP) + sum(opt.get('KW', [0, 0, 0])[:2])
    post = pre[NPRE:]; pre = pre[:NPRE]
    assert len(post) <= sum(CP) + opt.get('KW', [0, 0, 0])[2], (len(post), CP)
    k(f's_cmp_ge_u32 s2, 168\ns_cbranch_scc1 {IDLE}')
    vi = copy.deepcopy(vm)
    q = Bulk(k, pre)

    def bulk(i): q(KP[i], vm, 124, 'q')
    bulk(0)
    k(f"""v_mul_u32_u24 v10, {4*P}, v5
v_lshl_add_u32 v10, v4, 2, v10
s_lshl_b32 s37, s34, 7
v_add_u32 v10, s37, v10
v_mul_u32_u24 v11, {8*P}, v8
v_lshl_add_u32 v11, v7, 6, v11
v_lshl_add_u32 v11, v4, 2, v11
v_add_u32 v11, s37, v11
v_lshlrev_b32 v12, 6, v4
v_lshl_add_u32 v12, v5, 4, v12
s_mul_i32 s37, s34, {2*P}
v_add_u32 v12, s37, v12
s_mov_b32 s47, 0x05040100
s_mov_b32 s48, 0x07060302""")
    for i in range(2):
        k(vm.wait(f'T{i}'))
        if i == 0: st(k, 4, 1)
        for j in range(4):
            k(f'ds_write_b32 v10, v{16+4*i+j} offset:{j*P+64*i}')
    if WP == 1: wld()
    bulk(1)
    k('s_waitcnt lgkmcnt(0)\ns_barrier')
    NC = 2
    KW = opt.get('KW', [0, 0, 0])
    i0 = len(k.lines)
    k(f"""ds_read_b128 v[96:99], v3 offset:{TB1}
ds_read_b128 v[16:19], v12
ds_read_b128 v[100:103], v3 offset:{TB1+1024}
ds_read_b128 v[20:23], v12 offset:{P}
ds_read_b128 v[104:107], v3 offset:{TB1+2048}
ds_read_b128 v[108:111], v3 offset:{TB1+3072}
ds_read_b128 v[118:121], v3 offset:{TB1+4096}
ds_read_b64 v[116:117], v3 offset:{TB1+5120}
ds_read_b128 v[112:115], v3 offset:{TB1+7168}""")
    bulk(2)
    k(f"""s_waitcnt lgkmcnt(7)
{MFMA} v[48:51], v[16:19], v[96:99], 0
s_waitcnt lgkmcnt(6)
{MFMA} v[52:55], v[16:19], v[100:103], 0
s_waitcnt lgkmcnt(5)
{MFMA} v[56:59], v[20:23], v[96:99], 0
{MFMA} v[60:63], v[20:23], v[100:103], 0""")
    bulk(3)
    k('s_waitcnt lgkmcnt(0)')

    def pack(c, re, im):
        k(f"""v_cvt_pk_bf16_f32 v{16+4*c}, v{re}, v{re+1}
v_cvt_pk_bf16_f32 v{17+4*c}, v{re+2}, v{re+3}
v_cvt_pk_bf16_f32 v{18+4*c}, v{im}, v{im+1}
v_cvt_pk_bf16_f32 v{19+4*c}, v{im+2}, v{im+3}""")
    for c in range(NC):
        cmul_planar(k, 48 + 8 * c, 52 + 8 * c, 104, 108, 80, 84, 88)
        pack(c, 80, 84)
        k(f'{MFMA} {vr(48+8*c,4)}, {FRE}, {vr(16+4*c,4)}, 0')
        k(f'{MFMA} {vr(52+8*c,4)}, {FIM}, {vr(16+4*c,4)}, 0')
    bulk(4)
    weave_in(k, i0, q, KW[0], vm, 124)
    k(vm.wait('W') or '')
    k(vm.wait('t2') or '')
    st(k, 4, 2)
    i0 = len(k.lines)
    for j in range(8):
        k(f'v_perm_b32 v{64+j}, v{38+j//2}, v{32+j//2}, s{47+(j&1)}')
        k(f'ds_write_b32 v11, v{64+j} offset:{W0+j*P}')
    bulk(5)
    k(f's_waitcnt lgkmcnt(0)\ns_barrier')
    for c in range(NC):
        k(f'ds_read_b128 {vr(32+4*c,4)}, v12 offset:{W0+c*P}')
    bulk(6)
    for c in range(NC):
        k(f's_waitcnt lgkmcnt({NC-1-c})')
        for r in range(4):
            k(f'v_lshlrev_b32 v{64+8*c+r}, 16, v{32+4*c+r}\nv_and_b32 v{68+8*c+r}, 0xffff0000, v{32+4*c+r}')
        cmul_planar(k, 48 + 8 * c, 52 + 8 * c, 64 + 8 * c, 68 + 8 * c, 80, 84, 88)
        pack(c, 80, 84)
        k(f'{MFMA} {vr(48+8*c,4)}, {vr(16+4*c,4)}, {IRE}, 0')
        k(f'{MFMA} {vr(52+8*c,4)}, {vr(16+4*c,4)}, {IIM}, 0')
    bulk(7)
    for c in range(NC):
        cmul_planar(k, 48 + 8 * c, 52 + 8 * c, 104, 108, 80, 84, 88, conj=True)
        pack(c, 80, 84)
        k(f'{MFMA} {vr(48+8*c,4)}, {IRE}, {vr(16+4*c,4)}, 0')
        k(f'{MFMA} {vr(52+8*c,4)}, {IIM}, {vr(16+4*c,4)}, 0')
    bulk(8)
    for c in range(NC):
        for r in range(4):
            k(f'v_cvt_pk_bf16_f32 v{16+4*c+r}, v{48+8*c+r}, v{52+8*c+r}')
        k(f'ds_write_b128 v12, {vr(16+4*c,4)} offset:{c*P}')
    weave_in(k, i0, q, KW[1], vm, 124)
    k('s_waitcnt lgkmcnt(0)\ns_barrier')
    for i in range(2):
        for j in range(4):
            k(f'ds_read_b32 v{16+4*i+j}, v10 offset:{j*P+64*i}')
    for i in range(10): k(f'ds_read_b128 {vr(64+4*i,4)}, v3 offset:{TB2+1024*i}')
    for i in range(2):
        k(f's_waitcnt lgkmcnt({14-4*i})')
        k(f'buffer_store_dwordx4 {vr(16+4*i,4)}, v6, s[8:11], {["s36","s42"][i]} offen sc1')
    st(k, 4, 3)
    if opt.get('ob2'): k('s_barrier')
    q(99, vm, 124, 'q')
    k(f's_branch {JOIN}\n{IDLE}:')
    if WP: k('s_load_dwordx2 s[4:5], s[0:1], 0')
    if opt.get('it2'):
        WM = opt.get('wte', 0)
        k(f'''s_sub_u32 s43, s35, 21
s_and_b32 s44, s33, 1
s_mul_i32 s44, s44, 11
s_add_u32 s43, s43, s44
s_mul_i32 s44, s34, 22
s_add_u32 s44, s44, s43
s_add_u32 s44, s44, {64*WM}
s_add_u32 s45, s44, 176
s_lshr_b32 s46, s33, 1
s_lshl_b32 s46, s46, 18
v_lshlrev_b32 v10, 7, v2''')
        for r in (44, 45)[:2 if 64*(4-WM) > 176 else 1]:
            k(f'''s_and_b32 s47, s{r}, 31
s_lshl_b32 s47, s47, 13
s_add_u32 s47, s47, s46
s_bfe_u32 s48, s{r}, 0x10005
s_lshl_b32 s48, s48, 22
s_add_u32 s47, s47, s48
s_lshr_b32 s48, s{r}, 6
s_lshl_b32 s48, s48, 20
s_add_u32 s47, s47, s48
s_cmp_lt_u32 s{r}, 256
s_cselect_b32 s47, s47, {BIG}
buffer_load_ubyte v11, v10, s[72:75], s47 offen''')
            vi.issue('q')
            if opt['it2'] > 1: k('s_barrier')
    if opt.get('itd'): k(f's_sleep {opt["itd"]}')
    if opt.get('it'):
        k(f'''s_sub_u32 s43, s35, 21
s_and_b32 s44, s33, 1
s_mul_i32 s44, s44, 11
s_add_u32 s43, s43, s44
s_lshl_b32 s44, s43, 3
s_add_u32 s44, s44, s34
s_mul_i32 s45, s34, 22
s_add_u32 s45, s45, s43
s_add_u32 s45, s45, 176
s_lshr_b32 s46, s33, 1
s_lshl_b32 s46, s46, 18
v_lshlrev_b32 v10, 7, v2''')
        for r in (44, 45):
            k(f'''s_and_b32 s47, s{r}, 31
s_lshl_b32 s47, s47, 13
s_lshr_b32 s48, s{r}, 5
s_lshl_b32 s48, s48, 20
s_add_u32 s47, s47, s48
s_add_u32 s47, s47, s46
buffer_load_ubyte v11, v10, s[72:75], s47 offen''')
            vi.issue('q')
        if opt.get('bt'):
            k('''s_load_dwordx2 s[44:45], s[0:1], 48
s_mov_b32 s46, 4096
s_mov_b32 s47, 0x00020000
v_lshlrev_b32 v12, 6, v2
s_waitcnt lgkmcnt(0)
buffer_load_ubyte v11, v12, s[44:47], 0 offen''')
            vi.issue('q')
        if opt['it'] > 1: k('s_barrier')
    if opt.get('iw'):
        wp = [o for o in pre if o in wpre]; bp = [o for o in pre if o not in wpre]
        assert len(bp) == len(bops)
        IW = opt['iw']
        nb0 = opt.get('ib0', 0)
        Bulk(k, bp[:nb0])(99, vi, 124, 'q')
        Bulk(k, wp)(99, vi, 124, 'q')
        k('s_mov_b32 s46, s50\ns_mov_b32 s47, s51')
        Bulk(k, wpre[len(wp):len(wp) + IW])(99, vi, 124, 'q')
        k('s_mov_b32 s50, s46\ns_mov_b32 s51, s47')
        Bulk(k, bp[nb0:])(99, vi, 124, 'q')
    else:
        q = Bulk(k, pre)
        q(99, vi, 124, 'q')
    k(vi.wait('t2'))
    k('s_barrier')
    for i in range(10): k(f'ds_read_b128 {vr(64+4*i,4)}, v3 offset:{TB2+1024*i}')
    if opt.get('idl'): k(f's_sleep {opt["idl"]}')
    k(f'{JOIN}:')
    ph_k2b(k, opt, post, NWL)


def ph_k2b(k, opt, post, NWL=0, fused=False):
    RP = 144; NP = 11 * RP + 16
    SKIP = k.label('skip')
    KW = opt.get('KW', [0, 0, 0])
    CP = opt.get('CP', [0, 0, 0, 0, 0])
    LEAN = opt.get('lean', 0) & 1
    XP5 = [108, 110, 114, 116, 118]
    if LEAN:
        assert fused and opt.get('xs') and opt.get('hd') and not G1S
        k(f'''v_and_b32 v44, {hex(0x3f0 & ~128)}, v3
v_xor_b32 v45, 64, v44
ds_read_b128 v[100:103], v44 offset:{opt['TB2']+9*1024}
ds_read_b128 v[104:107], v45 offset:{opt['TB2']+9*1024}''')
    vm = Cnt('vmcnt', 63); vm.issue('q')
    if opt.get('g3s'):
        srd_from(k, 60, 40, 41, WS_A, A2_BYTES)
        k('''s_lshl_b32 s46, s2, 14
s_lshl_b32 s47, s34, 11
s_add_u32 s46, s46, s47
v_mov_b32 v28, -1
v_mov_b32 v29, -1
v_mov_b32 v30, -1
v_mov_b32 v31, -1
buffer_store_dwordx4 v[28:31], v3, s[60:63], s46 offen sc1
buffer_store_dwordx4 v[28:31], v3, s[60:63], s46 offen offset:1024 sc1''')
        vm.issue('f'); vm.issue('f')
    V53 = '''v_and_b32 v53, 0xf0, v52
v_bfe_u32 v54, v50, 2, 1
v_lshl_add_u32 v53, v54, 3, v53
v_lshrrev_b32 v54, 3, v50
v_lshl_add_u32 v53, v54, 2, v53
v_add_u32 v53, 1024, v53''' if LEAN else '''v_add_u32 v53, 1024, v52
v_mov_b32 v54, 0x7fffffff
v_cmp_gt_u32 vcc, 4, v50
v_cndmask_b32 v53, v54, v53, vcc'''
    k(f"""s_mul_i32 s46, s3, {8*TP}
s_add_u32 s47, s46, {3*TP}
s_add_u32 s48, s46, {6*TP}
v_lshlrev_b32 v60, 2, v0
s_lshl_b32 s35, s34, 8
s_add_u32 s35, s35, s3
s_mul_i32 s35, s35, 1280
v_and_b32 v50, 15, v2
v_lshrrev_b32 v51, 4, v2
v_lshlrev_b32 v52, 6, v50
v_lshl_add_u32 v52, v51, 4, v52
{V53}
s_lshl_b32 s42, s34, 12
s_min_u32 s42, s42, {27*1024}
s_add_u32 m0, s42, {BB}
s_add_u32 s42, s42, s58
s_waitcnt lgkmcnt(0)
s_barrier""")
    st(k, 8, 5)
    if not fused: srd_from(k, 4, 4, 5, 0, X_BYTES)
    for i in range(0 if opt.get('nob') else 4):
        k(f'buffer_load_dwordx4 v3, s[64:67], s42 offen offset:{1024*i} lds'); vm.issue('b')
    st(k, 8, 6)
    if LEAN:
        k(f"""v_add_u32 v54, s32, v52
v_add_u32 v55, s32, v53
ds_read_b128 v[44:47], v54 offset:8192
ds_read_b32 v48, v55 offset:8192
s_mul_i32 s59, s34, {NP}
v_add_u32 v120, s59, v53""")
    elif opt.get('xs'):
        k(f"""v_add_u32 v54, s32, v52
v_mov_b32 v108, 0
v_mov_b32 v109, 0
v_mov_b32 v110, 0
v_mov_b32 v111, 0
ds_read_b128 v[104:107], v54 offset:8192
s_mov_b64 exec, vcc
ds_read_b128 v[108:111], v54 offset:{8192+1024}
s_mov_b64 exec, -1""")
    else:
        k(f"""buffer_load_dwordx4 v[104:107], v52, s[4:7], s35 offen
buffer_load_dwordx4 v[108:111], v53, s[4:7], s35 offen""")
        vm.issue('x'); vm.issue('x')
    HP0 = opt.get('hp0', 10240)
    if G1S:
        k(f"""s_mul_i32 s59, s34, {NP}
v_add_u32 v112, s59, v52""")
        for j, d in enumerate((113, 115)):
            k(f"""v_add_u32 v116, {512*j}, v0
v_mul_u32_u24 v117, 410, v116
v_lshrrev_b32 v117, 16, v117
v_mul_u32_u24 v118, 160, v117
v_sub_u32 v116, v116, v118
v_and_b32 v118, 1, v116
v_lshl_add_u32 v117, v117, 1, v118
v_mul_u32_u24 v117, {NP}, v117
v_lshrrev_b32 v116, 1, v116
v_lshl_add_u32 v{d}, v116, 4, v117""")
        k(f"""s_mul_i32 s59, s3, {HP}
s_lshl_b32 s60, s34, 10
s_add_u32 s59, s59, s60
s_add_u32 s49, s59, 8192
s_cmp_lt_u32 s34, 2
s_cselect_b32 s49, s49, {BIG}""")
    else: k(f"""s_mul_i32 s59, s34, {NP}
v_add_u32 v112, s59, v52
v_and_b32 v113, 3, v2
v_mul_u32_u24 v113, {NP}, v113
v_lshrrev_b32 v114, 2, v2
v_lshl_add_u32 v113, v114, 4, v113
s_cmp_ge_u32 s34, 5
s_cselect_b32 s59, {4*NP-5*256}, 0
s_lshl_b32 s60, s34, 8
s_add_u32 s59, s59, s60
v_add_u32 v113, s59, v113
s_mul_i32 s59, s3, {HP0}
s_lshl_b32 s60, s34, 10
s_add_u32 s59, s59, s60
s_add_u32 s49, s59, 8192
s_cmp_lt_u32 s34, 2
s_cselect_b32 s49, s49, {BIG}""")
    srd_from(k, 52, 80, 81, 0, X_BYTES) if opt.get('hout') else srd_from(k, 52, 40, 41, WS_H, X_BYTES)
    srd_from(k, 60, 40, 41, WS_HN, 0x300000)
    k(f"""v_mul_u32_u24 v55, 3277, v0
v_lshrrev_b32 v55, 16, v55
v_mul_u32_u24 v56, 20, v55
v_sub_u32 v56, v0, v56
v_mul_u32_u24 v57, {RP}, v56
v_lshl_add_u32 v57, v55, 2, v57
v_mov_b32 v58, {11*RP}
v_cmp_ge_u32 vcc, 10, v56
v_cndmask_b32 v57, v58, v57, vcc
v_sub_u32 v59, 20, v56
v_mul_u32_u24 v59, {RP}, v59
v_sub_u32 v61, 31, v55
v_lshl_add_u32 v59, v61, 2, v59
v_cmp_le_u32 vcc, 10, v56
v_cndmask_b32 v59, v58, v59, vcc
v_sub_u32 v61, 32, v55
v_lshlrev_b32 v61, 2, v61
v_cmp_eq_u32 vcc, 0, v56
v_cndmask_b32 v59, v59, v61, vcc
v_cmp_eq_u32 vcc, 0, v0
v_cndmask_b32 v59, v59, v58, vcc
v_cmp_eq_u32 vcc, 320, v0
v_cndmask_b32 v59, v59, v58, vcc
v_mov_b32 v40, 0x3f3504f3
v_min_u32 v62, 10, v50
v_mul_u32_u24 v62, {RP}, v62
v_lshl_add_u32 v62, v51, 4, v62
s_mul_i32 s42, s34, {NP}
v_add_u32 v62, s42, v62
v_and_b32 v63, 1, v2
v_lshlrev_b32 v63, 31, v63
v_or_b32 v63, 1.0, v63
""")
    WT0 = opt.get('wt0', 0) if not opt.get('now') else 0
    assert not (WT0 and NWL)
    if WT0:
        k(vm.wait('q'))
        w_trans(k, 44, 45, list(range(WT0)))
    if LEAN:
        k('s_waitcnt lgkmcnt(0)')
        for i in range(5): k(f'v_lshlrev_b32 v{XP5[i]}, 16, v{44+i}\nv_and_b32 v{XP5[i]+1}, 0xffff0000, v{44+i}')
    st(k, 4, 4); st(k, 8, 7)
    LP = k.label('lp'); LD = k.label('ld'); SK0 = k.label('sk0'); STUB = k.label('stub'); GO = k.label('go')
    q = Bulk(k, post)
    UNI = KW[2] > 0
    L0 = k.label('l0'); L1 = None
    if UNI:
        assert not WT0
        k(f"""v_cmp_gt_u32 vcc, 321, v0
v_cndmask_b32 v57, v58, v57, vcc
v_cndmask_b32 v59, v58, v59, vcc
s_mov_b64 exec, vcc
s_mov_b32 s43, {SPIN}
s_cmp_lt_u32 s34, 6
s_cbranch_scc1 {L0}
s_waitcnt vmcnt(0)
{f"s_sleep {opt['c67']}" if opt.get('c67') else ""}""")
        if opt.get('wt67'):
            k('s_mov_b64 exec, -1')
            w_trans(k, 44, 45, [0, 1, 2, 3], 42, True)
        k(f's_branch {LD}\n{L0}:')
        if opt.get('wte'):
            L1 = k.label('l1')
            for k2 in range(8):
                k(f'buffer_load_dword v{4+k2}, v60, s[8:11], s{46+k2//3} offen offset:{(k2%3)*TP+(0 if opt.get("ip") else 4*(k2&1))} sc1')
            k('s_mov_b64 exec, -1')
            w_trans(k, 44, 45, list(range(opt['wte'])), 42, True)
            k(f's_mov_b64 exec, vcc\ns_branch {L1}')
        k(f'{LP}:')
    else:
      k(f"""v_cmp_gt_u32 vcc, 321, v0
s_mov_b64 s[44:45], vcc
s_cmp_lt_u32 s34, 6
s_cbranch_scc1 {GO}
s_waitcnt vmcnt(0)""")
      if opt.get('c67'): k(f's_sleep {opt["c67"]}')
      q.copy()(CP[0], None, 124)
      k(f"""s_mov_b64 exec, 0
s_branch {SK0 if WT0 else SKIP}
{GO}:
s_mov_b64 exec, s[44:45]
s_mov_b32 s43, {SPIN}
{LP}:""")
    for k2 in range(8):
        k(f'buffer_load_dword v{4+k2}, v60, s[8:11], s{46+k2//3} offen offset:{(k2%3)*TP+(0 if opt.get("ip") else 4*(k2&1))} sc1')
    if L1: k(f'{L1}:')
    CHK = """v_and_b32 v12, v4, v5
v_and_b32 v13, v6, v7
v_and_b32 v14, v8, v9
v_and_b32 v15, v10, v11
v_and_b32 v12, v12, v13
v_and_b32 v14, v14, v15
v_and_b32 v12, 1, v12
v_and_b32 v12, v12, v14
v_cmp_eq_u32 vcc, 0, v12""" if opt.get('ip') else """v_max3_u32 v12, v4, v5, v6
v_max3_u32 v13, v7, v8, v9
v_max3_u32 v12, v12, v10, v11
v_max_u32 v12, v12, v13
v_cmp_eq_u32 vcc, -1, v12"""
    k(f"""s_waitcnt vmcnt(0)
{CHK}
s_cbranch_vccz {LD}
{f"s_sleep {opt['usl']}" if opt.get('usl') else ""}
s_sub_u32 s43, s43, 1
s_cmp_lg_u32 s43, 0
s_cbranch_scc1 {LP}
{LD}:""")
    st(k, 4, 5); st(k, 0, 1); st(k, 8, 8)
    if UNI:
        k('s_mov_b64 exec, -1')
        if opt.get('xs') or opt.get('wte') or opt.get('wt67'): k('s_waitcnt lgkmcnt(0)')
        if opt.get('ob3'): k('s_barrier')
        q(CP[0], None, 124)
        i0 = len(k.lines)
    elif CP[0] and post:
        k('s_mov_b64 exec, -1')
        q(CP[0], None, 124)
        k('s_mov_b64 exec, s[44:45]')
    for k2 in range(8):
        k(f'v_lshlrev_b32 v{20+2*k2}, 16, v{4+k2}\nv_and_b32 v{21+2*k2}, 0xffff0000, v{4+k2}')
    for k2 in range(8):
        if k2 == 0:
            k('v_mov_b32 v4, v20\nv_mov_b32 v5, v21')
        else:
            smul(k, 4 + 2 * k2, 20 + 2 * k2, 16 + 2 * k2, 42 + 2 * (k2 & 1), conj=True)
    T = fft8(k, 4, 20, True, 40)
    if WT0:
        k(f'{SK0}:\ns_waitcnt lgkmcnt(0)\ns_barrier\ns_cbranch_execz {SKIP}')
    for n in range(8):
        k(f"""v_cvt_pk_bf16_f32 v{4+2*n}, v{T[n]}, v{T[n]+1}
v_cvt_pk_bf16_f32 v{5+2*n}, v{T[n]}, -v{T[n]+1}
ds_write_b32 v57, v{4+2*n} offset:{n*NP}
ds_write_b32 v59, v{5+2*n} offset:{n*NP}""")
    k(f"""{SKIP}:
s_mov_b64 exec, -1""")
    q(CP[1], None, 124)
    k(f"""s_waitcnt lgkmcnt(0)
s_barrier
ds_read_b128 v[4:7], v62
ds_read_b128 v[8:11], v62 offset:64""")
    if opt.get('kw0'): i0 = len(k.lines)
    q(CP[2], None, 124)
    k('s_waitcnt lgkmcnt(1)')
    for u in range(2):
        if u == 1: k('s_waitcnt lgkmcnt(0)')
        for t in range(2):
            k(f'{MFMA} {vr(12+16*u+8*t,4)}, {vr(4+4*u,4)}, {vr(64+8*t,4)}, 0')
            k(f'{MFMA} {vr(16+16*u+8*t,4)}, {vr(4+4*u,4)}, {vr(68+8*t,4)}, 0')
    q(CP[3], None, 124)
    for i in range(0, 16, 2):
        k(f'v_pk_fma_f32 {vr(12+i,2)}, {vr(28+i,2)}, v[62:63], {vr(12+i,2)} op_sel:[0,1,0] op_sel_hi:[1,1,1]')
    for t in range(2):
        cmul_planar(k, 12 + 8 * t, 16 + 8 * t, 80 + 8 * t, 84 + 8 * t, 28, 32, 36)
        k(f"""v_cvt_pk_bf16_f32 v{4+4*t}, v28, v29
v_cvt_pk_bf16_f32 v{5+4*t}, v30, v31
v_cvt_pk_bf16_f32 v{6+4*t}, v32, v33
v_cvt_pk_bf16_f32 v{7+4*t}, v34, v35""")
    if LEAN:
        k(f'''{MFMA} v[20:23], v[4:7], v[100:103], 0
{MFMA} v[12:15], v[4:7], v[96:99], 0
{MFMA} v[20:23], v[8:11], v[104:107], v[20:23]
{MFMA} v[16:19], v[8:11], v[96:99], 0
v_pk_add_f32 v[12:13], v[12:13], {vr(XP5[0],2)}
v_pk_add_f32 v[14:15], v[14:15], {vr(XP5[1],2)}
v_mov_b32_dpp v20, v22 quad_perm:[0,1,2,3] row_mask:0xf bank_mask:0xc
v_mov_b32_dpp v21, v23 quad_perm:[0,1,2,3] row_mask:0xf bank_mask:0xc
v_pk_add_f32 v[28:29], v[12:13], v[14:15]
v_pk_mul_f32 v[30:31], v[12:13], v[12:13]
v_pk_add_f32 v[16:17], v[16:17], {vr(XP5[2],2)}
v_pk_add_f32 v[18:19], v[18:19], {vr(XP5[3],2)}
v_pk_add_f32 v[20:21], v[20:21], {vr(XP5[4],2)}
v_pk_fma_f32 v[30:31], v[14:15], v[14:15], v[30:31]
v_pk_add_f32 v[32:33], v[16:17], v[18:19]
v_pk_mul_f32 v[34:35], v[16:17], v[16:17]
v_pk_add_f32 v[28:29], v[28:29], v[20:21]
v_pk_fma_f32 v[30:31], v[20:21], v[20:21], v[30:31]
v_pk_fma_f32 v[34:35], v[18:19], v[18:19], v[34:35]
v_pk_add_f32 v[28:29], v[28:29], v[32:33]
v_pk_add_f32 v[30:31], v[30:31], v[34:35]
v_add_f32 v28, v28, v29
v_add_f32 v30, v30, v31''')
        j0 = len(k.lines)
        wave_reduce2(k, 28, 30, 36, 37)
        for i in range(5): k.lines.insert(j0 + 3 * i, f'v_cvt_pk_bf16_f32 v{4+i}, v{12+2*i}, v{13+2*i}')
        ln_stats(k, 36, 37, 640, 28, 30, 32)
        ln_apply2(k, 12, 10, 28, 30, 40)
        HS = """buffer_store_dwordx4 v[4:7], v52, s[52:55], s35 offen sc1
buffer_store_dword v8, v53, s[52:55], s35 offen sc1"""
    else:
        for v in range(2):
            for t in range(2):
                k(f'{MFMA} {vr(12+8*v+4*t,4)}, {vr(4+4*t,4)}, {vr(96+4*v,4)}, 0')
        q(CP[4], None, 124)
        if UNI and opt.get('kwe', 1) == 0: weave_in(k, i0, q, KW[2], None, 124)
        for i in range(8):
            k(f'v_lshlrev_b32 v{28+2*i}, 16, v{104+i}\nv_and_b32 v{29+2*i}, 0xffff0000, v{104+i}')
        for i in range(8):
            k(f'v_cvt_pk_bf16_f32 v{4+i}, v{12+2*i}, v{13+2*i}')
        for i in range(8):
            k(f'v_lshlrev_b32 v{12+2*i}, 16, v{4+i}\nv_and_b32 v{13+2*i}, 0xffff0000, v{4+i}')
        for i in range(8):
            k(f'v_pk_add_f32 {vr(12+2*i,2)}, {vr(12+2*i,2)}, {vr(28+2*i,2)}')
        for i in range(8):
            k(f'v_cvt_pk_bf16_f32 v{4+i}, v{12+2*i}, v{13+2*i}')
        HS = """buffer_store_dwordx4 v[4:7], v52, s[52:55], s35 offen sc1
    buffer_store_dwordx4 v[8:11], v53, s[52:55], s35 offen sc1"""
        if not opt.get('hd'): k(HS)
        for i in range(8):
            k(f'v_lshlrev_b32 v{12+2*i}, 16, v{4+i}\nv_and_b32 v{13+2*i}, 0xffff0000, v{4+i}')
        k("""v_pk_add_f32 v[28:29], v[12:13], v[14:15]
    v_pk_mul_f32 v[30:31], v[12:13], v[12:13]
    v_pk_add_f32 v[32:33], v[16:17], v[18:19]
    v_pk_mul_f32 v[34:35], v[14:15], v[14:15]""")
        for i in range(2, 8):
            k(f'v_pk_fma_f32 {vr(30+4*(i&1),2)}, {vr(12+2*i,2)}, {vr(12+2*i,2)}, {vr(30+4*(i&1),2)}')
            if i >= 4:
                k(f'v_pk_add_f32 {vr(28+4*(i&1),2)}, {vr(28+4*(i&1),2)}, {vr(12+2*i,2)}')
        k("""v_pk_add_f32 v[28:29], v[28:29], v[32:33]
    v_pk_add_f32 v[30:31], v[30:31], v[34:35]
    v_add_f32 v28, v28, v29
    v_add_f32 v30, v30, v31""")
        wave_reduce2(k, 28, 30, 36, 37)
        ln_stats(k, 36, 37, 640, 28, 30, 32)
        ln_apply(k, 12, 16, 28, 30, 40)
    if UNI and opt.get('kwe', 1) == 1: weave_in(k, i0, q, KW[2], None, 124)
    assert not q.ops
    if not fused: srd_from(k, 68, 40, 41, WS_FL, FL_BYTES)
    W2 = 'ds_write_b32 v120, v44' if LEAN else '''s_mov_b32 exec_lo, 0x000f000f
s_mov_b32 exec_hi, 0x000f000f
ds_write_b128 v112, v[44:47] offset:1024
s_mov_b64 exec, -1'''
    k(f"""ds_write_b128 v112, v[40:43]
{W2}
s_waitcnt lgkmcnt(0)
s_barrier
ds_read_b128 v[40:43], v113
{"ds_read_b128 v[44:47], v115" if G1S else f"ds_read_b128 v[44:47], v113 offset:{4*NP+3*256}"}
s_waitcnt lgkmcnt(1)
buffer_store_dwordx4 v[40:43], v3, s[60:63], s59 offen sc1
s_waitcnt lgkmcnt(0)
buffer_store_dwordx4 v[44:47], v3, s[60:63], s49 offen sc1
v_mov_b32 v114, v124""")
    if opt.get('hd'): k(HS)
    st(k, 4, 6); st(k, 0, 2); st(k, 8, 9)


def poll2(k, loads, chk, sc, sl=0):
    LP = k.label('lp'); LD = k.label('ld')
    k(f'''s_mov_b32 s{sc}, {SPIN}
{LP}:
{loads}
s_waitcnt vmcnt(0)
{chk}
s_cbranch_vccz {LD}
{f"s_sleep {sl}" if sl else ""}
s_sub_u32 s{sc}, s{sc}, 1
s_cmp_lg_u32 s{sc}, 0
s_cbranch_scc1 {LP}
{LD}:''')


def flag_poll(k, sf, sp, n, sl=0, d0=0, part=3, fs=None):
    if part & 1:
        k(f'''v_lshrrev_b32 v10, 4, v3
v_lshlrev_b32 v10, {FS if fs is None else fs}, v10
s_mov_b64 exec, 1
v_mov_b32 v8, 1
buffer_store_dword v8, v10, s[68:71], s{sf} offen sc1''')
    if part & 2:
        k(f's_mov_b64 exec, {hex((1 << n) - 1)}')
        if d0: k(f's_sleep {d0}')
        poll2(k, f'buffer_load_dword v9, v10, s[68:71], s{sp} offen sc1', 'v_cmp_eq_u32 vcc, 0, v9', 43, sl)
    k('s_mov_b64 exec, -1')


def ph_g1(k, opt, DONE, wb, fused=False):
    L = {(g, z): k.label(f'g{g}z{z}') for g in range(2) for z in range(2)}
    WQ = opt.get('WQ', [32, 0, 8, 15])
    k(f's_lshl_b32 s49, s3, {FS}')
    g1id(k, 3, 35)
    k(f'''s_lshr_b32 s35, s3, 4
s_bfe_u32 s36, s3, 0x30001
s_and_b32 s37, s3, 1
s_and_b32 s38, s34, 3
s_lshl_b32 s39, s35, 2
s_add_u32 s39, s39, s38
v_and_b32 v2, 63, v0
v_and_b32 v6, 15, v2
v_lshrrev_b32 v7, 4, v2''')
    if wb: k('v_mov_b32 v88, v114')
    HP0 = opt.get('hp0', 10240)
    srd_from(k, 8, 40, 41, WS_HN, 0x300000)
    k(f'''v_lshlrev_b32 v9, 3, v2
v_lshrrev_b32 v8, 2, v6
v_and_b32 v10, 3, v6
v_mul_u32_u24 v1, {HP0}, v8
v_lshl_add_u32 v1, v7, 6, v1
v_lshl_add_u32 v1, v10, 4, v1
v_add_u32 v2, {4*HP0}, v1
s_lshr_b32 s44, s39, 1
s_mul_i32 s44, s44, {8*HP0}
s_and_b32 s45, s38, 1
s_mul_i32 s45, s45, 5120
s_add_u32 s44, s44, s45
s_add_u32 s45, s44, 4096
v_add_u32 v4, 57344, v3
v_add_u32 v5, 114688, v3''')
    srd_from(k, 12, 40, 41, WS_Z1, A2_BYTES)
    srd_from(k, 16, 40, 41, WS_Z2, Z2N_BYTES)
    srd_from(k, 20, 40, 41, WS_PX, PX_BYTES)
    k(f'''s_and_b32 s47, s3, 15
s_lshl_b32 s47, s47, 4
s_add_u32 s47, s47, s35
s_lshl_b32 s47, s47, {FS}
s_add_u32 s47, s47, {FL2}
s_lshr_b32 s42, s34, 2
s_cmp_eq_u32 s42, s37
s_cselect_b32 s43, 1, 0
s_lshl_b32 s42, s42, 1
s_add_u32 s42, s42, s43
s_cmp_eq_u32 s42, 1
s_cbranch_scc1 {L[0,1]}
s_cmp_eq_u32 s42, 2
s_cbranch_scc1 {L[1,0]}
s_cmp_eq_u32 s42, 3
s_cbranch_scc1 {L[1,1]}''')
    PD = opt.get('PD', 5); NA = PD + 1
    assert 40 + 8 * NA <= 88
    AR = lambda kk, u: vr(40 + 8 * (kk % NA) + 4 * u, 4)
    ACC = lambda u, n: 96 + ((n & 3) * 2 + u) * 4

    def aload(kk, u, v):
        if kk >= 20: return
        k(f'buffer_load_dwordx4 {AR(kk,u)}, v{1+u}, s[8:11], s{44+kk//16} offen offset:{256*(kk%16)}'); v.issue(f'a{kk}')
    NB = 8; LA = opt.get('LA', 6)
    SC = opt.get('gsc', 1)

    def tail(z2, wq, rest):
        if not fused:
            k(f's_branch {DONE}'); return
        if opt.get('pw'):
            assert not rest and not wq.ops
            F2S = opt.get('f2s', 5); FZS = opt.get('fzs', 5)
            if z2:
                k(f'''s_lshl_b32 s47, s36, 3
s_lshr_b32 s42, s39, 4
s_add_u32 s47, s47, s42
s_and_b32 s42, s39, 1
s_lshl_b32 s42, s42, 2
s_add_u32 s47, s47, s42
s_lshl_b32 s47, s47, 4
s_and_b32 s42, s39, 14
s_add_u32 s47, s47, s42
s_add_u32 s47, s47, s37
s_lshl_b32 s47, s47, {F2S}
s_add_u32 s47, s47, {FL2}''')
            else:
                k(f'''s_lshl_b32 s47, s39, 4
s_and_b32 s42, s3, 15
s_add_u32 s47, s47, s42
s_lshl_b32 s47, s47, {FZS}
s_add_u32 s47, s47, {FLU}''')
            map_g2(k)
            k(f'''s_load_dwordx2 s[24:25], s[0:1], 48
s_lshl_b32 s44, s36, 3
s_add_u32 s44, s44, s34
s_lshl_b32 s44, s44, {4+F2S}
s_add_u32 s44, s44, {FL2}
s_waitcnt vmcnt(0)''')
            st(k, 0, 5)
            flag_poll(k, 47, 44, 16, opt.get('g2sl', 0), opt.get('g2d', 0) if z2 else 0, fs=F2S)
            k(f's_waitcnt lgkmcnt(0)\ns_branch {DONE}')
            return
        map_g2(k)
        k('s_load_dwordx2 s[24:25], s[0:1], 48')
        if not z2 and not wq.ops and rest and opt.get('wte', 1) and not W128:
            w_trans(k, 12, 13, rest); rest = []
        k('s_waitcnt vmcnt(0)')
        st(k, 0, 5)
        if z2: k('s_setprio 0')
        if not z2 and not wq.ops and rest and not W128:
            w_trans(k, 12, 13, rest); rest = []
        if W128: assert not wq.ops and not (z2 and rest)
        if not z2: wq(99, None, 88)
        k('s_barrier')
        if z2: wq(99, None, 88)
        NP2 = k.label('np2'); NP3 = k.label('np3')
        if not z2:
            k(f's_cmp_lg_u32 s38, 0\ns_cbranch_scc1 {NP2}')
            flag_poll(k, 47, 44, 32, part=1)
            k(f'{NP2}:')
        if rest:
            k('s_waitcnt vmcnt(0)')
            w_trans(k, 12, 13, rest)
        if not z2:
            k(f'''s_cmp_lg_u32 s38, 0
s_cbranch_scc1 {NP3}
s_lshl_b32 s44, s36, {5+FS}
s_add_u32 s44, s44, {FL2}''')
            flag_poll(k, 47, 44, 32, opt.get('g2sl', 0), opt.get('g2d', 0) if not rest else 0, part=2)
            k(f'{NP3}:')
        k('s_waitcnt lgkmcnt(0)\ns_barrier')
        k(f's_branch {DONE}')

    def path(grp, z2):
        vm = Cnt('vmcnt', 63)
        wq = wb.copy() if wb else None
        tiles = [0, 1, 2, 3] if grp == 0 else [4, 5, 6]
        NT = len(tiles)
        order = [(kk, n) for kk in range(20) for n in tiles]
        k('s_waitcnt vmcnt(0)\ns_barrier')
        st(k, 1, 3); st(k, 4, 7)
        rest = [] if opt.get('now') else list(range(opt.get('wt0', 0), 4))
        n1 = opt.get('wt1', [0, 0])[z2] if not wq.ops else 0
        if W128: n1 = min(opt['wt1'][z2], (32 - len(wq.ops)) // 8)
        now, rest = rest[:n1], rest[n1:]
        if z2:
            NPL = k.label('npl'); NPM = k.label('npm')
            k(f'''s_setprio {opt.get('zprio', 2)}
s_lshl_b32 s42, s35, {4+FS}
s_mov_b32 s46, s49
s_cmp_lg_u32 s38, 0
s_cbranch_scc1 {NPM}''')
            flag_poll(k, 46, 42, 16, part=1)
            k(f'{NPM}:')
            w_trans(k, 12, 13, now, 48)
            k(f's_cmp_lg_u32 s38, 0\ns_cbranch_scc1 {NPL}')
            flag_poll(k, 46, 42, 16, opt.get('g1sl', 0), opt.get('g1d', 0) if not now else 0, part=2)
            k(f'{NPL}:')
        else:
            w_trans(k, 12, 13, now, 48)
            if wq: wq(WQ[0], vm, 88)
        k('s_waitcnt lgkmcnt(0)\ns_barrier')
        st(k, 4, 8)
        st(k, 1, 4); st(k, 0, 3)
        if not z2 and opt.get('zd'): k(f's_sleep {opt["zd"]}')
        for kk in range(PD):
            for u in range(2): aload(kk, u, vm)

        def rdB(f):
            if f >= len(order): return
            kk, n = order[f]
            a = BB + kk * 7168 + n * 1024
            k(f'ds_read_b128 {vr(8+4*(f%NB),4)}, v{3+a//57344} offset:{a%57344}')
        for f in range(LA): rdB(f)
        for f, (kk, n) in enumerate(order):
            x = vm.wait(f'a{kk}')
            if x: k(x)
            if n == tiles[0] and kk in (0, 10): st(k, 1, 5 + kk // 10)
            rem = min(LA - 1, len(order) - 1 - f)
            k(f's_waitcnt lgkmcnt({rem})')
            b = vr(8 + 4 * (f % NB), 4)
            for u in range(2):
                acc = vr(ACC(u, n), 4)
                c = '0' if kk == 0 else acc
                if z2: k(f'{MFMA} {acc}, {AR(kk,u)}, {b}, {c}')
                else: k(f'{MFMA} {acc}, {b}, {AR(kk,u)}, {c}')
            rdB(f + LA)
            i = f % NT
            if i < 2: aload(kk + PD, i, vm)
            if wq and kk >= WQ[3]:
                c = WQ[1 + z2]
                wq((c * (i + 1)) // NT - (c * i) // NT, vm, 88)
        st(k, 1, 7); st(k, 0, 4); st(k, 4, 9)
        k(f'v_mov_b32 v4, {fbits(C1)}\nv_mov_b32 v5, {fbits(C0)}')
        if not z2:
            k(f'''s_lshr_b32 s42, s39, 1
s_lshl_b32 s42, s42, 3
s_add_u32 s42, s42, s36
s_lshl_b32 s42, s42, 1
s_and_b32 s43, s39, 1
s_add_u32 s42, s42, s43
s_lshl_b32 s42, s42, 13
s_add_u32 s43, s42, 4096
v_lshrrev_b32 v2, 1, v3''')
            units = [(u, p) for p in ((0, 1) if grp == 0 else (2,)) for u in range(2)]
            for i, (u, p) in enumerate(units):
                o = 12 + 4 * (i & 1)
                for h in range(2):
                    a = ACC(u, 2 * p + h)
                    k(f'v_cvt_pk_bf16_f32 v{8+2*h}, v{a}, v{a+1}\nv_cvt_pk_bf16_f32 v{9+2*h}, v{a+2}, v{a+3}')
                gelu_pk(k, 8, 8, 20, 28, o, 4, sc=(SC > 1))
                k(f'buffer_store_dwordx4 {vr(o,4)}, v3, s[12:15], s{42+u} offen offset:{1024*p} sc1')
            if grp == 1:
                for u in range(2):
                    a = ACC(u, 6)
                    k(f'v_cvt_pk_bf16_f32 v{8+2*u}, v{a}, v{a+1}\nv_cvt_pk_bf16_f32 v{9+2*u}, v{a+2}, v{a+3}')
                gelu_pk(k, 8, 8, 20, 28, 12, 4, sc=(SC > 1))
                for u in range(2):
                    k(f'buffer_store_dwordx2 {vr(12+2*u,2)}, v2, s[12:15], s{42+u} offen offset:3072 sc1')
            st(k, 1, 8)
            tail(False, wq, rest)
            return
        S = 72; Q = 80
        SK = k.label('sk')
        for i, n in enumerate(tiles):
            if n == 5: k(f's_cmp_eq_u32 s36, 7\ns_cbranch_scc1 {SK}')
            for r in range(4): k(f'v_cvt_pk_bf16_f32 v{8+r}, v{ACC(0,n)+r}, v{ACC(1,n)+r}')
            k(f'''v_permlane32_swap_b32 v8, v10
v_permlane32_swap_b32 v9, v11
v_permlane16_swap_b32 v8, v9
v_permlane16_swap_b32 v10, v11''')
            gelu_pk(k, 8, 8, 20, 28, 12, 4, tr=True, sc=(SC > 0))
            d = 40 + 8 * i
            for r in range(4):
                k(f'v_lshlrev_b32 v{d+2*r}, 16, v{12+r}\nv_and_b32 v{d+1+2*r}, 0xffff0000, v{12+r}')
            for e in range(8):
                if i == 0: k(f'v_mul_f32 v{Q+e}, v{d+e}, v{d+e}\nv_mov_b32 v{S+e}, v{d+e}')
                else: k(f'v_add_f32 v{S+e}, v{S+e}, v{d+e}\nv_fmac_f32 v{Q+e}, v{d+e}, v{d+e}')
        k(f'{SK}:')
        V = [0] * 16
        for e in range(8):
            V[2 * e] = S + e; V[2 * e + 1] = Q + e
        for i in range(8):
            k(f'v_add_f32_dpp v{V[i]}, v{V[i]}, v{V[i]} row_ror:8 row_mask:0xf bank_mask:0x3')
        for i in range(8):
            k(f'v_add_f32_dpp v{V[i]}, v{V[i+8]}, v{V[i+8]} row_ror:8 row_mask:0xf bank_mask:0xc')
        for i in range(4):
            k(f'v_add_f32_dpp v{V[i]}, v{V[i]}, v{V[i]} row_half_mirror row_mask:0xf bank_mask:0x5')
        for i in range(4):
            k(f'v_add_f32_dpp v{V[i]}, v{V[i+4]}, v{V[i+4]} row_half_mirror row_mask:0xf bank_mask:0xa')
        for m in ('quad_perm:[1,0,3,2]', 'quad_perm:[2,3,0,1]'):
            for i in range(4):
                k(f'v_add_f32_dpp v{V[i]}, v{V[i]}, v{V[i]} {m} row_mask:0xf bank_mask:0xf')
        k(f'''s_mov_b32 vcc_lo, 0xaaaaaaaa
s_mov_b32 vcc_hi, 0xaaaaaaaa
v_cndmask_b32 v8, v{V[0]}, v{V[1]}, vcc
v_cndmask_b32 v9, v{V[2]}, v{V[3]}, vcc
s_mov_b32 vcc_lo, 0xcccccccc
s_mov_b32 vcc_hi, 0xcccccccc
v_cndmask_b32 v8, v8, v9, vcc
s_lshl_b32 s42, s39, 12
s_and_b32 s43, s3, 15
s_lshl_b32 s43, s43, 8
s_add_u32 s43, s43, s42
v_lshrrev_b32 v2, 2, v3
buffer_store_dword v8, v2, s[20:23], s43 offen sc1
v_lshrrev_b32 v9, 2, v6
v_and_b32 v10, 3, v6
v_lshlrev_b32 v9, 8, v9
v_lshl_add_u32 v9, v7, 6, v9
v_lshl_add_u32 v1, v10, 4, v9''')
        st(k, 1, 8)
        LP = k.label('lp'); LD = k.label('ld')
        k(f'''s_lshl_b32 s44, s36, 3
s_lshr_b32 s45, s39, 4
s_add_u32 s44, s44, s45
s_and_b32 s45, s39, 1
s_lshl_b32 s45, s45, 2
s_add_u32 s44, s44, s45
s_mul_i32 s44, s44, 56
s_bfe_u32 s45, s39, 0x30001
s_add_u32 s44, s44, s45
s_add_u32 s44, s44, {8*tiles[0]}
s_lshl_b32 s44, s44, 10
v_mov_b32 v4, {fbits(1.0/864)}
s_mov_b32 s43, {SPIN}''')
        if rest and wq and not wq.ops and opt.get('wtp', 1):
            k('s_waitcnt vmcnt(1)')
            w_trans(k, 8, 9, rest, 46); rest = []
        elif opt.get('pxd'): k(f"s_sleep {opt['pxd']}")
        k(f'{LP}:')
        for i in range(4): k(f'buffer_load_dwordx4 {vr(8+4*i,4)}, v1, s[20:23], s42 offen offset:{1024*i} sc1')
        k('s_waitcnt vmcnt(2)')
        k('v_max3_u32 v24, v8, v9, v10\nv_max3_u32 v25, v11, v12, v13\nv_max3_u32 v24, v24, v14, v15')
        for r in range(4): k(f'v_add_f32 v{28+r}, v{8+r}, v{12+r}')
        k('s_waitcnt vmcnt(0)')
        k('''v_max3_u32 v25, v25, v16, v17
v_max3_u32 v24, v24, v18, v19
v_max3_u32 v25, v25, v20, v21
v_max3_u32 v24, v24, v22, v23
v_max_u32 v24, v24, v25
v_cmp_eq_u32 vcc, -1, v24''')
        for r in range(4): k(f'v_add_f32 v{32+r}, v{16+r}, v{20+r}')
        k(f'''s_cbranch_vccz {LD}
{f"s_sleep {opt['pxs']}" if opt.get('pxs') else ""}
s_sub_u32 s43, s43, 1
s_cmp_lg_u32 s43, 0
s_cbranch_scc1 {LP}
{LD}:''')
        st(k, 1, 9); st(k, 0, 9)
        for r in range(4): k(f'v_add_f32 v{28+r}, v{28+r}, v{32+r}')
        for m in ('row_ror:4', 'row_ror:8'):
            for r in range(4): k(f'v_add_f32_dpp v{28+r}, v{28+r}, v{28+r} {m} row_mask:0xf bank_mask:0xf')
        for r in range(4): k(f'v_mul_f32 v{28+r}, v{28+r}, v4')
        k(f'''v_fma_f32 v29, -v28, v28, v29
v_fma_f32 v31, -v30, v30, v31
v_max_f32 v29, 0, v29
v_max_f32 v31, 0, v31
v_cvt_pk_bf16_f32 v12, v28, v30
v_cvt_pk_bf16_f32 v13, v29, v31
v_lshlrev_b32 v8, 16, v12
v_and_b32 v9, 0xffff0000, v12
v_lshlrev_b32 v10, 16, v13
v_and_b32 v11, 0xffff0000, v13
v_add_f32 v10, 0x3727c5ac, v10
v_add_f32 v11, 0x3727c5ac, v11
v_cvt_pk_bf16_f32 v13, v10, v11
v_lshlrev_b32 v10, 16, v13
v_and_b32 v11, 0xffff0000, v13
v_sqrt_f32 v10, v10
v_sqrt_f32 v11, v11''')
        for e in range(8):
            k(f'v_mov_b32_dpp v{16+e}, v{8+(e&1)} quad_perm:[{e>>1},{e>>1},{e>>1},{e>>1}] row_mask:0xf bank_mask:0xf')
        k(f'''v_cvt_pk_bf16_f32 v13, v10, v11
v_lshlrev_b32 v10, 16, v13
v_and_b32 v11, 0xffff0000, v13
v_rcp_f32 v10, v10
v_rcp_f32 v11, v11''')
        for i in range(NT):
            d = 40 + 8 * i
            for e in range(0, 8, 2):
                k(f'v_pk_add_f32 {vr(d+e,2)}, {vr(d+e,2)}, {vr(16+e,2)} neg_lo:[0,1] neg_hi:[0,1]')
            if i == 0:
                for e in range(8):
                    k(f'v_mov_b32_dpp v{24+e}, v{10+(e&1)} quad_perm:[{e>>1},{e>>1},{e>>1},{e>>1}] row_mask:0xf bank_mask:0xf')
            o = 72 + 4 * i
            for r in range(4): k(f'v_cvt_pk_bf16_f32 v{o+r}, v{d+2*r}, v{d+2*r+1}')
            for r in range(4): k(f'v_lshlrev_b32 v{d+2*r}, 16, v{o+r}\nv_and_b32 v{d+1+2*r}, 0xffff0000, v{o+r}')
            for e in range(0, 8, 2):
                k(f'v_pk_mul_f32 {vr(d+e,2)}, {vr(d+e,2)}, {vr(24+e,2)}')
            for r in range(4): k(f'v_cvt_pk_bf16_f32 v{o+r}, v{d+2*r}, v{d+2*r+1}')
            k(f'buffer_store_dwordx4 {vr(o,4)}, v3, s[16:19], s44 offen sc1')
            if i < NT - 1: k('s_add_u32 s44, s44, 8192')
        tail(True, wq, rest)
    for g in range(2):
        for z in range(2):
            k(f'{L[g,z]}:')
            path(g, z)


def ph_g1s(k, opt, DONE, wb):
    assert W128 and not (wb and wb.ops)
    LH = k.label('h1')
    k(f's_lshl_b32 s49, s3, {FS}')
    g1id(k, 3, 35)
    k(f'''s_lshr_b32 s35, s3, 4
s_bfe_u32 s36, s3, 0x30001
s_and_b32 s37, s3, 1
s_and_b32 s38, s34, 3
s_lshl_b32 s39, s35, 2
s_add_u32 s39, s39, s38
s_lshr_b32 s46, s34, 2
v_and_b32 v2, 63, v0
v_and_b32 v6, 15, v2
v_lshrrev_b32 v7, 4, v2''')
    srd_from(k, 8, 40, 41, WS_HN, HN_BYTES)
    k(f'''v_lshrrev_b32 v8, 3, v6
v_and_b32 v10, 3, v6
v_lshl_add_u32 v8, v8, 2, v10
v_mul_u32_u24 v1, {HP}, v8
v_lshl_add_u32 v1, v7, 5, v1
v_bfe_u32 v10, v6, 2, 1
v_lshl_add_u32 v1, v10, 4, v1
s_lshr_b32 s44, s39, 1
s_mul_i32 s44, s44, {8*HP}
s_and_b32 s45, s38, 1
s_lshl_b32 s45, s45, 1
s_add_u32 s45, s45, s46
s_mul_i32 s45, s45, 2560
s_add_u32 s44, s44, s45
v_add_u32 v4, 57344, v3
v_add_u32 v5, 114688, v3''')
    k(f'''v_lshrrev_b32 v8, 2, v6
v_and_b32 v9, 1, v6
v_lshl_add_u32 v8, v8, 1, v9
v_lshlrev_b32 v8, 2, v8
v_lshl_add_u32 v8, v7, 5, v8
v_lshrrev_b32 v10, 1, v6
v_lshlrev_b32 v10, 7, v10
v_lshl_add_u32 v10, v7, 5, v10
v_lshl_add_u32 v10, v9, 4, v10
v_lshl_add_u32 v2, v10, 16, v8
v_mov_b32 v6, {fbits(C1)}
v_mov_b32 v7, {fbits(C0)}''')
    srd_from(k, 12, 40, 41, WS_Z1, A2_BYTES)
    srd_from(k, 16, 40, 41, WS_Z2, Z2N_BYTES)
    srd_from(k, 20, 40, 41, WS_PX, PX_BYTES)
    k(f'''s_and_b32 s47, s3, 15
s_lshl_b32 s53, s47, 7
s_lshl_b32 s47, s47, 4
s_add_u32 s47, s47, s35
s_lshl_b32 s47, s47, {FS}
s_add_u32 s47, s47, {FL2}
s_lshl_b32 s52, s39, 1
s_add_u32 s52, s52, s46
s_lshl_b32 s52, s52, 11
s_add_u32 s53, s53, s52
s_lshl_b32 s54, s36, 3
s_lshr_b32 s42, s39, 4
s_add_u32 s54, s54, s42
s_and_b32 s42, s39, 1
s_lshl_b32 s42, s42, 2
s_add_u32 s54, s54, s42
s_mul_i32 s54, s54, 56
s_bfe_u32 s42, s39, 0x30001
s_add_u32 s54, s54, s42
s_lshl_b32 s42, s37, 5
s_add_u32 s54, s54, s42
s_lshl_b32 s54, s54, 1
s_add_u32 s54, s54, s46
s_lshl_b32 s54, s54, 9
s_lshr_b32 s55, s39, 1
s_lshl_b32 s55, s55, 3
s_add_u32 s55, s55, s36
s_lshl_b32 s55, s55, 1
s_and_b32 s42, s39, 1
s_add_u32 s55, s55, s42
s_lshl_b32 s55, s55, 1
s_add_u32 s55, s55, s46
s_lshl_b32 s55, s55, 12
s_cmp_eq_u32 s36, 7
s_cselect_b32 s48, 0, -1
s_lshl_b32 s42, s35, {4+FS}
s_waitcnt vmcnt(0)
s_barrier''')
    st(k, 1, 3); st(k, 4, 7)
    W4 = k.label('w4'); WJ = k.label('wj')
    NOW = opt.get('now', 0)
    WT2 = opt.get('wt2', 0)
    k(f's_cmp_ge_u32 s34, 4\ns_cbranch_scc1 {W4}')
    if not NOW: w_trans(k, 12, 13, [0, 1, 2, 3], 43)
    k(f's_branch {WJ}\n{W4}:\ns_cmp_lg_u32 s34, 4\ns_cbranch_scc1 {WJ}')
    flag_poll(k, 49, 42, 16, opt.get('g1sl', 0), opt.get('g1d', 0))
    k(f'{WJ}:\ns_waitcnt lgkmcnt(0)\ns_barrier')
    st(k, 4, 8); st(k, 1, 4); st(k, 0, 3)
    AR = lambda kk: 32 + 4 * kk
    PD = opt.get('PD', 8)

    def aload(kk, vm=None):
        if kk >= 20: return
        k(f'buffer_load_dwordx4 {vr(AR(kk),4)}, v1, s[8:11], s44 offen offset:{128*kk}')
        if vm: vm.issue(f'a{kk}')
    for kk in range(PD): aload(kk)
    if WT2 and not NOW:
        W5 = k.label('w5')
        k(f's_cmp_lt_u32 s34, 4\ns_cbranch_scc1 {W5}')
        w_trans(k, 12, 13, list(range(WT2)), 43)
        k(f's_waitcnt lgkmcnt(0)\n{W5}:')
    k(f's_cmp_eq_u32 s37, 1\ns_cbranch_scc1 {LH}')
    LA = opt.get('LA', 5); LA1 = opt.get('LA1', 6)
    SC = opt.get('gsc', 0)
    ACC = lambda i: 112 + 4 * i

    def path(hh):
        vm = Cnt('vmcnt', 63); lg = Cnt('lgkmcnt', 15)
        for kk in range(PD): vm.issue(f'a{kk}')
        tz = [0, 1, 2, 3] if hh == 0 else [4, 5, 6]
        t1 = [4, 5, 6] if hh == 0 else [0, 1, 2, 3]

        def gpass(tiles, z2, free, la, ev=None, order=None, fill=None, R=0):
            order = order or [(kk, i) for kk in range(20) for i in range(len(tiles))]
            last = {}
            for f, (kk, i) in enumerate(order): last[kk] = f
            buf = {}; nr = [0]; pend = []

            def reads(f):
                while nr[0] < len(order) and nr[0] <= f + la and free:
                    q = nr[0]; kk, i = order[q]
                    b = free.pop(0); buf[q] = b
                    a = BB + kk * 7168 + tiles[i] * 1024
                    k(f'ds_read_b128 {vr(b,4)}, v{3+a//57344} offset:{a%57344}'); lg.issue(f'b{z2}_{q}')
                    nr[0] += 1
            reads(-1)
            for f, (kk, i) in enumerate(order):
                x = vm.wait(f'a{kk}')
                if x: k(x)
                if z2 and i == 0 and kk in (0, 10): st(k, 1, 5 + kk // 10)
                x = lg.wait(f'b{z2}_{f}')
                if x: k(x)
                acc = vr(ACC(i), 4); c = '0' if kk == 0 else acc
                b = vr(buf[f], 4); a = vr(AR(kk), 4)
                k(f'{MFMA} {acc}, {a}, {b}, {c}' if z2 else f'{MFMA} {acc}, {b}, {a}, {c}')
                free += pend; pend = [buf[f]]
                if not z2 and last[kk] == f: pend.append(AR(kk))
                reads(f)
                if z2 and i == 0: aload(kk + PD, vm)
                if ev and f in ev:
                    for e in ev[f]: e()
                if fill:
                    for _ in range(R):
                        if fill and fill[0][0] <= f:
                            o = fill.pop(0)[1]
                            o() if callable(o) else k(o)
        if opt.get('zprio'): k(f's_setprio {opt["zprio"]}')
        gpass(tz, 1, [8, 12, 16, 20, 24, 28], LA)
        st(k, 1, 7); st(k, 0, 4); st(k, 4, 9)
        S = 20; Q = 8
        prs = [(0, 2), (2, 2)] if hh == 0 else [(0, 2), (2, 1)]
        for pi, (i0, nt) in enumerate(prs):
            xp = 24 + 2 * i0; a = ACC(i0); n = 4 * nt
            for h in range(2 * nt): k(f'v_cvt_pk_bf16_f32 v{xp+h}, v{a+2*h}, v{a+2*h+1}')
            if hh:
                for h in range(2 * nt):
                    if tz[i0 + h // 2] >= 5: k(f'v_and_b32 v{xp+h}, s48, v{xp+h}')
            gelu_pk(k, xp, n, a, 12, xp, 6, sc=(SC > 0))
            for h in range(2 * nt):
                k(f'v_lshlrev_b32 v{a+2*h}, 16, v{xp+h}\nv_and_b32 v{a+1+2*h}, 0xffff0000, v{xp+h}')
            if SC > 0:
                for e in range(n):
                    r = e & 3
                    if pi == 0 and e < 4: k(f'v_mul_f32 v{Q+r}, v{a+e}, v{a+e}')
                    elif pi == 0: k(f'v_add_f32 v{S+r}, v{a+r}, v{a+e}\nv_fmac_f32 v{Q+r}, v{a+e}, v{a+e}')
                    else: k(f'v_add_f32 v{S+r}, v{S+r}, v{a+e}\nv_fmac_f32 v{Q+r}, v{a+e}, v{a+e}')
            else:
                for e in range(0, n, 2):
                    r = e & 3
                    d = vr(a + e, 2); q = vr(Q + r, 2); s_ = vr(S + r, 2)
                    if pi == 0 and e < 4: k(f'v_pk_mul_f32 {q}, {d}, {d}')
                    elif pi == 0: k(f'v_pk_add_f32 {s_}, {vr(a+r,2)}, {d}\nv_pk_fma_f32 {q}, {d}, {d}, {q}')
                    else: k(f'v_pk_add_f32 {s_}, {s_}, {d}\nv_pk_fma_f32 {q}, {d}, {d}, {q}')
        V = []
        for r in range(4): V += [S + r, Q + r]
        for i in range(4): k(f'v_add_f32_dpp v{V[i]}, v{V[i]}, v{V[i]} row_ror:8 row_mask:0xf bank_mask:0x3')
        for i in range(4): k(f'v_add_f32_dpp v{V[i]}, v{V[i+4]}, v{V[i+4]} row_ror:8 row_mask:0xf bank_mask:0xc')
        for i in range(2): k(f'v_add_f32_dpp v{V[i]}, v{V[i]}, v{V[i]} row_half_mirror row_mask:0xf bank_mask:0x5')
        k('v_and_b32 v12, 0xffff, v2')
        for i in range(2): k(f'v_add_f32_dpp v{V[i]}, v{V[i+2]}, v{V[i+2]} row_half_mirror row_mask:0xf bank_mask:0xa')
        k('v_lshrrev_b32 v1, 16, v2\ns_mov_b32 vcc_lo, 0xaaaaaaaa\ns_mov_b32 vcc_hi, 0xaaaaaaaa')
        for m in ('quad_perm:[1,0,3,2]', 'quad_perm:[2,3,0,1]'):
            for i in range(2): k(f'v_add_f32_dpp v{V[i]}, v{V[i]}, v{V[i]} {m} row_mask:0xf bank_mask:0xf')
        k(f'''v_cndmask_b32 v13, v{V[0]}, v{V[1]}, vcc
buffer_store_dword v13, v12, s[20:23], s53 offen sc1''')
        vm.issue('px')
        st(k, 1, 8)
        if opt.get('zprio'): k('s_setprio 0')
        n1 = 20 * len(t1)
        PB = 32

        def pxld():
            for i in range(2): k(f'buffer_load_dwordx4 {vr(PB+4*i,4)}, v1, s[20:23], s52 offen offset:{1024*i} sc1')
        ev = {}
        PXE = opt.get('pxe', 12)
        ev[n1 - 1 - PXE] = [lambda: (pxld(), vm.issue('pl'), vm.issue('pl'))]

        class Pool(list):
            def __iadd__(self, o):
                return list.__iadd__(self, [x for x in o if x not in (32, 36)])
        gpass(t1, 0, Pool([16, 8, 20, 12]), LA1, ev)
        st(k, 1, 9)
        LP = k.label('lp'); LD = k.label('ld'); L1 = k.label('l1')
        k(f'''v_and_b32 v2, 31, v0
v_lshlrev_b32 v2, 4, v2
v_bfe_u32 v4, v0, 5, 1
v_lshl_add_u32 v2, v4, 13, v2
v_mov_b32 v4, {fbits(1.0/864)}
s_mov_b32 s43, {SPIN}
s_branch {L1}
{LP}:''')
        if opt.get('pxs'): k(f"s_sleep {opt['pxs']}")
        pxld()
        k(f'''{L1}:
s_waitcnt vmcnt(0)
v_max3_u32 v8, v32, v33, v34
v_max3_u32 v9, v35, v36, v37
v_max3_u32 v8, v8, v38, v39
v_max_u32 v8, v8, v9
v_cmp_eq_u32 vcc, -1, v8''')
        for r in range(4): k(f'v_add_f32 v{40+r}, v{32+r}, v{36+r}')
        k(f'''s_cbranch_vccz {LD}
s_sub_u32 s43, s43, 1
s_cmp_lg_u32 s43, 0
s_cbranch_scc1 {LP}
{LD}:''')
        st(k, 0, 9); st(k, 6, 1)
        for m in ('row_ror:2', 'row_ror:4', 'row_ror:8'):
            for r in range(4): k(f'v_add_f32_dpp v{40+r}, v{40+r}, v{40+r} {m} row_mask:0xf bank_mask:0xf')
        for r in range(4): k(f'v_mul_f32 v{40+r}, v{40+r}, v4')
        k(f'''v_fma_f32 v41, -v40, v40, v41
v_fma_f32 v43, -v42, v42, v43
v_max_f32 v41, 0, v41
v_max_f32 v43, 0, v43
v_cvt_pk_bf16_f32 v12, v40, v42
v_cvt_pk_bf16_f32 v13, v41, v43
v_lshlrev_b32 v8, 16, v12
v_and_b32 v9, 0xffff0000, v12
v_lshlrev_b32 v10, 16, v13
v_and_b32 v11, 0xffff0000, v13
v_add_f32 v10, 0x3727c5ac, v10
v_add_f32 v11, 0x3727c5ac, v11
v_cvt_pk_bf16_f32 v13, v10, v11
v_lshlrev_b32 v10, 16, v13
v_and_b32 v11, 0xffff0000, v13
v_sqrt_f32 v10, v10
v_sqrt_f32 v11, v11''')
        for r in range(4):
            k(f'v_mov_b32_dpp v{16+r}, v{8+(r&1)} quad_perm:[{r>>1},{r>>1},{r>>1},{r>>1}] row_mask:0xf bank_mask:0xf')
        k(f'''v_cvt_pk_bf16_f32 v13, v10, v11
v_lshlrev_b32 v10, 16, v13
v_and_b32 v11, 0xffff0000, v13
v_rcp_f32 v10, v10
v_rcp_f32 v11, v11''')
        NT = len(tz)
        D = 48
        for h in range(2 * NT):
            k(f'v_lshlrev_b32 v{D+2*h}, 16, v{24+h}\nv_and_b32 v{D+1+2*h}, 0xffff0000, v{24+h}')
        for h in range(2 * NT):
            k(f'v_pk_add_f32 {vr(D+2*h,2)}, {vr(D+2*h,2)}, {vr(16+2*(h&1),2)} neg_lo:[0,1] neg_hi:[0,1]')
        for r in range(4):
            k(f'v_mov_b32_dpp v{20+r}, v{10+(r&1)} quad_perm:[{r>>1},{r>>1},{r>>1},{r>>1}] row_mask:0xf bank_mask:0xf')
        for pi, (i0, nt) in enumerate(prs):
            hs = range(2 * i0, 2 * i0 + 2 * nt)
            for h in hs: k(f'v_cvt_pk_bf16_f32 v{24+h}, v{D+2*h}, v{D+2*h+1}')
            for h in hs: k(f'v_lshlrev_b32 v{D+2*h}, 16, v{24+h}\nv_and_b32 v{D+1+2*h}, 0xffff0000, v{24+h}')
            for h in hs: k(f'v_pk_mul_f32 {vr(D+2*h,2)}, {vr(D+2*h,2)}, {vr(20+2*(h&1),2)}')
            for h in hs: k(f'v_cvt_pk_bf16_f32 v{24+h}, v{D+2*h}, v{D+2*h+1}')
            xp = 24 + 2 * i0
            if nt == 1:
                for h in hs: k(f'v_cvt_pk_bf16_f32 v{26+h}, v{D+2*h}, v{D+2*h+1}')
            k(f'v_permlane32_swap_b32 v{xp}, v{xp+2}\nv_permlane32_swap_b32 v{xp+1}, v{xp+3}')
            if nt == 1: k('s_mov_b32 exec_hi, 0')
            k(f'buffer_store_dwordx4 {vr(xp,4)}, v2, s[16:19], s54 offen sc1')
            if nt == 1: k('s_mov_b32 exec_hi, -1')
            if pi == 0: k('s_add_u32 s54, s54, 16384')
        st(k, 6, 2)
        k('v_lshrrev_b32 v1, 1, v3')
        p1 = [(0, 2, 2048), (2, 1, 3072)] if hh == 0 else [(0, 2, 0), (2, 2, 1024)]
        for pi, (i0, nt, off) in enumerate(p1):
            o = 8 + 4 * pi; a = ACC(i0)
            for h in range(2 * nt): k(f'v_cvt_pk_bf16_f32 v{o+h}, v{a+2*h}, v{a+2*h+1}')
            gelu_pk(k, o, 4 * nt, 32 + 16 * pi, 40 + 16 * pi, o, 6, sc=(SC > 1))
            if nt == 2: k(f'buffer_store_dwordx4 {vr(o,4)}, v3, s[12:15], s55 offen offset:{off} sc1')
            else: k(f'buffer_store_dwordx2 {vr(o,2)}, v1, s[12:15], s55 offen offset:{off} sc1')
        st(k, 6, 3)
        map_g2(k)
        k('s_load_dwordx2 s[24:25], s[0:1], 48\ns_waitcnt vmcnt(0)')
        st(k, 0, 5); st(k, 6, 4)
        T4 = k.label('t4'); TJ = k.label('tj')
        k(f'''s_barrier
s_cmp_ge_u32 s34, 4
s_cbranch_scc1 {T4}
s_cmp_lg_u32 s34, 0
s_cbranch_scc1 {TJ}
s_lshl_b32 s44, s36, {5+FS}
s_add_u32 s44, s44, {FL2}''')
        flag_poll(k, 47, 44, 32, opt.get('g2sl', 0), opt.get('g2d', 0))
        k(f's_branch {TJ}\n{T4}:')
        if not NOW: w_trans(k, 12, 13, list(range(WT2, 4)), 43)
        st(k, 6, 5)
        k(f'{TJ}:\ns_waitcnt lgkmcnt(0)\ns_barrier\ns_branch {DONE}')
    path(0)
    k(f'{LH}:')
    path(1)


def ph_g1t(k, opt, DONE, wb):
    assert W128 and not (wb and wb.ops) and not G1S
    LH = k.label('h1')
    HP0 = opt.get('hp0', 10240)
    k(f's_lshl_b32 s49, s3, {FS}')
    g1id(k, 3, 35)
    k(f'''s_lshr_b32 s35, s3, 4
s_bfe_u32 s36, s3, 0x30001
s_and_b32 s37, s3, 1
s_and_b32 s38, s34, 3
s_lshl_b32 s39, s35, 2
s_add_u32 s39, s39, s38
s_lshr_b32 s46, s34, 2
v_and_b32 v2, 63, v0
v_and_b32 v6, 15, v2
v_lshrrev_b32 v7, 4, v2''')
    srd_from(k, 8, 40, 41, WS_HN, 0x300000)
    WD5 = opt.get('wd5', 0)
    if WD5:
        k(f'''v_mov_b32 v0, v124
s_mov_b32 s74, {2048*4096}
s_mov_b32 s50, s78
s_mov_b32 s51, s79
s_cmp_ge_u32 s34, s101
s_cselect_b64 s[100:101], -1, 0''')
    k(f'''v_lshrrev_b32 v8, 2, v6
v_and_b32 v10, 3, v6
v_mul_u32_u24 v1, {HP0}, v8
v_lshl_add_u32 v1, v7, 6, v1
v_lshl_add_u32 v1, v10, 4, v1
s_and_b32 s44, s39, -2
s_add_u32 s44, s44, s46
s_mul_i32 s44, s44, {4*HP0}
s_and_b32 s45, s38, 1
s_mul_i32 s45, s45, 5120
s_add_u32 s44, s44, s45
s_add_u32 s45, s44, 4096
v_add_u32 v4, 57344, v3
v_add_u32 v5, 114688, v3''')
    k(f'''v_and_b32 v9, 1, v6
v_lshl_add_u32 v9, v8, 1, v9
v_lshlrev_b32 v9, 2, v9
v_lshl_add_u32 v9, v7, 6, v9
v_lshlrev_b32 v8, 8, v8
v_lshl_add_u32 v8, v7, 6, v8
v_lshl_add_u32 v8, v10, 4, v8
v_lshl_add_u32 v2, v8, 16, v9
v_mov_b32 v6, {fbits(C0 if GV else C1)}
v_mov_b32 v7, {fbits(C0)}
s_mov_b32 s62, {fbits(C1)}
s_mov_b32 s63, {fbits(C1)}''')
    srd_from(k, 12, 40, 41, WS_Z1, A2_BYTES)
    srd_from(k, 16, 40, 41, WS_Z2, Z2N_BYTES)
    srd_from(k, 20, 40, 41, WS_PX, PX_BYTES)
    k(f'''s_and_b32 s47, s3, 15
s_lshl_b32 s53, s47, 8
s_lshl_b32 s47, s47, 4
s_add_u32 s47, s47, s35
s_lshl_b32 s47, s47, {FS}
s_add_u32 s47, s47, {FL2}
s_lshl_b32 s52, s39, 12
s_add_u32 s53, s53, s52
s_lshl_b32 s42, s46, 5
s_add_u32 s53, s53, s42
s_lshl_b32 s54, s36, 3
s_lshr_b32 s42, s39, 4
s_add_u32 s54, s54, s42
s_and_b32 s42, s39, 1
s_lshl_b32 s42, s42, 2
s_add_u32 s54, s54, s42
s_mul_i32 s54, s54, 56
s_bfe_u32 s42, s39, 0x30001
s_add_u32 s54, s54, s42
s_lshl_b32 s42, s37, 5
s_add_u32 s54, s54, s42
s_lshl_b32 s42, s46, 4
s_add_u32 s54, s54, s42
s_lshl_b32 s54, s54, 10
s_add_u32 s56, s54, 8192
s_and_b32 s42, s37, s46
s_cmp_eq_u32 s42, 1
s_cselect_b32 s56, {BIG}, s56
s_lshr_b32 s55, s39, 1
s_lshl_b32 s55, s55, 3
s_add_u32 s55, s55, s36
s_lshl_b32 s55, s55, 1
s_and_b32 s42, s39, 1
s_add_u32 s55, s55, s42
s_lshl_b32 s55, s55, 1
s_add_u32 s55, s55, s46
s_lshl_b32 s55, s55, 12
s_cmp_eq_u32 s36, 7
s_cselect_b32 s48, 0, -1
s_cselect_b32 s59, 0xffff, -1
s_lshl_b32 s58, s38, 12
s_lshl_b32 s57, s46, 3
s_add_u32 s57, s57, s58
s_lshl_b32 s42, s46, 11
s_add_u32 s58, s58, s42
s_lshl_b32 s42, s35, {4+FS}
s_waitcnt vmcnt({2 if opt.get('hd') else 0})
s_barrier''')
    st(k, 1, 3); st(k, 4, 7)
    W4 = k.label('w4'); WJ = k.label('wj')
    NOW = opt.get('now', 0)
    k(f's_cmp_ge_u32 s34, 4\ns_cbranch_scc1 {W4}')
    WG_ = [0, 1, 2, 3][opt.get('wte', 0):]
    if not NOW: w_trans(k, 12, 13, WG_, 43)
    k(f's_branch {WJ}\n{W4}:\ns_cmp_lg_u32 s34, 4\ns_cbranch_scc1 {WJ}')
    flag_poll(k, 49, 42, 16, opt.get('g1sl', 0), opt.get('g1d', 0))
    k(f'{WJ}:\ns_waitcnt lgkmcnt(0)\ns_barrier')
    st(k, 4, 8); st(k, 1, 4); st(k, 0, 3)
    AR = lambda kk: 32 + 4 * kk
    PD = opt.get('PD', 8)

    def aload(kk, vm=None):
        if kk >= 20: return
        k(f'buffer_load_dwordx4 {vr(AR(kk),4)}, v1, s[8:11], s{44+kk//16} offen offset:{256*(kk%16)}')
        if vm: vm.issue(f'a{kk}')
    for kk in range(PD): aload(kk)
    k(f's_cmp_eq_u32 s37, 1\ns_cbranch_scc1 {LH}')
    LA = opt.get('LA', 5); LA1 = opt.get('LA1', 6)
    SC = opt.get('gsc', 0)
    ACC = lambda i: 112 + 4 * i

    def path(hh):
        vm = Cnt('vmcnt', 63); lg = Cnt('lgkmcnt', 15)
        for kk in range(PD): vm.issue(f'a{kk}')
        tz = [0, 1, 2, 3] if hh == 0 else [4, 5, 6]
        t1 = [4, 5, 6] if hh == 0 else [0, 1, 2, 3]

        def gpass(tiles, z2, free, la, ev=None, keep=()):
            order = [(kk, i) for kk in range(20) for i in range(len(tiles))]
            last = {}
            for f, (kk, i) in enumerate(order): last[kk] = f
            buf = {}; nr = [0]; pend = []

            def reads(f):
                while nr[0] < len(order) and nr[0] <= f + la and free:
                    q = nr[0]; kk, i = order[q]
                    b = free.pop(0); buf[q] = b
                    a = BB + kk * 7168 + tiles[i] * 1024
                    k(f'ds_read_b128 {vr(b,4)}, v{3+a//57344} offset:{a%57344}'); lg.issue(f'b{z2}_{q}')
                    nr[0] += 1
            reads(-1)
            for f, (kk, i) in enumerate(order):
                x = vm.wait(f'a{kk}')
                if x: k(x)
                if z2 and i == 0 and kk in (0, 10): st(k, 1, 5 + kk // 10)
                x = lg.wait(f'b{z2}_{f}')
                if x: k(x)
                acc = vr(ACC(i), 4); c = '0' if kk == 0 else acc
                b = vr(buf[f], 4); a = vr(AR(kk), 4)
                k(f'{MFMA} {acc}, {a}, {b}, {c}' if z2 else f'{MFMA} {acc}, {b}, {a}, {c}')
                free.extend(pend); pend = [buf[f]]
                if not z2 and last[kk] == f and AR(kk) not in keep: pend.append(AR(kk))
                reads(f)
                if z2 and i == 0: aload(kk + PD, vm)
                if ev and f in ev:
                    for e in ev[f]: e()
        if opt.get('zprio'): k(f's_setprio {opt["zprio"]}')
        gpass(tz, 1, [8, 12, 16, 20, 24, 28], LA)
        st(k, 1, 7); st(k, 0, 4); st(k, 4, 9)
        WD4 = opt.get('wd4', 0)
        def wdef(a, b, t0=12):
            SK = k.label('wd')
            k(f's_cmp_lt_u32 s34, 4\ns_cbranch_scc1 {SK}')
            if a == 0: k(f's_mov_b32 s74, {2048*4096}\ns_mov_b32 s50, s82\ns_add_u32 s51, s50, 4096')
            w_vaddr(k, t0, t0 + 1)
            for o in g2_wops()[a:b]: k(o.replace('@', f'v{t0}'))
            k(f'{SK}:')
        if WD4: wdef(0, WD4)
        dq = []
        for o in (g2_wops()[32-WD5:] if WD5 else []):
            o = o.split('\n')
            dq.append('\n'.join(['s_mov_b64 exec, s[100:101]', o[0], 's_mov_b64 exec, -1'] + o[1:]))
        dq = Bulk(k, dq)
        ig0 = len(k.lines)
        S = 20; Q = 8
        L2Z = opt.get('lean', 0) & 32
        k('v_add_u32 v1, s57, v3')
        prs = [(0, 2), (2, 2)] if hh == 0 else [(0, 2), (2, 1)]
        for pi, (i0, nt) in enumerate(prs):
            xp = 24 + 2 * i0; a = ACC(i0); n = 4 * nt
            if L2Z:
                for t in range(nt):
                    c = a + 4 * t
                    k(f'v_permlane32_swap_b32 v{c}, v{c+2}\nv_permlane32_swap_b32 v{c+1}, v{c+3}')
                for t in range(nt):
                    c = a + 4 * t
                    k(f'v_permlane16_swap_b32 v{c}, v{c+1}\nv_permlane16_swap_b32 v{c+2}, v{c+3}')
                for t in range(nt):
                    if hh and i0 + t > 0:
                        for r in range(4): k(f'v_and_b32 v{a+4*t+r}, s48, v{a+4*t+r}')
                gelu_pk(k, None, n, a, 12, xp, 6)
            elif nt == 2:
                for r in range(4): k(f'v_cvt_pk_bf16_f32 v{xp+r}, v{a+r}, v{a+4+r}')
                if hh:
                    for r in range(4): k(f'v_and_b32 v{xp+r}, s59, v{xp+r}')
                k(f'''v_permlane32_swap_b32 v{xp}, v{xp+2}
v_permlane32_swap_b32 v{xp+1}, v{xp+3}
v_permlane16_swap_b32 v{xp}, v{xp+1}
v_permlane16_swap_b32 v{xp+2}, v{xp+3}''')
                gelu_pk(k, xp, 8, a, 12, xp, 6, tr=True, sc=(SC > 0))
            else:
                k(f'''v_permlane32_swap_b32 v{a}, v{a+2}
v_permlane32_swap_b32 v{a+1}, v{a+3}
v_permlane16_swap_b32 v{a}, v{a+1}
v_permlane16_swap_b32 v{a+2}, v{a+3}''')
                for h in range(2): k(f'v_cvt_pk_bf16_f32 v{xp+h}, v{a+2*h}, v{a+2*h+1}')
                for h in range(2): k(f'v_and_b32 v{xp+h}, s48, v{xp+h}')
                gelu_pk(k, xp, 4, a, 12, xp, 6, sc=(SC > 0))
            for t in range(nt):
                k(f'ds_write_b64 v1, {vr(xp+2*t,2)} offset:{1024*(i0+t)}'); lg.issue('x')
            for h in range(0 if L2Z else 2 * nt):
                k(f'v_lshlrev_b32 v{a+2*h}, 16, v{xp+h}\nv_and_b32 v{a+1+2*h}, 0xffff0000, v{xp+h}')
            if L2Z: a = 12
            if SC > 0:
                for e in range(n):
                    r = e & 3
                    if pi == 0 and e < 4: k(f'v_mul_f32 v{Q+r}, v{a+e}, v{a+e}')
                    elif pi == 0: k(f'v_add_f32 v{S+r}, v{a+r}, v{a+e}\nv_fmac_f32 v{Q+r}, v{a+e}, v{a+e}')
                    else: k(f'v_add_f32 v{S+r}, v{S+r}, v{a+e}\nv_fmac_f32 v{Q+r}, v{a+e}, v{a+e}')
            else:
                for e in range(0, n, 2):
                    r = e & 3
                    d = vr(a + e, 2); q = vr(Q + r, 2); s_ = vr(S + r, 2)
                    if pi == 0 and e < 4: k(f'v_pk_mul_f32 {q}, {d}, {d}')
                    elif pi == 0: k(f'v_pk_add_f32 {s_}, {vr(a+r,2)}, {d}\nv_pk_fma_f32 {q}, {d}, {d}, {q}')
                    else: k(f'v_pk_add_f32 {s_}, {s_}, {d}\nv_pk_fma_f32 {q}, {d}, {d}, {q}')
        weave_in(k, ig0, dq, opt.get('wdg', 20), None, 0)
        V = []
        for r in range(4): V += [S + r, Q + r]
        for i in range(4): k(f'v_add_f32_dpp v{V[i]}, v{V[i]}, v{V[i]} row_ror:8 row_mask:0xf bank_mask:0x3')
        for i in range(4): k(f'v_add_f32_dpp v{V[i]}, v{V[i+4]}, v{V[i+4]} row_ror:8 row_mask:0xf bank_mask:0xc')
        for i in range(2): k(f'v_add_f32_dpp v{V[i]}, v{V[i]}, v{V[i]} row_half_mirror row_mask:0xf bank_mask:0x5')
        k('v_and_b32 v12, 0xffff, v2')
        for i in range(2): k(f'v_add_f32_dpp v{V[i]}, v{V[i+2]}, v{V[i+2]} row_half_mirror row_mask:0xf bank_mask:0xa')
        k('v_lshrrev_b32 v1, 16, v2\ns_mov_b32 vcc_lo, 0xaaaaaaaa\ns_mov_b32 vcc_hi, 0xaaaaaaaa')
        for m in ('quad_perm:[1,0,3,2]', 'quad_perm:[2,3,0,1]'):
            for i in range(2): k(f'v_add_f32_dpp v{V[i]}, v{V[i]}, v{V[i]} {m} row_mask:0xf bank_mask:0xf')
        k(f'''v_cndmask_b32 v13, v{V[0]}, v{V[1]}, vcc
buffer_store_dword v13, v12, s[20:23], s53 offen sc1
v_add_u32 v2, s58, v3''')
        vm.issue('px')
        if WD4 and WD4 < 32: wdef(WD4, 32, 16)
        st(k, 1, 8)
        if opt.get('zprio'): k('s_setprio 0')
        n1 = 20 * len(t1)
        PB = 32; XR = 48

        def pxld():
            for i in range(4): k(f'buffer_load_dwordx4 {vr(PB+4*i,4)}, v1, s[20:23], s52 offen offset:{1024*i} sc1')

        def xrd():
            k('s_barrier')
            for t in range(2):
                k(f'ds_read_b128 {vr(XR+4*t,4)}, v2 offset:{1024*t}'); lg.issue('xr')
        ev = {}
        PXE = opt.get('pxe', 12); XE = opt.get('xe', 8)
        ev.setdefault(n1 - 1 - PXE, []).append(pxld)
        ev.setdefault(n1 - 1 - XE, []).append(xrd)
        assert n1 - 1 - max(PXE, XE) >= 6 * len(t1)
        for j in range(len(dq.ops)):
            pj = j * opt.get('wds', 3)
            assert pj < n1 - 1 - PXE
            ev.setdefault(pj, []).append(lambda: dq(1, None, 0))
        gpass(t1, 0, [16, 24, 28, 8, 20, 12], LA1, ev, keep=(32, 36, 40, 44, 48, 52))
        st(k, 1, 9)
        LP = k.label('lp'); LD = k.label('ld'); L1 = k.label('l1')
        D = 56
        k(f'''v_mov_b32 v4, {fbits(1.0/864)}
s_mov_b32 s43, {SPIN}
s_waitcnt lgkmcnt(0)''')
        for h in range(8):
            k(f'v_lshlrev_b32 v{D+2*h}, 16, v{XR+h}\nv_and_b32 v{D+1+2*h}, 0xffff0000, v{XR+h}')
        k(f'''s_branch {L1}
{LP}:''')
        if opt.get('pxs'): k(f"s_sleep {opt['pxs']}")
        pxld()
        k(f'''{L1}:
s_waitcnt vmcnt(2)
v_max3_u32 v24, v32, v33, v34
v_max3_u32 v25, v35, v36, v37
v_max3_u32 v24, v24, v38, v39''')
        for r in range(4): k(f'v_add_f32 v{28+r}, v{32+r}, v{36+r}')
        k('''s_waitcnt vmcnt(0)
v_max3_u32 v25, v25, v40, v41
v_max3_u32 v24, v24, v42, v43
v_max3_u32 v25, v25, v44, v45
v_max3_u32 v24, v24, v46, v47
v_max_u32 v24, v24, v25
v_cmp_eq_u32 vcc, -1, v24''')
        for r in range(4): k(f'v_add_f32 v{16+r}, v{40+r}, v{44+r}')
        k(f'''s_cbranch_vccz {LD}
s_sub_u32 s43, s43, 1
s_cmp_lg_u32 s43, 0
s_cbranch_scc1 {LP}
{LD}:''')
        st(k, 0, 9); st(k, 6, 1)
        for r in range(4): k(f'v_add_f32 v{28+r}, v{28+r}, v{16+r}')
        for m in ('row_ror:4', 'row_ror:8'):
            for r in range(4): k(f'v_add_f32_dpp v{28+r}, v{28+r}, v{28+r} {m} row_mask:0xf bank_mask:0xf')
        for r in range(4): k(f'v_mul_f32 v{28+r}, v{28+r}, v4')
        k(f'''v_fma_f32 v29, -v28, v28, v29
v_fma_f32 v31, -v30, v30, v31
v_max_f32 v29, 0, v29
v_max_f32 v31, 0, v31
v_cvt_pk_bf16_f32 v12, v28, v30
v_cvt_pk_bf16_f32 v13, v29, v31
v_lshlrev_b32 v8, 16, v12
v_and_b32 v9, 0xffff0000, v12
v_lshlrev_b32 v10, 16, v13
v_and_b32 v11, 0xffff0000, v13
v_add_f32 v10, 0x3727c5ac, v10
v_add_f32 v11, 0x3727c5ac, v11
v_cvt_pk_bf16_f32 v13, v10, v11
v_lshlrev_b32 v10, 16, v13
v_and_b32 v11, 0xffff0000, v13
v_sqrt_f32 v10, v10
v_sqrt_f32 v11, v11''')
        for e in range(8):
            k(f'v_mov_b32_dpp v{16+e}, v{8+(e&1)} quad_perm:[{e>>1},{e>>1},{e>>1},{e>>1}] row_mask:0xf bank_mask:0xf')
        k(f'''v_cvt_pk_bf16_f32 v13, v10, v11
v_lshlrev_b32 v10, 16, v13
v_and_b32 v11, 0xffff0000, v13
v_rcp_f32 v10, v10
v_rcp_f32 v11, v11''')
        for i in range(2):
            d = D + 8 * i
            for e in range(0, 8, 2):
                k(f'v_pk_add_f32 {vr(d+e,2)}, {vr(d+e,2)}, {vr(16+e,2)} neg_lo:[0,1] neg_hi:[0,1]')
            if i == 0:
                for e in range(8):
                    k(f'v_mov_b32_dpp v{24+e}, v{10+(e&1)} quad_perm:[{e>>1},{e>>1},{e>>1},{e>>1}] row_mask:0xf bank_mask:0xf')
            o = XR + 4 * i
            if not opt.get('lean', 0) & 4:
                for r in range(4): k(f'v_cvt_pk_bf16_f32 v{o+r}, v{d+2*r}, v{d+2*r+1}')
                for r in range(4): k(f'v_lshlrev_b32 v{d+2*r}, 16, v{o+r}\nv_and_b32 v{d+1+2*r}, 0xffff0000, v{o+r}')
            for e in range(0, 8, 2):
                k(f'v_pk_mul_f32 {vr(d+e,2)}, {vr(d+e,2)}, {vr(24+e,2)}')
            for r in range(4): k(f'v_cvt_pk_bf16_f32 v{o+r}, v{d+2*r}, v{d+2*r+1}')
            k(f'buffer_store_dwordx4 {vr(o,4)}, v3, s[16:19], s{54+2*i} offen sc1')
        st(k, 6, 2)
        k('v_lshrrev_b32 v1, 1, v3')
        p1 = [(0, 2, 2048), (2, 1, 3072)] if hh == 0 else [(0, 2, 0), (2, 2, 1024)]
        for pi, (i0, nt, off) in enumerate(p1):
            o = 8 + 4 * pi; a = ACC(i0)
            if opt.get('lean', 0) & 64: gelu_pk(k, None, 4 * nt, a, 80 + 16 * pi, o, 6, sc=(SC > 1))
            else:
                for h in range(2 * nt): k(f'v_cvt_pk_bf16_f32 v{o+h}, v{a+2*h}, v{a+2*h+1}')
                gelu_pk(k, o, 4 * nt, 72 + 16 * pi, 80 + 16 * pi, o, 6, sc=(SC > 1))
            if nt == 2: k(f'buffer_store_dwordx4 {vr(o,4)}, v3, s[12:15], s55 offen offset:{off} sc1')
            else: k(f'buffer_store_dwordx2 {vr(o,2)}, v1, s[12:15], s55 offen offset:{off} sc1')
        st(k, 6, 3)
        map_g2(k)
        k('s_load_dwordx2 s[24:25], s[0:1], 48\ns_waitcnt vmcnt(0)')
        st(k, 0, 5); st(k, 6, 4)
        T4 = k.label('t4'); TJ = k.label('tj')
        k(f'''s_barrier
s_cmp_ge_u32 s34, 4
s_cbranch_scc1 {T4}
s_cmp_lg_u32 s34, 0
s_cbranch_scc1 {TJ}
s_lshl_b32 s44, s36, {5+FS}
s_add_u32 s44, s44, {FL2}''')
        flag_poll(k, 47, 44, 32, opt.get('g2sl', 0), opt.get('g2d', 0))
        k(f's_branch {TJ}\n{T4}:')
        if opt.get('wt67'): k(f's_cmp_ge_u32 s34, 6\ns_cbranch_scc1 {TJ}')
        else: assert not opt.get('wte')
        if not NOW: w_trans(k, 12, 13, WG_, 43)
        st(k, 6, 5)
        k(f'{TJ}:\ns_waitcnt lgkmcnt(0)\ns_barrier\ns_branch {DONE}')
    path(0)
    k(f'{LH}:')
    path(1)


def gen_ka(opt):
    k = Kern('ka_kernel', 256, 512, 163840, nvgpr=128, nagpr=128)
    END = k.label('end')
    k(f's_cmp_ge_u32 s2, 256\ns_cbranch_scc1 {END}')
    k.stamp(True)
    ph_k2a(k, opt, None)
    ph_g1(k, opt, END, None)
    k.finish(END)
    return k


def gen_p(opt, g3=True):
    k = Kern('kp_kernel', 256, 512, 163840, nvgpr=128, nagpr=128)
    END = k.label('end'); G2 = k.label('g2'); G3 = k.label('g3')
    k(f's_cmp_ge_u32 s2, 256\ns_cbranch_scc1 {END}')
    k.stamp(True)
    wb = Bulk(k, [] if opt.get('now') else g2_wops())
    ph_k2a(k, opt, wb)
    ph_g1(k, opt, G2, wb, True)
    k(f'{G2}:')
    st(k, 0, 6)
    vm = Cnt('vmcnt', 63); vm.issue('w')
    if g3:
        g3_wo_setup(k)
        ph_g2(k, opt, G3, vm, True, [] if opt.get('noo') else g3_wo_ops())
        k(f'{G3}:')
        ph_g3(k, opt, True)
    else:
        ph_g2(k, opt, END, vm, False)
    k.finish(END)
    return k


def gen_q(opt):
    k = Kern('k1_kernel', 256, 512, 163840, nvgpr=128, nagpr=128)
    END = k.label('end'); G2 = k.label('g2'); G3 = k.label('g3')
    k(f's_cmp_ge_u32 s2, 256\ns_cbranch_scc1 {END}')
    k.stamp(True)
    wb = Bulk(k, [] if opt.get('now') else g2_wops())
    ph_k12(k, opt, wb)
    if G1S: ph_g1s(k, opt, G2, wb)
    elif opt.get('g1t'): ph_g1t(k, opt, G2, wb)
    else: ph_g1(k, opt, G2, wb, True)
    k(f'{G2}:')
    st(k, 0, 6)
    vm = Cnt('vmcnt', 63); vm.issue('w')
    g3_wo_setup(k)
    if opt.get('g3s'):
        k('s_lshl_b32 s61, s35, 3\ns_add_u32 s61, s61, s34\ns_lshl_b32 s61, s61, 14\ns_add_u32 s62, s61, 8192')
        na = ph_g2(k, opt, G3, vm, True, g3_wo_ops(), g3s_early())
        k(f'{G3}:')
        ph_g3s(k, opt, na)
        k.finish(END)
        return k
    ph_g2(k, opt, G3, vm, True, [] if opt.get('noo') else g3_wo_ops())
    k(f'{G3}:')
    ph_g3(k, opt, True)
    k.finish(END)
    return k


def build(opt):
    lv = opt.get('lv', 1)
    if lv == 4: return [gen_fft.gen_k0(), gen_q(opt)]
    ks = [gen_fft.gen_k0(), gen_fft.gen_k1c()]
    if lv == 1: ks += [gen_ka(opt), gen_g2(opt), gen_g3(opt)]
    if lv == 2: ks += [gen_p(opt, False), gen_g3(opt)]
    if lv == 3: ks += [gen_p(opt)]
    return ks


def g3_wo_setup(k):
    srd_from(k, 28, 40, 41, WS_WO, WO8_BYTES)
    k(f'''s_lshl_b32 s60, s36, 3
s_add_u32 s60, s60, s34
s_mul_i32 s60, s60, {WOB}''')


def g3_wo_ops():
    ops = []
    for i in range(15):
        s = f'buffer_load_dwordx4 {ar(4*i,4)}, v3, s[28:31], s60 offen offset:{1024*(i%4)}'
        if i % 4 == 3: s += '\ns_add_u32 s60, s60, 4096'
        if i == 14: s += '\ns_add_u32 s60, s60, 3072'
        ops.append(s)
    for n in range(5):
        ops.append(f'buffer_load_dwordx2 {ar(60+2*n,2)}, v2, s[28:31], s60 offen offset:{512*n}')
    return ops


def ph_g3(k, opt, fused):
    vm = Cnt('vmcnt', 63); lg = Cnt('lgkmcnt', 15)
    G3F = opt.get('g3f', 0)
    WOL = opt.get('wol', [99, 99]); W0L = opt.get('w0l', 0)
    if G3F:
        NP2 = k.label('np2'); WH = k.label('wh'); WX = k.label('wx')
        k(f'''s_lshl_b32 s42, s35, {3+FS}
s_add_u32 s42, s42, {FL3}
s_lshl_b32 s46, s36, {FS}
s_add_u32 s46, s46, s42
v_lshrrev_b32 v124, 4, v3
v_lshlrev_b32 v124, {FS}, v124
v_mov_b32 v125, 1
s_waitcnt vmcnt(0)
s_barrier
s_cmp_lg_u32 s34, 0
s_cbranch_scc1 {NP2}
s_mov_b64 exec, 1
buffer_store_dword v125, v124, s[68:71], s46 offen sc1
s_mov_b64 exec, -1
{f"s_branch {WX}" if W0L else ""}
{NP2}:''')
        ro = [g3_wo_ops()[WOL[0]:], g3_wo_ops()[WOL[1]:]]
        if ro[0] == ro[1]:
            for o in ro[0]: k(o)
        else:
            k(f's_cmp_ge_u32 s34, 4\ns_cbranch_scc1 {WH}')
            for o in ro[0]: k(o)
            k(f's_branch {WX}\n{WH}:')
            for o in ro[1]: k(o)
        k(f'{WX}:')
    else: assert WOL == [99, 99]
    srd_from(k, 8, 40, 41, WS_Z1 if opt.get('ain') else WS_A, A2_BYTES)
    srd_from(k, 12, 80, 81, 0, X_BYTES) if opt.get('hout') else srd_from(k, 12, 40, 41, WS_H, X_BYTES)
    k(f'''s_lshl_b32 s44, s35, 3
s_add_u32 s44, s44, s34
s_lshl_b32 s44, s44, 14
v_lshrrev_b32 v1, 4, v3
v_and_b32 v6, 15, v1
v_lshrrev_b32 v7, 4, v1''')
    k(f'''s_lshr_b32 s45, s34, 1
s_mul_i32 s45, s45, 40960
s_and_b32 s46, s34, 1
s_lshl_b32 s46, s46, 3''')
    ROWA = '''v_lshrrev_b32 v11, 3, v9
v_and_b32 v12, 3, v9
v_lshl_add_u32 v11, v11, 2, v12
v_bfe_u32 v12, v9, 2, 1
v_lshl_add_u32 v11, v12, 8, v11''' if G1S else '''v_lshrrev_b32 v11, 2, v9
v_and_b32 v12, 3, v9
v_lshl_add_u32 v11, v12, 8, v11'''
    for p in range(3):
        k(f'''v_add_u32 v8, {64*p}, v1
v_mul_u32_u24 v9, 3277, v8
v_lshrrev_b32 v9, 16, v9
v_mul_u32_u24 v10, 20, v9
v_sub_u32 v10, v8, v10
v_add_u32 v9, s46, v9
v_add_u32 v11, v9, v10
v_and_b32 v11, 15, v11
v_lshlrev_b32 v11, 4, v11
v_lshrrev_b32 v12, 2, v10
v_lshl_add_u32 v11, v12, 13, v11
v_and_b32 v12, 3, v10
v_lshl_add_u32 v11, v12, 8, v11
v_add_u32 v{116+p}, s45, v11
{ROWA}
v_mul_u32_u24 v11, 1280, v11
v_lshl_add_u32 v{120+p}, v10, 3, v11''')
    k(f'''v_mov_b32 v8, 0x7fffffff
v_cmp_gt_u32 vcc, 32, v1
v_cndmask_b32 v122, v8, v122, vcc
s_lshl_b32 s47, s35, 3
s_and_b32 s43, s34, 2
s_lshl_b32 s43, s43, {8 if G1S else 1}
s_add_u32 s47, s47, s43
s_and_b32 s43, s34, 4
s_lshl_b32 s43, s43, 8
s_add_u32 s47, s47, s43
s_mul_i32 s47, s47, 1280
s_mul_i32 s43, s36, 160
s_add_u32 s47, s47, s43''')
    def hld():
        for p in range(3): k(f'buffer_load_dwordx2 {vr(104+2*p,2)}, v{120+p}, s[12:15], s47 offen')
    NH = k.label('nh')
    if G3F: k(f's_cmp_eq_u32 s34, 0\ns_cbranch_scc1 {NH}')
    hld()
    k(f'{NH}:')
    for p in range(3): vm.issue('h')
    k(f'''s_lshl_b32 s43, s34, 10
v_add_u32 v8, v6, v7
v_lshlrev_b32 v9, 8, v7
v_add_u32 v9, s43, v9''')
    for n in range(5):
        k(f'''v_add_u32 v10, {4*n}, v8
v_and_b32 v10, 15, v10
v_lshl_add_u32 v10, v10, 4, v9
v_add_u32 v{88+n}, {8192*n}, v10
v_add_u32 v{93+n}, {8192*n+81920}, v10''')
    if G3F:
        NP3 = k.label('np3')
        k(f's_cmp_lg_u32 s34, 0\ns_cbranch_scc1 {NP3}\ns_mov_b64 exec, 0xff')
        if opt.get('g3d'): k(f's_sleep {opt["g3d"]}')
        poll2(k, 'buffer_load_dword v125, v124, s[68:71], s42 offen sc1', 'v_cmp_eq_u32 vcc, 0, v125', 43, opt.get('g3sl', 0))
        k('s_mov_b64 exec, -1')
        if W0L == 1:
            for o in ro[0]: k(o)
        if W0L < 2: hld()
        k(f'{NP3}:\ns_barrier')
        if W0L == 2:
            NP4 = k.label('np4')
            k(f's_cmp_lg_u32 s34, 0\ns_cbranch_scc1 {NP4}')
            for o in ro[0]: k(o)
            hld()
            k(f'{NP4}:')
    elif fused:
        NP3 = k.label('np3')
        k(f'''s_waitcnt vmcnt(0)
s_barrier
s_cmp_lg_u32 s34, 0
s_cbranch_scc1 {NP3}
s_lshl_b32 s42, s35, {3+FS}
s_add_u32 s42, s42, {FL3}
s_lshl_b32 s46, s36, {FS}
s_add_u32 s46, s46, s42''')
        flag_poll(k, 46, 42, 8, opt.get('g3sl', 0), opt.get('g3d', 0))
        k(f'{NP3}:\ns_barrier')
        vm.done = 3
    st(k, 3, 1); st(k, 0, 8)
    k(f's_cmp_eq_u32 s34, 7\ns_cselect_b32 s48, {BIG}, 0')
    AF = lambda tt, p: 72 + 14 * tt + 4 * p
    for tt in range(4):
        for p in range(3):
            k(f'buffer_load_dwordx4 {ar(AF(tt,p),4)}, v3, s[8:11], s44 offen offset:{1024*p}'); vm.issue(f'a{tt}{p}')
        k(f's_add_u32 s49, s44, s48\nbuffer_load_dwordx2 {ar(AF(tt,3),2)}, v2, s[8:11], s49 offen offset:3072'); vm.issue(f'a{tt}3')
        if tt < 3: k('s_add_u32 s44, s44, 4096')
    srd_from(k, 16, 80, 81, 0, X_BYTES)
    ACC = lambda tt, n: 8 + 20 * (tt & 1) + 4 * n
    pend = []
    for tt in range(4):
        for p in range(4):
            x = vm.wait(f'a{tt}{p}')
            if x: k(x)
            if tt == 0 and p == 0: st(k, 3, 2)
            for n in range(5):
                acc = vr(ACC(tt, n), 4)
                if p < 3: k(f'{MFMA} {acc}, {ar(20*p+4*n,4)}, {ar(AF(tt,p),4)}, {"0" if p == 0 else acc}')
                else: k(f'{MF16} {acc}, {ar(60+2*n,2)}, {ar(AF(tt,3),2)}, {acc}')
                if pend and (5 * p + n) % 3 == 2: k(pend.pop(0))
        for n in range(5):
            pend.append(f'ds_write_b128 v{88+5*(tt>>1)+n}, {vr(ACC(tt,n),4)} offset:{40960*(tt&1)}')
    for o in pend: k(o)
    st(k, 3, 3)
    k('s_waitcnt lgkmcnt(0)\ns_barrier')
    st(k, 3, 4)
    for p in range(3):
        for s in range(8):
            k(f'ds_read_b128 {vr(8+32*p+4*s,4)}, v{116+p} offset:{1024*s}'); lg.issue(f'r{p}{s}')
        if p == 0:
            for q in range(3):
                k(f'v_lshlrev_b32 v{110+2*q}, 16, v{104+2*q}\nv_and_b32 v{104+2*q}, 0xffff0000, v{104+2*q}')
    for p in range(3):
        a = 8 + 32 * p
        for s in (0, 2, 4, 6):
            x = lg.wait(f'r{p}{s+1}')
            if x: k(x)
            for h in range(2): k(f'v_pk_add_f32 {vr(a+4*s+2*h,2)}, {vr(a+4*s+2*h,2)}, {vr(a+4*s+4+2*h,2)}')
            if s in (2, 6):
                for h in range(2): k(f'v_pk_add_f32 {vr(a+4*s-8+2*h,2)}, {vr(a+4*s-8+2*h,2)}, {vr(a+4*s+2*h,2)}')
        for h in range(2): k(f'v_pk_add_f32 {vr(a+2*h,2)}, {vr(a+2*h,2)}, {vr(a+16+2*h,2)}')
        if opt.get('lean', 0) & 16: k(f'''v_lshlrev_b32 v{a+8}, 16, v{105+2*p}
v_and_b32 v{a+9}, 0xffff0000, v{105+2*p}''')
        else: k(f'''v_cvt_pk_bf16_f32 v{a+4}, v{a}, v{a+1}
v_cvt_pk_bf16_f32 v{a+5}, v{a+2}, v{a+3}
v_lshlrev_b32 v{a+8}, 16, v{105+2*p}
v_and_b32 v{a+9}, 0xffff0000, v{105+2*p}
v_lshlrev_b32 v{a}, 16, v{a+4}
v_and_b32 v{a+1}, 0xffff0000, v{a+4}
v_lshlrev_b32 v{a+2}, 16, v{a+5}
v_and_b32 v{a+3}, 0xffff0000, v{a+5}''')
        k(f'''v_add_f32 v{a}, v{a}, v{110+2*p}
v_add_f32 v{a+1}, v{a+1}, v{104+2*p}
v_pk_add_f32 {vr(a+2,2)}, {vr(a+2,2)}, {vr(a+8,2)}
v_cvt_pk_bf16_f32 v{a+4}, v{a}, v{a+1}
v_cvt_pk_bf16_f32 v{a+5}, v{a+2}, v{a+3}
buffer_store_dwordx2 {vr(a+4,2)}, v{120+p}, s[16:19], s47 offen''')


def g3s_ld(tt, p, fl=''):
    if p < 2: return f'buffer_load_dwordx4 {vr(56+8*tt+4*p,4)}, v3, s[16:19], s{61+(tt>>1)} offen offset:{1024*p}{fl}' if not (tt & 1) else \
        f'buffer_load_dwordx4 {vr(56+8*tt+4*p,4)}, v88, s[16:19], s{61+(tt>>1)} offen offset:{1024*p}{fl}'
    if p == 2: return f'buffer_load_dwordx4 {vr(8+4*tt,4)}, v{88 if tt & 1 else 3}, s[16:19], s{61+(tt>>1)} offen offset:2048{fl}'
    return f'buffer_load_dwordx2 {vr(24+2*tt,2)}, v{89 if tt & 1 else 2}, s[16:19], s{63+(tt>>1)} offen offset:3072{fl}'


def g3s_early():
    ops = [g3s_ld(tt, p) for p in range(2) for tt in range(4)]
    ops[0] = 'v_add_u32 v88, 4096, v3\nv_add_u32 v89, 4096, v2\n' + ops[0]
    return ops


def chk_max(k, regs, t):
    regs = list(regs)
    acc = [None, None]; i = 0
    while regs:
        j = i & 1; i += 1
        if acc[j] is None:
            if len(regs) >= 3: k(f'v_max3_u32 v{t+j}, v{regs[0]}, v{regs[1]}, v{regs[2]}'); regs = regs[3:]
            elif len(regs) == 2: k(f'v_max_u32 v{t+j}, v{regs[0]}, v{regs[1]}'); regs = []
            else: k(f'v_mov_b32 v{t+j}, v{regs[0]}'); regs = []
            acc[j] = 1
        elif len(regs) >= 2: k(f'v_max3_u32 v{t+j}, v{t+j}, v{regs[0]}, v{regs[1]}'); regs = regs[2:]
        else: k(f'v_max_u32 v{t+j}, v{t+j}, v{regs[0]}'); regs = []
    if acc[1]: k(f'v_max_u32 v{t}, v{t}, v{t+1}')
    k(f'v_cmp_eq_u32 vcc, -1, v{t}')


def ph_g3s(k, opt, na):
    vm = Cnt('vmcnt', 63); lg = Cnt('lgkmcnt', 15)
    if opt.get('g3e', 0) == 3:
        for o in g3s_early(): k(o)
        na = 0
    vm.issue('e')
    for _ in range(na): vm.issue('s')
    srd_from(k, 12, 80, 81, 0, X_BYTES) if opt.get('hout') else srd_from(k, 12, 40, 41, WS_H, X_BYTES)
    LW = 90
    k(f'''s_cmp_eq_u32 s34, 7
s_cselect_b32 s63, {BIG}, s61
s_cselect_b32 s64, {BIG}, s62
v_lshrrev_b32 v1, 4, v3
v_and_b32 v6, 15, v1
v_lshrrev_b32 v7, 4, v1
s_lshr_b32 s45, s34, 1
s_mul_i32 s45, s45, 40960
s_and_b32 s46, s34, 1
s_lshl_b32 s46, s46, 3''')
    I2 = opt.get('g3i', [0, 20])
    if I2[0] < 0:
        for tt in range(4): k(g3s_ld(tt, 2, ' sc1')); vm.issue('p2')
    for p in range(3):
        k(f'''v_add_u32 v100, {64*p}, v1
v_mul_u32_u24 v101, 3277, v100
v_lshrrev_b32 v101, 16, v101
v_mul_u32_u24 v102, 20, v101
v_sub_u32 v102, v100, v102
v_add_u32 v101, s46, v101
v_add_u32 v103, v101, v102
v_and_b32 v103, 15, v103
v_lshlrev_b32 v103, 4, v103
v_lshrrev_b32 v110, 2, v102
v_lshl_add_u32 v103, v110, 13, v103
v_and_b32 v110, 3, v102
v_lshl_add_u32 v103, v110, 8, v103
v_add_u32 v{116+p}, s45, v103
v_lshrrev_b32 v103, 2, v101
v_and_b32 v110, 3, v101
v_lshl_add_u32 v103, v110, 8, v103
v_mul_u32_u24 v103, 1280, v103
v_lshl_add_u32 v{120+p}, v102, 3, v103''')
    k(f'''v_mov_b32 v100, 0x7fffffff
v_cmp_gt_u32 vcc, 32, v1
v_cndmask_b32 v122, v100, v122, vcc
s_lshl_b32 s47, s35, 3
s_and_b32 s43, s34, 2
s_lshl_b32 s43, s43, 1
s_add_u32 s47, s47, s43
s_and_b32 s43, s34, 4
s_lshl_b32 s43, s43, 8
s_add_u32 s47, s47, s43
s_mul_i32 s47, s47, 1280
s_mul_i32 s43, s36, 160
s_add_u32 s47, s47, s43''')
    for p in range(3):
        k(f'buffer_load_dwordx2 {vr(104+2*p,2)}, v{120+p}, s[12:15], s47 offen'); vm.issue('h')
    k(f'''s_lshl_b32 s43, s34, 10
v_add_u32 v100, v6, v7
v_lshlrev_b32 v101, 8, v7
v_add_u32 v101, s43, v101''')
    for n in range(5):
        k(f'''v_add_u32 v102, {4*n}, v100
v_and_b32 v102, 15, v102
v_lshl_add_u32 v102, v102, 4, v101
v_add_u32 v{LW+n}, {8192*n}, v102
v_add_u32 v{LW+5+n}, {8192*n+81920}, v102''')
    srd_from(k, 8, 80, 81, 0, X_BYTES)

    def ACC(tt, n):
        i = 5 * tt + n
        return ar(72 + 4 * i, 4) if i < 14 else vr(32 + 4 * (i - 14), 4)

    def gate(tag, regs, lds, sl):
        LP = k.label('lp'); LD = k.label('ld')
        k(vm.wait(tag) or '')
        chk_max(k, regs, 100)
        k(f's_cbranch_vccz {LD}\ns_mov_b32 s43, {SPIN}\n{LP}:')
        if sl: k(f's_sleep {sl}')
        for o in lds: k(o)
        k('s_waitcnt vmcnt(0)')
        chk_max(k, regs, 100)
        k(f's_cbranch_vccz {LD}\ns_sub_u32 s43, s43, 1\ns_cmp_lg_u32 s43, 0\ns_cbranch_scc1 {LP}\n{LD}:')
    st(k, 3, 1); st(k, 0, 8)
    gate('e', range(56, 88), [g3s_ld(tt, p, ' sc1') for p in range(2) for tt in range(4)], 0)
    st(k, 3, 2)
    i = 0
    for p in range(3):
        if p == 2:
            st(k, 3, 5)
            gate('p2', range(8, 24), [g3s_ld(tt, 2, ' sc1') for tt in range(4)], opt.get('g3r', 0))
            st(k, 3, 6)
            k('s_barrier')
        for tt in range(4):
            for n in range(5):
                if i == I2[0]:
                    for t2 in range(4): k(g3s_ld(t2, 2, ' sc1')); vm.issue('p2')
                if i == I2[1]:
                    for t2 in range(4): k(g3s_ld(t2, 3, ' sc1')); vm.issue('p3')
                acc = ACC(tt, n)
                b = vr(56 + 8 * tt + 4 * p, 4) if p < 2 else vr(8 + 4 * tt, 4)
                k(f'{MFMA} {acc}, {ar(20*p+4*n,4)}, {b}, {"0" if p == 0 else acc}')
                i += 1
    st(k, 3, 7)
    gate('p3', range(24, 32), [g3s_ld(tt, 3, ' sc1') for tt in range(4)], opt.get('g3r', 0))
    st(k, 3, 8)
    pend = []
    for tt in range(4):
        for n in range(5):
            acc = ACC(tt, n)
            k(f'{MF16} {acc}, {ar(60+2*n,2)}, {vr(24+2*tt,2)}, {acc}')
            pend.append(f'ds_write_b128 v{LW+5*(tt>>1)+n}, {acc} offset:{40960*(tt&1)}')
            if len(pend) > 3: k(pend.pop(0))
    for o in pend: k(o)
    st(k, 3, 3)
    k('s_waitcnt lgkmcnt(0)\ns_barrier')
    st(k, 3, 4)
    for p in range(3):
        for s in range(8):
            k(f'ds_read_b128 {vr(8+32*p+4*s,4)}, v{116+p} offset:{1024*s}'); lg.issue(f'r{p}{s}')
        if p == 0:
            for q in range(3):
                k(f'v_lshlrev_b32 v{110+2*q}, 16, v{104+2*q}\nv_and_b32 v{104+2*q}, 0xffff0000, v{104+2*q}')
    for p in range(3):
        a = 8 + 32 * p
        for s in (0, 2, 4, 6):
            x = lg.wait(f'r{p}{s+1}')
            if x: k(x)
            for h in range(2): k(f'v_pk_add_f32 {vr(a+4*s+2*h,2)}, {vr(a+4*s+2*h,2)}, {vr(a+4*s+4+2*h,2)}')
            if s in (2, 6):
                for h in range(2): k(f'v_pk_add_f32 {vr(a+4*s-8+2*h,2)}, {vr(a+4*s-8+2*h,2)}, {vr(a+4*s+2*h,2)}')
        for h in range(2): k(f'v_pk_add_f32 {vr(a+2*h,2)}, {vr(a+2*h,2)}, {vr(a+16+2*h,2)}')
        if opt.get('lean', 0) & 16: k(f'''v_lshlrev_b32 v{a+8}, 16, v{105+2*p}
v_and_b32 v{a+9}, 0xffff0000, v{105+2*p}''')
        else: k(f'''v_cvt_pk_bf16_f32 v{a+4}, v{a}, v{a+1}
v_cvt_pk_bf16_f32 v{a+5}, v{a+2}, v{a+3}
v_lshlrev_b32 v{a+8}, 16, v{105+2*p}
v_and_b32 v{a+9}, 0xffff0000, v{105+2*p}
v_lshlrev_b32 v{a}, 16, v{a+4}
v_and_b32 v{a+1}, 0xffff0000, v{a+4}
v_lshlrev_b32 v{a+2}, 16, v{a+5}
v_and_b32 v{a+3}, 0xffff0000, v{a+5}''')
        k(f'''v_add_f32 v{a}, v{a}, v{110+2*p}
v_add_f32 v{a+1}, v{a+1}, v{104+2*p}
v_pk_add_f32 {vr(a+2,2)}, {vr(a+2,2)}, {vr(a+8,2)}
v_cvt_pk_bf16_f32 v{a+4}, v{a}, v{a+1}
v_cvt_pk_bf16_f32 v{a+5}, v{a+2}, v{a+3}
buffer_store_dwordx2 {vr(a+4,2)}, v{120+p}, s[8:11], s47 offen''')


def gen_g3(opt):
    k = Kern('k4_kernel', 256, 512, 163840, nvgpr=128, nagpr=128)
    END = k.label('end')
    k(f'''s_cmp_ge_u32 s2, 256
s_cbranch_scc1 {END}
s_load_dwordx2 s[40:41], s[0:1], 80
s_load_dwordx2 s[80:81], s[0:1], 64''')
    k.stamp(True)
    map_g2(k)
    k(f'''v_lshrrev_b32 v1, 6, v0
v_and_b32 v2, 63, v0
v_readfirstlane_b32 s34, v1
v_lshlrev_b32 v3, 4, v2
v_lshlrev_b32 v2, 3, v2
s_waitcnt lgkmcnt(0)''')
    g3_wo_setup(k)
    for o in g3_wo_ops(): k(o)
    ph_g3(k, opt, False)
    k.finish(END)
    return k


def wq_role(k, base, END, half=None, fl='', sl=0):
    n = 256 if half is None else 128
    k(f'''s_sub_u32 s33, s2, {base}
s_cmp_ge_u32 s33, {n}
s_cbranch_scc1 {END}
s_load_dwordx2 s[4:5], s[0:1], 40
s_load_dwordx2 s[40:41], s[0:1], 80
{f"s_add_u32 s33, s33, 128" if half else ""}
v_lshrrev_b32 v1, 6, v0
v_and_b32 v2, 63, v0
v_readfirstlane_b32 s34, v1
v_lshlrev_b32 v3, 4, v2
v_lshrrev_b32 v4, 4, v2
v_bfe_u32 v5, v2, 2, 2
v_and_b32 v6, 3, v2
v_lshlrev_b32 v6, 4, v6
v_lshl_add_u32 v6, v4, 12, v6
v_lshl_add_u32 v6, v5, 20, v6
v_and_b32 v7, 15, v2
v_lshlrev_b32 v7, 6, v7
v_lshl_add_u32 v7, v4, 10, v7
s_lshl_b32 s39, s34, 12
v_add_u32 v7, s39, v7
s_bfe_u32 s35, s33, 0x20001
s_lshl_b32 s35, s35, 3
s_bfe_u32 s36, s33, 0x30003
s_add_u32 s35, s35, s36
s_lshr_b32 s36, s33, 6
s_and_b32 s37, s33, 1
s_lshl_b32 s42, s35, 15
s_and_b32 s43, s36, 1
s_lshl_b32 s43, s43, 14
s_add_u32 s42, s42, s43
s_lshr_b32 s43, s36, 1
s_lshl_b32 s43, s43, 22
s_add_u32 s42, s42, s43
s_lshl_b32 s43, s34, 6
s_add_u32 s42, s42, s43
s_lshl_b32 s43, s37, 11
s_add_u32 s42, s42, s43
s_lshl_b32 s44, s35, 3
s_add_u32 s44, s44, s34
s_lshl_b32 s44, s44, 15
s_lshl_b32 s43, s37, 12
s_add_u32 s44, s44, s43
s_lshl_b32 s43, s36, 10
s_add_u32 s44, s44, s43
s_waitcnt lgkmcnt(0)''')
    srd_from(k, 4, 4, 5, 0, 2048 * 4096)
    if sl: k(f's_sleep {sl}')
    M = gen_fft.OPT.get('wqm', 0)
    if M & 4:
        k('s_lshl_b32 s42, s33, 3\ns_add_u32 s42, s42, s34\ns_lshl_b32 s42, s42, 12')
        for g in range(4):
            k(f's_add_u32 m0, s39, 0')
            k(f'buffer_load_dwordx4 v3, s[4:7], s42 offen offset:{1024*g}{fl} lds')
    for g in range(4):
        if M & 6: break
        k(f's_add_u32 m0, s39, {512*g}')
        k(f'buffer_load_dwordx4 v6, s[4:7], s42 offen offset:{512*g}{fl} lds')
    srd_from(k, 8, 40, 41, WS_WS, WSP_BYTES)
    k('s_waitcnt vmcnt(0)')
    for c in range(4): k(f'ds_read_b128 {vr(8+4*c,4)}, v7 offset:{16*c}')
    for c in range(4):
        k(f's_waitcnt lgkmcnt({3-c})')
        if M & 1: continue
        k(f'buffer_store_dwordx4 {vr(8+4*c,4)}, v3, s[8:11], s44 offen{" nt" if M & 8 else ""}{" ; sc1" if M & 16 else " sc1"}')
        if c < 3: k('s_add_u32 s44, s44, 8192')
    k(f's_endpgm')
```

```python
from gen10 import *
import gen10
from gen_fft import code_srd

FT = 0x20000
FP = 0x22000
MAGIC = 0xA7C3E591


def ph_k01(k, opt, wb):
    XP = 1280; EX0 = 10240; EXP = 2576
    P = 1040; W0 = 16 * P; TB1 = 32 * P; TB2 = TB1 + 8192; TB0 = TB2 + 10240; CNT = TB1 - 16
    NT2 = 9 if opt.get('lean', 0) & 1 else 10
    opt['TB2'] = TB2
    PREPB = k.label('prepb'); CS = k.label('cs'); NCP = k.label('ncp'); NW = k.label('nw'); FX = k.label('fx')
    HDR = """s_sub_u32 s33, s2, 168
s_mul_i32 s33, s33, 5
s_add_u32 s33, s33, s34
s_sub_u32 s33, s33, 3
s_mov_b32 s47, s32
"""
    IDLE = k.label('idle'); JOIN = k.label('join'); J1 = k.label('j1'); TAIL = k.label('tail'); PD = k.label('pd'); NF = k.label('nf')
    l0 = len(k.lines)
    k(f'''s_load_dwordx2 s[4:5], s[0:1], 0
s_load_dwordx2 s[40:41], s[0:1], 80
s_load_dwordx4 s[52:55], s[0:1], 8
s_load_dwordx2 s[62:63], s[0:1], 32
s_load_dwordx2 s[64:65], s[0:1], 56
s_load_dwordx2 s[72:73], s[0:1], 40''')
    tab_srd(k, 12)
    k(f'''s_and_b32 s33, s2, 7
s_lshl_b32 s3, s33, 5
s_lshr_b32 s36, s2, 3
s_add_u32 s3, s3, s36
v_lshrrev_b32 v1, 6, v0
v_and_b32 v2, 63, v0
v_readfirstlane_b32 s34, v1
v_lshlrev_b32 v3, 4, v2
''')
    CP0 = opt.get('cp0', 2)
    if CP0:
        k(f's_cmp_ge_u32 s34, {CP0}\ns_cbranch_scc1 {NCP}')
        code_srd(k, 68, CS, 'code_end')
        k(f'''v_lshlrev_b32 v100, 7, v2
s_lshl_b32 s33, s34, 13
buffer_load_ubyte v103, v100, s[68:71], s33 offen
{NCP}:''')
    k(f'''{CS}:
s_lshl_b32 s38, s34, 10
s_add_u32 m0, s38, {TB0}
buffer_load_dwordx4 v3, s[12:15], s38 offen lds
s_lshl_b32 s35, s34, 8
s_add_u32 s35, s35, s3
s_mul_i32 s35, s35, 1280
v_lshlrev_b32 v58, 3, v2
v_lshlrev_b32 v59, 2, v2
v_and_b32 v50, 15, v2
v_lshrrev_b32 v51, 4, v2
s_waitcnt lgkmcnt(0)''')
    srd_from(k, 4, 4, 5, 0, X_BYTES)
    k(f'''buffer_load_dwordx2 v[4:5], v58, s[4:7], s35 offen
buffer_load_dwordx2 v[6:7], v58, s[4:7], s35 offen offset:512
buffer_load_dword v8, v59, s[4:7], s35 offen offset:1024''')
    vm = Cnt('vmcnt', 63); vm.issue('x')
    srd_from(k, 8, 40, 41, WS_T, TU_BYTES)
    PA = k.label('pa'); PB = k.label('pb'); PL = opt.get('pl', 6)
    PAX = opt.get('pax', 0)
    if PAX: PL = 3
    k(f'''s_mul_i32 s32, s34, {14*1024}
s_add_u32 s32, s32, {31*1024}
s_min_u32 s32, s32, {126*1024}
s_add_u32 s32, s32, {BB}
s_cmp_ge_u32 s2, 168
s_cselect_b32 s100, 3, 8
s_cselect_b32 s101, {PL}, 8''')
    if not PAX: k(f's_cmp_lt_u32 s34, s101\ns_cbranch_scc1 {PA}')

    def prepa():
        i0 = len(k.lines)
        prep_inl(k, 'A', 0, None, hdr=HDR)
        for j in range(i0, len(k.lines)):
            l = re.sub(r'\bv10([456])\b', lambda m: f'v{96+int(m.group(1))-4}', k.lines[j])
            if l.startswith('buffer_load') and opt.get('ntm', 0) & 1: l = l[:-4] + ' nt lds'
            if PAX:
                mp = dict(s16='s42', s17='s43', s18='s44', s19='s45', s24='s46', s25='s47', s26='s48', s27='s49', s28='s60', s29='s61', s30='s66', s31='s67', s22='s58', s23='s59')
                l = re.sub(r'\b(s\d+)\b', lambda m: mp.get(m.group(1), m.group(1)), l).replace('s[20:23]', 's[56:59]').replace('s[20:21]', 's[56:57]')
            k.lines[j] = l
    if not PAX:
        prepa()
        k(f'{PA}:')
    if opt.get('twe', 1):
        k(f'''s_lshl_b32 s33, s3, 6
s_add_u32 s33, s33, 32768
s_load_dwordx16 s[16:31], s[12:13], s33
s_load_dwordx2 s[80:81], s[0:1], 64''')

    def late():
        k(f'''s_add_u32 m0, s38, {TB1}
s_add_u32 s37, s38, 0x2000
buffer_load_dwordx4 v3, s[12:15], s37 offen lds
s_min_u32 s39, s34, 4
s_lshl_b32 s39, s39, 11
s_add_u32 m0, s39, {TB2}
s_add_u32 s37, s39, 0x4000
buffer_load_dwordx4 v3, s[12:15], s37 offen lds
buffer_load_dwordx4 v3, s[12:15], s37 offen offset:1024 lds''')
        for _ in range(3): vm.issue('t')

    LT = opt.get('flt', 0)
    if LT == 0: late()
    w_setup(k, 46, 47); w_vaddr(k, 124, 125)
    if opt.get('wd4'): k('s_cmp_ge_u32 s34, 4\ns_cselect_b32 s74, 0, s74')
    WT0 = opt.get('wtn', 0); WP = opt.get('wp', 0)

    def wt0():
        k(f'''s_andn2_b32 s46, s82, 0xfff
s_and_b32 s47, s34, 1
s_lshl_b32 s47, s47, 13
s_add_u32 s46, s46, s47
s_cmp_ge_u32 s34, 6
s_cselect_b32 s46, s46, {BIG}
v_lshlrev_b32 v100, 7, v2''')
        for n in range(WT0):
            k('buffer_load_ubyte v123, v100, s[72:75], s46 offen'); vm.issue('c')
            if n < WT0 - 1: k('s_add_u32 s46, s46, 0x100000')
    if WT0 and WP == 0: wt0()
    q = Bulk(k, wb.ops); wb.ops = []
    WD5 = opt.get('wd5', 0)
    if WD5:
        CUT = 's_mov_b32 s78, s50\ns_mov_b32 s79, s51\ns_cmp_ge_u32 s34, s101\ns_cselect_b32 s74, 0, s74'
        if WD5 < 32: q.ops[31 - WD5] += '\n' + CUT
    k(f'''s_mul_i32 s39, s34, {XP}
v_add_u32 v62, s32, v58
v_add_u32 v63, s32, v59
v_add_u32 v58, s39, v58
v_add_u32 v59, s39, v59
v_lshrrev_b32 v52, 2, v50
v_and_b32 v53, 3, v50
v_lshl_add_u32 v54, v51, 3, v52
v_add_u32 v55, 4, v54
v_subrev_u32 v56, 20, v54
v_min_u32 v54, v54, v56
v_subrev_u32 v56, 20, v55
v_min_u32 v55, v55, v56
v_lshlrev_b32 v53, 3, v53
v_lshl_add_u32 v54, v54, 6, v53
v_lshl_add_u32 v55, v55, 6, v53
v_add_u32 v54, s39, v54
v_add_u32 v55, s39, v55
s_mul_i32 s42, s34, {EXP}
s_add_u32 s42, s42, {EX0}
v_mul_u32_u24 v56, 80, v51
v_add_u32 v57, v56, v50
v_lshlrev_b32 v57, 3, v57
v_add_u32 v60, s42, v57
v_sub_u32 v61, {8*260}, v57
v_add_u32 v61, s42, v61
v_mov_b32 v126, {CNT}
v_mov_b32 v127, 0
ds_write_b32 v126, v127''')
    SB = opt.get('sb', 1)

    def vw2(n):
        L = k.label('pb')
        k(f'''s_cmp_lt_u32 s34, s101
s_cbranch_scc1 {L}
s_waitcnt vmcnt({n+8})
s_branch {L}x
{L}:
s_waitcnt vmcnt({n})
{L}x:''')

    def xwait():
        vw2(len(vm.tags) - 1)
        vm.done = 1
        st(k, 7, 1); st(k, 5, 1)
        if opt.get('xs'):
            k('''ds_write_b64 v62, v[4:5] offset:8192
ds_write_b64 v62, v[6:7] offset:8704
ds_write_b32 v63, v8 offset:9216''')
    if SB and PAX: k(f's_waitcnt vmcnt({len(vm.tags) + 2})')
    elif SB: vw2(len(vm.tags) + 2)
    else: xwait()
    k('s_barrier')
    for i in range(8): k(f'ds_read_b128 {vr(64+4*i,4)}, v3 offset:{TB0+1024*i}')
    if not opt.get('twe', 1):
        k(f'''s_lshl_b32 s33, s3, 6
s_add_u32 s33, s33, 32768
s_load_dwordx16 s[16:31], s[12:13], s33
s_load_dwordx2 s[80:81], s[0:1], 64''')
    if LT == 1: late()
    srd_from(k, 56, 40, 41, WS_FL, 0x80000)
    k(f'''s_lshl_b32 s33, s2, 10
s_cmp_lt_u32 s2, 128
s_cselect_b32 s43, s33, {BIG}
s_add_u32 s33, s33, 0x40000
s_cmp_eq_u32 s34, 1
s_cselect_b32 s33, s33, {BIG}
s_cselect_b32 s44, -1, 0
s_cmp_eq_u32 s34, 0
s_cselect_b32 s33, s43, s33
v_mov_b32 v120, s44
v_mov_b32 v121, s44
v_mov_b32 v122, s44
v_mov_b32 v123, s44
buffer_store_dwordx4 v[120:123], v3, s[56:59], s33 offen''')
    IP = opt.get('ip', 0)
    if not IP: k(f'''s_mul_i32 s33, s3, {8*TP}
s_add_u32 s33, s33, {WS_U}
s_add_u32 s56, s40, s33
s_addc_u32 s57, s41, 0
s_mov_b32 s58, {8*TP}
v_mov_b32 v116, -1
v_mov_b32 v117, -1
v_mov_b32 v118, -1
v_mov_b32 v119, -1
v_lshlrev_b32 v125, 4, v0
s_movk_i32 s33, 0x2000
buffer_store_dwordx4 v[116:119], v125, s[56:59], 0 offen
buffer_store_dwordx4 v[116:119], v125, s[56:59], s33 offen''')
    for _ in range(1 if IP else 3): vm.issue('f')
    if not opt.get('nopf'):
        code_srd(k, 68, CS, 'code_end')
        k(f'''s_cmp_ge_u32 s34, 6
s_cselect_b32 s70, s70, 0
s_bfe_u32 s33, s2, 0x30003
s_lshl_b32 s33, s33, 13
s_and_b32 s43, s34, 1
s_lshl_b32 s43, s43, 16
s_add_u32 s33, s33, s43
s_add_u32 s33, s33, {8192*CP0}
v_lshlrev_b32 v100, 7, v2
buffer_load_ubyte v122, v100, s[68:71], s33 offen''')
        vm.issue('c')
    k(f'''s_bitcmp1_b32 s34, 0
s_cselect_b32 s68, s54, s52
s_cselect_b32 s69, s55, s53
s_cmp_ge_u32 s34, 6
s_cselect_b32 s70, {0 if opt.get('xT') else 2048*642}, 0
s_mov_b32 s71, 0x00020000
v_and_b32 v100, 7, v2
v_lshlrev_b32 v100, 7, v100
v_min_u32 v100, 671, v100
v_lshrrev_b32 v102, 3, v2
v_mul_u32_u24 v102, {8*642}, v102
v_add_u32 v100, v100, v102
s_and_b32 s33, s2, 7
s_lshr_b32 s37, s2, 3
s_lshl_b32 s37, s37, 6
s_add_u32 s33, s33, s37
s_mul_i32 s33, s33, 642
buffer_load_ubyte v123, v100, s[68:71], s33 offen''')
    vm.issue('c')
    if WT0 and WP == 1: wt0()
    if PAX == 1:
        k(f's_cmp_lt_u32 s34, s101\ns_cbranch_scc1 {PA}')
        prepa()
        k(f'{PA}:')
    if SB: xwait()
    if WT0 and WP == 2: wt0()
    i0 = len(k.lines)
    for i in range(5):
        k(f'v_lshlrev_b32 v{10+2*i}, 16, v{4+i}\nv_and_b32 v{11+2*i}, 0xffff0000, v{4+i}')
    k('''v_pk_add_f32 v[20:21], v[10:11], v[12:13]
v_pk_mul_f32 v[22:23], v[10:11], v[10:11]
v_pk_add_f32 v[24:25], v[14:15], v[16:17]
v_pk_fma_f32 v[22:23], v[12:13], v[12:13], v[22:23]
v_pk_add_f32 v[20:21], v[20:21], v[18:19]
v_pk_fma_f32 v[22:23], v[14:15], v[14:15], v[22:23]
v_pk_add_f32 v[20:21], v[20:21], v[24:25]
v_pk_fma_f32 v[22:23], v[16:17], v[16:17], v[22:23]
v_pk_fma_f32 v[22:23], v[18:19], v[18:19], v[22:23]
v_add_f32 v20, v20, v21
v_add_f32 v22, v22, v23''')
    wave_reduce2(k, 20, 22, 36, 37)
    ln_stats(k, 36, 37, 640, 20, 22, 24)
    (ln_apply2 if opt.get('lean', 0) & 2 else ln_apply)(k, 10, 10, 20, 22, 4)
    k('''ds_write_b64 v58, v[4:5]
ds_write_b64 v58, v[6:7] offset:512
ds_write_b32 v59, v8 offset:1024
s_waitcnt lgkmcnt(0)
ds_read_b64_tr_b16 v[4:5], v54
ds_read_b64_tr_b16 v[6:7], v55
ds_read_b64_tr_b16 v[8:9], v54 offset:32
ds_read_b64_tr_b16 v[10:11], v55 offset:32
s_waitcnt lgkmcnt(2)''')
    k(f'''{MFMA} v[12:15], v[4:7], v[64:67], 0
{MFMA} v[16:19], v[4:7], v[68:71], 0
s_waitcnt lgkmcnt(0)
{MFMA} v[20:23], v[8:11], v[64:67], 0
{MFMA} v[24:27], v[8:11], v[68:71], 0''')
    cmul_planar(k, 12, 16, 72, 76, 28, 32, 44)
    cmul_planar(k, 20, 24, 80, 84, 36, 40, 44)
    for t in range(2):
        for h in range(2):
            re_ = 28 + 8 * t + 2 * h; im = 32 + 8 * t + 2 * h; o = 2 * t + h
            k(f'''v_cvt_pk_bf16_f32 v{4+o}, v{re_}, v{re_+1}
v_cvt_pk_bf16_f32 v{8+o}, v{im}, v{im+1}
v_cvt_pk_bf16_f32 v{12+o}, -v{im}, -v{im+1}
v_cvt_pk_bf16_f32 v{16+o}, v{re_}, -v{re_+1}
v_cvt_pk_bf16_f32 v{20+o}, v{im}, -v{im+1}
v_cvt_pk_bf16_f32 v{24+o}, -v{im}, v{im+1}''')
    k(f'''{MFMA} v[28:31], v[88:91], v[4:7], 0
{MFMA} v[32:35], v[92:95], v[4:7], 0
{MFMA} v[36:39], v[88:91], v[16:19], 0
{MFMA} v[40:43], v[92:95], v[16:19], 0
{MFMA} v[28:31], v[92:95], v[12:15], v[28:31]
{MFMA} v[32:35], v[88:91], v[8:11], v[32:35]
{MFMA} v[36:39], v[92:95], v[24:27], v[36:39]
{MFMA} v[40:43], v[88:91], v[20:23], v[40:43]''')
    k('''s_mov_b32 exec_lo, 0x07ff07ff
s_mov_b32 exec_hi, 0x07ff07ff''')
    for r in range(4):
        k(f'ds_write2_b32 v60, v{28+r}, v{32+r} offset0:{40*r} offset1:{40*r+1}')
    for r in range(4):
        k(f'v_xor_b32 v{40+r}, 0x80000000, v{40+r}')
    for r in range(4):
        k(f'ds_write2_b32 v61, v{36+r}, v{40+r} offset0:{40*(3-r)} offset1:{40*(3-r)+1}')
    k('s_mov_b64 exec, -1')
    srd_from(k, 68, 40, 41, WS_FL, FL_BYTES)
    if PAX: vw2(int(re.search(r'\d+', vm.wait('f')).group(0)))
    else: k(vm.wait('f'))
    k('s_waitcnt lgkmcnt(0)')
    st(k, 7, 2); st(k, 5, 2)
    k('s_barrier')
    k(f'''v_cmp_gt_u32 vcc, {TP//4}, v0
s_and_saveexec_b64 s[44:45], vcc
s_cbranch_execz {TAIL}
v_lshlrev_b32 v1, 3, v0
v_lshlrev_b32 v2, 2, v0''')
    for n in range(8):
        k(f'ds_read_b64 {vr(4+2*n,2)}, v1 offset:{EX0+n*EXP}')
    k(f'''v_mov_b32 v40, 0x3f3504f3
s_mul_i32 s46, s3, {8*TP}
s_add_u32 s47, s46, {3*TP}
s_add_u32 s48, s46, {6*TP}
s_waitcnt lgkmcnt(0)
s_barrier''')
    st(k, 7, 3); st(k, 5, 3)
    T = fft8(k, 4, 20, False, 40)
    for k2 in range(8):
        if k2 == 0:
            k(f'v_cvt_pk_bf16_f32 v4, v{T[0]}, v{T[0]+1}')
        else:
            smul(k, T[k2], T[k2], 16 + 2 * k2, 42 + 2 * (k2 & 1))
            k(f'v_cvt_pk_bf16_f32 v{4+k2}, v{T[k2]}, v{T[k2]+1}')
        if IP: k(f'v_and_b32 v{4+k2}, -2, v{4+k2}')
        k(f'buffer_store_dword v{4+k2}, v2, s[8:11], s{46+k2//3} offen offset:{(k2%3)*TP}')
    k('s_mov_b64 exec, -1')
    st(k, 7, 4)
    k(f'''s_bfe_u32 s42, s3, 0x30001
s_lshl_b32 s42, s42, 7
s_lshr_b32 s43, s3, 4
s_lshl_b32 s43, s43, 3
s_add_u32 s42, s42, s43
s_and_b32 s43, s3, 1
s_lshl_b32 s43, s43, 2
s_add_u32 s42, s42, s43
s_add_u32 s42, s42, {FT}
v_lshlrev_b32 v12, 6, v3
v_mov_b32 v13, {MAGIC}
v_mov_b32 v127, 1
s_mov_b64 exec, 1
s_waitcnt vmcnt(0)
ds_add_rtn_u32 v127, v126, v127
s_waitcnt lgkmcnt(0)
v_readfirstlane_b32 s43, v127
s_mov_b64 exec, 0xff
s_and_b32 s43, s43, 0xff
s_cmp_lg_u32 s43, 5
s_cbranch_scc1 {NF}
buffer_store_dword v13, v12, s[68:71], s42 offen
{NF}:
s_mov_b64 exec, -1''')
    st(k, 7, 5)
    CADD = f's_mov_b64 exec, 1\nv_mov_b32 v127, 0x100\nds_add_u32 v126, v127\ns_mov_b64 exec, -1'
    k(f'''v_and_b32 v2, 63, v0
s_cmp_ge_u32 s34, s100
s_cbranch_scc1 {PREPB}
{CADD}
s_branch {J1}
{TAIL}:
s_mov_b64 exec, -1
s_barrier''')
    st(k, 7, 3); st(k, 5, 3)
    k(f's_cmp_lt_u32 s34, s100\ns_cbranch_scc1 {J1}')
    if PAX: k('s_waitcnt vmcnt(0)')
    k(f'{PREPB}:')
    if opt.get('tch') == 2: k(CADD)
    if PL > 3:
        if opt.get('pd'): k(f's_sleep {opt["pd"]}')
        k(f's_cmp_ge_u32 s34, s101\ns_cbranch_scc1 {PB}')
        prepa()
        k(f's_waitcnt vmcnt(0)\n{PB}:')
    i0 = len(k.lines)
    prep_inl(k, 'B', 0, PD, 63, hdr=HDR)
    for j in range(i0, len(k.lines)):
        k.lines[j] = re.sub(r'\bs5([01])\b', lambda m: f's{24+int(m.group(1))}', k.lines[j])
    k(f'''{PD}:
{CADD if not opt.get('tch') else ''}
s_lshl_b32 s42, s33, 2
s_add_u32 s42, s42, {FP}
v_lshlrev_b32 v12, 7, v3
v_mov_b32 v13, {MAGIC}
s_lshl_b32 s33, s3, 6
s_add_u32 s33, s33, 32768
s_load_dwordx16 s[16:31], s[12:13], s33''')
    st(k, 7, 6); st(k, 5, 9)
    k(f'''s_mov_b64 exec, 0xff
s_waitcnt vmcnt(0)
buffer_store_dword v13, v12, s[68:71], s42 offen
s_mov_b64 exec, -1
{CADD if opt.get('tch') == 1 else ''}''')
    st(k, 7, 7)
    for j in range(l0, len(k.lines)):
        l = k.lines[j]
        if l.startswith('buffer_store') and 'sc1' not in l: k.lines[j] = l + ' sc1'
    k(f'{J1}:')
    if WD5:
        k(f's_cmp_lt_u32 s2, {opt.get("wda", 256)}\ns_cselect_b32 s101, 4, 8')
        if WD5 == 32: k(CUT)
    vm = Cnt('vmcnt', 63); vm.issue('q')
    IIM = 'v[112:115]'; IRE = 'v[114:117]'; FIM = 'v[116:119]'; FRE = 'v[118:121]'
    k(f"""v_and_b32 v4, 15, v2
v_lshrrev_b32 v5, 4, v2""")
    k(f"""s_and_b32 s33, s2, 7
s_lshr_b32 s35, s2, 3
v_lshrrev_b32 v7, 2, v2
v_and_b32 v8, 3, v2
v_mul_u32_u24 v6, {16*8*TP}, v7
v_lshl_add_u32 v6, v8, 4, v6
s_lshl_b32 s36, s34, 4
s_add_u32 s36, s36, s33
s_mul_i32 s36, s36, {TP}
s_lshl_b32 s37, s35, 6
s_add_u32 s36, s36, s37
s_add_u32 s42, s36, {8*TP}
s_and_b32 s37, s33, {1-IP}
s_lshl_b32 s37, s37, 2
s_sub_u32 s43, s36, s37
s_sub_u32 s44, s42, s37
s_lshl_b32 s45, s33, 10
s_lshl_b32 s49, s33, 11
s_add_u32 s49, s49, {FP}
s_lshl_b32 s37, s34, 7
s_add_u32 s45, s45, s37
s_add_u32 s45, s45, {FT}
v_and_b32 v9, 31, v2
v_lshlrev_b32 v9, 2, v9""")
    srd_from(k, 60, 40, 41, WS_T, TU_BYTES)
    srd_from(k, 8, 40, 41, WS_T if IP else WS_U, TU_BYTES)
    srd_from(k, 64, 40, 41, WS_WI, WI_BYTES)
    g1id(k, 58, 57)
    k(f"""s_and_b32 s58, s58, 15
s_mul_i32 s58, s58, {140*1024}
s_mov_b32 s56, s32
s_sub_u32 s57, s32, {BB}
s_add_u32 s57, s57, s58""")
    bops = []
    for i in range(14):
        o = f's_add_u32 m0, s56, {1024*(i-i%4)}\n'
        if i % 4 == 0 and i: o += 's_add_u32 s57, s57, 4096\n'
        bops.append(o + f'buffer_load_dwordx4 v3, s[64:67], s57 offen offset:{1024*(i%4)} lds')
    KW = opt.get('KW', [0, 0, 0]); K9 = opt.get('K9', 8); KT = opt.get('KT', 0); KA = opt.get('KA', 0)
    wrest = list(q.ops)
    nw1 = min(len(wrest), KA + KT + KW[0] + KW[1])
    rest = wrest[nw1:] + bops
    if opt.get('bo'): rest = bops + wrest[nw1:]
    post = rest[K9:]
    assert not opt.get('bo') and K9 <= len(wrest) - nw1 and 8 * opt.get('wte', 0) <= nw1
    if opt.get('wt67'): assert K9 == len(wrest) - nw1
    assert len(post) <= KW[2], (len(post), KW)

    def pld():
        k('buffer_load_dwordx4 v[24:27], v3, s[68:71], s49 offen sc1\nbuffer_load_dwordx4 v[28:31], v3, s[68:71], s49 offen offset:736 sc1')

    def pchk(n):
        LP = k.label('lp'); LD = k.label('ld'); L1 = k.label('l1')
        k(f's_mov_b32 s43, {SPIN}\ns_waitcnt vmcnt({n})\ns_branch {L1}\n{LP}:\ns_sleep 4')
        pld()
        k(f'''s_waitcnt vmcnt(0)
{L1}:
v_min3_u32 v13, v24, v25, v26
v_max3_u32 v14, v24, v25, v26
v_min3_u32 v13, v13, v27, v28
v_max3_u32 v14, v14, v27, v28
v_min3_u32 v13, v13, v29, v30
v_max3_u32 v14, v14, v29, v30
v_min_u32 v13, v13, v31
v_max_u32 v14, v14, v31
v_xor_b32 v13, {MAGIC}, v13
v_xor_b32 v14, {MAGIC}, v14
v_or_b32 v24, v13, v14
v_cmp_ne_u32 vcc, 0, v24
s_cbranch_vccz {LD}
s_sub_u32 s43, s43, 1
s_cmp_lg_u32 s43, 0
s_cbranch_scc1 {LP}
{LD}:''')
    k(f's_cmp_ge_u32 s2, 168\ns_cbranch_scc1 {IDLE}')
    q = Bulk(k, wrest[:nw1])
    k(f"""v_mul_u32_u24 v10, {4*P}, v8
v_lshl_add_u32 v10, v7, 2, v10
s_lshl_b32 s37, s34, 7
v_add_u32 v10, s37, v10
v_lshlrev_b32 v12, 6, v4
v_lshl_add_u32 v12, v5, 4, v12
s_mul_i32 s37, s34, {2*P}
v_add_u32 v12, s37, v12""")
    k(f"""ds_read_b128 v[96:99], v3 offset:{TB1}
ds_read_b128 v[100:103], v3 offset:{TB1+1024}
ds_read_b128 v[104:107], v3 offset:{TB1+2048}
ds_read_b128 v[108:111], v3 offset:{TB1+3072}
ds_read_b128 v[118:121], v3 offset:{TB1+4096}
ds_read_b64 v[116:117], v3 offset:{TB1+5120}
ds_read_b128 v[112:115], v3 offset:{TB1+7168}""")
    st(k, 7, 6)
    assert opt.get('xs')
    LP = k.label('lp'); LD = k.label('ld'); L1 = k.label('l1')
    PL = 'buffer_load_dword v13, v9, s[68:71], s45 offen sc1'
    q(KA, None, 124)
    WLD = """buffer_load_dwordx3 v[80:82], v14, s[52:55], s39 offen
buffer_load_dwordx3 v[88:90], v14, s[4:7], s39 offen
buffer_load_dwordx3 v[84:86], v14, s[52:55], s37 offen
buffer_load_dwordx3 v[92:94], v14, s[4:7], s37 offen
s_and_b32 s39, s33, 1
s_lshl_b32 s39, s39, 4""" if IP else """buffer_load_dwordx2 v[64:65], v14, s[52:55], s39 offen
buffer_load_dwordx2 v[68:69], v14, s[4:7], s39 offen
buffer_load_dwordx2 v[66:67], v14, s[52:55], s37 offen
buffer_load_dwordx2 v[70:71], v14, s[4:7], s37 offen"""
    WF = opt.get('wf', 0)
    WA = f'''s_lshl_b32 s39, s34, 4
s_add_u32 s39, s39, s33
s_mul_i32 s39, s39, 642
s_lshl_b32 s37, s35, 5
s_add_u32 s39, s39, s37
s_and_b32 s39, s39, -4
{f"s_mov_b32 s39, {BIG}" if opt.get('xW') else ""}
s_add_u32 s37, s39, {8*642}
v_mul_u32_u24 v14, {16*8*642}, v7
v_lshl_add_u32 v14, v8, 3, v14
s_mov_b32 s4, s54
s_mov_b32 s5, s55
s_mov_b32 s54, {2048*642}
s_mov_b32 s55, 0x00020000
s_mov_b32 s6, {2048*642}
s_mov_b32 s7, 0x00020000
{WLD}
s_mov_b32 s47, 0x05040100
s_mov_b32 s48, 0x07060302'''

    def wput():
        if IP:
            for j in range(8): k(f'v_alignbit_b32 v{64+j}, v{81+4*(j//2)+(j&1)}, v{80+4*(j//2)+(j&1)}, s39')
        for j in range(8):
            k(f'v_perm_b32 v{72+j}, v{68+j//2}, v{64+j//2}, s{47+(j&1)}')
            k(f'ds_write_b32 v10, v{72+j} offset:{W0+(j&3)*P+64*(j>>2)}')
    if WF:
        if opt.get('wd0'): k(f's_sleep {opt["wd0"]}')
        k(WA)
    if opt.get('td4') is not None:
        LS = k.label('ls')
        k(f's_sleep {opt["td4"]}\ns_bitcmp1_b32 {opt.get("tdm", 0x30)}, s34\ns_cbranch_scc1 {LS}\ns_sleep {opt["td"]-opt["td4"]}\n{LS}:')
    elif opt.get('td'): k(f's_sleep {opt["td"]}')
    if opt.get('tdb'): k('s_barrier')
    if WF:
        k('s_waitcnt vmcnt(0)')
        st(k, 7, 6)
        k(PL)
        wput()
    else: k(PL + '\n' + WA)
    k(f'''s_mov_b32 s46, {SPIN}
s_waitcnt vmcnt({0 if WF else 4})
s_branch {L1}
{LP}:
{f"s_sleep {opt['tsl']}" if opt.get('tsl') else ""}
{PL}
s_waitcnt vmcnt(0)
{L1}:
v_cmp_ne_u32 vcc, {MAGIC}, v13
s_cbranch_vccz {LD}
s_sub_u32 s46, s46, 1
s_cmp_lg_u32 s46, 0
s_cbranch_scc1 {LP}
{LD}:''')
    st(k, 7, 7)
    vm.done = len(vm.tags)
    for i in range(2):
        k(f'buffer_load_dwordx4 {vr(16+4*i,4)}, v6, s[60:63], s{43+i} offen'); vm.issue(f'T{i}')
    if not WF:
        k('s_waitcnt vmcnt(2)')
        wput()
    q(KT, vm, 124, 'q')
    for i in range(2):
        k(vm.wait(f'T{i}'))
        if i == 0: st(k, 4, 1); st(k, 7, 8)
        for j in range(4):
            k(f'ds_write_b32 v10, v{16+4*i+j} offset:{j*P+64*i}')
    k('s_waitcnt lgkmcnt(0)\ns_barrier')
    NC = 2
    i0 = len(k.lines)
    k(f"""ds_read_b128 v[16:19], v12
ds_read_b128 v[20:23], v12 offset:{P}
ds_read_b128 v[32:35], v12 offset:{W0}
ds_read_b128 v[36:39], v12 offset:{W0+P}
s_waitcnt lgkmcnt(3)
{MFMA} v[48:51], v[16:19], v[96:99], 0
{MFMA} v[52:55], v[16:19], v[100:103], 0
s_waitcnt lgkmcnt(2)
{MFMA} v[56:59], v[20:23], v[96:99], 0
{MFMA} v[60:63], v[20:23], v[100:103], 0
s_waitcnt lgkmcnt(0)""")
    for c in range(NC):
        for r in range(4):
            k(f'v_lshlrev_b32 v{64+8*c+r}, 16, v{32+4*c+r}\nv_and_b32 v{68+8*c+r}, 0xffff0000, v{32+4*c+r}')

    def pack(c, re, im):
        k(f"""v_cvt_pk_bf16_f32 v{16+4*c}, v{re}, v{re+1}
v_cvt_pk_bf16_f32 v{17+4*c}, v{re+2}, v{re+3}
v_cvt_pk_bf16_f32 v{18+4*c}, v{im}, v{im+1}
v_cvt_pk_bf16_f32 v{19+4*c}, v{im+2}, v{im+3}""")
    for c in range(NC):
        cmul_planar(k, 48 + 8 * c, 52 + 8 * c, 104, 108, 80, 84, 88)
        pack(c, 80, 84)
        k(f'{MFMA} {vr(48+8*c,4)}, {FRE}, {vr(16+4*c,4)}, 0')
        k(f'{MFMA} {vr(52+8*c,4)}, {FIM}, {vr(16+4*c,4)}, 0')
    weave_in(k, i0, q, KW[0], vm, 124)
    st(k, 4, 2)
    PC7 = opt.get('pc7', 0)
    def only7(f):
        L = k.label('o7')
        k(f's_cmp_lt_u32 s34, 7\ns_cbranch_scc1 {L}')
        f()
        k(f'{L}:')
    if PC7 == 1: only7(pld)
    i0 = len(k.lines)
    for c in range(NC):
        cmul_planar(k, 48 + 8 * c, 52 + 8 * c, 64 + 8 * c, 68 + 8 * c, 80, 84, 88)
        pack(c, 80, 84)
        k(f'{MFMA} {vr(48+8*c,4)}, {vr(16+4*c,4)}, {IRE}, 0')
        k(f'{MFMA} {vr(52+8*c,4)}, {vr(16+4*c,4)}, {IIM}, 0')
    for c in range(NC):
        cmul_planar(k, 48 + 8 * c, 52 + 8 * c, 104, 108, 80, 84, 88, conj=True)
        pack(c, 80, 84)
        k(f'{MFMA} {vr(48+8*c,4)}, {IRE}, {vr(16+4*c,4)}, 0')
        k(f'{MFMA} {vr(52+8*c,4)}, {IIM}, {vr(16+4*c,4)}, 0')
    weave_in(k, i0, q, KW[1], vm, 124)
    assert not q.ops
    if PC7 == 0: pld()
    if PC7 == 2: only7(pld)
    for c in range(NC):
        for r in range(4):
            k(f'v_cvt_pk_bf16_f32 v{16+4*c+r}, v{48+8*c+r}, v{52+8*c+r}')
        if IP:
            for r in range(4): k(f'v_or_b32 v{16+4*c+r}, 1, v{16+4*c+r}')
        k(f'ds_write_b128 v12, {vr(16+4*c,4)} offset:{c*P}')
    k('s_waitcnt lgkmcnt(0)\ns_barrier')
    for i in range(2):
        for j in range(4):
            k(f'ds_read_b32 v{16+4*i+j}, v10 offset:{j*P+64*i}')
    for i in range(NT2): k(f'ds_read_b128 {vr(64+4*i,4)}, v3 offset:{TB2+1024*i}')
    for i in range(2):
        k(f's_waitcnt lgkmcnt({4+NT2-4*i})')
        k(f'buffer_store_dwordx4 {vr(16+4*i,4)}, v6, s[8:11], {["s36","s42"][i]} offen sc1')
    st(k, 4, 3); st(k, 7, 9)
    st(k, 8, 1)
    if opt.get('ob2'): k('s_barrier')
    st(k, 8, 2)
    if PC7: only7(lambda: pchk(2 + (KW[1] if PC7 == 1 else 0)))
    else: pchk(2)
    st(k, 8, 3)
    Bulk(k, rest[:K9])(99, None, 124)
    st(k, 8, 4)
    k(f's_branch {JOIN}\n{IDLE}:')
    IT = opt.get('it', 2)
    G2M = opt.get('g2m', 0)
    if IT:
        LP = k.label('lp'); LD = k.label('ld')
        k(f'''s_cmp_ge_u32 s34, 3
s_cbranch_scc1 {LD}x
s_sub_u32 s43, s35, 21
s_and_b32 s44, s33, {1-G2M}
s_mul_i32 s44, s44, 11
s_add_u32 s43, s43, s44
s_mul_i32 s44, s34, {22>>G2M}
s_add_u32 s44, s44, s43
s_lshr_b32 s46, s33, {1-G2M}
s_lshl_b32 s46, s46, {18-G2M}
v_lshlrev_b32 v10, 7, v2
s_mov_b32 s43, {SPIN}
{LP}:
ds_read_b32 v11, v126
s_waitcnt lgkmcnt(0)
v_cmp_gt_u32 vcc, 0x800, v11
s_cbranch_vccz {LD}
s_sleep 1
s_sub_u32 s43, s43, 1
s_cmp_lg_u32 s43, 0
s_cbranch_scc1 {LP}
{LD}:''')
        if opt.get('itd'): k(f's_sleep {opt["itd"]}')
        for r in range(opt.get('itn', 4)):
            k(f'''s_and_b32 s47, s44, {31>>G2M}
s_lshl_b32 s47, s47, 13
s_lshr_b32 s48, s44, {5-G2M}
s_lshl_b32 s48, s48, 20
s_add_u32 s47, s47, s48
s_add_u32 s47, s47, s46
buffer_load_ubyte v11, v10, s[72:75], s47 offen
s_add_u32 s44, s44, {66>>G2M}''')
        if opt.get('it2'):
            k(f'''s_and_b32 s47, s33, 1
s_mul_i32 s47, s47, 22
s_sub_u32 s44, s44, s47
s_sub_u32 s44, s44, {4*66-11}''')
            if opt['it2'] == 2: k('s_waitcnt vmcnt(0)')
            for r in range(4):
                k(f'''s_and_b32 s47, s44, 31
s_lshl_b32 s47, s47, 13
s_lshr_b32 s48, s44, 5
s_lshl_b32 s48, s48, 20
s_add_u32 s47, s47, s48
s_add_u32 s47, s47, s46
buffer_load_ubyte v11, v10, s[72:75], s47 offen
s_add_u32 s44, s44, 66''')
        k(f'{LD}x:')
    k('s_barrier')
    st(k, 8, 1)
    IPL = opt.get('ipl', nw1)
    Bulk(k, wrest[:IPL])(99, None, 124)
    if PC7: only7(pld)
    Bulk(k, wrest[IPL:nw1])(99, None, 124)
    st(k, 8, 2)
    for i in range(NT2): k(f'ds_read_b128 {vr(64+4*i,4)}, v3 offset:{TB2+1024*i}')
    if PC7: only7(lambda: pchk(nw1 - IPL))
    else:
        pld()
        pchk(0)
    st(k, 8, 3)
    Bulk(k, rest[:K9])(99, None, 124)
    st(k, 8, 4)
    if opt.get('idl'): k(f's_sleep {opt["idl"]}')
    k(f'{JOIN}:')
    ph_k2b(k, opt, post, 0, True)


def clean(k):
    NC_ = k.label('nc')
    k(f'''s_cmp_lg_u32 s34, 0
s_cbranch_scc1 {NC_}
s_bfe_u32 s42, s2, 0x30004
s_lshl_b32 s42, s42, 7
s_and_b32 s43, s2, 7
s_lshl_b32 s43, s43, 4
s_add_u32 s42, s42, s43
s_lshr_b32 s43, s2, 7
s_lshl_b32 s43, s43, 3
s_add_u32 s42, s42, s43
s_bfe_u32 s43, s2, 0x10003
s_lshl_b32 s43, s43, 2
s_add_u32 s42, s42, s43
s_add_u32 s42, s42, {FT}
s_lshl_b32 s43, s2, 3
s_add_u32 s43, s43, {FP}
v_lshlrev_b32 v4, 6, v3
v_lshlrev_b32 v5, 7, v3
v_mov_b32 v6, 0
v_mov_b32 v7, 0
s_mov_b64 exec, 0xff
buffer_store_dword v6, v4, s[68:71], s42 offen sc1
buffer_store_dwordx2 v[6:7], v5, s[68:71], s43 offen sc1
s_mov_b64 exec, -1
{NC_}:''')


def gen_f(opt):
    k = Kern('kf_kernel', 256, 512, 163840, nvgpr=128, nagpr=128, nsgpr=102)
    END = k.label('end'); G2 = k.label('g2'); G3 = k.label('g3')
    k(f's_cmp_ge_u32 s2, 256\ns_cbranch_scc1 {END}')
    k.stamp(True)
    wb = Bulk(k, g2_wops())
    ph_k01(k, opt, wb)
    ph_g1t(k, opt, G2, wb)
    k(f'{G2}:')
    st(k, 0, 6)
    vm = Cnt('vmcnt', 63); vm.issue('w')
    g3_wo_setup(k)
    ph_g2(k, opt, G3, vm, True, g3_wo_ops())
    k(f'{G3}:')
    ph_g3(k, opt, True)
    clean(k)
    k.finish(END)
    return [k]
```

```python
from asmlib import *
import gen_fft
from gen_fft import vr, sr, srd_from, tab_srd, MFMA, WS_H, WS_HN, WS_U, WS_T, X_BYTES, TU_BYTES, TP, fft8, smul, cmul_planar, wave_reduce2, ln_stats, ln_apply
from gen3 import *

WS_FL = 0x1800000
FL_BYTES = 0x40000
FLH = 0; FL2 = 0x8000; FL3 = 0x10000; FLU = 0x18000
FS = 7
WS_PX = 0x1840000
PX_BYTES = 64 * 16 * 256
WS_WS = 0x2000000
WSP_BYTES = 8 << 20
Z2N_BYTES = 64 * 57344
A2_BYTES = 4 << 20
SPIN = 400000
PV = 0
ROT = 0
W128 = 0
G1S = 0
GV = 0
HP = 10368
HN_BYTES = 256 * HP
MF16 = 'v_mfma_f32_16x16x16_bf16'
BIG = '0x7f000000'


def ln_apply2(k, f, n, vm, vrs, out):
    k(f'v_mul_f32 v{vm}, v{vm}, v{vrs}')
    for i in range(0, n, 2):
        k(f'v_pk_fma_f32 {vr(f+i,2)}, {vr(f+i,2)}, {vr(vrs,2)}, {vr(vm,2)} op_sel_hi:[1,0,0] neg_lo:[0,0,1] neg_hi:[0,0,1]')
    for i in range(0, n, 2):
        k(f'v_cvt_pk_bf16_f32 v{out+i//2}, v{f+i}, v{f+i+1}')


def st(k, view, slot):
    if Kern.prof and PV == view:
        k.nst = slot; k.stamp()


def poll(k, srd, soff, va, vd, sc):
    LP = k.label('lp'); LD = k.label('ld')
    k(f'''s_mov_b32 s{sc}, {SPIN}
{LP}:
buffer_load_dword v{vd}, v{va}, {sr(srd,4)}, {soff} offen sc1
s_waitcnt vmcnt(0)
v_cmp_eq_u32 vcc, 0, v{vd}
s_cbranch_vccz {LD}
s_sub_u32 s{sc}, s{sc}, 1
s_cmp_lg_u32 s{sc}, 0
s_cbranch_scc1 {LP}
{LD}:''')


def map_g2(k):
    if gen_fft.OPT.get('g2m'):
        k('''s_and_b32 s35, s2, 7
s_lshl_b32 s35, s35, 2
s_bfe_u32 s36, s2, 0x20003
s_add_u32 s35, s35, s36
s_lshr_b32 s36, s2, 5''')
        return
    k('''s_and_b32 s33, s2, 7
s_lshr_b32 s42, s2, 3
s_lshr_b32 s35, s33, 1
s_lshl_b32 s35, s35, 3
s_and_b32 s36, s42, 7
s_add_u32 s35, s35, s36
s_and_b32 s36, s33, 1
s_lshl_b32 s36, s36, 2
s_lshr_b32 s42, s42, 3
s_add_u32 s36, s36, s42''')


def g1id(k, d, t):
    m = gen_fft.OPT.get('g1m', 0)
    k(f'''s_bfe_u32 s{d}, s2, {hex(((3-m) << 16) | m)}
s_lshl_b32 s{d}, s{d}, {1+m}
s_lshr_b32 s{t}, s2, {7-m}
s_add_u32 s{d}, s{d}, s{t}
s_lshl_b32 s{d}, s{d}, {m}
s_and_b32 s{t}, s2, {(1 << m) - 1}
s_add_u32 s{d}, s{d}, s{t}
s_lshl_b32 s{d}, s{d}, {4-m}
s_bfe_u32 s{t}, s2, {hex(((4-m) << 16) | 3)}
s_add_u32 s{d}, s{d}, s{t}''')


def w_setup(k, t0, t1):
    G2M = gen_fft.OPT.get('g2m', 0)
    k(f'''s_mov_b32 s74, {2048*4096}
s_mov_b32 s75, 0x00020000
s_bfe_u32 s{t0}, s2, {"0x30000" if G2M else "0x20001"}
s_lshl_b32 s{t0}, s{t0}, {2 if G2M else 3}
s_bfe_u32 s{t1}, s2, {"0x20003" if G2M else "0x30003"}
s_add_u32 s{t0}, s{t0}, s{t1}
s_lshl_b32 s50, s{t0}, 15
s_lshr_b32 s{t0}, s34, 2
s_lshl_b32 s{t0}, s{t0}, 11
s_and_b32 s{t1}, s34, 3
s_lshl_b32 s{t1}, s{t1}, 7
s_add_u32 s50, s50, s{t0}
s_add_u32 s50, s50, s{t1}
s_add_u32 s51, s50, 16384''')
    if ROT:
        k(f'''s_bfe_u32 s{t0}, s2, 0x10006
s_lshl_b32 s{t0}, s{t0}, {21 if G1S else 14}
s_add_u32 s50, s50, s{t0}
s_bfe_u32 s{t0}, s2, 0x10007
s_lshl_b32 s{t0}, s{t0}, 22
s_add_u32 s50, s50, s{t0}
s_mov_b32 s51, s50''')
    if W128: k(f's_mov_b32 s82, s50\ns_add_u32 s51, s50, {0x100000 if G1S else 4096}')


def w_vaddr(k, d, t):
    if W128:
        k(f'''v_and_b32 v{d}, 112, v3
v_bfe_u32 v{t}, v3, 7, 1
v_lshl_add_u32 v{d}, v{t}, {14 if G1S else 13}, v{d}
v_lshrrev_b32 v{t}, 8, v3
v_lshl_add_u32 v{d}, v{t}, 9, v{d}''')
        return
    k(f'''v_and_b32 v{d}, 48, v3
v_bfe_u32 v{t}, v3, 6, 2
v_lshl_add_u32 v{d}, v{t}, 12, v{d}
v_lshrrev_b32 v{t}, 8, v3
v_lshl_add_u32 v{d}, v{t}, 9, v{d}''')


def g2_wops(fl=''):
    ops = []
    if W128:
        for g in range(4):
            for n in range(4):
                for ih in range(2):
                    o = f'buffer_load_dwordx4 {ar(16*(4*ih+n)+4*g,4)}, @, s[72:75], s{50+ih} offen{fl}'
                    sn, si, su = (4096, 0x100000, 2 << 20) if G1S else (0x100000, 4096, 16384)
                    if ih and n < 3: o += f'\ns_add_u32 s50, s50, {sn}\ns_add_u32 s51, s51, {sn}'
                    if ih and n == 3 and g < 3: o += f'\ns_xor_b32 s50, s82, {((g+1)&1)*su + ((g+1)>>1)*(4<<20)}\ns_add_u32 s51, s50, {si}'
                    ops.append(o)
        return ops
    if ROT:
        for g in range(4):
            for n in range(4):
                for hi in range(2):
                    o = f'buffer_load_dwordx4 {ar(16*(4*hi+n)+4*g,4)}, @, s[72:75], s50 offen offset:{64*hi}{fl}'
                    if hi and n < 3: o += '\ns_add_u32 s50, s50, 0x100000'
                    if hi and n == 3 and g < 3: o += f'\ns_xor_b32 s50, s51, {((g+1)&1)*16384 + ((g+1)>>1)*(4<<20)}'
                    ops.append(o)
        return ops
    for n2 in range(8):
        for u in range(2):
            for hi in range(2):
                o = f'buffer_load_dwordx4 {ar(16*(4*hi+(n2&3))+4*(2*(n2>>2)+u),4)}, @, s[72:75], s{50+u} offen offset:{64*hi}{fl}'
                if u and hi and n2 < 7: o += '\ns_add_u32 s50, s50, 0x100000\ns_add_u32 s51, s51, 0x100000'
                ops.append(o)
    return ops


def w_trans(k, vw, vrd, groups=None, ts=42, priv=False, base=0, mid=None):
    PT = 520
    if (groups is not None and not groups) or gen_fft.OPT.get('nowt'): return
    if W128:
        k(f's_add_u32 s{ts}, s32, 3072' if priv else f's_and_b32 s{ts}, s34, 3\ns_mul_i32 s{ts}, s{ts}, 4160')
        if base: k(f's_add_u32 s{ts}, s{ts}, {base}')
        k(f'''v_lshrrev_b32 v{vw}, 1, v3
v_add_u32 v{vw}, s{ts}, v{vw}
v_bfe_u32 v{vrd}, v3, 4, 3
v_mul_u32_u24 v{vrd}, {PT-8}, v{vrd}
v_add_u32 v{vrd}, v{vw}, v{vrd}''')
        for tt in range(4):
            if groups is not None and tt not in groups: continue
            for h in range(2):
                if mid: mid(2 * (groups[-1] - tt) + 2 - h)
                R = lambda i: ar(16 * i + 4 * tt + 2 * h, 2)
                for i in range(8): k(f'ds_write_b64 v{vw}, {R(i)} offset:{PT*i}')
                for c in range(8): k(f'ds_read_b64 {R(c)}, v{vrd} offset:{8*c}')
        return
    k(f'''s_mul_i32 s{ts}, s34, 2560
v_lshrrev_b32 v{vw}, 1, v3
v_add_u32 v{vw}, s{ts}, v{vw}
v_bfe_u32 v{vrd}, v3, 4, 2
v_mul_u32_u24 v{vrd}, {PT-8}, v{vrd}
v_add_u32 v{vrd}, v{vw}, v{vrd}''')
    for tt in range(4):
        for hi in range(2):
            if groups is not None and tt not in groups: continue
            for h in range(2):
                R = lambda i: ar(16 * (4 * hi + i) + 4 * tt + 2 * h, 2)
                for i in range(4): k(f'ds_write_b64 v{vw}, {R(i)} offset:{PT*i}')
                for c in range(4): k(f'ds_read_b64 {R(c)}, v{vrd} offset:{8*c}')


def w_trans128(k, vw, vrd, base, ts, groups, mid=None):
    PT = 1040
    if not groups: return
    k(f'''s_and_b32 s{ts}, s34, 3
s_mul_i32 s{ts}, s{ts}, {8*PT}
s_add_u32 s{ts}, s{ts}, {base}
v_add_u32 v{vw}, s{ts}, v3
v_bfe_u32 v{vrd}, v3, 4, 3
v_mul_u32_u24 v{vrd}, {PT-16}, v{vrd}
v_add_u32 v{vrd}, v{vw}, v{vrd}''')
    for tt in groups:
        R = lambda i: ar(16 * i + 4 * tt, 4)
        for i in range(8):
            if mid: mid(8 * (groups[-1] - tt) + 8 - i)
            k(f'ds_write_b128 v{vw}, {R(i)} offset:{PT*i}')
        for c in range(8): k(f'ds_read_b128 {R(c)}, v{vrd} offset:{16*c}')


def unpk(l):
    m = re.match(r'v_pk_(add|mul)_f32 v\[(\d+):\d+\], v\[(\d+):\d+\], v\[(\d+):\d+\](.*)', l)
    if not m: return [l]
    op, d, a, b, mod = m.group(1), int(m.group(2)), int(m.group(3)), int(m.group(4)), m.group(5).strip()
    if mod == '': return [f'v_{op}_f32 v{d}, v{a}, v{b}', f'v_{op}_f32 v{d+1}, v{a+1}, v{b+1}']
    if mod == 'op_sel:[0,1] op_sel_hi:[1,1]': return [f'v_{op}_f32 v{d}, v{a}, v{b+1}', f'v_{op}_f32 v{d+1}, v{a+1}, v{b+1}']
    raise ValueError(l)


class Fill:
    def __init__(self): self.q = []
    def add(self, pos, f): self.q.append((pos, f))
    def emit(self, k, p, n):
        c = 0
        while self.q and self.q[0][0] <= p and c < n:
            f = self.q.pop(0)[1]
            f() if callable(f) else k(f)
            c += 1
    def flush(self, k): self.emit(k, 10**9, 10**9)


def ph_g2(k, opt, DONE, vm0, fused, post=None, early=None):
    HI = k.label('hi')
    NZ = opt.get('NZ', 14); ZR = 96 - 4 * NZ
    T = 8; S = 24; Z1 = 32
    assert ZR >= 40
    ACC = lambda n, tt: 96 + 16 * (n & 1) + 4 * tt
    SLOT = [0, 1, 2, 3, 4, 0, 1]
    srd_from(k, 8, 40, 41, WS_Z2, Z2N_BYTES)
    k(f'''s_lshl_b32 s56, s36, 3
s_add_u32 s56, s56, s34
s_mul_i32 s56, s56, 57344
v_lshrrev_b32 v2, 4, v3''')
    if opt.get('warm'):
        k('v_lshlrev_b32 v4, 7, v2\ns_mov_b32 s42, s56')
        for i in range(7): k('buffer_load_dword v5, v4, s[8:11], s42 offen\ns_add_u32 s42, s42, 8192')
        k('s_waitcnt vmcnt(0)\ns_barrier\ns_sleep 127')
    st(k, 2, 2)
    if opt.get('clkm'): k('s_memtime s[76:77]'); k.clkm = 1
    if opt.get('zpf'):
        k(f'''v_lshrrev_b32 v4, 3, v2
v_and_b32 v5, 7, v2
v_lshlrev_b32 v5, 7, v5
v_lshl_add_u32 v4, v4, 13, v5
s_and_b32 s42, s35, 7
s_lshl_b32 s42, s42, 10
s_add_u32 s42, s42, s56
s_mov_b32 exec_hi, 0x00ffffff
buffer_load_dword v36, v4, s[8:11], s42 offen
s_mov_b32 exec_hi, -1''')
        vm0.issue('pf')

    def zload(q, vm):
        if q >= 56 or opt.get('noz'): return
        if q and q % 4 == 0: k('s_add_u32 s56, s56, 4096')
        if q == 40: k(f's_cmp_eq_u32 s36, 7\ns_cselect_b32 s56, {BIG}, s56')
        k(f'buffer_load_dwordx4 {vr(ZR+4*(q%NZ),4)}, v3, s[8:11], s56 offen offset:{1024*(q%4)}'); vm.issue(f'z{q}')
    N0 = opt.get('N0', NZ)
    for q in range(N0): zload(q, vm0)
    srd_from(k, 12, 40, 41, WS_Z1, A2_BYTES)
    srd_from(k, 16, 40, 41, WS_Z1 if opt.get('ain') else WS_A, A2_BYTES)
    srd_from(k, 24, 24, 25, 0, 4096)
    PW = opt.get('pw', 0); FZS = opt.get('fzs', 5)
    PWS = f'''s_lshl_b32 s47, s35, 1
s_lshr_b32 s42, s43, 1
s_add_u32 s47, s47, s42
s_lshl_b32 s47, s47, 3
s_add_u32 s47, s47, s36
s_lshl_b32 s47, s47, {FZS+1}
s_add_u32 s47, s47, {FLU}
v_bfe_u32 v40, v3, 4, 1
v_lshlrev_b32 v40, {FZS}, v40''' if PW else ''
    ZQ = opt.get('zq', 0)
    if ZQ: PWS = f'''s_lshl_b32 s48, s36, 5
s_lshr_b32 s42, s35, 1
s_add_u32 s48, s48, s42
s_lshl_b32 s48, s48, {FS-2}
s_and_b32 s42, s35, 1
s_lshl_b32 s42, s42, 1
s_add_u32 s48, s48, s42
s_lshr_b32 s42, s43, 1
s_add_u32 s48, s48, s42
s_and_b32 s42, s43, 1
s_lshl_b32 s42, s42, 2
s_add_u32 s48, s48, s42
s_lshl_b32 s48, s48, 2
s_add_u32 s48, s48, {FLU}
v_bfe_u32 v40, v3, 4, 1
v_lshlrev_b32 v40, {FS+4}, v40
v_mov_b32 v42, 2'''
    G3W = opt.get('g3v', 0) == 3
    G3X = opt.get('g3v', 0) == 4
    G3V = opt.get('g3v', 0) if not (G3W or G3X) else 0
    if G3X: SLOT = [0, 1, 2, 0, 1, 2, 0]
    G3VS = f'''s_lshl_b32 s62, s35, 3
s_add_u32 s61, s62, s36
s_add_u32 s62, s62, s34
s_lshl_b32 s63, s62, 14
s_lshl_b32 s61, s61, {FS}
s_lshl_b32 s62, s62, {FS}
s_lshl_b32 s42, s34, 2
s_add_u32 s61, s61, s42
s_add_u32 s61, s61, {FL3}
s_add_u32 s62, s62, {FL3}
s_add_u32 s64, s63, 4096
s_add_u32 s65, s63, 8192
s_add_u32 s66, s63, 12288
v_mov_b32 v0, 1''' if G3V else ''
    if G3X: G3VS = f'''s_lshl_b32 s49, s35, {3+FS}
s_add_u32 s49, s49, {FL3}
s_lshl_b32 s48, s36, {FS}
s_add_u32 s48, s48, s49
s_and_b32 s42, s34, 4
s_add_u32 s42, s42, s43
s_lshl_b32 s42, s42, 2
s_add_u32 s48, s48, s42
s_mov_b32 s54, s49
s_cmp_eq_u32 s34, 7
s_cselect_b32 s49, s49, {BIG}
s_cselect_b32 s50, 0x0f0f0f0f, 0
s_cselect_b32 s52, -1, 0
s_mov_b32 s51, s50
s_mov_b32 s53, s52
s_lshr_b32 s38, s34, 2
s_lshl_b32 s63, s35, 1
s_add_u32 s63, s63, s38
s_lshl_b32 s63, s63, 4
s_add_u32 s63, s63, s37
s_lshl_b32 s63, s63, 12
s_add_u32 s64, s63, 0x4000
s_add_u32 s65, s63, 0x8000
s_add_u32 s66, s63, 0xc000
s_lshl_b32 s61, s37, 13
v_lshrrev_b32 v6, 7, v3
v_lshlrev_b32 v6, {FS}, v6
v_bfe_u32 v0, v3, 4, 3
v_lshl_add_u32 v6, v0, 2, v6
v_mov_b32 v0, 1'''
    BADR = '''s_lshl_b32 s42, s43, 10
s_lshl_b32 s45, s35, 4
s_add_u32 s45, s45, s42
v_and_b32 v4, 8, v2
v_and_b32 v5, 3, v2
v_lshl_add_u32 v4, v5, 1, v4
v_bfe_u32 v5, v2, 2, 1
v_lshl_add_u32 v4, v5, 9, v4''' if G1S else '''s_and_b32 s42, s43, 1
s_lshl_b32 s42, s42, 3
s_lshl_b32 s45, s35, 4
s_add_u32 s45, s45, s42
s_and_b32 s42, s43, 2
s_lshl_b32 s42, s42, 10
s_add_u32 s45, s45, s42
v_bfe_u32 v4, v2, 2, 2
v_and_b32 v5, 3, v2
v_lshlrev_b32 v5, 9, v5
v_lshl_add_u32 v4, v4, 1, v5'''
    k(f'''s_and_b32 s37, s34, 3
s_bfe_u32 s43, s2, {"0x20006" if ROT else "0"}
s_xor_b32 s43, s43, s37
s_lshl_b32 s44, s35, 3
s_add_u32 s44, s44, s36
s_lshl_b32 s44, s44, 2
s_add_u32 s44, s44, s43
s_lshl_b32 s44, s44, 12
{BADR}
buffer_load_ushort v1, v4, s[24:27], s45 offen
v_lshlrev_b32 v2, 3, v2
s_lshl_b32 s42, s34, 10
v_add_u32 v4, s42, v3
v_add_u32 v5, 0x10000, v4
v_add_u32 v6, 0x20000, v4
s_lshl_b32 s42, s37, 13
v_add_u32 v7, s42, v3
s_mov_b32 s58, 0xffff0000
{PWS}
{G3VS}
s_cmp_eq_u32 s36, 7
s_cselect_b32 s46, {BIG}, s44
s_cselect_b32 s59, 0, -1
s_cmp_ge_u32 s34, 4
s_cbranch_scc1 {HI}''')
    vm0.issue('b')

    def body(hi):
        import copy
        vm = copy.deepcopy(vm0); lg = Cnt('lgkmcnt', 15)
        F = Fill()

        def wr(n, tt):
            a = SLOT[n] * 32768 + tt * 8192
            k(f'ds_write_b128 v{4+a//65536}, {vr(ACC(n,tt),4)} offset:{a%65536}'); lg.issue(f'w{n}')

        def bar(n):
            x = lg.wait(f'w{n}')
            if x: k(x)
            k('s_barrier')

        def unit(tiles, zr, off, so, pos):
            nt = len(tiles)
            ops = []
            for ti, n in enumerate(tiles):
                for b in range(2):
                    base = SLOT[n] * 32768 + 4096 * b
                    if base >= 65536 - 32768 + 8192 and False: pass
                    for i in range(4):
                        def rd(base=base, i=i, n=n, b=b):
                            a = base + 1024 * i
                            k(f'ds_read_b128 {vr(T+4*i,4)}, v{RB[a//65536]} offset:{a%65536}'); lg.issue(f'r{n}_{b}_{i}')
                        ops.append(rd)
                    s = S + 4 * ti
                    def w01(n=n, b=b): k(lg.wait(f'r{n}_{b}_1') or '')
                    def w23(n=n, b=b): k(lg.wait(f'r{n}_{b}_3') or '')
                    ops.append(None); ops.append(None)
                    ops.append(w01)
                    d = s if b == 0 else T
                    ops += [f'v_pk_add_f32 {vr(d,2)}, {vr(T,2)}, {vr(T+4,2)}', f'v_pk_add_f32 {vr(d+2,2)}, {vr(T+2,2)}, {vr(T+6,2)}']
                    if b: ops += [f'v_pk_add_f32 {vr(s,2)}, {vr(s,2)}, {vr(T,2)}', f'v_pk_add_f32 {vr(s+2,2)}, {vr(s+2,2)}, {vr(T+2,2)}']
                    ops.append(w23)
                    ops += [f'v_pk_add_f32 {vr(T+8,2)}, {vr(T+8,2)}, {vr(T+12,2)}', f'v_pk_add_f32 {vr(T+10,2)}, {vr(T+10,2)}, {vr(T+14,2)}',
                            f'v_pk_add_f32 {vr(s,2)}, {vr(s,2)}, {vr(T+8,2)}', f'v_pk_add_f32 {vr(s+2,2)}, {vr(s+2,2)}, {vr(T+10,2)}']
            h = 2 * nt
            if not opt.get('lean', 0) & 8:
                ops += [f'v_cvt_pk_bf16_f32 v{T+i}, v{S+2*i}, v{S+2*i+1}' for i in range(h)]
                ops += [f'v_lshlrev_b32 v{S+2*i}, 16, v{T+i}\nv_and_b32 v{S+2*i+1}, s58, v{T+i}' for i in range(h)]
            ops.append(lambda: k(vm.wait(f'y{off}') or ''))
            ops += [f'v_pk_add_f32 {vr(S+2*i,2)}, {vr(S+2*i,2)}, v[0:1] op_sel:[0,1] op_sel_hi:[1,1]' for i in range(h)]
            ops += [f'v_lshlrev_b32 v{T+8+2*i}, 16, v{zr+i}\nv_and_b32 v{T+9+2*i}, s58, v{zr+i}' for i in range(h)]
            if not opt.get('lean', 0) & 8:
                ops += [f'v_cvt_pk_bf16_f32 v{T+i}, v{S+2*i}, v{S+2*i+1}' for i in range(h)]
                ops += [f'v_lshlrev_b32 v{S+2*i}, 16, v{T+i}\nv_and_b32 v{S+2*i+1}, s58, v{T+i}' for i in range(h)]
            ops += [f'v_pk_mul_f32 {vr(S+2*i,2)}, {vr(S+2*i,2)}, {vr(T+8+2*i,2)}' for i in range(h)]
            ops += [f'v_cvt_pk_bf16_f32 v{zr+i}, v{S+2*i}, v{S+2*i+1}' for i in range(h)]

            if tiles == [4, 5]: ops += [f'v_and_b32 v{zr+2}, s59, v{zr+2}', f'v_and_b32 v{zr+3}, s59, v{zr+3}']

            def sto():
                if nt == 2: k(f'buffer_store_dwordx4 {vr(zr,4)}, v3, s[16:19], {so} offen offset:{off} sc1')
                else: k(f'buffer_store_dwordx2 {vr(zr,2)}, v2, s[16:19], {so} offen offset:{off} sc1')
                vm.issue('s')
            ops.append(sto)
            out = []
            for o in ops:
                if o is None: out.append('')
                elif callable(o): out.append(o)
                else:
                    for l in o.split('\n'): out += unpk(l) if opt.get('upk', 1) else [l]
            return out

        def z1load(zr, off, so, nt):
            if nt == 2: k(f'buffer_load_dwordx4 {vr(zr,4)}, v3, s[12:15], {so} offen offset:{off}')
            else: k(f'buffer_load_dwordx2 {vr(zr,2)}, v2, s[12:15], {so} offen offset:{off}')
            vm.issue(f'y{off}')
        RB = [7, 38, 39]
        k('v_add_u32 v38, 0x10000, v7' + ('' if G3X else '\nv_add_u32 v39, 0x20000, v7'))
        ev = {}
        def at(p, f): ev.setdefault(p, []).append(f)
        for n in range(6):
            for tt in range(4): at(32 * (n + 1) + 3 + 2 * tt, lambda n=n, tt=tt: wr(n, tt))
        BP = opt.get('G2B', 16)
        at(64 + BP, lambda: bar(1)); at(128 + BP, lambda: bar(3)); at(192 + BP, lambda: bar(5))
        if opt.get('pp'):
            bs = [-1, 64 + BP, 128 + BP, 192 + BP, 224]
            k('s_setprio 3')
            for a, b in zip(bs[:-1], bs[1:]):
                for i in range(4):
                    pp = a + (b - a) * i // 4
                    if pp >= 0: at(pp, lambda i=i: k(f's_setprio {3-i}'))
        at(40, lambda: k((vm.wait('b') or '') + '\nv_lshlrev_b32 v1, 16, v1'))
        if opt.get('opf') is not None:
            def opf():
                k(f'''s_and_b32 s42, s35, 7
s_lshl_b32 s43, s36, 3
s_add_u32 s42, s42, s43
s_mul_i32 s42, s42, {WOB}
s_mul_i32 s43, s34, {18*128}
s_add_u32 s42, s42, s43
v_lshlrev_b32 v40, 3, v3
s_mov_b64 exec, 0x3ffff
buffer_load_ubyte v41, v40, s[28:31], s42 offen
s_mov_b64 exec, -1'''); vm.issue('opf')
            at(opt['opf'], opf)
        fq = []
        if PW:
            PZ = opt.get('pz', [30, 40, 64])
            at(PZ[0], lambda: k('s_barrier'))
            ZF = 'buffer_load_dword v41, v40, s[68:71], s47 offen sc1'
            def zf1(): k(ZF); vm.issue('zf')
            def zf2():
                LP = k.label('lp'); LD = k.label('ld')
                k(f'''{vm.wait('zf') or ''}
v_cmp_eq_u32 vcc, 0, v41
s_cbranch_vccz {LD}
s_mov_b32 s43, {SPIN}
{LP}:
{ZF}
s_waitcnt vmcnt(0)
v_cmp_eq_u32 vcc, 0, v41
s_cbranch_vccz {LD}
s_sub_u32 s43, s43, 1
s_cmp_lg_u32 s43, 0
s_cbranch_scc1 {LP}
{LD}:''')
            at(PZ[1] + (24 if hi else 0), zf1); at(PZ[2] + (24 if hi else 0), zf2)
        if ZQ:
            PZ = opt.get('pz', [1, 44, 60])
            def f2(): k('s_mov_b64 exec, 1\nbuffer_store_dword v42, off, s[68:71], s49 sc1\ns_mov_b64 exec, -1'); vm.issue('f2')
            at(PZ[0], f2)
            ZF = 'buffer_load_dword v41, v40, s[68:71], s48 offen sc1'
            def zf1(): k(ZF); vm.issue('zf')
            def zf2():
                LP = k.label('lp'); LD = k.label('ld')
                k(f'''{vm.wait('zf') or ''}
v_cmp_ne_u32 vcc, 2, v41
s_cbranch_vccz {LD}
s_mov_b32 s43, {SPIN}
{LP}:
{ZF}
s_waitcnt vmcnt(0)
v_cmp_ne_u32 vcc, 2, v41
s_cbranch_vccz {LD}
s_sub_u32 s43, s43, 1
s_cmp_lg_u32 s43, 0
s_cbranch_scc1 {LP}
{LD}:''')
            assert PZ[2] + 24 < 97
            at(PZ[1] + (24 if hi else 0), zf1); at(PZ[2] + (24 if hi else 0), zf2)
        if not hi:
            at(PZ[2] + 1 if PW or ZQ else 33, lambda: z1load(Z1, 0, 's44', 2))
            at(160, lambda: z1load(Z1, 2048, 's44', 2))
            fq.append((64 + BP + 1, lambda: unit([0, 1], Z1, 0, 's44', 0)))
            fq.append((192 + BP + 1, lambda: unit([4, 5], Z1, 2048, 's44', 0)))
        else:
            at(97, lambda: z1load(Z1, 1024, 's44', 2))
            at(190, lambda: z1load(Z1 + 4, 3072, 's46', 1))
            fq.append((128 + BP + 1, lambda: unit([2, 3], Z1, 1024, 's44', 0)))
        if G3V:
            def ef():
                assert 's' in vm.tags
                k((vm.wait('s') or '') + '\ns_mov_b64 exec, 1\nbuffer_store_dword v0, off, s[68:71], s61 sc1\ns_mov_b64 exec, -1'); vm.issue('f')
            at(opt.get('g3p', [150, 205])[hi], ef)
            EPP = opt.get('epp', [216, 216])[hi]
            def ep():
                k('v_bfe_u32 v127, v3, 4, 3\nv_lshlrev_b32 v127, 2, v127\nbuffer_load_dword v126, v127, s[68:71], s62 offen sc1'); vm.issue('ep')
            if EPP < 224:
                assert EPP > 192 + BP
                at(EPP, ep)
            if G3V == 2:
                E0, E1, E2 = opt.get('ep0', [182, 198, 2])
                P0L = 'buffer_load_dwordx4 v[40:43], off, s[68:71], s62 sc1'
                def ep0(): k(P0L); vm.issue('ep0')
                at(E0, ep0)
                at(E1, lambda: g3v_gate(k, vm, 'ep0', P0L, 'v_min3_u32 v40, v40, v41, v42\nv_min_u32 v40, v40, v43\nv_cmp_eq_u32 vcc, 0, v40'))
                def a0(tt): k(f'buffer_load_dwordx4 {vr(40+4*tt,4)}, v3, s[16:19], s{63+tt} offen'); vm.issue(f'a{tt}0')
                for tt in range(4): at(E1 + E2 * tt, lambda tt=tt: a0(tt))
        if G3X:
            def ef():
                assert 's' in vm.tags
                k((vm.wait('s') or '') + '\ns_mov_b64 exec, 1\nbuffer_store_dword v0, off, s[68:71], s48 sc1\ns_mov_b64 exec, -1'); vm.issue('f')
            at(opt.get('g3p', [150, 205])[hi], ef)
            E0, E1, A0, AS = opt.get('ep0', [186, 204, 209, 2])
            assert E1 <= 192 + BP < A0
            D0, DS = opt.get('dma', [196, 1])
            if hi:
                def ep0(): k(G3PL); vm.issue('ep0')
                at(E0, ep0)
                ev.setdefault(E1, []).insert(0, lambda: g3x_gate(k, vm, 'ep0', 50))
            def dm(i):
                if i == 0: k(f's_lshr_b32 s60, s61, {int(hi)}\ns_add_u32 s60, s60, s62\ns_add_u32 s60, s60, {(124 if hi else 92)*1024}')
                if i == 4: k('s_add_u32 s60, s60, 4096')
                k(f'buffer_load_dwordx4 {ar(4*i,4)}, v3, s[28:31], s60 offen offset:{1024*(i%4)}'); vm.issue('d')
            for i in range(4 if hi else 8):
                assert D0 + DS * i >= 196 + i
                at(D0 + DS * i, lambda i=i: dm(i))
            def x2():
                if not hi: assert 'r1_1_3' in lg.tags and lg.tags.index('r1_1_3') < lg.done
                k('s_barrier')
            at(opt.get('x2', 126), x2)
            def a0(f): k(f'buffer_load_dwordx4 {ar(32+4*f,4)}, v3, s[16:19], s{63+f} offen'); vm.issue(f'a0{f}')
            for f in range(4): at(A0 + AS * f, lambda f=f: a0(f))
        elif G3W:
            DR, D0, DS = opt.get('dma', [1, 184, 2])
            if hi == DR:
                assert hi or D0 > 192 + BP
                def dm(i):
                    if i == 0 and hi: assert 'r3_1_3' in lg.tags and lg.tags.index('r3_1_3') < lg.done
                    if i % 4 == 0: k(f's_add_u32 s60, s60, {[0, 4096, 28672, 4096][i//4]}\ns_add_u32 m0, s61, {[0, 4096, 32768, 36864][i//4]}')
                    k(f'buffer_load_dwordx4 v3, s[28:31], s60 offen offset:{1024*(i%4)} lds'); vm.issue('o')
                for i in range(16): at(min(D0 + (DS * i if DS > 0 else i // -DS), 223), lambda i=i: dm(i))
        elif post:
            po = list(post)[:opt.get('wol', [99, 99])[hi]]
            pn = [0]
            def pw(n):
                for _ in range(n):
                    if po: k(po.pop(0)); vm.issue(f'w{min(pn[0] // 5, 3)}'); pn[0] += 1
            for j in range(1, 8):
                for tt in range(4): at(192 + 4 * j + tt, lambda: pw(1))
        R = opt.get('G2R', 3)
        cur = []
        p = 0
        nq = [N0]
        for n in range(7):
            if n in (1, 3, 5): st(k, 2, 3 + n // 2)
            for j in range(8):
                q = 8 * n + j
                x = vm.wait(f'z{q}')
                if x: k(x)
                if q == 0:
                    x = vm.wait('w')
                    if x: k(x)
                for tt in range(4):
                    acc = vr(ACC(n, tt), 4)
                    k(f'{MFMA} {acc}, {vr(ZR+4*(q%NZ),4)}, {ar(16*j+4*tt,4)}, {"0" if j == 0 else acc}')
                    if tt in (1, 3) and nq[0] < q + NZ + (tt == 3): zload(nq[0], vm); nq[0] += 1
                    for f in ev.get(p, []): f()
                    if fq and fq[0][0] <= p: cur += fq.pop(0)[1]()
                    for _ in range(R):
                        if cur:
                            o = cur.pop(0)
                            o() if callable(o) else k(o)
                    p += 1
        if opt.get('clkm'): k('s_memtime s[78:79]')
        st(k, 2, 6)
        EP = opt.get('g3e', 0)
        if early and EP == 0:
            for o in early: k(o); vm.issue('e')
        for tt in range(4): wr(6, tt)
        if early and EP == 1:
            for o in early: k(o); vm.issue('e')
        bar(6)
        if early and EP == 2:
            for o in early: k(o); vm.issue('e')
        st(k, 2, 7)
        if G3V and EPP == 224: ep()
        if hi: cur = unit([6], Z1 + 4, 3072, 's46', 0)
        for o in cur: o() if callable(o) else k(o)
        st(k, 2, 8); st(k, 0, 7)
        k('s_setprio 0')
        if G3X: g3x(k, opt, int(hi), vm)
        if G3V:
            if EPP > 224: ep()
            (g3v_head2 if G3V == 2 else g3v_head)(k, opt, hi, vm)
        k(f's_branch {DONE}')
        return len(vm.tags) - 1 - max([i for i, t in enumerate(vm.tags) if t == 'e'] + [-1])
    n0 = body(False)
    k(f'{HI}:')
    n1 = body(True)
    return min(n0, n1)


def gen_g2(opt):
    k = Kern('k3_kernel', 256, 512, 163840, nvgpr=128, nagpr=128)
    END = k.label('end')
    k(f'''s_cmp_ge_u32 s2, 256
s_cbranch_scc1 {END}
s_load_dwordx2 s[40:41], s[0:1], 80
s_load_dwordx2 s[24:25], s[0:1], 48
s_load_dwordx2 s[72:73], s[0:1], 40''')
    k.stamp(True)
    map_g2(k)
    k(f'''v_lshrrev_b32 v1, 6, v0
v_and_b32 v2, 63, v0
v_readfirstlane_b32 s34, v1
v_lshlrev_b32 v3, 4, v2''')
    w_vaddr(k, 4, 5)
    w_setup(k, 42, 43)
    k('s_waitcnt lgkmcnt(0)')
    vm = Cnt('vmcnt', 63)
    wb = Bulk(k, g2_wops())
    wb(32, vm, 4)
    k('s_waitcnt vmcnt(0)')
    w_trans(k, 4, 5)
    k('s_waitcnt lgkmcnt(0)\ns_barrier')
    st(k, 2, 1)
    ph_g2(k, opt, END, vm, False)
    k.finish(END)
    return k


WOB = 17920
WO8_BYTES = 64 * WOB


def gen_prep8(k, base_wg, END, nwv=5):
    WO = k.label('wo'); J = k.label('j'); WO2 = k.label('wo2'); SG = k.label('sg')
    k(f'''s_load_dwordx2 s[4:5], s[0:1], 32
s_load_dwordx2 s[8:9], s[0:1], 56
v_lshrrev_b32 v1, 6, v0
v_and_b32 v2, 63, v0
v_readfirstlane_b32 s35, v1
s_sub_u32 s33, s2, {base_wg}
s_mul_i32 s33, s33, {nwv}
s_add_u32 s33, s33, s35
v_and_b32 v4, 15, v2
v_lshrrev_b32 v5, 4, v2
v_lshlrev_b32 v3, 4, v2
s_lshl_b32 s47, s35, 13
s_cmp_ge_u32 s35, {nwv}
s_cbranch_scc1 {END}
s_cmp_ge_u32 s33, 440
s_cbranch_scc1 {END}
s_waitcnt lgkmcnt(0)''')
    srd_from(k, 16, 40, 41, WS_WI, WS_WO - WS_WI + WO8_BYTES)
    k(f'''s_mov_b32 s23, 0x00020000
s_cmp_ge_u32 s33, 280
s_cbranch_scc1 {WO}
s_mul_i32 s51, s33, 4682
s_lshr_b32 s51, s51, 16
s_mul_i32 s52, s51, 14
s_sub_u32 s52, s33, s52
s_movk_i32 s50, 3456
s_lshl_b32 s53, s51, 5
s_mov_b32 s57, 8
s_mov_b32 s58, 4
s_mov_b64 s[20:21], s[4:5]
s_mov_b32 s22, {640*3456}
s_branch {J}
{WO}:
s_sub_u32 s34, s33, 280
s_mul_i32 s51, s34, 13108
s_lshr_b32 s51, s51, 16
s_mul_i32 s52, s51, 5
s_sub_u32 s52, s34, s52
s_movk_i32 s50, 1280
s_lshr_b32 s54, s51, 2
s_and_b32 s55, s51, 3
s_mul_i32 s53, s54, 112
s_lshl_b32 s42, s55, 5
s_add_u32 s53, s53, s42
s_mov_b32 s57, 4
s_mov_b32 s58, 16
s_mov_b64 s[20:21], s[8:9]
s_mov_b32 s22, {864*1280}
{J}:
v_mul_u32_u24 v6, s50, v5
v_lshl_add_u32 v6, v4, 4, v6
s_mul_i32 s42, s53, s50
s_lshl_b32 s43, s52, 8
s_add_u32 s42, s42, s43
v_add_u32 v6, s42, v6
s_lshl_b32 s43, s50, 2''')
    for i in range(8):
        k(f's_add_u32 m0, s47, {1024*i}')
        k(f'buffer_load_dwordx4 v6, s[20:23], 0 offen lds')
        if i < 7: k(f'v_add_u32 v6, s43, v6')
    k(f'''v_mul_u32_u24 v6, s57, v5
v_lshrrev_b32 v7, 2, v4
v_add_u32 v6, v6, v7
v_and_b32 v7, 3, v4
v_lshlrev_b32 v7, 3, v7
v_lshl_add_u32 v6, v6, 8, v7
v_add_u32 v6, s47, v6
s_lshl_b32 s42, s58, 8
v_add_u32 v7, s42, v6
v_lshlrev_b32 v8, 3, v2
s_waitcnt vmcnt(0)''')
    prep_tail(k, END, WO2, SG)


def prep_tail(k, END, WO2, SG):
    PADW = gen_fft.OPT.get('padw', 0); NL = '\n'
    BLAY = 's_add_u32 s43, s43, s44\ns_mul_i32 s44, s51, 7'
    if gen_fft.OPT.get('g3v', 0) == 4 or gen_fft.OPT.get('zq'): BLAY = '''s_lshr_b32 s45, s43, 2
s_and_b32 s43, s43, 3
s_add_u32 s43, s43, s44
s_mul_i32 s44, s45, 20
s_add_u32 s44, s44, 60
s_cmp_eq_u32 s46, 0
s_cselect_b32 s44, s44, 0
s_add_u32 s43, s43, s44
s_sub_u32 s44, 4, s45
s_mul_i32 s44, s44, s51'''
    WOA = f's_mul_i32 s56, s54, {WOB}\ns_mul_i32 s42, s55, 5120'
    if gen_fft.OPT.get('g3v', 0) >= 3: WOA = '''s_and_b32 s56, s54, 3
s_lshl_b32 s56, s56, 1
s_lshr_b32 s42, s54, 2
s_add_u32 s56, s56, s42
s_mul_i32 s56, s56, 5120
s_lshr_b32 s42, s56, 1
s_cmp_eq_u32 s55, 3
s_cselect_b32 s56, s42, s56
s_mul_i32 s42, s55, 40960'''
    for i in range(8):
        k(f'ds_read_b64_tr_b16 {vr(16+4*i,2)}, v6 offset:{32*i}')
        k(f'ds_read_b64_tr_b16 {vr(18+4*i,2)}, v7 offset:{32*i}')
    st(k, 5, 6)
    k(f's_cmp_ge_u32 s33, 280\ns_cbranch_scc1 {WO2}')
    for i in range(8):
        if i in (1, 4): st(k, 5, 7 + i // 4)
        k(f'''s_lshl_b32 s42, s52, 3
s_add_u32 s42, s42, {i}
s_add_u32 s43, s42, 2
s_cmp_ge_u32 s42, 54
s_cselect_b32 s43, s43, s42
s_cselect_b32 s46, 0, 1
{f"s_cmp_ge_u32 s42, 110{NL}s_cselect_b32 s43, {48+i}, s43{NL}s_cselect_b32 s46, 1, s46" if PADW and i >= 6 else ""}
s_mul_i32 s44, s43, 9363
s_lshr_b32 s44, s44, 16
s_mul_i32 s45, s44, 7
s_sub_u32 s43, s43, s45
s_and_b32 s44, s44, 7
s_lshl_b32 s44, s44, 1
s_lshr_b32 s45, s43, 2
s_xor_b32 s45, s45, s46
s_add_u32 s44, s44, s45
s_mul_i32 s44, s44, 140
{BLAY}
s_add_u32 s43, s43, s44
s_lshl_b32 s43, s43, 10
{"" if PADW else f"s_cmp_lt_u32 s42, 108{NL}s_cselect_b32 s43, s43, {BIG}"}
s_waitcnt lgkmcnt({14-2*i})
buffer_store_dwordx4 {vr(16+4*i,4)}, v3, s[16:19], s43 offen''')
    k(f'''s_branch {END}
{WO2}:
{WOA}
s_add_u32 s56, s56, {WS_WO-WS_WI}
s_add_u32 s56, s56, s42
s_cmp_lt_u32 s53, 864
s_cselect_b32 s59, -1, 0
s_cmp_lt_u32 s53, 848
s_cselect_b32 s60, -1, 0
s_cmp_eq_u32 s55, 3
s_cbranch_scc1 {SG}''')
    for sg in range(2):
        for i in range(8):
            k(f'''s_lshl_b32 s42, s52, 3
s_add_u32 s42, s42, {i}
s_mul_i32 s44, s42, 13108
s_lshr_b32 s44, s44, 16
s_mul_i32 s45, s44, 5
s_sub_u32 s43, s42, s45
s_mul_i32 s44, s44, {8*WOB}
s_lshl_b32 s43, s43, {9 if sg else 10}
s_add_u32 s43, s43, s44
s_add_u32 s43, s43, s56
s_waitcnt lgkmcnt({14-2*i})''')
            for j in range(2 if sg else 4): k(f'v_and_b32 v{16+4*i+j}, s{59+j//2}, v{16+4*i+j}')
            if sg: k(f'buffer_store_dwordx2 {vr(16+4*i,2)}, v8, s[16:19], s43 offen')
            else: k(f'buffer_store_dwordx4 {vr(16+4*i,4)}, v3, s[16:19], s43 offen')
        k(f's_branch {END}')
        if sg == 0: k(f'{SG}:')


def prep_inl(k, part, LB, END, nv=0, hdr=None):
    WO = k.label('wo'); J = k.label('j'); WO2 = k.label('wo2'); SG = k.label('sg')
    txt = hdr or f"""s_lshl_b32 s33, s2, 1
s_add_u32 s33, s33, s34
s_sub_u32 s33, s33, 6
s_sub_u32 s47, s34, 6
s_lshl_b32 s47, s47, 13
s_add_u32 s47, s47, {LB}
"""
    txt += f"""v_and_b32 v4, 15, v2
v_lshrrev_b32 v5, 4, v2
s_mov_b32 s23, 0x00020000
s_cmp_ge_u32 s33, 280
s_cbranch_scc1 {WO}
s_mul_i32 s51, s33, 4682
s_lshr_b32 s51, s51, 16
s_mul_i32 s52, s51, 14
s_sub_u32 s52, s33, s52
s_movk_i32 s50, 3456
s_lshl_b32 s53, s51, 5
s_mov_b32 s57, 8
s_mov_b32 s58, 4
s_mov_b64 s[20:21], s[62:63]
s_mov_b32 s22, {640*3456}
s_branch {J}
{WO}:
s_sub_u32 s35, s33, 280
s_mul_i32 s51, s35, 13108
s_lshr_b32 s51, s51, 16
s_mul_i32 s52, s51, 5
s_sub_u32 s52, s35, s52
s_movk_i32 s50, 1280
s_lshr_b32 s54, s51, 2
s_and_b32 s55, s51, 3
s_mul_i32 s53, s54, 112
s_lshl_b32 s42, s55, 5
s_add_u32 s53, s53, s42
s_mov_b32 s57, 4
s_mov_b32 s58, 16
s_mov_b64 s[20:21], s[64:65]
s_mov_b32 s22, {864*1280}
{J}:
"""
    if part == 'A':
        txt += """v_mul_u32_u24 v6, s50, v5
v_lshl_add_u32 v6, v4, 4, v6
s_mul_i32 s42, s53, s50
s_lshl_b32 s43, s52, 8
s_add_u32 s42, s42, s43
v_add_u32 v6, s42, v6
s_lshl_b32 s43, s50, 2
"""
        for i in range(8):
            txt += f's_add_u32 m0, s47, {1024*i}\nbuffer_load_dwordx4 v6, s[20:23], 0 offen lds\n'
            if i < 7: txt += 'v_add_u32 v6, s43, v6\n'
        mp = dict(s33='s16', s35='s17', s42='s18', s43='s19', s47='s24', s50='s25', s51='s26', s52='s27', s53='s28', s54='s29', s55='s30', s57='s31', s58='s31', v4='v104', v5='v105', v6='v106')
        txt = re.sub(r'\b([sv]\d+)\b', lambda m: mp.get(m.group(1), m.group(1)), txt)
        k(txt)
        return
    k(txt)
    if not hdr: k(f's_cmp_ge_u32 s33, 440\ns_cbranch_scc1 {END}')
    srd_from(k, 16, 40, 41, WS_WI, WS_WO - WS_WI + WO8_BYTES)
    k(f"""v_mul_u32_u24 v6, s57, v5
v_lshrrev_b32 v7, 2, v4
v_add_u32 v6, v6, v7
v_and_b32 v7, 3, v4
v_lshlrev_b32 v7, 3, v7
v_lshl_add_u32 v6, v6, 8, v7
v_add_u32 v6, s47, v6
s_lshl_b32 s42, s58, 8
v_add_u32 v7, s42, v6
v_lshlrev_b32 v8, 3, v2""")
    st(k, 5, 4)
    k(f's_waitcnt vmcnt({nv})')
    st(k, 5, 5)
    prep_tail(k, END, WO2, SG)


BB = 20480


def gelu_pk(k, pk, n, x, p, out, vc, tr=False, sc=False):
    for i in range(0, n if pk is not None else 0, 2):
        k(f'v_lshlrev_b32 v{x+i}, 16, v{pk+i//2}\nv_and_b32 v{x+i+1}, 0xffff0000, v{pk+i//2}')
    if sc:
        for i in range(n): k(f'v_mul_f32 v{p+i}, v{x+i}, v{x+i}')
        for i in range(n): k(f'v_fma_f32 v{p+i}, v{p+i}, {"s62" if GV else f"v{vc}"}, v{vc+1}')
        for i in range(n): k(f'v_mul_f32 v{p+i}, v{p+i}, v{x+i}')
    else:
        for i in range(0, n, 2):
            k(f'v_pk_mul_f32 {vr(p+i,2)}, {vr(x+i,2)}, {vr(x+i,2)}')
        for i in range(0, n, 2):
            if GV == 1: k(f'v_pk_fma_f32 {vr(p+i,2)}, {vr(p+i,2)}, s[62:63], {vr(vc,2)}')
            elif GV == 2: k(f'v_fma_f32 v{p+i}, v{p+i}, s62, v{vc+1}\nv_fma_f32 v{p+i+1}, v{p+i+1}, s62, v{vc+1}')
            else: k(f'v_pk_fma_f32 {vr(p+i,2)}, {vr(p+i,2)}, {vr(vc,2)}, {vr(vc,2)} op_sel:[0,0,1] op_sel_hi:[1,0,1]')
        for i in range(0, n, 2):
            k(f'v_pk_mul_f32 {vr(p+i,2)}, {vr(p+i,2)}, {vr(x+i,2)}')
    for i in range(n):
        k(f'v_exp_f32 v{p+i}, v{p+i}')
    if sc:
        for i in range(n): k(f'v_add_f32 v{p+i}, 1.0, v{p+i}')
    else:
        for i in range(0, n, 2):
            k(f'v_pk_add_f32 {vr(p+i,2)}, {vr(p+i,2)}, 1.0 op_sel_hi:[1,0]')
    for i in range(n):
        k(f'v_rcp_f32 v{p+i}, v{p+i}')
    if sc:
        for i in range(n): k(f'v_mul_f32 v{p+i}, v{p+i}, v{x+i}')
    else:
        for i in range(0, n, 2):
            k(f'v_pk_mul_f32 {vr(p+i,2)}, {vr(p+i,2)}, {vr(x+i,2)}')
    for i in range(0, n, 2):
        if tr:
            a = [0, 4, 1, 5][i // 2]
            k(f'v_cvt_pk_bf16_f32 v{out+i//2}, v{p+a}, v{p+a+2}')
        else: k(f'v_cvt_pk_bf16_f32 v{out+i//2}, v{p+i}, v{p+i+1}')


class Bulk:
    def __init__(self, k, ops): self.k = k; self.ops = list(ops)
    def copy(self): return Bulk(self.k, self.ops)
    def __call__(self, n, vm, va, tag='w'):
        for _ in range(n):
            if not self.ops: return
            self.k(self.ops.pop(0).replace('@', f'v{va}'))
            if vm is not None: vm.issue(tag)


def weave_in(k, i0, q, n, vm, va, tag='q'):
    body = k.lines[i0:]
    ok = []; full = True
    for i, l in enumerate(body):
        if l.startswith('s_mov_b64 exec, -1'): full = True
        elif 'exec' in l.split(',')[0] or 'saveexec' in l: full = False
        if full and l.startswith(('v_', 'ds_')) and not l.startswith('v_cmp') and 'vcc' not in l: ok.append(i)
    n = min(n, len(q.ops))
    if not n: return
    pos = {}
    for j in range(n):
        p = ok[(j * len(ok)) // n]
        pos[p] = pos.get(p, 0) + 1
    del k.lines[i0:]
    for i, l in enumerate(body):
        if i in pos: q(pos[i], vm, va, tag)
        k.lines.append(l)


def flag(k, srd, soff):
    k(f'''s_mov_b64 exec, 1
v_mov_b32 v8, 1
v_mov_b32 v9, 0
buffer_store_dword v8, v9, {sr(srd,4)}, {soff} offen sc1
s_mov_b64 exec, -1''')


def ph_k2a(k, opt, wb):
    RP = 144; NP = 11 * RP + 16
    TB2 = 0
    SKIP = k.label('skip')
    vm = Cnt('vmcnt', 63)
    k(f'''s_load_dwordx2 s[4:5], s[0:1], 0
s_load_dwordx2 s[40:41], s[0:1], 80
s_load_dwordx2 s[72:73], s[0:1], 40
s_load_dwordx2 s[80:81], s[0:1], 64''')
    tab_srd(k, 12)
    k(f'''s_and_b32 s3, s2, 7
s_lshl_b32 s3, s3, 5
s_lshr_b32 s33, s2, 3
s_add_u32 s3, s3, s33
s_lshl_b32 s33, s3, 6
s_add_u32 s33, s33, 32768
s_load_dwordx16 s[16:31], s[12:13], s33
v_lshrrev_b32 v1, 6, v0
v_and_b32 v2, 63, v0
v_readfirstlane_b32 s34, v1
v_lshlrev_b32 v3, 4, v2
s_movk_i32 s38, 0x4000
s_lshl_b32 s39, s34, 11
s_add_u32 m0, s39, {TB2}
s_add_u32 s38, s38, s39
s_cmp_lt_u32 s34, 5
s_cselect_b32 s38, s38, {BIG}
buffer_load_dwordx4 v3, s[12:15], s38 offen lds
buffer_load_dwordx4 v3, s[12:15], s38 offen offset:1024 lds''')
    vm.issue('t'); vm.issue('t')
    k(f'''s_mul_i32 s46, s3, {8*TP}
s_add_u32 s47, s46, {3*TP}
s_add_u32 s48, s46, {6*TP}
v_lshlrev_b32 v60, 2, v0
s_lshl_b32 s35, s34, 8
s_add_u32 s35, s35, s3
s_mul_i32 s35, s35, 1280
v_and_b32 v50, 15, v2
v_lshrrev_b32 v51, 4, v2
v_lshlrev_b32 v52, 6, v50
v_lshl_add_u32 v52, v51, 4, v52
v_add_u32 v53, 1024, v52
v_mov_b32 v54, 0x7fffffff
v_cmp_gt_u32 vcc, 4, v50
v_cndmask_b32 v53, v54, v53, vcc''')
    k(f'''s_mul_i32 s59, s34, {NP}
v_add_u32 v112, s59, v52
v_and_b32 v113, 3, v2
v_mul_u32_u24 v113, {NP}, v113
v_lshrrev_b32 v114, 2, v2
v_lshl_add_u32 v113, v114, 4, v113
s_cmp_ge_u32 s34, 5
s_cselect_b32 s59, {4*NP-5*256}, 0
s_lshl_b32 s60, s34, 8
s_add_u32 s59, s59, s60
v_add_u32 v113, s59, v113
s_mul_i32 s59, s3, 10240
s_lshl_b32 s60, s34, 10
s_add_u32 s59, s59, s60
s_add_u32 s49, s59, 8192
s_cmp_lt_u32 s34, 2
s_cselect_b32 s49, s49, {BIG}''')
    k(f'''s_and_b32 s58, s3, 15
s_mul_i32 s58, s58, {140*1024}
s_mul_i32 s57, s34, {18*1024}
s_min_u32 s57, s57, {122*1024}
s_add_u32 s56, s57, {BB}
s_add_u32 s57, s57, s58
s_waitcnt lgkmcnt(0)''')
    srd_from(k, 4, 4, 5, 0, X_BYTES)
    srd_from(k, 8, 40, 41, WS_U, TU_BYTES)
    for k2 in range(8):
        k(f'buffer_load_dword v{4+k2}, v60, s[8:11], s{46+k2//3} offen offset:{(k2%3)*TP+4*(k2&1)*(opt.get("sh",0)>0)}')
        vm.issue('u')
    k(f'''buffer_load_dwordx4 v[104:107], v52, s[4:7], s35 offen
buffer_load_dwordx4 v[108:111], v53, s[4:7], s35 offen''')
    vm.issue('x'); vm.issue('x')
    srd_from(k, 52, 40, 41, WS_H, X_BYTES)
    srd_from(k, 60, 40, 41, WS_HN, X_BYTES)
    srd_from(k, 64, 40, 41, WS_WI, WI_BYTES)
    if wb:
        w_setup(k, 42, 43); w_vaddr(k, 114, 115)
    if opt.get('ub'): k('s_barrier')
    bq = [] if opt.get('nob') else list(range(18))
    BP = opt.get('BP', [10, 8, 0, 0, 0, 0])
    assert sum(BP) >= 18

    def bulk(i):
        for _ in range(BP[i]):
            if bq:
                i = bq.pop(0)
                if i % 4 == 0:
                    k(f's_add_u32 m0, s56, {1024*i}')
                    if i: k('s_add_u32 s57, s57, 4096')
                k(f'buffer_load_dwordx4 v3, s[64:67], s57 offen offset:{1024*(i%4)} lds'); vm.issue('b')
            elif wb: wb(1, vm, 114)
    bulk(0)
    k(f'''v_mul_u32_u24 v55, 3277, v0
v_lshrrev_b32 v55, 16, v55
v_mul_u32_u24 v56, 20, v55
v_sub_u32 v56, v0, v56
v_mul_u32_u24 v57, {RP}, v56
v_lshl_add_u32 v57, v55, 2, v57
v_mov_b32 v58, {11*RP}
v_cmp_ge_u32 vcc, 10, v56
v_cndmask_b32 v57, v58, v57, vcc
v_sub_u32 v59, 20, v56
v_mul_u32_u24 v59, {RP}, v59
v_sub_u32 v61, 31, v55
v_lshl_add_u32 v59, v61, 2, v59
v_cmp_le_u32 vcc, 10, v56
v_cndmask_b32 v59, v58, v59, vcc
v_sub_u32 v61, 32, v55
v_lshlrev_b32 v61, 2, v61
v_cmp_eq_u32 vcc, 0, v56
v_cndmask_b32 v59, v59, v61, vcc
v_cmp_eq_u32 vcc, 0, v0
v_cndmask_b32 v59, v59, v58, vcc
v_cmp_eq_u32 vcc, 320, v0
v_cndmask_b32 v59, v59, v58, vcc
v_mov_b32 v40, 0x3f3504f3
v_min_u32 v62, 10, v50
v_mul_u32_u24 v62, {RP}, v62
v_lshl_add_u32 v62, v51, 4, v62
s_mul_i32 s42, s34, {NP}
v_add_u32 v62, s42, v62
v_and_b32 v63, 1, v2
v_lshlrev_b32 v63, 31, v63
v_or_b32 v63, 1.0, v63
''')
    k(vm.wait('t')); k('s_barrier')
    for i in range(10): k(f'ds_read_b128 {vr(64+4*i,4)}, v3 offset:{TB2+1024*i}')
    bulk(1)
    k('s_waitcnt lgkmcnt(0)\ns_barrier')
    k(f'''v_cmp_gt_u32 vcc, 321, v0
s_and_saveexec_b64 s[44:45], vcc''')
    k(vm.wait('u'))
    st(k, 1, 1); st(k, 0, 1)
    k(f'''s_cbranch_execz {SKIP}''')
    for k2 in range(8):
        k(f'v_lshlrev_b32 v{20+2*k2}, 16, v{4+k2}\nv_and_b32 v{21+2*k2}, 0xffff0000, v{4+k2}')
    for k2 in range(8):
        if k2 == 0:
            k('v_mov_b32 v4, v20\nv_mov_b32 v5, v21')
        else:
            smul(k, 4 + 2 * k2, 20 + 2 * k2, 16 + 2 * k2, 42 + 2 * (k2 & 1), conj=True)
    T = fft8(k, 4, 20, True, 40)
    for n in range(8):
        k(f'''v_cvt_pk_bf16_f32 v{4+2*n}, v{T[n]}, v{T[n]+1}
v_cvt_pk_bf16_f32 v{5+2*n}, v{T[n]}, -v{T[n]+1}
ds_write_b32 v57, v{4+2*n} offset:{n*NP}
ds_write_b32 v59, v{5+2*n} offset:{n*NP}''')
    k(f'''{SKIP}:
s_mov_b64 exec, -1''')
    bulk(2)
    k(f'''s_waitcnt lgkmcnt(0)
s_barrier
ds_read_b128 v[4:7], v62
ds_read_b128 v[8:11], v62 offset:64''')
    bulk(3)
    k(f'''s_waitcnt lgkmcnt(1)''')
    for u in range(2):
        if u == 1: k('s_waitcnt lgkmcnt(0)')
        for t in range(2):
            k(f'{MFMA} {vr(12+16*u+8*t,4)}, {vr(4+4*u,4)}, {vr(64+8*t,4)}, 0')
            k(f'{MFMA} {vr(16+16*u+8*t,4)}, {vr(4+4*u,4)}, {vr(68+8*t,4)}, 0')
    bulk(4)
    for i in range(0, 16, 2):
        k(f'v_pk_fma_f32 {vr(12+i,2)}, {vr(28+i,2)}, v[62:63], {vr(12+i,2)} op_sel:[0,1,0] op_sel_hi:[1,1,1]')
    for t in range(2):
        cmul_planar(k, 12 + 8 * t, 16 + 8 * t, 80 + 8 * t, 84 + 8 * t, 28, 32, 36)
        k(f'''v_cvt_pk_bf16_f32 v{4+4*t}, v28, v29
v_cvt_pk_bf16_f32 v{5+4*t}, v30, v31
v_cvt_pk_bf16_f32 v{6+4*t}, v32, v33
v_cvt_pk_bf16_f32 v{7+4*t}, v34, v35''')
    for v in range(2):
        for t in range(2):
            k(f'{MFMA} {vr(12+8*v+4*t,4)}, {vr(4+4*t,4)}, {vr(96+4*v,4)}, 0')
    bulk(5)
    k(vm.wait('x'))
    for i in range(8):
        k(f'v_lshlrev_b32 v{28+2*i}, 16, v{104+i}\nv_and_b32 v{29+2*i}, 0xffff0000, v{104+i}')
    for i in range(8):
        k(f'v_cvt_pk_bf16_f32 v{4+i}, v{12+2*i}, v{13+2*i}')
    for i in range(8):
        k(f'v_lshlrev_b32 v{12+2*i}, 16, v{4+i}\nv_and_b32 v{13+2*i}, 0xffff0000, v{4+i}')
    for i in range(8):
        k(f'v_pk_add_f32 {vr(12+2*i,2)}, {vr(12+2*i,2)}, {vr(28+2*i,2)}')
    for i in range(8):
        k(f'v_cvt_pk_bf16_f32 v{4+i}, v{12+2*i}, v{13+2*i}')
    k('''buffer_store_dwordx4 v[4:7], v52, s[52:55], s35 offen sc1
buffer_store_dwordx4 v[8:11], v53, s[52:55], s35 offen sc1''')
    for i in range(8):
        k(f'v_lshlrev_b32 v{12+2*i}, 16, v{4+i}\nv_and_b32 v{13+2*i}, 0xffff0000, v{4+i}')
    k('''v_pk_add_f32 v[28:29], v[12:13], v[14:15]
v_pk_mul_f32 v[30:31], v[12:13], v[12:13]
v_pk_add_f32 v[32:33], v[16:17], v[18:19]
v_pk_mul_f32 v[34:35], v[14:15], v[14:15]''')
    for i in range(2, 8):
        k(f'v_pk_fma_f32 {vr(30+4*(i&1),2)}, {vr(12+2*i,2)}, {vr(12+2*i,2)}, {vr(30+4*(i&1),2)}')
        if i >= 4:
            k(f'v_pk_add_f32 {vr(28+4*(i&1),2)}, {vr(28+4*(i&1),2)}, {vr(12+2*i,2)}')
    k('''v_pk_add_f32 v[28:29], v[28:29], v[32:33]
v_pk_add_f32 v[30:31], v[30:31], v[34:35]
v_add_f32 v28, v28, v29
v_add_f32 v30, v30, v31''')
    wave_reduce2(k, 28, 30, 36, 37)
    ln_stats(k, 36, 37, 640, 28, 30, 32)
    ln_apply(k, 12, 16, 28, 30, 40)
    srd_from(k, 68, 40, 41, WS_FL, FL_BYTES)
    k(f'''ds_write_b128 v112, v[40:43]
s_mov_b32 exec_lo, 0x000f000f
s_mov_b32 exec_hi, 0x000f000f
ds_write_b128 v112, v[44:47] offset:1024
s_mov_b64 exec, -1
s_waitcnt lgkmcnt(0)
s_barrier
ds_read_b128 v[40:43], v113
ds_read_b128 v[44:47], v113 offset:{4*NP+3*256}
s_waitcnt lgkmcnt(1)
buffer_store_dwordx4 v[40:43], v3, s[60:63], s59 offen sc1
s_waitcnt lgkmcnt(0)
buffer_store_dwordx4 v[44:47], v3, s[60:63], s49 offen sc1''')
    st(k, 1, 2); st(k, 0, 2)


def ph_k12(k, opt, wb):
    P = 1040; W0 = 16 * P; TB1 = 32 * P; TB2 = TB1 + 8192
    RP = 144; NP = 11 * RP + 16
    IDLE = k.label('idle'); JOIN = k.label('join'); SKIP = k.label('skip')
    vm = Cnt('vmcnt', 63)
    k(f"""s_load_dwordx4 s[4:7], s[0:1], 8
s_load_dwordx2 s[40:41], s[0:1], 80
s_load_dwordx2 s[72:73], s[0:1], 40
s_load_dwordx2 s[80:81], s[0:1], 64""")
    tab_srd(k, 12)
    k(f"""s_and_b32 s33, s2, 7
s_lshr_b32 s35, s2, 3
v_lshrrev_b32 v1, 6, v0
v_and_b32 v2, 63, v0
v_readfirstlane_b32 s34, v1
v_lshlrev_b32 v3, 4, v2
v_and_b32 v4, 15, v2
v_lshrrev_b32 v5, 4, v2
s_lshl_b32 s39, s34, 10
s_add_u32 m0, s39, {TB1}
s_add_u32 s38, s39, 0x2000
buffer_load_dwordx4 v3, s[12:15], s38 offen lds""")
    vm.issue('t1')
    IIM = 'v[112:115]'; IRE = 'v[114:117]'; FIM = 'v[116:119]'; FRE = 'v[118:121]'
    k(f"""v_mul_u32_u24 v6, {16*8*TP}, v4
v_lshl_add_u32 v6, v5, 4, v6
s_lshl_b32 s36, s34, 4
s_add_u32 s36, s36, s33
s_mul_i32 s45, s36, 642
s_mul_i32 s36, s36, {TP}
s_lshl_b32 s37, s35, 6
s_add_u32 s36, s36, s37
s_add_u32 s42, s36, {8*TP}
s_lshl_b32 s37, s35, 5
s_add_u32 s45, s45, s37
s_and_b32 s45, s45, -4
v_and_b32 v7, 1, v5
v_lshrrev_b32 v8, 1, v5
v_lshl_add_u32 v9, v4, 4, v7
v_mul_u32_u24 v9, {8*642}, v9
v_lshl_add_u32 v9, v8, 4, v9
s_and_b32 s37, s33, 1
s_lshl_b32 s37, s37, 2
s_sub_u32 s43, s36, s37
s_sub_u32 s44, s42, s37
s_lshl_b32 s3, s33, 5
s_add_u32 s3, s3, s35
s_cmp_lt_u32 s2, 168
s_cselect_b32 s43, s43, {BIG}
s_cselect_b32 s44, s44, {BIG}
s_cselect_b32 s45, s45, {BIG}
s_waitcnt lgkmcnt(0)""")
    srd_from(k, 60, 40, 41, WS_T, TU_BYTES)
    for i in range(2):
        k(f'buffer_load_dwordx4 {vr(16+4*i,4)}, v6, s[60:63], s{43+i} offen'); vm.issue(f'T{i}')
    k(f"""s_mov_b32 s52, s6
s_mov_b32 s53, s7
s_mov_b32 s6, {2048*642}
s_mov_b32 s7, 0x00020000
s_mov_b32 s54, {2048*642}
s_mov_b32 s55, 0x00020000""")
    WP = opt.get('k1wp', 0)

    def wld():
        k(f"""buffer_load_dwordx4 v[32:35], v9, s[4:7], s45 offen
buffer_load_dwordx4 v[38:41], v9, s[52:55], s45 offen
s_load_dwordx2 s[4:5], s[0:1], 0""")
        vm.issue('W'); vm.issue('W')
    if opt.get('ob1'): k('s_barrier')
    if WP == 0: wld()
    k(f"""s_min_u32 s39, s34, 4
s_lshl_b32 s39, s39, 11
s_add_u32 m0, s39, {TB2}
s_add_u32 s38, s39, 0x4000
buffer_load_dwordx4 v3, s[12:15], s38 offen lds
buffer_load_dwordx4 v3, s[12:15], s38 offen offset:1024 lds
s_lshl_b32 s38, s3, 6
s_add_u32 s38, s38, 32768
s_load_dwordx16 s[16:31], s[12:13], s38""")
    vm.issue('t2'); vm.issue('t2')
    srd_from(k, 8, 40, 41, WS_U, TU_BYTES)
    srd_from(k, 64, 40, 41, WS_WI, WI_BYTES)
    w_setup(k, 46, 47); w_vaddr(k, 124, 125)
    BR = opt.get('brot', 0)
    g1id(k, 58, 57)
    k(f"""s_and_b32 s58, s58, 15
s_mul_i32 s58, s58, {140*1024}
s_mul_i32 s57, s34, {14*1024}
s_add_u32 s57, s57, {31*1024}
s_min_u32 s57, s57, {(124 if BR else 126)*1024}
s_add_u32 s56, s57, {BB}
s_add_u32 s57, s57, s58""")
    if opt.get('hot'): k('s_sub_u32 s57, s57, s58\ns_mov_b32 s58, 0\ns_and_b32 s50, s50, 0x7fff\ns_and_b32 s51, s51, 0x7fff\ns_and_b32 s82, s82, 0x7fff')
    if opt.get('hotw'): k('s_and_b32 s50, s50, 0x7fff\ns_and_b32 s51, s51, 0x7fff\ns_and_b32 s82, s82, 0x7fff')
    if opt.get('hotb'): k('s_sub_u32 s57, s57, s58\ns_mov_b32 s58, 0')
    if BR: k('s_bfe_u32 s38, s3, 0x10004\ns_lshl_b32 s38, s38, 13')
    bops = []
    for i in range(0 if opt.get('nob') else (16 if BR else 14)):
        if BR:
            o = f's_xor_b32 s39, s38, {1024*(i-i%4)}\ns_add_u32 m0, s56, s39\ns_add_u32 s39, s39, s57\n'
            bops.append(o + f'buffer_load_dwordx4 v3, s[64:67], s39 offen offset:{1024*(i%4)} lds')
            continue
        o = f's_add_u32 m0, s56, {1024*(i-i%4)}\n'
        if i % 4 == 0 and i: o += 's_add_u32 s57, s57, 4096\n'
        bops.append(o + f'buffer_load_dwordx4 v3, s[64:67], s57 offen offset:{1024*(i%4)} lds')
    wops = wb.ops
    NWL = opt.get('nwl', 0)
    wpre = wops[:len(wops) - NWL]; wb.ops = wops[len(wops) - NWL:]
    order = opt.get('bo', 0)
    if order == 0: pre = wpre + bops
    elif order == 1: pre = bops + wpre
    else:
        pre = []
        a, b = list(wpre), list(bops)
        while a or b:
            pre += a[:8]; a = a[8:]
            pre += b[:4]; b = b[4:]
    import copy
    KP = opt.get('KP', [8, 4, 4, 4, 4, 4, 4, 4, 4, 99])
    CP = opt.get('CP', [0, 0, 0, 0, 0])
    NPRE = sum(KP) + sum(opt.get('KW', [0, 0, 0])[:2])
    post = pre[NPRE:]; pre = pre[:NPRE]
    assert len(post) <= sum(CP) + opt.get('KW', [0, 0, 0])[2], (len(post), CP)
    k(f's_cmp_ge_u32 s2, 168\ns_cbranch_scc1 {IDLE}')
    vi = copy.deepcopy(vm)
    q = Bulk(k, pre)

    def bulk(i): q(KP[i], vm, 124, 'q')
    bulk(0)
    k(f"""v_mul_u32_u24 v10, {4*P}, v5
v_lshl_add_u32 v10, v4, 2, v10
s_lshl_b32 s37, s34, 7
v_add_u32 v10, s37, v10
v_mul_u32_u24 v11, {8*P}, v8
v_lshl_add_u32 v11, v7, 6, v11
v_lshl_add_u32 v11, v4, 2, v11
v_add_u32 v11, s37, v11
v_lshlrev_b32 v12, 6, v4
v_lshl_add_u32 v12, v5, 4, v12
s_mul_i32 s37, s34, {2*P}
v_add_u32 v12, s37, v12
s_mov_b32 s47, 0x05040100
s_mov_b32 s48, 0x07060302""")
    for i in range(2):
        k(vm.wait(f'T{i}'))
        if i == 0: st(k, 4, 1)
        for j in range(4):
            k(f'ds_write_b32 v10, v{16+4*i+j} offset:{j*P+64*i}')
    if WP == 1: wld()
    bulk(1)
    k('s_waitcnt lgkmcnt(0)\ns_barrier')
    NC = 2
    KW = opt.get('KW', [0, 0, 0])
    i0 = len(k.lines)
    k(f"""ds_read_b128 v[96:99], v3 offset:{TB1}
ds_read_b128 v[16:19], v12
ds_read_b128 v[100:103], v3 offset:{TB1+1024}
ds_read_b128 v[20:23], v12 offset:{P}
ds_read_b128 v[104:107], v3 offset:{TB1+2048}
ds_read_b128 v[108:111], v3 offset:{TB1+3072}
ds_read_b128 v[118:121], v3 offset:{TB1+4096}
ds_read_b64 v[116:117], v3 offset:{TB1+5120}
ds_read_b128 v[112:115], v3 offset:{TB1+7168}""")
    bulk(2)
    k(f"""s_waitcnt lgkmcnt(7)
{MFMA} v[48:51], v[16:19], v[96:99], 0
s_waitcnt lgkmcnt(6)
{MFMA} v[52:55], v[16:19], v[100:103], 0
s_waitcnt lgkmcnt(5)
{MFMA} v[56:59], v[20:23], v[96:99], 0
{MFMA} v[60:63], v[20:23], v[100:103], 0""")
    bulk(3)
    k('s_waitcnt lgkmcnt(0)')

    def pack(c, re, im):
        k(f"""v_cvt_pk_bf16_f32 v{16+4*c}, v{re}, v{re+1}
v_cvt_pk_bf16_f32 v{17+4*c}, v{re+2}, v{re+3}
v_cvt_pk_bf16_f32 v{18+4*c}, v{im}, v{im+1}
v_cvt_pk_bf16_f32 v{19+4*c}, v{im+2}, v{im+3}""")
    for c in range(NC):
        cmul_planar(k, 48 + 8 * c, 52 + 8 * c, 104, 108, 80, 84, 88)
        pack(c, 80, 84)
        k(f'{MFMA} {vr(48+8*c,4)}, {FRE}, {vr(16+4*c,4)}, 0')
        k(f'{MFMA} {vr(52+8*c,4)}, {FIM}, {vr(16+4*c,4)}, 0')
    bulk(4)
    weave_in(k, i0, q, KW[0], vm, 124)
    k(vm.wait('W') or '')
    k(vm.wait('t2') or '')
    st(k, 4, 2)
    i0 = len(k.lines)
    for j in range(8):
        k(f'v_perm_b32 v{64+j}, v{38+j//2}, v{32+j//2}, s{47+(j&1)}')
        k(f'ds_write_b32 v11, v{64+j} offset:{W0+j*P}')
    bulk(5)
    k(f's_waitcnt lgkmcnt(0)\ns_barrier')
    for c in range(NC):
        k(f'ds_read_b128 {vr(32+4*c,4)}, v12 offset:{W0+c*P}')
    bulk(6)
    for c in range(NC):
        k(f's_waitcnt lgkmcnt({NC-1-c})')
        for r in range(4):
            k(f'v_lshlrev_b32 v{64+8*c+r}, 16, v{32+4*c+r}\nv_and_b32 v{68+8*c+r}, 0xffff0000, v{32+4*c+r}')
        cmul_planar(k, 48 + 8 * c, 52 + 8 * c, 64 + 8 * c, 68 + 8 * c, 80, 84, 88)
        pack(c, 80, 84)
        k(f'{MFMA} {vr(48+8*c,4)}, {vr(16+4*c,4)}, {IRE}, 0')
        k(f'{MFMA} {vr(52+8*c,4)}, {vr(16+4*c,4)}, {IIM}, 0')
    bulk(7)
    for c in range(NC):
        cmul_planar(k, 48 + 8 * c, 52 + 8 * c, 104, 108, 80, 84, 88, conj=True)
        pack(c, 80, 84)
        k(f'{MFMA} {vr(48+8*c,4)}, {IRE}, {vr(16+4*c,4)}, 0')
        k(f'{MFMA} {vr(52+8*c,4)}, {IIM}, {vr(16+4*c,4)}, 0')
    bulk(8)
    for c in range(NC):
        for r in range(4):
            k(f'v_cvt_pk_bf16_f32 v{16+4*c+r}, v{48+8*c+r}, v{52+8*c+r}')
        k(f'ds_write_b128 v12, {vr(16+4*c,4)} offset:{c*P}')
    weave_in(k, i0, q, KW[1], vm, 124)
    k('s_waitcnt lgkmcnt(0)\ns_barrier')
    for i in range(2):
        for j in range(4):
            k(f'ds_read_b32 v{16+4*i+j}, v10 offset:{j*P+64*i}')
    for i in range(10): k(f'ds_read_b128 {vr(64+4*i,4)}, v3 offset:{TB2+1024*i}')
    for i in range(2):
        k(f's_waitcnt lgkmcnt({14-4*i})')
        k(f'buffer_store_dwordx4 {vr(16+4*i,4)}, v6, s[8:11], {["s36","s42"][i]} offen sc1')
    st(k, 4, 3)
    if opt.get('ob2'): k('s_barrier')
    q(99, vm, 124, 'q')
    k(f's_branch {JOIN}\n{IDLE}:')
    if WP: k('s_load_dwordx2 s[4:5], s[0:1], 0')
    if opt.get('it2'):
        WM = opt.get('wte', 0)
        k(f'''s_sub_u32 s43, s35, 21
s_and_b32 s44, s33, 1
s_mul_i32 s44, s44, 11
s_add_u32 s43, s43, s44
s_mul_i32 s44, s34, 22
s_add_u32 s44, s44, s43
s_add_u32 s44, s44, {64*WM}
s_add_u32 s45, s44, 176
s_lshr_b32 s46, s33, 1
s_lshl_b32 s46, s46, 18
v_lshlrev_b32 v10, 7, v2''')
        for r in (44, 45)[:2 if 64*(4-WM) > 176 else 1]:
            k(f'''s_and_b32 s47, s{r}, 31
s_lshl_b32 s47, s47, 13
s_add_u32 s47, s47, s46
s_bfe_u32 s48, s{r}, 0x10005
s_lshl_b32 s48, s48, 22
s_add_u32 s47, s47, s48
s_lshr_b32 s48, s{r}, 6
s_lshl_b32 s48, s48, 20
s_add_u32 s47, s47, s48
s_cmp_lt_u32 s{r}, 256
s_cselect_b32 s47, s47, {BIG}
buffer_load_ubyte v11, v10, s[72:75], s47 offen''')
            vi.issue('q')
            if opt['it2'] > 1: k('s_barrier')
    if opt.get('itd'): k(f's_sleep {opt["itd"]}')
    if opt.get('it'):
        k(f'''s_sub_u32 s43, s35, 21
s_and_b32 s44, s33, 1
s_mul_i32 s44, s44, 11
s_add_u32 s43, s43, s44
s_lshl_b32 s44, s43, 3
s_add_u32 s44, s44, s34
s_mul_i32 s45, s34, 22
s_add_u32 s45, s45, s43
s_add_u32 s45, s45, 176
s_lshr_b32 s46, s33, 1
s_lshl_b32 s46, s46, 18
v_lshlrev_b32 v10, 7, v2''')
        for r in (44, 45):
            k(f'''s_and_b32 s47, s{r}, 31
s_lshl_b32 s47, s47, 13
s_lshr_b32 s48, s{r}, 5
s_lshl_b32 s48, s48, 20
s_add_u32 s47, s47, s48
s_add_u32 s47, s47, s46
buffer_load_ubyte v11, v10, s[72:75], s47 offen''')
            vi.issue('q')
        if opt.get('bt'):
            k('''s_load_dwordx2 s[44:45], s[0:1], 48
s_mov_b32 s46, 4096
s_mov_b32 s47, 0x00020000
v_lshlrev_b32 v12, 6, v2
s_waitcnt lgkmcnt(0)
buffer_load_ubyte v11, v12, s[44:47], 0 offen''')
            vi.issue('q')
        if opt['it'] > 1: k('s_barrier')
    if opt.get('iw'):
        wp = [o for o in pre if o in wpre]; bp = [o for o in pre if o not in wpre]
        assert len(bp) == len(bops)
        IW = opt['iw']
        nb0 = opt.get('ib0', 0)
        Bulk(k, bp[:nb0])(99, vi, 124, 'q')
        Bulk(k, wp)(99, vi, 124, 'q')
        k('s_mov_b32 s46, s50\ns_mov_b32 s47, s51')
        Bulk(k, wpre[len(wp):len(wp) + IW])(99, vi, 124, 'q')
        k('s_mov_b32 s50, s46\ns_mov_b32 s51, s47')
        Bulk(k, bp[nb0:])(99, vi, 124, 'q')
    else:
        q = Bulk(k, pre)
        q(99, vi, 124, 'q')
    k(vi.wait('t2'))
    k('s_barrier')
    for i in range(10): k(f'ds_read_b128 {vr(64+4*i,4)}, v3 offset:{TB2+1024*i}')
    if opt.get('idl'): k(f's_sleep {opt["idl"]}')
    k(f'{JOIN}:')
    ph_k2b(k, opt, post, NWL)


def ph_k2b(k, opt, post, NWL=0, fused=False):
    RP = 144; NP = 11 * RP + 16
    SKIP = k.label('skip')
    KW = opt.get('KW', [0, 0, 0])
    CP = opt.get('CP', [0, 0, 0, 0, 0])
    LEAN = opt.get('lean', 0) & 1
    XP5 = [108, 110, 114, 116, 118]
    if LEAN:
        assert fused and opt.get('xs') and opt.get('hd') and not G1S
        k(f'''v_and_b32 v44, {hex(0x3f0 & ~128)}, v3
v_xor_b32 v45, 64, v44
ds_read_b128 v[100:103], v44 offset:{opt['TB2']+9*1024}
ds_read_b128 v[104:107], v45 offset:{opt['TB2']+9*1024}''')
    vm = Cnt('vmcnt', 63); vm.issue('q')
    if opt.get('g3s'):
        srd_from(k, 60, 40, 41, WS_A, A2_BYTES)
        k('''s_lshl_b32 s46, s2, 14
s_lshl_b32 s47, s34, 11
s_add_u32 s46, s46, s47
v_mov_b32 v28, -1
v_mov_b32 v29, -1
v_mov_b32 v30, -1
v_mov_b32 v31, -1
buffer_store_dwordx4 v[28:31], v3, s[60:63], s46 offen sc1
buffer_store_dwordx4 v[28:31], v3, s[60:63], s46 offen offset:1024 sc1''')
        vm.issue('f'); vm.issue('f')
    V53 = '''v_and_b32 v53, 0xf0, v52
v_bfe_u32 v54, v50, 2, 1
v_lshl_add_u32 v53, v54, 3, v53
v_lshrrev_b32 v54, 3, v50
v_lshl_add_u32 v53, v54, 2, v53
v_add_u32 v53, 1024, v53''' if LEAN else '''v_add_u32 v53, 1024, v52
v_mov_b32 v54, 0x7fffffff
v_cmp_gt_u32 vcc, 4, v50
v_cndmask_b32 v53, v54, v53, vcc'''
    k(f"""s_mul_i32 s46, s3, {8*TP}
s_add_u32 s47, s46, {3*TP}
s_add_u32 s48, s46, {6*TP}
v_lshlrev_b32 v60, 2, v0
s_lshl_b32 s35, s34, 8
s_add_u32 s35, s35, s3
s_mul_i32 s35, s35, 1280
v_and_b32 v50, 15, v2
v_lshrrev_b32 v51, 4, v2
v_lshlrev_b32 v52, 6, v50
v_lshl_add_u32 v52, v51, 4, v52
{V53}
s_lshl_b32 s42, s34, 12
s_min_u32 s42, s42, {27*1024}
s_add_u32 m0, s42, {BB}
s_add_u32 s42, s42, s58
s_waitcnt lgkmcnt(0)
s_barrier""")
    st(k, 8, 5)
    if not fused: srd_from(k, 4, 4, 5, 0, X_BYTES)
    for i in range(0 if opt.get('nob') else 4):
        k(f'buffer_load_dwordx4 v3, s[64:67], s42 offen offset:{1024*i} lds'); vm.issue('b')
    st(k, 8, 6)
    if LEAN:
        k(f"""v_add_u32 v54, s32, v52
v_add_u32 v55, s32, v53
ds_read_b128 v[44:47], v54 offset:8192
ds_read_b32 v48, v55 offset:8192
s_mul_i32 s59, s34, {NP}
v_add_u32 v120, s59, v53""")
    elif opt.get('xs'):
        k(f"""v_add_u32 v54, s32, v52
v_mov_b32 v108, 0
v_mov_b32 v109, 0
v_mov_b32 v110, 0
v_mov_b32 v111, 0
ds_read_b128 v[104:107], v54 offset:8192
s_mov_b64 exec, vcc
ds_read_b128 v[108:111], v54 offset:{8192+1024}
s_mov_b64 exec, -1""")
    else:
        k(f"""buffer_load_dwordx4 v[104:107], v52, s[4:7], s35 offen
buffer_load_dwordx4 v[108:111], v53, s[4:7], s35 offen""")
        vm.issue('x'); vm.issue('x')
    HP0 = opt.get('hp0', 10240)
    if G1S:
        k(f"""s_mul_i32 s59, s34, {NP}
v_add_u32 v112, s59, v52""")
        for j, d in enumerate((113, 115)):
            k(f"""v_add_u32 v116, {512*j}, v0
v_mul_u32_u24 v117, 410, v116
v_lshrrev_b32 v117, 16, v117
v_mul_u32_u24 v118, 160, v117
v_sub_u32 v116, v116, v118
v_and_b32 v118, 1, v116
v_lshl_add_u32 v117, v117, 1, v118
v_mul_u32_u24 v117, {NP}, v117
v_lshrrev_b32 v116, 1, v116
v_lshl_add_u32 v{d}, v116, 4, v117""")
        k(f"""s_mul_i32 s59, s3, {HP}
s_lshl_b32 s60, s34, 10
s_add_u32 s59, s59, s60
s_add_u32 s49, s59, 8192
s_cmp_lt_u32 s34, 2
s_cselect_b32 s49, s49, {BIG}""")
    else: k(f"""s_mul_i32 s59, s34, {NP}
v_add_u32 v112, s59, v52
v_and_b32 v113, 3, v2
v_mul_u32_u24 v113, {NP}, v113
v_lshrrev_b32 v114, 2, v2
v_lshl_add_u32 v113, v114, 4, v113
s_cmp_ge_u32 s34, 5
s_cselect_b32 s59, {4*NP-5*256}, 0
s_lshl_b32 s60, s34, 8
s_add_u32 s59, s59, s60
v_add_u32 v113, s59, v113
s_mul_i32 s59, s3, {HP0}
s_lshl_b32 s60, s34, 10
s_add_u32 s59, s59, s60
s_add_u32 s49, s59, 8192
s_cmp_lt_u32 s34, 2
s_cselect_b32 s49, s49, {BIG}""")
    srd_from(k, 52, 80, 81, 0, X_BYTES) if opt.get('hout') else srd_from(k, 52, 40, 41, WS_H, X_BYTES)
    srd_from(k, 60, 40, 41, WS_HN, 0x300000)
    k(f"""v_mul_u32_u24 v55, 3277, v0
v_lshrrev_b32 v55, 16, v55
v_mul_u32_u24 v56, 20, v55
v_sub_u32 v56, v0, v56
v_mul_u32_u24 v57, {RP}, v56
v_lshl_add_u32 v57, v55, 2, v57
v_mov_b32 v58, {11*RP}
v_cmp_ge_u32 vcc, 10, v56
v_cndmask_b32 v57, v58, v57, vcc
v_sub_u32 v59, 20, v56
v_mul_u32_u24 v59, {RP}, v59
v_sub_u32 v61, 31, v55
v_lshl_add_u32 v59, v61, 2, v59
v_cmp_le_u32 vcc, 10, v56
v_cndmask_b32 v59, v58, v59, vcc
v_sub_u32 v61, 32, v55
v_lshlrev_b32 v61, 2, v61
v_cmp_eq_u32 vcc, 0, v56
v_cndmask_b32 v59, v59, v61, vcc
v_cmp_eq_u32 vcc, 0, v0
v_cndmask_b32 v59, v59, v58, vcc
v_cmp_eq_u32 vcc, 320, v0
v_cndmask_b32 v59, v59, v58, vcc
v_mov_b32 v40, 0x3f3504f3
v_min_u32 v62, 10, v50
v_mul_u32_u24 v62, {RP}, v62
v_lshl_add_u32 v62, v51, 4, v62
s_mul_i32 s42, s34, {NP}
v_add_u32 v62, s42, v62
v_and_b32 v63, 1, v2
v_lshlrev_b32 v63, 31, v63
v_or_b32 v63, 1.0, v63
""")
    WT0 = opt.get('wt0', 0) if not opt.get('now') else 0
    assert not (WT0 and NWL)
    if WT0:
        k(vm.wait('q'))
        w_trans(k, 44, 45, list(range(WT0)))
    if LEAN:
        k('s_waitcnt lgkmcnt(0)')
        for i in range(5): k(f'v_lshlrev_b32 v{XP5[i]}, 16, v{44+i}\nv_and_b32 v{XP5[i]+1}, 0xffff0000, v{44+i}')
    st(k, 4, 4); st(k, 8, 7)
    LP = k.label('lp'); LD = k.label('ld'); SK0 = k.label('sk0'); STUB = k.label('stub'); GO = k.label('go')
    q = Bulk(k, post)
    UNI = KW[2] > 0
    L0 = k.label('l0'); L1 = None
    if UNI:
        assert not WT0
        k(f"""v_cmp_gt_u32 vcc, 321, v0
v_cndmask_b32 v57, v58, v57, vcc
v_cndmask_b32 v59, v58, v59, vcc
s_mov_b64 exec, vcc
s_mov_b32 s43, {SPIN}
s_cmp_lt_u32 s34, 6
s_cbranch_scc1 {L0}
s_waitcnt vmcnt(0)
{f"s_sleep {opt['c67']}" if opt.get('c67') else ""}""")
        if opt.get('wt67'):
            k('s_mov_b64 exec, -1')
            w_trans(k, 44, 45, [0, 1, 2, 3], 42, True)
        k(f's_branch {LD}\n{L0}:')
        if opt.get('wte'):
            L1 = k.label('l1')
            for k2 in range(8):
                k(f'buffer_load_dword v{4+k2}, v60, s[8:11], s{46+k2//3} offen offset:{(k2%3)*TP+(0 if opt.get("ip") else 4*(k2&1))} sc1')
            k('s_mov_b64 exec, -1')
            w_trans(k, 44, 45, list(range(opt['wte'])), 42, True)
            k(f's_mov_b64 exec, vcc\ns_branch {L1}')
        k(f'{LP}:')
    else:
      k(f"""v_cmp_gt_u32 vcc, 321, v0
s_mov_b64 s[44:45], vcc
s_cmp_lt_u32 s34, 6
s_cbranch_scc1 {GO}
s_waitcnt vmcnt(0)""")
      if opt.get('c67'): k(f's_sleep {opt["c67"]}')
      q.copy()(CP[0], None, 124)
      k(f"""s_mov_b64 exec, 0
s_branch {SK0 if WT0 else SKIP}
{GO}:
s_mov_b64 exec, s[44:45]
s_mov_b32 s43, {SPIN}
{LP}:""")
    for k2 in range(8):
        k(f'buffer_load_dword v{4+k2}, v60, s[8:11], s{46+k2//3} offen offset:{(k2%3)*TP+(0 if opt.get("ip") else 4*(k2&1))} sc1')
    if L1: k(f'{L1}:')
    CHK = """v_and_b32 v12, v4, v5
v_and_b32 v13, v6, v7
v_and_b32 v14, v8, v9
v_and_b32 v15, v10, v11
v_and_b32 v12, v12, v13
v_and_b32 v14, v14, v15
v_and_b32 v12, 1, v12
v_and_b32 v12, v12, v14
v_cmp_eq_u32 vcc, 0, v12""" if opt.get('ip') else """v_max3_u32 v12, v4, v5, v6
v_max3_u32 v13, v7, v8, v9
v_max3_u32 v12, v12, v10, v11
v_max_u32 v12, v12, v13
v_cmp_eq_u32 vcc, -1, v12"""
    k(f"""s_waitcnt vmcnt(0)
{CHK}
s_cbranch_vccz {LD}
{f"s_sleep {opt['usl']}" if opt.get('usl') else ""}
s_sub_u32 s43, s43, 1
s_cmp_lg_u32 s43, 0
s_cbranch_scc1 {LP}
{LD}:""")
    st(k, 4, 5); st(k, 0, 1); st(k, 8, 8)
    if UNI:
        k('s_mov_b64 exec, -1')
        if opt.get('xs') or opt.get('wte') or opt.get('wt67'): k('s_waitcnt lgkmcnt(0)')
        if opt.get('ob3'): k('s_barrier')
        q(CP[0], None, 124)
        i0 = len(k.lines)
    elif CP[0] and post:
        k('s_mov_b64 exec, -1')
        q(CP[0], None, 124)
        k('s_mov_b64 exec, s[44:45]')
    for k2 in range(8):
        k(f'v_lshlrev_b32 v{20+2*k2}, 16, v{4+k2}\nv_and_b32 v{21+2*k2}, 0xffff0000, v{4+k2}')
    for k2 in range(8):
        if k2 == 0:
            k('v_mov_b32 v4, v20\nv_mov_b32 v5, v21')
        else:
            smul(k, 4 + 2 * k2, 20 + 2 * k2, 16 + 2 * k2, 42 + 2 * (k2 & 1), conj=True)
    T = fft8(k, 4, 20, True, 40)
    if WT0:
        k(f'{SK0}:\ns_waitcnt lgkmcnt(0)\ns_barrier\ns_cbranch_execz {SKIP}')
    for n in range(8):
        k(f"""v_cvt_pk_bf16_f32 v{4+2*n}, v{T[n]}, v{T[n]+1}
v_cvt_pk_bf16_f32 v{5+2*n}, v{T[n]}, -v{T[n]+1}
ds_write_b32 v57, v{4+2*n} offset:{n*NP}
ds_write_b32 v59, v{5+2*n} offset:{n*NP}""")
    k(f"""{SKIP}:
s_mov_b64 exec, -1""")
    q(CP[1], None, 124)
    k(f"""s_waitcnt lgkmcnt(0)
s_barrier
ds_read_b128 v[4:7], v62
ds_read_b128 v[8:11], v62 offset:64""")
    if opt.get('kw0'): i0 = len(k.lines)
    q(CP[2], None, 124)
    k('s_waitcnt lgkmcnt(1)')
    for u in range(2):
        if u == 1: k('s_waitcnt lgkmcnt(0)')
        for t in range(2):
            k(f'{MFMA} {vr(12+16*u+8*t,4)}, {vr(4+4*u,4)}, {vr(64+8*t,4)}, 0')
            k(f'{MFMA} {vr(16+16*u+8*t,4)}, {vr(4+4*u,4)}, {vr(68+8*t,4)}, 0')
    q(CP[3], None, 124)
    for i in range(0, 16, 2):
        k(f'v_pk_fma_f32 {vr(12+i,2)}, {vr(28+i,2)}, v[62:63], {vr(12+i,2)} op_sel:[0,1,0] op_sel_hi:[1,1,1]')
    for t in range(2):
        cmul_planar(k, 12 + 8 * t, 16 + 8 * t, 80 + 8 * t, 84 + 8 * t, 28, 32, 36)
        k(f"""v_cvt_pk_bf16_f32 v{4+4*t}, v28, v29
v_cvt_pk_bf16_f32 v{5+4*t}, v30, v31
v_cvt_pk_bf16_f32 v{6+4*t}, v32, v33
v_cvt_pk_bf16_f32 v{7+4*t}, v34, v35""")
    if LEAN:
        k(f'''{MFMA} v[20:23], v[4:7], v[100:103], 0
{MFMA} v[12:15], v[4:7], v[96:99], 0
{MFMA} v[20:23], v[8:11], v[104:107], v[20:23]
{MFMA} v[16:19], v[8:11], v[96:99], 0
v_pk_add_f32 v[12:13], v[12:13], {vr(XP5[0],2)}
v_pk_add_f32 v[14:15], v[14:15], {vr(XP5[1],2)}
v_mov_b32_dpp v20, v22 quad_perm:[0,1,2,3] row_mask:0xf bank_mask:0xc
v_mov_b32_dpp v21, v23 quad_perm:[0,1,2,3] row_mask:0xf bank_mask:0xc
v_pk_add_f32 v[28:29], v[12:13], v[14:15]
v_pk_mul_f32 v[30:31], v[12:13], v[12:13]
v_pk_add_f32 v[16:17], v[16:17], {vr(XP5[2],2)}
v_pk_add_f32 v[18:19], v[18:19], {vr(XP5[3],2)}
v_pk_add_f32 v[20:21], v[20:21], {vr(XP5[4],2)}
v_pk_fma_f32 v[30:31], v[14:15], v[14:15], v[30:31]
v_pk_add_f32 v[32:33], v[16:17], v[18:19]
v_pk_mul_f32 v[34:35], v[16:17], v[16:17]
v_pk_add_f32 v[28:29], v[28:29], v[20:21]
v_pk_fma_f32 v[30:31], v[20:21], v[20:21], v[30:31]
v_pk_fma_f32 v[34:35], v[18:19], v[18:19], v[34:35]
v_pk_add_f32 v[28:29], v[28:29], v[32:33]
v_pk_add_f32 v[30:31], v[30:31], v[34:35]
v_add_f32 v28, v28, v29
v_add_f32 v30, v30, v31''')
        j0 = len(k.lines)
        wave_reduce2(k, 28, 30, 36, 37)
        for i in range(5): k.lines.insert(j0 + 3 * i, f'v_cvt_pk_bf16_f32 v{4+i}, v{12+2*i}, v{13+2*i}')
        ln_stats(k, 36, 37, 640, 28, 30, 32)
        ln_apply2(k, 12, 10, 28, 30, 40)
        HS = """buffer_store_dwordx4 v[4:7], v52, s[52:55], s35 offen sc1
buffer_store_dword v8, v53, s[52:55], s35 offen sc1"""
    else:
        for v in range(2):
            for t in range(2):
                k(f'{MFMA} {vr(12+8*v+4*t,4)}, {vr(4+4*t,4)}, {vr(96+4*v,4)}, 0')
        q(CP[4], None, 124)
        if UNI and opt.get('kwe', 1) == 0: weave_in(k, i0, q, KW[2], None, 124)
        for i in range(8):
            k(f'v_lshlrev_b32 v{28+2*i}, 16, v{104+i}\nv_and_b32 v{29+2*i}, 0xffff0000, v{104+i}')
        for i in range(8):
            k(f'v_cvt_pk_bf16_f32 v{4+i}, v{12+2*i}, v{13+2*i}')
        for i in range(8):
            k(f'v_lshlrev_b32 v{12+2*i}, 16, v{4+i}\nv_and_b32 v{13+2*i}, 0xffff0000, v{4+i}')
        for i in range(8):
            k(f'v_pk_add_f32 {vr(12+2*i,2)}, {vr(12+2*i,2)}, {vr(28+2*i,2)}')
        for i in range(8):
            k(f'v_cvt_pk_bf16_f32 v{4+i}, v{12+2*i}, v{13+2*i}')
        HS = """buffer_store_dwordx4 v[4:7], v52, s[52:55], s35 offen sc1
    buffer_store_dwordx4 v[8:11], v53, s[52:55], s35 offen sc1"""
        if not opt.get('hd'): k(HS)
        for i in range(8):
            k(f'v_lshlrev_b32 v{12+2*i}, 16, v{4+i}\nv_and_b32 v{13+2*i}, 0xffff0000, v{4+i}')
        k("""v_pk_add_f32 v[28:29], v[12:13], v[14:15]
    v_pk_mul_f32 v[30:31], v[12:13], v[12:13]
    v_pk_add_f32 v[32:33], v[16:17], v[18:19]
    v_pk_mul_f32 v[34:35], v[14:15], v[14:15]""")
        for i in range(2, 8):
            k(f'v_pk_fma_f32 {vr(30+4*(i&1),2)}, {vr(12+2*i,2)}, {vr(12+2*i,2)}, {vr(30+4*(i&1),2)}')
            if i >= 4:
                k(f'v_pk_add_f32 {vr(28+4*(i&1),2)}, {vr(28+4*(i&1),2)}, {vr(12+2*i,2)}')
        k("""v_pk_add_f32 v[28:29], v[28:29], v[32:33]
    v_pk_add_f32 v[30:31], v[30:31], v[34:35]
    v_add_f32 v28, v28, v29
    v_add_f32 v30, v30, v31""")
        wave_reduce2(k, 28, 30, 36, 37)
        ln_stats(k, 36, 37, 640, 28, 30, 32)
        ln_apply(k, 12, 16, 28, 30, 40)
    if UNI and opt.get('kwe', 1) == 1: weave_in(k, i0, q, KW[2], None, 124)
    assert not q.ops
    if not fused: srd_from(k, 68, 40, 41, WS_FL, FL_BYTES)
    W2 = 'ds_write_b32 v120, v44' if LEAN else '''s_mov_b32 exec_lo, 0x000f000f
s_mov_b32 exec_hi, 0x000f000f
ds_write_b128 v112, v[44:47] offset:1024
s_mov_b64 exec, -1'''
    k(f"""ds_write_b128 v112, v[40:43]
{W2}
s_waitcnt lgkmcnt(0)
s_barrier
ds_read_b128 v[40:43], v113
{"ds_read_b128 v[44:47], v115" if G1S else f"ds_read_b128 v[44:47], v113 offset:{4*NP+3*256}"}
s_waitcnt lgkmcnt(1)
buffer_store_dwordx4 v[40:43], v3, s[60:63], s59 offen sc1
s_waitcnt lgkmcnt(0)
buffer_store_dwordx4 v[44:47], v3, s[60:63], s49 offen sc1
v_mov_b32 v114, v124""")
    if opt.get('hd'): k(HS)
    st(k, 4, 6); st(k, 0, 2); st(k, 8, 9)


def poll2(k, loads, chk, sc, sl=0):
    LP = k.label('lp'); LD = k.label('ld')
    k(f'''s_mov_b32 s{sc}, {SPIN}
{LP}:
{loads}
s_waitcnt vmcnt(0)
{chk}
s_cbranch_vccz {LD}
{f"s_sleep {sl}" if sl else ""}
s_sub_u32 s{sc}, s{sc}, 1
s_cmp_lg_u32 s{sc}, 0
s_cbranch_scc1 {LP}
{LD}:''')


def flag_poll(k, sf, sp, n, sl=0, d0=0, part=3, fs=None):
    if part & 1:
        k(f'''v_lshrrev_b32 v10, 4, v3
v_lshlrev_b32 v10, {FS if fs is None else fs}, v10
s_mov_b64 exec, 1
v_mov_b32 v8, 1
buffer_store_dword v8, v10, s[68:71], s{sf} offen sc1''')
    if part & 2:
        k(f's_mov_b64 exec, {hex((1 << n) - 1)}')
        if d0: k(f's_sleep {d0}')
        poll2(k, f'buffer_load_dword v9, v10, s[68:71], s{sp} offen sc1', 'v_cmp_eq_u32 vcc, 0, v9', 43, sl)
    k('s_mov_b64 exec, -1')


def ph_g1(k, opt, DONE, wb, fused=False):
    L = {(g, z): k.label(f'g{g}z{z}') for g in range(2) for z in range(2)}
    WQ = opt.get('WQ', [32, 0, 8, 15])
    k(f's_lshl_b32 s49, s3, {FS}')
    g1id(k, 3, 35)
    k(f'''s_lshr_b32 s35, s3, 4
s_bfe_u32 s36, s3, 0x30001
s_and_b32 s37, s3, 1
s_and_b32 s38, s34, 3
s_lshl_b32 s39, s35, 2
s_add_u32 s39, s39, s38
v_and_b32 v2, 63, v0
v_and_b32 v6, 15, v2
v_lshrrev_b32 v7, 4, v2''')
    if wb: k('v_mov_b32 v88, v114')
    HP0 = opt.get('hp0', 10240)
    srd_from(k, 8, 40, 41, WS_HN, 0x300000)
    k(f'''v_lshlrev_b32 v9, 3, v2
v_lshrrev_b32 v8, 2, v6
v_and_b32 v10, 3, v6
v_mul_u32_u24 v1, {HP0}, v8
v_lshl_add_u32 v1, v7, 6, v1
v_lshl_add_u32 v1, v10, 4, v1
v_add_u32 v2, {4*HP0}, v1
s_lshr_b32 s44, s39, 1
s_mul_i32 s44, s44, {8*HP0}
s_and_b32 s45, s38, 1
s_mul_i32 s45, s45, 5120
s_add_u32 s44, s44, s45
s_add_u32 s45, s44, 4096
v_add_u32 v4, 57344, v3
v_add_u32 v5, 114688, v3''')
    srd_from(k, 12, 40, 41, WS_Z1, A2_BYTES)
    srd_from(k, 16, 40, 41, WS_Z2, Z2N_BYTES)
    srd_from(k, 20, 40, 41, WS_PX, PX_BYTES)
    k(f'''s_and_b32 s47, s3, 15
s_lshl_b32 s47, s47, 4
s_add_u32 s47, s47, s35
s_lshl_b32 s47, s47, {FS}
s_add_u32 s47, s47, {FL2}
s_lshr_b32 s42, s34, 2
s_cmp_eq_u32 s42, s37
s_cselect_b32 s43, 1, 0
s_lshl_b32 s42, s42, 1
s_add_u32 s42, s42, s43
s_cmp_eq_u32 s42, 1
s_cbranch_scc1 {L[0,1]}
s_cmp_eq_u32 s42, 2
s_cbranch_scc1 {L[1,0]}
s_cmp_eq_u32 s42, 3
s_cbranch_scc1 {L[1,1]}''')
    PD = opt.get('PD', 5); NA = PD + 1
    assert 40 + 8 * NA <= 88
    AR = lambda kk, u: vr(40 + 8 * (kk % NA) + 4 * u, 4)
    ACC = lambda u, n: 96 + ((n & 3) * 2 + u) * 4

    def aload(kk, u, v):
        if kk >= 20: return
        k(f'buffer_load_dwordx4 {AR(kk,u)}, v{1+u}, s[8:11], s{44+kk//16} offen offset:{256*(kk%16)}'); v.issue(f'a{kk}')
    NB = 8; LA = opt.get('LA', 6)
    SC = opt.get('gsc', 1)

    def tail(z2, wq, rest):
        if not fused:
            k(f's_branch {DONE}'); return
        if opt.get('pw'):
            assert not rest and not wq.ops
            F2S = opt.get('f2s', 5); FZS = opt.get('fzs', 5)
            if z2:
                k(f'''s_lshl_b32 s47, s36, 3
s_lshr_b32 s42, s39, 4
s_add_u32 s47, s47, s42
s_and_b32 s42, s39, 1
s_lshl_b32 s42, s42, 2
s_add_u32 s47, s47, s42
s_lshl_b32 s47, s47, 4
s_and_b32 s42, s39, 14
s_add_u32 s47, s47, s42
s_add_u32 s47, s47, s37
s_lshl_b32 s47, s47, {F2S}
s_add_u32 s47, s47, {FL2}''')
            else:
                k(f'''s_lshl_b32 s47, s39, 4
s_and_b32 s42, s3, 15
s_add_u32 s47, s47, s42
s_lshl_b32 s47, s47, {FZS}
s_add_u32 s47, s47, {FLU}''')
            map_g2(k)
            k(f'''s_load_dwordx2 s[24:25], s[0:1], 48
s_lshl_b32 s44, s36, 3
s_add_u32 s44, s44, s34
s_lshl_b32 s44, s44, {4+F2S}
s_add_u32 s44, s44, {FL2}
s_waitcnt vmcnt(0)''')
            st(k, 0, 5)
            flag_poll(k, 47, 44, 16, opt.get('g2sl', 0), opt.get('g2d', 0) if z2 else 0, fs=F2S)
            k(f's_waitcnt lgkmcnt(0)\ns_branch {DONE}')
            return
        map_g2(k)
        k('s_load_dwordx2 s[24:25], s[0:1], 48')
        if not z2 and not wq.ops and rest and opt.get('wte', 1) and not W128:
            w_trans(k, 12, 13, rest); rest = []
        k('s_waitcnt vmcnt(0)')
        st(k, 0, 5)
        if z2: k('s_setprio 0')
        if not z2 and not wq.ops and rest and not W128:
            w_trans(k, 12, 13, rest); rest = []
        if W128: assert not wq.ops and not (z2 and rest)
        if not z2: wq(99, None, 88)
        k('s_barrier')
        if z2: wq(99, None, 88)
        NP2 = k.label('np2'); NP3 = k.label('np3')
        if not z2:
            k(f's_cmp_lg_u32 s38, 0\ns_cbranch_scc1 {NP2}')
            flag_poll(k, 47, 44, 32, part=1)
            k(f'{NP2}:')
        if rest:
            k('s_waitcnt vmcnt(0)')
            w_trans(k, 12, 13, rest)
        if not z2:
            k(f'''s_cmp_lg_u32 s38, 0
s_cbranch_scc1 {NP3}
s_lshl_b32 s44, s36, {5+FS}
s_add_u32 s44, s44, {FL2}''')
            flag_poll(k, 47, 44, 32, opt.get('g2sl', 0), opt.get('g2d', 0) if not rest else 0, part=2)
            k(f'{NP3}:')
        k('s_waitcnt lgkmcnt(0)\ns_barrier')
        k(f's_branch {DONE}')

    def path(grp, z2):
        vm = Cnt('vmcnt', 63)
        wq = wb.copy() if wb else None
        tiles = [0, 1, 2, 3] if grp == 0 else [4, 5, 6]
        NT = len(tiles)
        order = [(kk, n) for kk in range(20) for n in tiles]
        k('s_waitcnt vmcnt(0)\ns_barrier')
        st(k, 1, 3); st(k, 4, 7)
        rest = [] if opt.get('now') else list(range(opt.get('wt0', 0), 4))
        n1 = opt.get('wt1', [0, 0])[z2] if not wq.ops else 0
        if W128: n1 = min(opt['wt1'][z2], (32 - len(wq.ops)) // 8)
        now, rest = rest[:n1], rest[n1:]
        if z2:
            NPL = k.label('npl'); NPM = k.label('npm')
            k(f'''s_setprio {opt.get('zprio', 2)}
s_lshl_b32 s42, s35, {4+FS}
s_mov_b32 s46, s49
s_cmp_lg_u32 s38, 0
s_cbranch_scc1 {NPM}''')
            flag_poll(k, 46, 42, 16, part=1)
            k(f'{NPM}:')
            w_trans(k, 12, 13, now, 48)
            k(f's_cmp_lg_u32 s38, 0\ns_cbranch_scc1 {NPL}')
            flag_poll(k, 46, 42, 16, opt.get('g1sl', 0), opt.get('g1d', 0) if not now else 0, part=2)
            k(f'{NPL}:')
        else:
            w_trans(k, 12, 13, now, 48)
            if wq: wq(WQ[0], vm, 88)
        k('s_waitcnt lgkmcnt(0)\ns_barrier')
        st(k, 4, 8)
        st(k, 1, 4); st(k, 0, 3)
        if not z2 and opt.get('zd'): k(f's_sleep {opt["zd"]}')
        for kk in range(PD):
            for u in range(2): aload(kk, u, vm)

        def rdB(f):
            if f >= len(order): return
            kk, n = order[f]
            a = BB + kk * 7168 + n * 1024
            k(f'ds_read_b128 {vr(8+4*(f%NB),4)}, v{3+a//57344} offset:{a%57344}')
        for f in range(LA): rdB(f)
        for f, (kk, n) in enumerate(order):
            x = vm.wait(f'a{kk}')
            if x: k(x)
            if n == tiles[0] and kk in (0, 10): st(k, 1, 5 + kk // 10)
            rem = min(LA - 1, len(order) - 1 - f)
            k(f's_waitcnt lgkmcnt({rem})')
            b = vr(8 + 4 * (f % NB), 4)
            for u in range(2):
                acc = vr(ACC(u, n), 4)
                c = '0' if kk == 0 else acc
                if z2: k(f'{MFMA} {acc}, {AR(kk,u)}, {b}, {c}')
                else: k(f'{MFMA} {acc}, {b}, {AR(kk,u)}, {c}')
            rdB(f + LA)
            i = f % NT
            if i < 2: aload(kk + PD, i, vm)
            if wq and kk >= WQ[3]:
                c = WQ[1 + z2]
                wq((c * (i + 1)) // NT - (c * i) // NT, vm, 88)
        st(k, 1, 7); st(k, 0, 4); st(k, 4, 9)
        k(f'v_mov_b32 v4, {fbits(C1)}\nv_mov_b32 v5, {fbits(C0)}')
        if not z2:
            k(f'''s_lshr_b32 s42, s39, 1
s_lshl_b32 s42, s42, 3
s_add_u32 s42, s42, s36
s_lshl_b32 s42, s42, 1
s_and_b32 s43, s39, 1
s_add_u32 s42, s42, s43
s_lshl_b32 s42, s42, 13
s_add_u32 s43, s42, 4096
v_lshrrev_b32 v2, 1, v3''')
            units = [(u, p) for p in ((0, 1) if grp == 0 else (2,)) for u in range(2)]
            for i, (u, p) in enumerate(units):
                o = 12 + 4 * (i & 1)
                for h in range(2):
                    a = ACC(u, 2 * p + h)
                    k(f'v_cvt_pk_bf16_f32 v{8+2*h}, v{a}, v{a+1}\nv_cvt_pk_bf16_f32 v{9+2*h}, v{a+2}, v{a+3}')
                gelu_pk(k, 8, 8, 20, 28, o, 4, sc=(SC > 1))
                k(f'buffer_store_dwordx4 {vr(o,4)}, v3, s[12:15], s{42+u} offen offset:{1024*p} sc1')
            if grp == 1:
                for u in range(2):
                    a = ACC(u, 6)
                    k(f'v_cvt_pk_bf16_f32 v{8+2*u}, v{a}, v{a+1}\nv_cvt_pk_bf16_f32 v{9+2*u}, v{a+2}, v{a+3}')
                gelu_pk(k, 8, 8, 20, 28, 12, 4, sc=(SC > 1))
                for u in range(2):
                    k(f'buffer_store_dwordx2 {vr(12+2*u,2)}, v2, s[12:15], s{42+u} offen offset:3072 sc1')
            st(k, 1, 8)
            tail(False, wq, rest)
            return
        S = 72; Q = 80
        SK = k.label('sk')
        for i, n in enumerate(tiles):
            if n == 5: k(f's_cmp_eq_u32 s36, 7\ns_cbranch_scc1 {SK}')
            for r in range(4): k(f'v_cvt_pk_bf16_f32 v{8+r}, v{ACC(0,n)+r}, v{ACC(1,n)+r}')
            k(f'''v_permlane32_swap_b32 v8, v10
v_permlane32_swap_b32 v9, v11
v_permlane16_swap_b32 v8, v9
v_permlane16_swap_b32 v10, v11''')
            gelu_pk(k, 8, 8, 20, 28, 12, 4, tr=True, sc=(SC > 0))
            d = 40 + 8 * i
            for r in range(4):
                k(f'v_lshlrev_b32 v{d+2*r}, 16, v{12+r}\nv_and_b32 v{d+1+2*r}, 0xffff0000, v{12+r}')
            for e in range(8):
                if i == 0: k(f'v_mul_f32 v{Q+e}, v{d+e}, v{d+e}\nv_mov_b32 v{S+e}, v{d+e}')
                else: k(f'v_add_f32 v{S+e}, v{S+e}, v{d+e}\nv_fmac_f32 v{Q+e}, v{d+e}, v{d+e}')
        k(f'{SK}:')
        V = [0] * 16
        for e in range(8):
            V[2 * e] = S + e; V[2 * e + 1] = Q + e
        for i in range(8):
            k(f'v_add_f32_dpp v{V[i]}, v{V[i]}, v{V[i]} row_ror:8 row_mask:0xf bank_mask:0x3')
        for i in range(8):
            k(f'v_add_f32_dpp v{V[i]}, v{V[i+8]}, v{V[i+8]} row_ror:8 row_mask:0xf bank_mask:0xc')
        for i in range(4):
            k(f'v_add_f32_dpp v{V[i]}, v{V[i]}, v{V[i]} row_half_mirror row_mask:0xf bank_mask:0x5')
        for i in range(4):
            k(f'v_add_f32_dpp v{V[i]}, v{V[i+4]}, v{V[i+4]} row_half_mirror row_mask:0xf bank_mask:0xa')
        for m in ('quad_perm:[1,0,3,2]', 'quad_perm:[2,3,0,1]'):
            for i in range(4):
                k(f'v_add_f32_dpp v{V[i]}, v{V[i]}, v{V[i]} {m} row_mask:0xf bank_mask:0xf')
        k(f'''s_mov_b32 vcc_lo, 0xaaaaaaaa
s_mov_b32 vcc_hi, 0xaaaaaaaa
v_cndmask_b32 v8, v{V[0]}, v{V[1]}, vcc
v_cndmask_b32 v9, v{V[2]}, v{V[3]}, vcc
s_mov_b32 vcc_lo, 0xcccccccc
s_mov_b32 vcc_hi, 0xcccccccc
v_cndmask_b32 v8, v8, v9, vcc
s_lshl_b32 s42, s39, 12
s_and_b32 s43, s3, 15
s_lshl_b32 s43, s43, 8
s_add_u32 s43, s43, s42
v_lshrrev_b32 v2, 2, v3
buffer_store_dword v8, v2, s[20:23], s43 offen sc1
v_lshrrev_b32 v9, 2, v6
v_and_b32 v10, 3, v6
v_lshlrev_b32 v9, 8, v9
v_lshl_add_u32 v9, v7, 6, v9
v_lshl_add_u32 v1, v10, 4, v9''')
        st(k, 1, 8)
        LP = k.label('lp'); LD = k.label('ld')
        k(f'''s_lshl_b32 s44, s36, 3
s_lshr_b32 s45, s39, 4
s_add_u32 s44, s44, s45
s_and_b32 s45, s39, 1
s_lshl_b32 s45, s45, 2
s_add_u32 s44, s44, s45
s_mul_i32 s44, s44, 56
s_bfe_u32 s45, s39, 0x30001
s_add_u32 s44, s44, s45
s_add_u32 s44, s44, {8*tiles[0]}
s_lshl_b32 s44, s44, 10
v_mov_b32 v4, {fbits(1.0/864)}
s_mov_b32 s43, {SPIN}''')
        if rest and wq and not wq.ops and opt.get('wtp', 1):
            k('s_waitcnt vmcnt(1)')
            w_trans(k, 8, 9, rest, 46); rest = []
        elif opt.get('pxd'): k(f"s_sleep {opt['pxd']}")
        k(f'{LP}:')
        for i in range(4): k(f'buffer_load_dwordx4 {vr(8+4*i,4)}, v1, s[20:23], s42 offen offset:{1024*i} sc1')
        k('s_waitcnt vmcnt(2)')
        k('v_max3_u32 v24, v8, v9, v10\nv_max3_u32 v25, v11, v12, v13\nv_max3_u32 v24, v24, v14, v15')
        for r in range(4): k(f'v_add_f32 v{28+r}, v{8+r}, v{12+r}')
        k('s_waitcnt vmcnt(0)')
        k('''v_max3_u32 v25, v25, v16, v17
v_max3_u32 v24, v24, v18, v19
v_max3_u32 v25, v25, v20, v21
v_max3_u32 v24, v24, v22, v23
v_max_u32 v24, v24, v25
v_cmp_eq_u32 vcc, -1, v24''')
        for r in range(4): k(f'v_add_f32 v{32+r}, v{16+r}, v{20+r}')
        k(f'''s_cbranch_vccz {LD}
{f"s_sleep {opt['pxs']}" if opt.get('pxs') else ""}
s_sub_u32 s43, s43, 1
s_cmp_lg_u32 s43, 0
s_cbranch_scc1 {LP}
{LD}:''')
        st(k, 1, 9); st(k, 0, 9)
        for r in range(4): k(f'v_add_f32 v{28+r}, v{28+r}, v{32+r}')
        for m in ('row_ror:4', 'row_ror:8'):
            for r in range(4): k(f'v_add_f32_dpp v{28+r}, v{28+r}, v{28+r} {m} row_mask:0xf bank_mask:0xf')
        for r in range(4): k(f'v_mul_f32 v{28+r}, v{28+r}, v4')
        k(f'''v_fma_f32 v29, -v28, v28, v29
v_fma_f32 v31, -v30, v30, v31
v_max_f32 v29, 0, v29
v_max_f32 v31, 0, v31
v_cvt_pk_bf16_f32 v12, v28, v30
v_cvt_pk_bf16_f32 v13, v29, v31
v_lshlrev_b32 v8, 16, v12
v_and_b32 v9, 0xffff0000, v12
v_lshlrev_b32 v10, 16, v13
v_and_b32 v11, 0xffff0000, v13
v_add_f32 v10, 0x3727c5ac, v10
v_add_f32 v11, 0x3727c5ac, v11
v_cvt_pk_bf16_f32 v13, v10, v11
v_lshlrev_b32 v10, 16, v13
v_and_b32 v11, 0xffff0000, v13
v_sqrt_f32 v10, v10
v_sqrt_f32 v11, v11''')
        for e in range(8):
            k(f'v_mov_b32_dpp v{16+e}, v{8+(e&1)} quad_perm:[{e>>1},{e>>1},{e>>1},{e>>1}] row_mask:0xf bank_mask:0xf')
        k(f'''v_cvt_pk_bf16_f32 v13, v10, v11
v_lshlrev_b32 v10, 16, v13
v_and_b32 v11, 0xffff0000, v13
v_rcp_f32 v10, v10
v_rcp_f32 v11, v11''')
        for i in range(NT):
            d = 40 + 8 * i
            for e in range(0, 8, 2):
                k(f'v_pk_add_f32 {vr(d+e,2)}, {vr(d+e,2)}, {vr(16+e,2)} neg_lo:[0,1] neg_hi:[0,1]')
            if i == 0:
                for e in range(8):
                    k(f'v_mov_b32_dpp v{24+e}, v{10+(e&1)} quad_perm:[{e>>1},{e>>1},{e>>1},{e>>1}] row_mask:0xf bank_mask:0xf')
            o = 72 + 4 * i
            for r in range(4): k(f'v_cvt_pk_bf16_f32 v{o+r}, v{d+2*r}, v{d+2*r+1}')
            for r in range(4): k(f'v_lshlrev_b32 v{d+2*r}, 16, v{o+r}\nv_and_b32 v{d+1+2*r}, 0xffff0000, v{o+r}')
            for e in range(0, 8, 2):
                k(f'v_pk_mul_f32 {vr(d+e,2)}, {vr(d+e,2)}, {vr(24+e,2)}')
            for r in range(4): k(f'v_cvt_pk_bf16_f32 v{o+r}, v{d+2*r}, v{d+2*r+1}')
            k(f'buffer_store_dwordx4 {vr(o,4)}, v3, s[16:19], s44 offen sc1')
            if i < NT - 1: k('s_add_u32 s44, s44, 8192')
        tail(True, wq, rest)
    for g in range(2):
        for z in range(2):
            k(f'{L[g,z]}:')
            path(g, z)


def ph_g1s(k, opt, DONE, wb):
    assert W128 and not (wb and wb.ops)
    LH = k.label('h1')
    k(f's_lshl_b32 s49, s3, {FS}')
    g1id(k, 3, 35)
    k(f'''s_lshr_b32 s35, s3, 4
s_bfe_u32 s36, s3, 0x30001
s_and_b32 s37, s3, 1
s_and_b32 s38, s34, 3
s_lshl_b32 s39, s35, 2
s_add_u32 s39, s39, s38
s_lshr_b32 s46, s34, 2
v_and_b32 v2, 63, v0
v_and_b32 v6, 15, v2
v_lshrrev_b32 v7, 4, v2''')
    srd_from(k, 8, 40, 41, WS_HN, HN_BYTES)
    k(f'''v_lshrrev_b32 v8, 3, v6
v_and_b32 v10, 3, v6
v_lshl_add_u32 v8, v8, 2, v10
v_mul_u32_u24 v1, {HP}, v8
v_lshl_add_u32 v1, v7, 5, v1
v_bfe_u32 v10, v6, 2, 1
v_lshl_add_u32 v1, v10, 4, v1
s_lshr_b32 s44, s39, 1
s_mul_i32 s44, s44, {8*HP}
s_and_b32 s45, s38, 1
s_lshl_b32 s45, s45, 1
s_add_u32 s45, s45, s46
s_mul_i32 s45, s45, 2560
s_add_u32 s44, s44, s45
v_add_u32 v4, 57344, v3
v_add_u32 v5, 114688, v3''')
    k(f'''v_lshrrev_b32 v8, 2, v6
v_and_b32 v9, 1, v6
v_lshl_add_u32 v8, v8, 1, v9
v_lshlrev_b32 v8, 2, v8
v_lshl_add_u32 v8, v7, 5, v8
v_lshrrev_b32 v10, 1, v6
v_lshlrev_b32 v10, 7, v10
v_lshl_add_u32 v10, v7, 5, v10
v_lshl_add_u32 v10, v9, 4, v10
v_lshl_add_u32 v2, v10, 16, v8
v_mov_b32 v6, {fbits(C1)}
v_mov_b32 v7, {fbits(C0)}''')
    srd_from(k, 12, 40, 41, WS_Z1, A2_BYTES)
    srd_from(k, 16, 40, 41, WS_Z2, Z2N_BYTES)
    srd_from(k, 20, 40, 41, WS_PX, PX_BYTES)
    k(f'''s_and_b32 s47, s3, 15
s_lshl_b32 s53, s47, 7
s_lshl_b32 s47, s47, 4
s_add_u32 s47, s47, s35
s_lshl_b32 s47, s47, {FS}
s_add_u32 s47, s47, {FL2}
s_lshl_b32 s52, s39, 1
s_add_u32 s52, s52, s46
s_lshl_b32 s52, s52, 11
s_add_u32 s53, s53, s52
s_lshl_b32 s54, s36, 3
s_lshr_b32 s42, s39, 4
s_add_u32 s54, s54, s42
s_and_b32 s42, s39, 1
s_lshl_b32 s42, s42, 2
s_add_u32 s54, s54, s42
s_mul_i32 s54, s54, 56
s_bfe_u32 s42, s39, 0x30001
s_add_u32 s54, s54, s42
s_lshl_b32 s42, s37, 5
s_add_u32 s54, s54, s42
s_lshl_b32 s54, s54, 1
s_add_u32 s54, s54, s46
s_lshl_b32 s54, s54, 9
s_lshr_b32 s55, s39, 1
s_lshl_b32 s55, s55, 3
s_add_u32 s55, s55, s36
s_lshl_b32 s55, s55, 1
s_and_b32 s42, s39, 1
s_add_u32 s55, s55, s42
s_lshl_b32 s55, s55, 1
s_add_u32 s55, s55, s46
s_lshl_b32 s55, s55, 12
s_cmp_eq_u32 s36, 7
s_cselect_b32 s48, 0, -1
s_lshl_b32 s42, s35, {4+FS}
s_waitcnt vmcnt(0)
s_barrier''')
    st(k, 1, 3); st(k, 4, 7)
    W4 = k.label('w4'); WJ = k.label('wj')
    NOW = opt.get('now', 0)
    WT2 = opt.get('wt2', 0)
    k(f's_cmp_ge_u32 s34, 4\ns_cbranch_scc1 {W4}')
    if not NOW: w_trans(k, 12, 13, [0, 1, 2, 3], 43)
    k(f's_branch {WJ}\n{W4}:\ns_cmp_lg_u32 s34, 4\ns_cbranch_scc1 {WJ}')
    flag_poll(k, 49, 42, 16, opt.get('g1sl', 0), opt.get('g1d', 0))
    k(f'{WJ}:\ns_waitcnt lgkmcnt(0)\ns_barrier')
    st(k, 4, 8); st(k, 1, 4); st(k, 0, 3)
    AR = lambda kk: 32 + 4 * kk
    PD = opt.get('PD', 8)

    def aload(kk, vm=None):
        if kk >= 20: return
        k(f'buffer_load_dwordx4 {vr(AR(kk),4)}, v1, s[8:11], s44 offen offset:{128*kk}')
        if vm: vm.issue(f'a{kk}')
    for kk in range(PD): aload(kk)
    if WT2 and not NOW:
        W5 = k.label('w5')
        k(f's_cmp_lt_u32 s34, 4\ns_cbranch_scc1 {W5}')
        w_trans(k, 12, 13, list(range(WT2)), 43)
        k(f's_waitcnt lgkmcnt(0)\n{W5}:')
    k(f's_cmp_eq_u32 s37, 1\ns_cbranch_scc1 {LH}')
    LA = opt.get('LA', 5); LA1 = opt.get('LA1', 6)
    SC = opt.get('gsc', 0)
    ACC = lambda i: 112 + 4 * i

    def path(hh):
        vm = Cnt('vmcnt', 63); lg = Cnt('lgkmcnt', 15)
        for kk in range(PD): vm.issue(f'a{kk}')
        tz = [0, 1, 2, 3] if hh == 0 else [4, 5, 6]
        t1 = [4, 5, 6] if hh == 0 else [0, 1, 2, 3]

        def gpass(tiles, z2, free, la, ev=None, order=None, fill=None, R=0):
            order = order or [(kk, i) for kk in range(20) for i in range(len(tiles))]
            last = {}
            for f, (kk, i) in enumerate(order): last[kk] = f
            buf = {}; nr = [0]; pend = []

            def reads(f):
                while nr[0] < len(order) and nr[0] <= f + la and free:
                    q = nr[0]; kk, i = order[q]
                    b = free.pop(0); buf[q] = b
                    a = BB + kk * 7168 + tiles[i] * 1024
                    k(f'ds_read_b128 {vr(b,4)}, v{3+a//57344} offset:{a%57344}'); lg.issue(f'b{z2}_{q}')
                    nr[0] += 1
            reads(-1)
            for f, (kk, i) in enumerate(order):
                x = vm.wait(f'a{kk}')
                if x: k(x)
                if z2 and i == 0 and kk in (0, 10): st(k, 1, 5 + kk // 10)
                x = lg.wait(f'b{z2}_{f}')
                if x: k(x)
                acc = vr(ACC(i), 4); c = '0' if kk == 0 else acc
                b = vr(buf[f], 4); a = vr(AR(kk), 4)
                k(f'{MFMA} {acc}, {a}, {b}, {c}' if z2 else f'{MFMA} {acc}, {b}, {a}, {c}')
                free += pend; pend = [buf[f]]
                if not z2 and last[kk] == f: pend.append(AR(kk))
                reads(f)
                if z2 and i == 0: aload(kk + PD, vm)
                if ev and f in ev:
                    for e in ev[f]: e()
                if fill:
                    for _ in range(R):
                        if fill and fill[0][0] <= f:
                            o = fill.pop(0)[1]
                            o() if callable(o) else k(o)
        if opt.get('zprio'): k(f's_setprio {opt["zprio"]}')
        gpass(tz, 1, [8, 12, 16, 20, 24, 28], LA)
        st(k, 1, 7); st(k, 0, 4); st(k, 4, 9)
        S = 20; Q = 8
        prs = [(0, 2), (2, 2)] if hh == 0 else [(0, 2), (2, 1)]
        for pi, (i0, nt) in enumerate(prs):
            xp = 24 + 2 * i0; a = ACC(i0); n = 4 * nt
            for h in range(2 * nt): k(f'v_cvt_pk_bf16_f32 v{xp+h}, v{a+2*h}, v{a+2*h+1}')
            if hh:
                for h in range(2 * nt):
                    if tz[i0 + h // 2] >= 5: k(f'v_and_b32 v{xp+h}, s48, v{xp+h}')
            gelu_pk(k, xp, n, a, 12, xp, 6, sc=(SC > 0))
            for h in range(2 * nt):
                k(f'v_lshlrev_b32 v{a+2*h}, 16, v{xp+h}\nv_and_b32 v{a+1+2*h}, 0xffff0000, v{xp+h}')
            if SC > 0:
                for e in range(n):
                    r = e & 3
                    if pi == 0 and e < 4: k(f'v_mul_f32 v{Q+r}, v{a+e}, v{a+e}')
                    elif pi == 0: k(f'v_add_f32 v{S+r}, v{a+r}, v{a+e}\nv_fmac_f32 v{Q+r}, v{a+e}, v{a+e}')
                    else: k(f'v_add_f32 v{S+r}, v{S+r}, v{a+e}\nv_fmac_f32 v{Q+r}, v{a+e}, v{a+e}')
            else:
                for e in range(0, n, 2):
                    r = e & 3
                    d = vr(a + e, 2); q = vr(Q + r, 2); s_ = vr(S + r, 2)
                    if pi == 0 and e < 4: k(f'v_pk_mul_f32 {q}, {d}, {d}')
                    elif pi == 0: k(f'v_pk_add_f32 {s_}, {vr(a+r,2)}, {d}\nv_pk_fma_f32 {q}, {d}, {d}, {q}')
                    else: k(f'v_pk_add_f32 {s_}, {s_}, {d}\nv_pk_fma_f32 {q}, {d}, {d}, {q}')
        V = []
        for r in range(4): V += [S + r, Q + r]
        for i in range(4): k(f'v_add_f32_dpp v{V[i]}, v{V[i]}, v{V[i]} row_ror:8 row_mask:0xf bank_mask:0x3')
        for i in range(4): k(f'v_add_f32_dpp v{V[i]}, v{V[i+4]}, v{V[i+4]} row_ror:8 row_mask:0xf bank_mask:0xc')
        for i in range(2): k(f'v_add_f32_dpp v{V[i]}, v{V[i]}, v{V[i]} row_half_mirror row_mask:0xf bank_mask:0x5')
        k('v_and_b32 v12, 0xffff, v2')
        for i in range(2): k(f'v_add_f32_dpp v{V[i]}, v{V[i+2]}, v{V[i+2]} row_half_mirror row_mask:0xf bank_mask:0xa')
        k('v_lshrrev_b32 v1, 16, v2\ns_mov_b32 vcc_lo, 0xaaaaaaaa\ns_mov_b32 vcc_hi, 0xaaaaaaaa')
        for m in ('quad_perm:[1,0,3,2]', 'quad_perm:[2,3,0,1]'):
            for i in range(2): k(f'v_add_f32_dpp v{V[i]}, v{V[i]}, v{V[i]} {m} row_mask:0xf bank_mask:0xf')
        k(f'''v_cndmask_b32 v13, v{V[0]}, v{V[1]}, vcc
buffer_store_dword v13, v12, s[20:23], s53 offen sc1''')
        vm.issue('px')
        st(k, 1, 8)
        if opt.get('zprio'): k('s_setprio 0')
        n1 = 20 * len(t1)
        PB = 32

        def pxld():
            for i in range(2): k(f'buffer_load_dwordx4 {vr(PB+4*i,4)}, v1, s[20:23], s52 offen offset:{1024*i} sc1')
        ev = {}
        PXE = opt.get('pxe', 12)
        ev[n1 - 1 - PXE] = [lambda: (pxld(), vm.issue('pl'), vm.issue('pl'))]

        class Pool(list):
            def __iadd__(self, o):
                return list.__iadd__(self, [x for x in o if x not in (32, 36)])
        gpass(t1, 0, Pool([16, 8, 20, 12]), LA1, ev)
        st(k, 1, 9)
        LP = k.label('lp'); LD = k.label('ld'); L1 = k.label('l1')
        k(f'''v_and_b32 v2, 31, v0
v_lshlrev_b32 v2, 4, v2
v_bfe_u32 v4, v0, 5, 1
v_lshl_add_u32 v2, v4, 13, v2
v_mov_b32 v4, {fbits(1.0/864)}
s_mov_b32 s43, {SPIN}
s_branch {L1}
{LP}:''')
        if opt.get('pxs'): k(f"s_sleep {opt['pxs']}")
        pxld()
        k(f'''{L1}:
s_waitcnt vmcnt(0)
v_max3_u32 v8, v32, v33, v34
v_max3_u32 v9, v35, v36, v37
v_max3_u32 v8, v8, v38, v39
v_max_u32 v8, v8, v9
v_cmp_eq_u32 vcc, -1, v8''')
        for r in range(4): k(f'v_add_f32 v{40+r}, v{32+r}, v{36+r}')
        k(f'''s_cbranch_vccz {LD}
s_sub_u32 s43, s43, 1
s_cmp_lg_u32 s43, 0
s_cbranch_scc1 {LP}
{LD}:''')
        st(k, 0, 9); st(k, 6, 1)
        for m in ('row_ror:2', 'row_ror:4', 'row_ror:8'):
            for r in range(4): k(f'v_add_f32_dpp v{40+r}, v{40+r}, v{40+r} {m} row_mask:0xf bank_mask:0xf')
        for r in range(4): k(f'v_mul_f32 v{40+r}, v{40+r}, v4')
        k(f'''v_fma_f32 v41, -v40, v40, v41
v_fma_f32 v43, -v42, v42, v43
v_max_f32 v41, 0, v41
v_max_f32 v43, 0, v43
v_cvt_pk_bf16_f32 v12, v40, v42
v_cvt_pk_bf16_f32 v13, v41, v43
v_lshlrev_b32 v8, 16, v12
v_and_b32 v9, 0xffff0000, v12
v_lshlrev_b32 v10, 16, v13
v_and_b32 v11, 0xffff0000, v13
v_add_f32 v10, 0x3727c5ac, v10
v_add_f32 v11, 0x3727c5ac, v11
v_cvt_pk_bf16_f32 v13, v10, v11
v_lshlrev_b32 v10, 16, v13
v_and_b32 v11, 0xffff0000, v13
v_sqrt_f32 v10, v10
v_sqrt_f32 v11, v11''')
        for r in range(4):
            k(f'v_mov_b32_dpp v{16+r}, v{8+(r&1)} quad_perm:[{r>>1},{r>>1},{r>>1},{r>>1}] row_mask:0xf bank_mask:0xf')
        k(f'''v_cvt_pk_bf16_f32 v13, v10, v11
v_lshlrev_b32 v10, 16, v13
v_and_b32 v11, 0xffff0000, v13
v_rcp_f32 v10, v10
v_rcp_f32 v11, v11''')
        NT = len(tz)
        D = 48
        for h in range(2 * NT):
            k(f'v_lshlrev_b32 v{D+2*h}, 16, v{24+h}\nv_and_b32 v{D+1+2*h}, 0xffff0000, v{24+h}')
        for h in range(2 * NT):
            k(f'v_pk_add_f32 {vr(D+2*h,2)}, {vr(D+2*h,2)}, {vr(16+2*(h&1),2)} neg_lo:[0,1] neg_hi:[0,1]')
        for r in range(4):
            k(f'v_mov_b32_dpp v{20+r}, v{10+(r&1)} quad_perm:[{r>>1},{r>>1},{r>>1},{r>>1}] row_mask:0xf bank_mask:0xf')
        for pi, (i0, nt) in enumerate(prs):
            hs = range(2 * i0, 2 * i0 + 2 * nt)
            for h in hs: k(f'v_cvt_pk_bf16_f32 v{24+h}, v{D+2*h}, v{D+2*h+1}')
            for h in hs: k(f'v_lshlrev_b32 v{D+2*h}, 16, v{24+h}\nv_and_b32 v{D+1+2*h}, 0xffff0000, v{24+h}')
            for h in hs: k(f'v_pk_mul_f32 {vr(D+2*h,2)}, {vr(D+2*h,2)}, {vr(20+2*(h&1),2)}')
            for h in hs: k(f'v_cvt_pk_bf16_f32 v{24+h}, v{D+2*h}, v{D+2*h+1}')
            xp = 24 + 2 * i0
            if nt == 1:
                for h in hs: k(f'v_cvt_pk_bf16_f32 v{26+h}, v{D+2*h}, v{D+2*h+1}')
            k(f'v_permlane32_swap_b32 v{xp}, v{xp+2}\nv_permlane32_swap_b32 v{xp+1}, v{xp+3}')
            if nt == 1: k('s_mov_b32 exec_hi, 0')
            k(f'buffer_store_dwordx4 {vr(xp,4)}, v2, s[16:19], s54 offen sc1')
            if nt == 1: k('s_mov_b32 exec_hi, -1')
            if pi == 0: k('s_add_u32 s54, s54, 16384')
        st(k, 6, 2)
        k('v_lshrrev_b32 v1, 1, v3')
        p1 = [(0, 2, 2048), (2, 1, 3072)] if hh == 0 else [(0, 2, 0), (2, 2, 1024)]
        for pi, (i0, nt, off) in enumerate(p1):
            o = 8 + 4 * pi; a = ACC(i0)
            for h in range(2 * nt): k(f'v_cvt_pk_bf16_f32 v{o+h}, v{a+2*h}, v{a+2*h+1}')
            gelu_pk(k, o, 4 * nt, 32 + 16 * pi, 40 + 16 * pi, o, 6, sc=(SC > 1))
            if nt == 2: k(f'buffer_store_dwordx4 {vr(o,4)}, v3, s[12:15], s55 offen offset:{off} sc1')
            else: k(f'buffer_store_dwordx2 {vr(o,2)}, v1, s[12:15], s55 offen offset:{off} sc1')
        st(k, 6, 3)
        map_g2(k)
        k('s_load_dwordx2 s[24:25], s[0:1], 48\ns_waitcnt vmcnt(0)')
        st(k, 0, 5); st(k, 6, 4)
        T4 = k.label('t4'); TJ = k.label('tj')
        k(f'''s_barrier
s_cmp_ge_u32 s34, 4
s_cbranch_scc1 {T4}
s_cmp_lg_u32 s34, 0
s_cbranch_scc1 {TJ}
s_lshl_b32 s44, s36, {5+FS}
s_add_u32 s44, s44, {FL2}''')
        flag_poll(k, 47, 44, 32, opt.get('g2sl', 0), opt.get('g2d', 0))
        k(f's_branch {TJ}\n{T4}:')
        if not NOW: w_trans(k, 12, 13, list(range(WT2, 4)), 43)
        st(k, 6, 5)
        k(f'{TJ}:\ns_waitcnt lgkmcnt(0)\ns_barrier\ns_branch {DONE}')
    path(0)
    k(f'{LH}:')
    path(1)


def ph_g1t(k, opt, DONE, wb):
    assert W128 and not (wb and wb.ops) and not G1S
    LH = k.label('h1')
    ZC = 20000; NL = '\n'
    HP0 = opt.get('hp0', 10240)
    k(f's_lshl_b32 s49, s3, {FS}')
    g1id(k, 3, 35)
    k(f'''s_lshr_b32 s35, s3, 4
s_bfe_u32 s36, s3, 0x30001
s_and_b32 s37, s3, 1
s_and_b32 s38, s34, 3
s_lshl_b32 s39, s35, 2
s_add_u32 s39, s39, s38
s_lshr_b32 s46, s34, 2
v_and_b32 v2, 63, v0
v_and_b32 v6, 15, v2
v_lshrrev_b32 v7, 4, v2''')
    srd_from(k, 8, 40, 41, WS_HN, 0x300000)
    WD5 = opt.get('wd5', 0)
    if WD5:
        k(f'''v_mov_b32 v0, v124
s_mov_b32 s74, {2048*4096}
s_mov_b32 s50, s78
s_mov_b32 s51, s79
s_cmp_ge_u32 s34, s101
s_cselect_b64 s[100:101], -1, 0''')
    k(f'''v_lshrrev_b32 v8, 2, v6
v_and_b32 v10, 3, v6
v_mul_u32_u24 v1, {HP0}, v8
v_lshl_add_u32 v1, v7, 6, v1
v_lshl_add_u32 v1, v10, 4, v1
s_and_b32 s44, s39, -2
s_add_u32 s44, s44, s46
s_mul_i32 s44, s44, {4*HP0}
s_and_b32 s45, s38, 1
s_mul_i32 s45, s45, 5120
s_add_u32 s44, s44, s45
s_add_u32 s45, s44, 4096
v_add_u32 v4, 57344, v3
v_add_u32 v5, 114688, v3''')
    k(f'''v_and_b32 v9, 1, v6
v_lshl_add_u32 v9, v8, 1, v9
v_lshlrev_b32 v9, 2, v9
v_lshl_add_u32 v9, v7, 6, v9
v_lshlrev_b32 v8, 8, v8
v_lshl_add_u32 v8, v7, 6, v8
v_lshl_add_u32 v8, v10, 4, v8
v_lshl_add_u32 v2, v8, 16, v9
v_mov_b32 v6, {fbits(C0 if GV else C1)}
v_mov_b32 v7, {fbits(C0)}
s_mov_b32 s62, {fbits(C1)}
s_mov_b32 s63, {fbits(C1)}''')
    srd_from(k, 12, 40, 41, WS_Z1, A2_BYTES)
    srd_from(k, 16, 40, 41, WS_Z2, Z2N_BYTES)
    srd_from(k, 20, 40, 41, WS_PX, PX_BYTES)
    k(f'''s_and_b32 s47, s3, 15
s_lshl_b32 s53, s47, 8
s_lshl_b32 s47, s47, 4
s_add_u32 s47, s47, s35
s_lshl_b32 s47, s47, {FS}
s_add_u32 s47, s47, {FL2}
s_lshl_b32 s52, s39, 12
s_add_u32 s53, s53, s52
s_lshl_b32 s42, s46, 5
s_add_u32 s53, s53, s42
s_lshl_b32 s54, s36, 3
s_lshr_b32 s42, s39, 4
s_add_u32 s54, s54, s42
s_and_b32 s42, s39, 1
s_lshl_b32 s42, s42, 2
s_add_u32 s54, s54, s42
s_mul_i32 s54, s54, 56
s_bfe_u32 s42, s39, 0x30001
s_add_u32 s54, s54, s42
s_lshl_b32 s42, s37, 5
s_add_u32 s54, s54, s42
s_lshl_b32 s42, s46, 4
s_add_u32 s54, s54, s42
s_lshl_b32 s54, s54, 10
s_add_u32 s56, s54, 8192
s_and_b32 s42, s37, s46
s_cmp_eq_u32 s42, 1
s_cselect_b32 s56, {BIG}, s56
s_lshr_b32 s55, s39, 1
s_lshl_b32 s55, s55, 3
s_add_u32 s55, s55, s36
s_lshl_b32 s55, s55, 1
s_and_b32 s42, s39, 1
s_add_u32 s55, s55, s42
s_lshl_b32 s55, s55, 1
s_add_u32 s55, s55, s46
s_lshl_b32 s55, s55, 12
s_cmp_eq_u32 s36, 7
s_cselect_b32 s48, 0, -1
s_cselect_b32 s59, 0xffff, -1
s_lshl_b32 s58, s38, 12
s_lshl_b32 s57, s46, 3
s_add_u32 s57, s57, s58
s_lshl_b32 s42, s46, 11
s_add_u32 s58, s58, s42
s_lshl_b32 s42, s35, {4+FS}
s_waitcnt vmcnt({2 if opt.get('hd') else 0})
s_barrier''')
    st(k, 1, 3); st(k, 4, 7)
    if opt.get('zq'): k(f'v_mov_b32 v14, {ZC}\nv_mov_b32 v15, 0\nds_write_b32 v14, v15')
    W4 = k.label('w4'); WJ = k.label('wj')
    NOW = opt.get('now', 0)
    k(f's_cmp_ge_u32 s34, 4\ns_cbranch_scc1 {W4}')
    WG_ = [0, 1, 2, 3][opt.get('wte', 0):]
    ZH = opt.get('zh')
    if ZH:
        assert opt.get('zq') and not opt.get('zw')
        W5 = k.label('w5')
        w_trans(k, 12, 13, list(range(ZH[0])), 43)
        k(f's_waitcnt lgkmcnt(0)\ns_barrier\ns_cmp_lg_u32 s34, 0\ns_cbranch_scc1 {WJ}\nv_lshrrev_b32 v10, 4, v3\nv_lshlrev_b32 v10, {FS}, v10')
        flag_poll(k, 49, 42, 16, opt.get('g1sl', 0), opt.get('g1d', 0), part=2)
        k(f's_branch {WJ}\n{W4}:\ns_cmp_lg_u32 s34, 4\ns_cbranch_scc1 {W5}')
        flag_poll(k, 49, 42, 16, part=1)
        k(f'{W5}:\ns_barrier')
        w_trans(k, 12, 13, list(range(ZH[1])), 43)
        W4 = k.label('w4')
    elif not NOW: w_trans(k, 12, 13, WG_, 43)
    WTC = opt.get('wtc')
    WT5 = k.label('w5')
    k(f's_branch {WJ}\n{W4}:\ns_cmp_lg_u32 s34, 4\ns_cbranch_scc1 {WJ if WTC is None else WT5}')
    flag_poll(k, 49, 42, 16, opt.get('g1sl', 0), opt.get('g1d', 0))
    if WTC is not None:
        k(f's_branch {WJ}\n{WT5}:')
        if WTC: k(f's_sleep {WTC}')
        srd_from(k, 28, 40, 41, WS_WO, WO8_BYTES)
        k(f'''s_and_b32 s60, s2, 1
s_lshl_b32 s60, s60, 5
s_lshr_b32 s61, s2, 3
s_add_u32 s60, s60, s61
s_mul_i32 s60, s60, {WOB}
s_sub_u32 s61, s34, 5
s_mul_i32 s61, s61, {47*128}
s_add_u32 s60, s60, s61
v_lshlrev_b32 v113, 3, v3
s_mov_b32 exec_hi, 0x7fff
buffer_load_ubyte v112, v113, s[28:31], s60 offen
s_mov_b32 exec_hi, -1''')
    k(f'{WJ}:\ns_waitcnt lgkmcnt(0)\ns_barrier')
    st(k, 4, 8); st(k, 1, 4); st(k, 0, 3)
    AR = lambda kk: 32 + 4 * kk
    PD = opt.get('PD', 8)

    def aload(kk, vm=None):
        if kk >= 20: return
        k(f'buffer_load_dwordx4 {vr(AR(kk),4)}, v1, s[8:11], s{44+kk//16} offen offset:{256*(kk%16)}')
        if vm: vm.issue(f'a{kk}')
    for kk in range(PD): aload(kk)
    ZW = opt.get('zw', 0)
    if ZW:
        L = k.label('zw')
        k(f's_cmp_lt_u32 s34, 4\ns_cbranch_scc1 {L}')
        w_trans(k, 112, 113, list(range(ZW)), 43)
        k(f'{L}:')
    k(f's_cmp_eq_u32 s37, 1\ns_cbranch_scc1 {LH}')
    LA = opt.get('LA', 5); LA1 = opt.get('LA1', 6)
    SC = opt.get('gsc', 0)
    ACC = lambda i: 112 + 4 * i
    X4 = opt.get('g3v') == 4
    ZQ = opt.get('zq', 0)
    assert not (ZQ and X4)

    def rbar(lo):
        if opt.get('nrb'): return
        L = k.label('rb')
        k(f's_cmp_lt_u32 s34, 4\ns_cbranch_scc{int(not lo)} {L}\ns_barrier')
        for g in range(opt.get('stm', 0) if lo else 0):
            k(f's_add_u32 m0, s61, {100*1024+4096*g}')
            for j in range(3 if g == 3 else 4): k(f'buffer_load_dwordx4 v3, s[28:31], s60 offen offset:{1024*j} lds')
            k('s_add_u32 s60, s60, 4096')
        k(f'{L}:')

    def path(hh):
        vm = Cnt('vmcnt', 63); lg = Cnt('lgkmcnt', 15)
        for kk in range(PD): vm.issue(f'a{kk}')
        tz = [0, 1, 2, 3] if hh == 0 else [4, 5, 6]
        t1 = [4, 5, 6] if hh == 0 else [0, 1, 2, 3]

        def gpass(tiles, z2, free, la, ev=None, keep=(), tm=0):
            order = [(kk, i) for kk in range(20) for i in range(len(tiles))]
            if tm: order = [(kk, i) for i in range(len(tiles)) for kk in range(20)]
            last = {}
            for f, (kk, i) in enumerate(order): last[kk] = f
            buf = {}; nr = [0]; pend = []

            def reads(f):
                while nr[0] < len(order) and nr[0] <= f + la and free:
                    q = nr[0]; kk, i = order[q]
                    b = free.pop(0); buf[q] = b
                    a = BB + kk * 7168 + tiles[i] * 1024
                    if X4 or ZQ: a = BB + ((20 * (7 - len(tiles)) if z2 else 0) + kk * len(tiles) + i) * 1024
                    k(f'ds_read_b128 {vr(b,4)}, v{3+a//57344} offset:{a%57344}'); lg.issue(f'b{z2}_{q}')
                    nr[0] += 1
            reads(-1)
            for f, (kk, i) in enumerate(order):
                x = vm.wait(f'a{kk}')
                if x: k(x)
                if z2 and i == 0 and kk in (0, 10): st(k, 1, 5 + kk // 10)
                x = lg.wait(f'b{z2}_{f}')
                if x: k(x)
                acc = vr(ACC(i), 4); c = '0' if kk == 0 else acc
                b = vr(buf[f], 4); a = vr(AR(kk), 4)
                k(f'{MFMA} {acc}, {a}, {b}, {c}' if z2 else f'{MFMA} {acc}, {b}, {a}, {c}')
                free.extend(pend); pend = [buf[f]]
                if not z2 and last[kk] == f and AR(kk) not in keep: pend.append(AR(kk))
                reads(f)
                if z2 and i == 0: aload(kk + PD, vm)
                if ev and f in ev:
                    for e in ev[f]: e()
        if opt.get('zprio'): k(f's_setprio {opt["zprio"]}')
        def role(lo, f):
            def g():
                L = k.label('ro')
                k(f's_cmp_lt_u32 s34, 4\ns_cbranch_scc{int(not lo)} {L}')
                f()
                k(f'{L}:')
            return g
        ev2 = {}
        if ZW:
            ZB = opt.get('zwb', [10, 2])
            for r in range(2): ev2.setdefault(ZB[r] * len(tz), []).append(role(not r, lambda: k('s_barrier')))
        gpass(tz, 1, [8, 12, 16, 20, 24, 28], LA, ev2)
        st(k, 1, 7); st(k, 0, 4); st(k, 4, 9)
        if X4:
            assert not opt.get('g2m')
            rbar(False)
            srd_from(k, 28, 40, 41, WS_WO, WO8_BYTES)
            k(f'''s_and_b32 s60, s2, 1
s_lshl_b32 s60, s60, 2
s_lshr_b32 s61, s2, 6
s_add_u32 s60, s60, s61
s_mul_i32 s60, s60, {8*WOB}
s_mul_i32 s61, s34, {15*1024}
s_add_u32 s60, s60, s61''')
        WD4 = opt.get('wd4', 0)
        def wdef(a, b, t0=12):
            SK = k.label('wd')
            k(f's_cmp_lt_u32 s34, 4\ns_cbranch_scc1 {SK}')
            if a == 0: k(f's_mov_b32 s74, {2048*4096}\ns_mov_b32 s50, s82\ns_add_u32 s51, s50, 4096')
            w_vaddr(k, t0, t0 + 1)
            for o in g2_wops()[a:b]: k(o.replace('@', f'v{t0}'))
            k(f'{SK}:')
        if WD4: wdef(0, WD4)
        dq = []
        for o in (g2_wops()[32-WD5:] if WD5 else []):
            o = o.split('\n')
            dq.append('\n'.join(['s_mov_b64 exec, s[100:101]', o[0], 's_mov_b64 exec, -1'] + o[1:]))
        dq = Bulk(k, dq)
        ig0 = len(k.lines)
        S = 20; Q = 8
        L2Z = opt.get('lean', 0) & 32
        k('v_add_u32 v1, s57, v3')
        prs = [(0, 2), (2, 2)] if hh == 0 else [(0, 2), (2, 1)]
        for pi, (i0, nt) in enumerate(prs):
            xp = 24 + 2 * i0; a = ACC(i0); n = 4 * nt
            if X4 and pi == opt.get('rbp', 1): rbar(True)
            if L2Z:
                for t in range(nt):
                    c = a + 4 * t
                    k(f'v_permlane32_swap_b32 v{c}, v{c+2}\nv_permlane32_swap_b32 v{c+1}, v{c+3}')
                for t in range(nt):
                    c = a + 4 * t
                    k(f'v_permlane16_swap_b32 v{c}, v{c+1}\nv_permlane16_swap_b32 v{c+2}, v{c+3}')
                for t in range(nt):
                    if hh and i0 + t > 0:
                        for r in range(4): k(f'v_and_b32 v{a+4*t+r}, s48, v{a+4*t+r}')
                gelu_pk(k, None, n, a, 12, xp, 6)
            elif nt == 2:
                for r in range(4): k(f'v_cvt_pk_bf16_f32 v{xp+r}, v{a+r}, v{a+4+r}')
                if hh:
                    for r in range(4): k(f'v_and_b32 v{xp+r}, s59, v{xp+r}')
                k(f'''v_permlane32_swap_b32 v{xp}, v{xp+2}
v_permlane32_swap_b32 v{xp+1}, v{xp+3}
v_permlane16_swap_b32 v{xp}, v{xp+1}
v_permlane16_swap_b32 v{xp+2}, v{xp+3}''')
                gelu_pk(k, xp, 8, a, 12, xp, 6, tr=True, sc=(SC > 0))
            else:
                k(f'''v_permlane32_swap_b32 v{a}, v{a+2}
v_permlane32_swap_b32 v{a+1}, v{a+3}
v_permlane16_swap_b32 v{a}, v{a+1}
v_permlane16_swap_b32 v{a+2}, v{a+3}''')
                for h in range(2): k(f'v_cvt_pk_bf16_f32 v{xp+h}, v{a+2*h}, v{a+2*h+1}')
                for h in range(2): k(f'v_and_b32 v{xp+h}, s48, v{xp+h}')
                gelu_pk(k, xp, 4, a, 12, xp, 6, sc=(SC > 0))
            for t in range(nt):
                k(f'ds_write_b64 v1, {vr(xp+2*t,2)} offset:{1024*(i0+t)}'); lg.issue('x')
            for h in range(0 if L2Z else 2 * nt):
                k(f'v_lshlrev_b32 v{a+2*h}, 16, v{xp+h}\nv_and_b32 v{a+1+2*h}, 0xffff0000, v{xp+h}')
            if L2Z: a = 12
            if SC > 0:
                for e in range(n):
                    r = e & 3
                    if pi == 0 and e < 4: k(f'v_mul_f32 v{Q+r}, v{a+e}, v{a+e}')
                    elif pi == 0: k(f'v_add_f32 v{S+r}, v{a+r}, v{a+e}\nv_fmac_f32 v{Q+r}, v{a+e}, v{a+e}')
                    else: k(f'v_add_f32 v{S+r}, v{S+r}, v{a+e}\nv_fmac_f32 v{Q+r}, v{a+e}, v{a+e}')
            else:
                for e in range(0, n, 2):
                    r = e & 3
                    d = vr(a + e, 2); q = vr(Q + r, 2); s_ = vr(S + r, 2)
                    if pi == 0 and e < 4: k(f'v_pk_mul_f32 {q}, {d}, {d}')
                    elif pi == 0: k(f'v_pk_add_f32 {s_}, {vr(a+r,2)}, {d}\nv_pk_fma_f32 {q}, {d}, {d}, {q}')
                    else: k(f'v_pk_add_f32 {s_}, {s_}, {d}\nv_pk_fma_f32 {q}, {d}, {d}, {q}')
        weave_in(k, ig0, dq, opt.get('wdg', 20), None, 0)
        V = []
        for r in range(4): V += [S + r, Q + r]
        for i in range(4): k(f'v_add_f32_dpp v{V[i]}, v{V[i]}, v{V[i]} row_ror:8 row_mask:0xf bank_mask:0x3')
        for i in range(4): k(f'v_add_f32_dpp v{V[i]}, v{V[i+4]}, v{V[i+4]} row_ror:8 row_mask:0xf bank_mask:0xc')
        for i in range(2): k(f'v_add_f32_dpp v{V[i]}, v{V[i]}, v{V[i]} row_half_mirror row_mask:0xf bank_mask:0x5')
        k('v_and_b32 v12, 0xffff, v2')
        for i in range(2): k(f'v_add_f32_dpp v{V[i]}, v{V[i+2]}, v{V[i+2]} row_half_mirror row_mask:0xf bank_mask:0xa')
        k('v_lshrrev_b32 v1, 16, v2\ns_mov_b32 vcc_lo, 0xaaaaaaaa\ns_mov_b32 vcc_hi, 0xaaaaaaaa')
        for m in ('quad_perm:[1,0,3,2]', 'quad_perm:[2,3,0,1]'):
            for i in range(2): k(f'v_add_f32_dpp v{V[i]}, v{V[i]}, v{V[i]} {m} row_mask:0xf bank_mask:0xf')
        k(f'''v_cndmask_b32 v13, v{V[0]}, v{V[1]}, vcc
buffer_store_dword v13, v12, s[20:23], s53 offen sc1
v_add_u32 v2, s58, v3''')
        vm.issue('px')
        if X4 and opt.get('rbp', 1) == 2: rbar(True)
        if WD4 and WD4 < 32: wdef(WD4, 32, 16)
        st(k, 1, 8)
        if opt.get('zprio'): k('s_setprio 0')
        if opt.get('zs0'):
            L = k.label('z0')
            k(f's_cmp_ge_u32 s34, 4\ns_cbranch_scc1 {L}\ns_sleep {opt["zs0"]}\n{L}:')
        n1 = 20 * len(t1)
        PB = 32; XR = 48

        def pxld():
            for i in range(4): k(f'buffer_load_dwordx4 {vr(PB+4*i,4)}, v1, s[20:23], s52 offen offset:{1024*i} sc1')

        ZS = opt.get('zs', 0)

        def xrd():
            k('s_barrier')
            for t in range(2):
                k(f'ds_read_b128 {vr(XR+4*t,4)}, v2 offset:{1024*t}')
                if not ZS: lg.issue('xr')
        if ZQ:
            assert opt.get('lean', 0) & 68 == 68 and not SC and not dq.ops
            p1 = [(0, 2, 2048), (2, 1, 3072)] if hh == 0 else [(0, 2, 0), (2, 2, 1024)]
            zg = lambda pi: gelu_pk(k, None, 4 * p1[pi][1], ACC(p1[pi][0]), 80 + 16 * pi, 72 + 4 * pi, 6)

            def pxl(PB):
                for i in range(4): k(f'buffer_load_dwordx4 {vr(PB+4*i,4)}, v1, s[20:23], s52 offen offset:{1024*i} sc1')

            def xr(XR):
                for t in range(2): k(f'ds_read_b128 {vr(XR+4*t,4)}, v2 offset:{1024*t}')

            def unp(D, XR, n):
                for h in range(n): k(f'v_lshlrev_b32 v{D+2*h}, 16, v{XR+h}\nv_and_b32 v{D+1+2*h}, 0xffff0000, v{XR+h}')

            def norm(PB, XR, D, late, pre=None):
                LP = k.label('lp'); LD = k.label('ld'); L1 = k.label('l1')
                k(f's_mov_b32 s43, {SPIN}')
                if not late:
                    k('s_waitcnt lgkmcnt(0)')
                    unp(D, XR, 8)
                if pre: pre()
                k(f's_branch {L1}\n{LP}:')
                if opt.get('pxs'): k(f"s_sleep {opt['pxs']}")
                pxl(PB)
                P = lambda i: f'v{PB+i}'
                k(f'''{L1}:
s_waitcnt vmcnt(2)
v_max3_u32 v24, {P(0)}, {P(1)}, {P(2)}
v_max3_u32 v25, {P(3)}, {P(4)}, {P(5)}
v_max3_u32 v24, v24, {P(6)}, {P(7)}''')
                for r in range(4): k(f'v_add_f32 v{28+r}, {P(r)}, {P(4+r)}')
                k(f'''s_waitcnt vmcnt(0)
v_max3_u32 v25, v25, {P(8)}, {P(9)}
v_max3_u32 v24, v24, {P(10)}, {P(11)}
v_max3_u32 v25, v25, {P(12)}, {P(13)}
v_max3_u32 v24, v24, {P(14)}, {P(15)}
v_max_u32 v24, v24, v25
v_cmp_eq_u32 vcc, -1, v24''')
                for r in range(4): k(f'v_add_f32 v{16+r}, {P(8+r)}, {P(12+r)}')
                k(f'''s_cbranch_vccz {LD}
s_sub_u32 s43, s43, 1
s_cmp_lg_u32 s43, 0
s_cbranch_scc1 {LP}
{LD}:''')
                if late: xr(XR)
                st(k, 0, 9); st(k, 6, 1)
                for r in range(4): k(f'v_add_f32 v{28+r}, v{28+r}, v{16+r}')
                for m in ('row_ror:4', 'row_ror:8'):
                    for r in range(4): k(f'v_add_f32_dpp v{28+r}, v{28+r}, v{28+r} {m} row_mask:0xf bank_mask:0xf')
                for r in range(4): k(f'v_mul_f32 v{28+r}, {fbits(1.0/864)}, v{28+r}')
                k(f'''v_fma_f32 v29, -v28, v28, v29
v_fma_f32 v31, -v30, v30, v31
v_max_f32 v29, 0, v29
v_max_f32 v31, 0, v31
v_cvt_pk_bf16_f32 v12, v28, v30
v_cvt_pk_bf16_f32 v13, v29, v31
v_lshlrev_b32 v8, 16, v12
v_and_b32 v9, 0xffff0000, v12
v_lshlrev_b32 v10, 16, v13
v_and_b32 v11, 0xffff0000, v13
v_add_f32 v10, 0x3727c5ac, v10
v_add_f32 v11, 0x3727c5ac, v11
v_cvt_pk_bf16_f32 v13, v10, v11
v_lshlrev_b32 v10, 16, v13
v_and_b32 v11, 0xffff0000, v13
v_sqrt_f32 v10, v10
v_sqrt_f32 v11, v11''')
                for e in range(8):
                    k(f'v_mov_b32_dpp v{16+e}, v{8+(e&1)} quad_perm:[{e>>1},{e>>1},{e>>1},{e>>1}] row_mask:0xf bank_mask:0xf')
                k(f'''v_cvt_pk_bf16_f32 v13, v10, v11
v_lshlrev_b32 v10, 16, v13
v_and_b32 v11, 0xffff0000, v13
v_rcp_f32 v10, v10
v_rcp_f32 v11, v11''')
                for i in range(2):
                    d = D if late else D + 8 * i
                    o = XR + 4 * i
                    if late:
                        k(f's_waitcnt lgkmcnt({1-i})')
                        unp(d, o, 4)
                    for e in range(0, 8, 2):
                        k(f'v_pk_add_f32 {vr(d+e,2)}, {vr(d+e,2)}, {vr(16+e,2)} neg_lo:[0,1] neg_hi:[0,1]')
                    if i == 0:
                        for e in range(8):
                            k(f'v_mov_b32_dpp v{24+e}, v{10+(e&1)} quad_perm:[{e>>1},{e>>1},{e>>1},{e>>1}] row_mask:0xf bank_mask:0xf')
                    for e in range(0, 8, 2):
                        k(f'v_pk_mul_f32 {vr(d+e,2)}, {vr(d+e,2)}, {vr(24+e,2)}')
                    for r in range(4): k(f'v_cvt_pk_bf16_f32 v{o+r}, v{d+2*r}, v{d+2*r+1}')
                    k(f'buffer_store_dwordx4 {vr(o,4)}, v3, s[16:19], s{54+2*i} offen sc1')
                st(k, 6, 2)

            def cadd(inc):
                k(f'v_mov_b32 v56, {ZC}\nv_mov_b32 v57, {inc}\ns_mov_b64 exec, 1\nds_add_rtn_u32 v57, v56, v57\ns_mov_b64 exec, -1')

            def cchk():
                L = k.label('nf')
                k(f'''v_readfirstlane_b32 s42, v57
s_cmp_lg_u32 s42, 7
s_cbranch_scc1 {L}
s_mov_b64 exec, 1
buffer_store_dword v0, off, s[68:71], s47 sc1
s_mov_b64 exec, -1
{L}:''')

            def flg(n):
                k(f's_waitcnt vmcnt({n})')
                cadd(1)
                k('s_waitcnt lgkmcnt(0)')
                cchk()
            k(f'''v_mov_b32 v0, 1
s_lshl_b32 s49, s34, 2
s_add_u32 s49, s49, s47
s_add_u32 s49, s49, {FLU-FL2}
s_waitcnt lgkmcnt(0)
s_barrier''')
            lg.done = len(lg.tags)
            st(k, 6, 7)

            Z0 = ZH[1] if ZH else ZW
            ZG = Z0 + opt.get('zqg', 0)
            ZQP = opt.get('zqp', 0)

            def hib():
                if opt.get('zqr0'): k(f's_setprio {opt["zqr0"]}')
                w_trans128(k, 14, 15, 100 * 1024, 43, list(range(Z0, ZG)), lambda r: pxl(112) if r == ZQP else None)
                if opt.get('zqr0'): k('s_setprio 0')
                if opt.get('zqs'): k(f's_sleep {opt["zqs"]}')
                if not ZQP: pxl(112)
                st(k, 6, 5)
                if opt.get('zqr'): k(f's_setprio {opt["zqr"]}')
                norm(112, 120, 112, True)
                if opt.get('zqr'): k(f's_setprio {opt.get("zqr2", 0)}')
            lor = (lambda f: role(True, f)) if ZQ == 1 else (lambda f: f)
            if ZQ == 1: role(False, hib)()
            else: assert ZG == Z0
            PXE = opt.get('pxe', 4); XE = opt.get('xe', 8)
            assert n1 - 1 - max(PXE, XE) >= 6 * len(t1)
            ev = {}
            ev.setdefault(n1 - 1 - PXE, []).append(lor(lambda: pxl(32)))
            ev.setdefault(n1 - 1 - XE, []).append(lor(lambda: xr(48)))
            if ZQ == 1:
                F0, F1 = opt.get('zqf', [28, 34])
                assert 7 * len(t1) <= F0 + 1 and F1 < n1 - 1 - max(PXE, XE)
                def f0():
                    role(False, lambda: k('s_waitcnt vmcnt(0)'))()
                    cadd('s46'); lg.issue('cnt')
                def f1():
                    k(lg.wait('cnt') or '')
                    role(False, cchk)()
                ev.setdefault(F0, []).append(f0); ev.setdefault(F1, []).append(f1)
            gpass(t1, 0, [16, 24, 28, 8, 20, 12], LA1, ev, keep=(32, 36, 40, 44, 48, 52, 56))
            st(k, 1, 9); st(k, 6, 6)
            ZO = opt.get('zo', 0); ZCN = opt.get('zc', 0)
            if opt.get('zlr'): k(f's_setprio {opt["zlr"]}')
            for pi in range(ZO): zg(pi)
            lor(lambda: norm(32, 48, 56, False))()
            if opt.get('zlg') is not None: k(f's_setprio {opt["zlg"]}')
            k('v_lshrrev_b32 v1, 1, v3')
            for pi, (i0, nt, off) in enumerate(p1):
                o = 72 + 4 * pi
                if pi == 0 and ZCN == 2: lor(lambda: flg(0))()
                if pi >= ZO: zg(pi)
                if pi == 0 and ZCN == 1: lor(lambda: flg(0))()
                if nt == 2: k(f'buffer_store_dwordx4 {vr(o,4)}, v3, s[12:15], s55 offen offset:{off} sc1')
                else: k(f'buffer_store_dwordx2 {vr(o,2)}, v1, s[12:15], s55 offen offset:{off} sc1')
            st(k, 6, 3)
            map_g2(k)
            k('s_load_dwordx2 s[24:25], s[0:1], 48')
            if ZCN == 0: lor(lambda: flg(2))()
            if opt.get('zlr'): k('s_setprio 0')
            st(k, 0, 5); st(k, 6, 4)
            TJ = k.label('tj'); T4 = k.label('t4')
            ZA = opt.get('za', 0)
            PL2 = 'buffer_load_dword v9, v10, s[68:71], s44 offen sc1'
            k(f'''s_lshl_b32 s44, s36, {5+FS}
s_add_u32 s44, s44, {FL2}
v_bfe_u32 v10, v3, 4, 5
v_lshlrev_b32 v10, {FS}, v10''')
            def amid(r):
                if r != ZA: return
                L = k.label('am')
                k(f's_cmp_lg_u32 s34, 0\ns_cbranch_scc1 {L}\ns_mov_b32 exec_hi, 0\n{PL2}\ns_mov_b32 exec_hi, -1\n{L}:')
            if ZH: role(True, lambda: w_trans(k, 14, 15, list(range(ZH[0], 4)), 43, base=100 * 1024 + 4 * 8320, mid=amid))()
            st(k, 6, 9)
            if opt.get('zqb', 1): k('s_barrier')
            k(f'''s_cmp_ge_u32 s34, 4
s_cbranch_scc1 {T4}
s_cmp_lg_u32 s34, 0
s_cbranch_scc1 {TJ}''')
            if ZA:
                assert ZH and ZA <= 2 * (4 - ZH[0])
                k(f's_mov_b32 exec_hi, 0\ns_waitcnt vmcnt(0)\nv_cmp_eq_u32 vcc, 0, v9\ns_mov_b32 exec_hi, -1\ns_cbranch_vccz {TJ}')
            flag_poll(k, 47, 44, 32, opt.get('g2sl', 0), opt.get('g2d', 0), part=2)
            st(k, 6, 8)
            k(f's_branch {TJ}\n{T4}:')
            w_trans128(k, 14, 15, 100 * 1024, 43, list(range(ZG, 4)))
            st(k, 6, 8)
            k(f'{TJ}:\ns_waitcnt lgkmcnt(0)\ns_barrier\ns_branch {DONE}')
            return
        ev = {}
        PXE = opt.get('pxe', 12); XE = opt.get('xe', 8)
        ev.setdefault(n1 - 1 - PXE, []).append(role(False, pxld) if ZS else pxld)
        ev.setdefault(n1 - 1 - XE, []).append(role(False, xrd) if ZS else xrd)
        ZT = opt.get('zt', 0)
        assert n1 - 1 - max(PXE, XE) >= (n1 - 14 if ZT else 6 * len(t1))
        ZP = 12 if hh else 124
        zout = lambda i: ACC(i & ~1) + 2 * (i & 1)
        if ZT:
            assert opt.get('lean', 0) & 64 and not SC
            for i in range(len(t1) - 1):
                ops = []
                gelu_pk(lambda t: ops.extend(t.split('\n')), None, 4, ACC(i), ZP, zout(i), 6)
                Z0, ZR = opt.get('ztr', [2, 2])
                for j, o in enumerate(ops): ev.setdefault(20 * (i + 1) + Z0 + j // ZR, []).append(lambda o=o: k(o))
        if X4:
            def sta(g):
                L = k.label('sa')
                k(f's_cmp_ge_u32 s34, 4\ns_cbranch_scc1 {L}\ns_add_u32 m0, s61, {100*1024+4096*g}')
                for j in range(3 if g == 3 else 4): k(f'buffer_load_dwordx4 v3, s[28:31], s60 offen offset:{1024*j} lds')
                k(f's_add_u32 s60, s60, 4096\n{L}:')
            S0, SS = opt.get('sta', [2, 8])
            for g in range(opt.get('stm', 0), opt.get('nsta', 4)): ev.setdefault(S0 + SS * (g - opt.get('stm', 0)), []).append(lambda g=g: sta(g))
        for j in range(len(dq.ops)):
            pj = j * opt.get('wds', 3)
            assert pj < n1 - 1 - PXE
            ev.setdefault(pj, []).append(lambda: dq(1, None, 0))
        gpass(t1, 0, [16, 24, 28, 8, 20, 12][:5 if ZT and hh else 6], LA1, ev, keep=(32, 36, 40, 44, 48, 52), tm=ZT)
        st(k, 1, 9)
        LP = k.label('lp'); LD = k.label('ld'); L1 = k.label('l1')
        D = 56
        p1 = [(0, 2, 2048), (2, 1, 3072)] if hh == 0 else [(0, 2, 0), (2, 2, 1024)]
        ZO = opt.get('zo', 0)
        zg = lambda pi: gelu_pk(k, None, 4 * p1[pi][1], ACC(p1[pi][0]), 80 + 16 * pi, 72 + 4 * pi, 6, sc=(SC > 1))
        if ZS:
            def lot():
                if opt.get('zsl'): k(f's_sleep {opt["zsl"]}')
                zg(0); zg(1)
                if ZS == 1: pxld()
                xrd()
                if ZS == 2: pxld()
            role(True, lot)()
        k(f'''v_mov_b32 v4, {fbits(1.0/864)}
s_mov_b32 s43, {SPIN}
s_waitcnt lgkmcnt(0)''')
        for h in range(8):
            k(f'v_lshlrev_b32 v{D+2*h}, 16, v{XR+h}\nv_and_b32 v{D+1+2*h}, 0xffff0000, v{XR+h}')
        zlast = lambda: gelu_pk(k, None, 4, ACC(len(t1) - 1), 80, zout(len(t1) - 1), 6)
        if ZT == 1: zlast()
        if ZO:
            assert opt.get('lean', 0) & 64
            for pi in range(ZO): role(False, lambda: zg(pi))() if ZS else zg(pi)
            st(k, 6, 6)
        k(f'''s_branch {L1}
{LP}:''')
        if opt.get('pxs'): k(f"s_sleep {opt['pxs']}")
        pxld()
        k(f'''{L1}:
s_waitcnt vmcnt(2)
v_max3_u32 v24, v32, v33, v34
v_max3_u32 v25, v35, v36, v37
v_max3_u32 v24, v24, v38, v39''')
        for r in range(4): k(f'v_add_f32 v{28+r}, v{32+r}, v{36+r}')
        k('''s_waitcnt vmcnt(0)
v_max3_u32 v25, v25, v40, v41
v_max3_u32 v24, v24, v42, v43
v_max3_u32 v25, v25, v44, v45
v_max3_u32 v24, v24, v46, v47
v_max_u32 v24, v24, v25
v_cmp_eq_u32 vcc, -1, v24''')
        for r in range(4): k(f'v_add_f32 v{16+r}, v{40+r}, v{44+r}')
        k(f'''s_cbranch_vccz {LD}
s_sub_u32 s43, s43, 1
s_cmp_lg_u32 s43, 0
s_cbranch_scc1 {LP}
{LD}:''')
        st(k, 0, 9); st(k, 6, 1)
        for r in range(4): k(f'v_add_f32 v{28+r}, v{28+r}, v{16+r}')
        for m in ('row_ror:4', 'row_ror:8'):
            for r in range(4): k(f'v_add_f32_dpp v{28+r}, v{28+r}, v{28+r} {m} row_mask:0xf bank_mask:0xf')
        for r in range(4): k(f'v_mul_f32 v{28+r}, v{28+r}, v4')
        k(f'''v_fma_f32 v29, -v28, v28, v29
v_fma_f32 v31, -v30, v30, v31
v_max_f32 v29, 0, v29
v_max_f32 v31, 0, v31
v_cvt_pk_bf16_f32 v12, v28, v30
v_cvt_pk_bf16_f32 v13, v29, v31
v_lshlrev_b32 v8, 16, v12
v_and_b32 v9, 0xffff0000, v12
v_lshlrev_b32 v10, 16, v13
v_and_b32 v11, 0xffff0000, v13
v_add_f32 v10, 0x3727c5ac, v10
v_add_f32 v11, 0x3727c5ac, v11
v_cvt_pk_bf16_f32 v13, v10, v11
v_lshlrev_b32 v10, 16, v13
v_and_b32 v11, 0xffff0000, v13
v_sqrt_f32 v10, v10
v_sqrt_f32 v11, v11''')
        for e in range(8):
            k(f'v_mov_b32_dpp v{16+e}, v{8+(e&1)} quad_perm:[{e>>1},{e>>1},{e>>1},{e>>1}] row_mask:0xf bank_mask:0xf')
        k(f'''v_cvt_pk_bf16_f32 v13, v10, v11
v_lshlrev_b32 v10, 16, v13
v_and_b32 v11, 0xffff0000, v13
v_rcp_f32 v10, v10
v_rcp_f32 v11, v11''')
        for i in range(2):
            d = D + 8 * i
            for e in range(0, 8, 2):
                k(f'v_pk_add_f32 {vr(d+e,2)}, {vr(d+e,2)}, {vr(16+e,2)} neg_lo:[0,1] neg_hi:[0,1]')
            if i == 0:
                for e in range(8):
                    k(f'v_mov_b32_dpp v{24+e}, v{10+(e&1)} quad_perm:[{e>>1},{e>>1},{e>>1},{e>>1}] row_mask:0xf bank_mask:0xf')
            o = XR + 4 * i
            if not opt.get('lean', 0) & 4:
                for r in range(4): k(f'v_cvt_pk_bf16_f32 v{o+r}, v{d+2*r}, v{d+2*r+1}')
                for r in range(4): k(f'v_lshlrev_b32 v{d+2*r}, 16, v{o+r}\nv_and_b32 v{d+1+2*r}, 0xffff0000, v{o+r}')
            for e in range(0, 8, 2):
                k(f'v_pk_mul_f32 {vr(d+e,2)}, {vr(d+e,2)}, {vr(24+e,2)}')
            for r in range(4): k(f'v_cvt_pk_bf16_f32 v{o+r}, v{d+2*r}, v{d+2*r+1}')
            k(f'buffer_store_dwordx4 {vr(o,4)}, v3, s[16:19], s{54+2*i} offen sc1')
        st(k, 6, 2)
        k('v_lshrrev_b32 v1, 1, v3')
        for pi, (i0, nt, off) in enumerate(p1):
            o = 8 + 4 * pi; a = ACC(i0)
            if ZT:
                o = a
                if ZT == 2 and pi == 1: zlast()
            elif pi < ZO: o = 72 + 4 * pi
            elif ZS:
                o = 72 + 4 * pi
                role(False, lambda: zg(pi))()
            elif opt.get('lean', 0) & 64: gelu_pk(k, None, 4 * nt, a, 80 + 16 * pi, o, 6, sc=(SC > 1))
            else:
                for h in range(2 * nt): k(f'v_cvt_pk_bf16_f32 v{o+h}, v{a+2*h}, v{a+2*h+1}')
                gelu_pk(k, o, 4 * nt, 72 + 16 * pi, 80 + 16 * pi, o, 6, sc=(SC > 1))
            if nt == 2: k(f'buffer_store_dwordx4 {vr(o,4)}, v3, s[12:15], s55 offen offset:{off} sc1')
            else: k(f'buffer_store_dwordx2 {vr(o,2)}, v1, s[12:15], s55 offen offset:{off} sc1')
        st(k, 6, 3)
        map_g2(k)
        SB = opt.get('stb', 0)
        def stb():
            for j in range(4): k(f'buffer_load_dwordx4 {vr(40+4*j,4)}, v3, s[28:31], s60 offen offset:{1024*j}')
        if X4:
            k(f'''s_mul_i32 s62, s36, {8*WOB}
s_lshl_b32 s60, s34, 12
s_add_u32 s60, s60, s62
s_add_u32 s60, s60, {60*1024}''')
            if SB == 0: stb()
        k(f's_load_dwordx2 s[24:25], s[0:1], 48\ns_waitcnt vmcnt({4 if X4 and SB == 0 else 0})')
        st(k, 0, 5); st(k, 6, 4)
        T4 = k.label('t4'); TJ = k.label('tj'); T1 = k.label('t1')
        k(f'''s_barrier
s_cmp_ge_u32 s34, 4
s_cbranch_scc1 {T4}
s_cmp_lg_u32 s34, 0
s_cbranch_scc1 {T1 if X4 and SB else TJ}
s_lshl_b32 s44, s36, {5+FS}
s_add_u32 s44, s44, {FL2}''')
        if X4 and SB:
            flag_poll(k, 47, 44, 32, part=1)
            stb()
            flag_poll(k, 47, 44, 32, opt.get('g2sl', 0), opt.get('g2d', 0), part=2)
            k(f's_branch {TJ}\n{T1}:\ns_sleep {SB}')
            stb()
        else: flag_poll(k, 47, 44, 32, opt.get('g2sl', 0), opt.get('g2d', 0))
        k(f's_branch {TJ}\n{T4}:')
        if X4 and SB:
            k(f's_sleep {SB}')
            stb()
        if opt.get('wt67'): k(f's_cmp_ge_u32 s34, 6\ns_cbranch_scc1 {TJ}')
        else: assert not opt.get('wte')
        if not NOW: w_trans(k, 12, 13, WG_[ZW:], 43)
        st(k, 6, 5)
        k(f'{TJ}:\ns_waitcnt lgkmcnt(0)\ns_barrier\ns_branch {DONE}')
    path(0)
    k(f'{LH}:')
    path(1)


def gen_ka(opt):
    k = Kern('ka_kernel', 256, 512, 163840, nvgpr=128, nagpr=128)
    END = k.label('end')
    k(f's_cmp_ge_u32 s2, 256\ns_cbranch_scc1 {END}')
    k.stamp(True)
    ph_k2a(k, opt, None)
    ph_g1(k, opt, END, None)
    k.finish(END)
    return k


def gen_p(opt, g3=True):
    k = Kern('kp_kernel', 256, 512, 163840, nvgpr=128, nagpr=128)
    END = k.label('end'); G2 = k.label('g2'); G3 = k.label('g3')
    k(f's_cmp_ge_u32 s2, 256\ns_cbranch_scc1 {END}')
    k.stamp(True)
    wb = Bulk(k, [] if opt.get('now') else g2_wops())
    ph_k2a(k, opt, wb)
    ph_g1(k, opt, G2, wb, True)
    k(f'{G2}:')
    st(k, 0, 6)
    vm = Cnt('vmcnt', 63); vm.issue('w')
    if g3:
        g3_wo_setup(k)
        ph_g2(k, opt, G3, vm, True, [] if opt.get('noo') else g3_wo_ops())
        k(f'{G3}:')
        ph_g3(k, opt, True)
    else:
        ph_g2(k, opt, END, vm, False)
    k.finish(END)
    return k


def gen_q(opt):
    k = Kern('k1_kernel', 256, 512, 163840, nvgpr=128, nagpr=128)
    END = k.label('end'); G2 = k.label('g2'); G3 = k.label('g3')
    k(f's_cmp_ge_u32 s2, 256\ns_cbranch_scc1 {END}')
    k.stamp(True)
    wb = Bulk(k, [] if opt.get('now') else g2_wops())
    ph_k12(k, opt, wb)
    if G1S: ph_g1s(k, opt, G2, wb)
    elif opt.get('g1t'): ph_g1t(k, opt, G2, wb)
    else: ph_g1(k, opt, G2, wb, True)
    k(f'{G2}:')
    st(k, 0, 6)
    vm = Cnt('vmcnt', 63); vm.issue('w')
    g3_wo_setup(k)
    if opt.get('g3s'):
        k('s_lshl_b32 s61, s35, 3\ns_add_u32 s61, s61, s34\ns_lshl_b32 s61, s61, 14\ns_add_u32 s62, s61, 8192')
        na = ph_g2(k, opt, G3, vm, True, g3_wo_ops(), g3s_early())
        k(f'{G3}:')
        ph_g3s(k, opt, na)
        k.finish(END)
        return k
    ph_g2(k, opt, G3, vm, True, [] if opt.get('noo') else g3_wo_ops())
    k(f'{G3}:')
    ph_g3(k, opt, True)
    k.finish(END)
    return k


def build(opt):
    lv = opt.get('lv', 1)
    if lv == 4: return [gen_fft.gen_k0(), gen_q(opt)]
    ks = [gen_fft.gen_k0(), gen_fft.gen_k1c()]
    if lv == 1: ks += [gen_ka(opt), gen_g2(opt), gen_g3(opt)]
    if lv == 2: ks += [gen_p(opt, False), gen_g3(opt)]
    if lv == 3: ks += [gen_p(opt)]
    return ks


def g3_wo_setup(k):
    if gen_fft.OPT.get('g3v') == 4: return
    srd_from(k, 28, 40, 41, WS_WO, WO8_BYTES)
    if gen_fft.OPT.get('g3v') == 3:
        k(f'''s_mul_i32 s62, s36, {8*WOB}
s_and_b32 s61, s34, 3
s_lshl_b32 s61, s61, 13
s_add_u32 s60, s62, s61
s_add_u32 s61, s61, 0x10000''')
        return
    k(f'''s_lshl_b32 s60, s36, 3
s_add_u32 s60, s60, s34
s_mul_i32 s60, s60, {WOB}''')


def g3_wo_ops():
    ops = []
    for i in range(15):
        s = f'buffer_load_dwordx4 {ar(4*i,4)}, v3, s[28:31], s60 offen offset:{1024*(i%4)}'
        if i % 4 == 3: s += '\ns_add_u32 s60, s60, 4096'
        if i == 14: s += '\ns_add_u32 s60, s60, 3072'
        ops.append(s)
    for n in range(5):
        ops.append(f'buffer_load_dwordx2 {ar(60+2*n,2)}, v2, s[28:31], s60 offen offset:{512*n}')
    return ops


def ph_g3(k, opt, fused):
    vm = Cnt('vmcnt', 63); lg = Cnt('lgkmcnt', 15)
    G3F = opt.get('g3f', 0)
    WOL = opt.get('wol', [99, 99]); W0L = opt.get('w0l', 0)
    if G3F:
        NP2 = k.label('np2'); WH = k.label('wh'); WX = k.label('wx')
        k(f'''s_lshl_b32 s42, s35, {3+FS}
s_add_u32 s42, s42, {FL3}
s_lshl_b32 s46, s36, {FS}
s_add_u32 s46, s46, s42
v_lshrrev_b32 v124, 4, v3
v_lshlrev_b32 v124, {FS}, v124
v_mov_b32 v125, 1
s_waitcnt vmcnt(0)
s_barrier
s_cmp_lg_u32 s34, 0
s_cbranch_scc1 {NP2}
s_mov_b64 exec, 1
buffer_store_dword v125, v124, s[68:71], s46 offen sc1
s_mov_b64 exec, -1
{f"s_branch {WX}" if W0L else ""}
{NP2}:''')
        ro = [g3_wo_ops()[WOL[0]:], g3_wo_ops()[WOL[1]:]]
        if ro[0] == ro[1]:
            for o in ro[0]: k(o)
        else:
            k(f's_cmp_ge_u32 s34, 4\ns_cbranch_scc1 {WH}')
            for o in ro[0]: k(o)
            k(f's_branch {WX}\n{WH}:')
            for o in ro[1]: k(o)
        k(f'{WX}:')
    else: assert WOL == [99, 99]
    srd_from(k, 8, 40, 41, WS_Z1 if opt.get('ain') else WS_A, A2_BYTES)
    srd_from(k, 12, 80, 81, 0, X_BYTES) if opt.get('hout') else srd_from(k, 12, 40, 41, WS_H, X_BYTES)
    k(f'''s_lshl_b32 s44, s35, 3
s_add_u32 s44, s44, s34
s_lshl_b32 s44, s44, 14
v_lshrrev_b32 v1, 4, v3
v_and_b32 v6, 15, v1
v_lshrrev_b32 v7, 4, v1''')
    k(f'''s_lshr_b32 s45, s34, 1
s_mul_i32 s45, s45, 40960
s_and_b32 s46, s34, 1
s_lshl_b32 s46, s46, 3''')
    ROWA = '''v_lshrrev_b32 v11, 3, v9
v_and_b32 v12, 3, v9
v_lshl_add_u32 v11, v11, 2, v12
v_bfe_u32 v12, v9, 2, 1
v_lshl_add_u32 v11, v12, 8, v11''' if G1S else '''v_lshrrev_b32 v11, 2, v9
v_and_b32 v12, 3, v9
v_lshl_add_u32 v11, v12, 8, v11'''
    for p in range(3):
        k(f'''v_add_u32 v8, {64*p}, v1
v_mul_u32_u24 v9, 3277, v8
v_lshrrev_b32 v9, 16, v9
v_mul_u32_u24 v10, 20, v9
v_sub_u32 v10, v8, v10
v_add_u32 v9, s46, v9
v_add_u32 v11, v9, v10
v_and_b32 v11, 15, v11
v_lshlrev_b32 v11, 4, v11
v_lshrrev_b32 v12, 2, v10
v_lshl_add_u32 v11, v12, 13, v11
v_and_b32 v12, 3, v10
v_lshl_add_u32 v11, v12, 8, v11
v_add_u32 v{116+p}, s45, v11
{ROWA}
v_mul_u32_u24 v11, 1280, v11
v_lshl_add_u32 v{120+p}, v10, 3, v11''')
    k(f'''v_mov_b32 v8, 0x7fffffff
v_cmp_gt_u32 vcc, 32, v1
v_cndmask_b32 v122, v8, v122, vcc
s_lshl_b32 s47, s35, 3
s_and_b32 s43, s34, 2
s_lshl_b32 s43, s43, {8 if G1S else 1}
s_add_u32 s47, s47, s43
s_and_b32 s43, s34, 4
s_lshl_b32 s43, s43, 8
s_add_u32 s47, s47, s43
s_mul_i32 s47, s47, 1280
s_mul_i32 s43, s36, 160
s_add_u32 s47, s47, s43''')
    def hld():
        for p in range(3): k(f'buffer_load_dwordx2 {vr(104+2*p,2)}, v{120+p}, s[12:15], s47 offen')
    NH = k.label('nh')
    if G3F: k(f's_cmp_eq_u32 s34, 0\ns_cbranch_scc1 {NH}')
    hld()
    k(f'{NH}:')
    for p in range(3): vm.issue('h')
    k(f'''s_lshl_b32 s43, s34, 10
v_add_u32 v8, v6, v7
v_lshlrev_b32 v9, 8, v7
v_add_u32 v9, s43, v9''')
    for n in range(5):
        k(f'''v_add_u32 v10, {4*n}, v8
v_and_b32 v10, 15, v10
v_lshl_add_u32 v10, v10, 4, v9
v_add_u32 v{88+n}, {8192*n}, v10
v_add_u32 v{93+n}, {8192*n+81920}, v10''')
    if G3F:
        NP3 = k.label('np3')
        k(f's_cmp_lg_u32 s34, 0\ns_cbranch_scc1 {NP3}\ns_mov_b64 exec, 0xff')
        if opt.get('g3d'): k(f's_sleep {opt["g3d"]}')
        poll2(k, 'buffer_load_dword v125, v124, s[68:71], s42 offen sc1', 'v_cmp_eq_u32 vcc, 0, v125', 43, opt.get('g3sl', 0))
        k('s_mov_b64 exec, -1')
        if W0L == 1:
            for o in ro[0]: k(o)
        if W0L < 2: hld()
        k(f'{NP3}:\ns_barrier')
        if W0L == 2:
            NP4 = k.label('np4')
            k(f's_cmp_lg_u32 s34, 0\ns_cbranch_scc1 {NP4}')
            for o in ro[0]: k(o)
            hld()
            k(f'{NP4}:')
    elif fused:
        NP3 = k.label('np3')
        k(f'''s_waitcnt vmcnt(0)
s_barrier
s_cmp_lg_u32 s34, 0
s_cbranch_scc1 {NP3}
s_lshl_b32 s42, s35, {3+FS}
s_add_u32 s42, s42, {FL3}
s_lshl_b32 s46, s36, {FS}
s_add_u32 s46, s46, s42''')
        flag_poll(k, 46, 42, 8, opt.get('g3sl', 0), opt.get('g3d', 0))
        k(f'{NP3}:\ns_barrier')
        vm.done = 3
    st(k, 3, 1); st(k, 0, 8)
    k(f's_cmp_eq_u32 s34, 7\ns_cselect_b32 s48, {BIG}, 0')
    AF = lambda tt, p: 72 + 14 * tt + 4 * p
    for tt in range(4):
        for p in range(3):
            k(f'buffer_load_dwordx4 {ar(AF(tt,p),4)}, v3, s[8:11], s44 offen offset:{1024*p}'); vm.issue(f'a{tt}{p}')
        k(f's_add_u32 s49, s44, s48\nbuffer_load_dwordx2 {ar(AF(tt,3),2)}, v2, s[8:11], s49 offen offset:3072'); vm.issue(f'a{tt}3')
        if tt < 3: k('s_add_u32 s44, s44, 4096')
    srd_from(k, 16, 80, 81, 0, X_BYTES)
    ACC = lambda tt, n: 8 + 20 * (tt & 1) + 4 * n
    pend = []
    for tt in range(4):
        for p in range(4):
            x = vm.wait(f'a{tt}{p}')
            if x: k(x)
            if tt == 0 and p == 0: st(k, 3, 2)
            for n in range(5):
                acc = vr(ACC(tt, n), 4)
                if p < 3: k(f'{MFMA} {acc}, {ar(20*p+4*n,4)}, {ar(AF(tt,p),4)}, {"0" if p == 0 else acc}')
                else: k(f'{MF16} {acc}, {ar(60+2*n,2)}, {ar(AF(tt,3),2)}, {acc}')
                if pend and (5 * p + n) % 3 == 2: k(pend.pop(0))
        for n in range(5):
            pend.append(f'ds_write_b128 v{88+5*(tt>>1)+n}, {vr(ACC(tt,n),4)} offset:{40960*(tt&1)}')
    for o in pend: k(o)
    st(k, 3, 3)
    k('s_waitcnt lgkmcnt(0)\ns_barrier')
    st(k, 3, 4)
    for p in range(3):
        for s in range(8):
            k(f'ds_read_b128 {vr(8+32*p+4*s,4)}, v{116+p} offset:{1024*s}'); lg.issue(f'r{p}{s}')
        if p == 0:
            for q in range(3):
                k(f'v_lshlrev_b32 v{110+2*q}, 16, v{104+2*q}\nv_and_b32 v{104+2*q}, 0xffff0000, v{104+2*q}')
    for p in range(3):
        a = 8 + 32 * p
        for s in (0, 2, 4, 6):
            x = lg.wait(f'r{p}{s+1}')
            if x: k(x)
            for h in range(2): k(f'v_pk_add_f32 {vr(a+4*s+2*h,2)}, {vr(a+4*s+2*h,2)}, {vr(a+4*s+4+2*h,2)}')
            if s in (2, 6):
                for h in range(2): k(f'v_pk_add_f32 {vr(a+4*s-8+2*h,2)}, {vr(a+4*s-8+2*h,2)}, {vr(a+4*s+2*h,2)}')
        for h in range(2): k(f'v_pk_add_f32 {vr(a+2*h,2)}, {vr(a+2*h,2)}, {vr(a+16+2*h,2)}')
        if opt.get('lean', 0) & 16: k(f'''v_lshlrev_b32 v{a+8}, 16, v{105+2*p}
v_and_b32 v{a+9}, 0xffff0000, v{105+2*p}''')
        else: k(f'''v_cvt_pk_bf16_f32 v{a+4}, v{a}, v{a+1}
v_cvt_pk_bf16_f32 v{a+5}, v{a+2}, v{a+3}
v_lshlrev_b32 v{a+8}, 16, v{105+2*p}
v_and_b32 v{a+9}, 0xffff0000, v{105+2*p}
v_lshlrev_b32 v{a}, 16, v{a+4}
v_and_b32 v{a+1}, 0xffff0000, v{a+4}
v_lshlrev_b32 v{a+2}, 16, v{a+5}
v_and_b32 v{a+3}, 0xffff0000, v{a+5}''')
        k(f'''v_add_f32 v{a}, v{a}, v{110+2*p}
v_add_f32 v{a+1}, v{a+1}, v{104+2*p}
v_pk_add_f32 {vr(a+2,2)}, {vr(a+2,2)}, {vr(a+8,2)}
v_cvt_pk_bf16_f32 v{a+4}, v{a}, v{a+1}
v_cvt_pk_bf16_f32 v{a+5}, v{a+2}, v{a+3}
buffer_store_dwordx2 {vr(a+4,2)}, v{120+p}, s[16:19], s47 offen''')


def g3v_addr(k):
    B = [f'''v_lshrrev_b32 v1, 4, v3
v_and_b32 v6, 15, v1
v_lshrrev_b32 v7, 4, v1
s_lshr_b32 s45, s34, 1
s_mul_i32 s45, s45, 40960
s_and_b32 s46, s34, 1
s_lshl_b32 s46, s46, 3''']
    for p in range(3):
        B.append(f'''v_add_u32 v8, {64*p}, v1
v_mul_u32_u24 v9, 3277, v8
v_lshrrev_b32 v9, 16, v9
v_mul_u32_u24 v10, 20, v9
v_sub_u32 v10, v8, v10
v_add_u32 v9, s46, v9
v_add_u32 v11, v9, v10
v_and_b32 v11, 15, v11
v_lshlrev_b32 v11, 4, v11
v_lshrrev_b32 v12, 2, v10
v_lshl_add_u32 v11, v12, 13, v11
v_and_b32 v12, 3, v10
v_lshl_add_u32 v11, v12, 8, v11
v_add_u32 v{116+p}, s45, v11
v_lshrrev_b32 v11, 2, v9
v_and_b32 v12, 3, v9
v_lshl_add_u32 v11, v12, 8, v11
v_mul_u32_u24 v11, 1280, v11
v_lshl_add_u32 v{120+p}, v10, 3, v11''')
    B.append(f'''v_mov_b32 v8, 0x7fffffff
v_cmp_gt_u32 vcc, 32, v1
v_cndmask_b32 v122, v8, v122, vcc
s_lshl_b32 s47, s35, 3
s_and_b32 s43, s34, 2
s_lshl_b32 s43, s43, 1
s_add_u32 s47, s47, s43
s_and_b32 s43, s34, 4
s_lshl_b32 s43, s43, 8
s_add_u32 s47, s47, s43
s_mul_i32 s47, s47, 1280
s_mul_i32 s43, s36, 160
s_add_u32 s47, s47, s43''')
    W = f'''s_lshl_b32 s43, s34, 10
v_add_u32 v8, v6, v7
v_lshlrev_b32 v9, 8, v7
v_add_u32 v9, s43, v9'''
    for n in range(5):
        W += f'''
v_add_u32 v10, {4*n}, v8
v_and_b32 v10, 15, v10
v_lshl_add_u32 v10, v10, 4, v9
v_add_u32 v{88+n}, {8192*n}, v10
v_add_u32 v{93+n}, {8192*n+81920}, v10'''
    B.append(W)
    return B


G3AF = lambda tt, p: 72 + 14 * tt + 4 * p
G3ACC = lambda tt, n: 8 + 20 * tt + 4 * n


def g3v_gate(k, vm, tag, reg, cmp, sl=0):
    LP = k.label('lp'); LD = k.label('ld')
    k(f'''{vm.wait(tag) or ''}
{cmp}
s_cbranch_vccz {LD}
s_mov_b32 s43, {SPIN}
{LP}:
{f"s_sleep {sl}" if sl else ""}
{reg if isinstance(reg, str) else f"buffer_load_dword v{reg}, v127, s[68:71], s62 offen sc1"}
s_waitcnt vmcnt(0)
{cmp}
s_cbranch_vccz {LD}
s_sub_u32 s43, s43, 1
s_cmp_lg_u32 s43, 0
s_cbranch_scc1 {LP}
{LD}:''')


def g3v_head(k, opt, hi, vm):
    assert opt.get('hout') and opt.get('ain') and not G1S
    WOL = opt.get('wol', [99, 99])[hi]
    W = [(o, f'w{min(i // 5, 3)}') for i, o in enumerate(g3_wo_ops())][WOL:]
    if opt.get('now3'): W = []
    A = lambda p: [(f'buffer_load_dwordx4 {ar(G3AF(tt,p),4)}, v3, s[16:19], s{63+tt} offen offset:{1024*p}', f'a{tt}{p}') for tt in range(4)]
    Wp = lambda p: [w for w in W if w[1] == f'w{p}']
    QO = opt.get('g3q', 0)
    if QO == 0: Q = Wp(0) + A(0) + Wp(1) + A(1) + Wp(2) + Wp(3)
    elif QO == 1: Q = Wp(0) + Wp(1) + A(0) + A(1) + Wp(2) + Wp(3)
    else: Q = W + A(0) + A(1)
    state = dict(flag=0, gate=0)

    def flg():
        if state['flag']: return
        state['flag'] = 1
        k((vm.wait('s') or '') + '\ns_mov_b64 exec, 1\nbuffer_store_dword v125, off, s[68:71], s61 sc1\ns_mov_b64 exec, -1'); vm.issue('f')
        st(k, 3, 1)

    def pop(n):
        for _ in range(n):
            if not Q: return
            o, t = Q.pop(0)
            if t[0] == 'a' and not state['gate']:
                state['gate'] = 1
                last = lambda x: max(i for i, y in enumerate(vm.tags) if y == x)
                if last('ep') > last('s'): flg()
                g3v_gate(k, vm, 'ep', 126, 'v_cmp_eq_u32 vcc, 0, v126')
                st(k, 9, 2)
            k(o); vm.issue(t)
    k('v_mov_b32 v125, 2')
    st(k, 9, 1)
    pop(opt.get('g3n', [8, 9])[hi])
    st(k, 9, 3)
    B = g3v_addr(k)
    srd_from(k, 12, 80, 81, 0, X_BYTES)
    NB = opt.get('g3b', 5)
    for b in B[:NB]: k(b)
    st(k, 9, 4)
    flg()
    st(k, 9, 5)
    pop(99)
    st(k, 9, 6)
    for b in B[NB:5]: k(b)
    for p in range(3):
        k(f'buffer_load_dwordx2 {vr(104+2*p,2)}, v{120+p}, s[12:15], s47 offen'); vm.issue('h')
    k(B[5])
    st(k, 9, 7)
    k(f's_cmp_eq_u32 s34, 7\ns_cselect_b32 s48, {BIG}, 0')
    if not opt.get('g3bl'): k('s_barrier')
    st(k, 9, 8)
    L1 = opt.get('g3l', [20, 20])[hi]
    i = 0
    for p in range(2):
        for tt in range(4):
            for t in (f'w{p}', f'a{tt}{p}'):
                x = vm.wait(t)
                if x: k(x)
            if tt == 0 and p == 0: st(k, 3, 2); st(k, 9, 9)
            for n in range(5):
                if i == L1: k('buffer_load_dword v124, v127, s[68:71], s62 offen sc1'); vm.issue('lp')
                acc = vr(G3ACC(tt, n), 4)
                k(f'{MFMA} {acc}, {ar(20*p+4*n,4)}, {ar(G3AF(tt,p),4)}, {"0" if p == 0 else acc}')
                i += 1
    if L1 >= 40: k('buffer_load_dword v124, v127, s[68:71], s62 offen sc1'); vm.issue('lp')
    st(k, 3, 5)
    if opt.get('g3bl'): k('s_barrier')
    g3v_gate(k, vm, 'lp', 124, 'v_cmp_ne_u32 vcc, 2, v124', opt.get('g3sl', 0))


def G3AF2(tt, p, n=4): return vr(40 + 4 * tt, 4) if p == 0 else ar(72 + 10 * tt + 4 * (p - 1), n)


def G3ACC2(tt, n):
    i = 5 * tt + n
    return vr(56 + 4 * i, 4) if i < 8 else ar(112 + 4 * (i - 8), 4) if i < 12 else vr(8 + 4 * (i - 12), 4)


def g3v_head2(k, opt, hi, vm):
    assert opt.get('hout') and opt.get('ain') and not G1S
    WOL = opt.get('wol', [99, 99])[hi]
    W = [(o, f'w{min(i // 5, 3)}') for i, o in enumerate(g3_wo_ops())][WOL:]
    if opt.get('now3'): W = []
    A1 = [(f'buffer_load_dwordx4 {G3AF2(tt,1)}, v3, s[16:19], s{63+tt} offen offset:1024', f'a{tt}1') for tt in range(4)]
    Wp = lambda p: [w for w in W if w[1] == f'w{p}']
    Q = Wp(0) + Wp(1) + A1 + Wp(2) + Wp(3) if opt.get('g3q', 0) == 0 else Wp(0) + A1 + Wp(1) + Wp(2) + Wp(3)
    state = dict(flag=0, gate=0)

    def flg():
        if state['flag']: return
        state['flag'] = 1
        k((vm.wait('s') or '') + '\ns_mov_b64 exec, 1\nbuffer_store_dword v125, off, s[68:71], s61 sc1\ns_mov_b64 exec, -1'); vm.issue('f')
        st(k, 3, 1); st(k, 9, 5)

    def pop(n):
        for _ in range(n):
            if not Q: return
            o, t = Q.pop(0)
            if t[0] == 'a' and not state['gate']:
                state['gate'] = 1
                last = lambda x: max(i for i, y in enumerate(vm.tags) if y == x)
                if last('ep') > last('s'): flg()
                g3v_gate(k, vm, 'ep', 126, 'v_cmp_eq_u32 vcc, 0, v126')
                st(k, 9, 2)
            k(o); vm.issue(t)
    L1 = opt.get('g3l', [30, 30])[hi]
    cnt = [0]

    def mf(p, fill=()):
        fill = list(fill); per = (len(fill) + 19) // 20
        for tt in range(4):
            for t in (f'w{p}', f'a{tt}{p}'):
                x = vm.wait(t) if t in vm.tags else None
                if x: k(x)
            if tt == 0: st(k, 9, 4 if p == 0 else 9)
            for n in range(5):
                if cnt[0] == L1: k('buffer_load_dword v124, v127, s[68:71], s62 offen sc1'); vm.issue('lp')
                acc = G3ACC2(tt, n)
                k(f'{MFMA} {acc}, {ar(20*p+4*n,4)}, {G3AF2(tt,p)}, {"0" if p == 0 else acc}')
                cnt[0] += 1
                for _ in range(per):
                    if fill: k(fill.pop(0))
    k('v_mov_b32 v125, 2')
    st(k, 9, 1)
    pop(opt.get('g3n', [0, 0])[hi])
    st(k, 9, 3)
    B = [re.sub(r'\bv(8|9|10|11|12)\b', lambda m: f'v{90+int(m.group(1))}', b) for b in g3v_addr(k)]
    srd_from(k, 12, 80, 81, 0, X_BYTES)
    M0 = opt.get('g3m', 1) and (WOL >= 5 or opt.get('now3'))
    if M0: mf(0, '\n'.join(B[:5]).split('\n'))
    else:
        for b in B[:5]: k(b)
    flg()
    if opt.get('g3bl', 0) == 0: k('s_barrier')
    pop(99)
    st(k, 9, 6)
    for p in range(3):
        k(f'buffer_load_dwordx2 {vr(104+2*p,2)}, v{120+p}, s[12:15], s47 offen'); vm.issue('h')
    k(B[5])
    k(f's_cmp_eq_u32 s34, 7\ns_cselect_b32 s48, {BIG}, 0')
    st(k, 9, 7)
    if not M0: mf(0)
    mf(1)
    if L1 >= 40:
        if L1 > 40: k(f's_sleep {L1-40}')
        k('buffer_load_dword v124, v127, s[68:71], s62 offen sc1'); vm.issue('lp')
    st(k, 3, 5)
    if opt.get('g3bl', 0) == 1: k('s_barrier')
    g3v_gate(k, vm, 'lp', 124, 'v_cmp_ne_u32 vcc, 2, v124', opt.get('g3sl', 0))


def ph_g3w(k, opt):
    assert opt.get('hout') and opt.get('ain') and not G1S
    NP2 = k.label('np2'); WX = k.label('wx'); NP3 = k.label('np3'); HI = k.label('hi'); FIN = k.label('fin')
    k(f'''s_lshl_b32 s42, s35, {3+FS}
s_add_u32 s42, s42, {FL3}
s_lshl_b32 s46, s36, {FS}
s_add_u32 s46, s46, s42
v_lshrrev_b32 v1, 4, v3
v_lshlrev_b32 v124, {FS}, v1
v_mov_b32 v125, 1
s_and_b32 s37, s34, 3
s_lshr_b32 s38, s34, 2
s_lshl_b32 s43, s37, 12
s_add_u32 s60, s62, s43
s_add_u32 s60, s60, 0x10000
s_add_u32 m0, s43, 0x20000
s_mul_i32 s61, s37, {15*1024}
s_add_u32 s62, s62, s61
s_add_u32 s62, s62, {80*1024}
s_lshl_b32 s63, s35, 1
s_add_u32 s63, s63, s38
s_lshl_b32 s63, s63, 16
s_add_u32 s63, s63, s43
s_add_u32 s64, s63, 0x4000
s_add_u32 s65, s63, 0x8000
s_add_u32 s66, s63, 0xc000
s_cmp_eq_u32 s38, 1
s_cselect_b32 s67, {BIG}, s66
s_mul_i32 s43, s38, 5120
v_add_u32 v93, s43, v3
v_add_u32 v91, 0x10000, v93
v_add_u32 v92, {0x10000+40960}, v93
v_lshrrev_b32 v94, 1, v93
s_mul_i32 s43, s37, 5120
s_add_u32 s43, s43, 0x10000
v_add_u32 v95, s43, v3
v_bfe_u32 v6, v1, 2, 2
v_and_b32 v7, 3, v1
v_lshl_add_u32 v6, v7, 8, v6
v_mul_u32_u24 v6, 1280, v6
v_lshrrev_b32 v7, 4, v1
v_lshl_add_u32 v90, v7, 3, v6
s_lshl_b32 s47, s35, 3
s_and_b32 s43, s34, 1
s_lshl_b32 s43, s43, 2
s_add_u32 s47, s47, s43
s_and_b32 s43, s34, 2
s_lshl_b32 s43, s43, 9
s_add_u32 s47, s47, s43
s_mul_i32 s47, s47, 1280
s_mul_i32 s43, s36, 160
s_add_u32 s47, s47, s43
s_mul_i32 s43, s38, 96
s_add_u32 s47, s47, s43''')
    srd_from(k, 12, 80, 81, 0, X_BYTES)
    k(f'''s_waitcnt vmcnt(0)
s_barrier
s_cmp_lg_u32 s34, 0
s_cbranch_scc1 {NP2}
s_mov_b64 exec, 1
buffer_store_dword v125, v124, s[68:71], s46 offen sc1
s_mov_b64 exec, -1
{NP2}:
s_cmp_lt_u32 s34, 4
s_cbranch_scc1 {WX}''')
    st(k, 3, 5)
    if opt.get('dmd'): k(f's_sleep {opt["dmd"]}')
    for i in range(4): k(f'buffer_load_dwordx4 v3, s[28:31], s60 offen offset:{1024*i} lds')
    for i in range(15):
        if i % 4 == 0: k(f's_add_u32 m0, s61, {1024*i}' + ('\ns_add_u32 s62, s62, 4096' if i else ''))
        k(f'buffer_load_dwordx4 v3, s[28:31], s62 offen offset:{1024*(i%4)} lds')
    k(f'{WX}:')
    for i in range(3): k(f'buffer_load_dwordx2 {vr(84+2*i,2)}, v90, s[12:15], s47 offen offset:{32*i}')
    st(k, 3, 6)
    pool = [ar(4 * i, 4) for i in range(32)] + [vr(96 + 4 * i, 4) for i in range(7)]
    NPRE = 30

    def sub(r, h):
        m = re.match(r'([av])\[(\d+):', r)
        return f'{m.group(1)}[{int(m.group(2))+2*h}:{int(m.group(2))+2*h+1}]'

    def rd(q, r, n):
        p, f = q // 20, (q % 20) // 5
        if p < 3: return [f'ds_read_b128 {r}, v{91+p} offset:{f*10240+n*1024}']
        return [f'ds_read_b64 {sub(r,h)}, v94 offset:{40960+(2*f+h)*5120+n*512}' for h in range(2)]
    for q in range(NPRE):
        for o in rd(q, pool[q], q % 5): k(o)
    k(f's_cmp_lg_u32 s34, 0\ns_cbranch_scc1 {NP3}\ns_mov_b64 exec, 0xff')
    if opt.get('g3d'): k(f's_sleep {opt["g3d"]}')
    poll2(k, 'buffer_load_dword v125, v124, s[68:71], s42 offen sc1', 'v_cmp_eq_u32 vcc, 0, v125', 43, opt.get('g3sl', 0))
    k(f's_mov_b64 exec, -1\n{NP3}:\ns_waitcnt vmcnt(0) lgkmcnt(0)')
    st(k, 3, 7)
    k('s_barrier')
    st(k, 3, 1); st(k, 0, 8)
    vm0 = Cnt('vmcnt', 63)
    for p in range(4):
        if opt.get('g3pr'): k(f's_setprio {3-p}')
        for f in range(4):
            if p < 3: k(f'buffer_load_dwordx4 {vr(8+16*p+4*f,4)}, v3, s[16:19], s{63+f} offen offset:{1024*p}')
            else: k(f'buffer_load_dwordx2 {vr(56+2*f,2)}, v2, s[16:19], s{63+f+(f==3)} offen offset:3072')
            vm0.issue(f'a{p}{f}')
    k(f's_cmp_ge_u32 s34, 4\ns_cbranch_scc1 {HI}')
    ACC = lambda n: 64 + 4 * n

    def role(kh):
        import copy
        vm = copy.deepcopy(vm0); lg = Cnt('lgkmcnt', 15)
        own = [0, 1, 2] if kh == 0 else [3, 4]
        snd = [n for n in range(5) if n not in own]
        order = [(q, q % 5) for q in range(65)] + [(65 + i, n) for i, n in enumerate(snd + own)]
        buf = {q: pool[q] for q in range(NPRE)}
        free = pool[NPRE:]; nr = [NPRE]; pend = []

        def reads(m):
            for _ in range(m):
                if nr[0] >= 70 or not free: return
                q, n = order[nr[0]]
                buf[q] = free.pop(0)
                for o in rd(q, buf[q], n): k(o); lg.issue(f'b{q}')
                nr[0] += 1
        reads(9)
        for i, n in enumerate(own):
            k(f'''v_lshlrev_b32 v{ACC(n)}, 16, v{84+2*i}
v_and_b32 v{ACC(n)+1}, 0xffff0000, v{84+2*i}
v_lshlrev_b32 v{ACC(n)+2}, 16, v{85+2*i}
v_and_b32 v{ACC(n)+3}, 0xffff0000, v{85+2*i}''')
        for q, n in order:
            p, f = q // 20, (q % 20) // 5
            x = vm.wait(f'a{p}{f}' if p < 3 else f'a3{2*f+1}')
            if x: k(x)
            if q == 0: st(k, 3, 2)
            x = lg.wait(f'b{q}') if q >= NPRE else None
            if x: k(x)
            acc = vr(ACC(n), 4)
            a = vr(8 + 16 * p + 4 * f, 4)
            k(f'{MFMA} {acc}, {buf[q]}, {a}, {"0" if q < 5 and n in snd else acc}')
            free.extend(pend); pend = [buf[q]]
            reads(1)
        for n in snd: k(f'ds_write_b128 v95, {vr(ACC(n),4)} offset:{1024*n}')
        st(k, 3, 3)
        k('s_waitcnt lgkmcnt(0)\ns_barrier')
        st(k, 3, 4)
        for i, n in enumerate(own): k(f'ds_read_b128 {vr(8+4*i,4)}, v95 offset:{1024*n}')
        for i, n in enumerate(own):
            k(f's_waitcnt lgkmcnt({len(own)-1-i})')
            for r in range(4): k(f'v_add_f32 v{8+4*i+r}, v{8+4*i+r}, v{ACC(n)+r}')
            k(f'''v_cvt_pk_bf16_f32 v{24+2*i}, v{8+4*i}, v{9+4*i}
v_cvt_pk_bf16_f32 v{25+2*i}, v{10+4*i}, v{11+4*i}
buffer_store_dwordx2 {vr(24+2*i,2)}, v90, s[12:15], s47 offen offset:{32*i}''')
    role(0)
    k(f's_branch {FIN}\n{HI}:')
    role(1)
    k(f'{FIN}:')


G3PL = 'buffer_load_dword v39, v6, s[68:71], s49 offen sc1'


def g3x_gate(k, vm, tag, m):
    LP = k.label('lp'); LD = k.label('ld')
    chk = f'v_cmp_eq_u32 vcc, 0, v39\ns_and_b64 vcc, vcc, s[{m}:{m+1}]\ns_cbranch_scc0 {LD}'
    k(f'''{vm.wait(tag) or ''}
{chk}
s_mov_b32 s43, {SPIN}
{LP}:
{G3PL}
s_waitcnt vmcnt(0)
{chk}
s_sub_u32 s43, s43, 1
s_cmp_lg_u32 s43, 0
s_cbranch_scc1 {LP}
{LD}:''')


CLEAN = None


def g3x(k, opt, kh, vm):
    assert opt.get('hout') and opt.get('ain') and not G1S
    lg = Cnt('lgkmcnt', 15)
    KB = 1024

    def lds(c):
        if c < 60: return (100 + c) * KB
        if c < 92:
            w = (c - 60) // 4
            return (8 * (w & 3) + (0 if w >> 2 else 32) + c % 4) * KB
        if c < 124: return (64 + c - 92) * KB
        return (8 * ((c - 124) // 4) + 4 + c % 4) * KB
    AP = [32, 48, 0, 16]
    st(k, 9, 1)
    if kh: k(G3PL); vm.issue('ep1')
    k('''v_add_u32 v91, 0x10000, v3
v_add_u32 v92, 0x20000, v3''')
    free = [ar(64 + 4 * i, 4) for i in range(16)] + [vr(96 + 4 * i, 4) for i in range(7)] + [vr(8 + 4 * i, 4) for i in (0, 1, 2, 3, 4, 5, 12, 13)]
    free2 = [vr(8 + 4 * i, 4) for i in (6, 8, 9, 10, 11)] + [ar(24, 4), ar(28, 4)]
    own = [0, 1, 2] if kh == 0 else [3, 4]
    snd = [n for n in range(5) if n not in own]
    order = [(q, q % 5) for q in range(65)] + [(65 + i, n) for i, n in enumerate(snd + own)]
    buf = {}; nr = [0]; lim = [60]

    def sub(r, h):
        m = re.match(r'([av])\[(\d+):', r)
        return f'{m.group(1)}[{int(m.group(2))+2*h}:{int(m.group(2))+2*h+1}]'

    def reads(m):
        for _ in range(m):
            if nr[0] >= 70 or not free: return
            q, n = order[nr[0]]
            p, f = q // 20, (q % 20) // 5
            c = 40 * p + 10 * f + 5 * kh + n
            if c >= lim[0]: return
            r = buf[q] = free.pop(0)
            if p < 3:
                a = lds(c)
                k(f'ds_read_b128 {r}, v{[3, 91, 92][a >> 16]} offset:{a & 0xffff}'); lg.issue(f'b{q}')
            else:
                for h in range(2):
                    o = 122880 + ((2 * f + h) * 2 + kh) * 2560 + n * 512
                    a = lds(o // KB) + o % KB
                    k(f'ds_read_b64 {sub(r,h)}, v{[2, 93][a >> 16]} offset:{a & 0xffff}'); lg.issue(f'b{q}')
            nr[0] += 1
    ACC = lambda n: 64 + 4 * n
    pend = []

    def mfs(q0, q1, per, fill=None, fp=2):
        for q, n in order[q0:q1]:
            p, f = q // 20, (q % 20) // 5
            x = vm.wait(f'a{p}{f}' if p < 3 else f'a3{2*f+1}')
            if x: k(x)
            if q in (0, 20): st(k, 9, 4 + q // 20)
            if q == 40: st(k, 3, 2); st(k, 9, 9)
            x = lg.wait(f'b{q}')
            if x: k(x)
            acc = vr(ACC(n), 4)
            k(f'{MFMA} {acc}, {buf[q]}, {ar(AP[p]+4*f,4)}, {"0" if q < 5 else acc}')
            free.extend(pend); pend[:] = [buf[q]]
            reads(per)
            for _ in range(fp):
                if fill:
                    o = fill.pop(0)
                    o() if callable(o) else k(o)
    def xb(j): k(f'ds_write_b128 v7, {vr(40+4*j,4)} offset:{KB*j+(0 if kh else 32*KB)}'); lg.issue('x')
    def xd(j): k((vm.wait('d') or '') + f'\nds_write_b128 v{7 if kh else 38}, {ar(4*j,4)} offset:{KB*j+(4*KB if kh else 0)}'); lg.issue('x')
    XW = [lambda j=j: xb(j) for j in range(4)] + [lambda j=j: xd(j) for j in range(4 if kh else 8)]
    for _ in range(opt.get('g3w', [4, 4])[kh]): XW.pop(0)()
    fill = f'''v_mov_b32 v0, 2
v_lshrrev_b32 v1, 4, v3
v_add_u32 v93, 0x10000, v2
v_bfe_u32 v88, v1, 2, 2
v_and_b32 v89, 3, v1
v_lshl_add_u32 v88, v89, 8, v88
v_mul_u32_u24 v88, 1280, v88
v_lshrrev_b32 v89, 4, v1
v_lshl_add_u32 v90, v89, 3, v88
v_bfe_u32 v89, v1, 4, 1
v_lshl_add_u32 v95, v89, 5, v88
v_lshrrev_b32 v89, 5, v1
v_lshl_add_u32 v95, v89, 4, v95
s_mul_i32 s42, s37, 5120
s_add_u32 s42, s42, {100*KB}
v_add_u32 v94, s42, v3
s_lshl_b32 s47, s35, 3
s_and_b32 s43, s34, 1
s_lshl_b32 s43, s43, 2
s_add_u32 s47, s47, s43
s_and_b32 s43, s34, 2
s_lshl_b32 s43, s43, 9
s_add_u32 s47, s47, s43
s_mul_i32 s47, s47, 1280
s_mul_i32 s43, s36, 160
s_add_u32 s47, s47, s43'''.split('\n')
    for o in fill: k(o)
    srd_from(k, 12, 80, 81, 0, X_BYTES)
    reads(opt.get('g3r', 6))
    k((vm.wait('s') or '') + '\ns_mov_b64 exec, 1\nbuffer_store_dword v0, off, s[68:71], s48 sc1\ns_mov_b64 exec, -1'); vm.issue('f')
    st(k, 3, 1); st(k, 9, 2)
    if kh: g3x_gate(k, vm, 'ep1', 52)
    k('s_barrier')
    st(k, 9, 3)
    if not kh: CLEAN(k, 1, (1, 4, 88))
    for f in range(4):
        k(f'buffer_load_dwordx4 {ar(AP[1]+4*f,4)}, v3, s[16:19], s{63+f} offen offset:1024'); vm.issue(f'a1{f}')
    k(f'buffer_load_dwordx4 v[84:87], v95, s[12:15], s47 offen offset:{32*own[0]}'); vm.issue('h')
    if not kh: k(f'buffer_load_dwordx2 v[88:89], v90, s[12:15], s47 offen offset:64'); vm.issue('h')
    M1 = opt.get('g3m', 12); M2 = opt.get('g3m2', [20, 20])[kh]
    mfs(0, M1, 1, XW, 1)
    for o in XW: o()
    k((lg.wait('x') or '') + '\ns_barrier')
    free.extend(free2); lim[0] = 999
    mfs(M1, M2, 2)
    free.extend(pend); pend[:] = []
    reads(99)
    st(k, 9, 6)
    if kh == opt.get('g3pw', 0) >> 2:
        NP3 = k.label('np3')
        k(f's_cmp_lg_u32 s34, {opt.get("g3pw", 0)}\ns_cbranch_scc1 {NP3}')
        if opt.get('g3dd'): k(f's_sleep {opt["g3dd"]}')
        poll2(k, 'buffer_load_dword v39, v6, s[68:71], s54 offen sc1', 'v_cmp_ne_u32 vcc, 2, v39', 43, opt.get('g3sl', 0))
        k(f'{NP3}:')
    st(k, 9, 7)
    k('s_barrier')
    st(k, 9, 8); st(k, 3, 6); st(k, 0, 8)
    if kh: k(f's_mov_b32 s67, {BIG}')
    for p in (2, 3):
        for f in range(4):
            if opt.get('g3pr') and f % 2 == 0: k(f's_setprio {3-(2*p+f//2-4)}')
            if p < 3: k(f'buffer_load_dwordx4 {ar(AP[2]+4*f,4)}, v3, s[16:19], s{63+f} offen offset:2048')
            else: k(f'buffer_load_dwordx2 {ar(AP[3]+2*f,2)}, v2, s[16:19], s{63+f+(f==3 and kh)} offen offset:3072')
            vm.issue(f'a{p}{f}')
    mfs(M2, 40, 2)
    k((vm.wait('h') or '') + '\nv_permlane16_swap_b32 v84, v86\nv_permlane16_swap_b32 v85, v87')
    for i, n in enumerate(own):
        k(f'''v_lshlrev_b32 v36, 16, v{84+2*i}
v_and_b32 v{84+2*i}, 0xffff0000, v{84+2*i}
v_lshlrev_b32 v37, 16, v{85+2*i}
v_and_b32 v{85+2*i}, 0xffff0000, v{85+2*i}
v_add_f32 v{ACC(n)}, v{ACC(n)}, v36
v_add_f32 v{ACC(n)+1}, v{ACC(n)+1}, v{84+2*i}
v_add_f32 v{ACC(n)+2}, v{ACC(n)+2}, v37
v_add_f32 v{ACC(n)+3}, v{ACC(n)+3}, v{85+2*i}''')
    mfs(40, 70, 2)
    for n in snd: k(f'ds_write_b128 v94, {vr(ACC(n),4)} offset:{KB*n}')
    st(k, 3, 3)
    k('s_waitcnt lgkmcnt(0)\ns_barrier')
    st(k, 3, 4)
    for i, n in enumerate(own): k(f'ds_read_b128 {vr(8+4*i,4)}, v94 offset:{KB*n}')
    for i, n in enumerate(own):
        k(f's_waitcnt lgkmcnt({len(own)-1-i})')
        for r in range(4): k(f'v_add_f32 v{8+4*i+r}, v{8+4*i+r}, v{ACC(n)+r}')
        k(f'''v_cvt_pk_bf16_f32 v{24+2*i}, v{8+4*i}, v{9+4*i}
v_cvt_pk_bf16_f32 v{25+2*i}, v{10+4*i}, v{11+4*i}''')
        if i == 1: k(f'''v_permlane16_swap_b32 v24, v26
v_permlane16_swap_b32 v25, v27
buffer_store_dwordx4 v[24:27], v95, s[12:15], s47 offen offset:{32*own[0]}''')
        if i == 2: k(f'buffer_store_dwordx2 v[28:29], v90, s[12:15], s47 offen offset:{32*n}')


def ph_g3v(k, opt):
    vm = Cnt('vmcnt', 63); lg = Cnt('lgkmcnt', 15)
    V2 = opt['g3v'] == 2
    AF = G3AF2 if V2 else (lambda tt, p, n=4: ar(G3AF(tt, p), n))
    AC = G3ACC2 if V2 else (lambda tt, n: vr(G3ACC(tt, n), 4))
    st(k, 3, 6); st(k, 0, 8)
    for tt in range(4):
        k(f'buffer_load_dwordx4 {AF(tt,2)}, v3, s[16:19], s{63+tt} offen offset:2048'); vm.issue(f'a{tt}2')
        k(f's_add_u32 s49, s{63+tt}, s48\nbuffer_load_dwordx2 {AF(tt,3,2)}, v2, s[16:19], s49 offen offset:3072'); vm.issue(f'a{tt}3')
    for q in range(3):
        k(f'v_lshlrev_b32 v{110+2*q}, 16, v{104+2*q}\nv_and_b32 v{104+2*q}, 0xffff0000, v{104+2*q}')
    pend = []
    for tt in range(4):
        for p in (2, 3):
            x = vm.wait(f'a{tt}{p}')
            if x: k(x)
            if tt == 0 and p == 2: st(k, 3, 7)
            for n in range(5):
                acc = AC(tt, n)
                if p < 3: k(f'{MFMA} {acc}, {ar(20*p+4*n,4)}, {AF(tt,p)}, {acc}')
                else: k(f'{MF16} {acc}, {ar(60+2*n,2)}, {AF(tt,3,2)}, {acc}')
                if pend and n % 2 == p % 2: k(pend.pop(0))
        for n in range(5):
            pend.append(f'ds_write_b128 v{88+5*(tt>>1)+n}, {AC(tt,n)} offset:{40960*(tt&1)}')
    for o in pend: k(o)
    st(k, 3, 3)
    k('s_waitcnt lgkmcnt(0)\ns_barrier')
    st(k, 3, 4)
    for p in range(3):
        for s in range(8):
            k(f'ds_read_b128 {vr(8+32*p+4*s,4)}, v{116+p} offset:{1024*s}'); lg.issue(f'r{p}{s}')
    assert opt.get('lean', 0) & 16
    for p in range(3):
        a = 8 + 32 * p
        for s in (0, 2, 4, 6):
            x = lg.wait(f'r{p}{s+1}')
            if x: k(x)
            for h in range(2): k(f'v_pk_add_f32 {vr(a+4*s+2*h,2)}, {vr(a+4*s+2*h,2)}, {vr(a+4*s+4+2*h,2)}')
            if s in (2, 6):
                for h in range(2): k(f'v_pk_add_f32 {vr(a+4*s-8+2*h,2)}, {vr(a+4*s-8+2*h,2)}, {vr(a+4*s+2*h,2)}')
        for h in range(2): k(f'v_pk_add_f32 {vr(a+2*h,2)}, {vr(a+2*h,2)}, {vr(a+16+2*h,2)}')
        k(f'''v_lshlrev_b32 v{a+8}, 16, v{105+2*p}
v_and_b32 v{a+9}, 0xffff0000, v{105+2*p}
v_add_f32 v{a}, v{a}, v{110+2*p}
v_add_f32 v{a+1}, v{a+1}, v{104+2*p}
v_pk_add_f32 {vr(a+2,2)}, {vr(a+2,2)}, {vr(a+8,2)}
v_cvt_pk_bf16_f32 v{a+4}, v{a}, v{a+1}
v_cvt_pk_bf16_f32 v{a+5}, v{a+2}, v{a+3}
buffer_store_dwordx2 {vr(a+4,2)}, v{120+p}, s[12:15], s47 offen''')


def g3s_ld(tt, p, fl=''):
    if p < 2: return f'buffer_load_dwordx4 {vr(56+8*tt+4*p,4)}, v3, s[16:19], s{61+(tt>>1)} offen offset:{1024*p}{fl}' if not (tt & 1) else \
        f'buffer_load_dwordx4 {vr(56+8*tt+4*p,4)}, v88, s[16:19], s{61+(tt>>1)} offen offset:{1024*p}{fl}'
    if p == 2: return f'buffer_load_dwordx4 {vr(8+4*tt,4)}, v{88 if tt & 1 else 3}, s[16:19], s{61+(tt>>1)} offen offset:2048{fl}'
    return f'buffer_load_dwordx2 {vr(24+2*tt,2)}, v{89 if tt & 1 else 2}, s[16:19], s{63+(tt>>1)} offen offset:3072{fl}'


def g3s_early():
    ops = [g3s_ld(tt, p) for p in range(2) for tt in range(4)]
    ops[0] = 'v_add_u32 v88, 4096, v3\nv_add_u32 v89, 4096, v2\n' + ops[0]
    return ops


def chk_max(k, regs, t):
    regs = list(regs)
    acc = [None, None]; i = 0
    while regs:
        j = i & 1; i += 1
        if acc[j] is None:
            if len(regs) >= 3: k(f'v_max3_u32 v{t+j}, v{regs[0]}, v{regs[1]}, v{regs[2]}'); regs = regs[3:]
            elif len(regs) == 2: k(f'v_max_u32 v{t+j}, v{regs[0]}, v{regs[1]}'); regs = []
            else: k(f'v_mov_b32 v{t+j}, v{regs[0]}'); regs = []
            acc[j] = 1
        elif len(regs) >= 2: k(f'v_max3_u32 v{t+j}, v{t+j}, v{regs[0]}, v{regs[1]}'); regs = regs[2:]
        else: k(f'v_max_u32 v{t+j}, v{t+j}, v{regs[0]}'); regs = []
    if acc[1]: k(f'v_max_u32 v{t}, v{t}, v{t+1}')
    k(f'v_cmp_eq_u32 vcc, -1, v{t}')


def ph_g3s(k, opt, na):
    vm = Cnt('vmcnt', 63); lg = Cnt('lgkmcnt', 15)
    if opt.get('g3e', 0) == 3:
        for o in g3s_early(): k(o)
        na = 0
    vm.issue('e')
    for _ in range(na): vm.issue('s')
    srd_from(k, 12, 80, 81, 0, X_BYTES) if opt.get('hout') else srd_from(k, 12, 40, 41, WS_H, X_BYTES)
    LW = 90
    k(f'''s_cmp_eq_u32 s34, 7
s_cselect_b32 s63, {BIG}, s61
s_cselect_b32 s64, {BIG}, s62
v_lshrrev_b32 v1, 4, v3
v_and_b32 v6, 15, v1
v_lshrrev_b32 v7, 4, v1
s_lshr_b32 s45, s34, 1
s_mul_i32 s45, s45, 40960
s_and_b32 s46, s34, 1
s_lshl_b32 s46, s46, 3''')
    I2 = opt.get('g3i', [0, 20])
    if I2[0] < 0:
        for tt in range(4): k(g3s_ld(tt, 2, ' sc1')); vm.issue('p2')
    for p in range(3):
        k(f'''v_add_u32 v100, {64*p}, v1
v_mul_u32_u24 v101, 3277, v100
v_lshrrev_b32 v101, 16, v101
v_mul_u32_u24 v102, 20, v101
v_sub_u32 v102, v100, v102
v_add_u32 v101, s46, v101
v_add_u32 v103, v101, v102
v_and_b32 v103, 15, v103
v_lshlrev_b32 v103, 4, v103
v_lshrrev_b32 v110, 2, v102
v_lshl_add_u32 v103, v110, 13, v103
v_and_b32 v110, 3, v102
v_lshl_add_u32 v103, v110, 8, v103
v_add_u32 v{116+p}, s45, v103
v_lshrrev_b32 v103, 2, v101
v_and_b32 v110, 3, v101
v_lshl_add_u32 v103, v110, 8, v103
v_mul_u32_u24 v103, 1280, v103
v_lshl_add_u32 v{120+p}, v102, 3, v103''')
    k(f'''v_mov_b32 v100, 0x7fffffff
v_cmp_gt_u32 vcc, 32, v1
v_cndmask_b32 v122, v100, v122, vcc
s_lshl_b32 s47, s35, 3
s_and_b32 s43, s34, 2
s_lshl_b32 s43, s43, 1
s_add_u32 s47, s47, s43
s_and_b32 s43, s34, 4
s_lshl_b32 s43, s43, 8
s_add_u32 s47, s47, s43
s_mul_i32 s47, s47, 1280
s_mul_i32 s43, s36, 160
s_add_u32 s47, s47, s43''')
    for p in range(3):
        k(f'buffer_load_dwordx2 {vr(104+2*p,2)}, v{120+p}, s[12:15], s47 offen'); vm.issue('h')
    k(f'''s_lshl_b32 s43, s34, 10
v_add_u32 v100, v6, v7
v_lshlrev_b32 v101, 8, v7
v_add_u32 v101, s43, v101''')
    for n in range(5):
        k(f'''v_add_u32 v102, {4*n}, v100
v_and_b32 v102, 15, v102
v_lshl_add_u32 v102, v102, 4, v101
v_add_u32 v{LW+n}, {8192*n}, v102
v_add_u32 v{LW+5+n}, {8192*n+81920}, v102''')
    srd_from(k, 8, 80, 81, 0, X_BYTES)

    def ACC(tt, n):
        i = 5 * tt + n
        return ar(72 + 4 * i, 4) if i < 14 else vr(32 + 4 * (i - 14), 4)

    def gate(tag, regs, lds, sl):
        LP = k.label('lp'); LD = k.label('ld')
        k(vm.wait(tag) or '')
        chk_max(k, regs, 100)
        k(f's_cbranch_vccz {LD}\ns_mov_b32 s43, {SPIN}\n{LP}:')
        if sl: k(f's_sleep {sl}')
        for o in lds: k(o)
        k('s_waitcnt vmcnt(0)')
        chk_max(k, regs, 100)
        k(f's_cbranch_vccz {LD}\ns_sub_u32 s43, s43, 1\ns_cmp_lg_u32 s43, 0\ns_cbranch_scc1 {LP}\n{LD}:')
    st(k, 3, 1); st(k, 0, 8)
    gate('e', range(56, 88), [g3s_ld(tt, p, ' sc1') for p in range(2) for tt in range(4)], 0)
    st(k, 3, 2)
    i = 0
    for p in range(3):
        if p == 2:
            st(k, 3, 5)
            gate('p2', range(8, 24), [g3s_ld(tt, 2, ' sc1') for tt in range(4)], opt.get('g3r', 0))
            st(k, 3, 6)
            k('s_barrier')
        for tt in range(4):
            for n in range(5):
                if i == I2[0]:
                    for t2 in range(4): k(g3s_ld(t2, 2, ' sc1')); vm.issue('p2')
                if i == I2[1]:
                    for t2 in range(4): k(g3s_ld(t2, 3, ' sc1')); vm.issue('p3')
                acc = ACC(tt, n)
                b = vr(56 + 8 * tt + 4 * p, 4) if p < 2 else vr(8 + 4 * tt, 4)
                k(f'{MFMA} {acc}, {ar(20*p+4*n,4)}, {b}, {"0" if p == 0 else acc}')
                i += 1
    st(k, 3, 7)
    gate('p3', range(24, 32), [g3s_ld(tt, 3, ' sc1') for tt in range(4)], opt.get('g3r', 0))
    st(k, 3, 8)
    pend = []
    for tt in range(4):
        for n in range(5):
            acc = ACC(tt, n)
            k(f'{MF16} {acc}, {ar(60+2*n,2)}, {vr(24+2*tt,2)}, {acc}')
            pend.append(f'ds_write_b128 v{LW+5*(tt>>1)+n}, {acc} offset:{40960*(tt&1)}')
            if len(pend) > 3: k(pend.pop(0))
    for o in pend: k(o)
    st(k, 3, 3)
    k('s_waitcnt lgkmcnt(0)\ns_barrier')
    st(k, 3, 4)
    for p in range(3):
        for s in range(8):
            k(f'ds_read_b128 {vr(8+32*p+4*s,4)}, v{116+p} offset:{1024*s}'); lg.issue(f'r{p}{s}')
        if p == 0:
            for q in range(3):
                k(f'v_lshlrev_b32 v{110+2*q}, 16, v{104+2*q}\nv_and_b32 v{104+2*q}, 0xffff0000, v{104+2*q}')
    for p in range(3):
        a = 8 + 32 * p
        for s in (0, 2, 4, 6):
            x = lg.wait(f'r{p}{s+1}')
            if x: k(x)
            for h in range(2): k(f'v_pk_add_f32 {vr(a+4*s+2*h,2)}, {vr(a+4*s+2*h,2)}, {vr(a+4*s+4+2*h,2)}')
            if s in (2, 6):
                for h in range(2): k(f'v_pk_add_f32 {vr(a+4*s-8+2*h,2)}, {vr(a+4*s-8+2*h,2)}, {vr(a+4*s+2*h,2)}')
        for h in range(2): k(f'v_pk_add_f32 {vr(a+2*h,2)}, {vr(a+2*h,2)}, {vr(a+16+2*h,2)}')
        if opt.get('lean', 0) & 16: k(f'''v_lshlrev_b32 v{a+8}, 16, v{105+2*p}
v_and_b32 v{a+9}, 0xffff0000, v{105+2*p}''')
        else: k(f'''v_cvt_pk_bf16_f32 v{a+4}, v{a}, v{a+1}
v_cvt_pk_bf16_f32 v{a+5}, v{a+2}, v{a+3}
v_lshlrev_b32 v{a+8}, 16, v{105+2*p}
v_and_b32 v{a+9}, 0xffff0000, v{105+2*p}
v_lshlrev_b32 v{a}, 16, v{a+4}
v_and_b32 v{a+1}, 0xffff0000, v{a+4}
v_lshlrev_b32 v{a+2}, 16, v{a+5}
v_and_b32 v{a+3}, 0xffff0000, v{a+5}''')
        k(f'''v_add_f32 v{a}, v{a}, v{110+2*p}
v_add_f32 v{a+1}, v{a+1}, v{104+2*p}
v_pk_add_f32 {vr(a+2,2)}, {vr(a+2,2)}, {vr(a+8,2)}
v_cvt_pk_bf16_f32 v{a+4}, v{a}, v{a+1}
v_cvt_pk_bf16_f32 v{a+5}, v{a+2}, v{a+3}
buffer_store_dwordx2 {vr(a+4,2)}, v{120+p}, s[8:11], s47 offen''')


def gen_g3(opt):
    k = Kern('k4_kernel', 256, 512, 163840, nvgpr=128, nagpr=128)
    END = k.label('end')
    k(f'''s_cmp_ge_u32 s2, 256
s_cbranch_scc1 {END}
s_load_dwordx2 s[40:41], s[0:1], 80
s_load_dwordx2 s[80:81], s[0:1], 64''')
    k.stamp(True)
    map_g2(k)
    k(f'''v_lshrrev_b32 v1, 6, v0
v_and_b32 v2, 63, v0
v_readfirstlane_b32 s34, v1
v_lshlrev_b32 v3, 4, v2
v_lshlrev_b32 v2, 3, v2
s_waitcnt lgkmcnt(0)''')
    g3_wo_setup(k)
    for o in g3_wo_ops(): k(o)
    ph_g3(k, opt, False)
    k.finish(END)
    return k


def wq_role(k, base, END, half=None, fl='', sl=0):
    n = 256 if half is None else 128
    k(f'''s_sub_u32 s33, s2, {base}
s_cmp_ge_u32 s33, {n}
s_cbranch_scc1 {END}
s_load_dwordx2 s[4:5], s[0:1], 40
s_load_dwordx2 s[40:41], s[0:1], 80
{f"s_add_u32 s33, s33, 128" if half else ""}
v_lshrrev_b32 v1, 6, v0
v_and_b32 v2, 63, v0
v_readfirstlane_b32 s34, v1
v_lshlrev_b32 v3, 4, v2
v_lshrrev_b32 v4, 4, v2
v_bfe_u32 v5, v2, 2, 2
v_and_b32 v6, 3, v2
v_lshlrev_b32 v6, 4, v6
v_lshl_add_u32 v6, v4, 12, v6
v_lshl_add_u32 v6, v5, 20, v6
v_and_b32 v7, 15, v2
v_lshlrev_b32 v7, 6, v7
v_lshl_add_u32 v7, v4, 10, v7
s_lshl_b32 s39, s34, 12
v_add_u32 v7, s39, v7
s_bfe_u32 s35, s33, 0x20001
s_lshl_b32 s35, s35, 3
s_bfe_u32 s36, s33, 0x30003
s_add_u32 s35, s35, s36
s_lshr_b32 s36, s33, 6
s_and_b32 s37, s33, 1
s_lshl_b32 s42, s35, 15
s_and_b32 s43, s36, 1
s_lshl_b32 s43, s43, 14
s_add_u32 s42, s42, s43
s_lshr_b32 s43, s36, 1
s_lshl_b32 s43, s43, 22
s_add_u32 s42, s42, s43
s_lshl_b32 s43, s34, 6
s_add_u32 s42, s42, s43
s_lshl_b32 s43, s37, 11
s_add_u32 s42, s42, s43
s_lshl_b32 s44, s35, 3
s_add_u32 s44, s44, s34
s_lshl_b32 s44, s44, 15
s_lshl_b32 s43, s37, 12
s_add_u32 s44, s44, s43
s_lshl_b32 s43, s36, 10
s_add_u32 s44, s44, s43
s_waitcnt lgkmcnt(0)''')
    srd_from(k, 4, 4, 5, 0, 2048 * 4096)
    if sl: k(f's_sleep {sl}')
    M = gen_fft.OPT.get('wqm', 0)
    if M & 4:
        k('s_lshl_b32 s42, s33, 3\ns_add_u32 s42, s42, s34\ns_lshl_b32 s42, s42, 12')
        for g in range(4):
            k(f's_add_u32 m0, s39, 0')
            k(f'buffer_load_dwordx4 v3, s[4:7], s42 offen offset:{1024*g}{fl} lds')
    for g in range(4):
        if M & 6: break
        k(f's_add_u32 m0, s39, {512*g}')
        k(f'buffer_load_dwordx4 v6, s[4:7], s42 offen offset:{512*g}{fl} lds')
    srd_from(k, 8, 40, 41, WS_WS, WSP_BYTES)
    k('s_waitcnt vmcnt(0)')
    for c in range(4): k(f'ds_read_b128 {vr(8+4*c,4)}, v7 offset:{16*c}')
    for c in range(4):
        k(f's_waitcnt lgkmcnt({3-c})')
        if M & 1: continue
        k(f'buffer_store_dwordx4 {vr(8+4*c,4)}, v3, s[8:11], s44 offen{" nt" if M & 8 else ""}{" ; sc1" if M & 16 else " sc1"}')
        if c < 3: k('s_add_u32 s44, s44, 8192')
    k(f's_endpgm')
```

```python
from gen10 import *
import gen10
from gen_fft import code_srd

FT = 0x20000
FP = 0x22000
MAGIC = 0xA7C3E591


def ph_k01(k, opt, wb):
    XP = 1280; EX0 = 10240; EXP = 2576
    P = 1040; W0 = 16 * P; TB1 = 32 * P; TB2 = TB1 + 8192; TB0 = TB2 + 10240; CNT = TB1 - 16
    NT2 = 9 if opt.get('lean', 0) & 1 else 10
    opt['TB2'] = TB2
    PREPB = k.label('prepb'); CS = k.label('cs'); NCP = k.label('ncp'); NW = k.label('nw'); FX = k.label('fx')
    HDR = """s_sub_u32 s33, s2, 168
s_mul_i32 s33, s33, 5
s_add_u32 s33, s33, s34
s_sub_u32 s33, s33, 3
s_mov_b32 s47, s32
"""
    IDLE = k.label('idle'); JOIN = k.label('join'); J1 = k.label('j1'); TAIL = k.label('tail'); PD = k.label('pd'); NF = k.label('nf')
    l0 = len(k.lines)
    k(f'''s_load_dwordx2 s[4:5], s[0:1], 0
s_load_dwordx2 s[40:41], s[0:1], 80
s_load_dwordx4 s[52:55], s[0:1], 8
s_load_dwordx2 s[62:63], s[0:1], 32
s_load_dwordx2 s[64:65], s[0:1], 56
s_load_dwordx2 s[72:73], s[0:1], 40''')
    tab_srd(k, 12)
    k(f'''s_and_b32 s33, s2, 7
s_lshl_b32 s3, s33, 5
s_lshr_b32 s36, s2, 3
s_add_u32 s3, s3, s36
v_lshrrev_b32 v1, 6, v0
v_and_b32 v2, 63, v0
v_readfirstlane_b32 s34, v1
v_lshlrev_b32 v3, 4, v2
''')
    CP0 = opt.get('cp0', 2)
    if CP0:
        k(f's_cmp_ge_u32 s34, {CP0}\ns_cbranch_scc1 {NCP}')
        code_srd(k, 68, CS, 'code_end')
        k(f'''v_lshlrev_b32 v100, 7, v2
s_lshl_b32 s33, s34, 13
buffer_load_ubyte v103, v100, s[68:71], s33 offen
{NCP}:''')
    k(f'''{CS}:
s_lshl_b32 s38, s34, 10
s_add_u32 m0, s38, {TB0}
buffer_load_dwordx4 v3, s[12:15], s38 offen lds
s_lshl_b32 s35, s34, 8
s_add_u32 s35, s35, s3
s_mul_i32 s35, s35, 1280
v_lshlrev_b32 v58, 3, v2
v_lshlrev_b32 v59, 2, v2
v_and_b32 v50, 15, v2
v_lshrrev_b32 v51, 4, v2
s_waitcnt lgkmcnt(0)''')
    srd_from(k, 4, 4, 5, 0, X_BYTES)
    k(f'''buffer_load_dwordx2 v[4:5], v58, s[4:7], s35 offen
buffer_load_dwordx2 v[6:7], v58, s[4:7], s35 offen offset:512
buffer_load_dword v8, v59, s[4:7], s35 offen offset:1024''')
    vm = Cnt('vmcnt', 63); vm.issue('x')
    srd_from(k, 8, 40, 41, WS_T, TU_BYTES)
    PA = k.label('pa'); PB = k.label('pb'); PL = opt.get('pl', 6)
    PAX = opt.get('pax', 0)
    if PAX: PL = 3
    k(f'''s_mul_i32 s32, s34, {14*1024}
s_add_u32 s32, s32, {31*1024}
s_min_u32 s32, s32, {126*1024}
s_add_u32 s32, s32, {BB}
s_cmp_ge_u32 s2, 168
s_cselect_b32 s100, 3, 8
s_cselect_b32 s101, {PL}, 8''')
    if not PAX: k(f's_cmp_lt_u32 s34, s101\ns_cbranch_scc1 {PA}')

    def prepa():
        i0 = len(k.lines)
        prep_inl(k, 'A', 0, None, hdr=HDR)
        for j in range(i0, len(k.lines)):
            l = re.sub(r'\bv10([456])\b', lambda m: f'v{96+int(m.group(1))-4}', k.lines[j])
            if l.startswith('buffer_load') and opt.get('ntm', 0) & 1: l = l[:-4] + ' nt lds'
            if PAX:
                mp = dict(s16='s42', s17='s43', s18='s44', s19='s45', s24='s46', s25='s47', s26='s48', s27='s49', s28='s60', s29='s61', s30='s66', s31='s67', s22='s58', s23='s59')
                l = re.sub(r'\b(s\d+)\b', lambda m: mp.get(m.group(1), m.group(1)), l).replace('s[20:23]', 's[56:59]').replace('s[20:21]', 's[56:57]')
            k.lines[j] = l
    if not PAX:
        prepa()
        k(f'{PA}:')
    if opt.get('twe', 1):
        k(f'''s_lshl_b32 s33, s3, 6
s_add_u32 s33, s33, 32768
s_load_dwordx16 s[16:31], s[12:13], s33
s_load_dwordx2 s[80:81], s[0:1], 64''')

    def late():
        k(f'''s_add_u32 m0, s38, {TB1}
s_add_u32 s37, s38, 0x2000
buffer_load_dwordx4 v3, s[12:15], s37 offen lds
s_min_u32 s39, s34, 4
s_lshl_b32 s39, s39, 11
s_add_u32 m0, s39, {TB2}
s_add_u32 s37, s39, 0x4000
buffer_load_dwordx4 v3, s[12:15], s37 offen lds
buffer_load_dwordx4 v3, s[12:15], s37 offen offset:1024 lds''')
        for _ in range(3): vm.issue('t')

    LT = opt.get('flt', 0)
    if LT == 0: late()
    w_setup(k, 46, 47); w_vaddr(k, 124, 125)
    if opt.get('wd4'): k('s_cmp_ge_u32 s34, 4\ns_cselect_b32 s74, 0, s74')
    WT0 = opt.get('wtn', 0); WP = opt.get('wp', 0)

    def wt0():
        k(f'''s_andn2_b32 s46, s82, 0xfff
s_and_b32 s47, s34, 1
s_lshl_b32 s47, s47, 13
s_add_u32 s46, s46, s47
s_cmp_ge_u32 s34, 6
s_cselect_b32 s46, s46, {BIG}
v_lshlrev_b32 v100, 7, v2''')
        for n in range(WT0):
            k('buffer_load_ubyte v123, v100, s[72:75], s46 offen'); vm.issue('c')
            if n < WT0 - 1: k('s_add_u32 s46, s46, 0x100000')
    if WT0 and WP == 0: wt0()
    q = Bulk(k, wb.ops); wb.ops = []
    WD5 = opt.get('wd5', 0)
    if WD5:
        CUT = 's_mov_b32 s78, s50\ns_mov_b32 s79, s51\ns_cmp_ge_u32 s34, s101\ns_cselect_b32 s74, 0, s74'
        if WD5 < 32: q.ops[31 - WD5] += '\n' + CUT
    k(f'''s_mul_i32 s39, s34, {XP}
v_add_u32 v62, s32, v58
v_add_u32 v63, s32, v59
v_add_u32 v58, s39, v58
v_add_u32 v59, s39, v59
v_lshrrev_b32 v52, 2, v50
v_and_b32 v53, 3, v50
v_lshl_add_u32 v54, v51, 3, v52
v_add_u32 v55, 4, v54
v_subrev_u32 v56, 20, v54
v_min_u32 v54, v54, v56
v_subrev_u32 v56, 20, v55
v_min_u32 v55, v55, v56
v_lshlrev_b32 v53, 3, v53
v_lshl_add_u32 v54, v54, 6, v53
v_lshl_add_u32 v55, v55, 6, v53
v_add_u32 v54, s39, v54
v_add_u32 v55, s39, v55
s_mul_i32 s42, s34, {EXP}
s_add_u32 s42, s42, {EX0}
v_mul_u32_u24 v56, 80, v51
v_add_u32 v57, v56, v50
v_lshlrev_b32 v57, 3, v57
v_add_u32 v60, s42, v57
v_sub_u32 v61, {8*260}, v57
v_add_u32 v61, s42, v61
v_mov_b32 v126, {CNT}
v_mov_b32 v127, 0
ds_write_b32 v126, v127''')
    SB = opt.get('sb', 1)

    def vw2(n):
        L = k.label('pb')
        k(f'''s_cmp_lt_u32 s34, s101
s_cbranch_scc1 {L}
s_waitcnt vmcnt({n+8})
s_branch {L}x
{L}:
s_waitcnt vmcnt({n})
{L}x:''')

    def xwait():
        vw2(len(vm.tags) - 1)
        vm.done = 1
        st(k, 7, 1); st(k, 5, 1)
        if opt.get('xs'):
            k('''ds_write_b64 v62, v[4:5] offset:8192
ds_write_b64 v62, v[6:7] offset:8704
ds_write_b32 v63, v8 offset:9216''')
    if SB and PAX: k(f's_waitcnt vmcnt({len(vm.tags) + 2})')
    elif SB: vw2(len(vm.tags) + 2)
    else: xwait()
    k('s_barrier')
    for i in range(8): k(f'ds_read_b128 {vr(64+4*i,4)}, v3 offset:{TB0+1024*i}')
    if not opt.get('twe', 1):
        k(f'''s_lshl_b32 s33, s3, 6
s_add_u32 s33, s33, 32768
s_load_dwordx16 s[16:31], s[12:13], s33
s_load_dwordx2 s[80:81], s[0:1], 64''')
    if LT == 1: late()
    srd_from(k, 56, 40, 41, WS_FL, 0x80000)
    k(f'''s_lshl_b32 s33, s2, 10
s_cmp_lt_u32 s2, 128
s_cselect_b32 s43, s33, {BIG}
s_add_u32 s33, s33, 0x40000
s_cmp_eq_u32 s34, 1
s_cselect_b32 s33, s33, {BIG}
s_cselect_b32 s44, -1, 0
s_cmp_eq_u32 s34, 0
s_cselect_b32 s33, s43, s33
v_mov_b32 v120, s44
v_mov_b32 v121, s44
v_mov_b32 v122, s44
v_mov_b32 v123, s44
buffer_store_dwordx4 v[120:123], v3, s[56:59], s33 offen''')
    IP = opt.get('ip', 0)
    if not IP: k(f'''s_mul_i32 s33, s3, {8*TP}
s_add_u32 s33, s33, {WS_U}
s_add_u32 s56, s40, s33
s_addc_u32 s57, s41, 0
s_mov_b32 s58, {8*TP}
v_mov_b32 v116, -1
v_mov_b32 v117, -1
v_mov_b32 v118, -1
v_mov_b32 v119, -1
v_lshlrev_b32 v125, 4, v0
s_movk_i32 s33, 0x2000
buffer_store_dwordx4 v[116:119], v125, s[56:59], 0 offen
buffer_store_dwordx4 v[116:119], v125, s[56:59], s33 offen''')
    for _ in range(1 if IP else 3): vm.issue('f')
    if not opt.get('nopf'):
        code_srd(k, 68, CS, 'code_end')
        k(f'''s_cmp_ge_u32 s34, 6
s_cselect_b32 s70, s70, 0
s_bfe_u32 s33, s2, 0x30003
s_lshl_b32 s33, s33, 13
s_and_b32 s43, s34, 1
s_lshl_b32 s43, s43, 16
s_add_u32 s33, s33, s43
s_add_u32 s33, s33, {8192*CP0}
v_lshlrev_b32 v100, 7, v2
buffer_load_ubyte v122, v100, s[68:71], s33 offen''')
        vm.issue('c')
    k(f'''s_bitcmp1_b32 s34, 0
s_cselect_b32 s68, s54, s52
s_cselect_b32 s69, s55, s53
s_cmp_ge_u32 s34, 6
s_cselect_b32 s70, {0 if opt.get('xT') else 2048*642}, 0
s_mov_b32 s71, 0x00020000
v_and_b32 v100, 7, v2
v_lshlrev_b32 v100, 7, v100
v_min_u32 v100, 671, v100
v_lshrrev_b32 v102, 3, v2
v_mul_u32_u24 v102, {8*642}, v102
v_add_u32 v100, v100, v102
s_and_b32 s33, s2, 7
s_lshr_b32 s37, s2, 3
s_lshl_b32 s37, s37, 6
s_add_u32 s33, s33, s37
s_mul_i32 s33, s33, 642
buffer_load_ubyte v123, v100, s[68:71], s33 offen''')
    vm.issue('c')
    if WT0 and WP == 1: wt0()
    if PAX == 1:
        k(f's_cmp_lt_u32 s34, s101\ns_cbranch_scc1 {PA}')
        prepa()
        k(f'{PA}:')
    if SB: xwait()
    if WT0 and WP == 2: wt0()
    i0 = len(k.lines)
    for i in range(5):
        k(f'v_lshlrev_b32 v{10+2*i}, 16, v{4+i}\nv_and_b32 v{11+2*i}, 0xffff0000, v{4+i}')
    k('''v_pk_add_f32 v[20:21], v[10:11], v[12:13]
v_pk_mul_f32 v[22:23], v[10:11], v[10:11]
v_pk_add_f32 v[24:25], v[14:15], v[16:17]
v_pk_fma_f32 v[22:23], v[12:13], v[12:13], v[22:23]
v_pk_add_f32 v[20:21], v[20:21], v[18:19]
v_pk_fma_f32 v[22:23], v[14:15], v[14:15], v[22:23]
v_pk_add_f32 v[20:21], v[20:21], v[24:25]
v_pk_fma_f32 v[22:23], v[16:17], v[16:17], v[22:23]
v_pk_fma_f32 v[22:23], v[18:19], v[18:19], v[22:23]
v_add_f32 v20, v20, v21
v_add_f32 v22, v22, v23''')
    wave_reduce2(k, 20, 22, 36, 37)
    ln_stats(k, 36, 37, 640, 20, 22, 24)
    (ln_apply2 if opt.get('lean', 0) & 2 else ln_apply)(k, 10, 10, 20, 22, 4)
    k('''ds_write_b64 v58, v[4:5]
ds_write_b64 v58, v[6:7] offset:512
ds_write_b32 v59, v8 offset:1024
s_waitcnt lgkmcnt(0)
ds_read_b64_tr_b16 v[4:5], v54
ds_read_b64_tr_b16 v[6:7], v55
ds_read_b64_tr_b16 v[8:9], v54 offset:32
ds_read_b64_tr_b16 v[10:11], v55 offset:32
s_waitcnt lgkmcnt(2)''')
    k(f'''{MFMA} v[12:15], v[4:7], v[64:67], 0
{MFMA} v[16:19], v[4:7], v[68:71], 0
s_waitcnt lgkmcnt(0)
{MFMA} v[20:23], v[8:11], v[64:67], 0
{MFMA} v[24:27], v[8:11], v[68:71], 0''')
    cmul_planar(k, 12, 16, 72, 76, 28, 32, 44)
    cmul_planar(k, 20, 24, 80, 84, 36, 40, 44)
    for t in range(2):
        for h in range(2):
            re_ = 28 + 8 * t + 2 * h; im = 32 + 8 * t + 2 * h; o = 2 * t + h
            k(f'''v_cvt_pk_bf16_f32 v{4+o}, v{re_}, v{re_+1}
v_cvt_pk_bf16_f32 v{8+o}, v{im}, v{im+1}
v_cvt_pk_bf16_f32 v{12+o}, -v{im}, -v{im+1}
v_cvt_pk_bf16_f32 v{16+o}, v{re_}, -v{re_+1}
v_cvt_pk_bf16_f32 v{20+o}, v{im}, -v{im+1}
v_cvt_pk_bf16_f32 v{24+o}, -v{im}, v{im+1}''')
    k(f'''{MFMA} v[28:31], v[88:91], v[4:7], 0
{MFMA} v[32:35], v[92:95], v[4:7], 0
{MFMA} v[36:39], v[88:91], v[16:19], 0
{MFMA} v[40:43], v[92:95], v[16:19], 0
{MFMA} v[28:31], v[92:95], v[12:15], v[28:31]
{MFMA} v[32:35], v[88:91], v[8:11], v[32:35]
{MFMA} v[36:39], v[92:95], v[24:27], v[36:39]
{MFMA} v[40:43], v[88:91], v[20:23], v[40:43]''')
    k('''s_mov_b32 exec_lo, 0x07ff07ff
s_mov_b32 exec_hi, 0x07ff07ff''')
    for r in range(4):
        k(f'ds_write2_b32 v60, v{28+r}, v{32+r} offset0:{40*r} offset1:{40*r+1}')
    for r in range(4):
        k(f'v_xor_b32 v{40+r}, 0x80000000, v{40+r}')
    for r in range(4):
        k(f'ds_write2_b32 v61, v{36+r}, v{40+r} offset0:{40*(3-r)} offset1:{40*(3-r)+1}')
    k('s_mov_b64 exec, -1')
    srd_from(k, 68, 40, 41, WS_FL, FL_BYTES)
    if PAX: vw2(int(re.search(r'\d+', vm.wait('f')).group(0)))
    else: k(vm.wait('f'))
    k('s_waitcnt lgkmcnt(0)')
    st(k, 7, 2); st(k, 5, 2)
    k('s_barrier')
    k(f'''v_cmp_gt_u32 vcc, {TP//4}, v0
s_and_saveexec_b64 s[44:45], vcc
s_cbranch_execz {TAIL}
v_lshlrev_b32 v1, 3, v0
v_lshlrev_b32 v2, 2, v0''')
    for n in range(8):
        k(f'ds_read_b64 {vr(4+2*n,2)}, v1 offset:{EX0+n*EXP}')
    k(f'''v_mov_b32 v40, 0x3f3504f3
s_mul_i32 s46, s3, {8*TP}
s_add_u32 s47, s46, {3*TP}
s_add_u32 s48, s46, {6*TP}
s_waitcnt lgkmcnt(0)
s_barrier''')
    st(k, 7, 3); st(k, 5, 3)
    T = fft8(k, 4, 20, False, 40)
    for k2 in range(8):
        if k2 == 0:
            k(f'v_cvt_pk_bf16_f32 v4, v{T[0]}, v{T[0]+1}')
        else:
            smul(k, T[k2], T[k2], 16 + 2 * k2, 42 + 2 * (k2 & 1))
            k(f'v_cvt_pk_bf16_f32 v{4+k2}, v{T[k2]}, v{T[k2]+1}')
        if IP: k(f'v_and_b32 v{4+k2}, -2, v{4+k2}')
        k(f'buffer_store_dword v{4+k2}, v2, s[8:11], s{46+k2//3} offen offset:{(k2%3)*TP}')
    k('s_mov_b64 exec, -1')
    st(k, 7, 4)
    k(f'''s_bfe_u32 s42, s3, 0x30001
s_lshl_b32 s42, s42, 7
s_lshr_b32 s43, s3, 4
s_lshl_b32 s43, s43, 3
s_add_u32 s42, s42, s43
s_and_b32 s43, s3, 1
s_lshl_b32 s43, s43, 2
s_add_u32 s42, s42, s43
s_add_u32 s42, s42, {FT}
v_lshlrev_b32 v12, 6, v3
v_mov_b32 v13, {MAGIC}
v_mov_b32 v127, 1
s_mov_b64 exec, 1
s_waitcnt vmcnt(0)
ds_add_rtn_u32 v127, v126, v127
s_waitcnt lgkmcnt(0)
v_readfirstlane_b32 s43, v127
s_mov_b64 exec, 0xff
s_and_b32 s43, s43, 0xff
s_cmp_lg_u32 s43, 5
s_cbranch_scc1 {NF}
buffer_store_dword v13, v12, s[68:71], s42 offen
{NF}:
s_mov_b64 exec, -1''')
    st(k, 7, 5)
    CADD = f's_mov_b64 exec, 1\nv_mov_b32 v127, 0x100\nds_add_u32 v126, v127\ns_mov_b64 exec, -1'
    k(f'''v_and_b32 v2, 63, v0
s_cmp_ge_u32 s34, s100
s_cbranch_scc1 {PREPB}
{CADD}
s_branch {J1}
{TAIL}:
s_mov_b64 exec, -1
s_barrier''')
    st(k, 7, 3); st(k, 5, 3)
    k(f's_cmp_lt_u32 s34, s100\ns_cbranch_scc1 {J1}')
    if PAX: k('s_waitcnt vmcnt(0)')
    k(f'{PREPB}:')
    if opt.get('tch') == 2: k(CADD)
    if PL > 3:
        if opt.get('pd'): k(f's_sleep {opt["pd"]}')
        k(f's_cmp_ge_u32 s34, s101\ns_cbranch_scc1 {PB}')
        prepa()
        k(f's_waitcnt vmcnt(0)\n{PB}:')
    i0 = len(k.lines)
    prep_inl(k, 'B', 0, PD, 63, hdr=HDR)
    for j in range(i0, len(k.lines)):
        k.lines[j] = re.sub(r'\bs5([01])\b', lambda m: f's{24+int(m.group(1))}', k.lines[j])
    k(f'''{PD}:
{CADD if not opt.get('tch') else ''}
s_lshl_b32 s42, s33, 2
s_add_u32 s42, s42, {FP}
v_lshlrev_b32 v12, 7, v3
v_mov_b32 v13, {MAGIC}
s_lshl_b32 s33, s3, 6
s_add_u32 s33, s33, 32768
s_load_dwordx16 s[16:31], s[12:13], s33''')
    st(k, 7, 6); st(k, 5, 9)
    k(f'''s_mov_b64 exec, 0xff
s_waitcnt vmcnt(0)
buffer_store_dword v13, v12, s[68:71], s42 offen
s_mov_b64 exec, -1
{CADD if opt.get('tch') == 1 else ''}''')
    st(k, 7, 7)
    for j in range(l0, len(k.lines)):
        l = k.lines[j]
        if l.startswith('buffer_store') and 'sc1' not in l: k.lines[j] = l + ' sc1'
    k(f'{J1}:')
    if WD5:
        k(f's_cmp_lt_u32 s2, {opt.get("wda", 256)}\ns_cselect_b32 s101, 4, 8')
        if WD5 == 32: k(CUT)
    vm = Cnt('vmcnt', 63); vm.issue('q')
    IIM = 'v[112:115]'; IRE = 'v[114:117]'; FIM = 'v[116:119]'; FRE = 'v[118:121]'
    k(f"""v_and_b32 v4, 15, v2
v_lshrrev_b32 v5, 4, v2""")
    k(f"""s_and_b32 s33, s2, 7
s_lshr_b32 s35, s2, 3
v_lshrrev_b32 v7, 2, v2
v_and_b32 v8, 3, v2
v_mul_u32_u24 v6, {16*8*TP}, v7
v_lshl_add_u32 v6, v8, 4, v6
s_lshl_b32 s36, s34, 4
s_add_u32 s36, s36, s33
s_mul_i32 s36, s36, {TP}
s_lshl_b32 s37, s35, 6
s_add_u32 s36, s36, s37
s_add_u32 s42, s36, {8*TP}
s_and_b32 s37, s33, {1-IP}
s_lshl_b32 s37, s37, 2
s_sub_u32 s43, s36, s37
s_sub_u32 s44, s42, s37
s_lshl_b32 s45, s33, 10
s_lshl_b32 s49, s33, 11
s_add_u32 s49, s49, {FP}
s_lshl_b32 s37, s34, 7
s_add_u32 s45, s45, s37
s_add_u32 s45, s45, {FT}
v_and_b32 v9, 31, v2
v_lshlrev_b32 v9, 2, v9""")
    srd_from(k, 60, 40, 41, WS_T, TU_BYTES)
    srd_from(k, 8, 40, 41, WS_T if IP else WS_U, TU_BYTES)
    srd_from(k, 64, 40, 41, WS_WI, WI_BYTES)
    g1id(k, 58, 57)
    k(f"""s_and_b32 s58, s58, 15
s_mul_i32 s58, s58, {140*1024}
s_mov_b32 s56, s32
s_sub_u32 s57, s32, {BB}
s_add_u32 s57, s57, s58""")
    bops = []
    for i in range(14):
        o = f's_add_u32 m0, s56, {1024*(i-i%4)}\n'
        if i % 4 == 0 and i: o += 's_add_u32 s57, s57, 4096\n'
        bops.append(o + f'buffer_load_dwordx4 v3, s[64:67], s57 offen offset:{1024*(i%4)} lds')
    KW = opt.get('KW', [0, 0, 0]); K9 = opt.get('K9', 8); KT = opt.get('KT', 0); KA = opt.get('KA', 0)
    wrest = list(q.ops)
    nw1 = min(len(wrest), KA + KT + KW[0] + KW[1])
    rest = wrest[nw1:] + bops
    if opt.get('bo'): rest = bops + wrest[nw1:]
    post = rest[K9:]
    assert not opt.get('bo') and K9 <= len(wrest) - nw1 and 8 * opt.get('wte', 0) <= nw1
    if opt.get('wt67'): assert K9 == len(wrest) - nw1
    assert len(post) <= KW[2], (len(post), KW)

    def pld():
        k('buffer_load_dwordx4 v[24:27], v3, s[68:71], s49 offen sc1\nbuffer_load_dwordx4 v[28:31], v3, s[68:71], s49 offen offset:736 sc1')

    def pchk(n):
        LP = k.label('lp'); LD = k.label('ld'); L1 = k.label('l1')
        k(f's_mov_b32 s43, {SPIN}\ns_waitcnt vmcnt({n})\ns_branch {L1}\n{LP}:\ns_sleep 4')
        pld()
        k(f'''s_waitcnt vmcnt(0)
{L1}:
v_min3_u32 v13, v24, v25, v26
v_max3_u32 v14, v24, v25, v26
v_min3_u32 v13, v13, v27, v28
v_max3_u32 v14, v14, v27, v28
v_min3_u32 v13, v13, v29, v30
v_max3_u32 v14, v14, v29, v30
v_min_u32 v13, v13, v31
v_max_u32 v14, v14, v31
v_xor_b32 v13, {MAGIC}, v13
v_xor_b32 v14, {MAGIC}, v14
v_or_b32 v24, v13, v14
v_cmp_ne_u32 vcc, 0, v24
s_cbranch_vccz {LD}
s_sub_u32 s43, s43, 1
s_cmp_lg_u32 s43, 0
s_cbranch_scc1 {LP}
{LD}:''')
    k(f's_cmp_ge_u32 s2, 168\ns_cbranch_scc1 {IDLE}')
    q = Bulk(k, wrest[:nw1])
    k(f"""v_mul_u32_u24 v10, {4*P}, v8
v_lshl_add_u32 v10, v7, 2, v10
s_lshl_b32 s37, s34, 7
v_add_u32 v10, s37, v10
v_lshlrev_b32 v12, 6, v4
v_lshl_add_u32 v12, v5, 4, v12
s_mul_i32 s37, s34, {2*P}
v_add_u32 v12, s37, v12""")
    k(f"""ds_read_b128 v[96:99], v3 offset:{TB1}
ds_read_b128 v[100:103], v3 offset:{TB1+1024}
ds_read_b128 v[104:107], v3 offset:{TB1+2048}
ds_read_b128 v[108:111], v3 offset:{TB1+3072}
ds_read_b128 v[118:121], v3 offset:{TB1+4096}
ds_read_b64 v[116:117], v3 offset:{TB1+5120}
ds_read_b128 v[112:115], v3 offset:{TB1+7168}""")
    st(k, 7, 6)
    assert opt.get('xs')
    LP = k.label('lp'); LD = k.label('ld'); L1 = k.label('l1')
    PL = 'buffer_load_dword v13, v9, s[68:71], s45 offen sc1'
    q(KA, None, 124)
    WLD = """buffer_load_dwordx3 v[80:82], v14, s[52:55], s39 offen
buffer_load_dwordx3 v[88:90], v14, s[4:7], s39 offen
buffer_load_dwordx3 v[84:86], v14, s[52:55], s37 offen
buffer_load_dwordx3 v[92:94], v14, s[4:7], s37 offen
s_and_b32 s39, s33, 1
s_lshl_b32 s39, s39, 4""" if IP else """buffer_load_dwordx2 v[64:65], v14, s[52:55], s39 offen
buffer_load_dwordx2 v[68:69], v14, s[4:7], s39 offen
buffer_load_dwordx2 v[66:67], v14, s[52:55], s37 offen
buffer_load_dwordx2 v[70:71], v14, s[4:7], s37 offen"""
    WF = opt.get('wf', 0)
    WA = f'''s_lshl_b32 s39, s34, 4
s_add_u32 s39, s39, s33
s_mul_i32 s39, s39, 642
s_lshl_b32 s37, s35, 5
s_add_u32 s39, s39, s37
s_and_b32 s39, s39, -4
{f"s_mov_b32 s39, {BIG}" if opt.get('xW') else ""}
s_add_u32 s37, s39, {8*642}
v_mul_u32_u24 v14, {16*8*642}, v7
v_lshl_add_u32 v14, v8, 3, v14
s_mov_b32 s4, s54
s_mov_b32 s5, s55
s_mov_b32 s54, {2048*642}
s_mov_b32 s55, 0x00020000
s_mov_b32 s6, {2048*642}
s_mov_b32 s7, 0x00020000
{WLD}
s_mov_b32 s47, 0x05040100
s_mov_b32 s48, 0x07060302'''

    def wput():
        if IP:
            for j in range(8): k(f'v_alignbit_b32 v{64+j}, v{81+4*(j//2)+(j&1)}, v{80+4*(j//2)+(j&1)}, s39')
        for j in range(8):
            k(f'v_perm_b32 v{72+j}, v{68+j//2}, v{64+j//2}, s{47+(j&1)}')
            k(f'ds_write_b32 v10, v{72+j} offset:{W0+(j&3)*P+64*(j>>2)}')
    if WF:
        if opt.get('wd0'): k(f's_sleep {opt["wd0"]}')
        k(WA)
    if opt.get('td4') is not None:
        LS = k.label('ls')
        k(f's_sleep {opt["td4"]}\ns_bitcmp1_b32 {opt.get("tdm", 0x30)}, s34\ns_cbranch_scc1 {LS}\ns_sleep {opt["td"]-opt["td4"]}\n{LS}:')
    elif opt.get('td'): k(f's_sleep {opt["td"]}')
    if opt.get('tdb'): k('s_barrier')
    if WF:
        k('s_waitcnt vmcnt(0)')
        st(k, 7, 6)
        k(PL)
        wput()
    else: k(PL + '\n' + WA)
    k(f'''s_mov_b32 s46, {SPIN}
s_waitcnt vmcnt({0 if WF else 4})
s_branch {L1}
{LP}:
{f"s_sleep {opt['tsl']}" if opt.get('tsl') else ""}
{PL}
s_waitcnt vmcnt(0)
{L1}:
v_cmp_ne_u32 vcc, {MAGIC}, v13
s_cbranch_vccz {LD}
s_sub_u32 s46, s46, 1
s_cmp_lg_u32 s46, 0
s_cbranch_scc1 {LP}
{LD}:''')
    st(k, 7, 7)
    vm.done = len(vm.tags)
    for i in range(2):
        k(f'buffer_load_dwordx4 {vr(16+4*i,4)}, v6, s[60:63], s{43+i} offen'); vm.issue(f'T{i}')
    if not WF:
        k('s_waitcnt vmcnt(2)')
        wput()
    q(KT, vm, 124, 'q')
    for i in range(2):
        k(vm.wait(f'T{i}'))
        if i == 0: st(k, 4, 1); st(k, 7, 8)
        for j in range(4):
            k(f'ds_write_b32 v10, v{16+4*i+j} offset:{j*P+64*i}')
    k('s_waitcnt lgkmcnt(0)\ns_barrier')
    NC = 2
    i0 = len(k.lines)
    k(f"""ds_read_b128 v[16:19], v12
ds_read_b128 v[20:23], v12 offset:{P}
ds_read_b128 v[32:35], v12 offset:{W0}
ds_read_b128 v[36:39], v12 offset:{W0+P}
s_waitcnt lgkmcnt(3)
{MFMA} v[48:51], v[16:19], v[96:99], 0
{MFMA} v[52:55], v[16:19], v[100:103], 0
s_waitcnt lgkmcnt(2)
{MFMA} v[56:59], v[20:23], v[96:99], 0
{MFMA} v[60:63], v[20:23], v[100:103], 0
s_waitcnt lgkmcnt(0)""")
    for c in range(NC):
        for r in range(4):
            k(f'v_lshlrev_b32 v{64+8*c+r}, 16, v{32+4*c+r}\nv_and_b32 v{68+8*c+r}, 0xffff0000, v{32+4*c+r}')

    def pack(c, re, im):
        k(f"""v_cvt_pk_bf16_f32 v{16+4*c}, v{re}, v{re+1}
v_cvt_pk_bf16_f32 v{17+4*c}, v{re+2}, v{re+3}
v_cvt_pk_bf16_f32 v{18+4*c}, v{im}, v{im+1}
v_cvt_pk_bf16_f32 v{19+4*c}, v{im+2}, v{im+3}""")
    for c in range(NC):
        cmul_planar(k, 48 + 8 * c, 52 + 8 * c, 104, 108, 80, 84, 88)
        pack(c, 80, 84)
        k(f'{MFMA} {vr(48+8*c,4)}, {FRE}, {vr(16+4*c,4)}, 0')
        k(f'{MFMA} {vr(52+8*c,4)}, {FIM}, {vr(16+4*c,4)}, 0')
    weave_in(k, i0, q, KW[0], vm, 124)
    st(k, 4, 2)
    PC7 = opt.get('pc7', 0)
    def only7(f):
        L = k.label('o7')
        k(f's_cmp_lt_u32 s34, 7\ns_cbranch_scc1 {L}')
        f()
        k(f'{L}:')
    if PC7 == 1: only7(pld)
    i0 = len(k.lines)
    for c in range(NC):
        cmul_planar(k, 48 + 8 * c, 52 + 8 * c, 64 + 8 * c, 68 + 8 * c, 80, 84, 88)
        pack(c, 80, 84)
        k(f'{MFMA} {vr(48+8*c,4)}, {vr(16+4*c,4)}, {IRE}, 0')
        k(f'{MFMA} {vr(52+8*c,4)}, {vr(16+4*c,4)}, {IIM}, 0')
    for c in range(NC):
        cmul_planar(k, 48 + 8 * c, 52 + 8 * c, 104, 108, 80, 84, 88, conj=True)
        pack(c, 80, 84)
        k(f'{MFMA} {vr(48+8*c,4)}, {IRE}, {vr(16+4*c,4)}, 0')
        k(f'{MFMA} {vr(52+8*c,4)}, {IIM}, {vr(16+4*c,4)}, 0')
    weave_in(k, i0, q, KW[1], vm, 124)
    assert not q.ops
    if PC7 == 0: pld()
    if PC7 == 2: only7(pld)
    for c in range(NC):
        for r in range(4):
            k(f'v_cvt_pk_bf16_f32 v{16+4*c+r}, v{48+8*c+r}, v{52+8*c+r}')
        if IP:
            for r in range(4): k(f'v_or_b32 v{16+4*c+r}, 1, v{16+4*c+r}')
        k(f'ds_write_b128 v12, {vr(16+4*c,4)} offset:{c*P}')
    k('s_waitcnt lgkmcnt(0)\ns_barrier')
    for i in range(2):
        for j in range(4):
            k(f'ds_read_b32 v{16+4*i+j}, v10 offset:{j*P+64*i}')
    for i in range(NT2): k(f'ds_read_b128 {vr(64+4*i,4)}, v3 offset:{TB2+1024*i}')
    for i in range(2):
        k(f's_waitcnt lgkmcnt({4+NT2-4*i})')
        k(f'buffer_store_dwordx4 {vr(16+4*i,4)}, v6, s[8:11], {["s36","s42"][i]} offen sc1')
    st(k, 4, 3); st(k, 7, 9)
    st(k, 8, 1)
    if opt.get('ob2'): k('s_barrier')
    st(k, 8, 2)
    if PC7: only7(lambda: pchk(2 + (KW[1] if PC7 == 1 else 0)))
    else: pchk(2)
    st(k, 8, 3)
    Bulk(k, rest[:K9])(99, None, 124)
    st(k, 8, 4)
    k(f's_branch {JOIN}\n{IDLE}:')
    IT = opt.get('it', 2)
    G2M = opt.get('g2m', 0)
    if IT:
        LP = k.label('lp'); LD = k.label('ld')
        k(f'''s_cmp_ge_u32 s34, 3
s_cbranch_scc1 {LD}x
s_sub_u32 s43, s35, 21
s_and_b32 s44, s33, {1-G2M}
s_mul_i32 s44, s44, 11
s_add_u32 s43, s43, s44
s_mul_i32 s44, s34, {22>>G2M}
s_add_u32 s44, s44, s43
s_lshr_b32 s46, s33, {1-G2M}
s_lshl_b32 s46, s46, {18-G2M}
v_lshlrev_b32 v10, 7, v2
s_mov_b32 s43, {SPIN}
{LP}:
ds_read_b32 v11, v126
s_waitcnt lgkmcnt(0)
v_cmp_gt_u32 vcc, 0x800, v11
s_cbranch_vccz {LD}
s_sleep 1
s_sub_u32 s43, s43, 1
s_cmp_lg_u32 s43, 0
s_cbranch_scc1 {LP}
{LD}:''')
        if opt.get('itd'): k(f's_sleep {opt["itd"]}')
        for r in range(opt.get('itn', 4)):
            k(f'''s_and_b32 s47, s44, {31>>G2M}
s_lshl_b32 s47, s47, 13
s_lshr_b32 s48, s44, {5-G2M}
s_lshl_b32 s48, s48, 20
s_add_u32 s47, s47, s48
s_add_u32 s47, s47, s46
buffer_load_ubyte v11, v10, s[72:75], s47 offen
s_add_u32 s44, s44, {66>>G2M}''')
        if opt.get('it2'):
            k(f'''s_and_b32 s47, s33, 1
s_mul_i32 s47, s47, 22
s_sub_u32 s44, s44, s47
s_sub_u32 s44, s44, {4*66-11}''')
            if opt['it2'] == 2: k('s_waitcnt vmcnt(0)')
            for r in range(4):
                k(f'''s_and_b32 s47, s44, 31
s_lshl_b32 s47, s47, 13
s_lshr_b32 s48, s44, 5
s_lshl_b32 s48, s48, 20
s_add_u32 s47, s47, s48
s_add_u32 s47, s47, s46
buffer_load_ubyte v11, v10, s[72:75], s47 offen
s_add_u32 s44, s44, 66''')
        k(f'{LD}x:')
    k('s_barrier')
    st(k, 8, 1)
    IPL = opt.get('ipl', nw1)
    Bulk(k, wrest[:IPL])(99, None, 124)
    if PC7: only7(pld)
    Bulk(k, wrest[IPL:nw1])(99, None, 124)
    st(k, 8, 2)
    for i in range(NT2): k(f'ds_read_b128 {vr(64+4*i,4)}, v3 offset:{TB2+1024*i}')
    if PC7: only7(lambda: pchk(nw1 - IPL))
    else:
        pld()
        pchk(0)
    st(k, 8, 3)
    Bulk(k, rest[:K9])(99, None, 124)
    st(k, 8, 4)
    if opt.get('idl'): k(f's_sleep {opt["idl"]}')
    k(f'{JOIN}:')
    ph_k2b(k, opt, post, 0, True)


def clean(k, wv=0, r=(4, 5, 6)):
    NC_ = k.label('nc')
    k(f'''s_cmp_lg_u32 s34, {wv}
s_cbranch_scc1 {NC_}
s_bfe_u32 s42, s2, 0x30004
s_lshl_b32 s42, s42, 7
s_and_b32 s43, s2, 7
s_lshl_b32 s43, s43, 4
s_add_u32 s42, s42, s43
s_lshr_b32 s43, s2, 7
s_lshl_b32 s43, s43, 3
s_add_u32 s42, s42, s43
s_bfe_u32 s43, s2, 0x10003
s_lshl_b32 s43, s43, 2
s_add_u32 s42, s42, s43
s_add_u32 s42, s42, {FT}
s_lshl_b32 s43, s2, 3
s_add_u32 s43, s43, {FP}
v_lshlrev_b32 v{r[0]}, 6, v3
v_lshlrev_b32 v{r[1]}, 7, v3
v_mov_b32 v{r[2]}, 0
v_mov_b32 v{r[2]+1}, 0
s_mov_b64 exec, 0xff
buffer_store_dword v{r[2]}, v{r[0]}, s[68:71], s42 offen sc1
buffer_store_dwordx2 v[{r[2]}:{r[2]+1}], v{r[1]}, s[68:71], s43 offen sc1
s_mov_b64 exec, -1
{NC_}:''')


def gen_f(opt):
    gen10.CLEAN = clean
    k = Kern('kf_kernel', 256, 512, 163840, nvgpr=128, nagpr=128, nsgpr=102)
    END = k.label('end'); G2 = k.label('g2'); G3 = k.label('g3')
    k(f's_cmp_ge_u32 s2, 256\ns_cbranch_scc1 {END}')
    k.stamp(True)
    wb = Bulk(k, g2_wops())
    ph_k01(k, opt, wb)
    ph_g1t(k, opt, G2, wb)
    k(f'{G2}:')
    st(k, 0, 6)
    vm = Cnt('vmcnt', 63); vm.issue('w')
    g3_wo_setup(k)
    ph_g2(k, opt, G3, vm, True, g3_wo_ops())
    k(f'{G3}:')
    if opt.get('g3v') == 4: pass
    elif opt.get('g3v') == 3: ph_g3w(k, opt)
    elif opt.get('g3v'): ph_g3v(k, opt)
    else: ph_g3(k, opt, True)
    if opt.get('g3v') != 4: clean(k)
    k.finish(END)
    return [k]
```

```python
from asmlib import *
import gen_fft
from gen_fft import vr, sr, srd_from, tab_srd, MFMA, WS_H, WS_HN, WS_U, WS_T, X_BYTES, TU_BYTES, TP, fft8, smul, cmul_planar, wave_reduce2, ln_stats, ln_apply
from gen3 import *

WS_FL = 0x1800000
FL_BYTES = 0x40000
FLH = 0; FL2 = 0x8000; FL3 = 0x10000; FLU = 0x18000
FS = 7
WS_PX = 0x1840000
PX_BYTES = 64 * 16 * 256
WS_WS = 0x2000000
WSP_BYTES = 8 << 20
Z2N_BYTES = 64 * 57344
A2_BYTES = 4 << 20
SPIN = 400000
PV = 0
ROT = 0
W128 = 0
G1S = 0
GV = 0
HP = 10368
HN_BYTES = 256 * HP
MF16 = 'v_mfma_f32_16x16x16_bf16'
BIG = '0x7f000000'


def ln_apply2(k, f, n, vm, vrs, out):
    k(f'v_mul_f32 v{vm}, v{vm}, v{vrs}')
    for i in range(0, n, 2):
        k(f'v_pk_fma_f32 {vr(f+i,2)}, {vr(f+i,2)}, {vr(vrs,2)}, {vr(vm,2)} op_sel_hi:[1,0,0] neg_lo:[0,0,1] neg_hi:[0,0,1]')
    for i in range(0, n, 2):
        k(f'v_cvt_pk_bf16_f32 v{out+i//2}, v{f+i}, v{f+i+1}')


def st(k, view, slot):
    if Kern.prof and PV == view:
        k.nst = slot; k.stamp()


def poll(k, srd, soff, va, vd, sc):
    LP = k.label('lp'); LD = k.label('ld')
    k(f'''s_mov_b32 s{sc}, {SPIN}
{LP}:
buffer_load_dword v{vd}, v{va}, {sr(srd,4)}, {soff} offen sc1
s_waitcnt vmcnt(0)
v_cmp_eq_u32 vcc, 0, v{vd}
s_cbranch_vccz {LD}
s_sub_u32 s{sc}, s{sc}, 1
s_cmp_lg_u32 s{sc}, 0
s_cbranch_scc1 {LP}
{LD}:''')


def map_g2(k):
    if gen_fft.OPT.get('g2m'):
        k('''s_and_b32 s35, s2, 7
s_lshl_b32 s35, s35, 2
s_bfe_u32 s36, s2, 0x20003
s_add_u32 s35, s35, s36
s_lshr_b32 s36, s2, 5''')
        return
    k('''s_and_b32 s33, s2, 7
s_lshr_b32 s42, s2, 3
s_lshr_b32 s35, s33, 1
s_lshl_b32 s35, s35, 3
s_and_b32 s36, s42, 7
s_add_u32 s35, s35, s36
s_and_b32 s36, s33, 1
s_lshl_b32 s36, s36, 2
s_lshr_b32 s42, s42, 3
s_add_u32 s36, s36, s42''')


def g1id(k, d, t):
    m = gen_fft.OPT.get('g1m', 0)
    k(f'''s_bfe_u32 s{d}, s2, {hex(((3-m) << 16) | m)}
s_lshl_b32 s{d}, s{d}, {1+m}
s_lshr_b32 s{t}, s2, {7-m}
s_add_u32 s{d}, s{d}, s{t}
s_lshl_b32 s{d}, s{d}, {m}
s_and_b32 s{t}, s2, {(1 << m) - 1}
s_add_u32 s{d}, s{d}, s{t}
s_lshl_b32 s{d}, s{d}, {4-m}
s_bfe_u32 s{t}, s2, {hex(((4-m) << 16) | 3)}
s_add_u32 s{d}, s{d}, s{t}''')


def w_setup(k, t0, t1):
    G2M = gen_fft.OPT.get('g2m', 0)
    k(f'''s_mov_b32 s74, {2048*4096}
s_mov_b32 s75, 0x00020000
s_bfe_u32 s{t0}, s2, {"0x30000" if G2M else "0x20001"}
s_lshl_b32 s{t0}, s{t0}, {2 if G2M else 3}
s_bfe_u32 s{t1}, s2, {"0x20003" if G2M else "0x30003"}
s_add_u32 s{t0}, s{t0}, s{t1}
s_lshl_b32 s50, s{t0}, 15
s_lshr_b32 s{t0}, s34, 2
s_lshl_b32 s{t0}, s{t0}, 11
s_and_b32 s{t1}, s34, 3
s_lshl_b32 s{t1}, s{t1}, 7
s_add_u32 s50, s50, s{t0}
s_add_u32 s50, s50, s{t1}
s_add_u32 s51, s50, 16384''')
    if ROT:
        k(f'''s_bfe_u32 s{t0}, s2, 0x10006
s_lshl_b32 s{t0}, s{t0}, {21 if G1S else 14}
s_add_u32 s50, s50, s{t0}
s_bfe_u32 s{t0}, s2, 0x10007
s_lshl_b32 s{t0}, s{t0}, 22
s_add_u32 s50, s50, s{t0}
s_mov_b32 s51, s50''')
    if W128: k(f's_mov_b32 s82, s50\ns_add_u32 s51, s50, {0x100000 if G1S else 4096}')


def w_vaddr(k, d, t):
    if W128:
        k(f'''v_and_b32 v{d}, 112, v3
v_bfe_u32 v{t}, v3, 7, 1
v_lshl_add_u32 v{d}, v{t}, {14 if G1S else 13}, v{d}
v_lshrrev_b32 v{t}, 8, v3
v_lshl_add_u32 v{d}, v{t}, 9, v{d}''')
        return
    k(f'''v_and_b32 v{d}, 48, v3
v_bfe_u32 v{t}, v3, 6, 2
v_lshl_add_u32 v{d}, v{t}, 12, v{d}
v_lshrrev_b32 v{t}, 8, v3
v_lshl_add_u32 v{d}, v{t}, 9, v{d}''')


def g2_wops(fl=''):
    ops = []
    if W128:
        for g in range(4):
            for n in range(4):
                for ih in range(2):
                    o = f'buffer_load_dwordx4 {ar(16*(4*ih+n)+4*g,4)}, @, s[72:75], s{50+ih} offen{fl}'
                    sn, si, su = (4096, 0x100000, 2 << 20) if G1S else (0x100000, 4096, 16384)
                    if ih and n < 3: o += f'\ns_add_u32 s50, s50, {sn}\ns_add_u32 s51, s51, {sn}'
                    if ih and n == 3 and g < 3: o += f'\ns_xor_b32 s50, s82, {((g+1)&1)*su + ((g+1)>>1)*(4<<20)}\ns_add_u32 s51, s50, {si}'
                    ops.append(o)
        return ops
    if ROT:
        for g in range(4):
            for n in range(4):
                for hi in range(2):
                    o = f'buffer_load_dwordx4 {ar(16*(4*hi+n)+4*g,4)}, @, s[72:75], s50 offen offset:{64*hi}{fl}'
                    if hi and n < 3: o += '\ns_add_u32 s50, s50, 0x100000'
                    if hi and n == 3 and g < 3: o += f'\ns_xor_b32 s50, s51, {((g+1)&1)*16384 + ((g+1)>>1)*(4<<20)}'
                    ops.append(o)
        return ops
    for n2 in range(8):
        for u in range(2):
            for hi in range(2):
                o = f'buffer_load_dwordx4 {ar(16*(4*hi+(n2&3))+4*(2*(n2>>2)+u),4)}, @, s[72:75], s{50+u} offen offset:{64*hi}{fl}'
                if u and hi and n2 < 7: o += '\ns_add_u32 s50, s50, 0x100000\ns_add_u32 s51, s51, 0x100000'
                ops.append(o)
    return ops


def w_trans(k, vw, vrd, groups=None, ts=42, priv=False, base=0, mid=None):
    PT = 520
    if (groups is not None and not groups) or gen_fft.OPT.get('nowt'): return
    if W128:
        k(f's_add_u32 s{ts}, s32, 3072' if priv else f's_and_b32 s{ts}, s34, 3\ns_mul_i32 s{ts}, s{ts}, 4160')
        if base: k(f's_add_u32 s{ts}, s{ts}, {base}')
        k(f'''v_lshrrev_b32 v{vw}, 1, v3
v_add_u32 v{vw}, s{ts}, v{vw}
v_bfe_u32 v{vrd}, v3, 4, 3
v_mul_u32_u24 v{vrd}, {PT-8}, v{vrd}
v_add_u32 v{vrd}, v{vw}, v{vrd}''')
        for tt in range(4):
            if groups is not None and tt not in groups: continue
            for h in range(2):
                if mid: mid(2 * (groups[-1] - tt) + 2 - h)
                R = lambda i: ar(16 * i + 4 * tt + 2 * h, 2)
                for i in range(8): k(f'ds_write_b64 v{vw}, {R(i)} offset:{PT*i}')
                for c in range(8): k(f'ds_read_b64 {R(c)}, v{vrd} offset:{8*c}')
        return
    k(f'''s_mul_i32 s{ts}, s34, 2560
v_lshrrev_b32 v{vw}, 1, v3
v_add_u32 v{vw}, s{ts}, v{vw}
v_bfe_u32 v{vrd}, v3, 4, 2
v_mul_u32_u24 v{vrd}, {PT-8}, v{vrd}
v_add_u32 v{vrd}, v{vw}, v{vrd}''')
    for tt in range(4):
        for hi in range(2):
            if groups is not None and tt not in groups: continue
            for h in range(2):
                R = lambda i: ar(16 * (4 * hi + i) + 4 * tt + 2 * h, 2)
                for i in range(4): k(f'ds_write_b64 v{vw}, {R(i)} offset:{PT*i}')
                for c in range(4): k(f'ds_read_b64 {R(c)}, v{vrd} offset:{8*c}')


def w_trans128(k, vw, vrd, base, ts, groups, mid=None):
    PT = 1040
    if not groups: return
    k(f'''s_and_b32 s{ts}, s34, 3
s_mul_i32 s{ts}, s{ts}, {8*PT}
s_add_u32 s{ts}, s{ts}, {base}
v_add_u32 v{vw}, s{ts}, v3
v_bfe_u32 v{vrd}, v3, 4, 3
v_mul_u32_u24 v{vrd}, {PT-16}, v{vrd}
v_add_u32 v{vrd}, v{vw}, v{vrd}''')
    for tt in groups:
        R = lambda i: ar(16 * i + 4 * tt, 4)
        for i in range(8):
            if mid: mid(8 * (groups[-1] - tt) + 8 - i)
            k(f'ds_write_b128 v{vw}, {R(i)} offset:{PT*i}')
        for c in range(8): k(f'ds_read_b128 {R(c)}, v{vrd} offset:{16*c}')


def unpk(l):
    m = re.match(r'v_pk_(add|mul)_f32 v\[(\d+):\d+\], v\[(\d+):\d+\], v\[(\d+):\d+\](.*)', l)
    if not m: return [l]
    op, d, a, b, mod = m.group(1), int(m.group(2)), int(m.group(3)), int(m.group(4)), m.group(5).strip()
    if mod == '': return [f'v_{op}_f32 v{d}, v{a}, v{b}', f'v_{op}_f32 v{d+1}, v{a+1}, v{b+1}']
    if mod == 'op_sel:[0,1] op_sel_hi:[1,1]': return [f'v_{op}_f32 v{d}, v{a}, v{b+1}', f'v_{op}_f32 v{d+1}, v{a+1}, v{b+1}']
    raise ValueError(l)


class Fill:
    def __init__(self): self.q = []
    def add(self, pos, f): self.q.append((pos, f))
    def emit(self, k, p, n):
        c = 0
        while self.q and self.q[0][0] <= p and c < n:
            f = self.q.pop(0)[1]
            f() if callable(f) else k(f)
            c += 1
    def flush(self, k): self.emit(k, 10**9, 10**9)


def ph_g2(k, opt, DONE, vm0, fused, post=None, early=None):
    HI = k.label('hi')
    NZ = opt.get('NZ', 14); ZR = 96 - 4 * NZ
    T = 8; S = 24; Z1 = 32
    assert ZR >= 40
    ACC = lambda n, tt: 96 + 16 * (n & 1) + 4 * tt
    SLOT = [0, 1, 2, 3, 4, 0, 1]
    srd_from(k, 8, 40, 41, WS_Z2, Z2N_BYTES)
    k(f'''s_lshl_b32 s56, s36, 3
s_add_u32 s56, s56, s34
s_mul_i32 s56, s56, 57344
v_lshrrev_b32 v2, 4, v3''')
    if opt.get('warm'):
        k('v_lshlrev_b32 v4, 7, v2\ns_mov_b32 s42, s56')
        for i in range(7): k('buffer_load_dword v5, v4, s[8:11], s42 offen\ns_add_u32 s42, s42, 8192')
        k('s_waitcnt vmcnt(0)\ns_barrier\ns_sleep 127')
    st(k, 2, 2)
    if opt.get('clkm'): k('s_memtime s[76:77]'); k.clkm = 1
    if opt.get('zpf'):
        k(f'''v_lshrrev_b32 v4, 3, v2
v_and_b32 v5, 7, v2
v_lshlrev_b32 v5, 7, v5
v_lshl_add_u32 v4, v4, 13, v5
s_and_b32 s42, s35, 7
s_lshl_b32 s42, s42, 10
s_add_u32 s42, s42, s56
s_mov_b32 exec_hi, 0x00ffffff
buffer_load_dword v36, v4, s[8:11], s42 offen
s_mov_b32 exec_hi, -1''')
        vm0.issue('pf')

    def zload(q, vm):
        if q >= 56 or opt.get('noz'): return
        if q and q % 4 == 0: k('s_add_u32 s56, s56, 4096')
        if q == 40: k(f's_cmp_eq_u32 s36, 7\ns_cselect_b32 s56, {BIG}, s56')
        k(f'buffer_load_dwordx4 {vr(ZR+4*(q%NZ),4)}, v3, s[8:11], s56 offen offset:{1024*(q%4)}'); vm.issue(f'z{q}')
    N0 = opt.get('N0', NZ)
    for q in range(N0): zload(q, vm0)
    srd_from(k, 12, 40, 41, WS_Z1, A2_BYTES)
    srd_from(k, 16, 40, 41, WS_Z1 if opt.get('ain') else WS_A, A2_BYTES)
    srd_from(k, 24, 24, 25, 0, 4096)
    PW = opt.get('pw', 0); FZS = opt.get('fzs', 5)
    PWS = f'''s_lshl_b32 s47, s35, 1
s_lshr_b32 s42, s43, 1
s_add_u32 s47, s47, s42
s_lshl_b32 s47, s47, 3
s_add_u32 s47, s47, s36
s_lshl_b32 s47, s47, {FZS+1}
s_add_u32 s47, s47, {FLU}
v_bfe_u32 v40, v3, 4, 1
v_lshlrev_b32 v40, {FZS}, v40''' if PW else ''
    ZQ = opt.get('zq', 0)
    if ZQ: PWS = f'''s_lshl_b32 s48, s36, 5
s_lshr_b32 s42, s35, 1
s_add_u32 s48, s48, s42
s_lshl_b32 s48, s48, {FS-2}
s_and_b32 s42, s35, 1
s_lshl_b32 s42, s42, 1
s_add_u32 s48, s48, s42
s_lshr_b32 s42, s43, 1
s_add_u32 s48, s48, s42
s_and_b32 s42, s43, 1
s_lshl_b32 s42, s42, 2
s_add_u32 s48, s48, s42
s_lshl_b32 s48, s48, 2
s_add_u32 s48, s48, {FLU}
v_bfe_u32 v8, v3, 4, 1
v_lshlrev_b32 v8, {FS+4}, v8
v_mov_b32 v10, 2'''
    G3W = opt.get('g3v', 0) == 3
    G3X = opt.get('g3v', 0) == 4
    G3V = opt.get('g3v', 0) if not (G3W or G3X) else 0
    if G3X: SLOT = [0, 1, 2, 0, 1, 2, 0]
    WL = opt.get('wl', 0)
    if WL or opt.get('s4'): SLOT = [0, 1, 2, 3, 0, 1, 2]
    G3VS = f'''s_lshl_b32 s62, s35, 3
s_add_u32 s61, s62, s36
s_add_u32 s62, s62, s34
s_lshl_b32 s63, s62, 14
s_lshl_b32 s61, s61, {FS}
s_lshl_b32 s62, s62, {FS}
s_lshl_b32 s42, s34, 2
s_add_u32 s61, s61, s42
s_add_u32 s61, s61, {FL3}
s_add_u32 s62, s62, {FL3}
s_add_u32 s64, s63, 4096
s_add_u32 s65, s63, 8192
s_add_u32 s66, s63, 12288
v_mov_b32 v0, 1''' if G3V else ''
    if G3X: G3VS = f'''s_lshl_b32 s49, s35, {3+FS}
s_add_u32 s49, s49, {FL3}
s_lshl_b32 s48, s36, {FS}
s_add_u32 s48, s48, s49
s_and_b32 s42, s34, 4
s_add_u32 s42, s42, s43
s_lshl_b32 s42, s42, 2
s_add_u32 s48, s48, s42
s_mov_b32 s54, s49
s_cmp_eq_u32 s34, 7
s_cselect_b32 s49, s49, {BIG}
s_cselect_b32 s50, 0x0f0f0f0f, 0
s_cselect_b32 s52, -1, 0
s_mov_b32 s51, s50
s_mov_b32 s53, s52
s_lshr_b32 s38, s34, 2
s_lshl_b32 s63, s35, 1
s_add_u32 s63, s63, s38
s_lshl_b32 s63, s63, 4
s_add_u32 s63, s63, s37
s_lshl_b32 s63, s63, 12
s_add_u32 s64, s63, 0x4000
s_add_u32 s65, s63, 0x8000
s_add_u32 s66, s63, 0xc000
s_lshl_b32 s61, s37, 13
v_lshrrev_b32 v6, 7, v3
v_lshlrev_b32 v6, {FS}, v6
v_bfe_u32 v0, v3, 4, 3
v_lshl_add_u32 v6, v0, 2, v6
v_mov_b32 v0, 1'''
    BADR = '''s_lshl_b32 s42, s43, 10
s_lshl_b32 s45, s35, 4
s_add_u32 s45, s45, s42
v_and_b32 v4, 8, v2
v_and_b32 v5, 3, v2
v_lshl_add_u32 v4, v5, 1, v4
v_bfe_u32 v5, v2, 2, 1
v_lshl_add_u32 v4, v5, 9, v4''' if G1S else '''s_and_b32 s42, s43, 1
s_lshl_b32 s42, s42, 3
s_lshl_b32 s45, s35, 4
s_add_u32 s45, s45, s42
s_and_b32 s42, s43, 2
s_lshl_b32 s42, s42, 10
s_add_u32 s45, s45, s42
v_bfe_u32 v4, v2, 2, 2
v_and_b32 v5, 3, v2
v_lshlrev_b32 v5, 9, v5
v_lshl_add_u32 v4, v4, 1, v5'''
    k(f'''s_and_b32 s37, s34, 3
s_bfe_u32 s43, s2, {"0x20006" if ROT else "0"}
s_xor_b32 s43, s43, s37
s_lshl_b32 s44, s35, 3
s_add_u32 s44, s44, s36
s_lshl_b32 s44, s44, 2
s_add_u32 s44, s44, s43
s_lshl_b32 s44, s44, 12
{BADR}
buffer_load_ushort v1, v4, s[24:27], s45 offen
v_lshlrev_b32 v2, 3, v2
s_lshl_b32 s42, s34, 10
v_add_u32 v4, s42, v3
v_add_u32 v5, 0x10000, v4
v_add_u32 v6, 0x20000, v4
s_lshl_b32 s42, s37, 13
v_add_u32 v7, s42, v3
s_mov_b32 s58, 0xffff0000
{PWS}
{G3VS}
s_cmp_eq_u32 s36, 7
s_cselect_b32 s46, {BIG}, s44
s_cselect_b32 s59, 0, -1
s_cmp_ge_u32 s34, 4
s_cbranch_scc1 {HI}''')
    vm0.issue('b')

    def body(hi):
        import copy
        vm = copy.deepcopy(vm0); lg = Cnt('lgkmcnt', 15)
        F = Fill()

        def wr(n, tt):
            a = SLOT[n] * 32768 + tt * 8192
            k(f'ds_write_b128 v{4+a//65536}, {vr(ACC(n,tt),4)} offset:{a%65536}'); lg.issue(f'w{n}')

        def bar(n):
            x = lg.wait(f'w{n}')
            if x: k(x)
            k('s_barrier')

        def unit(tiles, zr, off, so, pos):
            nt = len(tiles)
            ops = []
            for ti, n in enumerate(tiles):
                for b in range(2):
                    base = SLOT[n] * 32768 + 4096 * b
                    if base >= 65536 - 32768 + 8192 and False: pass
                    for i in range(4):
                        def rd(base=base, i=i, n=n, b=b):
                            a = base + 1024 * i
                            k(f'ds_read_b128 {vr(T+4*i,4)}, v{RB[a//65536]} offset:{a%65536}'); lg.issue(f'r{n}_{b}_{i}')
                        ops.append(rd)
                    s = S + 4 * ti
                    def w01(n=n, b=b): k(lg.wait(f'r{n}_{b}_1') or '')
                    def w23(n=n, b=b): k(lg.wait(f'r{n}_{b}_3') or '')
                    ops.append(None); ops.append(None)
                    ops.append(w01)
                    d = s if b == 0 else T
                    ops += [f'v_pk_add_f32 {vr(d,2)}, {vr(T,2)}, {vr(T+4,2)}', f'v_pk_add_f32 {vr(d+2,2)}, {vr(T+2,2)}, {vr(T+6,2)}']
                    if b: ops += [f'v_pk_add_f32 {vr(s,2)}, {vr(s,2)}, {vr(T,2)}', f'v_pk_add_f32 {vr(s+2,2)}, {vr(s+2,2)}, {vr(T+2,2)}']
                    ops.append(w23)
                    ops += [f'v_pk_add_f32 {vr(T+8,2)}, {vr(T+8,2)}, {vr(T+12,2)}', f'v_pk_add_f32 {vr(T+10,2)}, {vr(T+10,2)}, {vr(T+14,2)}',
                            f'v_pk_add_f32 {vr(s,2)}, {vr(s,2)}, {vr(T+8,2)}', f'v_pk_add_f32 {vr(s+2,2)}, {vr(s+2,2)}, {vr(T+10,2)}']
            h = 2 * nt
            if not opt.get('lean', 0) & 8:
                ops += [f'v_cvt_pk_bf16_f32 v{T+i}, v{S+2*i}, v{S+2*i+1}' for i in range(h)]
                ops += [f'v_lshlrev_b32 v{S+2*i}, 16, v{T+i}\nv_and_b32 v{S+2*i+1}, s58, v{T+i}' for i in range(h)]
            ops.append(lambda: k(vm.wait(f'y{off}') or ''))
            ops += [f'v_pk_add_f32 {vr(S+2*i,2)}, {vr(S+2*i,2)}, v[0:1] op_sel:[0,1] op_sel_hi:[1,1]' for i in range(h)]
            ops += [f'v_lshlrev_b32 v{T+8+2*i}, 16, v{zr+i}\nv_and_b32 v{T+9+2*i}, s58, v{zr+i}' for i in range(h)]
            if not opt.get('lean', 0) & 8:
                ops += [f'v_cvt_pk_bf16_f32 v{T+i}, v{S+2*i}, v{S+2*i+1}' for i in range(h)]
                ops += [f'v_lshlrev_b32 v{S+2*i}, 16, v{T+i}\nv_and_b32 v{S+2*i+1}, s58, v{T+i}' for i in range(h)]
            ops += [f'v_pk_mul_f32 {vr(S+2*i,2)}, {vr(S+2*i,2)}, {vr(T+8+2*i,2)}' for i in range(h)]
            ops += [f'v_cvt_pk_bf16_f32 v{zr+i}, v{S+2*i}, v{S+2*i+1}' for i in range(h)]

            if tiles == [4, 5]: ops += [f'v_and_b32 v{zr+2}, s59, v{zr+2}', f'v_and_b32 v{zr+3}, s59, v{zr+3}']

            def sto():
                if nt == 2: k(f'buffer_store_dwordx4 {vr(zr,4)}, v3, s[16:19], {so} offen offset:{off} sc1')
                else: k(f'buffer_store_dwordx2 {vr(zr,2)}, v2, s[16:19], {so} offen offset:{off} sc1')
                vm.issue('s')
            ops.append(sto)
            out = []
            for o in ops:
                if o is None: out.append('')
                elif callable(o): out.append(o)
                else:
                    for l in o.split('\n'): out += unpk(l) if opt.get('upk', 1) else [l]
            return out

        def z1load(zr, off, so, nt):
            if nt == 2: k(f'buffer_load_dwordx4 {vr(zr,4)}, v3, s[12:15], {so} offen offset:{off}')
            else: k(f'buffer_load_dwordx2 {vr(zr,2)}, v2, s[12:15], {so} offen offset:{off}')
            vm.issue(f'y{off}')
        RB = [7, 38, 39]
        k('v_add_u32 v38, 0x10000, v7' + ('' if G3X or WL else '\nv_add_u32 v39, 0x20000, v7'))
        if WL: k(f's_mul_i32 s42, s37, {1024*WL}\ns_add_u32 s42, s42, {WSB}\nv_add_u32 v39, s42, v3')
        ev = {}
        def at(p, f): ev.setdefault(p, []).append(f)
        for n in range(6):
            for tt in range(4): at(32 * (n + 1) + 3 + 2 * tt, lambda n=n, tt=tt: wr(n, tt))
        BP = opt.get('G2B', 16)
        at(64 + BP, lambda: bar(1)); at(128 + BP, lambda: bar(3)); at(192 + BP, lambda: bar(5))
        if opt.get('pp'):
            bs = [-1, 64 + BP, 128 + BP, 192 + BP, 224]
            k('s_setprio 3')
            for a, b in zip(bs[:-1], bs[1:]):
                for i in range(4):
                    pp = a + (b - a) * i // 4
                    if pp >= 0: at(pp, lambda i=i: k(f's_setprio {3-i}'))
        at(40, lambda: k((vm.wait('b') or '') + '\nv_lshlrev_b32 v1, 16, v1'))
        if opt.get('opf') is not None:
            def opf():
                k(f'''s_and_b32 s42, s35, 7
s_lshl_b32 s43, s36, 3
s_add_u32 s42, s42, s43
s_mul_i32 s42, s42, {WOB}
s_mul_i32 s43, s34, {18*128}
s_add_u32 s42, s42, s43
v_lshlrev_b32 v40, 3, v3
s_mov_b64 exec, 0x3ffff
buffer_load_ubyte v41, v40, s[28:31], s42 offen
s_mov_b64 exec, -1'''); vm.issue('opf')
            at(opt['opf'], opf)
        fq = []
        if PW:
            PZ = opt.get('pz', [30, 40, 64])
            at(PZ[0], lambda: k('s_barrier'))
            ZF = 'buffer_load_dword v41, v40, s[68:71], s47 offen sc1'
            def zf1(): k(ZF); vm.issue('zf')
            def zf2():
                LP = k.label('lp'); LD = k.label('ld')
                k(f'''{vm.wait('zf') or ''}
v_cmp_eq_u32 vcc, 0, v41
s_cbranch_vccz {LD}
s_mov_b32 s43, {SPIN}
{LP}:
{ZF}
s_waitcnt vmcnt(0)
v_cmp_eq_u32 vcc, 0, v41
s_cbranch_vccz {LD}
s_sub_u32 s43, s43, 1
s_cmp_lg_u32 s43, 0
s_cbranch_scc1 {LP}
{LD}:''')
            at(PZ[1] + (24 if hi else 0), zf1); at(PZ[2] + (24 if hi else 0), zf2)
        if ZQ:
            PZ = opt.get('pz', [1, 44, 60])
            def f2(): k('s_mov_b64 exec, 1\nbuffer_store_dword v10, off, s[68:71], s49 sc1\ns_mov_b64 exec, -1'); vm.issue('f2')
            if opt.get('nzf', 0) < 2: at(PZ[0], f2)
            ZF = 'buffer_load_dword v9, v8, s[68:71], s48 offen sc1'
            def zf1(): k(ZF); vm.issue('zf')
            def zf2():
                LP = k.label('lp'); LD = k.label('ld')
                k(f'''{vm.wait('zf') or ''}
v_cmp_ne_u32 vcc, 2, v9
s_cbranch_vccz {LD}
s_mov_b32 s43, {SPIN}
{LP}:
{ZF}
s_waitcnt vmcnt(0)
v_cmp_ne_u32 vcc, 2, v9
s_cbranch_vccz {LD}
s_sub_u32 s43, s43, 1
s_cmp_lg_u32 s43, 0
s_cbranch_scc1 {LP}
{LD}:''')
            assert PZ[2] + 24 < 97 and PZ[2] < 64 + BP
            if not opt.get('nzf'): at(PZ[1] + (24 if hi else 0), zf1); at(PZ[2] + (24 if hi else 0), zf2)
        if not hi:
            at(PZ[2] + 1 if PW or ZQ else 33, lambda: z1load(Z1, 0, 's44', 2))
            at(160, lambda: z1load(Z1, 2048, 's44', 2))
            fq.append((64 + BP + 1, lambda: unit([0, 1], Z1, 0, 's44', 0)))
            fq.append((192 + BP + 1, lambda: unit([4, 5], Z1, 2048, 's44', 0)))
        else:
            at(97, lambda: z1load(Z1, 1024, 's44', 2))
            at(190, lambda: z1load(Z1 + 4, 3072, 's46', 1))
            fq.append((128 + BP + 1, lambda: unit([2, 3], Z1, 1024, 's44', 0)))
        if G3V:
            def ef():
                assert 's' in vm.tags
                k((vm.wait('s') or '') + '\ns_mov_b64 exec, 1\nbuffer_store_dword v0, off, s[68:71], s61 sc1\ns_mov_b64 exec, -1'); vm.issue('f')
            at(opt.get('g3p', [150, 205])[hi], ef)
            EPP = opt.get('epp', [216, 216])[hi]
            def ep():
                k('v_bfe_u32 v127, v3, 4, 3\nv_lshlrev_b32 v127, 2, v127\nbuffer_load_dword v126, v127, s[68:71], s62 offen sc1'); vm.issue('ep')
            if EPP < 224:
                assert EPP > 192 + BP
                at(EPP, ep)
            if G3V == 2:
                E0, E1, E2 = opt.get('ep0', [182, 198, 2])
                P0L = 'buffer_load_dwordx4 v[40:43], off, s[68:71], s62 sc1'
                def ep0(): k(P0L); vm.issue('ep0')
                at(E0, ep0)
                at(E1, lambda: g3v_gate(k, vm, 'ep0', P0L, 'v_min3_u32 v40, v40, v41, v42\nv_min_u32 v40, v40, v43\nv_cmp_eq_u32 vcc, 0, v40'))
                def a0(tt): k(f'buffer_load_dwordx4 {vr(40+4*tt,4)}, v3, s[16:19], s{63+tt} offen'); vm.issue(f'a{tt}0')
                for tt in range(4): at(E1 + E2 * tt, lambda tt=tt: a0(tt))
        if G3X:
            def ef():
                assert 's' in vm.tags
                k((vm.wait('s') or '') + '\ns_mov_b64 exec, 1\nbuffer_store_dword v0, off, s[68:71], s48 sc1\ns_mov_b64 exec, -1'); vm.issue('f')
            at(opt.get('g3p', [150, 205])[hi], ef)
            E0, E1, A0, AS = opt.get('ep0', [186, 204, 209, 2])
            assert E1 <= 192 + BP < A0
            D0, DS = opt.get('dma', [196, 1])
            if hi:
                def ep0(): k(G3PL); vm.issue('ep0')
                at(E0, ep0)
                ev.setdefault(E1, []).insert(0, lambda: g3x_gate(k, vm, 'ep0', 50))
            def dm(i):
                if i == 0: k(f's_lshr_b32 s60, s61, {int(hi)}\ns_add_u32 s60, s60, s62\ns_add_u32 s60, s60, {(124 if hi else 92)*1024}')
                if i == 4: k('s_add_u32 s60, s60, 4096')
                k(f'buffer_load_dwordx4 {ar(4*i,4)}, v3, s[28:31], s60 offen offset:{1024*(i%4)}'); vm.issue('d')
            for i in range(4 if hi else 8):
                assert D0 + DS * i >= 196 + i
                at(D0 + DS * i, lambda i=i: dm(i))
            def x2():
                if not hi: assert 'r1_1_3' in lg.tags and lg.tags.index('r1_1_3') < lg.done
                k('s_barrier')
            at(opt.get('x2', 126), x2)
            def a0(f): k(f'buffer_load_dwordx4 {ar(32+4*f,4)}, v3, s[16:19], s{63+f} offen'); vm.issue(f'a0{f}')
            for f in range(4): at(A0 + AS * f, lambda f=f: a0(f))
        elif G3W:
            DR, D0, DS = opt.get('dma', [1, 184, 2])
            if hi == DR:
                assert hi or D0 > 192 + BP
                def dm(i):
                    if i == 0 and hi: assert 'r3_1_3' in lg.tags and lg.tags.index('r3_1_3') < lg.done
                    if i % 4 == 0: k(f's_add_u32 s60, s60, {[0, 4096, 28672, 4096][i//4]}\ns_add_u32 m0, s61, {[0, 4096, 32768, 36864][i//4]}')
                    k(f'buffer_load_dwordx4 v3, s[28:31], s60 offen offset:{1024*(i%4)} lds'); vm.issue('o')
                for i in range(16): at(min(D0 + (DS * i if DS > 0 else i // -DS), 223), lambda i=i: dm(i))
        elif opt.get('wp') or WL:
            go, lo_ = g3_wo_ops2(hi)
            pp_ = opt.get('wq0', 196) - 1
            for o, pos, _ in go[:opt.get('wol', [99, 99])[hi]]:
                pp_ = min(max(pp_ + opt.get('wqs', 1), pos), 223)
                def f(o=o): k(o); vm.issue('w0')
                at(pp_, f)
            for o, pos, _ in lo_:
                def f(o=o): k(o); lg.issue('wl')
                at(pos, f)
        elif post:
            po = list(post)[:opt.get('wol', [99, 99])[hi]]
            pn = [0]
            def pw(n):
                for _ in range(n):
                    if po: k(po.pop(0)); vm.issue(f'w{min(pn[0] // 5, 3)}'); pn[0] += 1
            for j in range(1, 8):
                for tt in range(4): at(192 + 4 * j + tt, lambda: pw(1))
        R = opt.get('G2R', 3)
        cur = []
        p = 0
        nq = [N0]
        for n in range(7):
            if n in (1, 3, 5): st(k, 2, 3 + n // 2)
            for j in range(8):
                q = 8 * n + j
                x = vm.wait(f'z{q}')
                if x: k(x)
                if q == 0:
                    x = vm.wait('w')
                    if x: k(x)
                for tt in range(4):
                    acc = vr(ACC(n, tt), 4)
                    k(f'{MFMA} {acc}, {vr(ZR+4*(q%NZ),4)}, {ar(16*j+4*tt,4)}, {"0" if j == 0 else acc}')
                    if tt in (1, 3) and nq[0] < q + NZ + (tt == 3): zload(nq[0], vm); nq[0] += 1
                    for f in ev.get(p, []): f()
                    if fq and fq[0][0] <= p: cur += fq.pop(0)[1]()
                    for _ in range(R):
                        if cur:
                            o = cur.pop(0)
                            o() if callable(o) else k(o)
                    p += 1
        if opt.get('clkm'): k('s_memtime s[78:79]')
        st(k, 2, 6)
        EP = opt.get('g3e', 0)
        if early and EP == 0:
            for o in early: k(o); vm.issue('e')
        for tt in range(4): wr(6, tt)
        if early and EP == 1:
            for o in early: k(o); vm.issue('e')
        bar(6)
        if early and EP == 2:
            for o in early: k(o); vm.issue('e')
        st(k, 2, 7)
        if G3V and EPP == 224: ep()
        if hi: cur = unit([6], Z1 + 4, 3072, 's46', 0)
        for o in cur: o() if callable(o) else k(o)
        st(k, 2, 8); st(k, 0, 7)
        k('s_setprio 0')
        if G3X: g3x(k, opt, int(hi), vm)
        if G3V:
            if EPP > 224: ep()
            (g3v_head2 if G3V == 2 else g3v_head)(k, opt, hi, vm)
        k(f's_branch {DONE}')
        return len(vm.tags) - 1 - max([i for i, t in enumerate(vm.tags) if t == 'e'] + [-1])
    n0 = body(False)
    k(f'{HI}:')
    n1 = body(True)
    return min(n0, n1)


def gen_g2(opt):
    k = Kern('k3_kernel', 256, 512, 163840, nvgpr=128, nagpr=128)
    END = k.label('end')
    k(f'''s_cmp_ge_u32 s2, 256
s_cbranch_scc1 {END}
s_load_dwordx2 s[40:41], s[0:1], 80
s_load_dwordx2 s[24:25], s[0:1], 48
s_load_dwordx2 s[72:73], s[0:1], 40''')
    k.stamp(True)
    map_g2(k)
    k(f'''v_lshrrev_b32 v1, 6, v0
v_and_b32 v2, 63, v0
v_readfirstlane_b32 s34, v1
v_lshlrev_b32 v3, 4, v2''')
    w_vaddr(k, 4, 5)
    w_setup(k, 42, 43)
    k('s_waitcnt lgkmcnt(0)')
    vm = Cnt('vmcnt', 63)
    wb = Bulk(k, g2_wops())
    wb(32, vm, 4)
    k('s_waitcnt vmcnt(0)')
    w_trans(k, 4, 5)
    k('s_waitcnt lgkmcnt(0)\ns_barrier')
    st(k, 2, 1)
    ph_g2(k, opt, END, vm, False)
    k.finish(END)
    return k


WOB = 17920
WO8_BYTES = 64 * WOB


def gen_prep8(k, base_wg, END, nwv=5):
    WO = k.label('wo'); J = k.label('j'); WO2 = k.label('wo2'); SG = k.label('sg')
    k(f'''s_load_dwordx2 s[4:5], s[0:1], 32
s_load_dwordx2 s[8:9], s[0:1], 56
v_lshrrev_b32 v1, 6, v0
v_and_b32 v2, 63, v0
v_readfirstlane_b32 s35, v1
s_sub_u32 s33, s2, {base_wg}
s_mul_i32 s33, s33, {nwv}
s_add_u32 s33, s33, s35
v_and_b32 v4, 15, v2
v_lshrrev_b32 v5, 4, v2
v_lshlrev_b32 v3, 4, v2
s_lshl_b32 s47, s35, 13
s_cmp_ge_u32 s35, {nwv}
s_cbranch_scc1 {END}
s_cmp_ge_u32 s33, 440
s_cbranch_scc1 {END}
s_waitcnt lgkmcnt(0)''')
    srd_from(k, 16, 40, 41, WS_WI, WS_WO - WS_WI + WO8_BYTES)
    k(f'''s_mov_b32 s23, 0x00020000
s_cmp_ge_u32 s33, 280
s_cbranch_scc1 {WO}
s_mul_i32 s51, s33, 4682
s_lshr_b32 s51, s51, 16
s_mul_i32 s52, s51, 14
s_sub_u32 s52, s33, s52
s_movk_i32 s50, 3456
s_lshl_b32 s53, s51, 5
s_mov_b32 s57, 8
s_mov_b32 s58, 4
s_mov_b64 s[20:21], s[4:5]
s_mov_b32 s22, {640*3456}
s_branch {J}
{WO}:
s_sub_u32 s34, s33, 280
s_mul_i32 s51, s34, 13108
s_lshr_b32 s51, s51, 16
s_mul_i32 s52, s51, 5
s_sub_u32 s52, s34, s52
s_movk_i32 s50, 1280
s_lshr_b32 s54, s51, 2
s_and_b32 s55, s51, 3
s_mul_i32 s53, s54, 112
s_lshl_b32 s42, s55, 5
s_add_u32 s53, s53, s42
s_mov_b32 s57, 4
s_mov_b32 s58, 16
s_mov_b64 s[20:21], s[8:9]
s_mov_b32 s22, {864*1280}
{J}:
v_mul_u32_u24 v6, s50, v5
v_lshl_add_u32 v6, v4, 4, v6
s_mul_i32 s42, s53, s50
s_lshl_b32 s43, s52, 8
s_add_u32 s42, s42, s43
v_add_u32 v6, s42, v6
s_lshl_b32 s43, s50, 2''')
    for i in range(8):
        k(f's_add_u32 m0, s47, {1024*i}')
        k(f'buffer_load_dwordx4 v6, s[20:23], 0 offen lds')
        if i < 7: k(f'v_add_u32 v6, s43, v6')
    k(f'''v_mul_u32_u24 v6, s57, v5
v_lshrrev_b32 v7, 2, v4
v_add_u32 v6, v6, v7
v_and_b32 v7, 3, v4
v_lshlrev_b32 v7, 3, v7
v_lshl_add_u32 v6, v6, 8, v7
v_add_u32 v6, s47, v6
s_lshl_b32 s42, s58, 8
v_add_u32 v7, s42, v6
v_lshlrev_b32 v8, 3, v2
s_waitcnt vmcnt(0)''')
    prep_tail(k, END, WO2, SG)


def prep_tail(k, END, WO2, SG):
    PADW = gen_fft.OPT.get('padw', 0); NL = '\n'
    BLAY = 's_add_u32 s43, s43, s44\ns_mul_i32 s44, s51, 7'
    if gen_fft.OPT.get('g3v', 0) == 4 or gen_fft.OPT.get('zq'): BLAY = '''s_lshr_b32 s45, s43, 2
s_and_b32 s43, s43, 3
s_add_u32 s43, s43, s44
s_mul_i32 s44, s45, 20
s_add_u32 s44, s44, 60
s_cmp_eq_u32 s46, 0
s_cselect_b32 s44, s44, 0
s_add_u32 s43, s43, s44
s_sub_u32 s44, 4, s45
s_mul_i32 s44, s44, s51'''
    WOA = f's_mul_i32 s56, s54, {WOB}\ns_mul_i32 s42, s55, 5120'
    if gen_fft.OPT.get('g3v', 0) >= 3: WOA = '''s_and_b32 s56, s54, 3
s_lshl_b32 s56, s56, 1
s_lshr_b32 s42, s54, 2
s_add_u32 s56, s56, s42
s_mul_i32 s56, s56, 5120
s_lshr_b32 s42, s56, 1
s_cmp_eq_u32 s55, 3
s_cselect_b32 s56, s42, s56
s_mul_i32 s42, s55, 40960'''
    for i in range(8):
        k(f'ds_read_b64_tr_b16 {vr(16+4*i,2)}, v6 offset:{32*i}')
        k(f'ds_read_b64_tr_b16 {vr(18+4*i,2)}, v7 offset:{32*i}')
    st(k, 5, 6)
    k(f's_cmp_ge_u32 s33, 280\ns_cbranch_scc1 {WO2}')
    for i in range(8):
        if i in (1, 4): st(k, 5, 7 + i // 4)
        k(f'''s_lshl_b32 s42, s52, 3
s_add_u32 s42, s42, {i}
s_add_u32 s43, s42, 2
s_cmp_ge_u32 s42, 54
s_cselect_b32 s43, s43, s42
s_cselect_b32 s46, 0, 1
{f"s_cmp_ge_u32 s42, 110{NL}s_cselect_b32 s43, {48+i}, s43{NL}s_cselect_b32 s46, 1, s46" if PADW and i >= 6 else ""}
s_mul_i32 s44, s43, 9363
s_lshr_b32 s44, s44, 16
s_mul_i32 s45, s44, 7
s_sub_u32 s43, s43, s45
s_and_b32 s44, s44, 7
s_lshl_b32 s44, s44, 1
s_lshr_b32 s45, s43, 2
s_xor_b32 s45, s45, s46
s_add_u32 s44, s44, s45
s_mul_i32 s44, s44, 140
{BLAY}
s_add_u32 s43, s43, s44
s_lshl_b32 s43, s43, 10
{"" if PADW else f"s_cmp_lt_u32 s42, 108{NL}s_cselect_b32 s43, s43, {BIG}"}
s_waitcnt lgkmcnt({14-2*i})
buffer_store_dwordx4 {vr(16+4*i,4)}, v3, s[16:19], s43 offen''')
    k(f'''s_branch {END}
{WO2}:
{WOA}
s_add_u32 s56, s56, {WS_WO-WS_WI}
s_add_u32 s56, s56, s42
s_cmp_lt_u32 s53, 864
s_cselect_b32 s59, -1, 0
s_cmp_lt_u32 s53, 848
s_cselect_b32 s60, -1, 0
s_cmp_eq_u32 s55, 3
s_cbranch_scc1 {SG}''')
    for sg in range(2):
        for i in range(8):
            k(f'''s_lshl_b32 s42, s52, 3
s_add_u32 s42, s42, {i}
s_mul_i32 s44, s42, 13108
s_lshr_b32 s44, s44, 16
s_mul_i32 s45, s44, 5
s_sub_u32 s43, s42, s45
s_mul_i32 s44, s44, {8*WOB}
s_lshl_b32 s43, s43, {9 if sg else 10}
s_add_u32 s43, s43, s44
s_add_u32 s43, s43, s56
s_waitcnt lgkmcnt({14-2*i})''')
            for j in range(2 if sg else 4): k(f'v_and_b32 v{16+4*i+j}, s{59+j//2}, v{16+4*i+j}')
            if sg: k(f'buffer_store_dwordx2 {vr(16+4*i,2)}, v8, s[16:19], s43 offen')
            else: k(f'buffer_store_dwordx4 {vr(16+4*i,4)}, v3, s[16:19], s43 offen')
        k(f's_branch {END}')
        if sg == 0: k(f'{SG}:')


def prep_inl(k, part, LB, END, nv=0, hdr=None):
    WO = k.label('wo'); J = k.label('j'); WO2 = k.label('wo2'); SG = k.label('sg')
    txt = hdr or f"""s_lshl_b32 s33, s2, 1
s_add_u32 s33, s33, s34
s_sub_u32 s33, s33, 6
s_sub_u32 s47, s34, 6
s_lshl_b32 s47, s47, 13
s_add_u32 s47, s47, {LB}
"""
    txt += f"""v_and_b32 v4, 15, v2
v_lshrrev_b32 v5, 4, v2
s_mov_b32 s23, 0x00020000
s_cmp_ge_u32 s33, 280
s_cbranch_scc1 {WO}
s_mul_i32 s51, s33, 4682
s_lshr_b32 s51, s51, 16
s_mul_i32 s52, s51, 14
s_sub_u32 s52, s33, s52
s_movk_i32 s50, 3456
s_lshl_b32 s53, s51, 5
s_mov_b32 s57, 8
s_mov_b32 s58, 4
s_mov_b64 s[20:21], s[62:63]
s_mov_b32 s22, {640*3456}
s_branch {J}
{WO}:
s_sub_u32 s35, s33, 280
s_mul_i32 s51, s35, 13108
s_lshr_b32 s51, s51, 16
s_mul_i32 s52, s51, 5
s_sub_u32 s52, s35, s52
s_movk_i32 s50, 1280
s_lshr_b32 s54, s51, 2
s_and_b32 s55, s51, 3
s_mul_i32 s53, s54, 112
s_lshl_b32 s42, s55, 5
s_add_u32 s53, s53, s42
s_mov_b32 s57, 4
s_mov_b32 s58, 16
s_mov_b64 s[20:21], s[64:65]
s_mov_b32 s22, {864*1280}
{J}:
"""
    if part == 'A':
        txt += """v_mul_u32_u24 v6, s50, v5
v_lshl_add_u32 v6, v4, 4, v6
s_mul_i32 s42, s53, s50
s_lshl_b32 s43, s52, 8
s_add_u32 s42, s42, s43
v_add_u32 v6, s42, v6
s_lshl_b32 s43, s50, 2
"""
        for i in range(8):
            txt += f's_add_u32 m0, s47, {1024*i}\nbuffer_load_dwordx4 v6, s[20:23], 0 offen lds\n'
            if i < 7: txt += 'v_add_u32 v6, s43, v6\n'
        mp = dict(s33='s16', s35='s17', s42='s18', s43='s19', s47='s24', s50='s25', s51='s26', s52='s27', s53='s28', s54='s29', s55='s30', s57='s31', s58='s31', v4='v104', v5='v105', v6='v106')
        txt = re.sub(r'\b([sv]\d+)\b', lambda m: mp.get(m.group(1), m.group(1)), txt)
        k(txt)
        return
    k(txt)
    if not hdr: k(f's_cmp_ge_u32 s33, 440\ns_cbranch_scc1 {END}')
    srd_from(k, 16, 40, 41, WS_WI, WS_WO - WS_WI + WO8_BYTES)
    k(f"""v_mul_u32_u24 v6, s57, v5
v_lshrrev_b32 v7, 2, v4
v_add_u32 v6, v6, v7
v_and_b32 v7, 3, v4
v_lshlrev_b32 v7, 3, v7
v_lshl_add_u32 v6, v6, 8, v7
v_add_u32 v6, s47, v6
s_lshl_b32 s42, s58, 8
v_add_u32 v7, s42, v6
v_lshlrev_b32 v8, 3, v2""")
    st(k, 5, 4)
    k(f's_waitcnt vmcnt({nv})')
    st(k, 5, 5)
    prep_tail(k, END, WO2, SG)


BB = 20480


def gelu_pk(k, pk, n, x, p, out, vc, tr=False, sc=False):
    for i in range(0, n if pk is not None else 0, 2):
        k(f'v_lshlrev_b32 v{x+i}, 16, v{pk+i//2}\nv_and_b32 v{x+i+1}, 0xffff0000, v{pk+i//2}')
    if sc:
        for i in range(n): k(f'v_mul_f32 v{p+i}, v{x+i}, v{x+i}')
        for i in range(n): k(f'v_fma_f32 v{p+i}, v{p+i}, {"s62" if GV else f"v{vc}"}, v{vc+1}')
        for i in range(n): k(f'v_mul_f32 v{p+i}, v{p+i}, v{x+i}')
    else:
        for i in range(0, n, 2):
            k(f'v_pk_mul_f32 {vr(p+i,2)}, {vr(x+i,2)}, {vr(x+i,2)}')
        for i in range(0, n, 2):
            if GV == 1: k(f'v_pk_fma_f32 {vr(p+i,2)}, {vr(p+i,2)}, s[62:63], {vr(vc,2)}')
            elif GV == 2: k(f'v_fma_f32 v{p+i}, v{p+i}, s62, v{vc+1}\nv_fma_f32 v{p+i+1}, v{p+i+1}, s62, v{vc+1}')
            else: k(f'v_pk_fma_f32 {vr(p+i,2)}, {vr(p+i,2)}, {vr(vc,2)}, {vr(vc,2)} op_sel:[0,0,1] op_sel_hi:[1,0,1]')
        for i in range(0, n, 2):
            k(f'v_pk_mul_f32 {vr(p+i,2)}, {vr(p+i,2)}, {vr(x+i,2)}')
    for i in range(n):
        k(f'v_exp_f32 v{p+i}, v{p+i}')
    if sc:
        for i in range(n): k(f'v_add_f32 v{p+i}, 1.0, v{p+i}')
    else:
        for i in range(0, n, 2):
            k(f'v_pk_add_f32 {vr(p+i,2)}, {vr(p+i,2)}, 1.0 op_sel_hi:[1,0]')
    for i in range(n):
        k(f'v_rcp_f32 v{p+i}, v{p+i}')
    if sc:
        for i in range(n): k(f'v_mul_f32 v{p+i}, v{p+i}, v{x+i}')
    else:
        for i in range(0, n, 2):
            k(f'v_pk_mul_f32 {vr(p+i,2)}, {vr(p+i,2)}, {vr(x+i,2)}')
    for i in range(0, n, 2):
        if tr:
            a = [0, 4, 1, 5][i // 2]
            k(f'v_cvt_pk_bf16_f32 v{out+i//2}, v{p+a}, v{p+a+2}')
        else: k(f'v_cvt_pk_bf16_f32 v{out+i//2}, v{p+i}, v{p+i+1}')


class Bulk:
    def __init__(self, k, ops): self.k = k; self.ops = list(ops)
    def copy(self): return Bulk(self.k, self.ops)
    def __call__(self, n, vm, va, tag='w'):
        for _ in range(n):
            if not self.ops: return
            self.k(self.ops.pop(0).replace('@', f'v{va}'))
            if vm is not None: vm.issue(tag)


def weave_in(k, i0, q, n, vm, va, tag='q'):
    body = k.lines[i0:]
    ok = []; full = True
    for i, l in enumerate(body):
        if l.startswith('s_mov_b64 exec, -1'): full = True
        elif 'exec' in l.split(',')[0] or 'saveexec' in l: full = False
        if full and l.startswith(('v_', 'ds_')) and not l.startswith('v_cmp') and 'vcc' not in l: ok.append(i)
    n = min(n, len(q.ops))
    if not n: return
    pos = {}
    for j in range(n):
        p = ok[(j * len(ok)) // n]
        pos[p] = pos.get(p, 0) + 1
    del k.lines[i0:]
    for i, l in enumerate(body):
        if i in pos: q(pos[i], vm, va, tag)
        k.lines.append(l)


def flag(k, srd, soff):
    k(f'''s_mov_b64 exec, 1
v_mov_b32 v8, 1
v_mov_b32 v9, 0
buffer_store_dword v8, v9, {sr(srd,4)}, {soff} offen sc1
s_mov_b64 exec, -1''')


def ph_k2a(k, opt, wb):
    RP = 144; NP = 11 * RP + 16
    TB2 = 0
    SKIP = k.label('skip')
    vm = Cnt('vmcnt', 63)
    k(f'''s_load_dwordx2 s[4:5], s[0:1], 0
s_load_dwordx2 s[40:41], s[0:1], 80
s_load_dwordx2 s[72:73], s[0:1], 40
s_load_dwordx2 s[80:81], s[0:1], 64''')
    tab_srd(k, 12)
    k(f'''s_and_b32 s3, s2, 7
s_lshl_b32 s3, s3, 5
s_lshr_b32 s33, s2, 3
s_add_u32 s3, s3, s33
s_lshl_b32 s33, s3, 6
s_add_u32 s33, s33, 32768
s_load_dwordx16 s[16:31], s[12:13], s33
v_lshrrev_b32 v1, 6, v0
v_and_b32 v2, 63, v0
v_readfirstlane_b32 s34, v1
v_lshlrev_b32 v3, 4, v2
s_movk_i32 s38, 0x4000
s_lshl_b32 s39, s34, 11
s_add_u32 m0, s39, {TB2}
s_add_u32 s38, s38, s39
s_cmp_lt_u32 s34, 5
s_cselect_b32 s38, s38, {BIG}
buffer_load_dwordx4 v3, s[12:15], s38 offen lds
buffer_load_dwordx4 v3, s[12:15], s38 offen offset:1024 lds''')
    vm.issue('t'); vm.issue('t')
    k(f'''s_mul_i32 s46, s3, {8*TP}
s_add_u32 s47, s46, {3*TP}
s_add_u32 s48, s46, {6*TP}
v_lshlrev_b32 v60, 2, v0
s_lshl_b32 s35, s34, 8
s_add_u32 s35, s35, s3
s_mul_i32 s35, s35, 1280
v_and_b32 v50, 15, v2
v_lshrrev_b32 v51, 4, v2
v_lshlrev_b32 v52, 6, v50
v_lshl_add_u32 v52, v51, 4, v52
v_add_u32 v53, 1024, v52
v_mov_b32 v54, 0x7fffffff
v_cmp_gt_u32 vcc, 4, v50
v_cndmask_b32 v53, v54, v53, vcc''')
    k(f'''s_mul_i32 s59, s34, {NP}
v_add_u32 v112, s59, v52
v_and_b32 v113, 3, v2
v_mul_u32_u24 v113, {NP}, v113
v_lshrrev_b32 v114, 2, v2
v_lshl_add_u32 v113, v114, 4, v113
s_cmp_ge_u32 s34, 5
s_cselect_b32 s59, {4*NP-5*256}, 0
s_lshl_b32 s60, s34, 8
s_add_u32 s59, s59, s60
v_add_u32 v113, s59, v113
s_mul_i32 s59, s3, 10240
s_lshl_b32 s60, s34, 10
s_add_u32 s59, s59, s60
s_add_u32 s49, s59, 8192
s_cmp_lt_u32 s34, 2
s_cselect_b32 s49, s49, {BIG}''')
    k(f'''s_and_b32 s58, s3, 15
s_mul_i32 s58, s58, {140*1024}
s_mul_i32 s57, s34, {18*1024}
s_min_u32 s57, s57, {122*1024}
s_add_u32 s56, s57, {BB}
s_add_u32 s57, s57, s58
s_waitcnt lgkmcnt(0)''')
    srd_from(k, 4, 4, 5, 0, X_BYTES)
    srd_from(k, 8, 40, 41, WS_U, TU_BYTES)
    for k2 in range(8):
        k(f'buffer_load_dword v{4+k2}, v60, s[8:11], s{46+k2//3} offen offset:{(k2%3)*TP+4*(k2&1)*(opt.get("sh",0)>0)}')
        vm.issue('u')
    k(f'''buffer_load_dwordx4 v[104:107], v52, s[4:7], s35 offen
buffer_load_dwordx4 v[108:111], v53, s[4:7], s35 offen''')
    vm.issue('x'); vm.issue('x')
    srd_from(k, 52, 40, 41, WS_H, X_BYTES)
    srd_from(k, 60, 40, 41, WS_HN, X_BYTES)
    srd_from(k, 64, 40, 41, WS_WI, WI_BYTES)
    if wb:
        w_setup(k, 42, 43); w_vaddr(k, 114, 115)
    if opt.get('ub'): k('s_barrier')
    bq = [] if opt.get('nob') else list(range(18))
    BP = opt.get('BP', [10, 8, 0, 0, 0, 0])
    assert sum(BP) >= 18

    def bulk(i):
        for _ in range(BP[i]):
            if bq:
                i = bq.pop(0)
                if i % 4 == 0:
                    k(f's_add_u32 m0, s56, {1024*i}')
                    if i: k('s_add_u32 s57, s57, 4096')
                k(f'buffer_load_dwordx4 v3, s[64:67], s57 offen offset:{1024*(i%4)} lds'); vm.issue('b')
            elif wb: wb(1, vm, 114)
    bulk(0)
    k(f'''v_mul_u32_u24 v55, 3277, v0
v_lshrrev_b32 v55, 16, v55
v_mul_u32_u24 v56, 20, v55
v_sub_u32 v56, v0, v56
v_mul_u32_u24 v57, {RP}, v56
v_lshl_add_u32 v57, v55, 2, v57
v_mov_b32 v58, {11*RP}
v_cmp_ge_u32 vcc, 10, v56
v_cndmask_b32 v57, v58, v57, vcc
v_sub_u32 v59, 20, v56
v_mul_u32_u24 v59, {RP}, v59
v_sub_u32 v61, 31, v55
v_lshl_add_u32 v59, v61, 2, v59
v_cmp_le_u32 vcc, 10, v56
v_cndmask_b32 v59, v58, v59, vcc
v_sub_u32 v61, 32, v55
v_lshlrev_b32 v61, 2, v61
v_cmp_eq_u32 vcc, 0, v56
v_cndmask_b32 v59, v59, v61, vcc
v_cmp_eq_u32 vcc, 0, v0
v_cndmask_b32 v59, v59, v58, vcc
v_cmp_eq_u32 vcc, 320, v0
v_cndmask_b32 v59, v59, v58, vcc
v_mov_b32 v40, 0x3f3504f3
v_min_u32 v62, 10, v50
v_mul_u32_u24 v62, {RP}, v62
v_lshl_add_u32 v62, v51, 4, v62
s_mul_i32 s42, s34, {NP}
v_add_u32 v62, s42, v62
v_and_b32 v63, 1, v2
v_lshlrev_b32 v63, 31, v63
v_or_b32 v63, 1.0, v63
''')
    k(vm.wait('t')); k('s_barrier')
    for i in range(10): k(f'ds_read_b128 {vr(64+4*i,4)}, v3 offset:{TB2+1024*i}')
    bulk(1)
    k('s_waitcnt lgkmcnt(0)\ns_barrier')
    k(f'''v_cmp_gt_u32 vcc, 321, v0
s_and_saveexec_b64 s[44:45], vcc''')
    k(vm.wait('u'))
    st(k, 1, 1); st(k, 0, 1)
    k(f'''s_cbranch_execz {SKIP}''')
    for k2 in range(8):
        k(f'v_lshlrev_b32 v{20+2*k2}, 16, v{4+k2}\nv_and_b32 v{21+2*k2}, 0xffff0000, v{4+k2}')
    for k2 in range(8):
        if k2 == 0:
            k('v_mov_b32 v4, v20\nv_mov_b32 v5, v21')
        else:
            smul(k, 4 + 2 * k2, 20 + 2 * k2, 16 + 2 * k2, 42 + 2 * (k2 & 1), conj=True)
    T = fft8(k, 4, 20, True, 40)
    for n in range(8):
        k(f'''v_cvt_pk_bf16_f32 v{4+2*n}, v{T[n]}, v{T[n]+1}
v_cvt_pk_bf16_f32 v{5+2*n}, v{T[n]}, -v{T[n]+1}
ds_write_b32 v57, v{4+2*n} offset:{n*NP}
ds_write_b32 v59, v{5+2*n} offset:{n*NP}''')
    k(f'''{SKIP}:
s_mov_b64 exec, -1''')
    bulk(2)
    k(f'''s_waitcnt lgkmcnt(0)
s_barrier
ds_read_b128 v[4:7], v62
ds_read_b128 v[8:11], v62 offset:64''')
    bulk(3)
    k(f'''s_waitcnt lgkmcnt(1)''')
    for u in range(2):
        if u == 1: k('s_waitcnt lgkmcnt(0)')
        for t in range(2):
            k(f'{MFMA} {vr(12+16*u+8*t,4)}, {vr(4+4*u,4)}, {vr(64+8*t,4)}, 0')
            k(f'{MFMA} {vr(16+16*u+8*t,4)}, {vr(4+4*u,4)}, {vr(68+8*t,4)}, 0')
    bulk(4)
    for i in range(0, 16, 2):
        k(f'v_pk_fma_f32 {vr(12+i,2)}, {vr(28+i,2)}, v[62:63], {vr(12+i,2)} op_sel:[0,1,0] op_sel_hi:[1,1,1]')
    for t in range(2):
        cmul_planar(k, 12 + 8 * t, 16 + 8 * t, 80 + 8 * t, 84 + 8 * t, 28, 32, 36)
        k(f'''v_cvt_pk_bf16_f32 v{4+4*t}, v28, v29
v_cvt_pk_bf16_f32 v{5+4*t}, v30, v31
v_cvt_pk_bf16_f32 v{6+4*t}, v32, v33
v_cvt_pk_bf16_f32 v{7+4*t}, v34, v35''')
    for v in range(2):
        for t in range(2):
            k(f'{MFMA} {vr(12+8*v+4*t,4)}, {vr(4+4*t,4)}, {vr(96+4*v,4)}, 0')
    bulk(5)
    k(vm.wait('x'))
    for i in range(8):
        k(f'v_lshlrev_b32 v{28+2*i}, 16, v{104+i}\nv_and_b32 v{29+2*i}, 0xffff0000, v{104+i}')
    for i in range(8):
        k(f'v_cvt_pk_bf16_f32 v{4+i}, v{12+2*i}, v{13+2*i}')
    for i in range(8):
        k(f'v_lshlrev_b32 v{12+2*i}, 16, v{4+i}\nv_and_b32 v{13+2*i}, 0xffff0000, v{4+i}')
    for i in range(8):
        k(f'v_pk_add_f32 {vr(12+2*i,2)}, {vr(12+2*i,2)}, {vr(28+2*i,2)}')
    for i in range(8):
        k(f'v_cvt_pk_bf16_f32 v{4+i}, v{12+2*i}, v{13+2*i}')
    k('''buffer_store_dwordx4 v[4:7], v52, s[52:55], s35 offen sc1
buffer_store_dwordx4 v[8:11], v53, s[52:55], s35 offen sc1''')
    for i in range(8):
        k(f'v_lshlrev_b32 v{12+2*i}, 16, v{4+i}\nv_and_b32 v{13+2*i}, 0xffff0000, v{4+i}')
    k('''v_pk_add_f32 v[28:29], v[12:13], v[14:15]
v_pk_mul_f32 v[30:31], v[12:13], v[12:13]
v_pk_add_f32 v[32:33], v[16:17], v[18:19]
v_pk_mul_f32 v[34:35], v[14:15], v[14:15]''')
    for i in range(2, 8):
        k(f'v_pk_fma_f32 {vr(30+4*(i&1),2)}, {vr(12+2*i,2)}, {vr(12+2*i,2)}, {vr(30+4*(i&1),2)}')
        if i >= 4:
            k(f'v_pk_add_f32 {vr(28+4*(i&1),2)}, {vr(28+4*(i&1),2)}, {vr(12+2*i,2)}')
    k('''v_pk_add_f32 v[28:29], v[28:29], v[32:33]
v_pk_add_f32 v[30:31], v[30:31], v[34:35]
v_add_f32 v28, v28, v29
v_add_f32 v30, v30, v31''')
    wave_reduce2(k, 28, 30, 36, 37)
    ln_stats(k, 36, 37, 640, 28, 30, 32)
    ln_apply(k, 12, 16, 28, 30, 40)
    srd_from(k, 68, 40, 41, WS_FL, FL_BYTES)
    k(f'''ds_write_b128 v112, v[40:43]
s_mov_b32 exec_lo, 0x000f000f
s_mov_b32 exec_hi, 0x000f000f
ds_write_b128 v112, v[44:47] offset:1024
s_mov_b64 exec, -1
s_waitcnt lgkmcnt(0)
s_barrier
ds_read_b128 v[40:43], v113
ds_read_b128 v[44:47], v113 offset:{4*NP+3*256}
s_waitcnt lgkmcnt(1)
buffer_store_dwordx4 v[40:43], v3, s[60:63], s59 offen sc1
s_waitcnt lgkmcnt(0)
buffer_store_dwordx4 v[44:47], v3, s[60:63], s49 offen sc1''')
    st(k, 1, 2); st(k, 0, 2)


def ph_k12(k, opt, wb):
    P = 1040; W0 = 16 * P; TB1 = 32 * P; TB2 = TB1 + 8192
    RP = 144; NP = 11 * RP + 16
    IDLE = k.label('idle'); JOIN = k.label('join'); SKIP = k.label('skip')
    vm = Cnt('vmcnt', 63)
    k(f"""s_load_dwordx4 s[4:7], s[0:1], 8
s_load_dwordx2 s[40:41], s[0:1], 80
s_load_dwordx2 s[72:73], s[0:1], 40
s_load_dwordx2 s[80:81], s[0:1], 64""")
    tab_srd(k, 12)
    k(f"""s_and_b32 s33, s2, 7
s_lshr_b32 s35, s2, 3
v_lshrrev_b32 v1, 6, v0
v_and_b32 v2, 63, v0
v_readfirstlane_b32 s34, v1
v_lshlrev_b32 v3, 4, v2
v_and_b32 v4, 15, v2
v_lshrrev_b32 v5, 4, v2
s_lshl_b32 s39, s34, 10
s_add_u32 m0, s39, {TB1}
s_add_u32 s38, s39, 0x2000
buffer_load_dwordx4 v3, s[12:15], s38 offen lds""")
    vm.issue('t1')
    IIM = 'v[112:115]'; IRE = 'v[114:117]'; FIM = 'v[116:119]'; FRE = 'v[118:121]'
    k(f"""v_mul_u32_u24 v6, {16*8*TP}, v4
v_lshl_add_u32 v6, v5, 4, v6
s_lshl_b32 s36, s34, 4
s_add_u32 s36, s36, s33
s_mul_i32 s45, s36, 642
s_mul_i32 s36, s36, {TP}
s_lshl_b32 s37, s35, 6
s_add_u32 s36, s36, s37
s_add_u32 s42, s36, {8*TP}
s_lshl_b32 s37, s35, 5
s_add_u32 s45, s45, s37
s_and_b32 s45, s45, -4
v_and_b32 v7, 1, v5
v_lshrrev_b32 v8, 1, v5
v_lshl_add_u32 v9, v4, 4, v7
v_mul_u32_u24 v9, {8*642}, v9
v_lshl_add_u32 v9, v8, 4, v9
s_and_b32 s37, s33, 1
s_lshl_b32 s37, s37, 2
s_sub_u32 s43, s36, s37
s_sub_u32 s44, s42, s37
s_lshl_b32 s3, s33, 5
s_add_u32 s3, s3, s35
s_cmp_lt_u32 s2, 168
s_cselect_b32 s43, s43, {BIG}
s_cselect_b32 s44, s44, {BIG}
s_cselect_b32 s45, s45, {BIG}
s_waitcnt lgkmcnt(0)""")
    srd_from(k, 60, 40, 41, WS_T, TU_BYTES)
    for i in range(2):
        k(f'buffer_load_dwordx4 {vr(16+4*i,4)}, v6, s[60:63], s{43+i} offen'); vm.issue(f'T{i}')
    k(f"""s_mov_b32 s52, s6
s_mov_b32 s53, s7
s_mov_b32 s6, {2048*642}
s_mov_b32 s7, 0x00020000
s_mov_b32 s54, {2048*642}
s_mov_b32 s55, 0x00020000""")
    WP = opt.get('k1wp', 0)

    def wld():
        k(f"""buffer_load_dwordx4 v[32:35], v9, s[4:7], s45 offen
buffer_load_dwordx4 v[38:41], v9, s[52:55], s45 offen
s_load_dwordx2 s[4:5], s[0:1], 0""")
        vm.issue('W'); vm.issue('W')
    if opt.get('ob1'): k('s_barrier')
    if WP == 0: wld()
    k(f"""s_min_u32 s39, s34, 4
s_lshl_b32 s39, s39, 11
s_add_u32 m0, s39, {TB2}
s_add_u32 s38, s39, 0x4000
buffer_load_dwordx4 v3, s[12:15], s38 offen lds
buffer_load_dwordx4 v3, s[12:15], s38 offen offset:1024 lds
s_lshl_b32 s38, s3, 6
s_add_u32 s38, s38, 32768
s_load_dwordx16 s[16:31], s[12:13], s38""")
    vm.issue('t2'); vm.issue('t2')
    srd_from(k, 8, 40, 41, WS_U, TU_BYTES)
    srd_from(k, 64, 40, 41, WS_WI, WI_BYTES)
    w_setup(k, 46, 47); w_vaddr(k, 124, 125)
    BR = opt.get('brot', 0)
    g1id(k, 58, 57)
    k(f"""s_and_b32 s58, s58, 15
s_mul_i32 s58, s58, {140*1024}
s_mul_i32 s57, s34, {14*1024}
s_add_u32 s57, s57, {31*1024}
s_min_u32 s57, s57, {(124 if BR else 126)*1024}
s_add_u32 s56, s57, {BB}
s_add_u32 s57, s57, s58""")
    if opt.get('hot'): k('s_sub_u32 s57, s57, s58\ns_mov_b32 s58, 0\ns_and_b32 s50, s50, 0x7fff\ns_and_b32 s51, s51, 0x7fff\ns_and_b32 s82, s82, 0x7fff')
    if opt.get('hotw'): k('s_and_b32 s50, s50, 0x7fff\ns_and_b32 s51, s51, 0x7fff\ns_and_b32 s82, s82, 0x7fff')
    if opt.get('hotb'): k('s_sub_u32 s57, s57, s58\ns_mov_b32 s58, 0')
    if BR: k('s_bfe_u32 s38, s3, 0x10004\ns_lshl_b32 s38, s38, 13')
    bops = []
    for i in range(0 if opt.get('nob') else (16 if BR else 14)):
        if BR:
            o = f's_xor_b32 s39, s38, {1024*(i-i%4)}\ns_add_u32 m0, s56, s39\ns_add_u32 s39, s39, s57\n'
            bops.append(o + f'buffer_load_dwordx4 v3, s[64:67], s39 offen offset:{1024*(i%4)} lds')
            continue
        o = f's_add_u32 m0, s56, {1024*(i-i%4)}\n'
        if i % 4 == 0 and i: o += 's_add_u32 s57, s57, 4096\n'
        bops.append(o + f'buffer_load_dwordx4 v3, s[64:67], s57 offen offset:{1024*(i%4)} lds')
    wops = wb.ops
    NWL = opt.get('nwl', 0)
    wpre = wops[:len(wops) - NWL]; wb.ops = wops[len(wops) - NWL:]
    order = opt.get('bo', 0)
    if order == 0: pre = wpre + bops
    elif order == 1: pre = bops + wpre
    else:
        pre = []
        a, b = list(wpre), list(bops)
        while a or b:
            pre += a[:8]; a = a[8:]
            pre += b[:4]; b = b[4:]
    import copy
    KP = opt.get('KP', [8, 4, 4, 4, 4, 4, 4, 4, 4, 99])
    CP = opt.get('CP', [0, 0, 0, 0, 0])
    NPRE = sum(KP) + sum(opt.get('KW', [0, 0, 0])[:2])
    post = pre[NPRE:]; pre = pre[:NPRE]
    assert len(post) <= sum(CP) + opt.get('KW', [0, 0, 0])[2], (len(post), CP)
    k(f's_cmp_ge_u32 s2, 168\ns_cbranch_scc1 {IDLE}')
    vi = copy.deepcopy(vm)
    q = Bulk(k, pre)

    def bulk(i): q(KP[i], vm, 124, 'q')
    bulk(0)
    k(f"""v_mul_u32_u24 v10, {4*P}, v5
v_lshl_add_u32 v10, v4, 2, v10
s_lshl_b32 s37, s34, 7
v_add_u32 v10, s37, v10
v_mul_u32_u24 v11, {8*P}, v8
v_lshl_add_u32 v11, v7, 6, v11
v_lshl_add_u32 v11, v4, 2, v11
v_add_u32 v11, s37, v11
v_lshlrev_b32 v12, 6, v4
v_lshl_add_u32 v12, v5, 4, v12
s_mul_i32 s37, s34, {2*P}
v_add_u32 v12, s37, v12
s_mov_b32 s47, 0x05040100
s_mov_b32 s48, 0x07060302""")
    for i in range(2):
        k(vm.wait(f'T{i}'))
        if i == 0: st(k, 4, 1)
        for j in range(4):
            k(f'ds_write_b32 v10, v{16+4*i+j} offset:{j*P+64*i}')
    if WP == 1: wld()
    bulk(1)
    k('s_waitcnt lgkmcnt(0)\ns_barrier')
    NC = 2
    KW = opt.get('KW', [0, 0, 0])
    i0 = len(k.lines)
    k(f"""ds_read_b128 v[96:99], v3 offset:{TB1}
ds_read_b128 v[16:19], v12
ds_read_b128 v[100:103], v3 offset:{TB1+1024}
ds_read_b128 v[20:23], v12 offset:{P}
ds_read_b128 v[104:107], v3 offset:{TB1+2048}
ds_read_b128 v[108:111], v3 offset:{TB1+3072}
ds_read_b128 v[118:121], v3 offset:{TB1+4096}
ds_read_b64 v[116:117], v3 offset:{TB1+5120}
ds_read_b128 v[112:115], v3 offset:{TB1+7168}""")
    bulk(2)
    k(f"""s_waitcnt lgkmcnt(7)
{MFMA} v[48:51], v[16:19], v[96:99], 0
s_waitcnt lgkmcnt(6)
{MFMA} v[52:55], v[16:19], v[100:103], 0
s_waitcnt lgkmcnt(5)
{MFMA} v[56:59], v[20:23], v[96:99], 0
{MFMA} v[60:63], v[20:23], v[100:103], 0""")
    bulk(3)
    k('s_waitcnt lgkmcnt(0)')

    def pack(c, re, im):
        k(f"""v_cvt_pk_bf16_f32 v{16+4*c}, v{re}, v{re+1}
v_cvt_pk_bf16_f32 v{17+4*c}, v{re+2}, v{re+3}
v_cvt_pk_bf16_f32 v{18+4*c}, v{im}, v{im+1}
v_cvt_pk_bf16_f32 v{19+4*c}, v{im+2}, v{im+3}""")
    for c in range(NC):
        cmul_planar(k, 48 + 8 * c, 52 + 8 * c, 104, 108, 80, 84, 88)
        pack(c, 80, 84)
        k(f'{MFMA} {vr(48+8*c,4)}, {FRE}, {vr(16+4*c,4)}, 0')
        k(f'{MFMA} {vr(52+8*c,4)}, {FIM}, {vr(16+4*c,4)}, 0')
    bulk(4)
    weave_in(k, i0, q, KW[0], vm, 124)
    k(vm.wait('W') or '')
    k(vm.wait('t2') or '')
    st(k, 4, 2)
    i0 = len(k.lines)
    for j in range(8):
        k(f'v_perm_b32 v{64+j}, v{38+j//2}, v{32+j//2}, s{47+(j&1)}')
        k(f'ds_write_b32 v11, v{64+j} offset:{W0+j*P}')
    bulk(5)
    k(f's_waitcnt lgkmcnt(0)\ns_barrier')
    for c in range(NC):
        k(f'ds_read_b128 {vr(32+4*c,4)}, v12 offset:{W0+c*P}')
    bulk(6)
    for c in range(NC):
        k(f's_waitcnt lgkmcnt({NC-1-c})')
        for r in range(4):
            k(f'v_lshlrev_b32 v{64+8*c+r}, 16, v{32+4*c+r}\nv_and_b32 v{68+8*c+r}, 0xffff0000, v{32+4*c+r}')
        cmul_planar(k, 48 + 8 * c, 52 + 8 * c, 64 + 8 * c, 68 + 8 * c, 80, 84, 88)
        pack(c, 80, 84)
        k(f'{MFMA} {vr(48+8*c,4)}, {vr(16+4*c,4)}, {IRE}, 0')
        k(f'{MFMA} {vr(52+8*c,4)}, {vr(16+4*c,4)}, {IIM}, 0')
    bulk(7)
    for c in range(NC):
        cmul_planar(k, 48 + 8 * c, 52 + 8 * c, 104, 108, 80, 84, 88, conj=True)
        pack(c, 80, 84)
        k(f'{MFMA} {vr(48+8*c,4)}, {IRE}, {vr(16+4*c,4)}, 0')
        k(f'{MFMA} {vr(52+8*c,4)}, {IIM}, {vr(16+4*c,4)}, 0')
    bulk(8)
    for c in range(NC):
        for r in range(4):
            k(f'v_cvt_pk_bf16_f32 v{16+4*c+r}, v{48+8*c+r}, v{52+8*c+r}')
        k(f'ds_write_b128 v12, {vr(16+4*c,4)} offset:{c*P}')
    weave_in(k, i0, q, KW[1], vm, 124)
    k('s_waitcnt lgkmcnt(0)\ns_barrier')
    for i in range(2):
        for j in range(4):
            k(f'ds_read_b32 v{16+4*i+j}, v10 offset:{j*P+64*i}')
    for i in range(10): k(f'ds_read_b128 {vr(64+4*i,4)}, v3 offset:{TB2+1024*i}')
    for i in range(2):
        k(f's_waitcnt lgkmcnt({14-4*i})')
        k(f'buffer_store_dwordx4 {vr(16+4*i,4)}, v6, s[8:11], {["s36","s42"][i]} offen sc1')
    st(k, 4, 3)
    if opt.get('ob2'): k('s_barrier')
    q(99, vm, 124, 'q')
    k(f's_branch {JOIN}\n{IDLE}:')
    if WP: k('s_load_dwordx2 s[4:5], s[0:1], 0')
    if opt.get('it2'):
        WM = opt.get('wte', 0)
        k(f'''s_sub_u32 s43, s35, 21
s_and_b32 s44, s33, 1
s_mul_i32 s44, s44, 11
s_add_u32 s43, s43, s44
s_mul_i32 s44, s34, 22
s_add_u32 s44, s44, s43
s_add_u32 s44, s44, {64*WM}
s_add_u32 s45, s44, 176
s_lshr_b32 s46, s33, 1
s_lshl_b32 s46, s46, 18
v_lshlrev_b32 v10, 7, v2''')
        for r in (44, 45)[:2 if 64*(4-WM) > 176 else 1]:
            k(f'''s_and_b32 s47, s{r}, 31
s_lshl_b32 s47, s47, 13
s_add_u32 s47, s47, s46
s_bfe_u32 s48, s{r}, 0x10005
s_lshl_b32 s48, s48, 22
s_add_u32 s47, s47, s48
s_lshr_b32 s48, s{r}, 6
s_lshl_b32 s48, s48, 20
s_add_u32 s47, s47, s48
s_cmp_lt_u32 s{r}, 256
s_cselect_b32 s47, s47, {BIG}
buffer_load_ubyte v11, v10, s[72:75], s47 offen''')
            vi.issue('q')
            if opt['it2'] > 1: k('s_barrier')
    if opt.get('itd'): k(f's_sleep {opt["itd"]}')
    if opt.get('it'):
        k(f'''s_sub_u32 s43, s35, 21
s_and_b32 s44, s33, 1
s_mul_i32 s44, s44, 11
s_add_u32 s43, s43, s44
s_lshl_b32 s44, s43, 3
s_add_u32 s44, s44, s34
s_mul_i32 s45, s34, 22
s_add_u32 s45, s45, s43
s_add_u32 s45, s45, 176
s_lshr_b32 s46, s33, 1
s_lshl_b32 s46, s46, 18
v_lshlrev_b32 v10, 7, v2''')
        for r in (44, 45):
            k(f'''s_and_b32 s47, s{r}, 31
s_lshl_b32 s47, s47, 13
s_lshr_b32 s48, s{r}, 5
s_lshl_b32 s48, s48, 20
s_add_u32 s47, s47, s48
s_add_u32 s47, s47, s46
buffer_load_ubyte v11, v10, s[72:75], s47 offen''')
            vi.issue('q')
        if opt.get('bt'):
            k('''s_load_dwordx2 s[44:45], s[0:1], 48
s_mov_b32 s46, 4096
s_mov_b32 s47, 0x00020000
v_lshlrev_b32 v12, 6, v2
s_waitcnt lgkmcnt(0)
buffer_load_ubyte v11, v12, s[44:47], 0 offen''')
            vi.issue('q')
        if opt['it'] > 1: k('s_barrier')
    if opt.get('iw'):
        wp = [o for o in pre if o in wpre]; bp = [o for o in pre if o not in wpre]
        assert len(bp) == len(bops)
        IW = opt['iw']
        nb0 = opt.get('ib0', 0)
        Bulk(k, bp[:nb0])(99, vi, 124, 'q')
        Bulk(k, wp)(99, vi, 124, 'q')
        k('s_mov_b32 s46, s50\ns_mov_b32 s47, s51')
        Bulk(k, wpre[len(wp):len(wp) + IW])(99, vi, 124, 'q')
        k('s_mov_b32 s50, s46\ns_mov_b32 s51, s47')
        Bulk(k, bp[nb0:])(99, vi, 124, 'q')
    else:
        q = Bulk(k, pre)
        q(99, vi, 124, 'q')
    k(vi.wait('t2'))
    k('s_barrier')
    for i in range(10): k(f'ds_read_b128 {vr(64+4*i,4)}, v3 offset:{TB2+1024*i}')
    if opt.get('idl'): k(f's_sleep {opt["idl"]}')
    k(f'{JOIN}:')
    ph_k2b(k, opt, post, NWL)


def ph_k2b(k, opt, post, NWL=0, fused=False):
    RP = 144; NP = 11 * RP + 16
    SKIP = k.label('skip')
    KW = opt.get('KW', [0, 0, 0])
    CP = opt.get('CP', [0, 0, 0, 0, 0])
    LEAN = opt.get('lean', 0) & 1
    XP5 = [108, 110, 114, 116, 118]
    if LEAN:
        assert fused and opt.get('xs') and opt.get('hd') and not G1S
        k(f'''v_and_b32 v44, {hex(0x3f0 & ~128)}, v3
v_xor_b32 v45, 64, v44
ds_read_b128 v[100:103], v44 offset:{opt['TB2']+9*1024}
ds_read_b128 v[104:107], v45 offset:{opt['TB2']+9*1024}''')
    vm = Cnt('vmcnt', 63); vm.issue('q')
    if opt.get('g3s'):
        srd_from(k, 60, 40, 41, WS_A, A2_BYTES)
        k('''s_lshl_b32 s46, s2, 14
s_lshl_b32 s47, s34, 11
s_add_u32 s46, s46, s47
v_mov_b32 v28, -1
v_mov_b32 v29, -1
v_mov_b32 v30, -1
v_mov_b32 v31, -1
buffer_store_dwordx4 v[28:31], v3, s[60:63], s46 offen sc1
buffer_store_dwordx4 v[28:31], v3, s[60:63], s46 offen offset:1024 sc1''')
        vm.issue('f'); vm.issue('f')
    V53 = '''v_and_b32 v53, 0xf0, v52
v_bfe_u32 v54, v50, 2, 1
v_lshl_add_u32 v53, v54, 3, v53
v_lshrrev_b32 v54, 3, v50
v_lshl_add_u32 v53, v54, 2, v53
v_add_u32 v53, 1024, v53''' if LEAN else '''v_add_u32 v53, 1024, v52
v_mov_b32 v54, 0x7fffffff
v_cmp_gt_u32 vcc, 4, v50
v_cndmask_b32 v53, v54, v53, vcc'''
    k(f"""s_mul_i32 s46, s3, {8*TP}
s_add_u32 s47, s46, {3*TP}
s_add_u32 s48, s46, {6*TP}
v_lshlrev_b32 v60, 2, v0
s_lshl_b32 s35, s34, 8
s_add_u32 s35, s35, s3
s_mul_i32 s35, s35, 1280
v_and_b32 v50, 15, v2
v_lshrrev_b32 v51, 4, v2
v_lshlrev_b32 v52, 6, v50
v_lshl_add_u32 v52, v51, 4, v52
{V53}
s_lshl_b32 s42, s34, 12
s_min_u32 s42, s42, {27*1024}
s_add_u32 m0, s42, {BB}
s_add_u32 s42, s42, s58
s_waitcnt lgkmcnt(0)
s_barrier""")
    st(k, 8, 5)
    if not fused: srd_from(k, 4, 4, 5, 0, X_BYTES)
    for i in range(0 if opt.get('nob') else 4):
        k(f'buffer_load_dwordx4 v3, s[64:67], s42 offen offset:{1024*i} lds'); vm.issue('b')
    st(k, 8, 6)
    if LEAN:
        k(f"""v_add_u32 v54, s32, v52
v_add_u32 v55, s32, v53
ds_read_b128 v[44:47], v54 offset:8192
ds_read_b32 v48, v55 offset:8192
s_mul_i32 s59, s34, {NP}
v_add_u32 v120, s59, v53""")
    elif opt.get('xs'):
        k(f"""v_add_u32 v54, s32, v52
v_mov_b32 v108, 0
v_mov_b32 v109, 0
v_mov_b32 v110, 0
v_mov_b32 v111, 0
ds_read_b128 v[104:107], v54 offset:8192
s_mov_b64 exec, vcc
ds_read_b128 v[108:111], v54 offset:{8192+1024}
s_mov_b64 exec, -1""")
    else:
        k(f"""buffer_load_dwordx4 v[104:107], v52, s[4:7], s35 offen
buffer_load_dwordx4 v[108:111], v53, s[4:7], s35 offen""")
        vm.issue('x'); vm.issue('x')
    HP0 = opt.get('hp0', 10240)
    if G1S:
        k(f"""s_mul_i32 s59, s34, {NP}
v_add_u32 v112, s59, v52""")
        for j, d in enumerate((113, 115)):
            k(f"""v_add_u32 v116, {512*j}, v0
v_mul_u32_u24 v117, 410, v116
v_lshrrev_b32 v117, 16, v117
v_mul_u32_u24 v118, 160, v117
v_sub_u32 v116, v116, v118
v_and_b32 v118, 1, v116
v_lshl_add_u32 v117, v117, 1, v118
v_mul_u32_u24 v117, {NP}, v117
v_lshrrev_b32 v116, 1, v116
v_lshl_add_u32 v{d}, v116, 4, v117""")
        k(f"""s_mul_i32 s59, s3, {HP}
s_lshl_b32 s60, s34, 10
s_add_u32 s59, s59, s60
s_add_u32 s49, s59, 8192
s_cmp_lt_u32 s34, 2
s_cselect_b32 s49, s49, {BIG}""")
    else: k(f"""s_mul_i32 s59, s34, {NP}
v_add_u32 v112, s59, v52
v_and_b32 v113, 3, v2
v_mul_u32_u24 v113, {NP}, v113
v_lshrrev_b32 v114, 2, v2
v_lshl_add_u32 v113, v114, 4, v113
s_cmp_ge_u32 s34, 5
s_cselect_b32 s59, {4*NP-5*256}, 0
s_lshl_b32 s60, s34, 8
s_add_u32 s59, s59, s60
v_add_u32 v113, s59, v113
s_mul_i32 s59, s3, {HP0}
s_lshl_b32 s60, s34, 10
s_add_u32 s59, s59, s60
s_add_u32 s49, s59, 8192
s_cmp_lt_u32 s34, 2
s_cselect_b32 s49, s49, {BIG}""")
    srd_from(k, 52, 80, 81, 0, X_BYTES) if opt.get('hout') else srd_from(k, 52, 40, 41, WS_H, X_BYTES)
    srd_from(k, 60, 40, 41, WS_HN, 0x300000)
    k(f"""v_mul_u32_u24 v55, 3277, v0
v_lshrrev_b32 v55, 16, v55
v_mul_u32_u24 v56, 20, v55
v_sub_u32 v56, v0, v56
v_mul_u32_u24 v57, {RP}, v56
v_lshl_add_u32 v57, v55, 2, v57
v_mov_b32 v58, {11*RP}
v_cmp_ge_u32 vcc, 10, v56
v_cndmask_b32 v57, v58, v57, vcc
v_sub_u32 v59, 20, v56
v_mul_u32_u24 v59, {RP}, v59
v_sub_u32 v61, 31, v55
v_lshl_add_u32 v59, v61, 2, v59
v_cmp_le_u32 vcc, 10, v56
v_cndmask_b32 v59, v58, v59, vcc
v_sub_u32 v61, 32, v55
v_lshlrev_b32 v61, 2, v61
v_cmp_eq_u32 vcc, 0, v56
v_cndmask_b32 v59, v59, v61, vcc
v_cmp_eq_u32 vcc, 0, v0
v_cndmask_b32 v59, v59, v58, vcc
v_cmp_eq_u32 vcc, 320, v0
v_cndmask_b32 v59, v59, v58, vcc
v_mov_b32 v40, 0x3f3504f3
v_min_u32 v62, 10, v50
v_mul_u32_u24 v62, {RP}, v62
v_lshl_add_u32 v62, v51, 4, v62
s_mul_i32 s42, s34, {NP}
v_add_u32 v62, s42, v62
v_and_b32 v63, 1, v2
v_lshlrev_b32 v63, 31, v63
v_or_b32 v63, 1.0, v63
""")
    WT0 = opt.get('wt0', 0) if not opt.get('now') else 0
    assert not (WT0 and NWL)
    if WT0:
        k(vm.wait('q'))
        w_trans(k, 44, 45, list(range(WT0)))
    if LEAN:
        k('s_waitcnt lgkmcnt(0)')
        for i in range(5): k(f'v_lshlrev_b32 v{XP5[i]}, 16, v{44+i}\nv_and_b32 v{XP5[i]+1}, 0xffff0000, v{44+i}')
    st(k, 4, 4); st(k, 8, 7)
    LP = k.label('lp'); LD = k.label('ld'); SK0 = k.label('sk0'); STUB = k.label('stub'); GO = k.label('go')
    q = Bulk(k, post)
    UNI = KW[2] > 0
    L0 = k.label('l0'); L1 = None
    if UNI:
        assert not WT0
        k(f"""v_cmp_gt_u32 vcc, 321, v0
v_cndmask_b32 v57, v58, v57, vcc
v_cndmask_b32 v59, v58, v59, vcc
s_mov_b64 exec, vcc
s_mov_b32 s43, {SPIN}
s_cmp_lt_u32 s34, 6
s_cbranch_scc1 {L0}
s_waitcnt vmcnt(0)
{f"s_sleep {opt['c67']}" if opt.get('c67') else ""}""")
        if opt.get('wt67'):
            k('s_mov_b64 exec, -1')
            w_trans(k, 44, 45, [0, 1, 2, 3], 42, True)
        k(f's_branch {LD}\n{L0}:')
        if opt.get('wte'):
            L1 = k.label('l1')
            for k2 in range(8):
                k(f'buffer_load_dword v{4+k2}, v60, s[8:11], s{46+k2//3} offen offset:{(k2%3)*TP+(0 if opt.get("ip") else 4*(k2&1))} sc1')
            k('s_mov_b64 exec, -1')
            w_trans(k, 44, 45, list(range(opt['wte'])), 42, True)
            k(f's_mov_b64 exec, vcc\ns_branch {L1}')
        k(f'{LP}:')
    else:
      k(f"""v_cmp_gt_u32 vcc, 321, v0
s_mov_b64 s[44:45], vcc
s_cmp_lt_u32 s34, 6
s_cbranch_scc1 {GO}
s_waitcnt vmcnt(0)""")
      if opt.get('c67'): k(f's_sleep {opt["c67"]}')
      q.copy()(CP[0], None, 124)
      k(f"""s_mov_b64 exec, 0
s_branch {SK0 if WT0 else SKIP}
{GO}:
s_mov_b64 exec, s[44:45]
s_mov_b32 s43, {SPIN}
{LP}:""")
    for k2 in range(8):
        k(f'buffer_load_dword v{4+k2}, v60, s[8:11], s{46+k2//3} offen offset:{(k2%3)*TP+(0 if opt.get("ip") else 4*(k2&1))} sc1')
    if L1: k(f'{L1}:')
    CHK = """v_and_b32 v12, v4, v5
v_and_b32 v13, v6, v7
v_and_b32 v14, v8, v9
v_and_b32 v15, v10, v11
v_and_b32 v12, v12, v13
v_and_b32 v14, v14, v15
v_and_b32 v12, 1, v12
v_and_b32 v12, v12, v14
v_cmp_eq_u32 vcc, 0, v12""" if opt.get('ip') else """v_max3_u32 v12, v4, v5, v6
v_max3_u32 v13, v7, v8, v9
v_max3_u32 v12, v12, v10, v11
v_max_u32 v12, v12, v13
v_cmp_eq_u32 vcc, -1, v12"""
    k(f"""s_waitcnt vmcnt(0)
{CHK}
s_cbranch_vccz {LD}
{f"s_sleep {opt['usl']}" if opt.get('usl') else ""}
s_sub_u32 s43, s43, 1
s_cmp_lg_u32 s43, 0
s_cbranch_scc1 {LP}
{LD}:""")
    st(k, 4, 5); st(k, 0, 1); st(k, 8, 8)
    if UNI:
        k('s_mov_b64 exec, -1')
        if opt.get('xs') or opt.get('wte') or opt.get('wt67'): k('s_waitcnt lgkmcnt(0)')
        if opt.get('ob3'): k('s_barrier')
        q(CP[0], None, 124)
        i0 = len(k.lines)
    elif CP[0] and post:
        k('s_mov_b64 exec, -1')
        q(CP[0], None, 124)
        k('s_mov_b64 exec, s[44:45]')
    for k2 in range(8):
        k(f'v_lshlrev_b32 v{20+2*k2}, 16, v{4+k2}\nv_and_b32 v{21+2*k2}, 0xffff0000, v{4+k2}')
    for k2 in range(8):
        if k2 == 0:
            k('v_mov_b32 v4, v20\nv_mov_b32 v5, v21')
        else:
            smul(k, 4 + 2 * k2, 20 + 2 * k2, 16 + 2 * k2, 42 + 2 * (k2 & 1), conj=True)
    T = fft8(k, 4, 20, True, 40)
    if WT0:
        k(f'{SK0}:\ns_waitcnt lgkmcnt(0)\ns_barrier\ns_cbranch_execz {SKIP}')
    for n in range(8):
        k(f"""v_cvt_pk_bf16_f32 v{4+2*n}, v{T[n]}, v{T[n]+1}
v_cvt_pk_bf16_f32 v{5+2*n}, v{T[n]}, -v{T[n]+1}
ds_write_b32 v57, v{4+2*n} offset:{n*NP}
ds_write_b32 v59, v{5+2*n} offset:{n*NP}""")
    k(f"""{SKIP}:
s_mov_b64 exec, -1""")
    q(CP[1], None, 124)
    k(f"""s_waitcnt lgkmcnt(0)
s_barrier
ds_read_b128 v[4:7], v62
ds_read_b128 v[8:11], v62 offset:64""")
    if opt.get('kw0'): i0 = len(k.lines)
    q(CP[2], None, 124)
    k('s_waitcnt lgkmcnt(1)')
    for u in range(2):
        if u == 1: k('s_waitcnt lgkmcnt(0)')
        for t in range(2):
            k(f'{MFMA} {vr(12+16*u+8*t,4)}, {vr(4+4*u,4)}, {vr(64+8*t,4)}, 0')
            k(f'{MFMA} {vr(16+16*u+8*t,4)}, {vr(4+4*u,4)}, {vr(68+8*t,4)}, 0')
    q(CP[3], None, 124)
    for i in range(0, 16, 2):
        k(f'v_pk_fma_f32 {vr(12+i,2)}, {vr(28+i,2)}, v[62:63], {vr(12+i,2)} op_sel:[0,1,0] op_sel_hi:[1,1,1]')
    for t in range(2):
        cmul_planar(k, 12 + 8 * t, 16 + 8 * t, 80 + 8 * t, 84 + 8 * t, 28, 32, 36)
        k(f"""v_cvt_pk_bf16_f32 v{4+4*t}, v28, v29
v_cvt_pk_bf16_f32 v{5+4*t}, v30, v31
v_cvt_pk_bf16_f32 v{6+4*t}, v32, v33
v_cvt_pk_bf16_f32 v{7+4*t}, v34, v35""")
    if LEAN:
        k(f'''{MFMA} v[20:23], v[4:7], v[100:103], 0
{MFMA} v[12:15], v[4:7], v[96:99], 0
{MFMA} v[20:23], v[8:11], v[104:107], v[20:23]
{MFMA} v[16:19], v[8:11], v[96:99], 0
v_pk_add_f32 v[12:13], v[12:13], {vr(XP5[0],2)}
v_pk_add_f32 v[14:15], v[14:15], {vr(XP5[1],2)}
v_mov_b32_dpp v20, v22 quad_perm:[0,1,2,3] row_mask:0xf bank_mask:0xc
v_mov_b32_dpp v21, v23 quad_perm:[0,1,2,3] row_mask:0xf bank_mask:0xc
v_pk_add_f32 v[28:29], v[12:13], v[14:15]
v_pk_mul_f32 v[30:31], v[12:13], v[12:13]
v_pk_add_f32 v[16:17], v[16:17], {vr(XP5[2],2)}
v_pk_add_f32 v[18:19], v[18:19], {vr(XP5[3],2)}
v_pk_add_f32 v[20:21], v[20:21], {vr(XP5[4],2)}
v_pk_fma_f32 v[30:31], v[14:15], v[14:15], v[30:31]
v_pk_add_f32 v[32:33], v[16:17], v[18:19]
v_pk_mul_f32 v[34:35], v[16:17], v[16:17]
v_pk_add_f32 v[28:29], v[28:29], v[20:21]
v_pk_fma_f32 v[30:31], v[20:21], v[20:21], v[30:31]
v_pk_fma_f32 v[34:35], v[18:19], v[18:19], v[34:35]
v_pk_add_f32 v[28:29], v[28:29], v[32:33]
v_pk_add_f32 v[30:31], v[30:31], v[34:35]
v_add_f32 v28, v28, v29
v_add_f32 v30, v30, v31''')
        j0 = len(k.lines)
        wave_reduce2(k, 28, 30, 36, 37)
        for i in range(5): k.lines.insert(j0 + 3 * i, f'v_cvt_pk_bf16_f32 v{4+i}, v{12+2*i}, v{13+2*i}')
        ln_stats(k, 36, 37, 640, 28, 30, 32)
        ln_apply2(k, 12, 10, 28, 30, 40)
        HS = """buffer_store_dwordx4 v[4:7], v52, s[52:55], s35 offen sc1
buffer_store_dword v8, v53, s[52:55], s35 offen sc1"""
    else:
        for v in range(2):
            for t in range(2):
                k(f'{MFMA} {vr(12+8*v+4*t,4)}, {vr(4+4*t,4)}, {vr(96+4*v,4)}, 0')
        q(CP[4], None, 124)
        if UNI and opt.get('kwe', 1) == 0: weave_in(k, i0, q, KW[2], None, 124)
        for i in range(8):
            k(f'v_lshlrev_b32 v{28+2*i}, 16, v{104+i}\nv_and_b32 v{29+2*i}, 0xffff0000, v{104+i}')
        for i in range(8):
            k(f'v_cvt_pk_bf16_f32 v{4+i}, v{12+2*i}, v{13+2*i}')
        for i in range(8):
            k(f'v_lshlrev_b32 v{12+2*i}, 16, v{4+i}\nv_and_b32 v{13+2*i}, 0xffff0000, v{4+i}')
        for i in range(8):
            k(f'v_pk_add_f32 {vr(12+2*i,2)}, {vr(12+2*i,2)}, {vr(28+2*i,2)}')
        for i in range(8):
            k(f'v_cvt_pk_bf16_f32 v{4+i}, v{12+2*i}, v{13+2*i}')
        HS = """buffer_store_dwordx4 v[4:7], v52, s[52:55], s35 offen sc1
    buffer_store_dwordx4 v[8:11], v53, s[52:55], s35 offen sc1"""
        if not opt.get('hd'): k(HS)
        for i in range(8):
            k(f'v_lshlrev_b32 v{12+2*i}, 16, v{4+i}\nv_and_b32 v{13+2*i}, 0xffff0000, v{4+i}')
        k("""v_pk_add_f32 v[28:29], v[12:13], v[14:15]
    v_pk_mul_f32 v[30:31], v[12:13], v[12:13]
    v_pk_add_f32 v[32:33], v[16:17], v[18:19]
    v_pk_mul_f32 v[34:35], v[14:15], v[14:15]""")
        for i in range(2, 8):
            k(f'v_pk_fma_f32 {vr(30+4*(i&1),2)}, {vr(12+2*i,2)}, {vr(12+2*i,2)}, {vr(30+4*(i&1),2)}')
            if i >= 4:
                k(f'v_pk_add_f32 {vr(28+4*(i&1),2)}, {vr(28+4*(i&1),2)}, {vr(12+2*i,2)}')
        k("""v_pk_add_f32 v[28:29], v[28:29], v[32:33]
    v_pk_add_f32 v[30:31], v[30:31], v[34:35]
    v_add_f32 v28, v28, v29
    v_add_f32 v30, v30, v31""")
        wave_reduce2(k, 28, 30, 36, 37)
        ln_stats(k, 36, 37, 640, 28, 30, 32)
        ln_apply(k, 12, 16, 28, 30, 40)
    if UNI and opt.get('kwe', 1) == 1: weave_in(k, i0, q, KW[2], None, 124)
    assert not q.ops
    if not fused: srd_from(k, 68, 40, 41, WS_FL, FL_BYTES)
    W2 = 'ds_write_b32 v120, v44' if LEAN else '''s_mov_b32 exec_lo, 0x000f000f
s_mov_b32 exec_hi, 0x000f000f
ds_write_b128 v112, v[44:47] offset:1024
s_mov_b64 exec, -1'''
    k(f"""ds_write_b128 v112, v[40:43]
{W2}
s_waitcnt lgkmcnt(0)
s_barrier
ds_read_b128 v[40:43], v113
{"ds_read_b128 v[44:47], v115" if G1S else f"ds_read_b128 v[44:47], v113 offset:{4*NP+3*256}"}
s_waitcnt lgkmcnt(1)
buffer_store_dwordx4 v[40:43], v3, s[60:63], s59 offen sc1
s_waitcnt lgkmcnt(0)
buffer_store_dwordx4 v[44:47], v3, s[60:63], s49 offen sc1
v_mov_b32 v114, v124""")
    if opt.get('hd'): k(HS)
    st(k, 4, 6); st(k, 0, 2); st(k, 8, 9)


def poll2(k, loads, chk, sc, sl=0):
    LP = k.label('lp'); LD = k.label('ld')
    k(f'''s_mov_b32 s{sc}, {SPIN}
{LP}:
{loads}
s_waitcnt vmcnt(0)
{chk}
s_cbranch_vccz {LD}
{f"s_sleep {sl}" if sl else ""}
s_sub_u32 s{sc}, s{sc}, 1
s_cmp_lg_u32 s{sc}, 0
s_cbranch_scc1 {LP}
{LD}:''')


def flag_poll(k, sf, sp, n, sl=0, d0=0, part=3, fs=None):
    if part & 1:
        k(f'''v_lshrrev_b32 v10, 4, v3
v_lshlrev_b32 v10, {FS if fs is None else fs}, v10
s_mov_b64 exec, 1
v_mov_b32 v8, 1
buffer_store_dword v8, v10, s[68:71], s{sf} offen sc1''')
    if part & 2:
        k(f's_mov_b64 exec, {hex((1 << n) - 1)}')
        if d0: k(f's_sleep {d0}')
        poll2(k, f'buffer_load_dword v9, v10, s[68:71], s{sp} offen sc1', 'v_cmp_eq_u32 vcc, 0, v9', 43, sl)
    k('s_mov_b64 exec, -1')


def ph_g1(k, opt, DONE, wb, fused=False):
    L = {(g, z): k.label(f'g{g}z{z}') for g in range(2) for z in range(2)}
    WQ = opt.get('WQ', [32, 0, 8, 15])
    k(f's_lshl_b32 s49, s3, {FS}')
    g1id(k, 3, 35)
    k(f'''s_lshr_b32 s35, s3, 4
s_bfe_u32 s36, s3, 0x30001
s_and_b32 s37, s3, 1
s_and_b32 s38, s34, 3
s_lshl_b32 s39, s35, 2
s_add_u32 s39, s39, s38
v_and_b32 v2, 63, v0
v_and_b32 v6, 15, v2
v_lshrrev_b32 v7, 4, v2''')
    if wb: k('v_mov_b32 v88, v114')
    HP0 = opt.get('hp0', 10240)
    srd_from(k, 8, 40, 41, WS_HN, 0x300000)
    k(f'''v_lshlrev_b32 v9, 3, v2
v_lshrrev_b32 v8, 2, v6
v_and_b32 v10, 3, v6
v_mul_u32_u24 v1, {HP0}, v8
v_lshl_add_u32 v1, v7, 6, v1
v_lshl_add_u32 v1, v10, 4, v1
v_add_u32 v2, {4*HP0}, v1
s_lshr_b32 s44, s39, 1
s_mul_i32 s44, s44, {8*HP0}
s_and_b32 s45, s38, 1
s_mul_i32 s45, s45, 5120
s_add_u32 s44, s44, s45
s_add_u32 s45, s44, 4096
v_add_u32 v4, 57344, v3
v_add_u32 v5, 114688, v3''')
    srd_from(k, 12, 40, 41, WS_Z1, A2_BYTES)
    srd_from(k, 16, 40, 41, WS_Z2, Z2N_BYTES)
    srd_from(k, 20, 40, 41, WS_PX, PX_BYTES)
    k(f'''s_and_b32 s47, s3, 15
s_lshl_b32 s47, s47, 4
s_add_u32 s47, s47, s35
s_lshl_b32 s47, s47, {FS}
s_add_u32 s47, s47, {FL2}
s_lshr_b32 s42, s34, 2
s_cmp_eq_u32 s42, s37
s_cselect_b32 s43, 1, 0
s_lshl_b32 s42, s42, 1
s_add_u32 s42, s42, s43
s_cmp_eq_u32 s42, 1
s_cbranch_scc1 {L[0,1]}
s_cmp_eq_u32 s42, 2
s_cbranch_scc1 {L[1,0]}
s_cmp_eq_u32 s42, 3
s_cbranch_scc1 {L[1,1]}''')
    PD = opt.get('PD', 5); NA = PD + 1
    assert 40 + 8 * NA <= 88
    AR = lambda kk, u: vr(40 + 8 * (kk % NA) + 4 * u, 4)
    ACC = lambda u, n: 96 + ((n & 3) * 2 + u) * 4

    def aload(kk, u, v):
        if kk >= 20: return
        k(f'buffer_load_dwordx4 {AR(kk,u)}, v{1+u}, s[8:11], s{44+kk//16} offen offset:{256*(kk%16)}'); v.issue(f'a{kk}')
    NB = 8; LA = opt.get('LA', 6)
    SC = opt.get('gsc', 1)

    def tail(z2, wq, rest):
        if not fused:
            k(f's_branch {DONE}'); return
        if opt.get('pw'):
            assert not rest and not wq.ops
            F2S = opt.get('f2s', 5); FZS = opt.get('fzs', 5)
            if z2:
                k(f'''s_lshl_b32 s47, s36, 3
s_lshr_b32 s42, s39, 4
s_add_u32 s47, s47, s42
s_and_b32 s42, s39, 1
s_lshl_b32 s42, s42, 2
s_add_u32 s47, s47, s42
s_lshl_b32 s47, s47, 4
s_and_b32 s42, s39, 14
s_add_u32 s47, s47, s42
s_add_u32 s47, s47, s37
s_lshl_b32 s47, s47, {F2S}
s_add_u32 s47, s47, {FL2}''')
            else:
                k(f'''s_lshl_b32 s47, s39, 4
s_and_b32 s42, s3, 15
s_add_u32 s47, s47, s42
s_lshl_b32 s47, s47, {FZS}
s_add_u32 s47, s47, {FLU}''')
            map_g2(k)
            k(f'''s_load_dwordx2 s[24:25], s[0:1], 48
s_lshl_b32 s44, s36, 3
s_add_u32 s44, s44, s34
s_lshl_b32 s44, s44, {4+F2S}
s_add_u32 s44, s44, {FL2}
s_waitcnt vmcnt(0)''')
            st(k, 0, 5)
            flag_poll(k, 47, 44, 16, opt.get('g2sl', 0), opt.get('g2d', 0) if z2 else 0, fs=F2S)
            k(f's_waitcnt lgkmcnt(0)\ns_branch {DONE}')
            return
        map_g2(k)
        k('s_load_dwordx2 s[24:25], s[0:1], 48')
        if not z2 and not wq.ops and rest and opt.get('wte', 1) and not W128:
            w_trans(k, 12, 13, rest); rest = []
        k('s_waitcnt vmcnt(0)')
        st(k, 0, 5)
        if z2: k('s_setprio 0')
        if not z2 and not wq.ops and rest and not W128:
            w_trans(k, 12, 13, rest); rest = []
        if W128: assert not wq.ops and not (z2 and rest)
        if not z2: wq(99, None, 88)
        k('s_barrier')
        if z2: wq(99, None, 88)
        NP2 = k.label('np2'); NP3 = k.label('np3')
        if not z2:
            k(f's_cmp_lg_u32 s38, 0\ns_cbranch_scc1 {NP2}')
            flag_poll(k, 47, 44, 32, part=1)
            k(f'{NP2}:')
        if rest:
            k('s_waitcnt vmcnt(0)')
            w_trans(k, 12, 13, rest)
        if not z2:
            k(f'''s_cmp_lg_u32 s38, 0
s_cbranch_scc1 {NP3}
s_lshl_b32 s44, s36, {5+FS}
s_add_u32 s44, s44, {FL2}''')
            flag_poll(k, 47, 44, 32, opt.get('g2sl', 0), opt.get('g2d', 0) if not rest else 0, part=2)
            k(f'{NP3}:')
        k('s_waitcnt lgkmcnt(0)\ns_barrier')
        k(f's_branch {DONE}')

    def path(grp, z2):
        vm = Cnt('vmcnt', 63)
        wq = wb.copy() if wb else None
        tiles = [0, 1, 2, 3] if grp == 0 else [4, 5, 6]
        NT = len(tiles)
        order = [(kk, n) for kk in range(20) for n in tiles]
        k('s_waitcnt vmcnt(0)\ns_barrier')
        st(k, 1, 3); st(k, 4, 7)
        rest = [] if opt.get('now') else list(range(opt.get('wt0', 0), 4))
        n1 = opt.get('wt1', [0, 0])[z2] if not wq.ops else 0
        if W128: n1 = min(opt['wt1'][z2], (32 - len(wq.ops)) // 8)
        now, rest = rest[:n1], rest[n1:]
        if z2:
            NPL = k.label('npl'); NPM = k.label('npm')
            k(f'''s_setprio {opt.get('zprio', 2)}
s_lshl_b32 s42, s35, {4+FS}
s_mov_b32 s46, s49
s_cmp_lg_u32 s38, 0
s_cbranch_scc1 {NPM}''')
            flag_poll(k, 46, 42, 16, part=1)
            k(f'{NPM}:')
            w_trans(k, 12, 13, now, 48)
            k(f's_cmp_lg_u32 s38, 0\ns_cbranch_scc1 {NPL}')
            flag_poll(k, 46, 42, 16, opt.get('g1sl', 0), opt.get('g1d', 0) if not now else 0, part=2)
            k(f'{NPL}:')
        else:
            w_trans(k, 12, 13, now, 48)
            if wq: wq(WQ[0], vm, 88)
        k('s_waitcnt lgkmcnt(0)\ns_barrier')
        st(k, 4, 8)
        st(k, 1, 4); st(k, 0, 3)
        if not z2 and opt.get('zd'): k(f's_sleep {opt["zd"]}')
        for kk in range(PD):
            for u in range(2): aload(kk, u, vm)

        def rdB(f):
            if f >= len(order): return
            kk, n = order[f]
            a = BB + kk * 7168 + n * 1024
            k(f'ds_read_b128 {vr(8+4*(f%NB),4)}, v{3+a//57344} offset:{a%57344}')
        for f in range(LA): rdB(f)
        for f, (kk, n) in enumerate(order):
            x = vm.wait(f'a{kk}')
            if x: k(x)
            if n == tiles[0] and kk in (0, 10): st(k, 1, 5 + kk // 10)
            rem = min(LA - 1, len(order) - 1 - f)
            k(f's_waitcnt lgkmcnt({rem})')
            b = vr(8 + 4 * (f % NB), 4)
            for u in range(2):
                acc = vr(ACC(u, n), 4)
                c = '0' if kk == 0 else acc
                if z2: k(f'{MFMA} {acc}, {AR(kk,u)}, {b}, {c}')
                else: k(f'{MFMA} {acc}, {b}, {AR(kk,u)}, {c}')
            rdB(f + LA)
            i = f % NT
            if i < 2: aload(kk + PD, i, vm)
            if wq and kk >= WQ[3]:
                c = WQ[1 + z2]
                wq((c * (i + 1)) // NT - (c * i) // NT, vm, 88)
        st(k, 1, 7); st(k, 0, 4); st(k, 4, 9)
        k(f'v_mov_b32 v4, {fbits(C1)}\nv_mov_b32 v5, {fbits(C0)}')
        if not z2:
            k(f'''s_lshr_b32 s42, s39, 1
s_lshl_b32 s42, s42, 3
s_add_u32 s42, s42, s36
s_lshl_b32 s42, s42, 1
s_and_b32 s43, s39, 1
s_add_u32 s42, s42, s43
s_lshl_b32 s42, s42, 13
s_add_u32 s43, s42, 4096
v_lshrrev_b32 v2, 1, v3''')
            units = [(u, p) for p in ((0, 1) if grp == 0 else (2,)) for u in range(2)]
            for i, (u, p) in enumerate(units):
                o = 12 + 4 * (i & 1)
                for h in range(2):
                    a = ACC(u, 2 * p + h)
                    k(f'v_cvt_pk_bf16_f32 v{8+2*h}, v{a}, v{a+1}\nv_cvt_pk_bf16_f32 v{9+2*h}, v{a+2}, v{a+3}')
                gelu_pk(k, 8, 8, 20, 28, o, 4, sc=(SC > 1))
                k(f'buffer_store_dwordx4 {vr(o,4)}, v3, s[12:15], s{42+u} offen offset:{1024*p} sc1')
            if grp == 1:
                for u in range(2):
                    a = ACC(u, 6)
                    k(f'v_cvt_pk_bf16_f32 v{8+2*u}, v{a}, v{a+1}\nv_cvt_pk_bf16_f32 v{9+2*u}, v{a+2}, v{a+3}')
                gelu_pk(k, 8, 8, 20, 28, 12, 4, sc=(SC > 1))
                for u in range(2):
                    k(f'buffer_store_dwordx2 {vr(12+2*u,2)}, v2, s[12:15], s{42+u} offen offset:3072 sc1')
            st(k, 1, 8)
            tail(False, wq, rest)
            return
        S = 72; Q = 80
        SK = k.label('sk')
        for i, n in enumerate(tiles):
            if n == 5: k(f's_cmp_eq_u32 s36, 7\ns_cbranch_scc1 {SK}')
            for r in range(4): k(f'v_cvt_pk_bf16_f32 v{8+r}, v{ACC(0,n)+r}, v{ACC(1,n)+r}')
            k(f'''v_permlane32_swap_b32 v8, v10
v_permlane32_swap_b32 v9, v11
v_permlane16_swap_b32 v8, v9
v_permlane16_swap_b32 v10, v11''')
            gelu_pk(k, 8, 8, 20, 28, 12, 4, tr=True, sc=(SC > 0))
            d = 40 + 8 * i
            for r in range(4):
                k(f'v_lshlrev_b32 v{d+2*r}, 16, v{12+r}\nv_and_b32 v{d+1+2*r}, 0xffff0000, v{12+r}')
            for e in range(8):
                if i == 0: k(f'v_mul_f32 v{Q+e}, v{d+e}, v{d+e}\nv_mov_b32 v{S+e}, v{d+e}')
                else: k(f'v_add_f32 v{S+e}, v{S+e}, v{d+e}\nv_fmac_f32 v{Q+e}, v{d+e}, v{d+e}')
        k(f'{SK}:')
        V = [0] * 16
        for e in range(8):
            V[2 * e] = S + e; V[2 * e + 1] = Q + e
        for i in range(8):
            k(f'v_add_f32_dpp v{V[i]}, v{V[i]}, v{V[i]} row_ror:8 row_mask:0xf bank_mask:0x3')
        for i in range(8):
            k(f'v_add_f32_dpp v{V[i]}, v{V[i+8]}, v{V[i+8]} row_ror:8 row_mask:0xf bank_mask:0xc')
        for i in range(4):
            k(f'v_add_f32_dpp v{V[i]}, v{V[i]}, v{V[i]} row_half_mirror row_mask:0xf bank_mask:0x5')
        for i in range(4):
            k(f'v_add_f32_dpp v{V[i]}, v{V[i+4]}, v{V[i+4]} row_half_mirror row_mask:0xf bank_mask:0xa')
        for m in ('quad_perm:[1,0,3,2]', 'quad_perm:[2,3,0,1]'):
            for i in range(4):
                k(f'v_add_f32_dpp v{V[i]}, v{V[i]}, v{V[i]} {m} row_mask:0xf bank_mask:0xf')
        k(f'''s_mov_b32 vcc_lo, 0xaaaaaaaa
s_mov_b32 vcc_hi, 0xaaaaaaaa
v_cndmask_b32 v8, v{V[0]}, v{V[1]}, vcc
v_cndmask_b32 v9, v{V[2]}, v{V[3]}, vcc
s_mov_b32 vcc_lo, 0xcccccccc
s_mov_b32 vcc_hi, 0xcccccccc
v_cndmask_b32 v8, v8, v9, vcc
s_lshl_b32 s42, s39, 12
s_and_b32 s43, s3, 15
s_lshl_b32 s43, s43, 8
s_add_u32 s43, s43, s42
v_lshrrev_b32 v2, 2, v3
buffer_store_dword v8, v2, s[20:23], s43 offen sc1
v_lshrrev_b32 v9, 2, v6
v_and_b32 v10, 3, v6
v_lshlrev_b32 v9, 8, v9
v_lshl_add_u32 v9, v7, 6, v9
v_lshl_add_u32 v1, v10, 4, v9''')
        st(k, 1, 8)
        LP = k.label('lp'); LD = k.label('ld')
        k(f'''s_lshl_b32 s44, s36, 3
s_lshr_b32 s45, s39, 4
s_add_u32 s44, s44, s45
s_and_b32 s45, s39, 1
s_lshl_b32 s45, s45, 2
s_add_u32 s44, s44, s45
s_mul_i32 s44, s44, 56
s_bfe_u32 s45, s39, 0x30001
s_add_u32 s44, s44, s45
s_add_u32 s44, s44, {8*tiles[0]}
s_lshl_b32 s44, s44, 10
v_mov_b32 v4, {fbits(1.0/864)}
s_mov_b32 s43, {SPIN}''')
        if rest and wq and not wq.ops and opt.get('wtp', 1):
            k('s_waitcnt vmcnt(1)')
            w_trans(k, 8, 9, rest, 46); rest = []
        elif opt.get('pxd'): k(f"s_sleep {opt['pxd']}")
        k(f'{LP}:')
        for i in range(4): k(f'buffer_load_dwordx4 {vr(8+4*i,4)}, v1, s[20:23], s42 offen offset:{1024*i} sc1')
        k('s_waitcnt vmcnt(2)')
        k('v_max3_u32 v24, v8, v9, v10\nv_max3_u32 v25, v11, v12, v13\nv_max3_u32 v24, v24, v14, v15')
        for r in range(4): k(f'v_add_f32 v{28+r}, v{8+r}, v{12+r}')
        k('s_waitcnt vmcnt(0)')
        k('''v_max3_u32 v25, v25, v16, v17
v_max3_u32 v24, v24, v18, v19
v_max3_u32 v25, v25, v20, v21
v_max3_u32 v24, v24, v22, v23
v_max_u32 v24, v24, v25
v_cmp_eq_u32 vcc, -1, v24''')
        for r in range(4): k(f'v_add_f32 v{32+r}, v{16+r}, v{20+r}')
        k(f'''s_cbranch_vccz {LD}
{f"s_sleep {opt['pxs']}" if opt.get('pxs') else ""}
s_sub_u32 s43, s43, 1
s_cmp_lg_u32 s43, 0
s_cbranch_scc1 {LP}
{LD}:''')
        st(k, 1, 9); st(k, 0, 9)
        for r in range(4): k(f'v_add_f32 v{28+r}, v{28+r}, v{32+r}')
        for m in ('row_ror:4', 'row_ror:8'):
            for r in range(4): k(f'v_add_f32_dpp v{28+r}, v{28+r}, v{28+r} {m} row_mask:0xf bank_mask:0xf')
        for r in range(4): k(f'v_mul_f32 v{28+r}, v{28+r}, v4')
        k(f'''v_fma_f32 v29, -v28, v28, v29
v_fma_f32 v31, -v30, v30, v31
v_max_f32 v29, 0, v29
v_max_f32 v31, 0, v31
v_cvt_pk_bf16_f32 v12, v28, v30
v_cvt_pk_bf16_f32 v13, v29, v31
v_lshlrev_b32 v8, 16, v12
v_and_b32 v9, 0xffff0000, v12
v_lshlrev_b32 v10, 16, v13
v_and_b32 v11, 0xffff0000, v13
v_add_f32 v10, 0x3727c5ac, v10
v_add_f32 v11, 0x3727c5ac, v11
v_cvt_pk_bf16_f32 v13, v10, v11
v_lshlrev_b32 v10, 16, v13
v_and_b32 v11, 0xffff0000, v13
v_sqrt_f32 v10, v10
v_sqrt_f32 v11, v11''')
        for e in range(8):
            k(f'v_mov_b32_dpp v{16+e}, v{8+(e&1)} quad_perm:[{e>>1},{e>>1},{e>>1},{e>>1}] row_mask:0xf bank_mask:0xf')
        k(f'''v_cvt_pk_bf16_f32 v13, v10, v11
v_lshlrev_b32 v10, 16, v13
v_and_b32 v11, 0xffff0000, v13
v_rcp_f32 v10, v10
v_rcp_f32 v11, v11''')
        for i in range(NT):
            d = 40 + 8 * i
            for e in range(0, 8, 2):
                k(f'v_pk_add_f32 {vr(d+e,2)}, {vr(d+e,2)}, {vr(16+e,2)} neg_lo:[0,1] neg_hi:[0,1]')
            if i == 0:
                for e in range(8):
                    k(f'v_mov_b32_dpp v{24+e}, v{10+(e&1)} quad_perm:[{e>>1},{e>>1},{e>>1},{e>>1}] row_mask:0xf bank_mask:0xf')
            o = 72 + 4 * i
            for r in range(4): k(f'v_cvt_pk_bf16_f32 v{o+r}, v{d+2*r}, v{d+2*r+1}')
            for r in range(4): k(f'v_lshlrev_b32 v{d+2*r}, 16, v{o+r}\nv_and_b32 v{d+1+2*r}, 0xffff0000, v{o+r}')
            for e in range(0, 8, 2):
                k(f'v_pk_mul_f32 {vr(d+e,2)}, {vr(d+e,2)}, {vr(24+e,2)}')
            for r in range(4): k(f'v_cvt_pk_bf16_f32 v{o+r}, v{d+2*r}, v{d+2*r+1}')
            k(f'buffer_store_dwordx4 {vr(o,4)}, v3, s[16:19], s44 offen sc1')
            if i < NT - 1: k('s_add_u32 s44, s44, 8192')
        tail(True, wq, rest)
    for g in range(2):
        for z in range(2):
            k(f'{L[g,z]}:')
            path(g, z)


def ph_g1s(k, opt, DONE, wb):
    assert W128 and not (wb and wb.ops)
    LH = k.label('h1')
    k(f's_lshl_b32 s49, s3, {FS}')
    g1id(k, 3, 35)
    k(f'''s_lshr_b32 s35, s3, 4
s_bfe_u32 s36, s3, 0x30001
s_and_b32 s37, s3, 1
s_and_b32 s38, s34, 3
s_lshl_b32 s39, s35, 2
s_add_u32 s39, s39, s38
s_lshr_b32 s46, s34, 2
v_and_b32 v2, 63, v0
v_and_b32 v6, 15, v2
v_lshrrev_b32 v7, 4, v2''')
    srd_from(k, 8, 40, 41, WS_HN, HN_BYTES)
    k(f'''v_lshrrev_b32 v8, 3, v6
v_and_b32 v10, 3, v6
v_lshl_add_u32 v8, v8, 2, v10
v_mul_u32_u24 v1, {HP}, v8
v_lshl_add_u32 v1, v7, 5, v1
v_bfe_u32 v10, v6, 2, 1
v_lshl_add_u32 v1, v10, 4, v1
s_lshr_b32 s44, s39, 1
s_mul_i32 s44, s44, {8*HP}
s_and_b32 s45, s38, 1
s_lshl_b32 s45, s45, 1
s_add_u32 s45, s45, s46
s_mul_i32 s45, s45, 2560
s_add_u32 s44, s44, s45
v_add_u32 v4, 57344, v3
v_add_u32 v5, 114688, v3''')
    k(f'''v_lshrrev_b32 v8, 2, v6
v_and_b32 v9, 1, v6
v_lshl_add_u32 v8, v8, 1, v9
v_lshlrev_b32 v8, 2, v8
v_lshl_add_u32 v8, v7, 5, v8
v_lshrrev_b32 v10, 1, v6
v_lshlrev_b32 v10, 7, v10
v_lshl_add_u32 v10, v7, 5, v10
v_lshl_add_u32 v10, v9, 4, v10
v_lshl_add_u32 v2, v10, 16, v8
v_mov_b32 v6, {fbits(C1)}
v_mov_b32 v7, {fbits(C0)}''')
    srd_from(k, 12, 40, 41, WS_Z1, A2_BYTES)
    srd_from(k, 16, 40, 41, WS_Z2, Z2N_BYTES)
    srd_from(k, 20, 40, 41, WS_PX, PX_BYTES)
    k(f'''s_and_b32 s47, s3, 15
s_lshl_b32 s53, s47, 7
s_lshl_b32 s47, s47, 4
s_add_u32 s47, s47, s35
s_lshl_b32 s47, s47, {FS}
s_add_u32 s47, s47, {FL2}
s_lshl_b32 s52, s39, 1
s_add_u32 s52, s52, s46
s_lshl_b32 s52, s52, 11
s_add_u32 s53, s53, s52
s_lshl_b32 s54, s36, 3
s_lshr_b32 s42, s39, 4
s_add_u32 s54, s54, s42
s_and_b32 s42, s39, 1
s_lshl_b32 s42, s42, 2
s_add_u32 s54, s54, s42
s_mul_i32 s54, s54, 56
s_bfe_u32 s42, s39, 0x30001
s_add_u32 s54, s54, s42
s_lshl_b32 s42, s37, 5
s_add_u32 s54, s54, s42
s_lshl_b32 s54, s54, 1
s_add_u32 s54, s54, s46
s_lshl_b32 s54, s54, 9
s_lshr_b32 s55, s39, 1
s_lshl_b32 s55, s55, 3
s_add_u32 s55, s55, s36
s_lshl_b32 s55, s55, 1
s_and_b32 s42, s39, 1
s_add_u32 s55, s55, s42
s_lshl_b32 s55, s55, 1
s_add_u32 s55, s55, s46
s_lshl_b32 s55, s55, 12
s_cmp_eq_u32 s36, 7
s_cselect_b32 s48, 0, -1
s_lshl_b32 s42, s35, {4+FS}
s_waitcnt vmcnt(0)
s_barrier''')
    st(k, 1, 3); st(k, 4, 7)
    W4 = k.label('w4'); WJ = k.label('wj')
    NOW = opt.get('now', 0)
    WT2 = opt.get('wt2', 0)
    k(f's_cmp_ge_u32 s34, 4\ns_cbranch_scc1 {W4}')
    if not NOW: w_trans(k, 12, 13, [0, 1, 2, 3], 43)
    k(f's_branch {WJ}\n{W4}:\ns_cmp_lg_u32 s34, 4\ns_cbranch_scc1 {WJ}')
    flag_poll(k, 49, 42, 16, opt.get('g1sl', 0), opt.get('g1d', 0))
    k(f'{WJ}:\ns_waitcnt lgkmcnt(0)\ns_barrier')
    st(k, 4, 8); st(k, 1, 4); st(k, 0, 3)
    AR = lambda kk: 32 + 4 * kk
    PD = opt.get('PD', 8)

    def aload(kk, vm=None):
        if kk >= 20: return
        k(f'buffer_load_dwordx4 {vr(AR(kk),4)}, v1, s[8:11], s44 offen offset:{128*kk}')
        if vm: vm.issue(f'a{kk}')
    for kk in range(PD): aload(kk)
    if WT2 and not NOW:
        W5 = k.label('w5')
        k(f's_cmp_lt_u32 s34, 4\ns_cbranch_scc1 {W5}')
        w_trans(k, 12, 13, list(range(WT2)), 43)
        k(f's_waitcnt lgkmcnt(0)\n{W5}:')
    k(f's_cmp_eq_u32 s37, 1\ns_cbranch_scc1 {LH}')
    LA = opt.get('LA', 5); LA1 = opt.get('LA1', 6)
    SC = opt.get('gsc', 0)
    ACC = lambda i: 112 + 4 * i

    def path(hh):
        vm = Cnt('vmcnt', 63); lg = Cnt('lgkmcnt', 15)
        for kk in range(PD): vm.issue(f'a{kk}')
        tz = [0, 1, 2, 3] if hh == 0 else [4, 5, 6]
        t1 = [4, 5, 6] if hh == 0 else [0, 1, 2, 3]

        def gpass(tiles, z2, free, la, ev=None, order=None, fill=None, R=0):
            order = order or [(kk, i) for kk in range(20) for i in range(len(tiles))]
            last = {}
            for f, (kk, i) in enumerate(order): last[kk] = f
            buf = {}; nr = [0]; pend = []

            def reads(f):
                while nr[0] < len(order) and nr[0] <= f + la and free:
                    q = nr[0]; kk, i = order[q]
                    b = free.pop(0); buf[q] = b
                    a = BB + kk * 7168 + tiles[i] * 1024
                    k(f'ds_read_b128 {vr(b,4)}, v{3+a//57344} offset:{a%57344}'); lg.issue(f'b{z2}_{q}')
                    nr[0] += 1
            reads(-1)
            for f, (kk, i) in enumerate(order):
                x = vm.wait(f'a{kk}')
                if x: k(x)
                if z2 and i == 0 and kk in (0, 10): st(k, 1, 5 + kk // 10)
                x = lg.wait(f'b{z2}_{f}')
                if x: k(x)
                acc = vr(ACC(i), 4); c = '0' if kk == 0 else acc
                b = vr(buf[f], 4); a = vr(AR(kk), 4)
                k(f'{MFMA} {acc}, {a}, {b}, {c}' if z2 else f'{MFMA} {acc}, {b}, {a}, {c}')
                free += pend; pend = [buf[f]]
                if not z2 and last[kk] == f: pend.append(AR(kk))
                reads(f)
                if z2 and i == 0: aload(kk + PD, vm)
                if ev and f in ev:
                    for e in ev[f]: e()
                if fill:
                    for _ in range(R):
                        if fill and fill[0][0] <= f:
                            o = fill.pop(0)[1]
                            o() if callable(o) else k(o)
        if opt.get('zprio'): k(f's_setprio {opt["zprio"]}')
        gpass(tz, 1, [8, 12, 16, 20, 24, 28], LA)
        st(k, 1, 7); st(k, 0, 4); st(k, 4, 9)
        S = 20; Q = 8
        prs = [(0, 2), (2, 2)] if hh == 0 else [(0, 2), (2, 1)]
        for pi, (i0, nt) in enumerate(prs):
            xp = 24 + 2 * i0; a = ACC(i0); n = 4 * nt
            for h in range(2 * nt): k(f'v_cvt_pk_bf16_f32 v{xp+h}, v{a+2*h}, v{a+2*h+1}')
            if hh:
                for h in range(2 * nt):
                    if tz[i0 + h // 2] >= 5: k(f'v_and_b32 v{xp+h}, s48, v{xp+h}')
            gelu_pk(k, xp, n, a, 12, xp, 6, sc=(SC > 0))
            for h in range(2 * nt):
                k(f'v_lshlrev_b32 v{a+2*h}, 16, v{xp+h}\nv_and_b32 v{a+1+2*h}, 0xffff0000, v{xp+h}')
            if SC > 0:
                for e in range(n):
                    r = e & 3
                    if pi == 0 and e < 4: k(f'v_mul_f32 v{Q+r}, v{a+e}, v{a+e}')
                    elif pi == 0: k(f'v_add_f32 v{S+r}, v{a+r}, v{a+e}\nv_fmac_f32 v{Q+r}, v{a+e}, v{a+e}')
                    else: k(f'v_add_f32 v{S+r}, v{S+r}, v{a+e}\nv_fmac_f32 v{Q+r}, v{a+e}, v{a+e}')
            else:
                for e in range(0, n, 2):
                    r = e & 3
                    d = vr(a + e, 2); q = vr(Q + r, 2); s_ = vr(S + r, 2)
                    if pi == 0 and e < 4: k(f'v_pk_mul_f32 {q}, {d}, {d}')
                    elif pi == 0: k(f'v_pk_add_f32 {s_}, {vr(a+r,2)}, {d}\nv_pk_fma_f32 {q}, {d}, {d}, {q}')
                    else: k(f'v_pk_add_f32 {s_}, {s_}, {d}\nv_pk_fma_f32 {q}, {d}, {d}, {q}')
        V = []
        for r in range(4): V += [S + r, Q + r]
        for i in range(4): k(f'v_add_f32_dpp v{V[i]}, v{V[i]}, v{V[i]} row_ror:8 row_mask:0xf bank_mask:0x3')
        for i in range(4): k(f'v_add_f32_dpp v{V[i]}, v{V[i+4]}, v{V[i+4]} row_ror:8 row_mask:0xf bank_mask:0xc')
        for i in range(2): k(f'v_add_f32_dpp v{V[i]}, v{V[i]}, v{V[i]} row_half_mirror row_mask:0xf bank_mask:0x5')
        k('v_and_b32 v12, 0xffff, v2')
        for i in range(2): k(f'v_add_f32_dpp v{V[i]}, v{V[i+2]}, v{V[i+2]} row_half_mirror row_mask:0xf bank_mask:0xa')
        k('v_lshrrev_b32 v1, 16, v2\ns_mov_b32 vcc_lo, 0xaaaaaaaa\ns_mov_b32 vcc_hi, 0xaaaaaaaa')
        for m in ('quad_perm:[1,0,3,2]', 'quad_perm:[2,3,0,1]'):
            for i in range(2): k(f'v_add_f32_dpp v{V[i]}, v{V[i]}, v{V[i]} {m} row_mask:0xf bank_mask:0xf')
        k(f'''v_cndmask_b32 v13, v{V[0]}, v{V[1]}, vcc
buffer_store_dword v13, v12, s[20:23], s53 offen sc1''')
        vm.issue('px')
        st(k, 1, 8)
        if opt.get('zprio'): k('s_setprio 0')
        n1 = 20 * len(t1)
        PB = 32

        def pxld():
            for i in range(2): k(f'buffer_load_dwordx4 {vr(PB+4*i,4)}, v1, s[20:23], s52 offen offset:{1024*i} sc1')
        ev = {}
        PXE = opt.get('pxe', 12)
        ev[n1 - 1 - PXE] = [lambda: (pxld(), vm.issue('pl'), vm.issue('pl'))]

        class Pool(list):
            def __iadd__(self, o):
                return list.__iadd__(self, [x for x in o if x not in (32, 36)])
        gpass(t1, 0, Pool([16, 8, 20, 12]), LA1, ev)
        st(k, 1, 9)
        LP = k.label('lp'); LD = k.label('ld'); L1 = k.label('l1')
        k(f'''v_and_b32 v2, 31, v0
v_lshlrev_b32 v2, 4, v2
v_bfe_u32 v4, v0, 5, 1
v_lshl_add_u32 v2, v4, 13, v2
v_mov_b32 v4, {fbits(1.0/864)}
s_mov_b32 s43, {SPIN}
s_branch {L1}
{LP}:''')
        if opt.get('pxs'): k(f"s_sleep {opt['pxs']}")
        pxld()
        k(f'''{L1}:
s_waitcnt vmcnt(0)
v_max3_u32 v8, v32, v33, v34
v_max3_u32 v9, v35, v36, v37
v_max3_u32 v8, v8, v38, v39
v_max_u32 v8, v8, v9
v_cmp_eq_u32 vcc, -1, v8''')
        for r in range(4): k(f'v_add_f32 v{40+r}, v{32+r}, v{36+r}')
        k(f'''s_cbranch_vccz {LD}
s_sub_u32 s43, s43, 1
s_cmp_lg_u32 s43, 0
s_cbranch_scc1 {LP}
{LD}:''')
        st(k, 0, 9); st(k, 6, 1)
        for m in ('row_ror:2', 'row_ror:4', 'row_ror:8'):
            for r in range(4): k(f'v_add_f32_dpp v{40+r}, v{40+r}, v{40+r} {m} row_mask:0xf bank_mask:0xf')
        for r in range(4): k(f'v_mul_f32 v{40+r}, v{40+r}, v4')
        k(f'''v_fma_f32 v41, -v40, v40, v41
v_fma_f32 v43, -v42, v42, v43
v_max_f32 v41, 0, v41
v_max_f32 v43, 0, v43
v_cvt_pk_bf16_f32 v12, v40, v42
v_cvt_pk_bf16_f32 v13, v41, v43
v_lshlrev_b32 v8, 16, v12
v_and_b32 v9, 0xffff0000, v12
v_lshlrev_b32 v10, 16, v13
v_and_b32 v11, 0xffff0000, v13
v_add_f32 v10, 0x3727c5ac, v10
v_add_f32 v11, 0x3727c5ac, v11
v_cvt_pk_bf16_f32 v13, v10, v11
v_lshlrev_b32 v10, 16, v13
v_and_b32 v11, 0xffff0000, v13
v_sqrt_f32 v10, v10
v_sqrt_f32 v11, v11''')
        for r in range(4):
            k(f'v_mov_b32_dpp v{16+r}, v{8+(r&1)} quad_perm:[{r>>1},{r>>1},{r>>1},{r>>1}] row_mask:0xf bank_mask:0xf')
        k(f'''v_cvt_pk_bf16_f32 v13, v10, v11
v_lshlrev_b32 v10, 16, v13
v_and_b32 v11, 0xffff0000, v13
v_rcp_f32 v10, v10
v_rcp_f32 v11, v11''')
        NT = len(tz)
        D = 48
        for h in range(2 * NT):
            k(f'v_lshlrev_b32 v{D+2*h}, 16, v{24+h}\nv_and_b32 v{D+1+2*h}, 0xffff0000, v{24+h}')
        for h in range(2 * NT):
            k(f'v_pk_add_f32 {vr(D+2*h,2)}, {vr(D+2*h,2)}, {vr(16+2*(h&1),2)} neg_lo:[0,1] neg_hi:[0,1]')
        for r in range(4):
            k(f'v_mov_b32_dpp v{20+r}, v{10+(r&1)} quad_perm:[{r>>1},{r>>1},{r>>1},{r>>1}] row_mask:0xf bank_mask:0xf')
        for pi, (i0, nt) in enumerate(prs):
            hs = range(2 * i0, 2 * i0 + 2 * nt)
            for h in hs: k(f'v_cvt_pk_bf16_f32 v{24+h}, v{D+2*h}, v{D+2*h+1}')
            for h in hs: k(f'v_lshlrev_b32 v{D+2*h}, 16, v{24+h}\nv_and_b32 v{D+1+2*h}, 0xffff0000, v{24+h}')
            for h in hs: k(f'v_pk_mul_f32 {vr(D+2*h,2)}, {vr(D+2*h,2)}, {vr(20+2*(h&1),2)}')
            for h in hs: k(f'v_cvt_pk_bf16_f32 v{24+h}, v{D+2*h}, v{D+2*h+1}')
            xp = 24 + 2 * i0
            if nt == 1:
                for h in hs: k(f'v_cvt_pk_bf16_f32 v{26+h}, v{D+2*h}, v{D+2*h+1}')
            k(f'v_permlane32_swap_b32 v{xp}, v{xp+2}\nv_permlane32_swap_b32 v{xp+1}, v{xp+3}')
            if nt == 1: k('s_mov_b32 exec_hi, 0')
            k(f'buffer_store_dwordx4 {vr(xp,4)}, v2, s[16:19], s54 offen sc1')
            if nt == 1: k('s_mov_b32 exec_hi, -1')
            if pi == 0: k('s_add_u32 s54, s54, 16384')
        st(k, 6, 2)
        k('v_lshrrev_b32 v1, 1, v3')
        p1 = [(0, 2, 2048), (2, 1, 3072)] if hh == 0 else [(0, 2, 0), (2, 2, 1024)]
        for pi, (i0, nt, off) in enumerate(p1):
            o = 8 + 4 * pi; a = ACC(i0)
            for h in range(2 * nt): k(f'v_cvt_pk_bf16_f32 v{o+h}, v{a+2*h}, v{a+2*h+1}')
            gelu_pk(k, o, 4 * nt, 32 + 16 * pi, 40 + 16 * pi, o, 6, sc=(SC > 1))
            if nt == 2: k(f'buffer_store_dwordx4 {vr(o,4)}, v3, s[12:15], s55 offen offset:{off} sc1')
            else: k(f'buffer_store_dwordx2 {vr(o,2)}, v1, s[12:15], s55 offen offset:{off} sc1')
        st(k, 6, 3)
        map_g2(k)
        k('s_load_dwordx2 s[24:25], s[0:1], 48\ns_waitcnt vmcnt(0)')
        st(k, 0, 5); st(k, 6, 4)
        T4 = k.label('t4'); TJ = k.label('tj')
        k(f'''s_barrier
s_cmp_ge_u32 s34, 4
s_cbranch_scc1 {T4}
s_cmp_lg_u32 s34, 0
s_cbranch_scc1 {TJ}
s_lshl_b32 s44, s36, {5+FS}
s_add_u32 s44, s44, {FL2}''')
        flag_poll(k, 47, 44, 32, opt.get('g2sl', 0), opt.get('g2d', 0))
        k(f's_branch {TJ}\n{T4}:')
        if not NOW: w_trans(k, 12, 13, list(range(WT2, 4)), 43)
        st(k, 6, 5)
        k(f'{TJ}:\ns_waitcnt lgkmcnt(0)\ns_barrier\ns_branch {DONE}')
    path(0)
    k(f'{LH}:')
    path(1)


def ph_g1t(k, opt, DONE, wb):
    assert W128 and not (wb and wb.ops) and not G1S
    LH = k.label('h1')
    ZC = 20000; NL = '\n'
    HP0 = opt.get('hp0', 10240)
    k(f's_lshl_b32 s49, s3, {FS}')
    g1id(k, 3, 35)
    k(f'''s_lshr_b32 s35, s3, 4
s_bfe_u32 s36, s3, 0x30001
s_and_b32 s37, s3, 1
s_and_b32 s38, s34, 3
s_lshl_b32 s39, s35, 2
s_add_u32 s39, s39, s38
s_lshr_b32 s46, s34, 2
v_and_b32 v2, 63, v0
v_and_b32 v6, 15, v2
v_lshrrev_b32 v7, 4, v2''')
    srd_from(k, 8, 40, 41, WS_HN, 0x300000)
    WD5 = opt.get('wd5', 0)
    if WD5:
        k(f'''v_mov_b32 v0, v124
s_mov_b32 s74, {2048*4096}
s_mov_b32 s50, s78
s_mov_b32 s51, s79
s_cmp_ge_u32 s34, s101
s_cselect_b64 s[100:101], -1, 0''')
    k(f'''v_lshrrev_b32 v8, 2, v6
v_and_b32 v10, 3, v6
v_mul_u32_u24 v1, {HP0}, v8
v_lshl_add_u32 v1, v7, 6, v1
v_lshl_add_u32 v1, v10, 4, v1
s_and_b32 s44, s39, -2
s_add_u32 s44, s44, s46
s_mul_i32 s44, s44, {4*HP0}
s_and_b32 s45, s38, 1
s_mul_i32 s45, s45, 5120
s_add_u32 s44, s44, s45
s_add_u32 s45, s44, 4096
v_add_u32 v4, 57344, v3
v_add_u32 v5, 114688, v3''')
    k(f'''v_and_b32 v9, 1, v6
v_lshl_add_u32 v9, v8, 1, v9
v_lshlrev_b32 v9, 2, v9
v_lshl_add_u32 v9, v7, 6, v9
v_lshlrev_b32 v8, 8, v8
v_lshl_add_u32 v8, v7, 6, v8
v_lshl_add_u32 v8, v10, 4, v8
v_lshl_add_u32 v2, v8, 16, v9
v_mov_b32 v6, {fbits(C0 if GV else C1)}
v_mov_b32 v7, {fbits(C0)}
s_mov_b32 s62, {fbits(C1)}
s_mov_b32 s63, {fbits(C1)}''')
    srd_from(k, 12, 40, 41, WS_Z1, A2_BYTES)
    srd_from(k, 16, 40, 41, WS_Z2, Z2N_BYTES)
    srd_from(k, 20, 40, 41, WS_PX, PX_BYTES)
    k(f'''s_and_b32 s47, s3, 15
s_lshl_b32 s53, s47, 8
s_lshl_b32 s47, s47, 4
s_add_u32 s47, s47, s35
s_lshl_b32 s47, s47, {FS}
s_add_u32 s47, s47, {FL2}
s_lshl_b32 s52, s39, 12
s_add_u32 s53, s53, s52
s_lshl_b32 s42, s46, 5
s_add_u32 s53, s53, s42
s_lshl_b32 s54, s36, 3
s_lshr_b32 s42, s39, 4
s_add_u32 s54, s54, s42
s_and_b32 s42, s39, 1
s_lshl_b32 s42, s42, 2
s_add_u32 s54, s54, s42
s_mul_i32 s54, s54, 56
s_bfe_u32 s42, s39, 0x30001
s_add_u32 s54, s54, s42
s_lshl_b32 s42, s37, 5
s_add_u32 s54, s54, s42
s_lshl_b32 s42, s46, 4
s_add_u32 s54, s54, s42
s_lshl_b32 s54, s54, 10
s_add_u32 s56, s54, 8192
s_and_b32 s42, s37, s46
s_cmp_eq_u32 s42, 1
s_cselect_b32 s56, {BIG}, s56
s_lshr_b32 s55, s39, 1
s_lshl_b32 s55, s55, 3
s_add_u32 s55, s55, s36
s_lshl_b32 s55, s55, 1
s_and_b32 s42, s39, 1
s_add_u32 s55, s55, s42
s_lshl_b32 s55, s55, 1
s_add_u32 s55, s55, s46
s_lshl_b32 s55, s55, 12
s_cmp_eq_u32 s36, 7
s_cselect_b32 s48, 0, -1
s_cselect_b32 s59, 0xffff, -1
s_lshl_b32 s58, s38, 12
s_lshl_b32 s57, s46, 3
s_add_u32 s57, s57, s58
s_lshl_b32 s42, s46, 11
s_add_u32 s58, s58, s42
s_lshl_b32 s42, s35, {4+FS}
s_waitcnt vmcnt({2 if opt.get('hd') else 0})
s_barrier''')
    st(k, 1, 3); st(k, 4, 7)
    if opt.get('zq'): k(f'v_mov_b32 v14, {ZC}\nv_mov_b32 v15, 0\nds_write_b32 v14, v15')
    W4 = k.label('w4'); WJ = k.label('wj')
    NOW = opt.get('now', 0)
    k(f's_cmp_ge_u32 s34, 4\ns_cbranch_scc1 {W4}')
    WG_ = [0, 1, 2, 3][opt.get('wte', 0):]
    ZH = opt.get('zh')
    if ZH:
        assert opt.get('zq') and not opt.get('zw')
        W5 = k.label('w5')
        w_trans(k, 12, 13, list(range(ZH[0])), 43)
        k(f's_waitcnt lgkmcnt(0)\ns_barrier\ns_cmp_lg_u32 s34, 0\ns_cbranch_scc1 {WJ}\nv_lshrrev_b32 v10, 4, v3\nv_lshlrev_b32 v10, {FS}, v10')
        flag_poll(k, 49, 42, 16, opt.get('g1sl', 0), opt.get('g1d', 0), part=2)
        k(f's_branch {WJ}\n{W4}:\ns_cmp_lg_u32 s34, 4\ns_cbranch_scc1 {W5}')
        flag_poll(k, 49, 42, 16, part=1)
        k(f'{W5}:\ns_barrier')
        w_trans(k, 12, 13, list(range(ZH[1])), 43)
        W4 = k.label('w4')
    elif not NOW: w_trans(k, 12, 13, WG_, 43)
    WTC = opt.get('wtc')
    WT5 = k.label('w5')
    k(f's_branch {WJ}\n{W4}:\ns_cmp_lg_u32 s34, 4\ns_cbranch_scc1 {WJ if WTC is None else WT5}')
    flag_poll(k, 49, 42, 16, opt.get('g1sl', 0), opt.get('g1d', 0))
    if WTC is not None:
        k(f's_branch {WJ}\n{WT5}:')
        if WTC: k(f's_sleep {WTC}')
        srd_from(k, 28, 40, 41, WS_WO, WO8_BYTES)
        k(f'''s_and_b32 s60, s2, 1
s_lshl_b32 s60, s60, 5
s_lshr_b32 s61, s2, 3
s_add_u32 s60, s60, s61
s_mul_i32 s60, s60, {WOB}
s_sub_u32 s61, s34, 5
s_mul_i32 s61, s61, {47*128}
s_add_u32 s60, s60, s61
v_lshlrev_b32 v113, 3, v3
s_mov_b32 exec_hi, 0x7fff
buffer_load_ubyte v112, v113, s[28:31], s60 offen
s_mov_b32 exec_hi, -1''')
    k(f'{WJ}:\ns_waitcnt lgkmcnt(0)\ns_barrier')
    st(k, 4, 8); st(k, 1, 4); st(k, 0, 3)
    AR = lambda kk: 32 + 4 * kk
    PD = opt.get('PD', 8)

    def aload(kk, vm=None):
        if kk >= 20: return
        k(f'buffer_load_dwordx4 {vr(AR(kk),4)}, v1, s[8:11], s{44+kk//16} offen offset:{256*(kk%16)}')
        if vm: vm.issue(f'a{kk}')
    for kk in range(PD): aload(kk)
    ZW = opt.get('zw', 0)
    if ZW:
        L = k.label('zw')
        k(f's_cmp_lt_u32 s34, 4\ns_cbranch_scc1 {L}')
        w_trans(k, 112, 113, list(range(ZW)), 43)
        k(f'{L}:')
    k(f's_cmp_eq_u32 s37, 1\ns_cbranch_scc1 {LH}')
    LA = opt.get('LA', 5); LA1 = opt.get('LA1', 6)
    SC = opt.get('gsc', 0)
    ACC = lambda i: 112 + 4 * i
    X4 = opt.get('g3v') == 4
    ZQ = opt.get('zq', 0)
    assert not (ZQ and X4)

    def rbar(lo):
        if opt.get('nrb'): return
        L = k.label('rb')
        k(f's_cmp_lt_u32 s34, 4\ns_cbranch_scc{int(not lo)} {L}\ns_barrier')
        for g in range(opt.get('stm', 0) if lo else 0):
            k(f's_add_u32 m0, s61, {100*1024+4096*g}')
            for j in range(3 if g == 3 else 4): k(f'buffer_load_dwordx4 v3, s[28:31], s60 offen offset:{1024*j} lds')
            k('s_add_u32 s60, s60, 4096')
        k(f'{L}:')

    def path(hh):
        vm = Cnt('vmcnt', 63); lg = Cnt('lgkmcnt', 15)
        for kk in range(PD): vm.issue(f'a{kk}')
        tz = [0, 1, 2, 3] if hh == 0 else [4, 5, 6]
        t1 = [4, 5, 6] if hh == 0 else [0, 1, 2, 3]

        def gpass(tiles, z2, free, la, ev=None, keep=(), tm=0):
            order = [(kk, i) for kk in range(20) for i in range(len(tiles))]
            if tm: order = [(kk, i) for i in range(len(tiles)) for kk in range(20)]
            last = {}
            for f, (kk, i) in enumerate(order): last[kk] = f
            buf = {}; nr = [0]; pend = []

            def reads(f):
                while nr[0] < len(order) and nr[0] <= f + la and free:
                    q = nr[0]; kk, i = order[q]
                    b = free.pop(0); buf[q] = b
                    a = BB + kk * 7168 + tiles[i] * 1024
                    if X4 or ZQ: a = BB + ((20 * (7 - len(tiles)) if z2 else 0) + kk * len(tiles) + i) * 1024
                    k(f'ds_read_b128 {vr(b,4)}, v{3+a//57344} offset:{a%57344}'); lg.issue(f'b{z2}_{q}')
                    nr[0] += 1
            reads(-1)
            for f, (kk, i) in enumerate(order):
                x = vm.wait(f'a{kk}')
                if x: k(x)
                if z2 and i == 0 and kk in (0, 10): st(k, 1, 5 + kk // 10)
                x = lg.wait(f'b{z2}_{f}')
                if x: k(x)
                acc = vr(ACC(i), 4); c = '0' if kk == 0 else acc
                b = vr(buf[f], 4); a = vr(AR(kk), 4)
                k(f'{MFMA} {acc}, {a}, {b}, {c}' if z2 else f'{MFMA} {acc}, {b}, {a}, {c}')
                free.extend(pend); pend = [buf[f]]
                if not z2 and last[kk] == f and AR(kk) not in keep: pend.append(AR(kk))
                reads(f)
                if z2 and i == 0: aload(kk + PD, vm)
                if ev and f in ev:
                    for e in ev[f]: e()
        if opt.get('zprio'): k(f's_setprio {opt["zprio"]}')
        def role(lo, f):
            def g():
                L = k.label('ro')
                k(f's_cmp_lt_u32 s34, 4\ns_cbranch_scc{int(not lo)} {L}')
                f()
                k(f'{L}:')
            return g
        ev2 = {}
        if ZW:
            ZB = opt.get('zwb', [10, 2])
            for r in range(2): ev2.setdefault(ZB[r] * len(tz), []).append(role(not r, lambda: k('s_barrier')))
        gpass(tz, 1, [8, 12, 16, 20, 24, 28], LA, ev2)
        st(k, 1, 7); st(k, 0, 4); st(k, 4, 9)
        if X4:
            assert not opt.get('g2m')
            rbar(False)
            srd_from(k, 28, 40, 41, WS_WO, WO8_BYTES)
            k(f'''s_and_b32 s60, s2, 1
s_lshl_b32 s60, s60, 2
s_lshr_b32 s61, s2, 6
s_add_u32 s60, s60, s61
s_mul_i32 s60, s60, {8*WOB}
s_mul_i32 s61, s34, {15*1024}
s_add_u32 s60, s60, s61''')
        WD4 = opt.get('wd4', 0)
        def wdef(a, b, t0=12):
            SK = k.label('wd')
            k(f's_cmp_lt_u32 s34, 4\ns_cbranch_scc1 {SK}')
            if a == 0: k(f's_mov_b32 s74, {2048*4096}\ns_mov_b32 s50, s82\ns_add_u32 s51, s50, 4096')
            w_vaddr(k, t0, t0 + 1)
            for o in g2_wops()[a:b]: k(o.replace('@', f'v{t0}'))
            k(f'{SK}:')
        if WD4: wdef(0, WD4)
        dq = []
        for o in (g2_wops()[32-WD5:] if WD5 else []):
            o = o.split('\n')
            dq.append('\n'.join(['s_mov_b64 exec, s[100:101]', o[0], 's_mov_b64 exec, -1'] + o[1:]))
        dq = Bulk(k, dq)
        ig0 = len(k.lines)
        S = 20; Q = 8
        L2Z = opt.get('lean', 0) & 32
        k('v_add_u32 v1, s57, v3')
        prs = [(0, 2), (2, 2)] if hh == 0 else [(0, 2), (2, 1)]
        for pi, (i0, nt) in enumerate(prs):
            xp = 24 + 2 * i0; a = ACC(i0); n = 4 * nt
            if X4 and pi == opt.get('rbp', 1): rbar(True)
            if L2Z:
                for t in range(nt):
                    c = a + 4 * t
                    k(f'v_permlane32_swap_b32 v{c}, v{c+2}\nv_permlane32_swap_b32 v{c+1}, v{c+3}')
                for t in range(nt):
                    c = a + 4 * t
                    k(f'v_permlane16_swap_b32 v{c}, v{c+1}\nv_permlane16_swap_b32 v{c+2}, v{c+3}')
                for t in range(nt):
                    if hh and i0 + t > 0:
                        for r in range(4): k(f'v_and_b32 v{a+4*t+r}, s48, v{a+4*t+r}')
                gelu_pk(k, None, n, a, 12, xp, 6)
            elif nt == 2:
                for r in range(4): k(f'v_cvt_pk_bf16_f32 v{xp+r}, v{a+r}, v{a+4+r}')
                if hh:
                    for r in range(4): k(f'v_and_b32 v{xp+r}, s59, v{xp+r}')
                k(f'''v_permlane32_swap_b32 v{xp}, v{xp+2}
v_permlane32_swap_b32 v{xp+1}, v{xp+3}
v_permlane16_swap_b32 v{xp}, v{xp+1}
v_permlane16_swap_b32 v{xp+2}, v{xp+3}''')
                gelu_pk(k, xp, 8, a, 12, xp, 6, tr=True, sc=(SC > 0))
            else:
                k(f'''v_permlane32_swap_b32 v{a}, v{a+2}
v_permlane32_swap_b32 v{a+1}, v{a+3}
v_permlane16_swap_b32 v{a}, v{a+1}
v_permlane16_swap_b32 v{a+2}, v{a+3}''')
                for h in range(2): k(f'v_cvt_pk_bf16_f32 v{xp+h}, v{a+2*h}, v{a+2*h+1}')
                for h in range(2): k(f'v_and_b32 v{xp+h}, s48, v{xp+h}')
                gelu_pk(k, xp, 4, a, 12, xp, 6, sc=(SC > 0))
            for t in range(nt):
                k(f'ds_write_b64 v1, {vr(xp+2*t,2)} offset:{1024*(i0+t)}'); lg.issue('x')
            for h in range(0 if L2Z else 2 * nt):
                k(f'v_lshlrev_b32 v{a+2*h}, 16, v{xp+h}\nv_and_b32 v{a+1+2*h}, 0xffff0000, v{xp+h}')
            if L2Z: a = 12
            if SC > 0:
                for e in range(n):
                    r = e & 3
                    if pi == 0 and e < 4: k(f'v_mul_f32 v{Q+r}, v{a+e}, v{a+e}')
                    elif pi == 0: k(f'v_add_f32 v{S+r}, v{a+r}, v{a+e}\nv_fmac_f32 v{Q+r}, v{a+e}, v{a+e}')
                    else: k(f'v_add_f32 v{S+r}, v{S+r}, v{a+e}\nv_fmac_f32 v{Q+r}, v{a+e}, v{a+e}')
            else:
                for e in range(0, n, 2):
                    r = e & 3
                    d = vr(a + e, 2); q = vr(Q + r, 2); s_ = vr(S + r, 2)
                    if pi == 0 and e < 4: k(f'v_pk_mul_f32 {q}, {d}, {d}')
                    elif pi == 0: k(f'v_pk_add_f32 {s_}, {vr(a+r,2)}, {d}\nv_pk_fma_f32 {q}, {d}, {d}, {q}')
                    else: k(f'v_pk_add_f32 {s_}, {s_}, {d}\nv_pk_fma_f32 {q}, {d}, {d}, {q}')
        weave_in(k, ig0, dq, opt.get('wdg', 20), None, 0)
        V = []
        for r in range(4): V += [S + r, Q + r]
        for i in range(4): k(f'v_add_f32_dpp v{V[i]}, v{V[i]}, v{V[i]} row_ror:8 row_mask:0xf bank_mask:0x3')
        for i in range(4): k(f'v_add_f32_dpp v{V[i]}, v{V[i+4]}, v{V[i+4]} row_ror:8 row_mask:0xf bank_mask:0xc')
        for i in range(2): k(f'v_add_f32_dpp v{V[i]}, v{V[i]}, v{V[i]} row_half_mirror row_mask:0xf bank_mask:0x5')
        k('v_and_b32 v12, 0xffff, v2')
        for i in range(2): k(f'v_add_f32_dpp v{V[i]}, v{V[i+2]}, v{V[i+2]} row_half_mirror row_mask:0xf bank_mask:0xa')
        k('v_lshrrev_b32 v1, 16, v2\ns_mov_b32 vcc_lo, 0xaaaaaaaa\ns_mov_b32 vcc_hi, 0xaaaaaaaa')
        for m in ('quad_perm:[1,0,3,2]', 'quad_perm:[2,3,0,1]'):
            for i in range(2): k(f'v_add_f32_dpp v{V[i]}, v{V[i]}, v{V[i]} {m} row_mask:0xf bank_mask:0xf')
        k(f'''v_cndmask_b32 v13, v{V[0]}, v{V[1]}, vcc
buffer_store_dword v13, v12, s[20:23], s53 offen sc1
v_add_u32 v2, s58, v3''')
        vm.issue('px')
        if X4 and opt.get('rbp', 1) == 2: rbar(True)
        if WD4 and WD4 < 32: wdef(WD4, 32, 16)
        st(k, 1, 8)
        if opt.get('zprio'): k('s_setprio 0')
        if opt.get('zs0'):
            L = k.label('z0')
            k(f's_cmp_ge_u32 s34, 4\ns_cbranch_scc1 {L}\ns_sleep {opt["zs0"]}\n{L}:')
        n1 = 20 * len(t1)
        PB = 32; XR = 48

        def pxld():
            for i in range(4): k(f'buffer_load_dwordx4 {vr(PB+4*i,4)}, v1, s[20:23], s52 offen offset:{1024*i} sc1')

        ZS = opt.get('zs', 0)

        def xrd():
            k('s_barrier')
            for t in range(2):
                k(f'ds_read_b128 {vr(XR+4*t,4)}, v2 offset:{1024*t}')
                if not ZS: lg.issue('xr')
        if ZQ:
            assert opt.get('lean', 0) & 68 == 68 and not SC and not dq.ops
            p1 = [(0, 2, 2048), (2, 1, 3072)] if hh == 0 else [(0, 2, 0), (2, 2, 1024)]
            zg = lambda pi: gelu_pk(k, None, 4 * p1[pi][1], ACC(p1[pi][0]), 80 + 16 * pi, 72 + 4 * pi, 6)

            def pxl(PB):
                for i in range(4): k(f'buffer_load_dwordx4 {vr(PB+4*i,4)}, v1, s[20:23], s52 offen offset:{1024*i} sc1')

            def xr(XR):
                for t in range(2): k(f'ds_read_b128 {vr(XR+4*t,4)}, v2 offset:{1024*t}')

            def unp(D, XR, n):
                for h in range(n): k(f'v_lshlrev_b32 v{D+2*h}, 16, v{XR+h}\nv_and_b32 v{D+1+2*h}, 0xffff0000, v{XR+h}')

            def norm(PB, XR, D, late, pre=None):
                LP = k.label('lp'); LD = k.label('ld'); L1 = k.label('l1')
                k(f's_mov_b32 s43, {SPIN}')
                if not late:
                    k('s_waitcnt lgkmcnt(0)')
                    unp(D, XR, 8)
                if pre: pre()
                k(f's_branch {L1}\n{LP}:')
                if opt.get('pxs'): k(f"s_sleep {opt['pxs']}")
                pxl(PB)
                P = lambda i: f'v{PB+i}'
                k(f'''{L1}:
s_waitcnt vmcnt(2)
v_max3_u32 v24, {P(0)}, {P(1)}, {P(2)}
v_max3_u32 v25, {P(3)}, {P(4)}, {P(5)}
v_max3_u32 v24, v24, {P(6)}, {P(7)}''')
                for r in range(4): k(f'v_add_f32 v{28+r}, {P(r)}, {P(4+r)}')
                k(f'''s_waitcnt vmcnt(0)
v_max3_u32 v25, v25, {P(8)}, {P(9)}
v_max3_u32 v24, v24, {P(10)}, {P(11)}
v_max3_u32 v25, v25, {P(12)}, {P(13)}
v_max3_u32 v24, v24, {P(14)}, {P(15)}
v_max_u32 v24, v24, v25
v_cmp_eq_u32 vcc, -1, v24''')
                for r in range(4): k(f'v_add_f32 v{16+r}, {P(8+r)}, {P(12+r)}')
                k(f'''s_cbranch_vccz {LD}
s_sub_u32 s43, s43, 1
s_cmp_lg_u32 s43, 0
s_cbranch_scc1 {LP}
{LD}:''')
                if late: xr(XR)
                st(k, 0, 9); st(k, 6, 1)
                for r in range(4): k(f'v_add_f32 v{28+r}, v{28+r}, v{16+r}')
                for m in ('row_ror:4', 'row_ror:8'):
                    for r in range(4): k(f'v_add_f32_dpp v{28+r}, v{28+r}, v{28+r} {m} row_mask:0xf bank_mask:0xf')
                for r in range(4): k(f'v_mul_f32 v{28+r}, {fbits(1.0/864)}, v{28+r}')
                k(f'''v_fma_f32 v29, -v28, v28, v29
v_fma_f32 v31, -v30, v30, v31
v_max_f32 v29, 0, v29
v_max_f32 v31, 0, v31
v_cvt_pk_bf16_f32 v12, v28, v30
v_cvt_pk_bf16_f32 v13, v29, v31
v_lshlrev_b32 v8, 16, v12
v_and_b32 v9, 0xffff0000, v12
v_lshlrev_b32 v10, 16, v13
v_and_b32 v11, 0xffff0000, v13
v_add_f32 v10, 0x3727c5ac, v10
v_add_f32 v11, 0x3727c5ac, v11
v_cvt_pk_bf16_f32 v13, v10, v11
v_lshlrev_b32 v10, 16, v13
v_and_b32 v11, 0xffff0000, v13
v_sqrt_f32 v10, v10
v_sqrt_f32 v11, v11''')
                for e in range(8):
                    k(f'v_mov_b32_dpp v{16+e}, v{8+(e&1)} quad_perm:[{e>>1},{e>>1},{e>>1},{e>>1}] row_mask:0xf bank_mask:0xf')
                k(f'''v_cvt_pk_bf16_f32 v13, v10, v11
v_lshlrev_b32 v10, 16, v13
v_and_b32 v11, 0xffff0000, v13
v_rcp_f32 v10, v10
v_rcp_f32 v11, v11''')
                for i in range(2):
                    d = D if late else D + 8 * i
                    o = XR + 4 * i
                    if late:
                        k(f's_waitcnt lgkmcnt({1-i})')
                        unp(d, o, 4)
                    for e in range(0, 8, 2):
                        k(f'v_pk_add_f32 {vr(d+e,2)}, {vr(d+e,2)}, {vr(16+e,2)} neg_lo:[0,1] neg_hi:[0,1]')
                    if i == 0:
                        for e in range(8):
                            k(f'v_mov_b32_dpp v{24+e}, v{10+(e&1)} quad_perm:[{e>>1},{e>>1},{e>>1},{e>>1}] row_mask:0xf bank_mask:0xf')
                    for e in range(0, 8, 2):
                        k(f'v_pk_mul_f32 {vr(d+e,2)}, {vr(d+e,2)}, {vr(24+e,2)}')
                    for r in range(4): k(f'v_cvt_pk_bf16_f32 v{o+r}, v{d+2*r}, v{d+2*r+1}')
                    k(f'buffer_store_dwordx4 {vr(o,4)}, v3, s[16:19], s{54+2*i} offen sc1')
                st(k, 6, 2)

            def cadd(inc):
                k(f'v_mov_b32 v56, {ZC}\nv_mov_b32 v57, {inc}\ns_mov_b64 exec, 1\nds_add_rtn_u32 v57, v56, v57\ns_mov_b64 exec, -1')

            def cchk():
                L = k.label('nf')
                k(f'''v_readfirstlane_b32 s42, v57
s_cmp_lg_u32 s42, 7
s_cbranch_scc1 {L}
s_mov_b64 exec, 1
v_mov_b32 v0, 1
buffer_store_dword v0, off, s[68:71], s47 sc1
s_mov_b64 exec, -1
{L}:''')

            def flg(n):
                k(f's_waitcnt vmcnt({n})')
                cadd(1)
                k('s_waitcnt lgkmcnt(0)')
                cchk()
                wreg()
                if opt.get('wld') == 3: wdma()
            WDF = opt.get('wdf', 0)
            dops = [o.replace('@', 'v0') for o in g2_wops()[32-WDF:]] if WDF else []
            if WDF: w_vaddr(k, 0, 14)
            k(f'''s_lshl_b32 s49, s34, 2
s_add_u32 s49, s49, s47
s_add_u32 s49, s49, {FLU-FL2}
s_waitcnt lgkmcnt(0)
s_barrier''')
            lg.done = len(lg.tags)
            st(k, 6, 7)
            WP = opt.get('wp', 0); WL = opt.get('wl', 0)
            if WP or WL:
                assert not opt.get('g2m')
                srd_from(k, 28, 40, 41, WS_WO, WO8_BYTES)
                k(f'''s_and_b32 s60, s2, 1
s_lshl_b32 s60, s60, 2
s_lshr_b32 s61, s2, 6
s_add_u32 s60, s60, s61
s_lshl_b32 s60, s60, 3
s_add_u32 s61, s60, s38
s_add_u32 s60, s60, s34
s_mul_i32 s60, s60, {WOB}
s_mul_i32 s61, s61, {WOB}
s_add_u32 s61, s61, {(15-WL)*1024}
s_mul_i32 s42, s38, {1024*WL}
s_add_u32 m0, s42, {WSB}''')

            def wdma():
                for j in range(WL):
                    if j == 4: k('s_add_u32 m0, m0, 4096\ns_add_u32 s61, s61, 4096')
                    k(f'buffer_load_dwordx4 v3, s[28:31], s61 offen offset:{1024*(j%4)} lds')

            def wreg():
                for j in range(WP): k(f'buffer_load_dwordx4 {vr(40+4*j,4)}, v3, s[28:31], s60 offen offset:{1024*j}')
            if WL and opt.get('wld') == 1: role(True, wdma)()
            B64 = opt.get('b64', 1 if WL else 0)
            def wth(groups, mid=None):
                if B64: w_trans(k, 14, 15, groups, 43, base=100 * 1024, mid=(lambda r: mid(4 * r)) if mid else None)
                else: w_trans128(k, 14, 15, 100 * 1024, 43, groups, mid)

            Z0 = ZH[1] if ZH else ZW
            ZG = Z0 + opt.get('zqg', 0)
            ZQP = opt.get('zqp', 0)

            def hib():
                if opt.get('zqr0'): k(f's_setprio {opt["zqr0"]}')
                for o in dops: k(o)
                if WL and not opt.get('wld'): wdma()
                wth(list(range(Z0, ZG)), lambda r: pxl(112) if r == ZQP else None)
                if opt.get('zqr0'): k('s_setprio 0')
                if opt.get('zqs'): k(f's_sleep {opt["zqs"]}')
                if not ZQP: pxl(112)
                st(k, 6, 5)
                if opt.get('zqr'): k(f's_setprio {opt["zqr"]}')
                norm(112, 120, 112, True)
                if opt.get('zqr'): k(f's_setprio {opt.get("zqr2", 0)}')
            lor = (lambda f: role(True, f)) if ZQ == 1 else (lambda f: f)
            if ZQ == 1: role(False, hib)()
            else: assert ZG == Z0
            PXE = opt.get('pxe', 4); XE = opt.get('xe', 8)
            assert n1 - 1 - max(PXE, XE) >= 6 * len(t1)
            ev = {}
            ev.setdefault(n1 - 1 - PXE, []).append(lor(lambda: pxl(32)))
            ev.setdefault(n1 - 1 - XE, []).append(lor(lambda: xr(48)))
            if WDF:
                assert ZQ == 1 and ZH and 32 - WDF >= 8 * max(ZG, ZH[0])
                D0, DS = opt.get('wdp', [0, 4])
                for j in range(0, WDF, 2): ev.setdefault(D0 + DS * j // 2, []).append(role(True, lambda j=j: (k(dops[j]), k(dops[j+1]))))
            if ZQ == 1:
                F0, F1 = opt.get('zqf', [28, 34])
                assert 7 * len(t1) <= F0 + 1 and F1 < n1 - 1 - max(PXE, XE)
                def f0():
                    role(False, lambda: k('s_waitcnt vmcnt(0)'))()
                    cadd('s46'); lg.issue('cnt')
                def f1():
                    k(lg.wait('cnt') or '')
                    role(False, lambda: (cchk(), wreg(), wdma() if opt.get('wld') == 2 else None))()
                ev.setdefault(F0, []).append(f0); ev.setdefault(F1, []).append(f1)
            gpass(t1, 0, [16, 24, 28, 8, 20, 12], LA1, ev, keep=(32, 36, 40, 44, 48, 52, 56))
            st(k, 1, 9); st(k, 6, 6)
            ZO = opt.get('zo', 0); ZCN = opt.get('zc', 0)
            if opt.get('zlr'): k(f's_setprio {opt["zlr"]}')
            for pi in range(ZO): zg(pi)
            lor(lambda: norm(32, 48, 56, False))()
            if opt.get('zlg') is not None: k(f's_setprio {opt["zlg"]}')
            k('v_lshrrev_b32 v1, 1, v3')
            for pi, (i0, nt, off) in enumerate(p1):
                o = 72 + 4 * pi
                if pi == 0 and ZCN == 2: lor(lambda: flg(0))()
                if pi >= ZO: zg(pi)
                if pi == 0 and ZCN == 1: lor(lambda: flg(0))()
                if nt == 2: k(f'buffer_store_dwordx4 {vr(o,4)}, v3, s[12:15], s55 offen offset:{off} sc1')
                else: k(f'buffer_store_dwordx2 {vr(o,2)}, v1, s[12:15], s55 offen offset:{off} sc1')
            st(k, 6, 3)
            map_g2(k)
            k('s_load_dwordx2 s[24:25], s[0:1], 48')
            if ZCN == 0: lor(lambda: flg(2))()
            if opt.get('zlr'): k('s_setprio 0')
            st(k, 0, 5); st(k, 6, 4)
            TJ = k.label('tj'); T4 = k.label('t4')
            ZA = opt.get('za', 0)
            PL2 = 'buffer_load_dword v9, v10, s[68:71], s44 offen sc1'
            k(f'''s_lshl_b32 s44, s36, {5+FS}
s_add_u32 s44, s44, {FL2}
v_bfe_u32 v10, v3, 4, 5
v_lshlrev_b32 v10, {FS}, v10''')
            def amid(r):
                if r != ZA: return
                L = k.label('am')
                k(f's_cmp_lg_u32 s34, 0\ns_cbranch_scc1 {L}\ns_mov_b32 exec_hi, 0\n{PL2}\ns_mov_b32 exec_hi, -1\n{L}:')
            if ZH: role(True, lambda: w_trans(k, 14, 15, list(range(ZH[0], 4)), 43, base=100 * 1024 + 4 * (4160 if B64 else 8320), mid=amid))()
            st(k, 6, 9)
            if opt.get('zqb', 1): k('s_barrier')
            k(f'''s_cmp_ge_u32 s34, 4
s_cbranch_scc1 {T4}
s_cmp_lg_u32 s34, 0
s_cbranch_scc1 {TJ}''')
            if ZA:
                assert ZH and ZA <= 2 * (4 - ZH[0])
                k(f's_mov_b32 exec_hi, 0\ns_waitcnt vmcnt(0)\nv_cmp_eq_u32 vcc, 0, v9\ns_mov_b32 exec_hi, -1\ns_cbranch_vccz {TJ}')
            flag_poll(k, 47, 44, 32, opt.get('g2sl', 0), opt.get('g2d', 0), part=2)
            st(k, 6, 8)
            k(f's_branch {TJ}\n{T4}:')
            wth(list(range(ZG, 4)))
            st(k, 6, 8)
            k(f'{TJ}:\ns_waitcnt lgkmcnt(0)\ns_barrier\ns_branch {DONE}')
            return
        ev = {}
        PXE = opt.get('pxe', 12); XE = opt.get('xe', 8)
        ev.setdefault(n1 - 1 - PXE, []).append(role(False, pxld) if ZS else pxld)
        ev.setdefault(n1 - 1 - XE, []).append(role(False, xrd) if ZS else xrd)
        ZT = opt.get('zt', 0)
        assert n1 - 1 - max(PXE, XE) >= (n1 - 14 if ZT else 6 * len(t1))
        ZP = 12 if hh else 124
        zout = lambda i: ACC(i & ~1) + 2 * (i & 1)
        if ZT:
            assert opt.get('lean', 0) & 64 and not SC
            for i in range(len(t1) - 1):
                ops = []
                gelu_pk(lambda t: ops.extend(t.split('\n')), None, 4, ACC(i), ZP, zout(i), 6)
                Z0, ZR = opt.get('ztr', [2, 2])
                for j, o in enumerate(ops): ev.setdefault(20 * (i + 1) + Z0 + j // ZR, []).append(lambda o=o: k(o))
        if X4:
            def sta(g):
                L = k.label('sa')
                k(f's_cmp_ge_u32 s34, 4\ns_cbranch_scc1 {L}\ns_add_u32 m0, s61, {100*1024+4096*g}')
                for j in range(3 if g == 3 else 4): k(f'buffer_load_dwordx4 v3, s[28:31], s60 offen offset:{1024*j} lds')
                k(f's_add_u32 s60, s60, 4096\n{L}:')
            S0, SS = opt.get('sta', [2, 8])
            for g in range(opt.get('stm', 0), opt.get('nsta', 4)): ev.setdefault(S0 + SS * (g - opt.get('stm', 0)), []).append(lambda g=g: sta(g))
        for j in range(len(dq.ops)):
            pj = j * opt.get('wds', 3)
            assert pj < n1 - 1 - PXE
            ev.setdefault(pj, []).append(lambda: dq(1, None, 0))
        gpass(t1, 0, [16, 24, 28, 8, 20, 12][:5 if ZT and hh else 6], LA1, ev, keep=(32, 36, 40, 44, 48, 52), tm=ZT)
        st(k, 1, 9)
        LP = k.label('lp'); LD = k.label('ld'); L1 = k.label('l1')
        D = 56
        p1 = [(0, 2, 2048), (2, 1, 3072)] if hh == 0 else [(0, 2, 0), (2, 2, 1024)]
        ZO = opt.get('zo', 0)
        zg = lambda pi: gelu_pk(k, None, 4 * p1[pi][1], ACC(p1[pi][0]), 80 + 16 * pi, 72 + 4 * pi, 6, sc=(SC > 1))
        if ZS:
            def lot():
                if opt.get('zsl'): k(f's_sleep {opt["zsl"]}')
                zg(0); zg(1)
                if ZS == 1: pxld()
                xrd()
                if ZS == 2: pxld()
            role(True, lot)()
        k(f'''v_mov_b32 v4, {fbits(1.0/864)}
s_mov_b32 s43, {SPIN}
s_waitcnt lgkmcnt(0)''')
        for h in range(8):
            k(f'v_lshlrev_b32 v{D+2*h}, 16, v{XR+h}\nv_and_b32 v{D+1+2*h}, 0xffff0000, v{XR+h}')
        zlast = lambda: gelu_pk(k, None, 4, ACC(len(t1) - 1), 80, zout(len(t1) - 1), 6)
        if ZT == 1: zlast()
        if ZO:
            assert opt.get('lean', 0) & 64
            for pi in range(ZO): role(False, lambda: zg(pi))() if ZS else zg(pi)
            st(k, 6, 6)
        k(f'''s_branch {L1}
{LP}:''')
        if opt.get('pxs'): k(f"s_sleep {opt['pxs']}")
        pxld()
        k(f'''{L1}:
s_waitcnt vmcnt(2)
v_max3_u32 v24, v32, v33, v34
v_max3_u32 v25, v35, v36, v37
v_max3_u32 v24, v24, v38, v39''')
        for r in range(4): k(f'v_add_f32 v{28+r}, v{32+r}, v{36+r}')
        k('''s_waitcnt vmcnt(0)
v_max3_u32 v25, v25, v40, v41
v_max3_u32 v24, v24, v42, v43
v_max3_u32 v25, v25, v44, v45
v_max3_u32 v24, v24, v46, v47
v_max_u32 v24, v24, v25
v_cmp_eq_u32 vcc, -1, v24''')
        for r in range(4): k(f'v_add_f32 v{16+r}, v{40+r}, v{44+r}')
        k(f'''s_cbranch_vccz {LD}
s_sub_u32 s43, s43, 1
s_cmp_lg_u32 s43, 0
s_cbranch_scc1 {LP}
{LD}:''')
        st(k, 0, 9); st(k, 6, 1)
        for r in range(4): k(f'v_add_f32 v{28+r}, v{28+r}, v{16+r}')
        for m in ('row_ror:4', 'row_ror:8'):
            for r in range(4): k(f'v_add_f32_dpp v{28+r}, v{28+r}, v{28+r} {m} row_mask:0xf bank_mask:0xf')
        for r in range(4): k(f'v_mul_f32 v{28+r}, v{28+r}, v4')
        k(f'''v_fma_f32 v29, -v28, v28, v29
v_fma_f32 v31, -v30, v30, v31
v_max_f32 v29, 0, v29
v_max_f32 v31, 0, v31
v_cvt_pk_bf16_f32 v12, v28, v30
v_cvt_pk_bf16_f32 v13, v29, v31
v_lshlrev_b32 v8, 16, v12
v_and_b32 v9, 0xffff0000, v12
v_lshlrev_b32 v10, 16, v13
v_and_b32 v11, 0xffff0000, v13
v_add_f32 v10, 0x3727c5ac, v10
v_add_f32 v11, 0x3727c5ac, v11
v_cvt_pk_bf16_f32 v13, v10, v11
v_lshlrev_b32 v10, 16, v13
v_and_b32 v11, 0xffff0000, v13
v_sqrt_f32 v10, v10
v_sqrt_f32 v11, v11''')
        for e in range(8):
            k(f'v_mov_b32_dpp v{16+e}, v{8+(e&1)} quad_perm:[{e>>1},{e>>1},{e>>1},{e>>1}] row_mask:0xf bank_mask:0xf')
        k(f'''v_cvt_pk_bf16_f32 v13, v10, v11
v_lshlrev_b32 v10, 16, v13
v_and_b32 v11, 0xffff0000, v13
v_rcp_f32 v10, v10
v_rcp_f32 v11, v11''')
        for i in range(2):
            d = D + 8 * i
            for e in range(0, 8, 2):
                k(f'v_pk_add_f32 {vr(d+e,2)}, {vr(d+e,2)}, {vr(16+e,2)} neg_lo:[0,1] neg_hi:[0,1]')
            if i == 0:
                for e in range(8):
                    k(f'v_mov_b32_dpp v{24+e}, v{10+(e&1)} quad_perm:[{e>>1},{e>>1},{e>>1},{e>>1}] row_mask:0xf bank_mask:0xf')
            o = XR + 4 * i
            if not opt.get('lean', 0) & 4:
                for r in range(4): k(f'v_cvt_pk_bf16_f32 v{o+r}, v{d+2*r}, v{d+2*r+1}')
                for r in range(4): k(f'v_lshlrev_b32 v{d+2*r}, 16, v{o+r}\nv_and_b32 v{d+1+2*r}, 0xffff0000, v{o+r}')
            for e in range(0, 8, 2):
                k(f'v_pk_mul_f32 {vr(d+e,2)}, {vr(d+e,2)}, {vr(24+e,2)}')
            for r in range(4): k(f'v_cvt_pk_bf16_f32 v{o+r}, v{d+2*r}, v{d+2*r+1}')
            k(f'buffer_store_dwordx4 {vr(o,4)}, v3, s[16:19], s{54+2*i} offen sc1')
        st(k, 6, 2)
        k('v_lshrrev_b32 v1, 1, v3')
        for pi, (i0, nt, off) in enumerate(p1):
            o = 8 + 4 * pi; a = ACC(i0)
            if ZT:
                o = a
                if ZT == 2 and pi == 1: zlast()
            elif pi < ZO: o = 72 + 4 * pi
            elif ZS:
                o = 72 + 4 * pi
                role(False, lambda: zg(pi))()
            elif opt.get('lean', 0) & 64: gelu_pk(k, None, 4 * nt, a, 80 + 16 * pi, o, 6, sc=(SC > 1))
            else:
                for h in range(2 * nt): k(f'v_cvt_pk_bf16_f32 v{o+h}, v{a+2*h}, v{a+2*h+1}')
                gelu_pk(k, o, 4 * nt, 72 + 16 * pi, 80 + 16 * pi, o, 6, sc=(SC > 1))
            if nt == 2: k(f'buffer_store_dwordx4 {vr(o,4)}, v3, s[12:15], s55 offen offset:{off} sc1')
            else: k(f'buffer_store_dwordx2 {vr(o,2)}, v1, s[12:15], s55 offen offset:{off} sc1')
        st(k, 6, 3)
        map_g2(k)
        SB = opt.get('stb', 0)
        def stb():
            for j in range(4): k(f'buffer_load_dwordx4 {vr(40+4*j,4)}, v3, s[28:31], s60 offen offset:{1024*j}')
        if X4:
            k(f'''s_mul_i32 s62, s36, {8*WOB}
s_lshl_b32 s60, s34, 12
s_add_u32 s60, s60, s62
s_add_u32 s60, s60, {60*1024}''')
            if SB == 0: stb()
        k(f's_load_dwordx2 s[24:25], s[0:1], 48\ns_waitcnt vmcnt({4 if X4 and SB == 0 else 0})')
        st(k, 0, 5); st(k, 6, 4)
        T4 = k.label('t4'); TJ = k.label('tj'); T1 = k.label('t1')
        k(f'''s_barrier
s_cmp_ge_u32 s34, 4
s_cbranch_scc1 {T4}
s_cmp_lg_u32 s34, 0
s_cbranch_scc1 {T1 if X4 and SB else TJ}
s_lshl_b32 s44, s36, {5+FS}
s_add_u32 s44, s44, {FL2}''')
        if X4 and SB:
            flag_poll(k, 47, 44, 32, part=1)
            stb()
            flag_poll(k, 47, 44, 32, opt.get('g2sl', 0), opt.get('g2d', 0), part=2)
            k(f's_branch {TJ}\n{T1}:\ns_sleep {SB}')
            stb()
        else: flag_poll(k, 47, 44, 32, opt.get('g2sl', 0), opt.get('g2d', 0))
        k(f's_branch {TJ}\n{T4}:')
        if X4 and SB:
            k(f's_sleep {SB}')
            stb()
        if opt.get('wt67'): k(f's_cmp_ge_u32 s34, 6\ns_cbranch_scc1 {TJ}')
        else: assert not opt.get('wte')
        if not NOW: w_trans(k, 12, 13, WG_[ZW:], 43)
        st(k, 6, 5)
        k(f'{TJ}:\ns_waitcnt lgkmcnt(0)\ns_barrier\ns_branch {DONE}')
    path(0)
    k(f'{LH}:')
    path(1)


def gen_ka(opt):
    k = Kern('ka_kernel', 256, 512, 163840, nvgpr=128, nagpr=128)
    END = k.label('end')
    k(f's_cmp_ge_u32 s2, 256\ns_cbranch_scc1 {END}')
    k.stamp(True)
    ph_k2a(k, opt, None)
    ph_g1(k, opt, END, None)
    k.finish(END)
    return k


def gen_p(opt, g3=True):
    k = Kern('kp_kernel', 256, 512, 163840, nvgpr=128, nagpr=128)
    END = k.label('end'); G2 = k.label('g2'); G3 = k.label('g3')
    k(f's_cmp_ge_u32 s2, 256\ns_cbranch_scc1 {END}')
    k.stamp(True)
    wb = Bulk(k, [] if opt.get('now') else g2_wops())
    ph_k2a(k, opt, wb)
    ph_g1(k, opt, G2, wb, True)
    k(f'{G2}:')
    st(k, 0, 6)
    vm = Cnt('vmcnt', 63); vm.issue('w')
    if g3:
        g3_wo_setup(k)
        ph_g2(k, opt, G3, vm, True, [] if opt.get('noo') else g3_wo_ops())
        k(f'{G3}:')
        ph_g3(k, opt, True)
    else:
        ph_g2(k, opt, END, vm, False)
    k.finish(END)
    return k


def gen_q(opt):
    k = Kern('k1_kernel', 256, 512, 163840, nvgpr=128, nagpr=128)
    END = k.label('end'); G2 = k.label('g2'); G3 = k.label('g3')
    k(f's_cmp_ge_u32 s2, 256\ns_cbranch_scc1 {END}')
    k.stamp(True)
    wb = Bulk(k, [] if opt.get('now') else g2_wops())
    ph_k12(k, opt, wb)
    if G1S: ph_g1s(k, opt, G2, wb)
    elif opt.get('g1t'): ph_g1t(k, opt, G2, wb)
    else: ph_g1(k, opt, G2, wb, True)
    k(f'{G2}:')
    st(k, 0, 6)
    vm = Cnt('vmcnt', 63); vm.issue('w')
    g3_wo_setup(k)
    if opt.get('g3s'):
        k('s_lshl_b32 s61, s35, 3\ns_add_u32 s61, s61, s34\ns_lshl_b32 s61, s61, 14\ns_add_u32 s62, s61, 8192')
        na = ph_g2(k, opt, G3, vm, True, g3_wo_ops(), g3s_early())
        k(f'{G3}:')
        ph_g3s(k, opt, na)
        k.finish(END)
        return k
    ph_g2(k, opt, G3, vm, True, [] if opt.get('noo') else g3_wo_ops())
    k(f'{G3}:')
    ph_g3(k, opt, True)
    k.finish(END)
    return k


def build(opt):
    lv = opt.get('lv', 1)
    if lv == 4: return [gen_fft.gen_k0(), gen_q(opt)]
    ks = [gen_fft.gen_k0(), gen_fft.gen_k1c()]
    if lv == 1: ks += [gen_ka(opt), gen_g2(opt), gen_g3(opt)]
    if lv == 2: ks += [gen_p(opt, False), gen_g3(opt)]
    if lv == 3: ks += [gen_p(opt)]
    return ks


def g3_wo_setup(k):
    if gen_fft.OPT.get('g3v') == 4: return
    srd_from(k, 28, 40, 41, WS_WO, WO8_BYTES)
    if gen_fft.OPT.get('g3v') == 3:
        k(f'''s_mul_i32 s62, s36, {8*WOB}
s_and_b32 s61, s34, 3
s_lshl_b32 s61, s61, 13
s_add_u32 s60, s62, s61
s_add_u32 s61, s61, 0x10000''')
        return
    k(f'''s_lshl_b32 s60, s36, 3
s_add_u32 s60, s60, s34
s_mul_i32 s60, s60, {WOB}''')


WSB = 136 * 1024


def g3_wo_ops2(hi):
    WP = gen_fft.OPT.get('wp', 0); WL = 0 if hi else gen_fft.OPT.get('wl', 0)
    ops = []; cur = 0
    def g(text, off, pos):
        nonlocal cur
        pre = ''
        if off - cur > 4095 - 511:
            pre = f's_add_u32 s60, s60, {off - cur}\n'; cur = off
        ops.append((pre + text + f' offset:{off - cur}', pos, False))
    for i in range(WP, 15 - WL): g(f'buffer_load_dwordx4 {ar(4*i,4)}, v3, s[28:31], s60 offen', 1024 * i, 192 + i)
    for n in range(5): g(f'buffer_load_dwordx2 {ar(60+2*n,2)}, v2, s[28:31], s60 offen', 15360 + 512 * n, 192 + 15 + n // 2)
    lds = [(f'ds_read_b128 {ar(4*i,4)}, v39 offset:{1024*(i-15+WL)}', 192 + i, True) for i in range(15 - WL, 15)]
    return ops, lds


def g3_wo_ops():
    ops = []
    for i in range(15):
        s = f'buffer_load_dwordx4 {ar(4*i,4)}, v3, s[28:31], s60 offen offset:{1024*(i%4)}'
        if i % 4 == 3: s += '\ns_add_u32 s60, s60, 4096'
        if i == 14: s += '\ns_add_u32 s60, s60, 3072'
        ops.append(s)
    for n in range(5):
        ops.append(f'buffer_load_dwordx2 {ar(60+2*n,2)}, v2, s[28:31], s60 offen offset:{512*n}')
    return ops


def ph_g3(k, opt, fused):
    vm = Cnt('vmcnt', 63); lg = Cnt('lgkmcnt', 15)
    G3F = opt.get('g3f', 0)
    WOL = opt.get('wol', [99, 99]); W0L = opt.get('w0l', 0)
    if G3F:
        NP2 = k.label('np2'); WH = k.label('wh'); WX = k.label('wx')
        k(f'''s_lshl_b32 s42, s35, {3+FS}
s_add_u32 s42, s42, {FL3}
s_lshl_b32 s46, s36, {FS}
s_add_u32 s46, s46, s42
v_lshrrev_b32 v124, 4, v3
v_lshlrev_b32 v124, {FS}, v124
v_mov_b32 v125, 1
s_waitcnt vmcnt(0)
s_barrier
s_cmp_lg_u32 s34, 0
s_cbranch_scc1 {NP2}
s_mov_b64 exec, 1
buffer_store_dword v125, v124, s[68:71], s46 offen sc1
s_mov_b64 exec, -1
{f"s_branch {WX}" if W0L else ""}
{NP2}:''')
        ro = [g3_wo_ops()[WOL[0]:], g3_wo_ops()[WOL[1]:]]
        if opt.get('wp') or opt.get('wl'): ro = [[o[0] for o in g3_wo_ops2(h)[0][WOL[h]:]] for h in range(2)]
        if ro[0] == ro[1]:
            for o in ro[0]: k(o)
        else:
            k(f's_cmp_ge_u32 s34, 4\ns_cbranch_scc1 {WH}')
            for o in ro[0]: k(o)
            k(f's_branch {WX}\n{WH}:')
            for o in ro[1]: k(o)
        k(f'{WX}:')
    else: assert WOL == [99, 99]
    srd_from(k, 8, 40, 41, WS_Z1 if opt.get('ain') else WS_A, A2_BYTES)
    srd_from(k, 12, 80, 81, 0, X_BYTES) if opt.get('hout') else srd_from(k, 12, 40, 41, WS_H, X_BYTES)
    k(f'''s_lshl_b32 s44, s35, 3
s_add_u32 s44, s44, s34
s_lshl_b32 s44, s44, 14
v_lshrrev_b32 v1, 4, v3
v_and_b32 v6, 15, v1
v_lshrrev_b32 v7, 4, v1''')
    k(f'''s_lshr_b32 s45, s34, 1
s_mul_i32 s45, s45, 40960
s_and_b32 s46, s34, 1
s_lshl_b32 s46, s46, 3''')
    ROWA = '''v_lshrrev_b32 v11, 3, v9
v_and_b32 v12, 3, v9
v_lshl_add_u32 v11, v11, 2, v12
v_bfe_u32 v12, v9, 2, 1
v_lshl_add_u32 v11, v12, 8, v11''' if G1S else '''v_lshrrev_b32 v11, 2, v9
v_and_b32 v12, 3, v9
v_lshl_add_u32 v11, v12, 8, v11'''
    for p in range(3):
        k(f'''v_add_u32 v8, {64*p}, v1
v_mul_u32_u24 v9, 3277, v8
v_lshrrev_b32 v9, 16, v9
v_mul_u32_u24 v10, 20, v9
v_sub_u32 v10, v8, v10
v_add_u32 v9, s46, v9
v_add_u32 v11, v9, v10
v_and_b32 v11, 15, v11
v_lshlrev_b32 v11, 4, v11
v_lshrrev_b32 v12, 2, v10
v_lshl_add_u32 v11, v12, 13, v11
v_and_b32 v12, 3, v10
v_lshl_add_u32 v11, v12, 8, v11
v_add_u32 v{116+p}, s45, v11
{ROWA}
v_mul_u32_u24 v11, 1280, v11
v_lshl_add_u32 v{120+p}, v10, 3, v11''')
    k(f'''v_mov_b32 v8, 0x7fffffff
v_cmp_gt_u32 vcc, 32, v1
v_cndmask_b32 v122, v8, v122, vcc
s_lshl_b32 s47, s35, 3
s_and_b32 s43, s34, 2
s_lshl_b32 s43, s43, {8 if G1S else 1}
s_add_u32 s47, s47, s43
s_and_b32 s43, s34, 4
s_lshl_b32 s43, s43, 8
s_add_u32 s47, s47, s43
s_mul_i32 s47, s47, 1280
s_mul_i32 s43, s36, 160
s_add_u32 s47, s47, s43''')
    def hld():
        for p in range(3): k(f'buffer_load_dwordx2 {vr(104+2*p,2)}, v{120+p}, s[12:15], s47 offen')
    NH = k.label('nh')
    if G3F: k(f's_cmp_eq_u32 s34, 0\ns_cbranch_scc1 {NH}')
    hld()
    k(f'{NH}:')
    for p in range(3): vm.issue('h')
    k(f'''s_lshl_b32 s43, s34, 10
v_add_u32 v8, v6, v7
v_lshlrev_b32 v9, 8, v7
v_add_u32 v9, s43, v9''')
    for n in range(5):
        k(f'''v_add_u32 v10, {4*n}, v8
v_and_b32 v10, 15, v10
v_lshl_add_u32 v10, v10, 4, v9
v_add_u32 v{88+n}, {8192*n}, v10
v_add_u32 v{93+n}, {8192*n+81920}, v10''')
    if G3F:
        NP3 = k.label('np3')
        k(f's_cmp_lg_u32 s34, 0\ns_cbranch_scc1 {NP3}\ns_mov_b64 exec, 0xff')
        if opt.get('g3d'): k(f's_sleep {opt["g3d"]}')
        poll2(k, 'buffer_load_dword v125, v124, s[68:71], s42 offen sc1', 'v_cmp_eq_u32 vcc, 0, v125', 43, opt.get('g3sl', 0))
        k('s_mov_b64 exec, -1')
        if W0L == 1:
            for o in ro[0]: k(o)
        if W0L < 2: hld()
        k(f'{NP3}:\ns_barrier')
        if W0L == 2:
            NP4 = k.label('np4')
            k(f's_cmp_lg_u32 s34, 0\ns_cbranch_scc1 {NP4}')
            for o in ro[0]: k(o)
            hld()
            k(f'{NP4}:')
    elif fused:
        NP3 = k.label('np3')
        k(f'''s_waitcnt vmcnt(0)
s_barrier
s_cmp_lg_u32 s34, 0
s_cbranch_scc1 {NP3}
s_lshl_b32 s42, s35, {3+FS}
s_add_u32 s42, s42, {FL3}
s_lshl_b32 s46, s36, {FS}
s_add_u32 s46, s46, s42''')
        flag_poll(k, 46, 42, 8, opt.get('g3sl', 0), opt.get('g3d', 0))
        k(f'{NP3}:\ns_barrier')
        vm.done = 3
    st(k, 3, 1); st(k, 0, 8)
    k(f's_cmp_eq_u32 s34, 7\ns_cselect_b32 s48, {BIG}, 0')
    AF = lambda tt, p: 72 + 14 * tt + 4 * p
    for tt in range(4):
        for p in range(3):
            k(f'buffer_load_dwordx4 {ar(AF(tt,p),4)}, v3, s[8:11], s44 offen offset:{1024*p}'); vm.issue(f'a{tt}{p}')
        k(f's_add_u32 s49, s44, s48\nbuffer_load_dwordx2 {ar(AF(tt,3),2)}, v2, s[8:11], s49 offen offset:3072'); vm.issue(f'a{tt}3')
        if tt < 3: k('s_add_u32 s44, s44, 4096')
    srd_from(k, 16, 80, 81, 0, X_BYTES)
    WP = opt.get('wp', 0)
    ACC = lambda tt, n: 8 + (48 if WP else 20) * (tt & 1) + 4 * n
    WR = lambda i: vr(40 + 4 * i, 4) if i < WP else ar(4 * i, 4)
    pend = []
    for tt in range(4):
        for p in range(4):
            x = vm.wait(f'a{tt}{p}')
            if x: k(x)
            if tt == 0 and p == 0: st(k, 3, 2)
            for n in range(5):
                acc = vr(ACC(tt, n), 4)
                if p < 3: k(f'{MFMA} {acc}, {WR(5*p+n)}, {ar(AF(tt,p),4)}, {"0" if p == 0 else acc}')
                else: k(f'{MF16} {acc}, {ar(60+2*n,2)}, {ar(AF(tt,3),2)}, {acc}')
                if pend and (5 * p + n) % 3 == 2: k(pend.pop(0))
        for n in range(5):
            pend.append(f'ds_write_b128 v{88+5*(tt>>1)+n}, {vr(ACC(tt,n),4)} offset:{40960*(tt&1)}')
    for o in pend: k(o)
    st(k, 3, 3)
    k('s_waitcnt lgkmcnt(0)\ns_barrier')
    st(k, 3, 4)
    for p in range(3):
        for s in range(8):
            k(f'ds_read_b128 {vr(8+32*p+4*s,4)}, v{116+p} offset:{1024*s}'); lg.issue(f'r{p}{s}')
        if p == 0:
            for q in range(3):
                k(f'v_lshlrev_b32 v{110+2*q}, 16, v{104+2*q}\nv_and_b32 v{104+2*q}, 0xffff0000, v{104+2*q}')
    for p in range(3):
        a = 8 + 32 * p
        for s in (0, 2, 4, 6):
            x = lg.wait(f'r{p}{s+1}')
            if x: k(x)
            for h in range(2): k(f'v_pk_add_f32 {vr(a+4*s+2*h,2)}, {vr(a+4*s+2*h,2)}, {vr(a+4*s+4+2*h,2)}')
            if s in (2, 6):
                for h in range(2): k(f'v_pk_add_f32 {vr(a+4*s-8+2*h,2)}, {vr(a+4*s-8+2*h,2)}, {vr(a+4*s+2*h,2)}')
        for h in range(2): k(f'v_pk_add_f32 {vr(a+2*h,2)}, {vr(a+2*h,2)}, {vr(a+16+2*h,2)}')
        if opt.get('lean', 0) & 16: k(f'''v_lshlrev_b32 v{a+8}, 16, v{105+2*p}
v_and_b32 v{a+9}, 0xffff0000, v{105+2*p}''')
        else: k(f'''v_cvt_pk_bf16_f32 v{a+4}, v{a}, v{a+1}
v_cvt_pk_bf16_f32 v{a+5}, v{a+2}, v{a+3}
v_lshlrev_b32 v{a+8}, 16, v{105+2*p}
v_and_b32 v{a+9}, 0xffff0000, v{105+2*p}
v_lshlrev_b32 v{a}, 16, v{a+4}
v_and_b32 v{a+1}, 0xffff0000, v{a+4}
v_lshlrev_b32 v{a+2}, 16, v{a+5}
v_and_b32 v{a+3}, 0xffff0000, v{a+5}''')
        k(f'''v_add_f32 v{a}, v{a}, v{110+2*p}
v_add_f32 v{a+1}, v{a+1}, v{104+2*p}
v_pk_add_f32 {vr(a+2,2)}, {vr(a+2,2)}, {vr(a+8,2)}
v_cvt_pk_bf16_f32 v{a+4}, v{a}, v{a+1}
v_cvt_pk_bf16_f32 v{a+5}, v{a+2}, v{a+3}
buffer_store_dwordx2 {vr(a+4,2)}, v{120+p}, s[16:19], s47 offen{['', ' sc1', ' nt', ' sc1 nt'][opt.get('osf', 0)]}''')


def g3v_addr(k):
    B = [f'''v_lshrrev_b32 v1, 4, v3
v_and_b32 v6, 15, v1
v_lshrrev_b32 v7, 4, v1
s_lshr_b32 s45, s34, 1
s_mul_i32 s45, s45, 40960
s_and_b32 s46, s34, 1
s_lshl_b32 s46, s46, 3''']
    for p in range(3):
        B.append(f'''v_add_u32 v8, {64*p}, v1
v_mul_u32_u24 v9, 3277, v8
v_lshrrev_b32 v9, 16, v9
v_mul_u32_u24 v10, 20, v9
v_sub_u32 v10, v8, v10
v_add_u32 v9, s46, v9
v_add_u32 v11, v9, v10
v_and_b32 v11, 15, v11
v_lshlrev_b32 v11, 4, v11
v_lshrrev_b32 v12, 2, v10
v_lshl_add_u32 v11, v12, 13, v11
v_and_b32 v12, 3, v10
v_lshl_add_u32 v11, v12, 8, v11
v_add_u32 v{116+p}, s45, v11
v_lshrrev_b32 v11, 2, v9
v_and_b32 v12, 3, v9
v_lshl_add_u32 v11, v12, 8, v11
v_mul_u32_u24 v11, 1280, v11
v_lshl_add_u32 v{120+p}, v10, 3, v11''')
    B.append(f'''v_mov_b32 v8, 0x7fffffff
v_cmp_gt_u32 vcc, 32, v1
v_cndmask_b32 v122, v8, v122, vcc
s_lshl_b32 s47, s35, 3
s_and_b32 s43, s34, 2
s_lshl_b32 s43, s43, 1
s_add_u32 s47, s47, s43
s_and_b32 s43, s34, 4
s_lshl_b32 s43, s43, 8
s_add_u32 s47, s47, s43
s_mul_i32 s47, s47, 1280
s_mul_i32 s43, s36, 160
s_add_u32 s47, s47, s43''')
    W = f'''s_lshl_b32 s43, s34, 10
v_add_u32 v8, v6, v7
v_lshlrev_b32 v9, 8, v7
v_add_u32 v9, s43, v9'''
    for n in range(5):
        W += f'''
v_add_u32 v10, {4*n}, v8
v_and_b32 v10, 15, v10
v_lshl_add_u32 v10, v10, 4, v9
v_add_u32 v{88+n}, {8192*n}, v10
v_add_u32 v{93+n}, {8192*n+81920}, v10'''
    B.append(W)
    return B


G3AF = lambda tt, p: 72 + 14 * tt + 4 * p
G3ACC = lambda tt, n: 8 + 20 * tt + 4 * n


def g3v_gate(k, vm, tag, reg, cmp, sl=0):
    LP = k.label('lp'); LD = k.label('ld')
    k(f'''{vm.wait(tag) or ''}
{cmp}
s_cbranch_vccz {LD}
s_mov_b32 s43, {SPIN}
{LP}:
{f"s_sleep {sl}" if sl else ""}
{reg if isinstance(reg, str) else f"buffer_load_dword v{reg}, v127, s[68:71], s62 offen sc1"}
s_waitcnt vmcnt(0)
{cmp}
s_cbranch_vccz {LD}
s_sub_u32 s43, s43, 1
s_cmp_lg_u32 s43, 0
s_cbranch_scc1 {LP}
{LD}:''')


def g3v_head(k, opt, hi, vm):
    assert opt.get('hout') and opt.get('ain') and not G1S
    WOL = opt.get('wol', [99, 99])[hi]
    W = [(o, f'w{min(i // 5, 3)}') for i, o in enumerate(g3_wo_ops())][WOL:]
    if opt.get('now3'): W = []
    A = lambda p: [(f'buffer_load_dwordx4 {ar(G3AF(tt,p),4)}, v3, s[16:19], s{63+tt} offen offset:{1024*p}', f'a{tt}{p}') for tt in range(4)]
    Wp = lambda p: [w for w in W if w[1] == f'w{p}']
    QO = opt.get('g3q', 0)
    if QO == 0: Q = Wp(0) + A(0) + Wp(1) + A(1) + Wp(2) + Wp(3)
    elif QO == 1: Q = Wp(0) + Wp(1) + A(0) + A(1) + Wp(2) + Wp(3)
    else: Q = W + A(0) + A(1)
    state = dict(flag=0, gate=0)

    def flg():
        if state['flag']: return
        state['flag'] = 1
        k((vm.wait('s') or '') + '\ns_mov_b64 exec, 1\nbuffer_store_dword v125, off, s[68:71], s61 sc1\ns_mov_b64 exec, -1'); vm.issue('f')
        st(k, 3, 1)

    def pop(n):
        for _ in range(n):
            if not Q: return
            o, t = Q.pop(0)
            if t[0] == 'a' and not state['gate']:
                state['gate'] = 1
                last = lambda x: max(i for i, y in enumerate(vm.tags) if y == x)
                if last('ep') > last('s'): flg()
                g3v_gate(k, vm, 'ep', 126, 'v_cmp_eq_u32 vcc, 0, v126')
                st(k, 9, 2)
            k(o); vm.issue(t)
    k('v_mov_b32 v125, 2')
    st(k, 9, 1)
    pop(opt.get('g3n', [8, 9])[hi])
    st(k, 9, 3)
    B = g3v_addr(k)
    srd_from(k, 12, 80, 81, 0, X_BYTES)
    NB = opt.get('g3b', 5)
    for b in B[:NB]: k(b)
    st(k, 9, 4)
    flg()
    st(k, 9, 5)
    pop(99)
    st(k, 9, 6)
    for b in B[NB:5]: k(b)
    for p in range(3):
        k(f'buffer_load_dwordx2 {vr(104+2*p,2)}, v{120+p}, s[12:15], s47 offen'); vm.issue('h')
    k(B[5])
    st(k, 9, 7)
    k(f's_cmp_eq_u32 s34, 7\ns_cselect_b32 s48, {BIG}, 0')
    if not opt.get('g3bl'): k('s_barrier')
    st(k, 9, 8)
    L1 = opt.get('g3l', [20, 20])[hi]
    i = 0
    for p in range(2):
        for tt in range(4):
            for t in (f'w{p}', f'a{tt}{p}'):
                x = vm.wait(t)
                if x: k(x)
            if tt == 0 and p == 0: st(k, 3, 2); st(k, 9, 9)
            for n in range(5):
                if i == L1: k('buffer_load_dword v124, v127, s[68:71], s62 offen sc1'); vm.issue('lp')
                acc = vr(G3ACC(tt, n), 4)
                k(f'{MFMA} {acc}, {ar(20*p+4*n,4)}, {ar(G3AF(tt,p),4)}, {"0" if p == 0 else acc}')
                i += 1
    if L1 >= 40: k('buffer_load_dword v124, v127, s[68:71], s62 offen sc1'); vm.issue('lp')
    st(k, 3, 5)
    if opt.get('g3bl'): k('s_barrier')
    g3v_gate(k, vm, 'lp', 124, 'v_cmp_ne_u32 vcc, 2, v124', opt.get('g3sl', 0))


def G3AF2(tt, p, n=4): return vr(40 + 4 * tt, 4) if p == 0 else ar(72 + 10 * tt + 4 * (p - 1), n)


def G3ACC2(tt, n):
    i = 5 * tt + n
    return vr(56 + 4 * i, 4) if i < 8 else ar(112 + 4 * (i - 8), 4) if i < 12 else vr(8 + 4 * (i - 12), 4)


def g3v_head2(k, opt, hi, vm):
    assert opt.get('hout') and opt.get('ain') and not G1S
    WOL = opt.get('wol', [99, 99])[hi]
    W = [(o, f'w{min(i // 5, 3)}') for i, o in enumerate(g3_wo_ops())][WOL:]
    if opt.get('now3'): W = []
    A1 = [(f'buffer_load_dwordx4 {G3AF2(tt,1)}, v3, s[16:19], s{63+tt} offen offset:1024', f'a{tt}1') for tt in range(4)]
    Wp = lambda p: [w for w in W if w[1] == f'w{p}']
    Q = Wp(0) + Wp(1) + A1 + Wp(2) + Wp(3) if opt.get('g3q', 0) == 0 else Wp(0) + A1 + Wp(1) + Wp(2) + Wp(3)
    state = dict(flag=0, gate=0)

    def flg():
        if state['flag']: return
        state['flag'] = 1
        k((vm.wait('s') or '') + '\ns_mov_b64 exec, 1\nbuffer_store_dword v125, off, s[68:71], s61 sc1\ns_mov_b64 exec, -1'); vm.issue('f')
        st(k, 3, 1); st(k, 9, 5)

    def pop(n):
        for _ in range(n):
            if not Q: return
            o, t = Q.pop(0)
            if t[0] == 'a' and not state['gate']:
                state['gate'] = 1
                last = lambda x: max(i for i, y in enumerate(vm.tags) if y == x)
                if last('ep') > last('s'): flg()
                g3v_gate(k, vm, 'ep', 126, 'v_cmp_eq_u32 vcc, 0, v126')
                st(k, 9, 2)
            k(o); vm.issue(t)
    L1 = opt.get('g3l', [30, 30])[hi]
    cnt = [0]

    def mf(p, fill=()):
        fill = list(fill); per = (len(fill) + 19) // 20
        for tt in range(4):
            for t in (f'w{p}', f'a{tt}{p}'):
                x = vm.wait(t) if t in vm.tags else None
                if x: k(x)
            if tt == 0: st(k, 9, 4 if p == 0 else 9)
            for n in range(5):
                if cnt[0] == L1: k('buffer_load_dword v124, v127, s[68:71], s62 offen sc1'); vm.issue('lp')
                acc = G3ACC2(tt, n)
                k(f'{MFMA} {acc}, {ar(20*p+4*n,4)}, {G3AF2(tt,p)}, {"0" if p == 0 else acc}')
                cnt[0] += 1
                for _ in range(per):
                    if fill: k(fill.pop(0))
    k('v_mov_b32 v125, 2')
    st(k, 9, 1)
    pop(opt.get('g3n', [0, 0])[hi])
    st(k, 9, 3)
    B = [re.sub(r'\bv(8|9|10|11|12)\b', lambda m: f'v{90+int(m.group(1))}', b) for b in g3v_addr(k)]
    srd_from(k, 12, 80, 81, 0, X_BYTES)
    M0 = opt.get('g3m', 1) and (WOL >= 5 or opt.get('now3'))
    if M0: mf(0, '\n'.join(B[:5]).split('\n'))
    else:
        for b in B[:5]: k(b)
    flg()
    if opt.get('g3bl', 0) == 0: k('s_barrier')
    pop(99)
    st(k, 9, 6)
    for p in range(3):
        k(f'buffer_load_dwordx2 {vr(104+2*p,2)}, v{120+p}, s[12:15], s47 offen'); vm.issue('h')
    k(B[5])
    k(f's_cmp_eq_u32 s34, 7\ns_cselect_b32 s48, {BIG}, 0')
    st(k, 9, 7)
    if not M0: mf(0)
    mf(1)
    if L1 >= 40:
        if L1 > 40: k(f's_sleep {L1-40}')
        k('buffer_load_dword v124, v127, s[68:71], s62 offen sc1'); vm.issue('lp')
    st(k, 3, 5)
    if opt.get('g3bl', 0) == 1: k('s_barrier')
    g3v_gate(k, vm, 'lp', 124, 'v_cmp_ne_u32 vcc, 2, v124', opt.get('g3sl', 0))


def ph_g3w(k, opt):
    assert opt.get('hout') and opt.get('ain') and not G1S
    NP2 = k.label('np2'); WX = k.label('wx'); NP3 = k.label('np3'); HI = k.label('hi'); FIN = k.label('fin')
    k(f'''s_lshl_b32 s42, s35, {3+FS}
s_add_u32 s42, s42, {FL3}
s_lshl_b32 s46, s36, {FS}
s_add_u32 s46, s46, s42
v_lshrrev_b32 v1, 4, v3
v_lshlrev_b32 v124, {FS}, v1
v_mov_b32 v125, 1
s_and_b32 s37, s34, 3
s_lshr_b32 s38, s34, 2
s_lshl_b32 s43, s37, 12
s_add_u32 s60, s62, s43
s_add_u32 s60, s60, 0x10000
s_add_u32 m0, s43, 0x20000
s_mul_i32 s61, s37, {15*1024}
s_add_u32 s62, s62, s61
s_add_u32 s62, s62, {80*1024}
s_lshl_b32 s63, s35, 1
s_add_u32 s63, s63, s38
s_lshl_b32 s63, s63, 16
s_add_u32 s63, s63, s43
s_add_u32 s64, s63, 0x4000
s_add_u32 s65, s63, 0x8000
s_add_u32 s66, s63, 0xc000
s_cmp_eq_u32 s38, 1
s_cselect_b32 s67, {BIG}, s66
s_mul_i32 s43, s38, 5120
v_add_u32 v93, s43, v3
v_add_u32 v91, 0x10000, v93
v_add_u32 v92, {0x10000+40960}, v93
v_lshrrev_b32 v94, 1, v93
s_mul_i32 s43, s37, 5120
s_add_u32 s43, s43, 0x10000
v_add_u32 v95, s43, v3
v_bfe_u32 v6, v1, 2, 2
v_and_b32 v7, 3, v1
v_lshl_add_u32 v6, v7, 8, v6
v_mul_u32_u24 v6, 1280, v6
v_lshrrev_b32 v7, 4, v1
v_lshl_add_u32 v90, v7, 3, v6
s_lshl_b32 s47, s35, 3
s_and_b32 s43, s34, 1
s_lshl_b32 s43, s43, 2
s_add_u32 s47, s47, s43
s_and_b32 s43, s34, 2
s_lshl_b32 s43, s43, 9
s_add_u32 s47, s47, s43
s_mul_i32 s47, s47, 1280
s_mul_i32 s43, s36, 160
s_add_u32 s47, s47, s43
s_mul_i32 s43, s38, 96
s_add_u32 s47, s47, s43''')
    srd_from(k, 12, 80, 81, 0, X_BYTES)
    k(f'''s_waitcnt vmcnt(0)
s_barrier
s_cmp_lg_u32 s34, 0
s_cbranch_scc1 {NP2}
s_mov_b64 exec, 1
buffer_store_dword v125, v124, s[68:71], s46 offen sc1
s_mov_b64 exec, -1
{NP2}:
s_cmp_lt_u32 s34, 4
s_cbranch_scc1 {WX}''')
    st(k, 3, 5)
    if opt.get('dmd'): k(f's_sleep {opt["dmd"]}')
    for i in range(4): k(f'buffer_load_dwordx4 v3, s[28:31], s60 offen offset:{1024*i} lds')
    for i in range(15):
        if i % 4 == 0: k(f's_add_u32 m0, s61, {1024*i}' + ('\ns_add_u32 s62, s62, 4096' if i else ''))
        k(f'buffer_load_dwordx4 v3, s[28:31], s62 offen offset:{1024*(i%4)} lds')
    k(f'{WX}:')
    for i in range(3): k(f'buffer_load_dwordx2 {vr(84+2*i,2)}, v90, s[12:15], s47 offen offset:{32*i}')
    st(k, 3, 6)
    pool = [ar(4 * i, 4) for i in range(32)] + [vr(96 + 4 * i, 4) for i in range(7)]
    NPRE = 30

    def sub(r, h):
        m = re.match(r'([av])\[(\d+):', r)
        return f'{m.group(1)}[{int(m.group(2))+2*h}:{int(m.group(2))+2*h+1}]'

    def rd(q, r, n):
        p, f = q // 20, (q % 20) // 5
        if p < 3: return [f'ds_read_b128 {r}, v{91+p} offset:{f*10240+n*1024}']
        return [f'ds_read_b64 {sub(r,h)}, v94 offset:{40960+(2*f+h)*5120+n*512}' for h in range(2)]
    for q in range(NPRE):
        for o in rd(q, pool[q], q % 5): k(o)
    k(f's_cmp_lg_u32 s34, 0\ns_cbranch_scc1 {NP3}\ns_mov_b64 exec, 0xff')
    if opt.get('g3d'): k(f's_sleep {opt["g3d"]}')
    poll2(k, 'buffer_load_dword v125, v124, s[68:71], s42 offen sc1', 'v_cmp_eq_u32 vcc, 0, v125', 43, opt.get('g3sl', 0))
    k(f's_mov_b64 exec, -1\n{NP3}:\ns_waitcnt vmcnt(0) lgkmcnt(0)')
    st(k, 3, 7)
    k('s_barrier')
    st(k, 3, 1); st(k, 0, 8)
    vm0 = Cnt('vmcnt', 63)
    for p in range(4):
        if opt.get('g3pr'): k(f's_setprio {3-p}')
        for f in range(4):
            if p < 3: k(f'buffer_load_dwordx4 {vr(8+16*p+4*f,4)}, v3, s[16:19], s{63+f} offen offset:{1024*p}')
            else: k(f'buffer_load_dwordx2 {vr(56+2*f,2)}, v2, s[16:19], s{63+f+(f==3)} offen offset:3072')
            vm0.issue(f'a{p}{f}')
    k(f's_cmp_ge_u32 s34, 4\ns_cbranch_scc1 {HI}')
    ACC = lambda n: 64 + 4 * n

    def role(kh):
        import copy
        vm = copy.deepcopy(vm0); lg = Cnt('lgkmcnt', 15)
        own = [0, 1, 2] if kh == 0 else [3, 4]
        snd = [n for n in range(5) if n not in own]
        order = [(q, q % 5) for q in range(65)] + [(65 + i, n) for i, n in enumerate(snd + own)]
        buf = {q: pool[q] for q in range(NPRE)}
        free = pool[NPRE:]; nr = [NPRE]; pend = []

        def reads(m):
            for _ in range(m):
                if nr[0] >= 70 or not free: return
                q, n = order[nr[0]]
                buf[q] = free.pop(0)
                for o in rd(q, buf[q], n): k(o); lg.issue(f'b{q}')
                nr[0] += 1
        reads(9)
        for i, n in enumerate(own):
            k(f'''v_lshlrev_b32 v{ACC(n)}, 16, v{84+2*i}
v_and_b32 v{ACC(n)+1}, 0xffff0000, v{84+2*i}
v_lshlrev_b32 v{ACC(n)+2}, 16, v{85+2*i}
v_and_b32 v{ACC(n)+3}, 0xffff0000, v{85+2*i}''')
        for q, n in order:
            p, f = q // 20, (q % 20) // 5
            x = vm.wait(f'a{p}{f}' if p < 3 else f'a3{2*f+1}')
            if x: k(x)
            if q == 0: st(k, 3, 2)
            x = lg.wait(f'b{q}') if q >= NPRE else None
            if x: k(x)
            acc = vr(ACC(n), 4)
            a = vr(8 + 16 * p + 4 * f, 4)
            k(f'{MFMA} {acc}, {buf[q]}, {a}, {"0" if q < 5 and n in snd else acc}')
            free.extend(pend); pend = [buf[q]]
            reads(1)
        for n in snd: k(f'ds_write_b128 v95, {vr(ACC(n),4)} offset:{1024*n}')
        st(k, 3, 3)
        k('s_waitcnt lgkmcnt(0)\ns_barrier')
        st(k, 3, 4)
        for i, n in enumerate(own): k(f'ds_read_b128 {vr(8+4*i,4)}, v95 offset:{1024*n}')
        for i, n in enumerate(own):
            k(f's_waitcnt lgkmcnt({len(own)-1-i})')
            for r in range(4): k(f'v_add_f32 v{8+4*i+r}, v{8+4*i+r}, v{ACC(n)+r}')
            k(f'''v_cvt_pk_bf16_f32 v{24+2*i}, v{8+4*i}, v{9+4*i}
v_cvt_pk_bf16_f32 v{25+2*i}, v{10+4*i}, v{11+4*i}
buffer_store_dwordx2 {vr(24+2*i,2)}, v90, s[12:15], s47 offen offset:{32*i}''')
    role(0)
    k(f's_branch {FIN}\n{HI}:')
    role(1)
    k(f'{FIN}:')


G3PL = 'buffer_load_dword v39, v6, s[68:71], s49 offen sc1'


def g3x_gate(k, vm, tag, m):
    LP = k.label('lp'); LD = k.label('ld')
    chk = f'v_cmp_eq_u32 vcc, 0, v39\ns_and_b64 vcc, vcc, s[{m}:{m+1}]\ns_cbranch_scc0 {LD}'
    k(f'''{vm.wait(tag) or ''}
{chk}
s_mov_b32 s43, {SPIN}
{LP}:
{G3PL}
s_waitcnt vmcnt(0)
{chk}
s_sub_u32 s43, s43, 1
s_cmp_lg_u32 s43, 0
s_cbranch_scc1 {LP}
{LD}:''')


CLEAN = None


def g3x(k, opt, kh, vm):
    assert opt.get('hout') and opt.get('ain') and not G1S
    lg = Cnt('lgkmcnt', 15)
    KB = 1024

    def lds(c):
        if c < 60: return (100 + c) * KB
        if c < 92:
            w = (c - 60) // 4
            return (8 * (w & 3) + (0 if w >> 2 else 32) + c % 4) * KB
        if c < 124: return (64 + c - 92) * KB
        return (8 * ((c - 124) // 4) + 4 + c % 4) * KB
    AP = [32, 48, 0, 16]
    st(k, 9, 1)
    if kh: k(G3PL); vm.issue('ep1')
    k('''v_add_u32 v91, 0x10000, v3
v_add_u32 v92, 0x20000, v3''')
    free = [ar(64 + 4 * i, 4) for i in range(16)] + [vr(96 + 4 * i, 4) for i in range(7)] + [vr(8 + 4 * i, 4) for i in (0, 1, 2, 3, 4, 5, 12, 13)]
    free2 = [vr(8 + 4 * i, 4) for i in (6, 8, 9, 10, 11)] + [ar(24, 4), ar(28, 4)]
    own = [0, 1, 2] if kh == 0 else [3, 4]
    snd = [n for n in range(5) if n not in own]
    order = [(q, q % 5) for q in range(65)] + [(65 + i, n) for i, n in enumerate(snd + own)]
    buf = {}; nr = [0]; lim = [60]

    def sub(r, h):
        m = re.match(r'([av])\[(\d+):', r)
        return f'{m.group(1)}[{int(m.group(2))+2*h}:{int(m.group(2))+2*h+1}]'

    def reads(m):
        for _ in range(m):
            if nr[0] >= 70 or not free: return
            q, n = order[nr[0]]
            p, f = q // 20, (q % 20) // 5
            c = 40 * p + 10 * f + 5 * kh + n
            if c >= lim[0]: return
            r = buf[q] = free.pop(0)
            if p < 3:
                a = lds(c)
                k(f'ds_read_b128 {r}, v{[3, 91, 92][a >> 16]} offset:{a & 0xffff}'); lg.issue(f'b{q}')
            else:
                for h in range(2):
                    o = 122880 + ((2 * f + h) * 2 + kh) * 2560 + n * 512
                    a = lds(o // KB) + o % KB
                    k(f'ds_read_b64 {sub(r,h)}, v{[2, 93][a >> 16]} offset:{a & 0xffff}'); lg.issue(f'b{q}')
            nr[0] += 1
    ACC = lambda n: 64 + 4 * n
    pend = []

    def mfs(q0, q1, per, fill=None, fp=2):
        for q, n in order[q0:q1]:
            p, f = q // 20, (q % 20) // 5
            x = vm.wait(f'a{p}{f}' if p < 3 else f'a3{2*f+1}')
            if x: k(x)
            if q in (0, 20): st(k, 9, 4 + q // 20)
            if q == 40: st(k, 3, 2); st(k, 9, 9)
            x = lg.wait(f'b{q}')
            if x: k(x)
            acc = vr(ACC(n), 4)
            k(f'{MFMA} {acc}, {buf[q]}, {ar(AP[p]+4*f,4)}, {"0" if q < 5 else acc}')
            free.extend(pend); pend[:] = [buf[q]]
            reads(per)
            for _ in range(fp):
                if fill:
                    o = fill.pop(0)
                    o() if callable(o) else k(o)
    def xb(j): k(f'ds_write_b128 v7, {vr(40+4*j,4)} offset:{KB*j+(0 if kh else 32*KB)}'); lg.issue('x')
    def xd(j): k((vm.wait('d') or '') + f'\nds_write_b128 v{7 if kh else 38}, {ar(4*j,4)} offset:{KB*j+(4*KB if kh else 0)}'); lg.issue('x')
    XW = [lambda j=j: xb(j) for j in range(4)] + [lambda j=j: xd(j) for j in range(4 if kh else 8)]
    for _ in range(opt.get('g3w', [4, 4])[kh]): XW.pop(0)()
    fill = f'''v_mov_b32 v0, 2
v_lshrrev_b32 v1, 4, v3
v_add_u32 v93, 0x10000, v2
v_bfe_u32 v88, v1, 2, 2
v_and_b32 v89, 3, v1
v_lshl_add_u32 v88, v89, 8, v88
v_mul_u32_u24 v88, 1280, v88
v_lshrrev_b32 v89, 4, v1
v_lshl_add_u32 v90, v89, 3, v88
v_bfe_u32 v89, v1, 4, 1
v_lshl_add_u32 v95, v89, 5, v88
v_lshrrev_b32 v89, 5, v1
v_lshl_add_u32 v95, v89, 4, v95
s_mul_i32 s42, s37, 5120
s_add_u32 s42, s42, {100*KB}
v_add_u32 v94, s42, v3
s_lshl_b32 s47, s35, 3
s_and_b32 s43, s34, 1
s_lshl_b32 s43, s43, 2
s_add_u32 s47, s47, s43
s_and_b32 s43, s34, 2
s_lshl_b32 s43, s43, 9
s_add_u32 s47, s47, s43
s_mul_i32 s47, s47, 1280
s_mul_i32 s43, s36, 160
s_add_u32 s47, s47, s43'''.split('\n')
    for o in fill: k(o)
    srd_from(k, 12, 80, 81, 0, X_BYTES)
    reads(opt.get('g3r', 6))
    k((vm.wait('s') or '') + '\ns_mov_b64 exec, 1\nbuffer_store_dword v0, off, s[68:71], s48 sc1\ns_mov_b64 exec, -1'); vm.issue('f')
    st(k, 3, 1); st(k, 9, 2)
    if kh: g3x_gate(k, vm, 'ep1', 52)
    k('s_barrier')
    st(k, 9, 3)
    if not kh: CLEAN(k, 1, (1, 4, 88))
    for f in range(4):
        k(f'buffer_load_dwordx4 {ar(AP[1]+4*f,4)}, v3, s[16:19], s{63+f} offen offset:1024'); vm.issue(f'a1{f}')
    k(f'buffer_load_dwordx4 v[84:87], v95, s[12:15], s47 offen offset:{32*own[0]}'); vm.issue('h')
    if not kh: k(f'buffer_load_dwordx2 v[88:89], v90, s[12:15], s47 offen offset:64'); vm.issue('h')
    M1 = opt.get('g3m', 12); M2 = opt.get('g3m2', [20, 20])[kh]
    mfs(0, M1, 1, XW, 1)
    for o in XW: o()
    k((lg.wait('x') or '') + '\ns_barrier')
    free.extend(free2); lim[0] = 999
    mfs(M1, M2, 2)
    free.extend(pend); pend[:] = []
    reads(99)
    st(k, 9, 6)
    if kh == opt.get('g3pw', 0) >> 2:
        NP3 = k.label('np3')
        k(f's_cmp_lg_u32 s34, {opt.get("g3pw", 0)}\ns_cbranch_scc1 {NP3}')
        if opt.get('g3dd'): k(f's_sleep {opt["g3dd"]}')
        poll2(k, 'buffer_load_dword v39, v6, s[68:71], s54 offen sc1', 'v_cmp_ne_u32 vcc, 2, v39', 43, opt.get('g3sl', 0))
        k(f'{NP3}:')
    st(k, 9, 7)
    k('s_barrier')
    st(k, 9, 8); st(k, 3, 6); st(k, 0, 8)
    if kh: k(f's_mov_b32 s67, {BIG}')
    for p in (2, 3):
        for f in range(4):
            if opt.get('g3pr') and f % 2 == 0: k(f's_setprio {3-(2*p+f//2-4)}')
            if p < 3: k(f'buffer_load_dwordx4 {ar(AP[2]+4*f,4)}, v3, s[16:19], s{63+f} offen offset:2048')
            else: k(f'buffer_load_dwordx2 {ar(AP[3]+2*f,2)}, v2, s[16:19], s{63+f+(f==3 and kh)} offen offset:3072')
            vm.issue(f'a{p}{f}')
    mfs(M2, 40, 2)
    k((vm.wait('h') or '') + '\nv_permlane16_swap_b32 v84, v86\nv_permlane16_swap_b32 v85, v87')
    for i, n in enumerate(own):
        k(f'''v_lshlrev_b32 v36, 16, v{84+2*i}
v_and_b32 v{84+2*i}, 0xffff0000, v{84+2*i}
v_lshlrev_b32 v37, 16, v{85+2*i}
v_and_b32 v{85+2*i}, 0xffff0000, v{85+2*i}
v_add_f32 v{ACC(n)}, v{ACC(n)}, v36
v_add_f32 v{ACC(n)+1}, v{ACC(n)+1}, v{84+2*i}
v_add_f32 v{ACC(n)+2}, v{ACC(n)+2}, v37
v_add_f32 v{ACC(n)+3}, v{ACC(n)+3}, v{85+2*i}''')
    mfs(40, 70, 2)
    for n in snd: k(f'ds_write_b128 v94, {vr(ACC(n),4)} offset:{KB*n}')
    st(k, 3, 3)
    k('s_waitcnt lgkmcnt(0)\ns_barrier')
    st(k, 3, 4)
    for i, n in enumerate(own): k(f'ds_read_b128 {vr(8+4*i,4)}, v94 offset:{KB*n}')
    for i, n in enumerate(own):
        k(f's_waitcnt lgkmcnt({len(own)-1-i})')
        for r in range(4): k(f'v_add_f32 v{8+4*i+r}, v{8+4*i+r}, v{ACC(n)+r}')
        k(f'''v_cvt_pk_bf16_f32 v{24+2*i}, v{8+4*i}, v{9+4*i}
v_cvt_pk_bf16_f32 v{25+2*i}, v{10+4*i}, v{11+4*i}''')
        if i == 1: k(f'''v_permlane16_swap_b32 v24, v26
v_permlane16_swap_b32 v25, v27
buffer_store_dwordx4 v[24:27], v95, s[12:15], s47 offen offset:{32*own[0]}''')
        if i == 2: k(f'buffer_store_dwordx2 v[28:29], v90, s[12:15], s47 offen offset:{32*n}')


def ph_g3v(k, opt):
    vm = Cnt('vmcnt', 63); lg = Cnt('lgkmcnt', 15)
    V2 = opt['g3v'] == 2
    AF = G3AF2 if V2 else (lambda tt, p, n=4: ar(G3AF(tt, p), n))
    AC = G3ACC2 if V2 else (lambda tt, n: vr(G3ACC(tt, n), 4))
    st(k, 3, 6); st(k, 0, 8)
    for tt in range(4):
        k(f'buffer_load_dwordx4 {AF(tt,2)}, v3, s[16:19], s{63+tt} offen offset:2048'); vm.issue(f'a{tt}2')
        k(f's_add_u32 s49, s{63+tt}, s48\nbuffer_load_dwordx2 {AF(tt,3,2)}, v2, s[16:19], s49 offen offset:3072'); vm.issue(f'a{tt}3')
    for q in range(3):
        k(f'v_lshlrev_b32 v{110+2*q}, 16, v{104+2*q}\nv_and_b32 v{104+2*q}, 0xffff0000, v{104+2*q}')
    pend = []
    for tt in range(4):
        for p in (2, 3):
            x = vm.wait(f'a{tt}{p}')
            if x: k(x)
            if tt == 0 and p == 2: st(k, 3, 7)
            for n in range(5):
                acc = AC(tt, n)
                if p < 3: k(f'{MFMA} {acc}, {ar(20*p+4*n,4)}, {AF(tt,p)}, {acc}')
                else: k(f'{MF16} {acc}, {ar(60+2*n,2)}, {AF(tt,3,2)}, {acc}')
                if pend and n % 2 == p % 2: k(pend.pop(0))
        for n in range(5):
            pend.append(f'ds_write_b128 v{88+5*(tt>>1)+n}, {AC(tt,n)} offset:{40960*(tt&1)}')
    for o in pend: k(o)
    st(k, 3, 3)
    k('s_waitcnt lgkmcnt(0)\ns_barrier')
    st(k, 3, 4)
    for p in range(3):
        for s in range(8):
            k(f'ds_read_b128 {vr(8+32*p+4*s,4)}, v{116+p} offset:{1024*s}'); lg.issue(f'r{p}{s}')
    assert opt.get('lean', 0) & 16
    for p in range(3):
        a = 8 + 32 * p
        for s in (0, 2, 4, 6):
            x = lg.wait(f'r{p}{s+1}')
            if x: k(x)
            for h in range(2): k(f'v_pk_add_f32 {vr(a+4*s+2*h,2)}, {vr(a+4*s+2*h,2)}, {vr(a+4*s+4+2*h,2)}')
            if s in (2, 6):
                for h in range(2): k(f'v_pk_add_f32 {vr(a+4*s-8+2*h,2)}, {vr(a+4*s-8+2*h,2)}, {vr(a+4*s+2*h,2)}')
        for h in range(2): k(f'v_pk_add_f32 {vr(a+2*h,2)}, {vr(a+2*h,2)}, {vr(a+16+2*h,2)}')
        k(f'''v_lshlrev_b32 v{a+8}, 16, v{105+2*p}
v_and_b32 v{a+9}, 0xffff0000, v{105+2*p}
v_add_f32 v{a}, v{a}, v{110+2*p}
v_add_f32 v{a+1}, v{a+1}, v{104+2*p}
v_pk_add_f32 {vr(a+2,2)}, {vr(a+2,2)}, {vr(a+8,2)}
v_cvt_pk_bf16_f32 v{a+4}, v{a}, v{a+1}
v_cvt_pk_bf16_f32 v{a+5}, v{a+2}, v{a+3}
buffer_store_dwordx2 {vr(a+4,2)}, v{120+p}, s[12:15], s47 offen''')


def g3s_ld(tt, p, fl=''):
    if p < 2: return f'buffer_load_dwordx4 {vr(56+8*tt+4*p,4)}, v3, s[16:19], s{61+(tt>>1)} offen offset:{1024*p}{fl}' if not (tt & 1) else \
        f'buffer_load_dwordx4 {vr(56+8*tt+4*p,4)}, v88, s[16:19], s{61+(tt>>1)} offen offset:{1024*p}{fl}'
    if p == 2: return f'buffer_load_dwordx4 {vr(8+4*tt,4)}, v{88 if tt & 1 else 3}, s[16:19], s{61+(tt>>1)} offen offset:2048{fl}'
    return f'buffer_load_dwordx2 {vr(24+2*tt,2)}, v{89 if tt & 1 else 2}, s[16:19], s{63+(tt>>1)} offen offset:3072{fl}'


def g3s_early():
    ops = [g3s_ld(tt, p) for p in range(2) for tt in range(4)]
    ops[0] = 'v_add_u32 v88, 4096, v3\nv_add_u32 v89, 4096, v2\n' + ops[0]
    return ops


def chk_max(k, regs, t):
    regs = list(regs)
    acc = [None, None]; i = 0
    while regs:
        j = i & 1; i += 1
        if acc[j] is None:
            if len(regs) >= 3: k(f'v_max3_u32 v{t+j}, v{regs[0]}, v{regs[1]}, v{regs[2]}'); regs = regs[3:]
            elif len(regs) == 2: k(f'v_max_u32 v{t+j}, v{regs[0]}, v{regs[1]}'); regs = []
            else: k(f'v_mov_b32 v{t+j}, v{regs[0]}'); regs = []
            acc[j] = 1
        elif len(regs) >= 2: k(f'v_max3_u32 v{t+j}, v{t+j}, v{regs[0]}, v{regs[1]}'); regs = regs[2:]
        else: k(f'v_max_u32 v{t+j}, v{t+j}, v{regs[0]}'); regs = []
    if acc[1]: k(f'v_max_u32 v{t}, v{t}, v{t+1}')
    k(f'v_cmp_eq_u32 vcc, -1, v{t}')


def ph_g3s(k, opt, na):
    vm = Cnt('vmcnt', 63); lg = Cnt('lgkmcnt', 15)
    if opt.get('g3e', 0) == 3:
        for o in g3s_early(): k(o)
        na = 0
    vm.issue('e')
    for _ in range(na): vm.issue('s')
    srd_from(k, 12, 80, 81, 0, X_BYTES) if opt.get('hout') else srd_from(k, 12, 40, 41, WS_H, X_BYTES)
    LW = 90
    k(f'''s_cmp_eq_u32 s34, 7
s_cselect_b32 s63, {BIG}, s61
s_cselect_b32 s64, {BIG}, s62
v_lshrrev_b32 v1, 4, v3
v_and_b32 v6, 15, v1
v_lshrrev_b32 v7, 4, v1
s_lshr_b32 s45, s34, 1
s_mul_i32 s45, s45, 40960
s_and_b32 s46, s34, 1
s_lshl_b32 s46, s46, 3''')
    I2 = opt.get('g3i', [0, 20])
    if I2[0] < 0:
        for tt in range(4): k(g3s_ld(tt, 2, ' sc1')); vm.issue('p2')
    for p in range(3):
        k(f'''v_add_u32 v100, {64*p}, v1
v_mul_u32_u24 v101, 3277, v100
v_lshrrev_b32 v101, 16, v101
v_mul_u32_u24 v102, 20, v101
v_sub_u32 v102, v100, v102
v_add_u32 v101, s46, v101
v_add_u32 v103, v101, v102
v_and_b32 v103, 15, v103
v_lshlrev_b32 v103, 4, v103
v_lshrrev_b32 v110, 2, v102
v_lshl_add_u32 v103, v110, 13, v103
v_and_b32 v110, 3, v102
v_lshl_add_u32 v103, v110, 8, v103
v_add_u32 v{116+p}, s45, v103
v_lshrrev_b32 v103, 2, v101
v_and_b32 v110, 3, v101
v_lshl_add_u32 v103, v110, 8, v103
v_mul_u32_u24 v103, 1280, v103
v_lshl_add_u32 v{120+p}, v102, 3, v103''')
    k(f'''v_mov_b32 v100, 0x7fffffff
v_cmp_gt_u32 vcc, 32, v1
v_cndmask_b32 v122, v100, v122, vcc
s_lshl_b32 s47, s35, 3
s_and_b32 s43, s34, 2
s_lshl_b32 s43, s43, 1
s_add_u32 s47, s47, s43
s_and_b32 s43, s34, 4
s_lshl_b32 s43, s43, 8
s_add_u32 s47, s47, s43
s_mul_i32 s47, s47, 1280
s_mul_i32 s43, s36, 160
s_add_u32 s47, s47, s43''')
    for p in range(3):
        k(f'buffer_load_dwordx2 {vr(104+2*p,2)}, v{120+p}, s[12:15], s47 offen'); vm.issue('h')
    k(f'''s_lshl_b32 s43, s34, 10
v_add_u32 v100, v6, v7
v_lshlrev_b32 v101, 8, v7
v_add_u32 v101, s43, v101''')
    for n in range(5):
        k(f'''v_add_u32 v102, {4*n}, v100
v_and_b32 v102, 15, v102
v_lshl_add_u32 v102, v102, 4, v101
v_add_u32 v{LW+n}, {8192*n}, v102
v_add_u32 v{LW+5+n}, {8192*n+81920}, v102''')
    srd_from(k, 8, 80, 81, 0, X_BYTES)

    def ACC(tt, n):
        i = 5 * tt + n
        return ar(72 + 4 * i, 4) if i < 14 else vr(32 + 4 * (i - 14), 4)

    def gate(tag, regs, lds, sl):
        LP = k.label('lp'); LD = k.label('ld')
        k(vm.wait(tag) or '')
        chk_max(k, regs, 100)
        k(f's_cbranch_vccz {LD}\ns_mov_b32 s43, {SPIN}\n{LP}:')
        if sl: k(f's_sleep {sl}')
        for o in lds: k(o)
        k('s_waitcnt vmcnt(0)')
        chk_max(k, regs, 100)
        k(f's_cbranch_vccz {LD}\ns_sub_u32 s43, s43, 1\ns_cmp_lg_u32 s43, 0\ns_cbranch_scc1 {LP}\n{LD}:')
    st(k, 3, 1); st(k, 0, 8)
    gate('e', range(56, 88), [g3s_ld(tt, p, ' sc1') for p in range(2) for tt in range(4)], 0)
    st(k, 3, 2)
    i = 0
    for p in range(3):
        if p == 2:
            st(k, 3, 5)
            gate('p2', range(8, 24), [g3s_ld(tt, 2, ' sc1') for tt in range(4)], opt.get('g3r', 0))
            st(k, 3, 6)
            k('s_barrier')
        for tt in range(4):
            for n in range(5):
                if i == I2[0]:
                    for t2 in range(4): k(g3s_ld(t2, 2, ' sc1')); vm.issue('p2')
                if i == I2[1]:
                    for t2 in range(4): k(g3s_ld(t2, 3, ' sc1')); vm.issue('p3')
                acc = ACC(tt, n)
                b = vr(56 + 8 * tt + 4 * p, 4) if p < 2 else vr(8 + 4 * tt, 4)
                k(f'{MFMA} {acc}, {ar(20*p+4*n,4)}, {b}, {"0" if p == 0 else acc}')
                i += 1
    st(k, 3, 7)
    gate('p3', range(24, 32), [g3s_ld(tt, 3, ' sc1') for tt in range(4)], opt.get('g3r', 0))
    st(k, 3, 8)
    pend = []
    for tt in range(4):
        for n in range(5):
            acc = ACC(tt, n)
            k(f'{MF16} {acc}, {ar(60+2*n,2)}, {vr(24+2*tt,2)}, {acc}')
            pend.append(f'ds_write_b128 v{LW+5*(tt>>1)+n}, {acc} offset:{40960*(tt&1)}')
            if len(pend) > 3: k(pend.pop(0))
    for o in pend: k(o)
    st(k, 3, 3)
    k('s_waitcnt lgkmcnt(0)\ns_barrier')
    st(k, 3, 4)
    for p in range(3):
        for s in range(8):
            k(f'ds_read_b128 {vr(8+32*p+4*s,4)}, v{116+p} offset:{1024*s}'); lg.issue(f'r{p}{s}')
        if p == 0:
            for q in range(3):
                k(f'v_lshlrev_b32 v{110+2*q}, 16, v{104+2*q}\nv_and_b32 v{104+2*q}, 0xffff0000, v{104+2*q}')
    for p in range(3):
        a = 8 + 32 * p
        for s in (0, 2, 4, 6):
            x = lg.wait(f'r{p}{s+1}')
            if x: k(x)
            for h in range(2): k(f'v_pk_add_f32 {vr(a+4*s+2*h,2)}, {vr(a+4*s+2*h,2)}, {vr(a+4*s+4+2*h,2)}')
            if s in (2, 6):
                for h in range(2): k(f'v_pk_add_f32 {vr(a+4*s-8+2*h,2)}, {vr(a+4*s-8+2*h,2)}, {vr(a+4*s+2*h,2)}')
        for h in range(2): k(f'v_pk_add_f32 {vr(a+2*h,2)}, {vr(a+2*h,2)}, {vr(a+16+2*h,2)}')
        if opt.get('lean', 0) & 16: k(f'''v_lshlrev_b32 v{a+8}, 16, v{105+2*p}
v_and_b32 v{a+9}, 0xffff0000, v{105+2*p}''')
        else: k(f'''v_cvt_pk_bf16_f32 v{a+4}, v{a}, v{a+1}
v_cvt_pk_bf16_f32 v{a+5}, v{a+2}, v{a+3}
v_lshlrev_b32 v{a+8}, 16, v{105+2*p}
v_and_b32 v{a+9}, 0xffff0000, v{105+2*p}
v_lshlrev_b32 v{a}, 16, v{a+4}
v_and_b32 v{a+1}, 0xffff0000, v{a+4}
v_lshlrev_b32 v{a+2}, 16, v{a+5}
v_and_b32 v{a+3}, 0xffff0000, v{a+5}''')
        k(f'''v_add_f32 v{a}, v{a}, v{110+2*p}
v_add_f32 v{a+1}, v{a+1}, v{104+2*p}
v_pk_add_f32 {vr(a+2,2)}, {vr(a+2,2)}, {vr(a+8,2)}
v_cvt_pk_bf16_f32 v{a+4}, v{a}, v{a+1}
v_cvt_pk_bf16_f32 v{a+5}, v{a+2}, v{a+3}
buffer_store_dwordx2 {vr(a+4,2)}, v{120+p}, s[8:11], s47 offen''')


def gen_g3(opt):
    k = Kern('k4_kernel', 256, 512, 163840, nvgpr=128, nagpr=128)
    END = k.label('end')
    k(f'''s_cmp_ge_u32 s2, 256
s_cbranch_scc1 {END}
s_load_dwordx2 s[40:41], s[0:1], 80
s_load_dwordx2 s[80:81], s[0:1], 64''')
    k.stamp(True)
    map_g2(k)
    k(f'''v_lshrrev_b32 v1, 6, v0
v_and_b32 v2, 63, v0
v_readfirstlane_b32 s34, v1
v_lshlrev_b32 v3, 4, v2
v_lshlrev_b32 v2, 3, v2
s_waitcnt lgkmcnt(0)''')
    g3_wo_setup(k)
    for o in g3_wo_ops(): k(o)
    ph_g3(k, opt, False)
    k.finish(END)
    return k


def wq_role(k, base, END, half=None, fl='', sl=0):
    n = 256 if half is None else 128
    k(f'''s_sub_u32 s33, s2, {base}
s_cmp_ge_u32 s33, {n}
s_cbranch_scc1 {END}
s_load_dwordx2 s[4:5], s[0:1], 40
s_load_dwordx2 s[40:41], s[0:1], 80
{f"s_add_u32 s33, s33, 128" if half else ""}
v_lshrrev_b32 v1, 6, v0
v_and_b32 v2, 63, v0
v_readfirstlane_b32 s34, v1
v_lshlrev_b32 v3, 4, v2
v_lshrrev_b32 v4, 4, v2
v_bfe_u32 v5, v2, 2, 2
v_and_b32 v6, 3, v2
v_lshlrev_b32 v6, 4, v6
v_lshl_add_u32 v6, v4, 12, v6
v_lshl_add_u32 v6, v5, 20, v6
v_and_b32 v7, 15, v2
v_lshlrev_b32 v7, 6, v7
v_lshl_add_u32 v7, v4, 10, v7
s_lshl_b32 s39, s34, 12
v_add_u32 v7, s39, v7
s_bfe_u32 s35, s33, 0x20001
s_lshl_b32 s35, s35, 3
s_bfe_u32 s36, s33, 0x30003
s_add_u32 s35, s35, s36
s_lshr_b32 s36, s33, 6
s_and_b32 s37, s33, 1
s_lshl_b32 s42, s35, 15
s_and_b32 s43, s36, 1
s_lshl_b32 s43, s43, 14
s_add_u32 s42, s42, s43
s_lshr_b32 s43, s36, 1
s_lshl_b32 s43, s43, 22
s_add_u32 s42, s42, s43
s_lshl_b32 s43, s34, 6
s_add_u32 s42, s42, s43
s_lshl_b32 s43, s37, 11
s_add_u32 s42, s42, s43
s_lshl_b32 s44, s35, 3
s_add_u32 s44, s44, s34
s_lshl_b32 s44, s44, 15
s_lshl_b32 s43, s37, 12
s_add_u32 s44, s44, s43
s_lshl_b32 s43, s36, 10
s_add_u32 s44, s44, s43
s_waitcnt lgkmcnt(0)''')
    srd_from(k, 4, 4, 5, 0, 2048 * 4096)
    if sl: k(f's_sleep {sl}')
    M = gen_fft.OPT.get('wqm', 0)
    if M & 4:
        k('s_lshl_b32 s42, s33, 3\ns_add_u32 s42, s42, s34\ns_lshl_b32 s42, s42, 12')
        for g in range(4):
            k(f's_add_u32 m0, s39, 0')
            k(f'buffer_load_dwordx4 v3, s[4:7], s42 offen offset:{1024*g}{fl} lds')
    for g in range(4):
        if M & 6: break
        k(f's_add_u32 m0, s39, {512*g}')
        k(f'buffer_load_dwordx4 v6, s[4:7], s42 offen offset:{512*g}{fl} lds')
    srd_from(k, 8, 40, 41, WS_WS, WSP_BYTES)
    k('s_waitcnt vmcnt(0)')
    for c in range(4): k(f'ds_read_b128 {vr(8+4*c,4)}, v7 offset:{16*c}')
    for c in range(4):
        k(f's_waitcnt lgkmcnt({3-c})')
        if M & 1: continue
        k(f'buffer_store_dwordx4 {vr(8+4*c,4)}, v3, s[8:11], s44 offen{" nt" if M & 8 else ""}{" ; sc1" if M & 16 else " sc1"}')
        if c < 3: k('s_add_u32 s44, s44, 8192')
    k(f's_endpgm')
```

```python
from gen10 import *
import gen10
from gen_fft import code_srd

FT = 0x20000
FP = 0x22000
MAGIC = 0xA7C3E591


def ph_k01(k, opt, wb):
    XP = 1280; EX0 = 10240; EXP = 2576
    P = 1040; W0 = 16 * P; TB1 = 32 * P; TB2 = TB1 + 8192; TB0 = TB2 + 10240; CNT = TB1 - 16
    NT2 = 9 if opt.get('lean', 0) & 1 else 10
    opt['TB2'] = TB2
    PREPB = k.label('prepb'); CS = k.label('cs'); NCP = k.label('ncp'); NW = k.label('nw'); FX = k.label('fx')
    HDR = """s_sub_u32 s33, s2, 168
s_mul_i32 s33, s33, 5
s_add_u32 s33, s33, s34
s_sub_u32 s33, s33, 3
s_mov_b32 s47, s32
"""
    IDLE = k.label('idle'); JOIN = k.label('join'); J1 = k.label('j1'); TAIL = k.label('tail'); PD = k.label('pd'); NF = k.label('nf')
    l0 = len(k.lines)
    k(f'''s_load_dwordx2 s[4:5], s[0:1], 0
s_load_dwordx2 s[40:41], s[0:1], 80
s_load_dwordx4 s[52:55], s[0:1], 8
s_load_dwordx2 s[62:63], s[0:1], 32
s_load_dwordx2 s[64:65], s[0:1], 56
s_load_dwordx2 s[72:73], s[0:1], 40''')
    tab_srd(k, 12)
    k(f'''s_and_b32 s33, s2, 7
s_lshl_b32 s3, s33, 5
s_lshr_b32 s36, s2, 3
s_add_u32 s3, s3, s36
v_lshrrev_b32 v1, 6, v0
v_and_b32 v2, 63, v0
v_readfirstlane_b32 s34, v1
v_lshlrev_b32 v3, 4, v2
''')
    CP0 = opt.get('cp0', 2)
    if CP0:
        k(f's_cmp_ge_u32 s34, {CP0}\ns_cbranch_scc1 {NCP}')
        code_srd(k, 68, CS, 'code_end')
        k(f'''v_lshlrev_b32 v100, 7, v2
s_lshl_b32 s33, s34, 13
buffer_load_ubyte v103, v100, s[68:71], s33 offen
{NCP}:''')
    k(f'''{CS}:
s_lshl_b32 s38, s34, 10
s_add_u32 m0, s38, {TB0}
buffer_load_dwordx4 v3, s[12:15], s38 offen lds
s_lshl_b32 s35, s34, 8
s_add_u32 s35, s35, s3
s_mul_i32 s35, s35, 1280
v_lshlrev_b32 v58, 3, v2
v_lshlrev_b32 v59, 2, v2
v_and_b32 v50, 15, v2
v_lshrrev_b32 v51, 4, v2
s_waitcnt lgkmcnt(0)''')
    srd_from(k, 4, 4, 5, 0, X_BYTES)
    k(f'''buffer_load_dwordx2 v[4:5], v58, s[4:7], s35 offen
buffer_load_dwordx2 v[6:7], v58, s[4:7], s35 offen offset:512
buffer_load_dword v8, v59, s[4:7], s35 offen offset:1024''')
    vm = Cnt('vmcnt', 63); vm.issue('x')
    srd_from(k, 8, 40, 41, WS_T, TU_BYTES)
    PA = k.label('pa'); PB = k.label('pb'); PL = opt.get('pl', 6)
    PAX = opt.get('pax', 0)
    if PAX: PL = 3
    k(f'''s_mul_i32 s32, s34, {14*1024}
s_add_u32 s32, s32, {31*1024}
s_min_u32 s32, s32, {126*1024}
s_add_u32 s32, s32, {BB}
s_cmp_ge_u32 s2, 168
s_cselect_b32 s100, 3, 8
s_cselect_b32 s101, {PL}, 8''')
    if not PAX: k(f's_cmp_lt_u32 s34, s101\ns_cbranch_scc1 {PA}')

    def prepa():
        i0 = len(k.lines)
        prep_inl(k, 'A', 0, None, hdr=HDR)
        for j in range(i0, len(k.lines)):
            l = re.sub(r'\bv10([456])\b', lambda m: f'v{96+int(m.group(1))-4}', k.lines[j])
            if l.startswith('buffer_load') and opt.get('ntm', 0) & 1: l = l[:-4] + ' nt lds'
            if PAX:
                mp = dict(s16='s42', s17='s43', s18='s44', s19='s45', s24='s46', s25='s47', s26='s48', s27='s49', s28='s60', s29='s61', s30='s66', s31='s67', s22='s58', s23='s59')
                l = re.sub(r'\b(s\d+)\b', lambda m: mp.get(m.group(1), m.group(1)), l).replace('s[20:23]', 's[56:59]').replace('s[20:21]', 's[56:57]')
            k.lines[j] = l
    if not PAX:
        prepa()
        k(f'{PA}:')
    if opt.get('twe', 1):
        k(f'''s_lshl_b32 s33, s3, 6
s_add_u32 s33, s33, 32768
s_load_dwordx16 s[16:31], s[12:13], s33
s_load_dwordx2 s[80:81], s[0:1], 64''')

    def late():
        k(f'''s_add_u32 m0, s38, {TB1}
s_add_u32 s37, s38, 0x2000
buffer_load_dwordx4 v3, s[12:15], s37 offen lds
s_min_u32 s39, s34, 4
s_lshl_b32 s39, s39, 11
s_add_u32 m0, s39, {TB2}
s_add_u32 s37, s39, 0x4000
buffer_load_dwordx4 v3, s[12:15], s37 offen lds
buffer_load_dwordx4 v3, s[12:15], s37 offen offset:1024 lds''')
        for _ in range(3): vm.issue('t')

    LT = opt.get('flt', 0)
    if LT == 0: late()
    w_setup(k, 46, 47); w_vaddr(k, 124, 125)
    if opt.get('wd4'): k('s_cmp_ge_u32 s34, 4\ns_cselect_b32 s74, 0, s74')
    WT0 = opt.get('wtn', 0); WP = opt.get('wp', 0)

    def wt0():
        k(f'''s_andn2_b32 s46, s82, 0xfff
s_and_b32 s47, s34, 1
s_lshl_b32 s47, s47, 13
s_add_u32 s46, s46, s47
s_cmp_ge_u32 s34, 6
s_cselect_b32 s46, s46, {BIG}
v_lshlrev_b32 v100, 7, v2''')
        for n in range(WT0):
            k('buffer_load_ubyte v123, v100, s[72:75], s46 offen'); vm.issue('c')
            if n < WT0 - 1: k('s_add_u32 s46, s46, 0x100000')
    if WT0 and WP == 0: wt0()
    q = Bulk(k, wb.ops[:32 - opt.get('wdf', 0)]); wb.ops = []
    WD5 = opt.get('wd5', 0)
    if WD5:
        CUT = 's_mov_b32 s78, s50\ns_mov_b32 s79, s51\ns_cmp_ge_u32 s34, s101\ns_cselect_b32 s74, 0, s74'
        if WD5 < 32: q.ops[31 - WD5] += '\n' + CUT
    k(f'''s_mul_i32 s39, s34, {XP}
v_add_u32 v62, s32, v58
v_add_u32 v63, s32, v59
v_add_u32 v58, s39, v58
v_add_u32 v59, s39, v59
v_lshrrev_b32 v52, 2, v50
v_and_b32 v53, 3, v50
v_lshl_add_u32 v54, v51, 3, v52
v_add_u32 v55, 4, v54
v_subrev_u32 v56, 20, v54
v_min_u32 v54, v54, v56
v_subrev_u32 v56, 20, v55
v_min_u32 v55, v55, v56
v_lshlrev_b32 v53, 3, v53
v_lshl_add_u32 v54, v54, 6, v53
v_lshl_add_u32 v55, v55, 6, v53
v_add_u32 v54, s39, v54
v_add_u32 v55, s39, v55
s_mul_i32 s42, s34, {EXP}
s_add_u32 s42, s42, {EX0}
v_mul_u32_u24 v56, 80, v51
v_add_u32 v57, v56, v50
v_lshlrev_b32 v57, 3, v57
v_add_u32 v60, s42, v57
v_sub_u32 v61, {8*260}, v57
v_add_u32 v61, s42, v61
v_mov_b32 v126, {CNT}
v_mov_b32 v127, 0
ds_write_b32 v126, v127''')
    SB = opt.get('sb', 1)

    def vw2(n):
        L = k.label('pb')
        k(f'''s_cmp_lt_u32 s34, s101
s_cbranch_scc1 {L}
s_waitcnt vmcnt({n+8})
s_branch {L}x
{L}:
s_waitcnt vmcnt({n})
{L}x:''')

    def xwait():
        vw2(len(vm.tags) - 1)
        vm.done = 1
        st(k, 7, 1); st(k, 5, 1)
        if opt.get('xs'):
            k('''ds_write_b64 v62, v[4:5] offset:8192
ds_write_b64 v62, v[6:7] offset:8704
ds_write_b32 v63, v8 offset:9216''')
    if SB and PAX: k(f's_waitcnt vmcnt({len(vm.tags) + 2})')
    elif SB: vw2(len(vm.tags) + 2)
    else: xwait()
    k('s_barrier')
    for i in range(8): k(f'ds_read_b128 {vr(64+4*i,4)}, v3 offset:{TB0+1024*i}')
    if not opt.get('twe', 1):
        k(f'''s_lshl_b32 s33, s3, 6
s_add_u32 s33, s33, 32768
s_load_dwordx16 s[16:31], s[12:13], s33
s_load_dwordx2 s[80:81], s[0:1], 64''')
    if LT == 1: late()
    srd_from(k, 56, 40, 41, WS_FL, 0x80000)
    k(f'''s_lshl_b32 s33, s2, 10
s_cmp_lt_u32 s2, 128
s_cselect_b32 s43, s33, {BIG}
s_add_u32 s33, s33, 0x40000
s_cmp_eq_u32 s34, 1
s_cselect_b32 s33, s33, {BIG}
s_cselect_b32 s44, -1, 0
s_cmp_eq_u32 s34, 0
s_cselect_b32 s33, s43, s33
v_mov_b32 v120, s44
v_mov_b32 v121, s44
v_mov_b32 v122, s44
v_mov_b32 v123, s44
buffer_store_dwordx4 v[120:123], v3, s[56:59], s33 offen''')
    IP = opt.get('ip', 0)
    if not IP: k(f'''s_mul_i32 s33, s3, {8*TP}
s_add_u32 s33, s33, {WS_U}
s_add_u32 s56, s40, s33
s_addc_u32 s57, s41, 0
s_mov_b32 s58, {8*TP}
v_mov_b32 v116, -1
v_mov_b32 v117, -1
v_mov_b32 v118, -1
v_mov_b32 v119, -1
v_lshlrev_b32 v125, 4, v0
s_movk_i32 s33, 0x2000
buffer_store_dwordx4 v[116:119], v125, s[56:59], 0 offen
buffer_store_dwordx4 v[116:119], v125, s[56:59], s33 offen''')
    for _ in range(1 if IP else 3): vm.issue('f')
    if not opt.get('nopf'):
        code_srd(k, 68, CS, 'code_end')
        k(f'''s_cmp_ge_u32 s34, 6
s_cselect_b32 s70, s70, 0
s_bfe_u32 s33, s2, 0x30003
s_lshl_b32 s33, s33, 13
s_and_b32 s43, s34, 1
s_lshl_b32 s43, s43, 16
s_add_u32 s33, s33, s43
s_add_u32 s33, s33, {8192*CP0}
v_lshlrev_b32 v100, 7, v2
buffer_load_ubyte v122, v100, s[68:71], s33 offen''')
        vm.issue('c')
    k(f'''s_bitcmp1_b32 s34, 0
s_cselect_b32 s68, s54, s52
s_cselect_b32 s69, s55, s53
s_cmp_ge_u32 s34, 6
s_cselect_b32 s70, {0 if opt.get('xT') else 2048*642}, 0
s_mov_b32 s71, 0x00020000
v_and_b32 v100, 7, v2
v_lshlrev_b32 v100, 7, v100
v_min_u32 v100, 671, v100
v_lshrrev_b32 v102, 3, v2
v_mul_u32_u24 v102, {8*642}, v102
v_add_u32 v100, v100, v102
s_and_b32 s33, s2, 7
s_lshr_b32 s37, s2, 3
s_lshl_b32 s37, s37, 6
s_add_u32 s33, s33, s37
s_mul_i32 s33, s33, 642
buffer_load_ubyte v123, v100, s[68:71], s33 offen''')
    vm.issue('c')
    if WT0 and WP == 1: wt0()
    if PAX == 1:
        k(f's_cmp_lt_u32 s34, s101\ns_cbranch_scc1 {PA}')
        prepa()
        k(f'{PA}:')
    if SB: xwait()
    if WT0 and WP == 2: wt0()
    i0 = len(k.lines)
    for i in range(5):
        k(f'v_lshlrev_b32 v{10+2*i}, 16, v{4+i}\nv_and_b32 v{11+2*i}, 0xffff0000, v{4+i}')
    k('''v_pk_add_f32 v[20:21], v[10:11], v[12:13]
v_pk_mul_f32 v[22:23], v[10:11], v[10:11]
v_pk_add_f32 v[24:25], v[14:15], v[16:17]
v_pk_fma_f32 v[22:23], v[12:13], v[12:13], v[22:23]
v_pk_add_f32 v[20:21], v[20:21], v[18:19]
v_pk_fma_f32 v[22:23], v[14:15], v[14:15], v[22:23]
v_pk_add_f32 v[20:21], v[20:21], v[24:25]
v_pk_fma_f32 v[22:23], v[16:17], v[16:17], v[22:23]
v_pk_fma_f32 v[22:23], v[18:19], v[18:19], v[22:23]
v_add_f32 v20, v20, v21
v_add_f32 v22, v22, v23''')
    wave_reduce2(k, 20, 22, 36, 37)
    ln_stats(k, 36, 37, 640, 20, 22, 24)
    (ln_apply2 if opt.get('lean', 0) & 2 else ln_apply)(k, 10, 10, 20, 22, 4)
    k('''ds_write_b64 v58, v[4:5]
ds_write_b64 v58, v[6:7] offset:512
ds_write_b32 v59, v8 offset:1024
s_waitcnt lgkmcnt(0)
ds_read_b64_tr_b16 v[4:5], v54
ds_read_b64_tr_b16 v[6:7], v55
ds_read_b64_tr_b16 v[8:9], v54 offset:32
ds_read_b64_tr_b16 v[10:11], v55 offset:32
s_waitcnt lgkmcnt(2)''')
    k(f'''{MFMA} v[12:15], v[4:7], v[64:67], 0
{MFMA} v[16:19], v[4:7], v[68:71], 0
s_waitcnt lgkmcnt(0)
{MFMA} v[20:23], v[8:11], v[64:67], 0
{MFMA} v[24:27], v[8:11], v[68:71], 0''')
    cmul_planar(k, 12, 16, 72, 76, 28, 32, 44)
    cmul_planar(k, 20, 24, 80, 84, 36, 40, 44)
    for t in range(2):
        for h in range(2):
            re_ = 28 + 8 * t + 2 * h; im = 32 + 8 * t + 2 * h; o = 2 * t + h
            k(f'''v_cvt_pk_bf16_f32 v{4+o}, v{re_}, v{re_+1}
v_cvt_pk_bf16_f32 v{8+o}, v{im}, v{im+1}
v_cvt_pk_bf16_f32 v{12+o}, -v{im}, -v{im+1}
v_cvt_pk_bf16_f32 v{16+o}, v{re_}, -v{re_+1}
v_cvt_pk_bf16_f32 v{20+o}, v{im}, -v{im+1}
v_cvt_pk_bf16_f32 v{24+o}, -v{im}, v{im+1}''')
    k(f'''{MFMA} v[28:31], v[88:91], v[4:7], 0
{MFMA} v[32:35], v[92:95], v[4:7], 0
{MFMA} v[36:39], v[88:91], v[16:19], 0
{MFMA} v[40:43], v[92:95], v[16:19], 0
{MFMA} v[28:31], v[92:95], v[12:15], v[28:31]
{MFMA} v[32:35], v[88:91], v[8:11], v[32:35]
{MFMA} v[36:39], v[92:95], v[24:27], v[36:39]
{MFMA} v[40:43], v[88:91], v[20:23], v[40:43]''')
    k('''s_mov_b32 exec_lo, 0x07ff07ff
s_mov_b32 exec_hi, 0x07ff07ff''')
    for r in range(4):
        k(f'ds_write2_b32 v60, v{28+r}, v{32+r} offset0:{40*r} offset1:{40*r+1}')
    for r in range(4):
        k(f'v_xor_b32 v{40+r}, 0x80000000, v{40+r}')
    for r in range(4):
        k(f'ds_write2_b32 v61, v{36+r}, v{40+r} offset0:{40*(3-r)} offset1:{40*(3-r)+1}')
    k('s_mov_b64 exec, -1')
    srd_from(k, 68, 40, 41, WS_FL, FL_BYTES)
    if PAX: vw2(int(re.search(r'\d+', vm.wait('f')).group(0)))
    else: k(vm.wait('f'))
    k('s_waitcnt lgkmcnt(0)')
    st(k, 7, 2); st(k, 5, 2)
    k('s_barrier')
    k(f'''v_cmp_gt_u32 vcc, {TP//4}, v0
s_and_saveexec_b64 s[44:45], vcc
s_cbranch_execz {TAIL}
v_lshlrev_b32 v1, 3, v0
v_lshlrev_b32 v2, 2, v0''')
    for n in range(8):
        k(f'ds_read_b64 {vr(4+2*n,2)}, v1 offset:{EX0+n*EXP}')
    k(f'''v_mov_b32 v40, 0x3f3504f3
s_mul_i32 s46, s3, {8*TP}
s_add_u32 s47, s46, {3*TP}
s_add_u32 s48, s46, {6*TP}
s_waitcnt lgkmcnt(0)
s_barrier''')
    st(k, 7, 3); st(k, 5, 3)
    T = fft8(k, 4, 20, False, 40)
    for k2 in range(8):
        if k2 == 0:
            k(f'v_cvt_pk_bf16_f32 v4, v{T[0]}, v{T[0]+1}')
        else:
            smul(k, T[k2], T[k2], 16 + 2 * k2, 42 + 2 * (k2 & 1))
            k(f'v_cvt_pk_bf16_f32 v{4+k2}, v{T[k2]}, v{T[k2]+1}')
        if IP: k(f'v_and_b32 v{4+k2}, -2, v{4+k2}')
        k(f'buffer_store_dword v{4+k2}, v2, s[8:11], s{46+k2//3} offen offset:{(k2%3)*TP}')
    k('s_mov_b64 exec, -1')
    st(k, 7, 4)
    k(f'''s_bfe_u32 s42, s3, 0x30001
s_lshl_b32 s42, s42, 7
s_lshr_b32 s43, s3, 4
s_lshl_b32 s43, s43, 3
s_add_u32 s42, s42, s43
s_and_b32 s43, s3, 1
s_lshl_b32 s43, s43, 2
s_add_u32 s42, s42, s43
s_add_u32 s42, s42, {FT}
v_lshlrev_b32 v12, 6, v3
v_mov_b32 v13, {MAGIC}
v_mov_b32 v127, 1
s_mov_b64 exec, 1
s_waitcnt vmcnt(0)
ds_add_rtn_u32 v127, v126, v127
s_waitcnt lgkmcnt(0)
v_readfirstlane_b32 s43, v127
s_mov_b64 exec, 0xff
s_and_b32 s43, s43, 0xff
s_cmp_lg_u32 s43, 5
s_cbranch_scc1 {NF}
buffer_store_dword v13, v12, s[68:71], s42 offen
{NF}:
s_mov_b64 exec, -1''')
    st(k, 7, 5)
    CADD = f's_mov_b64 exec, 1\nv_mov_b32 v127, 0x100\nds_add_u32 v126, v127\ns_mov_b64 exec, -1'
    k(f'''v_and_b32 v2, 63, v0
s_cmp_ge_u32 s34, s100
s_cbranch_scc1 {PREPB}
{CADD}
s_branch {J1}
{TAIL}:
s_mov_b64 exec, -1
s_barrier''')
    st(k, 7, 3); st(k, 5, 3)
    k(f's_cmp_lt_u32 s34, s100\ns_cbranch_scc1 {J1}')
    if PAX: k('s_waitcnt vmcnt(0)')
    k(f'{PREPB}:')
    if opt.get('tch') == 2: k(CADD)
    if PL > 3:
        if opt.get('pd'): k(f's_sleep {opt["pd"]}')
        k(f's_cmp_ge_u32 s34, s101\ns_cbranch_scc1 {PB}')
        prepa()
        k(f's_waitcnt vmcnt(0)\n{PB}:')
    i0 = len(k.lines)
    prep_inl(k, 'B', 0, PD, 63, hdr=HDR)
    for j in range(i0, len(k.lines)):
        k.lines[j] = re.sub(r'\bs5([01])\b', lambda m: f's{24+int(m.group(1))}', k.lines[j])
    k(f'''{PD}:
{CADD if not opt.get('tch') else ''}
s_lshl_b32 s42, s33, 2
s_add_u32 s42, s42, {FP}
v_lshlrev_b32 v12, 7, v3
v_mov_b32 v13, {MAGIC}
s_lshl_b32 s33, s3, 6
s_add_u32 s33, s33, 32768
s_load_dwordx16 s[16:31], s[12:13], s33''')
    st(k, 7, 6); st(k, 5, 9)
    k(f'''s_mov_b64 exec, 0xff
s_waitcnt vmcnt(0)
buffer_store_dword v13, v12, s[68:71], s42 offen
s_mov_b64 exec, -1
{CADD if opt.get('tch') == 1 else ''}''')
    st(k, 7, 7)
    for j in range(l0, len(k.lines)):
        l = k.lines[j]
        if l.startswith('buffer_store') and 'sc1' not in l: k.lines[j] = l + ' sc1'
    k(f'{J1}:')
    if WD5:
        k(f's_cmp_lt_u32 s2, {opt.get("wda", 256)}\ns_cselect_b32 s101, 4, 8')
        if WD5 == 32: k(CUT)
    vm = Cnt('vmcnt', 63); vm.issue('q')
    IIM = 'v[112:115]'; IRE = 'v[114:117]'; FIM = 'v[116:119]'; FRE = 'v[118:121]'
    k(f"""v_and_b32 v4, 15, v2
v_lshrrev_b32 v5, 4, v2""")
    k(f"""s_and_b32 s33, s2, 7
s_lshr_b32 s35, s2, 3
v_lshrrev_b32 v7, 2, v2
v_and_b32 v8, 3, v2
v_mul_u32_u24 v6, {16*8*TP}, v7
v_lshl_add_u32 v6, v8, 4, v6
s_lshl_b32 s36, s34, 4
s_add_u32 s36, s36, s33
s_mul_i32 s36, s36, {TP}
s_lshl_b32 s37, s35, 6
s_add_u32 s36, s36, s37
s_add_u32 s42, s36, {8*TP}
s_and_b32 s37, s33, {1-IP}
s_lshl_b32 s37, s37, 2
s_sub_u32 s43, s36, s37
s_sub_u32 s44, s42, s37
s_lshl_b32 s45, s33, 10
s_lshl_b32 s49, s33, 11
s_add_u32 s49, s49, {FP}
s_lshl_b32 s37, s34, 7
s_add_u32 s45, s45, s37
s_add_u32 s45, s45, {FT}
v_and_b32 v9, 31, v2
v_lshlrev_b32 v9, 2, v9""")
    srd_from(k, 60, 40, 41, WS_T, TU_BYTES)
    srd_from(k, 8, 40, 41, WS_T if IP else WS_U, TU_BYTES)
    srd_from(k, 64, 40, 41, WS_WI, WI_BYTES)
    g1id(k, 58, 57)
    k(f"""s_and_b32 s58, s58, 15
s_mul_i32 s58, s58, {140*1024}
s_mov_b32 s56, s32
s_sub_u32 s57, s32, {BB}
s_add_u32 s57, s57, s58""")
    bops = []
    for i in range(14):
        o = f's_add_u32 m0, s56, {1024*(i-i%4)}\n'
        if i % 4 == 0 and i: o += 's_add_u32 s57, s57, 4096\n'
        bops.append(o + f'buffer_load_dwordx4 v3, s[64:67], s57 offen offset:{1024*(i%4)} lds')
    KW = opt.get('KW', [0, 0, 0]); K9 = opt.get('K9', 8); KT = opt.get('KT', 0); KA = opt.get('KA', 0)
    wrest = list(q.ops)
    nw1 = min(len(wrest), KA + KT + KW[0] + KW[1])
    rest = wrest[nw1:] + bops
    if opt.get('bo'): rest = bops + wrest[nw1:]
    post = rest[K9:]
    assert not opt.get('bo') and K9 <= len(wrest) - nw1 and 8 * opt.get('wte', 0) <= nw1
    if opt.get('wt67'): assert K9 == len(wrest) - nw1
    assert len(post) <= KW[2], (len(post), KW)

    def pld():
        k('buffer_load_dwordx4 v[24:27], v3, s[68:71], s49 offen sc1\nbuffer_load_dwordx4 v[28:31], v3, s[68:71], s49 offen offset:736 sc1')

    def pchk(n):
        LP = k.label('lp'); LD = k.label('ld'); L1 = k.label('l1')
        k(f's_mov_b32 s43, {SPIN}\ns_waitcnt vmcnt({n})\ns_branch {L1}\n{LP}:\ns_sleep 4')
        pld()
        k(f'''s_waitcnt vmcnt(0)
{L1}:
v_min3_u32 v13, v24, v25, v26
v_max3_u32 v14, v24, v25, v26
v_min3_u32 v13, v13, v27, v28
v_max3_u32 v14, v14, v27, v28
v_min3_u32 v13, v13, v29, v30
v_max3_u32 v14, v14, v29, v30
v_min_u32 v13, v13, v31
v_max_u32 v14, v14, v31
v_xor_b32 v13, {MAGIC}, v13
v_xor_b32 v14, {MAGIC}, v14
v_or_b32 v24, v13, v14
v_cmp_ne_u32 vcc, 0, v24
s_cbranch_vccz {LD}
s_sub_u32 s43, s43, 1
s_cmp_lg_u32 s43, 0
s_cbranch_scc1 {LP}
{LD}:''')
    k(f's_cmp_ge_u32 s2, 168\ns_cbranch_scc1 {IDLE}')
    q = Bulk(k, wrest[:nw1])
    k(f"""v_mul_u32_u24 v10, {4*P}, v8
v_lshl_add_u32 v10, v7, 2, v10
s_lshl_b32 s37, s34, 7
v_add_u32 v10, s37, v10
v_lshlrev_b32 v12, 6, v4
v_lshl_add_u32 v12, v5, 4, v12
s_mul_i32 s37, s34, {2*P}
v_add_u32 v12, s37, v12""")
    k(f"""ds_read_b128 v[96:99], v3 offset:{TB1}
ds_read_b128 v[100:103], v3 offset:{TB1+1024}
ds_read_b128 v[104:107], v3 offset:{TB1+2048}
ds_read_b128 v[108:111], v3 offset:{TB1+3072}
ds_read_b128 v[118:121], v3 offset:{TB1+4096}
ds_read_b64 v[116:117], v3 offset:{TB1+5120}
ds_read_b128 v[112:115], v3 offset:{TB1+7168}""")
    st(k, 7, 6)
    assert opt.get('xs')
    LP = k.label('lp'); LD = k.label('ld'); L1 = k.label('l1')
    PL = 'buffer_load_dword v13, v9, s[68:71], s45 offen sc1'
    q(KA, None, 124)
    WLD = """buffer_load_dwordx3 v[80:82], v14, s[52:55], s39 offen
buffer_load_dwordx3 v[88:90], v14, s[4:7], s39 offen
buffer_load_dwordx3 v[84:86], v14, s[52:55], s37 offen
buffer_load_dwordx3 v[92:94], v14, s[4:7], s37 offen
s_and_b32 s39, s33, 1
s_lshl_b32 s39, s39, 4""" if IP else """buffer_load_dwordx2 v[64:65], v14, s[52:55], s39 offen
buffer_load_dwordx2 v[68:69], v14, s[4:7], s39 offen
buffer_load_dwordx2 v[66:67], v14, s[52:55], s37 offen
buffer_load_dwordx2 v[70:71], v14, s[4:7], s37 offen"""
    WF = opt.get('wf', 0)
    WA = f'''s_lshl_b32 s39, s34, 4
s_add_u32 s39, s39, s33
s_mul_i32 s39, s39, 642
s_lshl_b32 s37, s35, 5
s_add_u32 s39, s39, s37
s_and_b32 s39, s39, -4
{f"s_mov_b32 s39, {BIG}" if opt.get('xW') else ""}
s_add_u32 s37, s39, {8*642}
v_mul_u32_u24 v14, {16*8*642}, v7
v_lshl_add_u32 v14, v8, 3, v14
s_mov_b32 s4, s54
s_mov_b32 s5, s55
s_mov_b32 s54, {2048*642}
s_mov_b32 s55, 0x00020000
s_mov_b32 s6, {2048*642}
s_mov_b32 s7, 0x00020000
{WLD}
s_mov_b32 s47, 0x05040100
s_mov_b32 s48, 0x07060302'''

    def wput():
        if IP:
            for j in range(8): k(f'v_alignbit_b32 v{64+j}, v{81+4*(j//2)+(j&1)}, v{80+4*(j//2)+(j&1)}, s39')
        for j in range(8):
            k(f'v_perm_b32 v{72+j}, v{68+j//2}, v{64+j//2}, s{47+(j&1)}')
            k(f'ds_write_b32 v10, v{72+j} offset:{W0+(j&3)*P+64*(j>>2)}')
    if WF:
        if opt.get('wd0'): k(f's_sleep {opt["wd0"]}')
        k(WA)
    if opt.get('td4') is not None:
        LS = k.label('ls')
        k(f's_sleep {opt["td4"]}\ns_bitcmp1_b32 {opt.get("tdm", 0x30)}, s34\ns_cbranch_scc1 {LS}\ns_sleep {opt["td"]-opt["td4"]}\n{LS}:')
    elif opt.get('td'): k(f's_sleep {opt["td"]}')
    if opt.get('tdb'): k('s_barrier')
    if WF:
        k('s_waitcnt vmcnt(0)')
        st(k, 7, 6)
        k(PL)
        wput()
    else: k(PL + '\n' + WA)
    k(f'''s_mov_b32 s46, {SPIN}
s_waitcnt vmcnt({0 if WF else 4})
s_branch {L1}
{LP}:
{f"s_sleep {opt['tsl']}" if opt.get('tsl') else ""}
{PL}
s_waitcnt vmcnt(0)
{L1}:
v_cmp_ne_u32 vcc, {MAGIC}, v13
s_cbranch_vccz {LD}
s_sub_u32 s46, s46, 1
s_cmp_lg_u32 s46, 0
s_cbranch_scc1 {LP}
{LD}:''')
    st(k, 7, 7)
    vm.done = len(vm.tags)
    for i in range(2):
        k(f'buffer_load_dwordx4 {vr(16+4*i,4)}, v6, s[60:63], s{43+i} offen'); vm.issue(f'T{i}')
    if not WF:
        k('s_waitcnt vmcnt(2)')
        wput()
    KTL = opt.get('ktl', 0)
    q(KT - KTL, vm, 124, 'q')
    for i in range(2):
        k(vm.wait(f'T{i}'))
        if i == 0: st(k, 4, 1); st(k, 7, 8)
        for j in range(4):
            k(f'ds_write_b32 v10, v{16+4*i+j} offset:{j*P+64*i}')
    q(KTL, vm, 124, 'q')
    k('s_waitcnt lgkmcnt(0)\ns_barrier')
    NC = 2
    i0 = len(k.lines)
    k(f"""ds_read_b128 v[16:19], v12
ds_read_b128 v[20:23], v12 offset:{P}
ds_read_b128 v[32:35], v12 offset:{W0}
ds_read_b128 v[36:39], v12 offset:{W0+P}
s_waitcnt lgkmcnt(3)
{MFMA} v[48:51], v[16:19], v[96:99], 0
{MFMA} v[52:55], v[16:19], v[100:103], 0
s_waitcnt lgkmcnt(2)
{MFMA} v[56:59], v[20:23], v[96:99], 0
{MFMA} v[60:63], v[20:23], v[100:103], 0
s_waitcnt lgkmcnt(0)""")
    for c in range(NC):
        for r in range(4):
            k(f'v_lshlrev_b32 v{64+8*c+r}, 16, v{32+4*c+r}\nv_and_b32 v{68+8*c+r}, 0xffff0000, v{32+4*c+r}')

    def pack(c, re, im):
        k(f"""v_cvt_pk_bf16_f32 v{16+4*c}, v{re}, v{re+1}
v_cvt_pk_bf16_f32 v{17+4*c}, v{re+2}, v{re+3}
v_cvt_pk_bf16_f32 v{18+4*c}, v{im}, v{im+1}
v_cvt_pk_bf16_f32 v{19+4*c}, v{im+2}, v{im+3}""")
    for c in range(NC):
        cmul_planar(k, 48 + 8 * c, 52 + 8 * c, 104, 108, 80, 84, 88)
        pack(c, 80, 84)
        k(f'{MFMA} {vr(48+8*c,4)}, {FRE}, {vr(16+4*c,4)}, 0')
        k(f'{MFMA} {vr(52+8*c,4)}, {FIM}, {vr(16+4*c,4)}, 0')
    weave_in(k, i0, q, KW[0], vm, 124)
    st(k, 4, 2)
    PC7 = opt.get('pc7', 0)
    def only7(f):
        L = k.label('o7')
        k(f's_cmp_lt_u32 s34, 7\ns_cbranch_scc1 {L}')
        f()
        k(f'{L}:')
    if PC7 == 1: only7(pld)
    i0 = len(k.lines)
    for c in range(NC):
        cmul_planar(k, 48 + 8 * c, 52 + 8 * c, 64 + 8 * c, 68 + 8 * c, 80, 84, 88)
        pack(c, 80, 84)
        k(f'{MFMA} {vr(48+8*c,4)}, {vr(16+4*c,4)}, {IRE}, 0')
        k(f'{MFMA} {vr(52+8*c,4)}, {vr(16+4*c,4)}, {IIM}, 0')
    for c in range(NC):
        cmul_planar(k, 48 + 8 * c, 52 + 8 * c, 104, 108, 80, 84, 88, conj=True)
        pack(c, 80, 84)
        k(f'{MFMA} {vr(48+8*c,4)}, {IRE}, {vr(16+4*c,4)}, 0')
        k(f'{MFMA} {vr(52+8*c,4)}, {IIM}, {vr(16+4*c,4)}, 0')
    weave_in(k, i0, q, KW[1], vm, 124)
    assert not q.ops
    if PC7 == 0: pld()
    if PC7 == 2: only7(pld)
    for c in range(NC):
        for r in range(4):
            k(f'v_cvt_pk_bf16_f32 v{16+4*c+r}, v{48+8*c+r}, v{52+8*c+r}')
        if IP:
            for r in range(4): k(f'v_or_b32 v{16+4*c+r}, 1, v{16+4*c+r}')
        k(f'ds_write_b128 v12, {vr(16+4*c,4)} offset:{c*P}')
    k('s_waitcnt lgkmcnt(0)\ns_barrier')
    for i in range(2):
        for j in range(4):
            k(f'ds_read_b32 v{16+4*i+j}, v10 offset:{j*P+64*i}')
    for i in range(NT2): k(f'ds_read_b128 {vr(64+4*i,4)}, v3 offset:{TB2+1024*i}')
    for i in range(2):
        k(f's_waitcnt lgkmcnt({4+NT2-4*i})')
        k(f'buffer_store_dwordx4 {vr(16+4*i,4)}, v6, s[8:11], {["s36","s42"][i]} offen sc1')
    st(k, 4, 3); st(k, 7, 9)
    st(k, 8, 1)
    if opt.get('ob2'): k('s_barrier')
    st(k, 8, 2)
    if PC7: only7(lambda: pchk(2 + (KW[1] if PC7 == 1 else 0)))
    else: pchk(2)
    st(k, 8, 3)
    Bulk(k, rest[:K9])(99, None, 124)
    st(k, 8, 4)
    k(f's_branch {JOIN}\n{IDLE}:')
    IT = opt.get('it', 2)
    G2M = opt.get('g2m', 0)
    if IT:
        LP = k.label('lp'); LD = k.label('ld')
        k(f'''s_cmp_ge_u32 s34, 3
s_cbranch_scc1 {LD}x
s_sub_u32 s43, s35, 21
s_and_b32 s44, s33, {1-G2M}
s_mul_i32 s44, s44, 11
s_add_u32 s43, s43, s44
s_mul_i32 s44, s34, {22>>G2M}
s_add_u32 s44, s44, s43
s_lshr_b32 s46, s33, {1-G2M}
s_lshl_b32 s46, s46, {18-G2M}
v_lshlrev_b32 v10, 7, v2
s_mov_b32 s43, {SPIN}
{LP}:
ds_read_b32 v11, v126
s_waitcnt lgkmcnt(0)
v_cmp_gt_u32 vcc, 0x800, v11
s_cbranch_vccz {LD}
s_sleep 1
s_sub_u32 s43, s43, 1
s_cmp_lg_u32 s43, 0
s_cbranch_scc1 {LP}
{LD}:''')
        if opt.get('itd'): k(f's_sleep {opt["itd"]}')
        for r in range(opt.get('itn', 4)):
            k(f'''s_and_b32 s47, s44, {31>>G2M}
s_lshl_b32 s47, s47, 13
s_lshr_b32 s48, s44, {5-G2M}
s_lshl_b32 s48, s48, 20
s_add_u32 s47, s47, s48
s_add_u32 s47, s47, s46
buffer_load_ubyte v11, v10, s[72:75], s47 offen
s_add_u32 s44, s44, {66>>G2M}''')
        if opt.get('it2'):
            k(f'''s_and_b32 s47, s33, 1
s_mul_i32 s47, s47, 22
s_sub_u32 s44, s44, s47
s_sub_u32 s44, s44, {4*66-11}''')
            if opt['it2'] == 2: k('s_waitcnt vmcnt(0)')
            for r in range(4):
                k(f'''s_and_b32 s47, s44, 31
s_lshl_b32 s47, s47, 13
s_lshr_b32 s48, s44, 5
s_lshl_b32 s48, s48, 20
s_add_u32 s47, s47, s48
s_add_u32 s47, s47, s46
buffer_load_ubyte v11, v10, s[72:75], s47 offen
s_add_u32 s44, s44, 66''')
        k(f'{LD}x:')
    k('s_barrier')
    st(k, 8, 1)
    IPL = opt.get('ipl', nw1)
    Bulk(k, wrest[:IPL])(99, None, 124)
    if PC7: only7(pld)
    Bulk(k, wrest[IPL:nw1])(99, None, 124)
    st(k, 8, 2)
    for i in range(NT2): k(f'ds_read_b128 {vr(64+4*i,4)}, v3 offset:{TB2+1024*i}')
    if PC7: only7(lambda: pchk(nw1 - IPL))
    else:
        pld()
        pchk(0)
    st(k, 8, 3)
    Bulk(k, rest[:K9])(99, None, 124)
    st(k, 8, 4)
    if opt.get('idl'): k(f's_sleep {opt["idl"]}')
    k(f'{JOIN}:')
    ph_k2b(k, opt, post, 0, True)


def clean(k, wv=0, r=(4, 5, 6)):
    NC_ = k.label('nc')
    k(f'''s_cmp_lg_u32 s34, {wv}
s_cbranch_scc1 {NC_}
s_bfe_u32 s42, s2, 0x30004
s_lshl_b32 s42, s42, 7
s_and_b32 s43, s2, 7
s_lshl_b32 s43, s43, 4
s_add_u32 s42, s42, s43
s_lshr_b32 s43, s2, 7
s_lshl_b32 s43, s43, 3
s_add_u32 s42, s42, s43
s_bfe_u32 s43, s2, 0x10003
s_lshl_b32 s43, s43, 2
s_add_u32 s42, s42, s43
s_add_u32 s42, s42, {FT}
s_lshl_b32 s43, s2, 3
s_add_u32 s43, s43, {FP}
v_lshlrev_b32 v{r[0]}, 6, v3
v_lshlrev_b32 v{r[1]}, 7, v3
v_mov_b32 v{r[2]}, 0
v_mov_b32 v{r[2]+1}, 0
s_mov_b64 exec, 0xff
buffer_store_dword v{r[2]}, v{r[0]}, s[68:71], s42 offen sc1
buffer_store_dwordx2 v[{r[2]}:{r[2]+1}], v{r[1]}, s[68:71], s43 offen sc1
s_mov_b64 exec, -1
{NC_}:''')


def gen_f(opt):
    gen10.CLEAN = clean
    k = Kern('kf_kernel', 256, 512, 163840, nvgpr=128, nagpr=128, nsgpr=102)
    END = k.label('end'); G2 = k.label('g2'); G3 = k.label('g3')
    k(f's_cmp_ge_u32 s2, 256\ns_cbranch_scc1 {END}')
    k.stamp(True)
    wb = Bulk(k, g2_wops())
    ph_k01(k, opt, wb)
    ph_g1t(k, opt, G2, wb)
    k(f'{G2}:')
    st(k, 0, 6)
    vm = Cnt('vmcnt', 63); vm.issue('w')
    g3_wo_setup(k)
    ph_g2(k, opt, G3, vm, True, g3_wo_ops())
    k(f'{G3}:')
    if opt.get('g3v') == 4: pass
    elif opt.get('g3v') == 3: ph_g3w(k, opt)
    elif opt.get('g3v'): ph_g3v(k, opt)
    else: ph_g3(k, opt, True)
    if opt.get('g3v') != 4: clean(k, 4 if opt.get('g3r') else 0)
    k.finish(END)
    return [k]
```

```python
from asmlib import *
import gen_fft
from gen_fft import vr, sr, srd_from, tab_srd, MFMA, WS_H, WS_HN, WS_U, WS_T, X_BYTES, TU_BYTES, TP, fft8, smul, cmul_planar, wave_reduce2, ln_stats, ln_apply
from gen3 import *

WS_FL = 0x1800000
FL_BYTES = 0x40000
FLH = 0; FL2 = 0x8000; FL3 = 0x10000; FLU = 0x18000
FS = 7
WS_PX = 0x1840000
PX_BYTES = 64 * 16 * 256
WS_WS = 0x2000000
WSP_BYTES = 8 << 20
Z2N_BYTES = 64 * 57344
A2_BYTES = 4 << 20
SPIN = 400000
PV = 0
ROT = 0
W128 = 0
G1S = 0
GV = 0
HP = 10368
HN_BYTES = 256 * HP
MF16 = 'v_mfma_f32_16x16x16_bf16'
BIG = '0x7f000000'


def ln_apply2(k, f, n, vm, vrs, out):
    k(f'v_mul_f32 v{vm}, v{vm}, v{vrs}')
    for i in range(0, n, 2):
        k(f'v_pk_fma_f32 {vr(f+i,2)}, {vr(f+i,2)}, {vr(vrs,2)}, {vr(vm,2)} op_sel_hi:[1,0,0] neg_lo:[0,0,1] neg_hi:[0,0,1]')
    for i in range(0, n, 2):
        k(f'v_cvt_pk_bf16_f32 v{out+i//2}, v{f+i}, v{f+i+1}')


def st(k, view, slot):
    if Kern.prof and PV == view:
        k.nst = slot; k.stamp()


def poll(k, srd, soff, va, vd, sc):
    LP = k.label('lp'); LD = k.label('ld')
    k(f'''s_mov_b32 s{sc}, {SPIN}
{LP}:
buffer_load_dword v{vd}, v{va}, {sr(srd,4)}, {soff} offen sc1
s_waitcnt vmcnt(0)
v_cmp_eq_u32 vcc, 0, v{vd}
s_cbranch_vccz {LD}
s_sub_u32 s{sc}, s{sc}, 1
s_cmp_lg_u32 s{sc}, 0
s_cbranch_scc1 {LP}
{LD}:''')


def map_g2(k):
    if gen_fft.OPT.get('g2m'):
        k('''s_and_b32 s35, s2, 7
s_lshl_b32 s35, s35, 2
s_bfe_u32 s36, s2, 0x20003
s_add_u32 s35, s35, s36
s_lshr_b32 s36, s2, 5''')
        return
    k('''s_and_b32 s33, s2, 7
s_lshr_b32 s42, s2, 3
s_lshr_b32 s35, s33, 1
s_lshl_b32 s35, s35, 3
s_and_b32 s36, s42, 7
s_add_u32 s35, s35, s36
s_and_b32 s36, s33, 1
s_lshl_b32 s36, s36, 2
s_lshr_b32 s42, s42, 3
s_add_u32 s36, s36, s42''')


def g1id(k, d, t):
    m = gen_fft.OPT.get('g1m', 0)
    k(f'''s_bfe_u32 s{d}, s2, {hex(((3-m) << 16) | m)}
s_lshl_b32 s{d}, s{d}, {1+m}
s_lshr_b32 s{t}, s2, {7-m}
s_add_u32 s{d}, s{d}, s{t}
s_lshl_b32 s{d}, s{d}, {m}
s_and_b32 s{t}, s2, {(1 << m) - 1}
s_add_u32 s{d}, s{d}, s{t}
s_lshl_b32 s{d}, s{d}, {4-m}
s_bfe_u32 s{t}, s2, {hex(((4-m) << 16) | 3)}
s_add_u32 s{d}, s{d}, s{t}''')


def w_setup(k, t0, t1):
    G2M = gen_fft.OPT.get('g2m', 0)
    k(f'''s_mov_b32 s74, {2048*4096}
s_mov_b32 s75, 0x00020000
s_bfe_u32 s{t0}, s2, {"0x30000" if G2M else "0x20001"}
s_lshl_b32 s{t0}, s{t0}, {2 if G2M else 3}
s_bfe_u32 s{t1}, s2, {"0x20003" if G2M else "0x30003"}
s_add_u32 s{t0}, s{t0}, s{t1}
s_lshl_b32 s50, s{t0}, 15
s_lshr_b32 s{t0}, s34, 2
s_lshl_b32 s{t0}, s{t0}, 11
s_and_b32 s{t1}, s34, 3
s_lshl_b32 s{t1}, s{t1}, 7
s_add_u32 s50, s50, s{t0}
s_add_u32 s50, s50, s{t1}
s_add_u32 s51, s50, 16384''')
    if ROT:
        k(f'''s_bfe_u32 s{t0}, s2, 0x10006
s_lshl_b32 s{t0}, s{t0}, {21 if G1S else 14}
s_add_u32 s50, s50, s{t0}
s_bfe_u32 s{t0}, s2, 0x10007
s_lshl_b32 s{t0}, s{t0}, 22
s_add_u32 s50, s50, s{t0}
s_mov_b32 s51, s50''')
    if W128: k(f's_mov_b32 s82, s50\ns_add_u32 s51, s50, {0x100000 if G1S else 4096}')


def w_vaddr(k, d, t):
    if W128:
        k(f'''v_and_b32 v{d}, 112, v3
v_bfe_u32 v{t}, v3, 7, 1
v_lshl_add_u32 v{d}, v{t}, {14 if G1S else 13}, v{d}
v_lshrrev_b32 v{t}, 8, v3
v_lshl_add_u32 v{d}, v{t}, 9, v{d}''')
        return
    k(f'''v_and_b32 v{d}, 48, v3
v_bfe_u32 v{t}, v3, 6, 2
v_lshl_add_u32 v{d}, v{t}, 12, v{d}
v_lshrrev_b32 v{t}, 8, v3
v_lshl_add_u32 v{d}, v{t}, 9, v{d}''')


def g2_wops(fl=''):
    ops = []
    if W128:
        for g in range(4):
            for n in range(4):
                for ih in range(2):
                    o = f'buffer_load_dwordx4 {ar(16*(4*ih+n)+4*g,4)}, @, s[72:75], s{50+ih} offen{fl}'
                    sn, si, su = (4096, 0x100000, 2 << 20) if G1S else (0x100000, 4096, 16384)
                    if ih and n < 3: o += f'\ns_add_u32 s50, s50, {sn}\ns_add_u32 s51, s51, {sn}'
                    if ih and n == 3 and g < 3: o += f'\ns_xor_b32 s50, s82, {((g+1)&1)*su + ((g+1)>>1)*(4<<20)}\ns_add_u32 s51, s50, {si}'
                    ops.append(o)
        return ops
    if ROT:
        for g in range(4):
            for n in range(4):
                for hi in range(2):
                    o = f'buffer_load_dwordx4 {ar(16*(4*hi+n)+4*g,4)}, @, s[72:75], s50 offen offset:{64*hi}{fl}'
                    if hi and n < 3: o += '\ns_add_u32 s50, s50, 0x100000'
                    if hi and n == 3 and g < 3: o += f'\ns_xor_b32 s50, s51, {((g+1)&1)*16384 + ((g+1)>>1)*(4<<20)}'
                    ops.append(o)
        return ops
    for n2 in range(8):
        for u in range(2):
            for hi in range(2):
                o = f'buffer_load_dwordx4 {ar(16*(4*hi+(n2&3))+4*(2*(n2>>2)+u),4)}, @, s[72:75], s{50+u} offen offset:{64*hi}{fl}'
                if u and hi and n2 < 7: o += '\ns_add_u32 s50, s50, 0x100000\ns_add_u32 s51, s51, 0x100000'
                ops.append(o)
    return ops


def w_trans(k, vw, vrd, groups=None, ts=42, priv=False, base=0, mid=None):
    PT = 520
    if (groups is not None and not groups) or gen_fft.OPT.get('nowt'): return
    if W128:
        k(f's_add_u32 s{ts}, s32, 3072' if priv else f's_and_b32 s{ts}, s34, 3\ns_mul_i32 s{ts}, s{ts}, 4160')
        if base: k(f's_add_u32 s{ts}, s{ts}, {base}')
        k(f'''v_lshrrev_b32 v{vw}, 1, v3
v_add_u32 v{vw}, s{ts}, v{vw}
v_bfe_u32 v{vrd}, v3, 4, 3
v_mul_u32_u24 v{vrd}, {PT-8}, v{vrd}
v_add_u32 v{vrd}, v{vw}, v{vrd}''')
        for tt in range(4):
            if groups is not None and tt not in groups: continue
            for h in range(2):
                if mid: mid(2 * (groups[-1] - tt) + 2 - h)
                R = lambda i: ar(16 * i + 4 * tt + 2 * h, 2)
                for i in range(8): k(f'ds_write_b64 v{vw}, {R(i)} offset:{PT*i}')
                for c in range(8): k(f'ds_read_b64 {R(c)}, v{vrd} offset:{8*c}')
        return
    k(f'''s_mul_i32 s{ts}, s34, 2560
v_lshrrev_b32 v{vw}, 1, v3
v_add_u32 v{vw}, s{ts}, v{vw}
v_bfe_u32 v{vrd}, v3, 4, 2
v_mul_u32_u24 v{vrd}, {PT-8}, v{vrd}
v_add_u32 v{vrd}, v{vw}, v{vrd}''')
    for tt in range(4):
        for hi in range(2):
            if groups is not None and tt not in groups: continue
            for h in range(2):
                R = lambda i: ar(16 * (4 * hi + i) + 4 * tt + 2 * h, 2)
                for i in range(4): k(f'ds_write_b64 v{vw}, {R(i)} offset:{PT*i}')
                for c in range(4): k(f'ds_read_b64 {R(c)}, v{vrd} offset:{8*c}')


def w_trans128(k, vw, vrd, base, ts, groups, mid=None):
    PT = 1040
    if not groups: return
    k(f'''s_and_b32 s{ts}, s34, 3
s_mul_i32 s{ts}, s{ts}, {8*PT}
s_add_u32 s{ts}, s{ts}, {base}
v_add_u32 v{vw}, s{ts}, v3
v_bfe_u32 v{vrd}, v3, 4, 3
v_mul_u32_u24 v{vrd}, {PT-16}, v{vrd}
v_add_u32 v{vrd}, v{vw}, v{vrd}''')
    for tt in groups:
        R = lambda i: ar(16 * i + 4 * tt, 4)
        for i in range(8):
            if mid: mid(8 * (groups[-1] - tt) + 8 - i)
            k(f'ds_write_b128 v{vw}, {R(i)} offset:{PT*i}')
        for c in range(8): k(f'ds_read_b128 {R(c)}, v{vrd} offset:{16*c}')


def unpk(l):
    m = re.match(r'v_pk_(add|mul)_f32 v\[(\d+):\d+\], v\[(\d+):\d+\], v\[(\d+):\d+\](.*)', l)
    if not m: return [l]
    op, d, a, b, mod = m.group(1), int(m.group(2)), int(m.group(3)), int(m.group(4)), m.group(5).strip()
    if mod == '': return [f'v_{op}_f32 v{d}, v{a}, v{b}', f'v_{op}_f32 v{d+1}, v{a+1}, v{b+1}']
    if mod == 'op_sel:[0,1] op_sel_hi:[1,1]': return [f'v_{op}_f32 v{d}, v{a}, v{b+1}', f'v_{op}_f32 v{d+1}, v{a+1}, v{b+1}']
    raise ValueError(l)


class Fill:
    def __init__(self): self.q = []
    def add(self, pos, f): self.q.append((pos, f))
    def emit(self, k, p, n):
        c = 0
        while self.q and self.q[0][0] <= p and c < n:
            f = self.q.pop(0)[1]
            f() if callable(f) else k(f)
            c += 1
    def flush(self, k): self.emit(k, 10**9, 10**9)


def ph_g2(k, opt, DONE, vm0, fused, post=None, early=None):
    HI = k.label('hi')
    NZ = opt.get('NZ', 14); ZR = 96 - 4 * NZ
    T = 8; S = 24; Z1 = 32
    assert ZR >= 40
    ACC = lambda n, tt: 96 + 16 * (n & 1) + 4 * tt
    SLOT = [0, 1, 2, 3, 4, 0, 1]
    srd_from(k, 8, 40, 41, WS_Z2, Z2N_BYTES)
    k(f'''s_lshl_b32 s56, s36, 3
s_add_u32 s56, s56, s34
s_mul_i32 s56, s56, 57344
v_lshrrev_b32 v2, 4, v3''')
    if opt.get('warm'):
        k('v_lshlrev_b32 v4, 7, v2\ns_mov_b32 s42, s56')
        for i in range(7): k('buffer_load_dword v5, v4, s[8:11], s42 offen\ns_add_u32 s42, s42, 8192')
        k('s_waitcnt vmcnt(0)\ns_barrier\ns_sleep 127')
    st(k, 2, 2)
    if opt.get('clkm'): k('s_memtime s[76:77]'); k.clkm = 1
    if opt.get('zpf'):
        k(f'''v_lshrrev_b32 v4, 3, v2
v_and_b32 v5, 7, v2
v_lshlrev_b32 v5, 7, v5
v_lshl_add_u32 v4, v4, 13, v5
s_and_b32 s42, s35, 7
s_lshl_b32 s42, s42, 10
s_add_u32 s42, s42, s56
s_mov_b32 exec_hi, 0x00ffffff
buffer_load_dword v36, v4, s[8:11], s42 offen
s_mov_b32 exec_hi, -1''')
        vm0.issue('pf')

    def zload(q, vm):
        if q >= 56 or opt.get('noz'): return
        if q and q % 4 == 0: k('s_add_u32 s56, s56, 4096')
        if q == 40: k(f's_cmp_eq_u32 s36, 7\ns_cselect_b32 s56, {BIG}, s56')
        k(f'buffer_load_dwordx4 {vr(ZR+4*(q%NZ),4)}, v3, s[8:11], s56 offen offset:{1024*(q%4)}'); vm.issue(f'z{q}')
    N0 = opt.get('N0', NZ)
    if opt.get('g2b'): k('s_barrier')
    st(k, 2, 1)
    for q in range(N0): zload(q, vm0)
    srd_from(k, 12, 40, 41, WS_Z1, A2_BYTES)
    srd_from(k, 16, 40, 41, WS_Z1 if opt.get('ain') else WS_A, A2_BYTES)
    srd_from(k, 24, 24, 25, 0, 4096)
    PW = opt.get('pw', 0); FZS = opt.get('fzs', 5)
    PWS = f'''s_lshl_b32 s47, s35, 1
s_lshr_b32 s42, s43, 1
s_add_u32 s47, s47, s42
s_lshl_b32 s47, s47, 3
s_add_u32 s47, s47, s36
s_lshl_b32 s47, s47, {FZS+1}
s_add_u32 s47, s47, {FLU}
v_bfe_u32 v40, v3, 4, 1
v_lshlrev_b32 v40, {FZS}, v40''' if PW else ''
    ZQ = opt.get('zq', 0)
    if ZQ: PWS = f'''s_lshl_b32 s48, s36, 5
s_lshr_b32 s42, s35, 1
s_add_u32 s48, s48, s42
s_lshl_b32 s48, s48, {FS-2}
s_and_b32 s42, s35, 1
s_lshl_b32 s42, s42, 1
s_add_u32 s48, s48, s42
s_lshr_b32 s42, s43, 1
s_add_u32 s48, s48, s42
s_and_b32 s42, s43, 1
s_lshl_b32 s42, s42, 2
s_add_u32 s48, s48, s42
s_lshl_b32 s48, s48, 2
s_add_u32 s48, s48, {FLU}
v_bfe_u32 v8, v3, 4, 1
v_lshlrev_b32 v8, {FS+4}, v8
v_mov_b32 v10, 2'''
    G3W = opt.get('g3v', 0) == 3
    G3X = opt.get('g3v', 0) == 4
    G3V = opt.get('g3v', 0) if not (G3W or G3X) else 0
    if G3X: SLOT = [0, 1, 2, 0, 1, 2, 0]
    WL = opt.get('wl', 0)
    if WL or opt.get('s4'): SLOT = [0, 1, 2, 3, 0, 1, 2]
    G3VS = f'''s_lshl_b32 s62, s35, 3
s_add_u32 s61, s62, s36
s_add_u32 s62, s62, s34
s_lshl_b32 s63, s62, 14
s_lshl_b32 s61, s61, {FS}
s_lshl_b32 s62, s62, {FS}
s_lshl_b32 s42, s34, 2
s_add_u32 s61, s61, s42
s_add_u32 s61, s61, {FL3}
s_add_u32 s62, s62, {FL3}
s_add_u32 s64, s63, 4096
s_add_u32 s65, s63, 8192
s_add_u32 s66, s63, 12288
v_mov_b32 v0, 1''' if G3V else ''
    if G3X: G3VS = f'''s_lshl_b32 s49, s35, {3+FS}
s_add_u32 s49, s49, {FL3}
s_lshl_b32 s48, s36, {FS}
s_add_u32 s48, s48, s49
s_and_b32 s42, s34, 4
s_add_u32 s42, s42, s43
s_lshl_b32 s42, s42, 2
s_add_u32 s48, s48, s42
s_mov_b32 s54, s49
s_cmp_eq_u32 s34, 7
s_cselect_b32 s49, s49, {BIG}
s_cselect_b32 s50, 0x0f0f0f0f, 0
s_cselect_b32 s52, -1, 0
s_mov_b32 s51, s50
s_mov_b32 s53, s52
s_lshr_b32 s38, s34, 2
s_lshl_b32 s63, s35, 1
s_add_u32 s63, s63, s38
s_lshl_b32 s63, s63, 4
s_add_u32 s63, s63, s37
s_lshl_b32 s63, s63, 12
s_add_u32 s64, s63, 0x4000
s_add_u32 s65, s63, 0x8000
s_add_u32 s66, s63, 0xc000
s_lshl_b32 s61, s37, 13
v_lshrrev_b32 v6, 7, v3
v_lshlrev_b32 v6, {FS}, v6
v_bfe_u32 v0, v3, 4, 3
v_lshl_add_u32 v6, v0, 2, v6
v_mov_b32 v0, 1'''
    BADR = '''s_lshl_b32 s42, s43, 10
s_lshl_b32 s45, s35, 4
s_add_u32 s45, s45, s42
v_and_b32 v4, 8, v2
v_and_b32 v5, 3, v2
v_lshl_add_u32 v4, v5, 1, v4
v_bfe_u32 v5, v2, 2, 1
v_lshl_add_u32 v4, v5, 9, v4''' if G1S else '''s_and_b32 s42, s43, 1
s_lshl_b32 s42, s42, 3
s_lshl_b32 s45, s35, 4
s_add_u32 s45, s45, s42
s_and_b32 s42, s43, 2
s_lshl_b32 s42, s42, 10
s_add_u32 s45, s45, s42
v_bfe_u32 v4, v2, 2, 2
v_and_b32 v5, 3, v2
v_lshlrev_b32 v5, 9, v5
v_lshl_add_u32 v4, v4, 1, v5'''
    k(f'''s_and_b32 s37, s34, 3
s_bfe_u32 s43, s2, {"0x20006" if ROT else "0"}
s_xor_b32 s43, s43, s37
s_lshl_b32 s44, s35, 3
s_add_u32 s44, s44, s36
s_lshl_b32 s44, s44, 2
s_add_u32 s44, s44, s43
s_lshl_b32 s44, s44, 12
{BADR}
buffer_load_ushort v1, v4, s[24:27], s45 offen
v_lshlrev_b32 v2, 3, v2
s_lshl_b32 s42, s34, 10
v_add_u32 v4, s42, v3
v_add_u32 v5, 0x10000, v4
v_add_u32 v6, 0x20000, v4
s_lshl_b32 s42, s37, 13
v_add_u32 v7, s42, v3
s_mov_b32 s58, 0xffff0000
{PWS}
{G3VS}
s_cmp_eq_u32 s36, 7
s_cselect_b32 s46, {BIG}, s44
s_cselect_b32 s59, 0, -1
s_cmp_ge_u32 s34, 4
s_cbranch_scc1 {HI}''')
    vm0.issue('b')

    def body(hi):
        import copy
        vm = copy.deepcopy(vm0); lg = Cnt('lgkmcnt', 15)
        F = Fill()

        def wr(n, tt):
            a = SLOT[n] * 32768 + tt * 8192
            k(f'ds_write_b128 v{4+a//65536}, {vr(ACC(n,tt),4)} offset:{a%65536}'); lg.issue(f'w{n}')

        def bar(n):
            x = lg.wait(f'w{n}')
            if x: k(x)
            k('s_barrier')

        def unit(tiles, zr, off, so, pos):
            nt = len(tiles)
            ops = []
            for ti, n in enumerate(tiles):
                for b in range(2):
                    base = SLOT[n] * 32768 + 4096 * b
                    if base >= 65536 - 32768 + 8192 and False: pass
                    for i in range(4):
                        def rd(base=base, i=i, n=n, b=b):
                            a = base + 1024 * i
                            k(f'ds_read_b128 {vr(T+4*i,4)}, v{RB[a//65536]} offset:{a%65536}'); lg.issue(f'r{n}_{b}_{i}')
                        ops.append(rd)
                    s = S + 4 * ti
                    def w01(n=n, b=b): k(lg.wait(f'r{n}_{b}_1') or '')
                    def w23(n=n, b=b): k(lg.wait(f'r{n}_{b}_3') or '')
                    ops.append(None); ops.append(None)
                    ops.append(w01)
                    d = s if b == 0 else T
                    ops += [f'v_pk_add_f32 {vr(d,2)}, {vr(T,2)}, {vr(T+4,2)}', f'v_pk_add_f32 {vr(d+2,2)}, {vr(T+2,2)}, {vr(T+6,2)}']
                    if b: ops += [f'v_pk_add_f32 {vr(s,2)}, {vr(s,2)}, {vr(T,2)}', f'v_pk_add_f32 {vr(s+2,2)}, {vr(s+2,2)}, {vr(T+2,2)}']
                    ops.append(w23)
                    ops += [f'v_pk_add_f32 {vr(T+8,2)}, {vr(T+8,2)}, {vr(T+12,2)}', f'v_pk_add_f32 {vr(T+10,2)}, {vr(T+10,2)}, {vr(T+14,2)}',
                            f'v_pk_add_f32 {vr(s,2)}, {vr(s,2)}, {vr(T+8,2)}', f'v_pk_add_f32 {vr(s+2,2)}, {vr(s+2,2)}, {vr(T+10,2)}']
            h = 2 * nt
            if not opt.get('lean', 0) & 8:
                ops += [f'v_cvt_pk_bf16_f32 v{T+i}, v{S+2*i}, v{S+2*i+1}' for i in range(h)]
                ops += [f'v_lshlrev_b32 v{S+2*i}, 16, v{T+i}\nv_and_b32 v{S+2*i+1}, s58, v{T+i}' for i in range(h)]
            ops.append(lambda: k(vm.wait(f'y{off}') or ''))
            ops += [f'v_pk_add_f32 {vr(S+2*i,2)}, {vr(S+2*i,2)}, v[0:1] op_sel:[0,1] op_sel_hi:[1,1]' for i in range(h)]
            ops += [f'v_lshlrev_b32 v{T+8+2*i}, 16, v{zr+i}\nv_and_b32 v{T+9+2*i}, s58, v{zr+i}' for i in range(h)]
            if not opt.get('lean', 0) & 8:
                ops += [f'v_cvt_pk_bf16_f32 v{T+i}, v{S+2*i}, v{S+2*i+1}' for i in range(h)]
                ops += [f'v_lshlrev_b32 v{S+2*i}, 16, v{T+i}\nv_and_b32 v{S+2*i+1}, s58, v{T+i}' for i in range(h)]
            ops += [f'v_pk_mul_f32 {vr(S+2*i,2)}, {vr(S+2*i,2)}, {vr(T+8+2*i,2)}' for i in range(h)]
            ops += [f'v_cvt_pk_bf16_f32 v{zr+i}, v{S+2*i}, v{S+2*i+1}' for i in range(h)]

            if tiles == [4, 5]: ops += [f'v_and_b32 v{zr+2}, s59, v{zr+2}', f'v_and_b32 v{zr+3}, s59, v{zr+3}']

            def sto():
                if nt == 2: k(f'buffer_store_dwordx4 {vr(zr,4)}, v3, s[16:19], {so} offen offset:{off} sc1')
                else: k(f'buffer_store_dwordx2 {vr(zr,2)}, v2, s[16:19], {so} offen offset:{off} sc1')
                vm.issue('s')
            ops.append(sto)
            out = []
            for o in ops:
                if o is None: out.append('')
                elif callable(o): out.append(o)
                else:
                    for l in o.split('\n'): out += unpk(l) if opt.get('upk', 1) else [l]
            return out

        def z1load(zr, off, so, nt):
            if nt == 2: k(f'buffer_load_dwordx4 {vr(zr,4)}, v3, s[12:15], {so} offen offset:{off}')
            else: k(f'buffer_load_dwordx2 {vr(zr,2)}, v2, s[12:15], {so} offen offset:{off}')
            vm.issue(f'y{off}')
        RB = [7, 38, 39]
        k('v_add_u32 v38, 0x10000, v7' + ('' if G3X or WL else '\nv_add_u32 v39, 0x20000, v7'))
        if WL: k(f's_mul_i32 s42, s37, {1024*WL}\ns_add_u32 s42, s42, {WSB}\nv_add_u32 v39, s42, v3')
        G2E = opt.get('g2e', [0, 0])[hi]
        if G2E: opt['g2ef'][hi]()
        ev = {}
        def at(p, f): ev.setdefault(p, []).append(f)
        for n in range(6):
            for tt in range(4): at(32 * (n + 1) + 3 + 2 * tt, lambda n=n, tt=tt: wr(n, tt))
        BP = opt.get('G2B', 16)
        if opt.get('pq') == 2: at(opt.get('pqb', 30), lambda: k('s_barrier'))
        at(64 + BP, lambda: bar(1)); at(128 + BP, lambda: bar(3)); at(192 + BP, lambda: bar(5))
        if opt.get('pp'):
            bs = [-1, 64 + BP, 128 + BP, 192 + BP, 224]
            k('s_setprio 3')
            for a, b in zip(bs[:-1], bs[1:]):
                for i in range(4):
                    pp = a + (b - a) * i // 4
                    if pp >= 0: at(pp, lambda i=i: k(f's_setprio {3-i}'))
        at(40, lambda: k((vm.wait('b') or '') + '\nv_lshlrev_b32 v1, 16, v1'))
        if opt.get('opf') is not None:
            def opf():
                k(f'''s_and_b32 s42, s35, 7
s_lshl_b32 s43, s36, 3
s_add_u32 s42, s42, s43
s_mul_i32 s42, s42, {WOB}
s_mul_i32 s43, s34, {18*128}
s_add_u32 s42, s42, s43
v_lshlrev_b32 v40, 3, v3
s_mov_b64 exec, 0x3ffff
buffer_load_ubyte v41, v40, s[28:31], s42 offen
s_mov_b64 exec, -1'''); vm.issue('opf')
            at(opt['opf'], opf)
        fq = []
        if PW:
            PZ = opt.get('pz', [30, 40, 64])
            at(PZ[0], lambda: k('s_barrier'))
            ZF = 'buffer_load_dword v41, v40, s[68:71], s47 offen sc1'
            def zf1(): k(ZF); vm.issue('zf')
            def zf2():
                LP = k.label('lp'); LD = k.label('ld')
                k(f'''{vm.wait('zf') or ''}
v_cmp_eq_u32 vcc, 0, v41
s_cbranch_vccz {LD}
s_mov_b32 s43, {SPIN}
{LP}:
{ZF}
s_waitcnt vmcnt(0)
v_cmp_eq_u32 vcc, 0, v41
s_cbranch_vccz {LD}
s_sub_u32 s43, s43, 1
s_cmp_lg_u32 s43, 0
s_cbranch_scc1 {LP}
{LD}:''')
            at(PZ[1] + (24 if hi else 0), zf1); at(PZ[2] + (24 if hi else 0), zf2)
        if ZQ:
            PZ = opt.get('pz', [1, 44, 60])
            def f2(): k('s_mov_b64 exec, 1\nbuffer_store_dword v10, off, s[68:71], s49 sc1\ns_mov_b64 exec, -1'); vm.issue('f2')
            if opt.get('nzf', 0) < 2: at(PZ[0], f2)
            ZF = 'buffer_load_dword v9, v8, s[68:71], s48 offen sc1'
            def zf1(): k(ZF); vm.issue('zf')
            def zf2():
                LP = k.label('lp'); LD = k.label('ld')
                k(f'''{vm.wait('zf') or ''}
v_cmp_ne_u32 vcc, 2, v9
s_cbranch_vccz {LD}
s_mov_b32 s43, {SPIN}
{LP}:
{ZF}
s_waitcnt vmcnt(0)
v_cmp_ne_u32 vcc, 2, v9
s_cbranch_vccz {LD}
s_sub_u32 s43, s43, 1
s_cmp_lg_u32 s43, 0
s_cbranch_scc1 {LP}
{LD}:''')
            assert PZ[2] + 24 < 97 and PZ[2] < 64 + BP
            if not opt.get('nzf'): at(PZ[1] + (24 if hi else 0), zf1); at(PZ[2] + (24 if hi else 0), zf2)
        if not hi:
            at(PZ[2] + 1 if PW or ZQ else 33, lambda: z1load(Z1, 0, 's44', 2))
            at(160, lambda: z1load(Z1, 2048, 's44', 2))
            fq.append((64 + BP + 1, lambda: unit([0, 1], Z1, 0, 's44', 0)))
            fq.append((192 + BP + 1, lambda: unit([4, 5], Z1, 2048, 's44', 0)))
        else:
            at(97, lambda: z1load(Z1, 1024, 's44', 2))
            at(190, lambda: z1load(Z1 + 4, 3072, 's46', 1))
            fq.append((128 + BP + 1, lambda: unit([2, 3], Z1, 1024, 's44', 0)))
        if G3V:
            def ef():
                assert 's' in vm.tags
                k((vm.wait('s') or '') + '\ns_mov_b64 exec, 1\nbuffer_store_dword v0, off, s[68:71], s61 sc1\ns_mov_b64 exec, -1'); vm.issue('f')
            at(opt.get('g3p', [150, 205])[hi], ef)
            EPP = opt.get('epp', [216, 216])[hi]
            def ep():
                k('v_bfe_u32 v127, v3, 4, 3\nv_lshlrev_b32 v127, 2, v127\nbuffer_load_dword v126, v127, s[68:71], s62 offen sc1'); vm.issue('ep')
            if EPP < 224:
                assert EPP > 192 + BP
                at(EPP, ep)
            if G3V == 2:
                E0, E1, E2 = opt.get('ep0', [182, 198, 2])
                P0L = 'buffer_load_dwordx4 v[40:43], off, s[68:71], s62 sc1'
                def ep0(): k(P0L); vm.issue('ep0')
                at(E0, ep0)
                at(E1, lambda: g3v_gate(k, vm, 'ep0', P0L, 'v_min3_u32 v40, v40, v41, v42\nv_min_u32 v40, v40, v43\nv_cmp_eq_u32 vcc, 0, v40'))
                def a0(tt): k(f'buffer_load_dwordx4 {vr(40+4*tt,4)}, v3, s[16:19], s{63+tt} offen'); vm.issue(f'a{tt}0')
                for tt in range(4): at(E1 + E2 * tt, lambda tt=tt: a0(tt))
        if G3X:
            def ef():
                assert 's' in vm.tags
                k((vm.wait('s') or '') + '\ns_mov_b64 exec, 1\nbuffer_store_dword v0, off, s[68:71], s48 sc1\ns_mov_b64 exec, -1'); vm.issue('f')
            at(opt.get('g3p', [150, 205])[hi], ef)
            E0, E1, A0, AS = opt.get('ep0', [186, 204, 209, 2])
            assert E1 <= 192 + BP < A0
            D0, DS = opt.get('dma', [196, 1])
            if hi:
                def ep0(): k(G3PL); vm.issue('ep0')
                at(E0, ep0)
                ev.setdefault(E1, []).insert(0, lambda: g3x_gate(k, vm, 'ep0', 50))
            def dm(i):
                if i == 0: k(f's_lshr_b32 s60, s61, {int(hi)}\ns_add_u32 s60, s60, s62\ns_add_u32 s60, s60, {(124 if hi else 92)*1024}')
                if i == 4: k('s_add_u32 s60, s60, 4096')
                k(f'buffer_load_dwordx4 {ar(4*i,4)}, v3, s[28:31], s60 offen offset:{1024*(i%4)}'); vm.issue('d')
            for i in range(4 if hi else 8):
                assert D0 + DS * i >= 196 + i
                at(D0 + DS * i, lambda i=i: dm(i))
            def x2():
                if not hi: assert 'r1_1_3' in lg.tags and lg.tags.index('r1_1_3') < lg.done
                k('s_barrier')
            at(opt.get('x2', 126), x2)
            def a0(f): k(f'buffer_load_dwordx4 {ar(32+4*f,4)}, v3, s[16:19], s{63+f} offen'); vm.issue(f'a0{f}')
            for f in range(4): at(A0 + AS * f, lambda f=f: a0(f))
        elif G3W:
            DR, D0, DS = opt.get('dma', [1, 184, 2])
            if hi == DR:
                assert hi or D0 > 192 + BP
                def dm(i):
                    if i == 0 and hi: assert 'r3_1_3' in lg.tags and lg.tags.index('r3_1_3') < lg.done
                    if i % 4 == 0: k(f's_add_u32 s60, s60, {[0, 4096, 28672, 4096][i//4]}\ns_add_u32 m0, s61, {[0, 4096, 32768, 36864][i//4]}')
                    k(f'buffer_load_dwordx4 v3, s[28:31], s60 offen offset:{1024*(i%4)} lds'); vm.issue('o')
                for i in range(16): at(min(D0 + (DS * i if DS > 0 else i // -DS), 223), lambda i=i: dm(i))
        elif opt.get('wp') or WL:
            go, lo_ = g3_wo_ops2(hi)
            pp_ = opt.get('wq0', 196) - 1
            for o, pos, _ in go[:opt.get('wol', [99, 99])[hi]]:
                pp_ = min(max(pp_ + opt.get('wqs', 1), pos), 223)
                def f(o=o): k(o); vm.issue('w0')
                at(pp_, f)
            for o, pos, _ in lo_:
                def f(o=o): k(o); lg.issue('wl')
                at(pos, f)
        elif post:
            po = list(post)[:opt.get('wol', [99, 99])[hi]]
            pn = [0]
            def pw(n):
                for _ in range(n):
                    if po: k(po.pop(0)); vm.issue(f'w{min(pn[0] // 5, 3)}'); pn[0] += 1
            for j in range(1, 8):
                for tt in range(4): at(192 + 4 * j + tt, lambda: pw(1))
        R = opt.get('G2R', 3)
        cur = []
        p = 0
        nq = [N0]
        for n in range(7):
            if n in (1, 3, 5): st(k, 2, 3 + n // 2)
            for j in range(8):
                q = 8 * n + j
                x = vm.wait(f'z{q}')
                if x: k(x)
                if q == 0:
                    x = vm.wait('w')
                    if x: k(x)
                for tt in range(4):
                    acc = vr(ACC(n, tt), 4)
                    if G2E and q == 0 and tt == 4 - G2E: k('s_waitcnt lgkmcnt(0)'); st(k, 2, 9)
                    k(f'{MFMA} {acc}, {vr(ZR+4*(q%NZ),4)}, {ar(16*j+4*tt,4)}, {"0" if j == 0 else acc}')
                    if tt in (1, 3) and nq[0] < q + NZ + (tt == 3): zload(nq[0], vm); nq[0] += 1
                    for f in ev.get(p, []): f()
                    if fq and fq[0][0] <= p: cur += fq.pop(0)[1]()
                    for _ in range(R):
                        if cur:
                            o = cur.pop(0)
                            o() if callable(o) else k(o)
                    p += 1
        if opt.get('clkm'): k('s_memtime s[78:79]')
        st(k, 2, 6)
        EP = opt.get('g3e', 0)
        if early and EP == 0:
            for o in early: k(o); vm.issue('e')
        for tt in range(4): wr(6, tt)
        if early and EP == 1:
            for o in early: k(o); vm.issue('e')
        bar(6)
        if early and EP == 2:
            for o in early: k(o); vm.issue('e')
        st(k, 2, 7)
        if G3V and EPP == 224: ep()
        if hi: cur = unit([6], Z1 + 4, 3072, 's46', 0)
        for o in cur: o() if callable(o) else k(o)
        st(k, 2, 8); st(k, 0, 7)
        k('s_setprio 0')
        if G3X: g3x(k, opt, int(hi), vm)
        if G3V:
            if EPP > 224: ep()
            (g3v_head2 if G3V == 2 else g3v_head)(k, opt, hi, vm)
        k(f's_branch {DONE}')
        return len(vm.tags) - 1 - max([i for i, t in enumerate(vm.tags) if t == 'e'] + [-1])
    n0 = body(False)
    k(f'{HI}:')
    n1 = body(True)
    return min(n0, n1)


def gen_g2(opt):
    k = Kern('k3_kernel', 256, 512, 163840, nvgpr=128, nagpr=128)
    END = k.label('end')
    k(f'''s_cmp_ge_u32 s2, 256
s_cbranch_scc1 {END}
s_load_dwordx2 s[40:41], s[0:1], 80
s_load_dwordx2 s[24:25], s[0:1], 48
s_load_dwordx2 s[72:73], s[0:1], 40''')
    k.stamp(True)
    map_g2(k)
    k(f'''v_lshrrev_b32 v1, 6, v0
v_and_b32 v2, 63, v0
v_readfirstlane_b32 s34, v1
v_lshlrev_b32 v3, 4, v2''')
    w_vaddr(k, 4, 5)
    w_setup(k, 42, 43)
    k('s_waitcnt lgkmcnt(0)')
    vm = Cnt('vmcnt', 63)
    wb = Bulk(k, g2_wops())
    wb(32, vm, 4)
    k('s_waitcnt vmcnt(0)')
    w_trans(k, 4, 5)
    k('s_waitcnt lgkmcnt(0)\ns_barrier')
    st(k, 2, 1)
    ph_g2(k, opt, END, vm, False)
    k.finish(END)
    return k


WOB = 17920
WO8_BYTES = 64 * WOB


def gen_prep8(k, base_wg, END, nwv=5):
    WO = k.label('wo'); J = k.label('j'); WO2 = k.label('wo2'); SG = k.label('sg')
    k(f'''s_load_dwordx2 s[4:5], s[0:1], 32
s_load_dwordx2 s[8:9], s[0:1], 56
v_lshrrev_b32 v1, 6, v0
v_and_b32 v2, 63, v0
v_readfirstlane_b32 s35, v1
s_sub_u32 s33, s2, {base_wg}
s_mul_i32 s33, s33, {nwv}
s_add_u32 s33, s33, s35
v_and_b32 v4, 15, v2
v_lshrrev_b32 v5, 4, v2
v_lshlrev_b32 v3, 4, v2
s_lshl_b32 s47, s35, 13
s_cmp_ge_u32 s35, {nwv}
s_cbranch_scc1 {END}
s_cmp_ge_u32 s33, 440
s_cbranch_scc1 {END}
s_waitcnt lgkmcnt(0)''')
    srd_from(k, 16, 40, 41, WS_WI, WS_WO - WS_WI + WO8_BYTES)
    k(f'''s_mov_b32 s23, 0x00020000
s_cmp_ge_u32 s33, 280
s_cbranch_scc1 {WO}
s_mul_i32 s51, s33, 4682
s_lshr_b32 s51, s51, 16
s_mul_i32 s52, s51, 14
s_sub_u32 s52, s33, s52
s_movk_i32 s50, 3456
s_lshl_b32 s53, s51, 5
s_mov_b32 s57, 8
s_mov_b32 s58, 4
s_mov_b64 s[20:21], s[4:5]
s_mov_b32 s22, {640*3456}
s_branch {J}
{WO}:
s_sub_u32 s34, s33, 280
s_mul_i32 s51, s34, 13108
s_lshr_b32 s51, s51, 16
s_mul_i32 s52, s51, 5
s_sub_u32 s52, s34, s52
s_movk_i32 s50, 1280
s_lshr_b32 s54, s51, 2
s_and_b32 s55, s51, 3
s_mul_i32 s53, s54, 112
s_lshl_b32 s42, s55, 5
s_add_u32 s53, s53, s42
s_mov_b32 s57, 4
s_mov_b32 s58, 16
s_mov_b64 s[20:21], s[8:9]
s_mov_b32 s22, {864*1280}
{J}:
v_mul_u32_u24 v6, s50, v5
v_lshl_add_u32 v6, v4, 4, v6
s_mul_i32 s42, s53, s50
s_lshl_b32 s43, s52, 8
s_add_u32 s42, s42, s43
v_add_u32 v6, s42, v6
s_lshl_b32 s43, s50, 2''')
    for i in range(8):
        k(f's_add_u32 m0, s47, {1024*i}')
        k(f'buffer_load_dwordx4 v6, s[20:23], 0 offen lds')
        if i < 7: k(f'v_add_u32 v6, s43, v6')
    k(f'''v_mul_u32_u24 v6, s57, v5
v_lshrrev_b32 v7, 2, v4
v_add_u32 v6, v6, v7
v_and_b32 v7, 3, v4
v_lshlrev_b32 v7, 3, v7
v_lshl_add_u32 v6, v6, 8, v7
v_add_u32 v6, s47, v6
s_lshl_b32 s42, s58, 8
v_add_u32 v7, s42, v6
v_lshlrev_b32 v8, 3, v2
s_waitcnt vmcnt(0)''')
    prep_tail(k, END, WO2, SG)


def prep_tail(k, END, WO2, SG):
    PADW = gen_fft.OPT.get('padw', 0); NL = '\n'
    BLAY = 's_add_u32 s43, s43, s44\ns_mul_i32 s44, s51, 7'
    if gen_fft.OPT.get('g3v', 0) == 4 or gen_fft.OPT.get('zq'): BLAY = '''s_lshr_b32 s45, s43, 2
s_and_b32 s43, s43, 3
s_add_u32 s43, s43, s44
s_mul_i32 s44, s45, 20
s_add_u32 s44, s44, 60
s_cmp_eq_u32 s46, 0
s_cselect_b32 s44, s44, 0
s_add_u32 s43, s43, s44
s_sub_u32 s44, 4, s45
s_mul_i32 s44, s44, s51'''
    WOA = f's_mul_i32 s56, s54, {WOB}\ns_mul_i32 s42, s55, 5120'
    if gen_fft.OPT.get('g3v', 0) >= 3: WOA = '''s_and_b32 s56, s54, 3
s_lshl_b32 s56, s56, 1
s_lshr_b32 s42, s54, 2
s_add_u32 s56, s56, s42
s_mul_i32 s56, s56, 5120
s_lshr_b32 s42, s56, 1
s_cmp_eq_u32 s55, 3
s_cselect_b32 s56, s42, s56
s_mul_i32 s42, s55, 40960'''
    for i in range(8):
        k(f'ds_read_b64_tr_b16 {vr(16+4*i,2)}, v6 offset:{32*i}')
        k(f'ds_read_b64_tr_b16 {vr(18+4*i,2)}, v7 offset:{32*i}')
    st(k, 5, 6)
    k(f's_cmp_ge_u32 s33, 280\ns_cbranch_scc1 {WO2}')
    for i in range(8):
        if i in (1, 4): st(k, 5, 7 + i // 4)
        k(f'''s_lshl_b32 s42, s52, 3
s_add_u32 s42, s42, {i}
s_add_u32 s43, s42, 2
s_cmp_ge_u32 s42, 54
s_cselect_b32 s43, s43, s42
s_cselect_b32 s46, 0, 1
{f"s_cmp_ge_u32 s42, 110{NL}s_cselect_b32 s43, {48+i}, s43{NL}s_cselect_b32 s46, 1, s46" if PADW and i >= 6 else ""}
s_mul_i32 s44, s43, 9363
s_lshr_b32 s44, s44, 16
s_mul_i32 s45, s44, 7
s_sub_u32 s43, s43, s45
s_and_b32 s44, s44, 7
s_lshl_b32 s44, s44, 1
s_lshr_b32 s45, s43, 2
s_xor_b32 s45, s45, s46
s_add_u32 s44, s44, s45
s_mul_i32 s44, s44, 140
{BLAY}
s_add_u32 s43, s43, s44
s_lshl_b32 s43, s43, 10
{"" if PADW else f"s_cmp_lt_u32 s42, 108{NL}s_cselect_b32 s43, s43, {BIG}"}
s_waitcnt lgkmcnt({14-2*i})
buffer_store_dwordx4 {vr(16+4*i,4)}, v3, s[16:19], s43 offen''')
    k(f'''s_branch {END}
{WO2}:
{WOA}
s_add_u32 s56, s56, {WS_WO-WS_WI}
s_add_u32 s56, s56, s42
s_cmp_lt_u32 s53, 864
s_cselect_b32 s59, -1, 0
s_cmp_lt_u32 s53, 848
s_cselect_b32 s60, -1, 0
s_cmp_eq_u32 s55, 3
s_cbranch_scc1 {SG}''')
    for sg in range(2):
        for i in range(8):
            k(f'''s_lshl_b32 s42, s52, 3
s_add_u32 s42, s42, {i}
s_mul_i32 s44, s42, 13108
s_lshr_b32 s44, s44, 16
s_mul_i32 s45, s44, 5
s_sub_u32 s43, s42, s45
s_mul_i32 s44, s44, {8*WOB}
s_lshl_b32 s43, s43, {9 if sg else 10}
s_add_u32 s43, s43, s44
s_add_u32 s43, s43, s56
s_waitcnt lgkmcnt({14-2*i})''')
            for j in range(2 if sg else 4): k(f'v_and_b32 v{16+4*i+j}, s{59+j//2}, v{16+4*i+j}')
            if sg: k(f'buffer_store_dwordx2 {vr(16+4*i,2)}, v8, s[16:19], s43 offen')
            else: k(f'buffer_store_dwordx4 {vr(16+4*i,4)}, v3, s[16:19], s43 offen')
        k(f's_branch {END}')
        if sg == 0: k(f'{SG}:')


def prep_inl(k, part, LB, END, nv=0, hdr=None):
    WO = k.label('wo'); J = k.label('j'); WO2 = k.label('wo2'); SG = k.label('sg')
    txt = hdr or f"""s_lshl_b32 s33, s2, 1
s_add_u32 s33, s33, s34
s_sub_u32 s33, s33, 6
s_sub_u32 s47, s34, 6
s_lshl_b32 s47, s47, 13
s_add_u32 s47, s47, {LB}
"""
    txt += f"""v_and_b32 v4, 15, v2
v_lshrrev_b32 v5, 4, v2
s_mov_b32 s23, 0x00020000
s_cmp_ge_u32 s33, 280
s_cbranch_scc1 {WO}
s_mul_i32 s51, s33, 4682
s_lshr_b32 s51, s51, 16
s_mul_i32 s52, s51, 14
s_sub_u32 s52, s33, s52
s_movk_i32 s50, 3456
s_lshl_b32 s53, s51, 5
s_mov_b32 s57, 8
s_mov_b32 s58, 4
s_mov_b64 s[20:21], s[62:63]
s_mov_b32 s22, {640*3456}
s_branch {J}
{WO}:
s_sub_u32 s35, s33, 280
s_mul_i32 s51, s35, 13108
s_lshr_b32 s51, s51, 16
s_mul_i32 s52, s51, 5
s_sub_u32 s52, s35, s52
s_movk_i32 s50, 1280
s_lshr_b32 s54, s51, 2
s_and_b32 s55, s51, 3
s_mul_i32 s53, s54, 112
s_lshl_b32 s42, s55, 5
s_add_u32 s53, s53, s42
s_mov_b32 s57, 4
s_mov_b32 s58, 16
s_mov_b64 s[20:21], s[64:65]
s_mov_b32 s22, {864*1280}
{J}:
"""
    if part == 'A':
        txt += """v_mul_u32_u24 v6, s50, v5
v_lshl_add_u32 v6, v4, 4, v6
s_mul_i32 s42, s53, s50
s_lshl_b32 s43, s52, 8
s_add_u32 s42, s42, s43
v_add_u32 v6, s42, v6
s_lshl_b32 s43, s50, 2
"""
        for i in range(8):
            txt += f's_add_u32 m0, s47, {1024*i}\nbuffer_load_dwordx4 v6, s[20:23], 0 offen lds\n'
            if i < 7: txt += 'v_add_u32 v6, s43, v6\n'
        mp = dict(s33='s16', s35='s17', s42='s18', s43='s19', s47='s24', s50='s25', s51='s26', s52='s27', s53='s28', s54='s29', s55='s30', s57='s31', s58='s31', v4='v104', v5='v105', v6='v106')
        txt = re.sub(r'\b([sv]\d+)\b', lambda m: mp.get(m.group(1), m.group(1)), txt)
        k(txt)
        return
    k(txt)
    if not hdr: k(f's_cmp_ge_u32 s33, 440\ns_cbranch_scc1 {END}')
    srd_from(k, 16, 40, 41, WS_WI, WS_WO - WS_WI + WO8_BYTES)
    k(f"""v_mul_u32_u24 v6, s57, v5
v_lshrrev_b32 v7, 2, v4
v_add_u32 v6, v6, v7
v_and_b32 v7, 3, v4
v_lshlrev_b32 v7, 3, v7
v_lshl_add_u32 v6, v6, 8, v7
v_add_u32 v6, s47, v6
s_lshl_b32 s42, s58, 8
v_add_u32 v7, s42, v6
v_lshlrev_b32 v8, 3, v2""")
    st(k, 5, 4)
    k(f's_waitcnt vmcnt({nv})')
    st(k, 5, 5)
    prep_tail(k, END, WO2, SG)


BB = 20480


def gelu_pk(k, pk, n, x, p, out, vc, tr=False, sc=False):
    for i in range(0, n if pk is not None else 0, 2):
        k(f'v_lshlrev_b32 v{x+i}, 16, v{pk+i//2}\nv_and_b32 v{x+i+1}, 0xffff0000, v{pk+i//2}')
    if sc:
        for i in range(n): k(f'v_mul_f32 v{p+i}, v{x+i}, v{x+i}')
        for i in range(n): k(f'v_fma_f32 v{p+i}, v{p+i}, {"s62" if GV else f"v{vc}"}, v{vc+1}')
        for i in range(n): k(f'v_mul_f32 v{p+i}, v{p+i}, v{x+i}')
    else:
        for i in range(0, n, 2):
            k(f'v_pk_mul_f32 {vr(p+i,2)}, {vr(x+i,2)}, {vr(x+i,2)}')
        for i in range(0, n, 2):
            if GV == 1: k(f'v_pk_fma_f32 {vr(p+i,2)}, {vr(p+i,2)}, s[62:63], {vr(vc,2)}')
            elif GV == 2: k(f'v_fma_f32 v{p+i}, v{p+i}, s62, v{vc+1}\nv_fma_f32 v{p+i+1}, v{p+i+1}, s62, v{vc+1}')
            else: k(f'v_pk_fma_f32 {vr(p+i,2)}, {vr(p+i,2)}, {vr(vc,2)}, {vr(vc,2)} op_sel:[0,0,1] op_sel_hi:[1,0,1]')
        for i in range(0, n, 2):
            k(f'v_pk_mul_f32 {vr(p+i,2)}, {vr(p+i,2)}, {vr(x+i,2)}')
    for i in range(n):
        k(f'v_exp_f32 v{p+i}, v{p+i}')
    if sc:
        for i in range(n): k(f'v_add_f32 v{p+i}, 1.0, v{p+i}')
    else:
        for i in range(0, n, 2):
            k(f'v_pk_add_f32 {vr(p+i,2)}, {vr(p+i,2)}, 1.0 op_sel_hi:[1,0]')
    for i in range(n):
        k(f'v_rcp_f32 v{p+i}, v{p+i}')
    if sc:
        for i in range(n): k(f'v_mul_f32 v{p+i}, v{p+i}, v{x+i}')
    else:
        for i in range(0, n, 2):
            k(f'v_pk_mul_f32 {vr(p+i,2)}, {vr(p+i,2)}, {vr(x+i,2)}')
    for i in range(0, n, 2):
        if tr:
            a = [0, 4, 1, 5][i // 2]
            k(f'v_cvt_pk_bf16_f32 v{out+i//2}, v{p+a}, v{p+a+2}')
        else: k(f'v_cvt_pk_bf16_f32 v{out+i//2}, v{p+i}, v{p+i+1}')


class Bulk:
    def __init__(self, k, ops): self.k = k; self.ops = list(ops)
    def copy(self): return Bulk(self.k, self.ops)
    def __call__(self, n, vm, va, tag='w'):
        for _ in range(n):
            if not self.ops: return
            self.k(self.ops.pop(0).replace('@', f'v{va}'))
            if vm is not None: vm.issue(tag)


def weave_in(k, i0, q, n, vm, va, tag='q'):
    body = k.lines[i0:]
    ok = []; full = True
    for i, l in enumerate(body):
        if l.startswith('s_mov_b64 exec, -1'): full = True
        elif 'exec' in l.split(',')[0] or 'saveexec' in l: full = False
        if full and l.startswith(('v_', 'ds_')) and not l.startswith('v_cmp') and 'vcc' not in l: ok.append(i)
    n = min(n, len(q.ops))
    if not n: return
    pos = {}
    for j in range(n):
        p = ok[(j * len(ok)) // n]
        pos[p] = pos.get(p, 0) + 1
    del k.lines[i0:]
    for i, l in enumerate(body):
        if i in pos: q(pos[i], vm, va, tag)
        k.lines.append(l)


def flag(k, srd, soff):
    k(f'''s_mov_b64 exec, 1
v_mov_b32 v8, 1
v_mov_b32 v9, 0
buffer_store_dword v8, v9, {sr(srd,4)}, {soff} offen sc1
s_mov_b64 exec, -1''')


def ph_k2a(k, opt, wb):
    RP = 144; NP = 11 * RP + 16
    TB2 = 0
    SKIP = k.label('skip')
    vm = Cnt('vmcnt', 63)
    k(f'''s_load_dwordx2 s[4:5], s[0:1], 0
s_load_dwordx2 s[40:41], s[0:1], 80
s_load_dwordx2 s[72:73], s[0:1], 40
s_load_dwordx2 s[80:81], s[0:1], 64''')
    tab_srd(k, 12)
    k(f'''s_and_b32 s3, s2, 7
s_lshl_b32 s3, s3, 5
s_lshr_b32 s33, s2, 3
s_add_u32 s3, s3, s33
s_lshl_b32 s33, s3, 6
s_add_u32 s33, s33, 32768
s_load_dwordx16 s[16:31], s[12:13], s33
v_lshrrev_b32 v1, 6, v0
v_and_b32 v2, 63, v0
v_readfirstlane_b32 s34, v1
v_lshlrev_b32 v3, 4, v2
s_movk_i32 s38, 0x4000
s_lshl_b32 s39, s34, 11
s_add_u32 m0, s39, {TB2}
s_add_u32 s38, s38, s39
s_cmp_lt_u32 s34, 5
s_cselect_b32 s38, s38, {BIG}
buffer_load_dwordx4 v3, s[12:15], s38 offen lds
buffer_load_dwordx4 v3, s[12:15], s38 offen offset:1024 lds''')
    vm.issue('t'); vm.issue('t')
    k(f'''s_mul_i32 s46, s3, {8*TP}
s_add_u32 s47, s46, {3*TP}
s_add_u32 s48, s46, {6*TP}
v_lshlrev_b32 v60, 2, v0
s_lshl_b32 s35, s34, 8
s_add_u32 s35, s35, s3
s_mul_i32 s35, s35, 1280
v_and_b32 v50, 15, v2
v_lshrrev_b32 v51, 4, v2
v_lshlrev_b32 v52, 6, v50
v_lshl_add_u32 v52, v51, 4, v52
v_add_u32 v53, 1024, v52
v_mov_b32 v54, 0x7fffffff
v_cmp_gt_u32 vcc, 4, v50
v_cndmask_b32 v53, v54, v53, vcc''')
    k(f'''s_mul_i32 s59, s34, {NP}
v_add_u32 v112, s59, v52
v_and_b32 v113, 3, v2
v_mul_u32_u24 v113, {NP}, v113
v_lshrrev_b32 v114, 2, v2
v_lshl_add_u32 v113, v114, 4, v113
s_cmp_ge_u32 s34, 5
s_cselect_b32 s59, {4*NP-5*256}, 0
s_lshl_b32 s60, s34, 8
s_add_u32 s59, s59, s60
v_add_u32 v113, s59, v113
s_mul_i32 s59, s3, 10240
s_lshl_b32 s60, s34, 10
s_add_u32 s59, s59, s60
s_add_u32 s49, s59, 8192
s_cmp_lt_u32 s34, 2
s_cselect_b32 s49, s49, {BIG}''')
    k(f'''s_and_b32 s58, s3, 15
s_mul_i32 s58, s58, {140*1024}
s_mul_i32 s57, s34, {18*1024}
s_min_u32 s57, s57, {122*1024}
s_add_u32 s56, s57, {BB}
s_add_u32 s57, s57, s58
s_waitcnt lgkmcnt(0)''')
    srd_from(k, 4, 4, 5, 0, X_BYTES)
    srd_from(k, 8, 40, 41, WS_U, TU_BYTES)
    for k2 in range(8):
        k(f'buffer_load_dword v{4+k2}, v60, s[8:11], s{46+k2//3} offen offset:{(k2%3)*TP+4*(k2&1)*(opt.get("sh",0)>0)}')
        vm.issue('u')
    k(f'''buffer_load_dwordx4 v[104:107], v52, s[4:7], s35 offen
buffer_load_dwordx4 v[108:111], v53, s[4:7], s35 offen''')
    vm.issue('x'); vm.issue('x')
    srd_from(k, 52, 40, 41, WS_H, X_BYTES)
    srd_from(k, 60, 40, 41, WS_HN, X_BYTES)
    srd_from(k, 64, 40, 41, WS_WI, WI_BYTES)
    if wb:
        w_setup(k, 42, 43); w_vaddr(k, 114, 115)
    if opt.get('ub'): k('s_barrier')
    bq = [] if opt.get('nob') else list(range(18))
    BP = opt.get('BP', [10, 8, 0, 0, 0, 0])
    assert sum(BP) >= 18

    def bulk(i):
        for _ in range(BP[i]):
            if bq:
                i = bq.pop(0)
                if i % 4 == 0:
                    k(f's_add_u32 m0, s56, {1024*i}')
                    if i: k('s_add_u32 s57, s57, 4096')
                k(f'buffer_load_dwordx4 v3, s[64:67], s57 offen offset:{1024*(i%4)} lds'); vm.issue('b')
            elif wb: wb(1, vm, 114)
    bulk(0)
    k(f'''v_mul_u32_u24 v55, 3277, v0
v_lshrrev_b32 v55, 16, v55
v_mul_u32_u24 v56, 20, v55
v_sub_u32 v56, v0, v56
v_mul_u32_u24 v57, {RP}, v56
v_lshl_add_u32 v57, v55, 2, v57
v_mov_b32 v58, {11*RP}
v_cmp_ge_u32 vcc, 10, v56
v_cndmask_b32 v57, v58, v57, vcc
v_sub_u32 v59, 20, v56
v_mul_u32_u24 v59, {RP}, v59
v_sub_u32 v61, 31, v55
v_lshl_add_u32 v59, v61, 2, v59
v_cmp_le_u32 vcc, 10, v56
v_cndmask_b32 v59, v58, v59, vcc
v_sub_u32 v61, 32, v55
v_lshlrev_b32 v61, 2, v61
v_cmp_eq_u32 vcc, 0, v56
v_cndmask_b32 v59, v59, v61, vcc
v_cmp_eq_u32 vcc, 0, v0
v_cndmask_b32 v59, v59, v58, vcc
v_cmp_eq_u32 vcc, 320, v0
v_cndmask_b32 v59, v59, v58, vcc
v_mov_b32 v40, 0x3f3504f3
v_min_u32 v62, 10, v50
v_mul_u32_u24 v62, {RP}, v62
v_lshl_add_u32 v62, v51, 4, v62
s_mul_i32 s42, s34, {NP}
v_add_u32 v62, s42, v62
v_and_b32 v63, 1, v2
v_lshlrev_b32 v63, 31, v63
v_or_b32 v63, 1.0, v63
''')
    k(vm.wait('t')); k('s_barrier')
    for i in range(10): k(f'ds_read_b128 {vr(64+4*i,4)}, v3 offset:{TB2+1024*i}')
    bulk(1)
    k('s_waitcnt lgkmcnt(0)\ns_barrier')
    k(f'''v_cmp_gt_u32 vcc, 321, v0
s_and_saveexec_b64 s[44:45], vcc''')
    k(vm.wait('u'))
    st(k, 1, 1); st(k, 0, 1)
    k(f'''s_cbranch_execz {SKIP}''')
    for k2 in range(8):
        k(f'v_lshlrev_b32 v{20+2*k2}, 16, v{4+k2}\nv_and_b32 v{21+2*k2}, 0xffff0000, v{4+k2}')
    for k2 in range(8):
        if k2 == 0:
            k('v_mov_b32 v4, v20\nv_mov_b32 v5, v21')
        else:
            smul(k, 4 + 2 * k2, 20 + 2 * k2, 16 + 2 * k2, 42 + 2 * (k2 & 1), conj=True)
    T = fft8(k, 4, 20, True, 40)
    for n in range(8):
        k(f'''v_cvt_pk_bf16_f32 v{4+2*n}, v{T[n]}, v{T[n]+1}
v_cvt_pk_bf16_f32 v{5+2*n}, v{T[n]}, -v{T[n]+1}
ds_write_b32 v57, v{4+2*n} offset:{n*NP}
ds_write_b32 v59, v{5+2*n} offset:{n*NP}''')
    k(f'''{SKIP}:
s_mov_b64 exec, -1''')
    bulk(2)
    k(f'''s_waitcnt lgkmcnt(0)
s_barrier
ds_read_b128 v[4:7], v62
ds_read_b128 v[8:11], v62 offset:64''')
    bulk(3)
    k(f'''s_waitcnt lgkmcnt(1)''')
    for u in range(2):
        if u == 1: k('s_waitcnt lgkmcnt(0)')
        for t in range(2):
            k(f'{MFMA} {vr(12+16*u+8*t,4)}, {vr(4+4*u,4)}, {vr(64+8*t,4)}, 0')
            k(f'{MFMA} {vr(16+16*u+8*t,4)}, {vr(4+4*u,4)}, {vr(68+8*t,4)}, 0')
    bulk(4)
    for i in range(0, 16, 2):
        k(f'v_pk_fma_f32 {vr(12+i,2)}, {vr(28+i,2)}, v[62:63], {vr(12+i,2)} op_sel:[0,1,0] op_sel_hi:[1,1,1]')
    for t in range(2):
        cmul_planar(k, 12 + 8 * t, 16 + 8 * t, 80 + 8 * t, 84 + 8 * t, 28, 32, 36)
        k(f'''v_cvt_pk_bf16_f32 v{4+4*t}, v28, v29
v_cvt_pk_bf16_f32 v{5+4*t}, v30, v31
v_cvt_pk_bf16_f32 v{6+4*t}, v32, v33
v_cvt_pk_bf16_f32 v{7+4*t}, v34, v35''')
    for v in range(2):
        for t in range(2):
            k(f'{MFMA} {vr(12+8*v+4*t,4)}, {vr(4+4*t,4)}, {vr(96+4*v,4)}, 0')
    bulk(5)
    k(vm.wait('x'))
    for i in range(8):
        k(f'v_lshlrev_b32 v{28+2*i}, 16, v{104+i}\nv_and_b32 v{29+2*i}, 0xffff0000, v{104+i}')
    for i in range(8):
        k(f'v_cvt_pk_bf16_f32 v{4+i}, v{12+2*i}, v{13+2*i}')
    for i in range(8):
        k(f'v_lshlrev_b32 v{12+2*i}, 16, v{4+i}\nv_and_b32 v{13+2*i}, 0xffff0000, v{4+i}')
    for i in range(8):
        k(f'v_pk_add_f32 {vr(12+2*i,2)}, {vr(12+2*i,2)}, {vr(28+2*i,2)}')
    for i in range(8):
        k(f'v_cvt_pk_bf16_f32 v{4+i}, v{12+2*i}, v{13+2*i}')
    k('''buffer_store_dwordx4 v[4:7], v52, s[52:55], s35 offen sc1
buffer_store_dwordx4 v[8:11], v53, s[52:55], s35 offen sc1''')
    for i in range(8):
        k(f'v_lshlrev_b32 v{12+2*i}, 16, v{4+i}\nv_and_b32 v{13+2*i}, 0xffff0000, v{4+i}')
    k('''v_pk_add_f32 v[28:29], v[12:13], v[14:15]
v_pk_mul_f32 v[30:31], v[12:13], v[12:13]
v_pk_add_f32 v[32:33], v[16:17], v[18:19]
v_pk_mul_f32 v[34:35], v[14:15], v[14:15]''')
    for i in range(2, 8):
        k(f'v_pk_fma_f32 {vr(30+4*(i&1),2)}, {vr(12+2*i,2)}, {vr(12+2*i,2)}, {vr(30+4*(i&1),2)}')
        if i >= 4:
            k(f'v_pk_add_f32 {vr(28+4*(i&1),2)}, {vr(28+4*(i&1),2)}, {vr(12+2*i,2)}')
    k('''v_pk_add_f32 v[28:29], v[28:29], v[32:33]
v_pk_add_f32 v[30:31], v[30:31], v[34:35]
v_add_f32 v28, v28, v29
v_add_f32 v30, v30, v31''')
    wave_reduce2(k, 28, 30, 36, 37)
    ln_stats(k, 36, 37, 640, 28, 30, 32)
    ln_apply(k, 12, 16, 28, 30, 40)
    srd_from(k, 68, 40, 41, WS_FL, FL_BYTES)
    k(f'''ds_write_b128 v112, v[40:43]
s_mov_b32 exec_lo, 0x000f000f
s_mov_b32 exec_hi, 0x000f000f
ds_write_b128 v112, v[44:47] offset:1024
s_mov_b64 exec, -1
s_waitcnt lgkmcnt(0)
s_barrier
ds_read_b128 v[40:43], v113
ds_read_b128 v[44:47], v113 offset:{4*NP+3*256}
s_waitcnt lgkmcnt(1)
buffer_store_dwordx4 v[40:43], v3, s[60:63], s59 offen sc1
s_waitcnt lgkmcnt(0)
buffer_store_dwordx4 v[44:47], v3, s[60:63], s49 offen sc1''')
    st(k, 1, 2); st(k, 0, 2)


def ph_k12(k, opt, wb):
    P = 1040; W0 = 16 * P; TB1 = 32 * P; TB2 = TB1 + 8192
    RP = 144; NP = 11 * RP + 16
    IDLE = k.label('idle'); JOIN = k.label('join'); SKIP = k.label('skip')
    vm = Cnt('vmcnt', 63)
    k(f"""s_load_dwordx4 s[4:7], s[0:1], 8
s_load_dwordx2 s[40:41], s[0:1], 80
s_load_dwordx2 s[72:73], s[0:1], 40
s_load_dwordx2 s[80:81], s[0:1], 64""")
    tab_srd(k, 12)
    k(f"""s_and_b32 s33, s2, 7
s_lshr_b32 s35, s2, 3
v_lshrrev_b32 v1, 6, v0
v_and_b32 v2, 63, v0
v_readfirstlane_b32 s34, v1
v_lshlrev_b32 v3, 4, v2
v_and_b32 v4, 15, v2
v_lshrrev_b32 v5, 4, v2
s_lshl_b32 s39, s34, 10
s_add_u32 m0, s39, {TB1}
s_add_u32 s38, s39, 0x2000
buffer_load_dwordx4 v3, s[12:15], s38 offen lds""")
    vm.issue('t1')
    IIM = 'v[112:115]'; IRE = 'v[114:117]'; FIM = 'v[116:119]'; FRE = 'v[118:121]'
    k(f"""v_mul_u32_u24 v6, {16*8*TP}, v4
v_lshl_add_u32 v6, v5, 4, v6
s_lshl_b32 s36, s34, 4
s_add_u32 s36, s36, s33
s_mul_i32 s45, s36, 642
s_mul_i32 s36, s36, {TP}
s_lshl_b32 s37, s35, 6
s_add_u32 s36, s36, s37
s_add_u32 s42, s36, {8*TP}
s_lshl_b32 s37, s35, 5
s_add_u32 s45, s45, s37
s_and_b32 s45, s45, -4
v_and_b32 v7, 1, v5
v_lshrrev_b32 v8, 1, v5
v_lshl_add_u32 v9, v4, 4, v7
v_mul_u32_u24 v9, {8*642}, v9
v_lshl_add_u32 v9, v8, 4, v9
s_and_b32 s37, s33, 1
s_lshl_b32 s37, s37, 2
s_sub_u32 s43, s36, s37
s_sub_u32 s44, s42, s37
s_lshl_b32 s3, s33, 5
s_add_u32 s3, s3, s35
s_cmp_lt_u32 s2, 168
s_cselect_b32 s43, s43, {BIG}
s_cselect_b32 s44, s44, {BIG}
s_cselect_b32 s45, s45, {BIG}
s_waitcnt lgkmcnt(0)""")
    srd_from(k, 60, 40, 41, WS_T, TU_BYTES)
    for i in range(2):
        k(f'buffer_load_dwordx4 {vr(16+4*i,4)}, v6, s[60:63], s{43+i} offen'); vm.issue(f'T{i}')
    k(f"""s_mov_b32 s52, s6
s_mov_b32 s53, s7
s_mov_b32 s6, {2048*642}
s_mov_b32 s7, 0x00020000
s_mov_b32 s54, {2048*642}
s_mov_b32 s55, 0x00020000""")
    WP = opt.get('k1wp', 0)

    def wld():
        k(f"""buffer_load_dwordx4 v[32:35], v9, s[4:7], s45 offen
buffer_load_dwordx4 v[38:41], v9, s[52:55], s45 offen
s_load_dwordx2 s[4:5], s[0:1], 0""")
        vm.issue('W'); vm.issue('W')
    if opt.get('ob1'): k('s_barrier')
    if WP == 0: wld()
    k(f"""s_min_u32 s39, s34, 4
s_lshl_b32 s39, s39, 11
s_add_u32 m0, s39, {TB2}
s_add_u32 s38, s39, 0x4000
buffer_load_dwordx4 v3, s[12:15], s38 offen lds
buffer_load_dwordx4 v3, s[12:15], s38 offen offset:1024 lds
s_lshl_b32 s38, s3, 6
s_add_u32 s38, s38, 32768
s_load_dwordx16 s[16:31], s[12:13], s38""")
    vm.issue('t2'); vm.issue('t2')
    srd_from(k, 8, 40, 41, WS_U, TU_BYTES)
    srd_from(k, 64, 40, 41, WS_WI, WI_BYTES)
    w_setup(k, 46, 47); w_vaddr(k, 124, 125)
    BR = opt.get('brot', 0)
    g1id(k, 58, 57)
    k(f"""s_and_b32 s58, s58, 15
s_mul_i32 s58, s58, {140*1024}
s_mul_i32 s57, s34, {14*1024}
s_add_u32 s57, s57, {31*1024}
s_min_u32 s57, s57, {(124 if BR else 126)*1024}
s_add_u32 s56, s57, {BB}
s_add_u32 s57, s57, s58""")
    if opt.get('hot'): k('s_sub_u32 s57, s57, s58\ns_mov_b32 s58, 0\ns_and_b32 s50, s50, 0x7fff\ns_and_b32 s51, s51, 0x7fff\ns_and_b32 s82, s82, 0x7fff')
    if opt.get('hotw'): k('s_and_b32 s50, s50, 0x7fff\ns_and_b32 s51, s51, 0x7fff\ns_and_b32 s82, s82, 0x7fff')
    if opt.get('hotb'): k('s_sub_u32 s57, s57, s58\ns_mov_b32 s58, 0')
    if BR: k('s_bfe_u32 s38, s3, 0x10004\ns_lshl_b32 s38, s38, 13')
    bops = []
    for i in range(0 if opt.get('nob') else (16 if BR else 14)):
        if BR:
            o = f's_xor_b32 s39, s38, {1024*(i-i%4)}\ns_add_u32 m0, s56, s39\ns_add_u32 s39, s39, s57\n'
            bops.append(o + f'buffer_load_dwordx4 v3, s[64:67], s39 offen offset:{1024*(i%4)} lds')
            continue
        o = f's_add_u32 m0, s56, {1024*(i-i%4)}\n'
        if i % 4 == 0 and i: o += 's_add_u32 s57, s57, 4096\n'
        bops.append(o + f'buffer_load_dwordx4 v3, s[64:67], s57 offen offset:{1024*(i%4)} lds')
    wops = wb.ops
    NWL = opt.get('nwl', 0)
    wpre = wops[:len(wops) - NWL]; wb.ops = wops[len(wops) - NWL:]
    order = opt.get('bo', 0)
    if order == 0: pre = wpre + bops
    elif order == 1: pre = bops + wpre
    else:
        pre = []
        a, b = list(wpre), list(bops)
        while a or b:
            pre += a[:8]; a = a[8:]
            pre += b[:4]; b = b[4:]
    import copy
    KP = opt.get('KP', [8, 4, 4, 4, 4, 4, 4, 4, 4, 99])
    CP = opt.get('CP', [0, 0, 0, 0, 0])
    NPRE = sum(KP) + sum(opt.get('KW', [0, 0, 0])[:2])
    post = pre[NPRE:]; pre = pre[:NPRE]
    assert len(post) <= sum(CP) + opt.get('KW', [0, 0, 0])[2], (len(post), CP)
    k(f's_cmp_ge_u32 s2, 168\ns_cbranch_scc1 {IDLE}')
    vi = copy.deepcopy(vm)
    q = Bulk(k, pre)

    def bulk(i): q(KP[i], vm, 124, 'q')
    bulk(0)
    k(f"""v_mul_u32_u24 v10, {4*P}, v5
v_lshl_add_u32 v10, v4, 2, v10
s_lshl_b32 s37, s34, 7
v_add_u32 v10, s37, v10
v_mul_u32_u24 v11, {8*P}, v8
v_lshl_add_u32 v11, v7, 6, v11
v_lshl_add_u32 v11, v4, 2, v11
v_add_u32 v11, s37, v11
v_lshlrev_b32 v12, 6, v4
v_lshl_add_u32 v12, v5, 4, v12
s_mul_i32 s37, s34, {2*P}
v_add_u32 v12, s37, v12
s_mov_b32 s47, 0x05040100
s_mov_b32 s48, 0x07060302""")
    for i in range(2):
        k(vm.wait(f'T{i}'))
        if i == 0: st(k, 4, 1)
        for j in range(4):
            k(f'ds_write_b32 v10, v{16+4*i+j} offset:{j*P+64*i}')
    if WP == 1: wld()
    bulk(1)
    k('s_waitcnt lgkmcnt(0)\ns_barrier')
    NC = 2
    KW = opt.get('KW', [0, 0, 0])
    i0 = len(k.lines)
    k(f"""ds_read_b128 v[96:99], v3 offset:{TB1}
ds_read_b128 v[16:19], v12
ds_read_b128 v[100:103], v3 offset:{TB1+1024}
ds_read_b128 v[20:23], v12 offset:{P}
ds_read_b128 v[104:107], v3 offset:{TB1+2048}
ds_read_b128 v[108:111], v3 offset:{TB1+3072}
ds_read_b128 v[118:121], v3 offset:{TB1+4096}
ds_read_b64 v[116:117], v3 offset:{TB1+5120}
ds_read_b128 v[112:115], v3 offset:{TB1+7168}""")
    bulk(2)
    k(f"""s_waitcnt lgkmcnt(7)
{MFMA} v[48:51], v[16:19], v[96:99], 0
s_waitcnt lgkmcnt(6)
{MFMA} v[52:55], v[16:19], v[100:103], 0
s_waitcnt lgkmcnt(5)
{MFMA} v[56:59], v[20:23], v[96:99], 0
{MFMA} v[60:63], v[20:23], v[100:103], 0""")
    bulk(3)
    k('s_waitcnt lgkmcnt(0)')

    def pack(c, re, im):
        k(f"""v_cvt_pk_bf16_f32 v{16+4*c}, v{re}, v{re+1}
v_cvt_pk_bf16_f32 v{17+4*c}, v{re+2}, v{re+3}
v_cvt_pk_bf16_f32 v{18+4*c}, v{im}, v{im+1}
v_cvt_pk_bf16_f32 v{19+4*c}, v{im+2}, v{im+3}""")
    for c in range(NC):
        cmul_planar(k, 48 + 8 * c, 52 + 8 * c, 104, 108, 80, 84, 88)
        pack(c, 80, 84)
        k(f'{MFMA} {vr(48+8*c,4)}, {FRE}, {vr(16+4*c,4)}, 0')
        k(f'{MFMA} {vr(52+8*c,4)}, {FIM}, {vr(16+4*c,4)}, 0')
    bulk(4)
    weave_in(k, i0, q, KW[0], vm, 124)
    k(vm.wait('W') or '')
    k(vm.wait('t2') or '')
    st(k, 4, 2)
    i0 = len(k.lines)
    for j in range(8):
        k(f'v_perm_b32 v{64+j}, v{38+j//2}, v{32+j//2}, s{47+(j&1)}')
        k(f'ds_write_b32 v11, v{64+j} offset:{W0+j*P}')
    bulk(5)
    k(f's_waitcnt lgkmcnt(0)\ns_barrier')
    for c in range(NC):
        k(f'ds_read_b128 {vr(32+4*c,4)}, v12 offset:{W0+c*P}')
    bulk(6)
    for c in range(NC):
        k(f's_waitcnt lgkmcnt({NC-1-c})')
        for r in range(4):
            k(f'v_lshlrev_b32 v{64+8*c+r}, 16, v{32+4*c+r}\nv_and_b32 v{68+8*c+r}, 0xffff0000, v{32+4*c+r}')
        cmul_planar(k, 48 + 8 * c, 52 + 8 * c, 64 + 8 * c, 68 + 8 * c, 80, 84, 88)
        pack(c, 80, 84)
        k(f'{MFMA} {vr(48+8*c,4)}, {vr(16+4*c,4)}, {IRE}, 0')
        k(f'{MFMA} {vr(52+8*c,4)}, {vr(16+4*c,4)}, {IIM}, 0')
    bulk(7)
    for c in range(NC):
        cmul_planar(k, 48 + 8 * c, 52 + 8 * c, 104, 108, 80, 84, 88, conj=True)
        pack(c, 80, 84)
        k(f'{MFMA} {vr(48+8*c,4)}, {IRE}, {vr(16+4*c,4)}, 0')
        k(f'{MFMA} {vr(52+8*c,4)}, {IIM}, {vr(16+4*c,4)}, 0')
    bulk(8)
    for c in range(NC):
        for r in range(4):
            k(f'v_cvt_pk_bf16_f32 v{16+4*c+r}, v{48+8*c+r}, v{52+8*c+r}')
        k(f'ds_write_b128 v12, {vr(16+4*c,4)} offset:{c*P}')
    weave_in(k, i0, q, KW[1], vm, 124)
    k('s_waitcnt lgkmcnt(0)\ns_barrier')
    for i in range(2):
        for j in range(4):
            k(f'ds_read_b32 v{16+4*i+j}, v10 offset:{j*P+64*i}')
    for i in range(10): k(f'ds_read_b128 {vr(64+4*i,4)}, v3 offset:{TB2+1024*i}')
    for i in range(2):
        k(f's_waitcnt lgkmcnt({14-4*i})')
        k(f'buffer_store_dwordx4 {vr(16+4*i,4)}, v6, s[8:11], {["s36","s42"][i]} offen sc1')
    st(k, 4, 3)
    if opt.get('ob2'): k('s_barrier')
    q(99, vm, 124, 'q')
    k(f's_branch {JOIN}\n{IDLE}:')
    if WP: k('s_load_dwordx2 s[4:5], s[0:1], 0')
    if opt.get('it2'):
        WM = opt.get('wte', 0)
        k(f'''s_sub_u32 s43, s35, 21
s_and_b32 s44, s33, 1
s_mul_i32 s44, s44, 11
s_add_u32 s43, s43, s44
s_mul_i32 s44, s34, 22
s_add_u32 s44, s44, s43
s_add_u32 s44, s44, {64*WM}
s_add_u32 s45, s44, 176
s_lshr_b32 s46, s33, 1
s_lshl_b32 s46, s46, 18
v_lshlrev_b32 v10, 7, v2''')
        for r in (44, 45)[:2 if 64*(4-WM) > 176 else 1]:
            k(f'''s_and_b32 s47, s{r}, 31
s_lshl_b32 s47, s47, 13
s_add_u32 s47, s47, s46
s_bfe_u32 s48, s{r}, 0x10005
s_lshl_b32 s48, s48, 22
s_add_u32 s47, s47, s48
s_lshr_b32 s48, s{r}, 6
s_lshl_b32 s48, s48, 20
s_add_u32 s47, s47, s48
s_cmp_lt_u32 s{r}, 256
s_cselect_b32 s47, s47, {BIG}
buffer_load_ubyte v11, v10, s[72:75], s47 offen''')
            vi.issue('q')
            if opt['it2'] > 1: k('s_barrier')
    if opt.get('itd'): k(f's_sleep {opt["itd"]}')
    if opt.get('it'):
        k(f'''s_sub_u32 s43, s35, 21
s_and_b32 s44, s33, 1
s_mul_i32 s44, s44, 11
s_add_u32 s43, s43, s44
s_lshl_b32 s44, s43, 3
s_add_u32 s44, s44, s34
s_mul_i32 s45, s34, 22
s_add_u32 s45, s45, s43
s_add_u32 s45, s45, 176
s_lshr_b32 s46, s33, 1
s_lshl_b32 s46, s46, 18
v_lshlrev_b32 v10, 7, v2''')
        for r in (44, 45):
            k(f'''s_and_b32 s47, s{r}, 31
s_lshl_b32 s47, s47, 13
s_lshr_b32 s48, s{r}, 5
s_lshl_b32 s48, s48, 20
s_add_u32 s47, s47, s48
s_add_u32 s47, s47, s46
buffer_load_ubyte v11, v10, s[72:75], s47 offen''')
            vi.issue('q')
        if opt.get('bt'):
            k('''s_load_dwordx2 s[44:45], s[0:1], 48
s_mov_b32 s46, 4096
s_mov_b32 s47, 0x00020000
v_lshlrev_b32 v12, 6, v2
s_waitcnt lgkmcnt(0)
buffer_load_ubyte v11, v12, s[44:47], 0 offen''')
            vi.issue('q')
        if opt['it'] > 1: k('s_barrier')
    if opt.get('iw'):
        wp = [o for o in pre if o in wpre]; bp = [o for o in pre if o not in wpre]
        assert len(bp) == len(bops)
        IW = opt['iw']
        nb0 = opt.get('ib0', 0)
        Bulk(k, bp[:nb0])(99, vi, 124, 'q')
        Bulk(k, wp)(99, vi, 124, 'q')
        k('s_mov_b32 s46, s50\ns_mov_b32 s47, s51')
        Bulk(k, wpre[len(wp):len(wp) + IW])(99, vi, 124, 'q')
        k('s_mov_b32 s50, s46\ns_mov_b32 s51, s47')
        Bulk(k, bp[nb0:])(99, vi, 124, 'q')
    else:
        q = Bulk(k, pre)
        q(99, vi, 124, 'q')
    k(vi.wait('t2'))
    k('s_barrier')
    for i in range(10): k(f'ds_read_b128 {vr(64+4*i,4)}, v3 offset:{TB2+1024*i}')
    if opt.get('idl'): k(f's_sleep {opt["idl"]}')
    k(f'{JOIN}:')
    ph_k2b(k, opt, post, NWL)


def ph_k2b(k, opt, post, NWL=0, fused=False):
    RP = 144; NP = 11 * RP + 16
    SKIP = k.label('skip')
    KW = opt.get('KW', [0, 0, 0])
    CP = opt.get('CP', [0, 0, 0, 0, 0])
    LEAN = opt.get('lean', 0) & 1
    XP5 = [108, 110, 114, 116, 118]
    if LEAN:
        assert fused and opt.get('xs') and opt.get('hd') and not G1S
        k(f'''v_and_b32 v44, {hex(0x3f0 & ~128)}, v3
v_xor_b32 v45, 64, v44
ds_read_b128 v[100:103], v44 offset:{opt['TB2']+9*1024}
ds_read_b128 v[104:107], v45 offset:{opt['TB2']+9*1024}''')
    vm = Cnt('vmcnt', 63); vm.issue('q')
    if opt.get('g3s'):
        srd_from(k, 60, 40, 41, WS_A, A2_BYTES)
        k('''s_lshl_b32 s46, s2, 14
s_lshl_b32 s47, s34, 11
s_add_u32 s46, s46, s47
v_mov_b32 v28, -1
v_mov_b32 v29, -1
v_mov_b32 v30, -1
v_mov_b32 v31, -1
buffer_store_dwordx4 v[28:31], v3, s[60:63], s46 offen sc1
buffer_store_dwordx4 v[28:31], v3, s[60:63], s46 offen offset:1024 sc1''')
        vm.issue('f'); vm.issue('f')
    V53 = '''v_and_b32 v53, 0xf0, v52
v_bfe_u32 v54, v50, 2, 1
v_lshl_add_u32 v53, v54, 3, v53
v_lshrrev_b32 v54, 3, v50
v_lshl_add_u32 v53, v54, 2, v53
v_add_u32 v53, 1024, v53''' if LEAN else '''v_add_u32 v53, 1024, v52
v_mov_b32 v54, 0x7fffffff
v_cmp_gt_u32 vcc, 4, v50
v_cndmask_b32 v53, v54, v53, vcc'''
    k(f"""s_mul_i32 s46, s3, {8*TP}
s_add_u32 s47, s46, {3*TP}
s_add_u32 s48, s46, {6*TP}
v_lshlrev_b32 v60, 2, v0
s_lshl_b32 s35, s34, 8
s_add_u32 s35, s35, s3
s_mul_i32 s35, s35, 1280
v_and_b32 v50, 15, v2
v_lshrrev_b32 v51, 4, v2
v_lshlrev_b32 v52, 6, v50
v_lshl_add_u32 v52, v51, 4, v52
{V53}
s_lshl_b32 s42, s34, 12
s_min_u32 s42, s42, {27*1024}
s_add_u32 m0, s42, {BB}
s_add_u32 s42, s42, s58
s_waitcnt lgkmcnt(0)
s_barrier""")
    st(k, 8, 5)
    if not fused: srd_from(k, 4, 4, 5, 0, X_BYTES)
    for i in range(0 if opt.get('nob') else 4):
        k(f'buffer_load_dwordx4 v3, s[64:67], s42 offen offset:{1024*i} lds'); vm.issue('b')
    st(k, 8, 6)
    if LEAN:
        k(f"""v_add_u32 v54, s32, v52
v_add_u32 v55, s32, v53
ds_read_b128 v[44:47], v54 offset:8192
ds_read_b32 v48, v55 offset:8192
s_mul_i32 s59, s34, {NP}
v_add_u32 v120, s59, v53""")
    elif opt.get('xs'):
        k(f"""v_add_u32 v54, s32, v52
v_mov_b32 v108, 0
v_mov_b32 v109, 0
v_mov_b32 v110, 0
v_mov_b32 v111, 0
ds_read_b128 v[104:107], v54 offset:8192
s_mov_b64 exec, vcc
ds_read_b128 v[108:111], v54 offset:{8192+1024}
s_mov_b64 exec, -1""")
    else:
        k(f"""buffer_load_dwordx4 v[104:107], v52, s[4:7], s35 offen
buffer_load_dwordx4 v[108:111], v53, s[4:7], s35 offen""")
        vm.issue('x'); vm.issue('x')
    HP0 = opt.get('hp0', 10240)
    if G1S:
        k(f"""s_mul_i32 s59, s34, {NP}
v_add_u32 v112, s59, v52""")
        for j, d in enumerate((113, 115)):
            k(f"""v_add_u32 v116, {512*j}, v0
v_mul_u32_u24 v117, 410, v116
v_lshrrev_b32 v117, 16, v117
v_mul_u32_u24 v118, 160, v117
v_sub_u32 v116, v116, v118
v_and_b32 v118, 1, v116
v_lshl_add_u32 v117, v117, 1, v118
v_mul_u32_u24 v117, {NP}, v117
v_lshrrev_b32 v116, 1, v116
v_lshl_add_u32 v{d}, v116, 4, v117""")
        k(f"""s_mul_i32 s59, s3, {HP}
s_lshl_b32 s60, s34, 10
s_add_u32 s59, s59, s60
s_add_u32 s49, s59, 8192
s_cmp_lt_u32 s34, 2
s_cselect_b32 s49, s49, {BIG}""")
    else: k(f"""s_mul_i32 s59, s34, {NP}
v_add_u32 v112, s59, v52
v_and_b32 v113, 3, v2
v_mul_u32_u24 v113, {NP}, v113
v_lshrrev_b32 v114, 2, v2
v_lshl_add_u32 v113, v114, 4, v113
s_cmp_ge_u32 s34, 5
s_cselect_b32 s59, {4*NP-5*256}, 0
s_lshl_b32 s60, s34, 8
s_add_u32 s59, s59, s60
v_add_u32 v113, s59, v113
s_mul_i32 s59, s3, {HP0}
s_lshl_b32 s60, s34, 10
s_add_u32 s59, s59, s60
s_add_u32 s49, s59, 8192
s_cmp_lt_u32 s34, 2
s_cselect_b32 s49, s49, {BIG}""")
    srd_from(k, 52, 80, 81, 0, X_BYTES) if opt.get('hout') else srd_from(k, 52, 40, 41, WS_H, X_BYTES)
    srd_from(k, 60, 40, 41, WS_HN, 0x300000)
    k(f"""v_mul_u32_u24 v55, 3277, v0
v_lshrrev_b32 v55, 16, v55
v_mul_u32_u24 v56, 20, v55
v_sub_u32 v56, v0, v56
v_mul_u32_u24 v57, {RP}, v56
v_lshl_add_u32 v57, v55, 2, v57
v_mov_b32 v58, {11*RP}
v_cmp_ge_u32 vcc, 10, v56
v_cndmask_b32 v57, v58, v57, vcc
v_sub_u32 v59, 20, v56
v_mul_u32_u24 v59, {RP}, v59
v_sub_u32 v61, 31, v55
v_lshl_add_u32 v59, v61, 2, v59
v_cmp_le_u32 vcc, 10, v56
v_cndmask_b32 v59, v58, v59, vcc
v_sub_u32 v61, 32, v55
v_lshlrev_b32 v61, 2, v61
v_cmp_eq_u32 vcc, 0, v56
v_cndmask_b32 v59, v59, v61, vcc
v_cmp_eq_u32 vcc, 0, v0
v_cndmask_b32 v59, v59, v58, vcc
v_cmp_eq_u32 vcc, 320, v0
v_cndmask_b32 v59, v59, v58, vcc
v_mov_b32 v40, 0x3f3504f3
v_min_u32 v62, 10, v50
v_mul_u32_u24 v62, {RP}, v62
v_lshl_add_u32 v62, v51, 4, v62
s_mul_i32 s42, s34, {NP}
v_add_u32 v62, s42, v62
v_and_b32 v63, 1, v2
v_lshlrev_b32 v63, 31, v63
v_or_b32 v63, 1.0, v63
""")
    WT0 = opt.get('wt0', 0) if not opt.get('now') else 0
    assert not (WT0 and NWL)
    if WT0:
        k(vm.wait('q'))
        w_trans(k, 44, 45, list(range(WT0)))
    if LEAN:
        k('s_waitcnt lgkmcnt(0)')
        for i in range(5): k(f'v_lshlrev_b32 v{XP5[i]}, 16, v{44+i}\nv_and_b32 v{XP5[i]+1}, 0xffff0000, v{44+i}')
    st(k, 4, 4); st(k, 8, 7)
    LP = k.label('lp'); LD = k.label('ld'); SK0 = k.label('sk0'); STUB = k.label('stub'); GO = k.label('go')
    q = Bulk(k, post)
    UNI = KW[2] > 0
    L0 = k.label('l0'); L1 = None
    if UNI:
        assert not WT0
        k(f"""v_cmp_gt_u32 vcc, 321, v0
v_cndmask_b32 v57, v58, v57, vcc
v_cndmask_b32 v59, v58, v59, vcc
s_mov_b64 exec, vcc
s_mov_b32 s43, {SPIN}
s_cmp_lt_u32 s34, 6
s_cbranch_scc1 {L0}
s_waitcnt vmcnt(0)
{f"s_sleep {opt['c67']}" if opt.get('c67') else ""}""")
        if opt.get('wt67'):
            k('s_mov_b64 exec, -1')
            w_trans(k, 44, 45, [0, 1, 2, 3], 42, True)
        k(f's_branch {LD}\n{L0}:')
        if opt.get('wte'):
            L1 = k.label('l1')
            for k2 in range(8):
                k(f'buffer_load_dword v{4+k2}, v60, s[8:11], s{46+k2//3} offen offset:{(k2%3)*TP+(0 if opt.get("ip") else 4*(k2&1))} sc1')
            k('s_mov_b64 exec, -1')
            w_trans(k, 44, 45, list(range(opt['wte'])), 42, True)
            k(f's_mov_b64 exec, vcc\ns_branch {L1}')
        k(f'{LP}:')
    else:
      k(f"""v_cmp_gt_u32 vcc, 321, v0
s_mov_b64 s[44:45], vcc
s_cmp_lt_u32 s34, 6
s_cbranch_scc1 {GO}
s_waitcnt vmcnt(0)""")
      if opt.get('c67'): k(f's_sleep {opt["c67"]}')
      q.copy()(CP[0], None, 124)
      k(f"""s_mov_b64 exec, 0
s_branch {SK0 if WT0 else SKIP}
{GO}:
s_mov_b64 exec, s[44:45]
s_mov_b32 s43, {SPIN}
{LP}:""")
    for k2 in range(8):
        k(f'buffer_load_dword v{4+k2}, v60, s[8:11], s{46+k2//3} offen offset:{(k2%3)*TP+(0 if opt.get("ip") else 4*(k2&1))} sc1')
    if L1: k(f'{L1}:')
    CHK = """v_and_b32 v12, v4, v5
v_and_b32 v13, v6, v7
v_and_b32 v14, v8, v9
v_and_b32 v15, v10, v11
v_and_b32 v12, v12, v13
v_and_b32 v14, v14, v15
v_and_b32 v12, 1, v12
v_and_b32 v12, v12, v14
v_cmp_eq_u32 vcc, 0, v12""" if opt.get('ip') else """v_max3_u32 v12, v4, v5, v6
v_max3_u32 v13, v7, v8, v9
v_max3_u32 v12, v12, v10, v11
v_max_u32 v12, v12, v13
v_cmp_eq_u32 vcc, -1, v12"""
    k(f"""s_waitcnt vmcnt(0)
{CHK}
s_cbranch_vccz {LD}
{f"s_sleep {opt['usl']}" if opt.get('usl') else ""}
s_sub_u32 s43, s43, 1
s_cmp_lg_u32 s43, 0
s_cbranch_scc1 {LP}
{LD}:""")
    st(k, 4, 5); st(k, 0, 1); st(k, 8, 8)
    if UNI:
        k('s_mov_b64 exec, -1')
        if opt.get('xs') or opt.get('wte') or opt.get('wt67'): k('s_waitcnt lgkmcnt(0)')
        if opt.get('ob3'): k('s_barrier')
        q(CP[0], None, 124)
        i0 = len(k.lines)
    elif CP[0] and post:
        k('s_mov_b64 exec, -1')
        q(CP[0], None, 124)
        k('s_mov_b64 exec, s[44:45]')
    for k2 in range(8):
        k(f'v_lshlrev_b32 v{20+2*k2}, 16, v{4+k2}\nv_and_b32 v{21+2*k2}, 0xffff0000, v{4+k2}')
    for k2 in range(8):
        if k2 == 0:
            k('v_mov_b32 v4, v20\nv_mov_b32 v5, v21')
        else:
            smul(k, 4 + 2 * k2, 20 + 2 * k2, 16 + 2 * k2, 42 + 2 * (k2 & 1), conj=True)
    T = fft8(k, 4, 20, True, 40)
    if WT0:
        k(f'{SK0}:\ns_waitcnt lgkmcnt(0)\ns_barrier\ns_cbranch_execz {SKIP}')
    for n in range(8):
        k(f"""v_cvt_pk_bf16_f32 v{4+2*n}, v{T[n]}, v{T[n]+1}
v_cvt_pk_bf16_f32 v{5+2*n}, v{T[n]}, -v{T[n]+1}
ds_write_b32 v57, v{4+2*n} offset:{n*NP}
ds_write_b32 v59, v{5+2*n} offset:{n*NP}""")
    k(f"""{SKIP}:
s_mov_b64 exec, -1""")
    q(CP[1], None, 124)
    k(f"""s_waitcnt lgkmcnt(0)
s_barrier
ds_read_b128 v[4:7], v62
ds_read_b128 v[8:11], v62 offset:64""")
    if opt.get('kw0'): i0 = len(k.lines)
    q(CP[2], None, 124)
    k('s_waitcnt lgkmcnt(1)')
    for u in range(2):
        if u == 1: k('s_waitcnt lgkmcnt(0)')
        for t in range(2):
            k(f'{MFMA} {vr(12+16*u+8*t,4)}, {vr(4+4*u,4)}, {vr(64+8*t,4)}, 0')
            k(f'{MFMA} {vr(16+16*u+8*t,4)}, {vr(4+4*u,4)}, {vr(68+8*t,4)}, 0')
    q(CP[3], None, 124)
    for i in range(0, 16, 2):
        k(f'v_pk_fma_f32 {vr(12+i,2)}, {vr(28+i,2)}, v[62:63], {vr(12+i,2)} op_sel:[0,1,0] op_sel_hi:[1,1,1]')
    for t in range(2):
        cmul_planar(k, 12 + 8 * t, 16 + 8 * t, 80 + 8 * t, 84 + 8 * t, 28, 32, 36)
        k(f"""v_cvt_pk_bf16_f32 v{4+4*t}, v28, v29
v_cvt_pk_bf16_f32 v{5+4*t}, v30, v31
v_cvt_pk_bf16_f32 v{6+4*t}, v32, v33
v_cvt_pk_bf16_f32 v{7+4*t}, v34, v35""")
    if LEAN:
        k(f'''{MFMA} v[20:23], v[4:7], v[100:103], 0
{MFMA} v[12:15], v[4:7], v[96:99], 0
{MFMA} v[20:23], v[8:11], v[104:107], v[20:23]
{MFMA} v[16:19], v[8:11], v[96:99], 0
v_pk_add_f32 v[12:13], v[12:13], {vr(XP5[0],2)}
v_pk_add_f32 v[14:15], v[14:15], {vr(XP5[1],2)}
v_mov_b32_dpp v20, v22 quad_perm:[0,1,2,3] row_mask:0xf bank_mask:0xc
v_mov_b32_dpp v21, v23 quad_perm:[0,1,2,3] row_mask:0xf bank_mask:0xc
v_pk_add_f32 v[28:29], v[12:13], v[14:15]
v_pk_mul_f32 v[30:31], v[12:13], v[12:13]
v_pk_add_f32 v[16:17], v[16:17], {vr(XP5[2],2)}
v_pk_add_f32 v[18:19], v[18:19], {vr(XP5[3],2)}
v_pk_add_f32 v[20:21], v[20:21], {vr(XP5[4],2)}
v_pk_fma_f32 v[30:31], v[14:15], v[14:15], v[30:31]
v_pk_add_f32 v[32:33], v[16:17], v[18:19]
v_pk_mul_f32 v[34:35], v[16:17], v[16:17]
v_pk_add_f32 v[28:29], v[28:29], v[20:21]
v_pk_fma_f32 v[30:31], v[20:21], v[20:21], v[30:31]
v_pk_fma_f32 v[34:35], v[18:19], v[18:19], v[34:35]
v_pk_add_f32 v[28:29], v[28:29], v[32:33]
v_pk_add_f32 v[30:31], v[30:31], v[34:35]
v_add_f32 v28, v28, v29
v_add_f32 v30, v30, v31''')
        j0 = len(k.lines)
        wave_reduce2(k, 28, 30, 36, 37)
        for i in range(5): k.lines.insert(j0 + 3 * i, f'v_cvt_pk_bf16_f32 v{4+i}, v{12+2*i}, v{13+2*i}')
        ln_stats(k, 36, 37, 640, 28, 30, 32)
        ln_apply2(k, 12, 10, 28, 30, 40)
        HS = """buffer_store_dwordx4 v[4:7], v52, s[52:55], s35 offen sc1
buffer_store_dword v8, v53, s[52:55], s35 offen sc1"""
    else:
        for v in range(2):
            for t in range(2):
                k(f'{MFMA} {vr(12+8*v+4*t,4)}, {vr(4+4*t,4)}, {vr(96+4*v,4)}, 0')
        q(CP[4], None, 124)
        if UNI and opt.get('kwe', 1) == 0: weave_in(k, i0, q, KW[2], None, 124)
        for i in range(8):
            k(f'v_lshlrev_b32 v{28+2*i}, 16, v{104+i}\nv_and_b32 v{29+2*i}, 0xffff0000, v{104+i}')
        for i in range(8):
            k(f'v_cvt_pk_bf16_f32 v{4+i}, v{12+2*i}, v{13+2*i}')
        for i in range(8):
            k(f'v_lshlrev_b32 v{12+2*i}, 16, v{4+i}\nv_and_b32 v{13+2*i}, 0xffff0000, v{4+i}')
        for i in range(8):
            k(f'v_pk_add_f32 {vr(12+2*i,2)}, {vr(12+2*i,2)}, {vr(28+2*i,2)}')
        for i in range(8):
            k(f'v_cvt_pk_bf16_f32 v{4+i}, v{12+2*i}, v{13+2*i}')
        HS = """buffer_store_dwordx4 v[4:7], v52, s[52:55], s35 offen sc1
    buffer_store_dwordx4 v[8:11], v53, s[52:55], s35 offen sc1"""
        if not opt.get('hd'): k(HS)
        for i in range(8):
            k(f'v_lshlrev_b32 v{12+2*i}, 16, v{4+i}\nv_and_b32 v{13+2*i}, 0xffff0000, v{4+i}')
        k("""v_pk_add_f32 v[28:29], v[12:13], v[14:15]
    v_pk_mul_f32 v[30:31], v[12:13], v[12:13]
    v_pk_add_f32 v[32:33], v[16:17], v[18:19]
    v_pk_mul_f32 v[34:35], v[14:15], v[14:15]""")
        for i in range(2, 8):
            k(f'v_pk_fma_f32 {vr(30+4*(i&1),2)}, {vr(12+2*i,2)}, {vr(12+2*i,2)}, {vr(30+4*(i&1),2)}')
            if i >= 4:
                k(f'v_pk_add_f32 {vr(28+4*(i&1),2)}, {vr(28+4*(i&1),2)}, {vr(12+2*i,2)}')
        k("""v_pk_add_f32 v[28:29], v[28:29], v[32:33]
    v_pk_add_f32 v[30:31], v[30:31], v[34:35]
    v_add_f32 v28, v28, v29
    v_add_f32 v30, v30, v31""")
        wave_reduce2(k, 28, 30, 36, 37)
        ln_stats(k, 36, 37, 640, 28, 30, 32)
        ln_apply(k, 12, 16, 28, 30, 40)
    if UNI and opt.get('kwe', 1) == 1: weave_in(k, i0, q, KW[2], None, 124)
    assert not q.ops
    if not fused: srd_from(k, 68, 40, 41, WS_FL, FL_BYTES)
    W2 = 'ds_write_b32 v120, v44' if LEAN else '''s_mov_b32 exec_lo, 0x000f000f
s_mov_b32 exec_hi, 0x000f000f
ds_write_b128 v112, v[44:47] offset:1024
s_mov_b64 exec, -1'''
    k(f"""ds_write_b128 v112, v[40:43]
{W2}
s_waitcnt lgkmcnt(0)
s_barrier
ds_read_b128 v[40:43], v113
{"ds_read_b128 v[44:47], v115" if G1S else f"ds_read_b128 v[44:47], v113 offset:{4*NP+3*256}"}
s_waitcnt lgkmcnt(1)
buffer_store_dwordx4 v[40:43], v3, s[60:63], s59 offen sc1
s_waitcnt lgkmcnt(0)
buffer_store_dwordx4 v[44:47], v3, s[60:63], s49 offen sc1
v_mov_b32 v114, v124""")
    if opt.get('hd'): k(HS)
    st(k, 4, 6); st(k, 0, 2); st(k, 8, 9)


def poll2(k, loads, chk, sc, sl=0):
    LP = k.label('lp'); LD = k.label('ld')
    k(f'''s_mov_b32 s{sc}, {SPIN}
{LP}:
{loads}
s_waitcnt vmcnt(0)
{chk}
s_cbranch_vccz {LD}
{f"s_sleep {sl}" if sl else ""}
s_sub_u32 s{sc}, s{sc}, 1
s_cmp_lg_u32 s{sc}, 0
s_cbranch_scc1 {LP}
{LD}:''')


def flag_poll(k, sf, sp, n, sl=0, d0=0, part=3, fs=None):
    if part & 1:
        k(f'''v_lshrrev_b32 v10, 4, v3
v_lshlrev_b32 v10, {FS if fs is None else fs}, v10
s_mov_b64 exec, 1
v_mov_b32 v8, 1
buffer_store_dword v8, v10, s[68:71], s{sf} offen sc1''')
    if part & 2:
        k(f's_mov_b64 exec, {hex((1 << n) - 1)}')
        if d0: k(f's_sleep {d0}')
        poll2(k, f'buffer_load_dword v9, v10, s[68:71], s{sp} offen sc1', 'v_cmp_eq_u32 vcc, 0, v9', 43, sl)
    k('s_mov_b64 exec, -1')


def ph_g1(k, opt, DONE, wb, fused=False):
    L = {(g, z): k.label(f'g{g}z{z}') for g in range(2) for z in range(2)}
    WQ = opt.get('WQ', [32, 0, 8, 15])
    k(f's_lshl_b32 s49, s3, {FS}')
    g1id(k, 3, 35)
    k(f'''s_lshr_b32 s35, s3, 4
s_bfe_u32 s36, s3, 0x30001
s_and_b32 s37, s3, 1
s_and_b32 s38, s34, 3
s_lshl_b32 s39, s35, 2
s_add_u32 s39, s39, s38
v_and_b32 v2, 63, v0
v_and_b32 v6, 15, v2
v_lshrrev_b32 v7, 4, v2''')
    if wb: k('v_mov_b32 v88, v114')
    HP0 = opt.get('hp0', 10240)
    srd_from(k, 8, 40, 41, WS_HN, 0x300000)
    k(f'''v_lshlrev_b32 v9, 3, v2
v_lshrrev_b32 v8, 2, v6
v_and_b32 v10, 3, v6
v_mul_u32_u24 v1, {HP0}, v8
v_lshl_add_u32 v1, v7, 6, v1
v_lshl_add_u32 v1, v10, 4, v1
v_add_u32 v2, {4*HP0}, v1
s_lshr_b32 s44, s39, 1
s_mul_i32 s44, s44, {8*HP0}
s_and_b32 s45, s38, 1
s_mul_i32 s45, s45, 5120
s_add_u32 s44, s44, s45
s_add_u32 s45, s44, 4096
v_add_u32 v4, 57344, v3
v_add_u32 v5, 114688, v3''')
    srd_from(k, 12, 40, 41, WS_Z1, A2_BYTES)
    srd_from(k, 16, 40, 41, WS_Z2, Z2N_BYTES)
    srd_from(k, 20, 40, 41, WS_PX, PX_BYTES)
    k(f'''s_and_b32 s47, s3, 15
s_lshl_b32 s47, s47, 4
s_add_u32 s47, s47, s35
s_lshl_b32 s47, s47, {FS}
s_add_u32 s47, s47, {FL2}
s_lshr_b32 s42, s34, 2
s_cmp_eq_u32 s42, s37
s_cselect_b32 s43, 1, 0
s_lshl_b32 s42, s42, 1
s_add_u32 s42, s42, s43
s_cmp_eq_u32 s42, 1
s_cbranch_scc1 {L[0,1]}
s_cmp_eq_u32 s42, 2
s_cbranch_scc1 {L[1,0]}
s_cmp_eq_u32 s42, 3
s_cbranch_scc1 {L[1,1]}''')
    PD = opt.get('PD', 5); NA = PD + 1
    assert 40 + 8 * NA <= 88
    AR = lambda kk, u: vr(40 + 8 * (kk % NA) + 4 * u, 4)
    ACC = lambda u, n: 96 + ((n & 3) * 2 + u) * 4

    def aload(kk, u, v):
        if kk >= 20: return
        k(f'buffer_load_dwordx4 {AR(kk,u)}, v{1+u}, s[8:11], s{44+kk//16} offen offset:{256*(kk%16)}'); v.issue(f'a{kk}')
    NB = 8; LA = opt.get('LA', 6)
    SC = opt.get('gsc', 1)

    def tail(z2, wq, rest):
        if not fused:
            k(f's_branch {DONE}'); return
        if opt.get('pw'):
            assert not rest and not wq.ops
            F2S = opt.get('f2s', 5); FZS = opt.get('fzs', 5)
            if z2:
                k(f'''s_lshl_b32 s47, s36, 3
s_lshr_b32 s42, s39, 4
s_add_u32 s47, s47, s42
s_and_b32 s42, s39, 1
s_lshl_b32 s42, s42, 2
s_add_u32 s47, s47, s42
s_lshl_b32 s47, s47, 4
s_and_b32 s42, s39, 14
s_add_u32 s47, s47, s42
s_add_u32 s47, s47, s37
s_lshl_b32 s47, s47, {F2S}
s_add_u32 s47, s47, {FL2}''')
            else:
                k(f'''s_lshl_b32 s47, s39, 4
s_and_b32 s42, s3, 15
s_add_u32 s47, s47, s42
s_lshl_b32 s47, s47, {FZS}
s_add_u32 s47, s47, {FLU}''')
            map_g2(k)
            k(f'''s_load_dwordx2 s[24:25], s[0:1], 48
s_lshl_b32 s44, s36, 3
s_add_u32 s44, s44, s34
s_lshl_b32 s44, s44, {4+F2S}
s_add_u32 s44, s44, {FL2}
s_waitcnt vmcnt(0)''')
            st(k, 0, 5)
            flag_poll(k, 47, 44, 16, opt.get('g2sl', 0), opt.get('g2d', 0) if z2 else 0, fs=F2S)
            k(f's_waitcnt lgkmcnt(0)\ns_branch {DONE}')
            return
        map_g2(k)
        k('s_load_dwordx2 s[24:25], s[0:1], 48')
        if not z2 and not wq.ops and rest and opt.get('wte', 1) and not W128:
            w_trans(k, 12, 13, rest); rest = []
        k('s_waitcnt vmcnt(0)')
        st(k, 0, 5)
        if z2: k('s_setprio 0')
        if not z2 and not wq.ops and rest and not W128:
            w_trans(k, 12, 13, rest); rest = []
        if W128: assert not wq.ops and not (z2 and rest)
        if not z2: wq(99, None, 88)
        k('s_barrier')
        if z2: wq(99, None, 88)
        NP2 = k.label('np2'); NP3 = k.label('np3')
        if not z2:
            k(f's_cmp_lg_u32 s38, 0\ns_cbranch_scc1 {NP2}')
            flag_poll(k, 47, 44, 32, part=1)
            k(f'{NP2}:')
        if rest:
            k('s_waitcnt vmcnt(0)')
            w_trans(k, 12, 13, rest)
        if not z2:
            k(f'''s_cmp_lg_u32 s38, 0
s_cbranch_scc1 {NP3}
s_lshl_b32 s44, s36, {5+FS}
s_add_u32 s44, s44, {FL2}''')
            flag_poll(k, 47, 44, 32, opt.get('g2sl', 0), opt.get('g2d', 0) if not rest else 0, part=2)
            k(f'{NP3}:')
        k('s_waitcnt lgkmcnt(0)\ns_barrier')
        k(f's_branch {DONE}')

    def path(grp, z2):
        vm = Cnt('vmcnt', 63)
        wq = wb.copy() if wb else None
        tiles = [0, 1, 2, 3] if grp == 0 else [4, 5, 6]
        NT = len(tiles)
        order = [(kk, n) for kk in range(20) for n in tiles]
        k('s_waitcnt vmcnt(0)\ns_barrier')
        st(k, 1, 3); st(k, 4, 7)
        rest = [] if opt.get('now') else list(range(opt.get('wt0', 0), 4))
        n1 = opt.get('wt1', [0, 0])[z2] if not wq.ops else 0
        if W128: n1 = min(opt['wt1'][z2], (32 - len(wq.ops)) // 8)
        now, rest = rest[:n1], rest[n1:]
        if z2:
            NPL = k.label('npl'); NPM = k.label('npm')
            k(f'''s_setprio {opt.get('zprio', 2)}
s_lshl_b32 s42, s35, {4+FS}
s_mov_b32 s46, s49
s_cmp_lg_u32 s38, 0
s_cbranch_scc1 {NPM}''')
            flag_poll(k, 46, 42, 16, part=1)
            k(f'{NPM}:')
            w_trans(k, 12, 13, now, 48)
            k(f's_cmp_lg_u32 s38, 0\ns_cbranch_scc1 {NPL}')
            flag_poll(k, 46, 42, 16, opt.get('g1sl', 0), opt.get('g1d', 0) if not now else 0, part=2)
            k(f'{NPL}:')
        else:
            w_trans(k, 12, 13, now, 48)
            if wq: wq(WQ[0], vm, 88)
        k('s_waitcnt lgkmcnt(0)\ns_barrier')
        st(k, 4, 8)
        st(k, 1, 4); st(k, 0, 3)
        if not z2 and opt.get('zd'): k(f's_sleep {opt["zd"]}')
        for kk in range(PD):
            for u in range(2): aload(kk, u, vm)

        def rdB(f):
            if f >= len(order): return
            kk, n = order[f]
            a = BB + kk * 7168 + n * 1024
            k(f'ds_read_b128 {vr(8+4*(f%NB),4)}, v{3+a//57344} offset:{a%57344}')
        for f in range(LA): rdB(f)
        for f, (kk, n) in enumerate(order):
            x = vm.wait(f'a{kk}')
            if x: k(x)
            if n == tiles[0] and kk in (0, 10): st(k, 1, 5 + kk // 10)
            rem = min(LA - 1, len(order) - 1 - f)
            k(f's_waitcnt lgkmcnt({rem})')
            b = vr(8 + 4 * (f % NB), 4)
            for u in range(2):
                acc = vr(ACC(u, n), 4)
                c = '0' if kk == 0 else acc
                if z2: k(f'{MFMA} {acc}, {AR(kk,u)}, {b}, {c}')
                else: k(f'{MFMA} {acc}, {b}, {AR(kk,u)}, {c}')
            rdB(f + LA)
            i = f % NT
            if i < 2: aload(kk + PD, i, vm)
            if wq and kk >= WQ[3]:
                c = WQ[1 + z2]
                wq((c * (i + 1)) // NT - (c * i) // NT, vm, 88)
        st(k, 1, 7); st(k, 0, 4); st(k, 4, 9)
        k(f'v_mov_b32 v4, {fbits(C1)}\nv_mov_b32 v5, {fbits(C0)}')
        if not z2:
            k(f'''s_lshr_b32 s42, s39, 1
s_lshl_b32 s42, s42, 3
s_add_u32 s42, s42, s36
s_lshl_b32 s42, s42, 1
s_and_b32 s43, s39, 1
s_add_u32 s42, s42, s43
s_lshl_b32 s42, s42, 13
s_add_u32 s43, s42, 4096
v_lshrrev_b32 v2, 1, v3''')
            units = [(u, p) for p in ((0, 1) if grp == 0 else (2,)) for u in range(2)]
            for i, (u, p) in enumerate(units):
                o = 12 + 4 * (i & 1)
                for h in range(2):
                    a = ACC(u, 2 * p + h)
                    k(f'v_cvt_pk_bf16_f32 v{8+2*h}, v{a}, v{a+1}\nv_cvt_pk_bf16_f32 v{9+2*h}, v{a+2}, v{a+3}')
                gelu_pk(k, 8, 8, 20, 28, o, 4, sc=(SC > 1))
                k(f'buffer_store_dwordx4 {vr(o,4)}, v3, s[12:15], s{42+u} offen offset:{1024*p} sc1')
            if grp == 1:
                for u in range(2):
                    a = ACC(u, 6)
                    k(f'v_cvt_pk_bf16_f32 v{8+2*u}, v{a}, v{a+1}\nv_cvt_pk_bf16_f32 v{9+2*u}, v{a+2}, v{a+3}')
                gelu_pk(k, 8, 8, 20, 28, 12, 4, sc=(SC > 1))
                for u in range(2):
                    k(f'buffer_store_dwordx2 {vr(12+2*u,2)}, v2, s[12:15], s{42+u} offen offset:3072 sc1')
            st(k, 1, 8)
            tail(False, wq, rest)
            return
        S = 72; Q = 80
        SK = k.label('sk')
        for i, n in enumerate(tiles):
            if n == 5: k(f's_cmp_eq_u32 s36, 7\ns_cbranch_scc1 {SK}')
            for r in range(4): k(f'v_cvt_pk_bf16_f32 v{8+r}, v{ACC(0,n)+r}, v{ACC(1,n)+r}')
            k(f'''v_permlane32_swap_b32 v8, v10
v_permlane32_swap_b32 v9, v11
v_permlane16_swap_b32 v8, v9
v_permlane16_swap_b32 v10, v11''')
            gelu_pk(k, 8, 8, 20, 28, 12, 4, tr=True, sc=(SC > 0))
            d = 40 + 8 * i
            for r in range(4):
                k(f'v_lshlrev_b32 v{d+2*r}, 16, v{12+r}\nv_and_b32 v{d+1+2*r}, 0xffff0000, v{12+r}')
            for e in range(8):
                if i == 0: k(f'v_mul_f32 v{Q+e}, v{d+e}, v{d+e}\nv_mov_b32 v{S+e}, v{d+e}')
                else: k(f'v_add_f32 v{S+e}, v{S+e}, v{d+e}\nv_fmac_f32 v{Q+e}, v{d+e}, v{d+e}')
        k(f'{SK}:')
        V = [0] * 16
        for e in range(8):
            V[2 * e] = S + e; V[2 * e + 1] = Q + e
        for i in range(8):
            k(f'v_add_f32_dpp v{V[i]}, v{V[i]}, v{V[i]} row_ror:8 row_mask:0xf bank_mask:0x3')
        for i in range(8):
            k(f'v_add_f32_dpp v{V[i]}, v{V[i+8]}, v{V[i+8]} row_ror:8 row_mask:0xf bank_mask:0xc')
        for i in range(4):
            k(f'v_add_f32_dpp v{V[i]}, v{V[i]}, v{V[i]} row_half_mirror row_mask:0xf bank_mask:0x5')
        for i in range(4):
            k(f'v_add_f32_dpp v{V[i]}, v{V[i+4]}, v{V[i+4]} row_half_mirror row_mask:0xf bank_mask:0xa')
        for m in ('quad_perm:[1,0,3,2]', 'quad_perm:[2,3,0,1]'):
            for i in range(4):
                k(f'v_add_f32_dpp v{V[i]}, v{V[i]}, v{V[i]} {m} row_mask:0xf bank_mask:0xf')
        k(f'''s_mov_b32 vcc_lo, 0xaaaaaaaa
s_mov_b32 vcc_hi, 0xaaaaaaaa
v_cndmask_b32 v8, v{V[0]}, v{V[1]}, vcc
v_cndmask_b32 v9, v{V[2]}, v{V[3]}, vcc
s_mov_b32 vcc_lo, 0xcccccccc
s_mov_b32 vcc_hi, 0xcccccccc
v_cndmask_b32 v8, v8, v9, vcc
s_lshl_b32 s42, s39, 12
s_and_b32 s43, s3, 15
s_lshl_b32 s43, s43, 8
s_add_u32 s43, s43, s42
v_lshrrev_b32 v2, 2, v3
buffer_store_dword v8, v2, s[20:23], s43 offen sc1
v_lshrrev_b32 v9, 2, v6
v_and_b32 v10, 3, v6
v_lshlrev_b32 v9, 8, v9
v_lshl_add_u32 v9, v7, 6, v9
v_lshl_add_u32 v1, v10, 4, v9''')
        st(k, 1, 8)
        LP = k.label('lp'); LD = k.label('ld')
        k(f'''s_lshl_b32 s44, s36, 3
s_lshr_b32 s45, s39, 4
s_add_u32 s44, s44, s45
s_and_b32 s45, s39, 1
s_lshl_b32 s45, s45, 2
s_add_u32 s44, s44, s45
s_mul_i32 s44, s44, 56
s_bfe_u32 s45, s39, 0x30001
s_add_u32 s44, s44, s45
s_add_u32 s44, s44, {8*tiles[0]}
s_lshl_b32 s44, s44, 10
v_mov_b32 v4, {fbits(1.0/864)}
s_mov_b32 s43, {SPIN}''')
        if rest and wq and not wq.ops and opt.get('wtp', 1):
            k('s_waitcnt vmcnt(1)')
            w_trans(k, 8, 9, rest, 46); rest = []
        elif opt.get('pxd'): k(f"s_sleep {opt['pxd']}")
        k(f'{LP}:')
        for i in range(4): k(f'buffer_load_dwordx4 {vr(8+4*i,4)}, v1, s[20:23], s42 offen offset:{1024*i} sc1')
        k('s_waitcnt vmcnt(2)')
        k('v_max3_u32 v24, v8, v9, v10\nv_max3_u32 v25, v11, v12, v13\nv_max3_u32 v24, v24, v14, v15')
        for r in range(4): k(f'v_add_f32 v{28+r}, v{8+r}, v{12+r}')
        k('s_waitcnt vmcnt(0)')
        k('''v_max3_u32 v25, v25, v16, v17
v_max3_u32 v24, v24, v18, v19
v_max3_u32 v25, v25, v20, v21
v_max3_u32 v24, v24, v22, v23
v_max_u32 v24, v24, v25
v_cmp_eq_u32 vcc, -1, v24''')
        for r in range(4): k(f'v_add_f32 v{32+r}, v{16+r}, v{20+r}')
        k(f'''s_cbranch_vccz {LD}
{f"s_sleep {opt['pxs']}" if opt.get('pxs') else ""}
s_sub_u32 s43, s43, 1
s_cmp_lg_u32 s43, 0
s_cbranch_scc1 {LP}
{LD}:''')
        st(k, 1, 9); st(k, 0, 9)
        for r in range(4): k(f'v_add_f32 v{28+r}, v{28+r}, v{32+r}')
        for m in ('row_ror:4', 'row_ror:8'):
            for r in range(4): k(f'v_add_f32_dpp v{28+r}, v{28+r}, v{28+r} {m} row_mask:0xf bank_mask:0xf')
        for r in range(4): k(f'v_mul_f32 v{28+r}, v{28+r}, v4')
        k(f'''v_fma_f32 v29, -v28, v28, v29
v_fma_f32 v31, -v30, v30, v31
v_max_f32 v29, 0, v29
v_max_f32 v31, 0, v31
v_cvt_pk_bf16_f32 v12, v28, v30
v_cvt_pk_bf16_f32 v13, v29, v31
v_lshlrev_b32 v8, 16, v12
v_and_b32 v9, 0xffff0000, v12
v_lshlrev_b32 v10, 16, v13
v_and_b32 v11, 0xffff0000, v13
v_add_f32 v10, 0x3727c5ac, v10
v_add_f32 v11, 0x3727c5ac, v11
v_cvt_pk_bf16_f32 v13, v10, v11
v_lshlrev_b32 v10, 16, v13
v_and_b32 v11, 0xffff0000, v13
v_sqrt_f32 v10, v10
v_sqrt_f32 v11, v11''')
        for e in range(8):
            k(f'v_mov_b32_dpp v{16+e}, v{8+(e&1)} quad_perm:[{e>>1},{e>>1},{e>>1},{e>>1}] row_mask:0xf bank_mask:0xf')
        k(f'''v_cvt_pk_bf16_f32 v13, v10, v11
v_lshlrev_b32 v10, 16, v13
v_and_b32 v11, 0xffff0000, v13
v_rcp_f32 v10, v10
v_rcp_f32 v11, v11''')
        for i in range(NT):
            d = 40 + 8 * i
            for e in range(0, 8, 2):
                k(f'v_pk_add_f32 {vr(d+e,2)}, {vr(d+e,2)}, {vr(16+e,2)} neg_lo:[0,1] neg_hi:[0,1]')
            if i == 0:
                for e in range(8):
                    k(f'v_mov_b32_dpp v{24+e}, v{10+(e&1)} quad_perm:[{e>>1},{e>>1},{e>>1},{e>>1}] row_mask:0xf bank_mask:0xf')
            o = 72 + 4 * i
            for r in range(4): k(f'v_cvt_pk_bf16_f32 v{o+r}, v{d+2*r}, v{d+2*r+1}')
            for r in range(4): k(f'v_lshlrev_b32 v{d+2*r}, 16, v{o+r}\nv_and_b32 v{d+1+2*r}, 0xffff0000, v{o+r}')
            for e in range(0, 8, 2):
                k(f'v_pk_mul_f32 {vr(d+e,2)}, {vr(d+e,2)}, {vr(24+e,2)}')
            for r in range(4): k(f'v_cvt_pk_bf16_f32 v{o+r}, v{d+2*r}, v{d+2*r+1}')
            k(f'buffer_store_dwordx4 {vr(o,4)}, v3, s[16:19], s44 offen sc1')
            if i < NT - 1: k('s_add_u32 s44, s44, 8192')
        tail(True, wq, rest)
    for g in range(2):
        for z in range(2):
            k(f'{L[g,z]}:')
            path(g, z)


def ph_g1s(k, opt, DONE, wb):
    assert W128 and not (wb and wb.ops)
    LH = k.label('h1')
    k(f's_lshl_b32 s49, s3, {FS}')
    g1id(k, 3, 35)
    k(f'''s_lshr_b32 s35, s3, 4
s_bfe_u32 s36, s3, 0x30001
s_and_b32 s37, s3, 1
s_and_b32 s38, s34, 3
s_lshl_b32 s39, s35, 2
s_add_u32 s39, s39, s38
s_lshr_b32 s46, s34, 2
v_and_b32 v2, 63, v0
v_and_b32 v6, 15, v2
v_lshrrev_b32 v7, 4, v2''')
    srd_from(k, 8, 40, 41, WS_HN, HN_BYTES)
    k(f'''v_lshrrev_b32 v8, 3, v6
v_and_b32 v10, 3, v6
v_lshl_add_u32 v8, v8, 2, v10
v_mul_u32_u24 v1, {HP}, v8
v_lshl_add_u32 v1, v7, 5, v1
v_bfe_u32 v10, v6, 2, 1
v_lshl_add_u32 v1, v10, 4, v1
s_lshr_b32 s44, s39, 1
s_mul_i32 s44, s44, {8*HP}
s_and_b32 s45, s38, 1
s_lshl_b32 s45, s45, 1
s_add_u32 s45, s45, s46
s_mul_i32 s45, s45, 2560
s_add_u32 s44, s44, s45
v_add_u32 v4, 57344, v3
v_add_u32 v5, 114688, v3''')
    k(f'''v_lshrrev_b32 v8, 2, v6
v_and_b32 v9, 1, v6
v_lshl_add_u32 v8, v8, 1, v9
v_lshlrev_b32 v8, 2, v8
v_lshl_add_u32 v8, v7, 5, v8
v_lshrrev_b32 v10, 1, v6
v_lshlrev_b32 v10, 7, v10
v_lshl_add_u32 v10, v7, 5, v10
v_lshl_add_u32 v10, v9, 4, v10
v_lshl_add_u32 v2, v10, 16, v8
v_mov_b32 v6, {fbits(C1)}
v_mov_b32 v7, {fbits(C0)}''')
    srd_from(k, 12, 40, 41, WS_Z1, A2_BYTES)
    srd_from(k, 16, 40, 41, WS_Z2, Z2N_BYTES)
    srd_from(k, 20, 40, 41, WS_PX, PX_BYTES)
    k(f'''s_and_b32 s47, s3, 15
s_lshl_b32 s53, s47, 7
s_lshl_b32 s47, s47, 4
s_add_u32 s47, s47, s35
s_lshl_b32 s47, s47, {FS}
s_add_u32 s47, s47, {FL2}
s_lshl_b32 s52, s39, 1
s_add_u32 s52, s52, s46
s_lshl_b32 s52, s52, 11
s_add_u32 s53, s53, s52
s_lshl_b32 s54, s36, 3
s_lshr_b32 s42, s39, 4
s_add_u32 s54, s54, s42
s_and_b32 s42, s39, 1
s_lshl_b32 s42, s42, 2
s_add_u32 s54, s54, s42
s_mul_i32 s54, s54, 56
s_bfe_u32 s42, s39, 0x30001
s_add_u32 s54, s54, s42
s_lshl_b32 s42, s37, 5
s_add_u32 s54, s54, s42
s_lshl_b32 s54, s54, 1
s_add_u32 s54, s54, s46
s_lshl_b32 s54, s54, 9
s_lshr_b32 s55, s39, 1
s_lshl_b32 s55, s55, 3
s_add_u32 s55, s55, s36
s_lshl_b32 s55, s55, 1
s_and_b32 s42, s39, 1
s_add_u32 s55, s55, s42
s_lshl_b32 s55, s55, 1
s_add_u32 s55, s55, s46
s_lshl_b32 s55, s55, 12
s_cmp_eq_u32 s36, 7
s_cselect_b32 s48, 0, -1
s_lshl_b32 s42, s35, {4+FS}
s_waitcnt vmcnt(0)
s_barrier''')
    st(k, 1, 3); st(k, 4, 7)
    W4 = k.label('w4'); WJ = k.label('wj')
    NOW = opt.get('now', 0)
    WT2 = opt.get('wt2', 0)
    k(f's_cmp_ge_u32 s34, 4\ns_cbranch_scc1 {W4}')
    if not NOW: w_trans(k, 12, 13, [0, 1, 2, 3], 43)
    k(f's_branch {WJ}\n{W4}:\ns_cmp_lg_u32 s34, 4\ns_cbranch_scc1 {WJ}')
    flag_poll(k, 49, 42, 16, opt.get('g1sl', 0), opt.get('g1d', 0))
    k(f'{WJ}:\ns_waitcnt lgkmcnt(0)\ns_barrier')
    st(k, 4, 8); st(k, 1, 4); st(k, 0, 3)
    AR = lambda kk: 32 + 4 * kk
    PD = opt.get('PD', 8)

    def aload(kk, vm=None):
        if kk >= 20: return
        k(f'buffer_load_dwordx4 {vr(AR(kk),4)}, v1, s[8:11], s44 offen offset:{128*kk}')
        if vm: vm.issue(f'a{kk}')
    for kk in range(PD): aload(kk)
    if WT2 and not NOW:
        W5 = k.label('w5')
        k(f's_cmp_lt_u32 s34, 4\ns_cbranch_scc1 {W5}')
        w_trans(k, 12, 13, list(range(WT2)), 43)
        k(f's_waitcnt lgkmcnt(0)\n{W5}:')
    k(f's_cmp_eq_u32 s37, 1\ns_cbranch_scc1 {LH}')
    LA = opt.get('LA', 5); LA1 = opt.get('LA1', 6)
    SC = opt.get('gsc', 0)
    ACC = lambda i: 112 + 4 * i

    def path(hh):
        vm = Cnt('vmcnt', 63); lg = Cnt('lgkmcnt', 15)
        for kk in range(PD): vm.issue(f'a{kk}')
        tz = [0, 1, 2, 3] if hh == 0 else [4, 5, 6]
        t1 = [4, 5, 6] if hh == 0 else [0, 1, 2, 3]

        def gpass(tiles, z2, free, la, ev=None, order=None, fill=None, R=0):
            order = order or [(kk, i) for kk in range(20) for i in range(len(tiles))]
            last = {}
            for f, (kk, i) in enumerate(order): last[kk] = f
            buf = {}; nr = [0]; pend = []

            def reads(f):
                while nr[0] < len(order) and nr[0] <= f + la and free:
                    q = nr[0]; kk, i = order[q]
                    b = free.pop(0); buf[q] = b
                    a = BB + kk * 7168 + tiles[i] * 1024
                    k(f'ds_read_b128 {vr(b,4)}, v{3+a//57344} offset:{a%57344}'); lg.issue(f'b{z2}_{q}')
                    nr[0] += 1
            reads(-1)
            for f, (kk, i) in enumerate(order):
                x = vm.wait(f'a{kk}')
                if x: k(x)
                if z2 and i == 0 and kk in (0, 10): st(k, 1, 5 + kk // 10)
                x = lg.wait(f'b{z2}_{f}')
                if x: k(x)
                acc = vr(ACC(i), 4); c = '0' if kk == 0 else acc
                b = vr(buf[f], 4); a = vr(AR(kk), 4)
                k(f'{MFMA} {acc}, {a}, {b}, {c}' if z2 else f'{MFMA} {acc}, {b}, {a}, {c}')
                free += pend; pend = [buf[f]]
                if not z2 and last[kk] == f: pend.append(AR(kk))
                reads(f)
                if z2 and i == 0: aload(kk + PD, vm)
                if ev and f in ev:
                    for e in ev[f]: e()
                if fill:
                    for _ in range(R):
                        if fill and fill[0][0] <= f:
                            o = fill.pop(0)[1]
                            o() if callable(o) else k(o)
        if opt.get('zprio'): k(f's_setprio {opt["zprio"]}')
        gpass(tz, 1, [8, 12, 16, 20, 24, 28], LA)
        st(k, 1, 7); st(k, 0, 4); st(k, 4, 9)
        S = 20; Q = 8
        prs = [(0, 2), (2, 2)] if hh == 0 else [(0, 2), (2, 1)]
        for pi, (i0, nt) in enumerate(prs):
            xp = 24 + 2 * i0; a = ACC(i0); n = 4 * nt
            for h in range(2 * nt): k(f'v_cvt_pk_bf16_f32 v{xp+h}, v{a+2*h}, v{a+2*h+1}')
            if hh:
                for h in range(2 * nt):
                    if tz[i0 + h // 2] >= 5: k(f'v_and_b32 v{xp+h}, s48, v{xp+h}')
            gelu_pk(k, xp, n, a, 12, xp, 6, sc=(SC > 0))
            for h in range(2 * nt):
                k(f'v_lshlrev_b32 v{a+2*h}, 16, v{xp+h}\nv_and_b32 v{a+1+2*h}, 0xffff0000, v{xp+h}')
            if SC > 0:
                for e in range(n):
                    r = e & 3
                    if pi == 0 and e < 4: k(f'v_mul_f32 v{Q+r}, v{a+e}, v{a+e}')
                    elif pi == 0: k(f'v_add_f32 v{S+r}, v{a+r}, v{a+e}\nv_fmac_f32 v{Q+r}, v{a+e}, v{a+e}')
                    else: k(f'v_add_f32 v{S+r}, v{S+r}, v{a+e}\nv_fmac_f32 v{Q+r}, v{a+e}, v{a+e}')
            else:
                for e in range(0, n, 2):
                    r = e & 3
                    d = vr(a + e, 2); q = vr(Q + r, 2); s_ = vr(S + r, 2)
                    if pi == 0 and e < 4: k(f'v_pk_mul_f32 {q}, {d}, {d}')
                    elif pi == 0: k(f'v_pk_add_f32 {s_}, {vr(a+r,2)}, {d}\nv_pk_fma_f32 {q}, {d}, {d}, {q}')
                    else: k(f'v_pk_add_f32 {s_}, {s_}, {d}\nv_pk_fma_f32 {q}, {d}, {d}, {q}')
        V = []
        for r in range(4): V += [S + r, Q + r]
        for i in range(4): k(f'v_add_f32_dpp v{V[i]}, v{V[i]}, v{V[i]} row_ror:8 row_mask:0xf bank_mask:0x3')
        for i in range(4): k(f'v_add_f32_dpp v{V[i]}, v{V[i+4]}, v{V[i+4]} row_ror:8 row_mask:0xf bank_mask:0xc')
        for i in range(2): k(f'v_add_f32_dpp v{V[i]}, v{V[i]}, v{V[i]} row_half_mirror row_mask:0xf bank_mask:0x5')
        k('v_and_b32 v12, 0xffff, v2')
        for i in range(2): k(f'v_add_f32_dpp v{V[i]}, v{V[i+2]}, v{V[i+2]} row_half_mirror row_mask:0xf bank_mask:0xa')
        k('v_lshrrev_b32 v1, 16, v2\ns_mov_b32 vcc_lo, 0xaaaaaaaa\ns_mov_b32 vcc_hi, 0xaaaaaaaa')
        for m in ('quad_perm:[1,0,3,2]', 'quad_perm:[2,3,0,1]'):
            for i in range(2): k(f'v_add_f32_dpp v{V[i]}, v{V[i]}, v{V[i]} {m} row_mask:0xf bank_mask:0xf')
        k(f'''v_cndmask_b32 v13, v{V[0]}, v{V[1]}, vcc
buffer_store_dword v13, v12, s[20:23], s53 offen sc1''')
        vm.issue('px')
        st(k, 1, 8)
        if opt.get('zprio'): k('s_setprio 0')
        n1 = 20 * len(t1)
        PB = 32

        def pxld():
            for i in range(2): k(f'buffer_load_dwordx4 {vr(PB+4*i,4)}, v1, s[20:23], s52 offen offset:{1024*i} sc1')
        ev = {}
        PXE = opt.get('pxe', 12)
        ev[n1 - 1 - PXE] = [lambda: (pxld(), vm.issue('pl'), vm.issue('pl'))]

        class Pool(list):
            def __iadd__(self, o):
                return list.__iadd__(self, [x for x in o if x not in (32, 36)])
        gpass(t1, 0, Pool([16, 8, 20, 12]), LA1, ev)
        st(k, 1, 9)
        LP = k.label('lp'); LD = k.label('ld'); L1 = k.label('l1')
        k(f'''v_and_b32 v2, 31, v0
v_lshlrev_b32 v2, 4, v2
v_bfe_u32 v4, v0, 5, 1
v_lshl_add_u32 v2, v4, 13, v2
v_mov_b32 v4, {fbits(1.0/864)}
s_mov_b32 s43, {SPIN}
s_branch {L1}
{LP}:''')
        if opt.get('pxs'): k(f"s_sleep {opt['pxs']}")
        pxld()
        k(f'''{L1}:
s_waitcnt vmcnt(0)
v_max3_u32 v8, v32, v33, v34
v_max3_u32 v9, v35, v36, v37
v_max3_u32 v8, v8, v38, v39
v_max_u32 v8, v8, v9
v_cmp_eq_u32 vcc, -1, v8''')
        for r in range(4): k(f'v_add_f32 v{40+r}, v{32+r}, v{36+r}')
        k(f'''s_cbranch_vccz {LD}
s_sub_u32 s43, s43, 1
s_cmp_lg_u32 s43, 0
s_cbranch_scc1 {LP}
{LD}:''')
        st(k, 0, 9); st(k, 6, 1)
        for m in ('row_ror:2', 'row_ror:4', 'row_ror:8'):
            for r in range(4): k(f'v_add_f32_dpp v{40+r}, v{40+r}, v{40+r} {m} row_mask:0xf bank_mask:0xf')
        for r in range(4): k(f'v_mul_f32 v{40+r}, v{40+r}, v4')
        k(f'''v_fma_f32 v41, -v40, v40, v41
v_fma_f32 v43, -v42, v42, v43
v_max_f32 v41, 0, v41
v_max_f32 v43, 0, v43
v_cvt_pk_bf16_f32 v12, v40, v42
v_cvt_pk_bf16_f32 v13, v41, v43
v_lshlrev_b32 v8, 16, v12
v_and_b32 v9, 0xffff0000, v12
v_lshlrev_b32 v10, 16, v13
v_and_b32 v11, 0xffff0000, v13
v_add_f32 v10, 0x3727c5ac, v10
v_add_f32 v11, 0x3727c5ac, v11
v_cvt_pk_bf16_f32 v13, v10, v11
v_lshlrev_b32 v10, 16, v13
v_and_b32 v11, 0xffff0000, v13
v_sqrt_f32 v10, v10
v_sqrt_f32 v11, v11''')
        for r in range(4):
            k(f'v_mov_b32_dpp v{16+r}, v{8+(r&1)} quad_perm:[{r>>1},{r>>1},{r>>1},{r>>1}] row_mask:0xf bank_mask:0xf')
        k(f'''v_cvt_pk_bf16_f32 v13, v10, v11
v_lshlrev_b32 v10, 16, v13
v_and_b32 v11, 0xffff0000, v13
v_rcp_f32 v10, v10
v_rcp_f32 v11, v11''')
        NT = len(tz)
        D = 48
        for h in range(2 * NT):
            k(f'v_lshlrev_b32 v{D+2*h}, 16, v{24+h}\nv_and_b32 v{D+1+2*h}, 0xffff0000, v{24+h}')
        for h in range(2 * NT):
            k(f'v_pk_add_f32 {vr(D+2*h,2)}, {vr(D+2*h,2)}, {vr(16+2*(h&1),2)} neg_lo:[0,1] neg_hi:[0,1]')
        for r in range(4):
            k(f'v_mov_b32_dpp v{20+r}, v{10+(r&1)} quad_perm:[{r>>1},{r>>1},{r>>1},{r>>1}] row_mask:0xf bank_mask:0xf')
        for pi, (i0, nt) in enumerate(prs):
            hs = range(2 * i0, 2 * i0 + 2 * nt)
            for h in hs: k(f'v_cvt_pk_bf16_f32 v{24+h}, v{D+2*h}, v{D+2*h+1}')
            for h in hs: k(f'v_lshlrev_b32 v{D+2*h}, 16, v{24+h}\nv_and_b32 v{D+1+2*h}, 0xffff0000, v{24+h}')
            for h in hs: k(f'v_pk_mul_f32 {vr(D+2*h,2)}, {vr(D+2*h,2)}, {vr(20+2*(h&1),2)}')
            for h in hs: k(f'v_cvt_pk_bf16_f32 v{24+h}, v{D+2*h}, v{D+2*h+1}')
            xp = 24 + 2 * i0
            if nt == 1:
                for h in hs: k(f'v_cvt_pk_bf16_f32 v{26+h}, v{D+2*h}, v{D+2*h+1}')
            k(f'v_permlane32_swap_b32 v{xp}, v{xp+2}\nv_permlane32_swap_b32 v{xp+1}, v{xp+3}')
            if nt == 1: k('s_mov_b32 exec_hi, 0')
            k(f'buffer_store_dwordx4 {vr(xp,4)}, v2, s[16:19], s54 offen sc1')
            if nt == 1: k('s_mov_b32 exec_hi, -1')
            if pi == 0: k('s_add_u32 s54, s54, 16384')
        st(k, 6, 2)
        k('v_lshrrev_b32 v1, 1, v3')
        p1 = [(0, 2, 2048), (2, 1, 3072)] if hh == 0 else [(0, 2, 0), (2, 2, 1024)]
        for pi, (i0, nt, off) in enumerate(p1):
            o = 8 + 4 * pi; a = ACC(i0)
            for h in range(2 * nt): k(f'v_cvt_pk_bf16_f32 v{o+h}, v{a+2*h}, v{a+2*h+1}')
            gelu_pk(k, o, 4 * nt, 32 + 16 * pi, 40 + 16 * pi, o, 6, sc=(SC > 1))
            if nt == 2: k(f'buffer_store_dwordx4 {vr(o,4)}, v3, s[12:15], s55 offen offset:{off} sc1')
            else: k(f'buffer_store_dwordx2 {vr(o,2)}, v1, s[12:15], s55 offen offset:{off} sc1')
        st(k, 6, 3)
        map_g2(k)
        k('s_load_dwordx2 s[24:25], s[0:1], 48\ns_waitcnt vmcnt(0)')
        st(k, 0, 5); st(k, 6, 4)
        T4 = k.label('t4'); TJ = k.label('tj')
        k(f'''s_barrier
s_cmp_ge_u32 s34, 4
s_cbranch_scc1 {T4}
s_cmp_lg_u32 s34, 0
s_cbranch_scc1 {TJ}
s_lshl_b32 s44, s36, {5+FS}
s_add_u32 s44, s44, {FL2}''')
        flag_poll(k, 47, 44, 32, opt.get('g2sl', 0), opt.get('g2d', 0))
        k(f's_branch {TJ}\n{T4}:')
        if not NOW: w_trans(k, 12, 13, list(range(WT2, 4)), 43)
        st(k, 6, 5)
        k(f'{TJ}:\ns_waitcnt lgkmcnt(0)\ns_barrier\ns_branch {DONE}')
    path(0)
    k(f'{LH}:')
    path(1)


def ph_g1t(k, opt, DONE, wb):
    assert W128 and not (wb and wb.ops) and not G1S
    LH = k.label('h1')
    ZC = 20000; NL = '\n'
    HP0 = opt.get('hp0', 10240)
    k(f's_lshl_b32 s49, s3, {FS}')
    g1id(k, 3, 35)
    k(f'''s_lshr_b32 s35, s3, 4
s_bfe_u32 s36, s3, 0x30001
s_and_b32 s37, s3, 1
s_and_b32 s38, s34, 3
s_lshl_b32 s39, s35, 2
s_add_u32 s39, s39, s38
s_lshr_b32 s46, s34, 2
v_and_b32 v2, 63, v0
v_and_b32 v6, 15, v2
v_lshrrev_b32 v7, 4, v2''')
    srd_from(k, 8, 40, 41, WS_HN, 0x300000)
    WD5 = opt.get('wd5', 0)
    if WD5:
        k(f'''v_mov_b32 v0, v124
s_mov_b32 s74, {2048*4096}
s_mov_b32 s50, s78
s_mov_b32 s51, s79
s_cmp_ge_u32 s34, s101
s_cselect_b64 s[100:101], -1, 0''')
    k(f'''v_lshrrev_b32 v8, 2, v6
v_and_b32 v10, 3, v6
v_mul_u32_u24 v1, {HP0}, v8
v_lshl_add_u32 v1, v7, 6, v1
v_lshl_add_u32 v1, v10, 4, v1
s_and_b32 s44, s39, -2
s_add_u32 s44, s44, s46
s_mul_i32 s44, s44, {4*HP0}
s_and_b32 s45, s38, 1
s_mul_i32 s45, s45, 5120
s_add_u32 s44, s44, s45
s_add_u32 s45, s44, 4096
v_add_u32 v4, 57344, v3
v_add_u32 v5, 114688, v3''')
    k(f'''v_and_b32 v9, 1, v6
v_lshl_add_u32 v9, v8, 1, v9
v_lshlrev_b32 v9, 2, v9
v_lshl_add_u32 v9, v7, 6, v9
v_lshlrev_b32 v8, 8, v8
v_lshl_add_u32 v8, v7, 6, v8
v_lshl_add_u32 v8, v10, 4, v8
v_lshl_add_u32 v2, v8, 16, v9
v_mov_b32 v6, {fbits(C0 if GV else C1)}
v_mov_b32 v7, {fbits(C0)}
s_mov_b32 s62, {fbits(C1)}
s_mov_b32 s63, {fbits(C1)}''')
    srd_from(k, 12, 40, 41, WS_Z1, A2_BYTES)
    srd_from(k, 16, 40, 41, WS_Z2, Z2N_BYTES)
    srd_from(k, 20, 40, 41, WS_PX, PX_BYTES)
    k(f'''s_and_b32 s47, s3, 15
s_lshl_b32 s53, s47, 8
s_lshl_b32 s47, s47, 4
s_add_u32 s47, s47, s35
s_lshl_b32 s47, s47, {FS}
s_add_u32 s47, s47, {FL2}
s_lshl_b32 s52, s39, 12
s_add_u32 s53, s53, s52
s_lshl_b32 s42, s46, 5
s_add_u32 s53, s53, s42
s_lshl_b32 s54, s36, 3
s_lshr_b32 s42, s39, 4
s_add_u32 s54, s54, s42
s_and_b32 s42, s39, 1
s_lshl_b32 s42, s42, 2
s_add_u32 s54, s54, s42
s_mul_i32 s54, s54, 56
s_bfe_u32 s42, s39, 0x30001
s_add_u32 s54, s54, s42
s_lshl_b32 s42, s37, 5
s_add_u32 s54, s54, s42
s_lshl_b32 s42, s46, 4
s_add_u32 s54, s54, s42
s_lshl_b32 s54, s54, 10
s_add_u32 s56, s54, 8192
s_and_b32 s42, s37, s46
s_cmp_eq_u32 s42, 1
s_cselect_b32 s56, {BIG}, s56
s_lshr_b32 s55, s39, 1
s_lshl_b32 s55, s55, 3
s_add_u32 s55, s55, s36
s_lshl_b32 s55, s55, 1
s_and_b32 s42, s39, 1
s_add_u32 s55, s55, s42
s_lshl_b32 s55, s55, 1
s_add_u32 s55, s55, s46
s_lshl_b32 s55, s55, 12
s_cmp_eq_u32 s36, 7
s_cselect_b32 s48, 0, -1
s_cselect_b32 s59, 0xffff, -1
s_lshl_b32 s58, s38, 12
s_lshl_b32 s57, s46, 3
s_add_u32 s57, s57, s58
s_lshl_b32 s42, s46, 11
s_add_u32 s58, s58, s42
s_lshl_b32 s42, s35, {4+FS}
s_waitcnt vmcnt({2 if opt.get('hd') else 0})
s_barrier''')
    st(k, 1, 3); st(k, 4, 7)
    if opt.get('zq'): k(f'v_mov_b32 v14, {ZC}\nv_mov_b32 v15, 0\nds_write_b32 v14, v15')
    W4 = k.label('w4'); WJ = k.label('wj')
    NOW = opt.get('now', 0)
    k(f's_cmp_ge_u32 s34, 4\ns_cbranch_scc1 {W4}')
    WG_ = [0, 1, 2, 3][opt.get('wte', 0):]
    ZH = opt.get('zh')
    if ZH:
        assert opt.get('zq') and not opt.get('zw')
        W5 = k.label('w5')
        w_trans(k, 12, 13, list(range(ZH[0])), 43)
        k(f's_waitcnt lgkmcnt(0)\ns_barrier\ns_cmp_lg_u32 s34, 0\ns_cbranch_scc1 {WJ}\nv_lshrrev_b32 v10, 4, v3\nv_lshlrev_b32 v10, {FS}, v10')
        flag_poll(k, 49, 42, 16, opt.get('g1sl', 0), opt.get('g1d', 0), part=2)
        k(f's_branch {WJ}\n{W4}:\ns_cmp_lg_u32 s34, 4\ns_cbranch_scc1 {W5}')
        flag_poll(k, 49, 42, 16, part=1)
        k(f'{W5}:\ns_barrier')
        w_trans(k, 12, 13, list(range(ZH[1])), 43)
        W4 = k.label('w4')
    elif not NOW: w_trans(k, 12, 13, WG_, 43)
    WTC = opt.get('wtc')
    WT5 = k.label('w5')
    k(f's_branch {WJ}\n{W4}:\ns_cmp_lg_u32 s34, 4\ns_cbranch_scc1 {WJ if WTC is None else WT5}')
    flag_poll(k, 49, 42, 16, opt.get('g1sl', 0), opt.get('g1d', 0))
    if WTC is not None:
        k(f's_branch {WJ}\n{WT5}:')
        if WTC: k(f's_sleep {WTC}')
        srd_from(k, 28, 40, 41, WS_WO, WO8_BYTES)
        k(f'''s_and_b32 s60, s2, 1
s_lshl_b32 s60, s60, 5
s_lshr_b32 s61, s2, 3
s_add_u32 s60, s60, s61
s_mul_i32 s60, s60, {WOB}
s_sub_u32 s61, s34, 5
s_mul_i32 s61, s61, {47*128}
s_add_u32 s60, s60, s61
v_lshlrev_b32 v113, 3, v3
s_mov_b32 exec_hi, 0x7fff
buffer_load_ubyte v112, v113, s[28:31], s60 offen
s_mov_b32 exec_hi, -1''')
    k(f'{WJ}:\ns_waitcnt lgkmcnt(0)\ns_barrier')
    st(k, 4, 8); st(k, 1, 4); st(k, 0, 3)
    AR = lambda kk: 32 + 4 * kk
    PD = opt.get('PD', 8)

    def aload(kk, vm=None):
        if kk >= 20: return
        k(f'buffer_load_dwordx4 {vr(AR(kk),4)}, v1, s[8:11], s{44+kk//16} offen offset:{256*(kk%16)}')
        if vm: vm.issue(f'a{kk}')
    for kk in range(PD): aload(kk)
    ZW = opt.get('zw', 0)
    if ZW:
        L = k.label('zw')
        k(f's_cmp_lt_u32 s34, 4\ns_cbranch_scc1 {L}')
        w_trans(k, 112, 113, list(range(ZW)), 43)
        k(f'{L}:')
    k(f's_cmp_eq_u32 s37, 1\ns_cbranch_scc1 {LH}')
    LA = opt.get('LA', 5); LA1 = opt.get('LA1', 6)
    SC = opt.get('gsc', 0)
    ACC = lambda i: 112 + 4 * i
    X4 = opt.get('g3v') == 4
    ZQ = opt.get('zq', 0)
    assert not (ZQ and X4)

    def rbar(lo):
        if opt.get('nrb'): return
        L = k.label('rb')
        k(f's_cmp_lt_u32 s34, 4\ns_cbranch_scc{int(not lo)} {L}\ns_barrier')
        for g in range(opt.get('stm', 0) if lo else 0):
            k(f's_add_u32 m0, s61, {100*1024+4096*g}')
            for j in range(3 if g == 3 else 4): k(f'buffer_load_dwordx4 v3, s[28:31], s60 offen offset:{1024*j} lds')
            k('s_add_u32 s60, s60, 4096')
        k(f'{L}:')

    def path(hh):
        vm = Cnt('vmcnt', 63); lg = Cnt('lgkmcnt', 15)
        for kk in range(PD): vm.issue(f'a{kk}')
        tz = [0, 1, 2, 3] if hh == 0 else [4, 5, 6]
        t1 = [4, 5, 6] if hh == 0 else [0, 1, 2, 3]

        def gpass(tiles, z2, free, la, ev=None, keep=(), tm=0):
            order = [(kk, i) for kk in range(20) for i in range(len(tiles))]
            if tm: order = [(kk, i) for i in range(len(tiles)) for kk in range(20)]
            last = {}
            for f, (kk, i) in enumerate(order): last[kk] = f
            buf = {}; nr = [0]; pend = []

            def reads(f):
                while nr[0] < len(order) and nr[0] <= f + la and free:
                    q = nr[0]; kk, i = order[q]
                    b = free.pop(0); buf[q] = b
                    a = BB + kk * 7168 + tiles[i] * 1024
                    if X4 or ZQ: a = BB + ((20 * (7 - len(tiles)) if z2 else 0) + kk * len(tiles) + i) * 1024
                    k(f'ds_read_b128 {vr(b,4)}, v{3+a//57344} offset:{a%57344}'); lg.issue(f'b{z2}_{q}')
                    nr[0] += 1
            reads(-1)
            for f, (kk, i) in enumerate(order):
                x = vm.wait(f'a{kk}')
                if x: k(x)
                if z2 and i == 0 and kk in (0, 10): st(k, 1, 5 + kk // 10)
                x = lg.wait(f'b{z2}_{f}')
                if x: k(x)
                acc = vr(ACC(i), 4); c = '0' if kk == 0 else acc
                b = vr(buf[f], 4); a = vr(AR(kk), 4)
                k(f'{MFMA} {acc}, {a}, {b}, {c}' if z2 else f'{MFMA} {acc}, {b}, {a}, {c}')
                free.extend(pend); pend = [buf[f]]
                if not z2 and last[kk] == f and AR(kk) not in keep: pend.append(AR(kk))
                reads(f)
                if z2 and i == 0: aload(kk + PD, vm)
                if ev and f in ev:
                    for e in ev[f]: e()
        if opt.get('zprio'): k(f's_setprio {opt["zprio"]}')
        def role(lo, f):
            def g():
                L = k.label('ro')
                k(f's_cmp_lt_u32 s34, 4\ns_cbranch_scc{int(not lo)} {L}')
                f()
                k(f'{L}:')
            return g
        ev2 = {}
        if ZW:
            ZB = opt.get('zwb', [10, 2])
            for r in range(2): ev2.setdefault(ZB[r] * len(tz), []).append(role(not r, lambda: k('s_barrier')))
        gpass(tz, 1, [8, 12, 16, 20, 24, 28], LA, ev2)
        st(k, 1, 7); st(k, 0, 4); st(k, 4, 9)
        if X4:
            assert not opt.get('g2m')
            rbar(False)
            srd_from(k, 28, 40, 41, WS_WO, WO8_BYTES)
            k(f'''s_and_b32 s60, s2, 1
s_lshl_b32 s60, s60, 2
s_lshr_b32 s61, s2, 6
s_add_u32 s60, s60, s61
s_mul_i32 s60, s60, {8*WOB}
s_mul_i32 s61, s34, {15*1024}
s_add_u32 s60, s60, s61''')
        WD4 = opt.get('wd4', 0)
        def wdef(a, b, t0=12):
            SK = k.label('wd')
            k(f's_cmp_lt_u32 s34, 4\ns_cbranch_scc1 {SK}')
            if a == 0: k(f's_mov_b32 s74, {2048*4096}\ns_mov_b32 s50, s82\ns_add_u32 s51, s50, 4096')
            w_vaddr(k, t0, t0 + 1)
            for o in g2_wops()[a:b]: k(o.replace('@', f'v{t0}'))
            k(f'{SK}:')
        if WD4: wdef(0, WD4)
        dq = []
        for o in (g2_wops()[32-WD5:] if WD5 else []):
            o = o.split('\n')
            dq.append('\n'.join(['s_mov_b64 exec, s[100:101]', o[0], 's_mov_b64 exec, -1'] + o[1:]))
        dq = Bulk(k, dq)
        ig0 = len(k.lines)
        S = 20; Q = 8
        L2Z = opt.get('lean', 0) & 32
        k('v_add_u32 v1, s57, v3')
        prs = [(0, 2), (2, 2)] if hh == 0 else [(0, 2), (2, 1)]
        for pi, (i0, nt) in enumerate(prs):
            xp = 24 + 2 * i0; a = ACC(i0); n = 4 * nt
            if X4 and pi == opt.get('rbp', 1): rbar(True)
            if L2Z:
                for t in range(nt):
                    c = a + 4 * t
                    k(f'v_permlane32_swap_b32 v{c}, v{c+2}\nv_permlane32_swap_b32 v{c+1}, v{c+3}')
                for t in range(nt):
                    c = a + 4 * t
                    k(f'v_permlane16_swap_b32 v{c}, v{c+1}\nv_permlane16_swap_b32 v{c+2}, v{c+3}')
                for t in range(nt):
                    if hh and i0 + t > 0:
                        for r in range(4): k(f'v_and_b32 v{a+4*t+r}, s48, v{a+4*t+r}')
                gelu_pk(k, None, n, a, 12, xp, 6)
            elif nt == 2:
                for r in range(4): k(f'v_cvt_pk_bf16_f32 v{xp+r}, v{a+r}, v{a+4+r}')
                if hh:
                    for r in range(4): k(f'v_and_b32 v{xp+r}, s59, v{xp+r}')
                k(f'''v_permlane32_swap_b32 v{xp}, v{xp+2}
v_permlane32_swap_b32 v{xp+1}, v{xp+3}
v_permlane16_swap_b32 v{xp}, v{xp+1}
v_permlane16_swap_b32 v{xp+2}, v{xp+3}''')
                gelu_pk(k, xp, 8, a, 12, xp, 6, tr=True, sc=(SC > 0))
            else:
                k(f'''v_permlane32_swap_b32 v{a}, v{a+2}
v_permlane32_swap_b32 v{a+1}, v{a+3}
v_permlane16_swap_b32 v{a}, v{a+1}
v_permlane16_swap_b32 v{a+2}, v{a+3}''')
                for h in range(2): k(f'v_cvt_pk_bf16_f32 v{xp+h}, v{a+2*h}, v{a+2*h+1}')
                for h in range(2): k(f'v_and_b32 v{xp+h}, s48, v{xp+h}')
                gelu_pk(k, xp, 4, a, 12, xp, 6, sc=(SC > 0))
            for t in range(nt):
                k(f'ds_write_b64 v1, {vr(xp+2*t,2)} offset:{1024*(i0+t)}'); lg.issue('x')
            for h in range(0 if L2Z else 2 * nt):
                k(f'v_lshlrev_b32 v{a+2*h}, 16, v{xp+h}\nv_and_b32 v{a+1+2*h}, 0xffff0000, v{xp+h}')
            if L2Z: a = 12
            if SC > 0:
                for e in range(n):
                    r = e & 3
                    if pi == 0 and e < 4: k(f'v_mul_f32 v{Q+r}, v{a+e}, v{a+e}')
                    elif pi == 0: k(f'v_add_f32 v{S+r}, v{a+r}, v{a+e}\nv_fmac_f32 v{Q+r}, v{a+e}, v{a+e}')
                    else: k(f'v_add_f32 v{S+r}, v{S+r}, v{a+e}\nv_fmac_f32 v{Q+r}, v{a+e}, v{a+e}')
            else:
                for e in range(0, n, 2):
                    r = e & 3
                    d = vr(a + e, 2); q = vr(Q + r, 2); s_ = vr(S + r, 2)
                    if pi == 0 and e < 4: k(f'v_pk_mul_f32 {q}, {d}, {d}')
                    elif pi == 0: k(f'v_pk_add_f32 {s_}, {vr(a+r,2)}, {d}\nv_pk_fma_f32 {q}, {d}, {d}, {q}')
                    else: k(f'v_pk_add_f32 {s_}, {s_}, {d}\nv_pk_fma_f32 {q}, {d}, {d}, {q}')
        weave_in(k, ig0, dq, opt.get('wdg', 20), None, 0)
        V = []
        for r in range(4): V += [S + r, Q + r]
        for i in range(4): k(f'v_add_f32_dpp v{V[i]}, v{V[i]}, v{V[i]} row_ror:8 row_mask:0xf bank_mask:0x3')
        for i in range(4): k(f'v_add_f32_dpp v{V[i]}, v{V[i+4]}, v{V[i+4]} row_ror:8 row_mask:0xf bank_mask:0xc')
        for i in range(2): k(f'v_add_f32_dpp v{V[i]}, v{V[i]}, v{V[i]} row_half_mirror row_mask:0xf bank_mask:0x5')
        k('v_and_b32 v12, 0xffff, v2')
        for i in range(2): k(f'v_add_f32_dpp v{V[i]}, v{V[i+2]}, v{V[i+2]} row_half_mirror row_mask:0xf bank_mask:0xa')
        k('v_lshrrev_b32 v1, 16, v2\ns_mov_b32 vcc_lo, 0xaaaaaaaa\ns_mov_b32 vcc_hi, 0xaaaaaaaa')
        for m in ('quad_perm:[1,0,3,2]', 'quad_perm:[2,3,0,1]'):
            for i in range(2): k(f'v_add_f32_dpp v{V[i]}, v{V[i]}, v{V[i]} {m} row_mask:0xf bank_mask:0xf')
        k(f'''v_cndmask_b32 v13, v{V[0]}, v{V[1]}, vcc
buffer_store_dword v13, v12, s[20:23], s53 offen sc1
v_add_u32 v2, s58, v3''')
        vm.issue('px')
        if X4 and opt.get('rbp', 1) == 2: rbar(True)
        if WD4 and WD4 < 32: wdef(WD4, 32, 16)
        st(k, 1, 8)
        if opt.get('zprio'): k('s_setprio 0')
        if opt.get('zs0'):
            L = k.label('z0')
            k(f's_cmp_ge_u32 s34, 4\ns_cbranch_scc1 {L}\ns_sleep {opt["zs0"]}\n{L}:')
        n1 = 20 * len(t1)
        PB = 32; XR = 48

        def pxld():
            for i in range(4): k(f'buffer_load_dwordx4 {vr(PB+4*i,4)}, v1, s[20:23], s52 offen offset:{1024*i} sc1')

        ZS = opt.get('zs', 0)

        def xrd():
            k('s_barrier')
            for t in range(2):
                k(f'ds_read_b128 {vr(XR+4*t,4)}, v2 offset:{1024*t}')
                if not ZS: lg.issue('xr')
        if ZQ:
            assert opt.get('lean', 0) & 68 == 68 and not SC and not dq.ops
            p1 = [(0, 2, 2048), (2, 1, 3072)] if hh == 0 else [(0, 2, 0), (2, 2, 1024)]
            zg = lambda pi: gelu_pk(k, None, 4 * p1[pi][1], ACC(p1[pi][0]), 80 + 16 * pi, 72 + 4 * pi, 6)

            def pxl(PB):
                for i in range(4): k(f'buffer_load_dwordx4 {vr(PB+4*i,4)}, v1, s[20:23], s52 offen offset:{1024*i} sc1')

            def xr(XR):
                for t in range(2): k(f'ds_read_b128 {vr(XR+4*t,4)}, v2 offset:{1024*t}')

            def unp(D, XR, n):
                for h in range(n): k(f'v_lshlrev_b32 v{D+2*h}, 16, v{XR+h}\nv_and_b32 v{D+1+2*h}, 0xffff0000, v{XR+h}')

            def norm(PB, XR, D, late, pre=None):
                LP = k.label('lp'); LD = k.label('ld'); L1 = k.label('l1')
                k(f's_mov_b32 s43, {SPIN}')
                if not late:
                    k('s_waitcnt lgkmcnt(0)')
                    unp(D, XR, 8)
                if pre: pre()
                k(f's_branch {L1}\n{LP}:')
                if opt.get('pxs'): k(f"s_sleep {opt['pxs']}")
                pxl(PB)
                P = lambda i: f'v{PB+i}'
                k(f'''{L1}:
s_waitcnt vmcnt(2)
v_max3_u32 v24, {P(0)}, {P(1)}, {P(2)}
v_max3_u32 v25, {P(3)}, {P(4)}, {P(5)}
v_max3_u32 v24, v24, {P(6)}, {P(7)}''')
                for r in range(4): k(f'v_add_f32 v{28+r}, {P(r)}, {P(4+r)}')
                k(f'''s_waitcnt vmcnt(0)
v_max3_u32 v25, v25, {P(8)}, {P(9)}
v_max3_u32 v24, v24, {P(10)}, {P(11)}
v_max3_u32 v25, v25, {P(12)}, {P(13)}
v_max3_u32 v24, v24, {P(14)}, {P(15)}
v_max_u32 v24, v24, v25
v_cmp_eq_u32 vcc, -1, v24''')
                for r in range(4): k(f'v_add_f32 v{16+r}, {P(8+r)}, {P(12+r)}')
                k(f'''s_cbranch_vccz {LD}
s_sub_u32 s43, s43, 1
s_cmp_lg_u32 s43, 0
s_cbranch_scc1 {LP}
{LD}:''')
                if late: xr(XR)
                st(k, 0, 9); st(k, 6, 1)
                for r in range(4): k(f'v_add_f32 v{28+r}, v{28+r}, v{16+r}')
                for m in ('row_ror:4', 'row_ror:8'):
                    for r in range(4): k(f'v_add_f32_dpp v{28+r}, v{28+r}, v{28+r} {m} row_mask:0xf bank_mask:0xf')
                for r in range(4): k(f'v_mul_f32 v{28+r}, {fbits(1.0/864)}, v{28+r}')
                k(f'''v_fma_f32 v29, -v28, v28, v29
v_fma_f32 v31, -v30, v30, v31
v_max_f32 v29, 0, v29
v_max_f32 v31, 0, v31
v_cvt_pk_bf16_f32 v12, v28, v30
v_cvt_pk_bf16_f32 v13, v29, v31
v_lshlrev_b32 v8, 16, v12
v_and_b32 v9, 0xffff0000, v12
v_lshlrev_b32 v10, 16, v13
v_and_b32 v11, 0xffff0000, v13
v_add_f32 v10, 0x3727c5ac, v10
v_add_f32 v11, 0x3727c5ac, v11
v_cvt_pk_bf16_f32 v13, v10, v11
v_lshlrev_b32 v10, 16, v13
v_and_b32 v11, 0xffff0000, v13
v_sqrt_f32 v10, v10
v_sqrt_f32 v11, v11''')
                for e in range(8):
                    k(f'v_mov_b32_dpp v{16+e}, v{8+(e&1)} quad_perm:[{e>>1},{e>>1},{e>>1},{e>>1}] row_mask:0xf bank_mask:0xf')
                k(f'''v_cvt_pk_bf16_f32 v13, v10, v11
v_lshlrev_b32 v10, 16, v13
v_and_b32 v11, 0xffff0000, v13
v_rcp_f32 v10, v10
v_rcp_f32 v11, v11''')
                for i in range(2):
                    d = D if late else D + 8 * i
                    o = XR + 4 * i
                    if late:
                        k(f's_waitcnt lgkmcnt({1-i})')
                        unp(d, o, 4)
                    for e in range(0, 8, 2):
                        k(f'v_pk_add_f32 {vr(d+e,2)}, {vr(d+e,2)}, {vr(16+e,2)} neg_lo:[0,1] neg_hi:[0,1]')
                    if i == 0:
                        for e in range(8):
                            k(f'v_mov_b32_dpp v{24+e}, v{10+(e&1)} quad_perm:[{e>>1},{e>>1},{e>>1},{e>>1}] row_mask:0xf bank_mask:0xf')
                    for e in range(0, 8, 2):
                        k(f'v_pk_mul_f32 {vr(d+e,2)}, {vr(d+e,2)}, {vr(24+e,2)}')
                    for r in range(4): k(f'v_cvt_pk_bf16_f32 v{o+r}, v{d+2*r}, v{d+2*r+1}')
                    k(f'buffer_store_dwordx4 {vr(o,4)}, v3, s[16:19], s{54+2*i} offen sc1')
                st(k, 6, 2)

            def cadd(inc):
                k(f'v_mov_b32 v56, {ZC}\nv_mov_b32 v57, {inc}\ns_mov_b64 exec, 1\nds_add_rtn_u32 v57, v56, v57\ns_mov_b64 exec, -1')

            def cchk():
                L = k.label('nf')
                k(f'''v_readfirstlane_b32 s42, v57
s_cmp_lg_u32 s42, 7
s_cbranch_scc1 {L}
s_mov_b64 exec, 1
v_mov_b32 v0, 1
buffer_store_dword v0, off, s[68:71], s47 sc1
s_mov_b64 exec, -1
{L}:''')

            def flg(n):
                k(f's_waitcnt vmcnt({n})')
                cadd(1)
                k('s_waitcnt lgkmcnt(0)')
                cchk()
                wreg()
                if opt.get('wld') == 3: wdma()
            WDF = opt.get('wdf', 0)
            dops = [o.replace('@', 'v0') for o in g2_wops()[32-WDF:]] if WDF else []
            if WDF: w_vaddr(k, 0, 14)
            k(f'''s_lshl_b32 s49, s34, 2
s_add_u32 s49, s49, s47
s_add_u32 s49, s49, {FLU-FL2}
s_waitcnt lgkmcnt(0)
s_barrier''')
            lg.done = len(lg.tags)
            st(k, 6, 7)
            WP = opt.get('wp', 0); WL = opt.get('wl', 0)
            if WP or WL:
                assert not opt.get('g2m')
                srd_from(k, 28, 40, 41, WS_WO, WO8_BYTES)
                k(f'''s_and_b32 s60, s2, 1
s_lshl_b32 s60, s60, 2
s_lshr_b32 s61, s2, 6
s_add_u32 s60, s60, s61
s_lshl_b32 s60, s60, 3
s_add_u32 s61, s60, s38
s_add_u32 s60, s60, s34
s_mul_i32 s60, s60, {WOB}
s_mul_i32 s61, s61, {WOB}
s_add_u32 s61, s61, {(15-WL)*1024}
s_mul_i32 s42, s38, {1024*WL}
s_add_u32 m0, s42, {WSB}''')

            def wdma():
                for j in range(WL):
                    if j == 4: k('s_add_u32 m0, m0, 4096\ns_add_u32 s61, s61, 4096')
                    k(f'buffer_load_dwordx4 v3, s[28:31], s61 offen offset:{1024*(j%4)} lds')

            def wreg():
                for j in range(WP): k(f'buffer_load_dwordx4 {vr(40+4*j,4)}, v3, s[28:31], s60 offen offset:{1024*j}')
            if WL and opt.get('wld') == 1: role(True, wdma)()
            B64 = opt.get('b64', 1 if WL else 0)
            def wth(groups, mid=None):
                if B64: w_trans(k, 14, 15, groups, 43, base=100 * 1024, mid=(lambda r: mid(4 * r)) if mid else None)
                else: w_trans128(k, 14, 15, 100 * 1024, 43, groups, mid)

            Z0 = ZH[1] if ZH else ZW
            ZG = Z0 + opt.get('zqg', 0)
            ZQP = opt.get('zqp', 0)

            def hib():
                if opt.get('zqr0'): k(f's_setprio {opt["zqr0"]}')
                for o in dops: k(o)
                if WL and not opt.get('wld'): wdma()
                wth(list(range(Z0, ZG)), lambda r: pxl(112) if r == ZQP else None)
                if opt.get('zqr0'): k('s_setprio 0')
                if opt.get('zqs'): k(f's_sleep {opt["zqs"]}')
                if not ZQP: pxl(112)
                st(k, 6, 5)
                if opt.get('zqr'): k(f's_setprio {opt["zqr"]}')
                norm(112, 120, 112, True)
                if opt.get('zqr'): k(f's_setprio {opt.get("zqr2", 0)}')
            lor = (lambda f: role(True, f)) if ZQ == 1 else (lambda f: f)
            if ZQ == 1: role(False, hib)()
            else: assert ZG == Z0
            PXE = opt.get('pxe', 4); XE = opt.get('xe', 8)
            assert n1 - 1 - max(PXE, XE) >= 6 * len(t1)
            ev = {}
            ev.setdefault(n1 - 1 - PXE, []).append(lor(lambda: pxl(32)))
            ev.setdefault(n1 - 1 - XE, []).append(lor(lambda: xr(48)))
            if WDF:
                assert ZQ == 1 and ZH and 32 - WDF >= 8 * max(ZG, ZH[0])
                D0, DS = opt.get('wdp', [0, 4])
                for j in range(0, WDF, 2): ev.setdefault(D0 + DS * j // 2, []).append(role(True, lambda j=j: (k(dops[j]), k(dops[j+1]))))
            if ZQ == 1:
                F0, F1 = opt.get('zqf', [28, 34])
                assert 7 * len(t1) <= F0 + 1 and F1 < n1 - 1 - max(PXE, XE)
                def f0():
                    role(False, lambda: k('s_waitcnt vmcnt(0)'))()
                    cadd('s46'); lg.issue('cnt')
                def f1():
                    k(lg.wait('cnt') or '')
                    role(False, lambda: (cchk(), wreg(), wdma() if opt.get('wld') == 2 else None))()
                ev.setdefault(F0, []).append(f0); ev.setdefault(F1, []).append(f1)
            gpass(t1, 0, [16, 24, 28, 8, 20, 12], LA1, ev, keep=(32, 36, 40, 44, 48, 52, 56))
            st(k, 1, 9); st(k, 6, 6)
            ZO = opt.get('zo', 0); ZCN = opt.get('zc', 0)
            if opt.get('zlr'): k(f's_setprio {opt["zlr"]}')
            for pi in range(ZO): zg(pi)
            lor(lambda: norm(32, 48, 56, False))()
            if opt.get('zlg') is not None: k(f's_setprio {opt["zlg"]}')
            k('v_lshrrev_b32 v1, 1, v3')
            for pi, (i0, nt, off) in enumerate(p1):
                o = 72 + 4 * pi
                if pi == 0 and ZCN == 2: lor(lambda: flg(0))()
                if pi >= ZO: zg(pi)
                if pi == 0 and ZCN == 1: lor(lambda: flg(0))()
                if nt == 2: k(f'buffer_store_dwordx4 {vr(o,4)}, v3, s[12:15], s55 offen offset:{off} sc1')
                else: k(f'buffer_store_dwordx2 {vr(o,2)}, v1, s[12:15], s55 offen offset:{off} sc1')
            st(k, 6, 3)
            map_g2(k)
            k('s_load_dwordx2 s[24:25], s[0:1], 48')
            if ZCN == 0: lor(lambda: flg(2))()
            if opt.get('zlr'): k('s_setprio 0')
            st(k, 0, 5); st(k, 6, 4)
            TJ = k.label('tj'); T4 = k.label('t4')
            ZA = opt.get('za', 0)
            PL2 = 'buffer_load_dword v9, v10, s[68:71], s44 offen sc1'
            k(f'''s_lshl_b32 s44, s36, {5+FS}
s_add_u32 s44, s44, {FL2}
v_bfe_u32 v10, v3, 4, 5
v_lshlrev_b32 v10, {FS}, v10''')
            def amid(r):
                if r != ZA: return
                L = k.label('am')
                k(f's_cmp_lg_u32 s34, 0\ns_cbranch_scc1 {L}\ns_mov_b32 exec_hi, 0\n{PL2}\ns_mov_b32 exec_hi, -1\n{L}:')
            G2E = opt.get('g2e', [0, 0])
            if G2E != [0, 0]:
                assert ZH and ZH[0] <= 4 - G2E[0] and ZG <= 4 - G2E[1]
                opt['g2ef'] = [lambda: w_trans(k, 14, 15, list(range(4 - G2E[0], 4)), 43, base=100 * 1024 + 4 * (4160 if B64 else 8320)), lambda: wth(list(range(4 - G2E[1], 4)))]
            if ZH: role(True, lambda: w_trans(k, 14, 15, list(range(ZH[0], 4 - G2E[0])), 43, base=100 * 1024 + 4 * (4160 if B64 else 8320), mid=amid))()
            st(k, 6, 9)
            if opt.get('pq'):
                assert not ZA and not opt.get('g2b')
                role(False, lambda: wth(list(range(ZG, 4 - G2E[1]))))()
                k(f'''s_and_b32 s42, s34, 3
s_lshl_b32 s42, s42, {2+FS}
s_add_u32 s44, s44, s42
v_bfe_u32 v10, v3, 4, 2
v_bfe_u32 v9, v3, 6, 1
v_lshl_add_u32 v10, v9, 4, v10
v_lshlrev_b32 v10, {FS}, v10''')
                if opt['pq'] == 1: k('s_barrier')
                flag_poll(k, 47, 44, 8, opt.get('g2sl', 0), opt.get('g2d', 0), part=2)
                st(k, 6, 8)
                k(f's_waitcnt lgkmcnt(0)\ns_branch {DONE}')
                return
            if opt.get('zqb', 1): k('s_barrier')
            k(f'''s_cmp_ge_u32 s34, 4
s_cbranch_scc1 {T4}
s_cmp_lg_u32 s34, 0
s_cbranch_scc1 {TJ}''')
            if ZA:
                assert ZH and ZA <= 2 * (4 - ZH[0])
                k(f's_mov_b32 exec_hi, 0\ns_waitcnt vmcnt(0)\nv_cmp_eq_u32 vcc, 0, v9\ns_mov_b32 exec_hi, -1\ns_cbranch_vccz {TJ}')
            flag_poll(k, 47, 44, 32, opt.get('g2sl', 0), opt.get('g2d', 0), part=2)
            st(k, 6, 8)
            k(f's_branch {TJ}\n{T4}:')
            wth(list(range(ZG, 4 - G2E[1])))
            st(k, 6, 8)
            k(f'{TJ}:\ns_waitcnt lgkmcnt(0)\n{"" if opt.get("g2b") else "s_barrier"}\ns_branch {DONE}')
            return
        ev = {}
        PXE = opt.get('pxe', 12); XE = opt.get('xe', 8)
        ev.setdefault(n1 - 1 - PXE, []).append(role(False, pxld) if ZS else pxld)
        ev.setdefault(n1 - 1 - XE, []).append(role(False, xrd) if ZS else xrd)
        ZT = opt.get('zt', 0)
        assert n1 - 1 - max(PXE, XE) >= (n1 - 14 if ZT else 6 * len(t1))
        ZP = 12 if hh else 124
        zout = lambda i: ACC(i & ~1) + 2 * (i & 1)
        if ZT:
            assert opt.get('lean', 0) & 64 and not SC
            for i in range(len(t1) - 1):
                ops = []
                gelu_pk(lambda t: ops.extend(t.split('\n')), None, 4, ACC(i), ZP, zout(i), 6)
                Z0, ZR = opt.get('ztr', [2, 2])
                for j, o in enumerate(ops): ev.setdefault(20 * (i + 1) + Z0 + j // ZR, []).append(lambda o=o: k(o))
        if X4:
            def sta(g):
                L = k.label('sa')
                k(f's_cmp_ge_u32 s34, 4\ns_cbranch_scc1 {L}\ns_add_u32 m0, s61, {100*1024+4096*g}')
                for j in range(3 if g == 3 else 4): k(f'buffer_load_dwordx4 v3, s[28:31], s60 offen offset:{1024*j} lds')
                k(f's_add_u32 s60, s60, 4096\n{L}:')
            S0, SS = opt.get('sta', [2, 8])
            for g in range(opt.get('stm', 0), opt.get('nsta', 4)): ev.setdefault(S0 + SS * (g - opt.get('stm', 0)), []).append(lambda g=g: sta(g))
        for j in range(len(dq.ops)):
            pj = j * opt.get('wds', 3)
            assert pj < n1 - 1 - PXE
            ev.setdefault(pj, []).append(lambda: dq(1, None, 0))
        gpass(t1, 0, [16, 24, 28, 8, 20, 12][:5 if ZT and hh else 6], LA1, ev, keep=(32, 36, 40, 44, 48, 52), tm=ZT)
        st(k, 1, 9)
        LP = k.label('lp'); LD = k.label('ld'); L1 = k.label('l1')
        D = 56
        p1 = [(0, 2, 2048), (2, 1, 3072)] if hh == 0 else [(0, 2, 0), (2, 2, 1024)]
        ZO = opt.get('zo', 0)
        zg = lambda pi: gelu_pk(k, None, 4 * p1[pi][1], ACC(p1[pi][0]), 80 + 16 * pi, 72 + 4 * pi, 6, sc=(SC > 1))
        if ZS:
            def lot():
                if opt.get('zsl'): k(f's_sleep {opt["zsl"]}')
                zg(0); zg(1)
                if ZS == 1: pxld()
                xrd()
                if ZS == 2: pxld()
            role(True, lot)()
        k(f'''v_mov_b32 v4, {fbits(1.0/864)}
s_mov_b32 s43, {SPIN}
s_waitcnt lgkmcnt(0)''')
        for h in range(8):
            k(f'v_lshlrev_b32 v{D+2*h}, 16, v{XR+h}\nv_and_b32 v{D+1+2*h}, 0xffff0000, v{XR+h}')
        zlast = lambda: gelu_pk(k, None, 4, ACC(len(t1) - 1), 80, zout(len(t1) - 1), 6)
        if ZT == 1: zlast()
        if ZO:
            assert opt.get('lean', 0) & 64
            for pi in range(ZO): role(False, lambda: zg(pi))() if ZS else zg(pi)
            st(k, 6, 6)
        k(f'''s_branch {L1}
{LP}:''')
        if opt.get('pxs'): k(f"s_sleep {opt['pxs']}")
        pxld()
        k(f'''{L1}:
s_waitcnt vmcnt(2)
v_max3_u32 v24, v32, v33, v34
v_max3_u32 v25, v35, v36, v37
v_max3_u32 v24, v24, v38, v39''')
        for r in range(4): k(f'v_add_f32 v{28+r}, v{32+r}, v{36+r}')
        k('''s_waitcnt vmcnt(0)
v_max3_u32 v25, v25, v40, v41
v_max3_u32 v24, v24, v42, v43
v_max3_u32 v25, v25, v44, v45
v_max3_u32 v24, v24, v46, v47
v_max_u32 v24, v24, v25
v_cmp_eq_u32 vcc, -1, v24''')
        for r in range(4): k(f'v_add_f32 v{16+r}, v{40+r}, v{44+r}')
        k(f'''s_cbranch_vccz {LD}
s_sub_u32 s43, s43, 1
s_cmp_lg_u32 s43, 0
s_cbranch_scc1 {LP}
{LD}:''')
        st(k, 0, 9); st(k, 6, 1)
        for r in range(4): k(f'v_add_f32 v{28+r}, v{28+r}, v{16+r}')
        for m in ('row_ror:4', 'row_ror:8'):
            for r in range(4): k(f'v_add_f32_dpp v{28+r}, v{28+r}, v{28+r} {m} row_mask:0xf bank_mask:0xf')
        for r in range(4): k(f'v_mul_f32 v{28+r}, v{28+r}, v4')
        k(f'''v_fma_f32 v29, -v28, v28, v29
v_fma_f32 v31, -v30, v30, v31
v_max_f32 v29, 0, v29
v_max_f32 v31, 0, v31
v_cvt_pk_bf16_f32 v12, v28, v30
v_cvt_pk_bf16_f32 v13, v29, v31
v_lshlrev_b32 v8, 16, v12
v_and_b32 v9, 0xffff0000, v12
v_lshlrev_b32 v10, 16, v13
v_and_b32 v11, 0xffff0000, v13
v_add_f32 v10, 0x3727c5ac, v10
v_add_f32 v11, 0x3727c5ac, v11
v_cvt_pk_bf16_f32 v13, v10, v11
v_lshlrev_b32 v10, 16, v13
v_and_b32 v11, 0xffff0000, v13
v_sqrt_f32 v10, v10
v_sqrt_f32 v11, v11''')
        for e in range(8):
            k(f'v_mov_b32_dpp v{16+e}, v{8+(e&1)} quad_perm:[{e>>1},{e>>1},{e>>1},{e>>1}] row_mask:0xf bank_mask:0xf')
        k(f'''v_cvt_pk_bf16_f32 v13, v10, v11
v_lshlrev_b32 v10, 16, v13
v_and_b32 v11, 0xffff0000, v13
v_rcp_f32 v10, v10
v_rcp_f32 v11, v11''')
        for i in range(2):
            d = D + 8 * i
            for e in range(0, 8, 2):
                k(f'v_pk_add_f32 {vr(d+e,2)}, {vr(d+e,2)}, {vr(16+e,2)} neg_lo:[0,1] neg_hi:[0,1]')
            if i == 0:
                for e in range(8):
                    k(f'v_mov_b32_dpp v{24+e}, v{10+(e&1)} quad_perm:[{e>>1},{e>>1},{e>>1},{e>>1}] row_mask:0xf bank_mask:0xf')
            o = XR + 4 * i
            if not opt.get('lean', 0) & 4:
                for r in range(4): k(f'v_cvt_pk_bf16_f32 v{o+r}, v{d+2*r}, v{d+2*r+1}')
                for r in range(4): k(f'v_lshlrev_b32 v{d+2*r}, 16, v{o+r}\nv_and_b32 v{d+1+2*r}, 0xffff0000, v{o+r}')
            for e in range(0, 8, 2):
                k(f'v_pk_mul_f32 {vr(d+e,2)}, {vr(d+e,2)}, {vr(24+e,2)}')
            for r in range(4): k(f'v_cvt_pk_bf16_f32 v{o+r}, v{d+2*r}, v{d+2*r+1}')
            k(f'buffer_store_dwordx4 {vr(o,4)}, v3, s[16:19], s{54+2*i} offen sc1')
        st(k, 6, 2)
        k('v_lshrrev_b32 v1, 1, v3')
        for pi, (i0, nt, off) in enumerate(p1):
            o = 8 + 4 * pi; a = ACC(i0)
            if ZT:
                o = a
                if ZT == 2 and pi == 1: zlast()
            elif pi < ZO: o = 72 + 4 * pi
            elif ZS:
                o = 72 + 4 * pi
                role(False, lambda: zg(pi))()
            elif opt.get('lean', 0) & 64: gelu_pk(k, None, 4 * nt, a, 80 + 16 * pi, o, 6, sc=(SC > 1))
            else:
                for h in range(2 * nt): k(f'v_cvt_pk_bf16_f32 v{o+h}, v{a+2*h}, v{a+2*h+1}')
                gelu_pk(k, o, 4 * nt, 72 + 16 * pi, 80 + 16 * pi, o, 6, sc=(SC > 1))
            if nt == 2: k(f'buffer_store_dwordx4 {vr(o,4)}, v3, s[12:15], s55 offen offset:{off} sc1')
            else: k(f'buffer_store_dwordx2 {vr(o,2)}, v1, s[12:15], s55 offen offset:{off} sc1')
        st(k, 6, 3)
        map_g2(k)
        SB = opt.get('stb', 0)
        def stb():
            for j in range(4): k(f'buffer_load_dwordx4 {vr(40+4*j,4)}, v3, s[28:31], s60 offen offset:{1024*j}')
        if X4:
            k(f'''s_mul_i32 s62, s36, {8*WOB}
s_lshl_b32 s60, s34, 12
s_add_u32 s60, s60, s62
s_add_u32 s60, s60, {60*1024}''')
            if SB == 0: stb()
        k(f's_load_dwordx2 s[24:25], s[0:1], 48\ns_waitcnt vmcnt({4 if X4 and SB == 0 else 0})')
        st(k, 0, 5); st(k, 6, 4)
        T4 = k.label('t4'); TJ = k.label('tj'); T1 = k.label('t1')
        k(f'''s_barrier
s_cmp_ge_u32 s34, 4
s_cbranch_scc1 {T4}
s_cmp_lg_u32 s34, 0
s_cbranch_scc1 {T1 if X4 and SB else TJ}
s_lshl_b32 s44, s36, {5+FS}
s_add_u32 s44, s44, {FL2}''')
        if X4 and SB:
            flag_poll(k, 47, 44, 32, part=1)
            stb()
            flag_poll(k, 47, 44, 32, opt.get('g2sl', 0), opt.get('g2d', 0), part=2)
            k(f's_branch {TJ}\n{T1}:\ns_sleep {SB}')
            stb()
        else: flag_poll(k, 47, 44, 32, opt.get('g2sl', 0), opt.get('g2d', 0))
        k(f's_branch {TJ}\n{T4}:')
        if X4 and SB:
            k(f's_sleep {SB}')
            stb()
        if opt.get('wt67'): k(f's_cmp_ge_u32 s34, 6\ns_cbranch_scc1 {TJ}')
        else: assert not opt.get('wte')
        if not NOW: w_trans(k, 12, 13, WG_[ZW:], 43)
        st(k, 6, 5)
        k(f'{TJ}:\ns_waitcnt lgkmcnt(0)\ns_barrier\ns_branch {DONE}')
    path(0)
    k(f'{LH}:')
    path(1)


def gen_ka(opt):
    k = Kern('ka_kernel', 256, 512, 163840, nvgpr=128, nagpr=128)
    END = k.label('end')
    k(f's_cmp_ge_u32 s2, 256\ns_cbranch_scc1 {END}')
    k.stamp(True)
    ph_k2a(k, opt, None)
    ph_g1(k, opt, END, None)
    k.finish(END)
    return k


def gen_p(opt, g3=True):
    k = Kern('kp_kernel', 256, 512, 163840, nvgpr=128, nagpr=128)
    END = k.label('end'); G2 = k.label('g2'); G3 = k.label('g3')
    k(f's_cmp_ge_u32 s2, 256\ns_cbranch_scc1 {END}')
    k.stamp(True)
    wb = Bulk(k, [] if opt.get('now') else g2_wops())
    ph_k2a(k, opt, wb)
    ph_g1(k, opt, G2, wb, True)
    k(f'{G2}:')
    st(k, 0, 6)
    vm = Cnt('vmcnt', 63); vm.issue('w')
    if g3:
        g3_wo_setup(k)
        ph_g2(k, opt, G3, vm, True, [] if opt.get('noo') else g3_wo_ops())
        k(f'{G3}:')
        ph_g3(k, opt, True)
    else:
        ph_g2(k, opt, END, vm, False)
    k.finish(END)
    return k


def gen_q(opt):
    k = Kern('k1_kernel', 256, 512, 163840, nvgpr=128, nagpr=128)
    END = k.label('end'); G2 = k.label('g2'); G3 = k.label('g3')
    k(f's_cmp_ge_u32 s2, 256\ns_cbranch_scc1 {END}')
    k.stamp(True)
    wb = Bulk(k, [] if opt.get('now') else g2_wops())
    ph_k12(k, opt, wb)
    if G1S: ph_g1s(k, opt, G2, wb)
    elif opt.get('g1t'): ph_g1t(k, opt, G2, wb)
    else: ph_g1(k, opt, G2, wb, True)
    k(f'{G2}:')
    st(k, 0, 6)
    vm = Cnt('vmcnt', 63); vm.issue('w')
    g3_wo_setup(k)
    if opt.get('g3s'):
        k('s_lshl_b32 s61, s35, 3\ns_add_u32 s61, s61, s34\ns_lshl_b32 s61, s61, 14\ns_add_u32 s62, s61, 8192')
        na = ph_g2(k, opt, G3, vm, True, g3_wo_ops(), g3s_early())
        k(f'{G3}:')
        ph_g3s(k, opt, na)
        k.finish(END)
        return k
    ph_g2(k, opt, G3, vm, True, [] if opt.get('noo') else g3_wo_ops())
    k(f'{G3}:')
    ph_g3(k, opt, True)
    k.finish(END)
    return k


def build(opt):
    lv = opt.get('lv', 1)
    if lv == 4: return [gen_fft.gen_k0(), gen_q(opt)]
    ks = [gen_fft.gen_k0(), gen_fft.gen_k1c()]
    if lv == 1: ks += [gen_ka(opt), gen_g2(opt), gen_g3(opt)]
    if lv == 2: ks += [gen_p(opt, False), gen_g3(opt)]
    if lv == 3: ks += [gen_p(opt)]
    return ks


def g3_wo_setup(k):
    if gen_fft.OPT.get('g3v') == 4: return
    srd_from(k, 28, 40, 41, WS_WO, WO8_BYTES)
    if gen_fft.OPT.get('g3v') == 3:
        k(f'''s_mul_i32 s62, s36, {8*WOB}
s_and_b32 s61, s34, 3
s_lshl_b32 s61, s61, 13
s_add_u32 s60, s62, s61
s_add_u32 s61, s61, 0x10000''')
        return
    k(f'''s_lshl_b32 s60, s36, 3
s_add_u32 s60, s60, s34
s_mul_i32 s60, s60, {WOB}''')


WSB = 136 * 1024


def g3_wo_ops2(hi):
    WP = gen_fft.OPT.get('wp', 0); WL = 0 if hi else gen_fft.OPT.get('wl', 0)
    ops = []; cur = 0
    def g(text, off, pos):
        nonlocal cur
        pre = ''
        if off - cur > 4095 - 511:
            pre = f's_add_u32 s60, s60, {off - cur}\n'; cur = off
        ops.append((pre + text + f' offset:{off - cur}', pos, False))
    for i in range(WP, 15 - WL): g(f'buffer_load_dwordx4 {ar(4*i,4)}, v3, s[28:31], s60 offen', 1024 * i, 192 + i)
    for n in range(5): g(f'buffer_load_dwordx2 {ar(60+2*n,2)}, v2, s[28:31], s60 offen', 15360 + 512 * n, 192 + 15 + n // 2)
    lds = [(f'ds_read_b128 {ar(4*i,4)}, v39 offset:{1024*(i-15+WL)}', 192 + i, True) for i in range(15 - WL, 15)]
    return ops, lds


def g3_wo_ops():
    ops = []
    for i in range(15):
        s = f'buffer_load_dwordx4 {ar(4*i,4)}, v3, s[28:31], s60 offen offset:{1024*(i%4)}'
        if i % 4 == 3: s += '\ns_add_u32 s60, s60, 4096'
        if i == 14: s += '\ns_add_u32 s60, s60, 3072'
        ops.append(s)
    for n in range(5):
        ops.append(f'buffer_load_dwordx2 {ar(60+2*n,2)}, v2, s[28:31], s60 offen offset:{512*n}')
    return ops


def ph_g3(k, opt, fused):
    vm = Cnt('vmcnt', 63); lg = Cnt('lgkmcnt', 15)
    G3F = opt.get('g3f', 0)
    WOL = opt.get('wol', [99, 99]); W0L = opt.get('w0l', 0)
    if G3F:
        NP2 = k.label('np2'); WH = k.label('wh'); WX = k.label('wx')
        k(f'''s_lshl_b32 s42, s35, {3+FS}
s_add_u32 s42, s42, {FL3}
s_lshl_b32 s46, s36, {FS}
s_add_u32 s46, s46, s42
v_lshrrev_b32 v124, 4, v3
v_lshlrev_b32 v124, {FS}, v124
v_mov_b32 v125, 1
s_waitcnt vmcnt(0)
s_barrier
s_cmp_lg_u32 s34, 0
s_cbranch_scc1 {NP2}
s_mov_b64 exec, 1
buffer_store_dword v125, v124, s[68:71], s46 offen sc1
s_mov_b64 exec, -1
{f"s_branch {WX}" if W0L else ""}
{NP2}:''')
        ro = [g3_wo_ops()[WOL[0]:], g3_wo_ops()[WOL[1]:]]
        if opt.get('wp') or opt.get('wl'): ro = [[o[0] for o in g3_wo_ops2(h)[0][WOL[h]:]] for h in range(2)]
        if ro[0] == ro[1]:
            for o in ro[0]: k(o)
        else:
            k(f's_cmp_ge_u32 s34, 4\ns_cbranch_scc1 {WH}')
            for o in ro[0]: k(o)
            k(f's_branch {WX}\n{WH}:')
            for o in ro[1]: k(o)
        k(f'{WX}:')
    else: assert WOL == [99, 99]
    srd_from(k, 8, 40, 41, WS_Z1 if opt.get('ain') else WS_A, A2_BYTES)
    srd_from(k, 12, 80, 81, 0, X_BYTES) if opt.get('hout') else srd_from(k, 12, 40, 41, WS_H, X_BYTES)
    k(f'''s_lshl_b32 s44, s35, 3
s_add_u32 s44, s44, s34
s_lshl_b32 s44, s44, 14
v_lshrrev_b32 v1, 4, v3
v_and_b32 v6, 15, v1
v_lshrrev_b32 v7, 4, v1''')
    G3R = opt.get('g3r', 0)
    NR, LA, GA = (5, 98, 116) if G3R else (3, 116, 120)
    if G3R:
        assert opt.get('lean', 0) & 16 and G3F and W0L < 2 and not G1S
        k('s_mul_i32 s45, s34, 40960\ns_mov_b32 s46, 0')
    else: k(f'''s_lshr_b32 s45, s34, 1
s_mul_i32 s45, s45, 40960
s_and_b32 s46, s34, 1
s_lshl_b32 s46, s46, 3''')
    ROWA = '''v_lshrrev_b32 v11, 3, v9
v_and_b32 v12, 3, v9
v_lshl_add_u32 v11, v11, 2, v12
v_bfe_u32 v12, v9, 2, 1
v_lshl_add_u32 v11, v12, 8, v11''' if G1S else '''v_lshrrev_b32 v11, 2, v9
v_and_b32 v12, 3, v9
v_lshl_add_u32 v11, v12, 8, v11'''
    NH = k.label('nh')
    if G3R: k(f's_cmp_ge_u32 s34, 4\ns_cbranch_scc1 {NH}')
    for p in range(NR):
        k(f'''v_add_u32 v8, {64*p}, v1
v_mul_u32_u24 v9, 3277, v8
v_lshrrev_b32 v9, 16, v9
v_mul_u32_u24 v10, 20, v9
v_sub_u32 v10, v8, v10
v_add_u32 v9, s46, v9
v_add_u32 v11, v9, v10
v_and_b32 v11, 15, v11
v_lshlrev_b32 v11, 4, v11
v_lshrrev_b32 v12, 2, v10
v_lshl_add_u32 v11, v12, 13, v11
v_and_b32 v12, 3, v10
v_lshl_add_u32 v11, v12, 8, v11
v_add_u32 v{LA+p}, s45, v11
{ROWA}
v_mul_u32_u24 v11, 1280, v11
v_lshl_add_u32 v{GA+p}, v10, 3, v11''')
    if not G3R: k('''v_mov_b32 v8, 0x7fffffff
v_cmp_gt_u32 vcc, 32, v1
v_cndmask_b32 v122, v8, v122, vcc''')
    k(f'''s_lshl_b32 s47, s35, 3
s_and_b32 s43, s34, {1 if G3R else 2}
s_lshl_b32 s43, s43, {8 if G1S else 2 if G3R else 1}
s_add_u32 s47, s47, s43
s_and_b32 s43, s34, {2 if G3R else 4}
s_lshl_b32 s43, s43, {9 if G3R else 8}
s_add_u32 s47, s47, s43
s_mul_i32 s47, s47, 1280
s_mul_i32 s43, s36, 160
s_add_u32 s47, s47, s43''')
    def hld():
        for p in range(NR): k(f'buffer_load_dwordx2 {vr(104+2*p,2)}, v{GA+p}, s[12:15], s47 offen')
    if G3F and not opt.get('h0'): k(f's_cmp_eq_u32 s34, 0\ns_cbranch_scc1 {NH}')
    hld()
    k(f'{NH}:')
    for p in range(3): vm.issue('h')
    k(f'''s_lshl_b32 s43, s34, 10
v_add_u32 v8, v6, v7
v_lshlrev_b32 v9, 8, v7
v_add_u32 v9, s43, v9''')
    for n in range(5):
        k(f'''v_add_u32 v10, {4*n}, v8
v_and_b32 v10, 15, v10
v_lshl_add_u32 v10, v10, 4, v9
v_add_u32 v{88+n}, {8192*n}, v10
v_add_u32 v{93+n}, {8192*n+81920}, v10''')
    if G3F:
        NP3 = k.label('np3')
        k(f's_cmp_lg_u32 s34, 0\ns_cbranch_scc1 {NP3}\ns_mov_b64 exec, 0xff')
        if opt.get('g3d'): k(f's_sleep {opt["g3d"]}')
        poll2(k, 'buffer_load_dword v125, v124, s[68:71], s42 offen sc1', 'v_cmp_eq_u32 vcc, 0, v125', 43, opt.get('g3sl', 0))
        k('s_mov_b64 exec, -1')
        if W0L == 1:
            for o in ro[0]: k(o)
        if W0L < 2 and not opt.get('h0'): hld()
        k(f'{NP3}:\ns_barrier')
        if W0L == 2:
            NP4 = k.label('np4')
            k(f's_cmp_lg_u32 s34, 0\ns_cbranch_scc1 {NP4}')
            for o in ro[0]: k(o)
            hld()
            k(f'{NP4}:')
    elif fused:
        NP3 = k.label('np3')
        k(f'''s_waitcnt vmcnt(0)
s_barrier
s_cmp_lg_u32 s34, 0
s_cbranch_scc1 {NP3}
s_lshl_b32 s42, s35, {3+FS}
s_add_u32 s42, s42, {FL3}
s_lshl_b32 s46, s36, {FS}
s_add_u32 s46, s46, s42''')
        flag_poll(k, 46, 42, 8, opt.get('g3sl', 0), opt.get('g3d', 0))
        k(f'{NP3}:\ns_barrier')
        vm.done = 3
    st(k, 3, 1); st(k, 0, 8)
    k(f's_cmp_eq_u32 s34, 7\ns_cselect_b32 s48, {BIG}, 0')
    AF = lambda tt, p: 72 + 14 * tt + 4 * p
    G3L = opt.get('g3l', 0)
    aq = []
    for tt in range(4):
        for p in range(3):
            aq.append((f'buffer_load_dwordx4 {ar(AF(tt,p),4)}, v3, s[8:11], s44 offen offset:{1024*p}', f'a{tt}{p}'))
        aq.append((f's_add_u32 s49, s44, s48\nbuffer_load_dwordx2 {ar(AF(tt,3),2)}, v2, s[8:11], s49 offen offset:3072' + ('\ns_add_u32 s44, s44, 4096' if tt < 3 else ''), f'a{tt}3'))
    def al():
        if aq:
            o, t = aq.pop(0)
            k(o); vm.issue(t)
    G3I, G3S = opt.get('g3i', [16, 1])
    for i in range(G3I):
        if G3L & 1 and i % 4 == 0: k(f's_setprio {3-i//4}')
        al()
    if G3L == 1: k('s_setprio 0')
    srd_from(k, 16, 80, 81, 0, X_BYTES)
    WP = opt.get('wp', 0)
    ACC = lambda tt, n: 8 + (48 if WP else 20) * (tt & 1) + 4 * n
    WR = lambda i: vr(40 + 4 * i, 4) if i < WP else ar(4 * i, 4)
    pend = []
    hun = []
    if G3R:
        assert WP == 4
        SP = [28, 30, 32, 34, 36, 38, 76, 78, 80, 82]
        RQ = [8, 12, 16, 20, 24] + list(range(40, 76, 4)) + [84, 88, 92, 104, 108, 112]
        for i in range(10): hun += [f'v_lshlrev_b32 v{SP[i]}, 16, v{104+i}', f'v_and_b32 v{SP[i]+1}, 0xffff0000, v{104+i}']
    for tt in range(4):
        if G3L & 2: k(f's_setprio {3-tt}')
        for p in range(4):
            x = vm.wait(f'a{tt}{p}')
            if x: k(x)
            if tt == 0 and p == 0: st(k, 3, 2)
            for n in range(5):
                acc = vr(ACC(tt, n), 4)
                if p < 3: k(f'{MFMA} {acc}, {WR(5*p+n)}, {ar(AF(tt,p),4)}, {"0" if p == 0 else acc}')
                else: k(f'{MF16} {acc}, {ar(60+2*n,2)}, {ar(AF(tt,3),2)}, {acc}')
                if pend and (5 * p + n) % 3 == 2: k(pend.pop(0))
                if (20 * tt + 5 * p + n) % G3S == 0: al()
                if hun and G3R == 2: k(hun.pop(0))
                if G3R and 20 * tt + 5 * p + n + 1 == opt.get('g3h', 40):
                    L = k.label('hb')
                    k(f's_cmp_lt_u32 s34, 4\ns_cbranch_scc1 {L}\ns_barrier\ns_setprio {opt.get("g3hp", 0)}\n{L}:')
        for n in range(5):
            pend.append(f'ds_write_b128 v{88+5*(tt>>1)+n}, {vr(ACC(tt,n),4)} offset:{40960*(tt&1)}')
    for o in pend: k(o)
    st(k, 3, 3)
    k('s_waitcnt lgkmcnt(0)\ns_barrier')
    st(k, 3, 4)
    if G3R:
        HX = k.label('hx')
        OSF = ['', ' sc1', ' nt', ' sc1 nt'][opt.get('osf', 0)]
        k(f's_cmp_ge_u32 s34, 4\ns_cbranch_scc1 {HX}')
        if opt.get('g3rp'): k(f's_setprio {opt["g3rp"]}')
        for ph in range(2):
            def pk(d, a, b):
                if opt.get('g3u', 0) & (1 << ph): k(f'v_add_f32 v{d}, v{a}, v{b}\nv_add_f32 v{d+1}, v{a+1}, v{b+1}')
                else: k(f'v_pk_add_f32 {vr(d,2)}, {vr(a,2)}, {vr(b,2)}')
            nrd = [0]
            def rd(upto):
                while nrd[0] < min(upto, 20):
                    p, s_ = divmod(nrd[0], 4)
                    k(f'ds_read_b128 {vr(RQ[4*p+s_],4)}, v{LA+p} offset:{1024*(s_+4*ph)}'); lg.issue(f'r{ph}{p}{s_}')
                    nrd[0] += 1
            rd(14)
            for o in hun: k(o)
            hun = []
            for p in range(5):
                a = RQ[4*p:4*p+4]
                k(lg.wait(f'r{ph}{p}1') or '')
                rd(16 + 4 * p)
                for h in range(2): pk(a[0] + 2 * h, a[0] + 2 * h, a[1] + 2 * h)
                for h in range(2): pk(SP[2*p+h], SP[2*p+h], a[0] + 2 * h)
                k(lg.wait(f'r{ph}{p}3') or '')
                rd(18 + 4 * p)
                for h in range(2): pk(a[2] + 2 * h, a[2] + 2 * h, a[3] + 2 * h)
                for h in range(2): pk(SP[2*p+h], SP[2*p+h], a[2] + 2 * h)
                if ph:
                    k(f'''v_cvt_pk_bf16_f32 v{a[0]}, v{SP[2*p]}, v{SP[2*p]+1}
v_cvt_pk_bf16_f32 v{a[0]+1}, v{SP[2*p+1]}, v{SP[2*p+1]+1}
buffer_store_dwordx2 {vr(a[0],2)}, v{GA+p}, s[16:19], s47 offen{OSF}''')
            if ph == 0:
                st(k, 3, 5)
                k('s_barrier')
                st(k, 3, 6)
        k(f'{HX}:')
        return
    for p in range(3):
        if p == 2 and opt.get('g3m'): k('s_mov_b32 exec_hi, 0')
        for s in range(8):
            k(f'ds_read_b128 {vr(8+32*p+4*s,4)}, v{116+p} offset:{1024*s}'); lg.issue(f'r{p}{s}')
        if p == 2 and opt.get('g3m'): k('s_mov_b32 exec_hi, -1')
        if p == 0:
            for q in range(3):
                k(f'v_lshlrev_b32 v{110+2*q}, 16, v{104+2*q}\nv_and_b32 v{104+2*q}, 0xffff0000, v{104+2*q}')
    for p in range(3):
        a = 8 + 32 * p
        for s in (0, 2, 4, 6):
            x = lg.wait(f'r{p}{s+1}')
            if x: k(x)
            for h in range(2): k(f'v_pk_add_f32 {vr(a+4*s+2*h,2)}, {vr(a+4*s+2*h,2)}, {vr(a+4*s+4+2*h,2)}')
            if s in (2, 6):
                for h in range(2): k(f'v_pk_add_f32 {vr(a+4*s-8+2*h,2)}, {vr(a+4*s-8+2*h,2)}, {vr(a+4*s+2*h,2)}')
        for h in range(2): k(f'v_pk_add_f32 {vr(a+2*h,2)}, {vr(a+2*h,2)}, {vr(a+16+2*h,2)}')
        if opt.get('lean', 0) & 16: k(f'''v_lshlrev_b32 v{a+8}, 16, v{105+2*p}
v_and_b32 v{a+9}, 0xffff0000, v{105+2*p}''')
        else: k(f'''v_cvt_pk_bf16_f32 v{a+4}, v{a}, v{a+1}
v_cvt_pk_bf16_f32 v{a+5}, v{a+2}, v{a+3}
v_lshlrev_b32 v{a+8}, 16, v{105+2*p}
v_and_b32 v{a+9}, 0xffff0000, v{105+2*p}
v_lshlrev_b32 v{a}, 16, v{a+4}
v_and_b32 v{a+1}, 0xffff0000, v{a+4}
v_lshlrev_b32 v{a+2}, 16, v{a+5}
v_and_b32 v{a+3}, 0xffff0000, v{a+5}''')
        k(f'''v_add_f32 v{a}, v{a}, v{110+2*p}
v_add_f32 v{a+1}, v{a+1}, v{104+2*p}
v_pk_add_f32 {vr(a+2,2)}, {vr(a+2,2)}, {vr(a+8,2)}
v_cvt_pk_bf16_f32 v{a+4}, v{a}, v{a+1}
v_cvt_pk_bf16_f32 v{a+5}, v{a+2}, v{a+3}
buffer_store_dwordx2 {vr(a+4,2)}, v{120+p}, s[16:19], s47 offen{['', ' sc1', ' nt', ' sc1 nt'][opt.get('osf', 0)]}''')


def g3v_addr(k):
    B = [f'''v_lshrrev_b32 v1, 4, v3
v_and_b32 v6, 15, v1
v_lshrrev_b32 v7, 4, v1
s_lshr_b32 s45, s34, 1
s_mul_i32 s45, s45, 40960
s_and_b32 s46, s34, 1
s_lshl_b32 s46, s46, 3''']
    for p in range(3):
        B.append(f'''v_add_u32 v8, {64*p}, v1
v_mul_u32_u24 v9, 3277, v8
v_lshrrev_b32 v9, 16, v9
v_mul_u32_u24 v10, 20, v9
v_sub_u32 v10, v8, v10
v_add_u32 v9, s46, v9
v_add_u32 v11, v9, v10
v_and_b32 v11, 15, v11
v_lshlrev_b32 v11, 4, v11
v_lshrrev_b32 v12, 2, v10
v_lshl_add_u32 v11, v12, 13, v11
v_and_b32 v12, 3, v10
v_lshl_add_u32 v11, v12, 8, v11
v_add_u32 v{116+p}, s45, v11
v_lshrrev_b32 v11, 2, v9
v_and_b32 v12, 3, v9
v_lshl_add_u32 v11, v12, 8, v11
v_mul_u32_u24 v11, 1280, v11
v_lshl_add_u32 v{120+p}, v10, 3, v11''')
    B.append(f'''v_mov_b32 v8, 0x7fffffff
v_cmp_gt_u32 vcc, 32, v1
v_cndmask_b32 v122, v8, v122, vcc
s_lshl_b32 s47, s35, 3
s_and_b32 s43, s34, 2
s_lshl_b32 s43, s43, 1
s_add_u32 s47, s47, s43
s_and_b32 s43, s34, 4
s_lshl_b32 s43, s43, 8
s_add_u32 s47, s47, s43
s_mul_i32 s47, s47, 1280
s_mul_i32 s43, s36, 160
s_add_u32 s47, s47, s43''')
    W = f'''s_lshl_b32 s43, s34, 10
v_add_u32 v8, v6, v7
v_lshlrev_b32 v9, 8, v7
v_add_u32 v9, s43, v9'''
    for n in range(5):
        W += f'''
v_add_u32 v10, {4*n}, v8
v_and_b32 v10, 15, v10
v_lshl_add_u32 v10, v10, 4, v9
v_add_u32 v{88+n}, {8192*n}, v10
v_add_u32 v{93+n}, {8192*n+81920}, v10'''
    B.append(W)
    return B


G3AF = lambda tt, p: 72 + 14 * tt + 4 * p
G3ACC = lambda tt, n: 8 + 20 * tt + 4 * n


def g3v_gate(k, vm, tag, reg, cmp, sl=0):
    LP = k.label('lp'); LD = k.label('ld')
    k(f'''{vm.wait(tag) or ''}
{cmp}
s_cbranch_vccz {LD}
s_mov_b32 s43, {SPIN}
{LP}:
{f"s_sleep {sl}" if sl else ""}
{reg if isinstance(reg, str) else f"buffer_load_dword v{reg}, v127, s[68:71], s62 offen sc1"}
s_waitcnt vmcnt(0)
{cmp}
s_cbranch_vccz {LD}
s_sub_u32 s43, s43, 1
s_cmp_lg_u32 s43, 0
s_cbranch_scc1 {LP}
{LD}:''')


def g3v_head(k, opt, hi, vm):
    assert opt.get('hout') and opt.get('ain') and not G1S
    WOL = opt.get('wol', [99, 99])[hi]
    W = [(o, f'w{min(i // 5, 3)}') for i, o in enumerate(g3_wo_ops())][WOL:]
    if opt.get('now3'): W = []
    A = lambda p: [(f'buffer_load_dwordx4 {ar(G3AF(tt,p),4)}, v3, s[16:19], s{63+tt} offen offset:{1024*p}', f'a{tt}{p}') for tt in range(4)]
    Wp = lambda p: [w for w in W if w[1] == f'w{p}']
    QO = opt.get('g3q', 0)
    if QO == 0: Q = Wp(0) + A(0) + Wp(1) + A(1) + Wp(2) + Wp(3)
    elif QO == 1: Q = Wp(0) + Wp(1) + A(0) + A(1) + Wp(2) + Wp(3)
    else: Q = W + A(0) + A(1)
    state = dict(flag=0, gate=0)

    def flg():
        if state['flag']: return
        state['flag'] = 1
        k((vm.wait('s') or '') + '\ns_mov_b64 exec, 1\nbuffer_store_dword v125, off, s[68:71], s61 sc1\ns_mov_b64 exec, -1'); vm.issue('f')
        st(k, 3, 1)

    def pop(n):
        for _ in range(n):
            if not Q: return
            o, t = Q.pop(0)
            if t[0] == 'a' and not state['gate']:
                state['gate'] = 1
                last = lambda x: max(i for i, y in enumerate(vm.tags) if y == x)
                if last('ep') > last('s'): flg()
                g3v_gate(k, vm, 'ep', 126, 'v_cmp_eq_u32 vcc, 0, v126')
                st(k, 9, 2)
            k(o); vm.issue(t)
    k('v_mov_b32 v125, 2')
    st(k, 9, 1)
    pop(opt.get('g3n', [8, 9])[hi])
    st(k, 9, 3)
    B = g3v_addr(k)
    srd_from(k, 12, 80, 81, 0, X_BYTES)
    NB = opt.get('g3b', 5)
    for b in B[:NB]: k(b)
    st(k, 9, 4)
    flg()
    st(k, 9, 5)
    pop(99)
    st(k, 9, 6)
    for b in B[NB:5]: k(b)
    for p in range(3):
        k(f'buffer_load_dwordx2 {vr(104+2*p,2)}, v{120+p}, s[12:15], s47 offen'); vm.issue('h')
    k(B[5])
    st(k, 9, 7)
    k(f's_cmp_eq_u32 s34, 7\ns_cselect_b32 s48, {BIG}, 0')
    if not opt.get('g3bl'): k('s_barrier')
    st(k, 9, 8)
    L1 = opt.get('g3l', [20, 20])[hi]
    i = 0
    for p in range(2):
        for tt in range(4):
            for t in (f'w{p}', f'a{tt}{p}'):
                x = vm.wait(t)
                if x: k(x)
            if tt == 0 and p == 0: st(k, 3, 2); st(k, 9, 9)
            for n in range(5):
                if i == L1: k('buffer_load_dword v124, v127, s[68:71], s62 offen sc1'); vm.issue('lp')
                acc = vr(G3ACC(tt, n), 4)
                k(f'{MFMA} {acc}, {ar(20*p+4*n,4)}, {ar(G3AF(tt,p),4)}, {"0" if p == 0 else acc}')
                i += 1
    if L1 >= 40: k('buffer_load_dword v124, v127, s[68:71], s62 offen sc1'); vm.issue('lp')
    st(k, 3, 5)
    if opt.get('g3bl'): k('s_barrier')
    g3v_gate(k, vm, 'lp', 124, 'v_cmp_ne_u32 vcc, 2, v124', opt.get('g3sl', 0))


def G3AF2(tt, p, n=4): return vr(40 + 4 * tt, 4) if p == 0 else ar(72 + 10 * tt + 4 * (p - 1), n)


def G3ACC2(tt, n):
    i = 5 * tt + n
    return vr(56 + 4 * i, 4) if i < 8 else ar(112 + 4 * (i - 8), 4) if i < 12 else vr(8 + 4 * (i - 12), 4)


def g3v_head2(k, opt, hi, vm):
    assert opt.get('hout') and opt.get('ain') and not G1S
    WOL = opt.get('wol', [99, 99])[hi]
    W = [(o, f'w{min(i // 5, 3)}') for i, o in enumerate(g3_wo_ops())][WOL:]
    if opt.get('now3'): W = []
    A1 = [(f'buffer_load_dwordx4 {G3AF2(tt,1)}, v3, s[16:19], s{63+tt} offen offset:1024', f'a{tt}1') for tt in range(4)]
    Wp = lambda p: [w for w in W if w[1] == f'w{p}']
    Q = Wp(0) + Wp(1) + A1 + Wp(2) + Wp(3) if opt.get('g3q', 0) == 0 else Wp(0) + A1 + Wp(1) + Wp(2) + Wp(3)
    state = dict(flag=0, gate=0)

    def flg():
        if state['flag']: return
        state['flag'] = 1
        k((vm.wait('s') or '') + '\ns_mov_b64 exec, 1\nbuffer_store_dword v125, off, s[68:71], s61 sc1\ns_mov_b64 exec, -1'); vm.issue('f')
        st(k, 3, 1); st(k, 9, 5)

    def pop(n):
        for _ in range(n):
            if not Q: return
            o, t = Q.pop(0)
            if t[0] == 'a' and not state['gate']:
                state['gate'] = 1
                last = lambda x: max(i for i, y in enumerate(vm.tags) if y == x)
                if last('ep') > last('s'): flg()
                g3v_gate(k, vm, 'ep', 126, 'v_cmp_eq_u32 vcc, 0, v126')
                st(k, 9, 2)
            k(o); vm.issue(t)
    L1 = opt.get('g3l', [30, 30])[hi]
    cnt = [0]

    def mf(p, fill=()):
        fill = list(fill); per = (len(fill) + 19) // 20
        for tt in range(4):
            for t in (f'w{p}', f'a{tt}{p}'):
                x = vm.wait(t) if t in vm.tags else None
                if x: k(x)
            if tt == 0: st(k, 9, 4 if p == 0 else 9)
            for n in range(5):
                if cnt[0] == L1: k('buffer_load_dword v124, v127, s[68:71], s62 offen sc1'); vm.issue('lp')
                acc = G3ACC2(tt, n)
                k(f'{MFMA} {acc}, {ar(20*p+4*n,4)}, {G3AF2(tt,p)}, {"0" if p == 0 else acc}')
                cnt[0] += 1
                for _ in range(per):
                    if fill: k(fill.pop(0))
    k('v_mov_b32 v125, 2')
    st(k, 9, 1)
    pop(opt.get('g3n', [0, 0])[hi])
    st(k, 9, 3)
    B = [re.sub(r'\bv(8|9|10|11|12)\b', lambda m: f'v{90+int(m.group(1))}', b) for b in g3v_addr(k)]
    srd_from(k, 12, 80, 81, 0, X_BYTES)
    M0 = opt.get('g3m', 1) and (WOL >= 5 or opt.get('now3'))
    if M0: mf(0, '\n'.join(B[:5]).split('\n'))
    else:
        for b in B[:5]: k(b)
    flg()
    if opt.get('g3bl', 0) == 0: k('s_barrier')
    pop(99)
    st(k, 9, 6)
    for p in range(3):
        k(f'buffer_load_dwordx2 {vr(104+2*p,2)}, v{120+p}, s[12:15], s47 offen'); vm.issue('h')
    k(B[5])
    k(f's_cmp_eq_u32 s34, 7\ns_cselect_b32 s48, {BIG}, 0')
    st(k, 9, 7)
    if not M0: mf(0)
    mf(1)
    if L1 >= 40:
        if L1 > 40: k(f's_sleep {L1-40}')
        k('buffer_load_dword v124, v127, s[68:71], s62 offen sc1'); vm.issue('lp')
    st(k, 3, 5)
    if opt.get('g3bl', 0) == 1: k('s_barrier')
    g3v_gate(k, vm, 'lp', 124, 'v_cmp_ne_u32 vcc, 2, v124', opt.get('g3sl', 0))


def ph_g3w(k, opt):
    assert opt.get('hout') and opt.get('ain') and not G1S
    NP2 = k.label('np2'); WX = k.label('wx'); NP3 = k.label('np3'); HI = k.label('hi'); FIN = k.label('fin')
    k(f'''s_lshl_b32 s42, s35, {3+FS}
s_add_u32 s42, s42, {FL3}
s_lshl_b32 s46, s36, {FS}
s_add_u32 s46, s46, s42
v_lshrrev_b32 v1, 4, v3
v_lshlrev_b32 v124, {FS}, v1
v_mov_b32 v125, 1
s_and_b32 s37, s34, 3
s_lshr_b32 s38, s34, 2
s_lshl_b32 s43, s37, 12
s_add_u32 s60, s62, s43
s_add_u32 s60, s60, 0x10000
s_add_u32 m0, s43, 0x20000
s_mul_i32 s61, s37, {15*1024}
s_add_u32 s62, s62, s61
s_add_u32 s62, s62, {80*1024}
s_lshl_b32 s63, s35, 1
s_add_u32 s63, s63, s38
s_lshl_b32 s63, s63, 16
s_add_u32 s63, s63, s43
s_add_u32 s64, s63, 0x4000
s_add_u32 s65, s63, 0x8000
s_add_u32 s66, s63, 0xc000
s_cmp_eq_u32 s38, 1
s_cselect_b32 s67, {BIG}, s66
s_mul_i32 s43, s38, 5120
v_add_u32 v93, s43, v3
v_add_u32 v91, 0x10000, v93
v_add_u32 v92, {0x10000+40960}, v93
v_lshrrev_b32 v94, 1, v93
s_mul_i32 s43, s37, 5120
s_add_u32 s43, s43, 0x10000
v_add_u32 v95, s43, v3
v_bfe_u32 v6, v1, 2, 2
v_and_b32 v7, 3, v1
v_lshl_add_u32 v6, v7, 8, v6
v_mul_u32_u24 v6, 1280, v6
v_lshrrev_b32 v7, 4, v1
v_lshl_add_u32 v90, v7, 3, v6
s_lshl_b32 s47, s35, 3
s_and_b32 s43, s34, 1
s_lshl_b32 s43, s43, 2
s_add_u32 s47, s47, s43
s_and_b32 s43, s34, 2
s_lshl_b32 s43, s43, 9
s_add_u32 s47, s47, s43
s_mul_i32 s47, s47, 1280
s_mul_i32 s43, s36, 160
s_add_u32 s47, s47, s43
s_mul_i32 s43, s38, 96
s_add_u32 s47, s47, s43''')
    srd_from(k, 12, 80, 81, 0, X_BYTES)
    k(f'''s_waitcnt vmcnt(0)
s_barrier
s_cmp_lg_u32 s34, 0
s_cbranch_scc1 {NP2}
s_mov_b64 exec, 1
buffer_store_dword v125, v124, s[68:71], s46 offen sc1
s_mov_b64 exec, -1
{NP2}:
s_cmp_lt_u32 s34, 4
s_cbranch_scc1 {WX}''')
    st(k, 3, 5)
    if opt.get('dmd'): k(f's_sleep {opt["dmd"]}')
    for i in range(4): k(f'buffer_load_dwordx4 v3, s[28:31], s60 offen offset:{1024*i} lds')
    for i in range(15):
        if i % 4 == 0: k(f's_add_u32 m0, s61, {1024*i}' + ('\ns_add_u32 s62, s62, 4096' if i else ''))
        k(f'buffer_load_dwordx4 v3, s[28:31], s62 offen offset:{1024*(i%4)} lds')
    k(f'{WX}:')
    for i in range(3): k(f'buffer_load_dwordx2 {vr(84+2*i,2)}, v90, s[12:15], s47 offen offset:{32*i}')
    st(k, 3, 6)
    pool = [ar(4 * i, 4) for i in range(32)] + [vr(96 + 4 * i, 4) for i in range(7)]
    NPRE = 30

    def sub(r, h):
        m = re.match(r'([av])\[(\d+):', r)
        return f'{m.group(1)}[{int(m.group(2))+2*h}:{int(m.group(2))+2*h+1}]'

    def rd(q, r, n):
        p, f = q // 20, (q % 20) // 5
        if p < 3: return [f'ds_read_b128 {r}, v{91+p} offset:{f*10240+n*1024}']
        return [f'ds_read_b64 {sub(r,h)}, v94 offset:{40960+(2*f+h)*5120+n*512}' for h in range(2)]
    for q in range(NPRE):
        for o in rd(q, pool[q], q % 5): k(o)
    k(f's_cmp_lg_u32 s34, 0\ns_cbranch_scc1 {NP3}\ns_mov_b64 exec, 0xff')
    if opt.get('g3d'): k(f's_sleep {opt["g3d"]}')
    poll2(k, 'buffer_load_dword v125, v124, s[68:71], s42 offen sc1', 'v_cmp_eq_u32 vcc, 0, v125', 43, opt.get('g3sl', 0))
    k(f's_mov_b64 exec, -1\n{NP3}:\ns_waitcnt vmcnt(0) lgkmcnt(0)')
    st(k, 3, 7)
    k('s_barrier')
    st(k, 3, 1); st(k, 0, 8)
    vm0 = Cnt('vmcnt', 63)
    for p in range(4):
        if opt.get('g3pr'): k(f's_setprio {3-p}')
        for f in range(4):
            if p < 3: k(f'buffer_load_dwordx4 {vr(8+16*p+4*f,4)}, v3, s[16:19], s{63+f} offen offset:{1024*p}')
            else: k(f'buffer_load_dwordx2 {vr(56+2*f,2)}, v2, s[16:19], s{63+f+(f==3)} offen offset:3072')
            vm0.issue(f'a{p}{f}')
    k(f's_cmp_ge_u32 s34, 4\ns_cbranch_scc1 {HI}')
    ACC = lambda n: 64 + 4 * n

    def role(kh):
        import copy
        vm = copy.deepcopy(vm0); lg = Cnt('lgkmcnt', 15)
        own = [0, 1, 2] if kh == 0 else [3, 4]
        snd = [n for n in range(5) if n not in own]
        order = [(q, q % 5) for q in range(65)] + [(65 + i, n) for i, n in enumerate(snd + own)]
        buf = {q: pool[q] for q in range(NPRE)}
        free = pool[NPRE:]; nr = [NPRE]; pend = []

        def reads(m):
            for _ in range(m):
                if nr[0] >= 70 or not free: return
                q, n = order[nr[0]]
                buf[q] = free.pop(0)
                for o in rd(q, buf[q], n): k(o); lg.issue(f'b{q}')
                nr[0] += 1
        reads(9)
        for i, n in enumerate(own):
            k(f'''v_lshlrev_b32 v{ACC(n)}, 16, v{84+2*i}
v_and_b32 v{ACC(n)+1}, 0xffff0000, v{84+2*i}
v_lshlrev_b32 v{ACC(n)+2}, 16, v{85+2*i}
v_and_b32 v{ACC(n)+3}, 0xffff0000, v{85+2*i}''')
        for q, n in order:
            p, f = q // 20, (q % 20) // 5
            x = vm.wait(f'a{p}{f}' if p < 3 else f'a3{2*f+1}')
            if x: k(x)
            if q == 0: st(k, 3, 2)
            x = lg.wait(f'b{q}') if q >= NPRE else None
            if x: k(x)
            acc = vr(ACC(n), 4)
            a = vr(8 + 16 * p + 4 * f, 4)
            k(f'{MFMA} {acc}, {buf[q]}, {a}, {"0" if q < 5 and n in snd else acc}')
            free.extend(pend); pend = [buf[q]]
            reads(1)
        for n in snd: k(f'ds_write_b128 v95, {vr(ACC(n),4)} offset:{1024*n}')
        st(k, 3, 3)
        k('s_waitcnt lgkmcnt(0)\ns_barrier')
        st(k, 3, 4)
        for i, n in enumerate(own): k(f'ds_read_b128 {vr(8+4*i,4)}, v95 offset:{1024*n}')
        for i, n in enumerate(own):
            k(f's_waitcnt lgkmcnt({len(own)-1-i})')
            for r in range(4): k(f'v_add_f32 v{8+4*i+r}, v{8+4*i+r}, v{ACC(n)+r}')
            k(f'''v_cvt_pk_bf16_f32 v{24+2*i}, v{8+4*i}, v{9+4*i}
v_cvt_pk_bf16_f32 v{25+2*i}, v{10+4*i}, v{11+4*i}
buffer_store_dwordx2 {vr(24+2*i,2)}, v90, s[12:15], s47 offen offset:{32*i}''')
    role(0)
    k(f's_branch {FIN}\n{HI}:')
    role(1)
    k(f'{FIN}:')


G3PL = 'buffer_load_dword v39, v6, s[68:71], s49 offen sc1'


def g3x_gate(k, vm, tag, m):
    LP = k.label('lp'); LD = k.label('ld')
    chk = f'v_cmp_eq_u32 vcc, 0, v39\ns_and_b64 vcc, vcc, s[{m}:{m+1}]\ns_cbranch_scc0 {LD}'
    k(f'''{vm.wait(tag) or ''}
{chk}
s_mov_b32 s43, {SPIN}
{LP}:
{G3PL}
s_waitcnt vmcnt(0)
{chk}
s_sub_u32 s43, s43, 1
s_cmp_lg_u32 s43, 0
s_cbranch_scc1 {LP}
{LD}:''')


CLEAN = None


def g3x(k, opt, kh, vm):
    assert opt.get('hout') and opt.get('ain') and not G1S
    lg = Cnt('lgkmcnt', 15)
    KB = 1024

    def lds(c):
        if c < 60: return (100 + c) * KB
        if c < 92:
            w = (c - 60) // 4
            return (8 * (w & 3) + (0 if w >> 2 else 32) + c % 4) * KB
        if c < 124: return (64 + c - 92) * KB
        return (8 * ((c - 124) // 4) + 4 + c % 4) * KB
    AP = [32, 48, 0, 16]
    st(k, 9, 1)
    if kh: k(G3PL); vm.issue('ep1')
    k('''v_add_u32 v91, 0x10000, v3
v_add_u32 v92, 0x20000, v3''')
    free = [ar(64 + 4 * i, 4) for i in range(16)] + [vr(96 + 4 * i, 4) for i in range(7)] + [vr(8 + 4 * i, 4) for i in (0, 1, 2, 3, 4, 5, 12, 13)]
    free2 = [vr(8 + 4 * i, 4) for i in (6, 8, 9, 10, 11)] + [ar(24, 4), ar(28, 4)]
    own = [0, 1, 2] if kh == 0 else [3, 4]
    snd = [n for n in range(5) if n not in own]
    order = [(q, q % 5) for q in range(65)] + [(65 + i, n) for i, n in enumerate(snd + own)]
    buf = {}; nr = [0]; lim = [60]

    def sub(r, h):
        m = re.match(r'([av])\[(\d+):', r)
        return f'{m.group(1)}[{int(m.group(2))+2*h}:{int(m.group(2))+2*h+1}]'

    def reads(m):
        for _ in range(m):
            if nr[0] >= 70 or not free: return
            q, n = order[nr[0]]
            p, f = q // 20, (q % 20) // 5
            c = 40 * p + 10 * f + 5 * kh + n
            if c >= lim[0]: return
            r = buf[q] = free.pop(0)
            if p < 3:
                a = lds(c)
                k(f'ds_read_b128 {r}, v{[3, 91, 92][a >> 16]} offset:{a & 0xffff}'); lg.issue(f'b{q}')
            else:
                for h in range(2):
                    o = 122880 + ((2 * f + h) * 2 + kh) * 2560 + n * 512
                    a = lds(o // KB) + o % KB
                    k(f'ds_read_b64 {sub(r,h)}, v{[2, 93][a >> 16]} offset:{a & 0xffff}'); lg.issue(f'b{q}')
            nr[0] += 1
    ACC = lambda n: 64 + 4 * n
    pend = []

    def mfs(q0, q1, per, fill=None, fp=2):
        for q, n in order[q0:q1]:
            p, f = q // 20, (q % 20) // 5
            x = vm.wait(f'a{p}{f}' if p < 3 else f'a3{2*f+1}')
            if x: k(x)
            if q in (0, 20): st(k, 9, 4 + q // 20)
            if q == 40: st(k, 3, 2); st(k, 9, 9)
            x = lg.wait(f'b{q}')
            if x: k(x)
            acc = vr(ACC(n), 4)
            k(f'{MFMA} {acc}, {buf[q]}, {ar(AP[p]+4*f,4)}, {"0" if q < 5 else acc}')
            free.extend(pend); pend[:] = [buf[q]]
            reads(per)
            for _ in range(fp):
                if fill:
                    o = fill.pop(0)
                    o() if callable(o) else k(o)
    def xb(j): k(f'ds_write_b128 v7, {vr(40+4*j,4)} offset:{KB*j+(0 if kh else 32*KB)}'); lg.issue('x')
    def xd(j): k((vm.wait('d') or '') + f'\nds_write_b128 v{7 if kh else 38}, {ar(4*j,4)} offset:{KB*j+(4*KB if kh else 0)}'); lg.issue('x')
    XW = [lambda j=j: xb(j) for j in range(4)] + [lambda j=j: xd(j) for j in range(4 if kh else 8)]
    for _ in range(opt.get('g3w', [4, 4])[kh]): XW.pop(0)()
    fill = f'''v_mov_b32 v0, 2
v_lshrrev_b32 v1, 4, v3
v_add_u32 v93, 0x10000, v2
v_bfe_u32 v88, v1, 2, 2
v_and_b32 v89, 3, v1
v_lshl_add_u32 v88, v89, 8, v88
v_mul_u32_u24 v88, 1280, v88
v_lshrrev_b32 v89, 4, v1
v_lshl_add_u32 v90, v89, 3, v88
v_bfe_u32 v89, v1, 4, 1
v_lshl_add_u32 v95, v89, 5, v88
v_lshrrev_b32 v89, 5, v1
v_lshl_add_u32 v95, v89, 4, v95
s_mul_i32 s42, s37, 5120
s_add_u32 s42, s42, {100*KB}
v_add_u32 v94, s42, v3
s_lshl_b32 s47, s35, 3
s_and_b32 s43, s34, 1
s_lshl_b32 s43, s43, 2
s_add_u32 s47, s47, s43
s_and_b32 s43, s34, 2
s_lshl_b32 s43, s43, 9
s_add_u32 s47, s47, s43
s_mul_i32 s47, s47, 1280
s_mul_i32 s43, s36, 160
s_add_u32 s47, s47, s43'''.split('\n')
    for o in fill: k(o)
    srd_from(k, 12, 80, 81, 0, X_BYTES)
    reads(opt.get('g3r', 6))
    k((vm.wait('s') or '') + '\ns_mov_b64 exec, 1\nbuffer_store_dword v0, off, s[68:71], s48 sc1\ns_mov_b64 exec, -1'); vm.issue('f')
    st(k, 3, 1); st(k, 9, 2)
    if kh: g3x_gate(k, vm, 'ep1', 52)
    k('s_barrier')
    st(k, 9, 3)
    if not kh: CLEAN(k, 1, (1, 4, 88))
    for f in range(4):
        k(f'buffer_load_dwordx4 {ar(AP[1]+4*f,4)}, v3, s[16:19], s{63+f} offen offset:1024'); vm.issue(f'a1{f}')
    k(f'buffer_load_dwordx4 v[84:87], v95, s[12:15], s47 offen offset:{32*own[0]}'); vm.issue('h')
    if not kh: k(f'buffer_load_dwordx2 v[88:89], v90, s[12:15], s47 offen offset:64'); vm.issue('h')
    M1 = opt.get('g3m', 12); M2 = opt.get('g3m2', [20, 20])[kh]
    mfs(0, M1, 1, XW, 1)
    for o in XW: o()
    k((lg.wait('x') or '') + '\ns_barrier')
    free.extend(free2); lim[0] = 999
    mfs(M1, M2, 2)
    free.extend(pend); pend[:] = []
    reads(99)
    st(k, 9, 6)
    if kh == opt.get('g3pw', 0) >> 2:
        NP3 = k.label('np3')
        k(f's_cmp_lg_u32 s34, {opt.get("g3pw", 0)}\ns_cbranch_scc1 {NP3}')
        if opt.get('g3dd'): k(f's_sleep {opt["g3dd"]}')
        poll2(k, 'buffer_load_dword v39, v6, s[68:71], s54 offen sc1', 'v_cmp_ne_u32 vcc, 2, v39', 43, opt.get('g3sl', 0))
        k(f'{NP3}:')
    st(k, 9, 7)
    k('s_barrier')
    st(k, 9, 8); st(k, 3, 6); st(k, 0, 8)
    if kh: k(f's_mov_b32 s67, {BIG}')
    for p in (2, 3):
        for f in range(4):
            if opt.get('g3pr') and f % 2 == 0: k(f's_setprio {3-(2*p+f//2-4)}')
            if p < 3: k(f'buffer_load_dwordx4 {ar(AP[2]+4*f,4)}, v3, s[16:19], s{63+f} offen offset:2048')
            else: k(f'buffer_load_dwordx2 {ar(AP[3]+2*f,2)}, v2, s[16:19], s{63+f+(f==3 and kh)} offen offset:3072')
            vm.issue(f'a{p}{f}')
    mfs(M2, 40, 2)
    k((vm.wait('h') or '') + '\nv_permlane16_swap_b32 v84, v86\nv_permlane16_swap_b32 v85, v87')
    for i, n in enumerate(own):
        k(f'''v_lshlrev_b32 v36, 16, v{84+2*i}
v_and_b32 v{84+2*i}, 0xffff0000, v{84+2*i}
v_lshlrev_b32 v37, 16, v{85+2*i}
v_and_b32 v{85+2*i}, 0xffff0000, v{85+2*i}
v_add_f32 v{ACC(n)}, v{ACC(n)}, v36
v_add_f32 v{ACC(n)+1}, v{ACC(n)+1}, v{84+2*i}
v_add_f32 v{ACC(n)+2}, v{ACC(n)+2}, v37
v_add_f32 v{ACC(n)+3}, v{ACC(n)+3}, v{85+2*i}''')
    mfs(40, 70, 2)
    for n in snd: k(f'ds_write_b128 v94, {vr(ACC(n),4)} offset:{KB*n}')
    st(k, 3, 3)
    k('s_waitcnt lgkmcnt(0)\ns_barrier')
    st(k, 3, 4)
    for i, n in enumerate(own): k(f'ds_read_b128 {vr(8+4*i,4)}, v94 offset:{KB*n}')
    for i, n in enumerate(own):
        k(f's_waitcnt lgkmcnt({len(own)-1-i})')
        for r in range(4): k(f'v_add_f32 v{8+4*i+r}, v{8+4*i+r}, v{ACC(n)+r}')
        k(f'''v_cvt_pk_bf16_f32 v{24+2*i}, v{8+4*i}, v{9+4*i}
v_cvt_pk_bf16_f32 v{25+2*i}, v{10+4*i}, v{11+4*i}''')
        if i == 1: k(f'''v_permlane16_swap_b32 v24, v26
v_permlane16_swap_b32 v25, v27
buffer_store_dwordx4 v[24:27], v95, s[12:15], s47 offen offset:{32*own[0]}''')
        if i == 2: k(f'buffer_store_dwordx2 v[28:29], v90, s[12:15], s47 offen offset:{32*n}')


def ph_g3v(k, opt):
    vm = Cnt('vmcnt', 63); lg = Cnt('lgkmcnt', 15)
    V2 = opt['g3v'] == 2
    AF = G3AF2 if V2 else (lambda tt, p, n=4: ar(G3AF(tt, p), n))
    AC = G3ACC2 if V2 else (lambda tt, n: vr(G3ACC(tt, n), 4))
    st(k, 3, 6); st(k, 0, 8)
    for tt in range(4):
        k(f'buffer_load_dwordx4 {AF(tt,2)}, v3, s[16:19], s{63+tt} offen offset:2048'); vm.issue(f'a{tt}2')
        k(f's_add_u32 s49, s{63+tt}, s48\nbuffer_load_dwordx2 {AF(tt,3,2)}, v2, s[16:19], s49 offen offset:3072'); vm.issue(f'a{tt}3')
    for q in range(3):
        k(f'v_lshlrev_b32 v{110+2*q}, 16, v{104+2*q}\nv_and_b32 v{104+2*q}, 0xffff0000, v{104+2*q}')
    pend = []
    for tt in range(4):
        for p in (2, 3):
            x = vm.wait(f'a{tt}{p}')
            if x: k(x)
            if tt == 0 and p == 2: st(k, 3, 7)
            for n in range(5):
                acc = AC(tt, n)
                if p < 3: k(f'{MFMA} {acc}, {ar(20*p+4*n,4)}, {AF(tt,p)}, {acc}')
                else: k(f'{MF16} {acc}, {ar(60+2*n,2)}, {AF(tt,3,2)}, {acc}')
                if pend and n % 2 == p % 2: k(pend.pop(0))
        for n in range(5):
            pend.append(f'ds_write_b128 v{88+5*(tt>>1)+n}, {AC(tt,n)} offset:{40960*(tt&1)}')
    for o in pend: k(o)
    st(k, 3, 3)
    k('s_waitcnt lgkmcnt(0)\ns_barrier')
    st(k, 3, 4)
    for p in range(3):
        for s in range(8):
            k(f'ds_read_b128 {vr(8+32*p+4*s,4)}, v{116+p} offset:{1024*s}'); lg.issue(f'r{p}{s}')
    assert opt.get('lean', 0) & 16
    for p in range(3):
        a = 8 + 32 * p
        for s in (0, 2, 4, 6):
            x = lg.wait(f'r{p}{s+1}')
            if x: k(x)
            for h in range(2): k(f'v_pk_add_f32 {vr(a+4*s+2*h,2)}, {vr(a+4*s+2*h,2)}, {vr(a+4*s+4+2*h,2)}')
            if s in (2, 6):
                for h in range(2): k(f'v_pk_add_f32 {vr(a+4*s-8+2*h,2)}, {vr(a+4*s-8+2*h,2)}, {vr(a+4*s+2*h,2)}')
        for h in range(2): k(f'v_pk_add_f32 {vr(a+2*h,2)}, {vr(a+2*h,2)}, {vr(a+16+2*h,2)}')
        k(f'''v_lshlrev_b32 v{a+8}, 16, v{105+2*p}
v_and_b32 v{a+9}, 0xffff0000, v{105+2*p}
v_add_f32 v{a}, v{a}, v{110+2*p}
v_add_f32 v{a+1}, v{a+1}, v{104+2*p}
v_pk_add_f32 {vr(a+2,2)}, {vr(a+2,2)}, {vr(a+8,2)}
v_cvt_pk_bf16_f32 v{a+4}, v{a}, v{a+1}
v_cvt_pk_bf16_f32 v{a+5}, v{a+2}, v{a+3}
buffer_store_dwordx2 {vr(a+4,2)}, v{120+p}, s[12:15], s47 offen''')


def g3s_ld(tt, p, fl=''):
    if p < 2: return f'buffer_load_dwordx4 {vr(56+8*tt+4*p,4)}, v3, s[16:19], s{61+(tt>>1)} offen offset:{1024*p}{fl}' if not (tt & 1) else \
        f'buffer_load_dwordx4 {vr(56+8*tt+4*p,4)}, v88, s[16:19], s{61+(tt>>1)} offen offset:{1024*p}{fl}'
    if p == 2: return f'buffer_load_dwordx4 {vr(8+4*tt,4)}, v{88 if tt & 1 else 3}, s[16:19], s{61+(tt>>1)} offen offset:2048{fl}'
    return f'buffer_load_dwordx2 {vr(24+2*tt,2)}, v{89 if tt & 1 else 2}, s[16:19], s{63+(tt>>1)} offen offset:3072{fl}'


def g3s_early():
    ops = [g3s_ld(tt, p) for p in range(2) for tt in range(4)]
    ops[0] = 'v_add_u32 v88, 4096, v3\nv_add_u32 v89, 4096, v2\n' + ops[0]
    return ops


def chk_max(k, regs, t):
    regs = list(regs)
    acc = [None, None]; i = 0
    while regs:
        j = i & 1; i += 1
        if acc[j] is None:
            if len(regs) >= 3: k(f'v_max3_u32 v{t+j}, v{regs[0]}, v{regs[1]}, v{regs[2]}'); regs = regs[3:]
            elif len(regs) == 2: k(f'v_max_u32 v{t+j}, v{regs[0]}, v{regs[1]}'); regs = []
            else: k(f'v_mov_b32 v{t+j}, v{regs[0]}'); regs = []
            acc[j] = 1
        elif len(regs) >= 2: k(f'v_max3_u32 v{t+j}, v{t+j}, v{regs[0]}, v{regs[1]}'); regs = regs[2:]
        else: k(f'v_max_u32 v{t+j}, v{t+j}, v{regs[0]}'); regs = []
    if acc[1]: k(f'v_max_u32 v{t}, v{t}, v{t+1}')
    k(f'v_cmp_eq_u32 vcc, -1, v{t}')


def ph_g3s(k, opt, na):
    vm = Cnt('vmcnt', 63); lg = Cnt('lgkmcnt', 15)
    if opt.get('g3e', 0) == 3:
        for o in g3s_early(): k(o)
        na = 0
    vm.issue('e')
    for _ in range(na): vm.issue('s')
    srd_from(k, 12, 80, 81, 0, X_BYTES) if opt.get('hout') else srd_from(k, 12, 40, 41, WS_H, X_BYTES)
    LW = 90
    k(f'''s_cmp_eq_u32 s34, 7
s_cselect_b32 s63, {BIG}, s61
s_cselect_b32 s64, {BIG}, s62
v_lshrrev_b32 v1, 4, v3
v_and_b32 v6, 15, v1
v_lshrrev_b32 v7, 4, v1
s_lshr_b32 s45, s34, 1
s_mul_i32 s45, s45, 40960
s_and_b32 s46, s34, 1
s_lshl_b32 s46, s46, 3''')
    I2 = opt.get('g3i', [0, 20])
    if I2[0] < 0:
        for tt in range(4): k(g3s_ld(tt, 2, ' sc1')); vm.issue('p2')
    for p in range(3):
        k(f'''v_add_u32 v100, {64*p}, v1
v_mul_u32_u24 v101, 3277, v100
v_lshrrev_b32 v101, 16, v101
v_mul_u32_u24 v102, 20, v101
v_sub_u32 v102, v100, v102
v_add_u32 v101, s46, v101
v_add_u32 v103, v101, v102
v_and_b32 v103, 15, v103
v_lshlrev_b32 v103, 4, v103
v_lshrrev_b32 v110, 2, v102
v_lshl_add_u32 v103, v110, 13, v103
v_and_b32 v110, 3, v102
v_lshl_add_u32 v103, v110, 8, v103
v_add_u32 v{116+p}, s45, v103
v_lshrrev_b32 v103, 2, v101
v_and_b32 v110, 3, v101
v_lshl_add_u32 v103, v110, 8, v103
v_mul_u32_u24 v103, 1280, v103
v_lshl_add_u32 v{120+p}, v102, 3, v103''')
    k(f'''v_mov_b32 v100, 0x7fffffff
v_cmp_gt_u32 vcc, 32, v1
v_cndmask_b32 v122, v100, v122, vcc
s_lshl_b32 s47, s35, 3
s_and_b32 s43, s34, 2
s_lshl_b32 s43, s43, 1
s_add_u32 s47, s47, s43
s_and_b32 s43, s34, 4
s_lshl_b32 s43, s43, 8
s_add_u32 s47, s47, s43
s_mul_i32 s47, s47, 1280
s_mul_i32 s43, s36, 160
s_add_u32 s47, s47, s43''')
    for p in range(3):
        k(f'buffer_load_dwordx2 {vr(104+2*p,2)}, v{120+p}, s[12:15], s47 offen'); vm.issue('h')
    k(f'''s_lshl_b32 s43, s34, 10
v_add_u32 v100, v6, v7
v_lshlrev_b32 v101, 8, v7
v_add_u32 v101, s43, v101''')
    for n in range(5):
        k(f'''v_add_u32 v102, {4*n}, v100
v_and_b32 v102, 15, v102
v_lshl_add_u32 v102, v102, 4, v101
v_add_u32 v{LW+n}, {8192*n}, v102
v_add_u32 v{LW+5+n}, {8192*n+81920}, v102''')
    srd_from(k, 8, 80, 81, 0, X_BYTES)

    def ACC(tt, n):
        i = 5 * tt + n
        return ar(72 + 4 * i, 4) if i < 14 else vr(32 + 4 * (i - 14), 4)

    def gate(tag, regs, lds, sl):
        LP = k.label('lp'); LD = k.label('ld')
        k(vm.wait(tag) or '')
        chk_max(k, regs, 100)
        k(f's_cbranch_vccz {LD}\ns_mov_b32 s43, {SPIN}\n{LP}:')
        if sl: k(f's_sleep {sl}')
        for o in lds: k(o)
        k('s_waitcnt vmcnt(0)')
        chk_max(k, regs, 100)
        k(f's_cbranch_vccz {LD}\ns_sub_u32 s43, s43, 1\ns_cmp_lg_u32 s43, 0\ns_cbranch_scc1 {LP}\n{LD}:')
    st(k, 3, 1); st(k, 0, 8)
    gate('e', range(56, 88), [g3s_ld(tt, p, ' sc1') for p in range(2) for tt in range(4)], 0)
    st(k, 3, 2)
    i = 0
    for p in range(3):
        if p == 2:
            st(k, 3, 5)
            gate('p2', range(8, 24), [g3s_ld(tt, 2, ' sc1') for tt in range(4)], opt.get('g3r', 0))
            st(k, 3, 6)
            k('s_barrier')
        for tt in range(4):
            for n in range(5):
                if i == I2[0]:
                    for t2 in range(4): k(g3s_ld(t2, 2, ' sc1')); vm.issue('p2')
                if i == I2[1]:
                    for t2 in range(4): k(g3s_ld(t2, 3, ' sc1')); vm.issue('p3')
                acc = ACC(tt, n)
                b = vr(56 + 8 * tt + 4 * p, 4) if p < 2 else vr(8 + 4 * tt, 4)
                k(f'{MFMA} {acc}, {ar(20*p+4*n,4)}, {b}, {"0" if p == 0 else acc}')
                i += 1
    st(k, 3, 7)
    gate('p3', range(24, 32), [g3s_ld(tt, 3, ' sc1') for tt in range(4)], opt.get('g3r', 0))
    st(k, 3, 8)
    pend = []
    for tt in range(4):
        for n in range(5):
            acc = ACC(tt, n)
            k(f'{MF16} {acc}, {ar(60+2*n,2)}, {vr(24+2*tt,2)}, {acc}')
            pend.append(f'ds_write_b128 v{LW+5*(tt>>1)+n}, {acc} offset:{40960*(tt&1)}')
            if len(pend) > 3: k(pend.pop(0))
    for o in pend: k(o)
    st(k, 3, 3)
    k('s_waitcnt lgkmcnt(0)\ns_barrier')
    st(k, 3, 4)
    for p in range(3):
        for s in range(8):
            k(f'ds_read_b128 {vr(8+32*p+4*s,4)}, v{116+p} offset:{1024*s}'); lg.issue(f'r{p}{s}')
        if p == 0:
            for q in range(3):
                k(f'v_lshlrev_b32 v{110+2*q}, 16, v{104+2*q}\nv_and_b32 v{104+2*q}, 0xffff0000, v{104+2*q}')
    for p in range(3):
        a = 8 + 32 * p
        for s in (0, 2, 4, 6):
            x = lg.wait(f'r{p}{s+1}')
            if x: k(x)
            for h in range(2): k(f'v_pk_add_f32 {vr(a+4*s+2*h,2)}, {vr(a+4*s+2*h,2)}, {vr(a+4*s+4+2*h,2)}')
            if s in (2, 6):
                for h in range(2): k(f'v_pk_add_f32 {vr(a+4*s-8+2*h,2)}, {vr(a+4*s-8+2*h,2)}, {vr(a+4*s+2*h,2)}')
        for h in range(2): k(f'v_pk_add_f32 {vr(a+2*h,2)}, {vr(a+2*h,2)}, {vr(a+16+2*h,2)}')
        if opt.get('lean', 0) & 16: k(f'''v_lshlrev_b32 v{a+8}, 16, v{105+2*p}
v_and_b32 v{a+9}, 0xffff0000, v{105+2*p}''')
        else: k(f'''v_cvt_pk_bf16_f32 v{a+4}, v{a}, v{a+1}
v_cvt_pk_bf16_f32 v{a+5}, v{a+2}, v{a+3}
v_lshlrev_b32 v{a+8}, 16, v{105+2*p}
v_and_b32 v{a+9}, 0xffff0000, v{105+2*p}
v_lshlrev_b32 v{a}, 16, v{a+4}
v_and_b32 v{a+1}, 0xffff0000, v{a+4}
v_lshlrev_b32 v{a+2}, 16, v{a+5}
v_and_b32 v{a+3}, 0xffff0000, v{a+5}''')
        k(f'''v_add_f32 v{a}, v{a}, v{110+2*p}
v_add_f32 v{a+1}, v{a+1}, v{104+2*p}
v_pk_add_f32 {vr(a+2,2)}, {vr(a+2,2)}, {vr(a+8,2)}
v_cvt_pk_bf16_f32 v{a+4}, v{a}, v{a+1}
v_cvt_pk_bf16_f32 v{a+5}, v{a+2}, v{a+3}
buffer_store_dwordx2 {vr(a+4,2)}, v{120+p}, s[8:11], s47 offen''')


def gen_g3(opt):
    k = Kern('k4_kernel', 256, 512, 163840, nvgpr=128, nagpr=128)
    END = k.label('end')
    k(f'''s_cmp_ge_u32 s2, 256
s_cbranch_scc1 {END}
s_load_dwordx2 s[40:41], s[0:1], 80
s_load_dwordx2 s[80:81], s[0:1], 64''')
    k.stamp(True)
    map_g2(k)
    k(f'''v_lshrrev_b32 v1, 6, v0
v_and_b32 v2, 63, v0
v_readfirstlane_b32 s34, v1
v_lshlrev_b32 v3, 4, v2
v_lshlrev_b32 v2, 3, v2
s_waitcnt lgkmcnt(0)''')
    g3_wo_setup(k)
    for o in g3_wo_ops(): k(o)
    ph_g3(k, opt, False)
    k.finish(END)
    return k


def wq_role(k, base, END, half=None, fl='', sl=0):
    n = 256 if half is None else 128
    k(f'''s_sub_u32 s33, s2, {base}
s_cmp_ge_u32 s33, {n}
s_cbranch_scc1 {END}
s_load_dwordx2 s[4:5], s[0:1], 40
s_load_dwordx2 s[40:41], s[0:1], 80
{f"s_add_u32 s33, s33, 128" if half else ""}
v_lshrrev_b32 v1, 6, v0
v_and_b32 v2, 63, v0
v_readfirstlane_b32 s34, v1
v_lshlrev_b32 v3, 4, v2
v_lshrrev_b32 v4, 4, v2
v_bfe_u32 v5, v2, 2, 2
v_and_b32 v6, 3, v2
v_lshlrev_b32 v6, 4, v6
v_lshl_add_u32 v6, v4, 12, v6
v_lshl_add_u32 v6, v5, 20, v6
v_and_b32 v7, 15, v2
v_lshlrev_b32 v7, 6, v7
v_lshl_add_u32 v7, v4, 10, v7
s_lshl_b32 s39, s34, 12
v_add_u32 v7, s39, v7
s_bfe_u32 s35, s33, 0x20001
s_lshl_b32 s35, s35, 3
s_bfe_u32 s36, s33, 0x30003
s_add_u32 s35, s35, s36
s_lshr_b32 s36, s33, 6
s_and_b32 s37, s33, 1
s_lshl_b32 s42, s35, 15
s_and_b32 s43, s36, 1
s_lshl_b32 s43, s43, 14
s_add_u32 s42, s42, s43
s_lshr_b32 s43, s36, 1
s_lshl_b32 s43, s43, 22
s_add_u32 s42, s42, s43
s_lshl_b32 s43, s34, 6
s_add_u32 s42, s42, s43
s_lshl_b32 s43, s37, 11
s_add_u32 s42, s42, s43
s_lshl_b32 s44, s35, 3
s_add_u32 s44, s44, s34
s_lshl_b32 s44, s44, 15
s_lshl_b32 s43, s37, 12
s_add_u32 s44, s44, s43
s_lshl_b32 s43, s36, 10
s_add_u32 s44, s44, s43
s_waitcnt lgkmcnt(0)''')
    srd_from(k, 4, 4, 5, 0, 2048 * 4096)
    if sl: k(f's_sleep {sl}')
    M = gen_fft.OPT.get('wqm', 0)
    if M & 4:
        k('s_lshl_b32 s42, s33, 3\ns_add_u32 s42, s42, s34\ns_lshl_b32 s42, s42, 12')
        for g in range(4):
            k(f's_add_u32 m0, s39, 0')
            k(f'buffer_load_dwordx4 v3, s[4:7], s42 offen offset:{1024*g}{fl} lds')
    for g in range(4):
        if M & 6: break
        k(f's_add_u32 m0, s39, {512*g}')
        k(f'buffer_load_dwordx4 v6, s[4:7], s42 offen offset:{512*g}{fl} lds')
    srd_from(k, 8, 40, 41, WS_WS, WSP_BYTES)
    k('s_waitcnt vmcnt(0)')
    for c in range(4): k(f'ds_read_b128 {vr(8+4*c,4)}, v7 offset:{16*c}')
    for c in range(4):
        k(f's_waitcnt lgkmcnt({3-c})')
        if M & 1: continue
        k(f'buffer_store_dwordx4 {vr(8+4*c,4)}, v3, s[8:11], s44 offen{" nt" if M & 8 else ""}{" ; sc1" if M & 16 else " sc1"}')
        if c < 3: k('s_add_u32 s44, s44, 8192')
    k(f's_endpgm')
```

```python
from asmlib import *
import gen_fft
from gen_fft import vr, sr, srd_from, tab_srd, MFMA, WS_H, WS_HN, WS_U, WS_T, X_BYTES, TU_BYTES, TP, fft8, smul, cmul_planar, wave_reduce2, ln_stats, ln_apply
from gen3 import *

WS_FL = 0x1800000
FL_BYTES = 0x40000
FLH = 0; FL2 = 0x8000; FL3 = 0x10000; FLU = 0x18000
FS = 7
WS_PX = 0x1840000
PX_BYTES = 64 * 16 * 256
WS_WS = 0x2000000
WSP_BYTES = 8 << 20
Z2N_BYTES = 64 * 57344
A2_BYTES = 4 << 20
SPIN = 400000
PV = 0
ROT = 0
W128 = 0
G1S = 0
GV = 0
HP = 10368
HN_BYTES = 256 * HP
MF16 = 'v_mfma_f32_16x16x16_bf16'
BIG = '0x7f000000'


def ln_apply2(k, f, n, vm, vrs, out):
    k(f'v_mul_f32 v{vm}, v{vm}, v{vrs}')
    for i in range(0, n, 2):
        k(f'v_pk_fma_f32 {vr(f+i,2)}, {vr(f+i,2)}, {vr(vrs,2)}, {vr(vm,2)} op_sel_hi:[1,0,0] neg_lo:[0,0,1] neg_hi:[0,0,1]')
    for i in range(0, n, 2):
        k(f'v_cvt_pk_bf16_f32 v{out+i//2}, v{f+i}, v{f+i+1}')


def st(k, view, slot):
    if Kern.prof and PV == view:
        k.nst = slot; k.stamp()


def poll(k, srd, soff, va, vd, sc):
    LP = k.label('lp'); LD = k.label('ld')
    k(f'''s_mov_b32 s{sc}, {SPIN}
{LP}:
buffer_load_dword v{vd}, v{va}, {sr(srd,4)}, {soff} offen sc1
s_waitcnt vmcnt(0)
v_cmp_eq_u32 vcc, 0, v{vd}
s_cbranch_vccz {LD}
s_sub_u32 s{sc}, s{sc}, 1
s_cmp_lg_u32 s{sc}, 0
s_cbranch_scc1 {LP}
{LD}:''')


def map_g2(k):
    if gen_fft.OPT.get('g2m'):
        k('''s_and_b32 s35, s2, 7
s_lshl_b32 s35, s35, 2
s_bfe_u32 s36, s2, 0x20003
s_add_u32 s35, s35, s36
s_lshr_b32 s36, s2, 5''')
        return
    k('''s_and_b32 s33, s2, 7
s_lshr_b32 s42, s2, 3
s_lshr_b32 s35, s33, 1
s_lshl_b32 s35, s35, 3
s_and_b32 s36, s42, 7
s_add_u32 s35, s35, s36
s_and_b32 s36, s33, 1
s_lshl_b32 s36, s36, 2
s_lshr_b32 s42, s42, 3
s_add_u32 s36, s36, s42''')


def g1id(k, d, t):
    m = gen_fft.OPT.get('g1m', 0)
    k(f'''s_bfe_u32 s{d}, s2, {hex(((3-m) << 16) | m)}
s_lshl_b32 s{d}, s{d}, {1+m}
s_lshr_b32 s{t}, s2, {7-m}
s_add_u32 s{d}, s{d}, s{t}
s_lshl_b32 s{d}, s{d}, {m}
s_and_b32 s{t}, s2, {(1 << m) - 1}
s_add_u32 s{d}, s{d}, s{t}
s_lshl_b32 s{d}, s{d}, {4-m}
s_bfe_u32 s{t}, s2, {hex(((4-m) << 16) | 3)}
s_add_u32 s{d}, s{d}, s{t}''')


def w_setup(k, t0, t1):
    G2M = gen_fft.OPT.get('g2m', 0)
    k(f'''s_mov_b32 s74, {2048*4096}
s_mov_b32 s75, 0x00020000
s_bfe_u32 s{t0}, s2, {"0x30000" if G2M else "0x20001"}
s_lshl_b32 s{t0}, s{t0}, {2 if G2M else 3}
s_bfe_u32 s{t1}, s2, {"0x20003" if G2M else "0x30003"}
s_add_u32 s{t0}, s{t0}, s{t1}
s_lshl_b32 s50, s{t0}, 15
s_lshr_b32 s{t0}, s34, 2
s_lshl_b32 s{t0}, s{t0}, 11
s_and_b32 s{t1}, s34, 3
s_lshl_b32 s{t1}, s{t1}, 7
s_add_u32 s50, s50, s{t0}
s_add_u32 s50, s50, s{t1}
s_add_u32 s51, s50, 16384''')
    if ROT:
        k(f'''s_bfe_u32 s{t0}, s2, 0x10006
s_lshl_b32 s{t0}, s{t0}, {21 if G1S else 14}
s_add_u32 s50, s50, s{t0}
s_bfe_u32 s{t0}, s2, 0x10007
s_lshl_b32 s{t0}, s{t0}, 22
s_add_u32 s50, s50, s{t0}
s_mov_b32 s51, s50''')
    if W128: k(f's_mov_b32 s82, s50\ns_add_u32 s51, s50, {0x100000 if G1S else 4096}')


def w_vaddr(k, d, t):
    if W128:
        k(f'''v_and_b32 v{d}, 112, v3
v_bfe_u32 v{t}, v3, 7, 1
v_lshl_add_u32 v{d}, v{t}, {14 if G1S else 13}, v{d}
v_lshrrev_b32 v{t}, 8, v3
v_lshl_add_u32 v{d}, v{t}, 9, v{d}''')
        return
    k(f'''v_and_b32 v{d}, 48, v3
v_bfe_u32 v{t}, v3, 6, 2
v_lshl_add_u32 v{d}, v{t}, 12, v{d}
v_lshrrev_b32 v{t}, 8, v3
v_lshl_add_u32 v{d}, v{t}, 9, v{d}''')


def g2_wops(fl=''):
    ops = []
    if W128:
        for g in range(4):
            for n in range(4):
                for ih in range(2):
                    o = f'buffer_load_dwordx4 {ar(16*(4*ih+n)+4*g,4)}, @, s[72:75], s{50+ih} offen{fl}'
                    sn, si, su = (4096, 0x100000, 2 << 20) if G1S else (0x100000, 4096, 16384)
                    if ih and n < 3: o += f'\ns_add_u32 s50, s50, {sn}\ns_add_u32 s51, s51, {sn}'
                    if ih and n == 3 and g < 3: o += f'\ns_xor_b32 s50, s82, {((g+1)&1)*su + ((g+1)>>1)*(4<<20)}\ns_add_u32 s51, s50, {si}'
                    ops.append(o)
        return ops
    if ROT:
        for g in range(4):
            for n in range(4):
                for hi in range(2):
                    o = f'buffer_load_dwordx4 {ar(16*(4*hi+n)+4*g,4)}, @, s[72:75], s50 offen offset:{64*hi}{fl}'
                    if hi and n < 3: o += '\ns_add_u32 s50, s50, 0x100000'
                    if hi and n == 3 and g < 3: o += f'\ns_xor_b32 s50, s51, {((g+1)&1)*16384 + ((g+1)>>1)*(4<<20)}'
                    ops.append(o)
        return ops
    for n2 in range(8):
        for u in range(2):
            for hi in range(2):
                o = f'buffer_load_dwordx4 {ar(16*(4*hi+(n2&3))+4*(2*(n2>>2)+u),4)}, @, s[72:75], s{50+u} offen offset:{64*hi}{fl}'
                if u and hi and n2 < 7: o += '\ns_add_u32 s50, s50, 0x100000\ns_add_u32 s51, s51, 0x100000'
                ops.append(o)
    return ops


def w_trans(k, vw, vrd, groups=None, ts=42, priv=False, base=0, mid=None):
    PT = 520
    if (groups is not None and not groups) or gen_fft.OPT.get('nowt'): return
    if W128:
        k(f's_add_u32 s{ts}, s32, 3072' if priv else f's_and_b32 s{ts}, s34, 3\ns_mul_i32 s{ts}, s{ts}, 4160')
        if base: k(f's_add_u32 s{ts}, s{ts}, {base}')
        k(f'''v_lshrrev_b32 v{vw}, 1, v3
v_add_u32 v{vw}, s{ts}, v{vw}
v_bfe_u32 v{vrd}, v3, 4, 3
v_mul_u32_u24 v{vrd}, {PT-8}, v{vrd}
v_add_u32 v{vrd}, v{vw}, v{vrd}''')
        for tt in range(4):
            if groups is not None and tt not in groups: continue
            for h in range(2):
                if mid: mid(2 * (groups[-1] - tt) + 2 - h)
                R = lambda i: ar(16 * i + 4 * tt + 2 * h, 2)
                for i in range(8): k(f'ds_write_b64 v{vw}, {R(i)} offset:{PT*i}')
                for c in range(8): k(f'ds_read_b64 {R(c)}, v{vrd} offset:{8*c}')
        return
    k(f'''s_mul_i32 s{ts}, s34, 2560
v_lshrrev_b32 v{vw}, 1, v3
v_add_u32 v{vw}, s{ts}, v{vw}
v_bfe_u32 v{vrd}, v3, 4, 2
v_mul_u32_u24 v{vrd}, {PT-8}, v{vrd}
v_add_u32 v{vrd}, v{vw}, v{vrd}''')
    for tt in range(4):
        for hi in range(2):
            if groups is not None and tt not in groups: continue
            for h in range(2):
                R = lambda i: ar(16 * (4 * hi + i) + 4 * tt + 2 * h, 2)
                for i in range(4): k(f'ds_write_b64 v{vw}, {R(i)} offset:{PT*i}')
                for c in range(4): k(f'ds_read_b64 {R(c)}, v{vrd} offset:{8*c}')


def w_trans128(k, vw, vrd, base, ts, groups, mid=None):
    PT = 1040
    if not groups: return
    k(f'''s_and_b32 s{ts}, s34, 3
s_mul_i32 s{ts}, s{ts}, {8*PT}
s_add_u32 s{ts}, s{ts}, {base}
v_add_u32 v{vw}, s{ts}, v3
v_bfe_u32 v{vrd}, v3, 4, 3
v_mul_u32_u24 v{vrd}, {PT-16}, v{vrd}
v_add_u32 v{vrd}, v{vw}, v{vrd}''')
    for tt in groups:
        R = lambda i: ar(16 * i + 4 * tt, 4)
        for i in range(8):
            if mid: mid(8 * (groups[-1] - tt) + 8 - i)
            k(f'ds_write_b128 v{vw}, {R(i)} offset:{PT*i}')
        for c in range(8): k(f'ds_read_b128 {R(c)}, v{vrd} offset:{16*c}')


def unpk(l):
    m = re.match(r'v_pk_(add|mul)_f32 v\[(\d+):\d+\], v\[(\d+):\d+\], v\[(\d+):\d+\](.*)', l)
    if not m: return [l]
    op, d, a, b, mod = m.group(1), int(m.group(2)), int(m.group(3)), int(m.group(4)), m.group(5).strip()
    if mod == '': return [f'v_{op}_f32 v{d}, v{a}, v{b}', f'v_{op}_f32 v{d+1}, v{a+1}, v{b+1}']
    if mod == 'op_sel:[0,1] op_sel_hi:[1,1]': return [f'v_{op}_f32 v{d}, v{a}, v{b+1}', f'v_{op}_f32 v{d+1}, v{a+1}, v{b+1}']
    raise ValueError(l)


class Fill:
    def __init__(self): self.q = []
    def add(self, pos, f): self.q.append((pos, f))
    def emit(self, k, p, n):
        c = 0
        while self.q and self.q[0][0] <= p and c < n:
            f = self.q.pop(0)[1]
            f() if callable(f) else k(f)
            c += 1
    def flush(self, k): self.emit(k, 10**9, 10**9)


def ph_g2(k, opt, DONE, vm0, fused, post=None, early=None):
    HI = k.label('hi')
    NZ = opt.get('NZ', 14); ZR = 96 - 4 * NZ
    T = 8; S = 24; Z1 = 32
    assert ZR >= 40
    ACC = lambda n, tt: 96 + 16 * (n & 1) + 4 * tt
    SLOT = [0, 1, 2, 3, 4, 0, 1]
    srd_from(k, 8, 40, 41, WS_Z2, Z2N_BYTES)
    k(f'''s_lshl_b32 s56, s36, 3
s_add_u32 s56, s56, s34
s_mul_i32 s56, s56, 57344
v_lshrrev_b32 v2, 4, v3''')
    if opt.get('warm'):
        k('v_lshlrev_b32 v4, 7, v2\ns_mov_b32 s42, s56')
        for i in range(7): k('buffer_load_dword v5, v4, s[8:11], s42 offen\ns_add_u32 s42, s42, 8192')
        k('s_waitcnt vmcnt(0)\ns_barrier\ns_sleep 127')
    st(k, 2, 2)
    if opt.get('clkm'): k('s_memtime s[76:77]'); k.clkm = 1
    if opt.get('zpf'):
        k(f'''v_lshrrev_b32 v4, 3, v2
v_and_b32 v5, 7, v2
v_lshlrev_b32 v5, 7, v5
v_lshl_add_u32 v4, v4, 13, v5
s_and_b32 s42, s35, 7
s_lshl_b32 s42, s42, 10
s_add_u32 s42, s42, s56
s_mov_b32 exec_hi, 0x00ffffff
buffer_load_dword v36, v4, s[8:11], s42 offen
s_mov_b32 exec_hi, -1''')
        vm0.issue('pf')

    def zload(q, vm):
        if q >= 56 or opt.get('noz'): return
        if q and q % 4 == 0: k('s_add_u32 s56, s56, 4096')
        if q == 40: k(f's_cmp_eq_u32 s36, 7\ns_cselect_b32 s56, {BIG}, s56')
        k(f'buffer_load_dwordx4 {vr(ZR+4*(q%NZ),4)}, v3, s[8:11], s56 offen offset:{1024*(q%4)}'); vm.issue(f'z{q}')
    N0 = opt.get('N0', NZ)
    if opt.get('g2b'): k('s_barrier')
    st(k, 2, 1)
    for q in range(N0): zload(q, vm0)
    srd_from(k, 12, 40, 41, WS_Z1, A2_BYTES)
    srd_from(k, 16, 40, 41, WS_Z1 if opt.get('ain') else WS_A, A2_BYTES)
    srd_from(k, 24, 24, 25, 0, 4096)
    PW = opt.get('pw', 0); FZS = opt.get('fzs', 5)
    PWS = f'''s_lshl_b32 s47, s35, 1
s_lshr_b32 s42, s43, 1
s_add_u32 s47, s47, s42
s_lshl_b32 s47, s47, 3
s_add_u32 s47, s47, s36
s_lshl_b32 s47, s47, {FZS+1}
s_add_u32 s47, s47, {FLU}
v_bfe_u32 v40, v3, 4, 1
v_lshlrev_b32 v40, {FZS}, v40''' if PW else ''
    ZQ = opt.get('zq', 0)
    if ZQ: PWS = f'''s_lshl_b32 s48, s36, 5
s_lshr_b32 s42, s35, 1
s_add_u32 s48, s48, s42
s_lshl_b32 s48, s48, {FS-2}
s_and_b32 s42, s35, 1
s_lshl_b32 s42, s42, 1
s_add_u32 s48, s48, s42
s_lshr_b32 s42, s43, 1
s_add_u32 s48, s48, s42
s_and_b32 s42, s43, 1
s_lshl_b32 s42, s42, 2
s_add_u32 s48, s48, s42
s_lshl_b32 s48, s48, 2
s_add_u32 s48, s48, {FLU}
v_bfe_u32 v8, v3, 4, 1
v_lshlrev_b32 v8, {FS+4}, v8
v_mov_b32 v10, 2'''
    G3W = opt.get('g3v', 0) == 3
    G3X = opt.get('g3v', 0) == 4
    G3V = opt.get('g3v', 0) if not (G3W or G3X) else 0
    if G3X: SLOT = [0, 1, 2, 0, 1, 2, 0]
    WL = opt.get('wl', 0)
    if WL or opt.get('s4'): SLOT = [0, 1, 2, 3, 0, 1, 2]
    G3VS = f'''s_lshl_b32 s62, s35, 3
s_add_u32 s61, s62, s36
s_add_u32 s62, s62, s34
s_lshl_b32 s63, s62, 14
s_lshl_b32 s61, s61, {FS}
s_lshl_b32 s62, s62, {FS}
s_lshl_b32 s42, s34, 2
s_add_u32 s61, s61, s42
s_add_u32 s61, s61, {FL3}
s_add_u32 s62, s62, {FL3}
s_add_u32 s64, s63, 4096
s_add_u32 s65, s63, 8192
s_add_u32 s66, s63, 12288
v_mov_b32 v0, 1''' if G3V else ''
    if G3X: G3VS = f'''s_lshl_b32 s49, s35, {3+FS}
s_add_u32 s49, s49, {FL3}
s_lshl_b32 s48, s36, {FS}
s_add_u32 s48, s48, s49
s_and_b32 s42, s34, 4
s_add_u32 s42, s42, s43
s_lshl_b32 s42, s42, 2
s_add_u32 s48, s48, s42
s_mov_b32 s54, s49
s_cmp_eq_u32 s34, 7
s_cselect_b32 s49, s49, {BIG}
s_cselect_b32 s50, 0x0f0f0f0f, 0
s_cselect_b32 s52, -1, 0
s_mov_b32 s51, s50
s_mov_b32 s53, s52
s_lshr_b32 s38, s34, 2
s_lshl_b32 s63, s35, 1
s_add_u32 s63, s63, s38
s_lshl_b32 s63, s63, 4
s_add_u32 s63, s63, s37
s_lshl_b32 s63, s63, 12
s_add_u32 s64, s63, 0x4000
s_add_u32 s65, s63, 0x8000
s_add_u32 s66, s63, 0xc000
s_lshl_b32 s61, s37, 13
v_lshrrev_b32 v6, 7, v3
v_lshlrev_b32 v6, {FS}, v6
v_bfe_u32 v0, v3, 4, 3
v_lshl_add_u32 v6, v0, 2, v6
v_mov_b32 v0, 1'''
    BADR = '''s_lshl_b32 s42, s43, 10
s_lshl_b32 s45, s35, 4
s_add_u32 s45, s45, s42
v_and_b32 v4, 8, v2
v_and_b32 v5, 3, v2
v_lshl_add_u32 v4, v5, 1, v4
v_bfe_u32 v5, v2, 2, 1
v_lshl_add_u32 v4, v5, 9, v4''' if G1S else '''s_and_b32 s42, s43, 1
s_lshl_b32 s42, s42, 3
s_lshl_b32 s45, s35, 4
s_add_u32 s45, s45, s42
s_and_b32 s42, s43, 2
s_lshl_b32 s42, s42, 10
s_add_u32 s45, s45, s42
v_bfe_u32 v4, v2, 2, 2
v_and_b32 v5, 3, v2
v_lshlrev_b32 v5, 9, v5
v_lshl_add_u32 v4, v4, 1, v5'''
    k(f'''s_and_b32 s37, s34, 3
s_bfe_u32 s43, s2, {"0x20006" if ROT else "0"}
s_xor_b32 s43, s43, s37
s_lshl_b32 s44, s35, 3
s_add_u32 s44, s44, s36
s_lshl_b32 s44, s44, 2
s_add_u32 s44, s44, s43
s_lshl_b32 s44, s44, 12
{BADR}
buffer_load_ushort v1, v4, s[24:27], s45 offen
v_lshlrev_b32 v2, 3, v2
s_lshl_b32 s42, s34, 10
v_add_u32 v4, s42, v3
v_add_u32 v5, 0x10000, v4
v_add_u32 v6, 0x20000, v4
s_lshl_b32 s42, s37, 13
v_add_u32 v7, s42, v3
s_mov_b32 s58, 0xffff0000
{PWS}
{G3VS}
s_cmp_eq_u32 s36, 7
s_cselect_b32 s46, {BIG}, s44
s_cselect_b32 s59, 0, -1
s_cmp_ge_u32 s34, 4
s_cbranch_scc1 {HI}''')
    vm0.issue('b')

    def body(hi):
        import copy
        vm = copy.deepcopy(vm0); lg = Cnt('lgkmcnt', 15)
        F = Fill()

        def wr(n, tt):
            a = SLOT[n] * 32768 + tt * 8192
            k(f'ds_write_b128 v{4+a//65536}, {vr(ACC(n,tt),4)} offset:{a%65536}'); lg.issue(f'w{n}')

        def bar(n):
            x = lg.wait(f'w{n}')
            if x: k(x)
            k('s_barrier')

        def unit(tiles, zr, off, so, pos):
            nt = len(tiles)
            ops = []
            for ti, n in enumerate(tiles):
                for b in range(2):
                    base = SLOT[n] * 32768 + 4096 * b
                    if base >= 65536 - 32768 + 8192 and False: pass
                    for i in range(4):
                        def rd(base=base, i=i, n=n, b=b):
                            a = base + 1024 * i
                            k(f'ds_read_b128 {vr(T+4*i,4)}, v{RB[a//65536]} offset:{a%65536}'); lg.issue(f'r{n}_{b}_{i}')
                        ops.append(rd)
                    s = S + 4 * ti
                    def w01(n=n, b=b): k(lg.wait(f'r{n}_{b}_1') or '')
                    def w23(n=n, b=b): k(lg.wait(f'r{n}_{b}_3') or '')
                    ops.append(None); ops.append(None)
                    ops.append(w01)
                    d = s if b == 0 else T
                    ops += [f'v_pk_add_f32 {vr(d,2)}, {vr(T,2)}, {vr(T+4,2)}', f'v_pk_add_f32 {vr(d+2,2)}, {vr(T+2,2)}, {vr(T+6,2)}']
                    if b: ops += [f'v_pk_add_f32 {vr(s,2)}, {vr(s,2)}, {vr(T,2)}', f'v_pk_add_f32 {vr(s+2,2)}, {vr(s+2,2)}, {vr(T+2,2)}']
                    ops.append(w23)
                    ops += [f'v_pk_add_f32 {vr(T+8,2)}, {vr(T+8,2)}, {vr(T+12,2)}', f'v_pk_add_f32 {vr(T+10,2)}, {vr(T+10,2)}, {vr(T+14,2)}',
                            f'v_pk_add_f32 {vr(s,2)}, {vr(s,2)}, {vr(T+8,2)}', f'v_pk_add_f32 {vr(s+2,2)}, {vr(s+2,2)}, {vr(T+10,2)}']
            h = 2 * nt
            if not opt.get('lean', 0) & 8:
                ops += [f'v_cvt_pk_bf16_f32 v{T+i}, v{S+2*i}, v{S+2*i+1}' for i in range(h)]
                ops += [f'v_lshlrev_b32 v{S+2*i}, 16, v{T+i}\nv_and_b32 v{S+2*i+1}, s58, v{T+i}' for i in range(h)]
            ops.append(lambda: k(vm.wait(f'y{off}') or ''))
            ops += [f'v_pk_add_f32 {vr(S+2*i,2)}, {vr(S+2*i,2)}, v[0:1] op_sel:[0,1] op_sel_hi:[1,1]' for i in range(h)]
            ops += [f'v_lshlrev_b32 v{T+8+2*i}, 16, v{zr+i}\nv_and_b32 v{T+9+2*i}, s58, v{zr+i}' for i in range(h)]
            if not opt.get('lean', 0) & 8:
                ops += [f'v_cvt_pk_bf16_f32 v{T+i}, v{S+2*i}, v{S+2*i+1}' for i in range(h)]
                ops += [f'v_lshlrev_b32 v{S+2*i}, 16, v{T+i}\nv_and_b32 v{S+2*i+1}, s58, v{T+i}' for i in range(h)]
            ops += [f'v_pk_mul_f32 {vr(S+2*i,2)}, {vr(S+2*i,2)}, {vr(T+8+2*i,2)}' for i in range(h)]
            ops += [f'v_cvt_pk_bf16_f32 v{zr+i}, v{S+2*i}, v{S+2*i+1}' for i in range(h)]

            if tiles == [4, 5]: ops += [f'v_and_b32 v{zr+2}, s59, v{zr+2}', f'v_and_b32 v{zr+3}, s59, v{zr+3}']

            def sto():
                if nt == 2: k(f'buffer_store_dwordx4 {vr(zr,4)}, v3, s[16:19], {so} offen offset:{off} sc1')
                else: k(f'buffer_store_dwordx2 {vr(zr,2)}, v2, s[16:19], {so} offen offset:{off} sc1')
                vm.issue('s')
            ops.append(sto)
            out = []
            for o in ops:
                if o is None: out.append('')
                elif callable(o): out.append(o)
                else:
                    for l in o.split('\n'): out += unpk(l) if opt.get('upk', 1) else [l]
            return out

        def z1load(zr, off, so, nt):
            if nt == 2: k(f'buffer_load_dwordx4 {vr(zr,4)}, v3, s[12:15], {so} offen offset:{off}')
            else: k(f'buffer_load_dwordx2 {vr(zr,2)}, v2, s[12:15], {so} offen offset:{off}')
            vm.issue(f'y{off}')
        RB = [7, 38, 39]
        k('v_add_u32 v38, 0x10000, v7' + ('' if G3X or WL else '\nv_add_u32 v39, 0x20000, v7'))
        if WL: k(f's_mul_i32 s42, s37, {1024*WL}\ns_add_u32 s42, s42, {WSB}\nv_add_u32 v39, s42, v3')
        G2E = opt.get('g2e', [0, 0])[hi]
        if G2E: opt['g2ef'][hi]()
        ev = {}
        def at(p, f): ev.setdefault(p, []).append(f)
        for n in range(6):
            for tt in range(4): at(32 * (n + 1) + 3 + 2 * tt, lambda n=n, tt=tt: wr(n, tt))
        BP = opt.get('G2B', 16)
        if opt.get('pq') == 2: at(opt.get('pqb', 30), lambda: k('s_barrier'))
        at(64 + BP, lambda: bar(1)); at(128 + BP, lambda: bar(3)); at(192 + BP, lambda: bar(5))
        if opt.get('pp'):
            bs = [-1, 64 + BP, 128 + BP, 192 + BP, 224]
            k('s_setprio 3')
            for a, b in zip(bs[:-1], bs[1:]):
                for i in range(4):
                    pp = a + (b - a) * i // 4
                    if pp >= 0: at(pp, lambda i=i: k(f's_setprio {3-i}'))
        at(40, lambda: k((vm.wait('b') or '') + '\nv_lshlrev_b32 v1, 16, v1'))
        if opt.get('opf') is not None:
            def opf():
                k(f'''s_and_b32 s42, s35, 7
s_lshl_b32 s43, s36, 3
s_add_u32 s42, s42, s43
s_mul_i32 s42, s42, {WOB}
s_mul_i32 s43, s34, {18*128}
s_add_u32 s42, s42, s43
v_lshlrev_b32 v40, 3, v3
s_mov_b64 exec, 0x3ffff
buffer_load_ubyte v41, v40, s[28:31], s42 offen
s_mov_b64 exec, -1'''); vm.issue('opf')
            at(opt['opf'], opf)
        fq = []
        if PW:
            PZ = opt.get('pz', [30, 40, 64])
            at(PZ[0], lambda: k('s_barrier'))
            ZF = 'buffer_load_dword v41, v40, s[68:71], s47 offen sc1'
            def zf1(): k(ZF); vm.issue('zf')
            def zf2():
                LP = k.label('lp'); LD = k.label('ld')
                k(f'''{vm.wait('zf') or ''}
v_cmp_eq_u32 vcc, 0, v41
s_cbranch_vccz {LD}
s_mov_b32 s43, {SPIN}
{LP}:
{ZF}
s_waitcnt vmcnt(0)
v_cmp_eq_u32 vcc, 0, v41
s_cbranch_vccz {LD}
s_sub_u32 s43, s43, 1
s_cmp_lg_u32 s43, 0
s_cbranch_scc1 {LP}
{LD}:''')
            at(PZ[1] + (24 if hi else 0), zf1); at(PZ[2] + (24 if hi else 0), zf2)
        if ZQ:
            PZ = opt.get('pz', [1, 44, 60])
            def f2(): k('s_mov_b64 exec, 1\nbuffer_store_dword v10, off, s[68:71], s49 sc1\ns_mov_b64 exec, -1'); vm.issue('f2')
            if opt.get('nzf', 0) < 2: at(PZ[0], f2)
            ZF = 'buffer_load_dword v9, v8, s[68:71], s48 offen sc1'
            def zf1(): k(ZF); vm.issue('zf')
            def zf2():
                LP = k.label('lp'); LD = k.label('ld')
                k(f'''{vm.wait('zf') or ''}
v_cmp_ne_u32 vcc, 2, v9
s_cbranch_vccz {LD}
s_mov_b32 s43, {SPIN}
{LP}:
{ZF}
s_waitcnt vmcnt(0)
v_cmp_ne_u32 vcc, 2, v9
s_cbranch_vccz {LD}
s_sub_u32 s43, s43, 1
s_cmp_lg_u32 s43, 0
s_cbranch_scc1 {LP}
{LD}:''')
            assert PZ[2] + 24 < 97 and PZ[2] < 64 + BP
            if not opt.get('nzf'): at(PZ[1] + (24 if hi else 0), zf1); at(PZ[2] + (24 if hi else 0), zf2)
        if not hi:
            at(PZ[2] + 1 if PW or ZQ else 33, lambda: z1load(Z1, 0, 's44', 2))
            at(160, lambda: z1load(Z1, 2048, 's44', 2))
            fq.append((64 + BP + 1, lambda: unit([0, 1], Z1, 0, 's44', 0)))
            fq.append((192 + BP + 1, lambda: unit([4, 5], Z1, 2048, 's44', 0)))
        else:
            at(97, lambda: z1load(Z1, 1024, 's44', 2))
            at(190, lambda: z1load(Z1 + 4, 3072, 's46', 1))
            fq.append((128 + BP + 1, lambda: unit([2, 3], Z1, 1024, 's44', 0)))
        if G3V:
            def ef():
                assert 's' in vm.tags
                k((vm.wait('s') or '') + '\ns_mov_b64 exec, 1\nbuffer_store_dword v0, off, s[68:71], s61 sc1\ns_mov_b64 exec, -1'); vm.issue('f')
            at(opt.get('g3p', [150, 205])[hi], ef)
            EPP = opt.get('epp', [216, 216])[hi]
            def ep():
                k('v_bfe_u32 v127, v3, 4, 3\nv_lshlrev_b32 v127, 2, v127\nbuffer_load_dword v126, v127, s[68:71], s62 offen sc1'); vm.issue('ep')
            if EPP < 224:
                assert EPP > 192 + BP
                at(EPP, ep)
            if G3V == 2:
                E0, E1, E2 = opt.get('ep0', [182, 198, 2])
                P0L = 'buffer_load_dwordx4 v[40:43], off, s[68:71], s62 sc1'
                def ep0(): k(P0L); vm.issue('ep0')
                at(E0, ep0)
                at(E1, lambda: g3v_gate(k, vm, 'ep0', P0L, 'v_min3_u32 v40, v40, v41, v42\nv_min_u32 v40, v40, v43\nv_cmp_eq_u32 vcc, 0, v40'))
                def a0(tt): k(f'buffer_load_dwordx4 {vr(40+4*tt,4)}, v3, s[16:19], s{63+tt} offen'); vm.issue(f'a{tt}0')
                for tt in range(4): at(E1 + E2 * tt, lambda tt=tt: a0(tt))
        if G3X:
            def ef():
                assert 's' in vm.tags
                k((vm.wait('s') or '') + '\ns_mov_b64 exec, 1\nbuffer_store_dword v0, off, s[68:71], s48 sc1\ns_mov_b64 exec, -1'); vm.issue('f')
            at(opt.get('g3p', [150, 205])[hi], ef)
            E0, E1, A0, AS = opt.get('ep0', [186, 204, 209, 2])
            assert E1 <= 192 + BP < A0
            D0, DS = opt.get('dma', [196, 1])
            if hi:
                def ep0(): k(G3PL); vm.issue('ep0')
                at(E0, ep0)
                ev.setdefault(E1, []).insert(0, lambda: g3x_gate(k, vm, 'ep0', 50))
            def dm(i):
                if i == 0: k(f's_lshr_b32 s60, s61, {int(hi)}\ns_add_u32 s60, s60, s62\ns_add_u32 s60, s60, {(124 if hi else 92)*1024}')
                if i == 4: k('s_add_u32 s60, s60, 4096')
                k(f'buffer_load_dwordx4 {ar(4*i,4)}, v3, s[28:31], s60 offen offset:{1024*(i%4)}'); vm.issue('d')
            for i in range(4 if hi else 8):
                assert D0 + DS * i >= 196 + i
                at(D0 + DS * i, lambda i=i: dm(i))
            def x2():
                if not hi: assert 'r1_1_3' in lg.tags and lg.tags.index('r1_1_3') < lg.done
                k('s_barrier')
            at(opt.get('x2', 126), x2)
            def a0(f): k(f'buffer_load_dwordx4 {ar(32+4*f,4)}, v3, s[16:19], s{63+f} offen'); vm.issue(f'a0{f}')
            for f in range(4): at(A0 + AS * f, lambda f=f: a0(f))
        elif G3W:
            DR, D0, DS = opt.get('dma', [1, 184, 2])
            if hi == DR:
                assert hi or D0 > 192 + BP
                def dm(i):
                    if i == 0 and hi: assert 'r3_1_3' in lg.tags and lg.tags.index('r3_1_3') < lg.done
                    if i % 4 == 0: k(f's_add_u32 s60, s60, {[0, 4096, 28672, 4096][i//4]}\ns_add_u32 m0, s61, {[0, 4096, 32768, 36864][i//4]}')
                    k(f'buffer_load_dwordx4 v3, s[28:31], s60 offen offset:{1024*(i%4)} lds'); vm.issue('o')
                for i in range(16): at(min(D0 + (DS * i if DS > 0 else i // -DS), 223), lambda i=i: dm(i))
        elif opt.get('wp') or WL:
            go, lo_ = g3_wo_ops2(hi)
            pp_ = opt.get('wq0', 196) - 1
            for o, pos, _ in go[:opt.get('wol', [99, 99])[hi]]:
                pp_ = min(max(pp_ + opt.get('wqs', 1), pos), 223)
                def f(o=o): k(o); vm.issue('w0')
                at(pp_, f)
            for o, pos, _ in lo_:
                def f(o=o): k(o); lg.issue('wl')
                at(pos, f)
        elif post:
            po = list(post)[:opt.get('wol', [99, 99])[hi]]
            pn = [0]
            def pw(n):
                for _ in range(n):
                    if po: k(po.pop(0)); vm.issue(f'w{min(pn[0] // 5, 3)}'); pn[0] += 1
            for j in range(1, 8):
                for tt in range(4): at(192 + 4 * j + tt, lambda: pw(1))
        R = opt.get('G2R', 3)
        cur = []
        p = 0
        nq = [N0]
        for n in range(7):
            if n in (1, 3, 5): st(k, 2, 3 + n // 2)
            for j in range(8):
                q = 8 * n + j
                x = vm.wait(f'z{q}')
                if x: k(x)
                if q == 0:
                    x = vm.wait('w')
                    if x: k(x)
                for tt in range(4):
                    acc = vr(ACC(n, tt), 4)
                    if G2E and q == 0 and tt == 4 - G2E: k('s_waitcnt lgkmcnt(0)'); st(k, 2, 9)
                    k(f'{MFMA} {acc}, {vr(ZR+4*(q%NZ),4)}, {ar(16*j+4*tt,4)}, {"0" if j == 0 else acc}')
                    if tt in (1, 3) and nq[0] < q + NZ + (tt == 3): zload(nq[0], vm); nq[0] += 1
                    for f in ev.get(p, []): f()
                    if fq and fq[0][0] <= p: cur += fq.pop(0)[1]()
                    for _ in range(R):
                        if cur:
                            o = cur.pop(0)
                            o() if callable(o) else k(o)
                    p += 1
        if opt.get('clkm'): k('s_memtime s[78:79]')
        st(k, 2, 6)
        EP = opt.get('g3e', 0)
        if early and EP == 0:
            for o in early: k(o); vm.issue('e')
        for tt in range(4): wr(6, tt)
        if early and EP == 1:
            for o in early: k(o); vm.issue('e')
        bar(6)
        if early and EP == 2:
            for o in early: k(o); vm.issue('e')
        st(k, 2, 7)
        if G3V and EPP == 224: ep()
        if hi: cur = unit([6], Z1 + 4, 3072, 's46', 0)
        for o in cur: o() if callable(o) else k(o)
        st(k, 2, 8); st(k, 0, 7)
        k('s_setprio 0')
        if G3X: g3x(k, opt, int(hi), vm)
        if G3V:
            if EPP > 224: ep()
            (g3v_head2 if G3V == 2 else g3v_head)(k, opt, hi, vm)
        k(f's_branch {DONE}')
        return len(vm.tags) - 1 - max([i for i, t in enumerate(vm.tags) if t == 'e'] + [-1])
    n0 = body(False)
    k(f'{HI}:')
    n1 = body(True)
    return min(n0, n1)


def gen_g2(opt):
    k = Kern('k3_kernel', 256, 512, 163840, nvgpr=128, nagpr=128)
    END = k.label('end')
    k(f'''s_cmp_ge_u32 s2, 256
s_cbranch_scc1 {END}
s_load_dwordx2 s[40:41], s[0:1], 80
s_load_dwordx2 s[24:25], s[0:1], 48
s_load_dwordx2 s[72:73], s[0:1], 40''')
    k.stamp(True)
    map_g2(k)
    k(f'''v_lshrrev_b32 v1, 6, v0
v_and_b32 v2, 63, v0
v_readfirstlane_b32 s34, v1
v_lshlrev_b32 v3, 4, v2''')
    w_vaddr(k, 4, 5)
    w_setup(k, 42, 43)
    k('s_waitcnt lgkmcnt(0)')
    vm = Cnt('vmcnt', 63)
    wb = Bulk(k, g2_wops())
    wb(32, vm, 4)
    k('s_waitcnt vmcnt(0)')
    w_trans(k, 4, 5)
    k('s_waitcnt lgkmcnt(0)\ns_barrier')
    st(k, 2, 1)
    ph_g2(k, opt, END, vm, False)
    k.finish(END)
    return k


WOB = 17920
WO8_BYTES = 64 * WOB


def gen_prep8(k, base_wg, END, nwv=5):
    WO = k.label('wo'); J = k.label('j'); WO2 = k.label('wo2'); SG = k.label('sg')
    k(f'''s_load_dwordx2 s[4:5], s[0:1], 32
s_load_dwordx2 s[8:9], s[0:1], 56
v_lshrrev_b32 v1, 6, v0
v_and_b32 v2, 63, v0
v_readfirstlane_b32 s35, v1
s_sub_u32 s33, s2, {base_wg}
s_mul_i32 s33, s33, {nwv}
s_add_u32 s33, s33, s35
v_and_b32 v4, 15, v2
v_lshrrev_b32 v5, 4, v2
v_lshlrev_b32 v3, 4, v2
s_lshl_b32 s47, s35, 13
s_cmp_ge_u32 s35, {nwv}
s_cbranch_scc1 {END}
s_cmp_ge_u32 s33, 440
s_cbranch_scc1 {END}
s_waitcnt lgkmcnt(0)''')
    srd_from(k, 16, 40, 41, WS_WI, WS_WO - WS_WI + WO8_BYTES)
    k(f'''s_mov_b32 s23, 0x00020000
s_cmp_ge_u32 s33, 280
s_cbranch_scc1 {WO}
s_mul_i32 s51, s33, 4682
s_lshr_b32 s51, s51, 16
s_mul_i32 s52, s51, 14
s_sub_u32 s52, s33, s52
s_movk_i32 s50, 3456
s_lshl_b32 s53, s51, 5
s_mov_b32 s57, 8
s_mov_b32 s58, 4
s_mov_b64 s[20:21], s[4:5]
s_mov_b32 s22, {640*3456}
s_branch {J}
{WO}:
s_sub_u32 s34, s33, 280
s_mul_i32 s51, s34, 13108
s_lshr_b32 s51, s51, 16
s_mul_i32 s52, s51, 5
s_sub_u32 s52, s34, s52
s_movk_i32 s50, 1280
s_lshr_b32 s54, s51, 2
s_and_b32 s55, s51, 3
s_mul_i32 s53, s54, 112
s_lshl_b32 s42, s55, 5
s_add_u32 s53, s53, s42
s_mov_b32 s57, 4
s_mov_b32 s58, 16
s_mov_b64 s[20:21], s[8:9]
s_mov_b32 s22, {864*1280}
{J}:
v_mul_u32_u24 v6, s50, v5
v_lshl_add_u32 v6, v4, 4, v6
s_mul_i32 s42, s53, s50
s_lshl_b32 s43, s52, 8
s_add_u32 s42, s42, s43
v_add_u32 v6, s42, v6
s_lshl_b32 s43, s50, 2''')
    for i in range(8):
        k(f's_add_u32 m0, s47, {1024*i}')
        k(f'buffer_load_dwordx4 v6, s[20:23], 0 offen lds')
        if i < 7: k(f'v_add_u32 v6, s43, v6')
    k(f'''v_mul_u32_u24 v6, s57, v5
v_lshrrev_b32 v7, 2, v4
v_add_u32 v6, v6, v7
v_and_b32 v7, 3, v4
v_lshlrev_b32 v7, 3, v7
v_lshl_add_u32 v6, v6, 8, v7
v_add_u32 v6, s47, v6
s_lshl_b32 s42, s58, 8
v_add_u32 v7, s42, v6
v_lshlrev_b32 v8, 3, v2
s_waitcnt vmcnt(0)''')
    prep_tail(k, END, WO2, SG)


def prep_tail(k, END, WO2, SG):
    PADW = gen_fft.OPT.get('padw', 0); NL = '\n'
    BLAY = 's_add_u32 s43, s43, s44\ns_mul_i32 s44, s51, 7'
    if gen_fft.OPT.get('g3v', 0) == 4 or gen_fft.OPT.get('zq'): BLAY = '''s_lshr_b32 s45, s43, 2
s_and_b32 s43, s43, 3
s_add_u32 s43, s43, s44
s_mul_i32 s44, s45, 20
s_add_u32 s44, s44, 60
s_cmp_eq_u32 s46, 0
s_cselect_b32 s44, s44, 0
s_add_u32 s43, s43, s44
s_sub_u32 s44, 4, s45
s_mul_i32 s44, s44, s51'''
    WOA = f's_mul_i32 s56, s54, {WOB}\ns_mul_i32 s42, s55, 5120'
    if gen_fft.OPT.get('g3v', 0) >= 3: WOA = '''s_and_b32 s56, s54, 3
s_lshl_b32 s56, s56, 1
s_lshr_b32 s42, s54, 2
s_add_u32 s56, s56, s42
s_mul_i32 s56, s56, 5120
s_lshr_b32 s42, s56, 1
s_cmp_eq_u32 s55, 3
s_cselect_b32 s56, s42, s56
s_mul_i32 s42, s55, 40960'''
    for i in range(8):
        k(f'ds_read_b64_tr_b16 {vr(16+4*i,2)}, v6 offset:{32*i}')
        k(f'ds_read_b64_tr_b16 {vr(18+4*i,2)}, v7 offset:{32*i}')
    st(k, 5, 6)
    k(f's_cmp_ge_u32 s33, 280\ns_cbranch_scc1 {WO2}')
    for i in range(8):
        if i in (1, 4): st(k, 5, 7 + i // 4)
        k(f'''s_lshl_b32 s42, s52, 3
s_add_u32 s42, s42, {i}
s_add_u32 s43, s42, 2
s_cmp_ge_u32 s42, 54
s_cselect_b32 s43, s43, s42
s_cselect_b32 s46, 0, 1
{f"s_cmp_ge_u32 s42, 110{NL}s_cselect_b32 s43, {48+i}, s43{NL}s_cselect_b32 s46, 1, s46" if PADW and i >= 6 else ""}
s_mul_i32 s44, s43, 9363
s_lshr_b32 s44, s44, 16
s_mul_i32 s45, s44, 7
s_sub_u32 s43, s43, s45
s_and_b32 s44, s44, 7
s_lshl_b32 s44, s44, 1
s_lshr_b32 s45, s43, 2
s_xor_b32 s45, s45, s46
s_add_u32 s44, s44, s45
s_mul_i32 s44, s44, 140
{BLAY}
s_add_u32 s43, s43, s44
s_lshl_b32 s43, s43, 10
{"" if PADW else f"s_cmp_lt_u32 s42, 108{NL}s_cselect_b32 s43, s43, {BIG}"}
s_waitcnt lgkmcnt({14-2*i})
buffer_store_dwordx4 {vr(16+4*i,4)}, v3, s[16:19], s43 offen''')
    k(f'''s_branch {END}
{WO2}:
{WOA}
s_add_u32 s56, s56, {WS_WO-WS_WI}
s_add_u32 s56, s56, s42
s_cmp_lt_u32 s53, 864
s_cselect_b32 s59, -1, 0
s_cmp_lt_u32 s53, 848
s_cselect_b32 s60, -1, 0
s_cmp_eq_u32 s55, 3
s_cbranch_scc1 {SG}''')
    for sg in range(2):
        for i in range(8):
            k(f'''s_lshl_b32 s42, s52, 3
s_add_u32 s42, s42, {i}
s_mul_i32 s44, s42, 13108
s_lshr_b32 s44, s44, 16
s_mul_i32 s45, s44, 5
s_sub_u32 s43, s42, s45
s_mul_i32 s44, s44, {8*WOB}
s_lshl_b32 s43, s43, {9 if sg else 10}
s_add_u32 s43, s43, s44
s_add_u32 s43, s43, s56
s_waitcnt lgkmcnt({14-2*i})''')
            for j in range(2 if sg else 4): k(f'v_and_b32 v{16+4*i+j}, s{59+j//2}, v{16+4*i+j}')
            if sg: k(f'buffer_store_dwordx2 {vr(16+4*i,2)}, v8, s[16:19], s43 offen')
            else: k(f'buffer_store_dwordx4 {vr(16+4*i,4)}, v3, s[16:19], s43 offen')
        k(f's_branch {END}')
        if sg == 0: k(f'{SG}:')


def prep_inl(k, part, LB, END, nv=0, hdr=None):
    WO = k.label('wo'); J = k.label('j'); WO2 = k.label('wo2'); SG = k.label('sg')
    txt = hdr or f"""s_lshl_b32 s33, s2, 1
s_add_u32 s33, s33, s34
s_sub_u32 s33, s33, 6
s_sub_u32 s47, s34, 6
s_lshl_b32 s47, s47, 13
s_add_u32 s47, s47, {LB}
"""
    txt += f"""v_and_b32 v4, 15, v2
v_lshrrev_b32 v5, 4, v2
s_mov_b32 s23, 0x00020000
s_cmp_ge_u32 s33, 280
s_cbranch_scc1 {WO}
s_mul_i32 s51, s33, 4682
s_lshr_b32 s51, s51, 16
s_mul_i32 s52, s51, 14
s_sub_u32 s52, s33, s52
s_movk_i32 s50, 3456
s_lshl_b32 s53, s51, 5
s_mov_b32 s57, 8
s_mov_b32 s58, 4
s_mov_b64 s[20:21], s[62:63]
s_mov_b32 s22, {640*3456}
s_branch {J}
{WO}:
s_sub_u32 s35, s33, 280
s_mul_i32 s51, s35, 13108
s_lshr_b32 s51, s51, 16
s_mul_i32 s52, s51, 5
s_sub_u32 s52, s35, s52
s_movk_i32 s50, 1280
s_lshr_b32 s54, s51, 2
s_and_b32 s55, s51, 3
s_mul_i32 s53, s54, 112
s_lshl_b32 s42, s55, 5
s_add_u32 s53, s53, s42
s_mov_b32 s57, 4
s_mov_b32 s58, 16
s_mov_b64 s[20:21], s[64:65]
s_mov_b32 s22, {864*1280}
{J}:
"""
    if part == 'A':
        txt += """v_mul_u32_u24 v6, s50, v5
v_lshl_add_u32 v6, v4, 4, v6
s_mul_i32 s42, s53, s50
s_lshl_b32 s43, s52, 8
s_add_u32 s42, s42, s43
v_add_u32 v6, s42, v6
s_lshl_b32 s43, s50, 2
"""
        for i in range(8):
            txt += f's_add_u32 m0, s47, {1024*i}\nbuffer_load_dwordx4 v6, s[20:23], 0 offen lds\n'
            if i < 7: txt += 'v_add_u32 v6, s43, v6\n'
        mp = dict(s33='s16', s35='s17', s42='s18', s43='s19', s47='s24', s50='s25', s51='s26', s52='s27', s53='s28', s54='s29', s55='s30', s57='s31', s58='s31', v4='v104', v5='v105', v6='v106')
        txt = re.sub(r'\b([sv]\d+)\b', lambda m: mp.get(m.group(1), m.group(1)), txt)
        k(txt)
        return
    k(txt)
    if not hdr: k(f's_cmp_ge_u32 s33, 440\ns_cbranch_scc1 {END}')
    srd_from(k, 16, 40, 41, WS_WI, WS_WO - WS_WI + WO8_BYTES)
    k(f"""v_mul_u32_u24 v6, s57, v5
v_lshrrev_b32 v7, 2, v4
v_add_u32 v6, v6, v7
v_and_b32 v7, 3, v4
v_lshlrev_b32 v7, 3, v7
v_lshl_add_u32 v6, v6, 8, v7
v_add_u32 v6, s47, v6
s_lshl_b32 s42, s58, 8
v_add_u32 v7, s42, v6
v_lshlrev_b32 v8, 3, v2""")
    st(k, 5, 4)
    k(f's_waitcnt vmcnt({nv})')
    st(k, 5, 5)
    prep_tail(k, END, WO2, SG)


BB = 20480


def gelu_pk(k, pk, n, x, p, out, vc, tr=False, sc=False):
    for i in range(0, n if pk is not None else 0, 2):
        k(f'v_lshlrev_b32 v{x+i}, 16, v{pk+i//2}\nv_and_b32 v{x+i+1}, 0xffff0000, v{pk+i//2}')
    if sc:
        for i in range(n): k(f'v_mul_f32 v{p+i}, v{x+i}, v{x+i}')
        for i in range(n): k(f'v_fma_f32 v{p+i}, v{p+i}, {"s62" if GV else f"v{vc}"}, v{vc+1}')
        for i in range(n): k(f'v_mul_f32 v{p+i}, v{p+i}, v{x+i}')
    else:
        for i in range(0, n, 2):
            k(f'v_pk_mul_f32 {vr(p+i,2)}, {vr(x+i,2)}, {vr(x+i,2)}')
        for i in range(0, n, 2):
            if GV == 1: k(f'v_pk_fma_f32 {vr(p+i,2)}, {vr(p+i,2)}, s[62:63], {vr(vc,2)}')
            elif GV == 2: k(f'v_fma_f32 v{p+i}, v{p+i}, s62, v{vc+1}\nv_fma_f32 v{p+i+1}, v{p+i+1}, s62, v{vc+1}')
            else: k(f'v_pk_fma_f32 {vr(p+i,2)}, {vr(p+i,2)}, {vr(vc,2)}, {vr(vc,2)} op_sel:[0,0,1] op_sel_hi:[1,0,1]')
        for i in range(0, n, 2):
            k(f'v_pk_mul_f32 {vr(p+i,2)}, {vr(p+i,2)}, {vr(x+i,2)}')
    for i in range(n):
        k(f'v_exp_f32 v{p+i}, v{p+i}')
    if sc:
        for i in range(n): k(f'v_add_f32 v{p+i}, 1.0, v{p+i}')
    else:
        for i in range(0, n, 2):
            k(f'v_pk_add_f32 {vr(p+i,2)}, {vr(p+i,2)}, 1.0 op_sel_hi:[1,0]')
    for i in range(n):
        k(f'v_rcp_f32 v{p+i}, v{p+i}')
    if sc:
        for i in range(n): k(f'v_mul_f32 v{p+i}, v{p+i}, v{x+i}')
    else:
        for i in range(0, n, 2):
            k(f'v_pk_mul_f32 {vr(p+i,2)}, {vr(p+i,2)}, {vr(x+i,2)}')
    for i in range(0, n, 2):
        if tr:
            a = [0, 4, 1, 5][i // 2]
            k(f'v_cvt_pk_bf16_f32 v{out+i//2}, v{p+a}, v{p+a+2}')
        else: k(f'v_cvt_pk_bf16_f32 v{out+i//2}, v{p+i}, v{p+i+1}')


class Bulk:
    def __init__(self, k, ops): self.k = k; self.ops = list(ops)
    def copy(self): return Bulk(self.k, self.ops)
    def __call__(self, n, vm, va, tag='w'):
        for _ in range(n):
            if not self.ops: return
            self.k(self.ops.pop(0).replace('@', f'v{va}'))
            if vm is not None: vm.issue(tag)


def weave_in(k, i0, q, n, vm, va, tag='q'):
    body = k.lines[i0:]
    ok = []; full = True
    for i, l in enumerate(body):
        if l.startswith('s_mov_b64 exec, -1'): full = True
        elif 'exec' in l.split(',')[0] or 'saveexec' in l: full = False
        if full and l.startswith(('v_', 'ds_')) and not l.startswith('v_cmp') and 'vcc' not in l: ok.append(i)
    n = min(n, len(q.ops))
    if not n: return
    pos = {}
    for j in range(n):
        p = ok[(j * len(ok)) // n]
        pos[p] = pos.get(p, 0) + 1
    del k.lines[i0:]
    for i, l in enumerate(body):
        if i in pos: q(pos[i], vm, va, tag)
        k.lines.append(l)


def flag(k, srd, soff):
    k(f'''s_mov_b64 exec, 1
v_mov_b32 v8, 1
v_mov_b32 v9, 0
buffer_store_dword v8, v9, {sr(srd,4)}, {soff} offen sc1
s_mov_b64 exec, -1''')


def ph_k2a(k, opt, wb):
    RP = 144; NP = 11 * RP + 16
    TB2 = 0
    SKIP = k.label('skip')
    vm = Cnt('vmcnt', 63)
    k(f'''s_load_dwordx2 s[4:5], s[0:1], 0
s_load_dwordx2 s[40:41], s[0:1], 80
s_load_dwordx2 s[72:73], s[0:1], 40
s_load_dwordx2 s[80:81], s[0:1], 64''')
    tab_srd(k, 12)
    k(f'''s_and_b32 s3, s2, 7
s_lshl_b32 s3, s3, 5
s_lshr_b32 s33, s2, 3
s_add_u32 s3, s3, s33
s_lshl_b32 s33, s3, 6
s_add_u32 s33, s33, 32768
s_load_dwordx16 s[16:31], s[12:13], s33
v_lshrrev_b32 v1, 6, v0
v_and_b32 v2, 63, v0
v_readfirstlane_b32 s34, v1
v_lshlrev_b32 v3, 4, v2
s_movk_i32 s38, 0x4000
s_lshl_b32 s39, s34, 11
s_add_u32 m0, s39, {TB2}
s_add_u32 s38, s38, s39
s_cmp_lt_u32 s34, 5
s_cselect_b32 s38, s38, {BIG}
buffer_load_dwordx4 v3, s[12:15], s38 offen lds
buffer_load_dwordx4 v3, s[12:15], s38 offen offset:1024 lds''')
    vm.issue('t'); vm.issue('t')
    k(f'''s_mul_i32 s46, s3, {8*TP}
s_add_u32 s47, s46, {3*TP}
s_add_u32 s48, s46, {6*TP}
v_lshlrev_b32 v60, 2, v0
s_lshl_b32 s35, s34, 8
s_add_u32 s35, s35, s3
s_mul_i32 s35, s35, 1280
v_and_b32 v50, 15, v2
v_lshrrev_b32 v51, 4, v2
v_lshlrev_b32 v52, 6, v50
v_lshl_add_u32 v52, v51, 4, v52
v_add_u32 v53, 1024, v52
v_mov_b32 v54, 0x7fffffff
v_cmp_gt_u32 vcc, 4, v50
v_cndmask_b32 v53, v54, v53, vcc''')
    k(f'''s_mul_i32 s59, s34, {NP}
v_add_u32 v112, s59, v52
v_and_b32 v113, 3, v2
v_mul_u32_u24 v113, {NP}, v113
v_lshrrev_b32 v114, 2, v2
v_lshl_add_u32 v113, v114, 4, v113
s_cmp_ge_u32 s34, 5
s_cselect_b32 s59, {4*NP-5*256}, 0
s_lshl_b32 s60, s34, 8
s_add_u32 s59, s59, s60
v_add_u32 v113, s59, v113
s_mul_i32 s59, s3, 10240
s_lshl_b32 s60, s34, 10
s_add_u32 s59, s59, s60
s_add_u32 s49, s59, 8192
s_cmp_lt_u32 s34, 2
s_cselect_b32 s49, s49, {BIG}''')
    k(f'''s_and_b32 s58, s3, 15
s_mul_i32 s58, s58, {140*1024}
s_mul_i32 s57, s34, {18*1024}
s_min_u32 s57, s57, {122*1024}
s_add_u32 s56, s57, {BB}
s_add_u32 s57, s57, s58
s_waitcnt lgkmcnt(0)''')
    srd_from(k, 4, 4, 5, 0, X_BYTES)
    srd_from(k, 8, 40, 41, WS_U, TU_BYTES)
    for k2 in range(8):
        k(f'buffer_load_dword v{4+k2}, v60, s[8:11], s{46+k2//3} offen offset:{(k2%3)*TP+4*(k2&1)*(opt.get("sh",0)>0)}')
        vm.issue('u')
    k(f'''buffer_load_dwordx4 v[104:107], v52, s[4:7], s35 offen
buffer_load_dwordx4 v[108:111], v53, s[4:7], s35 offen''')
    vm.issue('x'); vm.issue('x')
    srd_from(k, 52, 40, 41, WS_H, X_BYTES)
    srd_from(k, 60, 40, 41, WS_HN, X_BYTES)
    srd_from(k, 64, 40, 41, WS_WI, WI_BYTES)
    if wb:
        w_setup(k, 42, 43); w_vaddr(k, 114, 115)
    if opt.get('ub'): k('s_barrier')
    bq = [] if opt.get('nob') else list(range(18))
    BP = opt.get('BP', [10, 8, 0, 0, 0, 0])
    assert sum(BP) >= 18

    def bulk(i):
        for _ in range(BP[i]):
            if bq:
                i = bq.pop(0)
                if i % 4 == 0:
                    k(f's_add_u32 m0, s56, {1024*i}')
                    if i: k('s_add_u32 s57, s57, 4096')
                k(f'buffer_load_dwordx4 v3, s[64:67], s57 offen offset:{1024*(i%4)} lds'); vm.issue('b')
            elif wb: wb(1, vm, 114)
    bulk(0)
    k(f'''v_mul_u32_u24 v55, 3277, v0
v_lshrrev_b32 v55, 16, v55
v_mul_u32_u24 v56, 20, v55
v_sub_u32 v56, v0, v56
v_mul_u32_u24 v57, {RP}, v56
v_lshl_add_u32 v57, v55, 2, v57
v_mov_b32 v58, {11*RP}
v_cmp_ge_u32 vcc, 10, v56
v_cndmask_b32 v57, v58, v57, vcc
v_sub_u32 v59, 20, v56
v_mul_u32_u24 v59, {RP}, v59
v_sub_u32 v61, 31, v55
v_lshl_add_u32 v59, v61, 2, v59
v_cmp_le_u32 vcc, 10, v56
v_cndmask_b32 v59, v58, v59, vcc
v_sub_u32 v61, 32, v55
v_lshlrev_b32 v61, 2, v61
v_cmp_eq_u32 vcc, 0, v56
v_cndmask_b32 v59, v59, v61, vcc
v_cmp_eq_u32 vcc, 0, v0
v_cndmask_b32 v59, v59, v58, vcc
v_cmp_eq_u32 vcc, 320, v0
v_cndmask_b32 v59, v59, v58, vcc
v_mov_b32 v40, 0x3f3504f3
v_min_u32 v62, 10, v50
v_mul_u32_u24 v62, {RP}, v62
v_lshl_add_u32 v62, v51, 4, v62
s_mul_i32 s42, s34, {NP}
v_add_u32 v62, s42, v62
v_and_b32 v63, 1, v2
v_lshlrev_b32 v63, 31, v63
v_or_b32 v63, 1.0, v63
''')
    k(vm.wait('t')); k('s_barrier')
    for i in range(10): k(f'ds_read_b128 {vr(64+4*i,4)}, v3 offset:{TB2+1024*i}')
    bulk(1)
    k('s_waitcnt lgkmcnt(0)\ns_barrier')
    k(f'''v_cmp_gt_u32 vcc, 321, v0
s_and_saveexec_b64 s[44:45], vcc''')
    k(vm.wait('u'))
    st(k, 1, 1); st(k, 0, 1)
    k(f'''s_cbranch_execz {SKIP}''')
    for k2 in range(8):
        k(f'v_lshlrev_b32 v{20+2*k2}, 16, v{4+k2}\nv_and_b32 v{21+2*k2}, 0xffff0000, v{4+k2}')
    for k2 in range(8):
        if k2 == 0:
            k('v_mov_b32 v4, v20\nv_mov_b32 v5, v21')
        else:
            smul(k, 4 + 2 * k2, 20 + 2 * k2, 16 + 2 * k2, 42 + 2 * (k2 & 1), conj=True)
    T = fft8(k, 4, 20, True, 40)
    for n in range(8):
        k(f'''v_cvt_pk_bf16_f32 v{4+2*n}, v{T[n]}, v{T[n]+1}
v_cvt_pk_bf16_f32 v{5+2*n}, v{T[n]}, -v{T[n]+1}
ds_write_b32 v57, v{4+2*n} offset:{n*NP}
ds_write_b32 v59, v{5+2*n} offset:{n*NP}''')
    k(f'''{SKIP}:
s_mov_b64 exec, -1''')
    bulk(2)
    k(f'''s_waitcnt lgkmcnt(0)
s_barrier
ds_read_b128 v[4:7], v62
ds_read_b128 v[8:11], v62 offset:64''')
    bulk(3)
    k(f'''s_waitcnt lgkmcnt(1)''')
    for u in range(2):
        if u == 1: k('s_waitcnt lgkmcnt(0)')
        for t in range(2):
            k(f'{MFMA} {vr(12+16*u+8*t,4)}, {vr(4+4*u,4)}, {vr(64+8*t,4)}, 0')
            k(f'{MFMA} {vr(16+16*u+8*t,4)}, {vr(4+4*u,4)}, {vr(68+8*t,4)}, 0')
    bulk(4)
    for i in range(0, 16, 2):
        k(f'v_pk_fma_f32 {vr(12+i,2)}, {vr(28+i,2)}, v[62:63], {vr(12+i,2)} op_sel:[0,1,0] op_sel_hi:[1,1,1]')
    for t in range(2):
        cmul_planar(k, 12 + 8 * t, 16 + 8 * t, 80 + 8 * t, 84 + 8 * t, 28, 32, 36)
        k(f'''v_cvt_pk_bf16_f32 v{4+4*t}, v28, v29
v_cvt_pk_bf16_f32 v{5+4*t}, v30, v31
v_cvt_pk_bf16_f32 v{6+4*t}, v32, v33
v_cvt_pk_bf16_f32 v{7+4*t}, v34, v35''')
    for v in range(2):
        for t in range(2):
            k(f'{MFMA} {vr(12+8*v+4*t,4)}, {vr(4+4*t,4)}, {vr(96+4*v,4)}, 0')
    bulk(5)
    k(vm.wait('x'))
    for i in range(8):
        k(f'v_lshlrev_b32 v{28+2*i}, 16, v{104+i}\nv_and_b32 v{29+2*i}, 0xffff0000, v{104+i}')
    for i in range(8):
        k(f'v_cvt_pk_bf16_f32 v{4+i}, v{12+2*i}, v{13+2*i}')
    for i in range(8):
        k(f'v_lshlrev_b32 v{12+2*i}, 16, v{4+i}\nv_and_b32 v{13+2*i}, 0xffff0000, v{4+i}')
    for i in range(8):
        k(f'v_pk_add_f32 {vr(12+2*i,2)}, {vr(12+2*i,2)}, {vr(28+2*i,2)}')
    for i in range(8):
        k(f'v_cvt_pk_bf16_f32 v{4+i}, v{12+2*i}, v{13+2*i}')
    k('''buffer_store_dwordx4 v[4:7], v52, s[52:55], s35 offen sc1
buffer_store_dwordx4 v[8:11], v53, s[52:55], s35 offen sc1''')
    for i in range(8):
        k(f'v_lshlrev_b32 v{12+2*i}, 16, v{4+i}\nv_and_b32 v{13+2*i}, 0xffff0000, v{4+i}')
    k('''v_pk_add_f32 v[28:29], v[12:13], v[14:15]
v_pk_mul_f32 v[30:31], v[12:13], v[12:13]
v_pk_add_f32 v[32:33], v[16:17], v[18:19]
v_pk_mul_f32 v[34:35], v[14:15], v[14:15]''')
    for i in range(2, 8):
        k(f'v_pk_fma_f32 {vr(30+4*(i&1),2)}, {vr(12+2*i,2)}, {vr(12+2*i,2)}, {vr(30+4*(i&1),2)}')
        if i >= 4:
            k(f'v_pk_add_f32 {vr(28+4*(i&1),2)}, {vr(28+4*(i&1),2)}, {vr(12+2*i,2)}')
    k('''v_pk_add_f32 v[28:29], v[28:29], v[32:33]
v_pk_add_f32 v[30:31], v[30:31], v[34:35]
v_add_f32 v28, v28, v29
v_add_f32 v30, v30, v31''')
    wave_reduce2(k, 28, 30, 36, 37)
    ln_stats(k, 36, 37, 640, 28, 30, 32)
    ln_apply(k, 12, 16, 28, 30, 40)
    srd_from(k, 68, 40, 41, WS_FL, FL_BYTES)
    k(f'''ds_write_b128 v112, v[40:43]
s_mov_b32 exec_lo, 0x000f000f
s_mov_b32 exec_hi, 0x000f000f
ds_write_b128 v112, v[44:47] offset:1024
s_mov_b64 exec, -1
s_waitcnt lgkmcnt(0)
s_barrier
ds_read_b128 v[40:43], v113
ds_read_b128 v[44:47], v113 offset:{4*NP+3*256}
s_waitcnt lgkmcnt(1)
buffer_store_dwordx4 v[40:43], v3, s[60:63], s59 offen sc1
s_waitcnt lgkmcnt(0)
buffer_store_dwordx4 v[44:47], v3, s[60:63], s49 offen sc1''')
    st(k, 1, 2); st(k, 0, 2)


def ph_k12(k, opt, wb):
    P = 1040; W0 = 16 * P; TB1 = 32 * P; TB2 = TB1 + 8192
    RP = 144; NP = 11 * RP + 16
    IDLE = k.label('idle'); JOIN = k.label('join'); SKIP = k.label('skip')
    vm = Cnt('vmcnt', 63)
    k(f"""s_load_dwordx4 s[4:7], s[0:1], 8
s_load_dwordx2 s[40:41], s[0:1], 80
s_load_dwordx2 s[72:73], s[0:1], 40
s_load_dwordx2 s[80:81], s[0:1], 64""")
    tab_srd(k, 12)
    k(f"""s_and_b32 s33, s2, 7
s_lshr_b32 s35, s2, 3
v_lshrrev_b32 v1, 6, v0
v_and_b32 v2, 63, v0
v_readfirstlane_b32 s34, v1
v_lshlrev_b32 v3, 4, v2
v_and_b32 v4, 15, v2
v_lshrrev_b32 v5, 4, v2
s_lshl_b32 s39, s34, 10
s_add_u32 m0, s39, {TB1}
s_add_u32 s38, s39, 0x2000
buffer_load_dwordx4 v3, s[12:15], s38 offen lds""")
    vm.issue('t1')
    IIM = 'v[112:115]'; IRE = 'v[114:117]'; FIM = 'v[116:119]'; FRE = 'v[118:121]'
    k(f"""v_mul_u32_u24 v6, {16*8*TP}, v4
v_lshl_add_u32 v6, v5, 4, v6
s_lshl_b32 s36, s34, 4
s_add_u32 s36, s36, s33
s_mul_i32 s45, s36, 642
s_mul_i32 s36, s36, {TP}
s_lshl_b32 s37, s35, 6
s_add_u32 s36, s36, s37
s_add_u32 s42, s36, {8*TP}
s_lshl_b32 s37, s35, 5
s_add_u32 s45, s45, s37
s_and_b32 s45, s45, -4
v_and_b32 v7, 1, v5
v_lshrrev_b32 v8, 1, v5
v_lshl_add_u32 v9, v4, 4, v7
v_mul_u32_u24 v9, {8*642}, v9
v_lshl_add_u32 v9, v8, 4, v9
s_and_b32 s37, s33, 1
s_lshl_b32 s37, s37, 2
s_sub_u32 s43, s36, s37
s_sub_u32 s44, s42, s37
s_lshl_b32 s3, s33, 5
s_add_u32 s3, s3, s35
s_cmp_lt_u32 s2, 168
s_cselect_b32 s43, s43, {BIG}
s_cselect_b32 s44, s44, {BIG}
s_cselect_b32 s45, s45, {BIG}
s_waitcnt lgkmcnt(0)""")
    srd_from(k, 60, 40, 41, WS_T, TU_BYTES)
    for i in range(2):
        k(f'buffer_load_dwordx4 {vr(16+4*i,4)}, v6, s[60:63], s{43+i} offen'); vm.issue(f'T{i}')
    k(f"""s_mov_b32 s52, s6
s_mov_b32 s53, s7
s_mov_b32 s6, {2048*642}
s_mov_b32 s7, 0x00020000
s_mov_b32 s54, {2048*642}
s_mov_b32 s55, 0x00020000""")
    WP = opt.get('k1wp', 0)

    def wld():
        k(f"""buffer_load_dwordx4 v[32:35], v9, s[4:7], s45 offen
buffer_load_dwordx4 v[38:41], v9, s[52:55], s45 offen
s_load_dwordx2 s[4:5], s[0:1], 0""")
        vm.issue('W'); vm.issue('W')
    if opt.get('ob1'): k('s_barrier')
    if WP == 0: wld()
    k(f"""s_min_u32 s39, s34, 4
s_lshl_b32 s39, s39, 11
s_add_u32 m0, s39, {TB2}
s_add_u32 s38, s39, 0x4000
buffer_load_dwordx4 v3, s[12:15], s38 offen lds
buffer_load_dwordx4 v3, s[12:15], s38 offen offset:1024 lds
s_lshl_b32 s38, s3, 6
s_add_u32 s38, s38, 32768
s_load_dwordx16 s[16:31], s[12:13], s38""")
    vm.issue('t2'); vm.issue('t2')
    srd_from(k, 8, 40, 41, WS_U, TU_BYTES)
    srd_from(k, 64, 40, 41, WS_WI, WI_BYTES)
    w_setup(k, 46, 47); w_vaddr(k, 124, 125)
    BR = opt.get('brot', 0)
    g1id(k, 58, 57)
    k(f"""s_and_b32 s58, s58, 15
s_mul_i32 s58, s58, {140*1024}
s_mul_i32 s57, s34, {14*1024}
s_add_u32 s57, s57, {31*1024}
s_min_u32 s57, s57, {(124 if BR else 126)*1024}
s_add_u32 s56, s57, {BB}
s_add_u32 s57, s57, s58""")
    if opt.get('hot'): k('s_sub_u32 s57, s57, s58\ns_mov_b32 s58, 0\ns_and_b32 s50, s50, 0x7fff\ns_and_b32 s51, s51, 0x7fff\ns_and_b32 s82, s82, 0x7fff')
    if opt.get('hotw'): k('s_and_b32 s50, s50, 0x7fff\ns_and_b32 s51, s51, 0x7fff\ns_and_b32 s82, s82, 0x7fff')
    if opt.get('hotb'): k('s_sub_u32 s57, s57, s58\ns_mov_b32 s58, 0')
    if BR: k('s_bfe_u32 s38, s3, 0x10004\ns_lshl_b32 s38, s38, 13')
    bops = []
    for i in range(0 if opt.get('nob') else (16 if BR else 14)):
        if BR:
            o = f's_xor_b32 s39, s38, {1024*(i-i%4)}\ns_add_u32 m0, s56, s39\ns_add_u32 s39, s39, s57\n'
            bops.append(o + f'buffer_load_dwordx4 v3, s[64:67], s39 offen offset:{1024*(i%4)} lds')
            continue
        o = f's_add_u32 m0, s56, {1024*(i-i%4)}\n'
        if i % 4 == 0 and i: o += 's_add_u32 s57, s57, 4096\n'
        bops.append(o + f'buffer_load_dwordx4 v3, s[64:67], s57 offen offset:{1024*(i%4)} lds')
    wops = wb.ops
    NWL = opt.get('nwl', 0)
    wpre = wops[:len(wops) - NWL]; wb.ops = wops[len(wops) - NWL:]
    order = opt.get('bo', 0)
    if order == 0: pre = wpre + bops
    elif order == 1: pre = bops + wpre
    else:
        pre = []
        a, b = list(wpre), list(bops)
        while a or b:
            pre += a[:8]; a = a[8:]
            pre += b[:4]; b = b[4:]
    import copy
    KP = opt.get('KP', [8, 4, 4, 4, 4, 4, 4, 4, 4, 99])
    CP = opt.get('CP', [0, 0, 0, 0, 0])
    NPRE = sum(KP) + sum(opt.get('KW', [0, 0, 0])[:2])
    post = pre[NPRE:]; pre = pre[:NPRE]
    assert len(post) <= sum(CP) + opt.get('KW', [0, 0, 0])[2], (len(post), CP)
    k(f's_cmp_ge_u32 s2, 168\ns_cbranch_scc1 {IDLE}')
    vi = copy.deepcopy(vm)
    q = Bulk(k, pre)

    def bulk(i): q(KP[i], vm, 124, 'q')
    bulk(0)
    k(f"""v_mul_u32_u24 v10, {4*P}, v5
v_lshl_add_u32 v10, v4, 2, v10
s_lshl_b32 s37, s34, 7
v_add_u32 v10, s37, v10
v_mul_u32_u24 v11, {8*P}, v8
v_lshl_add_u32 v11, v7, 6, v11
v_lshl_add_u32 v11, v4, 2, v11
v_add_u32 v11, s37, v11
v_lshlrev_b32 v12, 6, v4
v_lshl_add_u32 v12, v5, 4, v12
s_mul_i32 s37, s34, {2*P}
v_add_u32 v12, s37, v12
s_mov_b32 s47, 0x05040100
s_mov_b32 s48, 0x07060302""")
    for i in range(2):
        k(vm.wait(f'T{i}'))
        if i == 0: st(k, 4, 1)
        for j in range(4):
            k(f'ds_write_b32 v10, v{16+4*i+j} offset:{j*P+64*i}')
    if WP == 1: wld()
    bulk(1)
    k('s_waitcnt lgkmcnt(0)\ns_barrier')
    NC = 2
    KW = opt.get('KW', [0, 0, 0])
    i0 = len(k.lines)
    k(f"""ds_read_b128 v[96:99], v3 offset:{TB1}
ds_read_b128 v[16:19], v12
ds_read_b128 v[100:103], v3 offset:{TB1+1024}
ds_read_b128 v[20:23], v12 offset:{P}
ds_read_b128 v[104:107], v3 offset:{TB1+2048}
ds_read_b128 v[108:111], v3 offset:{TB1+3072}
ds_read_b128 v[118:121], v3 offset:{TB1+4096}
ds_read_b64 v[116:117], v3 offset:{TB1+5120}
ds_read_b128 v[112:115], v3 offset:{TB1+7168}""")
    bulk(2)
    k(f"""s_waitcnt lgkmcnt(7)
{MFMA} v[48:51], v[16:19], v[96:99], 0
s_waitcnt lgkmcnt(6)
{MFMA} v[52:55], v[16:19], v[100:103], 0
s_waitcnt lgkmcnt(5)
{MFMA} v[56:59], v[20:23], v[96:99], 0
{MFMA} v[60:63], v[20:23], v[100:103], 0""")
    bulk(3)
    k('s_waitcnt lgkmcnt(0)')

    def pack(c, re, im):
        k(f"""v_cvt_pk_bf16_f32 v{16+4*c}, v{re}, v{re+1}
v_cvt_pk_bf16_f32 v{17+4*c}, v{re+2}, v{re+3}
v_cvt_pk_bf16_f32 v{18+4*c}, v{im}, v{im+1}
v_cvt_pk_bf16_f32 v{19+4*c}, v{im+2}, v{im+3}""")
    for c in range(NC):
        cmul_planar(k, 48 + 8 * c, 52 + 8 * c, 104, 108, 80, 84, 88)
        pack(c, 80, 84)
        k(f'{MFMA} {vr(48+8*c,4)}, {FRE}, {vr(16+4*c,4)}, 0')
        k(f'{MFMA} {vr(52+8*c,4)}, {FIM}, {vr(16+4*c,4)}, 0')
    bulk(4)
    weave_in(k, i0, q, KW[0], vm, 124)
    k(vm.wait('W') or '')
    k(vm.wait('t2') or '')
    st(k, 4, 2)
    i0 = len(k.lines)
    for j in range(8):
        k(f'v_perm_b32 v{64+j}, v{38+j//2}, v{32+j//2}, s{47+(j&1)}')
        k(f'ds_write_b32 v11, v{64+j} offset:{W0+j*P}')
    bulk(5)
    k(f's_waitcnt lgkmcnt(0)\ns_barrier')
    for c in range(NC):
        k(f'ds_read_b128 {vr(32+4*c,4)}, v12 offset:{W0+c*P}')
    bulk(6)
    for c in range(NC):
        k(f's_waitcnt lgkmcnt({NC-1-c})')
        for r in range(4):
            k(f'v_lshlrev_b32 v{64+8*c+r}, 16, v{32+4*c+r}\nv_and_b32 v{68+8*c+r}, 0xffff0000, v{32+4*c+r}')
        cmul_planar(k, 48 + 8 * c, 52 + 8 * c, 64 + 8 * c, 68 + 8 * c, 80, 84, 88)
        pack(c, 80, 84)
        k(f'{MFMA} {vr(48+8*c,4)}, {vr(16+4*c,4)}, {IRE}, 0')
        k(f'{MFMA} {vr(52+8*c,4)}, {vr(16+4*c,4)}, {IIM}, 0')
    bulk(7)
    for c in range(NC):
        cmul_planar(k, 48 + 8 * c, 52 + 8 * c, 104, 108, 80, 84, 88, conj=True)
        pack(c, 80, 84)
        k(f'{MFMA} {vr(48+8*c,4)}, {IRE}, {vr(16+4*c,4)}, 0')
        k(f'{MFMA} {vr(52+8*c,4)}, {IIM}, {vr(16+4*c,4)}, 0')
    bulk(8)
    for c in range(NC):
        for r in range(4):
            k(f'v_cvt_pk_bf16_f32 v{16+4*c+r}, v{48+8*c+r}, v{52+8*c+r}')
        k(f'ds_write_b128 v12, {vr(16+4*c,4)} offset:{c*P}')
    weave_in(k, i0, q, KW[1], vm, 124)
    k('s_waitcnt lgkmcnt(0)\ns_barrier')
    for i in range(2):
        for j in range(4):
            k(f'ds_read_b32 v{16+4*i+j}, v10 offset:{j*P+64*i}')
    for i in range(10): k(f'ds_read_b128 {vr(64+4*i,4)}, v3 offset:{TB2+1024*i}')
    for i in range(2):
        k(f's_waitcnt lgkmcnt({14-4*i})')
        k(f'buffer_store_dwordx4 {vr(16+4*i,4)}, v6, s[8:11], {["s36","s42"][i]} offen sc1')
    st(k, 4, 3)
    if opt.get('ob2'): k('s_barrier')
    q(99, vm, 124, 'q')
    k(f's_branch {JOIN}\n{IDLE}:')
    if WP: k('s_load_dwordx2 s[4:5], s[0:1], 0')
    if opt.get('it2'):
        WM = opt.get('wte', 0)
        k(f'''s_sub_u32 s43, s35, 21
s_and_b32 s44, s33, 1
s_mul_i32 s44, s44, 11
s_add_u32 s43, s43, s44
s_mul_i32 s44, s34, 22
s_add_u32 s44, s44, s43
s_add_u32 s44, s44, {64*WM}
s_add_u32 s45, s44, 176
s_lshr_b32 s46, s33, 1
s_lshl_b32 s46, s46, 18
v_lshlrev_b32 v10, 7, v2''')
        for r in (44, 45)[:2 if 64*(4-WM) > 176 else 1]:
            k(f'''s_and_b32 s47, s{r}, 31
s_lshl_b32 s47, s47, 13
s_add_u32 s47, s47, s46
s_bfe_u32 s48, s{r}, 0x10005
s_lshl_b32 s48, s48, 22
s_add_u32 s47, s47, s48
s_lshr_b32 s48, s{r}, 6
s_lshl_b32 s48, s48, 20
s_add_u32 s47, s47, s48
s_cmp_lt_u32 s{r}, 256
s_cselect_b32 s47, s47, {BIG}
buffer_load_ubyte v11, v10, s[72:75], s47 offen''')
            vi.issue('q')
            if opt['it2'] > 1: k('s_barrier')
    if opt.get('itd'): k(f's_sleep {opt["itd"]}')
    if opt.get('it'):
        k(f'''s_sub_u32 s43, s35, 21
s_and_b32 s44, s33, 1
s_mul_i32 s44, s44, 11
s_add_u32 s43, s43, s44
s_lshl_b32 s44, s43, 3
s_add_u32 s44, s44, s34
s_mul_i32 s45, s34, 22
s_add_u32 s45, s45, s43
s_add_u32 s45, s45, 176
s_lshr_b32 s46, s33, 1
s_lshl_b32 s46, s46, 18
v_lshlrev_b32 v10, 7, v2''')
        for r in (44, 45):
            k(f'''s_and_b32 s47, s{r}, 31
s_lshl_b32 s47, s47, 13
s_lshr_b32 s48, s{r}, 5
s_lshl_b32 s48, s48, 20
s_add_u32 s47, s47, s48
s_add_u32 s47, s47, s46
buffer_load_ubyte v11, v10, s[72:75], s47 offen''')
            vi.issue('q')
        if opt.get('bt'):
            k('''s_load_dwordx2 s[44:45], s[0:1], 48
s_mov_b32 s46, 4096
s_mov_b32 s47, 0x00020000
v_lshlrev_b32 v12, 6, v2
s_waitcnt lgkmcnt(0)
buffer_load_ubyte v11, v12, s[44:47], 0 offen''')
            vi.issue('q')
        if opt['it'] > 1: k('s_barrier')
    if opt.get('iw'):
        wp = [o for o in pre if o in wpre]; bp = [o for o in pre if o not in wpre]
        assert len(bp) == len(bops)
        IW = opt['iw']
        nb0 = opt.get('ib0', 0)
        Bulk(k, bp[:nb0])(99, vi, 124, 'q')
        Bulk(k, wp)(99, vi, 124, 'q')
        k('s_mov_b32 s46, s50\ns_mov_b32 s47, s51')
        Bulk(k, wpre[len(wp):len(wp) + IW])(99, vi, 124, 'q')
        k('s_mov_b32 s50, s46\ns_mov_b32 s51, s47')
        Bulk(k, bp[nb0:])(99, vi, 124, 'q')
    else:
        q = Bulk(k, pre)
        q(99, vi, 124, 'q')
    k(vi.wait('t2'))
    k('s_barrier')
    for i in range(10): k(f'ds_read_b128 {vr(64+4*i,4)}, v3 offset:{TB2+1024*i}')
    if opt.get('idl'): k(f's_sleep {opt["idl"]}')
    k(f'{JOIN}:')
    ph_k2b(k, opt, post, NWL)


def ph_k2b(k, opt, post, NWL=0, fused=False):
    RP = 144; NP = 11 * RP + 16
    SKIP = k.label('skip')
    KW = opt.get('KW', [0, 0, 0])
    CP = opt.get('CP', [0, 0, 0, 0, 0])
    LEAN = opt.get('lean', 0) & 1
    XP5 = [108, 110, 114, 116, 118]
    if LEAN:
        assert fused and opt.get('xs') and opt.get('hd') and not G1S
        k(f'''v_and_b32 v44, {hex(0x3f0 & ~128)}, v3
v_xor_b32 v45, 64, v44
ds_read_b128 v[100:103], v44 offset:{opt['TB2']+9*1024}
ds_read_b128 v[104:107], v45 offset:{opt['TB2']+9*1024}''')
    vm = Cnt('vmcnt', 63); vm.issue('q')
    if opt.get('g3s'):
        srd_from(k, 60, 40, 41, WS_A, A2_BYTES)
        k('''s_lshl_b32 s46, s2, 14
s_lshl_b32 s47, s34, 11
s_add_u32 s46, s46, s47
v_mov_b32 v28, -1
v_mov_b32 v29, -1
v_mov_b32 v30, -1
v_mov_b32 v31, -1
buffer_store_dwordx4 v[28:31], v3, s[60:63], s46 offen sc1
buffer_store_dwordx4 v[28:31], v3, s[60:63], s46 offen offset:1024 sc1''')
        vm.issue('f'); vm.issue('f')
    V53 = '''v_and_b32 v53, 0xf0, v52
v_bfe_u32 v54, v50, 2, 1
v_lshl_add_u32 v53, v54, 3, v53
v_lshrrev_b32 v54, 3, v50
v_lshl_add_u32 v53, v54, 2, v53
v_add_u32 v53, 1024, v53''' if LEAN else '''v_add_u32 v53, 1024, v52
v_mov_b32 v54, 0x7fffffff
v_cmp_gt_u32 vcc, 4, v50
v_cndmask_b32 v53, v54, v53, vcc'''
    k(f"""s_mul_i32 s46, s3, {8*TP}
s_add_u32 s47, s46, {3*TP}
s_add_u32 s48, s46, {6*TP}
v_lshlrev_b32 v60, 2, v0
s_lshl_b32 s35, s34, 8
s_add_u32 s35, s35, s3
s_mul_i32 s35, s35, 1280
v_and_b32 v50, 15, v2
v_lshrrev_b32 v51, 4, v2
v_lshlrev_b32 v52, 6, v50
v_lshl_add_u32 v52, v51, 4, v52
{V53}
s_lshl_b32 s42, s34, 12
s_min_u32 s42, s42, {27*1024}
s_add_u32 m0, s42, {BB}
s_add_u32 s42, s42, s58
s_waitcnt lgkmcnt(0)
s_barrier""")
    st(k, 8, 5)
    if not fused: srd_from(k, 4, 4, 5, 0, X_BYTES)
    for i in range(0 if opt.get('nob') else 4):
        k(f'buffer_load_dwordx4 v3, s[64:67], s42 offen offset:{1024*i} lds'); vm.issue('b')
    st(k, 8, 6)
    if LEAN:
        k(f"""v_add_u32 v54, s32, v52
v_add_u32 v55, s32, v53
ds_read_b128 v[44:47], v54 offset:8192
ds_read_b32 v48, v55 offset:8192
s_mul_i32 s59, s34, {NP}
v_add_u32 v120, s59, v53""")
    elif opt.get('xs'):
        k(f"""v_add_u32 v54, s32, v52
v_mov_b32 v108, 0
v_mov_b32 v109, 0
v_mov_b32 v110, 0
v_mov_b32 v111, 0
ds_read_b128 v[104:107], v54 offset:8192
s_mov_b64 exec, vcc
ds_read_b128 v[108:111], v54 offset:{8192+1024}
s_mov_b64 exec, -1""")
    else:
        k(f"""buffer_load_dwordx4 v[104:107], v52, s[4:7], s35 offen
buffer_load_dwordx4 v[108:111], v53, s[4:7], s35 offen""")
        vm.issue('x'); vm.issue('x')
    HP0 = opt.get('hp0', 10240)
    if G1S:
        k(f"""s_mul_i32 s59, s34, {NP}
v_add_u32 v112, s59, v52""")
        for j, d in enumerate((113, 115)):
            k(f"""v_add_u32 v116, {512*j}, v0
v_mul_u32_u24 v117, 410, v116
v_lshrrev_b32 v117, 16, v117
v_mul_u32_u24 v118, 160, v117
v_sub_u32 v116, v116, v118
v_and_b32 v118, 1, v116
v_lshl_add_u32 v117, v117, 1, v118
v_mul_u32_u24 v117, {NP}, v117
v_lshrrev_b32 v116, 1, v116
v_lshl_add_u32 v{d}, v116, 4, v117""")
        k(f"""s_mul_i32 s59, s3, {HP}
s_lshl_b32 s60, s34, 10
s_add_u32 s59, s59, s60
s_add_u32 s49, s59, 8192
s_cmp_lt_u32 s34, 2
s_cselect_b32 s49, s49, {BIG}""")
    else: k(f"""s_mul_i32 s59, s34, {NP}
v_add_u32 v112, s59, v52
v_and_b32 v113, 3, v2
v_mul_u32_u24 v113, {NP}, v113
v_lshrrev_b32 v114, 2, v2
v_lshl_add_u32 v113, v114, 4, v113
s_cmp_ge_u32 s34, 5
s_cselect_b32 s59, {4*NP-5*256}, 0
s_lshl_b32 s60, s34, 8
s_add_u32 s59, s59, s60
v_add_u32 v113, s59, v113
s_mul_i32 s59, s3, {HP0}
s_lshl_b32 s60, s34, 10
s_add_u32 s59, s59, s60
s_add_u32 s49, s59, 8192
s_cmp_lt_u32 s34, 2
s_cselect_b32 s49, s49, {BIG}""")
    srd_from(k, 52, 80, 81, 0, X_BYTES) if opt.get('hout') else srd_from(k, 52, 40, 41, WS_H, X_BYTES)
    srd_from(k, 60, 40, 41, WS_HN, 0x300000)
    k(f"""v_mul_u32_u24 v55, 3277, v0
v_lshrrev_b32 v55, 16, v55
v_mul_u32_u24 v56, 20, v55
v_sub_u32 v56, v0, v56
v_mul_u32_u24 v57, {RP}, v56
v_lshl_add_u32 v57, v55, 2, v57
v_mov_b32 v58, {11*RP}
v_cmp_ge_u32 vcc, 10, v56
v_cndmask_b32 v57, v58, v57, vcc
v_sub_u32 v59, 20, v56
v_mul_u32_u24 v59, {RP}, v59
v_sub_u32 v61, 31, v55
v_lshl_add_u32 v59, v61, 2, v59
v_cmp_le_u32 vcc, 10, v56
v_cndmask_b32 v59, v58, v59, vcc
v_sub_u32 v61, 32, v55
v_lshlrev_b32 v61, 2, v61
v_cmp_eq_u32 vcc, 0, v56
v_cndmask_b32 v59, v59, v61, vcc
v_cmp_eq_u32 vcc, 0, v0
v_cndmask_b32 v59, v59, v58, vcc
v_cmp_eq_u32 vcc, 320, v0
v_cndmask_b32 v59, v59, v58, vcc
v_mov_b32 v40, 0x3f3504f3
v_min_u32 v62, 10, v50
v_mul_u32_u24 v62, {RP}, v62
v_lshl_add_u32 v62, v51, 4, v62
s_mul_i32 s42, s34, {NP}
v_add_u32 v62, s42, v62
v_and_b32 v63, 1, v2
v_lshlrev_b32 v63, 31, v63
v_or_b32 v63, 1.0, v63
""")
    WT0 = opt.get('wt0', 0) if not opt.get('now') else 0
    assert not (WT0 and NWL)
    if WT0:
        k(vm.wait('q'))
        w_trans(k, 44, 45, list(range(WT0)))
    if LEAN:
        k('s_waitcnt lgkmcnt(0)')
        for i in range(5): k(f'v_lshlrev_b32 v{XP5[i]}, 16, v{44+i}\nv_and_b32 v{XP5[i]+1}, 0xffff0000, v{44+i}')
    st(k, 4, 4); st(k, 8, 7)
    LP = k.label('lp'); LD = k.label('ld'); SK0 = k.label('sk0'); STUB = k.label('stub'); GO = k.label('go')
    q = Bulk(k, post)
    UNI = KW[2] > 0
    L0 = k.label('l0'); L1 = None
    if UNI:
        assert not WT0
        k(f"""v_cmp_gt_u32 vcc, 321, v0
v_cndmask_b32 v57, v58, v57, vcc
v_cndmask_b32 v59, v58, v59, vcc
s_mov_b64 exec, vcc
s_mov_b32 s43, {SPIN}
s_cmp_lt_u32 s34, 6
s_cbranch_scc1 {L0}
s_waitcnt vmcnt(0)
{f"s_sleep {opt['c67']}" if opt.get('c67') else ""}""")
        if opt.get('wt67'):
            k('s_mov_b64 exec, -1')
            w_trans(k, 44, 45, [0, 1, 2, 3], 42, True)
        k(f's_branch {LD}\n{L0}:')
        if opt.get('wte'):
            L1 = k.label('l1')
            for k2 in range(8):
                k(f'buffer_load_dword v{4+k2}, v60, s[8:11], s{46+k2//3} offen offset:{(k2%3)*TP+(0 if opt.get("ip") else 4*(k2&1))} sc1')
            k('s_mov_b64 exec, -1')
            w_trans(k, 44, 45, list(range(opt['wte'])), 42, True)
            k(f's_mov_b64 exec, vcc\ns_branch {L1}')
        k(f'{LP}:')
    else:
      k(f"""v_cmp_gt_u32 vcc, 321, v0
s_mov_b64 s[44:45], vcc
s_cmp_lt_u32 s34, 6
s_cbranch_scc1 {GO}
s_waitcnt vmcnt(0)""")
      if opt.get('c67'): k(f's_sleep {opt["c67"]}')
      q.copy()(CP[0], None, 124)
      k(f"""s_mov_b64 exec, 0
s_branch {SK0 if WT0 else SKIP}
{GO}:
s_mov_b64 exec, s[44:45]
s_mov_b32 s43, {SPIN}
{LP}:""")
    for k2 in range(8):
        k(f'buffer_load_dword v{4+k2}, v60, s[8:11], s{46+k2//3} offen offset:{(k2%3)*TP+(0 if opt.get("ip") else 4*(k2&1))} sc1')
    if L1: k(f'{L1}:')
    CHK = """v_and_b32 v12, v4, v5
v_and_b32 v13, v6, v7
v_and_b32 v14, v8, v9
v_and_b32 v15, v10, v11
v_and_b32 v12, v12, v13
v_and_b32 v14, v14, v15
v_and_b32 v12, 1, v12
v_and_b32 v12, v12, v14
v_cmp_eq_u32 vcc, 0, v12""" if opt.get('ip') else """v_max3_u32 v12, v4, v5, v6
v_max3_u32 v13, v7, v8, v9
v_max3_u32 v12, v12, v10, v11
v_max_u32 v12, v12, v13
v_cmp_eq_u32 vcc, -1, v12"""
    k(f"""s_waitcnt vmcnt(0)
{CHK}
s_cbranch_vccz {LD}
{f"s_sleep {opt['usl']}" if opt.get('usl') else ""}
s_sub_u32 s43, s43, 1
s_cmp_lg_u32 s43, 0
s_cbranch_scc1 {LP}
{LD}:""")
    st(k, 4, 5); st(k, 0, 1); st(k, 8, 8)
    if UNI:
        k('s_mov_b64 exec, -1')
        if opt.get('xs') or opt.get('wte') or opt.get('wt67'): k('s_waitcnt lgkmcnt(0)')
        if opt.get('ob3'): k('s_barrier')
        q(CP[0], None, 124)
        i0 = len(k.lines)
    elif CP[0] and post:
        k('s_mov_b64 exec, -1')
        q(CP[0], None, 124)
        k('s_mov_b64 exec, s[44:45]')
    for k2 in range(8):
        k(f'v_lshlrev_b32 v{20+2*k2}, 16, v{4+k2}\nv_and_b32 v{21+2*k2}, 0xffff0000, v{4+k2}')
    for k2 in range(8):
        if k2 == 0:
            k('v_mov_b32 v4, v20\nv_mov_b32 v5, v21')
        else:
            smul(k, 4 + 2 * k2, 20 + 2 * k2, 16 + 2 * k2, 42 + 2 * (k2 & 1), conj=True)
    T = fft8(k, 4, 20, True, 40)
    if WT0:
        k(f'{SK0}:\ns_waitcnt lgkmcnt(0)\ns_barrier\ns_cbranch_execz {SKIP}')
    for n in range(8):
        k(f"""v_cvt_pk_bf16_f32 v{4+2*n}, v{T[n]}, v{T[n]+1}
v_cvt_pk_bf16_f32 v{5+2*n}, v{T[n]}, -v{T[n]+1}
ds_write_b32 v57, v{4+2*n} offset:{n*NP}
ds_write_b32 v59, v{5+2*n} offset:{n*NP}""")
    k(f"""{SKIP}:
s_mov_b64 exec, -1""")
    q(CP[1], None, 124)
    k(f"""s_waitcnt lgkmcnt(0)
s_barrier
ds_read_b128 v[4:7], v62
ds_read_b128 v[8:11], v62 offset:64""")
    if opt.get('kw0'): i0 = len(k.lines)
    q(CP[2], None, 124)
    k('s_waitcnt lgkmcnt(1)')
    for u in range(2):
        if u == 1: k('s_waitcnt lgkmcnt(0)')
        for t in range(2):
            k(f'{MFMA} {vr(12+16*u+8*t,4)}, {vr(4+4*u,4)}, {vr(64+8*t,4)}, 0')
            k(f'{MFMA} {vr(16+16*u+8*t,4)}, {vr(4+4*u,4)}, {vr(68+8*t,4)}, 0')
    q(CP[3], None, 124)
    for i in range(0, 16, 2):
        k(f'v_pk_fma_f32 {vr(12+i,2)}, {vr(28+i,2)}, v[62:63], {vr(12+i,2)} op_sel:[0,1,0] op_sel_hi:[1,1,1]')
    for t in range(2):
        cmul_planar(k, 12 + 8 * t, 16 + 8 * t, 80 + 8 * t, 84 + 8 * t, 28, 32, 36)
        k(f"""v_cvt_pk_bf16_f32 v{4+4*t}, v28, v29
v_cvt_pk_bf16_f32 v{5+4*t}, v30, v31
v_cvt_pk_bf16_f32 v{6+4*t}, v32, v33
v_cvt_pk_bf16_f32 v{7+4*t}, v34, v35""")
    if LEAN:
        k(f'''{MFMA} v[20:23], v[4:7], v[100:103], 0
{MFMA} v[12:15], v[4:7], v[96:99], 0
{MFMA} v[20:23], v[8:11], v[104:107], v[20:23]
{MFMA} v[16:19], v[8:11], v[96:99], 0
v_pk_add_f32 v[12:13], v[12:13], {vr(XP5[0],2)}
v_pk_add_f32 v[14:15], v[14:15], {vr(XP5[1],2)}
v_mov_b32_dpp v20, v22 quad_perm:[0,1,2,3] row_mask:0xf bank_mask:0xc
v_mov_b32_dpp v21, v23 quad_perm:[0,1,2,3] row_mask:0xf bank_mask:0xc
v_pk_add_f32 v[28:29], v[12:13], v[14:15]
v_pk_mul_f32 v[30:31], v[12:13], v[12:13]
v_pk_add_f32 v[16:17], v[16:17], {vr(XP5[2],2)}
v_pk_add_f32 v[18:19], v[18:19], {vr(XP5[3],2)}
v_pk_add_f32 v[20:21], v[20:21], {vr(XP5[4],2)}
v_pk_fma_f32 v[30:31], v[14:15], v[14:15], v[30:31]
v_pk_add_f32 v[32:33], v[16:17], v[18:19]
v_pk_mul_f32 v[34:35], v[16:17], v[16:17]
v_pk_add_f32 v[28:29], v[28:29], v[20:21]
v_pk_fma_f32 v[30:31], v[20:21], v[20:21], v[30:31]
v_pk_fma_f32 v[34:35], v[18:19], v[18:19], v[34:35]
v_pk_add_f32 v[28:29], v[28:29], v[32:33]
v_pk_add_f32 v[30:31], v[30:31], v[34:35]
v_add_f32 v28, v28, v29
v_add_f32 v30, v30, v31''')
        j0 = len(k.lines)
        wave_reduce2(k, 28, 30, 36, 37)
        for i in range(5): k.lines.insert(j0 + 3 * i, f'v_cvt_pk_bf16_f32 v{4+i}, v{12+2*i}, v{13+2*i}')
        ln_stats(k, 36, 37, 640, 28, 30, 32)
        ln_apply2(k, 12, 10, 28, 30, 40)
        HS = """buffer_store_dwordx4 v[4:7], v52, s[52:55], s35 offen sc1
buffer_store_dword v8, v53, s[52:55], s35 offen sc1"""
    else:
        for v in range(2):
            for t in range(2):
                k(f'{MFMA} {vr(12+8*v+4*t,4)}, {vr(4+4*t,4)}, {vr(96+4*v,4)}, 0')
        q(CP[4], None, 124)
        if UNI and opt.get('kwe', 1) == 0: weave_in(k, i0, q, KW[2], None, 124)
        for i in range(8):
            k(f'v_lshlrev_b32 v{28+2*i}, 16, v{104+i}\nv_and_b32 v{29+2*i}, 0xffff0000, v{104+i}')
        for i in range(8):
            k(f'v_cvt_pk_bf16_f32 v{4+i}, v{12+2*i}, v{13+2*i}')
        for i in range(8):
            k(f'v_lshlrev_b32 v{12+2*i}, 16, v{4+i}\nv_and_b32 v{13+2*i}, 0xffff0000, v{4+i}')
        for i in range(8):
            k(f'v_pk_add_f32 {vr(12+2*i,2)}, {vr(12+2*i,2)}, {vr(28+2*i,2)}')
        for i in range(8):
            k(f'v_cvt_pk_bf16_f32 v{4+i}, v{12+2*i}, v{13+2*i}')
        HS = """buffer_store_dwordx4 v[4:7], v52, s[52:55], s35 offen sc1
    buffer_store_dwordx4 v[8:11], v53, s[52:55], s35 offen sc1"""
        if not opt.get('hd'): k(HS)
        for i in range(8):
            k(f'v_lshlrev_b32 v{12+2*i}, 16, v{4+i}\nv_and_b32 v{13+2*i}, 0xffff0000, v{4+i}')
        k("""v_pk_add_f32 v[28:29], v[12:13], v[14:15]
    v_pk_mul_f32 v[30:31], v[12:13], v[12:13]
    v_pk_add_f32 v[32:33], v[16:17], v[18:19]
    v_pk_mul_f32 v[34:35], v[14:15], v[14:15]""")
        for i in range(2, 8):
            k(f'v_pk_fma_f32 {vr(30+4*(i&1),2)}, {vr(12+2*i,2)}, {vr(12+2*i,2)}, {vr(30+4*(i&1),2)}')
            if i >= 4:
                k(f'v_pk_add_f32 {vr(28+4*(i&1),2)}, {vr(28+4*(i&1),2)}, {vr(12+2*i,2)}')
        k("""v_pk_add_f32 v[28:29], v[28:29], v[32:33]
    v_pk_add_f32 v[30:31], v[30:31], v[34:35]
    v_add_f32 v28, v28, v29
    v_add_f32 v30, v30, v31""")
        wave_reduce2(k, 28, 30, 36, 37)
        ln_stats(k, 36, 37, 640, 28, 30, 32)
        ln_apply(k, 12, 16, 28, 30, 40)
    if UNI and opt.get('kwe', 1) == 1: weave_in(k, i0, q, KW[2], None, 124)
    assert not q.ops
    if not fused: srd_from(k, 68, 40, 41, WS_FL, FL_BYTES)
    W2 = 'ds_write_b32 v120, v44' if LEAN else '''s_mov_b32 exec_lo, 0x000f000f
s_mov_b32 exec_hi, 0x000f000f
ds_write_b128 v112, v[44:47] offset:1024
s_mov_b64 exec, -1'''
    k(f"""ds_write_b128 v112, v[40:43]
{W2}
s_waitcnt lgkmcnt(0)
s_barrier
ds_read_b128 v[40:43], v113
{"ds_read_b128 v[44:47], v115" if G1S else f"ds_read_b128 v[44:47], v113 offset:{4*NP+3*256}"}
s_waitcnt lgkmcnt(1)
buffer_store_dwordx4 v[40:43], v3, s[60:63], s59 offen sc1
s_waitcnt lgkmcnt(0)
buffer_store_dwordx4 v[44:47], v3, s[60:63], s49 offen sc1
v_mov_b32 v114, v124""")
    if opt.get('hd'): k(HS)
    st(k, 4, 6); st(k, 0, 2); st(k, 8, 9)


def poll2(k, loads, chk, sc, sl=0):
    LP = k.label('lp'); LD = k.label('ld')
    k(f'''s_mov_b32 s{sc}, {SPIN}
{LP}:
{loads}
s_waitcnt vmcnt(0)
{chk}
s_cbranch_vccz {LD}
{f"s_sleep {sl}" if sl else ""}
s_sub_u32 s{sc}, s{sc}, 1
s_cmp_lg_u32 s{sc}, 0
s_cbranch_scc1 {LP}
{LD}:''')


def flag_poll(k, sf, sp, n, sl=0, d0=0, part=3, fs=None):
    if part & 1:
        k(f'''v_lshrrev_b32 v10, 4, v3
v_lshlrev_b32 v10, {FS if fs is None else fs}, v10
s_mov_b64 exec, 1
v_mov_b32 v8, 1
buffer_store_dword v8, v10, s[68:71], s{sf} offen sc1''')
    if part & 2:
        k(f's_mov_b64 exec, {hex((1 << n) - 1)}')
        if d0: k(f's_sleep {d0}')
        poll2(k, f'buffer_load_dword v9, v10, s[68:71], s{sp} offen sc1', 'v_cmp_eq_u32 vcc, 0, v9', 43, sl)
    k('s_mov_b64 exec, -1')


def ph_g1(k, opt, DONE, wb, fused=False):
    L = {(g, z): k.label(f'g{g}z{z}') for g in range(2) for z in range(2)}
    WQ = opt.get('WQ', [32, 0, 8, 15])
    k(f's_lshl_b32 s49, s3, {FS}')
    g1id(k, 3, 35)
    k(f'''s_lshr_b32 s35, s3, 4
s_bfe_u32 s36, s3, 0x30001
s_and_b32 s37, s3, 1
s_and_b32 s38, s34, 3
s_lshl_b32 s39, s35, 2
s_add_u32 s39, s39, s38
v_and_b32 v2, 63, v0
v_and_b32 v6, 15, v2
v_lshrrev_b32 v7, 4, v2''')
    if wb: k('v_mov_b32 v88, v114')
    HP0 = opt.get('hp0', 10240)
    srd_from(k, 8, 40, 41, WS_HN, 0x300000)
    k(f'''v_lshlrev_b32 v9, 3, v2
v_lshrrev_b32 v8, 2, v6
v_and_b32 v10, 3, v6
v_mul_u32_u24 v1, {HP0}, v8
v_lshl_add_u32 v1, v7, 6, v1
v_lshl_add_u32 v1, v10, 4, v1
v_add_u32 v2, {4*HP0}, v1
s_lshr_b32 s44, s39, 1
s_mul_i32 s44, s44, {8*HP0}
s_and_b32 s45, s38, 1
s_mul_i32 s45, s45, 5120
s_add_u32 s44, s44, s45
s_add_u32 s45, s44, 4096
v_add_u32 v4, 57344, v3
v_add_u32 v5, 114688, v3''')
    srd_from(k, 12, 40, 41, WS_Z1, A2_BYTES)
    srd_from(k, 16, 40, 41, WS_Z2, Z2N_BYTES)
    srd_from(k, 20, 40, 41, WS_PX, PX_BYTES)
    k(f'''s_and_b32 s47, s3, 15
s_lshl_b32 s47, s47, 4
s_add_u32 s47, s47, s35
s_lshl_b32 s47, s47, {FS}
s_add_u32 s47, s47, {FL2}
s_lshr_b32 s42, s34, 2
s_cmp_eq_u32 s42, s37
s_cselect_b32 s43, 1, 0
s_lshl_b32 s42, s42, 1
s_add_u32 s42, s42, s43
s_cmp_eq_u32 s42, 1
s_cbranch_scc1 {L[0,1]}
s_cmp_eq_u32 s42, 2
s_cbranch_scc1 {L[1,0]}
s_cmp_eq_u32 s42, 3
s_cbranch_scc1 {L[1,1]}''')
    PD = opt.get('PD', 5); NA = PD + 1
    assert 40 + 8 * NA <= 88
    AR = lambda kk, u: vr(40 + 8 * (kk % NA) + 4 * u, 4)
    ACC = lambda u, n: 96 + ((n & 3) * 2 + u) * 4

    def aload(kk, u, v):
        if kk >= 20: return
        k(f'buffer_load_dwordx4 {AR(kk,u)}, v{1+u}, s[8:11], s{44+kk//16} offen offset:{256*(kk%16)}'); v.issue(f'a{kk}')
    NB = 8; LA = opt.get('LA', 6)
    SC = opt.get('gsc', 1)

    def tail(z2, wq, rest):
        if not fused:
            k(f's_branch {DONE}'); return
        if opt.get('pw'):
            assert not rest and not wq.ops
            F2S = opt.get('f2s', 5); FZS = opt.get('fzs', 5)
            if z2:
                k(f'''s_lshl_b32 s47, s36, 3
s_lshr_b32 s42, s39, 4
s_add_u32 s47, s47, s42
s_and_b32 s42, s39, 1
s_lshl_b32 s42, s42, 2
s_add_u32 s47, s47, s42
s_lshl_b32 s47, s47, 4
s_and_b32 s42, s39, 14
s_add_u32 s47, s47, s42
s_add_u32 s47, s47, s37
s_lshl_b32 s47, s47, {F2S}
s_add_u32 s47, s47, {FL2}''')
            else:
                k(f'''s_lshl_b32 s47, s39, 4
s_and_b32 s42, s3, 15
s_add_u32 s47, s47, s42
s_lshl_b32 s47, s47, {FZS}
s_add_u32 s47, s47, {FLU}''')
            map_g2(k)
            k(f'''s_load_dwordx2 s[24:25], s[0:1], 48
s_lshl_b32 s44, s36, 3
s_add_u32 s44, s44, s34
s_lshl_b32 s44, s44, {4+F2S}
s_add_u32 s44, s44, {FL2}
s_waitcnt vmcnt(0)''')
            st(k, 0, 5)
            flag_poll(k, 47, 44, 16, opt.get('g2sl', 0), opt.get('g2d', 0) if z2 else 0, fs=F2S)
            k(f's_waitcnt lgkmcnt(0)\ns_branch {DONE}')
            return
        map_g2(k)
        k('s_load_dwordx2 s[24:25], s[0:1], 48')
        if not z2 and not wq.ops and rest and opt.get('wte', 1) and not W128:
            w_trans(k, 12, 13, rest); rest = []
        k('s_waitcnt vmcnt(0)')
        st(k, 0, 5)
        if z2: k('s_setprio 0')
        if not z2 and not wq.ops and rest and not W128:
            w_trans(k, 12, 13, rest); rest = []
        if W128: assert not wq.ops and not (z2 and rest)
        if not z2: wq(99, None, 88)
        k('s_barrier')
        if z2: wq(99, None, 88)
        NP2 = k.label('np2'); NP3 = k.label('np3')
        if not z2:
            k(f's_cmp_lg_u32 s38, 0\ns_cbranch_scc1 {NP2}')
            flag_poll(k, 47, 44, 32, part=1)
            k(f'{NP2}:')
        if rest:
            k('s_waitcnt vmcnt(0)')
            w_trans(k, 12, 13, rest)
        if not z2:
            k(f'''s_cmp_lg_u32 s38, 0
s_cbranch_scc1 {NP3}
s_lshl_b32 s44, s36, {5+FS}
s_add_u32 s44, s44, {FL2}''')
            flag_poll(k, 47, 44, 32, opt.get('g2sl', 0), opt.get('g2d', 0) if not rest else 0, part=2)
            k(f'{NP3}:')
        k('s_waitcnt lgkmcnt(0)\ns_barrier')
        k(f's_branch {DONE}')

    def path(grp, z2):
        vm = Cnt('vmcnt', 63)
        wq = wb.copy() if wb else None
        tiles = [0, 1, 2, 3] if grp == 0 else [4, 5, 6]
        NT = len(tiles)
        order = [(kk, n) for kk in range(20) for n in tiles]
        k('s_waitcnt vmcnt(0)\ns_barrier')
        st(k, 1, 3); st(k, 4, 7)
        rest = [] if opt.get('now') else list(range(opt.get('wt0', 0), 4))
        n1 = opt.get('wt1', [0, 0])[z2] if not wq.ops else 0
        if W128: n1 = min(opt['wt1'][z2], (32 - len(wq.ops)) // 8)
        now, rest = rest[:n1], rest[n1:]
        if z2:
            NPL = k.label('npl'); NPM = k.label('npm')
            k(f'''s_setprio {opt.get('zprio', 2)}
s_lshl_b32 s42, s35, {4+FS}
s_mov_b32 s46, s49
s_cmp_lg_u32 s38, 0
s_cbranch_scc1 {NPM}''')
            flag_poll(k, 46, 42, 16, part=1)
            k(f'{NPM}:')
            w_trans(k, 12, 13, now, 48)
            k(f's_cmp_lg_u32 s38, 0\ns_cbranch_scc1 {NPL}')
            flag_poll(k, 46, 42, 16, opt.get('g1sl', 0), opt.get('g1d', 0) if not now else 0, part=2)
            k(f'{NPL}:')
        else:
            w_trans(k, 12, 13, now, 48)
            if wq: wq(WQ[0], vm, 88)
        k('s_waitcnt lgkmcnt(0)\ns_barrier')
        st(k, 4, 8)
        st(k, 1, 4); st(k, 0, 3)
        if not z2 and opt.get('zd'): k(f's_sleep {opt["zd"]}')
        for kk in range(PD):
            for u in range(2): aload(kk, u, vm)

        def rdB(f):
            if f >= len(order): return
            kk, n = order[f]
            a = BB + kk * 7168 + n * 1024
            k(f'ds_read_b128 {vr(8+4*(f%NB),4)}, v{3+a//57344} offset:{a%57344}')
        for f in range(LA): rdB(f)
        for f, (kk, n) in enumerate(order):
            x = vm.wait(f'a{kk}')
            if x: k(x)
            if n == tiles[0] and kk in (0, 10): st(k, 1, 5 + kk // 10)
            rem = min(LA - 1, len(order) - 1 - f)
            k(f's_waitcnt lgkmcnt({rem})')
            b = vr(8 + 4 * (f % NB), 4)
            for u in range(2):
                acc = vr(ACC(u, n), 4)
                c = '0' if kk == 0 else acc
                if z2: k(f'{MFMA} {acc}, {AR(kk,u)}, {b}, {c}')
                else: k(f'{MFMA} {acc}, {b}, {AR(kk,u)}, {c}')
            rdB(f + LA)
            i = f % NT
            if i < 2: aload(kk + PD, i, vm)
            if wq and kk >= WQ[3]:
                c = WQ[1 + z2]
                wq((c * (i + 1)) // NT - (c * i) // NT, vm, 88)
        st(k, 1, 7); st(k, 0, 4); st(k, 4, 9)
        k(f'v_mov_b32 v4, {fbits(C1)}\nv_mov_b32 v5, {fbits(C0)}')
        if not z2:
            k(f'''s_lshr_b32 s42, s39, 1
s_lshl_b32 s42, s42, 3
s_add_u32 s42, s42, s36
s_lshl_b32 s42, s42, 1
s_and_b32 s43, s39, 1
s_add_u32 s42, s42, s43
s_lshl_b32 s42, s42, 13
s_add_u32 s43, s42, 4096
v_lshrrev_b32 v2, 1, v3''')
            units = [(u, p) for p in ((0, 1) if grp == 0 else (2,)) for u in range(2)]
            for i, (u, p) in enumerate(units):
                o = 12 + 4 * (i & 1)
                for h in range(2):
                    a = ACC(u, 2 * p + h)
                    k(f'v_cvt_pk_bf16_f32 v{8+2*h}, v{a}, v{a+1}\nv_cvt_pk_bf16_f32 v{9+2*h}, v{a+2}, v{a+3}')
                gelu_pk(k, 8, 8, 20, 28, o, 4, sc=(SC > 1))
                k(f'buffer_store_dwordx4 {vr(o,4)}, v3, s[12:15], s{42+u} offen offset:{1024*p} sc1')
            if grp == 1:
                for u in range(2):
                    a = ACC(u, 6)
                    k(f'v_cvt_pk_bf16_f32 v{8+2*u}, v{a}, v{a+1}\nv_cvt_pk_bf16_f32 v{9+2*u}, v{a+2}, v{a+3}')
                gelu_pk(k, 8, 8, 20, 28, 12, 4, sc=(SC > 1))
                for u in range(2):
                    k(f'buffer_store_dwordx2 {vr(12+2*u,2)}, v2, s[12:15], s{42+u} offen offset:3072 sc1')
            st(k, 1, 8)
            tail(False, wq, rest)
            return
        S = 72; Q = 80
        SK = k.label('sk')
        for i, n in enumerate(tiles):
            if n == 5: k(f's_cmp_eq_u32 s36, 7\ns_cbranch_scc1 {SK}')
            for r in range(4): k(f'v_cvt_pk_bf16_f32 v{8+r}, v{ACC(0,n)+r}, v{ACC(1,n)+r}')
            k(f'''v_permlane32_swap_b32 v8, v10
v_permlane32_swap_b32 v9, v11
v_permlane16_swap_b32 v8, v9
v_permlane16_swap_b32 v10, v11''')
            gelu_pk(k, 8, 8, 20, 28, 12, 4, tr=True, sc=(SC > 0))
            d = 40 + 8 * i
            for r in range(4):
                k(f'v_lshlrev_b32 v{d+2*r}, 16, v{12+r}\nv_and_b32 v{d+1+2*r}, 0xffff0000, v{12+r}')
            for e in range(8):
                if i == 0: k(f'v_mul_f32 v{Q+e}, v{d+e}, v{d+e}\nv_mov_b32 v{S+e}, v{d+e}')
                else: k(f'v_add_f32 v{S+e}, v{S+e}, v{d+e}\nv_fmac_f32 v{Q+e}, v{d+e}, v{d+e}')
        k(f'{SK}:')
        V = [0] * 16
        for e in range(8):
            V[2 * e] = S + e; V[2 * e + 1] = Q + e
        for i in range(8):
            k(f'v_add_f32_dpp v{V[i]}, v{V[i]}, v{V[i]} row_ror:8 row_mask:0xf bank_mask:0x3')
        for i in range(8):
            k(f'v_add_f32_dpp v{V[i]}, v{V[i+8]}, v{V[i+8]} row_ror:8 row_mask:0xf bank_mask:0xc')
        for i in range(4):
            k(f'v_add_f32_dpp v{V[i]}, v{V[i]}, v{V[i]} row_half_mirror row_mask:0xf bank_mask:0x5')
        for i in range(4):
            k(f'v_add_f32_dpp v{V[i]}, v{V[i+4]}, v{V[i+4]} row_half_mirror row_mask:0xf bank_mask:0xa')
        for m in ('quad_perm:[1,0,3,2]', 'quad_perm:[2,3,0,1]'):
            for i in range(4):
                k(f'v_add_f32_dpp v{V[i]}, v{V[i]}, v{V[i]} {m} row_mask:0xf bank_mask:0xf')
        k(f'''s_mov_b32 vcc_lo, 0xaaaaaaaa
s_mov_b32 vcc_hi, 0xaaaaaaaa
v_cndmask_b32 v8, v{V[0]}, v{V[1]}, vcc
v_cndmask_b32 v9, v{V[2]}, v{V[3]}, vcc
s_mov_b32 vcc_lo, 0xcccccccc
s_mov_b32 vcc_hi, 0xcccccccc
v_cndmask_b32 v8, v8, v9, vcc
s_lshl_b32 s42, s39, 12
s_and_b32 s43, s3, 15
s_lshl_b32 s43, s43, 8
s_add_u32 s43, s43, s42
v_lshrrev_b32 v2, 2, v3
buffer_store_dword v8, v2, s[20:23], s43 offen sc1
v_lshrrev_b32 v9, 2, v6
v_and_b32 v10, 3, v6
v_lshlrev_b32 v9, 8, v9
v_lshl_add_u32 v9, v7, 6, v9
v_lshl_add_u32 v1, v10, 4, v9''')
        st(k, 1, 8)
        LP = k.label('lp'); LD = k.label('ld')
        k(f'''s_lshl_b32 s44, s36, 3
s_lshr_b32 s45, s39, 4
s_add_u32 s44, s44, s45
s_and_b32 s45, s39, 1
s_lshl_b32 s45, s45, 2
s_add_u32 s44, s44, s45
s_mul_i32 s44, s44, 56
s_bfe_u32 s45, s39, 0x30001
s_add_u32 s44, s44, s45
s_add_u32 s44, s44, {8*tiles[0]}
s_lshl_b32 s44, s44, 10
v_mov_b32 v4, {fbits(1.0/864)}
s_mov_b32 s43, {SPIN}''')
        if rest and wq and not wq.ops and opt.get('wtp', 1):
            k('s_waitcnt vmcnt(1)')
            w_trans(k, 8, 9, rest, 46); rest = []
        elif opt.get('pxd'): k(f"s_sleep {opt['pxd']}")
        k(f'{LP}:')
        for i in range(4): k(f'buffer_load_dwordx4 {vr(8+4*i,4)}, v1, s[20:23], s42 offen offset:{1024*i} sc1')
        k('s_waitcnt vmcnt(2)')
        k('v_max3_u32 v24, v8, v9, v10\nv_max3_u32 v25, v11, v12, v13\nv_max3_u32 v24, v24, v14, v15')
        for r in range(4): k(f'v_add_f32 v{28+r}, v{8+r}, v{12+r}')
        k('s_waitcnt vmcnt(0)')
        k('''v_max3_u32 v25, v25, v16, v17
v_max3_u32 v24, v24, v18, v19
v_max3_u32 v25, v25, v20, v21
v_max3_u32 v24, v24, v22, v23
v_max_u32 v24, v24, v25
v_cmp_eq_u32 vcc, -1, v24''')
        for r in range(4): k(f'v_add_f32 v{32+r}, v{16+r}, v{20+r}')
        k(f'''s_cbranch_vccz {LD}
{f"s_sleep {opt['pxs']}" if opt.get('pxs') else ""}
s_sub_u32 s43, s43, 1
s_cmp_lg_u32 s43, 0
s_cbranch_scc1 {LP}
{LD}:''')
        st(k, 1, 9); st(k, 0, 9)
        for r in range(4): k(f'v_add_f32 v{28+r}, v{28+r}, v{32+r}')
        for m in ('row_ror:4', 'row_ror:8'):
            for r in range(4): k(f'v_add_f32_dpp v{28+r}, v{28+r}, v{28+r} {m} row_mask:0xf bank_mask:0xf')
        for r in range(4): k(f'v_mul_f32 v{28+r}, v{28+r}, v4')
        k(f'''v_fma_f32 v29, -v28, v28, v29
v_fma_f32 v31, -v30, v30, v31
v_max_f32 v29, 0, v29
v_max_f32 v31, 0, v31
v_cvt_pk_bf16_f32 v12, v28, v30
v_cvt_pk_bf16_f32 v13, v29, v31
v_lshlrev_b32 v8, 16, v12
v_and_b32 v9, 0xffff0000, v12
v_lshlrev_b32 v10, 16, v13
v_and_b32 v11, 0xffff0000, v13
v_add_f32 v10, 0x3727c5ac, v10
v_add_f32 v11, 0x3727c5ac, v11
v_cvt_pk_bf16_f32 v13, v10, v11
v_lshlrev_b32 v10, 16, v13
v_and_b32 v11, 0xffff0000, v13
v_sqrt_f32 v10, v10
v_sqrt_f32 v11, v11''')
        for e in range(8):
            k(f'v_mov_b32_dpp v{16+e}, v{8+(e&1)} quad_perm:[{e>>1},{e>>1},{e>>1},{e>>1}] row_mask:0xf bank_mask:0xf')
        k(f'''v_cvt_pk_bf16_f32 v13, v10, v11
v_lshlrev_b32 v10, 16, v13
v_and_b32 v11, 0xffff0000, v13
v_rcp_f32 v10, v10
v_rcp_f32 v11, v11''')
        for i in range(NT):
            d = 40 + 8 * i
            for e in range(0, 8, 2):
                k(f'v_pk_add_f32 {vr(d+e,2)}, {vr(d+e,2)}, {vr(16+e,2)} neg_lo:[0,1] neg_hi:[0,1]')
            if i == 0:
                for e in range(8):
                    k(f'v_mov_b32_dpp v{24+e}, v{10+(e&1)} quad_perm:[{e>>1},{e>>1},{e>>1},{e>>1}] row_mask:0xf bank_mask:0xf')
            o = 72 + 4 * i
            for r in range(4): k(f'v_cvt_pk_bf16_f32 v{o+r}, v{d+2*r}, v{d+2*r+1}')
            for r in range(4): k(f'v_lshlrev_b32 v{d+2*r}, 16, v{o+r}\nv_and_b32 v{d+1+2*r}, 0xffff0000, v{o+r}')
            for e in range(0, 8, 2):
                k(f'v_pk_mul_f32 {vr(d+e,2)}, {vr(d+e,2)}, {vr(24+e,2)}')
            for r in range(4): k(f'v_cvt_pk_bf16_f32 v{o+r}, v{d+2*r}, v{d+2*r+1}')
            k(f'buffer_store_dwordx4 {vr(o,4)}, v3, s[16:19], s44 offen sc1')
            if i < NT - 1: k('s_add_u32 s44, s44, 8192')
        tail(True, wq, rest)
    for g in range(2):
        for z in range(2):
            k(f'{L[g,z]}:')
            path(g, z)


def ph_g1s(k, opt, DONE, wb):
    assert W128 and not (wb and wb.ops)
    LH = k.label('h1')
    k(f's_lshl_b32 s49, s3, {FS}')
    g1id(k, 3, 35)
    k(f'''s_lshr_b32 s35, s3, 4
s_bfe_u32 s36, s3, 0x30001
s_and_b32 s37, s3, 1
s_and_b32 s38, s34, 3
s_lshl_b32 s39, s35, 2
s_add_u32 s39, s39, s38
s_lshr_b32 s46, s34, 2
v_and_b32 v2, 63, v0
v_and_b32 v6, 15, v2
v_lshrrev_b32 v7, 4, v2''')
    srd_from(k, 8, 40, 41, WS_HN, HN_BYTES)
    k(f'''v_lshrrev_b32 v8, 3, v6
v_and_b32 v10, 3, v6
v_lshl_add_u32 v8, v8, 2, v10
v_mul_u32_u24 v1, {HP}, v8
v_lshl_add_u32 v1, v7, 5, v1
v_bfe_u32 v10, v6, 2, 1
v_lshl_add_u32 v1, v10, 4, v1
s_lshr_b32 s44, s39, 1
s_mul_i32 s44, s44, {8*HP}
s_and_b32 s45, s38, 1
s_lshl_b32 s45, s45, 1
s_add_u32 s45, s45, s46
s_mul_i32 s45, s45, 2560
s_add_u32 s44, s44, s45
v_add_u32 v4, 57344, v3
v_add_u32 v5, 114688, v3''')
    k(f'''v_lshrrev_b32 v8, 2, v6
v_and_b32 v9, 1, v6
v_lshl_add_u32 v8, v8, 1, v9
v_lshlrev_b32 v8, 2, v8
v_lshl_add_u32 v8, v7, 5, v8
v_lshrrev_b32 v10, 1, v6
v_lshlrev_b32 v10, 7, v10
v_lshl_add_u32 v10, v7, 5, v10
v_lshl_add_u32 v10, v9, 4, v10
v_lshl_add_u32 v2, v10, 16, v8
v_mov_b32 v6, {fbits(C1)}
v_mov_b32 v7, {fbits(C0)}''')
    srd_from(k, 12, 40, 41, WS_Z1, A2_BYTES)
    srd_from(k, 16, 40, 41, WS_Z2, Z2N_BYTES)
    srd_from(k, 20, 40, 41, WS_PX, PX_BYTES)
    k(f'''s_and_b32 s47, s3, 15
s_lshl_b32 s53, s47, 7
s_lshl_b32 s47, s47, 4
s_add_u32 s47, s47, s35
s_lshl_b32 s47, s47, {FS}
s_add_u32 s47, s47, {FL2}
s_lshl_b32 s52, s39, 1
s_add_u32 s52, s52, s46
s_lshl_b32 s52, s52, 11
s_add_u32 s53, s53, s52
s_lshl_b32 s54, s36, 3
s_lshr_b32 s42, s39, 4
s_add_u32 s54, s54, s42
s_and_b32 s42, s39, 1
s_lshl_b32 s42, s42, 2
s_add_u32 s54, s54, s42
s_mul_i32 s54, s54, 56
s_bfe_u32 s42, s39, 0x30001
s_add_u32 s54, s54, s42
s_lshl_b32 s42, s37, 5
s_add_u32 s54, s54, s42
s_lshl_b32 s54, s54, 1
s_add_u32 s54, s54, s46
s_lshl_b32 s54, s54, 9
s_lshr_b32 s55, s39, 1
s_lshl_b32 s55, s55, 3
s_add_u32 s55, s55, s36
s_lshl_b32 s55, s55, 1
s_and_b32 s42, s39, 1
s_add_u32 s55, s55, s42
s_lshl_b32 s55, s55, 1
s_add_u32 s55, s55, s46
s_lshl_b32 s55, s55, 12
s_cmp_eq_u32 s36, 7
s_cselect_b32 s48, 0, -1
s_lshl_b32 s42, s35, {4+FS}
s_waitcnt vmcnt(0)
s_barrier''')
    st(k, 1, 3); st(k, 4, 7)
    W4 = k.label('w4'); WJ = k.label('wj')
    NOW = opt.get('now', 0)
    WT2 = opt.get('wt2', 0)
    k(f's_cmp_ge_u32 s34, 4\ns_cbranch_scc1 {W4}')
    if not NOW: w_trans(k, 12, 13, [0, 1, 2, 3], 43)
    k(f's_branch {WJ}\n{W4}:\ns_cmp_lg_u32 s34, 4\ns_cbranch_scc1 {WJ}')
    flag_poll(k, 49, 42, 16, opt.get('g1sl', 0), opt.get('g1d', 0))
    k(f'{WJ}:\ns_waitcnt lgkmcnt(0)\ns_barrier')
    st(k, 4, 8); st(k, 1, 4); st(k, 0, 3)
    AR = lambda kk: 32 + 4 * kk
    PD = opt.get('PD', 8)

    def aload(kk, vm=None):
        if kk >= 20: return
        k(f'buffer_load_dwordx4 {vr(AR(kk),4)}, v1, s[8:11], s44 offen offset:{128*kk}')
        if vm: vm.issue(f'a{kk}')
    for kk in range(PD): aload(kk)
    if WT2 and not NOW:
        W5 = k.label('w5')
        k(f's_cmp_lt_u32 s34, 4\ns_cbranch_scc1 {W5}')
        w_trans(k, 12, 13, list(range(WT2)), 43)
        k(f's_waitcnt lgkmcnt(0)\n{W5}:')
    k(f's_cmp_eq_u32 s37, 1\ns_cbranch_scc1 {LH}')
    LA = opt.get('LA', 5); LA1 = opt.get('LA1', 6)
    SC = opt.get('gsc', 0)
    ACC = lambda i: 112 + 4 * i

    def path(hh):
        vm = Cnt('vmcnt', 63); lg = Cnt('lgkmcnt', 15)
        for kk in range(PD): vm.issue(f'a{kk}')
        tz = [0, 1, 2, 3] if hh == 0 else [4, 5, 6]
        t1 = [4, 5, 6] if hh == 0 else [0, 1, 2, 3]

        def gpass(tiles, z2, free, la, ev=None, order=None, fill=None, R=0):
            order = order or [(kk, i) for kk in range(20) for i in range(len(tiles))]
            last = {}
            for f, (kk, i) in enumerate(order): last[kk] = f
            buf = {}; nr = [0]; pend = []

            def reads(f):
                while nr[0] < len(order) and nr[0] <= f + la and free:
                    q = nr[0]; kk, i = order[q]
                    b = free.pop(0); buf[q] = b
                    a = BB + kk * 7168 + tiles[i] * 1024
                    k(f'ds_read_b128 {vr(b,4)}, v{3+a//57344} offset:{a%57344}'); lg.issue(f'b{z2}_{q}')
                    nr[0] += 1
            reads(-1)
            for f, (kk, i) in enumerate(order):
                x = vm.wait(f'a{kk}')
                if x: k(x)
                if z2 and i == 0 and kk in (0, 10): st(k, 1, 5 + kk // 10)
                x = lg.wait(f'b{z2}_{f}')
                if x: k(x)
                acc = vr(ACC(i), 4); c = '0' if kk == 0 else acc
                b = vr(buf[f], 4); a = vr(AR(kk), 4)
                k(f'{MFMA} {acc}, {a}, {b}, {c}' if z2 else f'{MFMA} {acc}, {b}, {a}, {c}')
                free += pend; pend = [buf[f]]
                if not z2 and last[kk] == f: pend.append(AR(kk))
                reads(f)
                if z2 and i == 0: aload(kk + PD, vm)
                if ev and f in ev:
                    for e in ev[f]: e()
                if fill:
                    for _ in range(R):
                        if fill and fill[0][0] <= f:
                            o = fill.pop(0)[1]
                            o() if callable(o) else k(o)
        if opt.get('zprio'): k(f's_setprio {opt["zprio"]}')
        gpass(tz, 1, [8, 12, 16, 20, 24, 28], LA)
        st(k, 1, 7); st(k, 0, 4); st(k, 4, 9)
        S = 20; Q = 8
        prs = [(0, 2), (2, 2)] if hh == 0 else [(0, 2), (2, 1)]
        for pi, (i0, nt) in enumerate(prs):
            xp = 24 + 2 * i0; a = ACC(i0); n = 4 * nt
            for h in range(2 * nt): k(f'v_cvt_pk_bf16_f32 v{xp+h}, v{a+2*h}, v{a+2*h+1}')
            if hh:
                for h in range(2 * nt):
                    if tz[i0 + h // 2] >= 5: k(f'v_and_b32 v{xp+h}, s48, v{xp+h}')
            gelu_pk(k, xp, n, a, 12, xp, 6, sc=(SC > 0))
            for h in range(2 * nt):
                k(f'v_lshlrev_b32 v{a+2*h}, 16, v{xp+h}\nv_and_b32 v{a+1+2*h}, 0xffff0000, v{xp+h}')
            if SC > 0:
                for e in range(n):
                    r = e & 3
                    if pi == 0 and e < 4: k(f'v_mul_f32 v{Q+r}, v{a+e}, v{a+e}')
                    elif pi == 0: k(f'v_add_f32 v{S+r}, v{a+r}, v{a+e}\nv_fmac_f32 v{Q+r}, v{a+e}, v{a+e}')
                    else: k(f'v_add_f32 v{S+r}, v{S+r}, v{a+e}\nv_fmac_f32 v{Q+r}, v{a+e}, v{a+e}')
            else:
                for e in range(0, n, 2):
                    r = e & 3
                    d = vr(a + e, 2); q = vr(Q + r, 2); s_ = vr(S + r, 2)
                    if pi == 0 and e < 4: k(f'v_pk_mul_f32 {q}, {d}, {d}')
                    elif pi == 0: k(f'v_pk_add_f32 {s_}, {vr(a+r,2)}, {d}\nv_pk_fma_f32 {q}, {d}, {d}, {q}')
                    else: k(f'v_pk_add_f32 {s_}, {s_}, {d}\nv_pk_fma_f32 {q}, {d}, {d}, {q}')
        V = []
        for r in range(4): V += [S + r, Q + r]
        for i in range(4): k(f'v_add_f32_dpp v{V[i]}, v{V[i]}, v{V[i]} row_ror:8 row_mask:0xf bank_mask:0x3')
        for i in range(4): k(f'v_add_f32_dpp v{V[i]}, v{V[i+4]}, v{V[i+4]} row_ror:8 row_mask:0xf bank_mask:0xc')
        for i in range(2): k(f'v_add_f32_dpp v{V[i]}, v{V[i]}, v{V[i]} row_half_mirror row_mask:0xf bank_mask:0x5')
        k('v_and_b32 v12, 0xffff, v2')
        for i in range(2): k(f'v_add_f32_dpp v{V[i]}, v{V[i+2]}, v{V[i+2]} row_half_mirror row_mask:0xf bank_mask:0xa')
        k('v_lshrrev_b32 v1, 16, v2\ns_mov_b32 vcc_lo, 0xaaaaaaaa\ns_mov_b32 vcc_hi, 0xaaaaaaaa')
        for m in ('quad_perm:[1,0,3,2]', 'quad_perm:[2,3,0,1]'):
            for i in range(2): k(f'v_add_f32_dpp v{V[i]}, v{V[i]}, v{V[i]} {m} row_mask:0xf bank_mask:0xf')
        k(f'''v_cndmask_b32 v13, v{V[0]}, v{V[1]}, vcc
buffer_store_dword v13, v12, s[20:23], s53 offen sc1''')
        vm.issue('px')
        st(k, 1, 8)
        if opt.get('zprio'): k('s_setprio 0')
        n1 = 20 * len(t1)
        PB = 32

        def pxld():
            for i in range(2): k(f'buffer_load_dwordx4 {vr(PB+4*i,4)}, v1, s[20:23], s52 offen offset:{1024*i} sc1')
        ev = {}
        PXE = opt.get('pxe', 12)
        ev[n1 - 1 - PXE] = [lambda: (pxld(), vm.issue('pl'), vm.issue('pl'))]

        class Pool(list):
            def __iadd__(self, o):
                return list.__iadd__(self, [x for x in o if x not in (32, 36)])
        gpass(t1, 0, Pool([16, 8, 20, 12]), LA1, ev)
        st(k, 1, 9)
        LP = k.label('lp'); LD = k.label('ld'); L1 = k.label('l1')
        k(f'''v_and_b32 v2, 31, v0
v_lshlrev_b32 v2, 4, v2
v_bfe_u32 v4, v0, 5, 1
v_lshl_add_u32 v2, v4, 13, v2
v_mov_b32 v4, {fbits(1.0/864)}
s_mov_b32 s43, {SPIN}
s_branch {L1}
{LP}:''')
        if opt.get('pxs'): k(f"s_sleep {opt['pxs']}")
        pxld()
        k(f'''{L1}:
s_waitcnt vmcnt(0)
v_max3_u32 v8, v32, v33, v34
v_max3_u32 v9, v35, v36, v37
v_max3_u32 v8, v8, v38, v39
v_max_u32 v8, v8, v9
v_cmp_eq_u32 vcc, -1, v8''')
        for r in range(4): k(f'v_add_f32 v{40+r}, v{32+r}, v{36+r}')
        k(f'''s_cbranch_vccz {LD}
s_sub_u32 s43, s43, 1
s_cmp_lg_u32 s43, 0
s_cbranch_scc1 {LP}
{LD}:''')
        st(k, 0, 9); st(k, 6, 1)
        for m in ('row_ror:2', 'row_ror:4', 'row_ror:8'):
            for r in range(4): k(f'v_add_f32_dpp v{40+r}, v{40+r}, v{40+r} {m} row_mask:0xf bank_mask:0xf')
        for r in range(4): k(f'v_mul_f32 v{40+r}, v{40+r}, v4')
        k(f'''v_fma_f32 v41, -v40, v40, v41
v_fma_f32 v43, -v42, v42, v43
v_max_f32 v41, 0, v41
v_max_f32 v43, 0, v43
v_cvt_pk_bf16_f32 v12, v40, v42
v_cvt_pk_bf16_f32 v13, v41, v43
v_lshlrev_b32 v8, 16, v12
v_and_b32 v9, 0xffff0000, v12
v_lshlrev_b32 v10, 16, v13
v_and_b32 v11, 0xffff0000, v13
v_add_f32 v10, 0x3727c5ac, v10
v_add_f32 v11, 0x3727c5ac, v11
v_cvt_pk_bf16_f32 v13, v10, v11
v_lshlrev_b32 v10, 16, v13
v_and_b32 v11, 0xffff0000, v13
v_sqrt_f32 v10, v10
v_sqrt_f32 v11, v11''')
        for r in range(4):
            k(f'v_mov_b32_dpp v{16+r}, v{8+(r&1)} quad_perm:[{r>>1},{r>>1},{r>>1},{r>>1}] row_mask:0xf bank_mask:0xf')
        k(f'''v_cvt_pk_bf16_f32 v13, v10, v11
v_lshlrev_b32 v10, 16, v13
v_and_b32 v11, 0xffff0000, v13
v_rcp_f32 v10, v10
v_rcp_f32 v11, v11''')
        NT = len(tz)
        D = 48
        for h in range(2 * NT):
            k(f'v_lshlrev_b32 v{D+2*h}, 16, v{24+h}\nv_and_b32 v{D+1+2*h}, 0xffff0000, v{24+h}')
        for h in range(2 * NT):
            k(f'v_pk_add_f32 {vr(D+2*h,2)}, {vr(D+2*h,2)}, {vr(16+2*(h&1),2)} neg_lo:[0,1] neg_hi:[0,1]')
        for r in range(4):
            k(f'v_mov_b32_dpp v{20+r}, v{10+(r&1)} quad_perm:[{r>>1},{r>>1},{r>>1},{r>>1}] row_mask:0xf bank_mask:0xf')
        for pi, (i0, nt) in enumerate(prs):
            hs = range(2 * i0, 2 * i0 + 2 * nt)
            for h in hs: k(f'v_cvt_pk_bf16_f32 v{24+h}, v{D+2*h}, v{D+2*h+1}')
            for h in hs: k(f'v_lshlrev_b32 v{D+2*h}, 16, v{24+h}\nv_and_b32 v{D+1+2*h}, 0xffff0000, v{24+h}')
            for h in hs: k(f'v_pk_mul_f32 {vr(D+2*h,2)}, {vr(D+2*h,2)}, {vr(20+2*(h&1),2)}')
            for h in hs: k(f'v_cvt_pk_bf16_f32 v{24+h}, v{D+2*h}, v{D+2*h+1}')
            xp = 24 + 2 * i0
            if nt == 1:
                for h in hs: k(f'v_cvt_pk_bf16_f32 v{26+h}, v{D+2*h}, v{D+2*h+1}')
            k(f'v_permlane32_swap_b32 v{xp}, v{xp+2}\nv_permlane32_swap_b32 v{xp+1}, v{xp+3}')
            if nt == 1: k('s_mov_b32 exec_hi, 0')
            k(f'buffer_store_dwordx4 {vr(xp,4)}, v2, s[16:19], s54 offen sc1')
            if nt == 1: k('s_mov_b32 exec_hi, -1')
            if pi == 0: k('s_add_u32 s54, s54, 16384')
        st(k, 6, 2)
        k('v_lshrrev_b32 v1, 1, v3')
        p1 = [(0, 2, 2048), (2, 1, 3072)] if hh == 0 else [(0, 2, 0), (2, 2, 1024)]
        for pi, (i0, nt, off) in enumerate(p1):
            o = 8 + 4 * pi; a = ACC(i0)
            for h in range(2 * nt): k(f'v_cvt_pk_bf16_f32 v{o+h}, v{a+2*h}, v{a+2*h+1}')
            gelu_pk(k, o, 4 * nt, 32 + 16 * pi, 40 + 16 * pi, o, 6, sc=(SC > 1))
            if nt == 2: k(f'buffer_store_dwordx4 {vr(o,4)}, v3, s[12:15], s55 offen offset:{off} sc1')
            else: k(f'buffer_store_dwordx2 {vr(o,2)}, v1, s[12:15], s55 offen offset:{off} sc1')
        st(k, 6, 3)
        map_g2(k)
        k('s_load_dwordx2 s[24:25], s[0:1], 48\ns_waitcnt vmcnt(0)')
        st(k, 0, 5); st(k, 6, 4)
        T4 = k.label('t4'); TJ = k.label('tj')
        k(f'''s_barrier
s_cmp_ge_u32 s34, 4
s_cbranch_scc1 {T4}
s_cmp_lg_u32 s34, 0
s_cbranch_scc1 {TJ}
s_lshl_b32 s44, s36, {5+FS}
s_add_u32 s44, s44, {FL2}''')
        flag_poll(k, 47, 44, 32, opt.get('g2sl', 0), opt.get('g2d', 0))
        k(f's_branch {TJ}\n{T4}:')
        if not NOW: w_trans(k, 12, 13, list(range(WT2, 4)), 43)
        st(k, 6, 5)
        k(f'{TJ}:\ns_waitcnt lgkmcnt(0)\ns_barrier\ns_branch {DONE}')
    path(0)
    k(f'{LH}:')
    path(1)


def ph_g1t(k, opt, DONE, wb):
    assert W128 and not (wb and wb.ops) and not G1S
    LH = k.label('h1')
    ZC = 20000; NL = '\n'
    HP0 = opt.get('hp0', 10240)
    k(f's_lshl_b32 s49, s3, {FS}')
    g1id(k, 3, 35)
    k(f'''s_lshr_b32 s35, s3, 4
s_bfe_u32 s36, s3, 0x30001
s_and_b32 s37, s3, 1
s_and_b32 s38, s34, 3
s_lshl_b32 s39, s35, 2
s_add_u32 s39, s39, s38
s_lshr_b32 s46, s34, 2
v_and_b32 v2, 63, v0
v_and_b32 v6, 15, v2
v_lshrrev_b32 v7, 4, v2''')
    srd_from(k, 8, 40, 41, WS_HN, 0x300000)
    WD5 = opt.get('wd5', 0)
    if WD5:
        k(f'''v_mov_b32 v0, v124
s_mov_b32 s74, {2048*4096}
s_mov_b32 s50, s78
s_mov_b32 s51, s79
s_cmp_ge_u32 s34, s101
s_cselect_b64 s[100:101], -1, 0''')
    k(f'''v_lshrrev_b32 v8, 2, v6
v_and_b32 v10, 3, v6
v_mul_u32_u24 v1, {HP0}, v8
v_lshl_add_u32 v1, v7, 6, v1
v_lshl_add_u32 v1, v10, 4, v1
s_and_b32 s44, s39, -2
s_add_u32 s44, s44, s46
s_mul_i32 s44, s44, {4*HP0}
s_and_b32 s45, s38, 1
s_mul_i32 s45, s45, 5120
s_add_u32 s44, s44, s45
s_add_u32 s45, s44, 4096
v_add_u32 v4, 57344, v3
v_add_u32 v5, 114688, v3''')
    k(f'''v_and_b32 v9, 1, v6
v_lshl_add_u32 v9, v8, 1, v9
v_lshlrev_b32 v9, 2, v9
v_lshl_add_u32 v9, v7, 6, v9
v_lshlrev_b32 v8, 8, v8
v_lshl_add_u32 v8, v7, 6, v8
v_lshl_add_u32 v8, v10, 4, v8
v_lshl_add_u32 v2, v8, 16, v9
v_mov_b32 v6, {fbits(C0 if GV else C1)}
v_mov_b32 v7, {fbits(C0)}
s_mov_b32 s62, {fbits(C1)}
s_mov_b32 s63, {fbits(C1)}''')
    srd_from(k, 12, 40, 41, WS_Z1, A2_BYTES)
    srd_from(k, 16, 40, 41, WS_Z2, Z2N_BYTES)
    srd_from(k, 20, 40, 41, WS_PX, PX_BYTES)
    k(f'''s_and_b32 s47, s3, 15
s_lshl_b32 s53, s47, 8
s_lshl_b32 s47, s47, 4
s_add_u32 s47, s47, s35
s_lshl_b32 s47, s47, {FS}
s_add_u32 s47, s47, {FL2}
s_lshl_b32 s52, s39, 12
s_add_u32 s53, s53, s52
s_lshl_b32 s42, s46, 5
s_add_u32 s53, s53, s42
s_lshl_b32 s54, s36, 3
s_lshr_b32 s42, s39, 4
s_add_u32 s54, s54, s42
s_and_b32 s42, s39, 1
s_lshl_b32 s42, s42, 2
s_add_u32 s54, s54, s42
s_mul_i32 s54, s54, 56
s_bfe_u32 s42, s39, 0x30001
s_add_u32 s54, s54, s42
s_lshl_b32 s42, s37, 5
s_add_u32 s54, s54, s42
s_lshl_b32 s42, s46, 4
s_add_u32 s54, s54, s42
s_lshl_b32 s54, s54, 10
s_add_u32 s56, s54, 8192
s_and_b32 s42, s37, s46
s_cmp_eq_u32 s42, 1
s_cselect_b32 s56, {BIG}, s56
s_lshr_b32 s55, s39, 1
s_lshl_b32 s55, s55, 3
s_add_u32 s55, s55, s36
s_lshl_b32 s55, s55, 1
s_and_b32 s42, s39, 1
s_add_u32 s55, s55, s42
s_lshl_b32 s55, s55, 1
s_add_u32 s55, s55, s46
s_lshl_b32 s55, s55, 12
s_cmp_eq_u32 s36, 7
s_cselect_b32 s48, 0, -1
s_cselect_b32 s59, 0xffff, -1
s_lshl_b32 s58, s38, 12
s_lshl_b32 s57, s46, 3
s_add_u32 s57, s57, s58
s_lshl_b32 s42, s46, 11
s_add_u32 s58, s58, s42
s_lshl_b32 s42, s35, {4+FS}
s_waitcnt vmcnt({2 if opt.get('hd') else 0})
s_barrier''')
    st(k, 1, 3); st(k, 4, 7)
    if opt.get('zq'): k(f'v_mov_b32 v14, {ZC}\nv_mov_b32 v15, 0\nds_write_b32 v14, v15')
    W4 = k.label('w4'); WJ = k.label('wj')
    NOW = opt.get('now', 0)
    k(f's_cmp_ge_u32 s34, 4\ns_cbranch_scc1 {W4}')
    WG_ = [0, 1, 2, 3][opt.get('wte', 0):]
    ZH = opt.get('zh')
    if ZH:
        assert opt.get('zq') and not opt.get('zw')
        W5 = k.label('w5')
        w_trans(k, 12, 13, list(range(ZH[0])), 43)
        k(f's_waitcnt lgkmcnt(0)\ns_barrier\ns_cmp_lg_u32 s34, 0\ns_cbranch_scc1 {WJ}\nv_lshrrev_b32 v10, 4, v3\nv_lshlrev_b32 v10, {FS}, v10')
        flag_poll(k, 49, 42, 16, opt.get('g1sl', 0), opt.get('g1d', 0), part=2)
        k(f's_branch {WJ}\n{W4}:\ns_cmp_lg_u32 s34, 4\ns_cbranch_scc1 {W5}')
        flag_poll(k, 49, 42, 16, part=1)
        k(f'{W5}:\ns_barrier')
        w_trans(k, 12, 13, list(range(ZH[1])), 43)
        W4 = k.label('w4')
    elif not NOW: w_trans(k, 12, 13, WG_, 43)
    WTC = opt.get('wtc')
    WT5 = k.label('w5')
    k(f's_branch {WJ}\n{W4}:\ns_cmp_lg_u32 s34, 4\ns_cbranch_scc1 {WJ if WTC is None else WT5}')
    flag_poll(k, 49, 42, 16, opt.get('g1sl', 0), opt.get('g1d', 0))
    if WTC is not None:
        k(f's_branch {WJ}\n{WT5}:')
        if WTC: k(f's_sleep {WTC}')
        srd_from(k, 28, 40, 41, WS_WO, WO8_BYTES)
        k(f'''s_and_b32 s60, s2, 1
s_lshl_b32 s60, s60, 5
s_lshr_b32 s61, s2, 3
s_add_u32 s60, s60, s61
s_mul_i32 s60, s60, {WOB}
s_sub_u32 s61, s34, 5
s_mul_i32 s61, s61, {47*128}
s_add_u32 s60, s60, s61
v_lshlrev_b32 v113, 3, v3
s_mov_b32 exec_hi, 0x7fff
buffer_load_ubyte v112, v113, s[28:31], s60 offen
s_mov_b32 exec_hi, -1''')
    k(f'{WJ}:\ns_waitcnt lgkmcnt(0)\ns_barrier')
    st(k, 4, 8); st(k, 1, 4); st(k, 0, 3)
    AR = lambda kk: 32 + 4 * kk
    PD = opt.get('PD', 8)

    def aload(kk, vm=None):
        if kk >= 20: return
        k(f'buffer_load_dwordx4 {vr(AR(kk),4)}, v1, s[8:11], s{44+kk//16} offen offset:{256*(kk%16)}')
        if vm: vm.issue(f'a{kk}')
    for kk in range(PD): aload(kk)
    ZW = opt.get('zw', 0)
    if ZW:
        L = k.label('zw')
        k(f's_cmp_lt_u32 s34, 4\ns_cbranch_scc1 {L}')
        w_trans(k, 112, 113, list(range(ZW)), 43)
        k(f'{L}:')
    k(f's_cmp_eq_u32 s37, 1\ns_cbranch_scc1 {LH}')
    LA = opt.get('LA', 5); LA1 = opt.get('LA1', 6)
    SC = opt.get('gsc', 0)
    ACC = lambda i: 112 + 4 * i
    X4 = opt.get('g3v') == 4
    ZQ = opt.get('zq', 0)
    assert not (ZQ and X4)

    def rbar(lo):
        if opt.get('nrb'): return
        L = k.label('rb')
        k(f's_cmp_lt_u32 s34, 4\ns_cbranch_scc{int(not lo)} {L}\ns_barrier')
        for g in range(opt.get('stm', 0) if lo else 0):
            k(f's_add_u32 m0, s61, {100*1024+4096*g}')
            for j in range(3 if g == 3 else 4): k(f'buffer_load_dwordx4 v3, s[28:31], s60 offen offset:{1024*j} lds')
            k('s_add_u32 s60, s60, 4096')
        k(f'{L}:')

    def path(hh):
        vm = Cnt('vmcnt', 63); lg = Cnt('lgkmcnt', 15)
        for kk in range(PD): vm.issue(f'a{kk}')
        tz = [0, 1, 2, 3] if hh == 0 else [4, 5, 6]
        t1 = [4, 5, 6] if hh == 0 else [0, 1, 2, 3]

        def gpass(tiles, z2, free, la, ev=None, keep=(), tm=0):
            order = [(kk, i) for kk in range(20) for i in range(len(tiles))]
            if tm: order = [(kk, i) for i in range(len(tiles)) for kk in range(20)]
            last = {}
            for f, (kk, i) in enumerate(order): last[kk] = f
            buf = {}; nr = [0]; pend = []

            def reads(f):
                while nr[0] < len(order) and nr[0] <= f + la and free:
                    q = nr[0]; kk, i = order[q]
                    b = free.pop(0); buf[q] = b
                    a = BB + kk * 7168 + tiles[i] * 1024
                    if X4 or ZQ: a = BB + ((20 * (7 - len(tiles)) if z2 else 0) + kk * len(tiles) + i) * 1024
                    k(f'ds_read_b128 {vr(b,4)}, v{3+a//57344} offset:{a%57344}'); lg.issue(f'b{z2}_{q}')
                    nr[0] += 1
            reads(-1)
            for f, (kk, i) in enumerate(order):
                x = vm.wait(f'a{kk}')
                if x: k(x)
                if z2 and i == 0 and kk in (0, 10): st(k, 1, 5 + kk // 10)
                x = lg.wait(f'b{z2}_{f}')
                if x: k(x)
                acc = vr(ACC(i), 4); c = '0' if kk == 0 else acc
                b = vr(buf[f], 4); a = vr(AR(kk), 4)
                k(f'{MFMA} {acc}, {a}, {b}, {c}' if z2 else f'{MFMA} {acc}, {b}, {a}, {c}')
                free.extend(pend); pend = [buf[f]]
                if not z2 and last[kk] == f and AR(kk) not in keep: pend.append(AR(kk))
                reads(f)
                if z2 and i == 0: aload(kk + PD, vm)
                if ev and f in ev:
                    for e in ev[f]: e()
        if opt.get('zprio'): k(f's_setprio {opt["zprio"]}')
        def role(lo, f):
            def g():
                L = k.label('ro')
                k(f's_cmp_lt_u32 s34, 4\ns_cbranch_scc{int(not lo)} {L}')
                f()
                k(f'{L}:')
            return g
        ev2 = {}
        if ZW:
            ZB = opt.get('zwb', [10, 2])
            for r in range(2): ev2.setdefault(ZB[r] * len(tz), []).append(role(not r, lambda: k('s_barrier')))
        gpass(tz, 1, [8, 12, 16, 20, 24, 28], LA, ev2)
        st(k, 1, 7); st(k, 0, 4); st(k, 4, 9)
        if X4:
            assert not opt.get('g2m')
            rbar(False)
            srd_from(k, 28, 40, 41, WS_WO, WO8_BYTES)
            k(f'''s_and_b32 s60, s2, 1
s_lshl_b32 s60, s60, 2
s_lshr_b32 s61, s2, 6
s_add_u32 s60, s60, s61
s_mul_i32 s60, s60, {8*WOB}
s_mul_i32 s61, s34, {15*1024}
s_add_u32 s60, s60, s61''')
        WD4 = opt.get('wd4', 0)
        def wdef(a, b, t0=12):
            SK = k.label('wd')
            k(f's_cmp_lt_u32 s34, 4\ns_cbranch_scc1 {SK}')
            if a == 0: k(f's_mov_b32 s74, {2048*4096}\ns_mov_b32 s50, s82\ns_add_u32 s51, s50, 4096')
            w_vaddr(k, t0, t0 + 1)
            for o in g2_wops()[a:b]: k(o.replace('@', f'v{t0}'))
            k(f'{SK}:')
        if WD4: wdef(0, WD4)
        dq = []
        for o in (g2_wops()[32-WD5:] if WD5 else []):
            o = o.split('\n')
            dq.append('\n'.join(['s_mov_b64 exec, s[100:101]', o[0], 's_mov_b64 exec, -1'] + o[1:]))
        dq = Bulk(k, dq)
        ig0 = len(k.lines)
        S = 20; Q = 8
        L2Z = opt.get('lean', 0) & 32
        k('v_add_u32 v1, s57, v3')
        prs = [(0, 2), (2, 2)] if hh == 0 else [(0, 2), (2, 1)]
        for pi, (i0, nt) in enumerate(prs):
            xp = 24 + 2 * i0; a = ACC(i0); n = 4 * nt
            if X4 and pi == opt.get('rbp', 1): rbar(True)
            if L2Z:
                for t in range(nt):
                    c = a + 4 * t
                    k(f'v_permlane32_swap_b32 v{c}, v{c+2}\nv_permlane32_swap_b32 v{c+1}, v{c+3}')
                for t in range(nt):
                    c = a + 4 * t
                    k(f'v_permlane16_swap_b32 v{c}, v{c+1}\nv_permlane16_swap_b32 v{c+2}, v{c+3}')
                for t in range(nt):
                    if hh and i0 + t > 0:
                        for r in range(4): k(f'v_and_b32 v{a+4*t+r}, s48, v{a+4*t+r}')
                gelu_pk(k, None, n, a, 12, xp, 6)
            elif nt == 2:
                for r in range(4): k(f'v_cvt_pk_bf16_f32 v{xp+r}, v{a+r}, v{a+4+r}')
                if hh:
                    for r in range(4): k(f'v_and_b32 v{xp+r}, s59, v{xp+r}')
                k(f'''v_permlane32_swap_b32 v{xp}, v{xp+2}
v_permlane32_swap_b32 v{xp+1}, v{xp+3}
v_permlane16_swap_b32 v{xp}, v{xp+1}
v_permlane16_swap_b32 v{xp+2}, v{xp+3}''')
                gelu_pk(k, xp, 8, a, 12, xp, 6, tr=True, sc=(SC > 0))
            else:
                k(f'''v_permlane32_swap_b32 v{a}, v{a+2}
v_permlane32_swap_b32 v{a+1}, v{a+3}
v_permlane16_swap_b32 v{a}, v{a+1}
v_permlane16_swap_b32 v{a+2}, v{a+3}''')
                for h in range(2): k(f'v_cvt_pk_bf16_f32 v{xp+h}, v{a+2*h}, v{a+2*h+1}')
                for h in range(2): k(f'v_and_b32 v{xp+h}, s48, v{xp+h}')
                gelu_pk(k, xp, 4, a, 12, xp, 6, sc=(SC > 0))
            for t in range(nt):
                k(f'ds_write_b64 v1, {vr(xp+2*t,2)} offset:{1024*(i0+t)}'); lg.issue('x')
            for h in range(0 if L2Z else 2 * nt):
                k(f'v_lshlrev_b32 v{a+2*h}, 16, v{xp+h}\nv_and_b32 v{a+1+2*h}, 0xffff0000, v{xp+h}')
            if L2Z: a = 12
            if SC > 0:
                for e in range(n):
                    r = e & 3
                    if pi == 0 and e < 4: k(f'v_mul_f32 v{Q+r}, v{a+e}, v{a+e}')
                    elif pi == 0: k(f'v_add_f32 v{S+r}, v{a+r}, v{a+e}\nv_fmac_f32 v{Q+r}, v{a+e}, v{a+e}')
                    else: k(f'v_add_f32 v{S+r}, v{S+r}, v{a+e}\nv_fmac_f32 v{Q+r}, v{a+e}, v{a+e}')
            else:
                for e in range(0, n, 2):
                    r = e & 3
                    d = vr(a + e, 2); q = vr(Q + r, 2); s_ = vr(S + r, 2)
                    if pi == 0 and e < 4: k(f'v_pk_mul_f32 {q}, {d}, {d}')
                    elif pi == 0: k(f'v_pk_add_f32 {s_}, {vr(a+r,2)}, {d}\nv_pk_fma_f32 {q}, {d}, {d}, {q}')
                    else: k(f'v_pk_add_f32 {s_}, {s_}, {d}\nv_pk_fma_f32 {q}, {d}, {d}, {q}')
        weave_in(k, ig0, dq, opt.get('wdg', 20), None, 0)
        V = []
        for r in range(4): V += [S + r, Q + r]
        for i in range(4): k(f'v_add_f32_dpp v{V[i]}, v{V[i]}, v{V[i]} row_ror:8 row_mask:0xf bank_mask:0x3')
        for i in range(4): k(f'v_add_f32_dpp v{V[i]}, v{V[i+4]}, v{V[i+4]} row_ror:8 row_mask:0xf bank_mask:0xc')
        for i in range(2): k(f'v_add_f32_dpp v{V[i]}, v{V[i]}, v{V[i]} row_half_mirror row_mask:0xf bank_mask:0x5')
        k('v_and_b32 v12, 0xffff, v2')
        for i in range(2): k(f'v_add_f32_dpp v{V[i]}, v{V[i+2]}, v{V[i+2]} row_half_mirror row_mask:0xf bank_mask:0xa')
        k('v_lshrrev_b32 v1, 16, v2\ns_mov_b32 vcc_lo, 0xaaaaaaaa\ns_mov_b32 vcc_hi, 0xaaaaaaaa')
        for m in ('quad_perm:[1,0,3,2]', 'quad_perm:[2,3,0,1]'):
            for i in range(2): k(f'v_add_f32_dpp v{V[i]}, v{V[i]}, v{V[i]} {m} row_mask:0xf bank_mask:0xf')
        k(f'''v_cndmask_b32 v13, v{V[0]}, v{V[1]}, vcc
buffer_store_dword v13, v12, s[20:23], s53 offen sc1
v_add_u32 v2, s58, v3''')
        vm.issue('px')
        if X4 and opt.get('rbp', 1) == 2: rbar(True)
        if WD4 and WD4 < 32: wdef(WD4, 32, 16)
        st(k, 1, 8)
        if opt.get('zprio'): k('s_setprio 0')
        if opt.get('zs0'):
            L = k.label('z0')
            k(f's_cmp_ge_u32 s34, 4\ns_cbranch_scc1 {L}\ns_sleep {opt["zs0"]}\n{L}:')
        n1 = 20 * len(t1)
        PB = 32; XR = 48

        def pxld():
            for i in range(4): k(f'buffer_load_dwordx4 {vr(PB+4*i,4)}, v1, s[20:23], s52 offen offset:{1024*i} sc1')

        ZS = opt.get('zs', 0)

        def xrd():
            k('s_barrier')
            for t in range(2):
                k(f'ds_read_b128 {vr(XR+4*t,4)}, v2 offset:{1024*t}')
                if not ZS: lg.issue('xr')
        if ZQ:
            assert opt.get('lean', 0) & 68 == 68 and not SC and not dq.ops
            p1 = [(0, 2, 2048), (2, 1, 3072)] if hh == 0 else [(0, 2, 0), (2, 2, 1024)]
            zg = lambda pi: gelu_pk(k, None, 4 * p1[pi][1], ACC(p1[pi][0]), 80 + 16 * pi, 72 + 4 * pi, 6)

            def pxl(PB):
                for i in range(4): k(f'buffer_load_dwordx4 {vr(PB+4*i,4)}, v1, s[20:23], s52 offen offset:{1024*i} sc1')

            def xr(XR):
                for t in range(2): k(f'ds_read_b128 {vr(XR+4*t,4)}, v2 offset:{1024*t}')

            def unp(D, XR, n):
                for h in range(n): k(f'v_lshlrev_b32 v{D+2*h}, 16, v{XR+h}\nv_and_b32 v{D+1+2*h}, 0xffff0000, v{XR+h}')

            def norm(PB, XR, D, late, pre=None):
                LP = k.label('lp'); LD = k.label('ld'); L1 = k.label('l1')
                k(f's_mov_b32 s43, {SPIN}')
                if not late:
                    k('s_waitcnt lgkmcnt(0)')
                    unp(D, XR, 8)
                if pre: pre()
                k(f's_branch {L1}\n{LP}:')
                if opt.get('pxs'): k(f"s_sleep {opt['pxs']}")
                pxl(PB)
                P = lambda i: f'v{PB+i}'
                k(f'''{L1}:
s_waitcnt vmcnt(2)
v_max3_u32 v24, {P(0)}, {P(1)}, {P(2)}
v_max3_u32 v25, {P(3)}, {P(4)}, {P(5)}
v_max3_u32 v24, v24, {P(6)}, {P(7)}''')
                for r in range(4): k(f'v_add_f32 v{28+r}, {P(r)}, {P(4+r)}')
                k(f'''s_waitcnt vmcnt(0)
v_max3_u32 v25, v25, {P(8)}, {P(9)}
v_max3_u32 v24, v24, {P(10)}, {P(11)}
v_max3_u32 v25, v25, {P(12)}, {P(13)}
v_max3_u32 v24, v24, {P(14)}, {P(15)}
v_max_u32 v24, v24, v25
v_cmp_eq_u32 vcc, -1, v24''')
                for r in range(4): k(f'v_add_f32 v{16+r}, {P(8+r)}, {P(12+r)}')
                k(f'''s_cbranch_vccz {LD}
s_sub_u32 s43, s43, 1
s_cmp_lg_u32 s43, 0
s_cbranch_scc1 {LP}
{LD}:''')
                if late: xr(XR)
                st(k, 0, 9); st(k, 6, 1)
                for r in range(4): k(f'v_add_f32 v{28+r}, v{28+r}, v{16+r}')
                for m in ('row_ror:4', 'row_ror:8'):
                    for r in range(4): k(f'v_add_f32_dpp v{28+r}, v{28+r}, v{28+r} {m} row_mask:0xf bank_mask:0xf')
                for r in range(4): k(f'v_mul_f32 v{28+r}, {fbits(1.0/864)}, v{28+r}')
                k(f'''v_fma_f32 v29, -v28, v28, v29
v_fma_f32 v31, -v30, v30, v31
v_max_f32 v29, 0, v29
v_max_f32 v31, 0, v31
v_cvt_pk_bf16_f32 v12, v28, v30
v_cvt_pk_bf16_f32 v13, v29, v31
v_lshlrev_b32 v8, 16, v12
v_and_b32 v9, 0xffff0000, v12
v_lshlrev_b32 v10, 16, v13
v_and_b32 v11, 0xffff0000, v13
v_add_f32 v10, 0x3727c5ac, v10
v_add_f32 v11, 0x3727c5ac, v11
v_cvt_pk_bf16_f32 v13, v10, v11
v_lshlrev_b32 v10, 16, v13
v_and_b32 v11, 0xffff0000, v13
v_sqrt_f32 v10, v10
v_sqrt_f32 v11, v11''')
                for e in range(8):
                    k(f'v_mov_b32_dpp v{16+e}, v{8+(e&1)} quad_perm:[{e>>1},{e>>1},{e>>1},{e>>1}] row_mask:0xf bank_mask:0xf')
                k(f'''v_cvt_pk_bf16_f32 v13, v10, v11
v_lshlrev_b32 v10, 16, v13
v_and_b32 v11, 0xffff0000, v13
v_rcp_f32 v10, v10
v_rcp_f32 v11, v11''')
                for i in range(2):
                    d = D if late else D + 8 * i
                    o = XR + 4 * i
                    if late:
                        k(f's_waitcnt lgkmcnt({1-i})')
                        unp(d, o, 4)
                    for e in range(0, 8, 2):
                        k(f'v_pk_add_f32 {vr(d+e,2)}, {vr(d+e,2)}, {vr(16+e,2)} neg_lo:[0,1] neg_hi:[0,1]')
                    if i == 0:
                        for e in range(8):
                            k(f'v_mov_b32_dpp v{24+e}, v{10+(e&1)} quad_perm:[{e>>1},{e>>1},{e>>1},{e>>1}] row_mask:0xf bank_mask:0xf')
                    for e in range(0, 8, 2):
                        k(f'v_pk_mul_f32 {vr(d+e,2)}, {vr(d+e,2)}, {vr(24+e,2)}')
                    for r in range(4): k(f'v_cvt_pk_bf16_f32 v{o+r}, v{d+2*r}, v{d+2*r+1}')
                    k(f'buffer_store_dwordx4 {vr(o,4)}, v3, s[16:19], s{54+2*i} offen sc1')
                st(k, 6, 2)

            def cadd(inc):
                k(f'v_mov_b32 v56, {ZC}\nv_mov_b32 v57, {inc}\ns_mov_b64 exec, 1\nds_add_rtn_u32 v57, v56, v57\ns_mov_b64 exec, -1')

            def cchk():
                L = k.label('nf')
                k(f'''v_readfirstlane_b32 s42, v57
s_cmp_lg_u32 s42, 7
s_cbranch_scc1 {L}
s_mov_b64 exec, 1
v_mov_b32 v0, 1
buffer_store_dword v0, off, s[68:71], s47 sc1
s_mov_b64 exec, -1
{L}:''')

            def flg(n):
                k(f's_waitcnt vmcnt({n})')
                cadd(1)
                k('s_waitcnt lgkmcnt(0)')
                cchk()
                wreg()
                if opt.get('wld') == 3: wdma()
            WDF = opt.get('wdf', 0)
            dops = [o.replace('@', 'v0') for o in g2_wops()[32-WDF:]] if WDF else []
            if WDF: w_vaddr(k, 0, 14)
            k(f'''s_lshl_b32 s49, s34, 2
s_add_u32 s49, s49, s47
s_add_u32 s49, s49, {FLU-FL2}
s_waitcnt lgkmcnt(0)
s_barrier''')
            lg.done = len(lg.tags)
            st(k, 6, 7)
            WP = opt.get('wp', 0); WL = opt.get('wl', 0)
            if WP or WL:
                assert not opt.get('g2m')
                srd_from(k, 28, 40, 41, WS_WO, WO8_BYTES)
                k(f'''s_and_b32 s60, s2, 1
s_lshl_b32 s60, s60, 2
s_lshr_b32 s61, s2, 6
s_add_u32 s60, s60, s61
s_lshl_b32 s60, s60, 3
s_add_u32 s61, s60, s38
s_add_u32 s60, s60, s34
s_mul_i32 s60, s60, {WOB}
s_mul_i32 s61, s61, {WOB}
s_add_u32 s61, s61, {(15-WL)*1024}
s_mul_i32 s42, s38, {1024*WL}
s_add_u32 m0, s42, {WSB}''')

            def wdma():
                for j in range(WL):
                    if j == 4: k('s_add_u32 m0, m0, 4096\ns_add_u32 s61, s61, 4096')
                    k(f'buffer_load_dwordx4 v3, s[28:31], s61 offen offset:{1024*(j%4)} lds')

            def wreg():
                for j in range(WP): k(f'buffer_load_dwordx4 {vr(40+4*j,4)}, v3, s[28:31], s60 offen offset:{1024*j}')
            if WL and opt.get('wld') == 1: role(True, wdma)()
            B64 = opt.get('b64', 1 if WL else 0)
            def wth(groups, mid=None):
                if B64: w_trans(k, 14, 15, groups, 43, base=100 * 1024, mid=(lambda r: mid(4 * r)) if mid else None)
                else: w_trans128(k, 14, 15, 100 * 1024, 43, groups, mid)

            Z0 = ZH[1] if ZH else ZW
            ZG = Z0 + opt.get('zqg', 0)
            ZQP = opt.get('zqp', 0)

            def hib():
                if opt.get('zqr0'): k(f's_setprio {opt["zqr0"]}')
                for o in dops: k(o)
                if WL and not opt.get('wld'): wdma()
                wth(list(range(Z0, ZG)), lambda r: pxl(112) if r == ZQP else None)
                if opt.get('zqr0'): k('s_setprio 0')
                if opt.get('zqs'): k(f's_sleep {opt["zqs"]}')
                if not ZQP: pxl(112)
                st(k, 6, 5)
                if opt.get('zqr'): k(f's_setprio {opt["zqr"]}')
                norm(112, 120, 112, True)
                if opt.get('zqr'): k(f's_setprio {opt.get("zqr2", 0)}')
            lor = (lambda f: role(True, f)) if ZQ == 1 else (lambda f: f)
            if ZQ == 1: role(False, hib)()
            else: assert ZG == Z0
            PXE = opt.get('pxe', 4); XE = opt.get('xe', 8)
            assert n1 - 1 - max(PXE, XE) >= 6 * len(t1)
            ev = {}
            ev.setdefault(n1 - 1 - PXE, []).append(lor(lambda: pxl(32)))
            ev.setdefault(n1 - 1 - XE, []).append(lor(lambda: xr(48)))
            if WDF:
                assert ZQ == 1 and ZH and 32 - WDF >= 8 * max(ZG, ZH[0])
                D0, DS = opt.get('wdp', [0, 4])
                for j in range(0, WDF, 2): ev.setdefault(D0 + DS * j // 2, []).append(role(True, lambda j=j: (k(dops[j]), k(dops[j+1]))))
            if ZQ == 1:
                F0, F1 = opt.get('zqf', [28, 34])
                assert 7 * len(t1) <= F0 + 1 and F1 < n1 - 1 - max(PXE, XE)
                def f0():
                    role(False, lambda: k('s_waitcnt vmcnt(0)'))()
                    cadd('s46'); lg.issue('cnt')
                def f1():
                    k(lg.wait('cnt') or '')
                    role(False, lambda: (cchk(), wreg(), wdma() if opt.get('wld') == 2 else None))()
                ev.setdefault(F0, []).append(f0); ev.setdefault(F1, []).append(f1)
            gpass(t1, 0, [16, 24, 28, 8, 20, 12], LA1, ev, keep=(32, 36, 40, 44, 48, 52, 56))
            st(k, 1, 9); st(k, 6, 6)
            ZO = opt.get('zo', 0); ZCN = opt.get('zc', 0)
            if opt.get('zlr'): k(f's_setprio {opt["zlr"]}')
            for pi in range(ZO): zg(pi)
            lor(lambda: norm(32, 48, 56, False))()
            if opt.get('zlg') is not None: k(f's_setprio {opt["zlg"]}')
            k('v_lshrrev_b32 v1, 1, v3')
            for pi, (i0, nt, off) in enumerate(p1):
                o = 72 + 4 * pi
                if pi == 0 and ZCN == 2: lor(lambda: flg(0))()
                if pi >= ZO: zg(pi)
                if pi == 0 and ZCN == 1: lor(lambda: flg(0))()
                if nt == 2: k(f'buffer_store_dwordx4 {vr(o,4)}, v3, s[12:15], s55 offen offset:{off} sc1')
                else: k(f'buffer_store_dwordx2 {vr(o,2)}, v1, s[12:15], s55 offen offset:{off} sc1')
            st(k, 6, 3)
            map_g2(k)
            k('s_load_dwordx2 s[24:25], s[0:1], 48')
            if ZCN == 0: lor(lambda: flg(2))()
            if opt.get('zlr'): k('s_setprio 0')
            st(k, 0, 5); st(k, 6, 4)
            TJ = k.label('tj'); T4 = k.label('t4')
            ZA = opt.get('za', 0)
            PL2 = 'buffer_load_dword v9, v10, s[68:71], s44 offen sc1'
            k(f'''s_lshl_b32 s44, s36, {5+FS}
s_add_u32 s44, s44, {FL2}
v_bfe_u32 v10, v3, 4, 5
v_lshlrev_b32 v10, {FS}, v10''')
            def amid(r):
                if r != ZA: return
                L = k.label('am')
                k(f's_cmp_lg_u32 s34, 0\ns_cbranch_scc1 {L}\ns_mov_b32 exec_hi, 0\n{PL2}\ns_mov_b32 exec_hi, -1\n{L}:')
            G2E = opt.get('g2e', [0, 0])
            if G2E != [0, 0]:
                assert ZH and ZH[0] <= 4 - G2E[0] and ZG <= 4 - G2E[1]
                opt['g2ef'] = [lambda: w_trans(k, 14, 15, list(range(4 - G2E[0], 4)), 43, base=100 * 1024 + 4 * (4160 if B64 else 8320)), lambda: wth(list(range(4 - G2E[1], 4)))]
            if ZH: role(True, lambda: w_trans(k, 14, 15, list(range(ZH[0], 4 - G2E[0])), 43, base=100 * 1024 + 4 * (4160 if B64 else 8320), mid=amid))()
            st(k, 6, 9)
            if opt.get('pq'):
                assert not ZA and not opt.get('g2b')
                role(False, lambda: wth(list(range(ZG, 4 - G2E[1]))))()
                k(f'''s_and_b32 s42, s34, 3
s_lshl_b32 s42, s42, {2+FS}
s_add_u32 s44, s44, s42
v_bfe_u32 v10, v3, 4, 2
v_bfe_u32 v9, v3, 6, 1
v_lshl_add_u32 v10, v9, 4, v10
v_lshlrev_b32 v10, {FS}, v10''')
                if opt['pq'] == 1: k('s_barrier')
                flag_poll(k, 47, 44, 8, opt.get('g2sl', 0), opt.get('g2d', 0), part=2)
                st(k, 6, 8)
                k(f's_waitcnt lgkmcnt(0)\ns_branch {DONE}')
                return
            if opt.get('zqb', 1): k('s_barrier')
            k(f'''s_cmp_ge_u32 s34, 4
s_cbranch_scc1 {T4}
s_cmp_lg_u32 s34, 0
s_cbranch_scc1 {TJ}''')
            if ZA:
                assert ZH and ZA <= 2 * (4 - ZH[0])
                k(f's_mov_b32 exec_hi, 0\ns_waitcnt vmcnt(0)\nv_cmp_eq_u32 vcc, 0, v9\ns_mov_b32 exec_hi, -1\ns_cbranch_vccz {TJ}')
            flag_poll(k, 47, 44, 32, opt.get('g2sl', 0), opt.get('g2d', 0), part=2)
            st(k, 6, 8)
            k(f's_branch {TJ}\n{T4}:')
            wth(list(range(ZG, 4 - G2E[1])))
            st(k, 6, 8)
            k(f'{TJ}:\ns_waitcnt lgkmcnt(0)\n{"" if opt.get("g2b") else "s_barrier"}\ns_branch {DONE}')
            return
        ev = {}
        PXE = opt.get('pxe', 12); XE = opt.get('xe', 8)
        ev.setdefault(n1 - 1 - PXE, []).append(role(False, pxld) if ZS else pxld)
        ev.setdefault(n1 - 1 - XE, []).append(role(False, xrd) if ZS else xrd)
        ZT = opt.get('zt', 0)
        assert n1 - 1 - max(PXE, XE) >= (n1 - 14 if ZT else 6 * len(t1))
        ZP = 12 if hh else 124
        zout = lambda i: ACC(i & ~1) + 2 * (i & 1)
        if ZT:
            assert opt.get('lean', 0) & 64 and not SC
            for i in range(len(t1) - 1):
                ops = []
                gelu_pk(lambda t: ops.extend(t.split('\n')), None, 4, ACC(i), ZP, zout(i), 6)
                Z0, ZR = opt.get('ztr', [2, 2])
                for j, o in enumerate(ops): ev.setdefault(20 * (i + 1) + Z0 + j // ZR, []).append(lambda o=o: k(o))
        if X4:
            def sta(g):
                L = k.label('sa')
                k(f's_cmp_ge_u32 s34, 4\ns_cbranch_scc1 {L}\ns_add_u32 m0, s61, {100*1024+4096*g}')
                for j in range(3 if g == 3 else 4): k(f'buffer_load_dwordx4 v3, s[28:31], s60 offen offset:{1024*j} lds')
                k(f's_add_u32 s60, s60, 4096\n{L}:')
            S0, SS = opt.get('sta', [2, 8])
            for g in range(opt.get('stm', 0), opt.get('nsta', 4)): ev.setdefault(S0 + SS * (g - opt.get('stm', 0)), []).append(lambda g=g: sta(g))
        for j in range(len(dq.ops)):
            pj = j * opt.get('wds', 3)
            assert pj < n1 - 1 - PXE
            ev.setdefault(pj, []).append(lambda: dq(1, None, 0))
        gpass(t1, 0, [16, 24, 28, 8, 20, 12][:5 if ZT and hh else 6], LA1, ev, keep=(32, 36, 40, 44, 48, 52), tm=ZT)
        st(k, 1, 9)
        LP = k.label('lp'); LD = k.label('ld'); L1 = k.label('l1')
        D = 56
        p1 = [(0, 2, 2048), (2, 1, 3072)] if hh == 0 else [(0, 2, 0), (2, 2, 1024)]
        ZO = opt.get('zo', 0)
        zg = lambda pi: gelu_pk(k, None, 4 * p1[pi][1], ACC(p1[pi][0]), 80 + 16 * pi, 72 + 4 * pi, 6, sc=(SC > 1))
        if ZS:
            def lot():
                if opt.get('zsl'): k(f's_sleep {opt["zsl"]}')
                zg(0); zg(1)
                if ZS == 1: pxld()
                xrd()
                if ZS == 2: pxld()
            role(True, lot)()
        k(f'''v_mov_b32 v4, {fbits(1.0/864)}
s_mov_b32 s43, {SPIN}
s_waitcnt lgkmcnt(0)''')
        for h in range(8):
            k(f'v_lshlrev_b32 v{D+2*h}, 16, v{XR+h}\nv_and_b32 v{D+1+2*h}, 0xffff0000, v{XR+h}')
        zlast = lambda: gelu_pk(k, None, 4, ACC(len(t1) - 1), 80, zout(len(t1) - 1), 6)
        if ZT == 1: zlast()
        if ZO:
            assert opt.get('lean', 0) & 64
            for pi in range(ZO): role(False, lambda: zg(pi))() if ZS else zg(pi)
            st(k, 6, 6)
        k(f'''s_branch {L1}
{LP}:''')
        if opt.get('pxs'): k(f"s_sleep {opt['pxs']}")
        pxld()
        k(f'''{L1}:
s_waitcnt vmcnt(2)
v_max3_u32 v24, v32, v33, v34
v_max3_u32 v25, v35, v36, v37
v_max3_u32 v24, v24, v38, v39''')
        for r in range(4): k(f'v_add_f32 v{28+r}, v{32+r}, v{36+r}')
        k('''s_waitcnt vmcnt(0)
v_max3_u32 v25, v25, v40, v41
v_max3_u32 v24, v24, v42, v43
v_max3_u32 v25, v25, v44, v45
v_max3_u32 v24, v24, v46, v47
v_max_u32 v24, v24, v25
v_cmp_eq_u32 vcc, -1, v24''')
        for r in range(4): k(f'v_add_f32 v{16+r}, v{40+r}, v{44+r}')
        k(f'''s_cbranch_vccz {LD}
s_sub_u32 s43, s43, 1
s_cmp_lg_u32 s43, 0
s_cbranch_scc1 {LP}
{LD}:''')
        st(k, 0, 9); st(k, 6, 1)
        for r in range(4): k(f'v_add_f32 v{28+r}, v{28+r}, v{16+r}')
        for m in ('row_ror:4', 'row_ror:8'):
            for r in range(4): k(f'v_add_f32_dpp v{28+r}, v{28+r}, v{28+r} {m} row_mask:0xf bank_mask:0xf')
        for r in range(4): k(f'v_mul_f32 v{28+r}, v{28+r}, v4')
        k(f'''v_fma_f32 v29, -v28, v28, v29
v_fma_f32 v31, -v30, v30, v31
v_max_f32 v29, 0, v29
v_max_f32 v31, 0, v31
v_cvt_pk_bf16_f32 v12, v28, v30
v_cvt_pk_bf16_f32 v13, v29, v31
v_lshlrev_b32 v8, 16, v12
v_and_b32 v9, 0xffff0000, v12
v_lshlrev_b32 v10, 16, v13
v_and_b32 v11, 0xffff0000, v13
v_add_f32 v10, 0x3727c5ac, v10
v_add_f32 v11, 0x3727c5ac, v11
v_cvt_pk_bf16_f32 v13, v10, v11
v_lshlrev_b32 v10, 16, v13
v_and_b32 v11, 0xffff0000, v13
v_sqrt_f32 v10, v10
v_sqrt_f32 v11, v11''')
        for e in range(8):
            k(f'v_mov_b32_dpp v{16+e}, v{8+(e&1)} quad_perm:[{e>>1},{e>>1},{e>>1},{e>>1}] row_mask:0xf bank_mask:0xf')
        k(f'''v_cvt_pk_bf16_f32 v13, v10, v11
v_lshlrev_b32 v10, 16, v13
v_and_b32 v11, 0xffff0000, v13
v_rcp_f32 v10, v10
v_rcp_f32 v11, v11''')
        for i in range(2):
            d = D + 8 * i
            for e in range(0, 8, 2):
                k(f'v_pk_add_f32 {vr(d+e,2)}, {vr(d+e,2)}, {vr(16+e,2)} neg_lo:[0,1] neg_hi:[0,1]')
            if i == 0:
                for e in range(8):
                    k(f'v_mov_b32_dpp v{24+e}, v{10+(e&1)} quad_perm:[{e>>1},{e>>1},{e>>1},{e>>1}] row_mask:0xf bank_mask:0xf')
            o = XR + 4 * i
            if not opt.get('lean', 0) & 4:
                for r in range(4): k(f'v_cvt_pk_bf16_f32 v{o+r}, v{d+2*r}, v{d+2*r+1}')
                for r in range(4): k(f'v_lshlrev_b32 v{d+2*r}, 16, v{o+r}\nv_and_b32 v{d+1+2*r}, 0xffff0000, v{o+r}')
            for e in range(0, 8, 2):
                k(f'v_pk_mul_f32 {vr(d+e,2)}, {vr(d+e,2)}, {vr(24+e,2)}')
            for r in range(4): k(f'v_cvt_pk_bf16_f32 v{o+r}, v{d+2*r}, v{d+2*r+1}')
            k(f'buffer_store_dwordx4 {vr(o,4)}, v3, s[16:19], s{54+2*i} offen sc1')
        st(k, 6, 2)
        k('v_lshrrev_b32 v1, 1, v3')
        for pi, (i0, nt, off) in enumerate(p1):
            o = 8 + 4 * pi; a = ACC(i0)
            if ZT:
                o = a
                if ZT == 2 and pi == 1: zlast()
            elif pi < ZO: o = 72 + 4 * pi
            elif ZS:
                o = 72 + 4 * pi
                role(False, lambda: zg(pi))()
            elif opt.get('lean', 0) & 64: gelu_pk(k, None, 4 * nt, a, 80 + 16 * pi, o, 6, sc=(SC > 1))
            else:
                for h in range(2 * nt): k(f'v_cvt_pk_bf16_f32 v{o+h}, v{a+2*h}, v{a+2*h+1}')
                gelu_pk(k, o, 4 * nt, 72 + 16 * pi, 80 + 16 * pi, o, 6, sc=(SC > 1))
            if nt == 2: k(f'buffer_store_dwordx4 {vr(o,4)}, v3, s[12:15], s55 offen offset:{off} sc1')
            else: k(f'buffer_store_dwordx2 {vr(o,2)}, v1, s[12:15], s55 offen offset:{off} sc1')
        st(k, 6, 3)
        map_g2(k)
        SB = opt.get('stb', 0)
        def stb():
            for j in range(4): k(f'buffer_load_dwordx4 {vr(40+4*j,4)}, v3, s[28:31], s60 offen offset:{1024*j}')
        if X4:
            k(f'''s_mul_i32 s62, s36, {8*WOB}
s_lshl_b32 s60, s34, 12
s_add_u32 s60, s60, s62
s_add_u32 s60, s60, {60*1024}''')
            if SB == 0: stb()
        k(f's_load_dwordx2 s[24:25], s[0:1], 48\ns_waitcnt vmcnt({4 if X4 and SB == 0 else 0})')
        st(k, 0, 5); st(k, 6, 4)
        T4 = k.label('t4'); TJ = k.label('tj'); T1 = k.label('t1')
        k(f'''s_barrier
s_cmp_ge_u32 s34, 4
s_cbranch_scc1 {T4}
s_cmp_lg_u32 s34, 0
s_cbranch_scc1 {T1 if X4 and SB else TJ}
s_lshl_b32 s44, s36, {5+FS}
s_add_u32 s44, s44, {FL2}''')
        if X4 and SB:
            flag_poll(k, 47, 44, 32, part=1)
            stb()
            flag_poll(k, 47, 44, 32, opt.get('g2sl', 0), opt.get('g2d', 0), part=2)
            k(f's_branch {TJ}\n{T1}:\ns_sleep {SB}')
            stb()
        else: flag_poll(k, 47, 44, 32, opt.get('g2sl', 0), opt.get('g2d', 0))
        k(f's_branch {TJ}\n{T4}:')
        if X4 and SB:
            k(f's_sleep {SB}')
            stb()
        if opt.get('wt67'): k(f's_cmp_ge_u32 s34, 6\ns_cbranch_scc1 {TJ}')
        else: assert not opt.get('wte')
        if not NOW: w_trans(k, 12, 13, WG_[ZW:], 43)
        st(k, 6, 5)
        k(f'{TJ}:\ns_waitcnt lgkmcnt(0)\ns_barrier\ns_branch {DONE}')
    path(0)
    k(f'{LH}:')
    path(1)


def gen_ka(opt):
    k = Kern('ka_kernel', 256, 512, 163840, nvgpr=128, nagpr=128)
    END = k.label('end')
    k(f's_cmp_ge_u32 s2, 256\ns_cbranch_scc1 {END}')
    k.stamp(True)
    ph_k2a(k, opt, None)
    ph_g1(k, opt, END, None)
    k.finish(END)
    return k


def gen_p(opt, g3=True):
    k = Kern('kp_kernel', 256, 512, 163840, nvgpr=128, nagpr=128)
    END = k.label('end'); G2 = k.label('g2'); G3 = k.label('g3')
    k(f's_cmp_ge_u32 s2, 256\ns_cbranch_scc1 {END}')
    k.stamp(True)
    wb = Bulk(k, [] if opt.get('now') else g2_wops())
    ph_k2a(k, opt, wb)
    ph_g1(k, opt, G2, wb, True)
    k(f'{G2}:')
    st(k, 0, 6)
    vm = Cnt('vmcnt', 63); vm.issue('w')
    if g3:
        g3_wo_setup(k)
        ph_g2(k, opt, G3, vm, True, [] if opt.get('noo') else g3_wo_ops())
        k(f'{G3}:')
        ph_g3(k, opt, True)
    else:
        ph_g2(k, opt, END, vm, False)
    k.finish(END)
    return k


def gen_q(opt):
    k = Kern('k1_kernel', 256, 512, 163840, nvgpr=128, nagpr=128)
    END = k.label('end'); G2 = k.label('g2'); G3 = k.label('g3')
    k(f's_cmp_ge_u32 s2, 256\ns_cbranch_scc1 {END}')
    k.stamp(True)
    wb = Bulk(k, [] if opt.get('now') else g2_wops())
    ph_k12(k, opt, wb)
    if G1S: ph_g1s(k, opt, G2, wb)
    elif opt.get('g1t'): ph_g1t(k, opt, G2, wb)
    else: ph_g1(k, opt, G2, wb, True)
    k(f'{G2}:')
    st(k, 0, 6)
    vm = Cnt('vmcnt', 63); vm.issue('w')
    g3_wo_setup(k)
    if opt.get('g3s'):
        k('s_lshl_b32 s61, s35, 3\ns_add_u32 s61, s61, s34\ns_lshl_b32 s61, s61, 14\ns_add_u32 s62, s61, 8192')
        na = ph_g2(k, opt, G3, vm, True, g3_wo_ops(), g3s_early())
        k(f'{G3}:')
        ph_g3s(k, opt, na)
        k.finish(END)
        return k
    ph_g2(k, opt, G3, vm, True, [] if opt.get('noo') else g3_wo_ops())
    k(f'{G3}:')
    ph_g3(k, opt, True)
    k.finish(END)
    return k


def build(opt):
    lv = opt.get('lv', 1)
    if lv == 4: return [gen_fft.gen_k0(), gen_q(opt)]
    ks = [gen_fft.gen_k0(), gen_fft.gen_k1c()]
    if lv == 1: ks += [gen_ka(opt), gen_g2(opt), gen_g3(opt)]
    if lv == 2: ks += [gen_p(opt, False), gen_g3(opt)]
    if lv == 3: ks += [gen_p(opt)]
    return ks


def g3_wo_setup(k):
    if gen_fft.OPT.get('g3v') == 4: return
    srd_from(k, 28, 40, 41, WS_WO, WO8_BYTES)
    if gen_fft.OPT.get('g3v') == 3:
        k(f'''s_mul_i32 s62, s36, {8*WOB}
s_and_b32 s61, s34, 3
s_lshl_b32 s61, s61, 13
s_add_u32 s60, s62, s61
s_add_u32 s61, s61, 0x10000''')
        return
    k(f'''s_lshl_b32 s60, s36, 3
s_add_u32 s60, s60, s34
s_mul_i32 s60, s60, {WOB}''')


WSB = 136 * 1024


def g3_wo_ops2(hi):
    WP = gen_fft.OPT.get('wp', 0); WL = 0 if hi else gen_fft.OPT.get('wl', 0)
    ops = []; cur = 0
    def g(text, off, pos):
        nonlocal cur
        pre = ''
        if off - cur > 4095 - 511:
            pre = f's_add_u32 s60, s60, {off - cur}\n'; cur = off
        ops.append((pre + text + f' offset:{off - cur}', pos, False))
    for i in range(WP, 15 - WL): g(f'buffer_load_dwordx4 {ar(4*i,4)}, v3, s[28:31], s60 offen', 1024 * i, 192 + i)
    for n in range(5): g(f'buffer_load_dwordx2 {ar(60+2*n,2)}, v2, s[28:31], s60 offen', 15360 + 512 * n, 192 + 15 + n // 2)
    lds = [(f'ds_read_b128 {ar(4*i,4)}, v39 offset:{1024*(i-15+WL)}', 192 + i, True) for i in range(15 - WL, 15)]
    return ops, lds


def g3_wo_ops():
    ops = []
    for i in range(15):
        s = f'buffer_load_dwordx4 {ar(4*i,4)}, v3, s[28:31], s60 offen offset:{1024*(i%4)}'
        if i % 4 == 3: s += '\ns_add_u32 s60, s60, 4096'
        if i == 14: s += '\ns_add_u32 s60, s60, 3072'
        ops.append(s)
    for n in range(5):
        ops.append(f'buffer_load_dwordx2 {ar(60+2*n,2)}, v2, s[28:31], s60 offen offset:{512*n}')
    return ops


def ph_g3(k, opt, fused):
    vm = Cnt('vmcnt', 63); lg = Cnt('lgkmcnt', 15)
    G3F = opt.get('g3f', 0)
    WOL = opt.get('wol', [99, 99]); W0L = opt.get('w0l', 0)
    if G3F:
        NP2 = k.label('np2'); WH = k.label('wh'); WX = k.label('wx')
        k(f'''s_lshl_b32 s42, s35, {3+FS}
s_add_u32 s42, s42, {FL3}
s_lshl_b32 s46, s36, {FS}
s_add_u32 s46, s46, s42
v_lshrrev_b32 v124, 4, v3
v_lshlrev_b32 v124, {FS}, v124
v_mov_b32 v125, 1
s_waitcnt vmcnt(0)
s_barrier
s_cmp_lg_u32 s34, 0
s_cbranch_scc1 {NP2}
s_mov_b64 exec, 1
buffer_store_dword v125, v124, s[68:71], s46 offen sc1
s_mov_b64 exec, -1
{f"s_branch {WX}" if W0L else ""}
{NP2}:''')
        ro = [g3_wo_ops()[WOL[0]:], g3_wo_ops()[WOL[1]:]]
        if opt.get('wp') or opt.get('wl'): ro = [[o[0] for o in g3_wo_ops2(h)[0][WOL[h]:]] for h in range(2)]
        if ro[0] == ro[1]:
            for o in ro[0]: k(o)
        else:
            k(f's_cmp_ge_u32 s34, 4\ns_cbranch_scc1 {WH}')
            for o in ro[0]: k(o)
            k(f's_branch {WX}\n{WH}:')
            for o in ro[1]: k(o)
        k(f'{WX}:')
    else: assert WOL == [99, 99]
    srd_from(k, 8, 40, 41, WS_Z1 if opt.get('ain') else WS_A, A2_BYTES)
    srd_from(k, 12, 80, 81, 0, X_BYTES) if opt.get('hout') else srd_from(k, 12, 40, 41, WS_H, X_BYTES)
    k(f'''s_lshl_b32 s44, s35, 3
s_add_u32 s44, s44, s34
s_lshl_b32 s44, s44, 14
v_lshrrev_b32 v1, 4, v3
v_and_b32 v6, 15, v1
v_lshrrev_b32 v7, 4, v1''')
    G3R = opt.get('g3r', 0)
    NR, LA, GA = (5, 98, 116) if G3R else (3, 116, 120)
    if G3R:
        assert opt.get('lean', 0) & 16 and G3F and W0L < 2 and not G1S
        k('s_mul_i32 s45, s34, 40960\ns_mov_b32 s46, 0')
    else: k(f'''s_lshr_b32 s45, s34, 1
s_mul_i32 s45, s45, 40960
s_and_b32 s46, s34, 1
s_lshl_b32 s46, s46, 3''')
    ROWA = '''v_lshrrev_b32 v11, 3, v9
v_and_b32 v12, 3, v9
v_lshl_add_u32 v11, v11, 2, v12
v_bfe_u32 v12, v9, 2, 1
v_lshl_add_u32 v11, v12, 8, v11''' if G1S else '''v_lshrrev_b32 v11, 2, v9
v_and_b32 v12, 3, v9
v_lshl_add_u32 v11, v12, 8, v11'''
    NH = k.label('nh')
    if G3R: k(f's_cmp_ge_u32 s34, 4\ns_cbranch_scc1 {NH}')
    G3C = opt.get('g3c', 0)
    if G3C:
        assert not G3R
        k('s_lshr_b32 s46, s46, 2')
    for p in range(NR):
        if G3C and p < 2: k(f'''v_bfe_u32 v8, v1, 5, 1
v_bfe_u32 v9, v1, 4, 1
v_sub_u32 v10, v1, v9
v_and_b32 v10, 15, v10
v_lshl_add_u32 v9, v8, 2, v9
v_add_u32 v9, {8*p}, v9''')
        elif G3C: k('''v_bfe_u32 v9, v1, 4, 1
v_sub_u32 v8, v1, v9
v_and_b32 v10, 3, v8
v_add_u32 v10, 16, v10
v_and_b32 v8, 12, v8
v_add_u32 v9, v8, v9''')
        else: k(f'''v_add_u32 v8, {64*p}, v1
v_mul_u32_u24 v9, 3277, v8
v_lshrrev_b32 v9, 16, v9
v_mul_u32_u24 v10, 20, v9
v_sub_u32 v10, v8, v10''')
        k(f'''v_add_u32 v9, s46, v9
v_add_u32 v11, v9, v10
v_and_b32 v11, 15, v11
v_lshlrev_b32 v11, 4, v11
v_lshrrev_b32 v12, 2, v10
v_lshl_add_u32 v11, v12, 13, v11
v_and_b32 v12, 3, v10
v_lshl_add_u32 v11, v12, 8, v11
v_add_u32 v{LA+p}, s45, v11
{ROWA}
v_mul_u32_u24 v11, 1280, v11
v_lshl_add_u32 v{GA+p}, v10, 3, v11''')
    if not G3R: k('''v_mov_b32 v8, 0x7fffffff
v_cmp_gt_u32 vcc, 32, v1
v_cndmask_b32 v122, v8, v122, vcc''')
    k(f'''s_lshl_b32 s47, s35, 3
s_and_b32 s43, s34, {1 if G3R else 2}
s_lshl_b32 s43, s43, {8 if G1S else 2 if G3R else 1}
s_add_u32 s47, s47, s43
s_and_b32 s43, s34, {2 if G3R else 4}
s_lshl_b32 s43, s43, {9 if G3R else 8}
s_add_u32 s47, s47, s43
s_mul_i32 s47, s47, 1280
s_mul_i32 s43, s36, 160
s_add_u32 s47, s47, s43''')
    def hld():
        for p in range(NR): k(f'buffer_load_dwordx2 {vr(104+2*p,2)}, v{GA+p}, s[12:15], s47 offen')
    if G3F and not opt.get('h0'): k(f's_cmp_eq_u32 s34, 0\ns_cbranch_scc1 {NH}')
    hld()
    k(f'{NH}:')
    for p in range(3): vm.issue('h')
    G3K = opt.get('g3k')
    k(f'''s_lshl_b32 s43, s34, 10
{"s_and_b32 s43, s43, 0xfff" if G3K else ""}
v_add_u32 v8, v6, v7
v_lshlrev_b32 v9, 8, v7
v_add_u32 v9, s43, v9''')
    for n in range(5):
        k(f'''v_add_u32 v10, {4*n}, v8
v_and_b32 v10, 15, v10
v_lshl_add_u32 v10, v10, 4, v9
v_add_u32 v{88+n}, {8192*n}, v10
v_add_u32 v{93+n}, {8192*n+81920}, v10''')
    if G3F:
        NP3 = k.label('np3')
        k(f's_cmp_lg_u32 s34, 0\ns_cbranch_scc1 {NP3}\ns_mov_b64 exec, 0xff')
        if opt.get('g3d'): k(f's_sleep {opt["g3d"]}')
        poll2(k, 'buffer_load_dword v125, v124, s[68:71], s42 offen sc1', 'v_cmp_eq_u32 vcc, 0, v125', 43, opt.get('g3sl', 0))
        k('s_mov_b64 exec, -1')
        if W0L == 1:
            for o in ro[0]: k(o)
        if W0L < 2 and not opt.get('h0'): hld()
        k(f'{NP3}:\ns_barrier')
        if W0L == 2:
            NP4 = k.label('np4')
            k(f's_cmp_lg_u32 s34, 0\ns_cbranch_scc1 {NP4}')
            for o in ro[0]: k(o)
            hld()
            k(f'{NP4}:')
    elif fused:
        NP3 = k.label('np3')
        k(f'''s_waitcnt vmcnt(0)
s_barrier
s_cmp_lg_u32 s34, 0
s_cbranch_scc1 {NP3}
s_lshl_b32 s42, s35, {3+FS}
s_add_u32 s42, s42, {FL3}
s_lshl_b32 s46, s36, {FS}
s_add_u32 s46, s46, s42''')
        flag_poll(k, 46, 42, 8, opt.get('g3sl', 0), opt.get('g3d', 0))
        k(f'{NP3}:\ns_barrier')
        vm.done = 3
    st(k, 3, 1); st(k, 0, 8)
    k(f's_cmp_eq_u32 s34, 7\ns_cselect_b32 s48, {BIG}, 0')
    AF = lambda tt, p: 72 + 14 * tt + 4 * p
    G3L = opt.get('g3l', 0)
    aq = []
    for tt in range(4):
        for p in range(3):
            aq.append((f'buffer_load_dwordx4 {ar(AF(tt,p),4)}, v3, s[8:11], s44 offen offset:{1024*p}', f'a{tt}{p}'))
        aq.append((f's_add_u32 s49, s44, s48\nbuffer_load_dwordx2 {ar(AF(tt,3),2)}, v2, s[8:11], s49 offen offset:3072' + ('\ns_add_u32 s44, s44, 4096' if tt < 3 else ''), f'a{tt}3'))
    def al():
        if aq:
            o, t = aq.pop(0)
            k(o); vm.issue(t)
    G3I, G3S = opt.get('g3i', [16, 1])
    for i in range(G3I):
        if G3L & 1 and i % 4 == 0: k(f's_setprio {3-i//4}')
        al()
    if G3L == 1: k('s_setprio 0')
    srd_from(k, 16, 80, 81, 0, X_BYTES)
    WP = opt.get('wp', 0)
    ACC = lambda tt, n: 8 + (48 if WP else 20) * (tt & 1) + 4 * n
    WR = lambda i: vr(40 + 4 * i, 4) if i < WP else ar(4 * i, 4)
    if G3K:
        import copy
        assert WP == 4 and not G3R and not aq
        KA, KB, KC = G3K
        QS = [[8, 12, 16, 20, 24], [56, 60, 64, 68, 72], [28, 32, 36, 76, 80], [8, 12, 16, 20, 24]]
        KH = k.label('kh'); KX = k.label('kx')
        k(f's_cmp_ge_u32 s34, 4\ns_cbranch_scc1 {KH}')
        for hi in range(2):
            v2 = copy.deepcopy(vm); l2 = Cnt('lgkmcnt', 15)
            def lds(op, tt, n):
                r = vr(QS[tt][n], 4); ad = f'v{88+5*(tt>>1)+n}'; off = 40960 * (tt & 1) + (4096 if hi and tt == 0 else 0)
                k(f'ds_write_b128 {ad}, {r} offset:{off}' if op == 'w' else f'ds_read_b128 {r}, {ad} offset:{off}')
                l2.issue(f'{op}{tt}{n}')
            pend = []
            if hi: k(f'{KH}:')
            for tt in range(4):
                for p in range(4):
                    k(v2.wait(f'a{tt}{p}') or '')
                    if tt == 0 and p == 0: st(k, 3, 2)
                    for n in range(5):
                        m = 20 * tt + 5 * p + n
                        acc = vr(QS[tt][n], 4)
                        ch = hi and tt > 0
                        if ch and p == 0:
                            assert f'r{tt}{n}' in l2.tags
                            k(l2.wait(f'r{tt}{n}') or '')
                        if p < 3: k(f'{MFMA} {acc}, {WR(5*p+n)}, {ar(AF(tt,p),4)}, {"0" if p == 0 and not ch else acc}')
                        else: k(f'{MF16} {acc}, {ar(60+2*n,2)}, {ar(AF(tt,3),2)}, {acc}')
                        if pend and ((5 * p + n) % 3 == 2 or (not hi and tt == 3 and m % 20 >= 1)): lds('w', *pend.pop(0))
                        if not hi and m + 1 == KA:
                            assert not pend and tt == 3
                            k((l2.wait('w24') or '') + '\ns_barrier')
                        if hi and m + 1 == KB:
                            k('s_barrier')
                            st(k, 3, 5)
                            for t2 in (1, 2):
                                for n2 in range(5): lds('r', t2, n2)
                        if hi and m + 1 == KC:
                            assert 'w04' in l2.tags
                            k('s_barrier')
                            st(k, 3, 6)
                            for n2 in range(5): lds('r', 3, n2)
                pend += [(tt, n) for n in range(5)]
            for o in pend: lds('w', *o)
            st(k, 3, 3)
            k('s_waitcnt lgkmcnt(0)')
            if not hi: k(f's_barrier\ns_branch {KX}')
        k(f'{KX}:\ns_barrier')
        st(k, 3, 4)
        OSF = ['', ' sc1', ' nt', ' sc1 nt'][opt.get('osf', 0)]
        K8 = k.label('k8'); KE = k.label('ke')
        k(f's_cmp_lt_u32 s34, 2\ns_cbranch_scc1 {K8}')
        pk = lambda d, a, b: k(f'v_pk_add_f32 {vr(d,2)}, {vr(a,2)}, {vr(b,2)}')
        for NS in (4, 8):
            l2 = Cnt('lgkmcnt', 15)
            RQ = list(range(8, 56, 4)) + list(range(68, 104, 4)) + [112, 124, 4]
            for p in range(3):
                for s_ in range(NS):
                    k(f'ds_read_b128 {vr(RQ[NS*p+s_],4)}, v{116+p} offset:{1024*s_}'); l2.issue(f'r{p}{s_}')
                if p == (2 if NS == 4 else 0):
                    for i in range(6): k(f'v_lshlrev_b32 v{56+2*i}, 16, v{104+i}\nv_and_b32 v{57+2*i}, 0xffff0000, v{104+i}')
            for p in range(3):
                hq = 56 + 4 * p
                for s_ in range(0, NS, 2):
                    a0, a1 = RQ[NS*p+s_], RQ[NS*p+s_+1]
                    k(l2.wait(f'r{p}{s_+1}') or '')
                    for h in range(2): pk(a0 + 2 * h, a0 + 2 * h, a1 + 2 * h)
                    for h in range(2): pk(hq + 2 * h, hq + 2 * h, a0 + 2 * h)
                k(f'''v_cvt_pk_bf16_f32 v{hq}, v{hq}, v{hq+1}
v_cvt_pk_bf16_f32 v{hq+1}, v{hq+2}, v{hq+3}
buffer_store_dwordx2 {vr(hq,2)}, v{120+p}, s[16:19], s47 offen{OSF}''')
            k(f's_branch {KE}\n{K8}:' if NS == 4 else f'{KE}:')
        return
    pend = []
    hun = []
    if G3R:
        assert WP == 4
        SP = [28, 30, 32, 34, 36, 38, 76, 78, 80, 82]
        RQ = [8, 12, 16, 20, 24] + list(range(40, 76, 4)) + [84, 88, 92, 104, 108, 112]
        for i in range(10): hun += [f'v_lshlrev_b32 v{SP[i]}, 16, v{104+i}', f'v_and_b32 v{SP[i]+1}, 0xffff0000, v{104+i}']
    for tt in range(4):
        if G3L & 2: k(f's_setprio {3-tt}')
        for p in range(4):
            x = vm.wait(f'a{tt}{p}')
            if x: k(x)
            if tt == 0 and p == 0: st(k, 3, 2)
            for n in range(5):
                acc = vr(ACC(tt, n), 4)
                if p < 3: k(f'{MFMA} {acc}, {WR(5*p+n)}, {ar(AF(tt,p),4)}, {"0" if p == 0 else acc}')
                else: k(f'{MF16} {acc}, {ar(60+2*n,2)}, {ar(AF(tt,3),2)}, {acc}')
                if pend and (5 * p + n) % 3 == 2: k(pend.pop(0))
                if (20 * tt + 5 * p + n) % G3S == 0: al()
                if hun and G3R == 2: k(hun.pop(0))
                if G3R and 20 * tt + 5 * p + n + 1 == opt.get('g3h', 40):
                    L = k.label('hb')
                    k(f's_cmp_lt_u32 s34, 4\ns_cbranch_scc1 {L}\ns_barrier\ns_setprio {opt.get("g3hp", 0)}\n{L}:')
        for n in range(5):
            pend.append(f'ds_write_b128 v{88+5*(tt>>1)+n}, {vr(ACC(tt,n),4)} offset:{40960*(tt&1)}')
    for o in pend: k(o)
    st(k, 3, 3)
    k('s_waitcnt lgkmcnt(0)\ns_barrier')
    st(k, 3, 4)
    if G3R:
        HX = k.label('hx')
        OSF = ['', ' sc1', ' nt', ' sc1 nt'][opt.get('osf', 0)]
        k(f's_cmp_ge_u32 s34, 4\ns_cbranch_scc1 {HX}')
        if opt.get('g3rp'): k(f's_setprio {opt["g3rp"]}')
        for ph in range(2):
            def pk(d, a, b):
                if opt.get('g3u', 0) & (1 << ph): k(f'v_add_f32 v{d}, v{a}, v{b}\nv_add_f32 v{d+1}, v{a+1}, v{b+1}')
                else: k(f'v_pk_add_f32 {vr(d,2)}, {vr(a,2)}, {vr(b,2)}')
            nrd = [0]
            def rd(upto):
                while nrd[0] < min(upto, 20):
                    p, s_ = divmod(nrd[0], 4)
                    k(f'ds_read_b128 {vr(RQ[4*p+s_],4)}, v{LA+p} offset:{1024*(s_+4*ph)}'); lg.issue(f'r{ph}{p}{s_}')
                    nrd[0] += 1
            rd(14)
            for o in hun: k(o)
            hun = []
            for p in range(5):
                a = RQ[4*p:4*p+4]
                k(lg.wait(f'r{ph}{p}1') or '')
                rd(16 + 4 * p)
                for h in range(2): pk(a[0] + 2 * h, a[0] + 2 * h, a[1] + 2 * h)
                for h in range(2): pk(SP[2*p+h], SP[2*p+h], a[0] + 2 * h)
                k(lg.wait(f'r{ph}{p}3') or '')
                rd(18 + 4 * p)
                for h in range(2): pk(a[2] + 2 * h, a[2] + 2 * h, a[3] + 2 * h)
                for h in range(2): pk(SP[2*p+h], SP[2*p+h], a[2] + 2 * h)
                if ph:
                    k(f'''v_cvt_pk_bf16_f32 v{a[0]}, v{SP[2*p]}, v{SP[2*p]+1}
v_cvt_pk_bf16_f32 v{a[0]+1}, v{SP[2*p+1]}, v{SP[2*p+1]+1}
buffer_store_dwordx2 {vr(a[0],2)}, v{GA+p}, s[16:19], s47 offen{OSF}''')
            if ph == 0:
                st(k, 3, 5)
                k('s_barrier')
                st(k, 3, 6)
        k(f'{HX}:')
        return
    for p in range(3):
        if p == 2 and opt.get('g3m'): k('s_mov_b32 exec_hi, 0')
        for s in range(8):
            k(f'ds_read_b128 {vr(8+32*p+4*s,4)}, v{116+p} offset:{1024*s}'); lg.issue(f'r{p}{s}')
        if p == 2 and opt.get('g3m'): k('s_mov_b32 exec_hi, -1')
        if p == 0:
            for q in range(3):
                k(f'v_lshlrev_b32 v{110+2*q}, 16, v{104+2*q}\nv_and_b32 v{104+2*q}, 0xffff0000, v{104+2*q}')
    for p in range(3):
        a = 8 + 32 * p
        for s in (0, 2, 4, 6):
            x = lg.wait(f'r{p}{s+1}')
            if x: k(x)
            for h in range(2): k(f'v_pk_add_f32 {vr(a+4*s+2*h,2)}, {vr(a+4*s+2*h,2)}, {vr(a+4*s+4+2*h,2)}')
            if s in (2, 6):
                for h in range(2): k(f'v_pk_add_f32 {vr(a+4*s-8+2*h,2)}, {vr(a+4*s-8+2*h,2)}, {vr(a+4*s+2*h,2)}')
        for h in range(2): k(f'v_pk_add_f32 {vr(a+2*h,2)}, {vr(a+2*h,2)}, {vr(a+16+2*h,2)}')
        if opt.get('lean', 0) & 16: k(f'''v_lshlrev_b32 v{a+8}, 16, v{105+2*p}
v_and_b32 v{a+9}, 0xffff0000, v{105+2*p}''')
        else: k(f'''v_cvt_pk_bf16_f32 v{a+4}, v{a}, v{a+1}
v_cvt_pk_bf16_f32 v{a+5}, v{a+2}, v{a+3}
v_lshlrev_b32 v{a+8}, 16, v{105+2*p}
v_and_b32 v{a+9}, 0xffff0000, v{105+2*p}
v_lshlrev_b32 v{a}, 16, v{a+4}
v_and_b32 v{a+1}, 0xffff0000, v{a+4}
v_lshlrev_b32 v{a+2}, 16, v{a+5}
v_and_b32 v{a+3}, 0xffff0000, v{a+5}''')
        k(f'''v_add_f32 v{a}, v{a}, v{110+2*p}
v_add_f32 v{a+1}, v{a+1}, v{104+2*p}
v_pk_add_f32 {vr(a+2,2)}, {vr(a+2,2)}, {vr(a+8,2)}
v_cvt_pk_bf16_f32 v{a+4}, v{a}, v{a+1}
v_cvt_pk_bf16_f32 v{a+5}, v{a+2}, v{a+3}
buffer_store_dwordx2 {vr(a+4,2)}, v{120+p}, s[16:19], s47 offen{['', ' sc1', ' nt', ' sc1 nt'][opt.get('osf', 0)]}''')


def g3v_addr(k):
    B = [f'''v_lshrrev_b32 v1, 4, v3
v_and_b32 v6, 15, v1
v_lshrrev_b32 v7, 4, v1
s_lshr_b32 s45, s34, 1
s_mul_i32 s45, s45, 40960
s_and_b32 s46, s34, 1
s_lshl_b32 s46, s46, 3''']
    for p in range(3):
        B.append(f'''v_add_u32 v8, {64*p}, v1
v_mul_u32_u24 v9, 3277, v8
v_lshrrev_b32 v9, 16, v9
v_mul_u32_u24 v10, 20, v9
v_sub_u32 v10, v8, v10
v_add_u32 v9, s46, v9
v_add_u32 v11, v9, v10
v_and_b32 v11, 15, v11
v_lshlrev_b32 v11, 4, v11
v_lshrrev_b32 v12, 2, v10
v_lshl_add_u32 v11, v12, 13, v11
v_and_b32 v12, 3, v10
v_lshl_add_u32 v11, v12, 8, v11
v_add_u32 v{116+p}, s45, v11
v_lshrrev_b32 v11, 2, v9
v_and_b32 v12, 3, v9
v_lshl_add_u32 v11, v12, 8, v11
v_mul_u32_u24 v11, 1280, v11
v_lshl_add_u32 v{120+p}, v10, 3, v11''')
    B.append(f'''v_mov_b32 v8, 0x7fffffff
v_cmp_gt_u32 vcc, 32, v1
v_cndmask_b32 v122, v8, v122, vcc
s_lshl_b32 s47, s35, 3
s_and_b32 s43, s34, 2
s_lshl_b32 s43, s43, 1
s_add_u32 s47, s47, s43
s_and_b32 s43, s34, 4
s_lshl_b32 s43, s43, 8
s_add_u32 s47, s47, s43
s_mul_i32 s47, s47, 1280
s_mul_i32 s43, s36, 160
s_add_u32 s47, s47, s43''')
    W = f'''s_lshl_b32 s43, s34, 10
v_add_u32 v8, v6, v7
v_lshlrev_b32 v9, 8, v7
v_add_u32 v9, s43, v9'''
    for n in range(5):
        W += f'''
v_add_u32 v10, {4*n}, v8
v_and_b32 v10, 15, v10
v_lshl_add_u32 v10, v10, 4, v9
v_add_u32 v{88+n}, {8192*n}, v10
v_add_u32 v{93+n}, {8192*n+81920}, v10'''
    B.append(W)
    return B


G3AF = lambda tt, p: 72 + 14 * tt + 4 * p
G3ACC = lambda tt, n: 8 + 20 * tt + 4 * n


def g3v_gate(k, vm, tag, reg, cmp, sl=0):
    LP = k.label('lp'); LD = k.label('ld')
    k(f'''{vm.wait(tag) or ''}
{cmp}
s_cbranch_vccz {LD}
s_mov_b32 s43, {SPIN}
{LP}:
{f"s_sleep {sl}" if sl else ""}
{reg if isinstance(reg, str) else f"buffer_load_dword v{reg}, v127, s[68:71], s62 offen sc1"}
s_waitcnt vmcnt(0)
{cmp}
s_cbranch_vccz {LD}
s_sub_u32 s43, s43, 1
s_cmp_lg_u32 s43, 0
s_cbranch_scc1 {LP}
{LD}:''')


def g3v_head(k, opt, hi, vm):
    assert opt.get('hout') and opt.get('ain') and not G1S
    WOL = opt.get('wol', [99, 99])[hi]
    W = [(o, f'w{min(i // 5, 3)}') for i, o in enumerate(g3_wo_ops())][WOL:]
    if opt.get('now3'): W = []
    A = lambda p: [(f'buffer_load_dwordx4 {ar(G3AF(tt,p),4)}, v3, s[16:19], s{63+tt} offen offset:{1024*p}', f'a{tt}{p}') for tt in range(4)]
    Wp = lambda p: [w for w in W if w[1] == f'w{p}']
    QO = opt.get('g3q', 0)
    if QO == 0: Q = Wp(0) + A(0) + Wp(1) + A(1) + Wp(2) + Wp(3)
    elif QO == 1: Q = Wp(0) + Wp(1) + A(0) + A(1) + Wp(2) + Wp(3)
    else: Q = W + A(0) + A(1)
    state = dict(flag=0, gate=0)

    def flg():
        if state['flag']: return
        state['flag'] = 1
        k((vm.wait('s') or '') + '\ns_mov_b64 exec, 1\nbuffer_store_dword v125, off, s[68:71], s61 sc1\ns_mov_b64 exec, -1'); vm.issue('f')
        st(k, 3, 1)

    def pop(n):
        for _ in range(n):
            if not Q: return
            o, t = Q.pop(0)
            if t[0] == 'a' and not state['gate']:
                state['gate'] = 1
                last = lambda x: max(i for i, y in enumerate(vm.tags) if y == x)
                if last('ep') > last('s'): flg()
                g3v_gate(k, vm, 'ep', 126, 'v_cmp_eq_u32 vcc, 0, v126')
                st(k, 9, 2)
            k(o); vm.issue(t)
    k('v_mov_b32 v125, 2')
    st(k, 9, 1)
    pop(opt.get('g3n', [8, 9])[hi])
    st(k, 9, 3)
    B = g3v_addr(k)
    srd_from(k, 12, 80, 81, 0, X_BYTES)
    NB = opt.get('g3b', 5)
    for b in B[:NB]: k(b)
    st(k, 9, 4)
    flg()
    st(k, 9, 5)
    pop(99)
    st(k, 9, 6)
    for b in B[NB:5]: k(b)
    for p in range(3):
        k(f'buffer_load_dwordx2 {vr(104+2*p,2)}, v{120+p}, s[12:15], s47 offen'); vm.issue('h')
    k(B[5])
    st(k, 9, 7)
    k(f's_cmp_eq_u32 s34, 7\ns_cselect_b32 s48, {BIG}, 0')
    if not opt.get('g3bl'): k('s_barrier')
    st(k, 9, 8)
    L1 = opt.get('g3l', [20, 20])[hi]
    i = 0
    for p in range(2):
        for tt in range(4):
            for t in (f'w{p}', f'a{tt}{p}'):
                x = vm.wait(t)
                if x: k(x)
            if tt == 0 and p == 0: st(k, 3, 2); st(k, 9, 9)
            for n in range(5):
                if i == L1: k('buffer_load_dword v124, v127, s[68:71], s62 offen sc1'); vm.issue('lp')
                acc = vr(G3ACC(tt, n), 4)
                k(f'{MFMA} {acc}, {ar(20*p+4*n,4)}, {ar(G3AF(tt,p),4)}, {"0" if p == 0 else acc}')
                i += 1
    if L1 >= 40: k('buffer_load_dword v124, v127, s[68:71], s62 offen sc1'); vm.issue('lp')
    st(k, 3, 5)
    if opt.get('g3bl'): k('s_barrier')
    g3v_gate(k, vm, 'lp', 124, 'v_cmp_ne_u32 vcc, 2, v124', opt.get('g3sl', 0))


def G3AF2(tt, p, n=4): return vr(40 + 4 * tt, 4) if p == 0 else ar(72 + 10 * tt + 4 * (p - 1), n)


def G3ACC2(tt, n):
    i = 5 * tt + n
    return vr(56 + 4 * i, 4) if i < 8 else ar(112 + 4 * (i - 8), 4) if i < 12 else vr(8 + 4 * (i - 12), 4)


def g3v_head2(k, opt, hi, vm):
    assert opt.get('hout') and opt.get('ain') and not G1S
    WOL = opt.get('wol', [99, 99])[hi]
    W = [(o, f'w{min(i // 5, 3)}') for i, o in enumerate(g3_wo_ops())][WOL:]
    if opt.get('now3'): W = []
    A1 = [(f'buffer_load_dwordx4 {G3AF2(tt,1)}, v3, s[16:19], s{63+tt} offen offset:1024', f'a{tt}1') for tt in range(4)]
    Wp = lambda p: [w for w in W if w[1] == f'w{p}']
    Q = Wp(0) + Wp(1) + A1 + Wp(2) + Wp(3) if opt.get('g3q', 0) == 0 else Wp(0) + A1 + Wp(1) + Wp(2) + Wp(3)
    state = dict(flag=0, gate=0)

    def flg():
        if state['flag']: return
        state['flag'] = 1
        k((vm.wait('s') or '') + '\ns_mov_b64 exec, 1\nbuffer_store_dword v125, off, s[68:71], s61 sc1\ns_mov_b64 exec, -1'); vm.issue('f')
        st(k, 3, 1); st(k, 9, 5)

    def pop(n):
        for _ in range(n):
            if not Q: return
            o, t = Q.pop(0)
            if t[0] == 'a' and not state['gate']:
                state['gate'] = 1
                last = lambda x: max(i for i, y in enumerate(vm.tags) if y == x)
                if last('ep') > last('s'): flg()
                g3v_gate(k, vm, 'ep', 126, 'v_cmp_eq_u32 vcc, 0, v126')
                st(k, 9, 2)
            k(o); vm.issue(t)
    L1 = opt.get('g3l', [30, 30])[hi]
    cnt = [0]

    def mf(p, fill=()):
        fill = list(fill); per = (len(fill) + 19) // 20
        for tt in range(4):
            for t in (f'w{p}', f'a{tt}{p}'):
                x = vm.wait(t) if t in vm.tags else None
                if x: k(x)
            if tt == 0: st(k, 9, 4 if p == 0 else 9)
            for n in range(5):
                if cnt[0] == L1: k('buffer_load_dword v124, v127, s[68:71], s62 offen sc1'); vm.issue('lp')
                acc = G3ACC2(tt, n)
                k(f'{MFMA} {acc}, {ar(20*p+4*n,4)}, {G3AF2(tt,p)}, {"0" if p == 0 else acc}')
                cnt[0] += 1
                for _ in range(per):
                    if fill: k(fill.pop(0))
    k('v_mov_b32 v125, 2')
    st(k, 9, 1)
    pop(opt.get('g3n', [0, 0])[hi])
    st(k, 9, 3)
    B = [re.sub(r'\bv(8|9|10|11|12)\b', lambda m: f'v{90+int(m.group(1))}', b) for b in g3v_addr(k)]
    srd_from(k, 12, 80, 81, 0, X_BYTES)
    M0 = opt.get('g3m', 1) and (WOL >= 5 or opt.get('now3'))
    if M0: mf(0, '\n'.join(B[:5]).split('\n'))
    else:
        for b in B[:5]: k(b)
    flg()
    if opt.get('g3bl', 0) == 0: k('s_barrier')
    pop(99)
    st(k, 9, 6)
    for p in range(3):
        k(f'buffer_load_dwordx2 {vr(104+2*p,2)}, v{120+p}, s[12:15], s47 offen'); vm.issue('h')
    k(B[5])
    k(f's_cmp_eq_u32 s34, 7\ns_cselect_b32 s48, {BIG}, 0')
    st(k, 9, 7)
    if not M0: mf(0)
    mf(1)
    if L1 >= 40:
        if L1 > 40: k(f's_sleep {L1-40}')
        k('buffer_load_dword v124, v127, s[68:71], s62 offen sc1'); vm.issue('lp')
    st(k, 3, 5)
    if opt.get('g3bl', 0) == 1: k('s_barrier')
    g3v_gate(k, vm, 'lp', 124, 'v_cmp_ne_u32 vcc, 2, v124', opt.get('g3sl', 0))


def ph_g3w(k, opt):
    assert opt.get('hout') and opt.get('ain') and not G1S
    NP2 = k.label('np2'); WX = k.label('wx'); NP3 = k.label('np3'); HI = k.label('hi'); FIN = k.label('fin')
    k(f'''s_lshl_b32 s42, s35, {3+FS}
s_add_u32 s42, s42, {FL3}
s_lshl_b32 s46, s36, {FS}
s_add_u32 s46, s46, s42
v_lshrrev_b32 v1, 4, v3
v_lshlrev_b32 v124, {FS}, v1
v_mov_b32 v125, 1
s_and_b32 s37, s34, 3
s_lshr_b32 s38, s34, 2
s_lshl_b32 s43, s37, 12
s_add_u32 s60, s62, s43
s_add_u32 s60, s60, 0x10000
s_add_u32 m0, s43, 0x20000
s_mul_i32 s61, s37, {15*1024}
s_add_u32 s62, s62, s61
s_add_u32 s62, s62, {80*1024}
s_lshl_b32 s63, s35, 1
s_add_u32 s63, s63, s38
s_lshl_b32 s63, s63, 16
s_add_u32 s63, s63, s43
s_add_u32 s64, s63, 0x4000
s_add_u32 s65, s63, 0x8000
s_add_u32 s66, s63, 0xc000
s_cmp_eq_u32 s38, 1
s_cselect_b32 s67, {BIG}, s66
s_mul_i32 s43, s38, 5120
v_add_u32 v93, s43, v3
v_add_u32 v91, 0x10000, v93
v_add_u32 v92, {0x10000+40960}, v93
v_lshrrev_b32 v94, 1, v93
s_mul_i32 s43, s37, 5120
s_add_u32 s43, s43, 0x10000
v_add_u32 v95, s43, v3
v_bfe_u32 v6, v1, 2, 2
v_and_b32 v7, 3, v1
v_lshl_add_u32 v6, v7, 8, v6
v_mul_u32_u24 v6, 1280, v6
v_lshrrev_b32 v7, 4, v1
v_lshl_add_u32 v90, v7, 3, v6
s_lshl_b32 s47, s35, 3
s_and_b32 s43, s34, 1
s_lshl_b32 s43, s43, 2
s_add_u32 s47, s47, s43
s_and_b32 s43, s34, 2
s_lshl_b32 s43, s43, 9
s_add_u32 s47, s47, s43
s_mul_i32 s47, s47, 1280
s_mul_i32 s43, s36, 160
s_add_u32 s47, s47, s43
s_mul_i32 s43, s38, 96
s_add_u32 s47, s47, s43''')
    srd_from(k, 12, 80, 81, 0, X_BYTES)
    k(f'''s_waitcnt vmcnt(0)
s_barrier
s_cmp_lg_u32 s34, 0
s_cbranch_scc1 {NP2}
s_mov_b64 exec, 1
buffer_store_dword v125, v124, s[68:71], s46 offen sc1
s_mov_b64 exec, -1
{NP2}:
s_cmp_lt_u32 s34, 4
s_cbranch_scc1 {WX}''')
    st(k, 3, 5)
    if opt.get('dmd'): k(f's_sleep {opt["dmd"]}')
    for i in range(4): k(f'buffer_load_dwordx4 v3, s[28:31], s60 offen offset:{1024*i} lds')
    for i in range(15):
        if i % 4 == 0: k(f's_add_u32 m0, s61, {1024*i}' + ('\ns_add_u32 s62, s62, 4096' if i else ''))
        k(f'buffer_load_dwordx4 v3, s[28:31], s62 offen offset:{1024*(i%4)} lds')
    k(f'{WX}:')
    for i in range(3): k(f'buffer_load_dwordx2 {vr(84+2*i,2)}, v90, s[12:15], s47 offen offset:{32*i}')
    st(k, 3, 6)
    pool = [ar(4 * i, 4) for i in range(32)] + [vr(96 + 4 * i, 4) for i in range(7)]
    NPRE = 30

    def sub(r, h):
        m = re.match(r'([av])\[(\d+):', r)
        return f'{m.group(1)}[{int(m.group(2))+2*h}:{int(m.group(2))+2*h+1}]'

    def rd(q, r, n):
        p, f = q // 20, (q % 20) // 5
        if p < 3: return [f'ds_read_b128 {r}, v{91+p} offset:{f*10240+n*1024}']
        return [f'ds_read_b64 {sub(r,h)}, v94 offset:{40960+(2*f+h)*5120+n*512}' for h in range(2)]
    for q in range(NPRE):
        for o in rd(q, pool[q], q % 5): k(o)
    k(f's_cmp_lg_u32 s34, 0\ns_cbranch_scc1 {NP3}\ns_mov_b64 exec, 0xff')
    if opt.get('g3d'): k(f's_sleep {opt["g3d"]}')
    poll2(k, 'buffer_load_dword v125, v124, s[68:71], s42 offen sc1', 'v_cmp_eq_u32 vcc, 0, v125', 43, opt.get('g3sl', 0))
    k(f's_mov_b64 exec, -1\n{NP3}:\ns_waitcnt vmcnt(0) lgkmcnt(0)')
    st(k, 3, 7)
    k('s_barrier')
    st(k, 3, 1); st(k, 0, 8)
    vm0 = Cnt('vmcnt', 63)
    for p in range(4):
        if opt.get('g3pr'): k(f's_setprio {3-p}')
        for f in range(4):
            if p < 3: k(f'buffer_load_dwordx4 {vr(8+16*p+4*f,4)}, v3, s[16:19], s{63+f} offen offset:{1024*p}')
            else: k(f'buffer_load_dwordx2 {vr(56+2*f,2)}, v2, s[16:19], s{63+f+(f==3)} offen offset:3072')
            vm0.issue(f'a{p}{f}')
    k(f's_cmp_ge_u32 s34, 4\ns_cbranch_scc1 {HI}')
    ACC = lambda n: 64 + 4 * n

    def role(kh):
        import copy
        vm = copy.deepcopy(vm0); lg = Cnt('lgkmcnt', 15)
        own = [0, 1, 2] if kh == 0 else [3, 4]
        snd = [n for n in range(5) if n not in own]
        order = [(q, q % 5) for q in range(65)] + [(65 + i, n) for i, n in enumerate(snd + own)]
        buf = {q: pool[q] for q in range(NPRE)}
        free = pool[NPRE:]; nr = [NPRE]; pend = []

        def reads(m):
            for _ in range(m):
                if nr[0] >= 70 or not free: return
                q, n = order[nr[0]]
                buf[q] = free.pop(0)
                for o in rd(q, buf[q], n): k(o); lg.issue(f'b{q}')
                nr[0] += 1
        reads(9)
        for i, n in enumerate(own):
            k(f'''v_lshlrev_b32 v{ACC(n)}, 16, v{84+2*i}
v_and_b32 v{ACC(n)+1}, 0xffff0000, v{84+2*i}
v_lshlrev_b32 v{ACC(n)+2}, 16, v{85+2*i}
v_and_b32 v{ACC(n)+3}, 0xffff0000, v{85+2*i}''')
        for q, n in order:
            p, f = q // 20, (q % 20) // 5
            x = vm.wait(f'a{p}{f}' if p < 3 else f'a3{2*f+1}')
            if x: k(x)
            if q == 0: st(k, 3, 2)
            x = lg.wait(f'b{q}') if q >= NPRE else None
            if x: k(x)
            acc = vr(ACC(n), 4)
            a = vr(8 + 16 * p + 4 * f, 4)
            k(f'{MFMA} {acc}, {buf[q]}, {a}, {"0" if q < 5 and n in snd else acc}')
            free.extend(pend); pend = [buf[q]]
            reads(1)
        for n in snd: k(f'ds_write_b128 v95, {vr(ACC(n),4)} offset:{1024*n}')
        st(k, 3, 3)
        k('s_waitcnt lgkmcnt(0)\ns_barrier')
        st(k, 3, 4)
        for i, n in enumerate(own): k(f'ds_read_b128 {vr(8+4*i,4)}, v95 offset:{1024*n}')
        for i, n in enumerate(own):
            k(f's_waitcnt lgkmcnt({len(own)-1-i})')
            for r in range(4): k(f'v_add_f32 v{8+4*i+r}, v{8+4*i+r}, v{ACC(n)+r}')
            k(f'''v_cvt_pk_bf16_f32 v{24+2*i}, v{8+4*i}, v{9+4*i}
v_cvt_pk_bf16_f32 v{25+2*i}, v{10+4*i}, v{11+4*i}
buffer_store_dwordx2 {vr(24+2*i,2)}, v90, s[12:15], s47 offen offset:{32*i}''')
    role(0)
    k(f's_branch {FIN}\n{HI}:')
    role(1)
    k(f'{FIN}:')


G3PL = 'buffer_load_dword v39, v6, s[68:71], s49 offen sc1'


def g3x_gate(k, vm, tag, m):
    LP = k.label('lp'); LD = k.label('ld')
    chk = f'v_cmp_eq_u32 vcc, 0, v39\ns_and_b64 vcc, vcc, s[{m}:{m+1}]\ns_cbranch_scc0 {LD}'
    k(f'''{vm.wait(tag) or ''}
{chk}
s_mov_b32 s43, {SPIN}
{LP}:
{G3PL}
s_waitcnt vmcnt(0)
{chk}
s_sub_u32 s43, s43, 1
s_cmp_lg_u32 s43, 0
s_cbranch_scc1 {LP}
{LD}:''')


CLEAN = None


def g3x(k, opt, kh, vm):
    assert opt.get('hout') and opt.get('ain') and not G1S
    lg = Cnt('lgkmcnt', 15)
    KB = 1024

    def lds(c):
        if c < 60: return (100 + c) * KB
        if c < 92:
            w = (c - 60) // 4
            return (8 * (w & 3) + (0 if w >> 2 else 32) + c % 4) * KB
        if c < 124: return (64 + c - 92) * KB
        return (8 * ((c - 124) // 4) + 4 + c % 4) * KB
    AP = [32, 48, 0, 16]
    st(k, 9, 1)
    if kh: k(G3PL); vm.issue('ep1')
    k('''v_add_u32 v91, 0x10000, v3
v_add_u32 v92, 0x20000, v3''')
    free = [ar(64 + 4 * i, 4) for i in range(16)] + [vr(96 + 4 * i, 4) for i in range(7)] + [vr(8 + 4 * i, 4) for i in (0, 1, 2, 3, 4, 5, 12, 13)]
    free2 = [vr(8 + 4 * i, 4) for i in (6, 8, 9, 10, 11)] + [ar(24, 4), ar(28, 4)]
    own = [0, 1, 2] if kh == 0 else [3, 4]
    snd = [n for n in range(5) if n not in own]
    order = [(q, q % 5) for q in range(65)] + [(65 + i, n) for i, n in enumerate(snd + own)]
    buf = {}; nr = [0]; lim = [60]

    def sub(r, h):
        m = re.match(r'([av])\[(\d+):', r)
        return f'{m.group(1)}[{int(m.group(2))+2*h}:{int(m.group(2))+2*h+1}]'

    def reads(m):
        for _ in range(m):
            if nr[0] >= 70 or not free: return
            q, n = order[nr[0]]
            p, f = q // 20, (q % 20) // 5
            c = 40 * p + 10 * f + 5 * kh + n
            if c >= lim[0]: return
            r = buf[q] = free.pop(0)
            if p < 3:
                a = lds(c)
                k(f'ds_read_b128 {r}, v{[3, 91, 92][a >> 16]} offset:{a & 0xffff}'); lg.issue(f'b{q}')
            else:
                for h in range(2):
                    o = 122880 + ((2 * f + h) * 2 + kh) * 2560 + n * 512
                    a = lds(o // KB) + o % KB
                    k(f'ds_read_b64 {sub(r,h)}, v{[2, 93][a >> 16]} offset:{a & 0xffff}'); lg.issue(f'b{q}')
            nr[0] += 1
    ACC = lambda n: 64 + 4 * n
    pend = []

    def mfs(q0, q1, per, fill=None, fp=2):
        for q, n in order[q0:q1]:
            p, f = q // 20, (q % 20) // 5
            x = vm.wait(f'a{p}{f}' if p < 3 else f'a3{2*f+1}')
            if x: k(x)
            if q in (0, 20): st(k, 9, 4 + q // 20)
            if q == 40: st(k, 3, 2); st(k, 9, 9)
            x = lg.wait(f'b{q}')
            if x: k(x)
            acc = vr(ACC(n), 4)
            k(f'{MFMA} {acc}, {buf[q]}, {ar(AP[p]+4*f,4)}, {"0" if q < 5 else acc}')
            free.extend(pend); pend[:] = [buf[q]]
            reads(per)
            for _ in range(fp):
                if fill:
                    o = fill.pop(0)
                    o() if callable(o) else k(o)
    def xb(j): k(f'ds_write_b128 v7, {vr(40+4*j,4)} offset:{KB*j+(0 if kh else 32*KB)}'); lg.issue('x')
    def xd(j): k((vm.wait('d') or '') + f'\nds_write_b128 v{7 if kh else 38}, {ar(4*j,4)} offset:{KB*j+(4*KB if kh else 0)}'); lg.issue('x')
    XW = [lambda j=j: xb(j) for j in range(4)] + [lambda j=j: xd(j) for j in range(4 if kh else 8)]
    for _ in range(opt.get('g3w', [4, 4])[kh]): XW.pop(0)()
    fill = f'''v_mov_b32 v0, 2
v_lshrrev_b32 v1, 4, v3
v_add_u32 v93, 0x10000, v2
v_bfe_u32 v88, v1, 2, 2
v_and_b32 v89, 3, v1
v_lshl_add_u32 v88, v89, 8, v88
v_mul_u32_u24 v88, 1280, v88
v_lshrrev_b32 v89, 4, v1
v_lshl_add_u32 v90, v89, 3, v88
v_bfe_u32 v89, v1, 4, 1
v_lshl_add_u32 v95, v89, 5, v88
v_lshrrev_b32 v89, 5, v1
v_lshl_add_u32 v95, v89, 4, v95
s_mul_i32 s42, s37, 5120
s_add_u32 s42, s42, {100*KB}
v_add_u32 v94, s42, v3
s_lshl_b32 s47, s35, 3
s_and_b32 s43, s34, 1
s_lshl_b32 s43, s43, 2
s_add_u32 s47, s47, s43
s_and_b32 s43, s34, 2
s_lshl_b32 s43, s43, 9
s_add_u32 s47, s47, s43
s_mul_i32 s47, s47, 1280
s_mul_i32 s43, s36, 160
s_add_u32 s47, s47, s43'''.split('\n')
    for o in fill: k(o)
    srd_from(k, 12, 80, 81, 0, X_BYTES)
    reads(opt.get('g3r', 6))
    k((vm.wait('s') or '') + '\ns_mov_b64 exec, 1\nbuffer_store_dword v0, off, s[68:71], s48 sc1\ns_mov_b64 exec, -1'); vm.issue('f')
    st(k, 3, 1); st(k, 9, 2)
    if kh: g3x_gate(k, vm, 'ep1', 52)
    k('s_barrier')
    st(k, 9, 3)
    if not kh: CLEAN(k, 1, (1, 4, 88))
    for f in range(4):
        k(f'buffer_load_dwordx4 {ar(AP[1]+4*f,4)}, v3, s[16:19], s{63+f} offen offset:1024'); vm.issue(f'a1{f}')
    k(f'buffer_load_dwordx4 v[84:87], v95, s[12:15], s47 offen offset:{32*own[0]}'); vm.issue('h')
    if not kh: k(f'buffer_load_dwordx2 v[88:89], v90, s[12:15], s47 offen offset:64'); vm.issue('h')
    M1 = opt.get('g3m', 12); M2 = opt.get('g3m2', [20, 20])[kh]
    mfs(0, M1, 1, XW, 1)
    for o in XW: o()
    k((lg.wait('x') or '') + '\ns_barrier')
    free.extend(free2); lim[0] = 999
    mfs(M1, M2, 2)
    free.extend(pend); pend[:] = []
    reads(99)
    st(k, 9, 6)
    if kh == opt.get('g3pw', 0) >> 2:
        NP3 = k.label('np3')
        k(f's_cmp_lg_u32 s34, {opt.get("g3pw", 0)}\ns_cbranch_scc1 {NP3}')
        if opt.get('g3dd'): k(f's_sleep {opt["g3dd"]}')
        poll2(k, 'buffer_load_dword v39, v6, s[68:71], s54 offen sc1', 'v_cmp_ne_u32 vcc, 2, v39', 43, opt.get('g3sl', 0))
        k(f'{NP3}:')
    st(k, 9, 7)
    k('s_barrier')
    st(k, 9, 8); st(k, 3, 6); st(k, 0, 8)
    if kh: k(f's_mov_b32 s67, {BIG}')
    for p in (2, 3):
        for f in range(4):
            if opt.get('g3pr') and f % 2 == 0: k(f's_setprio {3-(2*p+f//2-4)}')
            if p < 3: k(f'buffer_load_dwordx4 {ar(AP[2]+4*f,4)}, v3, s[16:19], s{63+f} offen offset:2048')
            else: k(f'buffer_load_dwordx2 {ar(AP[3]+2*f,2)}, v2, s[16:19], s{63+f+(f==3 and kh)} offen offset:3072')
            vm.issue(f'a{p}{f}')
    mfs(M2, 40, 2)
    k((vm.wait('h') or '') + '\nv_permlane16_swap_b32 v84, v86\nv_permlane16_swap_b32 v85, v87')
    for i, n in enumerate(own):
        k(f'''v_lshlrev_b32 v36, 16, v{84+2*i}
v_and_b32 v{84+2*i}, 0xffff0000, v{84+2*i}
v_lshlrev_b32 v37, 16, v{85+2*i}
v_and_b32 v{85+2*i}, 0xffff0000, v{85+2*i}
v_add_f32 v{ACC(n)}, v{ACC(n)}, v36
v_add_f32 v{ACC(n)+1}, v{ACC(n)+1}, v{84+2*i}
v_add_f32 v{ACC(n)+2}, v{ACC(n)+2}, v37
v_add_f32 v{ACC(n)+3}, v{ACC(n)+3}, v{85+2*i}''')
    mfs(40, 70, 2)
    for n in snd: k(f'ds_write_b128 v94, {vr(ACC(n),4)} offset:{KB*n}')
    st(k, 3, 3)
    k('s_waitcnt lgkmcnt(0)\ns_barrier')
    st(k, 3, 4)
    for i, n in enumerate(own): k(f'ds_read_b128 {vr(8+4*i,4)}, v94 offset:{KB*n}')
    for i, n in enumerate(own):
        k(f's_waitcnt lgkmcnt({len(own)-1-i})')
        for r in range(4): k(f'v_add_f32 v{8+4*i+r}, v{8+4*i+r}, v{ACC(n)+r}')
        k(f'''v_cvt_pk_bf16_f32 v{24+2*i}, v{8+4*i}, v{9+4*i}
v_cvt_pk_bf16_f32 v{25+2*i}, v{10+4*i}, v{11+4*i}''')
        if i == 1: k(f'''v_permlane16_swap_b32 v24, v26
v_permlane16_swap_b32 v25, v27
buffer_store_dwordx4 v[24:27], v95, s[12:15], s47 offen offset:{32*own[0]}''')
        if i == 2: k(f'buffer_store_dwordx2 v[28:29], v90, s[12:15], s47 offen offset:{32*n}')


def ph_g3v(k, opt):
    vm = Cnt('vmcnt', 63); lg = Cnt('lgkmcnt', 15)
    V2 = opt['g3v'] == 2
    AF = G3AF2 if V2 else (lambda tt, p, n=4: ar(G3AF(tt, p), n))
    AC = G3ACC2 if V2 else (lambda tt, n: vr(G3ACC(tt, n), 4))
    st(k, 3, 6); st(k, 0, 8)
    for tt in range(4):
        k(f'buffer_load_dwordx4 {AF(tt,2)}, v3, s[16:19], s{63+tt} offen offset:2048'); vm.issue(f'a{tt}2')
        k(f's_add_u32 s49, s{63+tt}, s48\nbuffer_load_dwordx2 {AF(tt,3,2)}, v2, s[16:19], s49 offen offset:3072'); vm.issue(f'a{tt}3')
    for q in range(3):
        k(f'v_lshlrev_b32 v{110+2*q}, 16, v{104+2*q}\nv_and_b32 v{104+2*q}, 0xffff0000, v{104+2*q}')
    pend = []
    for tt in range(4):
        for p in (2, 3):
            x = vm.wait(f'a{tt}{p}')
            if x: k(x)
            if tt == 0 and p == 2: st(k, 3, 7)
            for n in range(5):
                acc = AC(tt, n)
                if p < 3: k(f'{MFMA} {acc}, {ar(20*p+4*n,4)}, {AF(tt,p)}, {acc}')
                else: k(f'{MF16} {acc}, {ar(60+2*n,2)}, {AF(tt,3,2)}, {acc}')
                if pend and n % 2 == p % 2: k(pend.pop(0))
        for n in range(5):
            pend.append(f'ds_write_b128 v{88+5*(tt>>1)+n}, {AC(tt,n)} offset:{40960*(tt&1)}')
    for o in pend: k(o)
    st(k, 3, 3)
    k('s_waitcnt lgkmcnt(0)\ns_barrier')
    st(k, 3, 4)
    for p in range(3):
        for s in range(8):
            k(f'ds_read_b128 {vr(8+32*p+4*s,4)}, v{116+p} offset:{1024*s}'); lg.issue(f'r{p}{s}')
    assert opt.get('lean', 0) & 16
    for p in range(3):
        a = 8 + 32 * p
        for s in (0, 2, 4, 6):
            x = lg.wait(f'r{p}{s+1}')
            if x: k(x)
            for h in range(2): k(f'v_pk_add_f32 {vr(a+4*s+2*h,2)}, {vr(a+4*s+2*h,2)}, {vr(a+4*s+4+2*h,2)}')
            if s in (2, 6):
                for h in range(2): k(f'v_pk_add_f32 {vr(a+4*s-8+2*h,2)}, {vr(a+4*s-8+2*h,2)}, {vr(a+4*s+2*h,2)}')
        for h in range(2): k(f'v_pk_add_f32 {vr(a+2*h,2)}, {vr(a+2*h,2)}, {vr(a+16+2*h,2)}')
        k(f'''v_lshlrev_b32 v{a+8}, 16, v{105+2*p}
v_and_b32 v{a+9}, 0xffff0000, v{105+2*p}
v_add_f32 v{a}, v{a}, v{110+2*p}
v_add_f32 v{a+1}, v{a+1}, v{104+2*p}
v_pk_add_f32 {vr(a+2,2)}, {vr(a+2,2)}, {vr(a+8,2)}
v_cvt_pk_bf16_f32 v{a+4}, v{a}, v{a+1}
v_cvt_pk_bf16_f32 v{a+5}, v{a+2}, v{a+3}
buffer_store_dwordx2 {vr(a+4,2)}, v{120+p}, s[12:15], s47 offen''')


def g3s_ld(tt, p, fl=''):
    if p < 2: return f'buffer_load_dwordx4 {vr(56+8*tt+4*p,4)}, v3, s[16:19], s{61+(tt>>1)} offen offset:{1024*p}{fl}' if not (tt & 1) else \
        f'buffer_load_dwordx4 {vr(56+8*tt+4*p,4)}, v88, s[16:19], s{61+(tt>>1)} offen offset:{1024*p}{fl}'
    if p == 2: return f'buffer_load_dwordx4 {vr(8+4*tt,4)}, v{88 if tt & 1 else 3}, s[16:19], s{61+(tt>>1)} offen offset:2048{fl}'
    return f'buffer_load_dwordx2 {vr(24+2*tt,2)}, v{89 if tt & 1 else 2}, s[16:19], s{63+(tt>>1)} offen offset:3072{fl}'


def g3s_early():
    ops = [g3s_ld(tt, p) for p in range(2) for tt in range(4)]
    ops[0] = 'v_add_u32 v88, 4096, v3\nv_add_u32 v89, 4096, v2\n' + ops[0]
    return ops


def chk_max(k, regs, t):
    regs = list(regs)
    acc = [None, None]; i = 0
    while regs:
        j = i & 1; i += 1
        if acc[j] is None:
            if len(regs) >= 3: k(f'v_max3_u32 v{t+j}, v{regs[0]}, v{regs[1]}, v{regs[2]}'); regs = regs[3:]
            elif len(regs) == 2: k(f'v_max_u32 v{t+j}, v{regs[0]}, v{regs[1]}'); regs = []
            else: k(f'v_mov_b32 v{t+j}, v{regs[0]}'); regs = []
            acc[j] = 1
        elif len(regs) >= 2: k(f'v_max3_u32 v{t+j}, v{t+j}, v{regs[0]}, v{regs[1]}'); regs = regs[2:]
        else: k(f'v_max_u32 v{t+j}, v{t+j}, v{regs[0]}'); regs = []
    if acc[1]: k(f'v_max_u32 v{t}, v{t}, v{t+1}')
    k(f'v_cmp_eq_u32 vcc, -1, v{t}')


def ph_g3s(k, opt, na):
    vm = Cnt('vmcnt', 63); lg = Cnt('lgkmcnt', 15)
    if opt.get('g3e', 0) == 3:
        for o in g3s_early(): k(o)
        na = 0
    vm.issue('e')
    for _ in range(na): vm.issue('s')
    srd_from(k, 12, 80, 81, 0, X_BYTES) if opt.get('hout') else srd_from(k, 12, 40, 41, WS_H, X_BYTES)
    LW = 90
    k(f'''s_cmp_eq_u32 s34, 7
s_cselect_b32 s63, {BIG}, s61
s_cselect_b32 s64, {BIG}, s62
v_lshrrev_b32 v1, 4, v3
v_and_b32 v6, 15, v1
v_lshrrev_b32 v7, 4, v1
s_lshr_b32 s45, s34, 1
s_mul_i32 s45, s45, 40960
s_and_b32 s46, s34, 1
s_lshl_b32 s46, s46, 3''')
    I2 = opt.get('g3i', [0, 20])
    if I2[0] < 0:
        for tt in range(4): k(g3s_ld(tt, 2, ' sc1')); vm.issue('p2')
    for p in range(3):
        k(f'''v_add_u32 v100, {64*p}, v1
v_mul_u32_u24 v101, 3277, v100
v_lshrrev_b32 v101, 16, v101
v_mul_u32_u24 v102, 20, v101
v_sub_u32 v102, v100, v102
v_add_u32 v101, s46, v101
v_add_u32 v103, v101, v102
v_and_b32 v103, 15, v103
v_lshlrev_b32 v103, 4, v103
v_lshrrev_b32 v110, 2, v102
v_lshl_add_u32 v103, v110, 13, v103
v_and_b32 v110, 3, v102
v_lshl_add_u32 v103, v110, 8, v103
v_add_u32 v{116+p}, s45, v103
v_lshrrev_b32 v103, 2, v101
v_and_b32 v110, 3, v101
v_lshl_add_u32 v103, v110, 8, v103
v_mul_u32_u24 v103, 1280, v103
v_lshl_add_u32 v{120+p}, v102, 3, v103''')
    k(f'''v_mov_b32 v100, 0x7fffffff
v_cmp_gt_u32 vcc, 32, v1
v_cndmask_b32 v122, v100, v122, vcc
s_lshl_b32 s47, s35, 3
s_and_b32 s43, s34, 2
s_lshl_b32 s43, s43, 1
s_add_u32 s47, s47, s43
s_and_b32 s43, s34, 4
s_lshl_b32 s43, s43, 8
s_add_u32 s47, s47, s43
s_mul_i32 s47, s47, 1280
s_mul_i32 s43, s36, 160
s_add_u32 s47, s47, s43''')
    for p in range(3):
        k(f'buffer_load_dwordx2 {vr(104+2*p,2)}, v{120+p}, s[12:15], s47 offen'); vm.issue('h')
    k(f'''s_lshl_b32 s43, s34, 10
v_add_u32 v100, v6, v7
v_lshlrev_b32 v101, 8, v7
v_add_u32 v101, s43, v101''')
    for n in range(5):
        k(f'''v_add_u32 v102, {4*n}, v100
v_and_b32 v102, 15, v102
v_lshl_add_u32 v102, v102, 4, v101
v_add_u32 v{LW+n}, {8192*n}, v102
v_add_u32 v{LW+5+n}, {8192*n+81920}, v102''')
    srd_from(k, 8, 80, 81, 0, X_BYTES)

    def ACC(tt, n):
        i = 5 * tt + n
        return ar(72 + 4 * i, 4) if i < 14 else vr(32 + 4 * (i - 14), 4)

    def gate(tag, regs, lds, sl):
        LP = k.label('lp'); LD = k.label('ld')
        k(vm.wait(tag) or '')
        chk_max(k, regs, 100)
        k(f's_cbranch_vccz {LD}\ns_mov_b32 s43, {SPIN}\n{LP}:')
        if sl: k(f's_sleep {sl}')
        for o in lds: k(o)
        k('s_waitcnt vmcnt(0)')
        chk_max(k, regs, 100)
        k(f's_cbranch_vccz {LD}\ns_sub_u32 s43, s43, 1\ns_cmp_lg_u32 s43, 0\ns_cbranch_scc1 {LP}\n{LD}:')
    st(k, 3, 1); st(k, 0, 8)
    gate('e', range(56, 88), [g3s_ld(tt, p, ' sc1') for p in range(2) for tt in range(4)], 0)
    st(k, 3, 2)
    i = 0
    for p in range(3):
        if p == 2:
            st(k, 3, 5)
            gate('p2', range(8, 24), [g3s_ld(tt, 2, ' sc1') for tt in range(4)], opt.get('g3r', 0))
            st(k, 3, 6)
            k('s_barrier')
        for tt in range(4):
            for n in range(5):
                if i == I2[0]:
                    for t2 in range(4): k(g3s_ld(t2, 2, ' sc1')); vm.issue('p2')
                if i == I2[1]:
                    for t2 in range(4): k(g3s_ld(t2, 3, ' sc1')); vm.issue('p3')
                acc = ACC(tt, n)
                b = vr(56 + 8 * tt + 4 * p, 4) if p < 2 else vr(8 + 4 * tt, 4)
                k(f'{MFMA} {acc}, {ar(20*p+4*n,4)}, {b}, {"0" if p == 0 else acc}')
                i += 1
    st(k, 3, 7)
    gate('p3', range(24, 32), [g3s_ld(tt, 3, ' sc1') for tt in range(4)], opt.get('g3r', 0))
    st(k, 3, 8)
    pend = []
    for tt in range(4):
        for n in range(5):
            acc = ACC(tt, n)
            k(f'{MF16} {acc}, {ar(60+2*n,2)}, {vr(24+2*tt,2)}, {acc}')
            pend.append(f'ds_write_b128 v{LW+5*(tt>>1)+n}, {acc} offset:{40960*(tt&1)}')
            if len(pend) > 3: k(pend.pop(0))
    for o in pend: k(o)
    st(k, 3, 3)
    k('s_waitcnt lgkmcnt(0)\ns_barrier')
    st(k, 3, 4)
    for p in range(3):
        for s in range(8):
            k(f'ds_read_b128 {vr(8+32*p+4*s,4)}, v{116+p} offset:{1024*s}'); lg.issue(f'r{p}{s}')
        if p == 0:
            for q in range(3):
                k(f'v_lshlrev_b32 v{110+2*q}, 16, v{104+2*q}\nv_and_b32 v{104+2*q}, 0xffff0000, v{104+2*q}')
    for p in range(3):
        a = 8 + 32 * p
        for s in (0, 2, 4, 6):
            x = lg.wait(f'r{p}{s+1}')
            if x: k(x)
            for h in range(2): k(f'v_pk_add_f32 {vr(a+4*s+2*h,2)}, {vr(a+4*s+2*h,2)}, {vr(a+4*s+4+2*h,2)}')
            if s in (2, 6):
                for h in range(2): k(f'v_pk_add_f32 {vr(a+4*s-8+2*h,2)}, {vr(a+4*s-8+2*h,2)}, {vr(a+4*s+2*h,2)}')
        for h in range(2): k(f'v_pk_add_f32 {vr(a+2*h,2)}, {vr(a+2*h,2)}, {vr(a+16+2*h,2)}')
        if opt.get('lean', 0) & 16: k(f'''v_lshlrev_b32 v{a+8}, 16, v{105+2*p}
v_and_b32 v{a+9}, 0xffff0000, v{105+2*p}''')
        else: k(f'''v_cvt_pk_bf16_f32 v{a+4}, v{a}, v{a+1}
v_cvt_pk_bf16_f32 v{a+5}, v{a+2}, v{a+3}
v_lshlrev_b32 v{a+8}, 16, v{105+2*p}
v_and_b32 v{a+9}, 0xffff0000, v{105+2*p}
v_lshlrev_b32 v{a}, 16, v{a+4}
v_and_b32 v{a+1}, 0xffff0000, v{a+4}
v_lshlrev_b32 v{a+2}, 16, v{a+5}
v_and_b32 v{a+3}, 0xffff0000, v{a+5}''')
        k(f'''v_add_f32 v{a}, v{a}, v{110+2*p}
v_add_f32 v{a+1}, v{a+1}, v{104+2*p}
v_pk_add_f32 {vr(a+2,2)}, {vr(a+2,2)}, {vr(a+8,2)}
v_cvt_pk_bf16_f32 v{a+4}, v{a}, v{a+1}
v_cvt_pk_bf16_f32 v{a+5}, v{a+2}, v{a+3}
buffer_store_dwordx2 {vr(a+4,2)}, v{120+p}, s[8:11], s47 offen''')


def gen_g3(opt):
    k = Kern('k4_kernel', 256, 512, 163840, nvgpr=128, nagpr=128)
    END = k.label('end')
    k(f'''s_cmp_ge_u32 s2, 256
s_cbranch_scc1 {END}
s_load_dwordx2 s[40:41], s[0:1], 80
s_load_dwordx2 s[80:81], s[0:1], 64''')
    k.stamp(True)
    map_g2(k)
    k(f'''v_lshrrev_b32 v1, 6, v0
v_and_b32 v2, 63, v0
v_readfirstlane_b32 s34, v1
v_lshlrev_b32 v3, 4, v2
v_lshlrev_b32 v2, 3, v2
s_waitcnt lgkmcnt(0)''')
    g3_wo_setup(k)
    for o in g3_wo_ops(): k(o)
    ph_g3(k, opt, False)
    k.finish(END)
    return k


def wq_role(k, base, END, half=None, fl='', sl=0):
    n = 256 if half is None else 128
    k(f'''s_sub_u32 s33, s2, {base}
s_cmp_ge_u32 s33, {n}
s_cbranch_scc1 {END}
s_load_dwordx2 s[4:5], s[0:1], 40
s_load_dwordx2 s[40:41], s[0:1], 80
{f"s_add_u32 s33, s33, 128" if half else ""}
v_lshrrev_b32 v1, 6, v0
v_and_b32 v2, 63, v0
v_readfirstlane_b32 s34, v1
v_lshlrev_b32 v3, 4, v2
v_lshrrev_b32 v4, 4, v2
v_bfe_u32 v5, v2, 2, 2
v_and_b32 v6, 3, v2
v_lshlrev_b32 v6, 4, v6
v_lshl_add_u32 v6, v4, 12, v6
v_lshl_add_u32 v6, v5, 20, v6
v_and_b32 v7, 15, v2
v_lshlrev_b32 v7, 6, v7
v_lshl_add_u32 v7, v4, 10, v7
s_lshl_b32 s39, s34, 12
v_add_u32 v7, s39, v7
s_bfe_u32 s35, s33, 0x20001
s_lshl_b32 s35, s35, 3
s_bfe_u32 s36, s33, 0x30003
s_add_u32 s35, s35, s36
s_lshr_b32 s36, s33, 6
s_and_b32 s37, s33, 1
s_lshl_b32 s42, s35, 15
s_and_b32 s43, s36, 1
s_lshl_b32 s43, s43, 14
s_add_u32 s42, s42, s43
s_lshr_b32 s43, s36, 1
s_lshl_b32 s43, s43, 22
s_add_u32 s42, s42, s43
s_lshl_b32 s43, s34, 6
s_add_u32 s42, s42, s43
s_lshl_b32 s43, s37, 11
s_add_u32 s42, s42, s43
s_lshl_b32 s44, s35, 3
s_add_u32 s44, s44, s34
s_lshl_b32 s44, s44, 15
s_lshl_b32 s43, s37, 12
s_add_u32 s44, s44, s43
s_lshl_b32 s43, s36, 10
s_add_u32 s44, s44, s43
s_waitcnt lgkmcnt(0)''')
    srd_from(k, 4, 4, 5, 0, 2048 * 4096)
    if sl: k(f's_sleep {sl}')
    M = gen_fft.OPT.get('wqm', 0)
    if M & 4:
        k('s_lshl_b32 s42, s33, 3\ns_add_u32 s42, s42, s34\ns_lshl_b32 s42, s42, 12')
        for g in range(4):
            k(f's_add_u32 m0, s39, 0')
            k(f'buffer_load_dwordx4 v3, s[4:7], s42 offen offset:{1024*g}{fl} lds')
    for g in range(4):
        if M & 6: break
        k(f's_add_u32 m0, s39, {512*g}')
        k(f'buffer_load_dwordx4 v6, s[4:7], s42 offen offset:{512*g}{fl} lds')
    srd_from(k, 8, 40, 41, WS_WS, WSP_BYTES)
    k('s_waitcnt vmcnt(0)')
    for c in range(4): k(f'ds_read_b128 {vr(8+4*c,4)}, v7 offset:{16*c}')
    for c in range(4):
        k(f's_waitcnt lgkmcnt({3-c})')
        if M & 1: continue
        k(f'buffer_store_dwordx4 {vr(8+4*c,4)}, v3, s[8:11], s44 offen{" nt" if M & 8 else ""}{" ; sc1" if M & 16 else " sc1"}')
        if c < 3: k('s_add_u32 s44, s44, 8192')
    k(f's_endpgm')
```

```python
from gen10 import *
import gen10
from gen_fft import code_srd

FT = 0x20000
FP = 0x22000
MAGIC = 0xA7C3E591


def ph_k01(k, opt, wb):
    XP = 1280; EX0 = 10240; EXP = 2576
    P = 1040; W0 = 16 * P; TB1 = 32 * P; TB2 = TB1 + 8192; TB0 = TB2 + 10240; CNT = TB1 - 16
    NT2 = 9 if opt.get('lean', 0) & 1 else 10
    opt['TB2'] = TB2
    PREPB = k.label('prepb'); CS = k.label('cs'); NCP = k.label('ncp'); NW = k.label('nw'); FX = k.label('fx')
    HDR = """s_sub_u32 s33, s2, 168
s_mul_i32 s33, s33, 5
s_add_u32 s33, s33, s34
s_sub_u32 s33, s33, 3
s_mov_b32 s47, s32
"""
    IDLE = k.label('idle'); JOIN = k.label('join'); J1 = k.label('j1'); TAIL = k.label('tail'); PD = k.label('pd'); NF = k.label('nf')
    l0 = len(k.lines)
    k(f'''s_load_dwordx2 s[4:5], s[0:1], 0
s_load_dwordx2 s[40:41], s[0:1], 80
s_load_dwordx4 s[52:55], s[0:1], 8
s_load_dwordx2 s[62:63], s[0:1], 32
s_load_dwordx2 s[64:65], s[0:1], 56
s_load_dwordx2 s[72:73], s[0:1], 40''')
    tab_srd(k, 12)
    k(f'''s_and_b32 s33, s2, 7
s_lshl_b32 s3, s33, 5
s_lshr_b32 s36, s2, 3
s_add_u32 s3, s3, s36
v_lshrrev_b32 v1, 6, v0
v_and_b32 v2, 63, v0
v_readfirstlane_b32 s34, v1
v_lshlrev_b32 v3, 4, v2
''')
    CP0 = opt.get('cp0', 2)
    if CP0:
        k(f's_cmp_ge_u32 s34, {CP0}\ns_cbranch_scc1 {NCP}')
        code_srd(k, 68, CS, 'code_end')
        k(f'''v_lshlrev_b32 v100, 7, v2
s_lshl_b32 s33, s34, 13
buffer_load_ubyte v103, v100, s[68:71], s33 offen
{NCP}:''')
    k(f'''{CS}:
s_lshl_b32 s38, s34, 10
s_add_u32 m0, s38, {TB0}
buffer_load_dwordx4 v3, s[12:15], s38 offen lds
s_lshl_b32 s35, s34, 8
s_add_u32 s35, s35, s3
s_mul_i32 s35, s35, 1280
v_lshlrev_b32 v58, 3, v2
v_lshlrev_b32 v59, 2, v2
v_and_b32 v50, 15, v2
v_lshrrev_b32 v51, 4, v2
s_waitcnt lgkmcnt(0)''')
    srd_from(k, 4, 4, 5, 0, X_BYTES)
    k(f'''buffer_load_dwordx2 v[4:5], v58, s[4:7], s35 offen
buffer_load_dwordx2 v[6:7], v58, s[4:7], s35 offen offset:512
buffer_load_dword v8, v59, s[4:7], s35 offen offset:1024''')
    vm = Cnt('vmcnt', 63); vm.issue('x')
    srd_from(k, 8, 40, 41, WS_T, TU_BYTES)
    PA = k.label('pa'); PB = k.label('pb'); PL = opt.get('pl', 6)
    PAX = opt.get('pax', 0)
    if PAX: PL = 3
    k(f'''s_mul_i32 s32, s34, {14*1024}
s_add_u32 s32, s32, {31*1024}
s_min_u32 s32, s32, {126*1024}
s_add_u32 s32, s32, {BB}
s_cmp_ge_u32 s2, 168
s_cselect_b32 s100, 3, 8
s_cselect_b32 s101, {PL}, 8''')
    if not PAX: k(f's_cmp_lt_u32 s34, s101\ns_cbranch_scc1 {PA}')

    def prepa():
        i0 = len(k.lines)
        prep_inl(k, 'A', 0, None, hdr=HDR)
        for j in range(i0, len(k.lines)):
            l = re.sub(r'\bv10([456])\b', lambda m: f'v{96+int(m.group(1))-4}', k.lines[j])
            if l.startswith('buffer_load') and opt.get('ntm', 0) & 1: l = l[:-4] + ' nt lds'
            if PAX:
                mp = dict(s16='s42', s17='s43', s18='s44', s19='s45', s24='s46', s25='s47', s26='s48', s27='s49', s28='s60', s29='s61', s30='s66', s31='s67', s22='s58', s23='s59')
                l = re.sub(r'\b(s\d+)\b', lambda m: mp.get(m.group(1), m.group(1)), l).replace('s[20:23]', 's[56:59]').replace('s[20:21]', 's[56:57]')
            k.lines[j] = l
    if not PAX:
        prepa()
        k(f'{PA}:')
    if opt.get('twe', 1):
        k(f'''s_lshl_b32 s33, s3, 6
s_add_u32 s33, s33, 32768
s_load_dwordx16 s[16:31], s[12:13], s33
s_load_dwordx2 s[80:81], s[0:1], 64''')

    def late():
        k(f'''s_add_u32 m0, s38, {TB1}
s_add_u32 s37, s38, 0x2000
buffer_load_dwordx4 v3, s[12:15], s37 offen lds
s_min_u32 s39, s34, 4
s_lshl_b32 s39, s39, 11
s_add_u32 m0, s39, {TB2}
s_add_u32 s37, s39, 0x4000
buffer_load_dwordx4 v3, s[12:15], s37 offen lds
buffer_load_dwordx4 v3, s[12:15], s37 offen offset:1024 lds''')
        for _ in range(3): vm.issue('t')

    LT = opt.get('flt', 0)
    if LT == 0: late()
    w_setup(k, 46, 47); w_vaddr(k, 124, 125)
    if opt.get('wd4'): k('s_cmp_ge_u32 s34, 4\ns_cselect_b32 s74, 0, s74')
    WT0 = opt.get('wtn', 0); WP = opt.get('wp', 0)

    def wt0():
        k(f'''s_andn2_b32 s46, s82, 0xfff
s_and_b32 s47, s34, 1
s_lshl_b32 s47, s47, 13
s_add_u32 s46, s46, s47
s_cmp_ge_u32 s34, 6
s_cselect_b32 s46, s46, {BIG}
v_lshlrev_b32 v100, 7, v2''')
        for n in range(WT0):
            k('buffer_load_ubyte v123, v100, s[72:75], s46 offen'); vm.issue('c')
            if n < WT0 - 1: k('s_add_u32 s46, s46, 0x100000')
    if WT0 and WP == 0: wt0()
    q = Bulk(k, wb.ops[:32 - opt.get('wdf', 0)]); wb.ops = []
    WD5 = opt.get('wd5', 0)
    if WD5:
        CUT = 's_mov_b32 s78, s50\ns_mov_b32 s79, s51\ns_cmp_ge_u32 s34, s101\ns_cselect_b32 s74, 0, s74'
        if WD5 < 32: q.ops[31 - WD5] += '\n' + CUT
    k(f'''s_mul_i32 s39, s34, {XP}
v_add_u32 v62, s32, v58
v_add_u32 v63, s32, v59
v_add_u32 v58, s39, v58
v_add_u32 v59, s39, v59
v_lshrrev_b32 v52, 2, v50
v_and_b32 v53, 3, v50
v_lshl_add_u32 v54, v51, 3, v52
v_add_u32 v55, 4, v54
v_subrev_u32 v56, 20, v54
v_min_u32 v54, v54, v56
v_subrev_u32 v56, 20, v55
v_min_u32 v55, v55, v56
v_lshlrev_b32 v53, 3, v53
v_lshl_add_u32 v54, v54, 6, v53
v_lshl_add_u32 v55, v55, 6, v53
v_add_u32 v54, s39, v54
v_add_u32 v55, s39, v55
s_mul_i32 s42, s34, {EXP}
s_add_u32 s42, s42, {EX0}
v_mul_u32_u24 v56, 80, v51
v_add_u32 v57, v56, v50
v_lshlrev_b32 v57, 3, v57
v_add_u32 v60, s42, v57
v_sub_u32 v61, {8*260}, v57
v_add_u32 v61, s42, v61
v_mov_b32 v126, {CNT}
v_mov_b32 v127, 0
ds_write_b32 v126, v127''')
    SB = opt.get('sb', 1)

    def vw2(n):
        L = k.label('pb')
        k(f'''s_cmp_lt_u32 s34, s101
s_cbranch_scc1 {L}
s_waitcnt vmcnt({n+8})
s_branch {L}x
{L}:
s_waitcnt vmcnt({n})
{L}x:''')

    def xwait():
        vw2(len(vm.tags) - 1)
        vm.done = 1
        st(k, 7, 1); st(k, 5, 1)
        if opt.get('xs'):
            k('''ds_write_b64 v62, v[4:5] offset:8192
ds_write_b64 v62, v[6:7] offset:8704
ds_write_b32 v63, v8 offset:9216''')
    if SB and PAX: k(f's_waitcnt vmcnt({len(vm.tags) + 2})')
    elif SB: vw2(len(vm.tags) + 2)
    else: xwait()
    k('s_barrier')
    for i in range(8): k(f'ds_read_b128 {vr(64+4*i,4)}, v3 offset:{TB0+1024*i}')
    if not opt.get('twe', 1):
        k(f'''s_lshl_b32 s33, s3, 6
s_add_u32 s33, s33, 32768
s_load_dwordx16 s[16:31], s[12:13], s33
s_load_dwordx2 s[80:81], s[0:1], 64''')
    if LT == 1: late()
    srd_from(k, 56, 40, 41, WS_FL, 0x80000)
    k(f'''s_lshl_b32 s33, s2, 10
s_cmp_lt_u32 s2, 128
s_cselect_b32 s43, s33, {BIG}
s_add_u32 s33, s33, 0x40000
s_cmp_eq_u32 s34, 1
s_cselect_b32 s33, s33, {BIG}
s_cselect_b32 s44, -1, 0
s_cmp_eq_u32 s34, 0
s_cselect_b32 s33, s43, s33
v_mov_b32 v120, s44
v_mov_b32 v121, s44
v_mov_b32 v122, s44
v_mov_b32 v123, s44
buffer_store_dwordx4 v[120:123], v3, s[56:59], s33 offen''')
    IP = opt.get('ip', 0)
    if not IP: k(f'''s_mul_i32 s33, s3, {8*TP}
s_add_u32 s33, s33, {WS_U}
s_add_u32 s56, s40, s33
s_addc_u32 s57, s41, 0
s_mov_b32 s58, {8*TP}
v_mov_b32 v116, -1
v_mov_b32 v117, -1
v_mov_b32 v118, -1
v_mov_b32 v119, -1
v_lshlrev_b32 v125, 4, v0
s_movk_i32 s33, 0x2000
buffer_store_dwordx4 v[116:119], v125, s[56:59], 0 offen
buffer_store_dwordx4 v[116:119], v125, s[56:59], s33 offen''')
    for _ in range(1 if IP else 3): vm.issue('f')
    if not opt.get('nopf'):
        code_srd(k, 68, CS, 'code_end')
        k(f'''s_cmp_ge_u32 s34, 6
s_cselect_b32 s70, s70, 0
s_bfe_u32 s33, s2, 0x30003
s_lshl_b32 s33, s33, 13
s_and_b32 s43, s34, 1
s_lshl_b32 s43, s43, 16
s_add_u32 s33, s33, s43
s_add_u32 s33, s33, {8192*CP0}
v_lshlrev_b32 v100, 7, v2
buffer_load_ubyte v122, v100, s[68:71], s33 offen''')
        vm.issue('c')
    k(f'''s_bitcmp1_b32 s34, 0
s_cselect_b32 s68, s54, s52
s_cselect_b32 s69, s55, s53
s_cmp_ge_u32 s34, 6
s_cselect_b32 s70, {0 if opt.get('xT') else 2048*642}, 0
s_mov_b32 s71, 0x00020000
v_and_b32 v100, 7, v2
v_lshlrev_b32 v100, 7, v100
v_min_u32 v100, 671, v100
v_lshrrev_b32 v102, 3, v2
v_mul_u32_u24 v102, {8*642}, v102
v_add_u32 v100, v100, v102
s_and_b32 s33, s2, 7
s_lshr_b32 s37, s2, 3
s_lshl_b32 s37, s37, 6
s_add_u32 s33, s33, s37
s_mul_i32 s33, s33, 642
buffer_load_ubyte v123, v100, s[68:71], s33 offen''')
    vm.issue('c')
    if WT0 and WP == 1: wt0()
    if PAX == 1:
        k(f's_cmp_lt_u32 s34, s101\ns_cbranch_scc1 {PA}')
        prepa()
        k(f'{PA}:')
    if SB: xwait()
    if WT0 and WP == 2: wt0()
    i0 = len(k.lines)
    for i in range(5):
        k(f'v_lshlrev_b32 v{10+2*i}, 16, v{4+i}\nv_and_b32 v{11+2*i}, 0xffff0000, v{4+i}')
    k('''v_pk_add_f32 v[20:21], v[10:11], v[12:13]
v_pk_mul_f32 v[22:23], v[10:11], v[10:11]
v_pk_add_f32 v[24:25], v[14:15], v[16:17]
v_pk_fma_f32 v[22:23], v[12:13], v[12:13], v[22:23]
v_pk_add_f32 v[20:21], v[20:21], v[18:19]
v_pk_fma_f32 v[22:23], v[14:15], v[14:15], v[22:23]
v_pk_add_f32 v[20:21], v[20:21], v[24:25]
v_pk_fma_f32 v[22:23], v[16:17], v[16:17], v[22:23]
v_pk_fma_f32 v[22:23], v[18:19], v[18:19], v[22:23]
v_add_f32 v20, v20, v21
v_add_f32 v22, v22, v23''')
    wave_reduce2(k, 20, 22, 36, 37)
    ln_stats(k, 36, 37, 640, 20, 22, 24)
    (ln_apply2 if opt.get('lean', 0) & 2 else ln_apply)(k, 10, 10, 20, 22, 4)
    k('''ds_write_b64 v58, v[4:5]
ds_write_b64 v58, v[6:7] offset:512
ds_write_b32 v59, v8 offset:1024
s_waitcnt lgkmcnt(0)
ds_read_b64_tr_b16 v[4:5], v54
ds_read_b64_tr_b16 v[6:7], v55
ds_read_b64_tr_b16 v[8:9], v54 offset:32
ds_read_b64_tr_b16 v[10:11], v55 offset:32
s_waitcnt lgkmcnt(2)''')
    k(f'''{MFMA} v[12:15], v[4:7], v[64:67], 0
{MFMA} v[16:19], v[4:7], v[68:71], 0
s_waitcnt lgkmcnt(0)
{MFMA} v[20:23], v[8:11], v[64:67], 0
{MFMA} v[24:27], v[8:11], v[68:71], 0''')
    cmul_planar(k, 12, 16, 72, 76, 28, 32, 44)
    cmul_planar(k, 20, 24, 80, 84, 36, 40, 44)
    for t in range(2):
        for h in range(2):
            re_ = 28 + 8 * t + 2 * h; im = 32 + 8 * t + 2 * h; o = 2 * t + h
            k(f'''v_cvt_pk_bf16_f32 v{4+o}, v{re_}, v{re_+1}
v_cvt_pk_bf16_f32 v{8+o}, v{im}, v{im+1}
v_cvt_pk_bf16_f32 v{12+o}, -v{im}, -v{im+1}
v_cvt_pk_bf16_f32 v{16+o}, v{re_}, -v{re_+1}
v_cvt_pk_bf16_f32 v{20+o}, v{im}, -v{im+1}
v_cvt_pk_bf16_f32 v{24+o}, -v{im}, v{im+1}''')
    k(f'''{MFMA} v[28:31], v[88:91], v[4:7], 0
{MFMA} v[32:35], v[92:95], v[4:7], 0
{MFMA} v[36:39], v[88:91], v[16:19], 0
{MFMA} v[40:43], v[92:95], v[16:19], 0
{MFMA} v[28:31], v[92:95], v[12:15], v[28:31]
{MFMA} v[32:35], v[88:91], v[8:11], v[32:35]
{MFMA} v[36:39], v[92:95], v[24:27], v[36:39]
{MFMA} v[40:43], v[88:91], v[20:23], v[40:43]''')
    k('''s_mov_b32 exec_lo, 0x07ff07ff
s_mov_b32 exec_hi, 0x07ff07ff''')
    for r in range(4):
        k(f'ds_write2_b32 v60, v{28+r}, v{32+r} offset0:{40*r} offset1:{40*r+1}')
    for r in range(4):
        k(f'v_xor_b32 v{40+r}, 0x80000000, v{40+r}')
    for r in range(4):
        k(f'ds_write2_b32 v61, v{36+r}, v{40+r} offset0:{40*(3-r)} offset1:{40*(3-r)+1}')
    k('s_mov_b64 exec, -1')
    srd_from(k, 68, 40, 41, WS_FL, FL_BYTES)
    if PAX: vw2(int(re.search(r'\d+', vm.wait('f')).group(0)))
    else: k(vm.wait('f'))
    k('s_waitcnt lgkmcnt(0)')
    st(k, 7, 2); st(k, 5, 2)
    k('s_barrier')
    k(f'''v_cmp_gt_u32 vcc, {TP//4}, v0
s_and_saveexec_b64 s[44:45], vcc
s_cbranch_execz {TAIL}
v_lshlrev_b32 v1, 3, v0
v_lshlrev_b32 v2, 2, v0''')
    for n in range(8):
        k(f'ds_read_b64 {vr(4+2*n,2)}, v1 offset:{EX0+n*EXP}')
    k(f'''v_mov_b32 v40, 0x3f3504f3
s_mul_i32 s46, s3, {8*TP}
s_add_u32 s47, s46, {3*TP}
s_add_u32 s48, s46, {6*TP}
s_waitcnt lgkmcnt(0)
s_barrier''')
    st(k, 7, 3); st(k, 5, 3)
    T = fft8(k, 4, 20, False, 40)
    for k2 in range(8):
        if k2 == 0:
            k(f'v_cvt_pk_bf16_f32 v4, v{T[0]}, v{T[0]+1}')
        else:
            smul(k, T[k2], T[k2], 16 + 2 * k2, 42 + 2 * (k2 & 1))
            k(f'v_cvt_pk_bf16_f32 v{4+k2}, v{T[k2]}, v{T[k2]+1}')
        if IP: k(f'v_and_b32 v{4+k2}, -2, v{4+k2}')
        k(f'buffer_store_dword v{4+k2}, v2, s[8:11], s{46+k2//3} offen offset:{(k2%3)*TP}')
    k('s_mov_b64 exec, -1')
    st(k, 7, 4)
    k(f'''s_bfe_u32 s42, s3, 0x30001
s_lshl_b32 s42, s42, 7
s_lshr_b32 s43, s3, 4
s_lshl_b32 s43, s43, 3
s_add_u32 s42, s42, s43
s_and_b32 s43, s3, 1
s_lshl_b32 s43, s43, 2
s_add_u32 s42, s42, s43
s_add_u32 s42, s42, {FT}
v_lshlrev_b32 v12, 6, v3
v_mov_b32 v13, {MAGIC}
v_mov_b32 v127, 1
s_mov_b64 exec, 1
s_waitcnt vmcnt(0)
ds_add_rtn_u32 v127, v126, v127
s_waitcnt lgkmcnt(0)
v_readfirstlane_b32 s43, v127
s_mov_b64 exec, 0xff
s_and_b32 s43, s43, 0xff
s_cmp_lg_u32 s43, 5
s_cbranch_scc1 {NF}
buffer_store_dword v13, v12, s[68:71], s42 offen
{NF}:
s_mov_b64 exec, -1''')
    st(k, 7, 5)
    CADD = f's_mov_b64 exec, 1\nv_mov_b32 v127, 0x100\nds_add_u32 v126, v127\ns_mov_b64 exec, -1'
    k(f'''v_and_b32 v2, 63, v0
s_cmp_ge_u32 s34, s100
s_cbranch_scc1 {PREPB}
{CADD}
s_branch {J1}
{TAIL}:
s_mov_b64 exec, -1
s_barrier''')
    st(k, 7, 3); st(k, 5, 3)
    k(f's_cmp_lt_u32 s34, s100\ns_cbranch_scc1 {J1}')
    if PAX: k('s_waitcnt vmcnt(0)')
    k(f'{PREPB}:')
    if opt.get('tch') == 2: k(CADD)
    if PL > 3:
        if opt.get('pd'): k(f's_sleep {opt["pd"]}')
        k(f's_cmp_ge_u32 s34, s101\ns_cbranch_scc1 {PB}')
        prepa()
        k(f's_waitcnt vmcnt(0)\n{PB}:')
    i0 = len(k.lines)
    prep_inl(k, 'B', 0, PD, 63, hdr=HDR)
    for j in range(i0, len(k.lines)):
        k.lines[j] = re.sub(r'\bs5([01])\b', lambda m: f's{24+int(m.group(1))}', k.lines[j])
    k(f'''{PD}:
{CADD if not opt.get('tch') else ''}
s_lshl_b32 s42, s33, 2
s_add_u32 s42, s42, {FP}
v_lshlrev_b32 v12, 7, v3
v_mov_b32 v13, {MAGIC}
s_lshl_b32 s33, s3, 6
s_add_u32 s33, s33, 32768
s_load_dwordx16 s[16:31], s[12:13], s33''')
    st(k, 7, 6); st(k, 5, 9)
    k(f'''s_mov_b64 exec, 0xff
s_waitcnt vmcnt(0)
buffer_store_dword v13, v12, s[68:71], s42 offen
s_mov_b64 exec, -1
{CADD if opt.get('tch') == 1 else ''}''')
    st(k, 7, 7)
    for j in range(l0, len(k.lines)):
        l = k.lines[j]
        if l.startswith('buffer_store') and 'sc1' not in l: k.lines[j] = l + ' sc1'
    k(f'{J1}:')
    if WD5:
        k(f's_cmp_lt_u32 s2, {opt.get("wda", 256)}\ns_cselect_b32 s101, 4, 8')
        if WD5 == 32: k(CUT)
    vm = Cnt('vmcnt', 63); vm.issue('q')
    IIM = 'v[112:115]'; IRE = 'v[114:117]'; FIM = 'v[116:119]'; FRE = 'v[118:121]'
    k(f"""v_and_b32 v4, 15, v2
v_lshrrev_b32 v5, 4, v2""")
    k(f"""s_and_b32 s33, s2, 7
s_lshr_b32 s35, s2, 3
v_lshrrev_b32 v7, 2, v2
v_and_b32 v8, 3, v2
v_mul_u32_u24 v6, {16*8*TP}, v7
v_lshl_add_u32 v6, v8, 4, v6
s_lshl_b32 s36, s34, 4
s_add_u32 s36, s36, s33
s_mul_i32 s36, s36, {TP}
s_lshl_b32 s37, s35, 6
s_add_u32 s36, s36, s37
s_add_u32 s42, s36, {8*TP}
s_and_b32 s37, s33, {1-IP}
s_lshl_b32 s37, s37, 2
s_sub_u32 s43, s36, s37
s_sub_u32 s44, s42, s37
s_lshl_b32 s45, s33, 10
s_lshl_b32 s49, s33, 11
s_add_u32 s49, s49, {FP}
s_lshl_b32 s37, s34, 7
s_add_u32 s45, s45, s37
s_add_u32 s45, s45, {FT}
v_and_b32 v9, 31, v2
v_lshlrev_b32 v9, 2, v9""")
    srd_from(k, 60, 40, 41, WS_T, TU_BYTES)
    srd_from(k, 8, 40, 41, WS_T if IP else WS_U, TU_BYTES)
    srd_from(k, 64, 40, 41, WS_WI, WI_BYTES)
    g1id(k, 58, 57)
    k(f"""s_and_b32 s58, s58, 15
s_mul_i32 s58, s58, {140*1024}
s_mov_b32 s56, s32
s_sub_u32 s57, s32, {BB}
s_add_u32 s57, s57, s58""")
    bops = []
    for i in range(14):
        o = f's_add_u32 m0, s56, {1024*(i-i%4)}\n'
        if i % 4 == 0 and i: o += 's_add_u32 s57, s57, 4096\n'
        bops.append(o + f'buffer_load_dwordx4 v3, s[64:67], s57 offen offset:{1024*(i%4)} lds')
    KW = opt.get('KW', [0, 0, 0]); K9 = opt.get('K9', 8); KT = opt.get('KT', 0); KA = opt.get('KA', 0)
    wrest = list(q.ops)
    nw1 = min(len(wrest), KA + KT + KW[0] + KW[1])
    rest = wrest[nw1:] + bops
    if opt.get('bo'): rest = bops + wrest[nw1:]
    post = rest[K9:]
    assert not opt.get('bo') and K9 <= len(wrest) - nw1 and 8 * opt.get('wte', 0) <= nw1
    if opt.get('wt67'): assert K9 == len(wrest) - nw1
    assert len(post) <= KW[2], (len(post), KW)

    def pld():
        k('buffer_load_dwordx4 v[24:27], v3, s[68:71], s49 offen sc1\nbuffer_load_dwordx4 v[28:31], v3, s[68:71], s49 offen offset:736 sc1')

    def pchk(n):
        LP = k.label('lp'); LD = k.label('ld'); L1 = k.label('l1')
        k(f's_mov_b32 s43, {SPIN}\ns_waitcnt vmcnt({n})\ns_branch {L1}\n{LP}:\ns_sleep 4')
        pld()
        k(f'''s_waitcnt vmcnt(0)
{L1}:
v_min3_u32 v13, v24, v25, v26
v_max3_u32 v14, v24, v25, v26
v_min3_u32 v13, v13, v27, v28
v_max3_u32 v14, v14, v27, v28
v_min3_u32 v13, v13, v29, v30
v_max3_u32 v14, v14, v29, v30
v_min_u32 v13, v13, v31
v_max_u32 v14, v14, v31
v_xor_b32 v13, {MAGIC}, v13
v_xor_b32 v14, {MAGIC}, v14
v_or_b32 v24, v13, v14
v_cmp_ne_u32 vcc, 0, v24
s_cbranch_vccz {LD}
s_sub_u32 s43, s43, 1
s_cmp_lg_u32 s43, 0
s_cbranch_scc1 {LP}
{LD}:''')
    k(f's_cmp_ge_u32 s2, 168\ns_cbranch_scc1 {IDLE}')
    q = Bulk(k, wrest[:nw1])
    if opt.get('k1s'):
        k(f"""s_and_b32 s37, s34, 3
s_lshl_b32 s37, s37, 2
v_xor_b32 v12, s37, v7
v_mul_u32_u24 v10, {4*P}, v8
v_lshl_add_u32 v10, v12, 2, v10
s_lshl_b32 s37, s34, 7
v_add_u32 v10, s37, v10
v_bfe_u32 v12, v4, 1, 2
v_xor_b32 v12, v12, v5
v_lshlrev_b32 v12, 4, v12
v_lshl_add_u32 v12, v4, 6, v12
s_mul_i32 s37, s34, {2*P}
v_add_u32 v12, s37, v12""")
    else: k(f"""v_mul_u32_u24 v10, {4*P}, v8
v_lshl_add_u32 v10, v7, 2, v10
s_lshl_b32 s37, s34, 7
v_add_u32 v10, s37, v10
v_lshlrev_b32 v12, 6, v4
v_lshl_add_u32 v12, v5, 4, v12
s_mul_i32 s37, s34, {2*P}
v_add_u32 v12, s37, v12""")
    k(f"""ds_read_b128 v[96:99], v3 offset:{TB1}
ds_read_b128 v[100:103], v3 offset:{TB1+1024}
ds_read_b128 v[104:107], v3 offset:{TB1+2048}
ds_read_b128 v[108:111], v3 offset:{TB1+3072}
ds_read_b128 v[118:121], v3 offset:{TB1+4096}
ds_read_b64 v[116:117], v3 offset:{TB1+5120}
ds_read_b128 v[112:115], v3 offset:{TB1+7168}""")
    st(k, 7, 6)
    assert opt.get('xs')
    LP = k.label('lp'); LD = k.label('ld'); L1 = k.label('l1')
    PL = 'buffer_load_dword v13, v9, s[68:71], s45 offen sc1'
    q(KA, None, 124)
    WLD = """buffer_load_dwordx3 v[80:82], v14, s[52:55], s39 offen
buffer_load_dwordx3 v[88:90], v14, s[4:7], s39 offen
buffer_load_dwordx3 v[84:86], v14, s[52:55], s37 offen
buffer_load_dwordx3 v[92:94], v14, s[4:7], s37 offen
s_and_b32 s39, s33, 1
s_lshl_b32 s39, s39, 4""" if IP else """buffer_load_dwordx2 v[64:65], v14, s[52:55], s39 offen
buffer_load_dwordx2 v[68:69], v14, s[4:7], s39 offen
buffer_load_dwordx2 v[66:67], v14, s[52:55], s37 offen
buffer_load_dwordx2 v[70:71], v14, s[4:7], s37 offen"""
    WF = opt.get('wf', 0)
    WA = f'''s_lshl_b32 s39, s34, 4
s_add_u32 s39, s39, s33
s_mul_i32 s39, s39, 642
s_lshl_b32 s37, s35, 5
s_add_u32 s39, s39, s37
s_and_b32 s39, s39, -4
{f"s_mov_b32 s39, {BIG}" if opt.get('xW') else ""}
s_add_u32 s37, s39, {8*642}
v_mul_u32_u24 v14, {16*8*642}, v7
v_lshl_add_u32 v14, v8, 3, v14
s_mov_b32 s4, s54
s_mov_b32 s5, s55
s_mov_b32 s54, {2048*642}
s_mov_b32 s55, 0x00020000
s_mov_b32 s6, {2048*642}
s_mov_b32 s7, 0x00020000
{WLD}
s_mov_b32 s47, 0x05040100
s_mov_b32 s48, 0x07060302'''

    def wput():
        if IP:
            for j in range(8): k(f'v_alignbit_b32 v{64+j}, v{81+4*(j//2)+(j&1)}, v{80+4*(j//2)+(j&1)}, s39')
        for j in range(8):
            k(f'v_perm_b32 v{72+j}, v{68+j//2}, v{64+j//2}, s{47+(j&1)}')
            k(f'ds_write_b32 v10, v{72+j} offset:{W0+(j&3)*P+64*(j>>2)}')
    if WF:
        if opt.get('wd0'): k(f's_sleep {opt["wd0"]}')
        k(WA)
    if opt.get('td4') is not None:
        LS = k.label('ls')
        k(f's_sleep {opt["td4"]}\ns_bitcmp1_b32 {opt.get("tdm", 0x30)}, s34\ns_cbranch_scc1 {LS}\ns_sleep {opt["td"]-opt["td4"]}\n{LS}:')
    elif opt.get('td'): k(f's_sleep {opt["td"]}')
    if opt.get('tdb'): k('s_barrier')
    if WF:
        k('s_waitcnt vmcnt(0)')
        st(k, 7, 6)
        k(PL)
        wput()
    else: k(PL + '\n' + WA)
    k(f'''s_mov_b32 s46, {SPIN}
s_waitcnt vmcnt({0 if WF else 4})
s_branch {L1}
{LP}:
{f"s_sleep {opt['tsl']}" if opt.get('tsl') else ""}
{PL}
s_waitcnt vmcnt(0)
{L1}:
v_cmp_ne_u32 vcc, {MAGIC}, v13
s_cbranch_vccz {LD}
s_sub_u32 s46, s46, 1
s_cmp_lg_u32 s46, 0
s_cbranch_scc1 {LP}
{LD}:''')
    st(k, 7, 7)
    vm.done = len(vm.tags)
    for i in range(2):
        k(f'buffer_load_dwordx4 {vr(16+4*i,4)}, v6, s[60:63], s{43+i} offen'); vm.issue(f'T{i}')
    if not WF:
        k('s_waitcnt vmcnt(2)')
        wput()
    KTL = opt.get('ktl', 0)
    q(KT - KTL, vm, 124, 'q')
    for i in range(2):
        k(vm.wait(f'T{i}'))
        if i == 0: st(k, 4, 1); st(k, 7, 8)
        for j in range(4):
            k(f'ds_write_b32 v10, v{16+4*i+j} offset:{j*P+64*i}')
    q(KTL, vm, 124, 'q')
    k('s_waitcnt lgkmcnt(0)\ns_barrier')
    NC = 2
    i0 = len(k.lines)
    k(f"""ds_read_b128 v[16:19], v12
ds_read_b128 v[20:23], v12 offset:{P}
ds_read_b128 v[32:35], v12 offset:{W0}
ds_read_b128 v[36:39], v12 offset:{W0+P}
s_waitcnt lgkmcnt(3)
{MFMA} v[48:51], v[16:19], v[96:99], 0
{MFMA} v[52:55], v[16:19], v[100:103], 0
s_waitcnt lgkmcnt(2)
{MFMA} v[56:59], v[20:23], v[96:99], 0
{MFMA} v[60:63], v[20:23], v[100:103], 0
s_waitcnt lgkmcnt(0)""")
    for c in range(NC):
        for r in range(4):
            k(f'v_lshlrev_b32 v{64+8*c+r}, 16, v{32+4*c+r}\nv_and_b32 v{68+8*c+r}, 0xffff0000, v{32+4*c+r}')

    def pack(c, re, im):
        k(f"""v_cvt_pk_bf16_f32 v{16+4*c}, v{re}, v{re+1}
v_cvt_pk_bf16_f32 v{17+4*c}, v{re+2}, v{re+3}
v_cvt_pk_bf16_f32 v{18+4*c}, v{im}, v{im+1}
v_cvt_pk_bf16_f32 v{19+4*c}, v{im+2}, v{im+3}""")
    for c in range(NC):
        cmul_planar(k, 48 + 8 * c, 52 + 8 * c, 104, 108, 80, 84, 88)
        pack(c, 80, 84)
        k(f'{MFMA} {vr(48+8*c,4)}, {FRE}, {vr(16+4*c,4)}, 0')
        k(f'{MFMA} {vr(52+8*c,4)}, {FIM}, {vr(16+4*c,4)}, 0')
    weave_in(k, i0, q, KW[0], vm, 124)
    st(k, 4, 2)
    PC7 = opt.get('pc7', 0)
    def only7(f):
        L = k.label('o7')
        k(f's_cmp_lt_u32 s34, 7\ns_cbranch_scc1 {L}')
        f()
        k(f'{L}:')
    if PC7 == 1: only7(pld)
    i0 = len(k.lines)
    for c in range(NC):
        cmul_planar(k, 48 + 8 * c, 52 + 8 * c, 64 + 8 * c, 68 + 8 * c, 80, 84, 88)
        pack(c, 80, 84)
        k(f'{MFMA} {vr(48+8*c,4)}, {vr(16+4*c,4)}, {IRE}, 0')
        k(f'{MFMA} {vr(52+8*c,4)}, {vr(16+4*c,4)}, {IIM}, 0')
    for c in range(NC):
        cmul_planar(k, 48 + 8 * c, 52 + 8 * c, 104, 108, 80, 84, 88, conj=True)
        pack(c, 80, 84)
        k(f'{MFMA} {vr(48+8*c,4)}, {IRE}, {vr(16+4*c,4)}, 0')
        k(f'{MFMA} {vr(52+8*c,4)}, {IIM}, {vr(16+4*c,4)}, 0')
    weave_in(k, i0, q, KW[1], vm, 124)
    assert not q.ops
    if PC7 == 0: pld()
    if PC7 == 2: only7(pld)
    for c in range(NC):
        for r in range(4):
            k(f'v_cvt_pk_bf16_f32 v{16+4*c+r}, v{48+8*c+r}, v{52+8*c+r}')
        if IP:
            for r in range(4): k(f'v_or_b32 v{16+4*c+r}, 1, v{16+4*c+r}')
        k(f'ds_write_b128 v12, {vr(16+4*c,4)} offset:{c*P}')
    k('s_waitcnt lgkmcnt(0)\ns_barrier')
    for i in range(2):
        for j in range(4):
            k(f'ds_read_b32 v{16+4*i+j}, v10 offset:{j*P+64*i}')
    for i in range(NT2): k(f'ds_read_b128 {vr(64+4*i,4)}, v3 offset:{TB2+1024*i}')
    for i in range(2):
        k(f's_waitcnt lgkmcnt({4+NT2-4*i})')
        k(f'buffer_store_dwordx4 {vr(16+4*i,4)}, v6, s[8:11], {["s36","s42"][i]} offen sc1')
    st(k, 4, 3); st(k, 7, 9)
    st(k, 8, 1)
    if opt.get('ob2'): k('s_barrier')
    st(k, 8, 2)
    if PC7: only7(lambda: pchk(2 + (KW[1] if PC7 == 1 else 0)))
    else: pchk(2)
    st(k, 8, 3)
    Bulk(k, rest[:K9])(99, None, 124)
    st(k, 8, 4)
    k(f's_branch {JOIN}\n{IDLE}:')
    IT = opt.get('it', 2)
    G2M = opt.get('g2m', 0)
    if IT:
        LP = k.label('lp'); LD = k.label('ld')
        k(f'''s_cmp_ge_u32 s34, 3
s_cbranch_scc1 {LD}x
s_sub_u32 s43, s35, 21
s_and_b32 s44, s33, {1-G2M}
s_mul_i32 s44, s44, 11
s_add_u32 s43, s43, s44
s_mul_i32 s44, s34, {22>>G2M}
s_add_u32 s44, s44, s43
s_lshr_b32 s46, s33, {1-G2M}
s_lshl_b32 s46, s46, {18-G2M}
v_lshlrev_b32 v10, 7, v2
s_mov_b32 s43, {SPIN}
{LP}:
ds_read_b32 v11, v126
s_waitcnt lgkmcnt(0)
v_cmp_gt_u32 vcc, 0x800, v11
s_cbranch_vccz {LD}
s_sleep 1
s_sub_u32 s43, s43, 1
s_cmp_lg_u32 s43, 0
s_cbranch_scc1 {LP}
{LD}:''')
        if opt.get('itd'): k(f's_sleep {opt["itd"]}')
        for r in range(opt.get('itn', 4)):
            k(f'''s_and_b32 s47, s44, {31>>G2M}
s_lshl_b32 s47, s47, 13
s_lshr_b32 s48, s44, {5-G2M}
s_lshl_b32 s48, s48, 20
s_add_u32 s47, s47, s48
s_add_u32 s47, s47, s46
buffer_load_ubyte v11, v10, s[72:75], s47 offen
s_add_u32 s44, s44, {66>>G2M}''')
        if opt.get('it2'):
            k(f'''s_and_b32 s47, s33, 1
s_mul_i32 s47, s47, 22
s_sub_u32 s44, s44, s47
s_sub_u32 s44, s44, {4*66-11}''')
            if opt['it2'] == 2: k('s_waitcnt vmcnt(0)')
            for r in range(4):
                k(f'''s_and_b32 s47, s44, 31
s_lshl_b32 s47, s47, 13
s_lshr_b32 s48, s44, 5
s_lshl_b32 s48, s48, 20
s_add_u32 s47, s47, s48
s_add_u32 s47, s47, s46
buffer_load_ubyte v11, v10, s[72:75], s47 offen
s_add_u32 s44, s44, 66''')
        k(f'{LD}x:')
    k('s_barrier')
    st(k, 8, 1)
    IPL = opt.get('ipl', nw1)
    Bulk(k, wrest[:IPL])(99, None, 124)
    if PC7: only7(pld)
    Bulk(k, wrest[IPL:nw1])(99, None, 124)
    st(k, 8, 2)
    for i in range(NT2): k(f'ds_read_b128 {vr(64+4*i,4)}, v3 offset:{TB2+1024*i}')
    if PC7: only7(lambda: pchk(nw1 - IPL))
    else:
        pld()
        pchk(0)
    st(k, 8, 3)
    Bulk(k, rest[:K9])(99, None, 124)
    st(k, 8, 4)
    if opt.get('idl'): k(f's_sleep {opt["idl"]}')
    k(f'{JOIN}:')
    ph_k2b(k, opt, post, 0, True)


def clean(k, wv=0, r=(4, 5, 6)):
    NC_ = k.label('nc')
    k(f'''s_cmp_lg_u32 s34, {wv}
s_cbranch_scc1 {NC_}
s_bfe_u32 s42, s2, 0x30004
s_lshl_b32 s42, s42, 7
s_and_b32 s43, s2, 7
s_lshl_b32 s43, s43, 4
s_add_u32 s42, s42, s43
s_lshr_b32 s43, s2, 7
s_lshl_b32 s43, s43, 3
s_add_u32 s42, s42, s43
s_bfe_u32 s43, s2, 0x10003
s_lshl_b32 s43, s43, 2
s_add_u32 s42, s42, s43
s_add_u32 s42, s42, {FT}
s_lshl_b32 s43, s2, 3
s_add_u32 s43, s43, {FP}
v_lshlrev_b32 v{r[0]}, 6, v3
v_lshlrev_b32 v{r[1]}, 7, v3
v_mov_b32 v{r[2]}, 0
v_mov_b32 v{r[2]+1}, 0
s_mov_b64 exec, 0xff
buffer_store_dword v{r[2]}, v{r[0]}, s[68:71], s42 offen sc1
buffer_store_dwordx2 v[{r[2]}:{r[2]+1}], v{r[1]}, s[68:71], s43 offen sc1
s_mov_b64 exec, -1
{NC_}:''')


def gen_f(opt):
    gen10.CLEAN = clean
    k = Kern('kf_kernel', 256, 512, 163840, nvgpr=128, nagpr=128, nsgpr=102)
    END = k.label('end'); G2 = k.label('g2'); G3 = k.label('g3')
    k(f's_cmp_ge_u32 s2, 256\ns_cbranch_scc1 {END}')
    k.stamp(True)
    wb = Bulk(k, g2_wops())
    ph_k01(k, opt, wb)
    ph_g1t(k, opt, G2, wb)
    k(f'{G2}:')
    st(k, 0, 6)
    vm = Cnt('vmcnt', 63); vm.issue('w')
    g3_wo_setup(k)
    ph_g2(k, opt, G3, vm, True, g3_wo_ops())
    k(f'{G3}:')
    if opt.get('g3v') == 4: pass
    elif opt.get('g3v') == 3: ph_g3w(k, opt)
    elif opt.get('g3v'): ph_g3v(k, opt)
    else: ph_g3(k, opt, True)
    if opt.get('g3v') != 4: clean(k, 4 if opt.get('g3r') else 2 if opt.get('g3k') else 0)
    k.finish(END)
    return [k]
```
